```python
import torch

def _softmax(x, axis=-1):
    return torch.softmax(x, dim=axis)
def _gelu(x):
    return torch.nn.functional.gelu(x, approximate="tanh")
def _silu(x):
    return torch.nn.functional.silu(x)
def _sigmoid(x):
    return torch.sigmoid(x)
def _layernorm(x, axis=-1, eps=1e-5):
    m = x.mean(dim=axis, keepdim=True)
    v = x.var(dim=axis, keepdim=True, unbiased=False)
    return (x - m) / torch.sqrt(v + eps)
def _scatter_add(tgt, idx, src, axis=0):
    return tgt.clone().index_add_(axis, idx, src)
def _segment_sum(src, seg, n):
    out = torch.zeros((n,) + src.shape[1:], dtype=src.dtype)
    return out.index_add_(0, seg, src)
def _pad(x, pw):
    flat = tuple(v for pair in reversed(pw) for v in pair)
    return torch.nn.functional.pad(x, flat)

kernel_name = 'sequential_preLN__linear_kernel_hedgehog__glu_gated_geglu__prompt'

def setup_inputs():

    _w = (lambda a: (lambda t: t.to(torch.bfloat16) if t.is_floating_point() else t)(torch.as_tensor(a)))
    def _A_setup():
        B, S, D, H = 1, 2048, 448, 16
        Dh = D // H
        return {
            "x": _w((lambda *s: torch.randn(*s, dtype=torch.bfloat16) * 0.05)(B, S, D)),
            "wqkv": _w((lambda *s: torch.randn(*s, dtype=torch.bfloat16) * 0.2)(D, 3 * D)),
            "w_phi": _w((lambda *s: torch.randn(*s, dtype=torch.bfloat16) * 0.2)(H, Dh, Dh) * (Dh ** -0.5)),
            "wo": _w((lambda *s: torch.randn(*s, dtype=torch.bfloat16) * 0.05)(D, D)),
        }
    _A_in = _A_setup()

    def _B_setup():
        B, S, Dm, Df = 1, 2048, 448, 1792
        return {
            "x": _w((lambda *s: torch.randn(*s, dtype=torch.bfloat16) * 0.05)(B, S, Dm)),
            "w_gate": _w((lambda *s: torch.randn(*s, dtype=torch.bfloat16) * 0.4)(Dm, Df) * (Dm ** -0.5)),
            "w_up": _w((lambda *s: torch.randn(*s, dtype=torch.bfloat16) * 0.4)(Dm, Df) * (Dm ** -0.5)),
            "w_down": _w((lambda *s: torch.randn(*s, dtype=torch.bfloat16) * 0.4)(Df, Dm) * (Df ** -0.5)),
        }
    _B_in = _B_setup()

    return {
        "A_x": _A_in["x"],
        "A_wqkv": _A_in["wqkv"],
        "A_w_phi": _A_in["w_phi"],
        "A_wo": _A_in["wo"],
        "B_x": _B_in["x"],
        "B_w_gate": _B_in["w_gate"],
        "B_w_up": _B_in["w_up"],
        "B_w_down": _B_in["w_down"],
    }

def reference(A_x, A_wqkv, A_w_phi, A_wo, B_x, B_w_gate, B_w_up, B_w_down):
    def _A_ref(x, wqkv, w_phi, wo):
        B, S, D = x.shape
        H = 16; Dh = D // H
        qkv = (lambda x, *d: x.permute(*d))((x @ wqkv).reshape(B, S, 3, H, Dh), 2, 0, 3, 1, 4)
        q, k, v = qkv[0], qkv[1], qkv[2]
        pq = torch.einsum("bhsd,hdf->bhsf", q, w_phi)
        pk = torch.einsum("bhsd,hdf->bhsf", k, w_phi)
        phi_q = torch.concatenate([_softmax(pq, axis=-1), _softmax(-pq, axis=-1)], axis=-1)
        phi_k = torch.concatenate([_softmax(pk, axis=-1), _softmax(-pk, axis=-1)], axis=-1)
        kv = torch.einsum("bhsf,bhsd->bhfd", phi_k, v)
        z  = torch.einsum("bhsf->bhf", phi_k)
        num = torch.einsum("bhqf,bhfd->bhqd", phi_q, kv)
        den = torch.einsum("bhqf,bhf->bhq", phi_q, z)[..., None] + 1e-6
        o = num / den
        return (lambda x, *d: x.permute(*d))(o, 0, 2, 1, 3).reshape(B, S, D) @ wo

    def _B_ref(x, w_gate, w_up, w_down):
        g = torch.einsum("bsd,df->bsf", x, w_gate)
        u = torch.einsum("bsd,df->bsf", x, w_up)
        h = _gelu(g) * u
        return torch.einsum("bsf,fd->bsd", h, w_down)

    x = A_x
    h = x + _A_ref(_layernorm(x, axis=-1), A_wqkv, A_w_phi, A_wo)
    h2 = h + _B_ref(_layernorm(h, axis=-1), B_w_gate, B_w_up, B_w_down)
    return h2
```

```python
import re

TRANS = ("v_exp_f32", "v_log_f32", "v_rcp_f32", "v_rsq_f32", "v_sqrt_f32", "v_sin_f32", "v_cos_f32")


class Tok:
    __slots__ = ("cnt",)

    def __init__(self, cnt):
        self.cnt = cnt


class Item:
    __slots__ = ("kind", "text", "tok", "toks", "dst", "src", "mn", "srcC", "srcAB")

    def __init__(self, kind, text=None, tok=None, toks=None):
        self.kind = kind
        self.text = text
        self.tok = tok
        self.toks = toks
        self.dst = self.src = None


_reg_re = re.compile(r"^(-?)(?:abs\()?([vas])(?:\[(\d+):(\d+)\]|(\d+))\)?$")


def parse_reg(op):
    op = op.strip()
    if op in ("vcc", "exec", "m0", "scc"):
        return {op}
    if op in ("vcc_lo", "vcc_hi"):
        return {"vcc"}
    if op in ("exec_lo", "exec_hi"):
        return {"exec"}
    m = _reg_re.match(op)
    if not m:
        return set()
    k = m.group(2)
    if m.group(5) is not None:
        return {k + m.group(5)}
    return {k + str(i) for i in range(int(m.group(3)), int(m.group(4)) + 1)}


def split_ops(text):
    t = text.split(";")[0].strip()
    parts = t.split(None, 1)
    mn = parts[0]
    if len(parts) == 1:
        return mn, [], ""
    rest = parts[1]
    ops = []
    depth = 0
    cur = ""
    for ch in rest:
        if ch == "[":
            depth += 1
        elif ch == "]":
            depth -= 1
        if ch == "," and depth == 0:
            ops.append(cur.strip())
            cur = ""
        else:
            cur += ch
    last = cur.strip().split()
    mods = " ".join(last[1:]) if len(last) > 1 else ""
    if last:
        ops.append(last[0])
    return mn, ops, mods


def analyze(it):
    mn, ops, mods = split_ops(it.text)
    mn = re.sub(r"_(e32|e64)$", "", mn)
    it.mn = mn
    R = [parse_reg(o) for o in ops]
    allr = lambda rs: set().union(*rs) if rs else set()
    dst, src = set(), set()
    it.srcC = set()
    it.srcAB = set()
    if mn.startswith("v_mfma"):
        dst = R[0]
        it.srcAB = R[1] | R[2]
        it.srcC = R[3]
        src = it.srcAB | it.srcC
    elif mn.startswith("v_cmp"):
        dst = R[0]
        src = allr(R[1:])
    elif mn in ("v_readfirstlane_b32", "v_readlane_b32"):
        dst = R[0]
        src = allr(R[1:])
    elif "permlane" in mn or mn == "v_swap_b32":
        dst = R[0] | R[1]
        src = R[0] | R[1]
    elif mn.startswith("v_"):
        dst = set(R[0])
        rest = R[1:]
        if "_co_" in mn:
            dst |= R[1]
            rest = R[2:]
        src = allr(rest)
        if mn.startswith(("v_fmac", "v_dot2c", "v_pk_fmac")) or "_dpp" in mn or mn == "v_writelane_b32":
            src |= R[0]
        if mn == "v_cndmask_b32" and len(ops) == 3:
            src |= {"vcc"}
    elif mn.startswith("ds_"):
        if mn.startswith(("ds_read", "ds_bpermute", "ds_permute", "ds_swizzle")) or "_rtn" in mn:
            dst = R[0]
            src = allr(R[1:])
            if "d16" in mn:
                src |= R[0]
        else:
            src = allr(R)
    elif mn.startswith("buffer_"):
        if mn.startswith("buffer_load"):
            if re.search(r"\blds\b", mods):
                src = allr(R) | {"m0"}
            else:
                dst = R[0]
                src = allr(R[1:])
                if "d16" in mn:
                    src |= R[0]
        elif mn.startswith("buffer_atomic"):
            src = allr(R)
            if re.search(r"\bsc0\b", mods):
                dst = R[0]
        else:
            src = allr(R)
    elif mn.startswith("global_"):
        if mn.startswith("global_load"):
            dst = R[0]
            src = allr(R[1:])
        else:
            src = allr(R)
    elif mn.startswith("s_"):
        if mn.startswith(("s_cmp", "s_cbranch", "s_branch", "s_waitcnt", "s_nop", "s_barrier", "s_sleep", "s_endpgm",
                          "s_setprio", "s_bitcmp")):
            src = allr(R)
        else:
            dst = R[0] if R else set()
            src = allr(R[1:])
            if "saveexec" in mn:
                dst = dst | {"exec"}
    it.dst, it.src = dst, src


def is_valu(mn):
    return mn.startswith("v_") and not mn.startswith("v_mfma")


def is_mfma(mn):
    return mn.startswith("v_mfma")


def passes(mn):
    return 8 if "32x32" in mn else 4


def is_vmem(mn):
    return mn.startswith(("buffer_", "global_"))


def is_ds(mn):
    return mn.startswith("ds_")


def vregs(s):
    return {r for r in s if r[0] in "va" and r not in ("vcc",)}


def sregs(s):
    return {r for r in s if (r[0] == "s" and r != "scc") or r == "vcc"}


def need(p, c):
    n = 0
    pm, cm = p.mn, c.mn
    if is_valu(pm):
        pv = vregs(p.dst)
        if pv:
            if is_mfma(cm) and pv & c.src:
                n = max(n, 2)
            if "permlane" in cm and pv & c.src:
                n = max(n, 2)
            if "_dpp" in cm and pv & c.src:
                n = max(n, 2)
            if cm in ("v_readfirstlane_b32", "v_readlane_b32") and pv & c.src:
                n = max(n, 1)
            if pm in TRANS and (is_valu(cm) or is_vmem(cm) or is_ds(cm)) and pv & c.src:
                n = max(n, 1)
            if pm.startswith("v_dot"):
                if pv & (c.src | c.dst):
                    same_c = False
                    if cm == pm:
                        mn, ops, _ = split_ops(c.text)
                        ab = parse_reg(ops[1]) | parse_reg(ops[2])
                        same_c = not (pv & ab)
                    if not same_c:
                        n = max(n, 3)
        ps = sregs(p.dst)
        if ps:
            if (is_valu(cm) or is_mfma(cm)) and ps & c.src:
                n = max(n, 4 if cm in ("v_readlane_b32", "v_writelane_b32") else 2)
            if is_vmem(cm) and ps & c.src:
                n = max(n, 5)
            if cm.startswith("s_") and ps & c.src:
                n = max(n, 2)
    if is_mfma(pm):
        ps_ = passes(pm)
        if is_mfma(cm):
            if p.dst & c.srcAB:
                n = max(n, ps_ + 4)
            if p.dst & c.srcC:
                if p.dst == c.srcC and passes(cm) == ps_:
                    pass
                else:
                    n = max(n, ps_ + 2)
            elif p.dst & c.dst:
                n = max(n, ps_ + 2)
        else:
            if p.dst & (c.src | c.dst):
                n = max(n, ps_ + 4)
            if p.srcC & c.dst:
                n = max(n, ps_ - 1)
    if pm.startswith("s_") and "m0" in p.dst and "m0" in c.src and (is_vmem(cm) or is_ds(cm)):
        n = max(n, 1)
    if re.match(r"(buffer|global)_store_dwordx[34]", pm) or pm in ("ds_write_b128x",):
        mn, ops, _ = split_ops(p.text)
        data = parse_reg(ops[0]) if pm.startswith("buffer") else parse_reg(ops[1])
        if data & c.dst:
            n = max(n, 2)
    return n


class Gen:
    def __init__(self):
        self.items = []
        self._stack = []
        self._nlabel = 0

    def begin(self):
        self._stack.append(self.items)
        self.items = []

    def end(self):
        s = self.items
        self.items = self._stack.pop()
        return s

    def put(self, stream):
        self.items.extend(stream)

    def I(self, text):
        for line in text.split("\n"):
            line = line.strip()
            if not line:
                continue
            mn = line.split()[0]
            tok = None
            if mn.startswith(("buffer_", "global_")):
                tok = Tok("vm")
            elif mn.startswith("ds_"):
                tok = Tok("lgkm")
            elif mn.startswith(("s_load", "s_memtime", "s_memrealtime", "s_buffer_load")):
                tok = Tok("smem")
            self.items.append(Item("i", line, tok))
        return tok

    def label(self, name):
        self.items.append(Item("label", name))

    def newlabel(self, p="L"):
        self._nlabel += 1
        return f"{p}_{self._nlabel}"

    def wait(self, *toks):
        toks = [t for t in toks if t is not None]
        if toks:
            self.items.append(Item("wait", toks=toks))

    def wait_all(self, vm=True, lgkm=True):
        t = []
        if vm:
            t.append("vmcnt(0)")
        if lgkm:
            t.append("lgkmcnt(0)")
        self.items.append(Item("i", "s_waitcnt " + " ".join(t)))

    def cond_begin(self):
        self.items.append(Item("push"))

    def cond_end(self):
        self.items.append(Item("pop"))

    def comment(self, s):
        self.items.append(Item("raw", "; " + s))

    def raw(self, s):
        self.items.append(Item("raw", s))

    def resolve_waits(self):
        out = []
        vm, lg = [], []
        smem_pending = False
        saved = []
        for it in self.items:
            if it.kind == "push":
                saved.append((list(vm), list(lg), smem_pending))
            elif it.kind == "pop":
                sp = smem_pending
                vm, lg, smem_pending = saved.pop()
                smem_pending = smem_pending or sp
            elif it.kind == "i":
                mn = it.text.split()[0]
                if mn == "s_waitcnt":
                    m = re.search(r"vmcnt\((\d+)\)", it.text)
                    if m:
                        k = int(m.group(1))
                        vm = vm[len(vm) - k:] if k < len(vm) else vm
                        if k == 0:
                            vm = []
                    m = re.search(r"lgkmcnt\((\d+)\)", it.text)
                    if m:
                        k = int(m.group(1))
                        if k == 0:
                            lg = []
                            smem_pending = False
                        elif not smem_pending:
                            lg = lg[len(lg) - k:] if k < len(lg) else lg
                elif it.tok is not None:
                    if it.tok.cnt == "vm":
                        vm.append(it.tok)
                    elif it.tok.cnt == "lgkm":
                        lg.append(it.tok)
                    else:
                        smem_pending = True
                        lg.append(it.tok)
                out.append(it)
            elif it.kind == "wait":
                nv = nl = None
                for t in it.toks:
                    if t.cnt == "vm":
                        if t in vm:
                            k = len(vm) - 1 - vm.index(t)
                            nv = k if nv is None else min(nv, k)
                    else:
                        if t in lg:
                            k = len(lg) - 1 - lg.index(t)
                            if smem_pending:
                                k = 0
                            nl = k if nl is None else min(nl, k)
                parts = []
                if nv is not None:
                    nv = min(nv, 63)
                    parts.append(f"vmcnt({nv})")
                    vm = vm[len(vm) - nv:] if nv else []
                if nl is not None:
                    nl = min(nl, 15)
                    parts.append(f"lgkmcnt({nl})")
                    lg = lg[len(lg) - nl:] if nl else []
                    if nl == 0:
                        smem_pending = False
                if parts:
                    out.append(Item("i", "s_waitcnt " + " ".join(parts)))
            else:
                out.append(it)
        self.items = out

    def fix_hazards(self):
        items = self.items
        for it in items:
            if it.kind == "i":
                analyze(it)
        MAXD = 14
        changed = True
        while changed:
            changed = False
            labels = {it.text: i for i, it in enumerate(items) if it.kind == "label"}
            preds = {}
            for i, it in enumerate(items):
                if it.kind == "i" and it.mn.startswith(("s_cbranch", "s_branch")):
                    tgt = it.text.split()[1]
                    if tgt in labels:
                        preds.setdefault(labels[tgt], []).append(i)
            for i, c in enumerate(items):
                if c.kind != "i" or c.mn in ("s_nop", "s_waitcnt"):
                    continue
                worst = 0
                stack = [(i - 1, 0)]
                seen = set()
                while stack:
                    k, d = stack.pop()
                    while k >= 0 and d < MAXD:
                        if (k, d) in seen:
                            break
                        seen.add((k, d))
                        p = items[k]
                        if p.kind == "label":
                            for s in preds.get(k, []):
                                stack.append((s, d))
                            k -= 1
                            continue
                        if p.kind != "i":
                            k -= 1
                            continue
                        if p.mn in ("s_branch", "s_endpgm") and k != i - 1 and not _came_via_branch(k, stack, seen, preds):
                            pass
                        n = need(p, c)
                        if n > d:
                            worst = max(worst, n - d)
                        if p.mn == "s_nop":
                            d += int(p.text.split()[1], 0) + 1
                        else:
                            d += 1
                        k -= 1
                if worst > 0:
                    nop = Item("i", f"s_nop {worst - 1}")
                    analyze(nop)
                    items.insert(i, nop)
                    changed = True
                    break
        self.items = items

    def fix_hazards_fast(self):
        items = self.items
        for it in items:
            if it.kind == "i":
                analyze(it)
        MAXD = 14
        for _round in range(3):
            labels = {it.text: i for i, it in enumerate(items) if it.kind == "label"}
            brs = {}
            for it in items:
                if it.kind == "i" and it.mn.startswith(("s_cbranch", "s_branch")):
                    brs.setdefault(it.text.split()[1], []).append(it)
            index_of = {id(it): i for i, it in enumerate(items)}
            out = []
            ins = 0
            inserted_before = {}
            for i, c in enumerate(items):
                if c.kind == "i" and c.mn not in ("s_nop", "s_waitcnt"):
                    worst = 0
                    stack = [(i - 1, 0)]
                    seen = set()
                    while stack:
                        k, d = stack.pop()
                        while k >= 0 and d < MAXD:
                            if (k, d) in seen:
                                break
                            seen.add((k, d))
                            p = items[k]
                            if p.kind == "label":
                                for b in brs.get(p.text, []):
                                    stack.append((index_of[id(b)], d))
                                k -= 1
                                continue
                            if p.kind != "i":
                                k -= 1
                                continue
                            n = need(p, c)
                            if n > d:
                                worst = max(worst, n - d)
                            if p.mn == "s_nop":
                                d += int(p.text.split()[1], 0) + 1
                            else:
                                d += 1
                            d += inserted_before.get(k, 0)
                            k -= 1
                    if worst > 0:
                        nop = Item("i", f"s_nop {worst - 1}")
                        analyze(nop)
                        out.append(nop)
                        inserted_before[i] = worst
                        ins += 1
                out.append(c)
            items = out
            if ins == 0:
                break
        self.items = items

    def text(self):
        L = []
        for it in self.items:
            if it.kind == "i":
                L.append("  " + it.text)
            elif it.kind == "label":
                L.append(it.text + ":")
            elif it.kind == "raw":
                L.append(it.text)
        return "\n".join(L)


def _came_via_branch(*a):
    return False


def interleave(main, side, every=1, per=1, start=0):
    out = []
    si = 0
    nm = 0

    def take(n):
        nonlocal si
        k = 0
        while si < len(side) and k < n:
            it = side[si]
            out.append(it)
            si += 1
            if it.kind == "i":
                k += 1

    for it in main:
        out.append(it)
        if it.kind == "i" and it.text.startswith("v_mfma"):
            nm += 1
            if nm > start and (nm - start) % every == 0:
                take(per)
    take(1 << 30)
    return out
```

```python
import sys, math, struct
sys.path.insert(0, "dev")
from gen import *

NAME = "sequential_preLN__linear_kernel_hedgehog__glu_gated_geglu__prompt"
STAMPS = int(sys.argv[2]) if len(sys.argv) > 2 else 0


def f32(x):
    return "0x%08x" % struct.unpack("<I", struct.pack("<f", x))[0]


WS_CNT = 0x0
WS_CS = 0x10000
WS_ST = 0x50000
WS_KVP = 0x100000
WS_O = 0x200000
WS_H = 0x400000
WS_HH = 0x600000
WS_STAMP = 0xE00000
CNT_KV, CNT_O, CNT_H, CNT_HH = 0, 1, 2, 3

sX, sWQKV, sWPHI, sWO, sWG, sWU, sWD, sOUT, sDBG, sWS = 8, 12, 16, 20, 24, 28, 32, 36, 40, 44
sG, sJ, sW = 48, 49, 50
sT0, sT1, sT2, sT3, sT4, sT5 = 51, 52, 53, 54, 55, 56
sMT = 57
sLW = 58
sSTAMP = 86


def srd(r):
    return f"s[{r}:{r+3}]"


def vr(a, n=1):
    return f"v{a}" if n == 1 else f"v[{a}:{a+n-1}]"


def ar(a, n=1):
    return f"a{a}" if n == 1 else f"a[{a}:{a+n-1}]"


g = Gen()
I = g.I
nstamp = [0]


def stamp():
    if not STAMPS:
        return
    k = nstamp[0]
    nstamp[0] += 1
    g.cond_begin()
    I(f"s_memtime s[{sSTAMP}:{sSTAMP+1}]")
    I("s_waitcnt lgkmcnt(0)")
    I(f"v_mov_b32 v255, s{sSTAMP}")
    I(f"buffer_store_dword v255, v254, {srd(sWS)}, 0 offen offset:{4*k}")
    g.cond_end()


vLANE, vHB, vM = 1, 2, 3
vL16 = 4
vT0, vT1, vT2, vT3, vT4, vT5 = 5, 6, 7, 8, 9, 10
vFLAG = 11
vONE = 12
vCNT = 13

LDS_WK = 114688
LDS_RED = 114688
LDS_MISC = 143360 + 4096
LDS_KVF = 147456
LDS_CS = 151552


def prologue():
    I("s_cmp_ge_u32 s2, 256")
    I("s_cbranch_scc1 L_end")
    I("s_load_dwordx16 s[64:79], s[0:1], 0")
    I("s_load_dwordx4 s[80:83], s[0:1], 64")
    I("s_load_dwordx2 s[84:85], s[0:1], 80")
    I(f"v_and_b32 v{vLANE}, 63, v0")
    I(f"v_lshrrev_b32 v{vT0}, 6, v0")
    I(f"v_readfirstlane_b32 s{sW}, v{vT0}")
    I(f"v_lshrrev_b32 v{vHB}, 5, v{vLANE}")
    I(f"v_and_b32 v{vM}, 31, v{vLANE}")
    I(f"v_lshlrev_b32 v{vL16}, 4, v{vLANE}")
    I(f"v_mov_b32 v{vONE}, 1")
    I(f"s_and_b32 s{sG}, s2, 7")
    I(f"s_lshl_b32 s{sG}, s{sG}, 1")
    I(f"s_lshr_b32 s{sT0}, s2, 3")
    I(f"s_and_b32 s{sT0}, s{sT0}, 1")
    I(f"s_add_u32 s{sG}, s{sG}, s{sT0}")
    I(f"s_lshr_b32 s{sJ}, s2, 4")
    I(f"s_lshl_b32 s{sMT}, s{sG}, 2")
    I(f"s_add_u32 s{sMT}, s{sMT}, s{sW}")
    I(f"s_mul_i32 s{sLW}, s{sW}, 28672")
    I("s_waitcnt lgkmcnt(0)")
    for r, p, n in ((sX, 64, 1835008), (sWQKV, 66, 1204224), (sWPHI, 68, 25088), (sWO, 70, 401408),
                    (sWG, 74, 1605632), (sWU, 76, 1605632), (sWD, 78, 1605632), (sOUT, 80, 1835008),
                    (sDBG, 82, 256), (sWS, 84, 0x10000000)):
        I(f"s_mov_b32 s{r}, s{p}")
        I(f"s_mov_b32 s{r+1}, s{p+1}")
        I(f"s_mov_b32 s{r+2}, {n}")
        I(f"s_mov_b32 s{r+3}, 0x20000")
    if STAMPS:
        I(f"s_lshl_b32 s{sT0}, s2, 2")
        I(f"s_add_u32 s{sT0}, s{sT0}, s{sW}")
        I(f"s_lshl_b32 s{sT0}, s{sT0}, 7")
        I(f"s_add_u32 s{sT0}, s{sT0}, {WS_STAMP}")
        I(f"v_mov_b32 v254, s{sT0}")
    lab = g.newlabel("L_init")
    I(f"s_lshl_b32 s{sT0}, s2, 2")
    I(f"s_add_u32 s{sT0}, s{sT0}, s{sW}")
    I(f"s_cmp_lg_u32 s{sT0}, 3")
    I(f"s_cbranch_scc1 {lab}")
    g.cond_begin()
    I(f"v_lshlrev_b32 v{vT0}, 8, v{vLANE}")
    I(f"v_mov_b32 v{vT1}, 0")
    I(f"buffer_store_dword v{vT1}, v{vT0}, {srd(sWS)}, 0 offen sc1")
    I("s_waitcnt vmcnt(0)")
    I("s_mov_b64 exec, 1")
    I(f"buffer_store_dword v{vONE}, v{vT1}, {srd(sDBG)}, 0 offen sc1")
    I("s_mov_b64 exec, -1")
    g.cond_end()
    g.label(lab)


POLL_MAX = 200000


def poll(srdreg, voff, target):
    lp, ld = g.newlabel("L_poll"), g.newlabel("L_pdone")
    I(f"s_mov_b32 s{sT5}, 0")
    g.label(lp)
    I(f"buffer_load_dword v{vFLAG}, v{voff}, {srd(srdreg)}, 0 offen sc1")
    I("s_waitcnt vmcnt(0)")
    I(f"v_readfirstlane_b32 s{sT4}, v{vFLAG}")
    I(f"s_add_u32 s{sT5}, s{sT5}, 1")
    I(f"s_cmp_ge_u32 s{sT5}, {POLL_MAX}")
    I(f"s_cbranch_scc1 {ld}")
    I(f"s_cmp_lt_u32 s{sT4}, {target}")
    I(f"s_cbranch_scc1 {lp}")
    g.label(ld)


def signal(kind, sidx, first=False):
    g.wait_all(lgkm=False)
    I("s_barrier")
    lab = g.newlabel("L_sig")
    I(f"s_cmp_lg_u32 s{sW}, 0")
    I(f"s_cbranch_scc1 {lab}")
    g.cond_begin()
    I("s_mov_b64 exec, 1")
    if first:
        I(f"v_mov_b32 v{vCNT}, 0")
        poll(sDBG, vCNT, 1)
    I(f"s_lshl_b32 s{sT0}, s{sidx}, 8")
    I(f"s_add_u32 s{sT0}, s{sT0}, {WS_CNT + kind * 4096}")
    I(f"v_mov_b32 v{vCNT}, s{sT0}")
    I(f"buffer_atomic_add v{vONE}, v{vCNT}, {srd(sWS)}, 0 offen sc1")
    I("s_mov_b64 exec, -1")
    g.cond_end()
    g.label(lab)


def waitcnt_flag(kind, sidx, target=16):
    lab = g.newlabel("L_w")
    I(f"s_cmp_lg_u32 s{sW}, 0")
    I(f"s_cbranch_scc1 {lab}")
    g.cond_begin()
    I("s_mov_b64 exec, 1")
    I(f"s_lshl_b32 s{sT0}, s{sidx}, 8")
    I(f"s_add_u32 s{sT0}, s{sT0}, {WS_CNT + kind * 4096}")
    I(f"v_mov_b32 v{vCNT}, s{sT0}")
    poll(sWS, vCNT, target)
    I("s_mov_b64 exec, -1")
    g.cond_end()
    g.label(lab)
    I("s_barrier")


def dma(vaddr, srdreg, soff_sreg, lds_expr_sreg, lds_imm):
    if lds_expr_sreg is None:
        I(f"s_mov_b32 m0, {lds_imm}")
    else:
        I(f"s_add_u32 m0, s{lds_expr_sreg}, {lds_imm}")
    return I(f"buffer_load_dwordx4 v{vaddr}, {srd(srdreg)}, s{soff_sreg} offen lds")


def chain32(acc, afrag, bfrag, rd, n=28, swap=False, depth=3, wf=None, first_c="0"):
    toks = {}
    nb = depth + 1
    for c in range(min(depth, n)):
        toks[c] = rd(c, wf + 4 * (c % nb))
    for c in range(n):
        if c + depth < n:
            toks[c + depth] = rd(c + depth, wf + 4 * ((c + depth) % nb))
        g.wait(toks[c])
        W = vr(wf + 4 * (c % nb), 4)
        X = bfrag(c)
        C = vr(acc, 16) if (c > 0 or first_c is None) else first_c
        if swap:
            I(f"v_mfma_f32_32x32x16_bf16 {vr(acc,16)}, {X}, {W}, {C}")
        else:
            I(f"v_mfma_f32_32x32x16_bf16 {vr(acc,16)}, {W}, {X}, {C}")


LOG2E = 1.4426950408889634


def featmap(acc, tmp, wphi, outP, outM):
    pk = tmp
    p = tmp + 8
    e = tmp + 24
    mx, mn, t0, t1 = tmp + 40, tmp + 41, tmp + 42, tmp + 43
    for i in range(8):
        I(f"v_cvt_pk_bf16_f32 v{pk+i}, v{acc+2*i}, v{acc+2*i+1}")
    I(f"v_mfma_f32_32x32x16_bf16 {vr(p,16)}, {vr(wphi,4)}, {vr(pk,4)}, 0")
    I(f"v_mfma_f32_32x32x16_bf16 {vr(p,16)}, {vr(wphi+4,4)}, {vr(pk+4,4)}, {vr(p,16)}")
    I(f"v_max3_f32 v{mx}, v{p}, v{p+1}, v{p+2}")
    I(f"v_min3_f32 v{mn}, v{p}, v{p+1}, v{p+2}")
    for i in range(3, 13, 2):
        I(f"v_max3_f32 v{mx}, v{mx}, v{p+i}, v{p+i+1}")
        I(f"v_min3_f32 v{mn}, v{mn}, v{p+i}, v{p+i+1}")
    I(f"v_max_f32 v{mx}, v{mx}, v{p+13}")
    I(f"v_min_f32 v{mn}, v{mn}, v{p+13}")
    I(f"v_mov_b32 v{t0}, v{mx}")
    I(f"v_mov_b32 v{t1}, v{mn}")
    I(f"v_permlane32_swap_b32 v{mx}, v{t0}")
    I(f"v_permlane32_swap_b32 v{mn}, v{t1}")
    I(f"v_max_f32 v{mx}, v{mx}, v{t0}")
    I(f"v_min_f32 v{mn}, v{mn}, v{t1}")
    I(f"v_mul_f32 v{mx}, {f32(-LOG2E)}, v{mx}")
    I(f"v_mul_f32 v{mn}, {f32(LOG2E)}, v{mn}")
    I(f"s_mov_b32 s{sT0}, {f32(LOG2E)}")
    for sign, out, b in ((+1, outP, mx), (-1, outM, mn)):
        for i in range(14):
            if sign > 0:
                I(f"v_fma_f32 v{e+i}, v{p+i}, s{sT0}, v{b}")
            else:
                I(f"v_fma_f32 v{e+i}, -v{p+i}, s{sT0}, v{b}")
        for i in range(14):
            I(f"v_exp_f32 v{e+i}, v{e+i}")
        I(f"v_add_f32 v{t0}, v{e}, v{e+1}")
        I(f"v_add_f32 v{t1}, v{e+2}, v{e+3}")
        for i in range(4, 14, 2):
            I(f"v_add_f32 v{t0}, v{t0}, v{e+i}")
            I(f"v_add_f32 v{t1}, v{t1}, v{e+i+1}")
        I(f"v_add_f32 v{t0}, v{t0}, v{t1}")
        I(f"v_mov_b32 v{t1}, v{t0}")
        I(f"v_permlane32_swap_b32 v{t0}, v{t1}")
        I(f"v_add_f32 v{t0}, v{t0}, v{t1}")
        I(f"v_rcp_f32 v{t0}, v{t0}")
        for i in range(14):
            I(f"v_mul_f32 v{e+i}, v{e+i}, v{t0}")
        for i in range(7):
            I(f"v_cvt_pk_bf16_f32 v{out+i}, v{e+2*i}, v{e+2*i+1}")
        I(f"v_mov_b32 v{out+7}, 0")


XF = 16
WRV = 128
WRQ = 156
WPHI = 184
SEL = 192
ACC = 200
WF = 216
vXA0, vXA1, vWA, vTR, vTR2 = 232, 233, 234, 235, 236
vXR = 237
PHQ = 240


def phaseA():
    g.comment("==== phase A ====")
    I(f"v_lshrrev_b32 v{vT0}, 3, v{vLANE}")
    I(f"v_mul_u32_u24 v{vT0}, 896, v{vT0}")
    I(f"v_and_b32 v{vT1}, 7, v{vLANE}")
    I(f"v_lshrrev_b32 v{vT2}, 4, v{vLANE}")
    I(f"v_xor_b32 v{vT3}, v{vT1}, v{vT2}")
    I(f"v_lshl_add_u32 v{vXA0}, v{vT3}, 4, v{vT0}")
    I(f"v_xor_b32 v{vT3}, 4, v{vT3}")
    I(f"v_lshl_add_u32 v{vXA1}, v{vT3}, 4, v{vT0}")
    I(f"v_lshrrev_b32 v{vT0}, 2, v{vLANE}")
    I(f"v_mul_u32_u24 v{vT0}, 2688, v{vT0}")
    I(f"v_and_b32 v{vT1}, 3, v{vLANE}")
    I(f"v_lshl_add_u32 v{vWA}, v{vT1}, 4, v{vT0}")
    I(f"v_mul_u32_u24 v{vT0}, 224, v{vHB}")
    I(f"v_subrev_u32 v{vT1}, 2, v{vM}")
    I(f"v_cmp_gt_u32 vcc, 26, v{vM}")
    I(f"v_cndmask_b32 v{vT1}, v{vT1}, v{vM}, vcc")
    I(f"v_lshl_add_u32 v{vT0}, v{vT1}, 1, v{vT0}")
    I(f"v_and_b32 v{vT1}, 26, v{vM}")
    I(f"v_cmp_eq_u32 vcc, 26, v{vT1}")
    I(f"v_mov_b32 v{vT2}, 0x7ff00000")
    I(f"v_cndmask_b32 v{vT0}, v{vT0}, v{vT2}, vcc")
    I(f"v_cmp_eq_u32 vcc, 1, v{vHB}")
    I(f"v_cndmask_b32 v{vT1}, v{vT0}, v{vT2}, vcc")
    I(f"s_mul_i32 s{sT0}, s{sJ}, 1568")
    tphi = None
    for c in range(2):
        for jj in range(8):
            d0 = 16 * c + (jj & 3) + 8 * (jj >> 2)
            va = vT1 if (c == 1 and jj >= 4) else vT0
            dst = (244 + 4 * c + jj // 2) if jj & 1 else (WPHI + 4 * c + jj // 2)
            tphi = I(f"buffer_load_ushort v{dst}, v{va}, {srd(sWPHI)}, s{sT0} offen offset:{d0*56}")
    I(f"s_mul_i32 s{sT0}, s{sMT}, {32*896}")
    tx = {}
    for seg in range(7):
        for o in range(4):
            I(f"s_add_u32 s{sT1}, s{sT0}, {o*8*896 + seg*128}")
            tx[seg] = dma(vXA1 if o & 1 else vXA0, sX, sT1, sLW, (o * 7 + seg) * 1024)
    I(f"s_mul_i32 s{sT0}, s{sJ}, 56")
    I(f"s_and_b32 s{sT1}, s{sJ}, 1")
    I(f"s_lshl_b32 s{sT1}, s{sT1}, 3")
    I(f"s_sub_u32 s{sT0}, s{sT0}, s{sT1}")
    I(f"s_mul_i32 s{sT1}, s{sW}, {7*16*2688}")
    I(f"s_add_u32 s{sT0}, s{sT0}, s{sT1}")
    I(f"s_mul_i32 s{sT2}, s{sW}, 7168")
    twk = twv = twq = None
    for i in range(7):
        I(f"s_add_u32 s{sT1}, s{sT0}, {896 + i*16*2688}")
        twk = dma(vWA, sWQKV, sT1, sT2, LDS_WK + i * 1024)
    for i in range(7):
        I(f"s_add_u32 s{sT1}, s{sT0}, {1792 + i*16*2688}")
        twv = I(f"buffer_load_dwordx4 {vr(WRV+4*i,4)}, v{vWA}, {srd(sWQKV)}, s{sT1} offen")
    for i in range(7):
        I(f"s_add_u32 s{sT1}, s{sT0}, {i*16*2688}")
        twq = I(f"buffer_load_dwordx4 {vr(WRQ+4*i,4)}, v{vWA}, {srd(sWQKV)}, s{sT1} offen")
    stamp()
    I(f"v_lshrrev_b32 v{vT0}, 3, v{vM}")
    I(f"v_mul_u32_u24 v{vT0}, 7168, v{vT0}")
    I(f"v_add_u32 v{vT0}, s{sLW}, v{vT0}")
    I(f"v_and_b32 v{vT1}, 7, v{vM}")
    I(f"v_lshl_add_u32 v{vT0}, v{vT1}, 7, v{vT0}")
    I(f"v_bfe_u32 v{vT1}, v{vM}, 1, 3")
    I(f"v_xor_b32 v{vT1}, v{vT1}, v{vHB}")
    for q in range(4):
        I(f"v_xor_b32 v{vT2}, {2*q}, v{vT1}")
        I(f"v_lshl_add_u32 v{vXR+q}, v{vT2}, 4, v{vT0}")
    I(f"v_bfe_u32 v{vT0}, v{vLANE}, 2, 2")
    I(f"v_lshl_add_u32 v{vT0}, v{vHB}, 3, v{vT0}")
    I(f"v_lshlrev_b32 v{vT0}, 6, v{vT0}")
    I(f"v_bfe_u32 v{vT1}, v{vLANE}, 4, 1")
    I(f"v_and_b32 v{vT2}, 3, v{vLANE}")
    I(f"v_lshl_add_u32 v{vT1}, v{vT1}, 2, v{vT2}")
    I(f"s_and_b32 s{sT1}, s{sJ}, 1")
    I(f"v_add_u32 v{vT1}, s{sT1}, v{vT1}")
    I(f"v_lshl_add_u32 v{vTR}, v{vT1}, 3, v{vT0}")
    I(f"v_add_u32 v{vTR2}, 57344, v{vTR}")
    I(f"v_lshlrev_b32 v{vT0}, 2, v{vHB}")
    I(f"v_sub_u32 v{vT0}, v{vM}, v{vT0}")
    I(f"v_mov_b32 v{vT3}, 0x3f80")
    I(f"v_mov_b32 v{vT4}, 0x3f800000")
    for c in range(2):
        for i in range(4):
            s0 = 16 * c + ((2 * i) & 3) + 8 * (i >> 1)
            I(f"v_cmp_eq_u32 vcc, {s0}, v{vT0}")
            I(f"v_cndmask_b32 v{vT1}, 0, v{vT3}, vcc")
            I(f"v_cmp_eq_u32 vcc, {s0+1}, v{vT0}")
            I(f"v_cndmask_b32 v{SEL+4*c+i}, v{vT1}, v{vT4}, vcc")
    S1, S2 = ACC, ACC + 4
    for i in range(8):
        I(f"v_mov_b32 v{ACC+i}, 0")
    I(f"v_mov_b32 v{vT5}, 0x3f803f80")
    for seg in range(7):
        g.wait(tx[seg])
        t = None
        for q in range(4):
            c = 4 * seg + q
            t = I(f"ds_read_b128 {vr(XF+4*c,4)}, v{vXR+q} offset:{seg*1024}")
        g.wait(t)
        for k in range(16):
            r = XF + 16 * seg + k
            I(f"v_dot2_f32_bf16 v{S1+k%4}, v{r}, v{vT5}, v{S1+k%4}")
            I(f"v_dot2_f32_bf16 v{S2+k%4}, v{r}, v{r}, v{S2+k%4}")
    stamp()
    I(f"v_add_f32 v{S1}, v{S1}, v{S1+1}")
    I(f"v_add_f32 v{S1+2}, v{S1+2}, v{S1+3}")
    I(f"v_add_f32 v{S2}, v{S2}, v{S2+1}")
    I(f"v_add_f32 v{S2+2}, v{S2+2}, v{S2+3}")
    I(f"v_add_f32 v{S1}, v{S1}, v{S1+2}")
    I(f"v_add_f32 v{S2}, v{S2}, v{S2+2}")
    I(f"v_mov_b32 v{S1+1}, v{S1}")
    I(f"v_mov_b32 v{S2+1}, v{S2}")
    I(f"v_permlane32_swap_b32 v{S1}, v{S1+1}")
    I(f"v_permlane32_swap_b32 v{S2}, v{S2+1}")
    I(f"v_add_f32 v{S1}, v{S1}, v{S1+1}")
    I(f"v_add_f32 v{S2}, v{S2}, v{S2+1}")
    I(f"v_mul_f32 v{S1}, {f32(1/448)}, v{S1}")
    I(f"v_mul_f32 v{S2}, {f32(1/448)}, v{S2}")
    I(f"v_fma_f32 v{S2}, -v{S1}, v{S1}, v{S2}")
    I(f"v_max_f32 v{S2}, 0, v{S2}")
    I(f"v_add_f32 v{S2}, {f32(1e-5)}, v{S2}")
    RS, NB = ACC + 8, ACC + 10
    I(f"v_rsq_f32 v{RS}, v{S2}")
    I(f"v_mul_f32 v{NB}, v{S1}, v{RS}")
    I(f"v_sub_f32 v{NB}, 0, v{NB}")
    I(f"v_mov_b32 v{RS+1}, v{RS}")
    I(f"v_mov_b32 v{NB+1}, v{NB}")
    TP = WF
    for k in range(0, 112, 8):
        for u in range(8):
            I(f"v_lshlrev_b32 v{TP+2*u}, 16, v{XF+k+u}")
            I(f"v_and_b32 v{TP+2*u+1}, 0xffff0000, v{XF+k+u}")
        for u in range(8):
            I(f"v_pk_fma_f32 {vr(TP+2*u,2)}, {vr(TP+2*u,2)}, {vr(RS,2)}, {vr(NB,2)}")
        for u in range(8):
            I(f"v_cvt_pk_bf16_f32 v{XF+k+u}, v{TP+2*u}, v{TP+2*u+1}")
    stamp()
    g.wait(twk)
    I("s_barrier")
    I(f"v_add_u32 v{vT0}, {LDS_WK}, v{vTR}")

    def rdk(c, dst):
        I(f"ds_read_b64_tr_b16 {vr(dst,2)}, v{vT0} offset:{c*1024}")
        return I(f"ds_read_b64_tr_b16 {vr(dst+2,2)}, v{vT0} offset:{c*1024+256}")

    xf = lambda c: vr(XF + 4 * c, 4)
    chain32(ACC, None, xf, rdk, wf=WF)
    stamp()
    I(f"v_add_u32 v{vT1}, s{sLW}, v{vL16}")
    g.wait(twv)
    for i in range(7):
        I(f"ds_write_b128 v{vT1}, {vr(WRV+4*i,4)} offset:{i*1024}")
    g.wait(twq)
    for i in range(7):
        I(f"ds_write_b128 v{vT1}, {vr(WRQ+4*i,4)} offset:{7168+i*1024}")
    g.wait(tphi)
    for i in range(8):
        I(f"v_lshl_or_b32 v{WPHI+i}, v{244+i}, 16, v{WPHI+i}")
    g.wait_all(vm=False)
    TMP = 128
    PKP, PKM = 172, 180 - 0
    PKM = 240
    featmap(ACC, TMP, WPHI, PKP, PKM)
    TPP, TPM = 128, 144
    I(f"v_mfma_f32_32x32x16_bf16 {vr(TPP,16)}, {vr(PKP,4)}, {vr(SEL,4)}, 0")
    I(f"v_mfma_f32_32x32x16_bf16 {vr(TPP,16)}, {vr(PKP+4,4)}, {vr(SEL+4,4)}, {vr(TPP,16)}")
    I(f"v_mfma_f32_32x32x16_bf16 {vr(TPM,16)}, {vr(PKM,4)}, {vr(SEL,4)}, 0")
    I(f"v_mfma_f32_32x32x16_bf16 {vr(TPM,16)}, {vr(PKM+4,4)}, {vr(SEL+4,4)}, {vr(TPM,16)}")
    for i in range(8):
        I(f"v_cvt_pk_bf16_f32 v{PKP+i}, v{TPP+2*i}, v{TPP+2*i+1}")
    for i in range(8):
        I(f"v_cvt_pk_bf16_f32 v{PKM+i}, v{TPM+2*i}, v{TPM+2*i+1}")
    stamp()
    I("s_barrier")

    def rdx(extra):
        def rd(c, dst):
            off = (c // 7) * 28672 + (c % 7) * 1024 + extra
            base = vTR
            if off >= 57344:
                off -= 57344
                base = vTR2
            I(f"ds_read_b64_tr_b16 {vr(dst,2)}, v{base} offset:{off}")
            return I(f"ds_read_b64_tr_b16 {vr(dst+2,2)}, v{base} offset:{off+256}")
        return rd

    chain32(ACC, None, xf, rdx(0), wf=WF, swap=True)
    VF = 160
    I(f"v_cmp_le_u32 vcc, 28, v{vM}")
    for i in range(8):
        I(f"v_cvt_pk_bf16_f32 v{VF+i}, v{ACC+2*i}, v{ACC+2*i+1}")
    for i in range(8):
        I(f"v_cndmask_b32 v{VF+i}, v{VF+i}, v{vT5}, vcc")
    KP, KM = 128, 144
    I(f"v_mfma_f32_32x32x16_bf16 {vr(KP,16)}, {vr(PKP,4)}, {vr(VF,4)}, 0")
    I(f"v_mfma_f32_32x32x16_bf16 {vr(KP,16)}, {vr(PKP+4,4)}, {vr(VF+4,4)}, {vr(KP,16)}")
    I(f"v_mfma_f32_32x32x16_bf16 {vr(KM,16)}, {vr(PKM,4)}, {vr(VF,4)}, 0")
    I(f"v_mfma_f32_32x32x16_bf16 {vr(KM,16)}, {vr(PKM+4,4)}, {vr(VF+4,4)}, {vr(KM,16)}")
    I(f"s_lshl_b32 s{sT0}, s{sW}, 13")
    I(f"s_add_u32 s{sT0}, s{sT0}, {LDS_RED}")
    I(f"v_add_u32 v{vT0}, s{sT0}, v{vL16}")
    for k in range(8):
        I(f"ds_write_b128 v{vT0}, {vr(KP+4*k,4)} offset:{k*1024}")
    g.wait_all(vm=False)
    I("s_barrier")
    I(f"s_lshl_b32 s{sT0}, s{sW}, 11")
    I(f"s_add_u32 s{sT0}, s{sT0}, {LDS_RED}")
    I(f"v_add_u32 v{vT0}, s{sT0}, v{vL16}")
    for w in range(4):
        for hf in range(2):
            I(f"ds_read_b128 {vr(128+8*w+4*hf,4)}, v{vT0} offset:{w*8192+hf*1024}")
    g.wait_all(vm=False)
    for i in range(8):
        I(f"v_add_f32 v{128+i}, v{128+i}, v{136+i}")
        I(f"v_add_f32 v{144+i}, v{144+i}, v{152+i}")
    for i in range(8):
        I(f"v_add_f32 v{128+i}, v{128+i}, v{144+i}")
    for i in range(4):
        I(f"v_cvt_pk_bf16_f32 v{160+i}, v{128+2*i}, v{128+2*i+1}")
    I(f"s_lshl_b32 s{sT0}, s{sJ}, 2")
    I(f"s_add_u32 s{sT0}, s{sT0}, s{sW}")
    I(f"s_lshl_b32 s{sT0}, s{sT0}, 14")
    I(f"s_add_u32 s{sT3}, s{sT0}, {WS_KVP}")
    I(f"s_lshl_b32 s{sT1}, s{sG}, 10")
    I(f"s_add_u32 s{sT1}, s{sT1}, s{sT3}")
    I(f"buffer_store_dwordx4 {vr(160,4)}, v{vL16}, {srd(sWS)}, s{sT1} offen sc1")
    lab = g.newlabel("L_cs")
    I(f"s_cmp_lt_u32 s{sW}, 2")
    I(f"s_cbranch_scc1 {lab}")
    g.cond_begin()
    I(f"s_mul_i32 s{sT0}, s{sG}, {28*3584}")
    I(f"s_mul_i32 s{sT1}, s{sJ}, 224")
    I(f"s_add_u32 s{sT0}, s{sT0}, s{sT1}")
    I(f"v_lshlrev_b32 v{vT0}, 2, v{vLANE}")
    I("s_mov_b32 exec_hi, 0x00ffffff")
    lab2, lab3 = g.newlabel("L_cs"), g.newlabel("L_cs")
    I(f"s_cmp_eq_u32 s{sW}, 3")
    I(f"s_cbranch_scc1 {lab2}")
    for r in range(28):
        I(f"s_add_u32 s{sT1}, s{sT0}, {r*3584}")
        I(f"buffer_load_dword v{128+r}, v{vT0}, {srd(sWG)}, s{sT1} offen")
    I(f"s_branch {lab3}")
    g.label(lab2)
    for r in range(28):
        I(f"s_add_u32 s{sT1}, s{sT0}, {r*3584}")
        I(f"buffer_load_dword v{128+r}, v{vT0}, {srd(sWU)}, s{sT1} offen")
    g.label(lab3)
    I("s_waitcnt vmcnt(0)")
    I(f"v_mov_b32 v160, 0\nv_mov_b32 v161, 0\nv_mov_b32 v162, 0x3f80\nv_mov_b32 v163, 0x3f800000")
    for r in range(28):
        I(f"v_dot2_f32_bf16 v160, v{128+r}, v162, v160")
        I(f"v_dot2_f32_bf16 v161, v{128+r}, v163, v161")
    I(f"s_lshl_b32 s{sT0}, s{sJ}, 4")
    I(f"s_add_u32 s{sT0}, s{sT0}, s{sG}")
    I(f"s_lshl_b32 s{sT0}, s{sT0}, 1")
    I(f"s_add_u32 s{sT0}, s{sT0}, s{sW}")
    I(f"s_mul_i32 s{sT0}, s{sT0}, 448")
    I(f"s_add_u32 s{sT0}, s{sT0}, {WS_CS - 2*448}")
    I(f"v_lshlrev_b32 v{vT0}, 3, v{vLANE}")
    I(f"buffer_store_dwordx2 v[160:161], v{vT0}, {srd(sWS)}, s{sT0} offen sc1")
    I("s_mov_b64 exec, -1")
    g.cond_end()
    g.label(lab)
    stamp()
    signal(CNT_KV, sJ, first=True)
    stamp()
    chain32(ACC, None, xf, rdx(7168), wf=WF)
    PQP, PQM = 172, 240
    featmap(ACC, TMP, WPHI, PQP, PQM)
    stamp()
    waitcnt_flag(CNT_KV, sJ)
    stamp()
    tl = []
    for rb in range(16):
        I(f"s_add_u32 s{sT1}, s{sT3}, {rb*1024}")
        tl.append(I(f"buffer_load_dwordx4 {vr(16+4*rb,4)}, v{vL16}, {srd(sWS)}, s{sT1} offen sc1"))
    I(f"s_mul_i32 s{sT0}, s{sJ}, {16*896}")
    I(f"s_add_u32 s{sT0}, s{sT0}, {WS_CS}")
    I(f"v_lshlrev_b32 v{vT0}, 2, v0")
    I(f"v_cmp_gt_u32 vcc, 224, v0")
    I(f"v_mov_b32 v{vT1}, 0x7ff00000")
    I(f"v_cndmask_b32 v{vT1}, v{vT1}, v{vT0}, vcc")
    tcs = None
    for rb in range(16):
        I(f"s_add_u32 s{sT1}, s{sT0}, {rb*896}")
        tcs = I(f"buffer_load_dword v{96+rb}, v{vT1}, {srd(sWS)}, s{sT1} offen sc1")
    I(f"v_mov_b32 v162, 0x3f80\nv_mov_b32 v163, 0x3f800000")
    for i in range(8):
        I(f"v_mov_b32 v{128+i}, 0")
    for rb in range(16):
        g.wait(tl[rb])
        for i in range(4):
            I(f"v_dot2_f32_bf16 v{128+2*i}, v{16+4*rb+i}, v162, v{128+2*i}")
            I(f"v_dot2_f32_bf16 v{128+2*i+1}, v{16+4*rb+i}, v163, v{128+2*i+1}")
    for i in range(4):
        I(f"v_cvt_pk_bf16_f32 v{136+i}, v{128+2*i}, v{128+2*i+1}")
    I(f"s_lshl_b32 s{sT0}, s{sW}, 10")
    I(f"s_add_u32 s{sT0}, s{sT0}, {LDS_KVF}")
    I(f"v_add_u32 v{vT2}, s{sT0}, v{vL16}")
    I(f"ds_write_b128 v{vT2}, {vr(136,4)}")
    g.wait(tcs)
    for k in (8, 4, 2, 1):
        for i in range(k):
            I(f"v_add_f32 v{96+i}, v{96+i}, v{96+k+i}")
    I(f"v_add_u32 v{vT0}, {LDS_CS}, v{vT0}")
    I(f"ds_write_b32 v{vT0}, v96")
    g.wait_all(vm=False)
    I("s_barrier")
    I(f"v_subrev_u32 v{vT0}, 2, v{vM}")
    I(f"v_cmp_gt_u32 vcc, 26, v{vM}")
    I(f"v_cndmask_b32 v{vT0}, v{vT0}, v{vM}, vcc")
    I(f"v_and_b32 v{vT1}, 26, v{vM}")
    I(f"v_cmp_eq_u32 vcc, 26, v{vT1}")
    I(f"v_cndmask_b32 v{vT0}, v{vT0}, 28, vcc")
    I(f"v_lshl_add_u32 v{vT0}, v{vHB}, 5, v{vT0}")
    I(f"v_lshlrev_b32 v{vT0}, 4, v{vT0}")
    I(f"v_add_u32 v{vT0}, {LDS_KVF}, v{vT0}")
    for f in range(4):
        I(f"ds_read_b128 {vr(128+4*f,4)}, v{vT0} offset:{f*1024}")
    g.wait_all(vm=False)
    ph = [PQP, PQP + 4, PQM, PQM + 4]
    for f in range(4):
        I(f"v_mfma_f32_32x32x16_bf16 {vr(ACC,16)}, {vr(128+4*f,4)}, {vr(ph[f],4)}, {'0' if f == 0 else vr(ACC,16)}")
    I(f"v_add_f32 v{vT0}, {f32(1e-6)}, v{ACC+14}")
    I(f"v_rcp_f32 v{vT0}, v{vT0}")
    for i in range(14):
        I(f"v_mul_f32 v{ACC+i}, v{ACC+i}, v{vT0}")
    for i in range(7):
        I(f"v_cvt_pk_bf16_f32 v{128+i}, v{ACC+2*i}, v{ACC+2*i+1}")
    I(f"v_mov_b32 v135, 0")
    I(f"s_lshl_b32 s{sT0}, s{sMT}, 4")
    I(f"s_add_u32 s{sT0}, s{sT0}, s{sJ}")
    I(f"s_lshl_b32 s{sT0}, s{sT0}, 11")
    I(f"s_add_u32 s{sT0}, s{sT0}, {WS_O}")
    I(f"buffer_store_dwordx4 {vr(128,4)}, v{vL16}, {srd(sWS)}, s{sT0} offen sc1")
    I(f"buffer_store_dwordx4 {vr(132,4)}, v{vL16}, {srd(sWS)}, s{sT0} offen offset:1024 sc1")
    stamp()
    signal(CNT_O, sG)
    stamp()


def phaseB():
    g.comment("==== phase B ====")
    WOF = 16
    OF = 128
    BACC = 160
    vWO = 216
    XR = 224
    for k in range(7):
        I(f"v_add_u32 v{vT0}, {64*k}, v{vLANE}")
        I(f"v_mul_u32_u24 v{vT1}, 4682, v{vT0}")
        I(f"v_lshrrev_b32 v{vT1}, 16, v{vT1}")
        I(f"v_mul_u32_u24 v{vT2}, 14, v{vT1}")
        I(f"v_sub_u32 v{vT2}, v{vT0}, v{vT2}")
        I(f"v_mul_u32_u24 v{vT1}, 896, v{vT1}")
        I(f"v_lshl_add_u32 v{vWO+k}, v{vT2}, 4, v{vT1}")
    I(f"s_and_b32 s{sT2}, s{sJ}, 3")
    I(f"s_mul_i32 s{sT0}, s{sT2}, 224")
    I(f"s_mul_i32 s{sT1}, s{sW}, {112*896}")
    I(f"s_add_u32 s{sT0}, s{sT0}, s{sT1}")
    t = None
    for i in range(25):
        I(f"s_add_u32 s{sT1}, s{sT0}, {(i//7)*32*896}")
        t = dma(vWO + i % 7, sWO, sT1, sLW, i * 1024)
    I(f"s_lshr_b32 s{sT3}, s{sJ}, 2")
    I(f"s_lshl_b32 s{sT4}, s{sG}, 2")
    I(f"s_add_u32 s{sT3}, s{sT3}, s{sT4}")
    I(f"s_mul_i32 s{sT0}, s{sT3}, {32*896}")
    I(f"s_mul_i32 s{sT1}, s{sT2}, 224")
    I(f"s_add_u32 s{sT0}, s{sT0}, s{sT1}")
    I(f"v_mul_u32_u24 v{vT0}, 896, v{vM}")
    I(f"v_lshrrev_b32 v{vT1}, 5, v0")
    I(f"v_lshl_add_u32 v{vT0}, v{vT1}, 4, v{vT0}")
    I(f"buffer_load_dwordx4 {vr(XR,4)}, v{vT0}, {srd(sX)}, s{sT0} offen")
    txr = I(f"buffer_load_dwordx4 {vr(XR+4,4)}, v{vT0}, {srd(sX)}, s{sT0} offen offset:128")
    I(f"v_lshrrev_b32 v{vT0}, 4, v{vLANE}")
    I(f"v_bfe_u32 v{vT1}, v{vLANE}, 2, 2")
    I(f"v_lshrrev_b32 v{vT2}, 1, v{vT0}")
    I(f"v_and_b32 v{vT3}, 1, v{vT0}")
    I(f"v_lshl_add_u32 v{vT4}, v{vT3}, 2, v{vT1}")
    I(f"v_lshl_add_u32 v232, v{vT2}, 4, v{vT4}")
    I(f"v_add_u32 v233, 8, v{vT4}")
    I(f"v_and_b32 v{vT1}, 1, v{vT1}")
    I(f"v_lshl_add_u32 v{vT1}, v{vT3}, 1, v{vT1}")
    I(f"v_add_u32 v{vT1}, 24, v{vT1}")
    I(f"v_cmp_eq_u32 vcc, 1, v{vT2}")
    I(f"v_cndmask_b32 v233, v233, v{vT1}, vcc")
    I(f"v_and_b32 v{vT1}, 3, v{vLANE}")
    I(f"v_lshlrev_b32 v{vT1}, 3, v{vT1}")
    I(f"v_add_u32 v{vT1}, s{sLW}, v{vT1}")
    I(f"v_mul_u32_u24 v232, 224, v232")
    I(f"v_mul_u32_u24 v233, 224, v233")
    I(f"v_add_u32 v232, v232, v{vT1}")
    I(f"v_add_u32 v233, v233, v{vT1}")
    I(f"v_lshlrev_b32 v234, 10, v{vT2}")
    I(f"v_lshl_add_u32 v234, v{vT3}, 9, v234")
    I(f"v_and_b32 v{vT1}, 15, v{vLANE}")
    I(f"v_lshl_add_u32 v234, v{vT1}, 4, v234")
    g.wait(t)
    for hh in range(4):
        for nt in range(7):
            d = WOF + (hh * 7 + nt) * 4
            I(f"ds_read_b64_tr_b16 {vr(d,2)}, v232 offset:{hh*6272+nt*32}")
            I(f"ds_read_b64_tr_b16 {vr(d+2,2)}, v233 offset:{hh*6272+nt*32}")
    g.wait_all(vm=False)
    stamp()
    waitcnt_flag(CNT_O, sG)
    stamp()
    I(f"s_lshl_b32 s{sT0}, s{sT3}, 4")
    I(f"s_lshl_b32 s{sT1}, s{sW}, 2")
    I(f"s_add_u32 s{sT0}, s{sT0}, s{sT1}")
    I(f"s_lshl_b32 s{sT0}, s{sT0}, 11")
    I(f"s_add_u32 s{sT0}, s{sT0}, {WS_O}")
    to = {}
    for hh in range(4):
        I(f"s_add_u32 s{sT1}, s{sT0}, {hh*2048}")
        for mt in range(2):
            to[hh, mt] = I(f"buffer_load_dwordx4 {vr(OF+(hh*2+mt)*4,4)}, v234, {srd(sWS)}, s{sT1} offen offset:{mt*256} sc1")
    for hh in range(4):
        for mt in range(2):
            g.wait(to[hh, mt])
            for nt in range(7):
                a = BACC + (mt * 7 + nt) * 4
                I(f"v_mfma_f32_16x16x32_bf16 {vr(a,4)}, {vr(WOF+(hh*7+nt)*4,4)}, {vr(OF+(hh*2+mt)*4,4)}, {'0' if hh == 0 else vr(a,4)}")
    I(f"s_mul_i32 s{sT0}, s{sW}, {28*512}")
    I(f"v_lshrrev_b32 v{vT0}, 4, v{vLANE}")
    I(f"v_lshlrev_b32 v{vT0}, 9, v{vT0}")
    I(f"v_and_b32 v{vT1}, 15, v{vLANE}")
    I(f"v_lshl_add_u32 v{vT0}, v{vT1}, 4, v{vT0}")
    I(f"v_add_u32 v{vT0}, s{sT0}, v{vT0}")
    for mt in range(2):
        for nt in range(7):
            I(f"ds_write_b128 v{vT0}, {vr(BACC+(mt*7+nt)*4,4)} offset:{nt*2048+mt*256}")
    g.wait_all(vm=False)
    I("s_barrier")
    I(f"v_lshrrev_b32 v{vT1}, 5, v0")
    I(f"v_lshlrev_b32 v{vT0}, 10, v{vT1}")
    I(f"v_lshl_add_u32 v{vT0}, v{vM}, 4, v{vT0}")
    R = 16
    for rnd in range(2):
        for w in range(4):
            for q in range(2):
                I(f"ds_read_b128 {vr(R+rnd*32+w*8+q*4,4)}, v{vT0} offset:{w*14336+rnd*8192+q*512}")
    g.wait(txr)
    g.wait_all(vm=False)
    S1, S2 = 100, 101
    I(f"v_mov_b32 v{S1}, 0\nv_mov_b32 v{S2}, 0")
    I(f"v_mov_b32 v{vT5}, 0x3f803f80")
    HP = 104
    for rnd in range(2):
        b = R + rnd * 32
        for i in range(8):
            I(f"v_add_f32 v{b+i}, v{b+i}, v{b+8+i}")
            I(f"v_add_f32 v{b+16+i}, v{b+16+i}, v{b+24+i}")
        for i in range(8):
            I(f"v_add_f32 v{b+i}, v{b+i}, v{b+16+i}")
        for i in range(4):
            I(f"v_lshlrev_b32 v{b+8+2*i}, 16, v{XR+4*rnd+i}")
            I(f"v_and_b32 v{b+8+2*i+1}, 0xffff0000, v{XR+4*rnd+i}")
        for i in range(8):
            I(f"v_add_f32 v{b+i}, v{b+i}, v{b+8+i}")
        for i in range(4):
            I(f"v_cvt_pk_bf16_f32 v{HP+4*rnd+i}, v{b+2*i}, v{b+2*i+1}")
    I(f"v_cmp_gt_u32 vcc, 192, v0")
    for i in range(4):
        I(f"v_cndmask_b32 v{HP+4+i}, 0, v{HP+4+i}, vcc")
    for i in range(8):
        I(f"v_dot2_f32_bf16 v{S1}, v{HP+i}, v{vT5}, v{S1}")
        I(f"v_dot2_f32_bf16 v{S2}, v{HP+i}, v{HP+i}, v{S2}")
    I(f"v_mov_b32 v102, v{S1}\nv_mov_b32 v103, v{S2}")
    I(f"v_permlane32_swap_b32 v{S1}, v102")
    I(f"v_permlane32_swap_b32 v{S2}, v103")
    I(f"v_add_f32 v{S1}, v{S1}, v102")
    I(f"v_add_f32 v{S2}, v{S2}, v103")
    I(f"s_mul_i32 s{sT0}, s{sT3}, 28")
    I(f"s_mul_i32 s{sT1}, s{sT2}, 7")
    I(f"s_add_u32 s{sT0}, s{sT0}, s{sT1}")
    I(f"s_lshl_b32 s{sT0}, s{sT0}, 10")
    I(f"s_add_u32 s{sT0}, s{sT0}, {WS_H}")
    I(f"v_lshlrev_b32 v{vT0}, 4, v0")
    I(f"buffer_store_dwordx4 {vr(HP,4)}, v{vT0}, {srd(sWS)}, s{sT0} offen sc1")
    I(f"v_mov_b32 v{vT1}, 0x7ff00000")
    I(f"v_cndmask_b32 v{vT1}, v{vT1}, v{vT0}, vcc")
    I(f"s_add_u32 s{sT1}, s{sT0}, 4096")
    I(f"buffer_store_dwordx4 {vr(HP+4,4)}, v{vT1}, {srd(sWS)}, s{sT1} offen sc1")
    I(f"s_lshl_b32 s{sT0}, s{sT3}, 4")
    I(f"s_lshl_b32 s{sT1}, s{sT2}, 2")
    I(f"s_add_u32 s{sT0}, s{sT0}, s{sT1}")
    I(f"s_add_u32 s{sT0}, s{sT0}, s{sW}")
    I(f"s_lshl_b32 s{sT0}, s{sT0}, 8")
    I(f"s_add_u32 s{sT0}, s{sT0}, {WS_ST}")
    I(f"v_lshlrev_b32 v{vT0}, 3, v{vM}")
    I(f"buffer_store_dwordx2 v[{S1}:{S2}], v{vT0}, {srd(sWS)}, s{sT0} offen sc1")
    stamp()
    signal(CNT_H, sG)
    stamp()


GK1 = -2.0 * math.sqrt(2.0 / math.pi) * LOG2E
GK2 = GK1 * 0.044715


def phaseC():
    g.comment("==== phase C ====")
    HF = 16
    AG, AU = 128, 144
    CSR = 160
    TMP = 176
    OUTP = 192
    WFc = 216
    vCA, vCM, vTRc, vTRM, vCSA = 232, 233, 234, 235, 236
    K1, K2, IR2, NMU = 237, 238, 239, 240
    ST = 200
    sP0, sM0 = 59, 60
    sL0, sLM = 61, 62
    I(f"s_and_b32 s{sT0}, s{sJ}, 1")
    I(f"s_lshl_b32 s{sL0}, s{sT0}, 4")
    I(f"s_mul_i32 s{sLM}, s{sT0}, 96")
    I(f"s_sub_u32 s{sLM}, 96, s{sLM}")
    I(f"s_mul_i32 s{sT1}, s{sJ}, 112")
    I(f"s_add_u32 s{sP0}, s{sT1}, s{sL0}")
    I(f"s_lshl_b32 s{sP0}, s{sP0}, 1")
    I(f"s_add_u32 s{sM0}, s{sT1}, s{sLM}")
    I(f"s_lshl_b32 s{sM0}, s{sM0}, 1")
    I(f"v_lshrrev_b32 v{vT0}, 2, v{vLANE}")
    I(f"v_mul_u32_u24 v{vT0}, 3584, v{vT0}")
    I(f"v_and_b32 v{vT1}, 3, v{vLANE}")
    I(f"v_lshl_add_u32 v{vCA}, v{vT1}, 4, v{vT0}")
    I(f"v_lshrrev_b32 v{vT0}, 1, v{vLANE}")
    I(f"v_mul_u32_u24 v{vT0}, 3584, v{vT0}")
    I(f"v_and_b32 v{vT1}, 1, v{vLANE}")
    I(f"v_lshl_add_u32 v{vCM}, v{vT1}, 4, v{vT0}")
    I(f"v_bfe_u32 v{vT0}, v{vLANE}, 2, 2")
    I(f"v_lshl_add_u32 v{vT0}, v{vHB}, 3, v{vT0}")
    I(f"v_bfe_u32 v{vT1}, v{vLANE}, 4, 1")
    I(f"v_and_b32 v{vT2}, 3, v{vLANE}")
    I(f"v_lshl_add_u32 v{vT3}, v{vT1}, 2, v{vT2}")
    I(f"v_lshlrev_b32 v{vT3}, 3, v{vT3}")
    I(f"v_lshl_add_u32 v{vTRc}, v{vT0}, 6, v{vT3}")
    I(f"v_mul_u32_u24 v{vT3}, {14336+128}, v{vT1}")
    I(f"v_lshl_add_u32 v{vT3}, v{vT2}, 3, v{vT3}")
    I(f"v_lshl_add_u32 v{vTRM}, v{vT0}, 5, v{vT3}")
    I(f"v_lshlrev_b32 v{vCSA}, 4, v{vHB}")
    I(f"v_add_u32 v{vCSA}, {LDS_CS}, v{vCSA}")
    SLOT = 28800
    I(f"s_mul_i32 s{sT2}, s{sW}, 7168")
    I(f"s_mul_i32 s{sT3}, s{sW}, {7*16*3584}")

    def load_tile(kind, p, slot):
        t = None
        if kind in "GU":
            for i in range(7):
                I(f"s_add_u32 s{sT1}, s{sT3}, {i*16*3584 + p*64}")
                I(f"s_add_u32 s{sT1}, s{sT1}, s{sP0}")
                t = dma(vCA, sWG if kind == "G" else sWU, sT1, sT2, slot * SLOT + i * 1024)
        else:
            lab1, lab2 = g.newlabel("L_m"), g.newlabel("L_m")
            I(f"s_and_b32 s{sT0}, s{sW}, 1")
            I(f"s_mul_i32 s{sT4}, s{sT0}, {7*32*3584}")
            I(f"s_add_u32 s{sT4}, s{sT4}, s{sM0}")
            I(f"s_mul_i32 s{sT5}, s{sT0}, 7168")
            I(f"s_cmp_ge_u32 s{sW}, 2")
            I(f"s_cbranch_scc1 {lab1}")
            g.cond_begin()
            for i in range(7):
                I(f"s_add_u32 s{sT1}, s{sT4}, {i*32*3584}")
                dma(vCM, sWG, sT1, sT5, slot * SLOT + i * 1024)
            g.cond_end()
            I(f"s_branch {lab2}")
            g.label(lab1)
            for i in range(7):
                I(f"s_add_u32 s{sT1}, s{sT4}, {i*32*3584}")
                t = dma(vCM, sWU, sT1, sT5, slot * SLOT + 14336 + 128 + i * 1024)
            g.label(lab2)
        return t

    tiles = [("G", 0), ("U", 0), ("G", 1), ("U", 1), ("G", 2), ("U", 2), ("M", 0)]
    slot_of = [0, 1, 2, 3, 4, 0, 1]
    tt = {}
    for k in range(5):
        tt[k] = load_tile(tiles[k][0], tiles[k][1], slot_of[k])
    stamp()
    waitcnt_flag(CNT_H, sG)
    stamp()
    I(f"s_lshl_b32 s{sT0}, s{sMT}, 12")
    I(f"s_add_u32 s{sT0}, s{sT0}, {WS_ST}")
    I(f"v_lshlrev_b32 v{vT0}, 3, v{vLANE}")
    ts = None
    for i in range(8):
        ts = I(f"buffer_load_dwordx2 {vr(ST+2*i,2)}, v{vT0}, {srd(sWS)}, s{sT0} offen offset:{i*512} sc1")
    I(f"s_mul_i32 s{sT0}, s{sMT}, {28*1024}")
    I(f"s_add_u32 s{sT0}, s{sT0}, {WS_H}")
    th = {}
    for c in range(28):
        I(f"s_add_u32 s{sT1}, s{sT0}, {c*1024}")
        th[c] = I(f"buffer_load_dwordx4 {vr(HF+4*c,4)}, v{vL16}, {srd(sWS)}, s{sT1} offen sc1")
    g.wait(ts)
    for k in (8, 4, 2):
        for i in range(k):
            I(f"v_add_f32 v{ST+i}, v{ST+i}, v{ST+k+i}")
    I(f"v_mov_b32 v{ST+2}, v{ST}\nv_mov_b32 v{ST+3}, v{ST+1}")
    I(f"v_permlane32_swap_b32 v{ST}, v{ST+2}")
    I(f"v_permlane32_swap_b32 v{ST+1}, v{ST+3}")
    I(f"v_add_f32 v{ST}, v{ST}, v{ST+2}")
    I(f"v_add_f32 v{ST+1}, v{ST+1}, v{ST+3}")
    I(f"v_mul_f32 v{NMU}, {f32(-1/448)}, v{ST}")
    I(f"v_mul_f32 v{ST+1}, {f32(1/448)}, v{ST+1}")
    I(f"v_fma_f32 v{ST+1}, -v{NMU}, v{NMU}, v{ST+1}")
    I(f"v_max_f32 v{ST+1}, 0, v{ST+1}")
    I(f"v_add_f32 v{IR2}, {f32(1e-5)}, v{ST+1}")
    I(f"v_rsq_f32 v{ST}, v{IR2}")
    I(f"v_mul_f32 v{K1}, {f32(GK1)}, v{ST}")
    I(f"v_mul_f32 v{ST+1}, v{ST}, v{ST}")
    I(f"v_mul_f32 v{ST+1}, v{ST+1}, v{ST}")
    I(f"v_mul_f32 v{K2}, {f32(GK2)}, v{ST+1}")
    g.wait_all(lgkm=False)
    I("s_barrier")
    stamp()
    hf = lambda c: vr(HF + 4 * c, 4)

    def init_acc(acc, sloc, colimm, mat, nq=4, r0=0):
        I(f"s_lshl_b32 s{sT0}, s{sloc}, 2")
        I(f"v_add_u32 v{vT0}, s{sT0}, v{vCSA}")
        t = None
        for q in range(nq):
            t = I(f"ds_read_b128 {vr(CSR+4*q,4)}, v{vT0} offset:{mat*448 + (colimm+8*q)*4}")
        g.wait(t)
        for r in range(4 * nq):
            I(f"v_mul_f32 v{acc+r0+r}, v{NMU}, v{CSR+r}")

    def glu(ag, au, n, out):
        for i in range(n):
            I(f"v_mul_f32 v{TMP+i}, v{ag+i}, v{ag+i}")
        for i in range(n):
            I(f"v_fma_f32 v{TMP+i}, v{TMP+i}, v{K2}, v{K1}")
        for i in range(n):
            I(f"v_mul_f32 v{TMP+i}, v{TMP+i}, v{ag+i}")
        for i in range(n):
            I(f"v_exp_f32 v{TMP+i}, v{TMP+i}")
        for i in range(n):
            I(f"v_fma_f32 v{TMP+i}, v{TMP+i}, v{IR2}, v{IR2}")
        for i in range(n):
            I(f"v_rcp_f32 v{TMP+i}, v{TMP+i}")
        for i in range(n):
            I(f"v_mul_f32 v{ag+i}, v{ag+i}, v{au+i}")
        for i in range(n):
            I(f"v_mul_f32 v{TMP+i}, v{TMP+i}, v{ag+i}")
        for i in range(n // 2):
            I(f"v_cvt_pk_bf16_f32 v{out+i}, v{TMP+2*i}, v{TMP+2*i+1}")

    def rd_slot(slot):
        def rd(c, dst):
            I(f"ds_read_b64_tr_b16 {vr(dst,2)}, v{vT1} offset:{c*1024}")
            return I(f"ds_read_b64_tr_b16 {vr(dst+2,2)}, v{vT1} offset:{c*1024+256}")
        return rd

    def rd_mixed(c, dst):
        I(f"ds_read_b64_tr_b16 {vr(dst,2)}, v{vT1} offset:{c*512}")
        return I(f"ds_read_b64_tr_b16 {vr(dst+2,2)}, v{vT1} offset:{c*512+128}")

    sHB = 63
    I(f"s_mul_i32 s{sHB}, s{sMT}, {112*1024}")
    I(f"s_add_u32 s{sHB}, s{sHB}, {WS_HH}")
    for p in range(3):
        if p == 2:
            g.wait(tt[5])
            I("s_barrier")
        init_acc(AG, sL0, 32 * p, 0)
        I(f"v_add_u32 v{vT1}, {slot_of[2*p]*SLOT}, v{vTRc}")
        chain32(AG, None, hf, rd_slot(0), wf=WFc, first_c=None)
        init_acc(AU, sL0, 32 * p, 1)
        I(f"v_add_u32 v{vT1}, {slot_of[2*p+1]*SLOT}, v{vTRc}")
        chain32(AU, None, hf, rd_slot(0), wf=WFc, first_c=None)
        if p == 0:
            I("s_barrier")
            tt[5] = load_tile("U", 2, 0)
            tt[6] = load_tile("M", 0, 1)
            tt[5] = tt[6]
        glu(AG, AU, 16, OUTP)
        I(f"s_lshl_b32 s{sT0}, s{sP0}, 5")
        I(f"s_add_u32 s{sT0}, s{sT0}, s{sHB}")
        I(f"s_add_u32 s{sT0}, s{sT0}, {p*2048}")
        I(f"buffer_store_dwordx4 {vr(OUTP,4)}, v{vL16}, {srd(sWS)}, s{sT0} offen sc1")
        I(f"buffer_store_dwordx4 {vr(OUTP+4,4)}, v{vL16}, {srd(sWS)}, s{sT0} offen offset:1024 sc1")
    init_acc(AG, sLM, 0, 0, nq=2, r0=0)
    init_acc(AG, sLM, 0, 1, nq=2, r0=8)
    I(f"v_add_u32 v{vT1}, {slot_of[6]*SLOT}, v{vTRM}")
    chain32(AG, None, hf, rd_mixed, wf=WFc, first_c=None)
    glu(AG, AG + 8, 8, OUTP)
    I(f"s_lshl_b32 s{sT0}, s{sM0}, 5")
    I(f"s_add_u32 s{sT0}, s{sT0}, s{sHB}")
    I(f"buffer_store_dwordx4 {vr(OUTP,4)}, v{vL16}, {srd(sWS)}, s{sT0} offen sc1")
    stamp()
    signal(CNT_HH, sG)
    stamp()


def phaseD():
    g.comment("==== phase D ====")
    I(f"s_cmp_ge_u32 s{sJ}, 14")
    I("s_cbranch_scc1 L_end")
    sRH, sCB = 59, 60
    I(f"s_cmp_ge_u32 s{sJ}, 7")
    I(f"s_cselect_b32 s{sRH}, 1, 0")
    I(f"s_mul_i32 s{sT0}, s{sRH}, 7")
    I(f"s_sub_u32 s{sCB}, s{sJ}, s{sT0}")
    vDA, vDT = 232, 233
    I(f"v_lshrrev_b32 v{vT0}, 3, v{vLANE}")
    I(f"v_mul_u32_u24 v{vT1}, 896, v{vT0}")
    I(f"v_bfe_u32 v{vT2}, v{vLANE}, 4, 1")
    I(f"v_lshlrev_b32 v{vT2}, 2, v{vT2}")
    I(f"v_and_b32 v{vT3}, 7, v{vLANE}")
    I(f"v_xor_b32 v{vT3}, v{vT3}, v{vT2}")
    I(f"v_lshl_add_u32 v{vDA}, v{vT3}, 4, v{vT1}")
    I(f"v_bfe_u32 v{vT0}, v{vLANE}, 2, 2")
    I(f"v_lshl_add_u32 v{vT1}, v{vHB}, 2, v{vT0}")
    I(f"v_lshlrev_b32 v{vT1}, 7, v{vT1}")
    I(f"v_lshrrev_b32 v{vT0}, 1, v{vT0}")
    I(f"v_lshl_add_u32 v{vT1}, v{vT0}, 6, v{vT1}")
    I(f"v_bfe_u32 v{vT2}, v{vLANE}, 4, 1")
    I(f"v_lshl_add_u32 v{vT1}, v{vT2}, 5, v{vT1}")
    I(f"v_and_b32 v{vT2}, 3, v{vLANE}")
    I(f"v_lshl_add_u32 v{vT1}, v{vT2}, 3, v{vT1}")
    I(f"v_add_u32 v{vDT}, s{sLW}, v{vT1}")
    I(f"v_xor_b32 v{vDT+1}, 64, v{vDT}")
    I(f"s_mul_i32 s{sT0}, s{sW}, {448*896}")
    I(f"s_lshl_b32 s{sT1}, s{sCB}, 7")
    I(f"s_add_u32 s{sT0}, s{sT0}, s{sT1}")
    for rnd in range(2):
        t = None
        for i in range(28):
            I(f"s_add_u32 s{sT1}, s{sT0}, {(rnd*224 + i*8)*896}")
            t = dma(vDA, sWD, sT1, sLW, i * 1024)
        g.wait(t)
        for c in range(14):
            for nt in range(2):
                d = ((rnd * 14 + c) * 2 + nt) * 4
                I(f"ds_read_b64_tr_b16 {ar(d,2)}, v{vDT+nt} offset:{c*2048}")
                I(f"ds_read_b64_tr_b16 {ar(d+2,2)}, v{vDT+nt} offset:{c*2048+1024}")
        g.wait_all(vm=False)
    stamp()
    waitcnt_flag(CNT_HH, sG)
    stamp()
    AF = 16
    DACC = 128
    sMD = 61
    I(f"s_lshl_b32 s{sMD}, s{sG}, 2")
    I(f"s_lshl_b32 s{sT0}, s{sRH}, 1")
    I(f"s_add_u32 s{sMD}, s{sMD}, s{sT0}")
    I(f"s_mul_i32 s{sT0}, s{sMD}, {112*1024}")
    I(f"s_mul_i32 s{sT1}, s{sW}, {28*1024}")
    I(f"s_add_u32 s{sT0}, s{sT0}, s{sT1}")
    I(f"s_add_u32 s{sT0}, s{sT0}, {WS_HH}")
    ta = {}

    def lda(c):
        for mt in range(2):
            I(f"s_add_u32 s{sT1}, s{sT0}, {mt*112*1024 + c*1024}")
            ta[c, mt] = I(f"buffer_load_dwordx4 {vr(AF+((c%14)*2+mt)*4,4)}, v{vL16}, {srd(sWS)}, s{sT1} offen sc1")
    for c in range(14):
        lda(c)
    for c in range(28):
        for mt in range(2):
            g.wait(ta[c, mt])
            for nt in range(2):
                a = DACC + (mt * 2 + nt) * 16
                I(f"v_mfma_f32_32x32x16_bf16 {vr(a,16)}, {ar((c*2+nt)*4,4)}, {vr(AF+((c%14)*2+mt)*4,4)}, {'0' if c == 0 else vr(a,16)}")
        if c + 14 < 28:
            lda(c + 14)
    stamp()
    HR = 200
    I(f"v_and_b32 v{vT0}, 7, v0")
    I(f"v_lshrrev_b32 v{vT1}, 3, v0")
    I(f"v_lshlrev_b32 v{vT2}, 9, v{vT0}")
    I(f"v_lshl_add_u32 v{vT2}, v{vT1}, 4, v{vT2}")
    I(f"s_mul_i32 s{sT0}, s{sMD}, {28*1024}")
    I(f"s_lshl_b32 s{sT1}, s{sCB}, 12")
    I(f"s_add_u32 s{sT0}, s{sT0}, s{sT1}")
    I(f"s_add_u32 s{sT0}, s{sT0}, {WS_H}")
    I(f"buffer_load_dwordx4 {vr(HR,4)}, v{vT2}, {srd(sWS)}, s{sT0} offen sc1")
    I(f"s_add_u32 s{sT0}, s{sT0}, {28*1024}")
    thr = I(f"buffer_load_dwordx4 {vr(HR+4,4)}, v{vT2}, {srd(sWS)}, s{sT0} offen sc1")
    I("s_barrier")
    I(f"s_mul_i32 s{sT0}, s{sW}, {64*272}")
    I(f"v_mul_u32_u24 v{vT3}, 272, v{vM}")
    I(f"v_lshl_add_u32 v{vT3}, v{vHB}, 4, v{vT3}")
    I(f"v_add_u32 v{vT3}, s{sT0}, v{vT3}")
    for mt in range(2):
        for nt in range(2):
            for q in range(4):
                I(f"ds_write_b128 v{vT3}, {vr(DACC+(mt*2+nt)*16+4*q,4)} offset:{mt*32*272 + nt*128 + q*32}")
    g.wait_all(vm=False)
    I("s_barrier")
    I(f"v_mul_u32_u24 v{vT3}, 272, v{vT1}")
    I(f"v_lshl_add_u32 v{vT3}, v{vT0}, 5, v{vT3}")
    R = 16
    for rnd in range(2):
        for w in range(4):
            for q in range(2):
                I(f"ds_read_b128 {vr(R+rnd*32+w*8+q*4,4)}, v{vT3} offset:{w*64*272 + rnd*32*272 + q*16}")
    g.wait(thr)
    g.wait_all(vm=False)
    I(f"v_mul_u32_u24 v{vT2}, 896, v{vT1}")
    I(f"v_lshl_add_u32 v{vT2}, v{vT0}, 4, v{vT2}")
    I(f"s_mul_i32 s{sT0}, s{sMD}, {32*896}")
    I(f"s_lshl_b32 s{sT1}, s{sCB}, 7")
    I(f"s_add_u32 s{sT0}, s{sT0}, s{sT1}")
    for rnd in range(2):
        b = R + rnd * 32
        for i in range(8):
            I(f"v_add_f32 v{b+i}, v{b+i}, v{b+8+i}")
            I(f"v_add_f32 v{b+16+i}, v{b+16+i}, v{b+24+i}")
        for i in range(8):
            I(f"v_add_f32 v{b+i}, v{b+i}, v{b+16+i}")
        for i in range(4):
            I(f"v_lshlrev_b32 v{b+8+2*i}, 16, v{HR+4*rnd+i}")
            I(f"v_and_b32 v{b+8+2*i+1}, 0xffff0000, v{HR+4*rnd+i}")
        for i in range(8):
            I(f"v_add_f32 v{b+i}, v{b+i}, v{b+8+i}")
        for i in range(4):
            I(f"v_cvt_pk_bf16_f32 v{b+16+i}, v{b+2*i}, v{b+2*i+1}")
        I(f"s_add_u32 s{sT1}, s{sT0}, {rnd*32*896}")
        I(f"buffer_store_dwordx4 {vr(b+16,4)}, v{vT2}, {srd(sOUT)}, s{sT1} offen")
    stamp()


prologue()
stamp()
phaseA()
phaseB()
phaseC()
phaseD()
g.label("L_end")
I("s_endpgm")
g.resolve_waits()
g.fix_hazards_fast()

hdr = open("cdna_kernels/" + NAME + ".s.ref").read().split("; Override launch geometry")[0]
out = hdr + f"""; @launch grid=(256,1,1) block=(256,1,1) lds=163840
.amdgcn_target "amdgcn-amd-amdhsa--gfx950"
.text
.globl {NAME}_kernel
.p2align 8
.type {NAME}_kernel,@function
{NAME}_kernel:
{g.text()}
.section .rodata,"a"
.p2align 6
.amdhsa_kernel {NAME}_kernel
  .amdhsa_next_free_vgpr 512
  .amdhsa_next_free_sgpr 96
  .amdhsa_accum_offset 256
  .amdhsa_group_segment_fixed_size 0
  .amdhsa_kernarg_size 88
  .amdhsa_user_sgpr_count 2
  .amdhsa_user_sgpr_kernarg_segment_ptr 1
  .amdhsa_system_sgpr_workgroup_id_x 1
.end_amdhsa_kernel
"""
open(sys.argv[1], "w").write(out)
print("instrs:", sum(1 for it in g.items if it.kind == "i"), "stamps:", nstamp[0])
```

```python
import sys, math, struct
sys.path.insert(0, "dev")
from gen import *

NAME = "sequential_preLN__linear_kernel_hedgehog__glu_gated_geglu__prompt"
STAMPS = int(sys.argv[2]) if len(sys.argv) > 2 else 0


def f32(x):
    return "0x%08x" % struct.unpack("<I", struct.pack("<f", x))[0]


WS_CNT = 0x0
WS_CS = 0x10000
WS_ST = 0x50000
WS_KVP = 0x100000
WS_O = 0x200000
WS_H = 0x400000
WS_HH = 0x600000
WS_STAMP = 0xE00000
CNT_KV, CNT_O, CNT_H, CNT_HH = 0, 1, 2, 3

sX, sWQKV, sWPHI, sWO, sWG, sWU, sWD, sOUT, sDBG, sWS = 8, 12, 16, 20, 24, 28, 32, 36, 40, 44
sG, sJ, sW = 48, 49, 50
sT0, sT1, sT2, sT3, sT4, sT5 = 51, 52, 53, 54, 55, 56
sMT = 57
sLW = 58
sA, sB, sC, sD, sE = 59, 60, 61, 62, 63
sGATH = 88
sWB = 89
sCW = 90
sCL = 91
sSTAMP = 86
sGB, sJB, sGC, sJC, sLI, sXC = 93, 94, 95, 96, 97, 98
sMTC = 99
OOB = 0x7ff00000


def srd(r):
    return f"s[{r}:{r+3}]"


def vr(a, n=1):
    return f"v{a}" if n == 1 else f"v[{a}:{a+n-1}]"


def ar(a, n=1):
    return f"a{a}" if n == 1 else f"a[{a}:{a+n-1}]"


g = Gen()
I = g.I
nstamp = [0]
stamp_names = []


def stamp(name=""):
    if not STAMPS:
        return
    k = nstamp[0]
    nstamp[0] += 1
    stamp_names.append(name)
    g.cond_begin()
    I(f"s_memtime s[{sSTAMP}:{sSTAMP+1}]")
    I("s_waitcnt lgkmcnt(0)")
    I(f"v_mov_b32 v255, s{sSTAMP}")
    I(f"buffer_store_dword v255, v254, {srd(sWS)}, 0 offen offset:{4*k}")
    g.cond_end()


vLANE, vHB, vM = 1, 2, 3
vL16 = 4
vT0, vT1, vT2, vT3, vT4, vT5 = 5, 6, 7, 8, 9, 10
vFLAG = 11
vONE = 12
vCNT = 13
vINIT = 14
vDMY = 15

LDS_WK = 114688
LDS_RED = 114688
LDS_KVF = 157696
LDS_CS = 161792
LDS_BSCR = 86016


def prologue():
    I("s_cmp_ge_u32 s2, 256")
    I("s_cbranch_scc1 L_end")
    I("s_load_dwordx16 s[64:79], s[0:1], 0")
    I("s_load_dwordx4 s[80:83], s[0:1], 64")
    I("s_load_dwordx2 s[84:85], s[0:1], 80")
    I("s_getpc_b64 s[4:5]")
    I(f"v_lshlrev_b32 v{vT0}, 7, v0")
    I(f"global_load_dword v{vDMY}, v{vT0}, s[4:5]")
    I(f"v_and_b32 v{vT1}, 63, v0")
    I(f"v_lshlrev_b32 v{vT1}, 7, v{vT1}")
    I(f"v_add_u32 v{vT1}, 0x8000, v{vT1}")
    I(f"global_load_dword v{vDMY}, v{vT1}, s[4:5]")
    I(f"v_and_b32 v{vLANE}, 63, v0")
    I(f"v_lshrrev_b32 v{vT0}, 6, v0")
    I(f"v_readfirstlane_b32 s{sW}, v{vT0}")
    I(f"v_lshrrev_b32 v{vHB}, 5, v{vLANE}")
    I(f"v_and_b32 v{vM}, 31, v{vLANE}")
    I(f"v_lshlrev_b32 v{vL16}, 4, v{vLANE}")
    I(f"v_mov_b32 v{vONE}, 1")
    I(f"s_and_b32 s{sXC}, s2, 7")
    I(f"s_lshr_b32 s{sLI}, s2, 3")
    I(f"s_lshr_b32 s{sT0}, s{sXC}, 1")
    I(f"s_lshl_b32 s{sT0}, s{sT0}, 2")
    I(f"s_and_b32 s{sT1}, s{sLI}, 3")
    I(f"s_add_u32 s{sG}, s{sT0}, s{sT1}")
    I(f"s_and_b32 s{sT2}, s{sXC}, 1")
    I(f"s_lshl_b32 s{sT3}, s{sT2}, 3")
    I(f"s_lshr_b32 s{sT4}, s{sLI}, 2")
    I(f"s_add_u32 s{sJ}, s{sT3}, s{sT4}")
    I(f"s_lshl_b32 s{sGB}, s{sXC}, 1")
    I(f"s_and_b32 s{sT5}, s{sLI}, 1")
    I(f"s_add_u32 s{sGB}, s{sGB}, s{sT5}")
    I(f"s_lshr_b32 s{sJB}, s{sLI}, 1")
    I(f"s_mov_b32 s{sGC}, s{sG}")
    I(f"s_mul_i32 s{sJC}, s{sT2}, 7")
    I(f"s_add_u32 s{sJC}, s{sJC}, s{sT4}")
    I(f"s_cmp_eq_u32 s{sT4}, 7")
    I(f"s_cselect_b32 s{sJC}, 15, s{sJC}")
    I(f"s_lshl_b32 s{sMT}, s{sG}, 2")
    I(f"s_add_u32 s{sMT}, s{sMT}, s{sW}")
    I(f"s_mul_i32 s{sLW}, s{sW}, 28672")
    I(f"s_lshl_b32 s{sCL}, s{sW}, 10")
    for r, p, n in ((sX, 64, 1835008), (sWQKV, 66, 1204224), (sWPHI, 68, 25088), (sWO, 70, 401408),
                    (sWG, 74, 1605632), (sWU, 76, 1605632), (sWD, 78, 1605632), (sOUT, 80, 1835008),
                    (sDBG, 82, 256), (sWS, 84, 0x10000000)):
        I(f"s_mov_b32 s{r+2}, {n}")
        I(f"s_mov_b32 s{r+3}, 0x20000")


def prologue2():
    I("s_waitcnt lgkmcnt(0)")
    for r, p in ((sX, 64), (sWQKV, 66), (sWPHI, 68), (sWO, 70), (sWG, 74), (sWU, 76), (sWD, 78), (sOUT, 80),
                 (sDBG, 82), (sWS, 84)):
        I(f"s_mov_b32 s{r}, s{p}")
        I(f"s_mov_b32 s{r+1}, s{p+1}")
    if STAMPS:
        I(f"s_lshl_b32 s{sT0}, s2, 2")
        I(f"s_add_u32 s{sT0}, s{sT0}, s{sW}")
        I(f"s_lshl_b32 s{sT0}, s{sT0}, 7")
        I(f"s_add_u32 s{sT0}, s{sT0}, {WS_STAMP}")
        I(f"v_mov_b32 v254, s{sT0}")
    lab = g.newlabel("L_init")
    I(f"s_lshl_b32 s{sT0}, s2, 2")
    I(f"s_add_u32 s{sT0}, s{sT0}, s{sW}")
    I(f"s_cmp_lg_u32 s{sT0}, 3")
    I(f"s_cbranch_scc1 {lab}")
    g.cond_begin()
    I(f"v_lshlrev_b32 v{vT0}, 8, v{vLANE}")
    I(f"v_mov_b32 v{vT1}, 0")
    I(f"buffer_store_dword v{vT1}, v{vT0}, {srd(sWS)}, 0 offen sc1")
    I("s_waitcnt vmcnt(0)")
    I("s_mov_b64 exec, 1")
    I(f"buffer_store_dword v{vONE}, v{vT1}, {srd(sDBG)}, 0 offen sc1")
    I("s_mov_b64 exec, -1")
    g.cond_end()
    g.label(lab)


POLL_MAX = 200000


def poll(srdreg, voff, target):
    lp, ld = g.newlabel("L_poll"), g.newlabel("L_pdone")
    I(f"s_mov_b32 s{sT5}, 0")
    g.label(lp)
    I(f"buffer_load_dword v{vFLAG}, v{voff}, {srd(srdreg)}, 0 offen sc1")
    I("s_waitcnt vmcnt(0)")
    I(f"v_readfirstlane_b32 s{sT4}, v{vFLAG}")
    I(f"s_add_u32 s{sT5}, s{sT5}, 1")
    I(f"s_cmp_ge_u32 s{sT5}, {POLL_MAX}")
    I(f"s_cbranch_scc1 {ld}")
    I(f"s_cmp_lt_u32 s{sT4}, {target}")
    I(f"s_cbranch_scc1 {lp}")
    g.label(ld)


def signal(kind, sidx, toks, first=False):
    g.wait(*toks)
    I("s_barrier")
    lab = g.newlabel("L_sig")
    I(f"s_cmp_lg_u32 s{sW}, 0")
    I(f"s_cbranch_scc1 {lab}")
    g.cond_begin()
    I("s_mov_b64 exec, 1")
    if first:
        l2 = g.newlabel("L_ini")
        I(f"v_readfirstlane_b32 s{sT4}, v{vINIT}")
        I(f"s_cmp_lg_u32 s{sT4}, 0")
        I(f"s_cbranch_scc1 {l2}")
        I(f"v_mov_b32 v{vCNT}, 0")
        poll(sDBG, vCNT, 1)
        g.label(l2)
    I(f"s_lshl_b32 s{sT0}, s{sidx}, 8")
    I(f"s_add_u32 s{sT0}, s{sT0}, {WS_CNT + kind * 4096}")
    I(f"v_mov_b32 v{vCNT}, s{sT0}")
    I(f"buffer_atomic_add v{vONE}, v{vCNT}, {srd(sWS)}, 0 offen sc1")
    I("s_mov_b64 exec, -1")
    g.cond_end()
    g.label(lab)


def waitflag(kind, sidx, target=16):
    lab = g.newlabel("L_w")
    I(f"s_cmp_lg_u32 s{sW}, 0")
    I(f"s_cbranch_scc1 {lab}")
    g.cond_begin()
    I("s_mov_b64 exec, 1")
    I(f"s_lshl_b32 s{sT0}, s{sidx}, 8")
    I(f"s_add_u32 s{sT0}, s{sT0}, {WS_CNT + kind * 4096}")
    I(f"v_mov_b32 v{vCNT}, s{sT0}")
    poll(sWS, vCNT, target)
    I("s_mov_b64 exec, -1")
    g.cond_end()
    g.label(lab)
    I("s_barrier")


def dma(vaddr, srdreg, soff_sreg, lds_sreg, lds_imm):
    if lds_sreg is None:
        I(f"s_mov_b32 m0, {lds_imm}")
    else:
        I(f"s_add_u32 m0, s{lds_sreg}, {lds_imm}")
    return I(f"buffer_load_dwordx4 v{vaddr}, {srd(srdreg)}, s{soff_sreg} offen lds")


def chain32(acc, bfrag, rd, wf, n=28, swap=False, depth=3, first_c="0", pre=None):
    toks = {}
    nb = depth + 1
    for c in range(min(depth, n)):
        toks[c] = rd(c, wf + 4 * (c % nb))
    for c in range(n):
        if c + depth < n:
            toks[c + depth] = rd(c + depth, wf + 4 * ((c + depth) % nb))
        if pre is not None:
            pre(c)
        g.wait(toks[c])
        W = vr(wf + 4 * (c % nb), 4)
        X = bfrag(c)
        C = vr(acc, 16) if (c > 0 or first_c is None) else first_c
        if swap:
            I(f"v_mfma_f32_32x32x16_bf16 {vr(acc,16)}, {X}, {W}, {C}")
        else:
            I(f"v_mfma_f32_32x32x16_bf16 {vr(acc,16)}, {W}, {X}, {C}")


LOG2E = 1.4426950408889634
sLOG = 92


def featmap_head(acc, tmp, wphi):
    pk = tmp
    p = acc
    mx, mn, t0, t1 = tmp + 24, tmp + 25, tmp + 26, tmp + 27
    for i in range(8):
        I(f"v_cvt_pk_bf16_f32 v{pk+i}, v{acc+2*i}, v{acc+2*i+1}")
    I(f"v_mfma_f32_32x32x16_bf16 {vr(p,16)}, {vr(wphi,4)}, {vr(pk,4)}, 0")
    I(f"v_mfma_f32_32x32x16_bf16 {vr(p,16)}, {vr(wphi+4,4)}, {vr(pk+4,4)}, {vr(p,16)}")
    I(f"v_max3_f32 v{mx}, v{p}, v{p+1}, v{p+2}")
    I(f"v_min3_f32 v{mn}, v{p}, v{p+1}, v{p+2}")
    for i in range(3, 13, 2):
        I(f"v_max3_f32 v{mx}, v{mx}, v{p+i}, v{p+i+1}")
        I(f"v_min3_f32 v{mn}, v{mn}, v{p+i}, v{p+i+1}")
    I(f"v_max_f32 v{mx}, v{mx}, v{p+13}")
    I(f"v_min_f32 v{mn}, v{mn}, v{p+13}")
    I(f"v_mov_b32 v{t0}, v{mx}")
    I(f"v_mov_b32 v{t1}, v{mn}")
    I(f"v_permlane32_swap_b32 v{mx}, v{t0}")
    I(f"v_permlane32_swap_b32 v{mn}, v{t1}")
    I(f"v_max_f32 v{mx}, v{mx}, v{t0}")
    I(f"v_min_f32 v{mn}, v{mn}, v{t1}")
    I(f"v_mul_f32 v{mx}, {f32(-LOG2E)}, v{mx}")
    I(f"v_mul_f32 v{mn}, {f32(LOG2E)}, v{mn}")


def featmap_soft(acc, tmp, sign, out):
    p = acc
    e = tmp + 8
    mx, mn, t0, t1 = tmp + 24, tmp + 25, tmp + 26, tmp + 27
    b = mx if sign > 0 else mn
    for i in range(14):
        I(f"v_fma_f32 v{e+i}, {'' if sign > 0 else '-'}v{p+i}, s{sLOG}, v{b}")
    for i in range(14):
        I(f"v_exp_f32 v{e+i}, v{e+i}")
    I(f"v_add_f32 v{t0}, v{e}, v{e+1}")
    I(f"v_add_f32 v{t1}, v{e+2}, v{e+3}")
    for i in range(4, 14, 2):
        I(f"v_add_f32 v{t0}, v{t0}, v{e+i}")
        I(f"v_add_f32 v{t1}, v{t1}, v{e+i+1}")
    I(f"v_add_f32 v{t0}, v{t0}, v{t1}")
    I(f"v_mov_b32 v{t1}, v{t0}")
    I(f"v_permlane32_swap_b32 v{t0}, v{t1}")
    I(f"v_add_f32 v{t0}, v{t0}, v{t1}")
    I(f"v_rcp_f32 v{t0}, v{t0}")
    for i in range(14):
        I(f"v_mul_f32 v{e+i}, v{e+i}, v{t0}")
    for i in range(7):
        I(f"v_cvt_pk_bf16_f32 v{out+i}, v{e+2*i}, v{e+2*i+1}")
    I(f"v_mov_b32 v{out+7}, 0")


XF = 16
TMP = 128
PKP, PKM = 156, 164
ACCV = 172
WPHI = 188
SEL = 196
ACC = 204
WF = 220
vXA0, vXA1, vWA, vTR, vTR2 = 236, 237, 238, 239, 240
vXR = 241
WPH2 = 245
aWV, aWQ = 0, 28
aWO = 56
vDA = 253


def c_batch(mat, dbl, n0, n1, lds_base):
    t = None
    for i in range(n0 // 4, n1 // 4):
        I(f"s_add_u32 s{sT1}, s{sCW}, {i*4*8*3584 + dbl*128}")
        t = dma(vCA, sWG if mat == 0 else sWU, sT1, sCL, lds_base + (i * 4 - n0) * 1024)
    return t


vCA = 253


def touch1():
    I(f"s_mul_i32 s{sT0}, s{sLI}, {98*128}")
    I(f"s_mul_i32 s{sT1}, s{sW}, {25*128}")
    I(f"s_add_u32 s{sT0}, s{sT0}, s{sT1}")
    I(f"v_lshlrev_b32 v{vT0}, 7, v{vLANE}")
    I(f"v_mov_b32 v{vT2}, {OOB}")
    I(f"v_cmp_gt_u32 vcc, 25, v{vLANE}")
    I(f"v_cndmask_b32 v{vT0}, v{vT2}, v{vT0}, vcc")
    I(f"buffer_load_dword v{vDMY}, v{vT0}, {srd(sWO)}, s{sT0} offen")
    I(f"s_and_b32 s{sT0}, s{sW}, 1")
    I(f"s_cmp_eq_u32 s{sT0}, 1")
    I(f"s_cselect_b32 s4, s{sWU}, s{sWG}")
    I(f"s_cselect_b32 s5, s{sWU+1}, s{sWG+1}")
    I(f"s_lshr_b32 s{sT0}, s{sW}, 1")
    I(f"s_mul_i32 s{sT0}, s{sT0}, {7*3584}")
    I(f"s_mul_i32 s{sT1}, s{sLI}, {14*3584}")
    I(f"s_add_u32 s{sT0}, s{sT0}, s{sT1}")
    I(f"s_and_b32 s{sT1}, s{sXC}, 1")
    I(f"s_mul_i32 s{sT1}, s{sT1}, 1792")
    I(f"s_add_u32 s{sT0}, s{sT0}, s{sT1}")
    I(f"v_lshrrev_b32 v{vT0}, 4, v{vLANE}")
    I(f"v_mul_u32_u24 v{vT0}, 3584, v{vT0}")
    I(f"v_and_b32 v{vT1}, 15, v{vLANE}")
    I(f"v_lshl_add_u32 v{vT0}, v{vT1}, 7, v{vT0}")
    I(f"v_cmp_gt_u32 vcc, 14, v{vT1}")
    I(f"v_cndmask_b32 v{vT0}, v{vT2}, v{vT0}, vcc")
    I(f"buffer_load_dword v{vDMY}, v{vT0}, s[4:7], s{sT0} offen")
    I(f"v_cmp_gt_u32 vcc, 48, v{vLANE}")
    I(f"v_cndmask_b32 v{vT0}, v{vT2}, v{vT0}, vcc")
    I(f"s_add_u32 s{sT0}, s{sT0}, {4*3584}")
    I(f"buffer_load_dword v{vDMY}, v{vT0}, s[4:7], s{sT0} offen")


def touch2():
    I(f"s_mul_i32 s{sT2}, s{sLI}, {392*128}")
    I(f"s_mul_i32 s{sT1}, s{sW}, {98*128}")
    I(f"s_add_u32 s{sT2}, s{sT2}, s{sT1}")
    I(f"v_lshlrev_b32 v{vT1}, 7, v{vLANE}")
    I(f"buffer_load_dword v{vDMY}, v{vT1}, {srd(sWD)}, s{sT2} offen")
    I(f"v_cmp_gt_u32 vcc, 34, v{vLANE}")
    I(f"v_cndmask_b32 v{vT1}, v{vT2}, v{vT1}, vcc")
    I(f"s_add_u32 s{sT2}, s{sT2}, {64*128}")
    I(f"buffer_load_dword v{vDMY}, v{vT1}, {srd(sWD)}, s{sT2} offen")


def phaseA():
    g.comment("==== phase A ====")
    I(f"v_lshrrev_b32 v{vT0}, 3, v{vLANE}")
    I(f"v_mul_u32_u24 v{vT0}, 896, v{vT0}")
    I(f"v_and_b32 v{vT1}, 7, v{vLANE}")
    I(f"v_lshrrev_b32 v{vT2}, 4, v{vLANE}")
    I(f"v_xor_b32 v{vT3}, v{vT1}, v{vT2}")
    I(f"v_lshl_add_u32 v{vXA0}, v{vT3}, 4, v{vT0}")
    I(f"v_xor_b32 v{vT3}, 4, v{vT3}")
    I(f"v_lshl_add_u32 v{vXA1}, v{vT3}, 4, v{vT0}")
    I(f"v_lshrrev_b32 v{vT0}, 2, v{vLANE}")
    I(f"v_mul_u32_u24 v{vT0}, 2688, v{vT0}")
    I(f"v_and_b32 v{vT1}, 3, v{vLANE}")
    I(f"v_lshl_add_u32 v{vWA}, v{vT1}, 4, v{vT0}")
    I(f"s_mul_i32 s{sA}, s{sMT}, {32*896}")
    I(f"s_mul_i32 s{sWB}, s{sJ}, 56")
    I(f"s_and_b32 s{sT1}, s{sJ}, 1")
    I(f"s_lshl_b32 s{sT1}, s{sT1}, 3")
    I(f"s_sub_u32 s{sWB}, s{sWB}, s{sT1}")
    I(f"s_mul_i32 s{sT1}, s{sW}, {7*16*2688}")
    I(f"s_add_u32 s{sWB}, s{sWB}, s{sT1}")
    I(f"s_mul_i32 s{sT2}, s{sW}, 7168")
    I(f"s_mov_b32 s{sLOG}, {f32(LOG2E)}")
    prologue2()
    stamp("start")
    tx = {}
    for seg in range(7):
        for o in range(4):
            I(f"s_add_u32 s{sT1}, s{sA}, {o*8*896 + seg*128}")
            tx[seg] = dma(vXA1 if o & 1 else vXA0, sX, sT1, sLW, (o * 7 + seg) * 1024)
    twk = None
    for i in range(7):
        I(f"s_add_u32 s{sT1}, s{sWB}, {896 + i*16*2688}")
        twk = dma(vWA, sWQKV, sT1, sT2, LDS_WK + i * 1024)
    stamp("x,wk issued")
    I(f"v_mul_u32_u24 v{vT0}, 224, v{vHB}")
    I(f"v_subrev_u32 v{vT1}, 2, v{vM}")
    I(f"v_cmp_gt_u32 vcc, 26, v{vM}")
    I(f"v_cndmask_b32 v{vT1}, v{vT1}, v{vM}, vcc")
    I(f"v_lshl_add_u32 v{vT0}, v{vT1}, 1, v{vT0}")
    I(f"v_and_b32 v{vT1}, 26, v{vM}")
    I(f"v_cmp_eq_u32 vcc, 26, v{vT1}")
    I(f"v_mov_b32 v{vT2}, {OOB}")
    I(f"v_cndmask_b32 v{vT0}, v{vT0}, v{vT2}, vcc")
    I(f"v_cmp_eq_u32 vcc, 1, v{vHB}")
    I(f"v_cndmask_b32 v{vT1}, v{vT0}, v{vT2}, vcc")
    I(f"s_mul_i32 s{sT0}, s{sJ}, 1568")
    tphi = None
    for c in range(2):
        for jj in range(8):
            d0 = 16 * c + (jj & 3) + 8 * (jj >> 2)
            va = vT1 if (c == 1 and jj >= 4) else vT0
            dst = (WPH2 + 4 * c + jj // 2) if jj & 1 else (WPHI + 4 * c + jj // 2)
            tphi = I(f"buffer_load_ushort v{dst}, v{va}, {srd(sWPHI)}, s{sT0} offen offset:{d0*56}")
    aCS = 168
    I(f"s_mul_i32 s{sT0}, s{sG}, {28*3584}")
    I(f"s_lshl_b32 s{sT1}, s{sJC}, 8")
    I(f"s_add_u32 s{sT0}, s{sT0}, s{sT1}")
    I(f"s_cmp_eq_u32 s{sW}, 3")
    I(f"s_cselect_b32 s4, s{sWU}, s{sWG}")
    I(f"s_cselect_b32 s5, s{sWU+1}, s{sWG+1}")
    I(f"s_mov_b32 s6, 1605632")
    I(f"s_mov_b32 s7, 0x20000")
    I(f"s_cmp_lt_u32 s{sW}, 2")
    I(f"s_cselect_b32 s{sT1}, {OOB}, 0")
    I(f"s_cmp_ge_u32 s{sJC}, 14")
    I(f"s_cselect_b32 s{sT1}, {OOB}, s{sT1}")
    I(f"v_lshlrev_b32 v{vT0}, 2, v{vLANE}")
    I(f"v_add_u32 v{vT0}, s{sT1}, v{vT0}")
    for r in range(28):
        I(f"s_add_u32 s{sT1}, s{sT0}, {r*3584}")
        I(f"buffer_load_dword a{aCS+r}, v{vT0}, s[4:7], s{sT1} offen")
    I(f"v_lshrrev_b32 v{vT0}, 3, v{vM}")
    I(f"v_mul_u32_u24 v{vT0}, 7168, v{vT0}")
    I(f"v_add_u32 v{vT0}, s{sLW}, v{vT0}")
    I(f"v_and_b32 v{vT1}, 7, v{vM}")
    I(f"v_lshl_add_u32 v{vT0}, v{vT1}, 7, v{vT0}")
    I(f"v_bfe_u32 v{vT1}, v{vM}, 1, 3")
    I(f"v_xor_b32 v{vT1}, v{vT1}, v{vHB}")
    for q in range(4):
        I(f"v_xor_b32 v{vT2}, {2*q}, v{vT1}")
        I(f"v_lshl_add_u32 v{vXR+q}, v{vT2}, 4, v{vT0}")
    I(f"v_bfe_u32 v{vT0}, v{vLANE}, 2, 2")
    I(f"v_lshl_add_u32 v{vT0}, v{vHB}, 3, v{vT0}")
    I(f"v_lshlrev_b32 v{vT0}, 6, v{vT0}")
    I(f"v_bfe_u32 v{vT1}, v{vLANE}, 4, 1")
    I(f"v_and_b32 v{vT2}, 3, v{vLANE}")
    I(f"v_lshl_add_u32 v{vT1}, v{vT1}, 2, v{vT2}")
    I(f"s_and_b32 s{sT1}, s{sJ}, 1")
    I(f"v_add_u32 v{vT1}, s{sT1}, v{vT1}")
    I(f"v_and_b32 v{vT1}, 7, v{vT1}")
    I(f"v_lshl_add_u32 v{vTR}, v{vT1}, 3, v{vT0}")
    I(f"v_add_u32 v{vTR2}, 57344, v{vTR}")
    I(f"v_lshlrev_b32 v{vT0}, 2, v{vHB}")
    I(f"v_sub_u32 v{vT0}, v{vM}, v{vT0}")
    I(f"v_mov_b32 v{vT3}, 0x3f80")
    I(f"v_mov_b32 v{vT4}, 0x3f800000")
    for c in range(2):
        for i in range(4):
            s0 = 16 * c + ((2 * i) & 3) + 8 * (i >> 1)
            I(f"v_cmp_eq_u32 vcc, {s0}, v{vT0}")
            I(f"v_cndmask_b32 v{vT1}, 0, v{vT3}, vcc")
            I(f"v_cmp_eq_u32 vcc, {s0+1}, v{vT0}")
            I(f"v_cndmask_b32 v{SEL+4*c+i}, v{vT1}, v{vT4}, vcc")
    S1, S2 = ACC, ACC + 4
    for i in range(8):
        I(f"v_mov_b32 v{ACC+i}, 0")
    I(f"v_mov_b32 v{vT5}, 0x3f803f80")
    wl = [(1792, aWV, i) for i in range(7)] + [(0, aWQ, i) for i in range(7)]
    tw = {}
    for seg in range(7):
        g.wait(tx[seg])
        t = None
        for q in range(4):
            c = 4 * seg + q
            t = I(f"ds_read_b128 {vr(XF+4*c,4)}, v{vXR+q} offset:{seg*1024}")
        for (off, areg, i) in wl[seg:seg + 1]:
            I(f"s_add_u32 s{sT1}, s{sWB}, {off + i*16*2688}")
            tw[areg] = I(f"buffer_load_dwordx4 {ar(areg+4*i,4)}, v{vWA}, {srd(sWQKV)}, s{sT1} offen")
        g.wait(t)
        for k in range(16):
            r = XF + 16 * seg + k
            I(f"v_dot2_f32_bf16 v{S1+k%4}, v{r}, v{vT5}, v{S1+k%4}")
            I(f"v_dot2_f32_bf16 v{S2+k%4}, v{r}, v{r}, v{S2+k%4}")
    stamp("x stats")
    I(f"v_add_f32 v{S1}, v{S1}, v{S1+1}")
    I(f"v_add_f32 v{S1+2}, v{S1+2}, v{S1+3}")
    I(f"v_add_f32 v{S2}, v{S2}, v{S2+1}")
    I(f"v_add_f32 v{S2+2}, v{S2+2}, v{S2+3}")
    I(f"v_add_f32 v{S1}, v{S1}, v{S1+2}")
    I(f"v_add_f32 v{S2}, v{S2}, v{S2+2}")
    I(f"v_mov_b32 v{S1+1}, v{S1}")
    I(f"v_mov_b32 v{S2+1}, v{S2}")
    I(f"v_permlane32_swap_b32 v{S1}, v{S1+1}")
    I(f"v_permlane32_swap_b32 v{S2}, v{S2+1}")
    I(f"v_add_f32 v{S1}, v{S1}, v{S1+1}")
    I(f"v_add_f32 v{S2}, v{S2}, v{S2+1}")
    I(f"v_mul_f32 v{S1}, {f32(1/448)}, v{S1}")
    I(f"v_mul_f32 v{S2}, {f32(1/448)}, v{S2}")
    I(f"v_fma_f32 v{S2}, -v{S1}, v{S1}, v{S2}")
    I(f"v_max_f32 v{S2}, 0, v{S2}")
    I(f"v_add_f32 v{S2}, {f32(1e-5)}, v{S2}")
    RS, NB = ACC + 8, ACC + 10
    I(f"v_rsq_f32 v{RS}, v{S2}")
    I(f"v_mul_f32 v{NB}, v{S1}, v{RS}")
    I(f"v_sub_f32 v{NB}, 0, v{NB}")
    I(f"v_mov_b32 v{RS+1}, v{RS}")
    I(f"v_mov_b32 v{NB+1}, v{NB}")
    TP = WF
    for k in range(0, 112, 8):
        for u in range(8):
            I(f"v_lshlrev_b32 v{TP+2*u}, 16, v{XF+k+u}")
            I(f"v_and_b32 v{TP+2*u+1}, 0xffff0000, v{XF+k+u}")
        for u in range(8):
            I(f"v_pk_fma_f32 {vr(TP+2*u,2)}, {vr(TP+2*u,2)}, {vr(RS,2)}, {vr(NB,2)}")
        for u in range(8):
            I(f"v_cvt_pk_bf16_f32 v{XF+k+u}, v{TP+2*u}, v{TP+2*u+1}")
        kk = k // 8
        if kk < 7:
            (off, areg, i) = wl[7 + kk]
            I(f"s_add_u32 s{sT1}, s{sWB}, {off + i*16*2688}")
            tw[areg] = I(f"buffer_load_dwordx4 {ar(areg+4*i,4)}, v{vWA}, {srd(sWQKV)}, s{sT1} offen")
        elif kk == 8:
            touch1()
        elif kk == 12:
            I(f"v_mov_b32 v{vCNT}, 0")
            tinit = I(f"buffer_load_dword v{vINIT}, v{vCNT}, {srd(sDBG)}, 0 offen sc1")
    stamp("normalized")
    g.wait(tphi)
    for i in range(8):
        I(f"v_lshl_or_b32 v{WPHI+i}, v{WPH2+i}, 16, v{WPHI+i}")
    I("s_barrier")
    I(f"v_add_u32 v{vT0}, {LDS_WK}, v{vTR}")

    def rdk(c, dst):
        I(f"ds_read_b64_tr_b16 {vr(dst,2)}, v{vT0} offset:{c*1024}")
        return I(f"ds_read_b64_tr_b16 {vr(dst+2,2)}, v{vT0} offset:{c*1024+256}")

    xf = lambda c: vr(XF + 4 * c, 4)
    chain32(ACC, xf, rdk, WF)
    stamp("k chain")
    featmap_head(ACC, TMP, WPHI)
    featmap_soft(ACC, TMP, +1, PKP)
    I(f"v_add_u32 v{vT1}, s{sLW}, v{vL16}")
    g.wait(tw[aWV])
    t = None
    for i in range(7):
        t = I(f"ds_write_b128 v{vT1}, {ar(aWV+4*i,4)} offset:{i*1024}")
    g.wait(t)
    I("s_barrier")
    stamp("wv ready")

    def rdx(extra):
        def rd(c, dst):
            off = (c // 7) * 28672 + (c % 7) * 1024 + extra
            base = vTR
            if off >= 57344:
                off -= 57344
                base = vTR2
            I(f"ds_read_b64_tr_b16 {vr(dst,2)}, v{base} offset:{off}")
            return I(f"ds_read_b64_tr_b16 {vr(dst+2,2)}, v{base} offset:{off+256}")
        return rd

    g.begin()
    chain32(ACCV, xf, rdx(0), WF, swap=True)
    main = g.end()
    g.begin()
    featmap_soft(ACC, TMP, -1, PKM)
    side = g.end()
    g.put(interleave(main, side, every=1, per=3))
    TPP, TPM = ACC, TMP
    I(f"v_mfma_f32_32x32x16_bf16 {vr(TPP,16)}, {vr(PKP,4)}, {vr(SEL,4)}, 0")
    I(f"v_mfma_f32_32x32x16_bf16 {vr(TPP,16)}, {vr(PKP+4,4)}, {vr(SEL+4,4)}, {vr(TPP,16)}")
    I(f"v_mfma_f32_32x32x16_bf16 {vr(TPM,16)}, {vr(PKM,4)}, {vr(SEL,4)}, 0")
    I(f"v_mfma_f32_32x32x16_bf16 {vr(TPM,16)}, {vr(PKM+4,4)}, {vr(SEL+4,4)}, {vr(TPM,16)}")
    VF = WF
    I(f"v_cmp_le_u32 vcc, 28, v{vM}")
    for i in range(8):
        I(f"v_cvt_pk_bf16_f32 v{VF+i}, v{ACCV+2*i}, v{ACCV+2*i+1}")
    for i in range(8):
        I(f"v_cndmask_b32 v{VF+i}, v{VF+i}, v{vT5}, vcc")
    for i in range(8):
        I(f"v_cvt_pk_bf16_f32 v{PKP+i}, v{TPP+2*i}, v{TPP+2*i+1}")
    for i in range(8):
        I(f"v_cvt_pk_bf16_f32 v{PKM+i}, v{TPM+2*i}, v{TPM+2*i+1}")
    KP, KM = ACC, ACCV
    I(f"v_mfma_f32_32x32x16_bf16 {vr(KP,16)}, {vr(PKP,4)}, {vr(VF,4)}, 0")
    I(f"v_mfma_f32_32x32x16_bf16 {vr(KP,16)}, {vr(PKP+4,4)}, {vr(VF+4,4)}, {vr(KP,16)}")
    I(f"v_mfma_f32_32x32x16_bf16 {vr(KM,16)}, {vr(PKM,4)}, {vr(VF,4)}, 0")
    I(f"v_mfma_f32_32x32x16_bf16 {vr(KM,16)}, {vr(PKM+4,4)}, {vr(VF+4,4)}, {vr(KM,16)}")
    I(f"s_lshl_b32 s{sT0}, s{sW}, 13")
    I(f"s_add_u32 s{sT0}, s{sT0}, {LDS_RED}")
    I(f"v_add_u32 v{vT0}, s{sT0}, v{vL16}")
    for k in range(4):
        I(f"ds_write_b128 v{vT0}, {vr(KP+4*k,4)} offset:{k*1024}")
    for k in range(4):
        I(f"ds_write_b128 v{vT0}, {vr(KM+4*k,4)} offset:{4096+k*1024}")
    g.wait_all(vm=False)
    I("s_barrier")
    I(f"s_lshl_b32 s{sT0}, s{sW}, 11")
    I(f"s_add_u32 s{sT0}, s{sT0}, {LDS_RED}")
    I(f"v_add_u32 v{vT0}, s{sT0}, v{vL16}")
    R = 128
    for w in range(4):
        for hf in range(2):
            I(f"ds_read_b128 {vr(R+8*w+4*hf,4)}, v{vT0} offset:{w*8192+hf*1024}")
    I(f"s_lshl_b32 s{sT0}, s{sJ}, 2")
    I(f"s_add_u32 s{sT0}, s{sT0}, s{sW}")
    I(f"s_lshl_b32 s{sT0}, s{sT0}, 14")
    I(f"s_add_u32 s{sGATH}, s{sT0}, {WS_KVP}")
    I(f"s_lshl_b32 s{sT1}, s{sG}, 10")
    I(f"s_add_u32 s{sT1}, s{sT1}, s{sGATH}")
    g.wait_all(vm=False)
    for i in range(8):
        I(f"v_add_f32 v{R+i}, v{R+i}, v{R+8+i}")
        I(f"v_add_f32 v{R+16+i}, v{R+16+i}, v{R+24+i}")
    for i in range(8):
        I(f"v_add_f32 v{R+i}, v{R+i}, v{R+16+i}")
    for i in range(4):
        I(f"v_cvt_pk_bf16_f32 v{R+8+i}, v{R+2*i}, v{R+2*i+1}")
    tst = I(f"buffer_store_dwordx4 {vr(R+8,4)}, v{vL16}, {srd(sWS)}, s{sT1} offen sc1")
    stamp("kv stored")
    I(f"v_add_u32 v{vT1}, s{sLW}, v{vL16}")
    g.wait(tw[aWQ])
    for i in range(7):
        I(f"ds_write_b128 v{vT1}, {ar(aWQ+4*i,4)} offset:{7168+i*1024}")
    lab = g.newlabel("L_cs")
    I(f"s_cmp_lt_u32 s{sW}, 2")
    I(f"s_cbranch_scc1 {lab}")
    g.cond_begin()
    for r in range(28):
        I(f"v_accvgpr_read_b32 v{R+r}, a{aCS+r}")
    I(f"v_mov_b32 v{ACC}, 0\nv_mov_b32 v{ACC+1}, 0")
    for r in range(28):
        I(f"v_dot2_f32_bf16 v{ACC}, v{R+r}, v{vT3}, v{ACC}")
        I(f"v_dot2_f32_bf16 v{ACC+1}, v{R+r}, v{vT4}, v{ACC+1}")
    I(f"s_lshl_b32 s{sT0}, s{sJC}, 4")
    I(f"s_add_u32 s{sT0}, s{sT0}, s{sG}")
    I(f"s_lshl_b32 s{sT0}, s{sT0}, 1")
    I(f"s_add_u32 s{sT0}, s{sT0}, s{sW}")
    I(f"s_lshl_b32 s{sT0}, s{sT0}, 9")
    I(f"s_add_u32 s{sT0}, s{sT0}, {WS_CS - 2*512}")
    I(f"v_lshlrev_b32 v{vT0}, 3, v{vLANE}")
    I(f"buffer_store_dwordx2 {vr(ACC,2)}, v{vT0}, {srd(sWS)}, s{sT0} offen sc1")
    I("s_waitcnt vmcnt(0)")
    g.cond_end()
    g.label(lab)
    g.wait_all(vm=False)
    signal(CNT_KV, sJ, [tst], first=True)
    stamp("kv signaled")
    I(f"v_lshrrev_b32 v{vT0}, 4, v{vLANE}")
    I(f"v_mul_u32_u24 v{vT0}, 896, v{vT0}")
    I(f"v_and_b32 v{vT1}, 15, v{vLANE}")
    I(f"v_lshl_add_u32 v{vT0}, v{vT1}, 4, v{vT0}")
    I(f"s_and_b32 s{sB}, s{sJB}, 3")
    I(f"s_cmp_eq_u32 s{sB}, 3")
    I(f"s_cselect_b32 s{sT0}, 8, 16")
    I(f"v_cmp_gt_u32 vcc, s{sT0}, v{vT1}")
    I(f"v_mov_b32 v{vT2}, {OOB}")
    I(f"v_cndmask_b32 v{vT0}, v{vT2}, v{vT0}, vcc")
    I(f"s_lshl_b32 s{sT0}, s{sB}, 8")
    I(f"s_mul_i32 s{sT1}, s{sW}, {112*896}")
    I(f"s_add_u32 s{sT0}, s{sT0}, s{sT1}")
    g.begin()
    two = {}
    for i in range(28):
        I(f"s_add_u32 s{sT1}, s{sT0}, {i*4*896}")
        two[i] = I(f"buffer_load_dwordx4 {ar(aWO+4*i,4)}, v{vT0}, {srd(sWO)}, s{sT1} offen")
    touch2()
    side = g.end()
    g.begin()
    chain32(ACC, xf, rdx(7168), WF)
    main = g.end()
    g.put(interleave(main, side, every=1, per=2))
    PQP, PQM = PKP, PKM
    featmap_head(ACC, TMP, WPHI)
    featmap_soft(ACC, TMP, +1, PQP)
    featmap_soft(ACC, TMP, -1, PQM)
    stamp("q done")
    waitflag(CNT_KV, sJ)
    stamp("kv flag")
    tl = []
    for rb in range(16):
        I(f"s_add_u32 s{sT1}, s{sGATH}, {rb*1024}")
        tl.append(I(f"buffer_load_dwordx4 {vr(16+4*rb,4)}, v{vL16}, {srd(sWS)}, s{sT1} offen sc1"))
    for i in range(8):
        I(f"v_mov_b32 v{R+i}, 0")
    for rb in range(16):
        g.wait(tl[rb])
        for i in range(4):
            I(f"v_dot2_f32_bf16 v{R+2*i}, v{16+4*rb+i}, v{vT3}, v{R+2*i}")
            I(f"v_dot2_f32_bf16 v{R+2*i+1}, v{16+4*rb+i}, v{vT4}, v{R+2*i+1}")
    for i in range(4):
        I(f"v_cvt_pk_bf16_f32 v{R+8+i}, v{R+2*i}, v{R+2*i+1}")
    I(f"s_add_u32 s{sT0}, s{sCL}, {LDS_KVF}")
    I(f"v_add_u32 v{vT2}, s{sT0}, v{vL16}")
    I(f"ds_write_b128 v{vT2}, {vr(R+8,4)}")
    I(f"v_subrev_u32 v{vT2}, 2, v{vM}")
    I(f"v_cmp_gt_u32 vcc, 26, v{vM}")
    I(f"v_cndmask_b32 v{vT2}, v{vT2}, v{vM}, vcc")
    I(f"v_and_b32 v{vT1}, 26, v{vM}")
    I(f"v_cmp_eq_u32 vcc, 26, v{vT1}")
    I(f"v_cndmask_b32 v{vT2}, v{vT2}, 28, vcc")
    I(f"v_lshl_add_u32 v{vT2}, v{vHB}, 5, v{vT2}")
    I(f"v_lshlrev_b32 v{vT2}, 4, v{vT2}")
    I(f"v_add_u32 v{vT2}, {LDS_KVF}, v{vT2}")
    g.wait_all(vm=False)
    I("s_barrier")
    for f in range(4):
        I(f"ds_read_b128 {vr(R+4*f,4)}, v{vT2} offset:{f*1024}")
    I(f"s_lshl_b32 s{sT0}, s{sMT}, 4")
    I(f"s_add_u32 s{sT0}, s{sT0}, s{sJ}")
    I(f"s_lshl_b32 s{sT0}, s{sT0}, 11")
    I(f"s_add_u32 s{sT0}, s{sT0}, {WS_O}")
    g.wait_all(vm=False)
    ph = [PQP, PQP + 4, PQM, PQM + 4]
    for f in range(4):
        I(f"v_mfma_f32_32x32x16_bf16 {vr(ACC,16)}, {vr(R+4*f,4)}, {vr(ph[f],4)}, {'0' if f == 0 else vr(ACC,16)}")
    I(f"v_add_f32 v{vT1}, {f32(1e-6)}, v{ACC+14}")
    I(f"v_rcp_f32 v{vT1}, v{vT1}")
    for i in range(14):
        I(f"v_mul_f32 v{ACC+i}, v{ACC+i}, v{vT1}")
    for i in range(7):
        I(f"v_cvt_pk_bf16_f32 v{R+i}, v{ACC+2*i}, v{ACC+2*i+1}")
    I(f"v_mov_b32 v{R+7}, 0")
    I(f"buffer_store_dwordx4 {vr(R,4)}, v{vL16}, {srd(sWS)}, s{sT0} offen sc1")
    tst = I(f"buffer_store_dwordx4 {vr(R+4,4)}, v{vL16}, {srd(sWS)}, s{sT0} offen offset:1024 sc1")
    stamp("o stored")
    signal(CNT_O, sG, [tst])
    stamp("o signaled")
    return two


def phaseB(two):
    g.comment("==== phase B ====")
    WOF = 16
    OF = 144
    BACC = 176
    XR = 240
    vB1, vB2, vB3 = 248, 249, 250
    I(f"v_lshrrev_b32 v{vT0}, 3, v{vLANE}")
    I(f"v_mul_u32_u24 v{vT1}, 3584, v{vT0}")
    I(f"v_bfe_u32 v{vT2}, v{vLANE}, 4, 1")
    I(f"v_lshlrev_b32 v{vT2}, 2, v{vT2}")
    I(f"v_and_b32 v{vT3}, 7, v{vLANE}")
    I(f"v_xor_b32 v{vT3}, v{vT3}, v{vT2}")
    I(f"v_lshl_add_u32 v{vCA}, v{vT3}, 4, v{vT1}")
    I(f"s_cmp_ge_u32 s{sJC}, 14")
    I(f"s_cselect_b32 s{sT0}, {OOB}, 0")
    I(f"v_add_u32 v{vCA}, s{sT0}, v{vCA}")
    I(f"s_mul_i32 s{sCW}, s{sW}, {8*3584}")
    I(f"s_lshl_b32 s{sT0}, s{sJC}, 8")
    I(f"s_add_u32 s{sCW}, s{sCW}, s{sT0}")
    I(f"s_lshr_b32 s{sC}, s{sJB}, 2")
    I(f"s_lshl_b32 s{sT4}, s{sGB}, 2")
    I(f"s_add_u32 s{sC}, s{sC}, s{sT4}")
    I(f"s_mul_i32 s{sT0}, s{sC}, {32*896}")
    I(f"s_lshl_b32 s{sT1}, s{sB}, 8")
    I(f"s_add_u32 s{sT0}, s{sT0}, s{sT1}")
    I(f"v_mul_u32_u24 v{vT0}, 896, v{vM}")
    I(f"v_lshrrev_b32 v{vT1}, 5, v0")
    I(f"v_lshl_add_u32 v{vT0}, v{vT1}, 4, v{vT0}")
    I(f"buffer_load_dwordx4 {vr(XR,4)}, v{vT0}, {srd(sX)}, s{sT0} offen")
    txr = I(f"buffer_load_dwordx4 {vr(XR+4,4)}, v{vT0}, {srd(sX)}, s{sT0} offen offset:128")
    c_batch(0, 0, 0, 56, 0)
    c_batch(1, 0, 0, 28, 57344)
    I(f"s_mul_i32 s{sT0}, s{sW}, 8064")
    I(f"s_add_u32 s{sT0}, s{sT0}, {LDS_RED}")
    I(f"v_lshrrev_b32 v{vT0}, 4, v{vLANE}")
    I(f"v_mul_u32_u24 v{vT1}, 288, v{vT0}")
    I(f"v_and_b32 v{vT2}, 15, v{vLANE}")
    I(f"v_lshl_add_u32 v{vT1}, v{vT2}, 4, v{vT1}")
    I(f"v_add_u32 v{vB3}, s{sT0}, v{vT1}")
    I(f"v_bfe_u32 v{vT1}, v{vLANE}, 2, 2")
    I(f"v_lshrrev_b32 v{vT2}, 1, v{vT0}")
    I(f"v_and_b32 v{vT3}, 1, v{vT0}")
    I(f"v_lshl_add_u32 v{vT4}, v{vT3}, 2, v{vT1}")
    I(f"v_lshl_add_u32 v{vB1}, v{vT2}, 4, v{vT4}")
    I(f"v_add_u32 v{vB2}, 8, v{vT4}")
    I(f"v_and_b32 v{vT1}, 1, v{vT1}")
    I(f"v_lshl_add_u32 v{vT1}, v{vT3}, 1, v{vT1}")
    I(f"v_add_u32 v{vT1}, 24, v{vT1}")
    I(f"v_cmp_eq_u32 vcc, 1, v{vT2}")
    I(f"v_cndmask_b32 v{vB2}, v{vB2}, v{vT1}, vcc")
    I(f"v_and_b32 v{vT1}, 3, v{vLANE}")
    I(f"v_lshlrev_b32 v{vT1}, 3, v{vT1}")
    I(f"v_add_u32 v{vT1}, s{sT0}, v{vT1}")
    I(f"v_mul_u32_u24 v{vB1}, 288, v{vB1}")
    I(f"v_mul_u32_u24 v{vB2}, 288, v{vB2}")
    I(f"v_add_u32 v{vB1}, v{vB1}, v{vT1}")
    I(f"v_add_u32 v{vB2}, v{vB2}, v{vT1}")
    I(f"v_lshlrev_b32 v{vT5}, 10, v{vT2}")
    I(f"v_lshl_add_u32 v{vT5}, v{vT3}, 9, v{vT5}")
    I(f"v_and_b32 v{vT1}, 15, v{vLANE}")
    I(f"v_lshl_add_u32 v{vT5}, v{vT1}, 4, v{vT5}")
    for hh in range(4):
        g.wait(two[7 * hh + 6])
        t = None
        for i in range(7):
            t = I(f"ds_write_b128 v{vB3}, {ar(aWO+4*(7*hh+i),4)} offset:{i*1152}")
        g.wait(t)
        for nt in range(8):
            d = WOF + (hh * 8 + nt) * 4
            I(f"ds_read_b64_tr_b16 {vr(d,2)}, v{vB1} offset:{nt*32}")
            t = I(f"ds_read_b64_tr_b16 {vr(d+2,2)}, v{vB2} offset:{nt*32}")
        g.wait(t)
    stamp("wo ready")
    waitflag(CNT_O, sGB)
    stamp("o flag")
    I(f"s_lshl_b32 s{sT0}, s{sC}, 4")
    I(f"s_lshl_b32 s{sT1}, s{sW}, 2")
    I(f"s_add_u32 s{sT0}, s{sT0}, s{sT1}")
    I(f"s_lshl_b32 s{sT0}, s{sT0}, 11")
    I(f"s_add_u32 s{sT0}, s{sT0}, {WS_O}")
    to = {}
    for hh in range(4):
        I(f"s_add_u32 s{sT1}, s{sT0}, {hh*2048}")
        for mt in range(2):
            to[hh, mt] = I(f"buffer_load_dwordx4 {vr(OF+(hh*2+mt)*4,4)}, v{vT5}, {srd(sWS)}, s{sT1} offen offset:{mt*256} sc1")
    I(f"s_lshl_b32 s{sT0}, s{sJC}, 14")
    I(f"s_add_u32 s{sT0}, s{sT0}, {WS_CS}")
    I(f"v_lshlrev_b32 v{vB3}, 2, v0")
    for rb in range(16):
        I(f"s_add_u32 s{sT1}, s{sT0}, {rb*1024}")
        I(f"buffer_load_dword a{168+rb}, v{vB3}, {srd(sWS)}, s{sT1} offen sc1")
    I(f"s_lshl_b32 s{sT0}, s{sW}, 14")
    I(f"s_add_u32 s{sT0}, s{sT0}, {LDS_BSCR}")
    I(f"v_lshrrev_b32 v{vT0}, 4, v{vLANE}")
    I(f"v_lshlrev_b32 v{vT0}, 9, v{vT0}")
    I(f"v_and_b32 v{vT1}, 15, v{vLANE}")
    I(f"v_lshl_add_u32 v{vT0}, v{vT1}, 4, v{vT0}")
    I(f"v_add_u32 v{vT0}, s{sT0}, v{vT0}")
    for hh in range(4):
        for mt in range(2):
            g.wait(to[hh, mt])
            for nt in range(8):
                a = BACC + (mt * 8 + nt) * 4
                I(f"v_mfma_f32_16x16x32_bf16 {vr(a,4)}, {vr(WOF+(hh*8+nt)*4,4)}, {vr(OF+(hh*2+mt)*4,4)}, {'0' if hh == 0 else vr(a,4)}")
    for mt in range(2):
        for nt in range(8):
            I(f"ds_write_b128 v{vT0}, {vr(BACC+(mt*8+nt)*4,4)} offset:{nt*2048+mt*256}")
    I(f"v_lshrrev_b32 v{vT1}, 5, v0")
    I(f"v_lshlrev_b32 v{vT0}, 10, v{vT1}")
    I(f"v_lshl_add_u32 v{vT0}, v{vM}, 4, v{vT0}")
    I(f"v_add_u32 v{vT0}, {LDS_BSCR}, v{vT0}")
    g.wait_all(vm=False)
    I("s_barrier")
    R = 16
    for rnd in range(2):
        for w in range(4):
            for q in range(2):
                I(f"ds_read_b128 {vr(R+rnd*32+w*8+q*4,4)}, v{vT0} offset:{w*16384+rnd*8192+q*512}")
    S1, S2 = 100, 101
    I(f"v_mov_b32 v{S1}, 0\nv_mov_b32 v{S2}, 0")
    I(f"v_mov_b32 v{vT5}, 0x3f803f80")
    I(f"s_mul_i32 s{sT0}, s{sC}, 28")
    I(f"s_lshl_b32 s{sT1}, s{sB}, 3")
    I(f"s_add_u32 s{sT0}, s{sT0}, s{sT1}")
    I(f"s_lshl_b32 s{sT0}, s{sT0}, 10")
    I(f"s_add_u32 s{sT0}, s{sT0}, {WS_H}")
    I(f"v_lshlrev_b32 v{vT0}, 4, v0")
    I(f"s_cmp_eq_u32 s{sB}, 3")
    I(f"s_cselect_b32 s{sT2}, 0, -1")
    I(f"s_cselect_b32 s{sT1}, {OOB}, 0")
    I(f"s_add_u32 s{sT1}, s{sT1}, 4096")
    I(f"v_add_u32 v{vT1}, s{sT1}, v{vT0}")
    g.wait(txr)
    g.wait_all(vm=False)
    HP = 104
    for rnd in range(2):
        b = R + rnd * 32
        for i in range(8):
            I(f"v_add_f32 v{b+i}, v{b+i}, v{b+8+i}")
            I(f"v_add_f32 v{b+16+i}, v{b+16+i}, v{b+24+i}")
        for i in range(4):
            I(f"v_lshlrev_b32 v{b+8+2*i}, 16, v{XR+4*rnd+i}")
            I(f"v_and_b32 v{b+8+2*i+1}, 0xffff0000, v{XR+4*rnd+i}")
        for i in range(8):
            I(f"v_add_f32 v{b+i}, v{b+i}, v{b+16+i}")
        for i in range(8):
            I(f"v_add_f32 v{b+i}, v{b+i}, v{b+8+i}")
        for i in range(4):
            I(f"v_cvt_pk_bf16_f32 v{HP+4*rnd+i}, v{b+2*i}, v{b+2*i+1}")
        I(f"buffer_store_dwordx4 {vr(HP+4*rnd,4)}, v{vT0 if rnd == 0 else vT1}, {srd(sWS)}, s{sT0} offen sc1")
    for i in range(4):
        I(f"v_and_b32 v{HP+8+i}, s{sT2}, v{HP+4+i}")
    for i in range(8):
        r = HP + i if i < 4 else HP + 4 + i
        I(f"v_dot2_f32_bf16 v{S1}, v{r}, v{vT5}, v{S1}")
        I(f"v_dot2_f32_bf16 v{S2}, v{r}, v{r}, v{S2}")
    I(f"v_mov_b32 v102, v{S1}\nv_mov_b32 v103, v{S2}")
    I(f"v_permlane32_swap_b32 v{S1}, v102")
    I(f"v_permlane32_swap_b32 v{S2}, v103")
    I(f"v_add_f32 v{S1}, v{S1}, v102")
    I(f"v_add_f32 v{S2}, v{S2}, v103")
    I(f"s_lshl_b32 s{sT0}, s{sC}, 4")
    I(f"s_lshl_b32 s{sT1}, s{sB}, 2")
    I(f"s_add_u32 s{sT0}, s{sT0}, s{sT1}")
    I(f"s_add_u32 s{sT0}, s{sT0}, s{sW}")
    I(f"s_lshl_b32 s{sT0}, s{sT0}, 8")
    I(f"s_add_u32 s{sT0}, s{sT0}, {WS_ST}")
    I(f"v_lshlrev_b32 v{vT0}, 3, v{vM}")
    tst = I(f"buffer_store_dwordx2 v[{S1}:{S2}], v{vT0}, {srd(sWS)}, s{sT0} offen sc1")
    stamp("h stored")
    signal(CNT_H, sGB, [tst])
    stamp("h signaled")
    for rb in range(16):
        I(f"v_accvgpr_read_b32 v{16+rb}, a{168+rb}")
    for k in (8, 4, 2, 1):
        for i in range(k):
            I(f"v_add_f32 v{16+i}, v{16+i}, v{16+k+i}")
    I(f"v_add_u32 v{vB3}, {LDS_CS}, v{vB3}")
    I(f"ds_write_b32 v{vB3}, v16")
    I(f"s_cmp_ge_u32 s{sJC}, 14")
    I("s_cbranch_scc1 L_end")


GK1 = -2.0 * math.sqrt(2.0 / math.pi) * LOG2E
GK2 = GK1 * 0.044715


def phaseC():
    g.comment("==== phase C ====")
    HF = 16
    ACS = [128, 144, 160, 176]
    TM = [192, 208]
    WFc = 224
    OUTP = 240
    vC0, vC1, vCSA = 248, 249, 250
    K1, K2, IR2, NMU = 251, 252, vT4, vT5
    ST = 192
    c_batch(1, 0, 28, 56, 57344 + 28672)
    tb2 = c_batch(0, 1, 0, 40, 114688)
    I(f"v_bfe_u32 v{vT0}, v{vLANE}, 2, 2")
    I(f"v_lshl_add_u32 v{vT1}, v{vHB}, 3, v{vT0}")
    I(f"v_lshlrev_b32 v{vT1}, 7, v{vT1}")
    I(f"v_lshrrev_b32 v{vT0}, 1, v{vT0}")
    I(f"v_lshl_add_u32 v{vT1}, v{vT0}, 6, v{vT1}")
    I(f"v_bfe_u32 v{vT2}, v{vLANE}, 4, 1")
    I(f"v_lshl_add_u32 v{vT1}, v{vT2}, 5, v{vT1}")
    I(f"v_and_b32 v{vT2}, 3, v{vLANE}")
    I(f"v_lshl_add_u32 v{vC0}, v{vT2}, 3, v{vT1}")
    I(f"v_xor_b32 v{vC1}, 64, v{vC0}")
    I(f"v_lshlrev_b32 v{vCSA}, 4, v{vHB}")
    I(f"v_add_u32 v{vCSA}, {LDS_CS}, v{vCSA}")
    sRH, sCB, sWDB = sA, sB, sC
    I(f"s_cmp_ge_u32 s{sJB}, 7")
    I(f"s_cselect_b32 s{sRH}, 1, 0")
    I(f"s_mul_i32 s{sT0}, s{sRH}, 7")
    I(f"s_sub_u32 s{sCB}, s{sJB}, s{sT0}")
    I(f"s_mul_i32 s{sWDB}, s{sW}, {448*896}")
    I(f"s_lshl_b32 s{sT1}, s{sCB}, 7")
    I(f"s_add_u32 s{sWDB}, s{sWDB}, s{sT1}")
    vWD = vT3
    I(f"v_mul_u32_u24 v{vT1}, 3584, v{vHB}")
    I(f"v_lshl_add_u32 v{vWD}, v{vM}, 2, v{vT1}")
    sHB = sD
    I(f"s_mul_i32 s{sHB}, s{sMT}, {112*1024}")
    I(f"s_lshl_b32 s{sT0}, s{sJC}, 13")
    I(f"s_add_u32 s{sHB}, s{sHB}, s{sT0}")
    I(f"s_add_u32 s{sHB}, s{sHB}, {WS_HH}")
    stamp("C b2 issued")
    g.wait_all(vm=False)
    waitflag(CNT_H, sG)
    stamp("h flag")
    I(f"s_lshl_b32 s{sT0}, s{sMT}, 12")
    I(f"s_add_u32 s{sT0}, s{sT0}, {WS_ST}")
    I(f"v_lshlrev_b32 v{vT0}, 3, v{vLANE}")
    ts = None
    for i in range(8):
        ts = I(f"buffer_load_dwordx2 {vr(ST+2*i,2)}, v{vT0}, {srd(sWS)}, s{sT0} offen offset:{i*512} sc1")
    I(f"s_mul_i32 s{sT0}, s{sMT}, {28*1024}")
    I(f"s_add_u32 s{sT0}, s{sT0}, {WS_H}")
    th = {}
    for c in range(28):
        I(f"s_add_u32 s{sT1}, s{sT0}, {c*1024}")
        th[c] = I(f"buffer_load_dwordx4 {vr(HF+4*c,4)}, v{vL16}, {srd(sWS)}, s{sT1} offen sc1")

    def cs_read(acc, mat, col):
        t = None
        for q in range(4):
            t = I(f"ds_read_b128 {vr(acc+4*q,4)}, v{vCSA} offset:{mat*512 + (col+8*q)*4}")
        return t

    def cs_mul(acc, t):
        g.wait(t)
        for r in range(16):
            I(f"v_mul_f32 v{acc+r}, v{NMU}, v{acc+r}")

    tc0 = cs_read(ACS[0], 0, 0)
    g.wait(ts)
    I("s_barrier")
    for k in (8, 4, 2):
        for i in range(k):
            I(f"v_add_f32 v{ST+i}, v{ST+i}, v{ST+k+i}")
    I(f"v_mov_b32 v{ST+2}, v{ST}\nv_mov_b32 v{ST+3}, v{ST+1}")
    I(f"v_permlane32_swap_b32 v{ST}, v{ST+2}")
    I(f"v_permlane32_swap_b32 v{ST+1}, v{ST+3}")
    I(f"v_add_f32 v{ST}, v{ST}, v{ST+2}")
    I(f"v_add_f32 v{ST+1}, v{ST+1}, v{ST+3}")
    I(f"v_mul_f32 v{NMU}, {f32(-1/448)}, v{ST}")
    cs_mul(ACS[0], tc0)
    g.begin()
    I(f"v_mul_f32 v{ST+1}, {f32(1/448)}, v{ST+1}")
    I(f"v_fma_f32 v{ST+1}, -v{NMU}, v{NMU}, v{ST+1}")
    I(f"v_max_f32 v{ST+1}, 0, v{ST+1}")
    I(f"v_add_f32 v{IR2}, {f32(1e-5)}, v{ST+1}")
    I(f"v_rsq_f32 v{ST}, v{IR2}")
    I(f"v_mul_f32 v{K1}, {f32(GK1)}, v{ST}")
    I(f"v_mul_f32 v{ST+1}, v{ST}, v{ST}")
    I(f"v_mul_f32 v{ST+1}, v{ST+1}, v{ST}")
    I(f"v_mul_f32 v{K2}, {f32(GK2)}, v{ST+1}")
    stats_tail = g.end()
    stamp("stats")
    hf = lambda c: vr(HF + 4 * c, 4)

    def reg_of(dbl_id, c):
        if dbl_id == "GG0":
            return c * 2048
        if dbl_id == "UU0":
            return 57344 + c * 2048
        if dbl_id == "GG1":
            return 114688 + c * 2048 if c < 20 else (c - 20) * 2048
        if dbl_id == "UU1":
            return 16384 + c * 2048 if c < 20 else 57344 + (c - 20) * 2048

    vBASE = [vT0, vT1, vT2]

    def make_rd(dbl_id, nt):
        def rd(c, dst):
            off = reg_of(dbl_id, c)
            k = off // 57344
            off -= k * 57344
            I(f"ds_read_b64_tr_b16 {vr(dst,2)}, v{vBASE[k]} offset:{off}")
            return I(f"ds_read_b64_tr_b16 {vr(dst+2,2)}, v{vBASE[k]} offset:{off+512}")
        return rd

    def set_base(nt):
        src = vC1 if nt else vC0
        I(f"v_mov_b32 v{vT0}, v{src}")
        I(f"v_add_u32 v{vT1}, 57344, v{src}")
        I(f"v_add_u32 v{vT2}, 114688, v{src}")

    def epi1(ag, au, tm):
        for i in range(16):
            I(f"v_mul_f32 v{tm+i}, v{ag+i}, v{ag+i}")
        for i in range(16):
            I(f"v_fma_f32 v{tm+i}, v{tm+i}, v{K2}, v{K1}")
        for i in range(16):
            I(f"v_mul_f32 v{tm+i}, v{tm+i}, v{ag+i}")
        for i in range(16):
            I(f"v_mul_f32 v{au+i}, v{ag+i}, v{au+i}")

    def epi2(au, tm, p):
        for i in range(16):
            I(f"v_exp_f32 v{tm+i}, v{tm+i}")
        for i in range(16):
            I(f"v_fma_f32 v{tm+i}, v{tm+i}, v{IR2}, v{IR2}")
        for i in range(16):
            I(f"v_rcp_f32 v{tm+i}, v{tm+i}")
        for i in range(16):
            I(f"v_mul_f32 v{tm+i}, v{tm+i}, v{au+i}")
        for i in range(8):
            I(f"v_cvt_pk_bf16_f32 v{OUTP+i}, v{tm+2*i}, v{tm+2*i+1}")
        I(f"s_add_u32 s{sE}, s{sHB}, {p*2048}")
        I(f"buffer_store_dwordx4 {vr(OUTP,4)}, v{vL16}, {srd(sWS)}, s{sE} offen sc1")
        return I(f"buffer_store_dwordx4 {vr(OUTP+4,4)}, v{vL16}, {srd(sWS)}, s{sE} offen offset:1024 sc1")

    def cap(fn, *a):
        g.begin()
        r = fn(*a)
        return g.end(), r

    def wd_loads(c0, c1):
        t = None
        for c in range(c0, c1):
            for hf in range(2):
                I(f"s_add_u32 s{sT3}, s{sWDB}, {(16*c + 8*hf)*896}")
                for e in range(4):
                    t = I(f"buffer_load_dword a{8*c+4*hf+e}, v{vWD}, {srd(sWD)}, s{sT3} offen offset:{e*896}")
        return t

    A_, B_, C_, D_ = ACS
    chains = [(A_, "GG0", 0, 0, 0), (B_, "GG0", 1, 0, 32), (C_, "UU0", 0, 1, 0), (D_, "UU0", 1, 1, 32),
              (A_, "GG1", 0, 0, 64), (B_, "GG1", 1, 0, 96), (C_, "UU1", 0, 1, 64), (D_, "UU1", 1, 1, 96)]

    def init_next(k):
        acc, _, _, mat, col = chains[k]
        t = cs_read(acc, mat, col)
        cs_mul(acc, t)

    twd = None
    tb3 = tb4 = None
    last = None
    for k, (acc, dbl, nt, mat, col) in enumerate(chains):
        set_base(nt)
        if k == 4:
            g.wait(tb3)
            I("s_barrier")
        if k == 6:
            g.wait(tb4)
            I("s_barrier")
        g.begin()
        chain32(acc, hf, make_rd(dbl, nt), WFc, first_c=None, pre=(lambda c: g.wait(th[c])) if k == 0 else None)
        main = g.end()
        g.begin()
        if k == 0:
            g.put(stats_tail)
            init_next(1)
        elif k == 1:
            init_next(2)
            twd = wd_loads(0, 7)
        elif k == 2:
            init_next(3)
            twd = wd_loads(7, 14)
        elif k == 3:
            epi1(A_, C_, TM[0])
            init_next(4)
        elif k == 4:
            epi2(C_, TM[0], 0)
            epi1(B_, D_, TM[1])
            init_next(5)
        elif k == 5:
            epi2(D_, TM[1], 1)
            init_next(6)
            twd = wd_loads(14, 19)
        elif k == 6:
            init_next(7)
            twd = wd_loads(19, 28)
        elif k == 7:
            epi1(A_, C_, TM[0])
            epi2(C_, TM[0], 2)
        side = g.end()
        nside = sum(1 for it in side if it.kind == "i")
        per = max(1, -(-nside // 26))
        g.put(interleave(main, side, every=1, per=per, start=1))
        if k == 1:
            I("s_barrier")
            c_batch(0, 1, 40, 56, 0)
            tb3 = c_batch(1, 1, 0, 40, 16384)
        if k == 3:
            I("s_barrier")
            tb4 = c_batch(1, 1, 40, 56, 57344)
    stamp("C chains")
    epi1(B_, D_, TM[1])
    tst = epi2(D_, TM[1], 3)
    stamp("hh stored")
    signal(CNT_HH, sG, [tst])
    stamp("hh signaled")


def phaseD():
    g.comment("==== phase D ====")
    sRH, sCB = sA, sB
    AF = 16
    DACC = 128
    sMD = sC
    TT = 208
    EO = [216, 224]
    sSE, sSO = sT2, sT3
    I(f"s_lshl_b32 s{sMD}, s{sGB}, 2")
    I(f"s_lshl_b32 s{sT0}, s{sRH}, 1")
    I(f"s_add_u32 s{sMD}, s{sMD}, s{sT0}")
    HR = 200
    I(f"v_and_b32 v{vT0}, 7, v0")
    I(f"v_lshrrev_b32 v{vT1}, 3, v0")
    I(f"v_lshlrev_b32 v{vT2}, 9, v{vT0}")
    I(f"v_lshl_add_u32 v{vT2}, v{vT1}, 4, v{vT2}")
    I(f"s_mul_i32 s{sE}, s{sMD}, {28*1024}")
    I(f"s_lshl_b32 s{sT1}, s{sCB}, 12")
    I(f"s_add_u32 s{sE}, s{sE}, s{sT1}")
    I(f"s_add_u32 s{sE}, s{sE}, {WS_H}")
    I(f"s_mul_i32 s{sD}, s{sMD}, {112*1024}")
    I(f"s_mul_i32 s{sT1}, s{sW}, {28*1024}")
    I(f"s_add_u32 s{sD}, s{sD}, s{sT1}")
    I(f"s_add_u32 s{sD}, s{sD}, {WS_HH}")
    I(f"s_mov_b32 s{sSE}, 0x05040100")
    I(f"s_mov_b32 s{sSO}, 0x07060302")

    def prep(c):
        b = EO[c & 1]
        for jj in range(8):
            I(f"v_accvgpr_read_b32 v{TT+jj}, a{8*c+jj}")
        for i in range(4):
            I(f"v_perm_b32 v{b+i}, v{TT+2*i+1}, v{TT+2*i}, s{sSE}")
            I(f"v_perm_b32 v{b+4+i}, v{TT+2*i+1}, v{TT+2*i}, s{sSO}")
    prep(0)
    stamp("wd ready")
    waitflag(CNT_HH, sGB, 14)
    stamp("hh flag")
    ta = {}

    def lda(c):
        for mt in range(2):
            I(f"s_add_u32 s{sT1}, s{sD}, {mt*112*1024 + c*1024}")
            ta[c, mt] = I(f"buffer_load_dwordx4 {vr(AF+((c%14)*2+mt)*4,4)}, v{vL16}, {srd(sWS)}, s{sT1} offen sc1")
    for c in range(14):
        lda(c)
    thr = None
    for c in range(28):
        g.begin()
        for mt in range(2):
            g.wait(ta[c, mt])
            for nt in range(2):
                a = DACC + (mt * 2 + nt) * 16
                I(f"v_mfma_f32_32x32x16_bf16 {vr(a,16)}, {vr(EO[c&1]+4*nt,4)}, {vr(AF+((c%14)*2+mt)*4,4)}, {'0' if c == 0 else vr(a,16)}")
        main = g.end()
        g.begin()
        if c + 1 < 28:
            prep(c + 1)
        side = g.end()
        g.put(interleave(main, side, every=1, per=4))
        if c + 14 < 28:
            lda(c + 14)
        if c == 14:
            I(f"buffer_load_dwordx4 {vr(HR,4)}, v{vT2}, {srd(sWS)}, s{sE} offen sc1")
            I(f"s_add_u32 s{sE}, s{sE}, {28*1024}")
            thr = I(f"buffer_load_dwordx4 {vr(HR+4,4)}, v{vT2}, {srd(sWS)}, s{sE} offen sc1")
    stamp("D mfma")
    I(f"s_mul_i32 s{sT0}, s{sW}, {64*272}")
    I(f"v_mul_u32_u24 v{vT3}, 272, v{vM}")
    I(f"v_lshl_add_u32 v{vT3}, v{vHB}, 5, v{vT3}")
    I(f"v_add_u32 v{vT3}, s{sT0}, v{vT3}")
    for mt in range(2):
        for nt in range(2):
            for q in range(4):
                I(f"ds_write_b128 v{vT3}, {vr(DACC+(mt*2+nt)*16+4*q,4)} offset:{mt*32*272 + q*64 + nt*16}")
    I(f"v_mul_u32_u24 v{vT3}, 272, v{vT1}")
    I(f"v_lshl_add_u32 v{vT3}, v{vT0}, 5, v{vT3}")
    I(f"v_mul_u32_u24 v{vT2}, 896, v{vT1}")
    I(f"v_lshl_add_u32 v{vT2}, v{vT0}, 4, v{vT2}")
    I(f"s_mul_i32 s{sT0}, s{sMD}, {32*896}")
    I(f"s_lshl_b32 s{sT1}, s{sCB}, 7")
    I(f"s_add_u32 s{sT0}, s{sT0}, s{sT1}")
    g.wait_all(vm=False)
    I("s_barrier")
    R = 16
    tr = {}
    for rnd in range(2):
        for w in range(4):
            for q in range(2):
                tr[rnd] = I(f"ds_read_b128 {vr(R+rnd*32+w*8+q*4,4)}, v{vT3} offset:{w*64*272 + rnd*32*272 + q*16}")
    g.wait(thr)
    for rnd in range(2):
        b = R + rnd * 32
        g.wait(tr[rnd])
        for i in range(8):
            I(f"v_add_f32 v{b+i}, v{b+i}, v{b+8+i}")
            I(f"v_add_f32 v{b+16+i}, v{b+16+i}, v{b+24+i}")
        for i in range(4):
            I(f"v_lshlrev_b32 v{b+8+i}, 16, v{HR+4*rnd+i}")
            I(f"v_and_b32 v{b+12+i}, 0xffff0000, v{HR+4*rnd+i}")
        for i in range(8):
            I(f"v_add_f32 v{b+i}, v{b+i}, v{b+16+i}")
        for i in range(8):
            I(f"v_add_f32 v{b+i}, v{b+i}, v{b+8+i}")
        for i in range(4):
            I(f"v_cvt_pk_bf16_f32 v{b+16+i}, v{b+i}, v{b+4+i}")
        I(f"s_add_u32 s{sT1}, s{sT0}, {rnd*32*896}")
        I(f"buffer_store_dwordx4 {vr(b+16,4)}, v{vT2}, {srd(sOUT)}, s{sT1} offen")
    stamp("end")


prologue()
two = phaseA()
phaseB(two)
phaseC()
phaseD()
g.label("L_end")
I("s_endpgm")
g.resolve_waits()
g.fix_hazards_fast()

hdr = open("cdna_kernels/" + NAME + ".s.ref").read().split("; Override launch geometry")[0]
out = hdr + f"""; @launch grid=(256,1,1) block=(256,1,1) lds=163840
.amdgcn_target "amdgcn-amd-amdhsa--gfx950"
.text
.globl {NAME}_kernel
.p2align 8
.type {NAME}_kernel,@function
{NAME}_kernel:
{g.text()}
.fill 2048, 4, 0xbf800000
.section .rodata,"a"
.p2align 6
.amdhsa_kernel {NAME}_kernel
  .amdhsa_next_free_vgpr 512
  .amdhsa_next_free_sgpr 100
  .amdhsa_accum_offset 256
  .amdhsa_group_segment_fixed_size 0
  .amdhsa_kernarg_size 88
  .amdhsa_user_sgpr_count 2
  .amdhsa_user_sgpr_kernarg_segment_ptr 1
  .amdhsa_system_sgpr_workgroup_id_x 1
.end_amdhsa_kernel
"""
open(sys.argv[1], "w").write(out)
if STAMPS:
    open(sys.argv[1] + ".names", "w").write("\n".join(stamp_names))
print("instrs:", sum(1 for it in g.items if it.kind == "i"), "stamps:", nstamp[0])
```

```python
import re

TRANS = ("v_exp_f32", "v_log_f32", "v_rcp_f32", "v_rsq_f32", "v_sqrt_f32", "v_sin_f32", "v_cos_f32")


class Tok:
    __slots__ = ("cnt",)

    def __init__(self, cnt):
        self.cnt = cnt


class Item:
    __slots__ = ("kind", "text", "tok", "toks", "dst", "src", "mn", "srcC", "srcAB")

    def __init__(self, kind, text=None, tok=None, toks=None):
        self.kind = kind
        self.text = text
        self.tok = tok
        self.toks = toks
        self.dst = self.src = None


_reg_re = re.compile(r"^(-?)(?:abs\()?([vas])(?:\[(\d+):(\d+)\]|(\d+))\)?$")


def parse_reg(op):
    op = op.strip()
    if op in ("vcc", "exec", "m0", "scc"):
        return {op}
    if op in ("vcc_lo", "vcc_hi"):
        return {"vcc"}
    if op in ("exec_lo", "exec_hi"):
        return {"exec"}
    m = _reg_re.match(op)
    if not m:
        return set()
    k = m.group(2)
    if m.group(5) is not None:
        return {k + m.group(5)}
    return {k + str(i) for i in range(int(m.group(3)), int(m.group(4)) + 1)}


def split_ops(text):
    t = text.split(";")[0].strip()
    parts = t.split(None, 1)
    mn = parts[0]
    if len(parts) == 1:
        return mn, [], ""
    rest = parts[1]
    ops = []
    depth = 0
    cur = ""
    for ch in rest:
        if ch == "[":
            depth += 1
        elif ch == "]":
            depth -= 1
        if ch == "," and depth == 0:
            ops.append(cur.strip())
            cur = ""
        else:
            cur += ch
    last = cur.strip().split()
    mods = " ".join(last[1:]) if len(last) > 1 else ""
    if last:
        ops.append(last[0])
    return mn, ops, mods


def analyze(it):
    mn, ops, mods = split_ops(it.text)
    mn = re.sub(r"_(e32|e64)$", "", mn)
    it.mn = mn
    R = [parse_reg(o) for o in ops]
    allr = lambda rs: set().union(*rs) if rs else set()
    dst, src = set(), set()
    it.srcC = set()
    it.srcAB = set()
    if mn.startswith("v_mfma"):
        dst = R[0]
        it.srcAB = R[1] | R[2]
        it.srcC = R[3]
        src = it.srcAB | it.srcC
    elif mn.startswith("v_cmp"):
        dst = R[0]
        src = allr(R[1:])
    elif mn in ("v_readfirstlane_b32", "v_readlane_b32"):
        dst = R[0]
        src = allr(R[1:])
    elif "permlane" in mn or mn == "v_swap_b32":
        dst = R[0] | R[1]
        src = R[0] | R[1]
    elif mn.startswith("v_"):
        dst = set(R[0])
        rest = R[1:]
        if "_co_" in mn:
            dst |= R[1]
            rest = R[2:]
        src = allr(rest)
        if mn.startswith(("v_fmac", "v_dot2c", "v_pk_fmac")) or "_dpp" in mn or mn == "v_writelane_b32":
            src |= R[0]
        if mn == "v_cndmask_b32" and len(ops) == 3:
            src |= {"vcc"}
    elif mn.startswith("ds_"):
        if mn.startswith(("ds_read", "ds_bpermute", "ds_permute", "ds_swizzle")) or "_rtn" in mn:
            dst = R[0]
            src = allr(R[1:])
            if "d16" in mn:
                src |= R[0]
        else:
            src = allr(R)
    elif mn.startswith("buffer_"):
        if mn.startswith("buffer_load"):
            if re.search(r"\blds\b", mods):
                src = allr(R) | {"m0"}
            else:
                dst = R[0]
                src = allr(R[1:])
                if "d16" in mn:
                    src |= R[0]
        elif mn.startswith("buffer_atomic"):
            src = allr(R)
            if re.search(r"\bsc0\b", mods):
                dst = R[0]
        else:
            src = allr(R)
    elif mn.startswith("global_"):
        if mn.startswith("global_load"):
            dst = R[0]
            src = allr(R[1:])
        else:
            src = allr(R)
    elif mn.startswith("s_"):
        if mn.startswith(("s_cmp", "s_cbranch", "s_branch", "s_waitcnt", "s_nop", "s_barrier", "s_sleep", "s_endpgm",
                          "s_setprio", "s_bitcmp")):
            src = allr(R)
        else:
            dst = R[0] if R else set()
            src = allr(R[1:])
            if "saveexec" in mn:
                dst = dst | {"exec"}
    it.dst, it.src = dst, src


def is_valu(mn):
    return mn.startswith("v_") and not mn.startswith("v_mfma")


def is_mfma(mn):
    return mn.startswith("v_mfma")


def passes(mn):
    return 8 if "32x32" in mn else 4


def is_vmem(mn):
    return mn.startswith(("buffer_", "global_"))


def is_ds(mn):
    return mn.startswith("ds_")


def vregs(s):
    return {r for r in s if r[0] in "va" and r not in ("vcc",)}


def sregs(s):
    return {r for r in s if (r[0] == "s" and r != "scc") or r == "vcc"}


def need(p, c):
    n = 0
    pm, cm = p.mn, c.mn
    if is_valu(pm):
        pv = vregs(p.dst)
        if pv:
            if is_mfma(cm) and pv & c.src:
                n = max(n, 2)
            if "permlane" in cm and pv & c.src:
                n = max(n, 2)
            if "_dpp" in cm and pv & c.src:
                n = max(n, 2)
            if cm in ("v_readfirstlane_b32", "v_readlane_b32") and pv & c.src:
                n = max(n, 1)
            if pm in TRANS and (is_valu(cm) or is_vmem(cm) or is_ds(cm)) and pv & c.src:
                n = max(n, 1)
            if pm.startswith("v_dot"):
                if pv & (c.src | c.dst):
                    same_c = False
                    if cm == pm:
                        mn, ops, _ = split_ops(c.text)
                        ab = parse_reg(ops[1]) | parse_reg(ops[2])
                        same_c = not (pv & ab)
                    if not same_c:
                        n = max(n, 3)
        ps = sregs(p.dst)
        if ps:
            if (is_valu(cm) or is_mfma(cm)) and ps & c.src:
                n = max(n, 4 if cm in ("v_readlane_b32", "v_writelane_b32") else 2)
            if is_vmem(cm) and ps & c.src:
                n = max(n, 5)
            if cm.startswith("s_") and ps & c.src:
                n = max(n, 2)
    if is_mfma(pm):
        ps_ = passes(pm)
        if is_mfma(cm):
            if p.dst & c.srcAB:
                n = max(n, ps_ + 4)
            if p.dst & c.srcC:
                if p.dst == c.srcC and passes(cm) == ps_:
                    pass
                else:
                    n = max(n, ps_ + 2)
            elif p.dst & c.dst:
                n = max(n, ps_ + 2)
        else:
            if p.dst & (c.src | c.dst):
                n = max(n, ps_ + 4)
            if p.srcC & c.dst:
                n = max(n, ps_ - 1)
    if pm.startswith("s_") and "m0" in p.dst and "m0" in c.src and (is_vmem(cm) or is_ds(cm)):
        n = max(n, 1)
    if re.match(r"(buffer|global)_store_dwordx[34]", pm) or pm in ("ds_write_b128x",):
        mn, ops, _ = split_ops(p.text)
        data = parse_reg(ops[0]) if pm.startswith("buffer") else parse_reg(ops[1])
        if data & c.dst:
            n = max(n, 2)
    return n


class Gen:
    def __init__(self):
        self.items = []
        self._stack = []
        self._nlabel = 0

    def begin(self):
        self._stack.append(self.items)
        self.items = []

    def end(self):
        s = self.items
        self.items = self._stack.pop()
        return s

    def put(self, stream):
        self.items.extend(stream)

    def I(self, text):
        for line in text.split("\n"):
            line = line.strip()
            if not line:
                continue
            mn = line.split()[0]
            tok = None
            if mn.startswith(("buffer_", "global_")):
                tok = Tok("vm")
            elif mn.startswith("ds_"):
                tok = Tok("lgkm")
            elif mn.startswith(("s_load", "s_memtime", "s_memrealtime", "s_buffer_load")):
                tok = Tok("smem")
            self.items.append(Item("i", line, tok))
        return tok

    def label(self, name):
        self.items.append(Item("label", name))

    def newlabel(self, p="L"):
        self._nlabel += 1
        return f"{p}_{self._nlabel}"

    def wait(self, *toks):
        toks = [t for t in toks if t is not None]
        if toks:
            self.items.append(Item("wait", toks=toks))

    def wait_all(self, vm=True, lgkm=True):
        t = []
        if vm:
            t.append("vmcnt(0)")
        if lgkm:
            t.append("lgkmcnt(0)")
        self.items.append(Item("i", "s_waitcnt " + " ".join(t)))

    def cond_begin(self):
        self.items.append(Item("push"))

    def cond_end(self):
        self.items.append(Item("pop"))

    def comment(self, s):
        self.items.append(Item("raw", "; " + s))

    def raw(self, s):
        self.items.append(Item("raw", s))

    def bg_add(self, stream, after=None, gap=150):
        if not hasattr(self, "bgq"):
            self.bgq = []
        self.bgq.append((stream, after, gap))

    def mark(self, name):
        self.items.append(Item("mark", name))

    def insert_bg(self):
        q = list(getattr(self, "bgq", []))
        items = self.items
        out = []
        on = False
        seen = set()
        t = 0.0
        last = -1e9
        depth = 0
        exec_full = True
        emitted = 0
        SCC_R = ("s_cselect", "s_cbranch_scc", "s_cmov", "s_addc", "s_subb")
        SCC_W = ("s_cmp", "s_add_", "s_sub_", "s_and_", "s_or_", "s_xor_", "s_lshl", "s_lshr", "s_min", "s_max", "s_bfe")

        def scc_dead(i):
            for k in range(i, min(i + 60, len(items))):
                it = items[k]
                if it.kind == "label":
                    return False
                if it.kind != "i":
                    continue
                m = it.text
                if m.startswith(SCC_R) or m.startswith("s_branch"):
                    return False
                if m.startswith(SCC_W):
                    return True
            return True

        def emit():
            nonlocal emitted, last
            st, after, gap = q.pop(0)
            out.extend(st)
            emitted += 1
            last = t

        for i, it in enumerate(items):
            if it.kind == "mark":
                nm = it.text
                if nm == "on":
                    on = True
                elif nm == "off":
                    on = False
                elif nm.startswith("burst:"):
                    for _ in range(int(nm[6:])):
                        if q and (q[0][1] is None or q[0][1] in seen):
                            emit()
                elif nm.startswith("flush:"):
                    while emitted < int(nm[6:]):
                        assert q[0][1] is None or q[0][1] in seen, ("flush before event", q[0][1])
                        emit()
                else:
                    seen.add(nm)
                continue
            out.append(it)
            if it.kind == "push":
                depth += 1
            elif it.kind == "pop":
                depth -= 1
            elif it.kind == "i":
                m = it.text.split()[0]
                if "exec" in it.text and m.startswith("s_mov"):
                    exec_full = it.text.endswith("-1")
                t += 24 if "32x32" in m else 14 if m.startswith("v_mfma") else 8 if m.startswith(("ds_", "buffer")) else 5
                if (on and q and depth == 0 and exec_full and (q[0][1] is None or q[0][1] in seen)
                        and t - last >= q[0][2] and m.startswith(("v_", "ds_")) and not m.startswith("v_cmp")
                        and scc_dead(i + 1)):
                    emit()
        assert not q, f"{len(q)} background items left"
        self.items = out

    def resolve_waits(self):
        out = []
        vm, lg = [], []
        smem_pending = False
        saved = []
        for it in self.items:
            if it.kind == "push":
                saved.append((list(vm), list(lg), smem_pending))
            elif it.kind == "pop":
                sp = smem_pending
                vm, lg, smem_pending = saved.pop()
                smem_pending = smem_pending or sp
            elif it.kind == "i":
                mn = it.text.split()[0]
                if mn == "s_waitcnt":
                    m = re.search(r"vmcnt\((\d+)\)", it.text)
                    if m:
                        k = int(m.group(1))
                        vm = vm[len(vm) - k:] if k < len(vm) else vm
                        if k == 0:
                            vm = []
                    m = re.search(r"lgkmcnt\((\d+)\)", it.text)
                    if m:
                        k = int(m.group(1))
                        if k == 0:
                            lg = []
                            smem_pending = False
                        elif not smem_pending:
                            lg = lg[len(lg) - k:] if k < len(lg) else lg
                elif it.tok is not None:
                    if it.tok.cnt == "vm":
                        vm.append(it.tok)
                    elif it.tok.cnt == "lgkm":
                        lg.append(it.tok)
                    else:
                        smem_pending = True
                        lg.append(it.tok)
                out.append(it)
            elif it.kind == "wait":
                nv = nl = None
                for t in it.toks:
                    if t.cnt == "vm":
                        if t in vm:
                            k = len(vm) - 1 - vm.index(t)
                            nv = k if nv is None else min(nv, k)
                    else:
                        if t in lg:
                            k = len(lg) - 1 - lg.index(t)
                            if smem_pending:
                                k = 0
                            nl = k if nl is None else min(nl, k)
                parts = []
                if nv is not None:
                    nv = min(nv, 63)
                    parts.append(f"vmcnt({nv})")
                    vm = vm[len(vm) - nv:] if nv else []
                if nl is not None:
                    nl = min(nl, 15)
                    parts.append(f"lgkmcnt({nl})")
                    lg = lg[len(lg) - nl:] if nl else []
                    if nl == 0:
                        smem_pending = False
                if parts:
                    out.append(Item("i", "s_waitcnt " + " ".join(parts)))
            else:
                out.append(it)
        self.items = out

    def fix_hazards(self):
        items = self.items
        for it in items:
            if it.kind == "i":
                analyze(it)
        MAXD = 14
        changed = True
        while changed:
            changed = False
            labels = {it.text: i for i, it in enumerate(items) if it.kind == "label"}
            preds = {}
            for i, it in enumerate(items):
                if it.kind == "i" and it.mn.startswith(("s_cbranch", "s_branch")):
                    tgt = it.text.split()[1]
                    if tgt in labels:
                        preds.setdefault(labels[tgt], []).append(i)
            for i, c in enumerate(items):
                if c.kind != "i" or c.mn in ("s_nop", "s_waitcnt"):
                    continue
                worst = 0
                stack = [(i - 1, 0)]
                seen = set()
                while stack:
                    k, d = stack.pop()
                    while k >= 0 and d < MAXD:
                        if (k, d) in seen:
                            break
                        seen.add((k, d))
                        p = items[k]
                        if p.kind == "label":
                            for s in preds.get(k, []):
                                stack.append((s, d))
                            k -= 1
                            continue
                        if p.kind != "i":
                            k -= 1
                            continue
                        if p.mn in ("s_branch", "s_endpgm") and k != i - 1 and not _came_via_branch(k, stack, seen, preds):
                            pass
                        n = need(p, c)
                        if n > d:
                            worst = max(worst, n - d)
                        if p.mn == "s_nop":
                            d += int(p.text.split()[1], 0) + 1
                        else:
                            d += 1
                        k -= 1
                if worst > 0:
                    nop = Item("i", f"s_nop {worst - 1}")
                    analyze(nop)
                    items.insert(i, nop)
                    changed = True
                    break
        self.items = items

    def fix_hazards_fast(self):
        items = self.items
        for it in items:
            if it.kind == "i":
                analyze(it)
        MAXD = 14
        for _round in range(3):
            labels = {it.text: i for i, it in enumerate(items) if it.kind == "label"}
            brs = {}
            for it in items:
                if it.kind == "i" and it.mn.startswith(("s_cbranch", "s_branch")):
                    brs.setdefault(it.text.split()[1], []).append(it)
            index_of = {id(it): i for i, it in enumerate(items)}
            out = []
            ins = 0
            inserted_before = {}
            for i, c in enumerate(items):
                if c.kind == "i" and c.mn not in ("s_nop", "s_waitcnt"):
                    worst = 0
                    stack = [(i - 1, 0)]
                    seen = set()
                    while stack:
                        k, d = stack.pop()
                        while k >= 0 and d < MAXD:
                            if (k, d) in seen:
                                break
                            seen.add((k, d))
                            p = items[k]
                            if p.kind == "label":
                                for b in brs.get(p.text, []):
                                    stack.append((index_of[id(b)], d))
                                k -= 1
                                continue
                            if p.kind != "i":
                                k -= 1
                                continue
                            n = need(p, c)
                            if n > d:
                                worst = max(worst, n - d)
                            if p.mn == "s_nop":
                                d += int(p.text.split()[1], 0) + 1
                            else:
                                d += 1
                            d += inserted_before.get(k, 0)
                            k -= 1
                    if worst > 0:
                        nop = Item("i", f"s_nop {worst - 1}")
                        analyze(nop)
                        out.append(nop)
                        inserted_before[i] = worst
                        ins += 1
                out.append(c)
            items = out
            if ins == 0:
                break
        self.items = items

    def text(self):
        L = []
        for it in self.items:
            if it.kind == "i":
                L.append("  " + it.text)
            elif it.kind == "label":
                L.append(it.text + ":")
            elif it.kind == "raw":
                L.append(it.text)
        return "\n".join(L)


def _came_via_branch(*a):
    return False


def interleave(main, side, every=1, per=1, start=0):
    out = []
    si = 0
    nm = 0

    def take(n):
        nonlocal si
        k = 0
        while si < len(side) and k < n:
            it = side[si]
            out.append(it)
            si += 1
            if it.kind == "i":
                k += 1

    for it in main:
        out.append(it)
        if it.kind == "i" and it.text.startswith("v_mfma"):
            nm += 1
            if nm > start and (nm - start) % every == 0:
                take(per)
    take(1 << 30)
    return out
```

```python
import sys, math, struct, os
sys.path.insert(0, "dev")
from gen import *

NAME = "sequential_preLN__linear_kernel_hedgehog__glu_gated_geglu__prompt"
STAMPS = int(sys.argv[2]) if len(sys.argv) > 2 else 0
EXP = sys.argv[3].split(",") if len(sys.argv) > 3 else []


def f32(x):
    return "0x%08x" % struct.unpack("<I", struct.pack("<f", x))[0]


WS_CNT = 0x0
WS_CS = 0x10000
WS_ST = 0x50000
WS_KVP = 0x100000
WS_O = 0x200000
WS_H = 0x400000
WS_HH = 0x600000
WS_STAMP = 0xE00000
CNT_KV, CNT_O, CNT_H, CNT_HH = 0, 1, 2, 3

sX, sWQKV, sWPHI, sWO, sWG, sWU, sWD, sOUT, sDBG, sWS = 8, 12, 16, 20, 24, 28, 32, 36, 40, 44
sG, sJ, sW = 48, 49, 50
sT0, sT1, sT2, sT3, sT4, sT5 = 51, 52, 53, 54, 55, 56
sW3, sWH = 57, 58
sA, sB, sC, sD, sE = 59, 60, 61, 62, 63
sSTAMP = 86
sGATH, sWB, sCW, sCL, sLOG = 88, 89, 90, 91, 92
sGB, sJB, sJC, sLI, sXC, sLW, sSTO = 93, 94, 95, 96, 97, 98, 99
OOB = 0x7ff00000
sBG, sWOB, sKVS, sOS, sHS, sSS, sHHS = 68, 70, 71, 72, 73, 74, 75


def srd(r):
    return f"s[{r}:{r+3}]"


def vr(a, n=1):
    return f"v{a}" if n == 1 else f"v[{a}:{a+n-1}]"


def ar(a, n=1):
    return f"a{a}" if n == 1 else f"a[{a}:{a+n-1}]"


g = Gen()
I = g.I
nstamp = [0]
stamp_names = []

vLANE, vG, vM16 = 1, 2, 3
vL16 = 4
vT0, vT1, vT2, vT3, vT4, vT5 = 5, 6, 7, 8, 9, 10
vFLAG, vONE, vCNT, vINIT, vDMY = 11, 12, 13, 14, 15


def stamp(name="", rt=False):
    if not STAMPS:
        return
    k = nstamp[0]
    nstamp[0] += 1
    stamp_names.append(name)
    g.cond_begin()
    I(f"{'s_memrealtime' if rt else 's_memtime'} s[{sSTAMP}:{sSTAMP+1}]")
    I("s_waitcnt lgkmcnt(0)")
    I(f"v_mov_b32 v{vCNT}, s{sSTAMP}")
    I(f"buffer_store_dword v{vCNT}, off, {srd(sWS)}, s{sSTO} offset:{4*k}")
    g.cond_end()


UNIT = 14336
LDS_WK = 8 * UNIT
LDS_KVF = 11 * UNIT
LDS_CS = LDS_KVF + 4096
LDS_FLG = LDS_CS + 1024
LDS_WPL = 10 * UNIT + 8192
LDS_BSCR = 6 * UNIT


def prologue():
    I("s_cmp_ge_u32 s2, 256")
    I("s_cbranch_scc1 L_end")
    I("s_load_dwordx16 s[64:79], s[0:1], 0")
    I("s_load_dwordx4 s[80:83], s[0:1], 64")
    I("s_load_dwordx2 s[84:85], s[0:1], 80")
    I("s_getpc_b64 s[4:5]")
    I(f"v_lshlrev_b32 v{vT0}, 7, v0")
    I(f"v_min_u32 v{vT0}, CODE_LAST, v{vT0}")
    I(f"global_load_dword v{vDMY}, v{vT0}, s[4:5]")
    I(f"v_and_b32 v{vLANE}, 63, v0")
    I(f"v_lshrrev_b32 v{vT0}, 6, v0")
    I(f"v_readfirstlane_b32 s{sW}, v{vT0}")
    I(f"v_lshrrev_b32 v{vG}, 4, v{vLANE}")
    I(f"v_and_b32 v{vM16}, 15, v{vLANE}")
    I(f"v_lshlrev_b32 v{vL16}, 4, v{vLANE}")
    I(f"v_mov_b32 v{vONE}, 1")
    I(f"s_and_b32 s{sXC}, s2, 7")
    I(f"s_lshr_b32 s{sLI}, s2, 3")
    I(f"s_lshr_b32 s{sT0}, s{sXC}, 1")
    I(f"s_lshl_b32 s{sT0}, s{sT0}, 2")
    I(f"s_and_b32 s{sT1}, s{sLI}, 3")
    I(f"s_add_u32 s{sG}, s{sT0}, s{sT1}")
    I(f"s_and_b32 s{sT2}, s{sXC}, 1")
    I(f"s_lshl_b32 s{sT3}, s{sT2}, 3")
    I(f"s_lshr_b32 s{sT4}, s{sLI}, 2")
    I(f"s_add_u32 s{sJ}, s{sT3}, s{sT4}")
    I(f"s_lshl_b32 s{sGB}, s{sXC}, 1")
    I(f"s_and_b32 s{sT5}, s{sLI}, 1")
    I(f"s_add_u32 s{sGB}, s{sGB}, s{sT5}")
    I(f"s_lshr_b32 s{sJB}, s{sLI}, 1")
    I(f"s_mul_i32 s{sJC}, s{sT2}, 7")
    I(f"s_add_u32 s{sJC}, s{sJC}, s{sT4}")
    I(f"s_cmp_eq_u32 s{sT4}, 7")
    I(f"s_cselect_b32 s{sJC}, 15, s{sJC}")
    I(f"s_and_b32 s{sW3}, s{sW}, 3")
    I(f"s_lshr_b32 s{sWH}, s{sW}, 2")
    I(f"s_mul_i32 s{sLW}, s{sW}, {UNIT}")
    I(f"s_lshl_b32 s{sCL}, s{sW}, 10")
    for r, n in ((sX, 1835008), (sWQKV, 1204224), (sWPHI, 25088), (sWO, 401408),
                 (sWG, 1605632), (sWU, 1605632), (sWD, 1605632), (sOUT, 1835008),
                 (sDBG, 256), (sWS, 0x10000000)):
        I(f"s_mov_b32 s{r+2}, {n}")
        I(f"s_mov_b32 s{r+3}, 0x20000")


def prologue2():
    I("s_waitcnt lgkmcnt(0)")
    for r, p in ((sX, 64), (sWQKV, 66), (sWPHI, 68), (sWO, 70), (sWG, 74), (sWU, 76), (sWD, 78), (sOUT, 80),
                 (sDBG, 82), (sWS, 84)):
        I(f"s_mov_b64 s[{r}:{r+1}], s[{p}:{p+1}]")
    if STAMPS:
        I(f"s_lshl_b32 s{sSTO}, s2, 3")
        I(f"s_add_u32 s{sSTO}, s{sSTO}, s{sW}")
        I(f"s_lshl_b32 s{sSTO}, s{sSTO}, 7")
        I(f"s_add_u32 s{sSTO}, s{sSTO}, {WS_STAMP}")
    lab = g.newlabel("L_init")
    I(f"s_lshl_b32 s{sT0}, s2, 3")
    I(f"s_add_u32 s{sT0}, s{sT0}, s{sW}")
    I(f"s_cmp_lg_u32 s{sT0}, 7")
    I(f"s_cbranch_scc1 {lab}")
    g.cond_begin()
    I(f"v_lshlrev_b32 v{vT0}, 8, v{vLANE}")
    I(f"v_mov_b32 v{vT1}, 0")
    I(f"buffer_store_dword v{vT1}, v{vT0}, {srd(sWS)}, 0 offen sc1")
    I(f"buffer_store_dword v{vT1}, v{vT0}, {srd(sWS)}, 0 offen offset:64 sc1")
    I(f"buffer_store_dword v{vT1}, v{vT0}, {srd(sWS)}, 0 offen offset:128 sc1")
    g.cond_end()
    g.label(lab)


POLL_MAX = 200000


def poll(srdreg, voff, target):
    lp, ld = g.newlabel("L_poll"), g.newlabel("L_pdone")
    I(f"s_mov_b32 s{sT5}, 0")
    g.label(lp)
    I(f"buffer_load_dword v{vFLAG}, v{voff}, {srd(srdreg)}, 0 offen sc1")
    I("s_waitcnt vmcnt(0)")
    I(f"v_readfirstlane_b32 s{sT4}, v{vFLAG}")
    I(f"s_add_u32 s{sT5}, s{sT5}, 1")
    I(f"s_cmp_ge_u32 s{sT5}, {POLL_MAX}")
    I(f"s_cbranch_scc1 {ld}")
    I(f"s_cmp_lt_u32 s{sT4}, {target}")
    I(f"s_cbranch_scc1 {lp}")
    g.label(ld)


def signal(kind, sidx, toks, first=False):
    g.wait(*toks)
    I("s_barrier")
    lab = g.newlabel("L_sig")
    I(f"s_cmp_lg_u32 s{sW}, 0")
    I(f"s_cbranch_scc1 {lab}")
    g.cond_begin()
    I("s_mov_b64 exec, 1")
    if first:
        l2 = g.newlabel("L_ini")
        I(f"v_readfirstlane_b32 s{sT4}, v{vINIT}")
        I(f"s_cmp_lg_u32 s{sT4}, 0")
        I(f"s_cbranch_scc1 {l2}")
        I(f"v_mov_b32 v{vCNT}, 0")
        poll(sDBG, vCNT, 1)
        g.label(l2)
    I(f"s_lshl_b32 s{sT0}, s{sidx}, 8")
    I(f"s_add_u32 s{sT0}, s{sT0}, {WS_CNT + kind * 4096}")
    I(f"v_mov_b32 v{vCNT}, s{sT0}")
    I(f"buffer_atomic_add v{vONE}, v{vCNT}, {srd(sWS)}, 0 offen sc1")
    I("s_mov_b64 exec, -1")
    g.cond_end()
    g.label(lab)


def waitflag(kind, sidx, target=16):
    lab = g.newlabel("L_w")
    I(f"s_cmp_lg_u32 s{sW}, 0")
    I(f"s_cbranch_scc1 {lab}")
    g.cond_begin()
    I("s_mov_b64 exec, 1")
    I(f"s_lshl_b32 s{sT0}, s{sidx}, 8")
    I(f"s_add_u32 s{sT0}, s{sT0}, {WS_CNT + kind * 4096}")
    I(f"v_mov_b32 v{vCNT}, s{sT0}")
    poll(sWS, vCNT, target)
    I("s_mov_b64 exec, -1")
    g.cond_end()
    g.label(lab)
    I("s_barrier")


def dma2(vaddr, srdreg, sbase, src_imm, lds_sreg, lds_imm, stmp=None):
    stmp = sT1 if stmp is None else stmp
    I(f"s_add_u32 m0, s{lds_sreg}, {lds_imm}")
    I(f"s_add_u32 s{stmp}, s{sbase}, {src_imm}")
    return I(f"buffer_load_dwordx4 v{vaddr}, {srd(srdreg)}, s{stmp} offen lds")


def xreduce(op, a, t, levels=(16, 32)):
    for lv in levels:
        I(f"v_mov_b32 v{t}, v{a}")
        I(f"v_permlane{lv}_swap_b32 v{a}, v{t}")
        I(f"{op} v{a}, v{a}, v{t}")


LOG2E = 1.4426950408889634

XF = 16
WR = 72
WPHI = 100
WPH2 = 108
SEL = 116
ACC = 124
ACCV = 132
WF = 140
TMP = 172
PH = 196
vXA0, vXA1, vWA, vTR, vXR0, vXR1, vCA = 204, 205, 206, 207, 208, 209, 252
vTRb, vTRc, vWOA = 211, 212, 213


def chain16(acc, rd, swap=False, depth=3, hook=None):
    toks = {}
    nb = depth + 1
    n = 14
    for c in range(depth):
        toks[c] = rd(c, WF + 8 * (c % nb))
    for c in range(n):
        if c + depth < n:
            toks[c + depth] = rd(c + depth, WF + 8 * ((c + depth) % nb))
        g.wait(toks[c])
        X = vr(XF + 4 * c, 4)
        for t in range(2):
            W = vr(WF + 8 * (c % nb) + 4 * t, 4)
            a = vr(acc + 4 * t, 4)
            C = a if c > 0 else "0"
            if swap:
                I(f"v_mfma_f32_16x16x32_bf16 {a}, {X}, {W}, {C}")
            else:
                I(f"v_mfma_f32_16x16x32_bf16 {a}, {W}, {X}, {C}")
        if hook is not None:
            hook(c)


def featmap(acc, out):
    pk = TMP
    p = acc
    e = TMP + 4
    mx, mn, t0, t1 = TMP + 12, TMP + 13, TMP + 14, TMP + 15
    for i in range(4):
        I(f"v_cvt_pk_bf16_f32 v{pk+i}, v{acc+2*i}, v{acc+2*i+1}")
    I(f"v_mfma_f32_16x16x32_bf16 {vr(p,4)}, {vr(WPHI,4)}, {vr(pk,4)}, 0")
    I(f"v_mfma_f32_16x16x32_bf16 {vr(p+4,4)}, {vr(WPHI+4,4)}, {vr(pk,4)}, 0")
    I(f"v_max3_f32 v{mx}, v{p}, v{p+1}, v{p+2}")
    I(f"v_min3_f32 v{mn}, v{p}, v{p+1}, v{p+2}")
    for i in (3, 5):
        I(f"v_max3_f32 v{mx}, v{mx}, v{p+i}, v{p+i+1}")
        I(f"v_min3_f32 v{mn}, v{mn}, v{p+i}, v{p+i+1}")
    for lv in (16, 32):
        I(f"v_mov_b32 v{t0}, v{mx}")
        I(f"v_mov_b32 v{t1}, v{mn}")
        I(f"v_permlane{lv}_swap_b32 v{mx}, v{t0}")
        I(f"v_permlane{lv}_swap_b32 v{mn}, v{t1}")
        I(f"v_max_f32 v{mx}, v{mx}, v{t0}")
        I(f"v_min_f32 v{mn}, v{mn}, v{t1}")
    I(f"v_mul_f32 v{mx}, {f32(-LOG2E)}, v{mx}")
    I(f"v_mul_f32 v{mn}, {f32(LOG2E)}, v{mn}")
    e2 = TMP + 16
    for i in range(7):
        I(f"v_fma_f32 v{e+i}, v{p+i}, s{sLOG}, v{mx}")
        I(f"v_fma_f32 v{e2+i}, -v{p+i}, s{sLOG}, v{mn}")
    for i in range(7):
        I(f"v_exp_f32 v{e+i}, v{e+i}")
        I(f"v_exp_f32 v{e2+i}, v{e2+i}")
    I(f"v_add_f32 v{mx}, v{e}, v{e+1}")
    I(f"v_add_f32 v{mn}, v{e2}, v{e2+1}")
    for i in range(2, 7):
        I(f"v_add_f32 v{mx}, v{mx}, v{e+i}")
        I(f"v_add_f32 v{mn}, v{mn}, v{e2+i}")
    for lv in (16, 32):
        I(f"v_mov_b32 v{t0}, v{mx}")
        I(f"v_mov_b32 v{t1}, v{mn}")
        I(f"v_permlane{lv}_swap_b32 v{mx}, v{t0}")
        I(f"v_permlane{lv}_swap_b32 v{mn}, v{t1}")
        I(f"v_add_f32 v{mx}, v{mx}, v{t0}")
        I(f"v_add_f32 v{mn}, v{mn}, v{t1}")
    I(f"v_rcp_f32 v{mx}, v{mx}")
    I(f"v_rcp_f32 v{mn}, v{mn}")
    for i in range(7):
        I(f"v_mul_f32 v{e+i}, v{e+i}, v{mx}")
        I(f"v_mul_f32 v{e2+i}, v{e2+i}, v{mn}")
    for i in range(3):
        I(f"v_cvt_pk_bf16_f32 v{out+i}, v{e+2*i}, v{e+2*i+1}")
        I(f"v_cvt_pk_bf16_f32 v{out+4+i}, v{e2+2*i}, v{e2+2*i+1}")
    I(f"v_cvt_pk_bf16_f32 v{out+3}, v{e+6}, 0")
    I(f"v_cvt_pk_bf16_f32 v{out+7}, v{e2+6}, 0")


def c_batch(mat, dbl, n0, n1, lds_base):
    t = None
    assert n0 % 8 == 0 and n1 % 8 == 0
    for i in range(n0 // 8, n1 // 8):
        t = dma2(vCA, sWG if mat == 0 else sWU, sCW, i * 8 * 8 * 3584 + dbl * 128, sCL, lds_base + (i * 8 - n0) * 1024)
    return t


def c_bg(mat, dbl, n0, n1, lds_base, after, gap=150):
    t = None
    for i in range(n0 // 8, n1 // 8):
        g.begin()
        t = dma2(vCA, sWG if mat == 0 else sWU, sCW, i * 8 * 8 * 3584 + dbl * 128, sCL, lds_base + (i * 8 - n0) * 1024, stmp=sBG)
        g.bg_add(g.end(), after, gap)
        NBG[0] += 1
    return t


NBG = [0]
TWD = {}
NWDBG = [0]


def bg(fn, after=None, gap=150):
    g.begin()
    r = fn()
    g.bg_add(g.end(), after, gap)
    NBG[0] += 1
    return r


def flush():
    g.mark(f"flush:{NBG[0]}")


def check_loop(issue, regs, tmp, body=None):
    lp, ld = g.newlabel("L_dp"), g.newlabel("L_dpd")
    I(f"s_mov_b32 s{sT5}, 0")
    g.label(lp)
    toks = issue()
    if body is not None:
        body(toks)
    g.wait(toks[-1])
    rs = list(regs)
    if len(rs) == 1:
        I(f"v_cmp_eq_u32 vcc, -1, v{rs[0]}")
    else:
        first = True
        acc = None
        while rs:
            if acc is None:
                if len(rs) >= 3:
                    I(f"v_max3_u32 v{tmp}, v{rs[0]}, v{rs[1]}, v{rs[2]}")
                    rs = rs[3:]
                else:
                    I(f"v_max_u32 v{tmp}, v{rs[0]}, v{rs[1]}")
                    rs = rs[2:]
                acc = tmp
            elif len(rs) >= 2:
                I(f"v_max3_u32 v{tmp}, v{tmp}, v{rs[0]}, v{rs[1]}")
                rs = rs[2:]
            else:
                I(f"v_max_u32 v{tmp}, v{tmp}, v{rs[0]}")
                rs = rs[1:]
        I(f"v_cmp_eq_u32 vcc, -1, v{tmp}")
    I(f"s_add_u32 s{sT5}, s{sT5}, 1")
    I(f"s_cmp_ge_u32 s{sT5}, {POLL_MAX}")
    I(f"s_cbranch_scc1 {ld}")
    I(f"s_cmp_lg_u64 vcc, 0")
    I(f"s_cbranch_scc1 {lp}")
    g.label(ld)


def c_setup():
    I(f"v_lshrrev_b32 v{vT0}, 3, v{vLANE}")
    I(f"v_mul_u32_u24 v{vT1}, 3584, v{vT0}")
    I(f"v_and_b32 v{vT2}, 1, v{vG}")
    I(f"v_lshlrev_b32 v{vT2}, 2, v{vT2}")
    I(f"v_and_b32 v{vCA}, 7, v{vLANE}")
    I(f"v_xor_b32 v{vCA}, v{vCA}, v{vT2}")
    I(f"v_lshl_add_u32 v{vCA}, v{vCA}, 4, v{vT1}")
    I(f"s_cmp_ge_u32 s{sJC}, 14")
    I(f"s_cselect_b32 s{sT0}, {OOB}, 0")
    I(f"v_add_u32 v{vCA}, s{sT0}, v{vCA}")
    I(f"s_mul_i32 s{sCW}, s{sW}, {8*3584}")
    I(f"s_lshl_b32 s{sT0}, s{sJC}, 8")
    I(f"s_add_u32 s{sCW}, s{sCW}, s{sT0}")


def touch1():
    I(f"s_mul_i32 s{sT0}, s{sLI}, {98*128}")
    I(f"s_mul_i32 s{sT1}, s{sW}, {13*128}")
    I(f"s_add_u32 s{sT0}, s{sT0}, s{sT1}")
    I(f"v_lshlrev_b32 v{vT0}, 7, v{vLANE}")
    I(f"v_mov_b32 v{vT2}, {OOB}")
    I(f"v_cmp_gt_u32 vcc, 13, v{vLANE}")
    I(f"v_cndmask_b32 v{vT0}, v{vT2}, v{vT0}, vcc")
    I(f"buffer_load_dword v{vDMY}, v{vT0}, {srd(sWO)}, s{sT0} offen")
    I(f"s_lshr_b32 s{sT0}, s{sW}, 1")
    I(f"s_lshl_b32 s{sT2}, s{sT0}, 2")
    I(f"s_mul_i32 s{sT0}, s{sT0}, {4*3584}")
    I(f"s_mul_i32 s{sT1}, s{sLI}, {14*3584}")
    I(f"s_add_u32 s{sT0}, s{sT0}, s{sT1}")
    I(f"s_and_b32 s{sT1}, s{sXC}, 1")
    I(f"s_mul_i32 s{sT1}, s{sT1}, 1792")
    I(f"s_add_u32 s{sT0}, s{sT0}, s{sT1}")
    I(f"v_mul_u32_u24 v{vT0}, 3584, v{vG}")
    I(f"v_lshl_add_u32 v{vT0}, v{vM16}, 7, v{vT0}")
    I(f"v_cmp_gt_u32 vcc, 14, v{vM16}")
    I(f"v_cndmask_b32 v{vT0}, v{vT2}, v{vT0}, vcc")
    I(f"v_add_u32 v{vT1}, s{sT2}, v{vG}")
    I(f"v_cmp_gt_u32 vcc, 14, v{vT1}")
    I(f"v_cndmask_b32 v{vT0}, v{vT2}, v{vT0}, vcc")
    I(f"buffer_load_dword v{vDMY}, v{vT0}, s[4:7], s{sT0} offen")


def touch2():
    I(f"s_mul_i32 s{sT2}, s{sLI}, {392*128}")
    I(f"s_mul_i32 s{sT1}, s{sW}, {49*128}")
    I(f"s_add_u32 s{sT2}, s{sT2}, s{sT1}")
    I(f"v_lshlrev_b32 v{vT1}, 7, v{vLANE}")
    I(f"v_mov_b32 v{vT2}, {OOB}")
    I(f"v_cmp_gt_u32 vcc, 49, v{vLANE}")
    I(f"v_cndmask_b32 v{vT1}, v{vT2}, v{vT1}, vcc")
    I(f"buffer_load_dword v{vDMY}, v{vT1}, {srd(sWD)}, s{sT2} offen")


sNQ, sMTB, sCSS, sMTC = 76, 77, 78, 79
vT8, vCSS, vHSA, vSSA = 210, 214, 215, 199 + 0


def addr_setup():
    I(f"s_lshl_b32 s{sGATH}, s{sJ}, 16")
    I(f"s_add_u32 s{sGATH}, s{sGATH}, {WS_KVP}")
    I(f"s_lshl_b32 s{sKVS}, s{sG}, 12")
    I(f"s_add_u32 s{sKVS}, s{sKVS}, s{sGATH}")
    I(f"s_lshl_b32 s{sOS}, s{sA}, 4")
    I(f"s_add_u32 s{sOS}, s{sOS}, s{sJ}")
    I(f"s_lshl_b32 s{sOS}, s{sOS}, 10")
    I(f"s_add_u32 s{sOS}, s{sOS}, {WS_O}")
    I(f"s_lshl_b32 s{sCSS}, s{sJC}, 4")
    I(f"s_add_u32 s{sCSS}, s{sCSS}, s{sG}")
    I(f"s_lshl_b32 s{sCSS}, s{sCSS}, 10")
    I(f"s_add_u32 s{sCSS}, s{sCSS}, {WS_CS}")
    I(f"s_and_b32 s{sNQ}, s{sJB}, 3")
    I(f"s_lshr_b32 s{sMTB}, s{sJB}, 2")
    I(f"s_lshl_b32 s{sT0}, s{sGB}, 2")
    I(f"s_add_u32 s{sMTB}, s{sMTB}, s{sT0}")
    I(f"s_mul_i32 s{sHS}, s{sMTB}, 28")
    I(f"s_lshl_b32 s{sT1}, s{sNQ}, 3")
    I(f"s_add_u32 s{sHS}, s{sHS}, s{sT1}")
    I(f"s_lshl_b32 s{sHS}, s{sHS}, 10")
    I(f"s_add_u32 s{sHS}, s{sHS}, {WS_H}")
    I(f"s_lshl_b32 s{sSS}, s{sMTB}, 2")
    I(f"s_add_u32 s{sSS}, s{sSS}, s{sNQ}")
    I(f"s_lshl_b32 s{sSS}, s{sSS}, 8")
    I(f"s_add_u32 s{sSS}, s{sSS}, {WS_ST}")
    I(f"s_lshl_b32 s{sMTC}, s{sG}, 2")
    I(f"s_add_u32 s{sMTC}, s{sMTC}, s{sW3}")
    I(f"s_mul_i32 s{sHHS}, s{sMTC}, {112*1024}")
    I(f"s_lshl_b32 s{sT0}, s{sJC}, 13")
    I(f"s_add_u32 s{sHHS}, s{sHHS}, s{sT0}")
    I(f"s_lshl_b32 s{sT0}, s{sWH}, 10")
    I(f"s_add_u32 s{sHHS}, s{sHHS}, s{sT0}")
    I(f"s_add_u32 s{sHHS}, s{sHHS}, {WS_HH}")
    I(f"s_cmp_ge_u32 s{sJC}, 14")
    I(f"s_cselect_b32 s{sT0}, {OOB}, 0")
    I(f"s_add_u32 s{sHHS}, s{sHHS}, s{sT0}")
    I(f"v_lshlrev_b32 v{vT8}, 3, v0")
    I(f"s_cmp_ge_u32 s{sW}, 4")
    I(f"s_cselect_b32 s{sT0}, {OOB}, 0")
    I(f"v_lshlrev_b32 v{vCSS}, 2, v0")
    I(f"v_add_u32 v{vCSS}, s{sT0}, v{vCSS}")
    I(f"s_lshl_b32 s{sT1}, s{sW}, 2")
    I(f"v_and_b32 v{vT0}, 3, v{vLANE}")
    I(f"v_add_u32 v{vT0}, s{sT1}, v{vT0}")
    I(f"v_lshrrev_b32 v{vT1}, 2, v{vLANE}")
    I(f"v_lshlrev_b32 v{vHSA}, 9, v{vT1}")
    I(f"v_lshl_add_u32 v{vHSA}, v{vT0}, 4, v{vHSA}")
    I(f"s_cmp_eq_u32 s{sNQ}, 3")
    I(f"s_cselect_b32 s{sT1}, 8, 16")
    I(f"v_cmp_gt_u32 vcc, s{sT1}, v{vT1}")
    I(f"v_mov_b32 v{vT1}, {OOB}")
    I(f"v_cndmask_b32 v{vHSA}, v{vT1}, v{vHSA}, vcc")


def stats_addr(dst, t0, t1):
    I(f"s_lshl_b32 s{sBG}, s{sW}, 5")
    I(f"v_lshlrev_b32 v{t0}, 3, v{vLANE}")
    I(f"v_add_u32 v{t0}, s{sBG}, v{t0}")
    I(f"v_mov_b32 v{t1}, {OOB}")
    I(f"v_cmp_gt_u32 vcc, 4, v{vLANE}")
    I(f"v_cndmask_b32 v{dst}, v{t1}, v{t0}, vcc")


def sentinels():
    SN = 216
    for i in range(4):
        I(f"v_mov_b32 v{SN+i}, -1")
    I(f"buffer_store_dwordx2 {vr(SN,2)}, v{vT8}, {srd(sWS)}, s{sKVS} offen sc1")
    I(f"buffer_store_dwordx4 {vr(SN,4)}, v{vL16}, {srd(sWS)}, s{sOS} offen sc1")
    I(f"buffer_store_dword v{SN}, v{vCSS}, {srd(sWS)}, s{sCSS} offen sc1")
    I(f"buffer_store_dwordx4 {vr(SN,4)}, v{vHSA}, {srd(sWS)}, s{sHS} offen sc1")
    stats_addr(SN + 4, SN + 4, SN + 5)
    I(f"buffer_store_dwordx2 {vr(SN,2)}, v{SN+4}, {srd(sWS)}, s{sSS} offen sc1")
    I(f"s_add_u32 s{sBG}, s{sHHS}, {3*2048}")
    return I(f"buffer_store_dwordx4 {vr(SN,4)}, v{vL16}, {srd(sWS)}, s{sBG} offen sc1")


def init_signal():
    lab = g.newlabel("L_is")
    I(f"s_cmp_lg_u32 s{sW}, 5")
    I(f"s_cbranch_scc1 {lab}")
    g.cond_begin()
    I("s_mov_b64 exec, 1")
    I(f"s_and_b32 s{sT0}, s2, 15")
    I(f"s_lshl_b32 s{sT0}, s{sT0}, 4")
    I(f"v_mov_b32 v{vCNT}, s{sT0}")
    I(f"buffer_atomic_add v{vONE}, v{vCNT}, {srd(sDBG)}, 0 offen sc1")
    I("s_mov_b64 exec, -1")
    g.cond_end()
    g.label(lab)


def init_check():
    lp, ld = g.newlabel("L_ic"), g.newlabel("L_icd")
    I(f"v_lshlrev_b32 v{vCNT}, 4, v{vM16}")
    I(f"s_mov_b32 s{sT5}, 0")
    g.label(lp)
    t = I(f"buffer_load_dword v{vINIT}, v{vCNT}, {srd(sDBG)}, 0 offen sc1")
    g.wait(t)
    I(f"v_cmp_gt_u32 vcc, 16, v{vINIT}")
    I(f"s_add_u32 s{sT5}, s{sT5}, 1")
    I(f"s_cmp_ge_u32 s{sT5}, {POLL_MAX}")
    I(f"s_cbranch_scc1 {ld}")
    I(f"s_cmp_lg_u64 vcc, 0")
    I(f"s_cbranch_scc1 {lp}")
    g.label(ld)


def phaseA():
    g.comment("==== phase A ====")
    I(f"v_lshrrev_b32 v{vT0}, 3, v{vLANE}")
    I(f"v_mul_u32_u24 v{vT0}, 896, v{vT0}")
    I(f"v_and_b32 v{vT1}, 7, v{vLANE}")
    I(f"v_xor_b32 v{vT3}, v{vT1}, v{vG}")
    I(f"v_lshl_add_u32 v{vXA0}, v{vT3}, 4, v{vT0}")
    I(f"v_xor_b32 v{vT3}, 4, v{vT3}")
    I(f"v_lshl_add_u32 v{vXA1}, v{vT3}, 4, v{vT0}")
    I(f"v_lshrrev_b32 v{vT0}, 2, v{vLANE}")
    I(f"v_mul_u32_u24 v{vT0}, 2688, v{vT0}")
    I(f"v_and_b32 v{vT1}, 3, v{vLANE}")
    I(f"v_and_b32 v{vT2}, 2, v{vG}")
    I(f"v_xor_b32 v{vT1}, v{vT1}, v{vT2}")
    I(f"v_lshl_add_u32 v{vWA}, v{vT1}, 4, v{vT0}")
    I(f"s_lshl_b32 s{sA}, s{sG}, 3")
    I(f"s_add_u32 s{sA}, s{sA}, s{sW}")
    I(f"s_mul_i32 s{sB}, s{sA}, {16*896}")
    I(f"s_add_u32 s{sC}, s{sB}, {8*896}")
    I(f"s_mul_i32 s{sWB}, s{sJ}, 56")
    I(f"s_and_b32 s{sT1}, s{sJ}, 1")
    I(f"s_lshl_b32 s{sT1}, s{sT1}, 3")
    I(f"s_sub_u32 s{sWB}, s{sWB}, s{sT1}")
    I(f"s_mul_i32 s{sD}, s{sW}, {16*2688}")
    I(f"s_add_u32 s{sD}, s{sD}, s{sWB}")
    I(f"s_mov_b32 s{sLOG}, {f32(LOG2E)}")
    prologue2()
    addr_setup()
    stamp("rt0", rt=True)
    stamp("start")
    tx = {}
    for seg in range(7):
        for o in range(2):
            I(f"s_add_u32 m0, s{sLW}, {(o*7+seg)*1024 - seg*128}")
            tx[seg] = I(f"buffer_load_dwordx4 v{vXA1 if o else vXA0}, {srd(sX)}, s{sC if o else sB} offen offset:{seg*128} lds")
    I("s_barrier")
    bgl = []
    bt = {}

    def bg_add(name, fn):
        bgl.append((name, fn))

    def bgq(n=1):
        for _ in range(n):
            if bgl:
                name, fn = bgl.pop(0)
                bt[name] = fn()
    for i in range(3):
        bg_add(f"wk{i}", lambda i=i: dma2(vWA, sWQKV, sD, 896 + i * 8 * 16 * 2688, sCL, LDS_WK + i * 8192))

    def wk3():
        I(f"s_cmp_ge_u32 s{sW}, 4")
        I(f"s_cselect_b32 s{sT0}, {OOB}, 0")
        I(f"s_add_u32 s{sT0}, s{sT0}, s{sD}")
        dma2(vWA, sWQKV, sT0, 896 + 3 * 8 * 16 * 2688, sCL, LDS_WK + 3 * 8192)
        I(f"v_lshlrev_b32 v{vT0}, 4, v0")
        I(f"v_mov_b32 v{vT1}, {OOB}")
        I(f"v_cmp_gt_u32 vcc, 98, v0")
        I(f"v_cndmask_b32 v{vT0}, v{vT1}, v{vT0}, vcc")
        I(f"s_min_u32 s{sT0}, s{sCL}, 2048")
        I(f"s_add_u32 m0, s{sT0}, {LDS_WPL}")
        I(f"s_mul_i32 s{sT0}, s{sJ}, 1568")
        return I(f"buffer_load_dwordx4 v{vT0}, {srd(sWPHI)}, s{sT0} offen lds")
    bg_add("wk3", wk3)
    bgq(2)
    I(f"s_cmp_ge_u32 s{sW}, 4")
    I(f"s_cselect_b32 s{sE}, {(24-4)*16*2688}, {1792 + 24*16*2688}" if False else f"s_mov_b32 s{sE}, {1792 + 24*16*2688}")
    I(f"s_cmov_b32 s{sE}, {20*16*2688}")
    I(f"s_add_u32 s{sE}, s{sE}, s{sD}")

    def rawW(i):
        if i == 3:
            return I(f"buffer_load_dwordx4 {vr(WR+12,4)}, v{vWA}, {srd(sWQKV)}, s{sE} offen")
        off = 1792 + i * 8 * 16 * 2688 if i < 3 else (i - 4) * 8 * 16 * 2688
        I(f"s_add_u32 s{sT1}, s{sD}, {off}")
        return I(f"buffer_load_dwordx4 {vr(WR+4*i,4)}, v{vWA}, {srd(sWQKV)}, s{sT1} offen")
    for i in range(4):
        bg_add(f"w{i}", lambda i=i: rawW(i))
    I(f"v_lshrrev_b32 v{vT0}, 3, v{vM16}")
    I(f"v_mul_u32_u24 v{vT0}, 7168, v{vT0}")
    I(f"v_add_u32 v{vT0}, s{sLW}, v{vT0}")
    I(f"v_and_b32 v{vT1}, 7, v{vM16}")
    I(f"v_lshl_add_u32 v{vT0}, v{vT1}, 7, v{vT0}")
    I(f"v_lshrrev_b32 v{vT1}, 1, v{vM16}")
    I(f"v_xor_b32 v{vT1}, v{vT1}, v{vG}")
    I(f"v_lshl_add_u32 v{vXR0}, v{vT1}, 4, v{vT0}")
    I(f"v_xor_b32 v{vXR1}, 64, v{vXR0}")
    I(f"v_bfe_u32 v{vT0}, v{vLANE}, 2, 2")
    I(f"v_lshl_add_u32 v{vT0}, v{vG}, 3, v{vT0}")
    I(f"v_lshlrev_b32 v{vT0}, 6, v{vT0}")
    I(f"v_and_b32 v{vT1}, 3, v{vLANE}")
    I(f"s_and_b32 s{sT1}, s{sJ}, 1")
    I(f"v_add_u32 v{vT1}, s{sT1}, v{vT1}")
    I(f"v_and_b32 v{vT2}, 1, v{vG}")
    I(f"v_lshlrev_b32 v{vT2}, 2, v{vT2}")
    I(f"v_xor_b32 v{vT1}, v{vT1}, v{vT2}")
    I(f"v_lshl_add_u32 v{vTR}, v{vT1}, 3, v{vT0}")
    I(f"v_lshrrev_b32 v{vT0}, 2, v{vM16}")
    I(f"v_and_b32 v{vT1}, 3, v{vM16}")
    I(f"v_cmp_eq_u32 vcc, v{vT0}, v{vG}")
    I(f"v_cndmask_b32 v{vT1}, 7, v{vT1}, vcc")
    I(f"v_mov_b32 v{vT3}, 0x3f80")
    I(f"v_mov_b32 v{vT4}, 0x3f800000")
    for i in range(2):
        I(f"v_cmp_eq_u32 vcc, {2*i}, v{vT1}")
        I(f"v_cndmask_b32 v{vT2}, 0, v{vT3}, vcc")
        I(f"v_cmp_eq_u32 vcc, {2*i+1}, v{vT1}")
        I(f"v_cndmask_b32 v{SEL+i}, v{vT2}, v{vT4}, vcc")
        I(f"v_mov_b32 v{SEL+6+i}, v{SEL+i}")
    for i in (2, 3, 4, 5):
        I(f"v_mov_b32 v{SEL+i}, 0")
    S1, S2 = ACC, ACC + 4
    for i in range(8):
        I(f"v_mov_b32 v{ACC+i}, 0")
    I(f"v_mov_b32 v{vT5}, 0x3f803f80")
    I(f"v_lshlrev_b32 v{vT0}, 2, v{vLANE}")
    I(f"v_add_u32 v{vT0}, {LDS_FLG}, v{vT0}")
    I(f"ds_write_b32 v{vT0}, v{ACC}")
    tw = {}
    for seg in range(7):
        g.wait(tx[seg])
        I(f"ds_read_b128 {vr(XF+8*seg,4)}, v{vXR0} offset:{seg*1024}")
        t = I(f"ds_read_b128 {vr(XF+8*seg+4,4)}, v{vXR1} offset:{seg*1024}")
        if seg in (1, 3, 5):
            bgq()
        g.wait(t)
        for k in range(8):
            r = XF + 8 * seg + k
            I(f"v_dot2_f32_bf16 v{S1+k%4}, v{r}, v{vT5}, v{S1+k%4}")
            I(f"v_dot2_f32_bf16 v{S2+k%4}, v{r}, v{r}, v{S2+k%4}")
    stamp("x stats")
    I(f"v_add_f32 v{S1}, v{S1}, v{S1+1}")
    I(f"v_add_f32 v{S1+2}, v{S1+2}, v{S1+3}")
    I(f"v_add_f32 v{S2}, v{S2}, v{S2+1}")
    I(f"v_add_f32 v{S2+2}, v{S2+2}, v{S2+3}")
    I(f"v_add_f32 v{S1}, v{S1}, v{S1+2}")
    I(f"v_add_f32 v{S2}, v{S2}, v{S2+2}")
    for lv in (16, 32):
        I(f"v_mov_b32 v{S1+1}, v{S1}")
        I(f"v_mov_b32 v{S2+1}, v{S2}")
        I(f"v_permlane{lv}_swap_b32 v{S1}, v{S1+1}")
        I(f"v_permlane{lv}_swap_b32 v{S2}, v{S2+1}")
        I(f"v_add_f32 v{S1}, v{S1}, v{S1+1}")
        I(f"v_add_f32 v{S2}, v{S2}, v{S2+1}")
    I(f"v_mul_f32 v{S1}, {f32(1/448)}, v{S1}")
    I(f"v_mul_f32 v{S2}, {f32(1/448)}, v{S2}")
    I(f"v_fma_f32 v{S2}, -v{S1}, v{S1}, v{S2}")
    I(f"v_max_f32 v{S2}, 0, v{S2}")
    I(f"v_add_f32 v{S2}, {f32(1e-5)}, v{S2}")
    RS, NB = ACCV, ACCV + 2
    I(f"v_rsq_f32 v{RS}, v{S2}")
    I(f"v_mul_f32 v{NB}, v{S1}, v{RS}")
    I(f"v_sub_f32 v{NB}, 0, v{NB}")
    I(f"v_mov_b32 v{RS+1}, v{RS}")
    I(f"v_mov_b32 v{NB+1}, v{NB}")
    TP = WF
    CSR = 248
    tcs = tinit = None
    for k in range(0, 56, 8):
        for u in range(8):
            I(f"v_lshlrev_b32 v{TP+2*u}, 16, v{XF+k+u}")
            I(f"v_and_b32 v{TP+2*u+1}, 0xffff0000, v{XF+k+u}")
        for u in range(8):
            I(f"v_pk_fma_f32 {vr(TP+2*u,2)}, {vr(TP+2*u,2)}, {vr(RS,2)}, {vr(NB,2)}")
        for u in range(8):
            I(f"v_cvt_pk_bf16_f32 v{XF+k+u}, v{TP+2*u}, v{TP+2*u+1}")
        if k in (0, 16, 32):
            bgq()
    stamp("normalized")
    I(f"v_mul_u32_u24 v{vT0}, 224, v{vG}")
    I(f"v_add_u32 v{vT0}, {LDS_WPL}, v{vT0}")
    I(f"v_lshl_add_u32 v{TMP}, v{vM16}, 1, v{vT0}")
    I(f"v_lshrrev_b32 v{vT2}, 2, v{vM16}")
    I(f"v_sub_u32 v{vT2}, v{vM16}, v{vT2}")
    I(f"v_lshl_add_u32 v{vT2}, v{vT2}, 1, v{vT0}")
    I(f"v_add_u32 v{TMP+1}, 32, v{vT2}")
    I(f"v_mov_b32 v{vT1}, {LDS_WPL + 1600}")
    I(f"v_and_b32 v{vT2}, 3, v{vM16}")
    I(f"v_cmp_eq_u32 vcc, 3, v{vT2}")
    I(f"v_cndmask_b32 v{TMP+1}, v{TMP+1}, v{vT1}, vcc")
    I(f"v_cmp_eq_u32 vcc, 3, v{vG}")
    I(f"v_cndmask_b32 v{TMP+2}, v{TMP}, v{vT1}, vcc")
    I(f"v_cndmask_b32 v{TMP+3}, v{TMP+1}, v{vT1}, vcc")
    I(f"v_add_u32 v{vTRb}, {LDS_WK}, v{vTR}")
    I(f"v_xor_b32 v{vTRc}, 32, v{vTRb}")
    def cs_loads():
        I(f"s_and_b32 s{sT0}, s{sW}, 1")
        I(f"s_cmp_eq_u32 s{sT0}, 1")
        I(f"s_cselect_b32 s4, s{sWU}, s{sWG}")
        I(f"s_cselect_b32 s5, s{sWU+1}, s{sWG+1}")
        I(f"s_mov_b32 s6, 1605632")
        I(f"s_mov_b32 s7, 0x20000")
        I(f"s_lshl_b32 s{sT0}, s{sG}, 2")
        I(f"s_lshr_b32 s{sT1}, s{sW}, 1")
        I(f"s_add_u32 s{sT0}, s{sT0}, s{sT1}")
        I(f"s_mul_i32 s{sT0}, s{sT0}, {7*3584}")
        I(f"s_lshl_b32 s{sT1}, s{sJC}, 8")
        I(f"s_add_u32 s{sT0}, s{sT0}, s{sT1}")
        I(f"s_cmp_ge_u32 s{sJC}, 14")
        I(f"s_cselect_b32 s{sT1}, {OOB}, 0")
        I(f"v_lshlrev_b32 v{vXA0}, 2, v{vLANE}")
        I(f"v_add_u32 v{vXA0}, s{sT1}, v{vXA0}")
        for r in range(7):
            if r:
                I(f"s_add_u32 s{sT0}, s{sT0}, 3584")
            tcs_ = I(f"buffer_load_dword v{CSR+r}, v{vXA0}, s[4:7], s{sT0} offen")
        return tcs_

    def init_load():
        I(f"v_mov_b32 v{vCNT}, 0")
        return I(f"buffer_load_dword v{vINIT}, v{vCNT}, {srd(sDBG)}, 0 offen sc1")
    bg_add("sent", sentinels)
    bg_add("cs", cs_loads)
    for i in (4, 5, 6):
        bg_add(f"w{i}", lambda i=i: rawW(i))
    g.wait(bt["wk3"])
    g.wait_all(vm=False)
    I("s_barrier")

    def rdk(c, dst):
        I(f"ds_read_b64_tr_b16 {vr(dst,2)}, v{vTRb} offset:{c*2048}")
        I(f"ds_read_b64_tr_b16 {vr(dst+2,2)}, v{vTRb} offset:{c*2048+256}")
        I(f"ds_read_b64_tr_b16 {vr(dst+4,2)}, v{vTRc} offset:{c*2048}")
        return I(f"ds_read_b64_tr_b16 {vr(dst+6,2)}, v{vTRc} offset:{c*2048+256}")

    tphi = None
    for u in range(2):
        for j in range(8):
            d0 = j if j < 4 else 16 + j - 4
            va = TMP + u + (2 if j >= 4 else 0)
            dst = (WPH2 if j & 1 else WPHI) + 4 * u + j // 2
            tphi = I(f"ds_read_u16 v{dst}, v{va} offset:{d0*56}")
    I(f"v_lshrrev_b32 v{vWOA}, 3, v{vLANE}")
    I(f"v_mul_u32_u24 v{vWOA}, 896, v{vWOA}")
    I(f"v_and_b32 v{vT1}, 7, v{vLANE}")
    I(f"v_lshl_add_u32 v{vWOA}, v{vT1}, 4, v{vWOA}")
    I(f"s_lshl_b32 s{sWOB}, s{sNQ}, 1")
    I(f"s_add_u32 s{sWOB}, s{sWOB}, s{sWH}")
    I(f"s_cmp_eq_u32 s{sWOB}, 7")
    I(f"s_cselect_b32 s{sT1}, {OOB}, 0")
    I(f"s_lshl_b32 s{sWOB}, s{sWOB}, 7")
    I(f"s_add_u32 s{sWOB}, s{sWOB}, s{sT1}")
    I(f"s_mul_i32 s{sT1}, s{sW3}, {112*896}")
    I(f"s_add_u32 s{sWOB}, s{sWOB}, s{sT1}")
    two = {}

    def wo_load(i):
        I(f"s_add_u32 s{sBG}, s{sWOB}, {i*8*896}")
        two[i] = I(f"buffer_load_dwordx4 {woraw(i)}, v{vWOA}, {srd(sWO)}, s{sBG} offen")
    for i in range(8):
        bg_add(f"wo{i}", lambda i=i: wo_load(i))
    chain16(ACC, rdk, hook=lambda c: bgq() if c in (2, 5, 8, 11) else None)
    for i in range(8):
        I(f"v_lshl_or_b32 v{WPHI+i}, v{WPH2+i}, 16, v{WPHI+i}")
    stamp("k chain")
    I(f"v_add_u32 v{vT1}, s{sLW}, v{vL16}")
    I(f"s_cmp_ge_u32 s{sW}, 4")
    I(f"s_cselect_b32 s{sT0}, {10240-3072}, 0")
    I(f"v_add_u32 v{vT2}, s{sT0}, v{vT1}")
    g.wait(bt['w3'])
    for i in range(3):
        I(f"ds_write_b128 v{vT1}, {vr(WR+4*i,4)} offset:{i*1024}")
    t = I(f"ds_write_b128 v{vT2}, {vr(WR+12,4)} offset:3072")
    I(f"v_lshrrev_b32 v{vT0}, 1, v{vG}")
    I(f"v_mul_u32_u24 v{vT0}, {UNIT-1024}, v{vT0}")
    I(f"v_add_u32 v{vTRb}, v{vT0}, v{vTR}")
    I(f"v_xor_b32 v{vTRc}, 32, v{vTRb}")
    I(f"v_add_u32 v{vXR0}, 57344, v{vTRb}")
    I(f"v_add_u32 v{vXR1}, 57344, v{vTRc}")
    g.wait(t)
    I("s_barrier")
    stamp("wv ready")

    def rdw(isq):
        def rd(c, dst):
            n0 = 2 * c
            if not isq:
                unit, off = n0 % 8, (n0 // 8) * 1024
            elif n0 < 24:
                unit, off = n0 % 8, 10240 + (1 + n0 // 8) * 1024
            else:
                unit, off = 4 + n0 - 24, 10240
            a0, a1 = (vTRb, vTRc) if unit < 4 else (vXR0, vXR1)
            off += (unit % 4) * UNIT
            I(f"ds_read_b64_tr_b16 {vr(dst,2)}, v{a0} offset:{off}")
            I(f"ds_read_b64_tr_b16 {vr(dst+2,2)}, v{a0} offset:{off+256}")
            I(f"ds_read_b64_tr_b16 {vr(dst+4,2)}, v{a1} offset:{off}")
            return I(f"ds_read_b64_tr_b16 {vr(dst+6,2)}, v{a1} offset:{off+256}")
        return rd

    g.begin()
    chain16(ACCV, rdw(False), swap=True, hook=lambda c: bgq() if c % 2 == 1 else None)
    main = g.end()
    g.begin()
    featmap(ACC, PH)
    for s_ in range(2):
        for u in range(2):
            I(f"v_mfma_f32_16x16x32_bf16 {vr(TMP+8*s_+4*u,4)}, {vr(PH+4*s_,4)}, {vr(SEL+4*u,4)}, 0")
    side = g.end()
    g.put(interleave(main, side, every=1, per=4))
    PT = PH
    for k in range(8):
        I(f"v_cvt_pk_bf16_f32 v{PT+k}, v{TMP+2*k}, v{TMP+2*k+1}")
    VF = ACC
    I(f"v_cmp_le_u32 vcc, 12, v{vM16}")
    for k in range(4):
        I(f"v_cvt_pk_bf16_f32 v{VF+k}, v{ACCV+2*k}, v{ACCV+2*k+1}")
    I(f"v_cndmask_b32 v{VF+2}, v{VF+2}, v{vT5}, vcc")
    I(f"v_cndmask_b32 v{VF+3}, v{VF+3}, v{vT5}, vcc")
    I(f"s_lshr_b32 s{sT0}, s{sW}, 1")
    I(f"s_lshl_b32 s{sT0}, s{sT0}, 10")
    I(f"s_and_b32 s{sT1}, s{sW}, 1")
    I(f"s_lshl_b32 s{sT1}, s{sT1}, 3")
    I(f"s_add_u32 s{sT0}, s{sT0}, s{sT1}")
    I(f"s_add_u32 s{sT0}, s{sT0}, {LDS_WK}")
    I(f"v_add_u32 v{vT0}, s{sT0}, v{vL16}")
    for k in range(4):
        I(f"ds_write_b64 v{vT0}, {vr(PT+2*k,2)} offset:{k*4096}")
    for k in range(2):
        I(f"ds_write_b64 v{vT0}, {vr(VF+2*k,2)} offset:{(4+k)*4096}")
    g.wait(bt['cs'])
    I(f"v_mov_b32 v{ACCV}, 0\nv_mov_b32 v{ACCV+1}, 0")
    for r in range(7):
        I(f"v_dot2_f32_bf16 v{ACCV}, v{CSR+r}, v{vT3}, v{ACCV}")
        I(f"v_dot2_f32_bf16 v{ACCV+1}, v{CSR+r}, v{vT4}, v{ACCV+1}")
    I(f"v_add_u32 v{vT1}, {LDS_KVF}, v{vT8}")
    I(f"ds_write_b64 v{vT1}, {vr(ACCV,2)}")
    I(f"s_lshl_b32 s{sT0}, s{sWH}, 1")
    I(f"s_and_b32 s{sT1}, s{sW}, 1")
    I(f"s_add_u32 s{sT0}, s{sT0}, s{sT1}")
    I(f"s_lshl_b32 s{sT0}, s{sT0}, 12")
    I(f"s_add_u32 s{sT0}, s{sT0}, {LDS_WK}")
    I(f"v_add_u32 v{vT0}, s{sT0}, v{vL16}")
    I(f"s_bfe_u32 s{sT0}, s{sW}, 0x10001")
    I(f"s_lshl_b32 s{sT0}, s{sT0}, 12")
    I(f"s_add_u32 s{sT0}, s{sT0}, {LDS_WK + 4*4096}")
    I(f"v_add_u32 v{vT1}, s{sT0}, v{vL16}")
    g.wait_all(vm=False)
    I("s_barrier")
    init_signal()
    R = WF
    tk = {}
    for p in range(4):
        I(f"ds_read_b128 {vr(R+8*p,4)}, v{vT0} offset:{p*1024}")
        tk[p] = I(f"ds_read_b128 {vr(R+8*p+4,4)}, v{vT1} offset:{p*1024}")
    I(f"v_lshlrev_b32 v{vXA0}, 2, v0")
    I(f"v_and_b32 v{vXA0}, 1023, v{vXA0}")
    I(f"v_add_u32 v{vXA0}, {LDS_KVF}, v{vXA0}")
    I(f"ds_read2st64_b32 {vr(ACCV,2)}, v{vXA0} offset0:0 offset1:4")
    tq = I(f"ds_read2st64_b32 {vr(ACCV+2,2)}, v{vXA0} offset0:8 offset1:12")
    for p in range(4):
        g.wait(tk[p])
        I(f"v_mfma_f32_16x16x32_bf16 {vr(ACC,4)}, {vr(R+8*p,4)}, {vr(R+8*p+4,4)}, {'0' if p == 0 else vr(ACC,4)}")
    g.wait(tq)
    I(f"v_add_f32 v{ACCV}, v{ACCV}, v{ACCV+1}")
    I(f"v_add_f32 v{ACCV+2}, v{ACCV+2}, v{ACCV+3}")
    I(f"v_add_f32 v{ACCV}, v{ACCV}, v{ACCV+2}")
    I(f"v_cvt_pk_bf16_f32 v{ACC+4}, v{ACC}, v{ACC+1}")
    I(f"v_cvt_pk_bf16_f32 v{ACC+5}, v{ACC+2}, v{ACC+3}")
    I(f"buffer_store_dwordx2 {vr(ACC+4,2)}, v{vT8}, {srd(sWS)}, s{sKVS} offen sc1")
    I(f"buffer_store_dword v{ACCV}, v{vCSS}, {srd(sWS)}, s{sCSS} offen sc1")
    stamp("kv stored")
    I(f"v_add_u32 v{vT1}, s{sLW}, v{vL16}")
    g.wait(bt['w6'])
    for i in range(4, 7):
        I(f"ds_write_b128 v{vT1}, {vr(WR+4*i,4)} offset:{10240+(i-3)*1024}")
    bgq(99)
    c_setup()
    d_setup()
    g.wait_all(vm=False)
    I("s_barrier")
    for i in range(8, 14):
        bg(lambda: wo_load(i), None, 170)
    g.mark("on")
    chain16(ACC, rdw(True))
    flush()
    I("s_barrier")
    g.mark("qdone")
    for n in range(NWDE):
        for hf_ in range(2):
            TWD[n] = bg(lambda: wd_half(WDE + 8 * n, n, hf_), "qdone", 150)
    NWDBG[0] = NBG[0]
    c_bg(0, 0, 0, 56, 0, "qdone")
    c_bg(1, 0, 0, 24, 57344, "qdone")
    featmap(ACC, PH)
    GR = 156
    I(f"v_lshrrev_b32 v{vT0}, 2, v{vM16}")
    I(f"v_sub_u32 v{vT0}, v{vM16}, v{vT0}")
    I(f"v_and_b32 v{vT1}, 3, v{vM16}")
    I(f"v_cmp_eq_u32 vcc, 3, v{vT1}")
    I(f"v_cndmask_b32 v{vT0}, v{vT0}, 12, vcc")
    I(f"v_lshl_add_u32 v{vT0}, v{vG}, 4, v{vT0}")
    I(f"v_lshlrev_b32 v{vT0}, 4, v{vT0}")
    I(f"v_add_u32 v{vT0}, {LDS_KVF}, v{vT0}")
    I(f"v_add_u32 v{vT1}, {LDS_KVF}, v{vL16}")
    I(f"s_lshr_b32 s{sT0}, s{sW}, 1")
    I(f"s_lshl_b32 s{sT0}, s{sT0}, 10")
    I(f"s_and_b32 s{sT1}, s{sW}, 1")
    I(f"s_lshl_b32 s{sT1}, s{sT1}, 3")
    I(f"s_add_u32 s{sT0}, s{sT0}, s{sT1}")
    I(f"v_add_u32 v{vT2}, s{sT0}, v{vT1}")
    g.mark("off")
    stamp("q done")
    init_check()
    stamp("init ok")

    def gat_issue():
        tl = []
        I(f"s_mov_b32 s{sT0}, s{sGATH}")
        for rb in range(16):
            if rb:
                I(f"s_add_u32 s{sT0}, s{sT0}, 4096")
            tl.append(I(f"buffer_load_dwordx2 {vr(GR+2*rb,2)}, v{vT8}, {srd(sWS)}, s{sT0} offen sc1"))
        return tl

    def gat_body(tl):
        for i in range(4):
            I(f"v_mov_b32 v{R+i}, 0")
        for rb in range(16):
            g.wait(tl[rb])
            for i in range(2):
                I(f"v_dot2_f32_bf16 v{R+2*i}, v{GR+2*rb+i}, v{vT3}, v{R+2*i}")
                I(f"v_dot2_f32_bf16 v{R+2*i+1}, v{GR+2*rb+i}, v{vT4}, v{R+2*i+1}")
    check_loop(gat_issue, [GR + 2 * rb for rb in range(16)], R + 6, gat_body)
    I(f"v_cvt_pk_bf16_f32 v{R+4}, v{R}, v{R+1}")
    I(f"v_cvt_pk_bf16_f32 v{R+5}, v{R+2}, v{R+3}")
    I(f"ds_write_b64 v{vT2}, {vr(R+4,2)}")
    g.mark("burst:2")
    g.wait_all(vm=False)
    stamp("gathered")
    I("s_barrier")
    for s_ in range(2):
        I(f"ds_read_b128 {vr(R+8*s_,4)}, v{vT1} offset:{s_*2048}")
        I(f"ds_read_b128 {vr(R+8*s_+4,4)}, v{vT0} offset:{s_*2048+1024}")
    g.wait_all(vm=False)
    for s_ in range(2):
        for t in range(2):
            a = vr(ACC + 4 * t, 4)
            I(f"v_mfma_f32_16x16x32_bf16 {a}, {vr(R+8*s_+4*t,4)}, {vr(PH+4*s_,4)}, {'0' if s_ == 0 else a}")
    I(f"v_add_f32 v{vT1}, {f32(1e-6)}, v{ACC+7}")
    I(f"v_rcp_f32 v{vT1}, v{vT1}")
    for i in range(7):
        I(f"v_mul_f32 v{ACC+i}, v{ACC+i}, v{vT1}")
    OS = 104
    for i in range(3):
        I(f"v_cvt_pk_bf16_f32 v{OS+i}, v{ACC+2*i}, v{ACC+2*i+1}")
    I(f"v_cvt_pk_bf16_f32 v{OS+3}, v{ACC+6}, 0")
    I(f"buffer_store_dwordx4 {vr(OS,4)}, v{vL16}, {srd(sWS)}, s{sOS} offen sc1")
    stamp("o stored")
    g.mark("on")
    return two


def woraw(i):
    return vr(216 + 4 * i, 4) if i < 8 else vr(WR + 4 * (i - 8), 4)


def phaseB(two):
    g.comment("==== phase B ====")
    OF = 216
    XR, XU, CSG = 176, 180, 188
    WOF = 112
    BACC = 72
    vB1, vB2, vB3 = 196, 197, 198
    I(f"s_mul_i32 s{sT0}, s{sMTB}, {32*896}")
    I(f"s_lshl_b32 s{sT1}, s{sNQ}, 8")
    I(f"s_add_u32 s{sT0}, s{sT0}, s{sT1}")
    I(f"s_lshl_b32 s{sT1}, s{sW}, 2")
    I(f"v_and_b32 v{vT4}, 3, v{vLANE}")
    I(f"v_add_u32 v{vT4}, s{sT1}, v{vT4}")
    I(f"v_lshrrev_b32 v{vT5}, 2, v{vLANE}")
    I(f"v_mul_u32_u24 v{vT0}, 896, v{vT4}")
    I(f"v_lshl_add_u32 v{vT0}, v{vT5}, 4, v{vT0}")
    txr = I(f"buffer_load_dwordx4 {vr(XR,4)}, v{vT0}, {srd(sX)}, s{sT0} offen")
    I(f"s_mul_i32 s{sT0}, s{sW}, 8960")
    I(f"s_add_u32 s{sT0}, s{sT0}, {LDS_BSCR}")
    I(f"v_lshrrev_b32 v{vT1}, 3, v{vLANE}")
    I(f"v_mul_u32_u24 v{vT1}, 160, v{vT1}")
    I(f"v_and_b32 v{vT2}, 7, v{vLANE}")
    I(f"v_lshl_add_u32 v{vT1}, v{vT2}, 4, v{vT1}")
    I(f"v_add_u32 v{vB3}, s{sT0}, v{vT1}")
    I(f"v_bfe_u32 v{vT1}, v{vLANE}, 2, 2")
    I(f"v_lshl_add_u32 v{vB1}, v{vG}, 2, v{vT1}")
    I(f"v_min_u32 v{vT1}, 2, v{vT1}")
    I(f"v_mad_u32_u24 v{vB2}, v{vG}, 3, v{vT1}")
    I(f"v_add_u32 v{vB2}, 16, v{vB2}")
    I(f"v_and_b32 v{vT1}, 3, v{vLANE}")
    I(f"v_lshlrev_b32 v{vT1}, 3, v{vT1}")
    I(f"v_add_u32 v{vT1}, s{sT0}, v{vT1}")
    I(f"v_mul_u32_u24 v{vB1}, 160, v{vB1}")
    I(f"v_mul_u32_u24 v{vB2}, 160, v{vB2}")
    I(f"v_add_u32 v{vB1}, v{vB1}, v{vT1}")
    I(f"v_add_u32 v{vB2}, v{vB2}, v{vT1}")
    for rnd in range(2):
        g.wait(two[7 * rnd + 6])
        t = None
        for i in range(7):
            t = I(f"ds_write_b128 v{vB3}, {woraw(7*rnd+i)} offset:{i*1280}")
        g.mark("burst:2")
        g.wait(t)
        for h2 in range(2):
            for nt in range(4):
                d = WOF + ((2 * rnd + h2) * 4 + nt) * 4
                I(f"ds_read_b64_tr_b16 {vr(d,2)}, v{vB1} offset:{h2*4480+nt*32}")
                t = I(f"ds_read_b64_tr_b16 {vr(d+2,2)}, v{vB2} offset:{h2*4480+nt*32}")
        g.wait(t)
    g.mark(f"flush:{NWDBG[0]}")
    I(f"s_mul_i32 s{sT0}, s{sW}, 8960")
    I(f"s_add_u32 s{sT0}, s{sT0}, {LDS_BSCR}")
    I(f"v_add_u32 v{vB3}, s{sT0}, v{vL16}")
    dt_pattern(vB1, vT0, vT1)
    I(f"v_add_u32 v{vB1}, s{sT0}, v{vB1}")
    I(f"v_xor_b32 v{vB2}, 64, v{vB1}")
    for (n0, n1) in ((0, 4), (4, 7)):
        g.wait(TWD[n1 - 1])
        t = None
        for n in range(n0, n1):
            for hf_ in range(2):
                t = I(f"ds_write_b128 v{vB3}, {vr(WDE+8*n+4*hf_,4)} offset:{(n-n0)*2048+hf_*1024}")
        g.mark("burst:2")
        g.wait(t)
        for n in range(n0, n1):
            for nt in range(2):
                d = WDE + 8 * n + 4 * nt
                I(f"ds_read_b64_tr_b16 {vr(d,2)}, v{vB2 if nt else vB1} offset:{(n-n0)*2048}")
                t = I(f"ds_read_b64_tr_b16 {vr(d+2,2)}, v{vB2 if nt else vB1} offset:{(n-n0)*2048+1024}")
        g.wait(t)
    g.mark("off")
    I(f"s_lshl_b32 s{sD}, s{sMTB}, 5")
    I(f"s_lshl_b32 s{sT1}, s{sW3}, 2")
    I(f"s_add_u32 s{sD}, s{sD}, s{sT1}")
    I(f"s_lshl_b32 s{sD}, s{sD}, 10")
    I(f"s_add_u32 s{sD}, s{sD}, {WS_O}")
    I(f"s_add_u32 s{sE}, s{sD}, 16384")
    I(f"s_mul_i32 s{sT0}, s{sW3}, 17408")
    I(f"s_mul_i32 s{sT1}, s{sWH}, {8*1088}")
    I(f"s_add_u32 s{sT0}, s{sT0}, s{sT1}")
    I(f"s_add_u32 s{sT0}, s{sT0}, {LDS_BSCR}")
    I(f"v_lshrrev_b32 v{vT1}, 1, v{vG}")
    I(f"v_mul_u32_u24 v{vT1}, 1088, v{vT1}")
    I(f"v_and_b32 v{vT2}, 1, v{vG}")
    I(f"v_lshl_add_u32 v{vT1}, v{vT2}, 9, v{vT1}")
    I(f"v_lshl_add_u32 v{vT1}, v{vM16}, 4, v{vT1}")
    I(f"v_add_u32 v{vB1}, s{sT0}, v{vT1}")
    I(f"v_mul_u32_u24 v{vT1}, 1088, v{vT5}")
    I(f"v_lshl_add_u32 v{vT1}, v{vT4}, 4, v{vT1}")
    I(f"v_add_u32 v{vB2}, {LDS_BSCR}, v{vT1}")
    I(f"v_cmp_gt_u32 vcc, 0x10000, v{vHSA}")
    I(f"v_cndmask_b32 v{vT3}, 0, -1, vcc")
    stats_addr(vT2, vT0, vT1)
    I(f"v_mov_b32 v{vT5}, 0x3f803f80")
    g.wait(txr)
    for i in range(4):
        I(f"v_lshlrev_b32 v{XU+2*i}, 16, v{XR+i}")
        I(f"v_and_b32 v{XU+2*i+1}, 0xffff0000, v{XR+i}")
    I("s_barrier")
    stamp("wo ready")

    def o_issue():
        tl = []
        for hh in range(4):
            for mt in range(2):
                tl.append(I(f"buffer_load_dwordx4 {vr(OF+(hh*2+mt)*4,4)}, v{vL16}, {srd(sWS)}, s{sE if mt else sD} offen offset:{hh*1024} sc1"))
        return tl

    def o_body(tl):
        for hh in range(4):
            for mt in range(2):
                g.wait(tl[hh * 2 + mt])
                for nt in range(4):
                    a = BACC + (mt * 4 + nt) * 4
                    I(f"v_mfma_f32_16x16x32_bf16 {vr(a,4)}, {vr(WOF+(hh*4+nt)*4,4)}, {vr(OF+(hh*2+mt)*4,4)}, {'0' if hh == 0 else vr(a,4)}")
    check_loop(o_issue, [OF + 4 * k for k in range(8)], vT0, o_body)
    stamp("B mfma")
    g.mark("burst:2")
    for mt in range(2):
        for nt in range(4):
            I(f"ds_write_b128 v{vB1}, {vr(BACC+(mt*4+nt)*4,4)} offset:{nt*2176+mt*256}")
    S1, S2 = 104, 105
    I(f"v_mov_b32 v{S1}, 0\nv_mov_b32 v{S2}, 0")
    g.wait_all(vm=False)
    I("s_barrier")
    b = 72
    for w in range(4):
        for q in range(2):
            I(f"ds_read_b128 {vr(b+w*8+q*4,4)}, v{vB2} offset:{w*17408+q*512}")
    g.wait_all(vm=False)
    HP = 108
    for i in range(8):
        I(f"v_add_f32 v{b+i}, v{b+i}, v{b+8+i}")
        I(f"v_add_f32 v{b+16+i}, v{b+16+i}, v{b+24+i}")
    for i in range(8):
        I(f"v_add_f32 v{b+i}, v{b+i}, v{XU+i}")
    for i in range(8):
        I(f"v_add_f32 v{b+i}, v{b+i}, v{b+16+i}")
    for i in range(4):
        I(f"v_cvt_pk_bf16_f32 v{HP+i}, v{b+2*i}, v{b+2*i+1}")
    I(f"buffer_store_dwordx4 {vr(HP,4)}, v{vHSA}, {srd(sWS)}, s{sHS} offen sc1")
    for i in range(4):
        I(f"v_dot2_f32_bf16 v{S1}, v{HP+i}, v{vT5}, v{S1}")
        I(f"v_dot2_f32_bf16 v{S2}, v{HP+i}, v{HP+i}, v{S2}")
    I(f"v_and_b32 v{S1}, v{vT3}, v{S1}")
    I(f"v_and_b32 v{S2}, v{vT3}, v{S2}")
    for ror in (4, 8):
        I(f"v_add_f32_dpp v{S1}, v{S1}, v{S1} row_ror:{ror} row_mask:0xf bank_mask:0xf")
        I(f"v_add_f32_dpp v{S2}, v{S2}, v{S2} row_ror:{ror} row_mask:0xf bank_mask:0xf")
    for lv in (16, 32):
        I(f"v_mov_b32 v106, v{S1}\nv_mov_b32 v107, v{S2}")
        I(f"v_permlane{lv}_swap_b32 v{S1}, v106")
        I(f"v_permlane{lv}_swap_b32 v{S2}, v107")
        I(f"v_add_f32 v{S1}, v{S1}, v106")
        I(f"v_add_f32 v{S2}, v{S2}, v107")
    I(f"buffer_store_dwordx2 v[{S1}:{S2}], v{vT2}, {srd(sWS)}, s{sSS} offen sc1")
    stamp("h stored")
    I("s_barrier")
    I(f"s_cmp_ge_u32 s{sJC}, 14")
    I("s_cbranch_scc1 L_end")
    tb2 = c_batch(1, 0, 24, 56, 57344 + 24576)
    I(f"s_lshl_b32 s{sT0}, s{sJC}, 14")
    I(f"s_lshl_b32 s{sT1}, s{sWH}, 13")
    I(f"s_add_u32 s{sT0}, s{sT0}, s{sT1}")
    I(f"s_add_u32 s{sT0}, s{sT0}, {WS_CS}")
    I(f"s_add_u32 s{sT1}, s{sT0}, 4096")
    I(f"v_lshlrev_b32 v{vB3}, 2, v0")
    I(f"v_and_b32 v{vB3}, 1023, v{vB3}")

    def cs_issue():
        return [I(f"buffer_load_dword v{CSG+rb}, v{vB3}, {srd(sWS)}, s{sT1 if rb >= 4 else sT0} offen offset:{(rb%4)*1024} sc1") for rb in range(8)]
    check_loop(cs_issue, [CSG + rb for rb in range(8)], vT0)
    for k in (4, 2, 1):
        for i in range(k):
            I(f"v_add_f32 v{CSG+i}, v{CSG+i}, v{CSG+k+i}")
    I(f"v_lshlrev_b32 v{vB3}, 2, v0")
    I(f"v_add_u32 v{vB3}, {LDS_KVF}, v{vB3}")
    I(f"ds_write_b32 v{vB3}, v{CSG}")


GK1 = -2.0 * math.sqrt(2.0 / math.pi) * LOG2E
GK2 = GK1 * 0.044715
LDS_X = 114688
vHB, vM, vWD = 254, 255, 253
sWDB = 80
WDE = 16
NWDE = 7
NWDC = int(os.environ.get('NWDC', '2'))


def hh_signal(stage, toks):
    g.wait(*toks)
    I("s_barrier")
    lab = g.newlabel("L_hs")
    I(f"s_cmp_lg_u32 s{sW}, 0")
    I(f"s_cbranch_scc1 {lab}")
    g.cond_begin()
    I("s_mov_b64 exec, 1")
    I(f"s_lshl_b32 s{sT0}, s{sG}, 8")
    I(f"s_add_u32 s{sT0}, s{sT0}, {WS_CNT + CNT_HH * 4096 + 64 * stage}")
    I(f"v_mov_b32 v{vCNT}, s{sT0}")
    I(f"buffer_atomic_add v{vONE}, v{vCNT}, {srd(sWS)}, 0 offen sc1")
    I("s_mov_b64 exec, -1")
    g.cond_end()
    g.label(lab)


def hh_poll(stage_sreg_or_imm):
    I("s_mov_b64 exec, 1")
    I(f"s_lshl_b32 s{sT0}, s{sGB}, 8")
    I(f"s_add_u32 s{sT0}, s{sT0}, {WS_CNT + CNT_HH * 4096}")
    I(f"s_add_u32 s{sT0}, s{sT0}, {stage_sreg_or_imm}")
    I(f"v_mov_b32 v{vCNT}, s{sT0}")
    poll(sWS, vCNT, 14)
    I("s_mov_b64 exec, -1")


def d_setup():
    I(f"v_lshrrev_b32 v{vHB}, 5, v{vLANE}")
    I(f"v_and_b32 v{vM}, 31, v{vLANE}")
    I(f"v_lshrrev_b32 v{vT0}, 3, v{vLANE}")
    I(f"v_mul_u32_u24 v{vT0}, 896, v{vT0}")
    I(f"v_and_b32 v{vT1}, 1, v{vG}")
    I(f"v_lshlrev_b32 v{vT1}, 2, v{vT1}")
    I(f"v_and_b32 v{vWD}, 7, v{vLANE}")
    I(f"v_xor_b32 v{vWD}, v{vWD}, v{vT1}")
    I(f"v_lshl_add_u32 v{vWD}, v{vWD}, 4, v{vT0}")
    I(f"s_cmp_ge_u32 s{sJB}, 7")
    I(f"s_cselect_b32 s{sRH}, 1, 0")
    I(f"s_mul_i32 s{sT0}, s{sRH}, 7")
    I(f"s_sub_u32 s{sCB}, s{sJB}, s{sT0}")
    I(f"s_lshl_b32 s{sT0}, s{sWH}, 1")
    I(f"s_add_u32 s{sT0}, s{sT0}, s{sW}")
    I(f"s_and_b32 s{sAA}, s{sT0}, 3")
    I(f"s_mul_i32 s{sKC}, s{sWH}, 56")
    I(f"s_add_u32 s{sKC}, s{sKC}, s{sAA}")
    I(f"s_mul_i32 s{sWDB}, s{sKC}, {16*896}")
    I(f"s_lshl_b32 s{sT1}, s{sCB}, 7")
    I(f"s_add_u32 s{sWDB}, s{sWDB}, s{sT1}")
    I(f"s_cmp_ge_u32 s{sJB}, 14")
    I(f"s_cselect_b32 s{sT1}, {OOB}, 0")
    I(f"s_add_u32 s{sWDB}, s{sWDB}, s{sT1}")


sRH, sCB, sAA, sKC = 64, 65, 66, 67


def kc_off(n):
    return 8 * n if n < 7 else 4 + 8 * (n - 7)


def wd_load(dst, n):
    t = None
    for hf_ in range(2):
        I(f"s_add_u32 s{sT3}, s{sWDB}, {(16*kc_off(n) + 8*hf_)*896}")
        for e in range(4):
            t = I(f"buffer_load_dword v{dst+4*hf_+e}, v{vWD}, {srd(sWD)}, s{sT3} offen offset:{e*896}")
    return t


def wd_half(dst, n, hf_):
    I(f"s_add_u32 s{sBG}, s{sWDB}, {(16*kc_off(n) + 8*hf_)*896}")
    return I(f"buffer_load_dwordx4 {vr(dst+4*hf_,4)}, v{vWD}, {srd(sWD)}, s{sBG} offen")


def dt_pattern(dst, t0, t1):
    I(f"v_bfe_u32 v{t0}, v{vLANE}, 2, 2")
    I(f"v_lshl_add_u32 v{t1}, v{vHB}, 2, v{t0}")
    I(f"v_lshlrev_b32 v{t1}, 7, v{t1}")
    I(f"v_lshrrev_b32 v{t0}, 1, v{t0}")
    I(f"v_lshl_add_u32 v{t1}, v{t0}, 6, v{t1}")
    I(f"v_and_b32 v{t0}, 1, v{vG}")
    I(f"v_lshl_add_u32 v{t1}, v{t0}, 5, v{t1}")
    I(f"v_and_b32 v{t0}, 3, v{vLANE}")
    I(f"v_lshl_add_u32 v{dst}, v{t0}, 3, v{t1}")


def c_rows(mat, dbl, r0, r1, lds_base):
    return c_batch(mat, dbl, r0, r1, lds_base)


def g1_addr(n):
    if n < 8:
        return 114688 + n * 1024
    if 24 <= n < 40:
        return 114688 + 8192 + (n - 24) * 1024
    if n < 24:
        return (n - 8) * 1024
    return 16384 + (n - 40) * 1024


def u1_addr(n):
    if n < 8:
        return 32768 + n * 1024
    if 24 <= n < 40:
        return 32768 + 8192 + (n - 24) * 1024
    if n < 24:
        return 57344 + (n - 8) * 1024
    return 57344 + 16384 + (n - 40) * 1024


TAILS = []


def phaseCD(twd_early):
    g.comment("==== phase C ====")
    sMD, sHB, sMT = sC, sHHS, sMTC
    sSE, sSO = 4, 5
    sAB = 7
    I(f"s_lshl_b32 s{sMD}, s{sGB}, 2")
    I(f"s_lshl_b32 s{sT0}, s{sRH}, 1")
    I(f"s_add_u32 s{sMD}, s{sMD}, s{sT0}")
    I(f"s_mov_b32 s{sSE}, 0x05040100")
    I(f"s_mov_b32 s{sSO}, 0x07060302")
    I(f"s_lshl_b32 s{sE}, s{sMT}, 10")
    I(f"s_add_u32 s{sE}, s{sE}, {WS_ST}")
    I(f"s_mul_i32 s{sWB}, s{sMT}, {28*1024}")
    I(f"s_mul_i32 s{sT0}, s{sWH}, {14*1024}")
    I(f"s_add_u32 s{sWB}, s{sWB}, s{sT0}")
    I(f"s_add_u32 s{sWB}, s{sWB}, {WS_H}")
    I(f"s_mul_i32 s{sAB}, s{sMD}, {112*1024}")
    I(f"s_lshl_b32 s{sT1}, s{sKC}, 10")
    I(f"s_add_u32 s{sAB}, s{sAB}, s{sT1}")
    I(f"s_add_u32 s{sAB}, s{sAB}, {WS_HH}")
    HF = 184
    ACS = [72, 88]
    RG, RU = 136, 144
    TM = 152
    WFc = 160
    vA = [176, 177, 178, 179]
    vCSA, vXW, vXR = 180, 181, 182
    K1, K2, IR2, NMU = 248, 249, 250, 251
    STR = 144
    I(f"v_bfe_u32 v{vT0}, v{vLANE}, 2, 2")
    I(f"v_lshl_add_u32 v{vT1}, v{vHB}, 3, v{vT0}")
    I(f"v_lshlrev_b32 v{vT1}, 7, v{vT1}")
    I(f"v_lshrrev_b32 v{vT0}, 1, v{vT0}")
    I(f"v_lshl_add_u32 v{vT1}, v{vT0}, 6, v{vT1}")
    I(f"v_and_b32 v{vT2}, 1, v{vG}")
    I(f"v_xor_b32 v{vT2}, s{sWH}, v{vT2}")
    I(f"v_lshl_add_u32 v{vT1}, v{vT2}, 5, v{vT1}")
    I(f"v_and_b32 v{vT2}, 3, v{vLANE}")
    I(f"v_lshl_add_u32 v{vT3}, v{vT2}, 3, v{vT1}")
    I(f"s_lshl_b32 s{sT0}, s{sWH}, 6")
    I(f"s_add_u32 s{sT0}, s{sT0}, {LDS_CS}")
    I(f"v_lshlrev_b32 v{vCSA}, 4, v{vHB}")
    I(f"v_add_u32 v{vCSA}, s{sT0}, v{vCSA}")
    I(f"s_lshl_b32 s{sT0}, s{sW}, 11")
    I(f"s_add_u32 s{sT0}, s{sT0}, {LDS_X}")
    I(f"v_add_u32 v{vXW}, s{sT0}, v{vL16}")
    I(f"v_xor_b32 v{vXR}, 8192, v{vXW}")
    assert LDS_X % 8192 == 0
    if (LDS_X // 8192) % 2 == 1:
        I(f"s_xor_b32 s{sT0}, s{sW}, 4")
        I(f"s_lshl_b32 s{sT0}, s{sT0}, 11")
        I(f"s_add_u32 s{sT0}, s{sT0}, {LDS_X}")
        I(f"v_add_u32 v{vXR}, s{sT0}, v{vL16}")
    g.wait_all(vm=False)
    I("s_barrier")
    I(f"v_lshlrev_b32 v{vT0}, 2, v0")
    I(f"v_and_b32 v{vT0}, 1023, v{vT0}")
    I(f"v_add_u32 v{vT0}, {LDS_KVF}, v{vT0}")
    t = I(f"ds_read2st64_b32 v[72:73], v{vT0} offset0:0 offset1:4")
    g.wait(t)
    I(f"v_add_f32 v72, v72, v73")
    I(f"ds_write_b32 v{vT0}, v72 offset:4096")
    flush()
    g.wait_all()
    I("s_barrier")
    stamp("C ready")
    I(f"v_lshlrev_b32 v{vT0}, 3, v{vLANE}")

    def st_issue():
        I(f"buffer_load_dwordx2 {vr(STR,2)}, v{vT0}, {srd(sWS)}, s{sE} offen sc1")
        return [I(f"buffer_load_dwordx2 {vr(STR+2,2)}, v{vT0}, {srd(sWS)}, s{sE} offen offset:512 sc1")]
    check_loop(st_issue, [STR, STR + 2], vT1)
    stamp("h flag")

    def h_issue():
        tl = []
        for c in range(14):
            if c % 4 == 0:
                I(f"s_add_u32 s{sT0}, s{sWB}, {c*1024}")
            tl.append(I(f"buffer_load_dwordx4 {vr(HF+4*c,4)}, v{vL16}, {srd(sWS)}, s{sT0} offen offset:{(c%4)*1024} sc1"))
        return tl
    ts = None
    th = h_issue()

    I(f"s_mul_i32 s{sT0}, s{sWH}, 28672")
    I(f"v_add_u32 v{vA[0]}, s{sT0}, v{vT3}")
    I(f"v_xor_b32 v{vA[1]}, 64, v{vA[0]}")
    I(f"v_add_u32 v{vA[2]}, 57344, v{vA[0]}")
    I(f"v_add_u32 v{vA[3]}, 57344, v{vA[1]}")

    def cs_init(acc, mat, p):
        I(f"ds_read_b128 {vr(acc,4)}, v{vCSA} offset:{mat*512 + 32*p*4}")
        return I(f"ds_read_b128 {vr(acc+4,4)}, v{vCSA} offset:{mat*512 + (32*p+8)*4}")

    def cs_mul(acc, t):
        for r in range(8, 16):
            I(f"v_mov_b32 v{acc+r}, 0")
        g.wait(t)
        for r in range(8):
            I(f"v_mul_f32 v{acc+r}, v{NMU}, v{acc+r}")
    g.begin()
    g.wait(ts)
    I(f"v_add_f32 v{STR}, v{STR}, v{STR+2}")
    I(f"v_add_f32 v{STR+1}, v{STR+1}, v{STR+3}")
    I(f"v_mov_b32 v{STR+2}, v{STR}\nv_mov_b32 v{STR+3}, v{STR+1}")
    I(f"v_permlane32_swap_b32 v{STR}, v{STR+2}")
    I(f"v_permlane32_swap_b32 v{STR+1}, v{STR+3}")
    I(f"v_add_f32 v{STR}, v{STR}, v{STR+2}")
    I(f"v_add_f32 v{STR+1}, v{STR+1}, v{STR+3}")
    I(f"v_mul_f32 v{NMU}, {f32(-1/448)}, v{STR}")
    I(f"v_mul_f32 v{STR+1}, {f32(1/448)}, v{STR+1}")
    I(f"v_fma_f32 v{STR+1}, -v{NMU}, v{NMU}, v{STR+1}")
    I(f"v_max_f32 v{STR+1}, 0, v{STR+1}")
    I(f"v_add_f32 v{IR2}, {f32(1e-5)}, v{STR+1}")
    I(f"v_rsq_f32 v{STR}, v{IR2}")
    I(f"v_mul_f32 v{K1}, {f32(GK1)}, v{STR}")
    I(f"v_mul_f32 v{STR+1}, v{STR}, v{STR}")
    I(f"v_mul_f32 v{STR+1}, v{STR+1}, v{STR}")
    I(f"v_mul_f32 v{K2}, {f32(GK2)}, v{STR+1}")
    stats_tail = g.end()

    vFA, vFP, vFV = 183, 182 - 182 + 15, 14
    I(f"v_mov_b32 v{vFA}, {LDS_FLG}")
    I(f"s_lshl_b32 s{sT0}, s{sW}, 2")
    I(f"s_add_u32 s{sT0}, s{sT0}, {LDS_FLG + 64}")
    I(f"v_mov_b32 v{vT4}, s{sT0}")
    I(f"s_xor_b32 s{sT0}, s{sT0}, 16")
    I(f"v_mov_b32 v{vFP}, s{sT0}")
    tails = []
    TMS = [152, 136]
    CUS = [240, 112]

    def recv_issue(dst, k, cs=True):
        if cs:
            dbl, mat, nt = (k >> 2, (k >> 1) & 1, k & 1)
            cs_init(TMS[nt] if mat == 0 else CUS[nt], mat, 2 * dbl + nt)
        I(f"ds_read_b32 v{vFV}, v{vFP}")
        I(f"ds_read_b128 {vr(dst,4)}, v{vXR} offset:{(k&1)*16384}")
        return I(f"ds_read_b128 {vr(dst+4,4)}, v{vXR} offset:{(k&1)*16384+1024}")

    def recv_check(dst, k, t):
        lr, lb = g.newlabel("L_xr"), g.newlabel("L_xb")
        g.wait(t)
        I(f"v_readfirstlane_b32 s{sT4}, v{vFV}")
        I(f"s_cmp_lt_u32 s{sT4}, {k+1}")
        I(f"s_cbranch_scc1 {lr}")
        g.label(lb)
        g.begin()
        g.label(lr)
        I(f"s_mov_b32 s{sT5}, 0")
        l2 = g.newlabel("L_xl")
        g.label(l2)
        recv_issue(dst, k, False)
        I("s_waitcnt lgkmcnt(0)")
        I(f"v_readfirstlane_b32 s{sT4}, v{vFV}")
        I(f"s_add_u32 s{sT5}, s{sT5}, 1")
        I(f"s_cmp_ge_u32 s{sT5}, {POLL_MAX*8}")
        I(f"s_cbranch_scc1 {lb}")
        I(f"s_cmp_lt_u32 s{sT4}, {k+1}")
        I(f"s_cbranch_scc1 {l2}")
        I(f"s_branch {lb}")
        tails.append(g.end())

    def cnt_add(f):
        I("s_mov_b64 exec, 1")
        I(f"ds_add_u32 v{vFA}, v{vONE} offset:{4*f}")
        I("s_mov_b64 exec, -1")

    def cnt_issue(f):
        return I(f"ds_read_b32 v{vFLAG}, v{vFA} offset:{4*f}")

    def cnt_check(f, t):
        lr, lb = g.newlabel("L_cr"), g.newlabel("L_cb")
        g.wait(t)
        I(f"v_readfirstlane_b32 s{sT4}, v{vFLAG}")
        I(f"s_cmp_lt_u32 s{sT4}, 8")
        I(f"s_cbranch_scc1 {lr}")
        g.label(lb)
        g.begin()
        g.label(lr)
        I(f"s_mov_b32 s{sT5}, 0")
        l2 = g.newlabel("L_cl")
        g.label(l2)
        cnt_issue(f)
        I("s_waitcnt lgkmcnt(0)")
        I(f"v_readfirstlane_b32 s{sT4}, v{vFLAG}")
        I(f"s_add_u32 s{sT5}, s{sT5}, 1")
        I(f"s_cmp_ge_u32 s{sT5}, {POLL_MAX*8}")
        I(f"s_cbranch_scc1 {lb}")
        I(f"s_cmp_lt_u32 s{sT4}, 8")
        I(f"s_cbranch_scc1 {l2}")
        I(f"s_branch {lb}")
        tails.append(g.end())

    def hsig_issue(f, toks):
        g.wait(*toks)
        I("s_mov_b64 exec, 1")
        t = I(f"ds_add_rtn_u32 v{vFLAG}, v{vFA}, v{vONE} offset:{4*f}")
        I("s_mov_b64 exec, -1")
        return t

    def hsig_check(stage, t):
        lab = g.newlabel("L_hs")
        g.wait(t)
        I(f"v_readfirstlane_b32 s{sT4}, v{vFLAG}")
        I(f"s_cmp_lg_u32 s{sT4}, 7")
        I(f"s_cbranch_scc1 {lab}")
        g.cond_begin()
        I("s_mov_b64 exec, 1")
        I(f"s_lshl_b32 s{sT0}, s{sG}, 8")
        I(f"s_add_u32 s{sT0}, s{sT0}, {WS_CNT + CNT_HH * 4096 + 64 * stage}")
        I(f"v_mov_b32 v{vCNT}, s{sT0}")
        I(f"buffer_atomic_add v{vONE}, v{vCNT}, {srd(sWS)}, 0 offen sc1")
        I("s_mov_b64 exec, -1")
        g.cond_end()
        g.label(lab)


    def gpart(ag, rg, tm):
        for i in range(8):
            I(f"v_add_f32 v{rg+i}, v{rg+i}, v{ag+i}")
        for i in range(8):
            I(f"v_fmac_f32 v{rg+i}, v{NMU}, v{tm+i}")
        for i in range(8):
            I(f"v_mul_f32 v{tm+i}, v{rg+i}, v{rg+i}")
        for i in range(8):
            I(f"v_fma_f32 v{tm+i}, v{tm+i}, v{K2}, v{K1}")
        for i in range(8):
            I(f"v_mul_f32 v{tm+i}, v{tm+i}, v{rg+i}")
        for i in range(8):
            I(f"v_exp_f32 v{tm+i}, v{tm+i}")
        for i in range(8):
            I(f"v_fma_f32 v{tm+i}, v{tm+i}, v{IR2}, v{IR2}")
        for i in range(8):
            I(f"v_rcp_f32 v{tm+i}, v{tm+i}")
        for i in range(8):
            I(f"v_mul_f32 v{rg+i}, v{rg+i}, v{tm+i}")

    def upart(au, rg, p):
        RU = RUS[p & 1]
        CU = CUS[p & 1]
        for i in range(8):
            I(f"v_add_f32 v{RU+i}, v{RU+i}, v{au+i}")
        for i in range(8):
            I(f"v_fmac_f32 v{RU+i}, v{NMU}, v{CU+i}")
        for i in range(8):
            I(f"v_mul_f32 v{RU+i}, v{RU+i}, v{rg+i}")
        for i in range(4):
            I(f"v_cvt_pk_bf16_f32 v{rg+i}, v{RU+2*i}, v{RU+2*i+1}")
        I(f"s_add_u32 s{sE}, s{sHB}, {p*2048}")
        return I(f"buffer_store_dwordx4 {vr(rg,4)}, v{vL16}, {srd(sWS)}, s{sE} offen sc1")

    info = lambda k: (k >> 2, (k >> 1) & 1, k & 1)
    RGS = [120, 128]
    RUS = [144, 104]
    rdst = lambda k: RGS[k & 1] if info(k)[1] == 0 else RUS[k & 1]

    def finish(k):
        dbl, mat, nt = info(k)
        if mat == 0:
            gpart(ACS[k % 2], RGS[nt], TMS[nt])
            return None
        return upart(ACS[k % 2], RGS[nt], 2 * dbl + nt)

    tst = {}
    tok = {}
    depth = int(os.environ.get('DEPTH', '3'))
    nb = depth + 1

    def rd(i):
        k, c = divmod(i, 14)
        dbl, mat, nt = info(k)
        dst = WFc + 4 * (i % nb)
        I(f"ds_read_b64_tr_b16 {vr(dst,2)}, v{vA[2*mat+nt]} offset:{c*2048}")
        tok[i] = I(f"ds_read_b64_tr_b16 {vr(dst+2,2)}, v{vA[2*mat+nt]} offset:{c*2048+512}")

    def xwrite(k):
        acc = ACS[k % 2]
        I(f"ds_write_b128 v{vXW}, {vr(acc+8,4)} offset:{(k&1)*16384}")
        I(f"ds_write_b128 v{vXW}, {vr(acc+12,4)} offset:{(k&1)*16384+1024}")
        I(f"v_mov_b32 v{vT5}, {k+1}")
        return I(f"ds_write_b32 v{vT4}, v{vT5}")

    sched = {i: [] for i in range(112)}
    load = {i: 0.0 for i in range(112)}
    BUDGET = float(os.environ.get("BUDGET", "6"))

    def cost(it):
        if it.kind != "i":
            return 0
        m = it.text.split()[0]
        if m in TRANS:
            return 2
        if m in ("v_fma_f32", "v_fmac_f32"):
            return 1.25
        if m.startswith("v_"):
            return 1
        if m.startswith("ds_write_b128"):
            return 1
        if m.startswith(("ds_", "buffer")):
            return 0.4
        return 0.1

    def cap(fn):
        g.begin()
        r = fn()
        return g.end(), r

    def at(slot, fn):
        st, r = cap(fn)
        for it in st:
            sched[slot].append(it)
            load[slot] += cost(it)
        return r

    def flow(stream, slot, deadline=111, vmstep=0, maxper=99):
        pend = []
        used = 0
        for it in stream:
            pend.append(it)
            if it.kind != "i":
                continue
            c = sum(cost(x) for x in pend)
            while slot < deadline and (load[slot] + c > BUDGET or used + c > maxper):
                slot += 1
                used = 0
            sched[slot].extend(pend)
            load[slot] += c
            used += c
            pend = []
            if vmstep and it.text.startswith("buffer_"):
                slot = min(slot + vmstep, deadline)
                used = 0
        sched[slot].extend(pend)
        return slot

    fin = {}
    RS = int(os.environ.get("RS", "11"))
    for k in range(1, 8):
        b = 14 * k
        st_, _ = cap(lambda: xwrite(k - 1))
        sched[b + 1].extend(st_[:1]); load[b + 1] += 1
        sched[b + 2].extend(st_[1:]); load[b + 2] += 2.4
        t = at(b + RS, lambda: recv_issue(rdst(k - 1), k - 1))
        at(b + RS + 2, lambda: recv_check(rdst(k - 1), k - 1, t))
        fin[k - 1], tst[k - 1] = cap(lambda: finish(k - 1))
    PRIO = int(os.environ.get("PRIO", "1"))
    if PRIO:
        for k in range(0, 112, PRIO * 7):
            def pr():
                lab = g.newlabel("L_pr")
                I(f"s_setprio 0")
                I(f"s_cmp_eq_u32 s{sWH}, {(k // (PRIO * 7)) & 1}")
                I(f"s_cbranch_scc1 {lab}")
                I(f"s_setprio 1")
                g.label(lab)
            at(k, pr)
    dm = {}
    for k in (2, 4):
        b = 14 * k
        f = 0 if k == 2 else 2
        at(b + 0, lambda: cnt_add(f))
        t = at(b + 2, lambda: cnt_issue(f))
        at(b + 3, lambda: cnt_check(f, t))
        st, tb = cap(lambda: c_batch(0 if k == 2 else 1, 1, 0, 56, 0 if k == 2 else 57344))
        for q in range(7):
            sl = [b + 3, b + 5, b + 7, b + 8, b + 10, b + 12, b + 14][q]
            for it in st[3 * q:3 * q + 3]:
                sched[sl].append(it)
                load[sl] += cost(it)
        at(b + 25 - depth, lambda: (g.wait(tb), cnt_add(f + 1)))
        t2 = at(b + 26 - depth, lambda: cnt_issue(f + 1))
        at(b + 27 - depth, lambda: cnt_check(f + 1, t2))
    late = []
    st0 = {k: 14 * (k + 1) + RS + 2 for k in range(7)}
    ea = {}
    for k in range(7):
        ea[k] = flow(fin[k][:8], st0[k], deadline=14 * (k + 2) - 1 if k < 6 else 111)
    end = {}
    for base in (0, 4):
        end[base] = flow(fin[base][8:], ea[base])
        e = flow(fin[base + 2][8:16], ea[base + 2])
        end[base + 2] = flow(fin[base + 2][16:], max(e, end[base]))
        end[base + 1] = flow(fin[base + 1][8:], ea[base + 1])
        if base == 0:
            e = flow(fin[3][8:16], ea[3])
            end[3] = flow(fin[3][16:], max(e, end[1]))
    print("ends", end)
    assert end[2] < 14 * 5 + RS and end[3] < 14 * 6 + RS and end[3] < 14 * 6 + 5
    t = at(14 * 6 + 6, lambda: hsig_issue(4, [tst[3]]))
    at(14 * 6 + 8, lambda: hsig_check(0, t))
    print("slot loads:", " ".join("%.0f" % load[i] for i in range(112)))
    g.put(stats_tail)
    sLD = sD
    I(f"s_mul_i32 s{sLD}, s{sW}, 7168")

    def wd_dma(m):
        n, hf_ = 7 + m // 2, m % 2
        return dma2(vWD, sWD, sWDB, (16 * kc_off(n) + 8 * hf_) * 896, sLD, m * 1024 if m < 7 else 57344 + (m - 7) * 1024)
    at(84, lambda: cnt_add(7))
    t_ = at(86, lambda: cnt_issue(7))
    at(87, lambda: cnt_check(7, t_))
    for m in range(7):
        at(88 + 3 * m, lambda: wd_dma(m))

    def hcheck():
        rs = [HF + 4 * c for c in range(14)]
        I(f"v_max3_u32 v{vT1}, v{rs[0]}, v{rs[1]}, v{rs[2]}")
        for q in range(3, 13, 2):
            I(f"v_max3_u32 v{vT1}, v{vT1}, v{rs[q]}, v{rs[q+1]}")
        I(f"v_max_u32 v{vT1}, v{vT1}, v{rs[13]}")
        I(f"v_cmp_eq_u32 vcc, -1, v{vT1}")
        I(f"s_cmp_lg_u64 vcc, 0")
        I(f"s_cbranch_scc1 L_hretry")
    at(13, hcheck)
    g.begin()
    g.label("L_hretry")
    I("s_waitcnt lgkmcnt(0)")
    check_loop(h_issue, [HF + 4 * c for c in range(14)], vT1)
    I(f"s_cmp_ge_u32 s{sT5}, {POLL_MAX}")
    I("s_cbranch_scc1 L_hgo")
    I("s_branch L_cstart")
    tails.append(g.end())
    at(13, lambda: g.label("L_hgo"))
    g.label("L_cstart")
    for i in range(depth):
        rd(i)
    for i in range(112):
        k, c = divmod(i, 14)
        if i + depth < 112:
            rd(i + depth)
        if k == 0:
            g.wait(th[c])
        g.wait(tok[i])
        acc = ACS[k % 2]
        I(f"v_mfma_f32_32x32x16_bf16 {vr(acc,16)}, {vr(WFc+4*(i%nb),4)}, {vr(HF+4*c,4)}, {'0' if c == 0 else vr(acc,16)}")
        for it in sched[i]:
            if it.kind == "i":
                t_ = it.text
                if "nowd" in EXP and t_.startswith("buffer_load_dword "): continue
                if "nodma" in EXP and t_.endswith(" lds"): continue
                if "novalu" in EXP and t_.startswith("v_") and not t_.startswith(("v_mov", "v_readf")): continue
                if "noxw" in EXP and t_.startswith("ds_write_b128"): continue
                if "noxr" in EXP and t_.startswith("ds_read_b128"): continue
                if "nochk" in EXP and t_.startswith(("s_cbranch_scc1 L_xr", "s_cbranch_scc1 L_cr")): continue
                if "nost" in EXP and t_.startswith("buffer_store"): continue
            g.items.append(it)
        if c == 13 and k in (1, 3, 5, 7):
            stamp(f"chain{k}")
    xwrite(7)
    I("s_setprio 0")
    for k in late:
        g.put(fin[k])
    t = recv_issue(RUS[1], 7)
    recv_check(RUS[1], 7, t)
    t7 = finish(7)
    t = hsig_issue(5, [tst[6]])
    hsig_check(1, t)
    stamp("hh stored")
    I("s_barrier")
    twl = None
    for m in range(7, 14):
        twl = wd_dma(m)
    TAILS.extend(tails)
    DACC = 120
    free = [72 + 8 * k for k in range(6)] + [240]
    ta, abuf, frag = {}, {}, {}

    def lda(c):
        b = free.pop(0)
        abuf[c] = b
        for mt in range(2):
            I(f"s_add_u32 s{sT1}, s{sAB}, {mt*112*1024 + kc_off(c)*1024}")
            ta[c, mt] = I(f"buffer_load_dwordx4 {vr(b+4*mt,4)}, v{vL16}, {srd(sWS)}, s{sT1} offen sc1")

    def mm(c, first):
        for mt in range(2):
            g.wait(ta[c, mt])
            for nt in range(2):
                a = DACC + (mt * 2 + nt) * 16
                I(f"v_mfma_f32_32x32x16_bf16 {vr(a,16)}, {vr(frag[c]+4*nt,4)}, {vr(abuf[c]+4*mt,4)}, {'0' if first else vr(a,16)}")
    for n in range(14):
        frag[n] = WDE + 8 * n if n < 7 else HF + 8 * (n - 7)
    g.cond_begin()
    hh_poll(0)
    g.cond_end()
    for c in range(7):
        lda(c)
    dt_pattern(vT0, vT1, vT2)
    I(f"v_add_u32 v{vT0}, s{sLD}, v{vT0}")
    I(f"v_xor_b32 v{vT1}, 64, v{vT0}")
    g.wait(twl)
    t = None
    for n in range(7, 14):
        for nt in range(2):
            for rd_ in range(2):
                m = 2 * (n - 7) + rd_
                off = m * 1024 if m < 7 else 57344 + (m - 7) * 1024
                t = I(f"ds_read_b64_tr_b16 {vr(frag[n]+4*nt+2*rd_,2)}, v{vT1 if nt else vT0} offset:{off}")
    for c in range(7):
        mm(c, c == 0)
        free.append(abuf[c])
    g.wait(t)
    stamp("D early")
    I("s_barrier")
    lab = g.newlabel("L_lp")
    I(f"s_cmp_ge_u32 s{sAA}, 2")
    I(f"s_cbranch_scc1 {lab}")
    g.cond_begin()
    hh_poll(64)
    g.cond_end()
    g.label(lab)
    for c in range(7, 14):
        abuf[c] = free.pop(0)

    def late_issue():
        tl = []
        for c in range(7, 14):
            for mt in range(2):
                I(f"s_add_u32 s{sT1}, s{sAB}, {mt*112*1024 + kc_off(c)*1024}")
                ta[c, mt] = I(f"buffer_load_dwordx4 {vr(abuf[c]+4*mt,4)}, v{vL16}, {srd(sWS)}, s{sT1} offen sc1")
                tl.append(ta[c, mt])
        return tl
    HR = frag[0]
    I(f"v_and_b32 v{vT0}, 7, v0")
    I(f"v_lshrrev_b32 v{vT1}, 3, v0")
    I(f"v_and_b32 v{vT2}, 31, v{vT1}")
    I(f"v_lshlrev_b32 v{vT2}, 4, v{vT2}")
    I(f"v_lshl_add_u32 v{vT2}, v{vT0}, 9, v{vT2}")
    I(f"s_add_u32 s{sE}, s{sMD}, s{sWH}")
    I(f"s_mul_i32 s{sE}, s{sE}, {28*1024}")
    I(f"s_lshl_b32 s{sT1}, s{sCB}, 12")
    I(f"s_add_u32 s{sE}, s{sE}, s{sT1}")
    I(f"s_add_u32 s{sE}, s{sE}, {WS_H}")
    thr = I(f"buffer_load_dwordx4 {vr(HR,4)}, v{vT2}, {srd(sWS)}, s{sE} offen sc1")
    I(f"s_mul_i32 s{sT0}, s{sW}, {64*272}")
    I(f"v_mul_u32_u24 v{vT3}, 272, v{vM}")
    I(f"v_lshl_add_u32 v{vT3}, v{vHB}, 4, v{vT3}")
    I(f"v_add_u32 v{vT3}, s{sT0}, v{vT3}")
    I(f"v_mul_u32_u24 v{vT4}, 272, v{vT1}")
    I(f"v_lshl_add_u32 v{vT4}, v{vT0}, 5, v{vT4}")
    I(f"v_add_u32 v{vT5}, {4*64*272}, v{vT4}")
    I(f"v_mul_u32_u24 v{vT2}, 896, v{vT1}")
    I(f"v_lshl_add_u32 v{vT2}, v{vT0}, 4, v{vT2}")
    I(f"s_mul_i32 s{sT0}, s{sMD}, {32*896}")
    I(f"s_lshl_b32 s{sT1}, s{sCB}, 7")
    I(f"s_add_u32 s{sT0}, s{sT0}, s{sT1}")
    check_loop(late_issue, [abuf[c] + 4 * mt for c in range(7, 14) for mt in range(2)], vFLAG)
    stamp("hh late")
    for c in range(7, 14):
        mm(c, False)
    stamp("D mfma")
    for mt in range(2):
        for nt in range(2):
            for q in range(4):
                I(f"ds_write_b128 v{vT3}, {vr(DACC+(mt*2+nt)*16+4*q,4)} offset:{mt*32*272 + nt*128 + q*32}")
    g.wait(thr)
    U = 88
    for i in range(4):
        I(f"v_lshlrev_b32 v{U+2*i}, 16, v{HR+i}")
        I(f"v_and_b32 v{U+2*i+1}, 0xffff0000, v{HR+i}")
    g.wait_all(vm=False)
    I("s_barrier")
    R = 16
    for w in range(8):
        for q in range(2):
            I(f"ds_read_b128 {vr(R+w*8+q*4,4)}, v{vT4 if w < 4 else vT5} offset:{(w%4)*64*272 + q*16}")
    g.wait_all(vm=False)
    for k in (32, 16, 8):
        for i in range(k):
            I(f"v_add_f32 v{R+i}, v{R+i}, v{R+k+i}")
    for i in range(8):
        I(f"v_add_f32 v{R+i}, v{R+i}, v{U+i}")
    for i in range(4):
        I(f"v_cvt_pk_bf16_f32 v{R+8+i}, v{R+2*i}, v{R+2*i+1}")
    I(f"buffer_store_dwordx4 {vr(R+8,4)}, v{vT2}, {srd(sOUT)}, s{sT0} offen")
    stamp("end")
    stamp("rt1", rt=True)


prologue()
two = phaseA()
twd = phaseB(two)
phaseCD(twd)
g.label("L_end")
I("s_endpgm")
for tl_ in TAILS:
    g.put(tl_)
g.insert_bg()
g.resolve_waits()
g.fix_hazards_fast()

hdr = open("cdna_kernels/" + NAME + ".s.ref").read().split("; Override launch geometry")[0]
out = hdr + f"""; @launch grid=(256,1,1) block=(512,1,1) lds=163840
.amdgcn_target "amdgcn-amd-amdhsa--gfx950"
.text
.globl {NAME}_kernel
.p2align 8
.type {NAME}_kernel,@function
{NAME}_kernel:
L_code_start:
{g.text()}
L_code_end:
.fill 64, 4, 0xbf800000
.section .rodata,"a"
.p2align 6
.amdhsa_kernel {NAME}_kernel
  .amdhsa_next_free_vgpr 256
  .amdhsa_next_free_sgpr 100
  .amdhsa_accum_offset 256
  .amdhsa_group_segment_fixed_size 0
  .amdhsa_kernarg_size 88
  .amdhsa_user_sgpr_count 2
  .amdhsa_user_sgpr_kernarg_segment_ptr 1
  .amdhsa_system_sgpr_workgroup_id_x 1
.end_amdhsa_kernel
"""
import subprocess, re as _re
open("_sz.s", "w").write(out.replace("CODE_LAST", "0x1000"))
subprocess.run(["clang", "-x", "assembler", "-target", "amdgcn-amd-amdhsa", "-mcpu=gfx950", "-c", "_sz.s", "-o", "_sz.o"], check=True)
_h = subprocess.run(["llvm-objdump", "-h", "_sz.o"], capture_output=True, text=True).stdout
_sz = int(_re.search(r"\.text\s+([0-9a-f]+)", _h).group(1), 16)
out = out.replace("CODE_LAST", hex(_sz - 256))
print("code bytes", _sz)
open(sys.argv[1], "w").write(out)
if STAMPS:
    open(sys.argv[1] + ".names", "w").write("\n".join(stamp_names))
print("instrs:", sum(1 for it in g.items if it.kind == "i"), "stamps:", nstamp[0])
```

```python
import sys, math, struct, os
sys.path.insert(0, "dev")
from gen import *

NAME = "sequential_preLN__linear_kernel_hedgehog__glu_gated_geglu__prompt"
STAMPS = int(sys.argv[2]) if len(sys.argv) > 2 else 0
EXP = sys.argv[3].split(",") if len(sys.argv) > 3 else []


def f32(x):
    return "0x%08x" % struct.unpack("<I", struct.pack("<f", x))[0]


WS_CNT = 0x0
WS_CS = 0x10000
WS_ST = 0x50000
WS_KVP = 0x100000
WS_O = 0x200000
WS_H = 0x400000
WS_HH = 0x600000
WS_STAMP = 0xE00000
CNT_KV, CNT_O, CNT_H, CNT_HH = 0, 1, 2, 3

sX, sWQKV, sWPHI, sWO, sWG, sWU, sWD, sOUT, sDBG, sWS = 8, 12, 16, 20, 24, 28, 32, 36, 40, 44
sG, sJ, sW = 48, 49, 50
sT0, sT1, sT2, sT3, sT4, sT5 = 51, 52, 53, 54, 55, 56
sW3, sWH = 57, 58
sA, sB, sC, sD, sE = 59, 60, 61, 62, 63
sSTAMP = 86
sGATH, sWB, sCW, sCL, sLOG = 88, 89, 90, 91, 92
sGB, sJB, sJC, sLI, sXC, sLW, sSTO = 93, 94, 95, 96, 97, 98, 99
OOB = 0x7ff00000
sBG, sWOB, sKVS, sOS, sHS, sSS, sHHS = 68, 70, 71, 72, 73, 74, 75


def srd(r):
    return f"s[{r}:{r+3}]"


def vr(a, n=1):
    return f"v{a}" if n == 1 else f"v[{a}:{a+n-1}]"


def ar(a, n=1):
    return f"a{a}" if n == 1 else f"a[{a}:{a+n-1}]"


g = Gen()
I = g.I
nstamp = [0]
stamp_names = []

vLANE, vG, vM16 = 1, 2, 3
vL16 = 4
vT0, vT1, vT2, vT3, vT4, vT5 = 5, 6, 7, 8, 9, 10
vFLAG, vONE, vCNT, vINIT, vDMY = 11, 12, 13, 14, 15


def stamp(name="", rt=False):
    if not STAMPS:
        return
    k = nstamp[0]
    nstamp[0] += 1
    stamp_names.append(name)
    g.cond_begin()
    I(f"{'s_memrealtime' if rt else 's_memtime'} s[{sSTAMP}:{sSTAMP+1}]")
    I("s_waitcnt lgkmcnt(0)")
    I(f"v_mov_b32 v{vCNT}, s{sSTAMP}")
    I(f"buffer_store_dword v{vCNT}, off, {srd(sWS)}, s{sSTO} offset:{4*k}")
    g.cond_end()


UNIT = 14336
LDS_WK = 8 * UNIT
LDS_KVF = 11 * UNIT
LDS_CS = LDS_KVF + 4096
LDS_FLG = LDS_CS + 1024
LDS_WPL = 10 * UNIT + 8192
LDS_BSCR = 6 * UNIT


def prologue():
    I("s_cmp_ge_u32 s2, 256")
    I("s_cbranch_scc1 L_end")
    I("s_load_dwordx16 s[64:79], s[0:1], 0")
    I("s_load_dwordx4 s[80:83], s[0:1], 64")
    I("s_load_dwordx2 s[84:85], s[0:1], 80")
    I("s_getpc_b64 s[4:5]")
    I(f"v_lshlrev_b32 v{vT0}, 7, v0")
    I(f"v_min_u32 v{vT0}, CODE_LAST, v{vT0}")
    I(f"global_load_dword v{vDMY}, v{vT0}, s[4:5]")
    I(f"v_and_b32 v{vLANE}, 63, v0")
    I(f"v_lshrrev_b32 v{vT0}, 6, v0")
    I(f"v_readfirstlane_b32 s{sW}, v{vT0}")
    I(f"v_lshrrev_b32 v{vG}, 4, v{vLANE}")
    I(f"v_and_b32 v{vM16}, 15, v{vLANE}")
    I(f"v_lshlrev_b32 v{vL16}, 4, v{vLANE}")
    I(f"v_mov_b32 v{vONE}, 1")
    I(f"s_and_b32 s{sXC}, s2, 7")
    I(f"s_lshr_b32 s{sLI}, s2, 3")
    I(f"s_lshr_b32 s{sT0}, s{sXC}, 1")
    I(f"s_lshl_b32 s{sT0}, s{sT0}, 2")
    I(f"s_and_b32 s{sT1}, s{sLI}, 3")
    I(f"s_add_u32 s{sG}, s{sT0}, s{sT1}")
    I(f"s_and_b32 s{sT2}, s{sXC}, 1")
    I(f"s_lshl_b32 s{sT3}, s{sT2}, 3")
    I(f"s_lshr_b32 s{sT4}, s{sLI}, 2")
    I(f"s_add_u32 s{sJ}, s{sT3}, s{sT4}")
    I(f"s_lshl_b32 s{sGB}, s{sXC}, 1")
    I(f"s_and_b32 s{sT5}, s{sLI}, 1")
    I(f"s_add_u32 s{sGB}, s{sGB}, s{sT5}")
    I(f"s_lshr_b32 s{sJB}, s{sLI}, 1")
    I(f"s_mul_i32 s{sJC}, s{sT2}, 7")
    I(f"s_add_u32 s{sJC}, s{sJC}, s{sT4}")
    I(f"s_cmp_eq_u32 s{sT4}, 7")
    I(f"s_cselect_b32 s{sJC}, 15, s{sJC}")
    I(f"s_and_b32 s{sW3}, s{sW}, 3")
    I(f"s_lshr_b32 s{sWH}, s{sW}, 2")
    I(f"s_mul_i32 s{sLW}, s{sW}, {UNIT}")
    I(f"s_lshl_b32 s{sCL}, s{sW}, 10")
    for r, n in ((sX, 1835008), (sWQKV, 1204224), (sWPHI, 25088), (sWO, 401408),
                 (sWG, 1605632), (sWU, 1605632), (sWD, 1605632), (sOUT, 1835008),
                 (sDBG, 256), (sWS, 0x10000000)):
        I(f"s_mov_b32 s{r+2}, {n}")
        I(f"s_mov_b32 s{r+3}, 0x20000")


def prologue2():
    I("s_waitcnt lgkmcnt(0)")
    for r, p in ((sX, 64), (sWQKV, 66), (sWPHI, 68), (sWO, 70), (sWG, 74), (sWU, 76), (sWD, 78), (sOUT, 80),
                 (sDBG, 82), (sWS, 84)):
        I(f"s_mov_b64 s[{r}:{r+1}], s[{p}:{p+1}]")
    if STAMPS:
        I(f"s_lshl_b32 s{sSTO}, s2, 3")
        I(f"s_add_u32 s{sSTO}, s{sSTO}, s{sW}")
        I(f"s_lshl_b32 s{sSTO}, s{sSTO}, 7")
        I(f"s_add_u32 s{sSTO}, s{sSTO}, {WS_STAMP}")
    lab = g.newlabel("L_init")
    I(f"s_lshl_b32 s{sT0}, s2, 3")
    I(f"s_add_u32 s{sT0}, s{sT0}, s{sW}")
    I(f"s_cmp_lg_u32 s{sT0}, 7")
    I(f"s_cbranch_scc1 {lab}")
    g.cond_begin()
    I(f"v_lshlrev_b32 v{vT0}, 8, v{vLANE}")
    I(f"v_mov_b32 v{vT1}, 0")
    I(f"buffer_store_dword v{vT1}, v{vT0}, {srd(sWS)}, 0 offen sc1")
    I(f"buffer_store_dword v{vT1}, v{vT0}, {srd(sWS)}, 0 offen offset:64 sc1")
    I(f"buffer_store_dword v{vT1}, v{vT0}, {srd(sWS)}, 0 offen offset:128 sc1")
    g.cond_end()
    g.label(lab)


POLL_MAX = 200000


def poll(srdreg, voff, target):
    lp, ld = g.newlabel("L_poll"), g.newlabel("L_pdone")
    I(f"s_mov_b32 s{sT5}, 0")
    g.label(lp)
    I(f"buffer_load_dword v{vFLAG}, v{voff}, {srd(srdreg)}, 0 offen sc1")
    I("s_waitcnt vmcnt(0)")
    I(f"v_readfirstlane_b32 s{sT4}, v{vFLAG}")
    I(f"s_add_u32 s{sT5}, s{sT5}, 1")
    I(f"s_cmp_ge_u32 s{sT5}, {POLL_MAX}")
    I(f"s_cbranch_scc1 {ld}")
    I(f"s_cmp_lt_u32 s{sT4}, {target}")
    I(f"s_cbranch_scc1 {lp}")
    g.label(ld)


def signal(kind, sidx, toks, first=False):
    g.wait(*toks)
    I("s_barrier")
    lab = g.newlabel("L_sig")
    I(f"s_cmp_lg_u32 s{sW}, 0")
    I(f"s_cbranch_scc1 {lab}")
    g.cond_begin()
    I("s_mov_b64 exec, 1")
    if first:
        l2 = g.newlabel("L_ini")
        I(f"v_readfirstlane_b32 s{sT4}, v{vINIT}")
        I(f"s_cmp_lg_u32 s{sT4}, 0")
        I(f"s_cbranch_scc1 {l2}")
        I(f"v_mov_b32 v{vCNT}, 0")
        poll(sDBG, vCNT, 1)
        g.label(l2)
    I(f"s_lshl_b32 s{sT0}, s{sidx}, 8")
    I(f"s_add_u32 s{sT0}, s{sT0}, {WS_CNT + kind * 4096}")
    I(f"v_mov_b32 v{vCNT}, s{sT0}")
    I(f"buffer_atomic_add v{vONE}, v{vCNT}, {srd(sWS)}, 0 offen sc1")
    I("s_mov_b64 exec, -1")
    g.cond_end()
    g.label(lab)


def waitflag(kind, sidx, target=16):
    lab = g.newlabel("L_w")
    I(f"s_cmp_lg_u32 s{sW}, 0")
    I(f"s_cbranch_scc1 {lab}")
    g.cond_begin()
    I("s_mov_b64 exec, 1")
    I(f"s_lshl_b32 s{sT0}, s{sidx}, 8")
    I(f"s_add_u32 s{sT0}, s{sT0}, {WS_CNT + kind * 4096}")
    I(f"v_mov_b32 v{vCNT}, s{sT0}")
    poll(sWS, vCNT, target)
    I("s_mov_b64 exec, -1")
    g.cond_end()
    g.label(lab)
    I("s_barrier")


def dma2(vaddr, srdreg, sbase, src_imm, lds_sreg, lds_imm, stmp=None):
    stmp = sT1 if stmp is None else stmp
    I(f"s_add_u32 m0, s{lds_sreg}, {lds_imm}")
    I(f"s_add_u32 s{stmp}, s{sbase}, {src_imm}")
    return I(f"buffer_load_dwordx4 v{vaddr}, {srd(srdreg)}, s{stmp} offen lds")


def xreduce(op, a, t, levels=(16, 32)):
    for lv in levels:
        I(f"v_mov_b32 v{t}, v{a}")
        I(f"v_permlane{lv}_swap_b32 v{a}, v{t}")
        I(f"{op} v{a}, v{a}, v{t}")


LOG2E = 1.4426950408889634

XF = 16
WR = 72
WPHI = 100
WPH2 = 108
SEL = 116
ACC = 124
ACCV = 132
WF = 140
TMP = 172
PH = 196
vXA0, vXA1, vWA, vTR, vXR0, vXR1, vCA = 204, 205, 206, 207, 208, 209, 252
vTRb, vTRc, vWOA = 211, 212, 213


def chain16(acc, rd, swap=False, depth=3, hook=None):
    toks = {}
    nb = depth + 1
    n = 14
    for c in range(depth):
        toks[c] = rd(c, WF + 8 * (c % nb))
    for c in range(n):
        if c + depth < n:
            toks[c + depth] = rd(c + depth, WF + 8 * ((c + depth) % nb))
        g.wait(toks[c])
        X = vr(XF + 4 * c, 4)
        for t in range(2):
            W = vr(WF + 8 * (c % nb) + 4 * t, 4)
            a = vr(acc + 4 * t, 4)
            C = a if c > 0 else "0"
            if swap:
                I(f"v_mfma_f32_16x16x32_bf16 {a}, {X}, {W}, {C}")
            else:
                I(f"v_mfma_f32_16x16x32_bf16 {a}, {W}, {X}, {C}")
        if hook is not None:
            hook(c)


def featmap(acc, out):
    pk = TMP
    p = acc
    e = TMP + 4
    mx, mn, t0, t1 = TMP + 12, TMP + 13, TMP + 14, TMP + 15
    for i in range(4):
        I(f"v_cvt_pk_bf16_f32 v{pk+i}, v{acc+2*i}, v{acc+2*i+1}")
    I(f"v_mfma_f32_16x16x32_bf16 {vr(p,4)}, {vr(WPHI,4)}, {vr(pk,4)}, 0")
    I(f"v_mfma_f32_16x16x32_bf16 {vr(p+4,4)}, {vr(WPHI+4,4)}, {vr(pk,4)}, 0")
    I(f"v_max3_f32 v{mx}, v{p}, v{p+1}, v{p+2}")
    I(f"v_min3_f32 v{mn}, v{p}, v{p+1}, v{p+2}")
    for i in (3, 5):
        I(f"v_max3_f32 v{mx}, v{mx}, v{p+i}, v{p+i+1}")
        I(f"v_min3_f32 v{mn}, v{mn}, v{p+i}, v{p+i+1}")
    for lv in (16, 32):
        I(f"v_mov_b32 v{t0}, v{mx}")
        I(f"v_mov_b32 v{t1}, v{mn}")
        I(f"v_permlane{lv}_swap_b32 v{mx}, v{t0}")
        I(f"v_permlane{lv}_swap_b32 v{mn}, v{t1}")
        I(f"v_max_f32 v{mx}, v{mx}, v{t0}")
        I(f"v_min_f32 v{mn}, v{mn}, v{t1}")
    I(f"v_mul_f32 v{mx}, {f32(-LOG2E)}, v{mx}")
    I(f"v_mul_f32 v{mn}, {f32(LOG2E)}, v{mn}")
    e2 = TMP + 16
    for i in range(7):
        I(f"v_fma_f32 v{e+i}, v{p+i}, s{sLOG}, v{mx}")
        I(f"v_fma_f32 v{e2+i}, -v{p+i}, s{sLOG}, v{mn}")
    for i in range(7):
        I(f"v_exp_f32 v{e+i}, v{e+i}")
        I(f"v_exp_f32 v{e2+i}, v{e2+i}")
    I(f"v_add_f32 v{mx}, v{e}, v{e+1}")
    I(f"v_add_f32 v{mn}, v{e2}, v{e2+1}")
    for i in range(2, 7):
        I(f"v_add_f32 v{mx}, v{mx}, v{e+i}")
        I(f"v_add_f32 v{mn}, v{mn}, v{e2+i}")
    for lv in (16, 32):
        I(f"v_mov_b32 v{t0}, v{mx}")
        I(f"v_mov_b32 v{t1}, v{mn}")
        I(f"v_permlane{lv}_swap_b32 v{mx}, v{t0}")
        I(f"v_permlane{lv}_swap_b32 v{mn}, v{t1}")
        I(f"v_add_f32 v{mx}, v{mx}, v{t0}")
        I(f"v_add_f32 v{mn}, v{mn}, v{t1}")
    I(f"v_rcp_f32 v{mx}, v{mx}")
    I(f"v_rcp_f32 v{mn}, v{mn}")
    for i in range(7):
        I(f"v_mul_f32 v{e+i}, v{e+i}, v{mx}")
        I(f"v_mul_f32 v{e2+i}, v{e2+i}, v{mn}")
    for i in range(3):
        I(f"v_cvt_pk_bf16_f32 v{out+i}, v{e+2*i}, v{e+2*i+1}")
        I(f"v_cvt_pk_bf16_f32 v{out+4+i}, v{e2+2*i}, v{e2+2*i+1}")
    I(f"v_cvt_pk_bf16_f32 v{out+3}, v{e+6}, 0")
    I(f"v_cvt_pk_bf16_f32 v{out+7}, v{e2+6}, 0")


def c_batch(mat, dbl, n0, n1, lds_base):
    t = None
    assert n0 % 8 == 0 and n1 % 8 == 0
    for i in range(n0 // 8, n1 // 8):
        t = dma2(vCA, sWG if mat == 0 else sWU, sCW, i * 8 * 8 * 3584 + dbl * 128, sCL, lds_base + (i * 8 - n0) * 1024)
    return t


def c_bg(mat, dbl, n0, n1, lds_base, after, gap=150):
    t = None
    for i in range(n0 // 8, n1 // 8):
        g.begin()
        t = dma2(vCA, sWG if mat == 0 else sWU, sCW, i * 8 * 8 * 3584 + dbl * 128, sCL, lds_base + (i * 8 - n0) * 1024, stmp=sBG)
        g.bg_add(g.end(), after, gap)
        NBG[0] += 1
    return t


NBG = [0]
TWD = {}
NWDBG = [0]


def bg(fn, after=None, gap=150):
    g.begin()
    r = fn()
    g.bg_add(g.end(), after, gap)
    NBG[0] += 1
    return r


def flush():
    g.mark(f"flush:{NBG[0]}")


def check_loop(issue, regs, tmp, body=None):
    lp, ld = g.newlabel("L_dp"), g.newlabel("L_dpd")
    I(f"s_mov_b32 s{sT5}, 0")
    g.label(lp)
    toks = issue()
    if body is not None:
        body(toks)
    g.wait(toks[-1])
    rs = list(regs)
    if len(rs) == 1:
        I(f"v_cmp_eq_u32 vcc, -1, v{rs[0]}")
    else:
        first = True
        acc = None
        while rs:
            if acc is None:
                if len(rs) >= 3:
                    I(f"v_max3_u32 v{tmp}, v{rs[0]}, v{rs[1]}, v{rs[2]}")
                    rs = rs[3:]
                else:
                    I(f"v_max_u32 v{tmp}, v{rs[0]}, v{rs[1]}")
                    rs = rs[2:]
                acc = tmp
            elif len(rs) >= 2:
                I(f"v_max3_u32 v{tmp}, v{tmp}, v{rs[0]}, v{rs[1]}")
                rs = rs[2:]
            else:
                I(f"v_max_u32 v{tmp}, v{tmp}, v{rs[0]}")
                rs = rs[1:]
        I(f"v_cmp_eq_u32 vcc, -1, v{tmp}")
    I(f"s_add_u32 s{sT5}, s{sT5}, 1")
    I(f"s_cmp_ge_u32 s{sT5}, {POLL_MAX}")
    I(f"s_cbranch_scc1 {ld}")
    I(f"s_cmp_lg_u64 vcc, 0")
    I(f"s_cbranch_scc1 {lp}")
    g.label(ld)


def sent_check(regs, tmp):
    rs = list(regs)
    acc = None
    while rs:
        if acc is None:
            if len(rs) >= 3:
                I(f"v_max3_u32 v{tmp}, v{rs[0]}, v{rs[1]}, v{rs[2]}")
                rs = rs[3:]
            else:
                I(f"v_max_u32 v{tmp}, v{rs[0]}, v{rs[1]}")
                rs = rs[2:]
            acc = tmp
        elif len(rs) >= 2:
            I(f"v_max3_u32 v{tmp}, v{tmp}, v{rs[0]}, v{rs[1]}")
            rs = rs[2:]
        else:
            I(f"v_max_u32 v{tmp}, v{tmp}, v{rs[0]}")
            rs = rs[1:]
    I(f"v_cmp_eq_u32 vcc, -1, v{tmp}")


TAILS = []


def spec_load(issue, regs, tmp, body=None, filler=None):
    lr, lb = g.newlabel("L_sr"), g.newlabel("L_sb")
    toks = issue()
    if filler is not None:
        filler()
    if body is not None:
        body(toks)
    g.wait(toks[-1])
    sent_check(regs, tmp)
    I(f"s_cmp_lg_u64 vcc, 0")
    I(f"s_cbranch_scc1 {lr}")
    g.label(lb)
    g.begin()
    g.label(lr)
    check_loop(issue, regs, tmp, body)
    I(f"s_branch {lb}")
    TAILS.append(g.end())


def c_setup():
    I(f"v_lshrrev_b32 v{vT0}, 3, v{vLANE}")
    I(f"v_mul_u32_u24 v{vT1}, 3584, v{vT0}")
    I(f"v_and_b32 v{vT2}, 1, v{vG}")
    I(f"v_lshlrev_b32 v{vT2}, 2, v{vT2}")
    I(f"v_and_b32 v{vCA}, 7, v{vLANE}")
    I(f"v_xor_b32 v{vCA}, v{vCA}, v{vT2}")
    I(f"v_lshl_add_u32 v{vCA}, v{vCA}, 4, v{vT1}")
    I(f"s_cmp_ge_u32 s{sJC}, 14")
    I(f"s_cselect_b32 s{sT0}, {OOB}, 0")
    I(f"v_add_u32 v{vCA}, s{sT0}, v{vCA}")
    I(f"s_mul_i32 s{sCW}, s{sW}, {8*3584}")
    I(f"s_lshl_b32 s{sT0}, s{sJC}, 8")
    I(f"s_add_u32 s{sCW}, s{sCW}, s{sT0}")


def touch1():
    I(f"s_mul_i32 s{sT0}, s{sLI}, {98*128}")
    I(f"s_mul_i32 s{sT1}, s{sW}, {13*128}")
    I(f"s_add_u32 s{sT0}, s{sT0}, s{sT1}")
    I(f"v_lshlrev_b32 v{vT0}, 7, v{vLANE}")
    I(f"v_mov_b32 v{vT2}, {OOB}")
    I(f"v_cmp_gt_u32 vcc, 13, v{vLANE}")
    I(f"v_cndmask_b32 v{vT0}, v{vT2}, v{vT0}, vcc")
    I(f"buffer_load_dword v{vDMY}, v{vT0}, {srd(sWO)}, s{sT0} offen")
    I(f"s_lshr_b32 s{sT0}, s{sW}, 1")
    I(f"s_lshl_b32 s{sT2}, s{sT0}, 2")
    I(f"s_mul_i32 s{sT0}, s{sT0}, {4*3584}")
    I(f"s_mul_i32 s{sT1}, s{sLI}, {14*3584}")
    I(f"s_add_u32 s{sT0}, s{sT0}, s{sT1}")
    I(f"s_and_b32 s{sT1}, s{sXC}, 1")
    I(f"s_mul_i32 s{sT1}, s{sT1}, 1792")
    I(f"s_add_u32 s{sT0}, s{sT0}, s{sT1}")
    I(f"v_mul_u32_u24 v{vT0}, 3584, v{vG}")
    I(f"v_lshl_add_u32 v{vT0}, v{vM16}, 7, v{vT0}")
    I(f"v_cmp_gt_u32 vcc, 14, v{vM16}")
    I(f"v_cndmask_b32 v{vT0}, v{vT2}, v{vT0}, vcc")
    I(f"v_add_u32 v{vT1}, s{sT2}, v{vG}")
    I(f"v_cmp_gt_u32 vcc, 14, v{vT1}")
    I(f"v_cndmask_b32 v{vT0}, v{vT2}, v{vT0}, vcc")
    I(f"buffer_load_dword v{vDMY}, v{vT0}, s[4:7], s{sT0} offen")


def touch2():
    I(f"s_mul_i32 s{sT2}, s{sLI}, {392*128}")
    I(f"s_mul_i32 s{sT1}, s{sW}, {49*128}")
    I(f"s_add_u32 s{sT2}, s{sT2}, s{sT1}")
    I(f"v_lshlrev_b32 v{vT1}, 7, v{vLANE}")
    I(f"v_mov_b32 v{vT2}, {OOB}")
    I(f"v_cmp_gt_u32 vcc, 49, v{vLANE}")
    I(f"v_cndmask_b32 v{vT1}, v{vT2}, v{vT1}, vcc")
    I(f"buffer_load_dword v{vT0}, v{vT1}, {srd(sWD)}, s{sT2} offen")


sNQ, sMTB, sCSS, sMTC = 76, 77, 78, 79
vT8, vCSS, vHSA, vSSA = 210, 214, 215, 199 + 0


def addr_setup():
    I(f"s_lshl_b32 s{sGATH}, s{sJ}, 16")
    I(f"s_add_u32 s{sGATH}, s{sGATH}, {WS_KVP}")
    I(f"s_lshl_b32 s{sKVS}, s{sG}, 12")
    I(f"s_add_u32 s{sKVS}, s{sKVS}, s{sGATH}")
    I(f"s_lshl_b32 s{sOS}, s{sA}, 4")
    I(f"s_add_u32 s{sOS}, s{sOS}, s{sJ}")
    I(f"s_lshl_b32 s{sOS}, s{sOS}, 10")
    I(f"s_add_u32 s{sOS}, s{sOS}, {WS_O}")
    I(f"s_lshl_b32 s{sCSS}, s{sJC}, 4")
    I(f"s_add_u32 s{sCSS}, s{sCSS}, s{sG}")
    I(f"s_lshl_b32 s{sCSS}, s{sCSS}, 10")
    I(f"s_add_u32 s{sCSS}, s{sCSS}, {WS_CS}")
    I(f"s_and_b32 s{sNQ}, s{sJB}, 3")
    I(f"s_lshr_b32 s{sMTB}, s{sJB}, 2")
    I(f"s_lshl_b32 s{sT0}, s{sGB}, 2")
    I(f"s_add_u32 s{sMTB}, s{sMTB}, s{sT0}")
    I(f"s_mul_i32 s{sHS}, s{sMTB}, 28")
    I(f"s_lshl_b32 s{sT1}, s{sNQ}, 3")
    I(f"s_add_u32 s{sHS}, s{sHS}, s{sT1}")
    I(f"s_lshl_b32 s{sHS}, s{sHS}, 10")
    I(f"s_add_u32 s{sHS}, s{sHS}, {WS_H}")
    I(f"s_lshl_b32 s{sSS}, s{sMTB}, 2")
    I(f"s_add_u32 s{sSS}, s{sSS}, s{sNQ}")
    I(f"s_lshl_b32 s{sSS}, s{sSS}, 8")
    I(f"s_add_u32 s{sSS}, s{sSS}, {WS_ST}")
    I(f"s_lshl_b32 s{sMTC}, s{sG}, 2")
    I(f"s_add_u32 s{sMTC}, s{sMTC}, s{sW3}")
    I(f"s_mul_i32 s{sHHS}, s{sMTC}, {112*1024}")
    I(f"s_lshl_b32 s{sT0}, s{sJC}, 13")
    I(f"s_add_u32 s{sHHS}, s{sHHS}, s{sT0}")
    I(f"s_lshl_b32 s{sT0}, s{sWH}, 11")
    I(f"s_add_u32 s{sHHS}, s{sHHS}, s{sT0}")
    I(f"s_add_u32 s{sHHS}, s{sHHS}, {WS_HH}")
    I(f"s_cmp_ge_u32 s{sJC}, 14")
    I(f"s_cselect_b32 s{sT0}, {OOB}, 0")
    I(f"s_add_u32 s{sHHS}, s{sHHS}, s{sT0}")
    I(f"v_lshlrev_b32 v{vT8}, 3, v0")
    I(f"s_cmp_ge_u32 s{sW}, 4")
    I(f"s_cselect_b32 s{sT0}, {OOB}, 0")
    I(f"v_lshlrev_b32 v{vCSS}, 2, v0")
    I(f"v_add_u32 v{vCSS}, s{sT0}, v{vCSS}")
    I(f"s_lshl_b32 s{sT1}, s{sW}, 2")
    I(f"v_and_b32 v{vT0}, 3, v{vLANE}")
    I(f"v_add_u32 v{vT0}, s{sT1}, v{vT0}")
    I(f"v_lshrrev_b32 v{vT1}, 2, v{vLANE}")
    I(f"v_lshlrev_b32 v{vHSA}, 9, v{vT1}")
    I(f"v_lshl_add_u32 v{vHSA}, v{vT0}, 4, v{vHSA}")
    I(f"s_cmp_eq_u32 s{sNQ}, 3")
    I(f"s_cselect_b32 s{sT1}, 8, 16")
    I(f"v_cmp_gt_u32 vcc, s{sT1}, v{vT1}")
    I(f"v_mov_b32 v{vT1}, {OOB}")
    I(f"v_cndmask_b32 v{vHSA}, v{vT1}, v{vHSA}, vcc")


def stats_addr(dst, t0, t1):
    I(f"s_lshl_b32 s{sBG}, s{sW}, 5")
    I(f"v_lshlrev_b32 v{t0}, 3, v{vLANE}")
    I(f"v_add_u32 v{t0}, s{sBG}, v{t0}")
    I(f"v_mov_b32 v{t1}, {OOB}")
    I(f"v_cmp_gt_u32 vcc, 4, v{vLANE}")
    I(f"v_cndmask_b32 v{dst}, v{t1}, v{t0}, vcc")


def sentinels0():
    SN = 216
    for i in range(4):
        I(f"v_mov_b32 v{SN+i}, -1")
    I(f"buffer_store_dwordx2 {vr(SN,2)}, v{vT8}, {srd(sWS)}, s{sKVS} offen sc1")
    I(f"buffer_store_dwordx4 {vr(SN,4)}, v{vL16}, {srd(sWS)}, s{sOS} offen sc1")


def sentinels():
    SN = 216
    I(f"buffer_store_dword v{SN}, v{vCSS}, {srd(sWS)}, s{sCSS} offen sc1")
    I(f"buffer_store_dwordx4 {vr(SN,4)}, v{vHSA}, {srd(sWS)}, s{sHS} offen sc1")
    stats_addr(SN + 4, SN + 4, SN + 5)
    I(f"buffer_store_dwordx2 {vr(SN,2)}, v{SN+4}, {srd(sWS)}, s{sSS} offen sc1")
    I(f"s_add_u32 s{sBG}, s{sHHS}, 4096")
    I(f"buffer_store_dwordx4 {vr(SN,4)}, v{vL16}, {srd(sWS)}, s{sBG} offen sc1")
    return I(f"buffer_store_dwordx4 {vr(SN,4)}, v{vL16}, {srd(sWS)}, s{sBG} offen offset:1024 sc1")


def init_signal():
    lab = g.newlabel("L_is")
    I(f"s_cmp_lg_u32 s{sW}, 5")
    I(f"s_cbranch_scc1 {lab}")
    g.cond_begin()
    I("s_mov_b64 exec, 1")
    I(f"s_and_b32 s{sT0}, s2, 15")
    I(f"s_lshl_b32 s{sT0}, s{sT0}, 4")
    I(f"v_mov_b32 v{vCNT}, s{sT0}")
    I(f"buffer_atomic_add v{vONE}, v{vCNT}, {srd(sDBG)}, 0 offen sc1")
    I("s_mov_b64 exec, -1")
    g.cond_end()
    g.label(lab)


def init_check():
    lp, ld = g.newlabel("L_ic"), g.newlabel("L_icd")
    I(f"v_lshlrev_b32 v{vCNT}, 4, v{vM16}")
    I(f"s_mov_b32 s{sT5}, 0")
    g.label(lp)
    I("s_sleep 16")
    t = I(f"buffer_load_dword v{vINIT}, v{vCNT}, {srd(sDBG)}, 0 offen sc1")
    g.wait(t)
    I(f"v_cmp_gt_u32 vcc, 16, v{vINIT}")
    I(f"s_add_u32 s{sT5}, s{sT5}, 1")
    I(f"s_cmp_ge_u32 s{sT5}, {POLL_MAX}")
    I(f"s_cbranch_scc1 {ld}")
    I(f"s_cmp_lg_u64 vcc, 0")
    I(f"s_cbranch_scc1 {lp}")
    g.label(ld)


def phaseA():
    g.comment("==== phase A ====")
    I(f"v_lshrrev_b32 v{vT0}, 3, v{vLANE}")
    I(f"v_mul_u32_u24 v{vT0}, 896, v{vT0}")
    I(f"v_and_b32 v{vT1}, 7, v{vLANE}")
    I(f"v_xor_b32 v{vT3}, v{vT1}, v{vG}")
    I(f"v_lshl_add_u32 v{vXA0}, v{vT3}, 4, v{vT0}")
    I(f"v_xor_b32 v{vT3}, 4, v{vT3}")
    I(f"v_lshl_add_u32 v{vXA1}, v{vT3}, 4, v{vT0}")
    I(f"v_lshrrev_b32 v{vT0}, 2, v{vLANE}")
    I(f"v_mul_u32_u24 v{vT0}, 2688, v{vT0}")
    I(f"v_and_b32 v{vT1}, 3, v{vLANE}")
    I(f"v_and_b32 v{vT2}, 2, v{vG}")
    I(f"v_xor_b32 v{vT1}, v{vT1}, v{vT2}")
    I(f"v_lshl_add_u32 v{vWA}, v{vT1}, 4, v{vT0}")
    I(f"s_lshl_b32 s{sA}, s{sG}, 3")
    I(f"s_add_u32 s{sA}, s{sA}, s{sW}")
    I(f"s_mul_i32 s{sB}, s{sA}, {16*896}")
    I(f"s_add_u32 s{sC}, s{sB}, {8*896}")
    I(f"s_mul_i32 s{sWB}, s{sJ}, 56")
    I(f"s_and_b32 s{sT1}, s{sJ}, 1")
    I(f"s_lshl_b32 s{sT1}, s{sT1}, 3")
    I(f"s_sub_u32 s{sWB}, s{sWB}, s{sT1}")
    I(f"s_mul_i32 s{sD}, s{sW}, {16*2688}")
    I(f"s_add_u32 s{sD}, s{sD}, s{sWB}")
    I(f"s_mov_b32 s{sLOG}, {f32(LOG2E)}")
    prologue2()
    addr_setup()
    stamp("rt0", rt=True)
    stamp("start")
    tx = {}
    for seg in range(7):
        for o in range(2):
            I(f"s_add_u32 m0, s{sLW}, {(o*7+seg)*1024 - seg*128}")
            tx[seg] = I(f"buffer_load_dwordx4 v{vXA1 if o else vXA0}, {srd(sX)}, s{sC if o else sB} offen offset:{seg*128} lds")
    I("s_barrier")
    bgl = []
    bt = {}

    def bg_add(name, fn):
        bgl.append((name, fn))

    def bgq(n=1):
        for _ in range(n):
            if bgl:
                name, fn = bgl.pop(0)
                bt[name] = fn()
    for i in range(3):
        bg_add(f"wk{i}", lambda i=i: dma2(vWA, sWQKV, sD, 896 + i * 8 * 16 * 2688, sCL, LDS_WK + i * 8192))

    def wk3():
        I(f"s_cmp_ge_u32 s{sW}, 4")
        I(f"s_cselect_b32 s{sT0}, {OOB}, 0")
        I(f"s_add_u32 s{sT0}, s{sT0}, s{sD}")
        dma2(vWA, sWQKV, sT0, 896 + 3 * 8 * 16 * 2688, sCL, LDS_WK + 3 * 8192)
        I(f"v_lshlrev_b32 v{vT0}, 4, v0")
        I(f"v_mov_b32 v{vT1}, {OOB}")
        I(f"v_cmp_gt_u32 vcc, 98, v0")
        I(f"v_cndmask_b32 v{vT0}, v{vT1}, v{vT0}, vcc")
        I(f"s_min_u32 s{sT0}, s{sCL}, 2048")
        I(f"s_add_u32 m0, s{sT0}, {LDS_WPL}")
        I(f"s_mul_i32 s{sT0}, s{sJ}, 1568")
        return I(f"buffer_load_dwordx4 v{vT0}, {srd(sWPHI)}, s{sT0} offen lds")
    bg_add("wk3", wk3)
    sentinels0()
    bgq(2)
    I(f"s_cmp_ge_u32 s{sW}, 4")
    I(f"s_cselect_b32 s{sE}, {(24-4)*16*2688}, {1792 + 24*16*2688}" if False else f"s_mov_b32 s{sE}, {1792 + 24*16*2688}")
    I(f"s_cmov_b32 s{sE}, {20*16*2688}")
    I(f"s_add_u32 s{sE}, s{sE}, s{sD}")

    def rawW(i):
        if i == 3:
            return I(f"buffer_load_dwordx4 {vr(WR+12,4)}, v{vWA}, {srd(sWQKV)}, s{sE} offen")
        off = 1792 + i * 8 * 16 * 2688 if i < 3 else (i - 4) * 8 * 16 * 2688
        I(f"s_add_u32 s{sT1}, s{sD}, {off}")
        return I(f"buffer_load_dwordx4 {vr(WR+4*i,4)}, v{vWA}, {srd(sWQKV)}, s{sT1} offen")
    for i in range(4):
        bg_add(f"w{i}", lambda i=i: rawW(i))
    I(f"v_lshrrev_b32 v{vT0}, 3, v{vM16}")
    I(f"v_mul_u32_u24 v{vT0}, 7168, v{vT0}")
    I(f"v_add_u32 v{vT0}, s{sLW}, v{vT0}")
    I(f"v_and_b32 v{vT1}, 7, v{vM16}")
    I(f"v_lshl_add_u32 v{vT0}, v{vT1}, 7, v{vT0}")
    I(f"v_lshrrev_b32 v{vT1}, 1, v{vM16}")
    I(f"v_xor_b32 v{vT1}, v{vT1}, v{vG}")
    I(f"v_lshl_add_u32 v{vXR0}, v{vT1}, 4, v{vT0}")
    I(f"v_xor_b32 v{vXR1}, 64, v{vXR0}")
    I(f"v_bfe_u32 v{vT0}, v{vLANE}, 2, 2")
    I(f"v_lshl_add_u32 v{vT0}, v{vG}, 3, v{vT0}")
    I(f"v_lshlrev_b32 v{vT0}, 6, v{vT0}")
    I(f"v_and_b32 v{vT1}, 3, v{vLANE}")
    I(f"s_and_b32 s{sT1}, s{sJ}, 1")
    I(f"v_add_u32 v{vT1}, s{sT1}, v{vT1}")
    I(f"v_and_b32 v{vT2}, 1, v{vG}")
    I(f"v_lshlrev_b32 v{vT2}, 2, v{vT2}")
    I(f"v_xor_b32 v{vT1}, v{vT1}, v{vT2}")
    I(f"v_lshl_add_u32 v{vTR}, v{vT1}, 3, v{vT0}")
    I(f"v_lshrrev_b32 v{vT0}, 2, v{vM16}")
    I(f"v_and_b32 v{vT1}, 3, v{vM16}")
    I(f"v_cmp_eq_u32 vcc, v{vT0}, v{vG}")
    I(f"v_cndmask_b32 v{vT1}, 7, v{vT1}, vcc")
    I(f"v_mov_b32 v{vT3}, 0x3f80")
    I(f"v_mov_b32 v{vT4}, 0x3f800000")
    for i in range(2):
        I(f"v_cmp_eq_u32 vcc, {2*i}, v{vT1}")
        I(f"v_cndmask_b32 v{vT2}, 0, v{vT3}, vcc")
        I(f"v_cmp_eq_u32 vcc, {2*i+1}, v{vT1}")
        I(f"v_cndmask_b32 v{SEL+i}, v{vT2}, v{vT4}, vcc")
        I(f"v_mov_b32 v{SEL+6+i}, v{SEL+i}")
    for i in (2, 3, 4, 5):
        I(f"v_mov_b32 v{SEL+i}, 0")
    S1, S2 = ACC, ACC + 4
    for i in range(8):
        I(f"v_mov_b32 v{ACC+i}, 0")
    I(f"v_mov_b32 v{vT5}, 0x3f803f80")
    I(f"v_lshlrev_b32 v{vT0}, 2, v{vLANE}")
    I(f"v_add_u32 v{vT0}, {LDS_FLG}, v{vT0}")
    I(f"ds_write_b32 v{vT0}, v{ACC}")
    tw = {}
    for seg in range(7):
        g.wait(tx[seg])
        I(f"ds_read_b128 {vr(XF+8*seg,4)}, v{vXR0} offset:{seg*1024}")
        t = I(f"ds_read_b128 {vr(XF+8*seg+4,4)}, v{vXR1} offset:{seg*1024}")
        if seg in (1, 3, 5):
            bgq()
        g.wait(t)
        for k in range(8):
            r = XF + 8 * seg + k
            I(f"v_dot2_f32_bf16 v{S1+k%4}, v{r}, v{vT5}, v{S1+k%4}")
            I(f"v_dot2_f32_bf16 v{S2+k%4}, v{r}, v{r}, v{S2+k%4}")
    stamp("x stats")
    I(f"v_add_f32 v{S1}, v{S1}, v{S1+1}")
    I(f"v_add_f32 v{S1+2}, v{S1+2}, v{S1+3}")
    I(f"v_add_f32 v{S2}, v{S2}, v{S2+1}")
    I(f"v_add_f32 v{S2+2}, v{S2+2}, v{S2+3}")
    I(f"v_add_f32 v{S1}, v{S1}, v{S1+2}")
    I(f"v_add_f32 v{S2}, v{S2}, v{S2+2}")
    for lv in (16, 32):
        I(f"v_mov_b32 v{S1+1}, v{S1}")
        I(f"v_mov_b32 v{S2+1}, v{S2}")
        I(f"v_permlane{lv}_swap_b32 v{S1}, v{S1+1}")
        I(f"v_permlane{lv}_swap_b32 v{S2}, v{S2+1}")
        I(f"v_add_f32 v{S1}, v{S1}, v{S1+1}")
        I(f"v_add_f32 v{S2}, v{S2}, v{S2+1}")
    I(f"v_mul_f32 v{S1}, {f32(1/448)}, v{S1}")
    I(f"v_mul_f32 v{S2}, {f32(1/448)}, v{S2}")
    I(f"v_fma_f32 v{S2}, -v{S1}, v{S1}, v{S2}")
    I(f"v_max_f32 v{S2}, 0, v{S2}")
    I(f"v_add_f32 v{S2}, {f32(1e-5)}, v{S2}")
    RS, NB = ACCV, ACCV + 2
    I(f"v_rsq_f32 v{RS}, v{S2}")
    I(f"v_mul_f32 v{NB}, v{S1}, v{RS}")
    I(f"v_sub_f32 v{NB}, 0, v{NB}")
    I(f"v_mov_b32 v{RS+1}, v{RS}")
    I(f"v_mov_b32 v{NB+1}, v{NB}")
    TP = WF
    CSR = 248
    tcs = tinit = None
    for k in range(0, 56, 8):
        for u in range(8):
            I(f"v_lshlrev_b32 v{TP+2*u}, 16, v{XF+k+u}")
            I(f"v_and_b32 v{TP+2*u+1}, 0xffff0000, v{XF+k+u}")
        for u in range(8):
            I(f"v_pk_fma_f32 {vr(TP+2*u,2)}, {vr(TP+2*u,2)}, {vr(RS,2)}, {vr(NB,2)}")
        for u in range(8):
            I(f"v_cvt_pk_bf16_f32 v{XF+k+u}, v{TP+2*u}, v{TP+2*u+1}")
        if k in (0, 16, 32):
            bgq()
    stamp("normalized")
    I(f"v_mul_u32_u24 v{vT0}, 224, v{vG}")
    I(f"v_add_u32 v{vT0}, {LDS_WPL}, v{vT0}")
    I(f"v_lshl_add_u32 v{TMP}, v{vM16}, 1, v{vT0}")
    I(f"v_lshrrev_b32 v{vT2}, 2, v{vM16}")
    I(f"v_sub_u32 v{vT2}, v{vM16}, v{vT2}")
    I(f"v_lshl_add_u32 v{vT2}, v{vT2}, 1, v{vT0}")
    I(f"v_add_u32 v{TMP+1}, 32, v{vT2}")
    I(f"v_mov_b32 v{vT1}, {LDS_WPL + 1600}")
    I(f"v_and_b32 v{vT2}, 3, v{vM16}")
    I(f"v_cmp_eq_u32 vcc, 3, v{vT2}")
    I(f"v_cndmask_b32 v{TMP+1}, v{TMP+1}, v{vT1}, vcc")
    I(f"v_cmp_eq_u32 vcc, 3, v{vG}")
    I(f"v_cndmask_b32 v{TMP+2}, v{TMP}, v{vT1}, vcc")
    I(f"v_cndmask_b32 v{TMP+3}, v{TMP+1}, v{vT1}, vcc")
    I(f"v_add_u32 v{vTRb}, {LDS_WK}, v{vTR}")
    I(f"v_xor_b32 v{vTRc}, 32, v{vTRb}")
    def cs_loads():
        I(f"s_and_b32 s{sT0}, s{sW}, 1")
        I(f"s_cmp_eq_u32 s{sT0}, 1")
        I(f"s_cselect_b32 s4, s{sWU}, s{sWG}")
        I(f"s_cselect_b32 s5, s{sWU+1}, s{sWG+1}")
        I(f"s_mov_b32 s6, 1605632")
        I(f"s_mov_b32 s7, 0x20000")
        I(f"s_lshl_b32 s{sT0}, s{sG}, 2")
        I(f"s_lshr_b32 s{sT1}, s{sW}, 1")
        I(f"s_add_u32 s{sT0}, s{sT0}, s{sT1}")
        I(f"s_mul_i32 s{sT0}, s{sT0}, {7*3584}")
        I(f"s_lshl_b32 s{sT1}, s{sJC}, 8")
        I(f"s_add_u32 s{sT0}, s{sT0}, s{sT1}")
        I(f"s_cmp_ge_u32 s{sJC}, 14")
        I(f"s_cselect_b32 s{sT1}, {OOB}, 0")
        I(f"v_lshlrev_b32 v{vXA0}, 2, v{vLANE}")
        I(f"v_add_u32 v{vXA0}, s{sT1}, v{vXA0}")
        for r in range(7):
            if r:
                I(f"s_add_u32 s{sT0}, s{sT0}, 3584")
            tcs_ = I(f"buffer_load_dword v{CSR+r}, v{vXA0}, s[4:7], s{sT0} offen")
        return tcs_

    def init_load():
        I(f"v_mov_b32 v{vCNT}, 0")
        return I(f"buffer_load_dword v{vINIT}, v{vCNT}, {srd(sDBG)}, 0 offen sc1")
    bg_add("sent", sentinels)
    bg_add("cs", cs_loads)
    for i in (4, 5, 6):
        bg_add(f"w{i}", lambda i=i: rawW(i))
    g.wait(bt["wk3"])
    g.wait_all(vm=False)
    I("s_barrier")
    init_signal()

    def rdk(c, dst):
        I(f"ds_read_b64_tr_b16 {vr(dst,2)}, v{vTRb} offset:{c*2048}")
        I(f"ds_read_b64_tr_b16 {vr(dst+2,2)}, v{vTRb} offset:{c*2048+256}")
        I(f"ds_read_b64_tr_b16 {vr(dst+4,2)}, v{vTRc} offset:{c*2048}")
        return I(f"ds_read_b64_tr_b16 {vr(dst+6,2)}, v{vTRc} offset:{c*2048+256}")

    tphi = None
    for u in range(2):
        for j in range(8):
            d0 = j if j < 4 else 16 + j - 4
            va = TMP + u + (2 if j >= 4 else 0)
            dst = (WPH2 if j & 1 else WPHI) + 4 * u + j // 2
            tphi = I(f"ds_read_u16 v{dst}, v{va} offset:{d0*56}")
    I(f"v_lshrrev_b32 v{vWOA}, 3, v{vLANE}")
    I(f"v_mul_u32_u24 v{vWOA}, 896, v{vWOA}")
    I(f"v_and_b32 v{vT1}, 7, v{vLANE}")
    I(f"v_lshl_add_u32 v{vWOA}, v{vT1}, 4, v{vWOA}")
    I(f"s_lshl_b32 s{sWOB}, s{sNQ}, 1")
    I(f"s_add_u32 s{sWOB}, s{sWOB}, s{sWH}")
    I(f"s_cmp_eq_u32 s{sWOB}, 7")
    I(f"s_cselect_b32 s{sT1}, {OOB}, 0")
    I(f"s_lshl_b32 s{sWOB}, s{sWOB}, 7")
    I(f"s_add_u32 s{sWOB}, s{sWOB}, s{sT1}")
    I(f"s_mul_i32 s{sT1}, s{sW3}, {112*896}")
    I(f"s_add_u32 s{sWOB}, s{sWOB}, s{sT1}")
    two = {}

    def wo_load(i):
        I(f"s_add_u32 s{sBG}, s{sWOB}, {i*8*896}")
        two[i] = I(f"buffer_load_dwordx4 {woraw(i)}, v{vWOA}, {srd(sWO)}, s{sBG} offen")
    for i in range(8):
        bg_add(f"wo{i}", lambda i=i: wo_load(i))
    chain16(ACC, rdk, hook=lambda c: bgq() if c in (2, 5, 8, 11) else None)
    for i in range(8):
        I(f"v_lshl_or_b32 v{WPHI+i}, v{WPH2+i}, 16, v{WPHI+i}")
    stamp("k chain")
    I(f"v_add_u32 v{vT1}, s{sLW}, v{vL16}")
    I(f"s_cmp_ge_u32 s{sW}, 4")
    I(f"s_cselect_b32 s{sT0}, {10240-3072}, 0")
    I(f"v_add_u32 v{vT2}, s{sT0}, v{vT1}")
    g.wait(bt['w3'])
    for i in range(3):
        I(f"ds_write_b128 v{vT1}, {vr(WR+4*i,4)} offset:{i*1024}")
    t = I(f"ds_write_b128 v{vT2}, {vr(WR+12,4)} offset:3072")
    I(f"v_lshrrev_b32 v{vT0}, 1, v{vG}")
    I(f"v_mul_u32_u24 v{vT0}, {UNIT-1024}, v{vT0}")
    I(f"v_add_u32 v{vTRb}, v{vT0}, v{vTR}")
    I(f"v_xor_b32 v{vTRc}, 32, v{vTRb}")
    I(f"v_add_u32 v{vXR0}, 57344, v{vTRb}")
    I(f"v_add_u32 v{vXR1}, 57344, v{vTRc}")
    g.wait(t)
    I("s_barrier")
    stamp("wv ready")

    def rdw(isq):
        def rd(c, dst):
            n0 = 2 * c
            if not isq:
                unit, off = n0 % 8, (n0 // 8) * 1024
            elif n0 < 24:
                unit, off = n0 % 8, 10240 + (1 + n0 // 8) * 1024
            else:
                unit, off = 4 + n0 - 24, 10240
            a0, a1 = (vTRb, vTRc) if unit < 4 else (vXR0, vXR1)
            off += (unit % 4) * UNIT
            I(f"ds_read_b64_tr_b16 {vr(dst,2)}, v{a0} offset:{off}")
            I(f"ds_read_b64_tr_b16 {vr(dst+2,2)}, v{a0} offset:{off+256}")
            I(f"ds_read_b64_tr_b16 {vr(dst+4,2)}, v{a1} offset:{off}")
            return I(f"ds_read_b64_tr_b16 {vr(dst+6,2)}, v{a1} offset:{off+256}")
        return rd

    g.begin()
    chain16(ACCV, rdw(False), swap=True, hook=lambda c: bgq() if c % 2 == 1 else None)
    main = g.end()
    g.begin()
    featmap(ACC, PH)
    for s_ in range(2):
        for u in range(2):
            I(f"v_mfma_f32_16x16x32_bf16 {vr(TMP+8*s_+4*u,4)}, {vr(PH+4*s_,4)}, {vr(SEL+4*u,4)}, 0")
    side = g.end()
    g.put(interleave(main, side, every=1, per=4))
    PT = PH
    for k in range(8):
        I(f"v_cvt_pk_bf16_f32 v{PT+k}, v{TMP+2*k}, v{TMP+2*k+1}")
    VF = ACC
    I(f"v_cmp_le_u32 vcc, 12, v{vM16}")
    for k in range(4):
        I(f"v_cvt_pk_bf16_f32 v{VF+k}, v{ACCV+2*k}, v{ACCV+2*k+1}")
    I(f"v_cndmask_b32 v{VF+2}, v{VF+2}, v{vT5}, vcc")
    I(f"v_cndmask_b32 v{VF+3}, v{VF+3}, v{vT5}, vcc")
    I(f"s_lshr_b32 s{sT0}, s{sW}, 1")
    I(f"s_lshl_b32 s{sT0}, s{sT0}, 10")
    I(f"s_and_b32 s{sT1}, s{sW}, 1")
    I(f"s_lshl_b32 s{sT1}, s{sT1}, 3")
    I(f"s_add_u32 s{sT0}, s{sT0}, s{sT1}")
    I(f"s_add_u32 s{sT0}, s{sT0}, {LDS_WK}")
    I(f"v_add_u32 v{vT0}, s{sT0}, v{vL16}")
    for k in range(4):
        I(f"ds_write_b64 v{vT0}, {vr(PT+2*k,2)} offset:{k*4096}")
    for k in range(2):
        I(f"ds_write_b64 v{vT0}, {vr(VF+2*k,2)} offset:{(4+k)*4096}")
    g.wait(bt['cs'])
    I(f"v_mov_b32 v{ACCV}, 0\nv_mov_b32 v{ACCV+1}, 0")
    for r in range(7):
        I(f"v_dot2_f32_bf16 v{ACCV}, v{CSR+r}, v{vT3}, v{ACCV}")
        I(f"v_dot2_f32_bf16 v{ACCV+1}, v{CSR+r}, v{vT4}, v{ACCV+1}")
    I(f"v_add_u32 v{vT1}, {LDS_KVF}, v{vT8}")
    I(f"ds_write_b64 v{vT1}, {vr(ACCV,2)}")
    I(f"s_lshl_b32 s{sT0}, s{sWH}, 1")
    I(f"s_and_b32 s{sT1}, s{sW}, 1")
    I(f"s_add_u32 s{sT0}, s{sT0}, s{sT1}")
    I(f"s_lshl_b32 s{sT0}, s{sT0}, 12")
    I(f"s_add_u32 s{sT0}, s{sT0}, {LDS_WK}")
    I(f"v_add_u32 v{vT0}, s{sT0}, v{vL16}")
    I(f"s_bfe_u32 s{sT0}, s{sW}, 0x10001")
    I(f"s_lshl_b32 s{sT0}, s{sT0}, 12")
    I(f"s_add_u32 s{sT0}, s{sT0}, {LDS_WK + 4*4096}")
    I(f"v_add_u32 v{vT1}, s{sT0}, v{vL16}")
    g.wait_all(vm=False)
    I("s_barrier")
    R = WF
    tk = {}
    for p in range(4):
        I(f"ds_read_b128 {vr(R+8*p,4)}, v{vT0} offset:{p*1024}")
        tk[p] = I(f"ds_read_b128 {vr(R+8*p+4,4)}, v{vT1} offset:{p*1024}")
    I(f"v_lshlrev_b32 v{vXA0}, 2, v0")
    I(f"v_and_b32 v{vXA0}, 1023, v{vXA0}")
    I(f"v_add_u32 v{vXA0}, {LDS_KVF}, v{vXA0}")
    I(f"ds_read2st64_b32 {vr(ACCV,2)}, v{vXA0} offset0:0 offset1:4")
    tq = I(f"ds_read2st64_b32 {vr(ACCV+2,2)}, v{vXA0} offset0:8 offset1:12")
    for p in range(4):
        g.wait(tk[p])
        I(f"v_mfma_f32_16x16x32_bf16 {vr(ACC,4)}, {vr(R+8*p,4)}, {vr(R+8*p+4,4)}, {'0' if p == 0 else vr(ACC,4)}")
    g.wait(tq)
    I(f"v_add_f32 v{ACCV}, v{ACCV}, v{ACCV+1}")
    I(f"v_add_f32 v{ACCV+2}, v{ACCV+2}, v{ACCV+3}")
    I(f"v_add_f32 v{ACCV}, v{ACCV}, v{ACCV+2}")
    I(f"v_cvt_pk_bf16_f32 v{ACC+4}, v{ACC}, v{ACC+1}")
    I(f"v_cvt_pk_bf16_f32 v{ACC+5}, v{ACC+2}, v{ACC+3}")
    I(f"buffer_store_dwordx2 {vr(ACC+4,2)}, v{vT8}, {srd(sWS)}, s{sKVS} offen sc1")
    I(f"buffer_store_dword v{ACCV}, v{vCSS}, {srd(sWS)}, s{sCSS} offen sc1")
    stamp("kv stored")
    I(f"v_add_u32 v{vT1}, s{sLW}, v{vL16}")
    g.wait(bt['w6'])
    for i in range(4, 7):
        I(f"ds_write_b128 v{vT1}, {vr(WR+4*i,4)} offset:{10240+(i-3)*1024}")
    bgq(99)
    c_setup()
    d_setup()
    g.wait_all(vm=False)
    I("s_barrier")
    for i in range(8, 14):
        bg(lambda: wo_load(i), None, 170)
    g.mark("on")
    chain16(ACC, rdw(True))
    flush()
    I("s_barrier")
    g.mark("qdone")
    c_bg(0, 0, 0, 56, 0, "qdone")
    c_bg(1, 0, 0, 24, 57344, "qdone")
    I(f"v_lshlrev_b32 v{vCNT}, 4, v{vM16}")
    tini = I(f"buffer_load_dword v{vINIT}, v{vCNT}, {srd(sDBG)}, 0 offen sc1")
    featmap(ACC, PH)
    g.mark("off")
    GR, R, AO, OS = 40, 96, 176, 184
    WOF = 112
    vB1, vB2, vB3 = 188, 189, 190
    vK0, vK1, vK2 = 191, 192, 193
    lr, lb = g.newlabel("L_ir"), g.newlabel("L_ib")
    g.wait(tini)
    I(f"v_cmp_gt_u32 vcc, 16, v{vINIT}")
    I(f"s_cmp_lg_u64 vcc, 0")
    I(f"s_cbranch_scc1 {lr}")
    g.label(lb)
    g.begin()
    g.label(lr)
    init_check()
    I(f"s_branch {lb}")
    TAILS.append(g.end())
    stamp("q done")

    def gat_issue():
        tl = []
        I(f"s_mov_b32 s{sT0}, s{sGATH}")
        for rb in range(16):
            if rb:
                I(f"s_add_u32 s{sT0}, s{sT0}, 4096")
            tl.append(I(f"buffer_load_dwordx2 {vr(GR+2*rb,2)}, v{vT8}, {srd(sWS)}, s{sT0} offen sc1"))
        return tl

    def gat_body(tl):
        for i in range(4):
            I(f"v_mov_b32 v{R+i}, 0")
        for rb in range(16):
            g.wait(tl[rb])
            for i in range(2):
                I(f"v_dot2_f32_bf16 v{R+2*i}, v{GR+2*rb+i}, v{vT3}, v{R+2*i}")
                I(f"v_dot2_f32_bf16 v{R+2*i+1}, v{GR+2*rb+i}, v{vT4}, v{R+2*i+1}")

    def wo_bounce():
        I(f"v_lshrrev_b32 v{vK0}, 2, v{vM16}")
        I(f"v_sub_u32 v{vK0}, v{vM16}, v{vK0}")
        I(f"v_and_b32 v{vT1}, 3, v{vM16}")
        I(f"v_cmp_eq_u32 vcc, 3, v{vT1}")
        I(f"v_cndmask_b32 v{vK0}, v{vK0}, 12, vcc")
        I(f"v_lshl_add_u32 v{vK0}, v{vG}, 4, v{vK0}")
        I(f"v_lshlrev_b32 v{vK0}, 4, v{vK0}")
        I(f"v_add_u32 v{vK0}, {LDS_KVF}, v{vK0}")
        I(f"v_add_u32 v{vK1}, {LDS_KVF}, v{vL16}")
        I(f"s_lshr_b32 s{sT0}, s{sW}, 1")
        I(f"s_lshl_b32 s{sT0}, s{sT0}, 10")
        I(f"s_and_b32 s{sT1}, s{sW}, 1")
        I(f"s_lshl_b32 s{sT1}, s{sT1}, 3")
        I(f"s_add_u32 s{sT0}, s{sT0}, s{sT1}")
        I(f"v_add_u32 v{vK2}, s{sT0}, v{vK1}")
        I(f"s_mul_i32 s{sT0}, s{sW}, 8960")
        I(f"s_add_u32 s{sT0}, s{sT0}, {LDS_BSCR}")
        I(f"v_lshrrev_b32 v{vT1}, 3, v{vLANE}")
        I(f"v_mul_u32_u24 v{vT1}, 160, v{vT1}")
        I(f"v_and_b32 v{vT2}, 7, v{vLANE}")
        I(f"v_lshl_add_u32 v{vT1}, v{vT2}, 4, v{vT1}")
        I(f"v_add_u32 v{vB3}, s{sT0}, v{vT1}")
        I(f"v_bfe_u32 v{vT1}, v{vLANE}, 2, 2")
        I(f"v_lshl_add_u32 v{vB1}, v{vG}, 2, v{vT1}")
        I(f"v_min_u32 v{vT1}, 2, v{vT1}")
        I(f"v_mad_u32_u24 v{vB2}, v{vG}, 3, v{vT1}")
        I(f"v_add_u32 v{vB2}, 16, v{vB2}")
        I(f"v_and_b32 v{vT1}, 3, v{vLANE}")
        I(f"v_lshlrev_b32 v{vT1}, 3, v{vT1}")
        I(f"v_add_u32 v{vT1}, s{sT0}, v{vT1}")
        I(f"v_mul_u32_u24 v{vB1}, 160, v{vB1}")
        I(f"v_mul_u32_u24 v{vB2}, 160, v{vB2}")
        I(f"v_add_u32 v{vB1}, v{vB1}, v{vT1}")
        I(f"v_add_u32 v{vB2}, v{vB2}, v{vT1}")
        for rnd in range(2):
            g.wait(two[7 * rnd + 6])
            t = None
            for i in range(7):
                t = I(f"ds_write_b128 v{vB3}, {woraw(7*rnd+i)} offset:{i*1280}")
            g.wait(t)
            for h2 in range(2):
                for nt in range(4):
                    d = WOF + ((2 * rnd + h2) * 4 + nt) * 4
                    I(f"ds_read_b64_tr_b16 {vr(d,2)}, v{vB1} offset:{h2*4480+nt*32}")
                    t = I(f"ds_read_b64_tr_b16 {vr(d+2,2)}, v{vB2} offset:{h2*4480+nt*32}")
            g.wait(t)
    spec_load(gat_issue, [GR + 2 * rb for rb in range(16)], R + 6, gat_body, wo_bounce)
    g.mark("gdone")
    I(f"v_cvt_pk_bf16_f32 v{R+4}, v{R}, v{R+1}")
    I(f"v_cvt_pk_bf16_f32 v{R+5}, v{R+2}, v{R+3}")
    I(f"ds_write_b64 v{vK2}, {vr(R+4,2)}")
    g.mark("burst:3")
    g.wait_all(vm=False)
    stamp("gathered")
    I("s_barrier")
    for s_ in range(2):
        I(f"ds_read_b128 {vr(R+8*s_,4)}, v{vK1} offset:{s_*2048}")
        I(f"ds_read_b128 {vr(R+8*s_+4,4)}, v{vK0} offset:{s_*2048+1024}")
    g.wait_all(vm=False)
    for s_ in range(2):
        for t in range(2):
            a = vr(AO + 4 * t, 4)
            I(f"v_mfma_f32_16x16x32_bf16 {a}, {vr(R+8*s_+4*t,4)}, {vr(PH+4*s_,4)}, {'0' if s_ == 0 else a}")
    I(f"v_add_f32 v{vT1}, {f32(1e-6)}, v{AO+7}")
    I(f"v_rcp_f32 v{vT1}, v{vT1}")
    for i in range(7):
        I(f"v_mul_f32 v{AO+i}, v{AO+i}, v{vT1}")
    for i in range(3):
        I(f"v_cvt_pk_bf16_f32 v{OS+i}, v{AO+2*i}, v{AO+2*i+1}")
    I(f"v_cvt_pk_bf16_f32 v{OS+3}, v{AO+6}, 0")
    I(f"buffer_store_dwordx4 {vr(OS,4)}, v{vL16}, {srd(sWS)}, s{sOS} offen sc1")
    stamp("o stored")
    g.mark("on")
    return two


def woraw(i):
    return vr(216 + 4 * i, 4) if i < 8 else vr(WR + 4 * (i - 8), 4)


def phaseB(two):
    g.comment("==== phase B ====")
    OF = 216
    XR, XU, CSG = 176, 180, 188
    WOF = 112
    BACC = 72
    vB1, vB2, vB3 = 196, 197, 198
    vD1, vD2, vD3 = 199, 200, 201
    I(f"s_mul_i32 s{sT0}, s{sMTB}, {32*896}")
    I(f"s_lshl_b32 s{sT1}, s{sNQ}, 8")
    I(f"s_add_u32 s{sT0}, s{sT0}, s{sT1}")
    I(f"s_lshl_b32 s{sT1}, s{sW}, 2")
    I(f"v_and_b32 v{vT4}, 3, v{vLANE}")
    I(f"v_add_u32 v{vT4}, s{sT1}, v{vT4}")
    I(f"v_lshrrev_b32 v{vT5}, 2, v{vLANE}")
    I(f"v_mul_u32_u24 v{vT0}, 896, v{vT4}")
    I(f"v_lshl_add_u32 v{vT0}, v{vT5}, 4, v{vT0}")
    txr = I(f"buffer_load_dwordx4 {vr(XR,4)}, v{vT0}, {srd(sX)}, s{sT0} offen")
    g.mark("burst:3")
    I(f"s_lshl_b32 s{sD}, s{sMTB}, 5")
    I(f"s_lshl_b32 s{sT1}, s{sW3}, 2")
    I(f"s_add_u32 s{sD}, s{sD}, s{sT1}")
    I(f"s_lshl_b32 s{sD}, s{sD}, 10")
    I(f"s_add_u32 s{sD}, s{sD}, {WS_O}")
    I(f"s_add_u32 s{sE}, s{sD}, 16384")
    I(f"s_mul_i32 s{sT0}, s{sW3}, 17408")
    I(f"s_mul_i32 s{sT1}, s{sWH}, {8*1088}")
    I(f"s_add_u32 s{sT0}, s{sT0}, s{sT1}")
    I(f"s_add_u32 s{sT0}, s{sT0}, {LDS_BSCR}")
    I(f"v_lshrrev_b32 v{vT1}, 1, v{vG}")
    I(f"v_mul_u32_u24 v{vT1}, 1088, v{vT1}")
    I(f"v_and_b32 v{vT2}, 1, v{vG}")
    I(f"v_lshl_add_u32 v{vT1}, v{vT2}, 9, v{vT1}")
    I(f"v_lshl_add_u32 v{vT1}, v{vM16}, 4, v{vT1}")
    I(f"v_add_u32 v{vB1}, s{sT0}, v{vT1}")
    I(f"v_mul_u32_u24 v{vT1}, 1088, v{vT5}")
    I(f"v_lshl_add_u32 v{vT1}, v{vT4}, 4, v{vT1}")
    I(f"v_add_u32 v{vB2}, {LDS_BSCR}, v{vT1}")
    I(f"v_cmp_gt_u32 vcc, 0x10000, v{vHSA}")
    I(f"v_cndmask_b32 v{vT3}, 0, -1, vcc")
    stats_addr(vT2, vT0, vT1)
    I(f"v_mov_b32 v{vT5}, 0x3f803f80")
    g.wait(txr)
    for i in range(4):
        I(f"v_lshlrev_b32 v{XU+2*i}, 16, v{XR+i}")
        I(f"v_and_b32 v{XU+2*i+1}, 0xffff0000, v{XR+i}")
    g.mark("off")
    stamp("wo ready")

    def o_issue():
        tl = []
        for hh in range(4):
            for mt in range(2):
                tl.append(I(f"buffer_load_dwordx4 {vr(OF+(hh*2+mt)*4,4)}, v{vL16}, {srd(sWS)}, s{sE if mt else sD} offen offset:{hh*1024} sc1"))
        return tl

    def o_body(tl):
        for hh in range(4):
            for mt in range(2):
                g.wait(tl[hh * 2 + mt])
                for nt in range(4):
                    a = BACC + (mt * 4 + nt) * 4
                    I(f"v_mfma_f32_16x16x32_bf16 {vr(a,4)}, {vr(WOF+(hh*4+nt)*4,4)}, {vr(OF+(hh*2+mt)*4,4)}, {'0' if hh == 0 else vr(a,4)}")
    spec_load(o_issue, [OF + 4 * k for k in range(8)], vT0, o_body)
    stamp("B mfma")
    g.mark("burst:3")
    for mt in range(2):
        for nt in range(4):
            I(f"ds_write_b128 v{vB1}, {vr(BACC+(mt*4+nt)*4,4)} offset:{nt*2176+mt*256}")
    S1, S2 = 104, 105
    I(f"v_mov_b32 v{S1}, 0\nv_mov_b32 v{S2}, 0")
    g.wait_all(vm=False)
    I("s_barrier")
    b = 72
    for w in range(4):
        for q in range(2):
            I(f"ds_read_b128 {vr(b+w*8+q*4,4)}, v{vB2} offset:{w*17408+q*512}")
    g.wait_all(vm=False)
    HP = 108
    for i in range(8):
        I(f"v_add_f32 v{b+i}, v{b+i}, v{b+8+i}")
        I(f"v_add_f32 v{b+16+i}, v{b+16+i}, v{b+24+i}")
    for i in range(8):
        I(f"v_add_f32 v{b+i}, v{b+i}, v{XU+i}")
    for i in range(8):
        I(f"v_add_f32 v{b+i}, v{b+i}, v{b+16+i}")
    for i in range(4):
        I(f"v_cvt_pk_bf16_f32 v{HP+i}, v{b+2*i}, v{b+2*i+1}")
    I(f"buffer_store_dwordx4 {vr(HP,4)}, v{vHSA}, {srd(sWS)}, s{sHS} offen sc1")
    for i in range(4):
        I(f"v_dot2_f32_bf16 v{S1}, v{HP+i}, v{vT5}, v{S1}")
        I(f"v_dot2_f32_bf16 v{S2}, v{HP+i}, v{HP+i}, v{S2}")
    I(f"v_and_b32 v{S1}, v{vT3}, v{S1}")
    I(f"v_and_b32 v{S2}, v{vT3}, v{S2}")
    for ror in (4, 8):
        I(f"v_add_f32_dpp v{S1}, v{S1}, v{S1} row_ror:{ror} row_mask:0xf bank_mask:0xf")
        I(f"v_add_f32_dpp v{S2}, v{S2}, v{S2} row_ror:{ror} row_mask:0xf bank_mask:0xf")
    for lv in (16, 32):
        I(f"v_mov_b32 v106, v{S1}\nv_mov_b32 v107, v{S2}")
        I(f"v_permlane{lv}_swap_b32 v{S1}, v106")
        I(f"v_permlane{lv}_swap_b32 v{S2}, v107")
        I(f"v_add_f32 v{S1}, v{S1}, v106")
        I(f"v_add_f32 v{S2}, v{S2}, v107")
    I(f"buffer_store_dwordx2 v[{S1}:{S2}], v{vT2}, {srd(sWS)}, s{sSS} offen sc1")
    stamp("h stored")
    I("s_barrier")
    I(f"s_cmp_ge_u32 s{sJC}, 14")
    I("s_cbranch_scc1 L_end")
    tb2 = c_batch(1, 0, 24, 56, 57344 + 24576)
    I(f"s_lshl_b32 s{sT0}, s{sJC}, 14")
    I(f"s_lshl_b32 s{sT1}, s{sWH}, 13")
    I(f"s_add_u32 s{sT0}, s{sT0}, s{sT1}")
    I(f"s_add_u32 s{sT0}, s{sT0}, {WS_CS}")
    I(f"s_add_u32 s{sT1}, s{sT0}, 4096")
    I(f"v_lshlrev_b32 v{vB3}, 2, v0")
    I(f"v_and_b32 v{vB3}, 1023, v{vB3}")

    def cs_issue():
        return [I(f"buffer_load_dword v{CSG+rb}, v{vB3}, {srd(sWS)}, s{sT1 if rb >= 4 else sT0} offen offset:{(rb%4)*1024} sc1") for rb in range(8)]
    check_loop(cs_issue, [CSG + rb for rb in range(8)], vT0)
    for k in (4, 2, 1):
        for i in range(k):
            I(f"v_add_f32 v{CSG+i}, v{CSG+i}, v{CSG+k+i}")
    I(f"v_lshlrev_b32 v{vB3}, 2, v0")
    I(f"v_add_u32 v{vB3}, {LDS_KVF}, v{vB3}")
    I(f"ds_write_b32 v{vB3}, v{CSG}")


GK1 = -2.0 * math.sqrt(2.0 / math.pi) * LOG2E
GK2 = GK1 * 0.044715
LDS_X = 114688
vHB, vM, vWD = 254, 255, 253
sWDB = 80
WDE = 16
NWDE = 7
NWDC = int(os.environ.get('NWDC', '2'))


def hh_signal(stage, toks):
    g.wait(*toks)
    I("s_barrier")
    lab = g.newlabel("L_hs")
    I(f"s_cmp_lg_u32 s{sW}, 0")
    I(f"s_cbranch_scc1 {lab}")
    g.cond_begin()
    I("s_mov_b64 exec, 1")
    I(f"s_lshl_b32 s{sT0}, s{sG}, 8")
    I(f"s_add_u32 s{sT0}, s{sT0}, {WS_CNT + CNT_HH * 4096 + 64 * stage}")
    I(f"v_mov_b32 v{vCNT}, s{sT0}")
    I(f"buffer_atomic_add v{vONE}, v{vCNT}, {srd(sWS)}, 0 offen sc1")
    I("s_mov_b64 exec, -1")
    g.cond_end()
    g.label(lab)


def hh_poll(stage_sreg_or_imm):
    I("s_mov_b64 exec, 1")
    I(f"s_lshl_b32 s{sT0}, s{sGB}, 8")
    I(f"s_add_u32 s{sT0}, s{sT0}, {WS_CNT + CNT_HH * 4096}")
    I(f"s_add_u32 s{sT0}, s{sT0}, {stage_sreg_or_imm}")
    I(f"v_mov_b32 v{vCNT}, s{sT0}")
    poll(sWS, vCNT, 14)
    I("s_mov_b64 exec, -1")


def d_setup():
    I(f"v_lshrrev_b32 v{vHB}, 5, v{vLANE}")
    I(f"v_and_b32 v{vM}, 31, v{vLANE}")
    I(f"v_lshrrev_b32 v{vT0}, 3, v{vLANE}")
    I(f"v_mul_u32_u24 v{vT0}, 896, v{vT0}")
    I(f"v_and_b32 v{vT1}, 1, v{vG}")
    I(f"v_lshlrev_b32 v{vT1}, 2, v{vT1}")
    I(f"v_and_b32 v{vWD}, 7, v{vLANE}")
    I(f"v_xor_b32 v{vWD}, v{vWD}, v{vT1}")
    I(f"v_lshl_add_u32 v{vWD}, v{vWD}, 4, v{vT0}")
    I(f"s_cmp_ge_u32 s{sJB}, 7")
    I(f"s_cselect_b32 s{sRH}, 1, 0")
    I(f"s_mul_i32 s{sT0}, s{sRH}, 7")
    I(f"s_sub_u32 s{sCB}, s{sJB}, s{sT0}")
    I(f"s_lshl_b32 s{sT0}, s{sWH}, 1")
    I(f"s_add_u32 s{sT0}, s{sT0}, s{sW}")
    I(f"s_and_b32 s{sAA}, s{sT0}, 3")
    I(f"s_mul_i32 s{sKC}, s{sWH}, 56")
    I(f"s_add_u32 s{sKC}, s{sKC}, s{sAA}")
    I(f"s_mul_i32 s{sWDB}, s{sKC}, {16*896}")
    I(f"s_lshl_b32 s{sT1}, s{sCB}, 7")
    I(f"s_add_u32 s{sWDB}, s{sWDB}, s{sT1}")
    I(f"s_cmp_ge_u32 s{sJB}, 14")
    I(f"s_cselect_b32 s{sT1}, {OOB}, 0")
    I(f"s_add_u32 s{sWDB}, s{sWDB}, s{sT1}")


sRH, sCB, sAA, sKC = 64, 65, 66, 67


def kc_off(n):
    return 8 * n if n < 7 else 4 + 8 * (n - 7)


def wd_load(dst, n):
    t = None
    for hf_ in range(2):
        I(f"s_add_u32 s{sT3}, s{sWDB}, {(16*kc_off(n) + 8*hf_)*896}")
        for e in range(4):
            t = I(f"buffer_load_dword v{dst+4*hf_+e}, v{vWD}, {srd(sWD)}, s{sT3} offen offset:{e*896}")
    return t


def wd_half(dst, n, hf_):
    I(f"s_add_u32 s{sBG}, s{sWDB}, {(16*kc_off(n) + 8*hf_)*896}")
    return I(f"buffer_load_dwordx4 {vr(dst+4*hf_,4)}, v{vWD}, {srd(sWD)}, s{sBG} offen")


def dt_pattern(dst, t0, t1):
    I(f"v_bfe_u32 v{t0}, v{vLANE}, 2, 2")
    I(f"v_lshl_add_u32 v{t1}, v{vHB}, 2, v{t0}")
    I(f"v_lshlrev_b32 v{t1}, 7, v{t1}")
    I(f"v_lshrrev_b32 v{t0}, 1, v{t0}")
    I(f"v_lshl_add_u32 v{t1}, v{t0}, 6, v{t1}")
    I(f"v_and_b32 v{t0}, 1, v{vG}")
    I(f"v_lshl_add_u32 v{t1}, v{t0}, 5, v{t1}")
    I(f"v_and_b32 v{t0}, 3, v{vLANE}")
    I(f"v_lshl_add_u32 v{dst}, v{t0}, 3, v{t1}")


def c_rows(mat, dbl, r0, r1, lds_base):
    return c_batch(mat, dbl, r0, r1, lds_base)


def g1_addr(n):
    if n < 8:
        return 114688 + n * 1024
    if 24 <= n < 40:
        return 114688 + 8192 + (n - 24) * 1024
    if n < 24:
        return (n - 8) * 1024
    return 16384 + (n - 40) * 1024


def u1_addr(n):
    if n < 8:
        return 32768 + n * 1024
    if 24 <= n < 40:
        return 32768 + 8192 + (n - 24) * 1024
    if n < 24:
        return 57344 + (n - 8) * 1024
    return 57344 + 16384 + (n - 40) * 1024


def phaseCD(twd_early):
    g.comment("==== phase C ====")
    sMD, sHB, sMT = sC, sHHS, sMTC
    sAB = 7
    sL5, sL2, sL7 = 4, 5, 6
    I(f"s_mul_i32 s{sL5}, s{sW}, 5120")
    I(f"s_lshl_b32 s{sL2}, s{sW}, 11")
    I(f"s_mul_i32 s{sL7}, s{sW}, 7168")
    slotE = [(sL5, 73728 + i * 1024) for i in range(5)]
    slotM = [(sL5, 114688 + i * 1024) for i in range(5)] + [(sL2, i * 1024) for i in range(2)]
    slotL = [(sL7, 16384 + i * 1024) for i in range(7)]
    wslot = slotE + slotM + slotL + (slotE + slotM)[:9]

    def wd_dma(m):
        n, hf_ = m // 2, m % 2
        return dma2(vWD, sWD, sWDB, (16 * kc_off(n) + 8 * hf_) * 896, wslot[m][0], wslot[m][1])
    c_batch(0, 1, 0, 40, 114688)
    I(f"s_lshl_b32 s{sMD}, s{sGB}, 2")
    I(f"s_lshl_b32 s{sT0}, s{sRH}, 1")
    I(f"s_add_u32 s{sMD}, s{sMD}, s{sT0}")
    I(f"s_lshl_b32 s{sE}, s{sMT}, 10")
    I(f"s_add_u32 s{sE}, s{sE}, {WS_ST}")
    I(f"s_mul_i32 s{sWB}, s{sMT}, {28*1024}")
    I(f"s_add_u32 s{sWB}, s{sWB}, {WS_H}")
    I(f"s_mul_i32 s{sAB}, s{sMD}, {112*1024}")
    I(f"s_lshl_b32 s{sT1}, s{sKC}, 10")
    I(f"s_add_u32 s{sAB}, s{sAB}, s{sT1}")
    I(f"s_add_u32 s{sAB}, s{sAB}, {WS_HH}")
    HF = 16
    A_, B_, C_ = 128, 144, 160
    TM, CS2 = 176, 192
    WFc = 208
    vA0, vA1, vCSA, vFA, vA2 = 240, 241, 242, 243, 15
    K1, K2, IR2, NMU = 248, 249, 250, 251
    STR = 244
    I(f"v_bfe_u32 v{vT0}, v{vLANE}, 2, 2")
    I(f"v_lshl_add_u32 v{vT1}, v{vHB}, 3, v{vT0}")
    I(f"v_lshlrev_b32 v{vT1}, 7, v{vT1}")
    I(f"v_lshrrev_b32 v{vT0}, 1, v{vT0}")
    I(f"v_xor_b32 v{vT0}, s{sWH}, v{vT0}")
    I(f"v_lshl_add_u32 v{vT1}, v{vT0}, 6, v{vT1}")
    I(f"v_and_b32 v{vT2}, 1, v{vG}")
    I(f"v_lshl_add_u32 v{vT1}, v{vT2}, 5, v{vT1}")
    I(f"v_and_b32 v{vT2}, 3, v{vLANE}")
    I(f"v_lshl_add_u32 v{vA0}, v{vT2}, 3, v{vT1}")
    I(f"v_add_u32 v{vA1}, 57344, v{vA0}")
    I(f"v_add_u32 v{vA2}, 114688, v{vA0}")
    I(f"s_lshl_b32 s{sT0}, s{sWH}, 7")
    I(f"s_add_u32 s{sT0}, s{sT0}, {LDS_CS}")
    I(f"v_lshlrev_b32 v{vCSA}, 4, v{vHB}")
    I(f"v_add_u32 v{vCSA}, s{sT0}, v{vCSA}")
    I(f"v_mov_b32 v{vFA}, {LDS_FLG}")
    I(f"v_lshlrev_b32 v{vT3}, 3, v{vLANE}")
    flush()
    g.wait_all(vm=False)
    I("s_barrier")
    I(f"v_lshlrev_b32 v{vT0}, 2, v0")
    I(f"v_and_b32 v{vT0}, 1023, v{vT0}")
    I(f"v_add_u32 v{vT0}, {LDS_KVF}, v{vT0}")
    t = I(f"ds_read2st64_b32 v[72:73], v{vT0} offset0:0 offset1:4")
    g.wait(t)
    I(f"v_add_f32 v72, v72, v73")
    I(f"ds_write_b32 v{vT0}, v72 offset:4096")
    stamp("C ready")

    def st_issue():
        I(f"buffer_load_dwordx2 {vr(STR,2)}, v{vT3}, {srd(sWS)}, s{sE} offen sc1")
        return [I(f"buffer_load_dwordx2 {vr(STR+2,2)}, v{vT3}, {srd(sWS)}, s{sE} offen offset:512 sc1")]
    check_loop(st_issue, [STR, STR + 2], vT1)
    stamp("h flag")

    def h_issue():
        tl = []
        for c in range(28):
            if c % 4 == 0:
                I(f"s_add_u32 s{sT0}, s{sWB}, {c*1024}")
            tl.append(I(f"buffer_load_dwordx4 {vr(HF+4*c,4)}, v{vL16}, {srd(sWS)}, s{sT0} offen offset:{(c%4)*1024} sc1"))
        return tl
    g.begin()
    th = h_issue()
    hl = g.end()
    g.put(hl[:10])
    g.wait_all(vm=False)
    I("s_barrier")
    I(f"v_add_f32 v{STR}, v{STR}, v{STR+2}")
    I(f"v_add_f32 v{STR+1}, v{STR+1}, v{STR+3}")
    I(f"v_mov_b32 v{STR+2}, v{STR}\nv_mov_b32 v{STR+3}, v{STR+1}")
    I(f"v_permlane32_swap_b32 v{STR}, v{STR+2}")
    I(f"v_permlane32_swap_b32 v{STR+1}, v{STR+3}")
    I(f"v_add_f32 v{STR}, v{STR}, v{STR+2}")
    I(f"v_add_f32 v{STR+1}, v{STR+1}, v{STR+3}")
    I(f"v_mul_f32 v{NMU}, {f32(-1/448)}, v{STR}")
    I(f"v_mul_f32 v{STR+1}, {f32(1/448)}, v{STR+1}")
    I(f"v_fma_f32 v{STR+1}, -v{NMU}, v{NMU}, v{STR+1}")
    I(f"v_max_f32 v{STR+1}, 0, v{STR+1}")
    I(f"v_add_f32 v{IR2}, {f32(1e-5)}, v{STR+1}")
    I(f"v_rsq_f32 v{STR}, v{IR2}")
    I(f"v_mul_f32 v{K1}, {f32(GK1)}, v{STR}")
    I(f"v_mul_f32 v{STR+1}, v{STR}, v{STR}")
    I(f"v_mul_f32 v{STR+1}, v{STR+1}, v{STR}")
    I(f"v_mul_f32 v{K2}, {f32(GK2)}, v{STR+1}")
    tails = TAILS

    def cnt_add(f):
        I("s_mov_b64 exec, 1")
        I(f"ds_add_u32 v{vFA}, v{vONE} offset:{4*f}")
        I("s_mov_b64 exec, -1")

    def cnt_issue(f):
        return I(f"ds_read_b32 v{vFLAG}, v{vFA} offset:{4*f}")

    def cnt_check(f, t):
        lr, lb = g.newlabel("L_cr"), g.newlabel("L_cb")
        g.wait(t)
        I(f"v_readfirstlane_b32 s{sT4}, v{vFLAG}")
        I(f"s_cmp_lt_u32 s{sT4}, 8")
        I(f"s_cbranch_scc1 {lr}")
        g.label(lb)
        g.begin()
        g.label(lr)
        I(f"s_mov_b32 s{sT5}, 0")
        l2 = g.newlabel("L_cl")
        g.label(l2)
        I("s_sleep 1")
        cnt_issue(f)
        I("s_waitcnt lgkmcnt(0)")
        I(f"v_readfirstlane_b32 s{sT4}, v{vFLAG}")
        I(f"s_add_u32 s{sT5}, s{sT5}, 1")
        I(f"s_cmp_ge_u32 s{sT5}, {POLL_MAX*8}")
        I(f"s_cbranch_scc1 {lb}")
        I(f"s_cmp_lt_u32 s{sT4}, 8")
        I(f"s_cbranch_scc1 {l2}")
        I(f"s_branch {lb}")
        tails.append(g.end())

    def hsig_issue(f, toks):
        g.wait(*toks)
        I("s_mov_b64 exec, 1")
        t = I(f"ds_add_rtn_u32 v{vINIT}, v{vFA}, v{vONE} offset:{4*f}")
        I("s_mov_b64 exec, -1")
        return t

    def hsig_check(stage, t):
        lab = g.newlabel("L_hs")
        g.wait(t)
        I(f"v_readfirstlane_b32 s{sT4}, v{vINIT}")
        I(f"s_cmp_lg_u32 s{sT4}, 7")
        I(f"s_cbranch_scc1 {lab}")
        g.cond_begin()
        I("s_mov_b64 exec, 1")
        I(f"s_lshl_b32 s{sT0}, s{sG}, 8")
        I(f"s_add_u32 s{sT0}, s{sT0}, {WS_CNT + CNT_HH * 4096 + 64 * stage}")
        I(f"v_mov_b32 v{vCNT}, s{sT0}")
        I(f"buffer_atomic_add v{vONE}, v{vCNT}, {srd(sWS)}, 0 offen sc1")
        I("s_mov_b64 exec, -1")
        g.cond_end()
        g.label(lab)

    def cs_read(dst, mat, dbl):
        t = None
        for q in range(4):
            t = I(f"ds_read_b128 {vr(dst+4*q,4)}, v{vCSA} offset:{mat*512 + (64*dbl+8*q)*4}")
        return t

    def gpart(ag, t):
        g.wait(t)
        for i in range(16):
            I(f"v_fmac_f32 v{ag+i}, v{NMU}, v{TM+i}")
        for i in range(16):
            I(f"v_mul_f32 v{TM+i}, v{ag+i}, v{ag+i}")
        for i in range(16):
            I(f"v_fma_f32 v{TM+i}, v{TM+i}, v{K2}, v{K1}")
        for i in range(16):
            I(f"v_mul_f32 v{TM+i}, v{TM+i}, v{ag+i}")
        for i in range(16):
            I(f"v_exp_f32 v{TM+i}, v{TM+i}")
        for i in range(16):
            I(f"v_fma_f32 v{TM+i}, v{TM+i}, v{IR2}, v{IR2}")
        for i in range(16):
            I(f"v_rcp_f32 v{TM+i}, v{TM+i}")
        for i in range(16):
            I(f"v_mul_f32 v{TM+i}, v{ag+i}, v{TM+i}")

    def upart(au, t, dbl):
        g.wait(t)
        for i in range(16):
            I(f"v_fmac_f32 v{au+i}, v{NMU}, v{CS2+i}")
        for i in range(16):
            I(f"v_mul_f32 v{au+i}, v{au+i}, v{TM+i}")
        for i in range(8):
            I(f"v_cvt_pk_bf16_f32 v{CS2+i}, v{au+2*i}, v{au+2*i+1}")
        I(f"s_add_u32 s{sE}, s{sHB}, {dbl*4096}")
        I(f"buffer_store_dwordx4 {vr(CS2,4)}, v{vL16}, {srd(sWS)}, s{sE} offen sc1")
        return I(f"buffer_store_dwordx4 {vr(CS2+4,4)}, v{vL16}, {srd(sWS)}, s{sE} offen offset:1024 sc1")

    slots = []
    for c in range(28):
        slots.append((A_, c * 2048, c))
        slots.append((B_, 57344 + c * 2048, c))
    for c in range(28):
        slots.append((C_, 114688 + c * 2048 if c < 20 else (c - 20) * 2048, c))
    for c in range(28):
        slots.append((A_, 16384 + c * 2048, c))
    NS = 112
    depth = int(os.environ.get('DEPTH', '4'))
    nb = depth + 1
    tok = {}

    def rd(i):
        off = slots[i][1]
        base = vA0
        if off >= 114688:
            base, off = vA2, off - 114688
        elif off >= 57344:
            base, off = vA1, off - 57344
        dst = WFc + 4 * (i % nb)
        I(f"ds_read_b64_tr_b16 {vr(dst,2)}, v{base} offset:{off}")
        tok[i] = I(f"ds_read_b64_tr_b16 {vr(dst+2,2)}, v{base} offset:{off+512}")

    sched = {i: [] for i in range(NS)}
    load = {i: 0.0 for i in range(NS)}
    BUDGET = float(os.environ.get("BUDGET", "6"))

    def cost(it):
        if it.kind != "i":
            return 0
        m = it.text.split()[0]
        if m in TRANS:
            return 2
        if m in ("v_fma_f32", "v_fmac_f32"):
            return 1.25
        if m.startswith("v_"):
            return 1
        if m.startswith(("ds_", "buffer")):
            return 0.4
        return 0.1

    def cap(fn):
        g.begin()
        r = fn()
        return g.end(), r

    def at(slot, fn):
        st, r = cap(fn)
        for it in st:
            sched[slot].append(it)
            load[slot] += cost(it)
        return r

    rest = []

    def flow(stream, slot):
        pend = []
        for it in stream:
            pend.append(it)
            if it.kind != "i":
                continue
            c = sum(cost(x) for x in pend)
            while slot < NS and load[slot] + c > BUDGET:
                slot += 1
            if slot >= NS:
                rest.extend(pend)
            else:
                sched[slot].extend(pend)
                load[slot] += c
            pend = []
        return slot

    k_ = 0
    for it in hl[10:]:
        sched[k_].append(it)
        if it.text.startswith("buffer"):
            k_ += 1

    def refill(f, free_slot, batches, need_slot):
        at(free_slot, lambda: cnt_add(f))
        t = at(free_slot + 2, lambda: cnt_issue(f))
        at(free_slot + 3, lambda: cnt_check(f, t))
        st, tb = cap(batches)
        for q in range(len(st) // 3):
            for it in st[3 * q:3 * q + 3]:
                sched[free_slot + 3 + 2 * q].append(it)
        if need_slot is not None:
            at(need_slot - depth - 3, lambda: (g.wait(tb), cnt_add(f + 1)))
            t2 = at(need_slot - depth - 2, lambda: cnt_issue(f + 1))
            at(need_slot - depth - 1, lambda: cnt_check(f + 1, t2))
        return tb
    at(56, lambda: cnt_add(0))
    t = at(57, lambda: cnt_issue(0))
    at(58, lambda: cnt_check(0, t))
    st1, tb1 = cap(lambda: c_batch(0, 1, 40, 56, 0))
    st2, tb2 = cap(lambda: c_batch(1, 1, 0, 56, 16384))
    st3, _ = cap(lambda: [wd_dma(m) for m in range(5)])
    st = st1 + st2 + st3
    pos = [58, 59, 60, 62, 63, 65, 66, 68, 69, 72, 74, 78, 80, 82]
    for q in range(14):
        sched[pos[q]].extend(st[3 * q:3 * q + 3])
    for f, tb, need in ((1, tb1, 76), (2, tb2, 84)):
        at(need - depth - 3, lambda: (g.wait(tb), cnt_add(f)))
        t2_ = at(need - depth - 2, lambda: cnt_issue(f))
        at(need - depth - 1, lambda: cnt_check(f, t2_))
    refill(4, 84, lambda: [wd_dma(m) for m in range(5, 12)][-1], None)
    if "not2" not in EXP:
        at(int(os.environ.get("T2", "40")), touch2)

    def h_issue_from(c0):
        def f():
            tl = []
            for c in range(c0, 28):
                if c % 4 == 0:
                    I(f"s_add_u32 s{sT2}, s{sWB}, {c*1024}")
                tl.append(I(f"buffer_load_dwordx4 {vr(HF+4*c,4)}, v{vL16}, {srd(sWS)}, s{sT2} offen offset:{(c%4)*1024} sc1"))
            return tl
        return f

    def hcheck(q):
        lr, lb = g.newlabel("L_hr"), g.newlabel("L_hb")
        g.wait(th[4 * q + 3])
        sent_check([HF + 4 * c for c in range(4 * q, 4 * q + 4)], vT1)
        I(f"s_cmp_lg_u64 vcc, 0")
        I(f"s_cbranch_scc1 {lr}")
        g.label(lb)
        g.begin()
        g.label(lr)
        check_loop(h_issue_from(4 * q), [HF + 4 * c for c in range(4 * q, 28)], vT1)
        I(f"s_branch {lb}")
        tails.append(g.end())
    t1 = at(54, lambda: cs_read(TM, 0, 0))
    t2 = at(55, lambda: cs_read(CS2, 1, 0))
    def epiA():
        g.wait(t2)
        for i in range(16):
            I(f"v_fmac_f32 v{A_+i}, v{NMU}, v{TM+i}")
        for i in range(16):
            I(f"v_fmac_f32 v{B_+i}, v{NMU}, v{CS2+i}")
        for i in range(16):
            I(f"v_mul_f32 v{TM+i}, v{A_+i}, v{A_+i}")
        for i in range(16):
            I(f"v_fma_f32 v{TM+i}, v{TM+i}, v{K2}, v{K1}")
        for i in range(16):
            I(f"v_mul_f32 v{TM+i}, v{TM+i}, v{A_+i}")
        for i in range(16):
            I(f"v_mul_f32 v{B_+i}, v{B_+i}, v{A_+i}")

    def epiB():
        for i in range(16):
            I(f"v_exp_f32 v{TM+i}, v{TM+i}")
        for i in range(16):
            I(f"v_fma_f32 v{TM+i}, v{TM+i}, v{IR2}, v{IR2}")
        for i in range(16):
            I(f"v_rcp_f32 v{TM+i}, v{TM+i}")
        for i in range(16):
            I(f"v_mul_f32 v{B_+i}, v{B_+i}, v{TM+i}")
        for i in range(8):
            I(f"v_cvt_pk_bf16_f32 v{CS2+i}, v{B_+2*i}, v{B_+2*i+1}")
        I(f"buffer_store_dwordx4 {vr(CS2,4)}, v{vL16}, {srd(sWS)}, s{sHB} offen sc1")
        return I(f"buffer_store_dwordx4 {vr(CS2+4,4)}, v{vL16}, {srd(sWS)}, s{sHB} offen offset:1024 sc1")
    st, _ = cap(epiA)
    e = flow(st, 57)
    assert e < 83, e
    st, tst0 = cap(epiB)
    e = flow(st, e)
    t1 = at(max(e, 85), lambda: cs_read(TM, 0, 1))
    t = at(min(e + 8, 108), lambda: hsig_issue(6, [tst0]))
    at(min(e + 10, 110), lambda: hsig_check(0, t))
    t2 = at(min(e + 9, 109), lambda: cs_read(CS2, 1, 1))
    st, _ = cap(lambda: gpart(C_, t1))
    flow(st, max(e, 85) + 2)
    print("slot loads:", " ".join("%.0f" % load[i] for i in range(NS)), "rest", len(rest))
    for i in range(depth):
        rd(i)
    for i in range(NS):
        acc, off, c = slots[i]
        if i + depth < NS:
            rd(i + depth)
        if i < 56 and i % 8 == 0:
            hcheck(i // 8)
        g.wait(tok[i])
        I(f"v_mfma_f32_32x32x16_bf16 {vr(acc,16)}, {vr(WFc+4*(i%nb),4)}, {vr(HF+4*c,4)}, {'0' if c == 0 else vr(acc,16)}")
        g.put(sched[i])
        if i in (55, 83, 111):
            stamp(f"slot{i}")
    g.put(rest)
    upart(A_, t2, 1)
    stamp("hh stored")
    I("s_barrier")
    for m in range(12, 19):
        wd_dma(m)
    DACC = 184
    frag = {n: 16 + 8 * n for n in range(14)}
    free = [128 + 8 * k for k in range(7)]
    ta, abuf = {}, {}
    vP = {sL5: (vT0, vT1), sL2: (vT2, vT3), sL7: (vT4, vT5)}
    dt_pattern(vFLAG, vT0, vT1)
    for sreg, (a0, a1) in vP.items():
        I(f"v_add_u32 v{a0}, s{sreg}, v{vFLAG}")
        if sreg == sL5:
            I(f"v_add_u32 v{a0}, 73728, v{a0}")
        I(f"v_xor_b32 v{a1}, 64, v{a0}")

    def wd_read(m):
        n, rd_ = m // 2, m % 2
        sreg, imm = wslot[m]
        a = vP[sreg]
        if sreg == sL5:
            imm -= 73728
        t = None
        for nt in range(2):
            t = I(f"ds_read_b64_tr_b16 {vr(frag[n]+4*nt+2*rd_,2)}, v{a[nt]} offset:{imm}")
        return t

    def lda(c):
        b = free.pop(0)
        abuf[c] = b
        for mt in range(2):
            I(f"s_add_u32 s{sT1}, s{sAB}, {mt*112*1024 + kc_off(c)*1024}")
            ta[c, mt] = I(f"buffer_load_dwordx4 {vr(b+4*mt,4)}, v{vL16}, {srd(sWS)}, s{sT1} offen sc1")

    def mm(c, first):
        for mt in range(2):
            g.wait(ta[c, mt])
            for nt in range(2):
                a = DACC + (mt * 2 + nt) * 16
                I(f"v_mfma_f32_32x32x16_bf16 {vr(a,16)}, {vr(frag[c]+4*nt,4)}, {vr(abuf[c]+4*mt,4)}, {'0' if first else vr(a,16)}")
    hh_poll(0)
    for c in range(7):
        lda(c)
    t = None
    for m in range(19):
        t = wd_read(m)
    g.wait(t)
    twl = None
    for m in range(19, 28):
        twl = wd_dma(m)
    for c in range(7):
        mm(c, c == 0)
        free.append(abuf[c])
    stamp("D early")
    for c in range(7, 14):
        abuf[c] = free.pop(0)

    def late_issue():
        tl = []
        for c in range(7, 14):
            for mt in range(2):
                I(f"s_add_u32 s{sT1}, s{sAB}, {mt*112*1024 + kc_off(c)*1024}")
                ta[c, mt] = I(f"buffer_load_dwordx4 {vr(abuf[c]+4*mt,4)}, v{vL16}, {srd(sWS)}, s{sT1} offen sc1")
                tl.append(ta[c, mt])
        return tl
    HR = frag[0]
    hold = {}

    def late_fill():
        g.wait(twl)
        t = None
        for m in range(19, 28):
            t = wd_read(m)
        g.wait(t)
        I("s_barrier")
        I(f"v_and_b32 v{vT0}, 7, v0")
        I(f"v_lshrrev_b32 v{vT1}, 3, v0")
        I(f"v_and_b32 v{vT2}, 31, v{vT1}")
        I(f"v_lshlrev_b32 v{vT2}, 4, v{vT2}")
        I(f"v_lshl_add_u32 v{vT2}, v{vT0}, 9, v{vT2}")
        I(f"s_add_u32 s{sE}, s{sMD}, s{sWH}")
        I(f"s_mul_i32 s{sE}, s{sE}, {28*1024}")
        I(f"s_lshl_b32 s{sT1}, s{sCB}, 12")
        I(f"s_add_u32 s{sE}, s{sE}, s{sT1}")
        I(f"s_add_u32 s{sE}, s{sE}, {WS_H}")
        hold["thr"] = I(f"buffer_load_dwordx4 {vr(HR,4)}, v{vT2}, {srd(sWS)}, s{sE} offen sc1")
        I(f"s_mul_i32 s{sT0}, s{sW}, {64*272}")
        I(f"v_mul_u32_u24 v{vT3}, 272, v{vM}")
        I(f"v_lshl_add_u32 v{vT3}, v{vHB}, 4, v{vT3}")
        I(f"v_add_u32 v{vT3}, s{sT0}, v{vT3}")
        I(f"v_mul_u32_u24 v{vT4}, 272, v{vT1}")
        I(f"v_lshl_add_u32 v{vT4}, v{vT0}, 5, v{vT4}")
        I(f"v_add_u32 v{vT5}, {4*64*272}, v{vT4}")
        I(f"v_mul_u32_u24 v{vT2}, 896, v{vT1}")
        I(f"v_lshl_add_u32 v{vT2}, v{vT0}, 4, v{vT2}")
        I(f"s_mul_i32 s{sT0}, s{sMD}, {32*896}")
        I(f"s_lshl_b32 s{sT1}, s{sCB}, 7")
        I(f"s_add_u32 s{sT0}, s{sT0}, s{sT1}")
    spec_load(late_issue, [abuf[c] + 4 * mt for c in range(7, 14) for mt in range(2)], vFLAG, None, late_fill)
    stamp("hh late")
    for c in range(7, 14):
        for k_ in list(ta):
            ta[k_] = None
        mm(c, False)
    stamp("D mfma")
    for mt in range(2):
        for nt in range(2):
            for q in range(4):
                I(f"ds_write_b128 v{vT3}, {vr(DACC+(mt*2+nt)*16+4*q,4)} offset:{mt*32*272 + nt*128 + q*32}")
    g.wait(hold["thr"])
    U = 88
    for i in range(4):
        I(f"v_lshlrev_b32 v{U+2*i}, 16, v{HR+i}")
        I(f"v_and_b32 v{U+2*i+1}, 0xffff0000, v{HR+i}")
    g.wait_all(vm=False)
    I("s_barrier")
    R = 16
    for w in range(8):
        for q in range(2):
            I(f"ds_read_b128 {vr(R+w*8+q*4,4)}, v{vT4 if w < 4 else vT5} offset:{(w%4)*64*272 + q*16}")
    g.wait_all(vm=False)
    for k in (32, 16, 8):
        for i in range(k):
            I(f"v_add_f32 v{R+i}, v{R+i}, v{R+k+i}")
    for i in range(8):
        I(f"v_add_f32 v{R+i}, v{R+i}, v{U+i}")
    for i in range(4):
        I(f"v_cvt_pk_bf16_f32 v{R+8+i}, v{R+2*i}, v{R+2*i+1}")
    I(f"buffer_store_dwordx4 {vr(R+8,4)}, v{vT2}, {srd(sOUT)}, s{sT0} offen")
    stamp("end")
    stamp("rt1", rt=True)


prologue()
two = phaseA()
twd = phaseB(two)
phaseCD(twd)
g.label("L_end")
I("s_endpgm")
for tl_ in TAILS:
    g.put(tl_)
g.insert_bg()
g.resolve_waits()
g.fix_hazards_fast()

hdr = open("cdna_kernels/" + NAME + ".s.ref").read().split("; Override launch geometry")[0]
out = hdr + f"""; @launch grid=(256,1,1) block=(512,1,1) lds=163840
.amdgcn_target "amdgcn-amd-amdhsa--gfx950"
.text
.globl {NAME}_kernel
.p2align 8
.type {NAME}_kernel,@function
{NAME}_kernel:
L_code_start:
{g.text()}
L_code_end:
.fill 64, 4, 0xbf800000
.section .rodata,"a"
.p2align 6
.amdhsa_kernel {NAME}_kernel
  .amdhsa_next_free_vgpr 256
  .amdhsa_next_free_sgpr 100
  .amdhsa_accum_offset 256
  .amdhsa_group_segment_fixed_size 0
  .amdhsa_kernarg_size 88
  .amdhsa_user_sgpr_count 2
  .amdhsa_user_sgpr_kernarg_segment_ptr 1
  .amdhsa_system_sgpr_workgroup_id_x 1
.end_amdhsa_kernel
"""
import subprocess, re as _re
open("_sz.s", "w").write(out.replace("CODE_LAST", "0x1000"))
subprocess.run(["clang", "-x", "assembler", "-target", "amdgcn-amd-amdhsa", "-mcpu=gfx950", "-c", "_sz.s", "-o", "_sz.o"], check=True)
_h = subprocess.run(["llvm-objdump", "-h", "_sz.o"], capture_output=True, text=True).stdout
_sz = int(_re.search(r"\.text\s+([0-9a-f]+)", _h).group(1), 16)
out = out.replace("CODE_LAST", hex(_sz - 256))
print("code bytes", _sz)
open(sys.argv[1], "w").write(out)
if STAMPS:
    open(sys.argv[1] + ".names", "w").write("\n".join(stamp_names))
print("instrs:", sum(1 for it in g.items if it.kind == "i"), "stamps:", nstamp[0])
```

```python
import sys, math, struct, os
sys.path.insert(0, "dev")
from gen import *

NAME = "sequential_preLN__linear_kernel_hedgehog__glu_gated_geglu__prompt"
STAMPS = int(sys.argv[2]) if len(sys.argv) > 2 else 0
EXP = sys.argv[3].split(",") if len(sys.argv) > 3 else []


def f32(x):
    return "0x%08x" % struct.unpack("<I", struct.pack("<f", x))[0]


WS_CNT = 0x0
WS_CS = 0x10000
WS_ST = 0x50000
WS_KVP = 0x100000
WS_O = 0x200000
WS_H = 0x400000
WS_HH = 0x600000
WS_STAMP = 0xE00000
CNT_KV, CNT_O, CNT_H, CNT_HH = 0, 1, 2, 3

sX, sWQKV, sWPHI, sWO, sWG, sWU, sWD, sOUT, sDBG, sWS = 8, 12, 16, 20, 24, 28, 32, 36, 40, 44
sG, sJ, sW = 48, 49, 50
sT0, sT1, sT2, sT3, sT4, sT5 = 51, 52, 53, 54, 55, 56
sW3, sWH = 57, 58
sA, sB, sC, sD, sE = 59, 60, 61, 62, 63
sSTAMP = 86
sGATH, sWB, sCW, sCL, sLOG = 88, 89, 90, 91, 92
sGB, sJB, sJC, sLI, sXC, sLW, sSTO = 93, 94, 95, 96, 97, 98, 99
OOB = 0x7ff00000
sBG, sWOB, sKVS, sOS, sHS, sSS, sHHS = 68, 70, 71, 72, 73, 74, 75


def srd(r):
    return f"s[{r}:{r+3}]"


def vr(a, n=1):
    return f"v{a}" if n == 1 else f"v[{a}:{a+n-1}]"


def ar(a, n=1):
    return f"a{a}" if n == 1 else f"a[{a}:{a+n-1}]"


g = Gen()
I = g.I
nstamp = [0]
stamp_names = []

vLANE, vG, vM16 = 1, 2, 3
vL16 = 4
vT0, vT1, vT2, vT3, vT4, vT5 = 5, 6, 7, 8, 9, 10
vFLAG, vONE, vCNT, vINIT, vDMY = 11, 12, 13, 14, 15


def stamp(name="", rt=False):
    if not STAMPS:
        return
    k = nstamp[0]
    nstamp[0] += 1
    stamp_names.append(name)
    g.cond_begin()
    I(f"{'s_memrealtime' if rt else 's_memtime'} s[{sSTAMP}:{sSTAMP+1}]")
    I("s_waitcnt lgkmcnt(0)")
    I(f"v_mov_b32 v{vCNT}, s{sSTAMP}")
    I(f"buffer_store_dword v{vCNT}, off, {srd(sWS)}, s{sSTO} offset:{4*k}")
    g.cond_end()


UNIT = 14336
LDS_WK = 8 * UNIT
LDS_KVF = 11 * UNIT
LDS_CS = LDS_KVF + 4096
LDS_FLG = LDS_CS + 1024
LDS_WPL = 10 * UNIT + 8192
LDS_KV2 = 73728
LDS_BSCR = 6 * UNIT


def prologue():
    I("s_cmp_ge_u32 s2, 256")
    I("s_cbranch_scc1 L_end")
    I("s_setprio 3")
    if "span" in EXP:
        I("s_memrealtime s[86:87]")
        I("s_memtime s[100:101]")
    I(f"s_load_dwordx2 s[{sX}:{sX+1}], s[0:1], 0")
    I("s_getpc_b64 s[4:5]")
    I(f"v_lshlrev_b32 v{vT0}, 7, v0")
    I(f"v_min_u32 v{vT0}, CODE_LAST, v{vT0}")
    I(f"global_load_dword v{vDMY}, v{vT0}, s[4:5]")
    I("s_load_dwordx16 s[64:79], s[0:1], 0")
    I("s_load_dwordx4 s[80:83], s[0:1], 64")
    I("s_load_dwordx2 s[84:85], s[0:1], 80")
    I(f"v_and_b32 v{vLANE}, 63, v0")
    I(f"v_lshrrev_b32 v{vT0}, 6, v0")
    I(f"v_readfirstlane_b32 s{sW}, v{vT0}")
    I(f"v_lshrrev_b32 v{vG}, 4, v{vLANE}")
    I(f"s_bfe_u32 s{sT0}, s2, 0x20001")
    I(f"s_lshl_b32 s{sT0}, s{sT0}, 2")
    I(f"s_bfe_u32 s{sT1}, s2, 0x20003")
    I(f"s_add_u32 s{sG}, s{sT0}, s{sT1}")
    I(f"s_mov_b32 s{sX+2}, 1835008")
    I(f"s_mov_b32 s{sX+3}, 0x20000")
    I(f"v_lshrrev_b32 v{vT0}, 3, v{vLANE}")
    I(f"v_mul_u32_u24 v{vT0}, 896, v{vT0}")
    I(f"v_and_b32 v{vT1}, 7, v{vLANE}")
    I(f"v_xor_b32 v{vT3}, v{vT1}, v{vG}")
    I(f"v_lshl_add_u32 v{vXA0}, v{vT3}, 4, v{vT0}")
    I(f"v_xor_b32 v{vT3}, 4, v{vT3}")
    I(f"v_lshl_add_u32 v{vXA1}, v{vT3}, 4, v{vT0}")
    I(f"s_lshl_b32 s{sA}, s{sG}, 3")
    I(f"s_add_u32 s{sA}, s{sA}, s{sW}")
    I(f"s_mul_i32 s{sB}, s{sA}, {16*896}")
    I(f"s_add_u32 s{sC}, s{sB}, {8*896}")
    I(f"s_mul_i32 s{sLW}, s{sW}, {UNIT}")
    if "not0" not in EXP:
        I(f"s_lshr_b32 s{sLI}, s2, 3")
        I(f"s_mul_i32 s{sT2}, s{sLI}, {14*2688}")
        I(f"s_and_b32 s{sT3}, s2, 1")
        I(f"s_mul_i32 s{sT3}, s{sT3}, 384")
        I(f"s_add_u32 s{sT2}, s{sT2}, s{sT3}")
        I(f"s_mul_i32 s{sT3}, s{sW}, 896")
        I(f"s_add_u32 s{sT2}, s{sT2}, s{sT3}")
        I(f"s_cmp_ge_u32 s{sW}, 3")
        I(f"s_cselect_b32 s{sT3}, {OOB}, 0")
        I(f"s_add_u32 s{sT2}, s{sT2}, s{sT3}")
        I(f"v_lshrrev_b32 v{vT0}, 2, v{vLANE}")
        I(f"v_min_u32 v{vT0}, 13, v{vT0}")
        I(f"v_mul_u32_u24 v{vT0}, 2688, v{vT0}")
        I(f"v_and_b32 v{vT1}, 3, v{vLANE}")
        I(f"v_lshl_add_u32 v{vT4}, v{vT1}, 7, v{vT0}")
        I(f"s_mul_i32 s{sT4}, s{sT0}, 114688")
        I(f"s_mul_i32 s{sT5}, s{sLI}, 14336")
        I(f"s_add_u32 s{sT4}, s{sT4}, s{sT5}")
        I(f"s_sub_u32 s{sT5}, s{sW}, 3")
        I(f"s_cmp_lt_u32 s{sT5}, 2")
        I(f"s_cselect_b32 s{sT3}, 0, {OOB}")
        I(f"s_mul_i32 s{sT5}, s{sT5}, 7168")
        I(f"s_and_b32 s{sT5}, s{sT5}, 0x3fff")
        I(f"s_add_u32 s{sT4}, s{sT4}, s{sT5}")
        I(f"s_add_u32 s{sT4}, s{sT4}, s{sT3}")
        I(f"v_min_u32 v{vT5}, 55, v{vLANE}")
        I(f"v_lshlrev_b32 v{vT5}, 7, v{vT5}")
        I(f"s_mov_b32 s{sWQKV+2}, 1204224")
        I(f"s_mov_b32 s{sWQKV+3}, 0x20000")
    I("s_waitcnt lgkmcnt(0)")
    if "not0" not in EXP:
        I(f"s_mov_b64 s[{sWQKV}:{sWQKV+1}], s[66:67]")
        I(f"buffer_load_dword v{vDMY}, v{vT5}, {srd(sX)}, s{sT4} offen")
        I(f"buffer_load_dword v{vDMY}, v{vT4}, {srd(sWQKV)}, s{sT2} offen")


def prologue2():
    I(f"v_and_b32 v{vM16}, 15, v{vLANE}")
    I(f"v_lshlrev_b32 v{vL16}, 4, v{vLANE}")
    I(f"v_mov_b32 v{vONE}, 1")
    I(f"s_and_b32 s{sXC}, s2, 7")
    I(f"s_lshr_b32 s{sLI}, s2, 3")
    I(f"s_and_b32 s{sT2}, s{sXC}, 1")
    I(f"s_lshl_b32 s{sT3}, s{sT2}, 3")
    I(f"s_lshr_b32 s{sT4}, s{sLI}, 2")
    I(f"s_add_u32 s{sJ}, s{sT3}, s{sT4}")
    I(f"s_lshl_b32 s{sGB}, s{sXC}, 1")
    I(f"s_and_b32 s{sT5}, s{sLI}, 1")
    I(f"s_add_u32 s{sGB}, s{sGB}, s{sT5}")
    I(f"s_lshr_b32 s{sJB}, s{sLI}, 1")
    I(f"s_mul_i32 s{sJC}, s{sT2}, 7")
    I(f"s_add_u32 s{sJC}, s{sJC}, s{sT4}")
    I(f"s_cmp_eq_u32 s{sT4}, 7")
    I(f"s_cselect_b32 s{sJC}, 15, s{sJC}")
    I(f"s_and_b32 s{sW3}, s{sW}, 3")
    I(f"s_lshr_b32 s{sWH}, s{sW}, 2")
    I(f"s_lshl_b32 s{sCL}, s{sW}, 10")
    for r, p, n in ((sWQKV, 66, 1204224), (sWPHI, 68, 25088), (sWO, 70, 401408),
                    (sWG, 74, 1605632), (sWU, 76, 1605632), (sWD, 78, 1605632), (sOUT, 80, 1835008),
                    (sDBG, 82, 256), (sWS, 84, 0x10000000)):
        I(f"s_mov_b64 s[{r}:{r+1}], s[{p}:{p+1}]")
        I(f"s_mov_b32 s{r+2}, {n}")
        I(f"s_mov_b32 s{r+3}, 0x20000")
    if STAMPS:
        I(f"s_lshl_b32 s{sSTO}, s2, 3")
        I(f"s_add_u32 s{sSTO}, s{sSTO}, s{sW}")
        I(f"s_lshl_b32 s{sSTO}, s{sSTO}, 7")
        I(f"s_add_u32 s{sSTO}, s{sSTO}, {WS_STAMP}")


POLL_MAX = 200000


def poll(srdreg, voff, target):
    lp, ld = g.newlabel("L_poll"), g.newlabel("L_pdone")
    I(f"s_mov_b32 s{sT5}, 0")
    g.label(lp)
    I(f"buffer_load_dword v{vFLAG}, v{voff}, {srd(srdreg)}, 0 offen sc1")
    I("s_waitcnt vmcnt(0)")
    I(f"v_readfirstlane_b32 s{sT4}, v{vFLAG}")
    I(f"s_add_u32 s{sT5}, s{sT5}, 1")
    I(f"s_cmp_ge_u32 s{sT5}, {POLL_MAX}")
    I(f"s_cbranch_scc1 {ld}")
    I(f"s_cmp_lt_u32 s{sT4}, {target}")
    I(f"s_cbranch_scc1 {lp}")
    g.label(ld)


def signal(kind, sidx, toks, first=False):
    g.wait(*toks)
    I("s_barrier")
    lab = g.newlabel("L_sig")
    I(f"s_cmp_lg_u32 s{sW}, 0")
    I(f"s_cbranch_scc1 {lab}")
    g.cond_begin()
    I("s_mov_b64 exec, 1")
    if first:
        l2 = g.newlabel("L_ini")
        I(f"v_readfirstlane_b32 s{sT4}, v{vINIT}")
        I(f"s_cmp_lg_u32 s{sT4}, 0")
        I(f"s_cbranch_scc1 {l2}")
        I(f"v_mov_b32 v{vCNT}, 0")
        poll(sDBG, vCNT, 1)
        g.label(l2)
    I(f"s_lshl_b32 s{sT0}, s{sidx}, 8")
    I(f"s_add_u32 s{sT0}, s{sT0}, {WS_CNT + kind * 4096}")
    I(f"v_mov_b32 v{vCNT}, s{sT0}")
    I(f"buffer_atomic_add v{vONE}, v{vCNT}, {srd(sWS)}, 0 offen sc1")
    I("s_mov_b64 exec, -1")
    g.cond_end()
    g.label(lab)


def waitflag(kind, sidx, target=16):
    lab = g.newlabel("L_w")
    I(f"s_cmp_lg_u32 s{sW}, 0")
    I(f"s_cbranch_scc1 {lab}")
    g.cond_begin()
    I("s_mov_b64 exec, 1")
    I(f"s_lshl_b32 s{sT0}, s{sidx}, 8")
    I(f"s_add_u32 s{sT0}, s{sT0}, {WS_CNT + kind * 4096}")
    I(f"v_mov_b32 v{vCNT}, s{sT0}")
    poll(sWS, vCNT, target)
    I("s_mov_b64 exec, -1")
    g.cond_end()
    g.label(lab)
    I("s_barrier")


def dma2(vaddr, srdreg, sbase, src_imm, lds_sreg, lds_imm, stmp=None):
    stmp = sT1 if stmp is None else stmp
    I(f"s_add_u32 m0, s{lds_sreg}, {lds_imm}")
    I(f"s_add_u32 s{stmp}, s{sbase}, {src_imm}")
    return I(f"buffer_load_dwordx4 v{vaddr}, {srd(srdreg)}, s{stmp} offen lds")


def xreduce(op, a, t, levels=(16, 32)):
    for lv in levels:
        I(f"v_mov_b32 v{t}, v{a}")
        I(f"v_permlane{lv}_swap_b32 v{a}, v{t}")
        I(f"{op} v{a}, v{a}, v{t}")


LOG2E = 1.4426950408889634

XF = 16
WR = 72
WPHI = 100
WPH2 = 108
SEL = 116
ACC = 124
ACCV = 132
WF = 140
TMP = 172
PH = 196
vXA0, vXA1, vWA, vTR, vXR0, vXR1, vCA = 204, 205, 206, 207, 208, 209, 252
vTRb, vTRc, vWOA = 211, 212, 213


def chain16(acc, rd, swap=False, depth=3, hook=None):
    toks = {}
    nb = depth + 1
    n = 14
    for c in range(depth):
        toks[c] = rd(c, WF + 8 * (c % nb))
    for c in range(n):
        if c + depth < n:
            toks[c + depth] = rd(c + depth, WF + 8 * ((c + depth) % nb))
        g.wait(toks[c])
        X = vr(XF + 4 * c, 4)
        for t in range(2):
            W = vr(WF + 8 * (c % nb) + 4 * t, 4)
            a = vr(acc + 4 * t, 4)
            C = a if c > 0 else "0"
            if swap:
                I(f"v_mfma_f32_16x16x32_bf16 {a}, {X}, {W}, {C}")
            else:
                I(f"v_mfma_f32_16x16x32_bf16 {a}, {W}, {X}, {C}")
        if hook is not None:
            hook(c)


def featmap(acc, out):
    pk = TMP
    p = acc
    e = TMP + 4
    mx, mn, t0, t1 = TMP + 12, TMP + 13, TMP + 14, TMP + 15
    for i in range(4):
        I(f"v_cvt_pk_bf16_f32 v{pk+i}, v{acc+2*i}, v{acc+2*i+1}")
    I(f"v_mfma_f32_16x16x32_bf16 {vr(p,4)}, {vr(WPHI,4)}, {vr(pk,4)}, 0")
    I(f"v_mfma_f32_16x16x32_bf16 {vr(p+4,4)}, {vr(WPHI+4,4)}, {vr(pk,4)}, 0")
    I(f"v_max3_f32 v{mx}, v{p}, v{p+1}, v{p+2}")
    I(f"v_min3_f32 v{mn}, v{p}, v{p+1}, v{p+2}")
    for i in (3, 5):
        I(f"v_max3_f32 v{mx}, v{mx}, v{p+i}, v{p+i+1}")
        I(f"v_min3_f32 v{mn}, v{mn}, v{p+i}, v{p+i+1}")
    for lv in (16, 32):
        I(f"v_mov_b32 v{t0}, v{mx}")
        I(f"v_mov_b32 v{t1}, v{mn}")
        I(f"v_permlane{lv}_swap_b32 v{mx}, v{t0}")
        I(f"v_permlane{lv}_swap_b32 v{mn}, v{t1}")
        I(f"v_max_f32 v{mx}, v{mx}, v{t0}")
        I(f"v_min_f32 v{mn}, v{mn}, v{t1}")
    I(f"v_mul_f32 v{mx}, {f32(-LOG2E)}, v{mx}")
    I(f"v_mul_f32 v{mn}, {f32(LOG2E)}, v{mn}")
    e2 = TMP + 16
    for i in range(7):
        I(f"v_fma_f32 v{e+i}, v{p+i}, s{sLOG}, v{mx}")
        I(f"v_fma_f32 v{e2+i}, -v{p+i}, s{sLOG}, v{mn}")
    for i in range(7):
        I(f"v_exp_f32 v{e+i}, v{e+i}")
        I(f"v_exp_f32 v{e2+i}, v{e2+i}")
    I(f"v_add_f32 v{mx}, v{e}, v{e+1}")
    I(f"v_add_f32 v{mn}, v{e2}, v{e2+1}")
    for i in range(2, 7):
        I(f"v_add_f32 v{mx}, v{mx}, v{e+i}")
        I(f"v_add_f32 v{mn}, v{mn}, v{e2+i}")
    for lv in (16, 32):
        I(f"v_mov_b32 v{t0}, v{mx}")
        I(f"v_mov_b32 v{t1}, v{mn}")
        I(f"v_permlane{lv}_swap_b32 v{mx}, v{t0}")
        I(f"v_permlane{lv}_swap_b32 v{mn}, v{t1}")
        I(f"v_add_f32 v{mx}, v{mx}, v{t0}")
        I(f"v_add_f32 v{mn}, v{mn}, v{t1}")
    I(f"v_rcp_f32 v{mx}, v{mx}")
    I(f"v_rcp_f32 v{mn}, v{mn}")
    for i in range(7):
        I(f"v_mul_f32 v{e+i}, v{e+i}, v{mx}")
        I(f"v_mul_f32 v{e2+i}, v{e2+i}, v{mn}")
    for i in range(3):
        I(f"v_cvt_pk_bf16_f32 v{out+i}, v{e+2*i}, v{e+2*i+1}")
        I(f"v_cvt_pk_bf16_f32 v{out+4+i}, v{e2+2*i}, v{e2+2*i+1}")
    I(f"v_cvt_pk_bf16_f32 v{out+3}, v{e+6}, 0")
    I(f"v_cvt_pk_bf16_f32 v{out+7}, v{e2+6}, 0")


def c_batch(mat, dbl, n0, n1, lds_base):
    t = None
    assert n0 % 8 == 0 and n1 % 8 == 0
    for i in range(n0 // 8, n1 // 8):
        t = dma2(vCA, sWG if mat == 0 else sWU, sCW, i * 8 * 8 * 3584 + dbl * 128, sCL, lds_base + (i * 8 - n0) * 1024)
    return t


def c_bg(mat, dbl, n0, n1, lds_base, after, gap=150):
    t = None
    for i in range(n0 // 8, n1 // 8):
        g.begin()
        t = dma2(vCA, sWG if mat == 0 else sWU, sCW, i * 8 * 8 * 3584 + dbl * 128, sCL, lds_base + (i * 8 - n0) * 1024, stmp=sBG)
        g.bg_add(g.end(), after, gap)
        NBG[0] += 1
    return t


NBG = [0]
TWD = {}
NWDBG = [0]


def bg(fn, after=None, gap=150):
    g.begin()
    r = fn()
    g.bg_add(g.end(), after, gap)
    NBG[0] += 1
    return r


def flush():
    g.mark(f"flush:{NBG[0]}")


def check_loop(issue, regs, tmp, body=None):
    lp, ld = g.newlabel("L_dp"), g.newlabel("L_dpd")
    I(f"s_mov_b32 s{sT5}, 0")
    g.label(lp)
    toks = issue()
    if body is not None:
        body(toks)
    g.wait(toks[-1])
    rs = list(regs)
    if len(rs) == 1:
        I(f"v_cmp_eq_u32 vcc, -1, v{rs[0]}")
    else:
        first = True
        acc = None
        while rs:
            if acc is None:
                if len(rs) >= 3:
                    I(f"v_max3_u32 v{tmp}, v{rs[0]}, v{rs[1]}, v{rs[2]}")
                    rs = rs[3:]
                else:
                    I(f"v_max_u32 v{tmp}, v{rs[0]}, v{rs[1]}")
                    rs = rs[2:]
                acc = tmp
            elif len(rs) >= 2:
                I(f"v_max3_u32 v{tmp}, v{tmp}, v{rs[0]}, v{rs[1]}")
                rs = rs[2:]
            else:
                I(f"v_max_u32 v{tmp}, v{tmp}, v{rs[0]}")
                rs = rs[1:]
        I(f"v_cmp_eq_u32 vcc, -1, v{tmp}")
    I(f"s_add_u32 s{sT5}, s{sT5}, 1")
    I(f"s_cmp_ge_u32 s{sT5}, {POLL_MAX}")
    I(f"s_cbranch_scc1 {ld}")
    I(f"s_cmp_lg_u64 vcc, 0")
    I(f"s_cbranch_scc1 {lp}")
    g.label(ld)


def sent_check(regs, tmp):
    rs = list(regs)
    acc = None
    while rs:
        if acc is None:
            if len(rs) >= 3:
                I(f"v_max3_u32 v{tmp}, v{rs[0]}, v{rs[1]}, v{rs[2]}")
                rs = rs[3:]
            else:
                I(f"v_max_u32 v{tmp}, v{rs[0]}, v{rs[1]}")
                rs = rs[2:]
            acc = tmp
        elif len(rs) >= 2:
            I(f"v_max3_u32 v{tmp}, v{tmp}, v{rs[0]}, v{rs[1]}")
            rs = rs[2:]
        else:
            I(f"v_max_u32 v{tmp}, v{tmp}, v{rs[0]}")
            rs = rs[1:]
    I(f"v_cmp_eq_u32 vcc, -1, v{tmp}")


TAILS = []


def spec_load(issue, regs, tmp, body=None, filler=None):
    lr, lb = g.newlabel("L_sr"), g.newlabel("L_sb")
    toks = issue()
    if filler is not None:
        filler()
    if body is not None:
        body(toks)
    g.wait(toks[-1])
    sent_check(regs, tmp)
    I(f"s_cmp_lg_u64 vcc, 0")
    I(f"s_cbranch_scc1 {lr}")
    g.label(lb)
    g.begin()
    g.label(lr)
    check_loop(issue, regs, tmp, body)
    I(f"s_branch {lb}")
    TAILS.append(g.end())


def c_setup():
    I(f"v_lshrrev_b32 v{vT0}, 3, v{vLANE}")
    I(f"v_mul_u32_u24 v{vT1}, 3584, v{vT0}")
    I(f"v_and_b32 v{vT2}, 1, v{vG}")
    I(f"v_lshlrev_b32 v{vT2}, 2, v{vT2}")
    I(f"v_and_b32 v{vCA}, 7, v{vLANE}")
    I(f"v_xor_b32 v{vCA}, v{vCA}, v{vT2}")
    I(f"v_lshl_add_u32 v{vCA}, v{vCA}, 4, v{vT1}")
    I(f"s_cmp_ge_u32 s{sJC}, 14")
    I(f"s_cselect_b32 s{sT0}, {OOB}, 0")
    I(f"v_add_u32 v{vCA}, s{sT0}, v{vCA}")
    I(f"s_mul_i32 s{sCW}, s{sW}, {8*3584}")
    I(f"s_lshl_b32 s{sT0}, s{sJC}, 8")
    I(f"s_add_u32 s{sCW}, s{sCW}, s{sT0}")


def touch1():
    I(f"s_mul_i32 s{sT0}, s{sLI}, {98*128}")
    I(f"s_mul_i32 s{sT1}, s{sW}, {13*128}")
    I(f"s_add_u32 s{sT0}, s{sT0}, s{sT1}")
    I(f"v_lshlrev_b32 v{vT0}, 7, v{vLANE}")
    I(f"v_mov_b32 v{vT2}, {OOB}")
    I(f"v_cmp_gt_u32 vcc, 13, v{vLANE}")
    I(f"v_cndmask_b32 v{vT0}, v{vT2}, v{vT0}, vcc")
    I(f"buffer_load_dword v{vDMY}, v{vT0}, {srd(sWO)}, s{sT0} offen")
    I(f"s_lshr_b32 s{sT0}, s{sW}, 1")
    I(f"s_lshl_b32 s{sT2}, s{sT0}, 2")
    I(f"s_mul_i32 s{sT0}, s{sT0}, {4*3584}")
    I(f"s_mul_i32 s{sT1}, s{sLI}, {14*3584}")
    I(f"s_add_u32 s{sT0}, s{sT0}, s{sT1}")
    I(f"s_and_b32 s{sT1}, s{sXC}, 1")
    I(f"s_mul_i32 s{sT1}, s{sT1}, 1792")
    I(f"s_add_u32 s{sT0}, s{sT0}, s{sT1}")
    I(f"v_mul_u32_u24 v{vT0}, 3584, v{vG}")
    I(f"v_lshl_add_u32 v{vT0}, v{vM16}, 7, v{vT0}")
    I(f"v_cmp_gt_u32 vcc, 14, v{vM16}")
    I(f"v_cndmask_b32 v{vT0}, v{vT2}, v{vT0}, vcc")
    I(f"v_add_u32 v{vT1}, s{sT2}, v{vG}")
    I(f"v_cmp_gt_u32 vcc, 14, v{vT1}")
    I(f"v_cndmask_b32 v{vT0}, v{vT2}, v{vT0}, vcc")
    I(f"buffer_load_dword v{vDMY}, v{vT0}, s[4:7], s{sT0} offen")


def touch2():
    I(f"s_mul_i32 s{sT2}, s{sLI}, {392*128}")
    I(f"s_mul_i32 s{sT1}, s{sW}, {49*128}")
    I(f"s_add_u32 s{sT2}, s{sT2}, s{sT1}")
    I(f"v_lshlrev_b32 v{vT1}, 7, v{vLANE}")
    I(f"v_mov_b32 v{vT2}, {OOB}")
    I(f"v_cmp_gt_u32 vcc, 49, v{vLANE}")
    I(f"v_cndmask_b32 v{vT1}, v{vT2}, v{vT1}, vcc")
    I(f"buffer_load_dword v247, v{vT1}, {srd(sWD)}, s{sT2} offen")


sNQ, sMTB, sCSS, sMTC = 76, 77, 78, 79
vT8, vCSS, vHSA, vSSA = 210, 214, 215, 199 + 0


def addr_setup():
    I(f"s_lshl_b32 s{sGATH}, s{sJ}, 16")
    I(f"s_add_u32 s{sGATH}, s{sGATH}, {WS_KVP}")
    I(f"s_lshl_b32 s{sKVS}, s{sG}, 12")
    I(f"s_add_u32 s{sKVS}, s{sKVS}, s{sGATH}")
    I(f"s_lshl_b32 s{sOS}, s{sA}, 4")
    I(f"s_add_u32 s{sOS}, s{sOS}, s{sJ}")
    I(f"s_lshl_b32 s{sOS}, s{sOS}, 10")
    I(f"s_add_u32 s{sOS}, s{sOS}, {WS_O}")
    I(f"s_lshl_b32 s{sCSS}, s{sJC}, 4")
    I(f"s_add_u32 s{sCSS}, s{sCSS}, s{sG}")
    I(f"s_lshl_b32 s{sCSS}, s{sCSS}, 10")
    I(f"s_add_u32 s{sCSS}, s{sCSS}, {WS_CS}")
    I(f"s_and_b32 s{sNQ}, s{sJB}, 3")
    I(f"s_lshr_b32 s{sMTB}, s{sJB}, 2")
    I(f"s_lshl_b32 s{sT0}, s{sGB}, 2")
    I(f"s_add_u32 s{sMTB}, s{sMTB}, s{sT0}")
    I(f"s_mul_i32 s{sHS}, s{sMTB}, 28")
    I(f"s_lshl_b32 s{sT1}, s{sNQ}, 3")
    I(f"s_add_u32 s{sHS}, s{sHS}, s{sT1}")
    I(f"s_lshl_b32 s{sHS}, s{sHS}, 10")
    I(f"s_add_u32 s{sHS}, s{sHS}, {WS_H}")
    I(f"s_lshl_b32 s{sSS}, s{sMTB}, 2")
    I(f"s_add_u32 s{sSS}, s{sSS}, s{sNQ}")
    I(f"s_lshl_b32 s{sSS}, s{sSS}, 8")
    I(f"s_add_u32 s{sSS}, s{sSS}, {WS_ST}")
    I(f"s_lshl_b32 s{sMTC}, s{sG}, 2")
    I(f"s_add_u32 s{sMTC}, s{sMTC}, s{sW3}")
    I(f"s_mul_i32 s{sHHS}, s{sMTC}, {112*1024}")
    I(f"s_lshl_b32 s{sT0}, s{sJC}, 13")
    I(f"s_add_u32 s{sHHS}, s{sHHS}, s{sT0}")
    I(f"s_lshl_b32 s{sT0}, s{sWH}, 11")
    I(f"s_add_u32 s{sHHS}, s{sHHS}, s{sT0}")
    I(f"s_add_u32 s{sHHS}, s{sHHS}, {WS_HH}")
    I(f"s_cmp_ge_u32 s{sJC}, 14")
    I(f"s_cselect_b32 s{sT0}, {OOB}, 0")
    I(f"s_add_u32 s{sHHS}, s{sHHS}, s{sT0}")
    I(f"s_lshr_b32 s{sT0}, s{sW}, 1")
    I(f"s_lshl_b32 s{sT0}, s{sT0}, 10")
    I(f"s_and_b32 s{sT1}, s{sW}, 1")
    I(f"s_lshl_b32 s{sT1}, s{sT1}, 3")
    I(f"s_add_u32 s{sT0}, s{sT0}, s{sT1}")
    I(f"v_add_u32 v{vT8}, s{sT0}, v{vL16}")
    I(f"s_cmp_ge_u32 s{sW}, 4")
    I(f"s_cselect_b32 s{sT0}, {OOB}, 0")
    I(f"v_lshlrev_b32 v{vCSS}, 2, v0")
    I(f"v_add_u32 v{vCSS}, s{sT0}, v{vCSS}")
    I(f"s_lshl_b32 s{sT1}, s{sW}, 2")
    I(f"v_and_b32 v{vT0}, 3, v{vLANE}")
    I(f"v_add_u32 v{vT0}, s{sT1}, v{vT0}")
    I(f"v_lshrrev_b32 v{vT1}, 2, v{vLANE}")
    I(f"v_lshlrev_b32 v{vHSA}, 9, v{vT1}")
    I(f"v_lshl_add_u32 v{vHSA}, v{vT0}, 4, v{vHSA}")
    I(f"s_cmp_eq_u32 s{sNQ}, 3")
    I(f"s_cselect_b32 s{sT1}, 8, 16")
    I(f"v_cmp_gt_u32 vcc, s{sT1}, v{vT1}")
    I(f"v_mov_b32 v{vT1}, {OOB}")
    I(f"v_cndmask_b32 v{vHSA}, v{vT1}, v{vHSA}, vcc")


def stats_addr(dst, t0, t1):
    I(f"s_lshl_b32 s{sBG}, s{sW}, 5")
    I(f"v_lshlrev_b32 v{t0}, 3, v{vLANE}")
    I(f"v_add_u32 v{t0}, s{sBG}, v{t0}")
    I(f"v_mov_b32 v{t1}, {OOB}")
    I(f"v_cmp_gt_u32 vcc, 4, v{vLANE}")
    I(f"v_cndmask_b32 v{dst}, v{t1}, v{t0}, vcc")


def sentinels0():
    SN = 216
    for i in range(4):
        I(f"v_mov_b32 v{SN+i}, -1")
    I(f"buffer_store_dwordx2 {vr(SN,2)}, v{vT8}, {srd(sWS)}, s{sKVS} offen sc1")
    I(f"buffer_store_dwordx4 {vr(SN,4)}, v{vL16}, {srd(sWS)}, s{sOS} offen sc1")


def sentinels():
    SN = 216
    I(f"buffer_store_dword v{SN}, v{vCSS}, {srd(sWS)}, s{sCSS} offen sc1")
    I(f"buffer_store_dwordx4 {vr(SN,4)}, v{vHSA}, {srd(sWS)}, s{sHS} offen sc1")
    stats_addr(SN + 4, SN + 4, SN + 5)
    return I(f"buffer_store_dwordx2 {vr(SN,2)}, v{SN+4}, {srd(sWS)}, s{sSS} offen sc1")


def sent_hh(k):
    SN = 248
    I(f"s_add_u32 s{sBG}, s{sHHS}, {(k>>1)*4096 + (k&1)*1024}")
    return I(f"buffer_store_dwordx4 {vr(SN,4)}, v{vL16}, {srd(sWS)}, s{sBG} offen sc1")


def init_signal():
    lab = g.newlabel("L_is")
    I(f"s_cmp_lg_u32 s{sW}, 5")
    I(f"s_cbranch_scc1 {lab}")
    g.cond_begin()
    I("s_mov_b64 exec, 1")
    I(f"s_and_b32 s{sT0}, s2, 15")
    I(f"s_lshl_b32 s{sT0}, s{sT0}, 4")
    I(f"v_mov_b32 v{vCNT}, s{sT0}")
    I(f"buffer_atomic_add v{vONE}, v{vCNT}, {srd(sDBG)}, 0 offen sc1")
    I("s_mov_b64 exec, -1")
    g.cond_end()
    g.label(lab)


def init_check():
    lp, ld = g.newlabel("L_ic"), g.newlabel("L_icd")
    I(f"v_lshlrev_b32 v{vCNT}, 4, v{vM16}")
    I(f"s_mov_b32 s{sT5}, 0")
    g.label(lp)
    I("s_sleep 16")
    t = I(f"buffer_load_dword v{vINIT}, v{vCNT}, {srd(sDBG)}, 0 offen sc1")
    g.wait(t)
    I(f"v_cmp_gt_u32 vcc, 16, v{vINIT}")
    I(f"s_add_u32 s{sT5}, s{sT5}, 1")
    I(f"s_cmp_ge_u32 s{sT5}, {POLL_MAX}")
    I(f"s_cbranch_scc1 {ld}")
    I(f"s_cmp_lg_u64 vcc, 0")
    I(f"s_cbranch_scc1 {lp}")
    g.label(ld)


def phaseA():
    g.comment("==== phase A ====")
    if STAMPS:
        I("s_memrealtime s[96:97]")
        I("s_memtime s[94:95]")
        I("s_waitcnt lgkmcnt(0)")
        I("v_mov_b32 v250, s96")
        I("v_mov_b32 v251, s94")
    tx = {}
    for seg in range(7):
        for o in range(2):
            I(f"s_add_u32 m0, s{sLW}, {(o*7+seg)*1024 - seg*128}")
            tx[seg] = I(f"buffer_load_dwordx4 v{vXA1 if o else vXA0}, {srd(sX)}, s{sC if o else sB} offen offset:{seg*128} lds")
    I("s_setprio 2")
    prologue2()
    if STAMPS:
        for nm, r in (("rt0", 250), ("start", 251)):
            g.cond_begin()
            I(f"buffer_store_dword v{r}, off, {srd(sWS)}, s{sSTO} offset:{4*nstamp[0]}")
            g.cond_end()
            nstamp[0] += 1
            stamp_names.append(nm)
    I(f"v_lshrrev_b32 v{vT0}, 2, v{vLANE}")
    I(f"v_mul_u32_u24 v{vT0}, 2688, v{vT0}")
    I(f"v_and_b32 v{vT1}, 3, v{vLANE}")
    I(f"v_and_b32 v{vT2}, 2, v{vG}")
    I(f"v_xor_b32 v{vT1}, v{vT1}, v{vT2}")
    I(f"v_lshl_add_u32 v{vWA}, v{vT1}, 4, v{vT0}")
    I(f"s_mul_i32 s{sWB}, s{sJ}, 56")
    I(f"s_and_b32 s{sT1}, s{sJ}, 1")
    I(f"s_lshl_b32 s{sT1}, s{sT1}, 3")
    I(f"s_sub_u32 s{sWB}, s{sWB}, s{sT1}")
    I(f"s_mul_i32 s{sD}, s{sW}, {16*2688}")
    I(f"s_add_u32 s{sD}, s{sD}, s{sWB}")
    I(f"s_mov_b32 s{sLOG}, {f32(LOG2E)}")
    bgl = []
    bt = {}

    def bg_add(name, fn):
        bgl.append((name, fn))

    def bgq(n=1):
        for _ in range(n):
            if bgl:
                name, fn = bgl.pop(0)
                bt[name] = fn()
    for i in range(3):
        bg_add(f"wk{i}", lambda i=i: dma2(vWA, sWQKV, sD, 896 + i * 8 * 16 * 2688, sCL, LDS_WK + i * 8192))

    def wk3():
        I(f"s_cmp_ge_u32 s{sW}, 4")
        I(f"s_cselect_b32 s{sT0}, {OOB}, 0")
        I(f"s_add_u32 s{sT0}, s{sT0}, s{sD}")
        dma2(vWA, sWQKV, sT0, 896 + 3 * 8 * 16 * 2688, sCL, LDS_WK + 3 * 8192)
        I(f"v_lshlrev_b32 v{vT0}, 4, v0")
        I(f"v_mov_b32 v{vT1}, {OOB}")
        I(f"v_cmp_gt_u32 vcc, 98, v0")
        I(f"v_cndmask_b32 v{vT0}, v{vT1}, v{vT0}, vcc")
        I(f"s_min_u32 s{sT0}, s{sCL}, 2048")
        I(f"s_add_u32 m0, s{sT0}, {LDS_WPL}")
        I(f"s_mul_i32 s{sT0}, s{sJ}, 1568")
        return I(f"buffer_load_dwordx4 v{vT0}, {srd(sWPHI)}, s{sT0} offen lds")
    bg_add("wk3", wk3)
    addr_setup()
    I(f"s_cmp_ge_u32 s{sW}, 4")
    I(f"s_cselect_b32 s{sE}, {(24-4)*16*2688}, {1792 + 24*16*2688}" if False else f"s_mov_b32 s{sE}, {1792 + 24*16*2688}")
    I(f"s_cmov_b32 s{sE}, {20*16*2688}")
    I(f"s_add_u32 s{sE}, s{sE}, s{sD}")

    def rawW(i):
        if i == 3:
            return I(f"buffer_load_dwordx4 {vr(WR+12,4)}, v{vWA}, {srd(sWQKV)}, s{sE} offen")
        off = 1792 + i * 8 * 16 * 2688 if i < 3 else (i - 4) * 8 * 16 * 2688
        I(f"s_add_u32 s{sT1}, s{sD}, {off}")
        return I(f"buffer_load_dwordx4 {vr(WR+4*i,4)}, v{vWA}, {srd(sWQKV)}, s{sT1} offen")
    for i in range(4):
        bg_add(f"w{i}", lambda i=i: rawW(i))
    I(f"v_lshrrev_b32 v{vT0}, 3, v{vM16}")
    I(f"v_mul_u32_u24 v{vT0}, 7168, v{vT0}")
    I(f"v_add_u32 v{vT0}, s{sLW}, v{vT0}")
    I(f"v_and_b32 v{vT1}, 7, v{vM16}")
    I(f"v_lshl_add_u32 v{vT0}, v{vT1}, 7, v{vT0}")
    I(f"v_lshrrev_b32 v{vT1}, 1, v{vM16}")
    I(f"v_xor_b32 v{vT1}, v{vT1}, v{vG}")
    I(f"v_lshl_add_u32 v{vXR0}, v{vT1}, 4, v{vT0}")
    I(f"v_xor_b32 v{vXR1}, 64, v{vXR0}")
    I(f"v_bfe_u32 v{vT0}, v{vLANE}, 2, 2")
    I(f"v_lshl_add_u32 v{vT0}, v{vG}, 3, v{vT0}")
    I(f"v_lshlrev_b32 v{vT0}, 6, v{vT0}")
    I(f"v_and_b32 v{vT1}, 3, v{vLANE}")
    I(f"s_and_b32 s{sT1}, s{sJ}, 1")
    I(f"v_add_u32 v{vT1}, s{sT1}, v{vT1}")
    I(f"v_and_b32 v{vT2}, 1, v{vG}")
    I(f"v_lshlrev_b32 v{vT2}, 2, v{vT2}")
    I(f"v_xor_b32 v{vT1}, v{vT1}, v{vT2}")
    I(f"v_lshl_add_u32 v{vTR}, v{vT1}, 3, v{vT0}")
    I(f"v_lshrrev_b32 v{vT0}, 2, v{vM16}")
    I(f"v_and_b32 v{vT1}, 3, v{vM16}")
    I(f"v_cmp_eq_u32 vcc, v{vT0}, v{vG}")
    I(f"v_cndmask_b32 v{vT1}, 7, v{vT1}, vcc")
    I(f"v_mov_b32 v{vT3}, 0x3f80")
    I(f"v_mov_b32 v{vT4}, 0x3f800000")
    for i in range(2):
        I(f"v_cmp_eq_u32 vcc, {2*i}, v{vT1}")
        I(f"v_cndmask_b32 v{vT2}, 0, v{vT3}, vcc")
        I(f"v_cmp_eq_u32 vcc, {2*i+1}, v{vT1}")
        I(f"v_cndmask_b32 v{SEL+i}, v{vT2}, v{vT4}, vcc")
        I(f"v_mov_b32 v{SEL+6+i}, v{SEL+i}")
    for i in (2, 3, 4, 5):
        I(f"v_mov_b32 v{SEL+i}, 0")
    S1, S2 = ACC, ACC + 4
    for i in range(8):
        I(f"v_mov_b32 v{ACC+i}, 0")
    I(f"v_mov_b32 v{vT5}, 0x3f803f80")
    I(f"v_lshlrev_b32 v{vT0}, 2, v{vLANE}")
    I(f"v_add_u32 v{vT0}, {LDS_FLG}, v{vT0}")
    I(f"ds_write_b32 v{vT0}, v{ACC}")
    tw = {}
    bgq(2)
    sentinels0()
    for seg in range(7):
        g.wait(tx[seg])
        I(f"ds_read_b128 {vr(XF+8*seg,4)}, v{vXR0} offset:{seg*1024}")
        t = I(f"ds_read_b128 {vr(XF+8*seg+4,4)}, v{vXR1} offset:{seg*1024}")
        if seg in (1, 3, 5):
            bgq()
        g.wait(t)
        for k in range(8):
            r = XF + 8 * seg + k
            I(f"v_dot2_f32_bf16 v{S1+k%4}, v{r}, v{vT5}, v{S1+k%4}")
            I(f"v_dot2_f32_bf16 v{S2+k%4}, v{r}, v{r}, v{S2+k%4}")
    I("s_setprio 1")
    stamp("x stats")
    I(f"v_add_f32 v{S1}, v{S1}, v{S1+1}")
    I(f"v_add_f32 v{S1+2}, v{S1+2}, v{S1+3}")
    I(f"v_add_f32 v{S2}, v{S2}, v{S2+1}")
    I(f"v_add_f32 v{S2+2}, v{S2+2}, v{S2+3}")
    I(f"v_add_f32 v{S1}, v{S1}, v{S1+2}")
    I(f"v_add_f32 v{S2}, v{S2}, v{S2+2}")
    for lv in (16, 32):
        I(f"v_mov_b32 v{S1+1}, v{S1}")
        I(f"v_mov_b32 v{S2+1}, v{S2}")
        I(f"v_permlane{lv}_swap_b32 v{S1}, v{S1+1}")
        I(f"v_permlane{lv}_swap_b32 v{S2}, v{S2+1}")
        I(f"v_add_f32 v{S1}, v{S1}, v{S1+1}")
        I(f"v_add_f32 v{S2}, v{S2}, v{S2+1}")
    I(f"v_mul_f32 v{S1}, {f32(1/448)}, v{S1}")
    I(f"v_mul_f32 v{S2}, {f32(1/448)}, v{S2}")
    I(f"v_fma_f32 v{S2}, -v{S1}, v{S1}, v{S2}")
    I(f"v_max_f32 v{S2}, 0, v{S2}")
    I(f"v_add_f32 v{S2}, {f32(1e-5)}, v{S2}")
    RS, NB = ACCV, ACCV + 2
    I(f"v_rsq_f32 v{RS}, v{S2}")
    I(f"v_mul_f32 v{NB}, v{S1}, v{RS}")
    I(f"v_sub_f32 v{NB}, 0, v{NB}")
    I(f"v_mov_b32 v{RS+1}, v{RS}")
    I(f"v_mov_b32 v{NB+1}, v{NB}")
    TP = WF
    CSR = 248
    tcs = tinit = None
    for k in range(0, 56, 8):
        for u in range(8):
            I(f"v_lshlrev_b32 v{TP+2*u}, 16, v{XF+k+u}")
            I(f"v_and_b32 v{TP+2*u+1}, 0xffff0000, v{XF+k+u}")
        for u in range(8):
            I(f"v_pk_fma_f32 {vr(TP+2*u,2)}, {vr(TP+2*u,2)}, {vr(RS,2)}, {vr(NB,2)}")
        for u in range(8):
            I(f"v_cvt_pk_bf16_f32 v{XF+k+u}, v{TP+2*u}, v{TP+2*u+1}")
        if k in (0, 16, 32):
            bgq()
    I("s_setprio 0")
    stamp("normalized")
    I(f"v_mul_u32_u24 v{vT0}, 224, v{vG}")
    I(f"v_add_u32 v{vT0}, {LDS_WPL}, v{vT0}")
    I(f"v_lshl_add_u32 v{TMP}, v{vM16}, 1, v{vT0}")
    I(f"v_lshrrev_b32 v{vT2}, 2, v{vM16}")
    I(f"v_sub_u32 v{vT2}, v{vM16}, v{vT2}")
    I(f"v_lshl_add_u32 v{vT2}, v{vT2}, 1, v{vT0}")
    I(f"v_add_u32 v{TMP+1}, 32, v{vT2}")
    I(f"v_mov_b32 v{vT1}, {LDS_WPL + 1600}")
    I(f"v_and_b32 v{vT2}, 3, v{vM16}")
    I(f"v_cmp_eq_u32 vcc, 3, v{vT2}")
    I(f"v_cndmask_b32 v{TMP+1}, v{TMP+1}, v{vT1}, vcc")
    I(f"v_cmp_eq_u32 vcc, 3, v{vG}")
    I(f"v_cndmask_b32 v{TMP+2}, v{TMP}, v{vT1}, vcc")
    I(f"v_cndmask_b32 v{TMP+3}, v{TMP+1}, v{vT1}, vcc")
    I(f"v_add_u32 v{vTRb}, {LDS_WK}, v{vTR}")
    I(f"v_xor_b32 v{vTRc}, 32, v{vTRb}")
    def cs_loads():
        I(f"s_and_b32 s{sT0}, s{sW}, 1")
        I(f"s_cmp_eq_u32 s{sT0}, 1")
        I(f"s_cselect_b32 s4, s{sWU}, s{sWG}")
        I(f"s_cselect_b32 s5, s{sWU+1}, s{sWG+1}")
        I(f"s_mov_b32 s6, 1605632")
        I(f"s_mov_b32 s7, 0x20000")
        I(f"s_lshl_b32 s{sT0}, s{sG}, 2")
        I(f"s_lshr_b32 s{sT1}, s{sW}, 1")
        I(f"s_add_u32 s{sT0}, s{sT0}, s{sT1}")
        I(f"s_mul_i32 s{sT0}, s{sT0}, {7*3584}")
        I(f"s_lshl_b32 s{sT1}, s{sJC}, 8")
        I(f"s_add_u32 s{sT0}, s{sT0}, s{sT1}")
        I(f"s_cmp_ge_u32 s{sJC}, 14")
        I(f"s_cselect_b32 s{sT1}, {OOB}, 0")
        I(f"v_lshlrev_b32 v{vXA0}, 2, v{vLANE}")
        I(f"v_add_u32 v{vXA0}, s{sT1}, v{vXA0}")
        for r in range(7):
            if r:
                I(f"s_add_u32 s{sT0}, s{sT0}, 3584")
            tcs_ = I(f"buffer_load_dword v{CSR+r}, v{vXA0}, s[4:7], s{sT0} offen")
        return tcs_

    def init_load():
        I(f"v_mov_b32 v{vCNT}, 0")
        return I(f"buffer_load_dword v{vINIT}, v{vCNT}, {srd(sDBG)}, 0 offen sc1")
    bg_add("sent", sentinels)
    bg_add("cs", cs_loads)
    for i in (4, 5, 6):
        bg_add(f"w{i}", lambda i=i: rawW(i))
    g.wait(bt["wk3"])
    g.wait_all(vm=False)
    I("s_barrier")
    init_signal()

    def rdk(c, dst):
        I(f"ds_read_b64_tr_b16 {vr(dst,2)}, v{vTRb} offset:{c*2048}")
        I(f"ds_read_b64_tr_b16 {vr(dst+2,2)}, v{vTRb} offset:{c*2048+256}")
        I(f"ds_read_b64_tr_b16 {vr(dst+4,2)}, v{vTRc} offset:{c*2048}")
        return I(f"ds_read_b64_tr_b16 {vr(dst+6,2)}, v{vTRc} offset:{c*2048+256}")

    tphi = None
    for u in range(2):
        for j in range(8):
            d0 = j if j < 4 else 16 + j - 4
            va = TMP + u + (2 if j >= 4 else 0)
            dst = (WPH2 if j & 1 else WPHI) + 4 * u + j // 2
            tphi = I(f"ds_read_u16 v{dst}, v{va} offset:{d0*56}")
    I(f"v_lshrrev_b32 v{vWOA}, 3, v{vLANE}")
    I(f"v_mul_u32_u24 v{vWOA}, 896, v{vWOA}")
    I(f"v_and_b32 v{vT1}, 7, v{vLANE}")
    I(f"v_lshl_add_u32 v{vWOA}, v{vT1}, 4, v{vWOA}")
    I(f"s_lshl_b32 s{sWOB}, s{sNQ}, 1")
    I(f"s_add_u32 s{sWOB}, s{sWOB}, s{sWH}")
    I(f"s_cmp_eq_u32 s{sWOB}, 7")
    I(f"s_cselect_b32 s{sT1}, {OOB}, 0")
    I(f"s_lshl_b32 s{sWOB}, s{sWOB}, 7")
    I(f"s_add_u32 s{sWOB}, s{sWOB}, s{sT1}")
    I(f"s_mul_i32 s{sT1}, s{sW3}, {112*896}")
    I(f"s_add_u32 s{sWOB}, s{sWOB}, s{sT1}")
    two = {}

    def wo_load(i):
        I(f"s_add_u32 s{sBG}, s{sWOB}, {i*8*896}")
        two[i] = I(f"buffer_load_dwordx4 {woraw(i)}, v{vWOA}, {srd(sWO)}, s{sBG} offen")
    for i in range(8):
        bg_add(f"wo{i}", lambda i=i: wo_load(i))
    chain16(ACC, rdk, hook=lambda c: bgq() if c in (2, 5, 8, 11) else None)
    for i in range(8):
        I(f"v_lshl_or_b32 v{WPHI+i}, v{WPH2+i}, 16, v{WPHI+i}")
    stamp("k chain")
    I(f"v_add_u32 v{vT1}, s{sLW}, v{vL16}")
    I(f"s_cmp_ge_u32 s{sW}, 4")
    I(f"s_cselect_b32 s{sT0}, {10240-3072}, 0")
    I(f"v_add_u32 v{vT2}, s{sT0}, v{vT1}")
    g.wait(bt['w3'])
    for i in range(3):
        I(f"ds_write_b128 v{vT1}, {vr(WR+4*i,4)} offset:{i*1024}")
    t = I(f"ds_write_b128 v{vT2}, {vr(WR+12,4)} offset:3072")
    I(f"v_lshrrev_b32 v{vT0}, 1, v{vG}")
    I(f"v_mul_u32_u24 v{vT0}, {UNIT-1024}, v{vT0}")
    I(f"v_add_u32 v{vTRb}, v{vT0}, v{vTR}")
    I(f"v_xor_b32 v{vTRc}, 32, v{vTRb}")
    I(f"v_add_u32 v{vXR0}, 57344, v{vTRb}")
    I(f"v_add_u32 v{vXR1}, 57344, v{vTRc}")
    g.wait(t)
    I("s_barrier")
    stamp("wv ready")

    def rdw(isq):
        def rd(c, dst):
            n0 = 2 * c
            if not isq:
                unit, off = n0 % 8, (n0 // 8) * 1024
            elif n0 < 24:
                unit, off = n0 % 8, 10240 + (1 + n0 // 8) * 1024
            else:
                unit, off = 4 + n0 - 24, 10240
            a0, a1 = (vTRb, vTRc) if unit < 4 else (vXR0, vXR1)
            off += (unit % 4) * UNIT
            I(f"ds_read_b64_tr_b16 {vr(dst,2)}, v{a0} offset:{off}")
            I(f"ds_read_b64_tr_b16 {vr(dst+2,2)}, v{a0} offset:{off+256}")
            I(f"ds_read_b64_tr_b16 {vr(dst+4,2)}, v{a1} offset:{off}")
            return I(f"ds_read_b64_tr_b16 {vr(dst+6,2)}, v{a1} offset:{off+256}")
        return rd

    g.begin()
    chain16(ACCV, rdw(False), swap=True, hook=lambda c: bgq() if c % 2 == 1 else None)
    main = g.end()
    g.begin()
    featmap(ACC, PH)
    for s_ in range(2):
        for u in range(2):
            I(f"v_mfma_f32_16x16x32_bf16 {vr(TMP+8*s_+4*u,4)}, {vr(PH+4*s_,4)}, {vr(SEL+4*u,4)}, 0")
    side = g.end()
    g.put(interleave(main, side, every=1, per=4))
    PT = PH
    for k in range(8):
        I(f"v_cvt_pk_bf16_f32 v{PT+k}, v{TMP+2*k}, v{TMP+2*k+1}")
    VF = ACC
    I(f"v_cmp_le_u32 vcc, 12, v{vM16}")
    for k in range(4):
        I(f"v_cvt_pk_bf16_f32 v{VF+k}, v{ACCV+2*k}, v{ACCV+2*k+1}")
    I(f"v_cndmask_b32 v{VF+2}, v{VF+2}, v{vT5}, vcc")
    I(f"v_cndmask_b32 v{VF+3}, v{VF+3}, v{vT5}, vcc")
    I(f"s_lshr_b32 s{sT0}, s{sW}, 1")
    I(f"s_lshl_b32 s{sT0}, s{sT0}, 10")
    I(f"s_and_b32 s{sT1}, s{sW}, 1")
    I(f"s_lshl_b32 s{sT1}, s{sT1}, 3")
    I(f"s_add_u32 s{sT0}, s{sT0}, s{sT1}")
    I(f"s_add_u32 s{sT0}, s{sT0}, {LDS_WK}")
    I(f"v_add_u32 v{vT0}, s{sT0}, v{vL16}")
    for k in range(4):
        I(f"ds_write_b64 v{vT0}, {vr(PT+2*k,2)} offset:{k*4096}")
    for k in range(2):
        I(f"ds_write_b64 v{vT0}, {vr(VF+2*k,2)} offset:{(4+k)*4096}")
    g.wait(bt['cs'])
    I(f"v_mov_b32 v{ACCV}, 0\nv_mov_b32 v{ACCV+1}, 0")
    for r in range(7):
        I(f"v_dot2_f32_bf16 v{ACCV}, v{CSR+r}, v{vT3}, v{ACCV}")
        I(f"v_dot2_f32_bf16 v{ACCV+1}, v{CSR+r}, v{vT4}, v{ACCV+1}")
    I(f"v_lshlrev_b32 v{vT1}, 3, v0")
    I(f"v_add_u32 v{vT1}, {LDS_KVF}, v{vT1}")
    I(f"ds_write_b64 v{vT1}, {vr(ACCV,2)}")
    I(f"s_lshl_b32 s{sT0}, s{sWH}, 1")
    I(f"s_and_b32 s{sT1}, s{sW}, 1")
    I(f"s_add_u32 s{sT0}, s{sT0}, s{sT1}")
    I(f"s_lshl_b32 s{sT0}, s{sT0}, 12")
    I(f"s_add_u32 s{sT0}, s{sT0}, {LDS_WK}")
    I(f"v_add_u32 v{vT0}, s{sT0}, v{vL16}")
    I(f"s_bfe_u32 s{sT0}, s{sW}, 0x10001")
    I(f"s_lshl_b32 s{sT0}, s{sT0}, 12")
    I(f"s_add_u32 s{sT0}, s{sT0}, {LDS_WK + 4*4096}")
    I(f"v_add_u32 v{vT1}, s{sT0}, v{vL16}")
    g.wait_all(vm=False)
    I("s_barrier")
    R = WF
    tk = {}
    for p in range(4):
        I(f"ds_read_b128 {vr(R+8*p,4)}, v{vT0} offset:{p*1024}")
        tk[p] = I(f"ds_read_b128 {vr(R+8*p+4,4)}, v{vT1} offset:{p*1024}")
    I(f"v_lshlrev_b32 v{vXA0}, 2, v0")
    I(f"v_and_b32 v{vXA0}, 1023, v{vXA0}")
    I(f"v_add_u32 v{vXA0}, {LDS_KVF}, v{vXA0}")
    I(f"ds_read2st64_b32 {vr(ACCV,2)}, v{vXA0} offset0:0 offset1:4")
    tq = I(f"ds_read2st64_b32 {vr(ACCV+2,2)}, v{vXA0} offset0:8 offset1:12")
    for p in range(4):
        g.wait(tk[p])
        I(f"v_mfma_f32_16x16x32_bf16 {vr(ACC,4)}, {vr(R+8*p,4)}, {vr(R+8*p+4,4)}, {'0' if p == 0 else vr(ACC,4)}")
    g.wait(tq)
    I(f"v_add_f32 v{ACCV}, v{ACCV}, v{ACCV+1}")
    I(f"v_add_f32 v{ACCV+2}, v{ACCV+2}, v{ACCV+3}")
    I(f"v_add_f32 v{ACCV}, v{ACCV}, v{ACCV+2}")
    I(f"v_cvt_pk_bf16_f32 v{ACC+4}, v{ACC}, v{ACC+1}")
    I(f"v_cvt_pk_bf16_f32 v{ACC+5}, v{ACC+2}, v{ACC+3}")
    I(f"buffer_store_dwordx2 {vr(ACC+4,2)}, v{vT8}, {srd(sWS)}, s{sKVS} offen sc1")
    I(f"buffer_store_dword v{ACCV}, v{vCSS}, {srd(sWS)}, s{sCSS} offen sc1")
    stamp("kv stored")
    I(f"v_add_u32 v{vT1}, s{sLW}, v{vL16}")
    g.wait(bt['w6'])
    for i in range(4, 7):
        I(f"ds_write_b128 v{vT1}, {vr(WR+4*i,4)} offset:{10240+(i-3)*1024}")
    bgq(99)
    c_setup()
    d_setup()
    g.wait_all(vm=False)
    I("s_barrier")
    for i in range(4):
        I(f"v_mov_b32 v{248+i}, -1")
    for i in range(8, 14):
        bg(lambda: wo_load(i), None, 120)
    for k in range(4):
        bg(lambda: sent_hh(k), None, 120)
    g.mark("on")
    chain16(ACC, rdw(True))
    flush()
    I("s_barrier")
    g.mark("qdone")
    c_bg(0, 0, 0, 56, 0, "qdone")
    c_bg(1, 0, 0, 16, 57344, "qdone")
    I(f"v_lshlrev_b32 v{vCNT}, 4, v{vM16}")
    tini = I(f"buffer_load_dword v{vINIT}, v{vCNT}, {srd(sDBG)}, 0 offen sc1")
    featmap(ACC, PH)
    g.mark("off")
    GR, R, AO, OS = 40, 96, 176, 184
    WOF = 112
    vB1, vB2, vB3 = 188, 189, 190
    vK0, vK1, vK2 = 191, 192, 193
    lr, lb = g.newlabel("L_ir"), g.newlabel("L_ib")
    g.wait(tini)
    I(f"v_cmp_gt_u32 vcc, 16, v{vINIT}")
    I(f"s_cmp_lg_u64 vcc, 0")
    I(f"s_cbranch_scc1 {lr}")
    g.label(lb)
    g.begin()
    g.label(lr)
    init_check()
    I(f"s_branch {lb}")
    TAILS.append(g.end())
    stamp("q done")

    I(f"s_lshl_b32 s{sT0}, s{sWH}, 15")
    I(f"s_lshl_b32 s{sT1}, s{sW3}, 10")
    I(f"s_add_u32 s{sGATH}, s{sGATH}, s{sT0}")
    I(f"s_add_u32 s{sGATH}, s{sGATH}, s{sT1}")

    def gat_issue():
        tl = []
        I(f"s_mov_b32 s{sT0}, s{sGATH}")
        for rb in range(8):
            if rb:
                I(f"s_add_u32 s{sT0}, s{sT0}, 4096")
            tl.append(I(f"buffer_load_dwordx4 {vr(GR+4*rb,4)}, v{vL16}, {srd(sWS)}, s{sT0} offen sc1"))
        return tl

    def gat_body(tl):
        for i in range(8):
            I(f"v_mov_b32 v{R+i}, 0")
        for rb in range(8):
            g.wait(tl[rb])
            for i in range(4):
                I(f"v_dot2_f32_bf16 v{R+2*i}, v{GR+4*rb+i}, v{vT3}, v{R+2*i}")
                I(f"v_dot2_f32_bf16 v{R+2*i+1}, v{GR+4*rb+i}, v{vT4}, v{R+2*i+1}")

    def wo_bounce():
        I(f"v_lshrrev_b32 v{vK0}, 2, v{vM16}")
        I(f"v_sub_u32 v{vK0}, v{vM16}, v{vK0}")
        I(f"v_and_b32 v{vT1}, 3, v{vM16}")
        I(f"v_cmp_eq_u32 vcc, 3, v{vT1}")
        I(f"v_cndmask_b32 v{vK0}, v{vK0}, 12, vcc")
        I(f"v_lshl_add_u32 v{vK0}, v{vG}, 4, v{vK0}")
        I(f"v_lshlrev_b32 v{vK0}, 4, v{vK0}")
        I(f"v_add_u32 v{vK0}, {LDS_KV2}, v{vK0}")
        I(f"v_add_u32 v{vK1}, {LDS_KV2}, v{vL16}")
        I(f"v_add_u32 v{vK2}, s{sCL}, v{vK1}")
        I(f"s_mul_i32 s{sT0}, s{sW}, 8960")
        I(f"s_add_u32 s{sT0}, s{sT0}, {LDS_BSCR}")
        I(f"v_lshrrev_b32 v{vT1}, 3, v{vLANE}")
        I(f"v_mul_u32_u24 v{vT1}, 160, v{vT1}")
        I(f"v_and_b32 v{vT2}, 7, v{vLANE}")
        I(f"v_lshl_add_u32 v{vT1}, v{vT2}, 4, v{vT1}")
        I(f"v_add_u32 v{vB3}, s{sT0}, v{vT1}")
        I(f"v_bfe_u32 v{vT1}, v{vLANE}, 2, 2")
        I(f"v_lshl_add_u32 v{vB1}, v{vG}, 2, v{vT1}")
        I(f"v_min_u32 v{vT1}, 2, v{vT1}")
        I(f"v_mad_u32_u24 v{vB2}, v{vG}, 3, v{vT1}")
        I(f"v_add_u32 v{vB2}, 16, v{vB2}")
        I(f"v_and_b32 v{vT1}, 3, v{vLANE}")
        I(f"v_lshlrev_b32 v{vT1}, 3, v{vT1}")
        I(f"v_add_u32 v{vT1}, s{sT0}, v{vT1}")
        I(f"v_mul_u32_u24 v{vB1}, 160, v{vB1}")
        I(f"v_mul_u32_u24 v{vB2}, 160, v{vB2}")
        I(f"v_add_u32 v{vB1}, v{vB1}, v{vT1}")
        I(f"v_add_u32 v{vB2}, v{vB2}, v{vT1}")
        for rnd in range(2):
            g.wait(two[7 * rnd + 6])
            t = None
            for i in range(7):
                t = I(f"ds_write_b128 v{vB3}, {woraw(7*rnd+i)} offset:{i*1280}")
            g.wait(t)
            for h2 in range(2):
                for nt in range(4):
                    d = WOF + ((2 * rnd + h2) * 4 + nt) * 4
                    I(f"ds_read_b64_tr_b16 {vr(d,2)}, v{vB1} offset:{h2*4480+nt*32}")
                    t = I(f"ds_read_b64_tr_b16 {vr(d+2,2)}, v{vB2} offset:{h2*4480+nt*32}")
            g.wait(t)
    spec_load(gat_issue, [GR + 2 * k for k in range(16)], R + 12, gat_body, wo_bounce)
    g.mark("gdone")
    for i in range(4):
        I(f"v_cvt_pk_bf16_f32 v{R+8+i}, v{R+2*i}, v{R+2*i+1}")
    I(f"ds_write_b128 v{vK2}, {vr(R+8,4)}")
    g.mark("burst:3")
    g.wait_all(vm=False)
    stamp("gathered")
    I("s_barrier")
    KF = 40
    tk = {}
    for hf_ in range(2):
        for s_ in range(2):
            I(f"ds_read_b128 {vr(KF+16*hf_+8*s_,4)}, v{vK1} offset:{hf_*4096+s_*2048}")
            tk[hf_, s_] = I(f"ds_read_b128 {vr(KF+16*hf_+8*s_+4,4)}, v{vK0} offset:{hf_*4096+s_*2048+1024}")
    for hf_ in range(2):
        for s_ in range(2):
            g.wait(tk[hf_, s_])
            for t in range(2):
                a = vr(AO + 4 * t, 4)
                I(f"v_mfma_f32_16x16x32_bf16 {a}, {vr(KF+16*hf_+8*s_+4*t,4)}, {vr(PH+4*s_,4)}, {'0' if (s_ == 0 and hf_ == 0) else a}")
    I(f"v_add_f32 v{vT1}, {f32(1e-6)}, v{AO+7}")
    I(f"v_rcp_f32 v{vT1}, v{vT1}")
    for i in range(7):
        I(f"v_mul_f32 v{AO+i}, v{AO+i}, v{vT1}")
    for i in range(3):
        I(f"v_cvt_pk_bf16_f32 v{OS+i}, v{AO+2*i}, v{AO+2*i+1}")
    I(f"v_cvt_pk_bf16_f32 v{OS+3}, v{AO+6}, 0")
    I(f"buffer_store_dwordx4 {vr(OS,4)}, v{vL16}, {srd(sWS)}, s{sOS} offen sc1")
    stamp("o stored")
    if "t2b" in EXP:
        touch2()
    g.mark("on")
    return two


def woraw(i):
    return vr(216 + 4 * i, 4) if i < 8 else vr(WR + 4 * (i - 8), 4)


def phaseB(two):
    g.comment("==== phase B ====")
    OF = 216
    XR, XU, CSG = 176, 180, 188
    WOF = 112
    BACC = 72
    vB1, vB2, vB3 = 196, 197, 198
    vD1, vD2, vD3 = 199, 200, 201
    I(f"s_mul_i32 s{sT0}, s{sMTB}, {32*896}")
    I(f"s_lshl_b32 s{sT1}, s{sNQ}, 8")
    I(f"s_add_u32 s{sT0}, s{sT0}, s{sT1}")
    I(f"s_lshl_b32 s{sT1}, s{sW}, 2")
    I(f"v_and_b32 v{vT4}, 3, v{vLANE}")
    I(f"v_add_u32 v{vT4}, s{sT1}, v{vT4}")
    I(f"v_lshrrev_b32 v{vT5}, 2, v{vLANE}")
    I(f"v_mul_u32_u24 v{vT0}, 896, v{vT4}")
    I(f"v_lshl_add_u32 v{vT0}, v{vT5}, 4, v{vT0}")
    txr = I(f"buffer_load_dwordx4 {vr(XR,4)}, v{vT0}, {srd(sX)}, s{sT0} offen")
    g.mark("burst:3")
    I(f"s_lshl_b32 s{sD}, s{sMTB}, 5")
    I(f"s_lshl_b32 s{sT1}, s{sW3}, 2")
    I(f"s_add_u32 s{sD}, s{sD}, s{sT1}")
    I(f"s_lshl_b32 s{sD}, s{sD}, 10")
    I(f"s_add_u32 s{sD}, s{sD}, {WS_O}")
    I(f"s_add_u32 s{sE}, s{sD}, 16384")
    I(f"s_mul_i32 s{sT0}, s{sW3}, 17408")
    I(f"s_mul_i32 s{sT1}, s{sWH}, {8*1088}")
    I(f"s_add_u32 s{sT0}, s{sT0}, s{sT1}")
    I(f"s_add_u32 s{sT0}, s{sT0}, {LDS_BSCR}")
    I(f"v_lshrrev_b32 v{vT1}, 1, v{vG}")
    I(f"v_mul_u32_u24 v{vT1}, 1088, v{vT1}")
    I(f"v_and_b32 v{vT2}, 1, v{vG}")
    I(f"v_lshl_add_u32 v{vT1}, v{vT2}, 9, v{vT1}")
    I(f"v_lshl_add_u32 v{vT1}, v{vM16}, 4, v{vT1}")
    I(f"v_add_u32 v{vB1}, s{sT0}, v{vT1}")
    I(f"v_mul_u32_u24 v{vT1}, 1088, v{vT5}")
    I(f"v_lshl_add_u32 v{vT1}, v{vT4}, 4, v{vT1}")
    I(f"v_add_u32 v{vB2}, {LDS_BSCR}, v{vT1}")
    I(f"v_cmp_gt_u32 vcc, 0x10000, v{vHSA}")
    I(f"v_cndmask_b32 v{vT3}, 0, -1, vcc")
    stats_addr(vT2, vT0, vT1)
    I(f"v_mov_b32 v{vT5}, 0x3f803f80")
    g.wait(txr)
    for i in range(4):
        I(f"v_lshlrev_b32 v{XU+2*i}, 16, v{XR+i}")
        I(f"v_and_b32 v{XU+2*i+1}, 0xffff0000, v{XR+i}")
    g.mark("off")
    stamp("wo ready")

    def o_issue():
        tl = []
        for hh in range(4):
            for mt in range(2):
                tl.append(I(f"buffer_load_dwordx4 {vr(OF+(hh*2+mt)*4,4)}, v{vL16}, {srd(sWS)}, s{sE if mt else sD} offen offset:{hh*1024} sc1"))
        return tl

    def o_body(tl):
        for hh in range(4):
            for mt in range(2):
                g.wait(tl[hh * 2 + mt])
                for nt in range(4):
                    a = BACC + (mt * 4 + nt) * 4
                    I(f"v_mfma_f32_16x16x32_bf16 {vr(a,4)}, {vr(WOF+(hh*4+nt)*4,4)}, {vr(OF+(hh*2+mt)*4,4)}, {'0' if hh == 0 else vr(a,4)}")
    spec_load(o_issue, [OF + 4 * k for k in range(8)], vT0, o_body)
    stamp("B mfma")
    g.mark("burst:3")
    for mt in range(2):
        for nt in range(4):
            I(f"ds_write_b128 v{vB1}, {vr(BACC+(mt*4+nt)*4,4)} offset:{nt*2176+mt*256}")
    S1, S2 = 104, 105
    I(f"v_mov_b32 v{S1}, 0\nv_mov_b32 v{S2}, 0")
    g.wait_all(vm=False)
    I("s_barrier")
    b = 72
    for w in range(4):
        for q in range(2):
            I(f"ds_read_b128 {vr(b+w*8+q*4,4)}, v{vB2} offset:{w*17408+q*512}")
    g.wait_all(vm=False)
    HP = 108
    for i in range(8):
        I(f"v_add_f32 v{b+i}, v{b+i}, v{b+8+i}")
        I(f"v_add_f32 v{b+16+i}, v{b+16+i}, v{b+24+i}")
    for i in range(8):
        I(f"v_add_f32 v{b+i}, v{b+i}, v{XU+i}")
    for i in range(8):
        I(f"v_add_f32 v{b+i}, v{b+i}, v{b+16+i}")
    for i in range(4):
        I(f"v_cvt_pk_bf16_f32 v{HP+i}, v{b+2*i}, v{b+2*i+1}")
    I(f"buffer_store_dwordx4 {vr(HP,4)}, v{vHSA}, {srd(sWS)}, s{sHS} offen sc1")
    for i in range(4):
        I(f"v_dot2_f32_bf16 v{S1}, v{HP+i}, v{vT5}, v{S1}")
        I(f"v_dot2_f32_bf16 v{S2}, v{HP+i}, v{HP+i}, v{S2}")
    I(f"v_and_b32 v{S1}, v{vT3}, v{S1}")
    I(f"v_and_b32 v{S2}, v{vT3}, v{S2}")
    for ror in (4, 8):
        I(f"v_add_f32_dpp v{S1}, v{S1}, v{S1} row_ror:{ror} row_mask:0xf bank_mask:0xf")
        I(f"v_add_f32_dpp v{S2}, v{S2}, v{S2} row_ror:{ror} row_mask:0xf bank_mask:0xf")
    for lv in (16, 32):
        I(f"v_mov_b32 v106, v{S1}\nv_mov_b32 v107, v{S2}")
        I(f"v_permlane{lv}_swap_b32 v{S1}, v106")
        I(f"v_permlane{lv}_swap_b32 v{S2}, v107")
        I(f"v_add_f32 v{S1}, v{S1}, v106")
        I(f"v_add_f32 v{S2}, v{S2}, v107")
    I(f"buffer_store_dwordx2 v[{S1}:{S2}], v{vT2}, {srd(sWS)}, s{sSS} offen sc1")
    stamp("h stored")
    I("s_barrier")
    I(f"s_cmp_ge_u32 s{sJC}, 14")
    I("s_cbranch_scc1 L_end")
    tb2 = c_batch(1, 0, 16, 56, 57344 + 16384)
    I(f"s_lshl_b32 s{sT0}, s{sJC}, 14")
    I(f"s_lshl_b32 s{sT1}, s{sWH}, 13")
    I(f"s_add_u32 s{sT0}, s{sT0}, s{sT1}")
    I(f"s_add_u32 s{sT0}, s{sT0}, {WS_CS}")
    I(f"s_add_u32 s{sT1}, s{sT0}, 4096")
    I(f"v_lshlrev_b32 v{vB3}, 2, v0")
    I(f"v_and_b32 v{vB3}, 1023, v{vB3}")

    def cs_issue():
        return [I(f"buffer_load_dword v{CSG+rb}, v{vB3}, {srd(sWS)}, s{sT1 if rb >= 4 else sT0} offen offset:{(rb%4)*1024} sc1") for rb in range(8)]
    check_loop(cs_issue, [CSG + rb for rb in range(8)], vT0)
    for k in (4, 2, 1):
        for i in range(k):
            I(f"v_add_f32 v{CSG+i}, v{CSG+i}, v{CSG+k+i}")
    I(f"v_lshlrev_b32 v{vB3}, 2, v0")
    I(f"v_add_u32 v{vB3}, {LDS_KVF}, v{vB3}")
    I(f"ds_write_b32 v{vB3}, v{CSG}")


GK1 = -2.0 * math.sqrt(2.0 / math.pi) * LOG2E
GK2 = GK1 * 0.044715
LDS_X = 114688
vHB, vM, vWD = 254, 255, 253
sWDB = 80
WDE = 16
NWDE = 7
NWDC = int(os.environ.get('NWDC', '2'))


def hh_signal(stage, toks):
    g.wait(*toks)
    I("s_barrier")
    lab = g.newlabel("L_hs")
    I(f"s_cmp_lg_u32 s{sW}, 0")
    I(f"s_cbranch_scc1 {lab}")
    g.cond_begin()
    I("s_mov_b64 exec, 1")
    I(f"s_lshl_b32 s{sT0}, s{sG}, 8")
    I(f"s_add_u32 s{sT0}, s{sT0}, {WS_CNT + CNT_HH * 4096 + 64 * stage}")
    I(f"v_mov_b32 v{vCNT}, s{sT0}")
    I(f"buffer_atomic_add v{vONE}, v{vCNT}, {srd(sWS)}, 0 offen sc1")
    I("s_mov_b64 exec, -1")
    g.cond_end()
    g.label(lab)


def hh_poll(stage_sreg_or_imm):
    I("s_mov_b64 exec, 1")
    I(f"s_lshl_b32 s{sT0}, s{sGB}, 8")
    I(f"s_add_u32 s{sT0}, s{sT0}, {WS_CNT + CNT_HH * 4096}")
    I(f"s_add_u32 s{sT0}, s{sT0}, {stage_sreg_or_imm}")
    I(f"v_mov_b32 v{vCNT}, s{sT0}")
    poll(sWS, vCNT, 14)
    I("s_mov_b64 exec, -1")


def d_setup():
    I(f"v_lshrrev_b32 v{vHB}, 5, v{vLANE}")
    I(f"v_and_b32 v{vM}, 31, v{vLANE}")
    I(f"v_lshrrev_b32 v{vT0}, 3, v{vLANE}")
    I(f"v_mul_u32_u24 v{vT0}, 896, v{vT0}")
    I(f"v_and_b32 v{vT1}, 1, v{vG}")
    I(f"v_lshlrev_b32 v{vT1}, 2, v{vT1}")
    I(f"v_and_b32 v{vWD}, 7, v{vLANE}")
    I(f"v_xor_b32 v{vWD}, v{vWD}, v{vT1}")
    I(f"v_lshl_add_u32 v{vWD}, v{vWD}, 4, v{vT0}")
    I(f"s_cmp_ge_u32 s{sJB}, 7")
    I(f"s_cselect_b32 s{sRH}, 1, 0")
    I(f"s_mul_i32 s{sT0}, s{sRH}, 7")
    I(f"s_sub_u32 s{sCB}, s{sJB}, s{sT0}")
    I(f"s_lshl_b32 s{sT0}, s{sWH}, 1")
    I(f"s_add_u32 s{sT0}, s{sT0}, s{sW}")
    I(f"s_and_b32 s{sAA}, s{sT0}, 3")
    I(f"s_mul_i32 s{sKC}, s{sWH}, 56")
    I(f"s_add_u32 s{sKC}, s{sKC}, s{sAA}")
    I(f"s_mul_i32 s{sWDB}, s{sKC}, {16*896}")
    I(f"s_lshl_b32 s{sT1}, s{sCB}, 7")
    I(f"s_add_u32 s{sWDB}, s{sWDB}, s{sT1}")
    I(f"s_cmp_ge_u32 s{sJB}, 14")
    I(f"s_cselect_b32 s{sT1}, {OOB}, 0")
    I(f"s_add_u32 s{sWDB}, s{sWDB}, s{sT1}")


sRH, sCB, sAA, sKC = 64, 65, 66, 67


def kc_off(n):
    return 8 * n if n < 7 else 4 + 8 * (n - 7)


def wd_load(dst, n):
    t = None
    for hf_ in range(2):
        I(f"s_add_u32 s{sT3}, s{sWDB}, {(16*kc_off(n) + 8*hf_)*896}")
        for e in range(4):
            t = I(f"buffer_load_dword v{dst+4*hf_+e}, v{vWD}, {srd(sWD)}, s{sT3} offen offset:{e*896}")
    return t


def wd_half(dst, n, hf_):
    I(f"s_add_u32 s{sBG}, s{sWDB}, {(16*kc_off(n) + 8*hf_)*896}")
    return I(f"buffer_load_dwordx4 {vr(dst+4*hf_,4)}, v{vWD}, {srd(sWD)}, s{sBG} offen")


def dt_pattern(dst, t0, t1):
    I(f"v_bfe_u32 v{t0}, v{vLANE}, 2, 2")
    I(f"v_lshl_add_u32 v{t1}, v{vHB}, 2, v{t0}")
    I(f"v_lshlrev_b32 v{t1}, 7, v{t1}")
    I(f"v_lshrrev_b32 v{t0}, 1, v{t0}")
    I(f"v_lshl_add_u32 v{t1}, v{t0}, 6, v{t1}")
    I(f"v_and_b32 v{t0}, 1, v{vG}")
    I(f"v_lshl_add_u32 v{t1}, v{t0}, 5, v{t1}")
    I(f"v_and_b32 v{t0}, 3, v{vLANE}")
    I(f"v_lshl_add_u32 v{dst}, v{t0}, 3, v{t1}")


def c_rows(mat, dbl, r0, r1, lds_base):
    return c_batch(mat, dbl, r0, r1, lds_base)


def g1_addr(n):
    if n < 8:
        return 114688 + n * 1024
    if 24 <= n < 40:
        return 114688 + 8192 + (n - 24) * 1024
    if n < 24:
        return (n - 8) * 1024
    return 16384 + (n - 40) * 1024


def u1_addr(n):
    if n < 8:
        return 32768 + n * 1024
    if 24 <= n < 40:
        return 32768 + 8192 + (n - 24) * 1024
    if n < 24:
        return 57344 + (n - 8) * 1024
    return 57344 + 16384 + (n - 40) * 1024


def phaseCD(twd_early):
    g.comment("==== phase C ====")
    sMD, sHB, sMT = sC, sHHS, sMTC
    sAB = 7
    sL5, sL2, sL7 = 4, 5, 6
    I(f"s_mul_i32 s{sL5}, s{sW}, 5120")
    I(f"s_lshl_b32 s{sL2}, s{sW}, 11")
    I(f"s_mul_i32 s{sL7}, s{sW}, 7168")
    slotE = [(sL5, 73728 + i * 1024) for i in range(5)]
    slotM = [(sL5, 114688 + i * 1024) for i in range(5)] + [(sL2, i * 1024) for i in range(2)]
    slotL = [(sL7, 16384 + i * 1024) for i in range(7)]
    wslot = slotE + slotM + slotL + (slotE + slotM)[:9]

    def wd_dma(m):
        n, hf_ = m // 2, m % 2
        return dma2(vWD, sWD, sWDB, (16 * kc_off(n) + 8 * hf_) * 896, wslot[m][0], wslot[m][1])
    c_batch(0, 1, 0, 40, 114688)
    I(f"s_lshl_b32 s{sMD}, s{sGB}, 2")
    I(f"s_lshl_b32 s{sT0}, s{sRH}, 1")
    I(f"s_add_u32 s{sMD}, s{sMD}, s{sT0}")
    I(f"s_lshl_b32 s{sE}, s{sMT}, 10")
    I(f"s_add_u32 s{sE}, s{sE}, {WS_ST}")
    I(f"s_mul_i32 s{sWB}, s{sMT}, {28*1024}")
    I(f"s_add_u32 s{sWB}, s{sWB}, {WS_H}")
    I(f"s_mul_i32 s{sAB}, s{sMD}, {112*1024}")
    I(f"s_lshl_b32 s{sT1}, s{sKC}, 10")
    I(f"s_add_u32 s{sAB}, s{sAB}, s{sT1}")
    I(f"s_add_u32 s{sAB}, s{sAB}, {WS_HH}")
    HF = 16
    A_, B_, C_ = 128, 144, 160
    TM, CS2 = 176, 192
    WFc = 208
    vA0, vA1, vCSA, vFA, vA2 = 240, 241, 242, 243, 15
    K1, K2, IR2, NMU = 248, 249, 250, 251
    STR = 244
    I(f"v_bfe_u32 v{vT0}, v{vLANE}, 2, 2")
    I(f"v_lshl_add_u32 v{vT1}, v{vHB}, 3, v{vT0}")
    I(f"v_lshlrev_b32 v{vT1}, 7, v{vT1}")
    I(f"v_lshrrev_b32 v{vT0}, 1, v{vT0}")
    I(f"v_xor_b32 v{vT0}, s{sWH}, v{vT0}")
    I(f"v_lshl_add_u32 v{vT1}, v{vT0}, 6, v{vT1}")
    I(f"v_and_b32 v{vT2}, 1, v{vG}")
    I(f"v_lshl_add_u32 v{vT1}, v{vT2}, 5, v{vT1}")
    I(f"v_and_b32 v{vT2}, 3, v{vLANE}")
    I(f"v_lshl_add_u32 v{vA0}, v{vT2}, 3, v{vT1}")
    I(f"v_add_u32 v{vA1}, 57344, v{vA0}")
    I(f"v_add_u32 v{vA2}, 114688, v{vA0}")
    I(f"s_lshl_b32 s{sT0}, s{sWH}, 7")
    I(f"s_add_u32 s{sT0}, s{sT0}, {LDS_CS}")
    I(f"v_lshlrev_b32 v{vCSA}, 4, v{vHB}")
    I(f"v_add_u32 v{vCSA}, s{sT0}, v{vCSA}")
    I(f"v_mov_b32 v{vFA}, {LDS_FLG}")
    I(f"v_lshlrev_b32 v{vT3}, 3, v{vLANE}")
    flush()
    g.wait_all(vm=False)
    I("s_barrier")
    I(f"v_lshlrev_b32 v{vT0}, 2, v0")
    I(f"v_and_b32 v{vT0}, 1023, v{vT0}")
    I(f"v_add_u32 v{vT0}, {LDS_KVF}, v{vT0}")
    t = I(f"ds_read2st64_b32 v[72:73], v{vT0} offset0:0 offset1:4")
    g.wait(t)
    I(f"v_add_f32 v72, v72, v73")
    I(f"ds_write_b32 v{vT0}, v72 offset:4096")
    stamp("C ready")

    def st_issue():
        I(f"buffer_load_dwordx2 {vr(STR,2)}, v{vT3}, {srd(sWS)}, s{sE} offen sc1")
        return [I(f"buffer_load_dwordx2 {vr(STR+2,2)}, v{vT3}, {srd(sWS)}, s{sE} offen offset:512 sc1")]
    check_loop(st_issue, [STR, STR + 2], vT1)
    stamp("h flag")

    def h_issue():
        tl = []
        for c in range(28):
            if c % 4 == 0:
                I(f"s_add_u32 s{sT0}, s{sWB}, {c*1024}")
            tl.append(I(f"buffer_load_dwordx4 {vr(HF+4*c,4)}, v{vL16}, {srd(sWS)}, s{sT0} offen offset:{(c%4)*1024} sc1"))
        return tl
    g.begin()
    th = h_issue()
    hl = g.end()
    g.put(hl[:10])
    g.wait_all(vm=False)
    I("s_barrier")
    I(f"v_add_f32 v{STR}, v{STR}, v{STR+2}")
    I(f"v_add_f32 v{STR+1}, v{STR+1}, v{STR+3}")
    I(f"v_mov_b32 v{STR+2}, v{STR}\nv_mov_b32 v{STR+3}, v{STR+1}")
    I(f"v_permlane32_swap_b32 v{STR}, v{STR+2}")
    I(f"v_permlane32_swap_b32 v{STR+1}, v{STR+3}")
    I(f"v_add_f32 v{STR}, v{STR}, v{STR+2}")
    I(f"v_add_f32 v{STR+1}, v{STR+1}, v{STR+3}")
    I(f"v_mul_f32 v{NMU}, {f32(-1/448)}, v{STR}")
    I(f"v_mul_f32 v{STR+1}, {f32(1/448)}, v{STR+1}")
    I(f"v_fma_f32 v{STR+1}, -v{NMU}, v{NMU}, v{STR+1}")
    I(f"v_max_f32 v{STR+1}, 0, v{STR+1}")
    I(f"v_add_f32 v{IR2}, {f32(1e-5)}, v{STR+1}")
    I(f"v_rsq_f32 v{STR}, v{IR2}")
    I(f"v_mul_f32 v{K1}, {f32(GK1)}, v{STR}")
    I(f"v_mul_f32 v{STR+1}, v{STR}, v{STR}")
    I(f"v_mul_f32 v{STR+1}, v{STR+1}, v{STR}")
    I(f"v_mul_f32 v{K2}, {f32(GK2)}, v{STR+1}")
    tails = TAILS

    def cnt_add(f):
        I("s_mov_b64 exec, 1")
        I(f"ds_add_u32 v{vFA}, v{vONE} offset:{4*f}")
        I("s_mov_b64 exec, -1")

    def cnt_issue(f):
        return I(f"ds_read_b32 v{vFLAG}, v{vFA} offset:{4*f}")

    def cnt_check(f, t):
        lr, lb = g.newlabel("L_cr"), g.newlabel("L_cb")
        g.wait(t)
        I(f"v_readfirstlane_b32 s{sT4}, v{vFLAG}")
        I(f"s_cmp_lt_u32 s{sT4}, 8")
        I(f"s_cbranch_scc1 {lr}")
        g.label(lb)
        g.begin()
        g.label(lr)
        I(f"s_mov_b32 s{sT5}, 0")
        l2 = g.newlabel("L_cl")
        g.label(l2)
        I("s_sleep 1")
        cnt_issue(f)
        I("s_waitcnt lgkmcnt(0)")
        I(f"v_readfirstlane_b32 s{sT4}, v{vFLAG}")
        I(f"s_add_u32 s{sT5}, s{sT5}, 1")
        I(f"s_cmp_ge_u32 s{sT5}, {POLL_MAX*8}")
        I(f"s_cbranch_scc1 {lb}")
        I(f"s_cmp_lt_u32 s{sT4}, 8")
        I(f"s_cbranch_scc1 {l2}")
        I(f"s_branch {lb}")
        tails.append(g.end())

    def hsig_issue(f, toks):
        g.wait(*toks)
        I("s_mov_b64 exec, 1")
        t = I(f"ds_add_rtn_u32 v{vINIT}, v{vFA}, v{vONE} offset:{4*f}")
        I("s_mov_b64 exec, -1")
        return t

    def hsig_check(stage, t):
        lab = g.newlabel("L_hs")
        g.wait(t)
        I(f"v_readfirstlane_b32 s{sT4}, v{vINIT}")
        I(f"s_cmp_lg_u32 s{sT4}, 7")
        I(f"s_cbranch_scc1 {lab}")
        g.cond_begin()
        I("s_mov_b64 exec, 1")
        I(f"s_lshl_b32 s{sT0}, s{sG}, 8")
        I(f"s_add_u32 s{sT0}, s{sT0}, {WS_CNT + CNT_HH * 4096 + 64 * stage}")
        I(f"v_mov_b32 v{vCNT}, s{sT0}")
        I(f"buffer_atomic_add v{vONE}, v{vCNT}, {srd(sWS)}, 0 offen sc1")
        I("s_mov_b64 exec, -1")
        g.cond_end()
        g.label(lab)

    def cs_read(dst, mat, dbl):
        t = None
        for q in range(4):
            t = I(f"ds_read_b128 {vr(dst+4*q,4)}, v{vCSA} offset:{mat*512 + (64*dbl+8*q)*4}")
        return t

    def gpart(ag, t):
        g.wait(t)
        for i in range(16):
            I(f"v_fmac_f32 v{ag+i}, v{NMU}, v{TM+i}")
        for i in range(16):
            I(f"v_mul_f32 v{TM+i}, v{ag+i}, v{ag+i}")
        for i in range(16):
            I(f"v_fma_f32 v{TM+i}, v{TM+i}, v{K2}, v{K1}")
        for i in range(16):
            I(f"v_mul_f32 v{TM+i}, v{TM+i}, v{ag+i}")
        for i in range(16):
            I(f"v_exp_f32 v{TM+i}, v{TM+i}")
        for i in range(16):
            I(f"v_fma_f32 v{TM+i}, v{TM+i}, v{IR2}, v{IR2}")
        for i in range(16):
            I(f"v_rcp_f32 v{TM+i}, v{TM+i}")
        for i in range(16):
            I(f"v_mul_f32 v{TM+i}, v{ag+i}, v{TM+i}")

    def upart(au, t, dbl):
        g.wait(t)
        for i in range(16):
            I(f"v_fmac_f32 v{au+i}, v{NMU}, v{CS2+i}")
        for i in range(16):
            I(f"v_mul_f32 v{au+i}, v{au+i}, v{TM+i}")
        for i in range(8):
            I(f"v_cvt_pk_bf16_f32 v{CS2+i}, v{au+2*i}, v{au+2*i+1}")
        I(f"s_add_u32 s{sE}, s{sHB}, {dbl*4096}")
        I(f"buffer_store_dwordx4 {vr(CS2,4)}, v{vL16}, {srd(sWS)}, s{sE} offen sc1")
        return I(f"buffer_store_dwordx4 {vr(CS2+4,4)}, v{vL16}, {srd(sWS)}, s{sE} offen offset:1024 sc1")

    slots = []
    for c in range(28):
        slots.append((A_, c * 2048, c))
        slots.append((B_, 57344 + c * 2048, c))
    for c in range(28):
        slots.append((C_, 114688 + c * 2048 if c < 20 else (c - 20) * 2048, c))
    for c in range(28):
        slots.append((A_, 16384 + c * 2048, c))
    NS = 112
    PRC = int(os.environ.get('PRC', '14'))
    depth = int(os.environ.get('DEPTH', '4'))
    nb = depth + 1
    tok = {}

    def rd(i):
        off = slots[i][1]
        base = vA0
        if off >= 114688:
            base, off = vA2, off - 114688
        elif off >= 57344:
            base, off = vA1, off - 57344
        dst = WFc + 4 * (i % nb)
        I(f"ds_read_b64_tr_b16 {vr(dst,2)}, v{base} offset:{off}")
        tok[i] = I(f"ds_read_b64_tr_b16 {vr(dst+2,2)}, v{base} offset:{off+512}")

    sched = {i: [] for i in range(NS)}
    load = {i: 0.0 for i in range(NS)}
    BUDGET = float(os.environ.get("BUDGET", "6"))

    def cost(it):
        if it.kind != "i":
            return 0
        m = it.text.split()[0]
        if m in TRANS:
            return 2
        if m in ("v_fma_f32", "v_fmac_f32"):
            return 1.25
        if m.startswith("v_"):
            return 1
        if m.startswith(("ds_", "buffer")):
            return 0.4
        return 0.1

    def cap(fn):
        g.begin()
        r = fn()
        return g.end(), r

    def at(slot, fn):
        st, r = cap(fn)
        for it in st:
            sched[slot].append(it)
            load[slot] += cost(it)
        return r

    rest = []

    def flow(stream, slot):
        pend = []
        for it in stream:
            pend.append(it)
            if it.kind != "i":
                continue
            c = sum(cost(x) for x in pend)
            while slot < NS and load[slot] + c > BUDGET:
                slot += 1
            if slot >= NS:
                rest.extend(pend)
            else:
                sched[slot].extend(pend)
                load[slot] += c
            pend = []
        return slot

    k_ = 0
    for it in hl[10:]:
        sched[k_].append(it)
        if it.text.startswith("buffer"):
            k_ += 1

    def refill(f, free_slot, batches, need_slot):
        at(free_slot, lambda: cnt_add(f))
        t = at(free_slot + 2, lambda: cnt_issue(f))
        at(free_slot + 3, lambda: cnt_check(f, t))
        st, tb = cap(batches)
        for q in range(len(st) // 3):
            for it in st[3 * q:3 * q + 3]:
                sched[free_slot + 3 + 2 * q].append(it)
        if need_slot is not None:
            at(need_slot - depth - 3, lambda: (g.wait(tb), cnt_add(f + 1)))
            t2 = at(need_slot - depth - 2, lambda: cnt_issue(f + 1))
            at(need_slot - depth - 1, lambda: cnt_check(f + 1, t2))
        return tb
    at(56, lambda: cnt_add(0))
    t = at(57, lambda: cnt_issue(0))
    at(58, lambda: cnt_check(0, t))
    st1, tb1 = cap(lambda: c_batch(0, 1, 40, 56, 0))
    st2, tb2 = cap(lambda: c_batch(1, 1, 0, 56, 16384))
    st3, _ = cap(lambda: [wd_dma(m) for m in range(5)])
    st = st1 + st2 + st3
    pos = [58, 59, 60, 62, 63, 65, 66, 68, 69, 72, 74, 78, 80, 82]
    for q in range(14):
        sched[pos[q]].extend(st[3 * q:3 * q + 3])
    for f, tb, need in ((1, tb1, 76), (2, tb2, 84)):
        at(need - depth - 3, lambda: (g.wait(tb), cnt_add(f)))
        t2_ = at(need - depth - 2, lambda: cnt_issue(f))
        at(need - depth - 1, lambda: cnt_check(f, t2_))
    tM = refill(4, 84, lambda: [wd_dma(m) for m in range(5, 12)][-1], None)
    if "not2" not in EXP and "t2b" not in EXP:
        at(int(os.environ.get("T2", "40")), touch2)

    def h_issue_from(c0):
        def f():
            tl = []
            for c in range(c0, 28):
                if c % 4 == 0:
                    I(f"s_add_u32 s{sT2}, s{sWB}, {c*1024}")
                tl.append(I(f"buffer_load_dwordx4 {vr(HF+4*c,4)}, v{vL16}, {srd(sWS)}, s{sT2} offen offset:{(c%4)*1024} sc1"))
            return tl
        return f

    def hcheck(q):
        lr, lb = g.newlabel("L_hr"), g.newlabel("L_hb")
        g.wait(th[4 * q + 3])
        sent_check([HF + 4 * c for c in range(4 * q, 4 * q + 4)], vT1)
        I(f"s_cmp_lg_u64 vcc, 0")
        I(f"s_cbranch_scc1 {lr}")
        g.label(lb)
        g.begin()
        g.label(lr)
        check_loop(h_issue_from(4 * q), [HF + 4 * c for c in range(4 * q, 28)], vT1)
        I(f"s_branch {lb}")
        tails.append(g.end())
    t1 = at(54, lambda: cs_read(TM, 0, 0))
    t2 = at(55, lambda: cs_read(CS2, 1, 0))
    def epiA():
        g.wait(t2)
        for i in range(16):
            I(f"v_fmac_f32 v{A_+i}, v{NMU}, v{TM+i}")
        for i in range(16):
            I(f"v_fmac_f32 v{B_+i}, v{NMU}, v{CS2+i}")
        for i in range(16):
            I(f"v_mul_f32 v{TM+i}, v{A_+i}, v{A_+i}")
        for i in range(16):
            I(f"v_fma_f32 v{TM+i}, v{TM+i}, v{K2}, v{K1}")
        for i in range(16):
            I(f"v_mul_f32 v{TM+i}, v{TM+i}, v{A_+i}")
        for i in range(16):
            I(f"v_mul_f32 v{B_+i}, v{B_+i}, v{A_+i}")

    def epiB():
        for i in range(16):
            I(f"v_exp_f32 v{TM+i}, v{TM+i}")
        for i in range(16):
            I(f"v_fma_f32 v{TM+i}, v{TM+i}, v{IR2}, v{IR2}")
        for i in range(16):
            I(f"v_rcp_f32 v{TM+i}, v{TM+i}")
        for i in range(16):
            I(f"v_mul_f32 v{B_+i}, v{B_+i}, v{TM+i}")
        for i in range(8):
            I(f"v_cvt_pk_bf16_f32 v{CS2+i}, v{B_+2*i}, v{B_+2*i+1}")
        I(f"buffer_store_dwordx4 {vr(CS2,4)}, v{vL16}, {srd(sWS)}, s{sHB} offen sc1")
        return I(f"buffer_store_dwordx4 {vr(CS2+4,4)}, v{vL16}, {srd(sWS)}, s{sHB} offen offset:1024 sc1")
    st, _ = cap(epiA)
    e = flow(st, 57)
    assert e < 83, e
    st, tst0 = cap(epiB)
    e = flow(st, e)
    t1 = at(max(e, 85), lambda: cs_read(TM, 0, 1))
    t2 = at(min(e + 9, 109), lambda: cs_read(CS2, 1, 1))
    st, _ = cap(lambda: gpart(C_, t1))
    flow(st, max(e, 85) + 2)
    def flag_issue():
        I(f"s_lshl_b32 s{sT0}, s{sGB}, 8")
        I(f"s_add_u32 s{sT0}, s{sT0}, {WS_CNT + CNT_HH * 4096}")
        return I(f"buffer_load_dword v{vT4}, off, {srd(sWS)}, s{sT0} sc1")
    print("slot loads:", " ".join("%.0f" % load[i] for i in range(NS)), "rest", len(rest))
    for i in range(depth):
        rd(i)
    for i in range(NS):
        acc, off, c = slots[i]
        if i + depth < NS:
            rd(i + depth)
        if PRC and i % PRC == 0:
            I(f"s_setprio {3 - (i // PRC) % 4}")
        if i < 56 and i % 8 == 0:
            hcheck(i // 8)
        g.wait(tok[i])
        I(f"v_mfma_f32_32x32x16_bf16 {vr(acc,16)}, {vr(WFc+4*(i%nb),4)}, {vr(HF+4*c,4)}, {'0' if c == 0 else vr(acc,16)}")
        g.put(sched[i])
        if i in (55, 83, 111):
            stamp(f"slot{i}")
    g.put(rest)
    upart(A_, t2, 1)
    stamp("hh stored")
    DACC = 184
    frag = {n: 16 + 8 * (n % 7) for n in range(14)}
    abuf = {c: 72 + 8 * c for c in range(14)}
    ta = {}
    vP = {sL5: (vT0, vT1), sL2: (vT2, vT3), sL7: (vT4, vT5)}
    dt_pattern(vFLAG, vT0, vT1)
    for sreg, (a0, a1) in vP.items():
        I(f"v_add_u32 v{a0}, s{sreg}, v{vFLAG}")
        if sreg == sL5:
            I(f"v_add_u32 v{a0}, 73728, v{a0}")
        I(f"v_xor_b32 v{a1}, 64, v{a0}")

    def wd_read(m):
        n, rd_ = m // 2, m % 2
        sreg, imm = wslot[m]
        a = vP[sreg]
        if sreg == sL5:
            imm -= 73728
        t = None
        for nt in range(2):
            t = I(f"ds_read_b64_tr_b16 {vr(frag[n]+4*nt+2*rd_,2)}, v{a[nt]} offset:{imm}")
        return t

    def lda(c):
        for mt in range(2):
            I(f"s_add_u32 s{sT1}, s{sAB}, {mt*112*1024 + kc_off(c)*1024}")
            ta[c, mt] = I(f"buffer_load_dwordx4 {vr(abuf[c]+4*mt,4)}, v{vL16}, {srd(sWS)}, s{sT1} offen sc1")

    def mm(c, first):
        for mt in range(2):
            g.wait(ta[c, mt])
            for nt in range(2):
                a = DACC + (mt * 2 + nt) * 16
                I(f"v_mfma_f32_32x32x16_bf16 {vr(a,16)}, {vr(frag[c]+4*nt,4)}, {vr(abuf[c]+4*mt,4)}, {'0' if first else vr(a,16)}")
    I("s_setprio 3")
    g.wait(tM)
    t = None
    for m in range(12):
        t = wd_read(m)
    I("s_barrier")
    twd = {}
    for m in range(12, 19):
        twd[m] = wd_dma(m)
    g.wait(t)
    for m in range(19, 28):
        twd[m] = wd_dma(m)
    stamp("wd issued")
    I("s_setprio 2")
    for c in range(14):
        lda(c)
        if c == 6:
            I("s_setprio 1")
    I("s_setprio 0")
    tmain = dict(ta)
    HR = 248
    I(f"v_and_b32 v{vINIT}, 7, v0")
    I(f"v_lshrrev_b32 v{vCNT}, 3, v0")
    I(f"v_and_b32 v{vFLAG}, 31, v{vCNT}")
    I(f"v_lshlrev_b32 v{vFLAG}, 4, v{vFLAG}")
    I(f"v_lshl_add_u32 v{vFLAG}, v{vINIT}, 9, v{vFLAG}")
    I(f"s_add_u32 s{sE}, s{sMD}, s{sWH}")
    I(f"s_mul_i32 s{sE}, s{sE}, {28*1024}")
    I(f"s_lshl_b32 s{sT1}, s{sCB}, 12")
    I(f"s_add_u32 s{sE}, s{sE}, s{sT1}")
    I(f"s_add_u32 s{sE}, s{sE}, {WS_H}")
    hold = {}

    def acheck(c0, c1):
        lr, lb = g.newlabel("L_ar"), g.newlabel("L_ab")
        g.wait(tmain[c1 - 1, 1])
        sent_check([abuf[c] + 4 * mt for c in range(c0, c1) for mt in range(2)], 252)
        I(f"s_cmp_lg_u64 vcc, 0")
        I(f"s_cbranch_scc1 {lr}")
        g.label(lb)
        g.begin()
        g.label(lr)

        def iss():
            for c in range(c0, 14):
                lda(c)
            return [ta[13, 1]]
        check_loop(iss, [abuf[c] + 4 * mt for c in range(c0, 14) for mt in range(2)], 252)
        I(f"s_branch {lb}")
        tails.append(g.end())
    tr_ = {}
    groups = [(0, 2), (2, 4), (4, 7), (7, 9), (9, 11), (11, 14)]
    for (c0, c1) in groups:
        acheck(c0, c1)
        if c0 == 0:
            wd_read(12)
            tr_[6] = wd_read(13)
            hold["thr"] = I(f"buffer_load_dwordx4 {vr(HR,4)}, v{vFLAG}, {srd(sWS)}, s{sE} offen sc1")
        for k_ in list(ta):
            ta[k_] = None
        for c in range(c0, c1):
            if c in tr_:
                g.wait(tr_[c])
            mm(c, c == 0)
            if c < 7:
                wd_read(2 * (c + 7))
                tr_[c + 7] = wd_read(2 * (c + 7) + 1)
        if c1 == 7:
            stamp("D early")
        if c0 == 7:
            g.wait_all(vm=False)
            I("s_barrier")
            I(f"v_and_b32 v{vT0}, 7, v0")
            I(f"v_lshrrev_b32 v{vT1}, 3, v0")
            I(f"s_mul_i32 s{sT0}, s{sW}, {64*272}")
            I(f"v_mul_u32_u24 v{vT3}, 272, v{vM}")
            I(f"v_lshl_add_u32 v{vT3}, v{vHB}, 4, v{vT3}")
            I(f"v_add_u32 v{vT3}, s{sT0}, v{vT3}")
            I(f"v_mul_u32_u24 v{vT4}, 272, v{vT1}")
            I(f"v_lshl_add_u32 v{vT4}, v{vT0}, 5, v{vT4}")
            I(f"v_add_u32 v{vT5}, {4*64*272}, v{vT4}")
            I(f"v_mul_u32_u24 v{vT2}, 896, v{vT1}")
            I(f"v_lshl_add_u32 v{vT2}, v{vT0}, 4, v{vT2}")
            I(f"s_mul_i32 s{sT0}, s{sMD}, {32*896}")
            I(f"s_lshl_b32 s{sT2}, s{sCB}, 7")
            I(f"s_add_u32 s{sT0}, s{sT0}, s{sT2}")
    stamp("D mfma")
    for mt in range(2):
        for nt in range(2):
            for q in range(4):
                I(f"ds_write_b128 v{vT3}, {vr(DACC+(mt*2+nt)*16+4*q,4)} offset:{mt*32*272 + nt*128 + q*32}")
    g.wait(hold["thr"])
    U = 88
    for i in range(4):
        I(f"v_lshlrev_b32 v{U+2*i}, 16, v{HR+i}")
        I(f"v_and_b32 v{U+2*i+1}, 0xffff0000, v{HR+i}")
    g.wait_all(vm=False)
    I("s_barrier")
    R = 16
    for w in range(8):
        for q in range(2):
            I(f"ds_read_b128 {vr(R+w*8+q*4,4)}, v{vT4 if w < 4 else vT5} offset:{(w%4)*64*272 + q*16}")
    g.wait_all(vm=False)
    for k in (32, 16, 8):
        for i in range(k):
            I(f"v_add_f32 v{R+i}, v{R+i}, v{R+k+i}")
    for i in range(8):
        I(f"v_add_f32 v{R+i}, v{R+i}, v{U+i}")
    for i in range(4):
        I(f"v_cvt_pk_bf16_f32 v{R+8+i}, v{R+2*i}, v{R+2*i+1}")
    I(f"buffer_store_dwordx4 {vr(R+8,4)}, v{vT2}, {srd(sOUT)}, s{sT0} offen")
    stamp("end")
    stamp("rt1", rt=True)
    if "span" in EXP:
        I("s_waitcnt vmcnt(0)")
        I("s_memrealtime s[90:91]")
        I("s_memtime s[92:93]")
        I("s_waitcnt lgkmcnt(0)")
        I("s_mov_b64 exec, 1")
        I("s_not_b32 s86, s86")
        I("s_sub_u32 s92, s92, s100")
        I("v_mov_b32 v20, s86")
        I("v_mov_b32 v21, s90")
        I("v_mov_b32 v22, s92")
        I(f"buffer_atomic_umax v20, off, {srd(sDBG)}, 0 offset:4 sc1")
        I(f"buffer_atomic_umax v21, off, {srd(sDBG)}, 0 offset:8 sc1")
        I(f"buffer_atomic_umax v22, off, {srd(sDBG)}, 0 offset:12 sc1")


prologue()
two = phaseA()
twd = phaseB(two)
phaseCD(twd)
g.label("L_end")
I("s_endpgm")
for tl_ in TAILS:
    g.put(tl_)
g.insert_bg()
g.resolve_waits()
g.fix_hazards_fast()

hdr = open("cdna_kernels/" + NAME + ".s.ref").read().split("; Override launch geometry")[0]
out = hdr + f"""; @launch grid=(256,1,1) block=(512,1,1) lds=163840
.amdgcn_target "amdgcn-amd-amdhsa--gfx950"
.text
.globl {NAME}_kernel
.p2align 8
.type {NAME}_kernel,@function
{NAME}_kernel:
L_code_start:
{g.text()}
L_code_end:
.fill 64, 4, 0xbf800000
.section .rodata,"a"
.p2align 6
.amdhsa_kernel {NAME}_kernel
  .amdhsa_next_free_vgpr 256
  .amdhsa_next_free_sgpr 102
  .amdhsa_accum_offset 256
  .amdhsa_group_segment_fixed_size 0
  .amdhsa_kernarg_size 88
  .amdhsa_user_sgpr_count 2
  .amdhsa_user_sgpr_kernarg_segment_ptr 1
  .amdhsa_system_sgpr_workgroup_id_x 1
.end_amdhsa_kernel
"""
import subprocess, re as _re
open("_sz.s", "w").write(out.replace("CODE_LAST", "0x1000"))
subprocess.run(["clang", "-x", "assembler", "-target", "amdgcn-amd-amdhsa", "-mcpu=gfx950", "-c", "_sz.s", "-o", "_sz.o"], check=True)
_h = subprocess.run(["llvm-objdump", "-h", "_sz.o"], capture_output=True, text=True).stdout
_sz = int(_re.search(r"\.text\s+([0-9a-f]+)", _h).group(1), 16)
out = out.replace("CODE_LAST", hex(_sz - 768))
print("code bytes", _sz)
open(sys.argv[1], "w").write(out)
if STAMPS:
    open(sys.argv[1] + ".names", "w").write("\n".join(stamp_names))
print("instrs:", sum(1 for it in g.items if it.kind == "i"), "stamps:", nstamp[0])
```

```python
import sys, math, struct, os
sys.path.insert(0, "dev")
from gen import *

NAME = "sequential_preLN__linear_kernel_hedgehog__glu_gated_geglu__prompt"
STAMPS = int(sys.argv[2]) if len(sys.argv) > 2 else 0
EXP = sys.argv[3].split(",") if len(sys.argv) > 3 else []


def f32(x):
    return "0x%08x" % struct.unpack("<I", struct.pack("<f", x))[0]


WS_CNT = 0x0
WS_CS = 0x10000
WS_ST = 0x50000
WS_KVP = 0x100000
WS_O = 0x200000
WS_H = 0x400000
WS_HH = 0x600000
WS_STAMP = 0xE00000
CNT_KV, CNT_O, CNT_H, CNT_HH = 0, 1, 2, 3

sX, sWQKV, sWPHI, sWO, sWG, sWU, sWD, sOUT, sDBG, sWS = 8, 12, 16, 20, 24, 28, 32, 36, 40, 44
sG, sJ, sW = 48, 49, 50
sT0, sT1, sT2, sT3, sT4, sT5 = 51, 52, 53, 54, 55, 56
sW3, sWH = 57, 58
sA, sB, sC, sD, sE = 59, 60, 61, 62, 63
sSTAMP = 86
sGATH, sWB, sCW, sCL, sLOG = 88, 89, 90, 91, 92
sGB, sJB, sJC, sLI, sXC, sLW, sSTO = 93, 94, 95, 96, 97, 98, 99
OOB = 0x7ff00000
sBG, sWOB, sKVS, sOS, sHS, sSS, sHHS = 68, 70, 71, 72, 73, 74, 75


def srd(r):
    return f"s[{r}:{r+3}]"


def vr(a, n=1):
    return f"v{a}" if n == 1 else f"v[{a}:{a+n-1}]"


def ar(a, n=1):
    return f"a{a}" if n == 1 else f"a[{a}:{a+n-1}]"


g = Gen()
I = g.I
nstamp = [0]
stamp_names = []

vLANE, vG, vM16 = 1, 2, 3
vL16 = 4
vT0, vT1, vT2, vT3, vT4, vT5 = 5, 6, 7, 8, 9, 10
vFLAG, vONE, vCNT, vINIT, vDMY = 11, 12, 13, 14, 15


def stamp(name="", rt=False):
    if not STAMPS:
        return
    k = nstamp[0]
    nstamp[0] += 1
    stamp_names.append(name)
    g.cond_begin()
    I(f"{'s_memrealtime' if rt else 's_memtime'} s[{sSTAMP}:{sSTAMP+1}]")
    I("s_waitcnt lgkmcnt(0)")
    I(f"v_mov_b32 v{vCNT}, s{sSTAMP}")
    I(f"buffer_store_dword v{vCNT}, off, {srd(sWS)}, s{sSTO} offset:{4*k}")
    g.cond_end()


UNIT = 14336
LDS_WK = 8 * UNIT
LDS_KVF = 11 * UNIT
LDS_CS = LDS_KVF + 4096
LDS_FLG = LDS_CS + 1024
LDS_WPL = 10 * UNIT + 8192
LDS_KV2 = 73728
LDS_BSCR = 6 * UNIT


def prologue():
    I("s_cmp_ge_u32 s2, 256")
    I("s_cbranch_scc1 L_end")
    I("s_setprio 3")
    if "span" in EXP:
        I("s_memrealtime s[86:87]")
        I("s_memtime s[100:101]")
    I(f"s_load_dwordx2 s[{sX}:{sX+1}], s[0:1], 0")
    I("s_getpc_b64 s[4:5]")
    I(f"v_lshlrev_b32 v{vT0}, 7, v0")
    I(f"v_min_u32 v{vT0}, CODE_LAST, v{vT0}")
    I(f"global_load_dword v{vDMY}, v{vT0}, s[4:5]")
    I("s_load_dwordx16 s[64:79], s[0:1], 0")
    I("s_load_dwordx4 s[80:83], s[0:1], 64")
    I("s_load_dwordx2 s[84:85], s[0:1], 80")
    I(f"v_and_b32 v{vLANE}, 63, v0")
    I(f"v_lshrrev_b32 v{vT0}, 6, v0")
    I(f"v_readfirstlane_b32 s{sW}, v{vT0}")
    I(f"v_lshrrev_b32 v{vG}, 4, v{vLANE}")
    I(f"s_bfe_u32 s{sT0}, s2, 0x20001")
    I(f"s_lshl_b32 s{sT0}, s{sT0}, 2")
    I(f"s_bfe_u32 s{sT1}, s2, 0x20003")
    I(f"s_add_u32 s{sG}, s{sT0}, s{sT1}")
    I(f"s_mov_b32 s{sX+2}, 1835008")
    I(f"s_mov_b32 s{sX+3}, 0x20000")
    I(f"v_lshrrev_b32 v{vT0}, 3, v{vLANE}")
    I(f"v_mul_u32_u24 v{vT0}, 896, v{vT0}")
    I(f"v_and_b32 v{vT1}, 7, v{vLANE}")
    I(f"v_xor_b32 v{vT3}, v{vT1}, v{vG}")
    I(f"v_lshl_add_u32 v{vXA0}, v{vT3}, 4, v{vT0}")
    I(f"v_xor_b32 v{vT3}, 4, v{vT3}")
    I(f"v_lshl_add_u32 v{vXA1}, v{vT3}, 4, v{vT0}")
    I(f"s_lshl_b32 s{sA}, s{sG}, 3")
    I(f"s_add_u32 s{sA}, s{sA}, s{sW}")
    I(f"s_mul_i32 s{sB}, s{sA}, {16*896}")
    I(f"s_add_u32 s{sC}, s{sB}, {8*896}")
    I(f"s_mul_i32 s{sLW}, s{sW}, {UNIT}")
    if "not0" not in EXP:
        I(f"s_lshr_b32 s{sLI}, s2, 3")
        I(f"s_mul_i32 s{sT2}, s{sLI}, {14*2688}")
        I(f"s_and_b32 s{sT3}, s2, 1")
        I(f"s_mul_i32 s{sT3}, s{sT3}, 384")
        I(f"s_add_u32 s{sT2}, s{sT2}, s{sT3}")
        I(f"s_mul_i32 s{sT3}, s{sW}, 896")
        I(f"s_add_u32 s{sT2}, s{sT2}, s{sT3}")
        I(f"s_cmp_ge_u32 s{sW}, 3")
        I(f"s_cselect_b32 s{sT3}, {OOB}, 0")
        I(f"s_add_u32 s{sT2}, s{sT2}, s{sT3}")
        I(f"v_lshrrev_b32 v{vT0}, 2, v{vLANE}")
        I(f"v_min_u32 v{vT0}, 13, v{vT0}")
        I(f"v_mul_u32_u24 v{vT0}, 2688, v{vT0}")
        I(f"v_and_b32 v{vT1}, 3, v{vLANE}")
        I(f"v_lshl_add_u32 v{vT4}, v{vT1}, 7, v{vT0}")
        I(f"s_mul_i32 s{sT4}, s{sT0}, 114688")
        I(f"s_mul_i32 s{sT5}, s{sLI}, 14336")
        I(f"s_add_u32 s{sT4}, s{sT4}, s{sT5}")
        I(f"s_sub_u32 s{sT5}, s{sW}, 3")
        I(f"s_cmp_lt_u32 s{sT5}, 2")
        I(f"s_cselect_b32 s{sT3}, 0, {OOB}")
        I(f"s_mul_i32 s{sT5}, s{sT5}, 7168")
        I(f"s_and_b32 s{sT5}, s{sT5}, 0x3fff")
        I(f"s_add_u32 s{sT4}, s{sT4}, s{sT5}")
        I(f"s_add_u32 s{sT4}, s{sT4}, s{sT3}")
        I(f"v_min_u32 v{vT5}, 55, v{vLANE}")
        I(f"v_lshlrev_b32 v{vT5}, 7, v{vT5}")
        I(f"s_mov_b32 s{sWQKV+2}, 1204224")
        I(f"s_mov_b32 s{sWQKV+3}, 0x20000")
    I("s_waitcnt lgkmcnt(0)")
    if "not0" not in EXP:
        I(f"s_mov_b64 s[{sWQKV}:{sWQKV+1}], s[66:67]")
        I(f"buffer_load_dword v{vDMY}, v{vT5}, {srd(sX)}, s{sT4} offen")
        I(f"buffer_load_dword v{vDMY}, v{vT4}, {srd(sWQKV)}, s{sT2} offen")


def prologue2():
    I(f"v_and_b32 v{vM16}, 15, v{vLANE}")
    I(f"v_lshlrev_b32 v{vL16}, 4, v{vLANE}")
    I(f"v_mov_b32 v{vONE}, 1")
    I(f"s_and_b32 s{sXC}, s2, 7")
    I(f"s_lshr_b32 s{sLI}, s2, 3")
    I(f"s_and_b32 s{sT2}, s{sXC}, 1")
    I(f"s_lshl_b32 s{sT3}, s{sT2}, 3")
    I(f"s_lshr_b32 s{sT4}, s{sLI}, 2")
    I(f"s_add_u32 s{sJ}, s{sT3}, s{sT4}")
    I(f"s_lshl_b32 s{sGB}, s{sXC}, 1")
    I(f"s_and_b32 s{sT5}, s{sLI}, 1")
    I(f"s_add_u32 s{sGB}, s{sGB}, s{sT5}")
    I(f"s_lshr_b32 s{sJB}, s{sLI}, 1")
    I(f"s_mul_i32 s{sJC}, s{sT2}, 7")
    I(f"s_add_u32 s{sJC}, s{sJC}, s{sT4}")
    I(f"s_cmp_eq_u32 s{sT4}, 7")
    I(f"s_cselect_b32 s{sJC}, 15, s{sJC}")
    I(f"s_and_b32 s{sW3}, s{sW}, 3")
    I(f"s_lshr_b32 s{sWH}, s{sW}, 2")
    I(f"s_lshl_b32 s{sCL}, s{sW}, 10")
    for r, p, n in ((sWQKV, 66, 1204224), (sWPHI, 68, 25088), (sWO, 70, 401408),
                    (sWG, 74, 1605632), (sWU, 76, 1605632), (sWD, 78, 1605632), (sOUT, 80, 1835008),
                    (sDBG, 82, 256), (sWS, 84, 0x10000000)):
        I(f"s_mov_b64 s[{r}:{r+1}], s[{p}:{p+1}]")
        I(f"s_mov_b32 s{r+2}, {n}")
        I(f"s_mov_b32 s{r+3}, 0x20000")
    if STAMPS:
        I(f"s_lshl_b32 s{sSTO}, s2, 3")
        I(f"s_add_u32 s{sSTO}, s{sSTO}, s{sW}")
        I(f"s_lshl_b32 s{sSTO}, s{sSTO}, 7")
        I(f"s_add_u32 s{sSTO}, s{sSTO}, {WS_STAMP}")


POLL_MAX = 200000


def poll(srdreg, voff, target):
    lp, ld = g.newlabel("L_poll"), g.newlabel("L_pdone")
    I(f"s_mov_b32 s{sT5}, 0")
    g.label(lp)
    I(f"buffer_load_dword v{vFLAG}, v{voff}, {srd(srdreg)}, 0 offen sc1")
    I("s_waitcnt vmcnt(0)")
    I(f"v_readfirstlane_b32 s{sT4}, v{vFLAG}")
    I(f"s_add_u32 s{sT5}, s{sT5}, 1")
    I(f"s_cmp_ge_u32 s{sT5}, {POLL_MAX}")
    I(f"s_cbranch_scc1 {ld}")
    I(f"s_cmp_lt_u32 s{sT4}, {target}")
    I(f"s_cbranch_scc1 {lp}")
    g.label(ld)


def signal(kind, sidx, toks, first=False):
    g.wait(*toks)
    I("s_barrier")
    lab = g.newlabel("L_sig")
    I(f"s_cmp_lg_u32 s{sW}, 0")
    I(f"s_cbranch_scc1 {lab}")
    g.cond_begin()
    I("s_mov_b64 exec, 1")
    if first:
        l2 = g.newlabel("L_ini")
        I(f"v_readfirstlane_b32 s{sT4}, v{vINIT}")
        I(f"s_cmp_lg_u32 s{sT4}, 0")
        I(f"s_cbranch_scc1 {l2}")
        I(f"v_mov_b32 v{vCNT}, 0")
        poll(sDBG, vCNT, 1)
        g.label(l2)
    I(f"s_lshl_b32 s{sT0}, s{sidx}, 8")
    I(f"s_add_u32 s{sT0}, s{sT0}, {WS_CNT + kind * 4096}")
    I(f"v_mov_b32 v{vCNT}, s{sT0}")
    I(f"buffer_atomic_add v{vONE}, v{vCNT}, {srd(sWS)}, 0 offen sc1")
    I("s_mov_b64 exec, -1")
    g.cond_end()
    g.label(lab)


def waitflag(kind, sidx, target=16):
    lab = g.newlabel("L_w")
    I(f"s_cmp_lg_u32 s{sW}, 0")
    I(f"s_cbranch_scc1 {lab}")
    g.cond_begin()
    I("s_mov_b64 exec, 1")
    I(f"s_lshl_b32 s{sT0}, s{sidx}, 8")
    I(f"s_add_u32 s{sT0}, s{sT0}, {WS_CNT + kind * 4096}")
    I(f"v_mov_b32 v{vCNT}, s{sT0}")
    poll(sWS, vCNT, target)
    I("s_mov_b64 exec, -1")
    g.cond_end()
    g.label(lab)
    I("s_barrier")


def dma2(vaddr, srdreg, sbase, src_imm, lds_sreg, lds_imm, stmp=None):
    stmp = sT1 if stmp is None else stmp
    I(f"s_add_u32 m0, s{lds_sreg}, {lds_imm}")
    I(f"s_add_u32 s{stmp}, s{sbase}, {src_imm}")
    return I(f"buffer_load_dwordx4 v{vaddr}, {srd(srdreg)}, s{stmp} offen lds")


def xreduce(op, a, t, levels=(16, 32)):
    for lv in levels:
        I(f"v_mov_b32 v{t}, v{a}")
        I(f"v_permlane{lv}_swap_b32 v{a}, v{t}")
        I(f"{op} v{a}, v{a}, v{t}")


LOG2E = 1.4426950408889634

XF = 16
WR = 72
WPHI = 100
WPH2 = 108
SEL = 116
ACC = 124
ACCV = 132
WF = 140
TMP = 172
PH = 196
vXA0, vXA1, vWA, vTR, vXR0, vXR1, vCA = 204, 205, 206, 207, 208, 209, 252
vTRb, vTRc, vWOA = 211, 212, 213


def chain16(acc, rd, swap=False, depth=3, hook=None):
    toks = {}
    nb = depth + 1
    n = 14
    for c in range(depth):
        toks[c] = rd(c, WF + 8 * (c % nb))
    for c in range(n):
        if c + depth < n:
            toks[c + depth] = rd(c + depth, WF + 8 * ((c + depth) % nb))
        g.wait(toks[c])
        X = vr(XF + 4 * c, 4)
        for t in range(2):
            W = vr(WF + 8 * (c % nb) + 4 * t, 4)
            a = vr(acc + 4 * t, 4)
            C = a if c > 0 else "0"
            if swap:
                I(f"v_mfma_f32_16x16x32_bf16 {a}, {X}, {W}, {C}")
            else:
                I(f"v_mfma_f32_16x16x32_bf16 {a}, {W}, {X}, {C}")
        if hook is not None:
            hook(c)


def featmap(acc, out):
    pk = TMP
    p = acc
    e = TMP + 4
    mx, mn, t0, t1 = TMP + 12, TMP + 13, TMP + 14, TMP + 15
    for i in range(4):
        I(f"v_cvt_pk_bf16_f32 v{pk+i}, v{acc+2*i}, v{acc+2*i+1}")
    I(f"v_mfma_f32_16x16x32_bf16 {vr(p,4)}, {vr(WPHI,4)}, {vr(pk,4)}, 0")
    I(f"v_mfma_f32_16x16x32_bf16 {vr(p+4,4)}, {vr(WPHI+4,4)}, {vr(pk,4)}, 0")
    I(f"v_max3_f32 v{mx}, v{p}, v{p+1}, v{p+2}")
    I(f"v_min3_f32 v{mn}, v{p}, v{p+1}, v{p+2}")
    for i in (3, 5):
        I(f"v_max3_f32 v{mx}, v{mx}, v{p+i}, v{p+i+1}")
        I(f"v_min3_f32 v{mn}, v{mn}, v{p+i}, v{p+i+1}")
    for lv in (16, 32):
        I(f"v_mov_b32 v{t0}, v{mx}")
        I(f"v_mov_b32 v{t1}, v{mn}")
        I(f"v_permlane{lv}_swap_b32 v{mx}, v{t0}")
        I(f"v_permlane{lv}_swap_b32 v{mn}, v{t1}")
        I(f"v_max_f32 v{mx}, v{mx}, v{t0}")
        I(f"v_min_f32 v{mn}, v{mn}, v{t1}")
    I(f"v_mul_f32 v{mx}, {f32(-LOG2E)}, v{mx}")
    I(f"v_mul_f32 v{mn}, {f32(LOG2E)}, v{mn}")
    e2 = TMP + 16
    for i in range(7):
        I(f"v_fma_f32 v{e+i}, v{p+i}, s{sLOG}, v{mx}")
        I(f"v_fma_f32 v{e2+i}, -v{p+i}, s{sLOG}, v{mn}")
    for i in range(7):
        I(f"v_exp_f32 v{e+i}, v{e+i}")
        I(f"v_exp_f32 v{e2+i}, v{e2+i}")
    I(f"v_add_f32 v{mx}, v{e}, v{e+1}")
    I(f"v_add_f32 v{mn}, v{e2}, v{e2+1}")
    for i in range(2, 7):
        I(f"v_add_f32 v{mx}, v{mx}, v{e+i}")
        I(f"v_add_f32 v{mn}, v{mn}, v{e2+i}")
    for lv in (16, 32):
        I(f"v_mov_b32 v{t0}, v{mx}")
        I(f"v_mov_b32 v{t1}, v{mn}")
        I(f"v_permlane{lv}_swap_b32 v{mx}, v{t0}")
        I(f"v_permlane{lv}_swap_b32 v{mn}, v{t1}")
        I(f"v_add_f32 v{mx}, v{mx}, v{t0}")
        I(f"v_add_f32 v{mn}, v{mn}, v{t1}")
    I(f"v_rcp_f32 v{mx}, v{mx}")
    I(f"v_rcp_f32 v{mn}, v{mn}")
    for i in range(7):
        I(f"v_mul_f32 v{e+i}, v{e+i}, v{mx}")
        I(f"v_mul_f32 v{e2+i}, v{e2+i}, v{mn}")
    for i in range(3):
        I(f"v_cvt_pk_bf16_f32 v{out+i}, v{e+2*i}, v{e+2*i+1}")
        I(f"v_cvt_pk_bf16_f32 v{out+4+i}, v{e2+2*i}, v{e2+2*i+1}")
    I(f"v_cvt_pk_bf16_f32 v{out+3}, v{e+6}, 0")
    I(f"v_cvt_pk_bf16_f32 v{out+7}, v{e2+6}, 0")


def c_batch(mat, dbl, n0, n1, lds_base):
    t = None
    assert n0 % 8 == 0 and n1 % 8 == 0
    for i in range(n0 // 8, n1 // 8):
        t = dma2(vCA, sWG if mat == 0 else sWU, sCW, i * 8 * 8 * 3584 + dbl * 128, sCL, lds_base + (i * 8 - n0) * 1024)
    return t


def c_bg(mat, dbl, n0, n1, lds_base, after, gap=150):
    t = None
    for i in range(n0 // 8, n1 // 8):
        g.begin()
        t = dma2(vCA, sWG if mat == 0 else sWU, sCW, i * 8 * 8 * 3584 + dbl * 128, sCL, lds_base + (i * 8 - n0) * 1024, stmp=sBG)
        g.bg_add(g.end(), after, gap)
        NBG[0] += 1
    return t


NBG = [0]
TWD = {}
NWDBG = [0]


def bg(fn, after=None, gap=150):
    g.begin()
    r = fn()
    g.bg_add(g.end(), after, gap)
    NBG[0] += 1
    return r


def flush():
    g.mark(f"flush:{NBG[0]}")


def check_loop(issue, regs, tmp, body=None):
    lp, ld = g.newlabel("L_dp"), g.newlabel("L_dpd")
    I(f"s_mov_b32 s{sT5}, 0")
    g.label(lp)
    toks = issue()
    if body is not None:
        body(toks)
    g.wait(toks[-1])
    rs = list(regs)
    if len(rs) == 1:
        I(f"v_cmp_eq_u32 vcc, -1, v{rs[0]}")
    else:
        first = True
        acc = None
        while rs:
            if acc is None:
                if len(rs) >= 3:
                    I(f"v_max3_u32 v{tmp}, v{rs[0]}, v{rs[1]}, v{rs[2]}")
                    rs = rs[3:]
                else:
                    I(f"v_max_u32 v{tmp}, v{rs[0]}, v{rs[1]}")
                    rs = rs[2:]
                acc = tmp
            elif len(rs) >= 2:
                I(f"v_max3_u32 v{tmp}, v{tmp}, v{rs[0]}, v{rs[1]}")
                rs = rs[2:]
            else:
                I(f"v_max_u32 v{tmp}, v{tmp}, v{rs[0]}")
                rs = rs[1:]
        I(f"v_cmp_eq_u32 vcc, -1, v{tmp}")
    I(f"s_add_u32 s{sT5}, s{sT5}, 1")
    I(f"s_cmp_ge_u32 s{sT5}, {POLL_MAX}")
    I(f"s_cbranch_scc1 {ld}")
    I(f"s_cmp_lg_u64 vcc, 0")
    I(f"s_cbranch_scc1 {lp}")
    g.label(ld)


def sent_check(regs, tmp):
    rs = list(regs)
    acc = None
    while rs:
        if acc is None:
            if len(rs) >= 3:
                I(f"v_max3_u32 v{tmp}, v{rs[0]}, v{rs[1]}, v{rs[2]}")
                rs = rs[3:]
            else:
                I(f"v_max_u32 v{tmp}, v{rs[0]}, v{rs[1]}")
                rs = rs[2:]
            acc = tmp
        elif len(rs) >= 2:
            I(f"v_max3_u32 v{tmp}, v{tmp}, v{rs[0]}, v{rs[1]}")
            rs = rs[2:]
        else:
            I(f"v_max_u32 v{tmp}, v{tmp}, v{rs[0]}")
            rs = rs[1:]
    I(f"v_cmp_eq_u32 vcc, -1, v{tmp}")


TAILS = []


def spec_load(issue, regs, tmp, body=None, filler=None):
    lr, lb = g.newlabel("L_sr"), g.newlabel("L_sb")
    toks = issue()
    if filler is not None:
        filler()
    if body is not None:
        body(toks)
    g.wait(toks[-1])
    sent_check(regs, tmp)
    I(f"s_cmp_lg_u64 vcc, 0")
    I(f"s_cbranch_scc1 {lr}")
    g.label(lb)
    g.begin()
    g.label(lr)
    check_loop(issue, regs, tmp, body)
    I(f"s_branch {lb}")
    TAILS.append(g.end())


def c_setup():
    I(f"v_lshrrev_b32 v{vT0}, 3, v{vLANE}")
    I(f"v_mul_u32_u24 v{vT1}, 3584, v{vT0}")
    I(f"v_and_b32 v{vT2}, 1, v{vG}")
    I(f"v_lshlrev_b32 v{vT2}, 2, v{vT2}")
    I(f"v_and_b32 v{vCA}, 7, v{vLANE}")
    I(f"v_xor_b32 v{vCA}, v{vCA}, v{vT2}")
    I(f"v_lshl_add_u32 v{vCA}, v{vCA}, 4, v{vT1}")
    I(f"s_cmp_ge_u32 s{sJC}, 14")
    I(f"s_cselect_b32 s{sT0}, {OOB}, 0")
    I(f"v_add_u32 v{vCA}, s{sT0}, v{vCA}")
    I(f"s_mul_i32 s{sCW}, s{sW}, {8*3584}")
    I(f"s_lshl_b32 s{sT0}, s{sJC}, 8")
    I(f"s_add_u32 s{sCW}, s{sCW}, s{sT0}")


def touch1():
    I(f"s_mul_i32 s{sT0}, s{sLI}, {98*128}")
    I(f"s_mul_i32 s{sT1}, s{sW}, {13*128}")
    I(f"s_add_u32 s{sT0}, s{sT0}, s{sT1}")
    I(f"v_lshlrev_b32 v{vT0}, 7, v{vLANE}")
    I(f"v_mov_b32 v{vT2}, {OOB}")
    I(f"v_cmp_gt_u32 vcc, 13, v{vLANE}")
    I(f"v_cndmask_b32 v{vT0}, v{vT2}, v{vT0}, vcc")
    I(f"buffer_load_dword v{vDMY}, v{vT0}, {srd(sWO)}, s{sT0} offen")
    I(f"s_lshr_b32 s{sT0}, s{sW}, 1")
    I(f"s_lshl_b32 s{sT2}, s{sT0}, 2")
    I(f"s_mul_i32 s{sT0}, s{sT0}, {4*3584}")
    I(f"s_mul_i32 s{sT1}, s{sLI}, {14*3584}")
    I(f"s_add_u32 s{sT0}, s{sT0}, s{sT1}")
    I(f"s_and_b32 s{sT1}, s{sXC}, 1")
    I(f"s_mul_i32 s{sT1}, s{sT1}, 1792")
    I(f"s_add_u32 s{sT0}, s{sT0}, s{sT1}")
    I(f"v_mul_u32_u24 v{vT0}, 3584, v{vG}")
    I(f"v_lshl_add_u32 v{vT0}, v{vM16}, 7, v{vT0}")
    I(f"v_cmp_gt_u32 vcc, 14, v{vM16}")
    I(f"v_cndmask_b32 v{vT0}, v{vT2}, v{vT0}, vcc")
    I(f"v_add_u32 v{vT1}, s{sT2}, v{vG}")
    I(f"v_cmp_gt_u32 vcc, 14, v{vT1}")
    I(f"v_cndmask_b32 v{vT0}, v{vT2}, v{vT0}, vcc")
    I(f"buffer_load_dword v{vDMY}, v{vT0}, s[4:7], s{sT0} offen")


def touch2():
    I(f"s_mul_i32 s{sT2}, s{sLI}, {392*128}")
    I(f"s_mul_i32 s{sT1}, s{sW}, {49*128}")
    I(f"s_add_u32 s{sT2}, s{sT2}, s{sT1}")
    I(f"v_lshlrev_b32 v{vT1}, 7, v{vLANE}")
    I(f"v_mov_b32 v{vT2}, {OOB}")
    I(f"v_cmp_gt_u32 vcc, 49, v{vLANE}")
    I(f"v_cndmask_b32 v{vT1}, v{vT2}, v{vT1}, vcc")
    I(f"buffer_load_dword v247, v{vT1}, {srd(sWD)}, s{sT2} offen")


sNQ, sMTB, sCSS, sMTC = 76, 77, 78, 79
vT8, vCSS, vHSA, vSSA = 210, 214, 215, 199 + 0


def addr_setup():
    I(f"s_lshl_b32 s{sGATH}, s{sJ}, 16")
    I(f"s_add_u32 s{sGATH}, s{sGATH}, {WS_KVP}")
    I(f"s_lshl_b32 s{sKVS}, s{sG}, 12")
    I(f"s_add_u32 s{sKVS}, s{sKVS}, s{sGATH}")
    I(f"s_lshl_b32 s{sOS}, s{sA}, 4")
    I(f"s_add_u32 s{sOS}, s{sOS}, s{sJ}")
    I(f"s_lshl_b32 s{sOS}, s{sOS}, 10")
    I(f"s_add_u32 s{sOS}, s{sOS}, {WS_O}")
    I(f"s_lshl_b32 s{sCSS}, s{sJC}, 4")
    I(f"s_add_u32 s{sCSS}, s{sCSS}, s{sG}")
    I(f"s_lshl_b32 s{sCSS}, s{sCSS}, 10")
    I(f"s_add_u32 s{sCSS}, s{sCSS}, {WS_CS}")
    I(f"s_and_b32 s{sNQ}, s{sJB}, 3")
    I(f"s_lshr_b32 s{sMTB}, s{sJB}, 2")
    I(f"s_lshl_b32 s{sT0}, s{sGB}, 2")
    I(f"s_add_u32 s{sMTB}, s{sMTB}, s{sT0}")
    I(f"s_mul_i32 s{sHS}, s{sMTB}, 28")
    I(f"s_lshl_b32 s{sT1}, s{sNQ}, 3")
    I(f"s_add_u32 s{sHS}, s{sHS}, s{sT1}")
    I(f"s_lshl_b32 s{sHS}, s{sHS}, 10")
    I(f"s_add_u32 s{sHS}, s{sHS}, {WS_H}")
    I(f"s_lshl_b32 s{sSS}, s{sMTB}, 2")
    I(f"s_add_u32 s{sSS}, s{sSS}, s{sNQ}")
    I(f"s_lshl_b32 s{sSS}, s{sSS}, 8")
    I(f"s_add_u32 s{sSS}, s{sSS}, {WS_ST}")
    I(f"s_lshl_b32 s{sMTC}, s{sG}, 2")
    I(f"s_add_u32 s{sMTC}, s{sMTC}, s{sW3}")
    I(f"s_mul_i32 s{sHHS}, s{sMTC}, {112*1024}")
    I(f"s_lshl_b32 s{sT0}, s{sJC}, 13")
    I(f"s_add_u32 s{sHHS}, s{sHHS}, s{sT0}")
    I(f"s_lshl_b32 s{sT0}, s{sWH}, 11")
    I(f"s_add_u32 s{sHHS}, s{sHHS}, s{sT0}")
    I(f"s_add_u32 s{sHHS}, s{sHHS}, {WS_HH}")
    I(f"s_cmp_ge_u32 s{sJC}, 14")
    I(f"s_cselect_b32 s{sT0}, {OOB}, 0")
    I(f"s_add_u32 s{sHHS}, s{sHHS}, s{sT0}")
    I(f"s_lshr_b32 s{sT0}, s{sW}, 1")
    I(f"s_lshl_b32 s{sT0}, s{sT0}, 10")
    I(f"s_and_b32 s{sT1}, s{sW}, 1")
    I(f"s_lshl_b32 s{sT1}, s{sT1}, 3")
    I(f"s_add_u32 s{sT0}, s{sT0}, s{sT1}")
    I(f"v_add_u32 v{vT8}, s{sT0}, v{vL16}")
    I(f"s_cmp_ge_u32 s{sW}, 4")
    I(f"s_cselect_b32 s{sT0}, {OOB}, 0")
    I(f"v_lshlrev_b32 v{vCSS}, 2, v0")
    I(f"v_add_u32 v{vCSS}, s{sT0}, v{vCSS}")
    I(f"s_lshl_b32 s{sT1}, s{sW}, 2")
    I(f"v_and_b32 v{vT0}, 3, v{vLANE}")
    I(f"v_add_u32 v{vT0}, s{sT1}, v{vT0}")
    I(f"v_lshrrev_b32 v{vT1}, 2, v{vLANE}")
    I(f"v_lshlrev_b32 v{vHSA}, 9, v{vT1}")
    I(f"v_lshl_add_u32 v{vHSA}, v{vT0}, 4, v{vHSA}")
    I(f"s_cmp_eq_u32 s{sNQ}, 3")
    I(f"s_cselect_b32 s{sT1}, 8, 16")
    I(f"v_cmp_gt_u32 vcc, s{sT1}, v{vT1}")
    I(f"v_mov_b32 v{vT1}, {OOB}")
    I(f"v_cndmask_b32 v{vHSA}, v{vT1}, v{vHSA}, vcc")


def stats_addr(dst, t0, t1):
    I(f"s_lshl_b32 s{sBG}, s{sW}, 5")
    I(f"v_lshlrev_b32 v{t0}, 3, v{vLANE}")
    I(f"v_add_u32 v{t0}, s{sBG}, v{t0}")
    I(f"v_mov_b32 v{t1}, {OOB}")
    I(f"v_cmp_gt_u32 vcc, 4, v{vLANE}")
    I(f"v_cndmask_b32 v{dst}, v{t1}, v{t0}, vcc")


def sentinels0():
    SN = 216
    for i in range(4):
        I(f"v_mov_b32 v{SN+i}, -1")
    I(f"buffer_store_dwordx2 {vr(SN,2)}, v{vT8}, {srd(sWS)}, s{sKVS} offen sc1")
    I(f"buffer_store_dwordx4 {vr(SN,4)}, v{vL16}, {srd(sWS)}, s{sOS} offen sc1")


def sentinels():
    SN = 216
    I(f"buffer_store_dword v{SN}, v{vCSS}, {srd(sWS)}, s{sCSS} offen sc1")
    I(f"buffer_store_dwordx4 {vr(SN,4)}, v{vHSA}, {srd(sWS)}, s{sHS} offen sc1")
    stats_addr(SN + 4, SN + 4, SN + 5)
    return I(f"buffer_store_dwordx2 {vr(SN,2)}, v{SN+4}, {srd(sWS)}, s{sSS} offen sc1")


def sent_hh(k):
    SN = 248
    I(f"s_add_u32 s{sBG}, s{sHHS}, {(k>>1)*4096 + (k&1)*1024}")
    return I(f"buffer_store_dwordx4 {vr(SN,4)}, v{vL16}, {srd(sWS)}, s{sBG} offen sc1")


def init_signal():
    lab = g.newlabel("L_is")
    I(f"s_cmp_lg_u32 s{sW}, 5")
    I(f"s_cbranch_scc1 {lab}")
    g.cond_begin()
    I("s_mov_b64 exec, 1")
    I(f"s_and_b32 s{sT0}, s2, 15")
    I(f"s_lshl_b32 s{sT0}, s{sT0}, 4")
    I(f"v_mov_b32 v{vCNT}, s{sT0}")
    I(f"buffer_atomic_add v{vONE}, v{vCNT}, {srd(sDBG)}, 0 offen sc1")
    I("s_mov_b64 exec, -1")
    g.cond_end()
    g.label(lab)


def init_check():
    lp, ld = g.newlabel("L_ic"), g.newlabel("L_icd")
    I(f"v_lshlrev_b32 v{vCNT}, 4, v{vM16}")
    I(f"s_mov_b32 s{sT5}, 0")
    g.label(lp)
    I("s_sleep 16")
    t = I(f"buffer_load_dword v{vINIT}, v{vCNT}, {srd(sDBG)}, 0 offen sc1")
    g.wait(t)
    I(f"v_cmp_gt_u32 vcc, 16, v{vINIT}")
    I(f"s_add_u32 s{sT5}, s{sT5}, 1")
    I(f"s_cmp_ge_u32 s{sT5}, {POLL_MAX}")
    I(f"s_cbranch_scc1 {ld}")
    I(f"s_cmp_lg_u64 vcc, 0")
    I(f"s_cbranch_scc1 {lp}")
    g.label(ld)


def phaseA():
    g.comment("==== phase A ====")
    if STAMPS:
        I("s_memrealtime s[96:97]")
        I("s_memtime s[94:95]")
        I("s_waitcnt lgkmcnt(0)")
        I("v_mov_b32 v250, s96")
        I("v_mov_b32 v251, s94")
    tx = {}
    for seg in range(7):
        for o in range(2):
            I(f"s_add_u32 m0, s{sLW}, {(o*7+seg)*1024 - seg*128}")
            tx[seg] = I(f"buffer_load_dwordx4 v{vXA1 if o else vXA0}, {srd(sX)}, s{sC if o else sB} offen offset:{seg*128} lds")
    I("s_setprio 2")
    prologue2()
    if STAMPS:
        for nm, r in (("rt0", 250), ("start", 251)):
            g.cond_begin()
            I(f"buffer_store_dword v{r}, off, {srd(sWS)}, s{sSTO} offset:{4*nstamp[0]}")
            g.cond_end()
            nstamp[0] += 1
            stamp_names.append(nm)
    I(f"v_lshrrev_b32 v{vT0}, 2, v{vLANE}")
    I(f"v_mul_u32_u24 v{vT0}, 2688, v{vT0}")
    I(f"v_and_b32 v{vT1}, 3, v{vLANE}")
    I(f"v_and_b32 v{vT2}, 2, v{vG}")
    I(f"v_xor_b32 v{vT1}, v{vT1}, v{vT2}")
    I(f"v_lshl_add_u32 v{vWA}, v{vT1}, 4, v{vT0}")
    I(f"s_mul_i32 s{sWB}, s{sJ}, 56")
    I(f"s_and_b32 s{sT1}, s{sJ}, 1")
    I(f"s_lshl_b32 s{sT1}, s{sT1}, 3")
    I(f"s_sub_u32 s{sWB}, s{sWB}, s{sT1}")
    I(f"s_mul_i32 s{sD}, s{sW}, {16*2688}")
    I(f"s_add_u32 s{sD}, s{sD}, s{sWB}")
    I(f"s_mov_b32 s{sLOG}, {f32(LOG2E)}")
    bgl = []
    bt = {}

    def bg_add(name, fn):
        bgl.append((name, fn))

    def bgq(n=1):
        for _ in range(n):
            if bgl:
                name, fn = bgl.pop(0)
                bt[name] = fn()
    for i in range(3):
        bg_add(f"wk{i}", lambda i=i: dma2(vWA, sWQKV, sD, 896 + i * 8 * 16 * 2688, sCL, LDS_WK + i * 8192))

    def wk3():
        I(f"s_cmp_ge_u32 s{sW}, 4")
        I(f"s_cselect_b32 s{sT0}, {OOB}, 0")
        I(f"s_add_u32 s{sT0}, s{sT0}, s{sD}")
        dma2(vWA, sWQKV, sT0, 896 + 3 * 8 * 16 * 2688, sCL, LDS_WK + 3 * 8192)
        I(f"v_lshlrev_b32 v{vT0}, 4, v0")
        I(f"v_mov_b32 v{vT1}, {OOB}")
        I(f"v_cmp_gt_u32 vcc, 98, v0")
        I(f"v_cndmask_b32 v{vT0}, v{vT1}, v{vT0}, vcc")
        I(f"s_min_u32 s{sT0}, s{sCL}, 2048")
        I(f"s_add_u32 m0, s{sT0}, {LDS_WPL}")
        I(f"s_mul_i32 s{sT0}, s{sJ}, 1568")
        return I(f"buffer_load_dwordx4 v{vT0}, {srd(sWPHI)}, s{sT0} offen lds")
    bg_add("wk3", wk3)
    addr_setup()
    I(f"s_cmp_ge_u32 s{sW}, 4")
    I(f"s_cselect_b32 s{sE}, {(24-4)*16*2688}, {1792 + 24*16*2688}" if False else f"s_mov_b32 s{sE}, {1792 + 24*16*2688}")
    I(f"s_cmov_b32 s{sE}, {20*16*2688}")
    I(f"s_add_u32 s{sE}, s{sE}, s{sD}")

    def rawW(i):
        if i == 3:
            return I(f"buffer_load_dwordx4 {vr(WR+12,4)}, v{vWA}, {srd(sWQKV)}, s{sE} offen")
        off = 1792 + i * 8 * 16 * 2688 if i < 3 else (i - 4) * 8 * 16 * 2688
        I(f"s_add_u32 s{sT1}, s{sD}, {off}")
        return I(f"buffer_load_dwordx4 {vr(WR+4*i,4)}, v{vWA}, {srd(sWQKV)}, s{sT1} offen")
    for i in range(4):
        bg_add(f"w{i}", lambda i=i: rawW(i))
    I(f"v_lshrrev_b32 v{vT0}, 3, v{vM16}")
    I(f"v_mul_u32_u24 v{vT0}, 7168, v{vT0}")
    I(f"v_add_u32 v{vT0}, s{sLW}, v{vT0}")
    I(f"v_and_b32 v{vT1}, 7, v{vM16}")
    I(f"v_lshl_add_u32 v{vT0}, v{vT1}, 7, v{vT0}")
    I(f"v_lshrrev_b32 v{vT1}, 1, v{vM16}")
    I(f"v_xor_b32 v{vT1}, v{vT1}, v{vG}")
    I(f"v_lshl_add_u32 v{vXR0}, v{vT1}, 4, v{vT0}")
    I(f"v_xor_b32 v{vXR1}, 64, v{vXR0}")
    I(f"v_bfe_u32 v{vT0}, v{vLANE}, 2, 2")
    I(f"v_lshl_add_u32 v{vT0}, v{vG}, 3, v{vT0}")
    I(f"v_lshlrev_b32 v{vT0}, 6, v{vT0}")
    I(f"v_and_b32 v{vT1}, 3, v{vLANE}")
    I(f"s_and_b32 s{sT1}, s{sJ}, 1")
    I(f"v_add_u32 v{vT1}, s{sT1}, v{vT1}")
    I(f"v_and_b32 v{vT2}, 1, v{vG}")
    I(f"v_lshlrev_b32 v{vT2}, 2, v{vT2}")
    I(f"v_xor_b32 v{vT1}, v{vT1}, v{vT2}")
    I(f"v_lshl_add_u32 v{vTR}, v{vT1}, 3, v{vT0}")
    I(f"v_lshrrev_b32 v{vT0}, 2, v{vM16}")
    I(f"v_and_b32 v{vT1}, 3, v{vM16}")
    I(f"v_cmp_eq_u32 vcc, v{vT0}, v{vG}")
    I(f"v_cndmask_b32 v{vT1}, 7, v{vT1}, vcc")
    I(f"v_mov_b32 v{vT3}, 0x3f80")
    I(f"v_mov_b32 v{vT4}, 0x3f800000")
    for i in range(2):
        I(f"v_cmp_eq_u32 vcc, {2*i}, v{vT1}")
        I(f"v_cndmask_b32 v{vT2}, 0, v{vT3}, vcc")
        I(f"v_cmp_eq_u32 vcc, {2*i+1}, v{vT1}")
        I(f"v_cndmask_b32 v{SEL+i}, v{vT2}, v{vT4}, vcc")
        I(f"v_mov_b32 v{SEL+6+i}, v{SEL+i}")
    for i in (2, 3, 4, 5):
        I(f"v_mov_b32 v{SEL+i}, 0")
    S1, S2 = ACC, ACC + 4
    for i in range(8):
        I(f"v_mov_b32 v{ACC+i}, 0")
    I(f"v_mov_b32 v{vT5}, 0x3f803f80")
    I(f"v_lshlrev_b32 v{vT0}, 2, v{vLANE}")
    I(f"v_add_u32 v{vT0}, {LDS_FLG}, v{vT0}")
    I(f"ds_write_b32 v{vT0}, v{ACC}")
    tw = {}
    bgq(2)
    sentinels0()
    for seg in range(7):
        g.wait(tx[seg])
        I(f"ds_read_b128 {vr(XF+8*seg,4)}, v{vXR0} offset:{seg*1024}")
        t = I(f"ds_read_b128 {vr(XF+8*seg+4,4)}, v{vXR1} offset:{seg*1024}")
        if seg in (1, 3, 5):
            bgq()
        g.wait(t)
        for k in range(8):
            r = XF + 8 * seg + k
            I(f"v_dot2_f32_bf16 v{S1+k%4}, v{r}, v{vT5}, v{S1+k%4}")
            I(f"v_dot2_f32_bf16 v{S2+k%4}, v{r}, v{r}, v{S2+k%4}")
    I("s_setprio 1")
    stamp("x stats")
    I(f"v_add_f32 v{S1}, v{S1}, v{S1+1}")
    I(f"v_add_f32 v{S1+2}, v{S1+2}, v{S1+3}")
    I(f"v_add_f32 v{S2}, v{S2}, v{S2+1}")
    I(f"v_add_f32 v{S2+2}, v{S2+2}, v{S2+3}")
    I(f"v_add_f32 v{S1}, v{S1}, v{S1+2}")
    I(f"v_add_f32 v{S2}, v{S2}, v{S2+2}")
    for lv in (16, 32):
        I(f"v_mov_b32 v{S1+1}, v{S1}")
        I(f"v_mov_b32 v{S2+1}, v{S2}")
        I(f"v_permlane{lv}_swap_b32 v{S1}, v{S1+1}")
        I(f"v_permlane{lv}_swap_b32 v{S2}, v{S2+1}")
        I(f"v_add_f32 v{S1}, v{S1}, v{S1+1}")
        I(f"v_add_f32 v{S2}, v{S2}, v{S2+1}")
    I(f"v_mul_f32 v{S1}, {f32(1/448)}, v{S1}")
    I(f"v_mul_f32 v{S2}, {f32(1/448)}, v{S2}")
    I(f"v_fma_f32 v{S2}, -v{S1}, v{S1}, v{S2}")
    I(f"v_max_f32 v{S2}, 0, v{S2}")
    I(f"v_add_f32 v{S2}, {f32(1e-5)}, v{S2}")
    RS, NB = ACCV, ACCV + 2
    I(f"v_rsq_f32 v{RS}, v{S2}")
    I(f"v_mul_f32 v{NB}, v{S1}, v{RS}")
    I(f"v_sub_f32 v{NB}, 0, v{NB}")
    I(f"v_mov_b32 v{RS+1}, v{RS}")
    I(f"v_mov_b32 v{NB+1}, v{NB}")
    TP = WF
    CSR = 248
    tcs = tinit = None
    for k in range(0, 56, 8):
        for u in range(8):
            I(f"v_lshlrev_b32 v{TP+2*u}, 16, v{XF+k+u}")
            I(f"v_and_b32 v{TP+2*u+1}, 0xffff0000, v{XF+k+u}")
        for u in range(8):
            I(f"v_pk_fma_f32 {vr(TP+2*u,2)}, {vr(TP+2*u,2)}, {vr(RS,2)}, {vr(NB,2)}")
        for u in range(8):
            I(f"v_cvt_pk_bf16_f32 v{XF+k+u}, v{TP+2*u}, v{TP+2*u+1}")
        if k in (0, 16, 32):
            bgq()
    I("s_setprio 0")
    stamp("normalized")
    I(f"v_mul_u32_u24 v{vT0}, 224, v{vG}")
    I(f"v_add_u32 v{vT0}, {LDS_WPL}, v{vT0}")
    I(f"v_lshl_add_u32 v{TMP}, v{vM16}, 1, v{vT0}")
    I(f"v_lshrrev_b32 v{vT2}, 2, v{vM16}")
    I(f"v_sub_u32 v{vT2}, v{vM16}, v{vT2}")
    I(f"v_lshl_add_u32 v{vT2}, v{vT2}, 1, v{vT0}")
    I(f"v_add_u32 v{TMP+1}, 32, v{vT2}")
    I(f"v_mov_b32 v{vT1}, {LDS_WPL + 1600}")
    I(f"v_and_b32 v{vT2}, 3, v{vM16}")
    I(f"v_cmp_eq_u32 vcc, 3, v{vT2}")
    I(f"v_cndmask_b32 v{TMP+1}, v{TMP+1}, v{vT1}, vcc")
    I(f"v_cmp_eq_u32 vcc, 3, v{vG}")
    I(f"v_cndmask_b32 v{TMP+2}, v{TMP}, v{vT1}, vcc")
    I(f"v_cndmask_b32 v{TMP+3}, v{TMP+1}, v{vT1}, vcc")
    I(f"v_add_u32 v{vTRb}, {LDS_WK}, v{vTR}")
    I(f"v_xor_b32 v{vTRc}, 32, v{vTRb}")
    def cs_loads():
        I(f"s_and_b32 s{sT0}, s{sW}, 1")
        I(f"s_cmp_eq_u32 s{sT0}, 1")
        I(f"s_cselect_b32 s4, s{sWU}, s{sWG}")
        I(f"s_cselect_b32 s5, s{sWU+1}, s{sWG+1}")
        I(f"s_mov_b32 s6, 1605632")
        I(f"s_mov_b32 s7, 0x20000")
        I(f"s_lshl_b32 s{sT0}, s{sG}, 2")
        I(f"s_lshr_b32 s{sT1}, s{sW}, 1")
        I(f"s_add_u32 s{sT0}, s{sT0}, s{sT1}")
        I(f"s_mul_i32 s{sT0}, s{sT0}, {7*3584}")
        I(f"s_lshl_b32 s{sT1}, s{sJC}, 8")
        I(f"s_add_u32 s{sT0}, s{sT0}, s{sT1}")
        I(f"s_cmp_ge_u32 s{sJC}, 14")
        I(f"s_cselect_b32 s{sT1}, {OOB}, 0")
        I(f"v_lshlrev_b32 v{vXA0}, 2, v{vLANE}")
        I(f"v_add_u32 v{vXA0}, s{sT1}, v{vXA0}")
        for r in range(7):
            if r:
                I(f"s_add_u32 s{sT0}, s{sT0}, 3584")
            tcs_ = I(f"buffer_load_dword v{CSR+r}, v{vXA0}, s[4:7], s{sT0} offen")
        return tcs_

    def init_load():
        I(f"v_mov_b32 v{vCNT}, 0")
        return I(f"buffer_load_dword v{vINIT}, v{vCNT}, {srd(sDBG)}, 0 offen sc1")
    bg_add("sent", sentinels)
    bg_add("cs", cs_loads)
    for i in (4, 5, 6):
        bg_add(f"w{i}", lambda i=i: rawW(i))
    g.wait(bt["wk3"])
    g.wait_all(vm=False)
    I("s_barrier")
    init_signal()

    def rdk(c, dst):
        I(f"ds_read_b64_tr_b16 {vr(dst,2)}, v{vTRb} offset:{c*2048}")
        I(f"ds_read_b64_tr_b16 {vr(dst+2,2)}, v{vTRb} offset:{c*2048+256}")
        I(f"ds_read_b64_tr_b16 {vr(dst+4,2)}, v{vTRc} offset:{c*2048}")
        return I(f"ds_read_b64_tr_b16 {vr(dst+6,2)}, v{vTRc} offset:{c*2048+256}")

    tphi = None
    for u in range(2):
        for j in range(8):
            d0 = j if j < 4 else 16 + j - 4
            va = TMP + u + (2 if j >= 4 else 0)
            dst = (WPH2 if j & 1 else WPHI) + 4 * u + j // 2
            tphi = I(f"ds_read_u16 v{dst}, v{va} offset:{d0*56}")
    I(f"v_lshrrev_b32 v{vWOA}, 3, v{vLANE}")
    I(f"v_mul_u32_u24 v{vWOA}, 896, v{vWOA}")
    I(f"v_and_b32 v{vT1}, 7, v{vLANE}")
    I(f"v_lshl_add_u32 v{vWOA}, v{vT1}, 4, v{vWOA}")
    I(f"s_lshl_b32 s{sWOB}, s{sNQ}, 1")
    I(f"s_add_u32 s{sWOB}, s{sWOB}, s{sWH}")
    I(f"s_cmp_eq_u32 s{sWOB}, 7")
    I(f"s_cselect_b32 s{sT1}, {OOB}, 0")
    I(f"s_lshl_b32 s{sWOB}, s{sWOB}, 7")
    I(f"s_add_u32 s{sWOB}, s{sWOB}, s{sT1}")
    I(f"s_mul_i32 s{sT1}, s{sW3}, {112*896}")
    I(f"s_add_u32 s{sWOB}, s{sWOB}, s{sT1}")
    two = {}

    def wo_load(i):
        I(f"s_add_u32 s{sBG}, s{sWOB}, {i*8*896}")
        two[i] = I(f"buffer_load_dwordx4 {woraw(i)}, v{vWOA}, {srd(sWO)}, s{sBG} offen")
    for i in range(8):
        bg_add(f"wo{i}", lambda i=i: wo_load(i))
    chain16(ACC, rdk, hook=lambda c: bgq() if c in (2, 5, 8, 11) else None)
    for i in range(8):
        I(f"v_lshl_or_b32 v{WPHI+i}, v{WPH2+i}, 16, v{WPHI+i}")
    stamp("k chain")
    I(f"v_add_u32 v{vT1}, s{sLW}, v{vL16}")
    I(f"s_cmp_ge_u32 s{sW}, 4")
    I(f"s_cselect_b32 s{sT0}, {10240-3072}, 0")
    I(f"v_add_u32 v{vT2}, s{sT0}, v{vT1}")
    g.wait(bt['w3'])
    for i in range(3):
        I(f"ds_write_b128 v{vT1}, {vr(WR+4*i,4)} offset:{i*1024}")
    t = I(f"ds_write_b128 v{vT2}, {vr(WR+12,4)} offset:3072")
    I(f"v_lshrrev_b32 v{vT0}, 1, v{vG}")
    I(f"v_mul_u32_u24 v{vT0}, {UNIT-1024}, v{vT0}")
    I(f"v_add_u32 v{vTRb}, v{vT0}, v{vTR}")
    I(f"v_xor_b32 v{vTRc}, 32, v{vTRb}")
    I(f"v_add_u32 v{vXR0}, 57344, v{vTRb}")
    I(f"v_add_u32 v{vXR1}, 57344, v{vTRc}")
    g.wait(t)
    I("s_barrier")
    stamp("wv ready")

    def rdw(isq):
        def rd(c, dst):
            n0 = 2 * c
            if not isq:
                unit, off = n0 % 8, (n0 // 8) * 1024
            elif n0 < 24:
                unit, off = n0 % 8, 10240 + (1 + n0 // 8) * 1024
            else:
                unit, off = 4 + n0 - 24, 10240
            a0, a1 = (vTRb, vTRc) if unit < 4 else (vXR0, vXR1)
            off += (unit % 4) * UNIT
            I(f"ds_read_b64_tr_b16 {vr(dst,2)}, v{a0} offset:{off}")
            I(f"ds_read_b64_tr_b16 {vr(dst+2,2)}, v{a0} offset:{off+256}")
            I(f"ds_read_b64_tr_b16 {vr(dst+4,2)}, v{a1} offset:{off}")
            return I(f"ds_read_b64_tr_b16 {vr(dst+6,2)}, v{a1} offset:{off+256}")
        return rd

    g.begin()
    chain16(ACCV, rdw(False), swap=True, hook=lambda c: bgq() if c % 2 == 1 else None)
    main = g.end()
    g.begin()
    featmap(ACC, PH)
    for s_ in range(2):
        for u in range(2):
            I(f"v_mfma_f32_16x16x32_bf16 {vr(TMP+8*s_+4*u,4)}, {vr(PH+4*s_,4)}, {vr(SEL+4*u,4)}, 0")
    side = g.end()
    g.put(interleave(main, side, every=1, per=4))
    PT = PH
    for k in range(8):
        I(f"v_cvt_pk_bf16_f32 v{PT+k}, v{TMP+2*k}, v{TMP+2*k+1}")
    VF = ACC
    I(f"v_cmp_le_u32 vcc, 12, v{vM16}")
    for k in range(4):
        I(f"v_cvt_pk_bf16_f32 v{VF+k}, v{ACCV+2*k}, v{ACCV+2*k+1}")
    I(f"v_cndmask_b32 v{VF+2}, v{VF+2}, v{vT5}, vcc")
    I(f"v_cndmask_b32 v{VF+3}, v{VF+3}, v{vT5}, vcc")
    I(f"s_lshr_b32 s{sT0}, s{sW}, 1")
    I(f"s_lshl_b32 s{sT0}, s{sT0}, 10")
    I(f"s_and_b32 s{sT1}, s{sW}, 1")
    I(f"s_lshl_b32 s{sT1}, s{sT1}, 3")
    I(f"s_add_u32 s{sT0}, s{sT0}, s{sT1}")
    I(f"s_add_u32 s{sT0}, s{sT0}, {LDS_WK}")
    I(f"v_add_u32 v{vT0}, s{sT0}, v{vL16}")
    for k in range(4):
        I(f"ds_write_b64 v{vT0}, {vr(PT+2*k,2)} offset:{k*4096}")
    for k in range(2):
        I(f"ds_write_b64 v{vT0}, {vr(VF+2*k,2)} offset:{(4+k)*4096}")
    g.wait(bt['cs'])
    I(f"v_mov_b32 v{ACCV}, 0\nv_mov_b32 v{ACCV+1}, 0")
    for r in range(7):
        I(f"v_dot2_f32_bf16 v{ACCV}, v{CSR+r}, v{vT3}, v{ACCV}")
        I(f"v_dot2_f32_bf16 v{ACCV+1}, v{CSR+r}, v{vT4}, v{ACCV+1}")
    I(f"v_lshlrev_b32 v{vT1}, 3, v0")
    I(f"v_add_u32 v{vT1}, {LDS_KVF}, v{vT1}")
    I(f"ds_write_b64 v{vT1}, {vr(ACCV,2)}")
    I(f"s_lshl_b32 s{sT0}, s{sWH}, 1")
    I(f"s_and_b32 s{sT1}, s{sW}, 1")
    I(f"s_add_u32 s{sT0}, s{sT0}, s{sT1}")
    I(f"s_lshl_b32 s{sT0}, s{sT0}, 12")
    I(f"s_add_u32 s{sT0}, s{sT0}, {LDS_WK}")
    I(f"v_add_u32 v{vT0}, s{sT0}, v{vL16}")
    I(f"s_bfe_u32 s{sT0}, s{sW}, 0x10001")
    I(f"s_lshl_b32 s{sT0}, s{sT0}, 12")
    I(f"s_add_u32 s{sT0}, s{sT0}, {LDS_WK + 4*4096}")
    I(f"v_add_u32 v{vT1}, s{sT0}, v{vL16}")
    g.wait_all(vm=False)
    I("s_barrier")
    R = WF
    tk = {}
    for p in range(4):
        I(f"ds_read_b128 {vr(R+8*p,4)}, v{vT0} offset:{p*1024}")
        tk[p] = I(f"ds_read_b128 {vr(R+8*p+4,4)}, v{vT1} offset:{p*1024}")
    I(f"v_lshlrev_b32 v{vXA0}, 2, v0")
    I(f"v_and_b32 v{vXA0}, 1023, v{vXA0}")
    I(f"v_add_u32 v{vXA0}, {LDS_KVF}, v{vXA0}")
    I(f"ds_read2st64_b32 {vr(ACCV,2)}, v{vXA0} offset0:0 offset1:4")
    tq = I(f"ds_read2st64_b32 {vr(ACCV+2,2)}, v{vXA0} offset0:8 offset1:12")
    for p in range(4):
        g.wait(tk[p])
        I(f"v_mfma_f32_16x16x32_bf16 {vr(ACC,4)}, {vr(R+8*p,4)}, {vr(R+8*p+4,4)}, {'0' if p == 0 else vr(ACC,4)}")
    g.wait(tq)
    I(f"v_add_f32 v{ACCV}, v{ACCV}, v{ACCV+1}")
    I(f"v_add_f32 v{ACCV+2}, v{ACCV+2}, v{ACCV+3}")
    I(f"v_add_f32 v{ACCV}, v{ACCV}, v{ACCV+2}")
    I(f"v_cvt_pk_bf16_f32 v{ACC+4}, v{ACC}, v{ACC+1}")
    I(f"v_cvt_pk_bf16_f32 v{ACC+5}, v{ACC+2}, v{ACC+3}")
    I(f"buffer_store_dwordx2 {vr(ACC+4,2)}, v{vT8}, {srd(sWS)}, s{sKVS} offen sc1")
    I(f"buffer_store_dword v{ACCV}, v{vCSS}, {srd(sWS)}, s{sCSS} offen sc1")
    stamp("kv stored")
    I(f"v_add_u32 v{vT1}, s{sLW}, v{vL16}")
    g.wait(bt['w6'])
    for i in range(4, 7):
        I(f"ds_write_b128 v{vT1}, {vr(WR+4*i,4)} offset:{10240+(i-3)*1024}")
    bgq(99)
    c_setup()
    d_setup()
    g.wait_all(vm=False)
    I("s_barrier")
    for i in range(4):
        I(f"v_mov_b32 v{248+i}, -1")
    for i in range(8, 14):
        bg(lambda: wo_load(i), None, 120)
    for k in range(4):
        bg(lambda: sent_hh(k), None, 120)
    g.mark("on")
    chain16(ACC, rdw(True))
    flush()
    I("s_barrier")
    g.mark("qdone")
    c_bg(0, 0, 0, 56, 0, "qdone")
    c_bg(1, 0, 0, 16, 57344, "qdone")
    I(f"v_lshlrev_b32 v{vCNT}, 4, v{vM16}")
    tini = I(f"buffer_load_dword v{vINIT}, v{vCNT}, {srd(sDBG)}, 0 offen sc1")
    featmap(ACC, PH)
    g.mark("off")
    GR, R, AO, OS = 40, 96, 176, 184
    WOF = 112
    vB1, vB2, vB3 = 188, 189, 190
    vK0, vK1, vK2 = 191, 192, 193
    lr, lb = g.newlabel("L_ir"), g.newlabel("L_ib")
    g.wait(tini)
    I(f"v_cmp_gt_u32 vcc, 16, v{vINIT}")
    I(f"s_cmp_lg_u64 vcc, 0")
    I(f"s_cbranch_scc1 {lr}")
    g.label(lb)
    g.begin()
    g.label(lr)
    init_check()
    I(f"s_branch {lb}")
    TAILS.append(g.end())
    stamp("q done")

    I(f"s_lshl_b32 s{sT0}, s{sWH}, 15")
    I(f"s_lshl_b32 s{sT1}, s{sW3}, 10")
    I(f"s_add_u32 s{sGATH}, s{sGATH}, s{sT0}")
    I(f"s_add_u32 s{sGATH}, s{sGATH}, s{sT1}")

    def gat_issue():
        tl = []
        I(f"s_mov_b32 s{sT0}, s{sGATH}")
        for rb in range(8):
            if rb:
                I(f"s_add_u32 s{sT0}, s{sT0}, 4096")
            tl.append(I(f"buffer_load_dwordx4 {vr(GR+4*rb,4)}, v{vL16}, {srd(sWS)}, s{sT0} offen sc1"))
        return tl

    def gat_body(tl):
        for i in range(8):
            I(f"v_mov_b32 v{R+i}, 0")
        for rb in range(8):
            g.wait(tl[rb])
            for i in range(4):
                I(f"v_dot2_f32_bf16 v{R+2*i}, v{GR+4*rb+i}, v{vT3}, v{R+2*i}")
                I(f"v_dot2_f32_bf16 v{R+2*i+1}, v{GR+4*rb+i}, v{vT4}, v{R+2*i+1}")

    def wo_bounce():
        I(f"v_lshrrev_b32 v{vK0}, 2, v{vM16}")
        I(f"v_sub_u32 v{vK0}, v{vM16}, v{vK0}")
        I(f"v_and_b32 v{vT1}, 3, v{vM16}")
        I(f"v_cmp_eq_u32 vcc, 3, v{vT1}")
        I(f"v_cndmask_b32 v{vK0}, v{vK0}, 12, vcc")
        I(f"v_lshl_add_u32 v{vK0}, v{vG}, 4, v{vK0}")
        I(f"v_lshlrev_b32 v{vK0}, 4, v{vK0}")
        I(f"v_add_u32 v{vK0}, {LDS_KV2}, v{vK0}")
        I(f"v_add_u32 v{vK1}, {LDS_KV2}, v{vL16}")
        I(f"v_add_u32 v{vK2}, s{sCL}, v{vK1}")
        I(f"s_mul_i32 s{sT0}, s{sW}, 8960")
        I(f"s_add_u32 s{sT0}, s{sT0}, {LDS_BSCR}")
        I(f"v_lshrrev_b32 v{vT1}, 3, v{vLANE}")
        I(f"v_mul_u32_u24 v{vT1}, 160, v{vT1}")
        I(f"v_and_b32 v{vT2}, 7, v{vLANE}")
        I(f"v_lshl_add_u32 v{vT1}, v{vT2}, 4, v{vT1}")
        I(f"v_add_u32 v{vB3}, s{sT0}, v{vT1}")
        I(f"v_bfe_u32 v{vT1}, v{vLANE}, 2, 2")
        I(f"v_lshl_add_u32 v{vB1}, v{vG}, 2, v{vT1}")
        I(f"v_min_u32 v{vT1}, 2, v{vT1}")
        I(f"v_mad_u32_u24 v{vB2}, v{vG}, 3, v{vT1}")
        I(f"v_add_u32 v{vB2}, 16, v{vB2}")
        I(f"v_and_b32 v{vT1}, 3, v{vLANE}")
        I(f"v_lshlrev_b32 v{vT1}, 3, v{vT1}")
        I(f"v_add_u32 v{vT1}, s{sT0}, v{vT1}")
        I(f"v_mul_u32_u24 v{vB1}, 160, v{vB1}")
        I(f"v_mul_u32_u24 v{vB2}, 160, v{vB2}")
        I(f"v_add_u32 v{vB1}, v{vB1}, v{vT1}")
        I(f"v_add_u32 v{vB2}, v{vB2}, v{vT1}")
        for rnd in range(2):
            g.wait(two[7 * rnd + 6])
            t = None
            for i in range(7):
                t = I(f"ds_write_b128 v{vB3}, {woraw(7*rnd+i)} offset:{i*1280}")
            g.wait(t)
            for h2 in range(2):
                for nt in range(4):
                    d = WOF + ((2 * rnd + h2) * 4 + nt) * 4
                    I(f"ds_read_b64_tr_b16 {vr(d,2)}, v{vB1} offset:{h2*4480+nt*32}")
                    t = I(f"ds_read_b64_tr_b16 {vr(d+2,2)}, v{vB2} offset:{h2*4480+nt*32}")
            g.wait(t)
    spec_load(gat_issue, [GR + 2 * k for k in range(16)], R + 12, gat_body, wo_bounce)
    g.mark("gdone")
    for i in range(4):
        I(f"v_cvt_pk_bf16_f32 v{R+8+i}, v{R+2*i}, v{R+2*i+1}")
    I(f"ds_write_b128 v{vK2}, {vr(R+8,4)}")
    g.mark("burst:3")
    g.wait_all(vm=False)
    stamp("gathered")
    I("s_barrier")
    KF = 40
    tk = {}
    for hf_ in range(2):
        for s_ in range(2):
            I(f"ds_read_b128 {vr(KF+16*hf_+8*s_,4)}, v{vK1} offset:{hf_*4096+s_*2048}")
            tk[hf_, s_] = I(f"ds_read_b128 {vr(KF+16*hf_+8*s_+4,4)}, v{vK0} offset:{hf_*4096+s_*2048+1024}")
    for hf_ in range(2):
        for s_ in range(2):
            g.wait(tk[hf_, s_])
            for t in range(2):
                a = vr(AO + 4 * t, 4)
                I(f"v_mfma_f32_16x16x32_bf16 {a}, {vr(KF+16*hf_+8*s_+4*t,4)}, {vr(PH+4*s_,4)}, {'0' if (s_ == 0 and hf_ == 0) else a}")
    I(f"v_add_f32 v{vT1}, {f32(1e-6)}, v{AO+7}")
    I(f"v_rcp_f32 v{vT1}, v{vT1}")
    for i in range(7):
        I(f"v_mul_f32 v{AO+i}, v{AO+i}, v{vT1}")
    for i in range(3):
        I(f"v_cvt_pk_bf16_f32 v{OS+i}, v{AO+2*i}, v{AO+2*i+1}")
    I(f"v_cvt_pk_bf16_f32 v{OS+3}, v{AO+6}, 0")
    I(f"buffer_store_dwordx4 {vr(OS,4)}, v{vL16}, {srd(sWS)}, s{sOS} offen sc1")
    stamp("o stored")
    if "t2b" in EXP:
        touch2()
    g.mark("on")
    return two


def woraw(i):
    return vr(216 + 4 * i, 4) if i < 8 else vr(WR + 4 * (i - 8), 4)


def phaseB(two):
    g.comment("==== phase B ====")
    OF = 216
    XR, XU, CSG = 176, 180, 188
    WOF = 112
    BACC = 72
    vB1, vB2, vB3 = 196, 197, 198
    vD1, vD2, vD3 = 199, 200, 201
    I(f"s_mul_i32 s{sT0}, s{sMTB}, {32*896}")
    I(f"s_lshl_b32 s{sT1}, s{sNQ}, 8")
    I(f"s_add_u32 s{sT0}, s{sT0}, s{sT1}")
    I(f"s_lshl_b32 s{sT1}, s{sW}, 2")
    I(f"v_and_b32 v{vT4}, 3, v{vLANE}")
    I(f"v_add_u32 v{vT4}, s{sT1}, v{vT4}")
    I(f"v_lshrrev_b32 v{vT5}, 2, v{vLANE}")
    I(f"v_mul_u32_u24 v{vT0}, 896, v{vT4}")
    I(f"v_lshl_add_u32 v{vT0}, v{vT5}, 4, v{vT0}")
    txr = I(f"buffer_load_dwordx4 {vr(XR,4)}, v{vT0}, {srd(sX)}, s{sT0} offen")
    g.mark("burst:3")
    I(f"s_lshl_b32 s{sD}, s{sMTB}, 5")
    I(f"s_lshl_b32 s{sT1}, s{sW3}, 2")
    I(f"s_add_u32 s{sD}, s{sD}, s{sT1}")
    I(f"s_lshl_b32 s{sD}, s{sD}, 10")
    I(f"s_add_u32 s{sD}, s{sD}, {WS_O}")
    I(f"s_add_u32 s{sE}, s{sD}, 16384")
    I(f"s_mul_i32 s{sT0}, s{sW3}, 17408")
    I(f"s_mul_i32 s{sT1}, s{sWH}, {8*1088}")
    I(f"s_add_u32 s{sT0}, s{sT0}, s{sT1}")
    I(f"s_add_u32 s{sT0}, s{sT0}, {LDS_BSCR}")
    I(f"v_lshrrev_b32 v{vT1}, 1, v{vG}")
    I(f"v_mul_u32_u24 v{vT1}, 1088, v{vT1}")
    I(f"v_and_b32 v{vT2}, 1, v{vG}")
    I(f"v_lshl_add_u32 v{vT1}, v{vT2}, 9, v{vT1}")
    I(f"v_lshl_add_u32 v{vT1}, v{vM16}, 4, v{vT1}")
    I(f"v_add_u32 v{vB1}, s{sT0}, v{vT1}")
    I(f"v_mul_u32_u24 v{vT1}, 1088, v{vT5}")
    I(f"v_lshl_add_u32 v{vT1}, v{vT4}, 4, v{vT1}")
    I(f"v_add_u32 v{vB2}, {LDS_BSCR}, v{vT1}")
    I(f"v_cmp_gt_u32 vcc, 0x10000, v{vHSA}")
    I(f"v_cndmask_b32 v{vT3}, 0, -1, vcc")
    stats_addr(vT2, vT0, vT1)
    I(f"v_mov_b32 v{vT5}, 0x3f803f80")
    g.wait(txr)
    for i in range(4):
        I(f"v_lshlrev_b32 v{XU+2*i}, 16, v{XR+i}")
        I(f"v_and_b32 v{XU+2*i+1}, 0xffff0000, v{XR+i}")
    g.mark("off")
    stamp("wo ready")

    def o_issue():
        tl = []
        for hh in range(4):
            for mt in range(2):
                tl.append(I(f"buffer_load_dwordx4 {vr(OF+(hh*2+mt)*4,4)}, v{vL16}, {srd(sWS)}, s{sE if mt else sD} offen offset:{hh*1024} sc1"))
        return tl

    def o_body(tl):
        for hh in range(4):
            for mt in range(2):
                g.wait(tl[hh * 2 + mt])
                for nt in range(4):
                    a = BACC + (mt * 4 + nt) * 4
                    I(f"v_mfma_f32_16x16x32_bf16 {vr(a,4)}, {vr(WOF+(hh*4+nt)*4,4)}, {vr(OF+(hh*2+mt)*4,4)}, {'0' if hh == 0 else vr(a,4)}")
    spec_load(o_issue, [OF + 4 * k for k in range(8)], vT0, o_body)
    stamp("B mfma")
    g.mark("burst:3")
    for mt in range(2):
        for nt in range(4):
            I(f"ds_write_b128 v{vB1}, {vr(BACC+(mt*4+nt)*4,4)} offset:{nt*2176+mt*256}")
    S1, S2 = 104, 105
    I(f"v_mov_b32 v{S1}, 0\nv_mov_b32 v{S2}, 0")
    g.wait_all(vm=False)
    I("s_barrier")
    b = 72
    for w in range(4):
        for q in range(2):
            I(f"ds_read_b128 {vr(b+w*8+q*4,4)}, v{vB2} offset:{w*17408+q*512}")
    g.wait_all(vm=False)
    HP = 108
    for i in range(8):
        I(f"v_add_f32 v{b+i}, v{b+i}, v{b+8+i}")
        I(f"v_add_f32 v{b+16+i}, v{b+16+i}, v{b+24+i}")
    for i in range(8):
        I(f"v_add_f32 v{b+i}, v{b+i}, v{XU+i}")
    for i in range(8):
        I(f"v_add_f32 v{b+i}, v{b+i}, v{b+16+i}")
    for i in range(4):
        I(f"v_cvt_pk_bf16_f32 v{HP+i}, v{b+2*i}, v{b+2*i+1}")
    I(f"buffer_store_dwordx4 {vr(HP,4)}, v{vHSA}, {srd(sWS)}, s{sHS} offen sc1")
    for i in range(4):
        I(f"v_dot2_f32_bf16 v{S1}, v{HP+i}, v{vT5}, v{S1}")
        I(f"v_dot2_f32_bf16 v{S2}, v{HP+i}, v{HP+i}, v{S2}")
    I(f"v_and_b32 v{S1}, v{vT3}, v{S1}")
    I(f"v_and_b32 v{S2}, v{vT3}, v{S2}")
    for ror in (4, 8):
        I(f"v_add_f32_dpp v{S1}, v{S1}, v{S1} row_ror:{ror} row_mask:0xf bank_mask:0xf")
        I(f"v_add_f32_dpp v{S2}, v{S2}, v{S2} row_ror:{ror} row_mask:0xf bank_mask:0xf")
    for lv in (16, 32):
        I(f"v_mov_b32 v106, v{S1}\nv_mov_b32 v107, v{S2}")
        I(f"v_permlane{lv}_swap_b32 v{S1}, v106")
        I(f"v_permlane{lv}_swap_b32 v{S2}, v107")
        I(f"v_add_f32 v{S1}, v{S1}, v106")
        I(f"v_add_f32 v{S2}, v{S2}, v107")
    I(f"buffer_store_dwordx2 v[{S1}:{S2}], v{vT2}, {srd(sWS)}, s{sSS} offen sc1")
    stamp("h stored")
    I("s_barrier")
    I(f"s_cmp_ge_u32 s{sJC}, 14")
    I("s_cbranch_scc1 L_end")
    tb2 = c_batch(1, 0, 16, 56, 57344 + 16384)
    I(f"s_lshl_b32 s{sT0}, s{sJC}, 14")
    I(f"s_lshl_b32 s{sT1}, s{sWH}, 13")
    I(f"s_add_u32 s{sT0}, s{sT0}, s{sT1}")
    I(f"s_add_u32 s{sT0}, s{sT0}, {WS_CS}")
    I(f"s_add_u32 s{sT1}, s{sT0}, 4096")
    I(f"v_lshlrev_b32 v{vB3}, 2, v0")
    I(f"v_and_b32 v{vB3}, 1023, v{vB3}")

    def cs_issue():
        return [I(f"buffer_load_dword v{CSG+rb}, v{vB3}, {srd(sWS)}, s{sT1 if rb >= 4 else sT0} offen offset:{(rb%4)*1024} sc1") for rb in range(8)]
    check_loop(cs_issue, [CSG + rb for rb in range(8)], vT0)
    for k in (4, 2, 1):
        for i in range(k):
            I(f"v_add_f32 v{CSG+i}, v{CSG+i}, v{CSG+k+i}")
    I(f"v_lshlrev_b32 v{vB3}, 2, v0")
    I(f"v_add_u32 v{vB3}, {LDS_KVF}, v{vB3}")
    I(f"ds_write_b32 v{vB3}, v{CSG}")


GK1 = -2.0 * math.sqrt(2.0 / math.pi) * LOG2E
GK2 = GK1 * 0.044715
LDS_X = 114688
vHB, vM, vWD = 254, 255, 253
sWDB = 80
WDE = 16
NWDE = 7
NWDC = int(os.environ.get('NWDC', '2'))


def hh_signal(stage, toks):
    g.wait(*toks)
    I("s_barrier")
    lab = g.newlabel("L_hs")
    I(f"s_cmp_lg_u32 s{sW}, 0")
    I(f"s_cbranch_scc1 {lab}")
    g.cond_begin()
    I("s_mov_b64 exec, 1")
    I(f"s_lshl_b32 s{sT0}, s{sG}, 8")
    I(f"s_add_u32 s{sT0}, s{sT0}, {WS_CNT + CNT_HH * 4096 + 64 * stage}")
    I(f"v_mov_b32 v{vCNT}, s{sT0}")
    I(f"buffer_atomic_add v{vONE}, v{vCNT}, {srd(sWS)}, 0 offen sc1")
    I("s_mov_b64 exec, -1")
    g.cond_end()
    g.label(lab)


def hh_poll(stage_sreg_or_imm):
    I("s_mov_b64 exec, 1")
    I(f"s_lshl_b32 s{sT0}, s{sGB}, 8")
    I(f"s_add_u32 s{sT0}, s{sT0}, {WS_CNT + CNT_HH * 4096}")
    I(f"s_add_u32 s{sT0}, s{sT0}, {stage_sreg_or_imm}")
    I(f"v_mov_b32 v{vCNT}, s{sT0}")
    poll(sWS, vCNT, 14)
    I("s_mov_b64 exec, -1")


def d_setup():
    I(f"v_lshrrev_b32 v{vHB}, 5, v{vLANE}")
    I(f"v_and_b32 v{vM}, 31, v{vLANE}")
    I(f"v_lshrrev_b32 v{vT0}, 3, v{vLANE}")
    I(f"v_mul_u32_u24 v{vT0}, 896, v{vT0}")
    I(f"v_and_b32 v{vT1}, 1, v{vG}")
    I(f"v_lshlrev_b32 v{vT1}, 2, v{vT1}")
    I(f"v_and_b32 v{vWD}, 7, v{vLANE}")
    I(f"v_xor_b32 v{vWD}, v{vWD}, v{vT1}")
    I(f"v_lshl_add_u32 v{vWD}, v{vWD}, 4, v{vT0}")
    I(f"s_cmp_ge_u32 s{sJB}, 7")
    I(f"s_cselect_b32 s{sRH}, 1, 0")
    I(f"s_mul_i32 s{sT0}, s{sRH}, 7")
    I(f"s_sub_u32 s{sCB}, s{sJB}, s{sT0}")
    I(f"s_lshl_b32 s{sT0}, s{sWH}, 1")
    I(f"s_add_u32 s{sT0}, s{sT0}, s{sW}")
    I(f"s_and_b32 s{sAA}, s{sT0}, 3")
    I(f"s_mul_i32 s{sKC}, s{sWH}, 56")
    I(f"s_add_u32 s{sKC}, s{sKC}, s{sAA}")
    I(f"s_mul_i32 s{sWDB}, s{sKC}, {16*896}")
    I(f"s_lshl_b32 s{sT1}, s{sCB}, 7")
    I(f"s_add_u32 s{sWDB}, s{sWDB}, s{sT1}")
    I(f"s_cmp_ge_u32 s{sJB}, 14")
    I(f"s_cselect_b32 s{sT1}, {OOB}, 0")
    I(f"s_add_u32 s{sWDB}, s{sWDB}, s{sT1}")


sRH, sCB, sAA, sKC = 64, 65, 66, 67


def kc_off(n):
    return 8 * n if n < 7 else 4 + 8 * (n - 7)


def wd_load(dst, n):
    t = None
    for hf_ in range(2):
        I(f"s_add_u32 s{sT3}, s{sWDB}, {(16*kc_off(n) + 8*hf_)*896}")
        for e in range(4):
            t = I(f"buffer_load_dword v{dst+4*hf_+e}, v{vWD}, {srd(sWD)}, s{sT3} offen offset:{e*896}")
    return t


def wd_half(dst, n, hf_):
    I(f"s_add_u32 s{sBG}, s{sWDB}, {(16*kc_off(n) + 8*hf_)*896}")
    return I(f"buffer_load_dwordx4 {vr(dst+4*hf_,4)}, v{vWD}, {srd(sWD)}, s{sBG} offen")


def dt_pattern(dst, t0, t1):
    I(f"v_bfe_u32 v{t0}, v{vLANE}, 2, 2")
    I(f"v_lshl_add_u32 v{t1}, v{vHB}, 2, v{t0}")
    I(f"v_lshlrev_b32 v{t1}, 7, v{t1}")
    I(f"v_lshrrev_b32 v{t0}, 1, v{t0}")
    I(f"v_lshl_add_u32 v{t1}, v{t0}, 6, v{t1}")
    I(f"v_and_b32 v{t0}, 1, v{vG}")
    I(f"v_lshl_add_u32 v{t1}, v{t0}, 5, v{t1}")
    I(f"v_and_b32 v{t0}, 3, v{vLANE}")
    I(f"v_lshl_add_u32 v{dst}, v{t0}, 3, v{t1}")


def c_rows(mat, dbl, r0, r1, lds_base):
    return c_batch(mat, dbl, r0, r1, lds_base)


def g1_addr(n):
    if n < 8:
        return 114688 + n * 1024
    if 24 <= n < 40:
        return 114688 + 8192 + (n - 24) * 1024
    if n < 24:
        return (n - 8) * 1024
    return 16384 + (n - 40) * 1024


def u1_addr(n):
    if n < 8:
        return 32768 + n * 1024
    if 24 <= n < 40:
        return 32768 + 8192 + (n - 24) * 1024
    if n < 24:
        return 57344 + (n - 8) * 1024
    return 57344 + 16384 + (n - 40) * 1024


def phaseCD(twd_early):
    g.comment("==== phase C ====")
    sMD, sHB, sMT = sC, sHHS, sMTC
    sAB = 7
    sL5, sL2, sL7 = 4, 5, 6
    I(f"s_mul_i32 s{sL5}, s{sW}, 5120")
    I(f"s_lshl_b32 s{sL2}, s{sW}, 11")
    I(f"s_mul_i32 s{sL7}, s{sW}, 7168")
    slotE = [(sL5, 73728 + i * 1024) for i in range(5)]
    slotM = [(sL5, 114688 + i * 1024) for i in range(5)] + [(sL2, i * 1024) for i in range(2)]
    slotL = [(sL7, 16384 + i * 1024) for i in range(7)]
    wslot = slotE + slotM + slotL + (slotE + slotM)[:9]

    def wd_dma(m):
        n, hf_ = m // 2, m % 2
        return dma2(vWD, sWD, sWDB, (16 * kc_off(n) + 8 * hf_) * 896, wslot[m][0], wslot[m][1])
    c_batch(0, 1, 0, 40, 114688)
    I(f"s_lshl_b32 s{sMD}, s{sGB}, 2")
    I(f"s_lshl_b32 s{sT0}, s{sRH}, 1")
    I(f"s_add_u32 s{sMD}, s{sMD}, s{sT0}")
    I(f"s_lshl_b32 s{sE}, s{sMT}, 10")
    I(f"s_add_u32 s{sE}, s{sE}, {WS_ST}")
    I(f"s_mul_i32 s{sWB}, s{sMT}, {28*1024}")
    I(f"s_add_u32 s{sWB}, s{sWB}, {WS_H}")
    I(f"s_mul_i32 s{sAB}, s{sMD}, {112*1024}")
    I(f"s_lshl_b32 s{sT1}, s{sKC}, 10")
    I(f"s_add_u32 s{sAB}, s{sAB}, s{sT1}")
    I(f"s_add_u32 s{sAB}, s{sAB}, {WS_HH}")
    HF = 16
    A_, B_, C_ = 128, 144, 160
    TM, CS2 = 176, 192
    WFc = 208
    vA0, vA1, vCSA, vFA, vA2 = 240, 241, 242, 243, 15
    K1, K2, IR2, NMU = 248, 249, 250, 251
    STR = 244
    I(f"v_bfe_u32 v{vT0}, v{vLANE}, 2, 2")
    I(f"v_lshl_add_u32 v{vT1}, v{vHB}, 3, v{vT0}")
    I(f"v_lshlrev_b32 v{vT1}, 7, v{vT1}")
    I(f"v_lshrrev_b32 v{vT0}, 1, v{vT0}")
    I(f"v_xor_b32 v{vT0}, s{sWH}, v{vT0}")
    I(f"v_lshl_add_u32 v{vT1}, v{vT0}, 6, v{vT1}")
    I(f"v_and_b32 v{vT2}, 1, v{vG}")
    I(f"v_lshl_add_u32 v{vT1}, v{vT2}, 5, v{vT1}")
    I(f"v_and_b32 v{vT2}, 3, v{vLANE}")
    I(f"v_lshl_add_u32 v{vA0}, v{vT2}, 3, v{vT1}")
    I(f"v_add_u32 v{vA1}, 57344, v{vA0}")
    I(f"v_add_u32 v{vA2}, 114688, v{vA0}")
    I(f"s_lshl_b32 s{sT0}, s{sWH}, 7")
    I(f"s_add_u32 s{sT0}, s{sT0}, {LDS_CS}")
    I(f"v_lshlrev_b32 v{vCSA}, 4, v{vHB}")
    I(f"v_add_u32 v{vCSA}, s{sT0}, v{vCSA}")
    I(f"v_mov_b32 v{vFA}, {LDS_FLG}")
    I(f"v_lshlrev_b32 v{vT3}, 3, v{vLANE}")
    flush()
    g.wait_all(vm=False)
    I("s_barrier")
    I(f"v_lshlrev_b32 v{vT0}, 2, v0")
    I(f"v_and_b32 v{vT0}, 1023, v{vT0}")
    I(f"v_add_u32 v{vT0}, {LDS_KVF}, v{vT0}")
    t = I(f"ds_read2st64_b32 v[72:73], v{vT0} offset0:0 offset1:4")
    g.wait(t)
    I(f"v_add_f32 v72, v72, v73")
    I(f"ds_write_b32 v{vT0}, v72 offset:4096")
    stamp("C ready")

    def st_issue():
        I(f"buffer_load_dwordx2 {vr(STR,2)}, v{vT3}, {srd(sWS)}, s{sE} offen sc1")
        return [I(f"buffer_load_dwordx2 {vr(STR+2,2)}, v{vT3}, {srd(sWS)}, s{sE} offen offset:512 sc1")]
    check_loop(st_issue, [STR, STR + 2], vT1)
    stamp("h flag")

    def h_issue():
        tl = []
        for c in range(28):
            if c % 4 == 0:
                I(f"s_add_u32 s{sT0}, s{sWB}, {c*1024}")
            tl.append(I(f"buffer_load_dwordx4 {vr(HF+4*c,4)}, v{vL16}, {srd(sWS)}, s{sT0} offen offset:{(c%4)*1024} sc1"))
        return tl
    g.begin()
    th = h_issue()
    hl = g.end()
    g.put(hl[:10])
    g.wait_all(vm=False)
    I("s_barrier")
    I(f"v_add_f32 v{STR}, v{STR}, v{STR+2}")
    I(f"v_add_f32 v{STR+1}, v{STR+1}, v{STR+3}")
    I(f"v_mov_b32 v{STR+2}, v{STR}\nv_mov_b32 v{STR+3}, v{STR+1}")
    I(f"v_permlane32_swap_b32 v{STR}, v{STR+2}")
    I(f"v_permlane32_swap_b32 v{STR+1}, v{STR+3}")
    I(f"v_add_f32 v{STR}, v{STR}, v{STR+2}")
    I(f"v_add_f32 v{STR+1}, v{STR+1}, v{STR+3}")
    I(f"v_mul_f32 v{NMU}, {f32(-1/448)}, v{STR}")
    I(f"v_mul_f32 v{STR+1}, {f32(1/448)}, v{STR+1}")
    I(f"v_fma_f32 v{STR+1}, -v{NMU}, v{NMU}, v{STR+1}")
    I(f"v_max_f32 v{STR+1}, 0, v{STR+1}")
    I(f"v_add_f32 v{IR2}, {f32(1e-5)}, v{STR+1}")
    I(f"v_rsq_f32 v{STR}, v{IR2}")
    I(f"v_mul_f32 v{K1}, {f32(GK1)}, v{STR}")
    I(f"v_mul_f32 v{STR+1}, v{STR}, v{STR}")
    I(f"v_mul_f32 v{STR+1}, v{STR+1}, v{STR}")
    I(f"v_mul_f32 v{K2}, {f32(GK2)}, v{STR+1}")
    tails = TAILS

    def cnt_add(f):
        I("s_mov_b64 exec, 1")
        I(f"ds_add_u32 v{vFA}, v{vONE} offset:{4*f}")
        I("s_mov_b64 exec, -1")

    def cnt_issue(f):
        return I(f"ds_read_b32 v{vFLAG}, v{vFA} offset:{4*f}")

    def cnt_check(f, t):
        lr, lb = g.newlabel("L_cr"), g.newlabel("L_cb")
        g.wait(t)
        I(f"v_readfirstlane_b32 s{sT4}, v{vFLAG}")
        I(f"s_cmp_lt_u32 s{sT4}, 8")
        I(f"s_cbranch_scc1 {lr}")
        g.label(lb)
        g.begin()
        g.label(lr)
        I(f"s_mov_b32 s{sT5}, 0")
        l2 = g.newlabel("L_cl")
        g.label(l2)
        I("s_sleep 1")
        cnt_issue(f)
        I("s_waitcnt lgkmcnt(0)")
        I(f"v_readfirstlane_b32 s{sT4}, v{vFLAG}")
        I(f"s_add_u32 s{sT5}, s{sT5}, 1")
        I(f"s_cmp_ge_u32 s{sT5}, {POLL_MAX*8}")
        I(f"s_cbranch_scc1 {lb}")
        I(f"s_cmp_lt_u32 s{sT4}, 8")
        I(f"s_cbranch_scc1 {l2}")
        I(f"s_branch {lb}")
        tails.append(g.end())

    def hsig_issue(f, toks):
        g.wait(*toks)
        I("s_mov_b64 exec, 1")
        t = I(f"ds_add_rtn_u32 v{vINIT}, v{vFA}, v{vONE} offset:{4*f}")
        I("s_mov_b64 exec, -1")
        return t

    def hsig_check(stage, t):
        lab = g.newlabel("L_hs")
        g.wait(t)
        I(f"v_readfirstlane_b32 s{sT4}, v{vINIT}")
        I(f"s_cmp_lg_u32 s{sT4}, 7")
        I(f"s_cbranch_scc1 {lab}")
        g.cond_begin()
        I("s_mov_b64 exec, 1")
        I(f"s_lshl_b32 s{sT0}, s{sG}, 8")
        I(f"s_add_u32 s{sT0}, s{sT0}, {WS_CNT + CNT_HH * 4096 + 64 * stage}")
        I(f"v_mov_b32 v{vCNT}, s{sT0}")
        I(f"buffer_atomic_add v{vONE}, v{vCNT}, {srd(sWS)}, 0 offen sc1")
        I("s_mov_b64 exec, -1")
        g.cond_end()
        g.label(lab)

    def cs_read(dst, mat, dbl):
        t = None
        for q in range(4):
            t = I(f"ds_read_b128 {vr(dst+4*q,4)}, v{vCSA} offset:{mat*512 + (64*dbl+8*q)*4}")
        return t

    def gpart(ag, t):
        g.wait(t)
        for i in range(16):
            I(f"v_fmac_f32 v{ag+i}, v{NMU}, v{TM+i}")
        for i in range(16):
            I(f"v_mul_f32 v{TM+i}, v{ag+i}, v{ag+i}")
        for i in range(16):
            I(f"v_fma_f32 v{TM+i}, v{TM+i}, v{K2}, v{K1}")
        for i in range(16):
            I(f"v_mul_f32 v{TM+i}, v{TM+i}, v{ag+i}")
        for i in range(16):
            I(f"v_exp_f32 v{TM+i}, v{TM+i}")
        for i in range(16):
            I(f"v_fma_f32 v{TM+i}, v{TM+i}, v{IR2}, v{IR2}")
        for i in range(16):
            I(f"v_rcp_f32 v{TM+i}, v{TM+i}")
        for i in range(16):
            I(f"v_mul_f32 v{TM+i}, v{ag+i}, v{TM+i}")

    def upart(au, t, dbl):
        g.wait(t)
        for i in range(16):
            I(f"v_fmac_f32 v{au+i}, v{NMU}, v{CS2+i}")
        for i in range(16):
            I(f"v_mul_f32 v{au+i}, v{au+i}, v{TM+i}")
        for i in range(8):
            I(f"v_cvt_pk_bf16_f32 v{CS2+i}, v{au+2*i}, v{au+2*i+1}")
        I(f"s_add_u32 s{sE}, s{sHB}, {dbl*4096}")
        I(f"buffer_store_dwordx4 {vr(CS2,4)}, v{vL16}, {srd(sWS)}, s{sE} offen sc1")
        return I(f"buffer_store_dwordx4 {vr(CS2+4,4)}, v{vL16}, {srd(sWS)}, s{sE} offen offset:1024 sc1")

    slots = []
    for c in range(28):
        slots.append((A_, c * 2048, c))
        slots.append((B_, 57344 + c * 2048, c))
    for c in range(28):
        slots.append((C_, 114688 + c * 2048 if c < 20 else (c - 20) * 2048, c))
    for c in range(28):
        slots.append((A_, 16384 + c * 2048, c))
    NS = 112
    PRC = int(os.environ.get('PRC', '14'))
    depth = int(os.environ.get('DEPTH', '4'))
    nb = depth + 1
    tok = {}

    def rd(i):
        off = slots[i][1]
        base = vA0
        if off >= 114688:
            base, off = vA2, off - 114688
        elif off >= 57344:
            base, off = vA1, off - 57344
        dst = WFc + 4 * (i % nb)
        I(f"ds_read_b64_tr_b16 {vr(dst,2)}, v{base} offset:{off}")
        tok[i] = I(f"ds_read_b64_tr_b16 {vr(dst+2,2)}, v{base} offset:{off+512}")

    sched = {i: [] for i in range(NS)}
    load = {i: 0.0 for i in range(NS)}
    BUDGET = float(os.environ.get("BUDGET", "6"))

    def cost(it):
        if it.kind != "i":
            return 0
        m = it.text.split()[0]
        if m in TRANS:
            return 2
        if m in ("v_fma_f32", "v_fmac_f32"):
            return 1.25
        if m.startswith("v_"):
            return 1
        if m.startswith(("ds_", "buffer")):
            return 0.4
        return 0.1

    def cap(fn):
        g.begin()
        r = fn()
        return g.end(), r

    def at(slot, fn):
        st, r = cap(fn)
        for it in st:
            sched[slot].append(it)
            load[slot] += cost(it)
        return r

    rest = []

    def flow(stream, slot):
        pend = []
        for it in stream:
            pend.append(it)
            if it.kind != "i":
                continue
            c = sum(cost(x) for x in pend)
            while slot < NS and load[slot] + c > BUDGET:
                slot += 1
            if slot >= NS:
                rest.extend(pend)
            else:
                sched[slot].extend(pend)
                load[slot] += c
            pend = []
        return slot

    k_ = 0
    for it in hl[10:]:
        sched[k_].append(it)
        if it.text.startswith("buffer"):
            k_ += 1

    def refill(f, free_slot, batches, need_slot):
        at(free_slot, lambda: cnt_add(f))
        t = at(free_slot + 2, lambda: cnt_issue(f))
        at(free_slot + 3, lambda: cnt_check(f, t))
        st, tb = cap(batches)
        for q in range(len(st) // 3):
            for it in st[3 * q:3 * q + 3]:
                sched[free_slot + 3 + 2 * q].append(it)
        if need_slot is not None:
            at(need_slot - depth - 3, lambda: (g.wait(tb), cnt_add(f + 1)))
            t2 = at(need_slot - depth - 2, lambda: cnt_issue(f + 1))
            at(need_slot - depth - 1, lambda: cnt_check(f + 1, t2))
        return tb
    at(56, lambda: cnt_add(0))
    t = at(57, lambda: cnt_issue(0))
    at(58, lambda: cnt_check(0, t))
    st1, tb1 = cap(lambda: c_batch(0, 1, 40, 56, 0))
    st2, tb2 = cap(lambda: c_batch(1, 1, 0, 56, 16384))
    st3, _ = cap(lambda: [wd_dma(m) for m in range(5)])
    st = st1 + st2 + st3
    pos = [58, 59, 60, 62, 63, 65, 66, 68, 69, 72, 74, 78, 80, 82]
    for q in range(14):
        sched[pos[q]].extend(st[3 * q:3 * q + 3])
    for f, tb, need in ((1, tb1, 76), (2, tb2, 84)):
        at(need - depth - 3, lambda: (g.wait(tb), cnt_add(f)))
        t2_ = at(need - depth - 2, lambda: cnt_issue(f))
        at(need - depth - 1, lambda: cnt_check(f, t2_))
    tM = refill(4, 84, lambda: [wd_dma(m) for m in range(5, 12)][-1], None)
    if "not2" not in EXP and "t2b" not in EXP:
        at(int(os.environ.get("T2", "40")), touch2)

    def h_issue_from(c0):
        def f():
            tl = []
            for c in range(c0, 28):
                if c % 4 == 0:
                    I(f"s_add_u32 s{sT2}, s{sWB}, {c*1024}")
                tl.append(I(f"buffer_load_dwordx4 {vr(HF+4*c,4)}, v{vL16}, {srd(sWS)}, s{sT2} offen offset:{(c%4)*1024} sc1"))
            return tl
        return f

    def hcheck(q):
        lr, lb = g.newlabel("L_hr"), g.newlabel("L_hb")
        g.wait(th[4 * q + 3])
        sent_check([HF + 4 * c for c in range(4 * q, 4 * q + 4)], vT1)
        I(f"s_cmp_lg_u64 vcc, 0")
        I(f"s_cbranch_scc1 {lr}")
        g.label(lb)
        g.begin()
        g.label(lr)
        check_loop(h_issue_from(4 * q), [HF + 4 * c for c in range(4 * q, 28)], vT1)
        I(f"s_branch {lb}")
        tails.append(g.end())
    t1 = at(54, lambda: cs_read(TM, 0, 0))
    t2 = at(55, lambda: cs_read(CS2, 1, 0))
    def epiA():
        g.wait(t2)
        for i in range(16):
            I(f"v_fmac_f32 v{A_+i}, v{NMU}, v{TM+i}")
        for i in range(16):
            I(f"v_fmac_f32 v{B_+i}, v{NMU}, v{CS2+i}")
        for i in range(16):
            I(f"v_mul_f32 v{TM+i}, v{A_+i}, v{A_+i}")
        for i in range(16):
            I(f"v_fma_f32 v{TM+i}, v{TM+i}, v{K2}, v{K1}")
        for i in range(16):
            I(f"v_mul_f32 v{TM+i}, v{TM+i}, v{A_+i}")
        for i in range(16):
            I(f"v_mul_f32 v{B_+i}, v{B_+i}, v{A_+i}")

    def epiB():
        for i in range(16):
            I(f"v_exp_f32 v{TM+i}, v{TM+i}")
        for i in range(16):
            I(f"v_fma_f32 v{TM+i}, v{TM+i}, v{IR2}, v{IR2}")
        for i in range(16):
            I(f"v_rcp_f32 v{TM+i}, v{TM+i}")
        for i in range(16):
            I(f"v_mul_f32 v{B_+i}, v{B_+i}, v{TM+i}")
        for i in range(8):
            I(f"v_cvt_pk_bf16_f32 v{CS2+i}, v{B_+2*i}, v{B_+2*i+1}")
        I(f"buffer_store_dwordx4 {vr(CS2,4)}, v{vL16}, {srd(sWS)}, s{sHB} offen sc1")
        return I(f"buffer_store_dwordx4 {vr(CS2+4,4)}, v{vL16}, {srd(sWS)}, s{sHB} offen offset:1024 sc1")
    st, _ = cap(epiA)
    e = flow(st, 57)
    assert e < 83, e
    st, tst0 = cap(epiB)
    e = flow(st, e)
    t1 = at(max(e, 85), lambda: cs_read(TM, 0, 1))
    t2 = at(min(e + 9, 109), lambda: cs_read(CS2, 1, 1))
    st, _ = cap(lambda: gpart(C_, t1))
    flow(st, max(e, 85) + 2)
    def flag_issue():
        I(f"s_lshl_b32 s{sT0}, s{sGB}, 8")
        I(f"s_add_u32 s{sT0}, s{sT0}, {WS_CNT + CNT_HH * 4096}")
        return I(f"buffer_load_dword v{vT4}, off, {srd(sWS)}, s{sT0} sc1")
    print("slot loads:", " ".join("%.0f" % load[i] for i in range(NS)), "rest", len(rest))
    for i in range(depth):
        rd(i)
    for i in range(NS):
        acc, off, c = slots[i]
        if i + depth < NS:
            rd(i + depth)
        if PRC and i % PRC == 0:
            I(f"s_setprio {3 - (i // PRC) % 4}")
        if i < 56 and i % 8 == 0:
            hcheck(i // 8)
        g.wait(tok[i])
        I(f"v_mfma_f32_32x32x16_bf16 {vr(acc,16)}, {vr(WFc+4*(i%nb),4)}, {vr(HF+4*c,4)}, {'0' if c == 0 else vr(acc,16)}")
        g.put(sched[i])
        if i in (55, 83, 111):
            stamp(f"slot{i}")
    g.put(rest)
    upart(A_, t2, 1)
    stamp("hh stored")
    DACC = 184
    frag = {n: 16 + 8 * (n % 7) for n in range(14)}
    abuf = {c: 72 + 8 * c for c in range(14)}
    ta = {}
    vP = {sL5: (vT0, vT1), sL2: (vT2, vT3), sL7: (vT4, vT5)}
    dt_pattern(vFLAG, vT0, vT1)
    for sreg, (a0, a1) in vP.items():
        I(f"v_add_u32 v{a0}, s{sreg}, v{vFLAG}")
        if sreg == sL5:
            I(f"v_add_u32 v{a0}, 73728, v{a0}")
        I(f"v_xor_b32 v{a1}, 64, v{a0}")

    def wd_read(m):
        n, rd_ = m // 2, m % 2
        sreg, imm = wslot[m]
        a = vP[sreg]
        if sreg == sL5:
            imm -= 73728
        t = None
        for nt in range(2):
            t = I(f"ds_read_b64_tr_b16 {vr(frag[n]+4*nt+2*rd_,2)}, v{a[nt]} offset:{imm}")
        return t

    def lda(c):
        for mt in range(2):
            I(f"s_add_u32 s{sT1}, s{sAB}, {mt*112*1024 + kc_off(c)*1024}")
            ta[c, mt] = I(f"buffer_load_dwordx4 {vr(abuf[c]+4*mt,4)}, v{vL16}, {srd(sWS)}, s{sT1} offen sc1")

    def mm(c, first):
        for mt in range(2):
            g.wait(ta[c, mt])
            for nt in range(2):
                a = DACC + (mt * 2 + nt) * 16
                I(f"v_mfma_f32_32x32x16_bf16 {vr(a,16)}, {vr(frag[c]+4*nt,4)}, {vr(abuf[c]+4*mt,4)}, {'0' if first else vr(a,16)}")
    I("s_setprio 3")
    g.wait(tM)
    t = None
    for m in range(12):
        t = wd_read(m)
    I("s_barrier")
    twd = {}
    for m in range(12, 19):
        twd[m] = wd_dma(m)
    g.wait(t)
    for m in range(19, 28):
        twd[m] = wd_dma(m)
    stamp("wd issued")
    I("s_setprio 2")
    for c in range(14):
        lda(c)
        if c == 6:
            I("s_setprio 1")
    I("s_setprio 0")
    tmain = dict(ta)
    HR = 248
    I(f"v_and_b32 v{vINIT}, 7, v0")
    I(f"v_lshrrev_b32 v{vCNT}, 3, v0")
    I(f"v_and_b32 v{vFLAG}, 31, v{vCNT}")
    I(f"v_lshlrev_b32 v{vFLAG}, 4, v{vFLAG}")
    I(f"v_lshl_add_u32 v{vFLAG}, v{vINIT}, 9, v{vFLAG}")
    I(f"s_add_u32 s{sE}, s{sMD}, s{sWH}")
    I(f"s_mul_i32 s{sE}, s{sE}, {28*1024}")
    I(f"s_lshl_b32 s{sT1}, s{sCB}, 12")
    I(f"s_add_u32 s{sE}, s{sE}, s{sT1}")
    I(f"s_add_u32 s{sE}, s{sE}, {WS_H}")
    hold = {}

    def acheck(c0, c1):
        lr, lb = g.newlabel("L_ar"), g.newlabel("L_ab")
        g.wait(tmain[c1 - 1, 1])
        sent_check([abuf[c] + 4 * mt for c in range(c0, c1) for mt in range(2)], 252)
        I(f"s_cmp_lg_u64 vcc, 0")
        I(f"s_cbranch_scc1 {lr}")
        g.label(lb)
        g.begin()
        g.label(lr)

        def iss():
            for c in range(c0, 14):
                lda(c)
            return [ta[13, 1]]
        check_loop(iss, [abuf[c] + 4 * mt for c in range(c0, 14) for mt in range(2)], 252)
        I(f"s_branch {lb}")
        tails.append(g.end())
    tr_ = {}
    groups = [(0, 2), (2, 4), (4, 7), (7, 9), (9, 11), (11, 14)]
    for (c0, c1) in groups:
        acheck(c0, c1)
        if c0 == 0:
            wd_read(12)
            tr_[6] = wd_read(13)
            hold["thr"] = I(f"buffer_load_dwordx4 {vr(HR,4)}, v{vFLAG}, {srd(sWS)}, s{sE} offen sc1")
        for k_ in list(ta):
            ta[k_] = None
        for c in range(c0, c1):
            if c in tr_:
                g.wait(tr_[c])
            mm(c, c == 0)
            if c < 7:
                wd_read(2 * (c + 7))
                tr_[c + 7] = wd_read(2 * (c + 7) + 1)
        if c1 == 7:
            stamp("D early")
        if c0 == 7:
            g.wait_all(vm=False)
            I("s_barrier")
            I(f"v_and_b32 v{vT0}, 7, v0")
            I(f"v_lshrrev_b32 v{vT1}, 3, v0")
            I(f"s_mul_i32 s{sT0}, s{sW}, {64*272}")
            I(f"v_mul_u32_u24 v{vT3}, 272, v{vM}")
            I(f"v_lshl_add_u32 v{vT3}, v{vHB}, 4, v{vT3}")
            I(f"v_add_u32 v{vT3}, s{sT0}, v{vT3}")
            I(f"v_mul_u32_u24 v{vT4}, 272, v{vT1}")
            I(f"v_lshl_add_u32 v{vT4}, v{vT0}, 5, v{vT4}")
            I(f"v_add_u32 v{vT5}, {4*64*272}, v{vT4}")
            I(f"v_mul_u32_u24 v{vT2}, 896, v{vT1}")
            I(f"v_lshl_add_u32 v{vT2}, v{vT0}, 4, v{vT2}")
            I(f"s_mul_i32 s{sT0}, s{sMD}, {32*896}")
            I(f"s_lshl_b32 s{sT2}, s{sCB}, 7")
            I(f"s_add_u32 s{sT0}, s{sT0}, s{sT2}")
    stamp("D mfma")
    for mt in range(2):
        for nt in range(2):
            for q in range(4):
                I(f"ds_write_b128 v{vT3}, {vr(DACC+(mt*2+nt)*16+4*q,4)} offset:{mt*32*272 + nt*128 + q*32}")
    g.wait(hold["thr"])
    U = 88
    for i in range(4):
        I(f"v_lshlrev_b32 v{U+2*i}, 16, v{HR+i}")
        I(f"v_and_b32 v{U+2*i+1}, 0xffff0000, v{HR+i}")
    g.wait_all(vm=False)
    I("s_barrier")
    R = 16
    for w in range(8):
        for q in range(2):
            I(f"ds_read_b128 {vr(R+w*8+q*4,4)}, v{vT4 if w < 4 else vT5} offset:{(w%4)*64*272 + q*16}")
    g.wait_all(vm=False)
    for k in (32, 16, 8):
        for i in range(k):
            I(f"v_add_f32 v{R+i}, v{R+i}, v{R+k+i}")
    for i in range(8):
        I(f"v_add_f32 v{R+i}, v{R+i}, v{U+i}")
    for i in range(4):
        I(f"v_cvt_pk_bf16_f32 v{R+8+i}, v{R+2*i}, v{R+2*i+1}")
    I(f"buffer_store_dwordx4 {vr(R+8,4)}, v{vT2}, {srd(sOUT)}, s{sT0} offen")
    stamp("end")
    stamp("rt1", rt=True)
    if "span" in EXP:
        I(f"s_cmp_lg_u32 s{sW}, 7")
        I("s_cbranch_scc1 L_end")
        I("s_and_b32 s90, s2, 7")
        I("s_cmp_lg_u32 s90, 3")
        I("s_cbranch_scc1 L_end")
        I("s_waitcnt vmcnt(0)")
        I("s_memrealtime s[90:91]")
        I("s_memtime s[92:93]")
        I("s_waitcnt lgkmcnt(0)")
        I("s_mov_b64 exec, 1")
        I("s_not_b32 s86, s86")
        I("s_sub_u32 s92, s92, s100")
        I("v_mov_b32 v20, s86")
        I("v_mov_b32 v21, s90")
        I("v_mov_b32 v22, s92")
        I(f"buffer_atomic_umax v20, off, {srd(sDBG)}, 0 offset:4 sc1")
        I(f"buffer_atomic_umax v21, off, {srd(sDBG)}, 0 offset:8 sc1")
        I(f"buffer_atomic_umax v22, off, {srd(sDBG)}, 0 offset:12 sc1")


prologue()
two = phaseA()
twd = phaseB(two)
phaseCD(twd)
g.label("L_end")
I("s_endpgm")
for tl_ in TAILS:
    g.put(tl_)
g.insert_bg()
g.resolve_waits()
g.fix_hazards_fast()

hdr = open("cdna_kernels/" + NAME + ".s.ref").read().split("; Override launch geometry")[0]
out = hdr + f"""; @launch grid=(256,1,1) block=(512,1,1) lds=163840
.amdgcn_target "amdgcn-amd-amdhsa--gfx950"
.text
.globl {NAME}_kernel
.p2align 8
.type {NAME}_kernel,@function
{NAME}_kernel:
L_code_start:
{g.text()}
L_code_end:
.fill 64, 4, 0xbf800000
.section .rodata,"a"
.p2align 6
.amdhsa_kernel {NAME}_kernel
  .amdhsa_next_free_vgpr 256
  .amdhsa_next_free_sgpr 102
  .amdhsa_accum_offset 256
  .amdhsa_group_segment_fixed_size 0
  .amdhsa_kernarg_size 88
  .amdhsa_user_sgpr_count 2
  .amdhsa_user_sgpr_kernarg_segment_ptr 1
  .amdhsa_system_sgpr_workgroup_id_x 1
.end_amdhsa_kernel
"""
import subprocess, re as _re
open("_sz.s", "w").write(out.replace("CODE_LAST", "0x1000"))
subprocess.run(["clang", "-x", "assembler", "-target", "amdgcn-amd-amdhsa", "-mcpu=gfx950", "-c", "_sz.s", "-o", "_sz.o"], check=True)
_h = subprocess.run(["llvm-objdump", "-h", "_sz.o"], capture_output=True, text=True).stdout
_sz = int(_re.search(r"\.text\s+([0-9a-f]+)", _h).group(1), 16)
out = out.replace("CODE_LAST", hex(_sz - 768))
print("code bytes", _sz)
open(sys.argv[1], "w").write(out)
if STAMPS:
    open(sys.argv[1] + ".names", "w").write("\n".join(stamp_names))
print("instrs:", sum(1 for it in g.items if it.kind == "i"), "stamps:", nstamp[0])
```

```python
import sys, math, struct, os
sys.path.insert(0, "dev")
from gen import *

NAME = "sequential_preLN__linear_kernel_hedgehog__glu_gated_geglu__prompt"
STAMPS = int(sys.argv[2]) if len(sys.argv) > 2 else 0
EXP = sys.argv[3].split(",") if len(sys.argv) > 3 else []


def f32(x):
    return "0x%08x" % struct.unpack("<I", struct.pack("<f", x))[0]


WS_CNT = 0x0
WS_CS = 0x10000
WS_ST = 0x50000
WS_KVP = 0x100000
WS_O = 0x200000
WS_H = 0x400000
WS_HH = 0x600000
WS_STAMP = 0xE00000
CNT_KV, CNT_O, CNT_H, CNT_HH = 0, 1, 2, 3

sX, sWQKV, sWPHI, sWO, sWG, sWU, sWD, sOUT, sDBG, sWS = 8, 12, 16, 20, 24, 28, 32, 36, 40, 44
sG, sJ, sW = 48, 49, 50
sT0, sT1, sT2, sT3, sT4, sT5 = 51, 52, 53, 54, 55, 56
sW3, sWH = 57, 58
sA, sB, sC, sD, sE = 59, 60, 61, 62, 63
sSTAMP = 86
sGATH, sWB, sCW, sCL, sLOG = 88, 89, 90, 91, 92
sGB, sJB, sJC, sLI, sXC, sLW, sSTO = 93, 94, 95, 96, 97, 98, 99
OOB = 0x7ff00000
sBG, sWOB, sKVS, sOS, sHS, sSS, sHHS = 68, 70, 71, 72, 73, 74, 75


def srd(r):
    return f"s[{r}:{r+3}]"


def vr(a, n=1):
    return f"v{a}" if n == 1 else f"v[{a}:{a+n-1}]"


def ar(a, n=1):
    return f"a{a}" if n == 1 else f"a[{a}:{a+n-1}]"


g = Gen()
I = g.I
nstamp = [0]
stamp_names = []

vLANE, vG, vM16 = 1, 2, 3
vL16 = 4
vT0, vT1, vT2, vT3, vT4, vT5 = 5, 6, 7, 8, 9, 10
vFLAG, vONE, vCNT, vINIT, vDMY = 11, 12, 13, 14, 15


def stamp(name="", rt=False):
    if not STAMPS:
        return
    k = nstamp[0]
    nstamp[0] += 1
    stamp_names.append(name)
    g.cond_begin()
    I(f"{'s_memrealtime' if rt else 's_memtime'} s[{sSTAMP}:{sSTAMP+1}]")
    I("s_waitcnt lgkmcnt(0)")
    I(f"v_mov_b32 v{vCNT}, s{sSTAMP}")
    I(f"buffer_store_dword v{vCNT}, off, {srd(sWS)}, s{sSTO} offset:{4*k}")
    g.cond_end()


UNIT = 14336
LDS_WK = 8 * UNIT
LDS_KVF = 11 * UNIT
LDS_CS = LDS_KVF + 4096
LDS_FLG = LDS_CS + 1024
LDS_WPL = 10 * UNIT + 8192
LDS_KV2 = 8 * UNIT + 24576 + 4096
LDS_BSCR = 6 * UNIT


def prologue():
    I("s_cmp_ge_u32 s2, 256")
    I("s_cbranch_scc1 L_end")
    I("s_setprio 3")
    if "span" in EXP:
        I("s_memrealtime s[86:87]")
        I("s_memtime s[100:101]")
    I(f"s_load_dwordx2 s[{sX}:{sX+1}], s[0:1], 0")
    I("s_getpc_b64 s[4:5]")
    I(f"v_lshlrev_b32 v{vT0}, 7, v0")
    I(f"v_min_u32 v{vT0}, CODE_LAST, v{vT0}")
    I(f"global_load_dword v{vDMY}, v{vT0}, s[4:5]")
    I("s_load_dwordx16 s[64:79], s[0:1], 0")
    I("s_load_dwordx4 s[80:83], s[0:1], 64")
    I("s_load_dwordx2 s[84:85], s[0:1], 80")
    I(f"v_and_b32 v{vLANE}, 63, v0")
    I(f"v_lshrrev_b32 v{vT0}, 6, v0")
    I(f"v_readfirstlane_b32 s{sW}, v{vT0}")
    I(f"v_lshrrev_b32 v{vG}, 4, v{vLANE}")
    I(f"s_bfe_u32 s{sT0}, s2, 0x20001")
    I(f"s_lshl_b32 s{sT0}, s{sT0}, 2")
    I(f"s_bfe_u32 s{sT1}, s2, 0x20003")
    I(f"s_add_u32 s{sG}, s{sT0}, s{sT1}")
    I(f"s_mov_b32 s{sX+2}, 1835008")
    I(f"s_mov_b32 s{sX+3}, 0x20000")
    I(f"v_lshrrev_b32 v{vT0}, 3, v{vLANE}")
    I(f"v_mul_u32_u24 v{vT0}, 896, v{vT0}")
    I(f"v_and_b32 v{vT1}, 7, v{vLANE}")
    I(f"v_xor_b32 v{vT3}, v{vT1}, v{vG}")
    I(f"v_lshl_add_u32 v{vXA0}, v{vT3}, 4, v{vT0}")
    I(f"v_xor_b32 v{vT3}, 4, v{vT3}")
    I(f"v_lshl_add_u32 v{vXA1}, v{vT3}, 4, v{vT0}")
    I(f"s_lshl_b32 s{sA}, s{sG}, 3")
    I(f"s_add_u32 s{sA}, s{sA}, s{sW}")
    I(f"s_mul_i32 s{sB}, s{sA}, {16*896}")
    I(f"s_add_u32 s{sC}, s{sB}, {8*896}")
    I(f"s_mul_i32 s{sLW}, s{sW}, {UNIT}")
    if "not0" not in EXP:
        I(f"s_lshr_b32 s{sLI}, s2, 3")
        I(f"s_mul_i32 s{sT2}, s{sLI}, {14*2688}")
        I(f"s_and_b32 s{sT3}, s2, 1")
        I(f"s_mul_i32 s{sT3}, s{sT3}, 384")
        I(f"s_add_u32 s{sT2}, s{sT2}, s{sT3}")
        I(f"s_mul_i32 s{sT3}, s{sW}, 896")
        I(f"s_add_u32 s{sT2}, s{sT2}, s{sT3}")
        I(f"s_cmp_ge_u32 s{sW}, 3")
        I(f"s_cselect_b32 s{sT3}, {OOB}, 0")
        I(f"s_add_u32 s{sT2}, s{sT2}, s{sT3}")
        I(f"v_lshrrev_b32 v{vT0}, 2, v{vLANE}")
        I(f"v_min_u32 v{vT0}, 13, v{vT0}")
        I(f"v_mul_u32_u24 v{vT0}, 2688, v{vT0}")
        I(f"v_and_b32 v{vT1}, 3, v{vLANE}")
        I(f"v_lshl_add_u32 v{vT4}, v{vT1}, 7, v{vT0}")
        I(f"s_mul_i32 s{sT4}, s{sT0}, 114688")
        I(f"s_mul_i32 s{sT5}, s{sLI}, 14336")
        I(f"s_add_u32 s{sT4}, s{sT4}, s{sT5}")
        I(f"s_sub_u32 s{sT5}, s{sW}, 3")
        I(f"s_cmp_lt_u32 s{sT5}, 2")
        I(f"s_cselect_b32 s{sT3}, 0, {OOB}")
        I(f"s_mul_i32 s{sT5}, s{sT5}, 7168")
        I(f"s_and_b32 s{sT5}, s{sT5}, 0x3fff")
        I(f"s_add_u32 s{sT4}, s{sT4}, s{sT5}")
        I(f"s_add_u32 s{sT4}, s{sT4}, s{sT3}")
        I(f"v_min_u32 v{vT5}, 55, v{vLANE}")
        I(f"v_lshlrev_b32 v{vT5}, 7, v{vT5}")
        I(f"s_mov_b32 s{sWQKV+2}, 1204224")
        I(f"s_mov_b32 s{sWQKV+3}, 0x20000")
    I("s_waitcnt lgkmcnt(0)")
    if "not0" not in EXP:
        I(f"s_mov_b64 s[{sWQKV}:{sWQKV+1}], s[66:67]")
        I(f"buffer_load_dword v{vDMY}, v{vT5}, {srd(sX)}, s{sT4} offen")
        I(f"buffer_load_dword v{vDMY}, v{vT4}, {srd(sWQKV)}, s{sT2} offen")


def prologue2():
    I(f"v_and_b32 v{vM16}, 15, v{vLANE}")
    I(f"v_lshlrev_b32 v{vL16}, 4, v{vLANE}")
    I(f"v_mov_b32 v{vONE}, 1")
    I(f"s_and_b32 s{sXC}, s2, 7")
    I(f"s_lshr_b32 s{sLI}, s2, 3")
    I(f"s_and_b32 s{sT2}, s{sXC}, 1")
    I(f"s_lshl_b32 s{sT3}, s{sT2}, 3")
    I(f"s_lshr_b32 s{sT4}, s{sLI}, 2")
    I(f"s_add_u32 s{sJ}, s{sT3}, s{sT4}")
    I(f"s_lshl_b32 s{sGB}, s{sXC}, 1")
    I(f"s_and_b32 s{sT5}, s{sLI}, 1")
    I(f"s_add_u32 s{sGB}, s{sGB}, s{sT5}")
    I(f"s_lshr_b32 s{sJB}, s{sLI}, 1")
    I(f"s_mul_i32 s{sJC}, s{sT2}, 7")
    I(f"s_add_u32 s{sJC}, s{sJC}, s{sT4}")
    I(f"s_cmp_eq_u32 s{sT4}, 7")
    I(f"s_cselect_b32 s{sJC}, 15, s{sJC}")
    I(f"s_and_b32 s{sW3}, s{sW}, 3")
    I(f"s_lshr_b32 s{sWH}, s{sW}, 2")
    I(f"s_lshl_b32 s{sCL}, s{sW}, 10")
    for r, p, n in ((sWQKV, 66, 1204224), (sWPHI, 68, 25088), (sWO, 70, 401408),
                    (sWG, 74, 1605632), (sWU, 76, 1605632), (sWD, 78, 1605632), (sOUT, 80, 1835008),
                    (sDBG, 82, 256), (sWS, 84, 0x10000000)):
        I(f"s_mov_b64 s[{r}:{r+1}], s[{p}:{p+1}]")
        I(f"s_mov_b32 s{r+2}, {n}")
        I(f"s_mov_b32 s{r+3}, 0x20000")
    if STAMPS:
        I(f"s_lshl_b32 s{sSTO}, s2, 3")
        I(f"s_add_u32 s{sSTO}, s{sSTO}, s{sW}")
        I(f"s_lshl_b32 s{sSTO}, s{sSTO}, 7")
        I(f"s_add_u32 s{sSTO}, s{sSTO}, {WS_STAMP}")


POLL_MAX = 200000


def poll(srdreg, voff, target):
    lp, ld = g.newlabel("L_poll"), g.newlabel("L_pdone")
    I(f"s_mov_b32 s{sT5}, 0")
    g.label(lp)
    I(f"buffer_load_dword v{vFLAG}, v{voff}, {srd(srdreg)}, 0 offen sc1")
    I("s_waitcnt vmcnt(0)")
    I(f"v_readfirstlane_b32 s{sT4}, v{vFLAG}")
    I(f"s_add_u32 s{sT5}, s{sT5}, 1")
    I(f"s_cmp_ge_u32 s{sT5}, {POLL_MAX}")
    I(f"s_cbranch_scc1 {ld}")
    I(f"s_cmp_lt_u32 s{sT4}, {target}")
    I(f"s_cbranch_scc1 {lp}")
    g.label(ld)


def signal(kind, sidx, toks, first=False):
    g.wait(*toks)
    I("s_barrier")
    lab = g.newlabel("L_sig")
    I(f"s_cmp_lg_u32 s{sW}, 0")
    I(f"s_cbranch_scc1 {lab}")
    g.cond_begin()
    I("s_mov_b64 exec, 1")
    if first:
        l2 = g.newlabel("L_ini")
        I(f"v_readfirstlane_b32 s{sT4}, v{vINIT}")
        I(f"s_cmp_lg_u32 s{sT4}, 0")
        I(f"s_cbranch_scc1 {l2}")
        I(f"v_mov_b32 v{vCNT}, 0")
        poll(sDBG, vCNT, 1)
        g.label(l2)
    I(f"s_lshl_b32 s{sT0}, s{sidx}, 8")
    I(f"s_add_u32 s{sT0}, s{sT0}, {WS_CNT + kind * 4096}")
    I(f"v_mov_b32 v{vCNT}, s{sT0}")
    I(f"buffer_atomic_add v{vONE}, v{vCNT}, {srd(sWS)}, 0 offen sc1")
    I("s_mov_b64 exec, -1")
    g.cond_end()
    g.label(lab)


def waitflag(kind, sidx, target=16):
    lab = g.newlabel("L_w")
    I(f"s_cmp_lg_u32 s{sW}, 0")
    I(f"s_cbranch_scc1 {lab}")
    g.cond_begin()
    I("s_mov_b64 exec, 1")
    I(f"s_lshl_b32 s{sT0}, s{sidx}, 8")
    I(f"s_add_u32 s{sT0}, s{sT0}, {WS_CNT + kind * 4096}")
    I(f"v_mov_b32 v{vCNT}, s{sT0}")
    poll(sWS, vCNT, target)
    I("s_mov_b64 exec, -1")
    g.cond_end()
    g.label(lab)
    I("s_barrier")


def dma2(vaddr, srdreg, sbase, src_imm, lds_sreg, lds_imm, stmp=None):
    stmp = sT1 if stmp is None else stmp
    I(f"s_add_u32 m0, s{lds_sreg}, {lds_imm}")
    I(f"s_add_u32 s{stmp}, s{sbase}, {src_imm}")
    return I(f"buffer_load_dwordx4 v{vaddr}, {srd(srdreg)}, s{stmp} offen lds")


def xreduce(op, a, t, levels=(16, 32)):
    for lv in levels:
        I(f"v_mov_b32 v{t}, v{a}")
        I(f"v_permlane{lv}_swap_b32 v{a}, v{t}")
        I(f"{op} v{a}, v{a}, v{t}")


LOG2E = 1.4426950408889634

XF = 16
WR = 72
WPHI = 100
WPH2 = 108
SEL = 116
ACC = 124
ACCV = 132
WF = 140
TMP = 172
PH = 196
vXA0, vXA1, vWA, vTR, vXR0, vXR1, vCA = 204, 205, 206, 207, 208, 209, 252
vTRb, vTRc, vWOA = 211, 212, 213


def chain16(acc, rd, swap=False, depth=3, hook=None):
    toks = {}
    nb = depth + 1
    n = 14
    for c in range(depth):
        toks[c] = rd(c, WF + 8 * (c % nb))
    for c in range(n):
        if c + depth < n:
            toks[c + depth] = rd(c + depth, WF + 8 * ((c + depth) % nb))
        g.wait(toks[c])
        X = vr(XF + 4 * c, 4)
        for t in range(2):
            W = vr(WF + 8 * (c % nb) + 4 * t, 4)
            a = vr(acc + 4 * t, 4)
            C = a if c > 0 else "0"
            if swap:
                I(f"v_mfma_f32_16x16x32_bf16 {a}, {X}, {W}, {C}")
            else:
                I(f"v_mfma_f32_16x16x32_bf16 {a}, {W}, {X}, {C}")
        if hook is not None:
            hook(c)


def featmap(acc, out):
    pk = TMP
    p = acc
    e = TMP + 4
    mx, mn, t0, t1 = TMP + 12, TMP + 13, TMP + 14, TMP + 15
    for i in range(4):
        I(f"v_cvt_pk_bf16_f32 v{pk+i}, v{acc+2*i}, v{acc+2*i+1}")
    I(f"v_mfma_f32_16x16x32_bf16 {vr(p,4)}, {vr(WPHI,4)}, {vr(pk,4)}, 0")
    I(f"v_mfma_f32_16x16x32_bf16 {vr(p+4,4)}, {vr(WPHI+4,4)}, {vr(pk,4)}, 0")
    I(f"v_max3_f32 v{mx}, v{p}, v{p+1}, v{p+2}")
    I(f"v_min3_f32 v{mn}, v{p}, v{p+1}, v{p+2}")
    for i in (3, 5):
        I(f"v_max3_f32 v{mx}, v{mx}, v{p+i}, v{p+i+1}")
        I(f"v_min3_f32 v{mn}, v{mn}, v{p+i}, v{p+i+1}")
    for lv in (16, 32):
        I(f"v_mov_b32 v{t0}, v{mx}")
        I(f"v_mov_b32 v{t1}, v{mn}")
        I(f"v_permlane{lv}_swap_b32 v{mx}, v{t0}")
        I(f"v_permlane{lv}_swap_b32 v{mn}, v{t1}")
        I(f"v_max_f32 v{mx}, v{mx}, v{t0}")
        I(f"v_min_f32 v{mn}, v{mn}, v{t1}")
    I(f"v_mul_f32 v{mx}, {f32(-LOG2E)}, v{mx}")
    I(f"v_mul_f32 v{mn}, {f32(LOG2E)}, v{mn}")
    e2 = TMP + 16
    for i in range(7):
        I(f"v_fma_f32 v{e+i}, v{p+i}, s{sLOG}, v{mx}")
        I(f"v_fma_f32 v{e2+i}, -v{p+i}, s{sLOG}, v{mn}")
    for i in range(7):
        I(f"v_exp_f32 v{e+i}, v{e+i}")
        I(f"v_exp_f32 v{e2+i}, v{e2+i}")
    I(f"v_add_f32 v{mx}, v{e}, v{e+1}")
    I(f"v_add_f32 v{mn}, v{e2}, v{e2+1}")
    for i in range(2, 7):
        I(f"v_add_f32 v{mx}, v{mx}, v{e+i}")
        I(f"v_add_f32 v{mn}, v{mn}, v{e2+i}")
    for lv in (16, 32):
        I(f"v_mov_b32 v{t0}, v{mx}")
        I(f"v_mov_b32 v{t1}, v{mn}")
        I(f"v_permlane{lv}_swap_b32 v{mx}, v{t0}")
        I(f"v_permlane{lv}_swap_b32 v{mn}, v{t1}")
        I(f"v_add_f32 v{mx}, v{mx}, v{t0}")
        I(f"v_add_f32 v{mn}, v{mn}, v{t1}")
    I(f"v_rcp_f32 v{mx}, v{mx}")
    I(f"v_rcp_f32 v{mn}, v{mn}")
    for i in range(7):
        I(f"v_mul_f32 v{e+i}, v{e+i}, v{mx}")
        I(f"v_mul_f32 v{e2+i}, v{e2+i}, v{mn}")
    for i in range(3):
        I(f"v_cvt_pk_bf16_f32 v{out+i}, v{e+2*i}, v{e+2*i+1}")
        I(f"v_cvt_pk_bf16_f32 v{out+4+i}, v{e2+2*i}, v{e2+2*i+1}")
    I(f"v_cvt_pk_bf16_f32 v{out+3}, v{e+6}, 0")
    I(f"v_cvt_pk_bf16_f32 v{out+7}, v{e2+6}, 0")


def c_batch(mat, dbl, n0, n1, lds_base):
    t = None
    assert n0 % 8 == 0 and n1 % 8 == 0
    for i in range(n0 // 8, n1 // 8):
        t = dma2(vCA, sWG if mat == 0 else sWU, sCW, i * 8 * 8 * 3584 + dbl * 128, sCL, lds_base + (i * 8 - n0) * 1024)
    return t


def c_bg(mat, dbl, n0, n1, lds_base, after, gap=150):
    t = None
    for i in range(n0 // 8, n1 // 8):
        g.begin()
        t = dma2(vCA, sWG if mat == 0 else sWU, sCW, i * 8 * 8 * 3584 + dbl * 128, sCL, lds_base + (i * 8 - n0) * 1024, stmp=sBG)
        g.bg_add(g.end(), after, gap)
        NBG[0] += 1
    return t


NBG = [0]
TWD = {}
NWDBG = [0]


def bg(fn, after=None, gap=150):
    g.begin()
    r = fn()
    g.bg_add(g.end(), after, gap)
    NBG[0] += 1
    return r


def flush():
    g.mark(f"flush:{NBG[0]}")


def check_loop(issue, regs, tmp, body=None):
    lp, ld = g.newlabel("L_dp"), g.newlabel("L_dpd")
    I(f"s_mov_b32 s{sT5}, 0")
    g.label(lp)
    toks = issue()
    if body is not None:
        body(toks)
    g.wait(toks[-1])
    rs = list(regs)
    if len(rs) == 1:
        I(f"v_cmp_eq_u32 vcc, -1, v{rs[0]}")
    else:
        first = True
        acc = None
        while rs:
            if acc is None:
                if len(rs) >= 3:
                    I(f"v_max3_u32 v{tmp}, v{rs[0]}, v{rs[1]}, v{rs[2]}")
                    rs = rs[3:]
                else:
                    I(f"v_max_u32 v{tmp}, v{rs[0]}, v{rs[1]}")
                    rs = rs[2:]
                acc = tmp
            elif len(rs) >= 2:
                I(f"v_max3_u32 v{tmp}, v{tmp}, v{rs[0]}, v{rs[1]}")
                rs = rs[2:]
            else:
                I(f"v_max_u32 v{tmp}, v{tmp}, v{rs[0]}")
                rs = rs[1:]
        I(f"v_cmp_eq_u32 vcc, -1, v{tmp}")
    I(f"s_add_u32 s{sT5}, s{sT5}, 1")
    I(f"s_cmp_ge_u32 s{sT5}, {POLL_MAX}")
    I(f"s_cbranch_scc1 {ld}")
    I(f"s_cmp_lg_u64 vcc, 0")
    I(f"s_cbranch_scc1 {lp}")
    g.label(ld)


def sent_check(regs, tmp):
    rs = list(regs)
    acc = None
    while rs:
        if acc is None:
            if len(rs) >= 3:
                I(f"v_max3_u32 v{tmp}, v{rs[0]}, v{rs[1]}, v{rs[2]}")
                rs = rs[3:]
            else:
                I(f"v_max_u32 v{tmp}, v{rs[0]}, v{rs[1]}")
                rs = rs[2:]
            acc = tmp
        elif len(rs) >= 2:
            I(f"v_max3_u32 v{tmp}, v{tmp}, v{rs[0]}, v{rs[1]}")
            rs = rs[2:]
        else:
            I(f"v_max_u32 v{tmp}, v{tmp}, v{rs[0]}")
            rs = rs[1:]
    I(f"v_cmp_eq_u32 vcc, -1, v{tmp}")


TAILS = []


def spec_load(issue, regs, tmp, body=None, filler=None):
    lr, lb = g.newlabel("L_sr"), g.newlabel("L_sb")
    toks = issue()
    if filler is not None:
        filler()
    if body is not None:
        body(toks)
    g.wait(toks[-1])
    sent_check(regs, tmp)
    I(f"s_cmp_lg_u64 vcc, 0")
    I(f"s_cbranch_scc1 {lr}")
    g.label(lb)
    g.begin()
    g.label(lr)
    check_loop(issue, regs, tmp, body)
    I(f"s_branch {lb}")
    TAILS.append(g.end())


def c_setup():
    I(f"v_lshrrev_b32 v{vT0}, 3, v{vLANE}")
    I(f"v_mul_u32_u24 v{vT1}, 3584, v{vT0}")
    I(f"v_and_b32 v{vT2}, 1, v{vG}")
    I(f"v_lshlrev_b32 v{vT2}, 2, v{vT2}")
    I(f"v_and_b32 v{vCA}, 7, v{vLANE}")
    I(f"v_xor_b32 v{vCA}, v{vCA}, v{vT2}")
    I(f"v_lshl_add_u32 v{vCA}, v{vCA}, 4, v{vT1}")
    I(f"s_cmp_ge_u32 s{sJC}, 14")
    I(f"s_cselect_b32 s{sT0}, {OOB}, 0")
    I(f"v_add_u32 v{vCA}, s{sT0}, v{vCA}")
    I(f"s_mul_i32 s{sCW}, s{sW}, {8*3584}")
    I(f"s_lshl_b32 s{sT0}, s{sJC}, 8")
    I(f"s_add_u32 s{sCW}, s{sCW}, s{sT0}")


def touch1():
    I(f"s_mul_i32 s{sT0}, s{sLI}, {98*128}")
    I(f"s_mul_i32 s{sT1}, s{sW}, {13*128}")
    I(f"s_add_u32 s{sT0}, s{sT0}, s{sT1}")
    I(f"v_lshlrev_b32 v{vT0}, 7, v{vLANE}")
    I(f"v_mov_b32 v{vT2}, {OOB}")
    I(f"v_cmp_gt_u32 vcc, 13, v{vLANE}")
    I(f"v_cndmask_b32 v{vT0}, v{vT2}, v{vT0}, vcc")
    I(f"buffer_load_dword v{vDMY}, v{vT0}, {srd(sWO)}, s{sT0} offen")
    I(f"s_lshr_b32 s{sT0}, s{sW}, 1")
    I(f"s_lshl_b32 s{sT2}, s{sT0}, 2")
    I(f"s_mul_i32 s{sT0}, s{sT0}, {4*3584}")
    I(f"s_mul_i32 s{sT1}, s{sLI}, {14*3584}")
    I(f"s_add_u32 s{sT0}, s{sT0}, s{sT1}")
    I(f"s_and_b32 s{sT1}, s{sXC}, 1")
    I(f"s_mul_i32 s{sT1}, s{sT1}, 1792")
    I(f"s_add_u32 s{sT0}, s{sT0}, s{sT1}")
    I(f"v_mul_u32_u24 v{vT0}, 3584, v{vG}")
    I(f"v_lshl_add_u32 v{vT0}, v{vM16}, 7, v{vT0}")
    I(f"v_cmp_gt_u32 vcc, 14, v{vM16}")
    I(f"v_cndmask_b32 v{vT0}, v{vT2}, v{vT0}, vcc")
    I(f"v_add_u32 v{vT1}, s{sT2}, v{vG}")
    I(f"v_cmp_gt_u32 vcc, 14, v{vT1}")
    I(f"v_cndmask_b32 v{vT0}, v{vT2}, v{vT0}, vcc")
    I(f"buffer_load_dword v{vDMY}, v{vT0}, s[4:7], s{sT0} offen")


def touch2():
    I(f"s_mul_i32 s{sT2}, s{sLI}, {392*128}")
    I(f"s_mul_i32 s{sT1}, s{sW}, {49*128}")
    I(f"s_add_u32 s{sT2}, s{sT2}, s{sT1}")
    I(f"v_lshlrev_b32 v{vT1}, 7, v{vLANE}")
    I(f"v_mov_b32 v{vT2}, {OOB}")
    I(f"v_cmp_gt_u32 vcc, 49, v{vLANE}")
    I(f"v_cndmask_b32 v{vT1}, v{vT2}, v{vT1}, vcc")
    I(f"buffer_load_dword v247, v{vT1}, {srd(sWD)}, s{sT2} offen")


sNQ, sMTB, sCSS, sMTC = 76, 77, 78, 79
vT8, vCSS, vHSA, vSSA = 210, 214, 215, 199 + 0


def addr_setup():
    I(f"s_lshl_b32 s{sGATH}, s{sJ}, 16")
    I(f"s_add_u32 s{sGATH}, s{sGATH}, {WS_KVP}")
    I(f"s_lshl_b32 s{sKVS}, s{sG}, 12")
    I(f"s_add_u32 s{sKVS}, s{sKVS}, s{sGATH}")
    I(f"s_lshl_b32 s{sOS}, s{sA}, 4")
    I(f"s_add_u32 s{sOS}, s{sOS}, s{sJ}")
    I(f"s_lshl_b32 s{sOS}, s{sOS}, 10")
    I(f"s_add_u32 s{sOS}, s{sOS}, {WS_O}")
    I(f"s_lshl_b32 s{sCSS}, s{sJC}, 4")
    I(f"s_add_u32 s{sCSS}, s{sCSS}, s{sG}")
    I(f"s_lshl_b32 s{sCSS}, s{sCSS}, 10")
    I(f"s_add_u32 s{sCSS}, s{sCSS}, {WS_CS}")
    I(f"s_and_b32 s{sNQ}, s{sJB}, 3")
    I(f"s_lshr_b32 s{sMTB}, s{sJB}, 2")
    I(f"s_lshl_b32 s{sT0}, s{sGB}, 2")
    I(f"s_add_u32 s{sMTB}, s{sMTB}, s{sT0}")
    I(f"s_mul_i32 s{sHS}, s{sMTB}, 28")
    I(f"s_lshl_b32 s{sT1}, s{sNQ}, 3")
    I(f"s_add_u32 s{sHS}, s{sHS}, s{sT1}")
    I(f"s_lshl_b32 s{sHS}, s{sHS}, 10")
    I(f"s_add_u32 s{sHS}, s{sHS}, {WS_H}")
    I(f"s_lshl_b32 s{sSS}, s{sMTB}, 2")
    I(f"s_add_u32 s{sSS}, s{sSS}, s{sNQ}")
    I(f"s_lshl_b32 s{sSS}, s{sSS}, 8")
    I(f"s_add_u32 s{sSS}, s{sSS}, {WS_ST}")
    I(f"s_lshl_b32 s{sMTC}, s{sG}, 2")
    I(f"s_add_u32 s{sMTC}, s{sMTC}, s{sW3}")
    I(f"s_mul_i32 s{sHHS}, s{sMTC}, {112*1024}")
    I(f"s_lshl_b32 s{sT0}, s{sJC}, 13")
    I(f"s_add_u32 s{sHHS}, s{sHHS}, s{sT0}")
    I(f"s_lshl_b32 s{sT0}, s{sWH}, 11")
    I(f"s_add_u32 s{sHHS}, s{sHHS}, s{sT0}")
    I(f"s_add_u32 s{sHHS}, s{sHHS}, {WS_HH}")
    I(f"s_cmp_ge_u32 s{sJC}, 14")
    I(f"s_cselect_b32 s{sT0}, {OOB}, 0")
    I(f"s_add_u32 s{sHHS}, s{sHHS}, s{sT0}")
    I(f"s_lshr_b32 s{sT0}, s{sW}, 1")
    I(f"s_lshl_b32 s{sT0}, s{sT0}, 10")
    I(f"s_and_b32 s{sT1}, s{sW}, 1")
    I(f"s_lshl_b32 s{sT1}, s{sT1}, 3")
    I(f"s_add_u32 s{sT0}, s{sT0}, s{sT1}")
    I(f"v_add_u32 v{vT8}, s{sT0}, v{vL16}")
    I(f"s_cmp_ge_u32 s{sW}, 4")
    I(f"s_cselect_b32 s{sT0}, {OOB}, 0")
    I(f"v_lshlrev_b32 v{vCSS}, 2, v0")
    I(f"v_add_u32 v{vCSS}, s{sT0}, v{vCSS}")
    I(f"s_lshl_b32 s{sT1}, s{sW}, 2")
    I(f"v_and_b32 v{vT0}, 3, v{vLANE}")
    I(f"v_add_u32 v{vT0}, s{sT1}, v{vT0}")
    I(f"v_lshrrev_b32 v{vT1}, 2, v{vLANE}")
    I(f"v_lshlrev_b32 v{vHSA}, 9, v{vT1}")
    I(f"v_lshl_add_u32 v{vHSA}, v{vT0}, 4, v{vHSA}")
    I(f"s_cmp_eq_u32 s{sNQ}, 3")
    I(f"s_cselect_b32 s{sT1}, 8, 16")
    I(f"v_cmp_gt_u32 vcc, s{sT1}, v{vT1}")
    I(f"v_mov_b32 v{vT1}, {OOB}")
    I(f"v_cndmask_b32 v{vHSA}, v{vT1}, v{vHSA}, vcc")


def stats_addr(dst, t0, t1):
    I(f"s_lshl_b32 s{sBG}, s{sW}, 5")
    I(f"v_lshlrev_b32 v{t0}, 3, v{vLANE}")
    I(f"v_add_u32 v{t0}, s{sBG}, v{t0}")
    I(f"v_mov_b32 v{t1}, {OOB}")
    I(f"v_cmp_gt_u32 vcc, 4, v{vLANE}")
    I(f"v_cndmask_b32 v{dst}, v{t1}, v{t0}, vcc")


def sentinels0():
    lab = g.newlabel("L_init")
    I(f"s_lshl_b32 s{sT0}, s2, 3")
    I(f"s_add_u32 s{sT0}, s{sT0}, s{sW}")
    I(f"s_cmp_lg_u32 s{sT0}, 7")
    I(f"s_cbranch_scc1 {lab}")
    g.cond_begin()
    I(f"v_lshlrev_b32 v{vT0}, 8, v{vLANE}")
    I(f"v_mov_b32 v{vT1}, 0")
    I(f"buffer_store_dword v{vT1}, v{vT0}, {srd(sWS)}, 0 offen sc1")
    g.cond_end()
    g.label(lab)
    SN = 216
    for i in range(4):
        I(f"v_mov_b32 v{SN+i}, -1")
    I(f"buffer_store_dwordx2 {vr(SN,2)}, v{vT8}, {srd(sWS)}, s{sKVS} offen sc1")
    I(f"buffer_store_dwordx4 {vr(SN,4)}, v{vL16}, {srd(sWS)}, s{sOS} offen sc1")


def sentinels():
    SN = 216
    I(f"buffer_store_dword v{SN}, v{vCSS}, {srd(sWS)}, s{sCSS} offen sc1")
    I(f"buffer_store_dwordx4 {vr(SN,4)}, v{vHSA}, {srd(sWS)}, s{sHS} offen sc1")
    stats_addr(SN + 4, SN + 4, SN + 5)
    return I(f"buffer_store_dwordx2 {vr(SN,2)}, v{SN+4}, {srd(sWS)}, s{sSS} offen sc1")


def sent_hh(k):
    SN = 216
    I(f"s_add_u32 s{sBG}, s{sHHS}, {(k>>1)*4096 + (k&1)*1024}")
    return I(f"buffer_store_dwordx4 {vr(SN,4)}, v{vL16}, {srd(sWS)}, s{sBG} offen sc1")


def init_signal():
    lab = g.newlabel("L_is")
    I(f"s_cmp_lg_u32 s{sW}, 5")
    I(f"s_cbranch_scc1 {lab}")
    g.cond_begin()
    I("s_mov_b64 exec, 1")
    I(f"s_and_b32 s{sT0}, s2, 15")
    I(f"s_lshl_b32 s{sT0}, s{sT0}, 4")
    I(f"v_mov_b32 v{vCNT}, s{sT0}")
    I(f"buffer_atomic_add v{vONE}, v{vCNT}, {srd(sDBG)}, 0 offen sc1")
    I("s_mov_b64 exec, -1")
    g.cond_end()
    g.label(lab)


def init_check():
    lp, ld = g.newlabel("L_ic"), g.newlabel("L_icd")
    I(f"v_lshlrev_b32 v{vCNT}, 4, v{vM16}")
    I(f"s_mov_b32 s{sT5}, 0")
    g.label(lp)
    I("s_sleep 16")
    t = I(f"buffer_load_dword v{vINIT}, v{vCNT}, {srd(sDBG)}, 0 offen sc1")
    g.wait(t)
    I(f"v_cmp_gt_u32 vcc, 16, v{vINIT}")
    I(f"s_add_u32 s{sT5}, s{sT5}, 1")
    I(f"s_cmp_ge_u32 s{sT5}, {POLL_MAX}")
    I(f"s_cbranch_scc1 {ld}")
    I(f"s_cmp_lg_u64 vcc, 0")
    I(f"s_cbranch_scc1 {lp}")
    g.label(ld)


def phaseA():
    g.comment("==== phase A ====")
    if STAMPS:
        I("s_memrealtime s[96:97]")
        I("s_memtime s[94:95]")
        I("s_waitcnt lgkmcnt(0)")
        I("v_mov_b32 v250, s96")
        I("v_mov_b32 v251, s94")
    tx = {}
    for seg in range(7):
        for o in range(2):
            I(f"s_add_u32 m0, s{sLW}, {(o*7+seg)*1024 - seg*128}")
            tx[seg] = I(f"buffer_load_dwordx4 v{vXA1 if o else vXA0}, {srd(sX)}, s{sC if o else sB} offen offset:{seg*128} lds")
    I("s_setprio 2")
    prologue2()
    if STAMPS:
        for nm, r in (("rt0", 250), ("start", 251)):
            g.cond_begin()
            I(f"buffer_store_dword v{r}, off, {srd(sWS)}, s{sSTO} offset:{4*nstamp[0]}")
            g.cond_end()
            nstamp[0] += 1
            stamp_names.append(nm)
    I(f"v_lshrrev_b32 v{vT0}, 2, v{vLANE}")
    I(f"v_mul_u32_u24 v{vT0}, 2688, v{vT0}")
    I(f"v_and_b32 v{vT1}, 3, v{vLANE}")
    I(f"v_and_b32 v{vT2}, 2, v{vG}")
    I(f"v_xor_b32 v{vT1}, v{vT1}, v{vT2}")
    I(f"v_lshl_add_u32 v{vWA}, v{vT1}, 4, v{vT0}")
    I(f"s_mul_i32 s{sWB}, s{sJ}, 56")
    I(f"s_and_b32 s{sT1}, s{sJ}, 1")
    I(f"s_lshl_b32 s{sT1}, s{sT1}, 3")
    I(f"s_sub_u32 s{sWB}, s{sWB}, s{sT1}")
    I(f"s_mul_i32 s{sD}, s{sW}, {16*2688}")
    I(f"s_add_u32 s{sD}, s{sD}, s{sWB}")
    I(f"s_mov_b32 s{sLOG}, {f32(LOG2E)}")
    bgl = []
    bt = {}

    def bg_add(name, fn):
        bgl.append((name, fn))

    def bgq(n=1):
        for _ in range(n):
            if bgl:
                name, fn = bgl.pop(0)
                bt[name] = fn()
    for i in range(3):
        bg_add(f"wk{i}", lambda i=i: dma2(vWA, sWQKV, sD, 896 + i * 8 * 16 * 2688, sCL, LDS_WK + i * 8192))

    def wk3():
        I(f"s_cmp_ge_u32 s{sW}, 4")
        I(f"s_cselect_b32 s{sT0}, {OOB}, 0")
        I(f"s_add_u32 s{sT0}, s{sT0}, s{sD}")
        dma2(vWA, sWQKV, sT0, 896 + 3 * 8 * 16 * 2688, sCL, LDS_WK + 3 * 8192)
        I(f"v_lshlrev_b32 v{vT0}, 4, v0")
        I(f"v_mov_b32 v{vT1}, {OOB}")
        I(f"v_cmp_gt_u32 vcc, 98, v0")
        I(f"v_cndmask_b32 v{vT0}, v{vT1}, v{vT0}, vcc")
        I(f"s_min_u32 s{sT0}, s{sCL}, 2048")
        I(f"s_add_u32 m0, s{sT0}, {LDS_WPL}")
        I(f"s_mul_i32 s{sT0}, s{sJ}, 1568")
        return I(f"buffer_load_dwordx4 v{vT0}, {srd(sWPHI)}, s{sT0} offen lds")
    bg_add("wk3", wk3)
    addr_setup()
    I(f"s_cmp_ge_u32 s{sW}, 4")
    I(f"s_cselect_b32 s{sE}, {(24-4)*16*2688}, {1792 + 24*16*2688}" if False else f"s_mov_b32 s{sE}, {1792 + 24*16*2688}")
    I(f"s_cmov_b32 s{sE}, {20*16*2688}")

    I(f"s_cselect_b32 s{sKC}, 10240, 0")
    I(f"s_max_u32 s{sKC}, s{sKC}, 3072")
    I(f"s_add_u32 s{sKC}, s{sKC}, s{sLW}")
    I(f"s_add_u32 s{sE}, s{sE}, s{sD}")

    def rawW(i):
        if i == 3:
            I(f"s_mov_b32 m0, s{sKC}")
            I("s_nop 0")
            return I(f"buffer_load_dwordx4 v{vWA}, {srd(sWQKV)}, s{sE} offen lds")
        off = 1792 + i * 8 * 16 * 2688 if i < 3 else (i - 4) * 8 * 16 * 2688
        return dma2(vWA, sWQKV, sD, off, sLW, i * 1024 if i < 3 else 10240 + (i - 3) * 1024)
    for i in range(4):
        bg_add(f"w{i}", lambda i=i: rawW(i))
    I(f"v_lshrrev_b32 v{vT0}, 3, v{vM16}")
    I(f"v_mul_u32_u24 v{vT0}, 7168, v{vT0}")
    I(f"v_add_u32 v{vT0}, s{sLW}, v{vT0}")
    I(f"v_and_b32 v{vT1}, 7, v{vM16}")
    I(f"v_lshl_add_u32 v{vT0}, v{vT1}, 7, v{vT0}")
    I(f"v_lshrrev_b32 v{vT1}, 1, v{vM16}")
    I(f"v_xor_b32 v{vT1}, v{vT1}, v{vG}")
    I(f"v_lshl_add_u32 v{vXR0}, v{vT1}, 4, v{vT0}")
    I(f"v_xor_b32 v{vXR1}, 64, v{vXR0}")
    I(f"v_bfe_u32 v{vT0}, v{vLANE}, 2, 2")
    I(f"v_lshl_add_u32 v{vT0}, v{vG}, 3, v{vT0}")
    I(f"v_lshlrev_b32 v{vT0}, 6, v{vT0}")
    I(f"v_and_b32 v{vT1}, 3, v{vLANE}")
    I(f"s_and_b32 s{sT1}, s{sJ}, 1")
    I(f"v_add_u32 v{vT1}, s{sT1}, v{vT1}")
    I(f"v_and_b32 v{vT2}, 1, v{vG}")
    I(f"v_lshlrev_b32 v{vT2}, 2, v{vT2}")
    I(f"v_xor_b32 v{vT1}, v{vT1}, v{vT2}")
    I(f"v_lshl_add_u32 v{vTR}, v{vT1}, 3, v{vT0}")
    I(f"v_lshrrev_b32 v{vT0}, 2, v{vM16}")
    I(f"v_and_b32 v{vT1}, 3, v{vM16}")
    I(f"v_cmp_eq_u32 vcc, v{vT0}, v{vG}")
    I(f"v_cndmask_b32 v{vT1}, 7, v{vT1}, vcc")
    I(f"v_mov_b32 v{vT3}, 0x3f80")
    I(f"v_mov_b32 v{vT4}, 0x3f800000")
    for i in range(2):
        I(f"v_cmp_eq_u32 vcc, {2*i}, v{vT1}")
        I(f"v_cndmask_b32 v{vT2}, 0, v{vT3}, vcc")
        I(f"v_cmp_eq_u32 vcc, {2*i+1}, v{vT1}")
        I(f"v_cndmask_b32 v{SEL+i}, v{vT2}, v{vT4}, vcc")
        I(f"v_mov_b32 v{SEL+6+i}, v{SEL+i}")
    for i in (2, 3, 4, 5):
        I(f"v_mov_b32 v{SEL+i}, 0")
    S1, S2 = ACC, ACC + 4
    for i in range(8):
        I(f"v_mov_b32 v{ACC+i}, 0")
    I(f"v_mov_b32 v{vT5}, 0x3f803f80")
    I(f"v_lshlrev_b32 v{vT0}, 2, v{vLANE}")
    I(f"v_add_u32 v{vT0}, {LDS_FLG}, v{vT0}")
    I(f"ds_write_b32 v{vT0}, v{ACC}")
    tw = {}
    if "tlb" in EXP:
        STR_ = int(os.environ.get("TLBS", "16"))
        I(f"v_lshlrev_b32 v{vT0}, {STR_}, v{vLANE}")
        lend = g.newlabel("L_tl")
        tb = [(sWO, 0), (sWG, 0), (sWU, 0), (sWD, 0), (sOUT, 0), (sWS, 0), (sWS, 0x400000), (sWS, 0x800000)]
        for w_, (r, off) in enumerate(tb):
            l2 = g.newlabel("L_tl")
            if w_ < 7:
                I(f"s_cmp_lg_u32 s{sW}, {w_}")
                I(f"s_cbranch_scc1 {l2}")
                g.cond_begin()
            I(f"s_mov_b32 s{sT0}, {off}")
            I(f"buffer_load_dword v{vDMY}, v{vT0}, {srd(r)}, s{sT0} offen")
            if w_ < 7:
                g.cond_end()
                I(f"s_branch {lend}")
                g.label(l2)
        g.label(lend)
    bgq(2)
    sentinels0()
    for seg in range(7):
        g.wait(tx[seg])
        I(f"ds_read_b128 {vr(XF+8*seg,4)}, v{vXR0} offset:{seg*1024}")
        t = I(f"ds_read_b128 {vr(XF+8*seg+4,4)}, v{vXR1} offset:{seg*1024}")
        if seg in (1, 3, 5):
            bgq()
        g.wait(t)
        for k in range(8):
            r = XF + 8 * seg + k
            I(f"v_dot2_f32_bf16 v{S1+k%4}, v{r}, v{vT5}, v{S1+k%4}")
            I(f"v_dot2_f32_bf16 v{S2+k%4}, v{r}, v{r}, v{S2+k%4}")
    I("s_setprio 1")
    stamp("x stats")
    I(f"v_add_f32 v{S1}, v{S1}, v{S1+1}")
    I(f"v_add_f32 v{S1+2}, v{S1+2}, v{S1+3}")
    I(f"v_add_f32 v{S2}, v{S2}, v{S2+1}")
    I(f"v_add_f32 v{S2+2}, v{S2+2}, v{S2+3}")
    I(f"v_add_f32 v{S1}, v{S1}, v{S1+2}")
    I(f"v_add_f32 v{S2}, v{S2}, v{S2+2}")
    for lv in (16, 32):
        I(f"v_mov_b32 v{S1+1}, v{S1}")
        I(f"v_mov_b32 v{S2+1}, v{S2}")
        I(f"v_permlane{lv}_swap_b32 v{S1}, v{S1+1}")
        I(f"v_permlane{lv}_swap_b32 v{S2}, v{S2+1}")
        I(f"v_add_f32 v{S1}, v{S1}, v{S1+1}")
        I(f"v_add_f32 v{S2}, v{S2}, v{S2+1}")
    I(f"v_mul_f32 v{S1}, {f32(1/448)}, v{S1}")
    I(f"v_mul_f32 v{S2}, {f32(1/448)}, v{S2}")
    I(f"v_fma_f32 v{S2}, -v{S1}, v{S1}, v{S2}")
    I(f"v_max_f32 v{S2}, 0, v{S2}")
    I(f"v_add_f32 v{S2}, {f32(1e-5)}, v{S2}")
    RS, NB = ACCV, ACCV + 2
    I(f"v_rsq_f32 v{RS}, v{S2}")
    I(f"v_mul_f32 v{NB}, v{S1}, v{RS}")
    I(f"v_sub_f32 v{NB}, 0, v{NB}")
    I(f"v_mov_b32 v{RS+1}, v{RS}")
    I(f"v_mov_b32 v{NB+1}, v{NB}")
    TP = WF
    CSR = 248
    tcs = tinit = None
    for k in range(0, 56, 8):
        for u in range(8):
            I(f"v_lshlrev_b32 v{TP+2*u}, 16, v{XF+k+u}")
            I(f"v_and_b32 v{TP+2*u+1}, 0xffff0000, v{XF+k+u}")
        for u in range(8):
            I(f"v_pk_fma_f32 {vr(TP+2*u,2)}, {vr(TP+2*u,2)}, {vr(RS,2)}, {vr(NB,2)}")
        for u in range(8):
            I(f"v_cvt_pk_bf16_f32 v{XF+k+u}, v{TP+2*u}, v{TP+2*u+1}")
        if k in (0, 16, 32):
            bgq()
    I("s_setprio 0")
    stamp("normalized")
    I(f"v_mul_u32_u24 v{vT0}, 224, v{vG}")
    I(f"v_add_u32 v{vT0}, {LDS_WPL}, v{vT0}")
    I(f"v_lshl_add_u32 v{TMP}, v{vM16}, 1, v{vT0}")
    I(f"v_lshrrev_b32 v{vT2}, 2, v{vM16}")
    I(f"v_sub_u32 v{vT2}, v{vM16}, v{vT2}")
    I(f"v_lshl_add_u32 v{vT2}, v{vT2}, 1, v{vT0}")
    I(f"v_add_u32 v{TMP+1}, 32, v{vT2}")
    I(f"v_mov_b32 v{vT1}, {LDS_WPL + 1600}")
    I(f"v_and_b32 v{vT2}, 3, v{vM16}")
    I(f"v_cmp_eq_u32 vcc, 3, v{vT2}")
    I(f"v_cndmask_b32 v{TMP+1}, v{TMP+1}, v{vT1}, vcc")
    I(f"v_cmp_eq_u32 vcc, 3, v{vG}")
    I(f"v_cndmask_b32 v{TMP+2}, v{TMP}, v{vT1}, vcc")
    I(f"v_cndmask_b32 v{TMP+3}, v{TMP+1}, v{vT1}, vcc")
    I(f"v_add_u32 v{vTRb}, {LDS_WK}, v{vTR}")
    I(f"v_xor_b32 v{vTRc}, 32, v{vTRb}")
    def cs_loads():
        I(f"s_and_b32 s{sT0}, s{sW}, 1")
        I(f"s_cmp_eq_u32 s{sT0}, 1")
        I(f"s_cselect_b32 s4, s{sWU}, s{sWG}")
        I(f"s_cselect_b32 s5, s{sWU+1}, s{sWG+1}")
        I(f"s_mov_b32 s6, 1605632")
        I(f"s_mov_b32 s7, 0x20000")
        I(f"s_lshl_b32 s{sT0}, s{sG}, 2")
        I(f"s_lshr_b32 s{sT1}, s{sW}, 1")
        I(f"s_add_u32 s{sT0}, s{sT0}, s{sT1}")
        I(f"s_mul_i32 s{sT0}, s{sT0}, {7*3584}")
        I(f"s_lshl_b32 s{sT1}, s{sJC}, 8")
        I(f"s_add_u32 s{sT0}, s{sT0}, s{sT1}")
        I(f"s_cmp_ge_u32 s{sJC}, 14")
        I(f"s_cselect_b32 s{sT1}, {OOB}, 0")
        I(f"v_lshlrev_b32 v{vXA0}, 2, v{vLANE}")
        I(f"v_add_u32 v{vXA0}, s{sT1}, v{vXA0}")
        for r in range(7):
            if r:
                I(f"s_add_u32 s{sT0}, s{sT0}, 3584")
            tcs_ = I(f"buffer_load_dword v{CSR+r}, v{vXA0}, s[4:7], s{sT0} offen")
        return tcs_

    def init_load():
        I(f"v_mov_b32 v{vCNT}, 0")
        return I(f"buffer_load_dword v{vINIT}, v{vCNT}, {srd(sDBG)}, 0 offen sc1")
    bg_add("sent", sentinels)
    bg_add("cs", cs_loads)
    for i in (4, 5, 6):
        bg_add(f"w{i}", lambda i=i: rawW(i))
    g.wait(bt["wk3"])
    g.wait_all(vm=False)
    I("s_barrier")
    init_signal()

    def rdk(c, dst):
        I(f"ds_read_b64_tr_b16 {vr(dst,2)}, v{vTRb} offset:{c*2048}")
        I(f"ds_read_b64_tr_b16 {vr(dst+2,2)}, v{vTRb} offset:{c*2048+256}")
        I(f"ds_read_b64_tr_b16 {vr(dst+4,2)}, v{vTRc} offset:{c*2048}")
        return I(f"ds_read_b64_tr_b16 {vr(dst+6,2)}, v{vTRc} offset:{c*2048+256}")

    tphi = None
    for u in range(2):
        for j in range(8):
            d0 = j if j < 4 else 16 + j - 4
            va = TMP + u + (2 if j >= 4 else 0)
            dst = (WPH2 if j & 1 else WPHI) + 4 * u + j // 2
            tphi = I(f"ds_read_u16 v{dst}, v{va} offset:{d0*56}")
    I(f"v_lshrrev_b32 v{vWOA}, 3, v{vLANE}")
    I(f"v_mul_u32_u24 v{vWOA}, 896, v{vWOA}")
    I(f"v_and_b32 v{vT1}, 7, v{vLANE}")
    I(f"v_lshlrev_b32 v{vT2}, 1, v{vG}")
    I(f"v_xor_b32 v{vT1}, v{vT1}, v{vT2}")
    I(f"v_lshl_add_u32 v{vWOA}, v{vT1}, 4, v{vWOA}")
    I(f"s_lshl_b32 s{sWOB}, s{sNQ}, 1")
    I(f"s_add_u32 s{sWOB}, s{sWOB}, s{sWH}")
    I(f"s_cmp_eq_u32 s{sWOB}, 7")
    I(f"s_cselect_b32 s{sT1}, {OOB}, 0")
    I(f"s_lshl_b32 s{sWOB}, s{sWOB}, 7")
    I(f"s_add_u32 s{sWOB}, s{sWOB}, s{sT1}")
    I(f"s_mul_i32 s{sT1}, s{sW3}, {112*896}")
    I(f"s_add_u32 s{sWOB}, s{sWOB}, s{sT1}")
    two = {}

    def wo_load(i):
        two[i] = dma2(vWOA, sWO, sWOB, i * 8 * 896, sLW, i * 1024, stmp=sBG)
    for i in range(4, 10):
        bg_add(f"wo{i}", lambda i=i: wo_load(i))
    chain16(ACC, rdk, hook=lambda c: bgq() if c in (2, 5, 8, 11) else None)
    for i in range(8):
        I(f"v_lshl_or_b32 v{WPHI+i}, v{WPH2+i}, 16, v{WPHI+i}")
    stamp("k chain")
    I(f"v_lshrrev_b32 v{vT0}, 1, v{vG}")
    I(f"v_mul_u32_u24 v{vT0}, {UNIT-1024}, v{vT0}")
    I(f"v_add_u32 v{vTRb}, v{vT0}, v{vTR}")
    I(f"v_xor_b32 v{vTRc}, 32, v{vTRb}")
    I(f"v_add_u32 v{vXR0}, 57344, v{vTRb}")
    I(f"v_add_u32 v{vXR1}, 57344, v{vTRc}")
    g.wait(bt['w3'])
    I("s_barrier")
    stamp("wv ready")

    def rdw(isq):
        def rd(c, dst):
            n0 = 2 * c
            if not isq:
                unit, off = n0 % 8, (n0 // 8) * 1024
            elif n0 < 24:
                unit, off = n0 % 8, 10240 + (1 + n0 // 8) * 1024
            else:
                unit, off = 4 + n0 - 24, 10240
            a0, a1 = (vTRb, vTRc) if unit < 4 else (vXR0, vXR1)
            off += (unit % 4) * UNIT
            I(f"ds_read_b64_tr_b16 {vr(dst,2)}, v{a0} offset:{off}")
            I(f"ds_read_b64_tr_b16 {vr(dst+2,2)}, v{a0} offset:{off+256}")
            I(f"ds_read_b64_tr_b16 {vr(dst+4,2)}, v{a1} offset:{off}")
            return I(f"ds_read_b64_tr_b16 {vr(dst+6,2)}, v{a1} offset:{off+256}")
        return rd

    g.begin()
    chain16(ACCV, rdw(False), swap=True, hook=lambda c: bgq() if c % 2 == 1 else None)
    main = g.end()
    g.begin()
    featmap(ACC, PH)
    for s_ in range(2):
        for u in range(2):
            I(f"v_mfma_f32_16x16x32_bf16 {vr(TMP+8*s_+4*u,4)}, {vr(PH+4*s_,4)}, {vr(SEL+4*u,4)}, 0")
    side = g.end()
    g.put(interleave(main, side, every=1, per=4))
    PT = PH
    for k in range(8):
        I(f"v_cvt_pk_bf16_f32 v{PT+k}, v{TMP+2*k}, v{TMP+2*k+1}")
    VF = ACC
    I(f"v_cmp_le_u32 vcc, 12, v{vM16}")
    for k in range(4):
        I(f"v_cvt_pk_bf16_f32 v{VF+k}, v{ACCV+2*k}, v{ACCV+2*k+1}")
    I(f"v_cndmask_b32 v{VF+2}, v{VF+2}, v{vT5}, vcc")
    I(f"v_cndmask_b32 v{VF+3}, v{VF+3}, v{vT5}, vcc")
    I(f"s_lshr_b32 s{sT0}, s{sW}, 1")
    I(f"s_lshl_b32 s{sT0}, s{sT0}, 10")
    I(f"s_and_b32 s{sT1}, s{sW}, 1")
    I(f"s_lshl_b32 s{sT1}, s{sT1}, 3")
    I(f"s_add_u32 s{sT0}, s{sT0}, s{sT1}")
    I(f"s_add_u32 s{sT0}, s{sT0}, {LDS_WK}")
    I(f"v_add_u32 v{vT0}, s{sT0}, v{vL16}")
    for k in range(4):
        I(f"ds_write_b64 v{vT0}, {vr(PT+2*k,2)} offset:{k*4096}")
    for k in range(2):
        I(f"ds_write_b64 v{vT0}, {vr(VF+2*k,2)} offset:{(4+k)*4096}")
    g.wait(bt['cs'])
    I(f"v_mov_b32 v{ACCV}, 0\nv_mov_b32 v{ACCV+1}, 0")
    for r in range(7):
        I(f"v_dot2_f32_bf16 v{ACCV}, v{CSR+r}, v{vT3}, v{ACCV}")
        I(f"v_dot2_f32_bf16 v{ACCV+1}, v{CSR+r}, v{vT4}, v{ACCV+1}")
    I(f"v_lshlrev_b32 v{vT1}, 3, v0")
    I(f"v_add_u32 v{vT1}, {LDS_KVF}, v{vT1}")
    I(f"ds_write_b64 v{vT1}, {vr(ACCV,2)}")
    I(f"s_lshl_b32 s{sT0}, s{sWH}, 1")
    I(f"s_and_b32 s{sT1}, s{sW}, 1")
    I(f"s_add_u32 s{sT0}, s{sT0}, s{sT1}")
    I(f"s_lshl_b32 s{sT0}, s{sT0}, 12")
    I(f"s_add_u32 s{sT0}, s{sT0}, {LDS_WK}")
    I(f"v_add_u32 v{vT0}, s{sT0}, v{vL16}")
    I(f"s_bfe_u32 s{sT0}, s{sW}, 0x10001")
    I(f"s_lshl_b32 s{sT0}, s{sT0}, 12")
    I(f"s_add_u32 s{sT0}, s{sT0}, {LDS_WK + 4*4096}")
    I(f"v_add_u32 v{vT1}, s{sT0}, v{vL16}")
    g.wait(bt['w6'])
    g.wait_all(vm=False)
    I("s_barrier")
    R = WF
    tk = {}
    for p in range(4):
        I(f"ds_read_b128 {vr(R+8*p,4)}, v{vT0} offset:{p*1024}")
        tk[p] = I(f"ds_read_b128 {vr(R+8*p+4,4)}, v{vT1} offset:{p*1024}")
    I(f"v_lshlrev_b32 v{vXA0}, 2, v0")
    I(f"v_and_b32 v{vXA0}, 1023, v{vXA0}")
    I(f"v_add_u32 v{vXA0}, {LDS_KVF}, v{vXA0}")
    I(f"ds_read2st64_b32 {vr(ACCV,2)}, v{vXA0} offset0:0 offset1:4")
    tq = I(f"ds_read2st64_b32 {vr(ACCV+2,2)}, v{vXA0} offset0:8 offset1:12")
    for p in range(4):
        g.wait(tk[p])
        I(f"v_mfma_f32_16x16x32_bf16 {vr(ACC,4)}, {vr(R+8*p,4)}, {vr(R+8*p+4,4)}, {'0' if p == 0 else vr(ACC,4)}")
    g.wait(tq)
    I(f"v_add_f32 v{ACCV}, v{ACCV}, v{ACCV+1}")
    I(f"v_add_f32 v{ACCV+2}, v{ACCV+2}, v{ACCV+3}")
    I(f"v_add_f32 v{ACCV}, v{ACCV}, v{ACCV+2}")
    I(f"v_cvt_pk_bf16_f32 v{ACC+4}, v{ACC}, v{ACC+1}")
    I(f"v_cvt_pk_bf16_f32 v{ACC+5}, v{ACC+2}, v{ACC+3}")
    I(f"buffer_store_dwordx2 {vr(ACC+4,2)}, v{vT8}, {srd(sWS)}, s{sKVS} offen sc1")
    I(f"buffer_store_dword v{ACCV}, v{vCSS}, {srd(sWS)}, s{sCSS} offen sc1")
    stamp("kv stored")
    I(f"v_lshlrev_b32 v{vCNT}, 4, v{vM16}")
    tini = I(f"buffer_load_dword v{vINIT}, v{vCNT}, {srd(sDBG)}, 0 offen sc1")
    for i in range(4):
        bg_add(f"wo{i}", lambda i=i: wo_load(i))
    chain16(ACC, rdw(True), hook=lambda c: bgq() if c % 2 == 1 else None)
    bgq(99)
    c_bg(0, 0, 0, 56, 0, "qdone")
    c_bg(1, 0, 0, 24, 57344, "qdone")
    I("s_barrier")
    for i in range(10, 14):
        wo_load(i)
    featmap(ACC, PH)
    GR, R, AO, OS = 40, 96, 176, 184
    WOF = 112
    vB1, vB2, vB3 = 188, 189, 190
    vK0, vK1, vK2 = 191, 192, 193
    lr, lb = g.newlabel("L_ir"), g.newlabel("L_ib")
    g.wait(tini)
    I(f"v_cmp_gt_u32 vcc, 16, v{vINIT}")
    I(f"s_cmp_lg_u64 vcc, 0")
    I(f"s_cbranch_scc1 {lr}")
    g.label(lb)
    g.begin()
    g.label(lr)
    init_check()
    I(f"s_branch {lb}")
    TAILS.append(g.end())
    stamp("q done")

    I(f"s_lshl_b32 s{sT0}, s{sWH}, 15")
    I(f"s_lshl_b32 s{sT1}, s{sW3}, 10")
    I(f"s_add_u32 s{sGATH}, s{sGATH}, s{sT0}")
    I(f"s_add_u32 s{sGATH}, s{sGATH}, s{sT1}")

    def gat_issue():
        tl = []
        I(f"s_mov_b32 s{sT0}, s{sGATH}")
        for rb in range(8):
            if rb:
                I(f"s_add_u32 s{sT0}, s{sT0}, 4096")
            tl.append(I(f"buffer_load_dwordx4 {vr(GR+4*rb,4)}, v{vL16}, {srd(sWS)}, s{sT0} offen sc1"))
        return tl

    def gat_body(tl):
        for i in range(8):
            I(f"v_mov_b32 v{R+i}, 0")
        for rb in range(8):
            g.wait(tl[rb])
            for i in range(4):
                I(f"v_dot2_f32_bf16 v{R+2*i}, v{GR+4*rb+i}, v{vT3}, v{R+2*i}")
                I(f"v_dot2_f32_bf16 v{R+2*i+1}, v{GR+4*rb+i}, v{vT4}, v{R+2*i+1}")

    def wo_bounce():
        c_setup()
        d_setup()
        I(f"v_lshrrev_b32 v{vK0}, 2, v{vM16}")
        I(f"v_sub_u32 v{vK0}, v{vM16}, v{vK0}")
        I(f"v_and_b32 v{vT1}, 3, v{vM16}")
        I(f"v_cmp_eq_u32 vcc, 3, v{vT1}")
        I(f"v_cndmask_b32 v{vK0}, v{vK0}, 12, vcc")
        I(f"v_lshl_add_u32 v{vK0}, v{vG}, 4, v{vK0}")
        I(f"v_lshlrev_b32 v{vK0}, 4, v{vK0}")
        I(f"v_add_u32 v{vK0}, {LDS_KV2}, v{vK0}")
        I(f"v_add_u32 v{vK1}, {LDS_KV2}, v{vL16}")
        I(f"v_add_u32 v{vK2}, s{sCL}, v{vK1}")
        I(f"v_bfe_u32 v{vT1}, v{vLANE}, 2, 2")
        I(f"v_lshl_add_u32 v{vB1}, v{vG}, 2, v{vT1}")
        I(f"v_min_u32 v{vT1}, 2, v{vT1}")
        I(f"v_mad_u32_u24 v{vB2}, v{vG}, 3, v{vT1}")
        I(f"v_add_u32 v{vB2}, 16, v{vB2}")
        I(f"v_and_b32 v{vT1}, 3, v{vLANE}")
        I(f"v_lshlrev_b32 v{vT1}, 3, v{vT1}")
        I(f"v_add_u32 v{vT1}, s{sLW}, v{vT1}")
        AD = 72
        for rd_, vb in enumerate((vB1, vB2)):
            I(f"v_bfe_u32 v{vT2}, v{vb}, 1, 2")
            I(f"v_lshlrev_b32 v{vT2}, 5, v{vT2}")
            I(f"v_lshl_add_u32 v{vT2}, v{vb}, 7, v{vT2}")
            I(f"v_add_u32 v{AD+4*rd_}, v{vT2}, v{vT1}")
            for x in range(1, 4):
                I(f"v_xor_b32 v{AD+4*rd_+x}, {32*x}, v{AD+4*rd_}")
        g.wait(two[13])
        for hh in range(4):
            for nt in range(4):
                d = WOF + (hh * 4 + nt) * 4
                x = nt ^ (2 * (hh & 1))
                I(f"ds_read_b64_tr_b16 {vr(d,2)}, v{AD+x} offset:{hh*3584}")
                I(f"ds_read_b64_tr_b16 {vr(d+2,2)}, v{AD+4+x} offset:{hh*3584}")
    spec_load(gat_issue, [GR + 2 * k for k in range(16)], R + 12, gat_body, wo_bounce)
    g.mark("gdone")
    for i in range(4):
        I(f"v_cvt_pk_bf16_f32 v{R+8+i}, v{R+2*i}, v{R+2*i+1}")
    I(f"ds_write_b128 v{vK2}, {vr(R+8,4)}")
    g.wait_all(vm=False)
    stamp("gathered")
    I("s_barrier")
    g.mark("qdone")
    g.mark("burst:2")
    KF = 40
    tk = {}
    for hf_ in range(2):
        for s_ in range(2):
            I(f"ds_read_b128 {vr(KF+16*hf_+8*s_,4)}, v{vK1} offset:{hf_*4096+s_*2048}")
            tk[hf_, s_] = I(f"ds_read_b128 {vr(KF+16*hf_+8*s_+4,4)}, v{vK0} offset:{hf_*4096+s_*2048+1024}")
    for hf_ in range(2):
        for s_ in range(2):
            g.wait(tk[hf_, s_])
            for t in range(2):
                a = vr(AO + 4 * t, 4)
                I(f"v_mfma_f32_16x16x32_bf16 {a}, {vr(KF+16*hf_+8*s_+4*t,4)}, {vr(PH+4*s_,4)}, {'0' if (s_ == 0 and hf_ == 0) else a}")
    I(f"v_add_f32 v{vT1}, {f32(1e-6)}, v{AO+7}")
    I(f"v_rcp_f32 v{vT1}, v{vT1}")
    for i in range(7):
        I(f"v_mul_f32 v{AO+i}, v{AO+i}, v{vT1}")
    for i in range(3):
        I(f"v_cvt_pk_bf16_f32 v{OS+i}, v{AO+2*i}, v{AO+2*i+1}")
    I(f"v_cvt_pk_bf16_f32 v{OS+3}, v{AO+6}, 0")
    I(f"buffer_store_dwordx4 {vr(OS,4)}, v{vL16}, {srd(sWS)}, s{sOS} offen sc1")
    stamp("o stored")
    if "t2b" in EXP:
        touch2()
    g.mark("on")
    return two


def woraw(i):
    return vr(216 + 4 * i, 4) if i < 8 else vr(WR + 4 * (i - 8), 4)


def phaseB(two):
    g.comment("==== phase B ====")
    OF = 216
    XR, XU, CSG = 176, 180, 188
    WOF = 112
    BACC = 72
    vB1, vB2, vB3 = 196, 197, 198
    vD1, vD2, vD3 = 199, 200, 201
    I(f"s_mul_i32 s{sT0}, s{sMTB}, {32*896}")
    I(f"s_lshl_b32 s{sT1}, s{sNQ}, 8")
    I(f"s_add_u32 s{sT0}, s{sT0}, s{sT1}")
    I(f"s_lshl_b32 s{sT1}, s{sW}, 2")
    I(f"v_and_b32 v{vT4}, 3, v{vLANE}")
    I(f"v_add_u32 v{vT4}, s{sT1}, v{vT4}")
    I(f"v_lshrrev_b32 v{vT5}, 2, v{vLANE}")
    I(f"v_mul_u32_u24 v{vT0}, 896, v{vT4}")
    I(f"v_lshl_add_u32 v{vT0}, v{vT5}, 4, v{vT0}")
    txr = I(f"buffer_load_dwordx4 {vr(XR,4)}, v{vT0}, {srd(sX)}, s{sT0} offen")
    g.mark("burst:3")
    I(f"s_lshl_b32 s{sD}, s{sMTB}, 5")
    I(f"s_lshl_b32 s{sT1}, s{sW3}, 2")
    I(f"s_add_u32 s{sD}, s{sD}, s{sT1}")
    I(f"s_lshl_b32 s{sD}, s{sD}, 10")
    I(f"s_add_u32 s{sD}, s{sD}, {WS_O}")
    I(f"s_add_u32 s{sE}, s{sD}, 16384")
    I(f"s_mul_i32 s{sT0}, s{sW3}, 17408")
    I(f"s_mul_i32 s{sT1}, s{sWH}, {8*1088}")
    I(f"s_add_u32 s{sT0}, s{sT0}, s{sT1}")
    I(f"s_add_u32 s{sT0}, s{sT0}, {LDS_BSCR}")
    I(f"v_lshrrev_b32 v{vT1}, 1, v{vG}")
    I(f"v_mul_u32_u24 v{vT1}, 1088, v{vT1}")
    I(f"v_and_b32 v{vT2}, 1, v{vG}")
    I(f"v_lshl_add_u32 v{vT1}, v{vT2}, 9, v{vT1}")
    I(f"v_lshl_add_u32 v{vT1}, v{vM16}, 4, v{vT1}")
    I(f"v_add_u32 v{vB1}, s{sT0}, v{vT1}")
    I(f"v_mul_u32_u24 v{vT1}, 1088, v{vT5}")
    I(f"v_lshl_add_u32 v{vT1}, v{vT4}, 4, v{vT1}")
    I(f"v_add_u32 v{vB2}, {LDS_BSCR}, v{vT1}")
    I(f"v_cmp_gt_u32 vcc, 0x10000, v{vHSA}")
    I(f"v_cndmask_b32 v{vT3}, 0, -1, vcc")
    stats_addr(vT2, vT0, vT1)
    I(f"v_mov_b32 v{vT5}, 0x3f803f80")
    g.wait(txr)
    for i in range(4):
        I(f"v_lshlrev_b32 v{XU+2*i}, 16, v{XR+i}")
        I(f"v_and_b32 v{XU+2*i+1}, 0xffff0000, v{XR+i}")
    g.mark("off")
    I("s_barrier")
    stamp("wo ready")

    def o_issue():
        tl = []
        for hh in range(4):
            for mt in range(2):
                tl.append(I(f"buffer_load_dwordx4 {vr(OF+(hh*2+mt)*4,4)}, v{vL16}, {srd(sWS)}, s{sE if mt else sD} offen offset:{hh*1024} sc1"))
        return tl

    def o_body(tl):
        for hh in range(4):
            for mt in range(2):
                g.wait(tl[hh * 2 + mt])
                for nt in range(4):
                    a = BACC + (mt * 4 + nt) * 4
                    I(f"v_mfma_f32_16x16x32_bf16 {vr(a,4)}, {vr(WOF+(hh*4+nt)*4,4)}, {vr(OF+(hh*2+mt)*4,4)}, {'0' if hh == 0 else vr(a,4)}")
    spec_load(o_issue, [OF + 4 * k for k in range(8)], vT0, o_body)
    stamp("B mfma")
    I(f"s_lshl_b32 s{sT0}, s{sJC}, 14")
    I(f"s_lshl_b32 s{sT1}, s{sWH}, 13")
    I(f"s_add_u32 s{sT0}, s{sT0}, s{sT1}")
    I(f"s_add_u32 s{sD}, s{sT0}, {WS_CS}")
    I(f"s_add_u32 s{sE}, s{sD}, 4096")
    I(f"v_lshlrev_b32 v{vB3}, 2, v0")
    I(f"v_and_b32 v{vB3}, 1023, v{vB3}")

    def cs_issue():
        return [I(f"buffer_load_dword v{CSG+rb}, v{vB3}, {srd(sWS)}, s{sE if rb >= 4 else sD} offen offset:{(rb%4)*1024} sc1") for rb in range(8)]
    tcs8 = cs_issue()
    g.mark("burst:3")
    for mt in range(2):
        for nt in range(4):
            I(f"ds_write_b128 v{vB1}, {vr(BACC+(mt*4+nt)*4,4)} offset:{nt*2176+mt*256}")
    S1, S2 = 104, 105
    I(f"v_mov_b32 v{S1}, 0\nv_mov_b32 v{S2}, 0")
    g.wait_all(vm=False)
    I("s_barrier")
    b = 72
    for w in range(4):
        for q in range(2):
            I(f"ds_read_b128 {vr(b+w*8+q*4,4)}, v{vB2} offset:{w*17408+q*512}")
    g.wait_all(vm=False)
    HP = 108
    for i in range(8):
        I(f"v_add_f32 v{b+i}, v{b+i}, v{b+8+i}")
        I(f"v_add_f32 v{b+16+i}, v{b+16+i}, v{b+24+i}")
    for i in range(8):
        I(f"v_add_f32 v{b+i}, v{b+i}, v{XU+i}")
    for i in range(8):
        I(f"v_add_f32 v{b+i}, v{b+i}, v{b+16+i}")
    for i in range(4):
        I(f"v_cvt_pk_bf16_f32 v{HP+i}, v{b+2*i}, v{b+2*i+1}")
    I(f"buffer_store_dwordx4 {vr(HP,4)}, v{vHSA}, {srd(sWS)}, s{sHS} offen sc1")
    for i in range(4):
        I(f"v_dot2_f32_bf16 v{S1}, v{HP+i}, v{vT5}, v{S1}")
        I(f"v_dot2_f32_bf16 v{S2}, v{HP+i}, v{HP+i}, v{S2}")
    I(f"v_and_b32 v{S1}, v{vT3}, v{S1}")
    I(f"v_and_b32 v{S2}, v{vT3}, v{S2}")
    for ror in (4, 8):
        I(f"v_add_f32_dpp v{S1}, v{S1}, v{S1} row_ror:{ror} row_mask:0xf bank_mask:0xf")
        I(f"v_add_f32_dpp v{S2}, v{S2}, v{S2} row_ror:{ror} row_mask:0xf bank_mask:0xf")
    for lv in (16, 32):
        I(f"v_mov_b32 v106, v{S1}\nv_mov_b32 v107, v{S2}")
        I(f"v_permlane{lv}_swap_b32 v{S1}, v106")
        I(f"v_permlane{lv}_swap_b32 v{S2}, v107")
        I(f"v_add_f32 v{S1}, v{S1}, v106")
        I(f"v_add_f32 v{S2}, v{S2}, v107")
    I(f"buffer_store_dwordx2 v[{S1}:{S2}], v{vT2}, {srd(sWS)}, s{sSS} offen sc1")
    stamp("h stored")
    lr, lb = g.newlabel("L_sr"), g.newlabel("L_sb")
    g.wait(tcs8[-1])
    sent_check([CSG + rb for rb in range(8)], vT0)
    I(f"s_cmp_lg_u64 vcc, 0")
    I(f"s_cbranch_scc1 {lr}")
    g.label(lb)
    g.begin()
    g.label(lr)
    check_loop(cs_issue, [CSG + rb for rb in range(8)], vT0)
    I(f"s_branch {lb}")
    TAILS.append(g.end())
    for k in (4, 2, 1):
        for i in range(k):
            I(f"v_add_f32 v{CSG+i}, v{CSG+i}, v{CSG+k+i}")
    I(f"v_lshlrev_b32 v{vB3}, 2, v0")
    I(f"v_add_u32 v{vB3}, {LDS_KVF}, v{vB3}")
    I(f"ds_write_b32 v{vB3}, v{CSG}")
    g.wait_all(vm=False)
    I("s_barrier")
    I(f"s_cmp_ge_u32 s{sJC}, 14")
    I("s_cbranch_scc1 L_pref" if "pref" in EXP else "s_cbranch_scc1 L_end")
    if "pref" in EXP:
        g.begin()
        g.label("L_pref")
        I(f"s_and_b32 s{sT0}, s{sLI}, 3")
        I(f"s_lshl_b32 s{sT0}, s{sT0}, 3")
        I(f"s_add_u32 s{sT0}, s{sT0}, s{sW}")
        I(f"s_mul_i32 s{sT1}, s{sT0}, {14*3584}")
        I(f"s_and_b32 s{sT2}, s{sXC}, 1")
        I(f"s_mul_i32 s{sT2}, s{sT2}, 1792")
        I(f"s_add_u32 s{sT1}, s{sT1}, s{sT2}")
        I(f"s_add_u32 s{sT1}, s{sT1}, 128")
        I(f"s_add_u32 s{sT2}, s{sT1}, {7*3584}")
        I(f"v_lshrrev_b32 v16, 3, v{vLANE}")
        I(f"v_min_u32 v16, 6, v16")
        I(f"v_mul_u32_u24 v16, 3584, v16")
        I(f"v_and_b32 v17, 7, v{vLANE}")
        I(f"v_min_u32 v17, 6, v17")
        I(f"v_lshl_add_u32 v16, v17, 8, v16")
        for k, (r, so) in enumerate(((sWU, sT1), (sWU, sT2), (sWG, sT1), (sWG, sT2))):
            I(f"buffer_load_dword v{20+k}, v16, {srd(r)}, s{so} offen")
        I(f"s_mul_i32 s{sT1}, s{sT0}, {392*128}")
        I(f"v_min_u32 v17, 55, v{vLANE}")
        I(f"v_lshlrev_b32 v17, 7, v17")
        for k in range(7):
            I(f"buffer_load_dword v{24+k}, v17, {srd(sWD)}, s{sT1} offen")
            I(f"s_add_u32 s{sT1}, s{sT1}, {56*128}")
        I("s_endpgm")
        TAILS.append(g.end())
    tb2 = c_batch(1, 0, 24, 56, 57344 + 24576)


GK1 = -2.0 * math.sqrt(2.0 / math.pi) * LOG2E
GK2 = GK1 * 0.044715
LDS_X = 114688
vHB, vM, vWD = 254, 255, 253
sWDB = 80
WDE = 16
NWDE = 7
NWDC = int(os.environ.get('NWDC', '2'))


def hh_signal(stage, toks):
    g.wait(*toks)
    I("s_barrier")
    lab = g.newlabel("L_hs")
    I(f"s_cmp_lg_u32 s{sW}, 0")
    I(f"s_cbranch_scc1 {lab}")
    g.cond_begin()
    I("s_mov_b64 exec, 1")
    I(f"s_lshl_b32 s{sT0}, s{sG}, 8")
    I(f"s_add_u32 s{sT0}, s{sT0}, {WS_CNT + CNT_HH * 4096 + 64 * stage}")
    I(f"v_mov_b32 v{vCNT}, s{sT0}")
    I(f"buffer_atomic_add v{vONE}, v{vCNT}, {srd(sWS)}, 0 offen sc1")
    I("s_mov_b64 exec, -1")
    g.cond_end()
    g.label(lab)


def hh_poll(stage_sreg_or_imm):
    I("s_mov_b64 exec, 1")
    I(f"s_lshl_b32 s{sT0}, s{sGB}, 8")
    I(f"s_add_u32 s{sT0}, s{sT0}, {WS_CNT + CNT_HH * 4096}")
    I(f"s_add_u32 s{sT0}, s{sT0}, {stage_sreg_or_imm}")
    I(f"v_mov_b32 v{vCNT}, s{sT0}")
    poll(sWS, vCNT, 14)
    I("s_mov_b64 exec, -1")


def d_setup():
    I(f"v_lshrrev_b32 v{vHB}, 5, v{vLANE}")
    I(f"v_and_b32 v{vM}, 31, v{vLANE}")
    I(f"v_lshrrev_b32 v{vT0}, 3, v{vLANE}")
    I(f"v_mul_u32_u24 v{vT0}, 896, v{vT0}")
    I(f"v_and_b32 v{vT1}, 1, v{vG}")
    I(f"v_lshlrev_b32 v{vT1}, 2, v{vT1}")
    I(f"v_and_b32 v{vWD}, 7, v{vLANE}")
    I(f"v_xor_b32 v{vWD}, v{vWD}, v{vT1}")
    I(f"v_lshl_add_u32 v{vWD}, v{vWD}, 4, v{vT0}")
    I(f"s_cmp_ge_u32 s{sJB}, 7")
    I(f"s_cselect_b32 s{sRH}, 1, 0")
    I(f"s_mul_i32 s{sT0}, s{sRH}, 7")
    I(f"s_sub_u32 s{sCB}, s{sJB}, s{sT0}")
    I(f"s_lshl_b32 s{sT0}, s{sWH}, 1")
    I(f"s_add_u32 s{sT0}, s{sT0}, s{sW}")
    I(f"s_and_b32 s{sAA}, s{sT0}, 3")
    I(f"s_mul_i32 s{sKC}, s{sWH}, 56")
    I(f"s_add_u32 s{sKC}, s{sKC}, s{sAA}")
    I(f"s_mul_i32 s{sWDB}, s{sKC}, {16*896}")
    I(f"s_lshl_b32 s{sT1}, s{sCB}, 7")
    I(f"s_add_u32 s{sWDB}, s{sWDB}, s{sT1}")
    I(f"s_cmp_ge_u32 s{sJB}, 14")
    I(f"s_cselect_b32 s{sT1}, {OOB}, 0")
    I(f"s_add_u32 s{sWDB}, s{sWDB}, s{sT1}")


sRH, sCB, sAA, sKC = 64, 65, 66, 67


def kc_off(n):
    return 8 * n if n < 7 else 4 + 8 * (n - 7)


def wd_load(dst, n):
    t = None
    for hf_ in range(2):
        I(f"s_add_u32 s{sT3}, s{sWDB}, {(16*kc_off(n) + 8*hf_)*896}")
        for e in range(4):
            t = I(f"buffer_load_dword v{dst+4*hf_+e}, v{vWD}, {srd(sWD)}, s{sT3} offen offset:{e*896}")
    return t


def wd_half(dst, n, hf_):
    I(f"s_add_u32 s{sBG}, s{sWDB}, {(16*kc_off(n) + 8*hf_)*896}")
    return I(f"buffer_load_dwordx4 {vr(dst+4*hf_,4)}, v{vWD}, {srd(sWD)}, s{sBG} offen")


def dt_pattern(dst, t0, t1):
    I(f"v_bfe_u32 v{t0}, v{vLANE}, 2, 2")
    I(f"v_lshl_add_u32 v{t1}, v{vHB}, 2, v{t0}")
    I(f"v_lshlrev_b32 v{t1}, 7, v{t1}")
    I(f"v_lshrrev_b32 v{t0}, 1, v{t0}")
    I(f"v_lshl_add_u32 v{t1}, v{t0}, 6, v{t1}")
    I(f"v_and_b32 v{t0}, 1, v{vG}")
    I(f"v_lshl_add_u32 v{t1}, v{t0}, 5, v{t1}")
    I(f"v_and_b32 v{t0}, 3, v{vLANE}")
    I(f"v_lshl_add_u32 v{dst}, v{t0}, 3, v{t1}")


def c_rows(mat, dbl, r0, r1, lds_base):
    return c_batch(mat, dbl, r0, r1, lds_base)


def g1_addr(n):
    if n < 8:
        return 114688 + n * 1024
    if 24 <= n < 40:
        return 114688 + 8192 + (n - 24) * 1024
    if n < 24:
        return (n - 8) * 1024
    return 16384 + (n - 40) * 1024


def u1_addr(n):
    if n < 8:
        return 32768 + n * 1024
    if 24 <= n < 40:
        return 32768 + 8192 + (n - 24) * 1024
    if n < 24:
        return 57344 + (n - 8) * 1024
    return 57344 + 16384 + (n - 40) * 1024


def phaseCD(twd_early):
    g.comment("==== phase C ====")
    sMD, sHB, sMT = sC, sHHS, sMTC
    sAB = 7
    sL5, sL2, sL3, sL4 = 4, 5, 6, 83
    I(f"s_mul_i32 s{sL5}, s{sW}, 5120")
    I(f"s_lshl_b32 s{sL2}, s{sW}, 11")
    I(f"s_mul_i32 s{sL3}, s{sW}, 3072")
    I(f"s_lshl_b32 s{sL4}, s{sW}, 12")
    slotE = [(sL2, 40960 + i * 1024) for i in range(2)] + [(sL3, 90112 + i * 1024) for i in range(3)]
    slotM = [(sL5, 114688 + i * 1024) for i in range(5)] + [(sL2, i * 1024) for i in range(2)]
    slotL = [(sL3, 16384 + i * 1024) for i in range(3)] + [(sL4, 57344 + i * 1024) for i in range(4)]
    wslot = slotE + slotM + slotL + (slotE + slotM)[:9]
    sRW = [12, 13, 14, 15, 16, 17, 18]
    sRA = [19, 20, 21, 22, 23, 81, 82]

    def wd_dma(m):
        n, hf_ = m // 2, m % 2
        return dma2(vWD, sWD, sRW[n % 7], (16 * (4 if n >= 7 else 0) + 8 * hf_) * 896, wslot[m][0], wslot[m][1])
    c_batch(0, 1, 0, 40, 114688)
    I(f"s_lshl_b32 s{sMD}, s{sGB}, 2")
    I(f"s_lshl_b32 s{sT0}, s{sRH}, 1")
    I(f"s_add_u32 s{sMD}, s{sMD}, s{sT0}")
    I(f"s_lshl_b32 s{sE}, s{sMT}, 10")
    I(f"s_add_u32 s{sE}, s{sE}, {WS_ST}")
    I(f"s_mul_i32 s{sWB}, s{sMT}, {28*1024}")
    I(f"s_add_u32 s{sWB}, s{sWB}, {WS_H}")
    I(f"s_mul_i32 s{sAB}, s{sMD}, {112*1024}")
    I(f"s_lshl_b32 s{sT1}, s{sKC}, 10")
    I(f"s_add_u32 s{sAB}, s{sAB}, s{sT1}")
    I(f"s_add_u32 s{sAB}, s{sAB}, {WS_HH}")
    for n in range(7):
        if "norot" in EXP:
            I(f"s_mov_b32 s{sT0}, {n}")
        else:
            I(f"s_add_u32 s{sT0}, s{sCB}, {n}")
            I(f"s_sub_u32 s{sT1}, s{sT0}, 7")
            I(f"s_cmp_ge_u32 s{sT0}, 7")
            I(f"s_cselect_b32 s{sT0}, s{sT1}, s{sT0}")
        I(f"s_mul_i32 s{sT1}, s{sT0}, {8*16*896}")
        I(f"s_add_u32 s{sRW[n]}, s{sWDB}, s{sT1}")
        I(f"s_lshl_b32 s{sT1}, s{sT0}, 13")
        I(f"s_add_u32 s{sRA[n]}, s{sAB}, s{sT1}")
    HF = 16
    A_, B_, C_ = 128, 144, 160
    TM, CS2 = 176, 192
    WFc = 208
    vA0, vA1, vCSA, vFA, vA2 = 240, 241, 242, 243, 15
    K1, K2, IR2, NMU = 248, 249, 250, 251
    STR = 244
    I(f"v_bfe_u32 v{vT0}, v{vLANE}, 2, 2")
    I(f"v_lshl_add_u32 v{vT1}, v{vHB}, 3, v{vT0}")
    I(f"v_lshlrev_b32 v{vT1}, 7, v{vT1}")
    I(f"v_lshrrev_b32 v{vT0}, 1, v{vT0}")
    I(f"v_xor_b32 v{vT0}, s{sWH}, v{vT0}")
    I(f"v_lshl_add_u32 v{vT1}, v{vT0}, 6, v{vT1}")
    I(f"v_and_b32 v{vT2}, 1, v{vG}")
    I(f"v_lshl_add_u32 v{vT1}, v{vT2}, 5, v{vT1}")
    I(f"v_and_b32 v{vT2}, 3, v{vLANE}")
    I(f"v_lshl_add_u32 v{vA0}, v{vT2}, 3, v{vT1}")
    I(f"v_add_u32 v{vA1}, 57344, v{vA0}")
    I(f"v_add_u32 v{vA2}, 114688, v{vA0}")
    I(f"s_lshl_b32 s{sT0}, s{sWH}, 7")
    I(f"s_add_u32 s{sT0}, s{sT0}, {LDS_CS}")
    I(f"v_lshlrev_b32 v{vCSA}, 4, v{vHB}")
    I(f"v_add_u32 v{vCSA}, s{sT0}, v{vCSA}")
    I(f"v_mov_b32 v{vFA}, {LDS_FLG}")
    I(f"v_lshlrev_b32 v{vT3}, 3, v{vLANE}")
    flush()
    I(f"v_lshlrev_b32 v{vT0}, 2, v0")
    I(f"v_and_b32 v{vT0}, 1023, v{vT0}")
    I(f"v_add_u32 v{vT0}, {LDS_KVF}, v{vT0}")
    t = I(f"ds_read2st64_b32 v[72:73], v{vT0} offset0:0 offset1:4")
    g.wait(t)
    I(f"v_add_f32 v72, v72, v73")
    I(f"ds_write_b32 v{vT0}, v72 offset:4096")
    stamp("C ready")

    def st_issue():
        I(f"buffer_load_dwordx2 {vr(STR,2)}, v{vT3}, {srd(sWS)}, s{sE} offen sc1")
        return [I(f"buffer_load_dwordx2 {vr(STR+2,2)}, v{vT3}, {srd(sWS)}, s{sE} offen offset:512 sc1")]
    check_loop(st_issue, [STR, STR + 2], vT1)
    stamp("h flag")

    def h_issue():
        tl = []
        for c in range(28):
            if c % 4 == 0:
                I(f"s_add_u32 s{sT0}, s{sWB}, {c*1024}")
            tl.append(I(f"buffer_load_dwordx4 {vr(HF+4*c,4)}, v{vL16}, {srd(sWS)}, s{sT0} offen offset:{(c%4)*1024} sc1"))
        return tl
    g.begin()
    th = h_issue()
    hl = g.end()
    g.put(hl[:10])
    g.wait_all(vm=False)
    I("s_barrier")
    I(f"v_add_f32 v{STR}, v{STR}, v{STR+2}")
    I(f"v_add_f32 v{STR+1}, v{STR+1}, v{STR+3}")
    I(f"v_mov_b32 v{STR+2}, v{STR}\nv_mov_b32 v{STR+3}, v{STR+1}")
    I(f"v_permlane32_swap_b32 v{STR}, v{STR+2}")
    I(f"v_permlane32_swap_b32 v{STR+1}, v{STR+3}")
    I(f"v_add_f32 v{STR}, v{STR}, v{STR+2}")
    I(f"v_add_f32 v{STR+1}, v{STR+1}, v{STR+3}")
    I(f"v_mul_f32 v{NMU}, {f32(-1/448)}, v{STR}")
    I(f"v_mul_f32 v{STR+1}, {f32(1/448)}, v{STR+1}")
    I(f"v_fma_f32 v{STR+1}, -v{NMU}, v{NMU}, v{STR+1}")
    I(f"v_max_f32 v{STR+1}, 0, v{STR+1}")
    I(f"v_add_f32 v{IR2}, {f32(1e-5)}, v{STR+1}")
    I(f"v_rsq_f32 v{STR}, v{IR2}")
    I(f"v_mul_f32 v{K1}, {f32(GK1)}, v{STR}")
    I(f"v_mul_f32 v{STR+1}, v{STR}, v{STR}")
    I(f"v_mul_f32 v{STR+1}, v{STR+1}, v{STR}")
    I(f"v_mul_f32 v{K2}, {f32(GK2)}, v{STR+1}")
    tails = TAILS

    def cnt_add(f):
        I("s_mov_b64 exec, 1")
        I(f"ds_add_u32 v{vFA}, v{vONE} offset:{4*f}")
        I("s_mov_b64 exec, -1")

    def cnt_issue(f):
        return I(f"ds_read_b32 v{vFLAG}, v{vFA} offset:{4*f}")

    def cnt_check(f, t):
        lr, lb = g.newlabel("L_cr"), g.newlabel("L_cb")
        g.wait(t)
        I(f"v_readfirstlane_b32 s{sT4}, v{vFLAG}")
        I(f"s_cmp_lt_u32 s{sT4}, 8")
        I(f"s_cbranch_scc1 {lr}")
        g.label(lb)
        g.begin()
        g.label(lr)
        I(f"s_mov_b32 s{sT5}, 0")
        l2 = g.newlabel("L_cl")
        g.label(l2)
        I("s_sleep 1")
        cnt_issue(f)
        I("s_waitcnt lgkmcnt(0)")
        I(f"v_readfirstlane_b32 s{sT4}, v{vFLAG}")
        I(f"s_add_u32 s{sT5}, s{sT5}, 1")
        I(f"s_cmp_ge_u32 s{sT5}, {POLL_MAX*8}")
        I(f"s_cbranch_scc1 {lb}")
        I(f"s_cmp_lt_u32 s{sT4}, 8")
        I(f"s_cbranch_scc1 {l2}")
        I(f"s_branch {lb}")
        tails.append(g.end())

    def hsig_issue(f, toks):
        g.wait(*toks)
        I("s_mov_b64 exec, 1")
        t = I(f"ds_add_rtn_u32 v{vINIT}, v{vFA}, v{vONE} offset:{4*f}")
        I("s_mov_b64 exec, -1")
        return t

    def hsig_check(stage, t):
        lab = g.newlabel("L_hs")
        g.wait(t)
        I(f"v_readfirstlane_b32 s{sT4}, v{vINIT}")
        I(f"s_cmp_lg_u32 s{sT4}, 7")
        I(f"s_cbranch_scc1 {lab}")
        g.cond_begin()
        I("s_mov_b64 exec, 1")
        I(f"s_lshl_b32 s{sT0}, s{sG}, 8")
        I(f"s_add_u32 s{sT0}, s{sT0}, {WS_CNT + CNT_HH * 4096 + 64 * stage}")
        I(f"v_mov_b32 v{vCNT}, s{sT0}")
        I(f"buffer_atomic_add v{vONE}, v{vCNT}, {srd(sWS)}, 0 offen sc1")
        I("s_mov_b64 exec, -1")
        g.cond_end()
        g.label(lab)

    def cs_read(dst, mat, dbl):
        t = None
        for q in range(4):
            t = I(f"ds_read_b128 {vr(dst+4*q,4)}, v{vCSA} offset:{mat*512 + (64*dbl+8*q)*4}")
        return t

    def gpart(ag, t):
        g.wait(t)
        for i in range(16):
            I(f"v_fmac_f32 v{ag+i}, v{NMU}, v{TM+i}")
        for i in range(16):
            I(f"v_mul_f32 v{TM+i}, v{ag+i}, v{ag+i}")
        for i in range(16):
            I(f"v_fma_f32 v{TM+i}, v{TM+i}, v{K2}, v{K1}")
        for i in range(16):
            I(f"v_mul_f32 v{TM+i}, v{TM+i}, v{ag+i}")
        for i in range(16):
            I(f"v_exp_f32 v{TM+i}, v{TM+i}")
        for i in range(16):
            I(f"v_fma_f32 v{TM+i}, v{TM+i}, v{IR2}, v{IR2}")
        for i in range(16):
            I(f"v_rcp_f32 v{TM+i}, v{TM+i}")
        for i in range(16):
            I(f"v_mul_f32 v{TM+i}, v{ag+i}, v{TM+i}")

    def upart(au, t, dbl):
        g.wait(t)
        for i in range(16):
            I(f"v_fmac_f32 v{au+i}, v{NMU}, v{CS2+i}")
        for i in range(16):
            I(f"v_mul_f32 v{au+i}, v{au+i}, v{TM+i}")
        for i in range(8):
            I(f"v_cvt_pk_bf16_f32 v{CS2+i}, v{au+2*i}, v{au+2*i+1}")
        I(f"s_add_u32 s{sE}, s{sHB}, {dbl*4096}")
        I(f"buffer_store_dwordx4 {vr(CS2,4)}, v{vL16}, {srd(sWS)}, s{sE} offen sc1")
        return I(f"buffer_store_dwordx4 {vr(CS2+4,4)}, v{vL16}, {srd(sWS)}, s{sE} offen offset:1024 sc1")

    slots = []
    for c in range(28):
        slots.append((A_, c * 2048, c))
        slots.append((B_, 57344 + c * 2048, c))
    for c in range(28):
        slots.append((C_, 114688 + c * 2048 if c < 20 else (c - 20) * 2048, c))
    for c in range(28):
        slots.append((A_, 16384 + c * 2048 if c < 12 else 57344 + (c - 12) * 2048, c))
    NS = 112
    PRC = int(os.environ.get('PRC', '14'))
    depth = int(os.environ.get('DEPTH', '4'))
    nb = depth + 1
    tok = {}

    def rd(i):
        off = slots[i][1]
        base = vA0
        if off >= 114688:
            base, off = vA2, off - 114688
        elif off >= 57344:
            base, off = vA1, off - 57344
        dst = WFc + 4 * (i % nb)
        I(f"ds_read_b64_tr_b16 {vr(dst,2)}, v{base} offset:{off}")
        tok[i] = I(f"ds_read_b64_tr_b16 {vr(dst+2,2)}, v{base} offset:{off+512}")

    sched = {i: [] for i in range(NS)}
    load = {i: 0.0 for i in range(NS)}
    BUDGET = float(os.environ.get("BUDGET", "6"))

    def cost(it):
        if it.kind != "i":
            return 0
        m = it.text.split()[0]
        if m in TRANS:
            return 2
        if m in ("v_fma_f32", "v_fmac_f32"):
            return 1.25
        if m.startswith("v_"):
            return 1
        if m.startswith(("ds_", "buffer")):
            return 0.4
        return 0.1

    def cap(fn):
        g.begin()
        r = fn()
        return g.end(), r

    def at(slot, fn):
        st, r = cap(fn)
        for it in st:
            sched[slot].append(it)
            load[slot] += cost(it)
        return r

    rest = []

    def flow(stream, slot):
        pend = []
        for it in stream:
            pend.append(it)
            if it.kind != "i":
                continue
            c = sum(cost(x) for x in pend)
            while slot < NS and load[slot] + c > BUDGET:
                slot += 1
            if slot >= NS:
                rest.extend(pend)
            else:
                sched[slot].extend(pend)
                load[slot] += c
            pend = []
        return slot

    k_ = 0
    for it in hl[10:]:
        sched[k_].append(it)
        if it.text.startswith("buffer"):
            k_ += 1

    def refill(f, free_slot, batches, need_slot):
        at(free_slot, lambda: cnt_add(f))
        t = at(free_slot + 2, lambda: cnt_issue(f))
        at(free_slot + 3, lambda: cnt_check(f, t))
        st, tb = cap(batches)
        for q in range(len(st) // 3):
            for it in st[3 * q:3 * q + 3]:
                sched[free_slot + 3 + 2 * q].append(it)
        if need_slot is not None:
            at(need_slot - depth - 3, lambda: (g.wait(tb), cnt_add(f + 1)))
            t2 = at(need_slot - depth - 2, lambda: cnt_issue(f + 1))
            at(need_slot - depth - 1, lambda: cnt_check(f + 1, t2))
        return tb
    F0 = int(os.environ.get("F0", "40"))
    at(F0, lambda: cnt_add(0))
    t = at(F0 + 2, lambda: cnt_issue(0))
    at(F0 + 3, lambda: cnt_check(0, t))
    st1, tb1 = cap(lambda: c_batch(0, 1, 40, 56, 0))
    st2, tb2 = cap(lambda: (c_batch(1, 1, 0, 24, 16384), c_batch(1, 1, 24, 56, 57344))[1])
    st = st1 + st2
    for q in range(9):
        sched[F0 + 3 + 2 * q].extend(st[3 * q:3 * q + 3])
    at(76 - depth - 3, lambda: (g.wait(tb2), cnt_add(1)))
    t2_ = at(76 - depth - 2, lambda: cnt_issue(1))
    at(76 - depth - 1, lambda: cnt_check(1, t2_))
    at(56, lambda: cnt_add(2))
    t = at(72, lambda: cnt_issue(2))
    at(73, lambda: cnt_check(2, t))
    for m in range(5):
        at(73 + 2 * m, lambda: wd_dma(m))
    tM = refill(4, 84, lambda: [wd_dma(m) for m in range(5, 12)][-1], None)
    if "not2" not in EXP and "t2b" not in EXP:
        at(int(os.environ.get("T2", "40")), touch2)

    def h_issue_from(c0):
        def f():
            tl = []
            for c in range(c0, 28):
                if c % 4 == 0:
                    I(f"s_add_u32 s{sT2}, s{sWB}, {c*1024}")
                tl.append(I(f"buffer_load_dwordx4 {vr(HF+4*c,4)}, v{vL16}, {srd(sWS)}, s{sT2} offen offset:{(c%4)*1024} sc1"))
            return tl
        return f

    def hcheck(q):
        lr, lb = g.newlabel("L_hr"), g.newlabel("L_hb")
        g.wait(th[4 * q + 3])
        sent_check([HF + 4 * c for c in range(4 * q, 4 * q + 4)], vT1)
        I(f"s_cmp_lg_u64 vcc, 0")
        I(f"s_cbranch_scc1 {lr}")
        g.label(lb)
        g.begin()
        g.label(lr)
        check_loop(h_issue_from(4 * q), [HF + 4 * c for c in range(4 * q, 28)], vT1)
        I(f"s_branch {lb}")
        tails.append(g.end())
    t1 = at(54, lambda: cs_read(TM, 0, 0))
    t2 = at(55, lambda: cs_read(CS2, 1, 0))
    def epiA():
        g.wait(t2)
        for i in range(16):
            I(f"v_fmac_f32 v{A_+i}, v{NMU}, v{TM+i}")
        for i in range(16):
            I(f"v_fmac_f32 v{B_+i}, v{NMU}, v{CS2+i}")
        for i in range(16):
            I(f"v_mul_f32 v{TM+i}, v{A_+i}, v{A_+i}")
        for i in range(16):
            I(f"v_fma_f32 v{TM+i}, v{TM+i}, v{K2}, v{K1}")
        for i in range(16):
            I(f"v_mul_f32 v{TM+i}, v{TM+i}, v{A_+i}")
        for i in range(16):
            I(f"v_mul_f32 v{B_+i}, v{B_+i}, v{A_+i}")

    def epiB():
        for i in range(16):
            I(f"v_exp_f32 v{TM+i}, v{TM+i}")
        for i in range(16):
            I(f"v_fma_f32 v{TM+i}, v{TM+i}, v{IR2}, v{IR2}")
        for i in range(16):
            I(f"v_rcp_f32 v{TM+i}, v{TM+i}")
        for i in range(16):
            I(f"v_mul_f32 v{B_+i}, v{B_+i}, v{TM+i}")
        for i in range(8):
            I(f"v_cvt_pk_bf16_f32 v{CS2+i}, v{B_+2*i}, v{B_+2*i+1}")
        I(f"buffer_store_dwordx4 {vr(CS2,4)}, v{vL16}, {srd(sWS)}, s{sHB} offen sc1")
        return I(f"buffer_store_dwordx4 {vr(CS2+4,4)}, v{vL16}, {srd(sWS)}, s{sHB} offen offset:1024 sc1")
    st, _ = cap(epiA)
    e = flow(st, 57)
    assert e < 83, e
    st, tst0 = cap(epiB)
    e = flow(st, e)
    t1 = at(max(e, 85), lambda: cs_read(TM, 0, 1))
    t2 = at(min(e + 9, 109), lambda: cs_read(CS2, 1, 1))
    st, _ = cap(lambda: gpart(C_, t1))
    flow(st, max(e, 85) + 2)
    def flag_issue():
        I(f"s_lshl_b32 s{sT0}, s{sGB}, 8")
        I(f"s_add_u32 s{sT0}, s{sT0}, {WS_CNT + CNT_HH * 4096}")
        return I(f"buffer_load_dword v{vT4}, off, {srd(sWS)}, s{sT0} sc1")
    print("slot loads:", " ".join("%.0f" % load[i] for i in range(NS)), "rest", len(rest))
    for i in range(depth):
        rd(i)
    for i in range(NS):
        acc, off, c = slots[i]
        if i + depth < NS:
            rd(i + depth)
        if PRC and i % PRC == 0:
            I(f"s_setprio {3 - (i // PRC) % 4}")
        if i < 56 and i % 8 == 0:
            hcheck(i // 8)
        g.wait(tok[i])
        I(f"v_mfma_f32_32x32x16_bf16 {vr(acc,16)}, {vr(WFc+4*(i%nb),4)}, {vr(HF+4*c,4)}, {'0' if c == 0 else vr(acc,16)}")
        g.put(sched[i])
        if i in (55, 83, 111):
            stamp(f"slot{i}")
    g.put(rest)
    tlast = upart(A_, t2, 1)
    stamp("hh stored")
    DACC = 184
    frag = {n: 16 + 8 * (n % 7) for n in range(14)}
    abuf = {c: 72 + 8 * c for c in range(14)}
    ta = {}
    vP = {(sL5, 114688): (vT0, vT1), (sL2, 0): (vT2, vT3), (sL3, 16384): (vT4, vT5), (sL3, 90112): (vINIT, vCNT - 0), (sL4, 57344): (252, 15)}
    vP[(sL3, 90112)] = (vG, vM16)
    dt_pattern(vFLAG, vT0, vT1)
    for (sreg, base), (a0, a1) in vP.items():
        I(f"v_add_u32 v{a0}, s{sreg}, v{vFLAG}")
        if base:
            I(f"v_add_u32 v{a0}, {base}, v{a0}")
        I(f"v_xor_b32 v{a1}, 64, v{a0}")

    def wd_read(m):
        n, rd_ = m // 2, m % 2
        sreg, imm = wslot[m]
        key = max((k for k in vP if k[0] == sreg and k[1] <= imm), key=lambda k: k[1])
        a = vP[key]
        imm -= key[1]
        t = None
        for nt in range(2):
            t = I(f"ds_read_b64_tr_b16 {vr(frag[n]+4*nt+2*rd_,2)}, v{a[nt]} offset:{imm}")
        return t

    def lda(c):
        for mt in range(2):
            I(f"s_add_u32 s{sT1}, s{sRA[c % 7]}, {mt*112*1024 + (4096 if c >= 7 else 0)}")
            ta[c, mt] = I(f"buffer_load_dwordx4 {vr(abuf[c]+4*mt,4)}, v{vL16}, {srd(sWS)}, s{sT1} offen sc1")

    def mm(c, first):
        for mt in range(2):
            g.wait(ta[c, mt])
            for nt in range(2):
                a = DACC + (mt * 2 + nt) * 16
                I(f"v_mfma_f32_32x32x16_bf16 {vr(a,16)}, {vr(frag[c]+4*nt,4)}, {vr(abuf[c]+4*mt,4)}, {'0' if first else vr(a,16)}")
    I("s_setprio 3")
    g.wait(tM)
    t = None
    for m in range(12):
        t = wd_read(m)
    g.wait(t)
    twd = {}
    for m in range(19, 28):
        twd[m] = wd_dma(m)
        if m == 22:
            th_ = hsig_issue(6, [tlast])
            hsig_check(0, th_)
    I("s_barrier")
    for m in range(12, 19):
        twd[m] = wd_dma(m)
    stamp("wd issued")
    I("s_setprio 0")
    lab = g.newlabel("L_fp")
    I(f"s_cmp_lg_u32 s{sW}, 0")
    I(f"s_cbranch_scc1 {lab}")
    g.cond_begin()
    hh_poll(0)
    g.cond_end()
    g.label(lab)
    I("s_barrier")
    stamp("hh flag")
    for c in range(14):
        lda(c)
    tmain = dict(ta)
    HR = 248
    I(f"v_bfe_u32 v{vFLAG}, v0, 3, 5")
    I(f"v_lshlrev_b32 v{vFLAG}, 4, v{vFLAG}")
    I(f"v_and_b32 v{vCNT}, 7, v0")
    I(f"v_lshl_add_u32 v{vFLAG}, v{vCNT}, 9, v{vFLAG}")
    I(f"s_add_u32 s{sE}, s{sMD}, s{sWH}")
    I(f"s_mul_i32 s{sE}, s{sE}, {28*1024}")
    I(f"s_lshl_b32 s{sT1}, s{sCB}, 12")
    I(f"s_add_u32 s{sE}, s{sE}, s{sT1}")
    I(f"s_add_u32 s{sE}, s{sE}, {WS_H}")
    hold = {}

    def acheck(c0, c1):
        g.wait(tmain[c0, 0])
    tr_ = {}
    groups = [(0, 2), (2, 4), (4, 7), (7, 9), (9, 11), (11, 14)]
    for (c0, c1) in groups:
        acheck(c0, c1)
        if c0 == 0:
            wd_read(12)
            tr_[6] = wd_read(13)
            hold["thr"] = I(f"buffer_load_dwordx4 {vr(HR,4)}, v{vFLAG}, {srd(sWS)}, s{sE} offen sc1")
        for c in range(c0, c1):
            if c in tr_:
                g.wait(tr_[c])
            mm(c, c == 0)
            if c < 7:
                wd_read(2 * (c + 7))
                tr_[c + 7] = wd_read(2 * (c + 7) + 1)
        if c1 == 7:
            stamp("D early")
        if c0 == 7:
            g.wait_all(vm=False)
            I("s_barrier")
            I(f"v_and_b32 v{vT0}, 7, v0")
            I(f"v_lshrrev_b32 v{vT1}, 3, v0")
            I(f"s_mul_i32 s{sT0}, s{sW}, {64*272}")
            I(f"v_mul_u32_u24 v{vT3}, 272, v{vM}")
            I(f"v_lshl_add_u32 v{vT3}, v{vHB}, 4, v{vT3}")
            I(f"v_add_u32 v{vT3}, s{sT0}, v{vT3}")
            I(f"v_mul_u32_u24 v{vT4}, 272, v{vT1}")
            I(f"v_lshl_add_u32 v{vT4}, v{vT0}, 5, v{vT4}")
            I(f"v_add_u32 v{vT5}, {4*64*272}, v{vT4}")
            I(f"v_mul_u32_u24 v{vT2}, 896, v{vT1}")
            I(f"v_lshl_add_u32 v{vT2}, v{vT0}, 4, v{vT2}")
            I(f"s_mul_i32 s{sT0}, s{sMD}, {32*896}")
            I(f"s_lshl_b32 s{sT2}, s{sCB}, 7")
            I(f"s_add_u32 s{sT0}, s{sT0}, s{sT2}")
    stamp("D mfma")
    for mt in range(2):
        for nt in range(2):
            for q in range(4):
                I(f"ds_write_b128 v{vT3}, {vr(DACC+(mt*2+nt)*16+4*q,4)} offset:{mt*32*272 + nt*128 + q*32}")
    g.wait(hold["thr"])
    U = 88
    for i in range(4):
        I(f"v_lshlrev_b32 v{U+2*i}, 16, v{HR+i}")
        I(f"v_and_b32 v{U+2*i+1}, 0xffff0000, v{HR+i}")
    g.wait_all(vm=False)
    I("s_barrier")
    R = 16
    for w in range(8):
        for q in range(2):
            I(f"ds_read_b128 {vr(R+w*8+q*4,4)}, v{vT4 if w < 4 else vT5} offset:{(w%4)*64*272 + q*16}")
    g.wait_all(vm=False)
    for k in (32, 16, 8):
        for i in range(k):
            I(f"v_add_f32 v{R+i}, v{R+i}, v{R+k+i}")
    for i in range(8):
        I(f"v_add_f32 v{R+i}, v{R+i}, v{U+i}")
    for i in range(4):
        I(f"v_cvt_pk_bf16_f32 v{R+8+i}, v{R+2*i}, v{R+2*i+1}")
    I(f"buffer_store_dwordx4 {vr(R+8,4)}, v{vT2}, {srd(sOUT)}, s{sT0} offen")
    stamp("end")
    stamp("rt1", rt=True)
    if "span" in EXP:
        I(f"s_cmp_lg_u32 s{sW}, 7")
        I("s_cbranch_scc1 L_end")
        I("s_and_b32 s90, s2, 7")
        I("s_cmp_lg_u32 s90, 3")
        I("s_cbranch_scc1 L_end")
        I("s_waitcnt vmcnt(0)")
        I("s_memrealtime s[90:91]")
        I("s_memtime s[92:93]")
        I("s_waitcnt lgkmcnt(0)")
        I("s_mov_b64 exec, 1")
        I("s_not_b32 s86, s86")
        I("s_sub_u32 s92, s92, s100")
        I("v_mov_b32 v20, s86")
        I("v_mov_b32 v21, s90")
        I("v_mov_b32 v22, s92")
        I(f"buffer_atomic_umax v20, off, {srd(sDBG)}, 0 offset:4 sc1")
        I(f"buffer_atomic_umax v21, off, {srd(sDBG)}, 0 offset:8 sc1")
        I(f"buffer_atomic_umax v22, off, {srd(sDBG)}, 0 offset:12 sc1")


prologue()
two = phaseA()
twd = phaseB(two)
phaseCD(twd)
g.label("L_end")
I("s_endpgm")
for tl_ in TAILS:
    g.put(tl_)
g.insert_bg()
g.resolve_waits()
g.fix_hazards_fast()

hdr = open("cdna_kernels/" + NAME + ".s.ref").read().split("; Override launch geometry")[0]
out = hdr + f"""; @launch grid=(256,1,1) block=(512,1,1) lds=163840
.amdgcn_target "amdgcn-amd-amdhsa--gfx950"
.text
.globl {NAME}_kernel
.p2align 8
.type {NAME}_kernel,@function
{NAME}_kernel:
L_code_start:
{g.text()}
L_code_end:
.fill 64, 4, 0xbf800000
.section .rodata,"a"
.p2align 6
.amdhsa_kernel {NAME}_kernel
  .amdhsa_next_free_vgpr 256
  .amdhsa_next_free_sgpr 102
  .amdhsa_accum_offset 256
  .amdhsa_group_segment_fixed_size 0
  .amdhsa_kernarg_size 88
  .amdhsa_user_sgpr_count 2
  .amdhsa_user_sgpr_kernarg_segment_ptr 1
  .amdhsa_system_sgpr_workgroup_id_x 1
.end_amdhsa_kernel
"""
import subprocess, re as _re
open("_sz.s", "w").write(out.replace("CODE_LAST", "0x1000"))
subprocess.run(["clang", "-x", "assembler", "-target", "amdgcn-amd-amdhsa", "-mcpu=gfx950", "-c", "_sz.s", "-o", "_sz.o"], check=True)
_h = subprocess.run(["llvm-objdump", "-h", "_sz.o"], capture_output=True, text=True).stdout
_sz = int(_re.search(r"\.text\s+([0-9a-f]+)", _h).group(1), 16)
out = out.replace("CODE_LAST", hex(_sz - 768))
print("code bytes", _sz)
open(sys.argv[1], "w").write(out)
if STAMPS:
    open(sys.argv[1] + ".names", "w").write("\n".join(stamp_names))
print("instrs:", sum(1 for it in g.items if it.kind == "i"), "stamps:", nstamp[0])
```

```python
import sys, math, struct, os
sys.path.insert(0, "dev")
from gen import *

NAME = "sequential_preLN__linear_kernel_hedgehog__glu_gated_geglu__prompt"
STAMPS = int(sys.argv[2]) if len(sys.argv) > 2 else 0
EXP = sys.argv[3].split(",") if len(sys.argv) > 3 else []


def f32(x):
    return "0x%08x" % struct.unpack("<I", struct.pack("<f", x))[0]


WS_CNT = 0x0
WS_CS = 0x10000
WS_ST = 0x50000
WS_KVP = 0x100000
WS_O = 0x200000
WS_H = 0x400000
WS_HH = 0x600000
WS_STAMP = 0xE00000
CNT_KV, CNT_O, CNT_H, CNT_HH = 0, 1, 2, 3

sX, sWQKV, sWPHI, sWO, sWG, sWU, sWD, sOUT, sDBG, sWS = 8, 12, 16, 20, 24, 28, 32, 36, 40, 44
sG, sJ, sW = 48, 49, 50
sT0, sT1, sT2, sT3, sT4, sT5 = 51, 52, 53, 54, 55, 56
sW3, sWH = 57, 58
sA, sB, sC, sD, sE = 59, 60, 61, 62, 63
sSTAMP = 86
sGATH, sWB, sCW, sCL, sLOG = 88, 89, 90, 91, 92
sGB, sJB, sJC, sLI, sXC, sLW, sSTO = 93, 94, 95, 96, 97, 98, 99
OOB = 0x7ff00000
sBG, sWOB, sKVS, sOS, sHS, sSS, sHHS = 68, 70, 71, 72, 73, 74, 75


def srd(r):
    return f"s[{r}:{r+3}]"


def vr(a, n=1):
    return f"v{a}" if n == 1 else f"v[{a}:{a+n-1}]"


def ar(a, n=1):
    return f"a{a}" if n == 1 else f"a[{a}:{a+n-1}]"


g = Gen()
I = g.I
nstamp = [0]
stamp_names = []

vLANE, vG, vM16 = 1, 2, 3
vL16 = 4
vT0, vT1, vT2, vT3, vT4, vT5 = 5, 6, 7, 8, 9, 10
vFLAG, vONE, vCNT, vINIT, vDMY = 11, 12, 13, 14, 15


def stamp(name="", rt=False):
    if not STAMPS:
        return
    k = nstamp[0]
    nstamp[0] += 1
    stamp_names.append(name)
    g.cond_begin()
    I(f"{'s_memrealtime' if rt else 's_memtime'} s[{sSTAMP}:{sSTAMP+1}]")
    I("s_waitcnt lgkmcnt(0)")
    I(f"v_mov_b32 v{vCNT}, s{sSTAMP}")
    I(f"buffer_store_dword v{vCNT}, off, {srd(sWS)}, s{sSTO} offset:{4*k}")
    g.cond_end()


UNIT = 14336
LDS_WK = 8 * UNIT
LDS_KVF = 11 * UNIT
LDS_CS = LDS_KVF + 4096
LDS_FLG = LDS_CS + 1024
LDS_WPL = 10 * UNIT + 8192
LDS_KV2 = 8 * UNIT + 24576 + 4096
LDS_BSCR = 6 * UNIT


def prologue():
    I("s_cmp_ge_u32 s2, 256")
    I("s_cbranch_scc1 L_end")
    I("s_setprio 3")
    if "span" in EXP:
        I("s_memrealtime s[86:87]")
        I("s_memtime s[100:101]")
    I(f"s_load_dwordx2 s[{sX}:{sX+1}], s[0:1], 0")
    I("s_getpc_b64 s[4:5]")
    I(f"v_lshlrev_b32 v{vINIT}, 7, v0")
    I(f"s_and_b32 s{sT5}, s2, 24")
    I(f"s_cmp_eq_u32 s{sT5}, 0")
    I(f"s_cselect_b32 s{sT5}, CODE_LAST, 0")
    I(f"v_min_u32 v{vINIT}, s{sT5}, v{vINIT}")
    if "cp0" in EXP:
        I(f"global_load_dword v{vDMY}, v{vINIT}, s[4:5]")
    I("s_load_dwordx16 s[64:79], s[0:1], 0")
    I("s_load_dwordx4 s[80:83], s[0:1], 64")
    I("s_load_dwordx2 s[84:85], s[0:1], 80")
    I(f"v_and_b32 v{vLANE}, 63, v0")
    I(f"v_lshrrev_b32 v{vT0}, 6, v0")
    I(f"v_readfirstlane_b32 s{sW}, v{vT0}")
    I(f"v_lshrrev_b32 v{vG}, 4, v{vLANE}")
    I(f"s_bfe_u32 s{sT0}, s2, 0x20001")
    I(f"s_lshl_b32 s{sT0}, s{sT0}, 2")
    I(f"s_bfe_u32 s{sT1}, s2, 0x20003")
    I(f"s_add_u32 s{sG}, s{sT0}, s{sT1}")
    I(f"s_mov_b32 s{sX+2}, 1835008")
    I(f"s_mov_b32 s{sX+3}, 0x20000")
    I(f"v_lshrrev_b32 v{vT0}, 3, v{vLANE}")
    I(f"v_mul_u32_u24 v{vT0}, 896, v{vT0}")
    I(f"v_and_b32 v{vT1}, 7, v{vLANE}")
    I(f"v_xor_b32 v{vT3}, v{vT1}, v{vG}")
    I(f"v_lshl_add_u32 v{vXA0}, v{vT3}, 4, v{vT0}")
    I(f"v_xor_b32 v{vT3}, 4, v{vT3}")
    I(f"v_lshl_add_u32 v{vXA1}, v{vT3}, 4, v{vT0}")
    I(f"s_lshl_b32 s{sA}, s{sG}, 3")
    I(f"s_add_u32 s{sA}, s{sA}, s{sW}")
    I(f"s_mul_i32 s{sB}, s{sA}, {16*896}")
    I(f"s_add_u32 s{sC}, s{sB}, {8*896}")
    I(f"s_mul_i32 s{sLW}, s{sW}, {UNIT}")
    I(f"s_and_b32 s{sT2}, s2, 1")
    I(f"s_lshl_b32 s{sT3}, s{sT2}, 3")
    I(f"s_lshr_b32 s{sT4}, s2, 5")
    I(f"s_add_u32 s{sJ}, s{sT3}, s{sT4}")
    I(f"s_lshl_b32 s{sCL}, s{sW}, 10")
    I(f"v_lshrrev_b32 v{vT0}, 2, v{vLANE}")
    I(f"v_mul_u32_u24 v{vT0}, 2688, v{vT0}")
    I(f"v_and_b32 v{vT1}, 3, v{vLANE}")
    I(f"v_and_b32 v{vT2}, 2, v{vG}")
    I(f"v_xor_b32 v{vT1}, v{vT1}, v{vT2}")
    I(f"v_lshl_add_u32 v{vWA}, v{vT1}, 4, v{vT0}")
    I(f"s_mul_i32 s{sWB}, s{sJ}, 56")
    I(f"s_and_b32 s{sT1}, s{sJ}, 1")
    I(f"s_lshl_b32 s{sT1}, s{sT1}, 3")
    I(f"s_sub_u32 s{sWB}, s{sWB}, s{sT1}")
    I(f"s_mul_i32 s{sD}, s{sW}, {16*2688}")
    I(f"s_add_u32 s{sD}, s{sD}, s{sWB}")
    I(f"s_mov_b32 s{sWQKV+2}, 1204224")
    I(f"s_mov_b32 s{sWQKV+3}, 0x20000")
    if "t0" in EXP:
        I(f"s_lshr_b32 s{sLI}, s2, 3")
        I(f"s_mul_i32 s{sT2}, s{sLI}, {14*2688}")
        I(f"s_and_b32 s{sT3}, s2, 1")
        I(f"s_mul_i32 s{sT3}, s{sT3}, 384")
        I(f"s_add_u32 s{sT2}, s{sT2}, s{sT3}")
        I(f"s_mul_i32 s{sT3}, s{sW}, 896")
        I(f"s_add_u32 s{sT2}, s{sT2}, s{sT3}")
        I(f"s_cmp_ge_u32 s{sW}, 3")
        I(f"s_cselect_b32 s{sT3}, {OOB}, 0")
        I(f"s_add_u32 s{sT2}, s{sT2}, s{sT3}")
        I(f"v_lshrrev_b32 v{vT0}, 2, v{vLANE}")
        I(f"v_min_u32 v{vT0}, 13, v{vT0}")
        I(f"v_mul_u32_u24 v{vT0}, 2688, v{vT0}")
        I(f"v_and_b32 v{vT1}, 3, v{vLANE}")
        I(f"v_lshl_add_u32 v{vT4}, v{vT1}, 7, v{vT0}")
        I(f"s_mul_i32 s{sT4}, s{sT0}, 114688")
        I(f"s_mul_i32 s{sT5}, s{sLI}, 14336")
        I(f"s_add_u32 s{sT4}, s{sT4}, s{sT5}")
        I(f"s_sub_u32 s{sT5}, s{sW}, 3")
        I(f"s_cmp_lt_u32 s{sT5}, 2")
        I(f"s_cselect_b32 s{sT3}, 0, {OOB}")
        I(f"s_mul_i32 s{sT5}, s{sT5}, 7168")
        I(f"s_and_b32 s{sT5}, s{sT5}, 0x3fff")
        I(f"s_add_u32 s{sT4}, s{sT4}, s{sT5}")
        I(f"s_add_u32 s{sT4}, s{sT4}, s{sT3}")
        I(f"v_min_u32 v{vT5}, 55, v{vLANE}")
        I(f"v_lshlrev_b32 v{vT5}, 7, v{vT5}")
        I(f"s_mov_b32 s{sWQKV+2}, 1204224")
        I(f"s_mov_b32 s{sWQKV+3}, 0x20000")
    I("s_waitcnt lgkmcnt(0)")
    I(f"s_mov_b64 s[{sWQKV}:{sWQKV+1}], s[66:67]")
    if "t0" in EXP:
        I(f"buffer_load_dword v{vDMY}, v{vT5}, {srd(sX)}, s{sT4} offen")
        I(f"buffer_load_dword v{vDMY}, v{vT4}, {srd(sWQKV)}, s{sT2} offen")


def prologue2():
    I(f"v_and_b32 v{vM16}, 15, v{vLANE}")
    I(f"v_lshlrev_b32 v{vL16}, 4, v{vLANE}")
    I(f"v_mov_b32 v{vONE}, 1")
    I(f"s_and_b32 s{sXC}, s2, 7")
    I(f"s_lshr_b32 s{sLI}, s2, 3")
    I(f"s_and_b32 s{sT2}, s{sXC}, 1")
    I(f"s_lshl_b32 s{sT3}, s{sT2}, 3")
    I(f"s_lshr_b32 s{sT4}, s{sLI}, 2")
    I(f"s_add_u32 s{sJ}, s{sT3}, s{sT4}")
    I(f"s_lshl_b32 s{sGB}, s{sXC}, 1")
    I(f"s_and_b32 s{sT5}, s{sLI}, 1")
    I(f"s_add_u32 s{sGB}, s{sGB}, s{sT5}")
    I(f"s_lshr_b32 s{sJB}, s{sLI}, 1")
    I(f"s_mul_i32 s{sJC}, s{sT2}, 7")
    I(f"s_add_u32 s{sJC}, s{sJC}, s{sT4}")
    I(f"s_cmp_eq_u32 s{sT4}, 7")
    I(f"s_cselect_b32 s{sJC}, 15, s{sJC}")
    I(f"s_and_b32 s{sW3}, s{sW}, 3")
    I(f"s_lshr_b32 s{sWH}, s{sW}, 2")
    I(f"s_lshl_b32 s{sCL}, s{sW}, 10")
    for r, p, n in ((sWQKV, 66, 1204224), (sWPHI, 68, 25088), (sWO, 70, 401408),
                    (sWG, 74, 1605632), (sWU, 76, 1605632), (sWD, 78, 1605632), (sOUT, 80, 1835008),
                    (sDBG, 82, 256), (sWS, 84, 0x10000000)):
        I(f"s_mov_b64 s[{r}:{r+1}], s[{p}:{p+1}]")
        I(f"s_mov_b32 s{r+2}, {n}")
        I(f"s_mov_b32 s{r+3}, 0x20000")
    if STAMPS:
        I(f"s_lshl_b32 s{sSTO}, s2, 3")
        I(f"s_add_u32 s{sSTO}, s{sSTO}, s{sW}")
        I(f"s_lshl_b32 s{sSTO}, s{sSTO}, 7")
        I(f"s_add_u32 s{sSTO}, s{sSTO}, {WS_STAMP}")


POLL_MAX = 200000


def poll(srdreg, voff, target):
    lp, ld = g.newlabel("L_poll"), g.newlabel("L_pdone")
    I(f"s_mov_b32 s{sT5}, 0")
    g.label(lp)
    I(f"buffer_load_dword v{vFLAG}, v{voff}, {srd(srdreg)}, 0 offen sc1")
    I("s_waitcnt vmcnt(0)")
    I(f"v_readfirstlane_b32 s{sT4}, v{vFLAG}")
    I(f"s_add_u32 s{sT5}, s{sT5}, 1")
    I(f"s_cmp_ge_u32 s{sT5}, {POLL_MAX}")
    I(f"s_cbranch_scc1 {ld}")
    I(f"s_cmp_lt_u32 s{sT4}, {target}")
    I(f"s_cbranch_scc1 {lp}")
    g.label(ld)


def signal(kind, sidx, toks, first=False):
    g.wait(*toks)
    I("s_barrier")
    lab = g.newlabel("L_sig")
    I(f"s_cmp_lg_u32 s{sW}, 0")
    I(f"s_cbranch_scc1 {lab}")
    g.cond_begin()
    I("s_mov_b64 exec, 1")
    if first:
        l2 = g.newlabel("L_ini")
        I(f"v_readfirstlane_b32 s{sT4}, v{vINIT}")
        I(f"s_cmp_lg_u32 s{sT4}, 0")
        I(f"s_cbranch_scc1 {l2}")
        I(f"v_mov_b32 v{vCNT}, 0")
        poll(sDBG, vCNT, 1)
        g.label(l2)
    I(f"s_lshl_b32 s{sT0}, s{sidx}, 8")
    I(f"s_add_u32 s{sT0}, s{sT0}, {WS_CNT + kind * 4096}")
    I(f"v_mov_b32 v{vCNT}, s{sT0}")
    I(f"buffer_atomic_add v{vONE}, v{vCNT}, {srd(sWS)}, 0 offen sc1")
    I("s_mov_b64 exec, -1")
    g.cond_end()
    g.label(lab)


def waitflag(kind, sidx, target=16):
    lab = g.newlabel("L_w")
    I(f"s_cmp_lg_u32 s{sW}, 0")
    I(f"s_cbranch_scc1 {lab}")
    g.cond_begin()
    I("s_mov_b64 exec, 1")
    I(f"s_lshl_b32 s{sT0}, s{sidx}, 8")
    I(f"s_add_u32 s{sT0}, s{sT0}, {WS_CNT + kind * 4096}")
    I(f"v_mov_b32 v{vCNT}, s{sT0}")
    poll(sWS, vCNT, target)
    I("s_mov_b64 exec, -1")
    g.cond_end()
    g.label(lab)
    I("s_barrier")


def dma2(vaddr, srdreg, sbase, src_imm, lds_sreg, lds_imm, stmp=None):
    stmp = sT1 if stmp is None else stmp
    I(f"s_add_u32 m0, s{lds_sreg}, {lds_imm}")
    I(f"s_add_u32 s{stmp}, s{sbase}, {src_imm}")
    return I(f"buffer_load_dwordx4 v{vaddr}, {srd(srdreg)}, s{stmp} offen lds")


def xreduce(op, a, t, levels=(16, 32)):
    for lv in levels:
        I(f"v_mov_b32 v{t}, v{a}")
        I(f"v_permlane{lv}_swap_b32 v{a}, v{t}")
        I(f"{op} v{a}, v{a}, v{t}")


LOG2E = 1.4426950408889634

XF = 16
WR = 72
WPHI = 100
WPH2 = 108
SEL = 116
ACC = 124
ACCV = 132
WF = 140
TMP = 172
PH = 196
vXA0, vXA1, vWA, vTR, vXR0, vXR1, vCA = 204, 205, 206, 207, 208, 209, 252
vTRb, vTRc, vWOA = 211, 212, 213


def chain16(acc, rd, swap=False, depth=3, hook=None):
    toks = {}
    nb = depth + 1
    n = 14
    for c in range(depth):
        toks[c] = rd(c, WF + 8 * (c % nb))
    for c in range(n):
        if c + depth < n:
            toks[c + depth] = rd(c + depth, WF + 8 * ((c + depth) % nb))
        g.wait(toks[c])
        X = vr(XF + 4 * c, 4)
        for t in range(2):
            W = vr(WF + 8 * (c % nb) + 4 * t, 4)
            a = vr(acc + 4 * t, 4)
            C = a if c > 0 else "0"
            if swap:
                I(f"v_mfma_f32_16x16x32_bf16 {a}, {X}, {W}, {C}")
            else:
                I(f"v_mfma_f32_16x16x32_bf16 {a}, {W}, {X}, {C}")
        if hook is not None:
            hook(c)


def featmap(acc, out):
    pk = TMP
    p = acc
    e = TMP + 4
    mx, mn, t0, t1 = TMP + 12, TMP + 13, TMP + 14, TMP + 15
    for i in range(4):
        I(f"v_cvt_pk_bf16_f32 v{pk+i}, v{acc+2*i}, v{acc+2*i+1}")
    I(f"v_mfma_f32_16x16x32_bf16 {vr(p,4)}, {vr(WPHI,4)}, {vr(pk,4)}, 0")
    I(f"v_mfma_f32_16x16x32_bf16 {vr(p+4,4)}, {vr(WPHI+4,4)}, {vr(pk,4)}, 0")
    I(f"v_max3_f32 v{mx}, v{p}, v{p+1}, v{p+2}")
    I(f"v_min3_f32 v{mn}, v{p}, v{p+1}, v{p+2}")
    for i in (3, 5):
        I(f"v_max3_f32 v{mx}, v{mx}, v{p+i}, v{p+i+1}")
        I(f"v_min3_f32 v{mn}, v{mn}, v{p+i}, v{p+i+1}")
    for lv in (16, 32):
        I(f"v_mov_b32 v{t0}, v{mx}")
        I(f"v_mov_b32 v{t1}, v{mn}")
        I(f"v_permlane{lv}_swap_b32 v{mx}, v{t0}")
        I(f"v_permlane{lv}_swap_b32 v{mn}, v{t1}")
        I(f"v_max_f32 v{mx}, v{mx}, v{t0}")
        I(f"v_min_f32 v{mn}, v{mn}, v{t1}")
    I(f"v_mul_f32 v{mx}, {f32(-LOG2E)}, v{mx}")
    I(f"v_mul_f32 v{mn}, {f32(LOG2E)}, v{mn}")
    e2 = TMP + 16
    for i in range(7):
        I(f"v_fma_f32 v{e+i}, v{p+i}, s{sLOG}, v{mx}")
        I(f"v_fma_f32 v{e2+i}, -v{p+i}, s{sLOG}, v{mn}")
    for i in range(7):
        I(f"v_exp_f32 v{e+i}, v{e+i}")
        I(f"v_exp_f32 v{e2+i}, v{e2+i}")
    I(f"v_add_f32 v{mx}, v{e}, v{e+1}")
    I(f"v_add_f32 v{mn}, v{e2}, v{e2+1}")
    for i in range(2, 7):
        I(f"v_add_f32 v{mx}, v{mx}, v{e+i}")
        I(f"v_add_f32 v{mn}, v{mn}, v{e2+i}")
    for lv in (16, 32):
        I(f"v_mov_b32 v{t0}, v{mx}")
        I(f"v_mov_b32 v{t1}, v{mn}")
        I(f"v_permlane{lv}_swap_b32 v{mx}, v{t0}")
        I(f"v_permlane{lv}_swap_b32 v{mn}, v{t1}")
        I(f"v_add_f32 v{mx}, v{mx}, v{t0}")
        I(f"v_add_f32 v{mn}, v{mn}, v{t1}")
    I(f"v_rcp_f32 v{mx}, v{mx}")
    I(f"v_rcp_f32 v{mn}, v{mn}")
    for i in range(7):
        I(f"v_mul_f32 v{e+i}, v{e+i}, v{mx}")
        I(f"v_mul_f32 v{e2+i}, v{e2+i}, v{mn}")
    for i in range(3):
        I(f"v_cvt_pk_bf16_f32 v{out+i}, v{e+2*i}, v{e+2*i+1}")
        I(f"v_cvt_pk_bf16_f32 v{out+4+i}, v{e2+2*i}, v{e2+2*i+1}")
    I(f"v_cvt_pk_bf16_f32 v{out+3}, v{e+6}, 0")
    I(f"v_cvt_pk_bf16_f32 v{out+7}, v{e2+6}, 0")


def c_batch(mat, dbl, n0, n1, lds_base):
    t = None
    assert n0 % 8 == 0 and n1 % 8 == 0
    for i in range(n0 // 8, n1 // 8):
        t = dma2(vCA, sWG if mat == 0 else sWU, sCW, i * 8 * 8 * 3584 + dbl * 128, sCL, lds_base + (i * 8 - n0) * 1024)
    return t


def c_bg(mat, dbl, n0, n1, lds_base, after, gap=150):
    t = None
    for i in range(n0 // 8, n1 // 8):
        g.begin()
        t = dma2(vCA, sWG if mat == 0 else sWU, sCW, i * 8 * 8 * 3584 + dbl * 128, sCL, lds_base + (i * 8 - n0) * 1024, stmp=sBG)
        g.bg_add(g.end(), after, gap)
        NBG[0] += 1
    return t


NBG = [0]
TWD = {}
NWDBG = [0]


def bg(fn, after=None, gap=150):
    g.begin()
    r = fn()
    g.bg_add(g.end(), after, gap)
    NBG[0] += 1
    return r


def flush():
    g.mark(f"flush:{NBG[0]}")


def check_loop(issue, regs, tmp, body=None):
    lp, ld = g.newlabel("L_dp"), g.newlabel("L_dpd")
    I(f"s_mov_b32 s{sT5}, 0")
    g.label(lp)
    toks = issue()
    if body is not None:
        body(toks)
    g.wait(toks[-1])
    rs = list(regs)
    if len(rs) == 1:
        I(f"v_cmp_eq_u32 vcc, -1, v{rs[0]}")
    else:
        first = True
        acc = None
        while rs:
            if acc is None:
                if len(rs) >= 3:
                    I(f"v_max3_u32 v{tmp}, v{rs[0]}, v{rs[1]}, v{rs[2]}")
                    rs = rs[3:]
                else:
                    I(f"v_max_u32 v{tmp}, v{rs[0]}, v{rs[1]}")
                    rs = rs[2:]
                acc = tmp
            elif len(rs) >= 2:
                I(f"v_max3_u32 v{tmp}, v{tmp}, v{rs[0]}, v{rs[1]}")
                rs = rs[2:]
            else:
                I(f"v_max_u32 v{tmp}, v{tmp}, v{rs[0]}")
                rs = rs[1:]
        I(f"v_cmp_eq_u32 vcc, -1, v{tmp}")
    I(f"s_add_u32 s{sT5}, s{sT5}, 1")
    I(f"s_cmp_ge_u32 s{sT5}, {POLL_MAX}")
    I(f"s_cbranch_scc1 {ld}")
    I(f"s_cmp_lg_u64 vcc, 0")
    I(f"s_cbranch_scc1 {lp}")
    g.label(ld)


def sent_check(regs, tmp):
    rs = list(regs)
    acc = None
    while rs:
        if acc is None:
            if len(rs) >= 3:
                I(f"v_max3_u32 v{tmp}, v{rs[0]}, v{rs[1]}, v{rs[2]}")
                rs = rs[3:]
            else:
                I(f"v_max_u32 v{tmp}, v{rs[0]}, v{rs[1]}")
                rs = rs[2:]
            acc = tmp
        elif len(rs) >= 2:
            I(f"v_max3_u32 v{tmp}, v{tmp}, v{rs[0]}, v{rs[1]}")
            rs = rs[2:]
        else:
            I(f"v_max_u32 v{tmp}, v{tmp}, v{rs[0]}")
            rs = rs[1:]
    I(f"v_cmp_eq_u32 vcc, -1, v{tmp}")


TAILS = []


def spec_load(issue, regs, tmp, body=None, filler=None):
    lr, lb = g.newlabel("L_sr"), g.newlabel("L_sb")
    toks = issue()
    if filler is not None:
        filler()
    if body is not None:
        body(toks)
    g.wait(toks[-1])
    sent_check(regs, tmp)
    I(f"s_cmp_lg_u64 vcc, 0")
    I(f"s_cbranch_scc1 {lr}")
    g.label(lb)
    g.begin()
    g.label(lr)
    check_loop(issue, regs, tmp, body)
    I(f"s_branch {lb}")
    TAILS.append(g.end())


def c_setup():
    I(f"v_lshrrev_b32 v{vT0}, 3, v{vLANE}")
    I(f"v_mul_u32_u24 v{vT1}, 3584, v{vT0}")
    I(f"v_and_b32 v{vT2}, 1, v{vG}")
    I(f"v_lshlrev_b32 v{vT2}, 2, v{vT2}")
    I(f"v_and_b32 v{vCA}, 7, v{vLANE}")
    I(f"v_xor_b32 v{vCA}, v{vCA}, v{vT2}")
    I(f"v_lshl_add_u32 v{vCA}, v{vCA}, 4, v{vT1}")
    I(f"s_cmp_ge_u32 s{sJC}, 14")
    I(f"s_cselect_b32 s{sT0}, {OOB}, 0")
    I(f"v_add_u32 v{vCA}, s{sT0}, v{vCA}")
    I(f"s_mul_i32 s{sCW}, s{sW}, {8*3584}")
    I(f"s_lshl_b32 s{sT0}, s{sJC}, 8")
    I(f"s_add_u32 s{sCW}, s{sCW}, s{sT0}")


def touch1():
    I(f"s_mul_i32 s{sT0}, s{sLI}, {98*128}")
    I(f"s_mul_i32 s{sT1}, s{sW}, {13*128}")
    I(f"s_add_u32 s{sT0}, s{sT0}, s{sT1}")
    I(f"v_lshlrev_b32 v{vT0}, 7, v{vLANE}")
    I(f"v_mov_b32 v{vT2}, {OOB}")
    I(f"v_cmp_gt_u32 vcc, 13, v{vLANE}")
    I(f"v_cndmask_b32 v{vT0}, v{vT2}, v{vT0}, vcc")
    I(f"buffer_load_dword v{vDMY}, v{vT0}, {srd(sWO)}, s{sT0} offen")
    I(f"s_lshr_b32 s{sT0}, s{sW}, 1")
    I(f"s_lshl_b32 s{sT2}, s{sT0}, 2")
    I(f"s_mul_i32 s{sT0}, s{sT0}, {4*3584}")
    I(f"s_mul_i32 s{sT1}, s{sLI}, {14*3584}")
    I(f"s_add_u32 s{sT0}, s{sT0}, s{sT1}")
    I(f"s_and_b32 s{sT1}, s{sXC}, 1")
    I(f"s_mul_i32 s{sT1}, s{sT1}, 1792")
    I(f"s_add_u32 s{sT0}, s{sT0}, s{sT1}")
    I(f"v_mul_u32_u24 v{vT0}, 3584, v{vG}")
    I(f"v_lshl_add_u32 v{vT0}, v{vM16}, 7, v{vT0}")
    I(f"v_cmp_gt_u32 vcc, 14, v{vM16}")
    I(f"v_cndmask_b32 v{vT0}, v{vT2}, v{vT0}, vcc")
    I(f"v_add_u32 v{vT1}, s{sT2}, v{vG}")
    I(f"v_cmp_gt_u32 vcc, 14, v{vT1}")
    I(f"v_cndmask_b32 v{vT0}, v{vT2}, v{vT0}, vcc")
    I(f"buffer_load_dword v{vDMY}, v{vT0}, s[4:7], s{sT0} offen")


def touch2():
    I(f"s_mul_i32 s{sT2}, s{sLI}, {392*128}")
    I(f"s_mul_i32 s{sT1}, s{sW}, {49*128}")
    I(f"s_add_u32 s{sT2}, s{sT2}, s{sT1}")
    I(f"v_lshlrev_b32 v{vT1}, 7, v{vLANE}")
    I(f"v_mov_b32 v{vT2}, {OOB}")
    I(f"v_cmp_gt_u32 vcc, 49, v{vLANE}")
    I(f"v_cndmask_b32 v{vT1}, v{vT2}, v{vT1}, vcc")
    I(f"buffer_load_dword v247, v{vT1}, {srd(sWD)}, s{sT2} offen")


sNQ, sMTB, sCSS, sMTC = 76, 77, 78, 79
vT8, vCSS, vHSA, vSSA = 210, 214, 215, 199 + 0


def addr_setup():
    I(f"s_lshl_b32 s{sGATH}, s{sJ}, 16")
    I(f"s_add_u32 s{sGATH}, s{sGATH}, {WS_KVP}")
    I(f"s_lshl_b32 s{sKVS}, s{sG}, 12")
    I(f"s_add_u32 s{sKVS}, s{sKVS}, s{sGATH}")
    I(f"s_lshl_b32 s{sOS}, s{sA}, 4")
    I(f"s_add_u32 s{sOS}, s{sOS}, s{sJ}")
    I(f"s_lshl_b32 s{sOS}, s{sOS}, 10")
    I(f"s_add_u32 s{sOS}, s{sOS}, {WS_O}")
    I(f"s_lshl_b32 s{sCSS}, s{sJC}, 4")
    I(f"s_add_u32 s{sCSS}, s{sCSS}, s{sG}")
    I(f"s_lshl_b32 s{sCSS}, s{sCSS}, 10")
    I(f"s_add_u32 s{sCSS}, s{sCSS}, {WS_CS}")
    I(f"s_and_b32 s{sNQ}, s{sJB}, 3")
    I(f"s_lshr_b32 s{sMTB}, s{sJB}, 2")
    I(f"s_lshl_b32 s{sT0}, s{sGB}, 2")
    I(f"s_add_u32 s{sMTB}, s{sMTB}, s{sT0}")
    I(f"s_mul_i32 s{sHS}, s{sMTB}, 28")
    I(f"s_lshl_b32 s{sT1}, s{sNQ}, 3")
    I(f"s_add_u32 s{sHS}, s{sHS}, s{sT1}")
    I(f"s_lshl_b32 s{sHS}, s{sHS}, 10")
    I(f"s_add_u32 s{sHS}, s{sHS}, {WS_H}")
    I(f"s_lshl_b32 s{sSS}, s{sMTB}, 2")
    I(f"s_add_u32 s{sSS}, s{sSS}, s{sNQ}")
    I(f"s_lshl_b32 s{sSS}, s{sSS}, 8")
    I(f"s_add_u32 s{sSS}, s{sSS}, {WS_ST}")
    I(f"s_lshl_b32 s{sMTC}, s{sG}, 2")
    I(f"s_add_u32 s{sMTC}, s{sMTC}, s{sW3}")
    I(f"s_mul_i32 s{sHHS}, s{sMTC}, {112*1024}")
    I(f"s_lshl_b32 s{sT0}, s{sJC}, 13")
    I(f"s_add_u32 s{sHHS}, s{sHHS}, s{sT0}")
    I(f"s_lshl_b32 s{sT0}, s{sWH}, 11")
    I(f"s_add_u32 s{sHHS}, s{sHHS}, s{sT0}")
    I(f"s_add_u32 s{sHHS}, s{sHHS}, {WS_HH}")
    I(f"s_cmp_ge_u32 s{sJC}, 14")
    I(f"s_cselect_b32 s{sT0}, {OOB}, 0")
    I(f"s_add_u32 s{sHHS}, s{sHHS}, s{sT0}")
    I(f"s_lshr_b32 s{sT0}, s{sW}, 1")
    I(f"s_lshl_b32 s{sT0}, s{sT0}, 10")
    I(f"s_and_b32 s{sT1}, s{sW}, 1")
    I(f"s_lshl_b32 s{sT1}, s{sT1}, 3")
    I(f"s_add_u32 s{sT0}, s{sT0}, s{sT1}")
    I(f"v_add_u32 v{vT8}, s{sT0}, v{vL16}")
    I(f"s_cmp_ge_u32 s{sW}, 4")
    I(f"s_cselect_b32 s{sT0}, {OOB}, 0")
    I(f"v_lshlrev_b32 v{vCSS}, 2, v0")
    I(f"v_add_u32 v{vCSS}, s{sT0}, v{vCSS}")
    I(f"s_lshl_b32 s{sT1}, s{sW}, 2")
    I(f"v_and_b32 v{vT0}, 3, v{vLANE}")
    I(f"v_add_u32 v{vT0}, s{sT1}, v{vT0}")
    I(f"v_lshrrev_b32 v{vT1}, 2, v{vLANE}")
    I(f"v_lshlrev_b32 v{vHSA}, 9, v{vT1}")
    I(f"v_lshl_add_u32 v{vHSA}, v{vT0}, 4, v{vHSA}")
    I(f"s_cmp_eq_u32 s{sNQ}, 3")
    I(f"s_cselect_b32 s{sT1}, 8, 16")
    I(f"v_cmp_gt_u32 vcc, s{sT1}, v{vT1}")
    I(f"v_mov_b32 v{vT1}, {OOB}")
    I(f"v_cndmask_b32 v{vHSA}, v{vT1}, v{vHSA}, vcc")


def stats_addr(dst, t0, t1):
    I(f"s_lshl_b32 s{sBG}, s{sW}, 5")
    I(f"v_lshlrev_b32 v{t0}, 3, v{vLANE}")
    I(f"v_add_u32 v{t0}, s{sBG}, v{t0}")
    I(f"v_mov_b32 v{t1}, {OOB}")
    I(f"v_cmp_gt_u32 vcc, 4, v{vLANE}")
    I(f"v_cndmask_b32 v{dst}, v{t1}, v{t0}, vcc")


def sentinels0():
    lab = g.newlabel("L_init")
    I(f"s_lshl_b32 s{sT0}, s2, 3")
    I(f"s_add_u32 s{sT0}, s{sT0}, s{sW}")
    I(f"s_cmp_lg_u32 s{sT0}, 7")
    I(f"s_cbranch_scc1 {lab}")
    g.cond_begin()
    I(f"v_lshlrev_b32 v{vT0}, 8, v{vLANE}")
    I(f"v_mov_b32 v{vT1}, 0")
    I(f"buffer_store_dword v{vT1}, v{vT0}, {srd(sWS)}, 0 offen sc1")
    g.cond_end()
    g.label(lab)
    SN = 216
    for i in range(4):
        I(f"v_mov_b32 v{SN+i}, -1")
    I(f"buffer_store_dwordx2 {vr(SN,2)}, v{vT8}, {srd(sWS)}, s{sKVS} offen sc1")
    I(f"buffer_store_dwordx4 {vr(SN,4)}, v{vL16}, {srd(sWS)}, s{sOS} offen sc1")


def sentinels():
    SN = 216
    I(f"buffer_store_dword v{SN}, v{vCSS}, {srd(sWS)}, s{sCSS} offen sc1")
    I(f"buffer_store_dwordx4 {vr(SN,4)}, v{vHSA}, {srd(sWS)}, s{sHS} offen sc1")
    stats_addr(SN + 4, SN + 4, SN + 5)
    return I(f"buffer_store_dwordx2 {vr(SN,2)}, v{SN+4}, {srd(sWS)}, s{sSS} offen sc1")


def sent_hh(k):
    SN = 216
    I(f"s_add_u32 s{sBG}, s{sHHS}, {(k>>1)*4096 + (k&1)*1024}")
    return I(f"buffer_store_dwordx4 {vr(SN,4)}, v{vL16}, {srd(sWS)}, s{sBG} offen sc1")


def init_signal():
    lab = g.newlabel("L_is")
    I(f"s_cmp_lg_u32 s{sW}, 5")
    I(f"s_cbranch_scc1 {lab}")
    g.cond_begin()
    I("s_mov_b64 exec, 1")
    I(f"s_and_b32 s{sT0}, s2, 15")
    I(f"s_lshl_b32 s{sT0}, s{sT0}, 4")
    I(f"v_mov_b32 v{vCNT}, s{sT0}")
    I(f"buffer_atomic_add v{vONE}, v{vCNT}, {srd(sDBG)}, 0 offen sc1")
    I("s_mov_b64 exec, -1")
    g.cond_end()
    g.label(lab)


def init_check():
    lp, ld = g.newlabel("L_ic"), g.newlabel("L_icd")
    I(f"v_lshlrev_b32 v{vCNT}, 4, v{vM16}")
    I(f"s_mov_b32 s{sT5}, 0")
    g.label(lp)
    I("s_sleep 16")
    t = I(f"buffer_load_dword v{vINIT}, v{vCNT}, {srd(sDBG)}, 0 offen sc1")
    g.wait(t)
    I(f"v_cmp_gt_u32 vcc, 16, v{vINIT}")
    I(f"s_add_u32 s{sT5}, s{sT5}, 1")
    I(f"s_cmp_ge_u32 s{sT5}, {POLL_MAX}")
    I(f"s_cbranch_scc1 {ld}")
    I(f"s_cmp_lg_u64 vcc, 0")
    I(f"s_cbranch_scc1 {lp}")
    g.label(ld)


def phaseA():
    g.comment("==== phase A ====")
    if STAMPS:
        I("s_memrealtime s[96:97]")
        I("s_memtime s[94:95]")
        I("s_waitcnt lgkmcnt(0)")
        I("v_mov_b32 v250, s96")
        I("v_mov_b32 v251, s94")
    tx = {}
    for seg in range(7):
        for o in range(2):
            I(f"s_add_u32 m0, s{sLW}, {(o*7+seg)*1024 - seg*128}")
            tx[seg] = I(f"buffer_load_dwordx4 v{vXA1 if o else vXA0}, {srd(sX)}, s{sC if o else sB} offen offset:{seg*128} lds")
    I("s_setprio 2")
    if "cp0" not in EXP and "nocp" not in EXP:
        I(f"global_load_dword v{vDMY}, v{vINIT}, s[4:5]")
    for i in range(3):
        dma2(vWA, sWQKV, sD, 896 + i * 8 * 16 * 2688, sCL, LDS_WK + i * 8192)
    prologue2()
    if STAMPS:
        for nm, r in (("rt0", 250), ("start", 251)):
            g.cond_begin()
            I(f"buffer_store_dword v{r}, off, {srd(sWS)}, s{sSTO} offset:{4*nstamp[0]}")
            g.cond_end()
            nstamp[0] += 1
            stamp_names.append(nm)
    I(f"s_mov_b32 s{sLOG}, {f32(LOG2E)}")
    bgl = []
    bt = {}

    def bg_add(name, fn):
        bgl.append((name, fn))

    def bgq(n=1):
        for _ in range(n):
            if bgl:
                name, fn = bgl.pop(0)
                bt[name] = fn()

    def wk3():
        I(f"s_cmp_ge_u32 s{sW}, 4")
        I(f"s_cselect_b32 s{sT0}, {OOB}, 0")
        I(f"s_add_u32 s{sT0}, s{sT0}, s{sD}")
        dma2(vWA, sWQKV, sT0, 896 + 3 * 8 * 16 * 2688, sCL, LDS_WK + 3 * 8192)
        I(f"v_lshlrev_b32 v{vT0}, 4, v0")
        I(f"v_mov_b32 v{vT1}, {OOB}")
        I(f"v_cmp_gt_u32 vcc, 98, v0")
        I(f"v_cndmask_b32 v{vT0}, v{vT1}, v{vT0}, vcc")
        I(f"s_min_u32 s{sT0}, s{sCL}, 2048")
        I(f"s_add_u32 m0, s{sT0}, {LDS_WPL}")
        I(f"s_mul_i32 s{sT0}, s{sJ}, 1568")
        return I(f"buffer_load_dwordx4 v{vT0}, {srd(sWPHI)}, s{sT0} offen lds")
    bg_add("wk3", wk3)
    addr_setup()
    I(f"s_cmp_ge_u32 s{sW}, 4")
    I(f"s_cselect_b32 s{sE}, {(24-4)*16*2688}, {1792 + 24*16*2688}" if False else f"s_mov_b32 s{sE}, {1792 + 24*16*2688}")
    I(f"s_cmov_b32 s{sE}, {20*16*2688}")

    I(f"s_cselect_b32 s{sKC}, 10240, 0")
    I(f"s_max_u32 s{sKC}, s{sKC}, 3072")
    I(f"s_add_u32 s{sKC}, s{sKC}, s{sLW}")
    I(f"s_add_u32 s{sE}, s{sE}, s{sD}")

    def rawW(i):
        if i == 3:
            I(f"s_mov_b32 m0, s{sKC}")
            I("s_nop 0")
            return I(f"buffer_load_dwordx4 v{vWA}, {srd(sWQKV)}, s{sE} offen lds")
        off = 1792 + i * 8 * 16 * 2688 if i < 3 else (i - 4) * 8 * 16 * 2688
        return dma2(vWA, sWQKV, sD, off, sLW, i * 1024 if i < 3 else 10240 + (i - 3) * 1024)
    for i in range(4):
        bg_add(f"w{i}", lambda i=i: rawW(i))
    I(f"v_lshrrev_b32 v{vT0}, 3, v{vM16}")
    I(f"v_mul_u32_u24 v{vT0}, 7168, v{vT0}")
    I(f"v_add_u32 v{vT0}, s{sLW}, v{vT0}")
    I(f"v_and_b32 v{vT1}, 7, v{vM16}")
    I(f"v_lshl_add_u32 v{vT0}, v{vT1}, 7, v{vT0}")
    I(f"v_lshrrev_b32 v{vT1}, 1, v{vM16}")
    I(f"v_xor_b32 v{vT1}, v{vT1}, v{vG}")
    I(f"v_lshl_add_u32 v{vXR0}, v{vT1}, 4, v{vT0}")
    I(f"v_xor_b32 v{vXR1}, 64, v{vXR0}")
    I(f"v_bfe_u32 v{vT0}, v{vLANE}, 2, 2")
    I(f"v_lshl_add_u32 v{vT0}, v{vG}, 3, v{vT0}")
    I(f"v_lshlrev_b32 v{vT0}, 6, v{vT0}")
    I(f"v_and_b32 v{vT1}, 3, v{vLANE}")
    I(f"s_and_b32 s{sT1}, s{sJ}, 1")
    I(f"v_add_u32 v{vT1}, s{sT1}, v{vT1}")
    I(f"v_and_b32 v{vT2}, 1, v{vG}")
    I(f"v_lshlrev_b32 v{vT2}, 2, v{vT2}")
    I(f"v_xor_b32 v{vT1}, v{vT1}, v{vT2}")
    I(f"v_lshl_add_u32 v{vTR}, v{vT1}, 3, v{vT0}")
    I(f"v_lshrrev_b32 v{vT0}, 2, v{vM16}")
    I(f"v_and_b32 v{vT1}, 3, v{vM16}")
    I(f"v_cmp_eq_u32 vcc, v{vT0}, v{vG}")
    I(f"v_cndmask_b32 v{vT1}, 7, v{vT1}, vcc")
    I(f"v_mov_b32 v{vT3}, 0x3f80")
    I(f"v_mov_b32 v{vT4}, 0x3f800000")
    for i in range(2):
        I(f"v_cmp_eq_u32 vcc, {2*i}, v{vT1}")
        I(f"v_cndmask_b32 v{vT2}, 0, v{vT3}, vcc")
        I(f"v_cmp_eq_u32 vcc, {2*i+1}, v{vT1}")
        I(f"v_cndmask_b32 v{SEL+i}, v{vT2}, v{vT4}, vcc")
        I(f"v_mov_b32 v{SEL+6+i}, v{SEL+i}")
    for i in (2, 3, 4, 5):
        I(f"v_mov_b32 v{SEL+i}, 0")
    S1, S2 = ACC, ACC + 4
    for i in range(8):
        I(f"v_mov_b32 v{ACC+i}, 0")
    I(f"v_mov_b32 v{vT5}, 0x3f803f80")
    I(f"v_lshlrev_b32 v{vT0}, 2, v{vLANE}")
    I(f"v_add_u32 v{vT0}, {LDS_FLG}, v{vT0}")
    I(f"ds_write_b32 v{vT0}, v{ACC}")
    tw = {}
    if "tlb" in EXP:
        STR_ = int(os.environ.get("TLBS", "16"))
        I(f"v_lshlrev_b32 v{vT0}, {STR_}, v{vLANE}")
        lend = g.newlabel("L_tl")
        tb = [(sWO, 0), (sWG, 0), (sWU, 0), (sWD, 0), (sOUT, 0), (sWS, 0), (sWS, 0x400000), (sWS, 0x800000)]
        for w_, (r, off) in enumerate(tb):
            l2 = g.newlabel("L_tl")
            if w_ < 7:
                I(f"s_cmp_lg_u32 s{sW}, {w_}")
                I(f"s_cbranch_scc1 {l2}")
                g.cond_begin()
            I(f"s_mov_b32 s{sT0}, {off}")
            I(f"buffer_load_dword v{vDMY}, v{vT0}, {srd(r)}, s{sT0} offen")
            if w_ < 7:
                g.cond_end()
                I(f"s_branch {lend}")
                g.label(l2)
        g.label(lend)
    sentinels0()
    bgq(1)
    for seg in range(7):
        g.wait(tx[seg])
        I(f"ds_read_b128 {vr(XF+8*seg,4)}, v{vXR0} offset:{seg*1024}")
        t = I(f"ds_read_b128 {vr(XF+8*seg+4,4)}, v{vXR1} offset:{seg*1024}")
        if seg in (1, 2, 3, 4):
            bgq()
        g.wait(t)
        for k in range(8):
            r = XF + 8 * seg + k
            I(f"v_dot2_f32_bf16 v{S1+k%4}, v{r}, v{vT5}, v{S1+k%4}")
            I(f"v_dot2_f32_bf16 v{S2+k%4}, v{r}, v{r}, v{S2+k%4}")
    I("s_setprio 1")
    stamp("x stats")
    I(f"v_add_f32 v{S1}, v{S1}, v{S1+1}")
    I(f"v_add_f32 v{S1+2}, v{S1+2}, v{S1+3}")
    I(f"v_add_f32 v{S2}, v{S2}, v{S2+1}")
    I(f"v_add_f32 v{S2+2}, v{S2+2}, v{S2+3}")
    I(f"v_add_f32 v{S1}, v{S1}, v{S1+2}")
    I(f"v_add_f32 v{S2}, v{S2}, v{S2+2}")
    for lv in (16, 32):
        I(f"v_mov_b32 v{S1+1}, v{S1}")
        I(f"v_mov_b32 v{S2+1}, v{S2}")
        I(f"v_permlane{lv}_swap_b32 v{S1}, v{S1+1}")
        I(f"v_permlane{lv}_swap_b32 v{S2}, v{S2+1}")
        I(f"v_add_f32 v{S1}, v{S1}, v{S1+1}")
        I(f"v_add_f32 v{S2}, v{S2}, v{S2+1}")
    I(f"v_mul_f32 v{S1}, {f32(1/448)}, v{S1}")
    I(f"v_mul_f32 v{S2}, {f32(1/448)}, v{S2}")
    I(f"v_fma_f32 v{S2}, -v{S1}, v{S1}, v{S2}")
    I(f"v_max_f32 v{S2}, 0, v{S2}")
    I(f"v_add_f32 v{S2}, {f32(1e-5)}, v{S2}")
    RS, NB = ACCV, ACCV + 2
    I(f"v_rsq_f32 v{RS}, v{S2}")
    I(f"v_mul_f32 v{NB}, v{S1}, v{RS}")
    I(f"v_sub_f32 v{NB}, 0, v{NB}")
    I(f"v_mov_b32 v{RS+1}, v{RS}")
    I(f"v_mov_b32 v{NB+1}, v{NB}")
    TP = WF
    CSR = 248
    tcs = tinit = None
    for k in range(0, 56, 8):
        for u in range(8):
            I(f"v_lshlrev_b32 v{TP+2*u}, 16, v{XF+k+u}")
            I(f"v_and_b32 v{TP+2*u+1}, 0xffff0000, v{XF+k+u}")
        for u in range(8):
            I(f"v_pk_fma_f32 {vr(TP+2*u,2)}, {vr(TP+2*u,2)}, {vr(RS,2)}, {vr(NB,2)}")
        for u in range(8):
            I(f"v_cvt_pk_bf16_f32 v{XF+k+u}, v{TP+2*u}, v{TP+2*u+1}")
    I("s_setprio 0")
    stamp("normalized")
    I(f"v_mul_u32_u24 v{vT0}, 224, v{vG}")
    I(f"v_add_u32 v{vT0}, {LDS_WPL}, v{vT0}")
    I(f"v_lshl_add_u32 v{TMP}, v{vM16}, 1, v{vT0}")
    I(f"v_lshrrev_b32 v{vT2}, 2, v{vM16}")
    I(f"v_sub_u32 v{vT2}, v{vM16}, v{vT2}")
    I(f"v_lshl_add_u32 v{vT2}, v{vT2}, 1, v{vT0}")
    I(f"v_add_u32 v{TMP+1}, 32, v{vT2}")
    I(f"v_mov_b32 v{vT1}, {LDS_WPL + 1600}")
    I(f"v_and_b32 v{vT2}, 3, v{vM16}")
    I(f"v_cmp_eq_u32 vcc, 3, v{vT2}")
    I(f"v_cndmask_b32 v{TMP+1}, v{TMP+1}, v{vT1}, vcc")
    I(f"v_cmp_eq_u32 vcc, 3, v{vG}")
    I(f"v_cndmask_b32 v{TMP+2}, v{TMP}, v{vT1}, vcc")
    I(f"v_cndmask_b32 v{TMP+3}, v{TMP+1}, v{vT1}, vcc")
    I(f"v_add_u32 v{vTRb}, {LDS_WK}, v{vTR}")
    I(f"v_xor_b32 v{vTRc}, 32, v{vTRb}")
    def cs_loads():
        I(f"s_and_b32 s{sT0}, s{sW}, 1")
        I(f"s_cmp_eq_u32 s{sT0}, 1")
        I(f"s_cselect_b32 s4, s{sWU}, s{sWG}")
        I(f"s_cselect_b32 s5, s{sWU+1}, s{sWG+1}")
        I(f"s_mov_b32 s6, 1605632")
        I(f"s_mov_b32 s7, 0x20000")
        I(f"s_lshl_b32 s{sT0}, s{sG}, 2")
        I(f"s_lshr_b32 s{sT1}, s{sW}, 1")
        I(f"s_add_u32 s{sT0}, s{sT0}, s{sT1}")
        I(f"s_mul_i32 s{sT0}, s{sT0}, {7*3584}")
        I(f"s_lshl_b32 s{sT1}, s{sJC}, 8")
        I(f"s_add_u32 s{sT0}, s{sT0}, s{sT1}")
        I(f"s_cmp_ge_u32 s{sJC}, 14")
        I(f"s_cselect_b32 s{sT1}, {OOB}, 0")
        I(f"v_lshlrev_b32 v{vXA0}, 2, v{vLANE}")
        I(f"v_add_u32 v{vXA0}, s{sT1}, v{vXA0}")
        for r in range(7):
            if r:
                I(f"s_add_u32 s{sT0}, s{sT0}, 3584")
            tcs_ = I(f"buffer_load_dword v{CSR+r}, v{vXA0}, s[4:7], s{sT0} offen")
        return tcs_

    def init_load():
        I(f"v_mov_b32 v{vCNT}, 0")
        return I(f"buffer_load_dword v{vINIT}, v{vCNT}, {srd(sDBG)}, 0 offen sc1")
    bg_add("sent", sentinels)
    bg_add("cs", cs_loads)
    for i in (4, 5, 6):
        bg_add(f"w{i}", lambda i=i: rawW(i))
    g.wait(bt["wk3"])
    g.wait_all(vm=False)
    I("s_barrier")
    init_signal()

    def rdk(c, dst):
        I(f"ds_read_b64_tr_b16 {vr(dst,2)}, v{vTRb} offset:{c*2048}")
        I(f"ds_read_b64_tr_b16 {vr(dst+2,2)}, v{vTRb} offset:{c*2048+256}")
        I(f"ds_read_b64_tr_b16 {vr(dst+4,2)}, v{vTRc} offset:{c*2048}")
        return I(f"ds_read_b64_tr_b16 {vr(dst+6,2)}, v{vTRc} offset:{c*2048+256}")

    tphi = None
    for u in range(2):
        for j in range(8):
            d0 = j if j < 4 else 16 + j - 4
            va = TMP + u + (2 if j >= 4 else 0)
            dst = (WPH2 if j & 1 else WPHI) + 4 * u + j // 2
            tphi = I(f"ds_read_u16 v{dst}, v{va} offset:{d0*56}")
    I(f"v_lshrrev_b32 v{vWOA}, 3, v{vLANE}")
    I(f"v_mul_u32_u24 v{vWOA}, 896, v{vWOA}")
    I(f"v_and_b32 v{vT1}, 7, v{vLANE}")
    I(f"v_lshlrev_b32 v{vT2}, 1, v{vG}")
    I(f"v_xor_b32 v{vT1}, v{vT1}, v{vT2}")
    I(f"v_lshl_add_u32 v{vWOA}, v{vT1}, 4, v{vWOA}")
    I(f"s_lshl_b32 s{sWOB}, s{sNQ}, 1")
    I(f"s_add_u32 s{sWOB}, s{sWOB}, s{sWH}")
    I(f"s_cmp_eq_u32 s{sWOB}, 7")
    I(f"s_cselect_b32 s{sT1}, {OOB}, 0")
    I(f"s_lshl_b32 s{sWOB}, s{sWOB}, 7")
    I(f"s_add_u32 s{sWOB}, s{sWOB}, s{sT1}")
    I(f"s_mul_i32 s{sT1}, s{sW3}, {112*896}")
    I(f"s_add_u32 s{sWOB}, s{sWOB}, s{sT1}")
    two = {}

    def wo_load(i):
        two[i] = dma2(vWOA, sWO, sWOB, i * 8 * 896, sLW, i * 1024, stmp=sBG)
    for i in range(4, 10):
        bg_add(f"wo{i}", lambda i=i: wo_load(i))
    chain16(ACC, rdk, hook=lambda c: bgq() if c in (2, 5, 8, 11) else None)
    for i in range(8):
        I(f"v_lshl_or_b32 v{WPHI+i}, v{WPH2+i}, 16, v{WPHI+i}")
    stamp("k chain")
    I(f"v_lshrrev_b32 v{vT0}, 1, v{vG}")
    I(f"v_mul_u32_u24 v{vT0}, {UNIT-1024}, v{vT0}")
    I(f"v_add_u32 v{vTRb}, v{vT0}, v{vTR}")
    I(f"v_xor_b32 v{vTRc}, 32, v{vTRb}")
    I(f"v_add_u32 v{vXR0}, 57344, v{vTRb}")
    I(f"v_add_u32 v{vXR1}, 57344, v{vTRc}")
    g.wait(bt['w3'])
    I("s_barrier")
    stamp("wv ready")

    def rdw(isq):
        def rd(c, dst):
            n0 = 2 * c
            if not isq:
                unit, off = n0 % 8, (n0 // 8) * 1024
            elif n0 < 24:
                unit, off = n0 % 8, 10240 + (1 + n0 // 8) * 1024
            else:
                unit, off = 4 + n0 - 24, 10240
            a0, a1 = (vTRb, vTRc) if unit < 4 else (vXR0, vXR1)
            off += (unit % 4) * UNIT
            I(f"ds_read_b64_tr_b16 {vr(dst,2)}, v{a0} offset:{off}")
            I(f"ds_read_b64_tr_b16 {vr(dst+2,2)}, v{a0} offset:{off+256}")
            I(f"ds_read_b64_tr_b16 {vr(dst+4,2)}, v{a1} offset:{off}")
            return I(f"ds_read_b64_tr_b16 {vr(dst+6,2)}, v{a1} offset:{off+256}")
        return rd

    g.begin()
    chain16(ACCV, rdw(False), swap=True, hook=lambda c: bgq() if c % 2 == 1 else None)
    main = g.end()
    g.begin()
    featmap(ACC, PH)
    for s_ in range(2):
        for u in range(2):
            I(f"v_mfma_f32_16x16x32_bf16 {vr(TMP+8*s_+4*u,4)}, {vr(PH+4*s_,4)}, {vr(SEL+4*u,4)}, 0")
    side = g.end()
    g.put(interleave(main, side, every=1, per=4))
    PT = PH
    for k in range(8):
        I(f"v_cvt_pk_bf16_f32 v{PT+k}, v{TMP+2*k}, v{TMP+2*k+1}")
    VF = ACC
    I(f"v_cmp_le_u32 vcc, 12, v{vM16}")
    for k in range(4):
        I(f"v_cvt_pk_bf16_f32 v{VF+k}, v{ACCV+2*k}, v{ACCV+2*k+1}")
    I(f"v_cndmask_b32 v{VF+2}, v{VF+2}, v{vT5}, vcc")
    I(f"v_cndmask_b32 v{VF+3}, v{VF+3}, v{vT5}, vcc")
    I(f"s_lshr_b32 s{sT0}, s{sW}, 1")
    I(f"s_lshl_b32 s{sT0}, s{sT0}, 10")
    I(f"s_and_b32 s{sT1}, s{sW}, 1")
    I(f"s_lshl_b32 s{sT1}, s{sT1}, 3")
    I(f"s_add_u32 s{sT0}, s{sT0}, s{sT1}")
    I(f"s_add_u32 s{sT0}, s{sT0}, {LDS_WK}")
    I(f"v_add_u32 v{vT0}, s{sT0}, v{vL16}")
    for k in range(4):
        I(f"ds_write_b64 v{vT0}, {vr(PT+2*k,2)} offset:{k*4096}")
    for k in range(2):
        I(f"ds_write_b64 v{vT0}, {vr(VF+2*k,2)} offset:{(4+k)*4096}")
    g.wait(bt['cs'])
    I(f"v_mov_b32 v{ACCV}, 0\nv_mov_b32 v{ACCV+1}, 0")
    for r in range(7):
        I(f"v_dot2_f32_bf16 v{ACCV}, v{CSR+r}, v{vT3}, v{ACCV}")
        I(f"v_dot2_f32_bf16 v{ACCV+1}, v{CSR+r}, v{vT4}, v{ACCV+1}")
    I(f"v_lshlrev_b32 v{vT1}, 3, v0")
    I(f"v_add_u32 v{vT1}, {LDS_KVF}, v{vT1}")
    I(f"ds_write_b64 v{vT1}, {vr(ACCV,2)}")
    I(f"s_lshl_b32 s{sT0}, s{sWH}, 1")
    I(f"s_and_b32 s{sT1}, s{sW}, 1")
    I(f"s_add_u32 s{sT0}, s{sT0}, s{sT1}")
    I(f"s_lshl_b32 s{sT0}, s{sT0}, 12")
    I(f"s_add_u32 s{sT0}, s{sT0}, {LDS_WK}")
    I(f"v_add_u32 v{vT0}, s{sT0}, v{vL16}")
    I(f"s_bfe_u32 s{sT0}, s{sW}, 0x10001")
    I(f"s_lshl_b32 s{sT0}, s{sT0}, 12")
    I(f"s_add_u32 s{sT0}, s{sT0}, {LDS_WK + 4*4096}")
    I(f"v_add_u32 v{vT1}, s{sT0}, v{vL16}")
    g.wait(bt['w6'])
    g.wait_all(vm=False)
    I("s_barrier")
    R = WF
    tk = {}
    for p in range(4):
        I(f"ds_read_b128 {vr(R+8*p,4)}, v{vT0} offset:{p*1024}")
        tk[p] = I(f"ds_read_b128 {vr(R+8*p+4,4)}, v{vT1} offset:{p*1024}")
    I(f"v_lshlrev_b32 v{vXA0}, 2, v0")
    I(f"v_and_b32 v{vXA0}, 1023, v{vXA0}")
    I(f"v_add_u32 v{vXA0}, {LDS_KVF}, v{vXA0}")
    I(f"ds_read2st64_b32 {vr(ACCV,2)}, v{vXA0} offset0:0 offset1:4")
    tq = I(f"ds_read2st64_b32 {vr(ACCV+2,2)}, v{vXA0} offset0:8 offset1:12")
    for p in range(4):
        g.wait(tk[p])
        I(f"v_mfma_f32_16x16x32_bf16 {vr(ACC,4)}, {vr(R+8*p,4)}, {vr(R+8*p+4,4)}, {'0' if p == 0 else vr(ACC,4)}")
    g.wait(tq)
    I(f"v_add_f32 v{ACCV}, v{ACCV}, v{ACCV+1}")
    I(f"v_add_f32 v{ACCV+2}, v{ACCV+2}, v{ACCV+3}")
    I(f"v_add_f32 v{ACCV}, v{ACCV}, v{ACCV+2}")
    I(f"v_cvt_pk_bf16_f32 v{ACC+4}, v{ACC}, v{ACC+1}")
    I(f"v_cvt_pk_bf16_f32 v{ACC+5}, v{ACC+2}, v{ACC+3}")
    I(f"buffer_store_dwordx2 {vr(ACC+4,2)}, v{vT8}, {srd(sWS)}, s{sKVS} offen sc1")
    I(f"buffer_store_dword v{ACCV}, v{vCSS}, {srd(sWS)}, s{sCSS} offen sc1")
    stamp("kv stored")
    I(f"v_lshlrev_b32 v{vCNT}, 4, v{vM16}")
    tini = I(f"buffer_load_dword v{vINIT}, v{vCNT}, {srd(sDBG)}, 0 offen sc1")
    for i in range(4):
        bg_add(f"wo{i}", lambda i=i: wo_load(i))
    chain16(ACC, rdw(True), hook=lambda c: bgq() if c % 2 == 1 else None)
    bgq(99)
    c_bg(0, 0, 0, 56, 0, "qdone")
    c_bg(1, 0, 0, 24, 57344, "qdone")
    I("s_barrier")
    for i in range(10, 14):
        wo_load(i)
    featmap(ACC, PH)
    GR, R, AO, OS = 40, 96, 176, 184
    WOF = 112
    vB1, vB2, vB3 = 188, 189, 190
    vK0, vK1, vK2 = 191, 192, 193
    lr, lb = g.newlabel("L_ir"), g.newlabel("L_ib")
    g.wait(tini)
    I(f"v_cmp_gt_u32 vcc, 16, v{vINIT}")
    I(f"s_cmp_lg_u64 vcc, 0")
    I(f"s_cbranch_scc1 {lr}")
    g.label(lb)
    g.begin()
    g.label(lr)
    init_check()
    I(f"s_branch {lb}")
    TAILS.append(g.end())
    stamp("q done")

    I(f"s_lshl_b32 s{sT0}, s{sWH}, 15")
    I(f"s_lshl_b32 s{sT1}, s{sW3}, 10")
    I(f"s_add_u32 s{sGATH}, s{sGATH}, s{sT0}")
    I(f"s_add_u32 s{sGATH}, s{sGATH}, s{sT1}")

    def gat_issue():
        tl = []
        I(f"s_mov_b32 s{sT0}, s{sGATH}")
        for rb in range(8):
            if rb:
                I(f"s_add_u32 s{sT0}, s{sT0}, 4096")
            tl.append(I(f"buffer_load_dwordx4 {vr(GR+4*rb,4)}, v{vL16}, {srd(sWS)}, s{sT0} offen sc1"))
        return tl

    def gat_body(tl):
        for i in range(8):
            I(f"v_mov_b32 v{R+i}, 0")
        for rb in range(8):
            g.wait(tl[rb])
            for i in range(4):
                I(f"v_dot2_f32_bf16 v{R+2*i}, v{GR+4*rb+i}, v{vT3}, v{R+2*i}")
                I(f"v_dot2_f32_bf16 v{R+2*i+1}, v{GR+4*rb+i}, v{vT4}, v{R+2*i+1}")

    def wo_bounce():
        c_setup()
        d_setup()
        I(f"v_lshrrev_b32 v{vK0}, 2, v{vM16}")
        I(f"v_sub_u32 v{vK0}, v{vM16}, v{vK0}")
        I(f"v_and_b32 v{vT1}, 3, v{vM16}")
        I(f"v_cmp_eq_u32 vcc, 3, v{vT1}")
        I(f"v_cndmask_b32 v{vK0}, v{vK0}, 12, vcc")
        I(f"v_lshl_add_u32 v{vK0}, v{vG}, 4, v{vK0}")
        I(f"v_lshlrev_b32 v{vK0}, 4, v{vK0}")
        I(f"v_add_u32 v{vK0}, {LDS_KV2}, v{vK0}")
        I(f"v_add_u32 v{vK1}, {LDS_KV2}, v{vL16}")
        I(f"v_add_u32 v{vK2}, s{sCL}, v{vK1}")
        I(f"v_bfe_u32 v{vT1}, v{vLANE}, 2, 2")
        I(f"v_lshl_add_u32 v{vB1}, v{vG}, 2, v{vT1}")
        I(f"v_min_u32 v{vT1}, 2, v{vT1}")
        I(f"v_mad_u32_u24 v{vB2}, v{vG}, 3, v{vT1}")
        I(f"v_add_u32 v{vB2}, 16, v{vB2}")
        I(f"v_and_b32 v{vT1}, 3, v{vLANE}")
        I(f"v_lshlrev_b32 v{vT1}, 3, v{vT1}")
        I(f"v_add_u32 v{vT1}, s{sLW}, v{vT1}")
        AD = 72
        for rd_, vb in enumerate((vB1, vB2)):
            I(f"v_bfe_u32 v{vT2}, v{vb}, 1, 2")
            I(f"v_lshlrev_b32 v{vT2}, 5, v{vT2}")
            I(f"v_lshl_add_u32 v{vT2}, v{vb}, 7, v{vT2}")
            I(f"v_add_u32 v{AD+4*rd_}, v{vT2}, v{vT1}")
            for x in range(1, 4):
                I(f"v_xor_b32 v{AD+4*rd_+x}, {32*x}, v{AD+4*rd_}")
        g.wait(two[13])
        for hh in range(4):
            for nt in range(4):
                d = WOF + (hh * 4 + nt) * 4
                x = nt ^ (2 * (hh & 1))
                I(f"ds_read_b64_tr_b16 {vr(d,2)}, v{AD+x} offset:{hh*3584}")
                I(f"ds_read_b64_tr_b16 {vr(d+2,2)}, v{AD+4+x} offset:{hh*3584}")
    spec_load(gat_issue, [GR + 2 * k for k in range(16)], R + 12, gat_body, wo_bounce)
    g.mark("gdone")
    for i in range(4):
        I(f"v_cvt_pk_bf16_f32 v{R+8+i}, v{R+2*i}, v{R+2*i+1}")
    I(f"ds_write_b128 v{vK2}, {vr(R+8,4)}")
    g.wait_all(vm=False)
    stamp("gathered")
    I("s_barrier")
    g.mark("qdone")
    g.mark("burst:2")
    KF = 40
    tk = {}
    for hf_ in range(2):
        for s_ in range(2):
            I(f"ds_read_b128 {vr(KF+16*hf_+8*s_,4)}, v{vK1} offset:{hf_*4096+s_*2048}")
            tk[hf_, s_] = I(f"ds_read_b128 {vr(KF+16*hf_+8*s_+4,4)}, v{vK0} offset:{hf_*4096+s_*2048+1024}")
    for hf_ in range(2):
        for s_ in range(2):
            g.wait(tk[hf_, s_])
            for t in range(2):
                a = vr(AO + 4 * t, 4)
                I(f"v_mfma_f32_16x16x32_bf16 {a}, {vr(KF+16*hf_+8*s_+4*t,4)}, {vr(PH+4*s_,4)}, {'0' if (s_ == 0 and hf_ == 0) else a}")
    I(f"v_add_f32 v{vT1}, {f32(1e-6)}, v{AO+7}")
    I(f"v_rcp_f32 v{vT1}, v{vT1}")
    for i in range(7):
        I(f"v_mul_f32 v{AO+i}, v{AO+i}, v{vT1}")
    for i in range(3):
        I(f"v_cvt_pk_bf16_f32 v{OS+i}, v{AO+2*i}, v{AO+2*i+1}")
    I(f"v_cvt_pk_bf16_f32 v{OS+3}, v{AO+6}, 0")
    I(f"buffer_store_dwordx4 {vr(OS,4)}, v{vL16}, {srd(sWS)}, s{sOS} offen sc1")
    stamp("o stored")
    if "t2b" in EXP:
        touch2()
    g.mark("on")
    return two


def woraw(i):
    return vr(216 + 4 * i, 4) if i < 8 else vr(WR + 4 * (i - 8), 4)


def phaseB(two):
    g.comment("==== phase B ====")
    OF = 216
    XR, XU, CSG = 176, 180, 188
    WOF = 112
    BACC = 72
    vB1, vB2, vB3 = 196, 197, 198
    vD1, vD2, vD3 = 199, 200, 201
    I(f"s_mul_i32 s{sT0}, s{sMTB}, {32*896}")
    I(f"s_lshl_b32 s{sT1}, s{sNQ}, 8")
    I(f"s_add_u32 s{sT0}, s{sT0}, s{sT1}")
    I(f"s_lshl_b32 s{sT1}, s{sW}, 2")
    I(f"v_and_b32 v{vT4}, 3, v{vLANE}")
    I(f"v_add_u32 v{vT4}, s{sT1}, v{vT4}")
    I(f"v_lshrrev_b32 v{vT5}, 2, v{vLANE}")
    I(f"v_add_u32 v{vT0}, s{sT1}, v{vG}")
    I(f"v_mul_u32_u24 v{vT0}, 896, v{vT0}")
    I(f"v_lshl_add_u32 v{vT0}, v{vM16}, 4, v{vT0}")
    I(f"s_cmp_ge_u32 s{sW}, 4")
    I(f"s_mov_b32 s{sT2}, 81920")
    I(f"s_cmov_b32 s{sT2}, {LDS_KVF - 4096}")
    I(f"s_add_u32 s{sT2}, s{sT2}, s{sCL}")
    g.mark("off")
    I(f"s_mov_b32 m0, s{sT2}")
    I(f"v_and_b32 v{vB3}, 3, v{vLANE}")
    txd = I(f"buffer_load_dwordx4 v{vT0}, {srd(sX)}, s{sT0} offen lds")
    g.mark("on")
    I(f"v_lshlrev_b32 v{vB3}, 8, v{vB3}")
    I(f"v_lshl_add_u32 v{vB3}, v{vT5}, 4, v{vB3}")
    I(f"v_add_u32 v{vB3}, s{sT2}, v{vB3}")
    g.mark("burst:3")
    I(f"s_lshl_b32 s{sD}, s{sMTB}, 5")
    I(f"s_lshl_b32 s{sT1}, s{sW3}, 2")
    I(f"s_add_u32 s{sD}, s{sD}, s{sT1}")
    I(f"s_lshl_b32 s{sD}, s{sD}, 10")
    I(f"s_add_u32 s{sD}, s{sD}, {WS_O}")
    I(f"s_add_u32 s{sE}, s{sD}, 16384")
    I(f"s_mul_i32 s{sT0}, s{sW3}, 17408")
    I(f"s_mul_i32 s{sT1}, s{sWH}, {8*1088}")
    I(f"s_add_u32 s{sT0}, s{sT0}, s{sT1}")
    I(f"s_add_u32 s{sT0}, s{sT0}, {LDS_BSCR}")
    I(f"v_lshrrev_b32 v{vT1}, 1, v{vG}")
    I(f"v_mul_u32_u24 v{vT1}, 1088, v{vT1}")
    I(f"v_and_b32 v{vT2}, 1, v{vG}")
    I(f"v_lshl_add_u32 v{vT1}, v{vT2}, 9, v{vT1}")
    I(f"v_lshl_add_u32 v{vT1}, v{vM16}, 4, v{vT1}")
    I(f"v_add_u32 v{vB1}, s{sT0}, v{vT1}")
    I(f"v_mul_u32_u24 v{vT1}, 1088, v{vT5}")
    I(f"v_lshl_add_u32 v{vT1}, v{vT4}, 4, v{vT1}")
    I(f"v_add_u32 v{vB2}, {LDS_BSCR}, v{vT1}")
    I(f"v_cmp_gt_u32 vcc, 0x10000, v{vHSA}")
    I(f"v_cndmask_b32 v{vT3}, 0, -1, vcc")
    stats_addr(vT2, vT0, vT1)
    I(f"v_mov_b32 v{vT5}, 0x3f803f80")
    g.wait(txd)
    txr = I(f"ds_read_b128 {vr(XR,4)}, v{vB3}")
    g.wait(txr)
    for i in range(4):
        I(f"v_lshlrev_b32 v{XU+2*i}, 16, v{XR+i}")
        I(f"v_and_b32 v{XU+2*i+1}, 0xffff0000, v{XR+i}")
    g.mark("off")
    I("s_barrier")
    stamp("wo ready")

    def o_issue():
        tl = []
        for hh in range(4):
            for mt in range(2):
                tl.append(I(f"buffer_load_dwordx4 {vr(OF+(hh*2+mt)*4,4)}, v{vL16}, {srd(sWS)}, s{sE if mt else sD} offen offset:{hh*1024} sc1"))
        return tl

    def o_body(tl):
        for hh in range(4):
            for mt in range(2):
                g.wait(tl[hh * 2 + mt])
                for nt in range(4):
                    a = BACC + (mt * 4 + nt) * 4
                    I(f"v_mfma_f32_16x16x32_bf16 {vr(a,4)}, {vr(WOF+(hh*4+nt)*4,4)}, {vr(OF+(hh*2+mt)*4,4)}, {'0' if hh == 0 else vr(a,4)}")
    spec_load(o_issue, [OF + 4 * k for k in range(8)], vT0, o_body)
    stamp("B mfma")
    I(f"s_lshl_b32 s{sT0}, s{sJC}, 14")
    I(f"s_lshl_b32 s{sT1}, s{sWH}, 13")
    I(f"s_add_u32 s{sT0}, s{sT0}, s{sT1}")
    I(f"s_add_u32 s{sD}, s{sT0}, {WS_CS}")
    I(f"s_add_u32 s{sE}, s{sD}, 4096")
    I(f"v_lshlrev_b32 v{vB3}, 2, v0")
    I(f"v_and_b32 v{vB3}, 1023, v{vB3}")

    def cs_issue():
        return [I(f"buffer_load_dword v{CSG+rb}, v{vB3}, {srd(sWS)}, s{sE if rb >= 4 else sD} offen offset:{(rb%4)*1024} sc1") for rb in range(8)]
    tcs8 = cs_issue()
    g.mark("burst:3")
    for mt in range(2):
        for nt in range(4):
            I(f"ds_write_b128 v{vB1}, {vr(BACC+(mt*4+nt)*4,4)} offset:{nt*2176+mt*256}")
    S1, S2 = 104, 105
    I(f"v_mov_b32 v{S1}, 0\nv_mov_b32 v{S2}, 0")
    g.wait_all(vm=False)
    I("s_barrier")
    b = 72
    for w in range(4):
        for q in range(2):
            I(f"ds_read_b128 {vr(b+w*8+q*4,4)}, v{vB2} offset:{w*17408+q*512}")
    g.wait_all(vm=False)
    HP = 108
    for i in range(8):
        I(f"v_add_f32 v{b+i}, v{b+i}, v{b+8+i}")
        I(f"v_add_f32 v{b+16+i}, v{b+16+i}, v{b+24+i}")
    for i in range(8):
        I(f"v_add_f32 v{b+i}, v{b+i}, v{XU+i}")
    for i in range(8):
        I(f"v_add_f32 v{b+i}, v{b+i}, v{b+16+i}")
    for i in range(4):
        I(f"v_cvt_pk_bf16_f32 v{HP+i}, v{b+2*i}, v{b+2*i+1}")
    I(f"buffer_store_dwordx4 {vr(HP,4)}, v{vHSA}, {srd(sWS)}, s{sHS} offen sc1")
    for i in range(4):
        I(f"v_dot2_f32_bf16 v{S1}, v{HP+i}, v{vT5}, v{S1}")
        I(f"v_dot2_f32_bf16 v{S2}, v{HP+i}, v{HP+i}, v{S2}")
    I(f"v_and_b32 v{S1}, v{vT3}, v{S1}")
    I(f"v_and_b32 v{S2}, v{vT3}, v{S2}")
    for ror in (4, 8):
        I(f"v_add_f32_dpp v{S1}, v{S1}, v{S1} row_ror:{ror} row_mask:0xf bank_mask:0xf")
        I(f"v_add_f32_dpp v{S2}, v{S2}, v{S2} row_ror:{ror} row_mask:0xf bank_mask:0xf")
    for lv in (16, 32):
        I(f"v_mov_b32 v106, v{S1}\nv_mov_b32 v107, v{S2}")
        I(f"v_permlane{lv}_swap_b32 v{S1}, v106")
        I(f"v_permlane{lv}_swap_b32 v{S2}, v107")
        I(f"v_add_f32 v{S1}, v{S1}, v106")
        I(f"v_add_f32 v{S2}, v{S2}, v107")
    I(f"buffer_store_dwordx2 v[{S1}:{S2}], v{vT2}, {srd(sWS)}, s{sSS} offen sc1")
    stamp("h stored")
    lr, lb = g.newlabel("L_sr"), g.newlabel("L_sb")
    g.wait(tcs8[-1])
    sent_check([CSG + rb for rb in range(8)], vT0)
    I(f"s_cmp_lg_u64 vcc, 0")
    I(f"s_cbranch_scc1 {lr}")
    g.label(lb)
    g.begin()
    g.label(lr)
    check_loop(cs_issue, [CSG + rb for rb in range(8)], vT0)
    I(f"s_branch {lb}")
    TAILS.append(g.end())
    for k in (4, 2, 1):
        for i in range(k):
            I(f"v_add_f32 v{CSG+i}, v{CSG+i}, v{CSG+k+i}")
    I(f"v_lshlrev_b32 v{vB3}, 2, v0")
    I(f"v_add_u32 v{vB3}, {LDS_KVF}, v{vB3}")
    I(f"ds_write_b32 v{vB3}, v{CSG}")
    g.wait_all(vm=False)
    I("s_barrier")
    I(f"s_cmp_ge_u32 s{sJC}, 14")
    I("s_cbranch_scc1 L_end")
    tb2 = c_batch(1, 0, 24, 56, 57344 + 24576)


GK1 = -2.0 * math.sqrt(2.0 / math.pi) * LOG2E
GK2 = GK1 * 0.044715
LDS_X = 114688
vHB, vM, vWD = 254, 255, 253
sWDB = 80
WDE = 16
NWDE = 7
NWDC = int(os.environ.get('NWDC', '2'))


def hh_signal(stage, toks):
    g.wait(*toks)
    I("s_barrier")
    lab = g.newlabel("L_hs")
    I(f"s_cmp_lg_u32 s{sW}, 0")
    I(f"s_cbranch_scc1 {lab}")
    g.cond_begin()
    I("s_mov_b64 exec, 1")
    I(f"s_lshl_b32 s{sT0}, s{sG}, 8")
    I(f"s_add_u32 s{sT0}, s{sT0}, {WS_CNT + CNT_HH * 4096 + 64 * stage}")
    I(f"v_mov_b32 v{vCNT}, s{sT0}")
    I(f"buffer_atomic_add v{vONE}, v{vCNT}, {srd(sWS)}, 0 offen sc1")
    I("s_mov_b64 exec, -1")
    g.cond_end()
    g.label(lab)


def hh_poll(stage_sreg_or_imm):
    I("s_mov_b64 exec, 1")
    I(f"s_lshl_b32 s{sT0}, s{sGB}, 8")
    I(f"s_add_u32 s{sT0}, s{sT0}, {WS_CNT + CNT_HH * 4096}")
    I(f"s_add_u32 s{sT0}, s{sT0}, {stage_sreg_or_imm}")
    I(f"v_mov_b32 v{vCNT}, s{sT0}")
    poll(sWS, vCNT, 14)
    I("s_mov_b64 exec, -1")


def d_setup():
    I(f"v_lshrrev_b32 v{vHB}, 5, v{vLANE}")
    I(f"v_and_b32 v{vM}, 31, v{vLANE}")
    I(f"v_lshrrev_b32 v{vT0}, 3, v{vLANE}")
    I(f"v_mul_u32_u24 v{vT0}, 896, v{vT0}")
    I(f"v_and_b32 v{vT1}, 1, v{vG}")
    I(f"v_lshlrev_b32 v{vT1}, 2, v{vT1}")
    I(f"v_and_b32 v{vWD}, 7, v{vLANE}")
    I(f"v_xor_b32 v{vWD}, v{vWD}, v{vT1}")
    I(f"v_lshl_add_u32 v{vWD}, v{vWD}, 4, v{vT0}")
    I(f"s_cmp_ge_u32 s{sJB}, 7")
    I(f"s_cselect_b32 s{sRH}, 1, 0")
    I(f"s_mul_i32 s{sT0}, s{sRH}, 7")
    I(f"s_sub_u32 s{sCB}, s{sJB}, s{sT0}")
    I(f"s_lshl_b32 s{sT0}, s{sWH}, 1")
    I(f"s_add_u32 s{sT0}, s{sT0}, s{sW}")
    I(f"s_and_b32 s{sAA}, s{sT0}, 3")
    I(f"s_mul_i32 s{sKC}, s{sWH}, 56")
    I(f"s_add_u32 s{sKC}, s{sKC}, s{sAA}")
    I(f"s_mul_i32 s{sWDB}, s{sKC}, {16*896}")
    I(f"s_lshl_b32 s{sT1}, s{sCB}, 7")
    I(f"s_add_u32 s{sWDB}, s{sWDB}, s{sT1}")
    I(f"s_cmp_ge_u32 s{sJB}, 14")
    I(f"s_cselect_b32 s{sT1}, {OOB}, 0")
    I(f"s_add_u32 s{sWDB}, s{sWDB}, s{sT1}")


sRH, sCB, sAA, sKC = 64, 65, 66, 67


def kc_off(n):
    return 8 * n if n < 7 else 4 + 8 * (n - 7)


def wd_load(dst, n):
    t = None
    for hf_ in range(2):
        I(f"s_add_u32 s{sT3}, s{sWDB}, {(16*kc_off(n) + 8*hf_)*896}")
        for e in range(4):
            t = I(f"buffer_load_dword v{dst+4*hf_+e}, v{vWD}, {srd(sWD)}, s{sT3} offen offset:{e*896}")
    return t


def wd_half(dst, n, hf_):
    I(f"s_add_u32 s{sBG}, s{sWDB}, {(16*kc_off(n) + 8*hf_)*896}")
    return I(f"buffer_load_dwordx4 {vr(dst+4*hf_,4)}, v{vWD}, {srd(sWD)}, s{sBG} offen")


def dt_pattern(dst, t0, t1):
    I(f"v_bfe_u32 v{t0}, v{vLANE}, 2, 2")
    I(f"v_lshl_add_u32 v{t1}, v{vHB}, 2, v{t0}")
    I(f"v_lshlrev_b32 v{t1}, 7, v{t1}")
    I(f"v_lshrrev_b32 v{t0}, 1, v{t0}")
    I(f"v_lshl_add_u32 v{t1}, v{t0}, 6, v{t1}")
    I(f"v_and_b32 v{t0}, 1, v{vG}")
    I(f"v_lshl_add_u32 v{t1}, v{t0}, 5, v{t1}")
    I(f"v_and_b32 v{t0}, 3, v{vLANE}")
    I(f"v_lshl_add_u32 v{dst}, v{t0}, 3, v{t1}")


def c_rows(mat, dbl, r0, r1, lds_base):
    return c_batch(mat, dbl, r0, r1, lds_base)


def g1_addr(n):
    if n < 8:
        return 114688 + n * 1024
    if 24 <= n < 40:
        return 114688 + 8192 + (n - 24) * 1024
    if n < 24:
        return (n - 8) * 1024
    return 16384 + (n - 40) * 1024


def u1_addr(n):
    if n < 8:
        return 32768 + n * 1024
    if 24 <= n < 40:
        return 32768 + 8192 + (n - 24) * 1024
    if n < 24:
        return 57344 + (n - 8) * 1024
    return 57344 + 16384 + (n - 40) * 1024


def phaseCD(twd_early):
    g.comment("==== phase C ====")
    sMD, sHB, sMT = sC, sHHS, sMTC
    sAB = 7
    sL5, sL2, sL3, sL4 = 4, 5, 6, 83
    I(f"s_mul_i32 s{sL5}, s{sW}, 5120")
    I(f"s_lshl_b32 s{sL2}, s{sW}, 11")
    I(f"s_mul_i32 s{sL3}, s{sW}, 3072")
    I(f"s_lshl_b32 s{sL4}, s{sW}, 12")
    slotE = [(sL2, 40960 + i * 1024) for i in range(2)] + [(sL3, 90112 + i * 1024) for i in range(3)]
    slotM = [(sL5, 114688 + i * 1024) for i in range(5)] + [(sL2, i * 1024) for i in range(2)]
    slotL = [(sL3, 16384 + i * 1024) for i in range(3)] + [(sL4, 57344 + i * 1024) for i in range(4)]
    wslot = slotE + slotM + slotL + (slotE + slotM)[:9]
    sRW = [12, 13, 14, 15, 16, 17, 18]
    sRA = [19, 20, 21, 22, 23, 81, 82]

    def wd_dma(m):
        n, hf_ = m // 2, m % 2
        return dma2(vWD, sWD, sRW[n % 7], (16 * (4 if n >= 7 else 0) + 8 * hf_) * 896, wslot[m][0], wslot[m][1])
    c_batch(0, 1, 0, 40, 114688)
    I(f"s_lshl_b32 s{sMD}, s{sGB}, 2")
    I(f"s_lshl_b32 s{sT0}, s{sRH}, 1")
    I(f"s_add_u32 s{sMD}, s{sMD}, s{sT0}")
    I(f"s_lshl_b32 s{sE}, s{sMT}, 10")
    I(f"s_add_u32 s{sE}, s{sE}, {WS_ST}")
    I(f"s_mul_i32 s{sWB}, s{sMT}, {28*1024}")
    I(f"s_add_u32 s{sWB}, s{sWB}, {WS_H}")
    I(f"s_mul_i32 s{sAB}, s{sMD}, {112*1024}")
    I(f"s_lshl_b32 s{sT1}, s{sKC}, 10")
    I(f"s_add_u32 s{sAB}, s{sAB}, s{sT1}")
    I(f"s_add_u32 s{sAB}, s{sAB}, {WS_HH}")
    for n in range(7):
        if "norot" in EXP:
            I(f"s_mov_b32 s{sT0}, {n}")
        else:
            I(f"s_add_u32 s{sT0}, s{sCB}, {n}")
            I(f"s_sub_u32 s{sT1}, s{sT0}, 7")
            I(f"s_cmp_ge_u32 s{sT0}, 7")
            I(f"s_cselect_b32 s{sT0}, s{sT1}, s{sT0}")
        I(f"s_mul_i32 s{sT1}, s{sT0}, {8*16*896}")
        I(f"s_add_u32 s{sRW[n]}, s{sWDB}, s{sT1}")
        I(f"s_lshl_b32 s{sT1}, s{sT0}, 13")
        I(f"s_add_u32 s{sRA[n]}, s{sAB}, s{sT1}")
    HF = 16
    A_, B_, C_ = 128, 144, 160
    TM, CS2 = 176, 192
    WFc = 208
    vA0, vA1, vCSA, vFA, vA2 = 240, 241, 242, 243, 15
    K1, K2, IR2, NMU = 248, 249, 250, 251
    STR = 244
    I(f"v_bfe_u32 v{vT0}, v{vLANE}, 2, 2")
    I(f"v_lshl_add_u32 v{vT1}, v{vHB}, 3, v{vT0}")
    I(f"v_lshlrev_b32 v{vT1}, 7, v{vT1}")
    I(f"v_lshrrev_b32 v{vT0}, 1, v{vT0}")
    I(f"v_xor_b32 v{vT0}, s{sWH}, v{vT0}")
    I(f"v_lshl_add_u32 v{vT1}, v{vT0}, 6, v{vT1}")
    I(f"v_and_b32 v{vT2}, 1, v{vG}")
    I(f"v_lshl_add_u32 v{vT1}, v{vT2}, 5, v{vT1}")
    I(f"v_and_b32 v{vT2}, 3, v{vLANE}")
    I(f"v_lshl_add_u32 v{vA0}, v{vT2}, 3, v{vT1}")
    I(f"v_add_u32 v{vA1}, 57344, v{vA0}")
    I(f"v_add_u32 v{vA2}, 114688, v{vA0}")
    I(f"s_lshl_b32 s{sT0}, s{sWH}, 7")
    I(f"s_add_u32 s{sT0}, s{sT0}, {LDS_CS}")
    I(f"v_lshlrev_b32 v{vCSA}, 4, v{vHB}")
    I(f"v_add_u32 v{vCSA}, s{sT0}, v{vCSA}")
    I(f"v_mov_b32 v{vFA}, {LDS_FLG}")
    I(f"v_lshlrev_b32 v{vT3}, 3, v{vLANE}")
    flush()
    I(f"v_lshlrev_b32 v{vT0}, 2, v0")
    I(f"v_and_b32 v{vT0}, 1023, v{vT0}")
    I(f"v_add_u32 v{vT0}, {LDS_KVF}, v{vT0}")
    t = I(f"ds_read2st64_b32 v[72:73], v{vT0} offset0:0 offset1:4")
    g.wait(t)
    I(f"v_add_f32 v72, v72, v73")
    I(f"ds_write_b32 v{vT0}, v72 offset:4096")
    stamp("C ready")

    def st_issue():
        I(f"buffer_load_dwordx2 {vr(STR,2)}, v{vT3}, {srd(sWS)}, s{sE} offen sc1")
        return [I(f"buffer_load_dwordx2 {vr(STR+2,2)}, v{vT3}, {srd(sWS)}, s{sE} offen offset:512 sc1")]
    check_loop(st_issue, [STR, STR + 2], vT1)
    stamp("h flag")

    def h_issue():
        tl = []
        for c in range(28):
            if c % 4 == 0:
                I(f"s_add_u32 s{sT0}, s{sWB}, {c*1024}")
            tl.append(I(f"buffer_load_dwordx4 {vr(HF+4*c,4)}, v{vL16}, {srd(sWS)}, s{sT0} offen offset:{(c%4)*1024} sc1"))
        return tl
    g.begin()
    th = h_issue()
    hl = g.end()
    g.put(hl[:10])
    g.wait_all(vm=False)
    I("s_barrier")
    I(f"v_add_f32 v{STR}, v{STR}, v{STR+2}")
    I(f"v_add_f32 v{STR+1}, v{STR+1}, v{STR+3}")
    I(f"v_mov_b32 v{STR+2}, v{STR}\nv_mov_b32 v{STR+3}, v{STR+1}")
    I(f"v_permlane32_swap_b32 v{STR}, v{STR+2}")
    I(f"v_permlane32_swap_b32 v{STR+1}, v{STR+3}")
    I(f"v_add_f32 v{STR}, v{STR}, v{STR+2}")
    I(f"v_add_f32 v{STR+1}, v{STR+1}, v{STR+3}")
    I(f"v_mul_f32 v{NMU}, {f32(-1/448)}, v{STR}")
    I(f"v_mul_f32 v{STR+1}, {f32(1/448)}, v{STR+1}")
    I(f"v_fma_f32 v{STR+1}, -v{NMU}, v{NMU}, v{STR+1}")
    I(f"v_max_f32 v{STR+1}, 0, v{STR+1}")
    I(f"v_add_f32 v{IR2}, {f32(1e-5)}, v{STR+1}")
    I(f"v_rsq_f32 v{STR}, v{IR2}")
    I(f"v_mul_f32 v{K1}, {f32(GK1)}, v{STR}")
    I(f"v_mul_f32 v{STR+1}, v{STR}, v{STR}")
    I(f"v_mul_f32 v{STR+1}, v{STR+1}, v{STR}")
    I(f"v_mul_f32 v{K2}, {f32(GK2)}, v{STR+1}")
    tails = TAILS

    def cnt_add(f):
        I("s_mov_b64 exec, 1")
        I(f"ds_add_u32 v{vFA}, v{vONE} offset:{4*f}")
        I("s_mov_b64 exec, -1")

    def cnt_issue(f):
        return I(f"ds_read_b32 v{vFLAG}, v{vFA} offset:{4*f}")

    def cnt_check(f, t):
        lr, lb = g.newlabel("L_cr"), g.newlabel("L_cb")
        g.wait(t)
        I(f"v_readfirstlane_b32 s{sT4}, v{vFLAG}")
        I(f"s_cmp_lt_u32 s{sT4}, 8")
        I(f"s_cbranch_scc1 {lr}")
        g.label(lb)
        g.begin()
        g.label(lr)
        I(f"s_mov_b32 s{sT5}, 0")
        l2 = g.newlabel("L_cl")
        g.label(l2)
        I("s_sleep 1")
        cnt_issue(f)
        I("s_waitcnt lgkmcnt(0)")
        I(f"v_readfirstlane_b32 s{sT4}, v{vFLAG}")
        I(f"s_add_u32 s{sT5}, s{sT5}, 1")
        I(f"s_cmp_ge_u32 s{sT5}, {POLL_MAX*8}")
        I(f"s_cbranch_scc1 {lb}")
        I(f"s_cmp_lt_u32 s{sT4}, 8")
        I(f"s_cbranch_scc1 {l2}")
        I(f"s_branch {lb}")
        tails.append(g.end())

    def hsig_issue(f, toks):
        g.wait(*toks)
        I("s_mov_b64 exec, 1")
        t = I(f"ds_add_rtn_u32 v{vINIT}, v{vFA}, v{vONE} offset:{4*f}")
        I("s_mov_b64 exec, -1")
        return t

    def hsig_check(stage, t):
        lab = g.newlabel("L_hs")
        g.wait(t)
        I(f"v_readfirstlane_b32 s{sT4}, v{vINIT}")
        I(f"s_cmp_lg_u32 s{sT4}, 7")
        I(f"s_cbranch_scc1 {lab}")
        g.cond_begin()
        I("s_mov_b64 exec, 1")
        I(f"s_lshl_b32 s{sT0}, s{sG}, 8")
        I(f"s_add_u32 s{sT0}, s{sT0}, {WS_CNT + CNT_HH * 4096 + 64 * stage}")
        I(f"v_mov_b32 v{vCNT}, s{sT0}")
        I(f"buffer_atomic_add v{vONE}, v{vCNT}, {srd(sWS)}, 0 offen sc1")
        I("s_mov_b64 exec, -1")
        g.cond_end()
        g.label(lab)

    def cs_read(dst, mat, dbl):
        t = None
        for q in range(4):
            t = I(f"ds_read_b128 {vr(dst+4*q,4)}, v{vCSA} offset:{mat*512 + (64*dbl+8*q)*4}")
        return t

    def gpart(ag, t):
        g.wait(t)
        for i in range(16):
            I(f"v_fmac_f32 v{ag+i}, v{NMU}, v{TM+i}")
        for i in range(16):
            I(f"v_mul_f32 v{TM+i}, v{ag+i}, v{ag+i}")
        for i in range(16):
            I(f"v_fma_f32 v{TM+i}, v{TM+i}, v{K2}, v{K1}")
        for i in range(16):
            I(f"v_mul_f32 v{TM+i}, v{TM+i}, v{ag+i}")
        for i in range(16):
            I(f"v_exp_f32 v{TM+i}, v{TM+i}")
        for i in range(16):
            I(f"v_fma_f32 v{TM+i}, v{TM+i}, v{IR2}, v{IR2}")
        for i in range(16):
            I(f"v_rcp_f32 v{TM+i}, v{TM+i}")
        for i in range(16):
            I(f"v_mul_f32 v{TM+i}, v{ag+i}, v{TM+i}")

    def upart(au, t, dbl):
        g.wait(t)
        for i in range(16):
            I(f"v_fmac_f32 v{au+i}, v{NMU}, v{CS2+i}")
        for i in range(16):
            I(f"v_mul_f32 v{au+i}, v{au+i}, v{TM+i}")
        for i in range(8):
            I(f"v_cvt_pk_bf16_f32 v{CS2+i}, v{au+2*i}, v{au+2*i+1}")
        I(f"s_add_u32 s{sE}, s{sHB}, {dbl*4096}")
        I(f"buffer_store_dwordx4 {vr(CS2,4)}, v{vL16}, {srd(sWS)}, s{sE} offen sc1")
        return I(f"buffer_store_dwordx4 {vr(CS2+4,4)}, v{vL16}, {srd(sWS)}, s{sE} offen offset:1024 sc1")

    slots = []
    for c in range(28):
        slots.append((A_, c * 2048, c))
        slots.append((B_, 57344 + c * 2048, c))
    for c in range(28):
        slots.append((C_, 114688 + c * 2048 if c < 20 else (c - 20) * 2048, c))
    for c in range(28):
        slots.append((A_, 16384 + c * 2048 if c < 12 else 57344 + (c - 12) * 2048, c))
    NS = 112
    PRC = int(os.environ.get('PRC', '14'))
    depth = int(os.environ.get('DEPTH', '4'))
    nb = depth + 1
    tok = {}

    def rd(i):
        off = slots[i][1]
        base = vA0
        if off >= 114688:
            base, off = vA2, off - 114688
        elif off >= 57344:
            base, off = vA1, off - 57344
        dst = WFc + 4 * (i % nb)
        I(f"ds_read_b64_tr_b16 {vr(dst,2)}, v{base} offset:{off}")
        tok[i] = I(f"ds_read_b64_tr_b16 {vr(dst+2,2)}, v{base} offset:{off+512}")

    sched = {i: [] for i in range(NS)}
    load = {i: 0.0 for i in range(NS)}
    BUDGET = float(os.environ.get("BUDGET", "6"))

    def cost(it):
        if it.kind != "i":
            return 0
        m = it.text.split()[0]
        if m in TRANS:
            return 2
        if m in ("v_fma_f32", "v_fmac_f32"):
            return 1.25
        if m.startswith("v_"):
            return 1
        if m.startswith(("ds_", "buffer")):
            return 0.4
        return 0.1

    def cap(fn):
        g.begin()
        r = fn()
        return g.end(), r

    def at(slot, fn):
        st, r = cap(fn)
        for it in st:
            sched[slot].append(it)
            load[slot] += cost(it)
        return r

    rest = []

    def flow(stream, slot):
        pend = []
        for it in stream:
            pend.append(it)
            if it.kind != "i":
                continue
            c = sum(cost(x) for x in pend)
            while slot < NS and load[slot] + c > BUDGET:
                slot += 1
            if slot >= NS:
                rest.extend(pend)
            else:
                sched[slot].extend(pend)
                load[slot] += c
            pend = []
        return slot

    k_ = 0
    for it in hl[10:]:
        sched[k_].append(it)
        if it.text.startswith("buffer"):
            k_ += 1

    def refill(f, free_slot, batches, need_slot):
        at(free_slot, lambda: cnt_add(f))
        t = at(free_slot + 2, lambda: cnt_issue(f))
        at(free_slot + 3, lambda: cnt_check(f, t))
        st, tb = cap(batches)
        for q in range(len(st) // 3):
            for it in st[3 * q:3 * q + 3]:
                sched[free_slot + 3 + 2 * q].append(it)
        if need_slot is not None:
            at(need_slot - depth - 3, lambda: (g.wait(tb), cnt_add(f + 1)))
            t2 = at(need_slot - depth - 2, lambda: cnt_issue(f + 1))
            at(need_slot - depth - 1, lambda: cnt_check(f + 1, t2))
        return tb
    F0 = int(os.environ.get("F0", "40"))
    at(F0, lambda: cnt_add(0))
    t = at(F0 + 2, lambda: cnt_issue(0))
    at(F0 + 3, lambda: cnt_check(0, t))
    st1, tb1 = cap(lambda: c_batch(0, 1, 40, 56, 0))
    st2, tb2 = cap(lambda: (c_batch(1, 1, 0, 24, 16384), c_batch(1, 1, 24, 56, 57344))[1])
    st = st1 + st2
    for q in range(9):
        sched[F0 + 3 + 2 * q].extend(st[3 * q:3 * q + 3])
    at(76 - depth - 3, lambda: (g.wait(tb2), cnt_add(1)))
    t2_ = at(76 - depth - 2, lambda: cnt_issue(1))
    at(76 - depth - 1, lambda: cnt_check(1, t2_))
    at(56, lambda: cnt_add(2))
    t = at(72, lambda: cnt_issue(2))
    at(73, lambda: cnt_check(2, t))
    for m in range(5):
        at(73 + 2 * m, lambda: wd_dma(m))
    tM = refill(4, 84, lambda: [wd_dma(m) for m in range(5, 12)][-1], None)
    if "not2" not in EXP and "t2b" not in EXP:
        at(int(os.environ.get("T2", "40")), touch2)

    def h_issue_from(c0):
        def f():
            tl = []
            for c in range(c0, 28):
                if c % 4 == 0:
                    I(f"s_add_u32 s{sT2}, s{sWB}, {c*1024}")
                tl.append(I(f"buffer_load_dwordx4 {vr(HF+4*c,4)}, v{vL16}, {srd(sWS)}, s{sT2} offen offset:{(c%4)*1024} sc1"))
            return tl
        return f

    def hcheck(q):
        lr, lb = g.newlabel("L_hr"), g.newlabel("L_hb")
        g.wait(th[4 * q + 3])
        sent_check([HF + 4 * c for c in range(4 * q, 4 * q + 4)], vT1)
        I(f"s_cmp_lg_u64 vcc, 0")
        I(f"s_cbranch_scc1 {lr}")
        g.label(lb)
        g.begin()
        g.label(lr)
        check_loop(h_issue_from(4 * q), [HF + 4 * c for c in range(4 * q, 28)], vT1)
        I(f"s_branch {lb}")
        tails.append(g.end())
    t1 = at(54, lambda: cs_read(TM, 0, 0))
    t2 = at(55, lambda: cs_read(CS2, 1, 0))
    def epiA():
        g.wait(t2)
        for i in range(16):
            I(f"v_fmac_f32 v{A_+i}, v{NMU}, v{TM+i}")
        for i in range(16):
            I(f"v_fmac_f32 v{B_+i}, v{NMU}, v{CS2+i}")
        for i in range(16):
            I(f"v_mul_f32 v{TM+i}, v{A_+i}, v{A_+i}")
        for i in range(16):
            I(f"v_fma_f32 v{TM+i}, v{TM+i}, v{K2}, v{K1}")
        for i in range(16):
            I(f"v_mul_f32 v{TM+i}, v{TM+i}, v{A_+i}")
        for i in range(16):
            I(f"v_mul_f32 v{B_+i}, v{B_+i}, v{A_+i}")

    def epiB():
        for i in range(16):
            I(f"v_exp_f32 v{TM+i}, v{TM+i}")
        for i in range(16):
            I(f"v_fma_f32 v{TM+i}, v{TM+i}, v{IR2}, v{IR2}")
        for i in range(16):
            I(f"v_rcp_f32 v{TM+i}, v{TM+i}")
        for i in range(16):
            I(f"v_mul_f32 v{B_+i}, v{B_+i}, v{TM+i}")
        for i in range(8):
            I(f"v_cvt_pk_bf16_f32 v{CS2+i}, v{B_+2*i}, v{B_+2*i+1}")
        I(f"buffer_store_dwordx4 {vr(CS2,4)}, v{vL16}, {srd(sWS)}, s{sHB} offen sc1")
        return I(f"buffer_store_dwordx4 {vr(CS2+4,4)}, v{vL16}, {srd(sWS)}, s{sHB} offen offset:1024 sc1")
    st, _ = cap(epiA)
    e = flow(st, 57)
    assert e < 83, e
    st, tst0 = cap(epiB)
    e = flow(st, e)
    t1 = at(max(e, 85), lambda: cs_read(TM, 0, 1))
    t2 = at(min(e + 9, 109), lambda: cs_read(CS2, 1, 1))
    st, _ = cap(lambda: gpart(C_, t1))
    flow(st, max(e, 85) + 2)
    def flag_issue():
        I(f"s_lshl_b32 s{sT0}, s{sGB}, 8")
        I(f"s_add_u32 s{sT0}, s{sT0}, {WS_CNT + CNT_HH * 4096}")
        return I(f"buffer_load_dword v{vT4}, off, {srd(sWS)}, s{sT0} sc1")
    print("slot loads:", " ".join("%.0f" % load[i] for i in range(NS)), "rest", len(rest))
    for i in range(depth):
        rd(i)
    for i in range(NS):
        acc, off, c = slots[i]
        if i + depth < NS:
            rd(i + depth)
        if PRC and i % PRC == 0:
            I(f"s_setprio {3 - (i // PRC) % 4}")
        if i < 56 and i % 8 == 0:
            hcheck(i // 8)
        g.wait(tok[i])
        I(f"v_mfma_f32_32x32x16_bf16 {vr(acc,16)}, {vr(WFc+4*(i%nb),4)}, {vr(HF+4*c,4)}, {'0' if c == 0 else vr(acc,16)}")
        g.put(sched[i])
        if i in (55, 83, 111):
            stamp(f"slot{i}")
    g.put(rest)
    tlast = upart(A_, t2, 1)
    stamp("hh stored")
    DACC = 184
    frag = {n: 16 + 8 * n for n in range(14)}
    abuf = {c: 128 + 4 * c for c in range(14)}
    ta = {}
    vP = {(sL5, 114688): (vT0, vT1), (sL2, 0): (vT2, vT3), (sL3, 16384): (vT4, vT5), (sL3, 90112): (vINIT, vCNT - 0), (sL4, 57344): (252, 15)}
    vP[(sL3, 90112)] = (vG, vM16)
    dt_pattern(vFLAG, vT0, vT1)
    for (sreg, base), (a0, a1) in vP.items():
        I(f"v_add_u32 v{a0}, s{sreg}, v{vFLAG}")
        if base:
            I(f"v_add_u32 v{a0}, {base}, v{a0}")
        I(f"v_xor_b32 v{a1}, 64, v{a0}")

    def wd_read(m):
        n, rd_ = m // 2, m % 2
        sreg, imm = wslot[m]
        key = max((k for k in vP if k[0] == sreg and k[1] <= imm), key=lambda k: k[1])
        a = vP[key]
        imm -= key[1]
        t = None
        for nt in range(2):
            t = I(f"ds_read_b64_tr_b16 {vr(frag[n]+4*nt+2*rd_,2)}, v{a[nt]} offset:{imm}")
        return t

    def lda(c):
        for mt in range(2):
            I(f"s_add_u32 s{sT1}, s{sRA[c % 7]}, {mt*112*1024 + (4096 if c >= 7 else 0)}")
            ta[c, mt] = I(f"buffer_load_dwordx4 {vr(abuf[c]+4*mt,4)}, v{vL16}, {srd(sWS)}, s{sT1} offen sc1")

    def mm(c, first):
        for mt in range(2):
            g.wait(ta[c, mt])
            for nt in range(2):
                a = DACC + (mt * 2 + nt) * 16
                I(f"v_mfma_f32_32x32x16_bf16 {vr(a,16)}, {vr(frag[c]+4*nt,4)}, {vr(abuf[c]+4*mt,4)}, {'0' if first else vr(a,16)}")
    I("s_setprio 3")
    g.wait(tM)
    t = None
    for m in range(12):
        t = wd_read(m)
    g.wait(t)
    twd = {}
    for m in range(19, 28):
        twd[m] = wd_dma(m)
        if m == 22:
            th_ = hsig_issue(6, [tlast])
            hsig_check(0, th_)
    I("s_barrier")
    for m in range(12, 19):
        twd[m] = wd_dma(m)
    stamp("wd issued")
    I("s_setprio 0")
    lab = g.newlabel("L_fp")
    I(f"s_cmp_lg_u32 s{sW}, 0")
    I(f"s_cbranch_scc1 {lab}")
    g.cond_begin()
    hh_poll(0)
    g.cond_end()
    g.label(lab)
    g.wait(twd[27])
    for m in range(19, 28):
        wd_read(m)
    g.wait(twd[18])
    for m in range(12, 19):
        wd_read(m)
    g.wait_all(vm=False)
    I("s_barrier")
    stamp("hh flag")

    def lda1(c, mt):
        I(f"s_add_u32 s{sT1}, s{sRA[c % 7]}, {mt*112*1024 + (4096 if c >= 7 else 0)}")
        ta[c, mt] = I(f"buffer_load_dwordx4 {vr(abuf[c],4)}, v{vL16}, {srd(sWS)}, s{sT1} offen sc1")
    for c in range(14):
        lda1(c, 0)
    HR = 248
    I(f"v_and_b32 v{vT0}, 7, v0")
    I(f"v_lshrrev_b32 v{vT1}, 3, v0")
    I(f"v_bfe_u32 v{vFLAG}, v0, 3, 5")
    I(f"v_lshlrev_b32 v{vFLAG}, 4, v{vFLAG}")
    I(f"v_lshl_add_u32 v{vFLAG}, v{vT0}, 9, v{vFLAG}")
    I(f"s_add_u32 s{sE}, s{sMD}, s{sWH}")
    I(f"s_mul_i32 s{sE}, s{sE}, {28*1024}")
    I(f"s_lshl_b32 s{sT1}, s{sCB}, 12")
    I(f"s_add_u32 s{sE}, s{sE}, s{sT1}")
    I(f"s_add_u32 s{sE}, s{sE}, {WS_H}")
    I(f"s_mul_i32 s{sT0}, s{sW}, {64*272}")
    I(f"v_mul_u32_u24 v{vT3}, 272, v{vM}")
    I(f"v_lshl_add_u32 v{vT3}, v{vHB}, 4, v{vT3}")
    I(f"v_add_u32 v{vT3}, s{sT0}, v{vT3}")
    I(f"v_mul_u32_u24 v{vT4}, 272, v{vT1}")
    I(f"v_lshl_add_u32 v{vT4}, v{vT0}, 5, v{vT4}")
    I(f"v_add_u32 v{vT5}, {4*64*272}, v{vT4}")
    I(f"v_mul_u32_u24 v{vT2}, 896, v{vT1}")
    I(f"v_lshl_add_u32 v{vT2}, v{vT0}, 4, v{vT2}")
    I(f"s_mul_i32 s{sT0}, s{sMD}, {32*896}")
    I(f"s_lshl_b32 s{sT2}, s{sCB}, 7")
    I(f"s_add_u32 s{sT0}, s{sT0}, s{sT2}")
    hold = {}

    def pw(mt, k):
        nt, q = k // 4, k % 4
        I(f"ds_write_b128 v{vT3}, {vr(DACC+(mt*2+nt)*16+4*q,4)} offset:{mt*32*272 + nt*128 + q*32}")
    for mt in range(2):
        for c in range(14):
            g.wait(ta[c, mt])
            for nt in range(2):
                a = DACC + (mt * 2 + nt) * 16
                I(f"v_mfma_f32_32x32x16_bf16 {vr(a,16)}, {vr(frag[c]+4*nt,4)}, {vr(abuf[c],4)}, {'0' if c == 0 else vr(a,16)}")
            if mt == 0:
                lda1(c, 1)
            elif 2 <= c < 10:
                pw(0, c - 2)
        if mt == 0:
            hold["thr"] = I(f"buffer_load_dwordx4 {vr(HR,4)}, v{vFLAG}, {srd(sWS)}, s{sE} offen sc1")
            stamp("D early")
    stamp("D mfma")
    for k in range(8):
        pw(1, k)
    g.wait(hold["thr"])
    U = 88
    for i in range(4):
        I(f"v_lshlrev_b32 v{U+2*i}, 16, v{HR+i}")
        I(f"v_and_b32 v{U+2*i+1}, 0xffff0000, v{HR+i}")
    g.wait_all(vm=False)
    I("s_barrier")
    R = 16
    for w in range(8):
        for q in range(2):
            I(f"ds_read_b128 {vr(R+w*8+q*4,4)}, v{vT4 if w < 4 else vT5} offset:{(w%4)*64*272 + q*16}")
    g.wait_all(vm=False)
    for k in (32, 16, 8):
        for i in range(k):
            I(f"v_add_f32 v{R+i}, v{R+i}, v{R+k+i}")
    for i in range(8):
        I(f"v_add_f32 v{R+i}, v{R+i}, v{U+i}")
    for i in range(4):
        I(f"v_cvt_pk_bf16_f32 v{R+8+i}, v{R+2*i}, v{R+2*i+1}")
    I(f"buffer_store_dwordx4 {vr(R+8,4)}, v{vT2}, {srd(sOUT)}, s{sT0} offen")
    stamp("end")
    stamp("rt1", rt=True)
    if "span" in EXP:
        I(f"s_cmp_lg_u32 s{sW}, 7")
        I("s_cbranch_scc1 L_end")
        I("s_and_b32 s90, s2, 7")
        I("s_cmp_lg_u32 s90, 3")
        I("s_cbranch_scc1 L_end")
        I("s_waitcnt vmcnt(0)")
        I("s_memrealtime s[90:91]")
        I("s_memtime s[92:93]")
        I("s_waitcnt lgkmcnt(0)")
        I("s_mov_b64 exec, 1")
        I("s_not_b32 s86, s86")
        I("s_sub_u32 s92, s92, s100")
        I("v_mov_b32 v20, s86")
        I("v_mov_b32 v21, s90")
        I("v_mov_b32 v22, s92")
        I(f"buffer_atomic_umax v20, off, {srd(sDBG)}, 0 offset:4 sc1")
        I(f"buffer_atomic_umax v21, off, {srd(sDBG)}, 0 offset:8 sc1")
        I(f"buffer_atomic_umax v22, off, {srd(sDBG)}, 0 offset:12 sc1")


prologue()
two = phaseA()
twd = phaseB(two)
phaseCD(twd)
g.label("L_end")
I("s_endpgm")
for tl_ in TAILS:
    g.put(tl_)
g.insert_bg()
g.resolve_waits()
g.fix_hazards_fast()

hdr = open("cdna_kernels/" + NAME + ".s.ref").read().split("; Override launch geometry")[0]
out = hdr + f"""; @launch grid=(256,1,1) block=(512,1,1) lds=163840
.amdgcn_target "amdgcn-amd-amdhsa--gfx950"
.text
.globl {NAME}_kernel
.p2align 8
.type {NAME}_kernel,@function
{NAME}_kernel:
L_code_start:
{g.text()}
L_code_end:
.fill 64, 4, 0xbf800000
.section .rodata,"a"
.p2align 6
.amdhsa_kernel {NAME}_kernel
  .amdhsa_next_free_vgpr 256
  .amdhsa_next_free_sgpr 102
  .amdhsa_accum_offset 256
  .amdhsa_group_segment_fixed_size 0
  .amdhsa_kernarg_size 88
  .amdhsa_user_sgpr_count 2
  .amdhsa_user_sgpr_kernarg_segment_ptr 1
  .amdhsa_system_sgpr_workgroup_id_x 1
.end_amdhsa_kernel
"""
import subprocess, re as _re
open("_sz.s", "w").write(out.replace("CODE_LAST", "0x1000"))
subprocess.run(["clang", "-x", "assembler", "-target", "amdgcn-amd-amdhsa", "-mcpu=gfx950", "-c", "_sz.s", "-o", "_sz.o"], check=True)
_h = subprocess.run(["llvm-objdump", "-h", "_sz.o"], capture_output=True, text=True).stdout
_sz = int(_re.search(r"\.text\s+([0-9a-f]+)", _h).group(1), 16)
out = out.replace("CODE_LAST", hex(_sz - 768))
print("code bytes", _sz)
open(sys.argv[1], "w").write(out)
if STAMPS:
    open(sys.argv[1] + ".names", "w").write("\n".join(stamp_names))
print("instrs:", sum(1 for it in g.items if it.kind == "i"), "stamps:", nstamp[0])
```

```python
import sys, math, struct, os
sys.path.insert(0, "dev")
from gen import *

NAME = "sequential_preLN__linear_kernel_hedgehog__glu_gated_geglu__prompt"
STAMPS = int(sys.argv[2]) if len(sys.argv) > 2 else 0
EXP = sys.argv[3].split(",") if len(sys.argv) > 3 else []


def f32(x):
    return "0x%08x" % struct.unpack("<I", struct.pack("<f", x))[0]


WS_CNT = 0x0
WS_CS = 0x10000
WS_ST = 0x50000
WS_KVP = 0x100000
WS_O = 0x200000
WS_H = 0x400000
WS_HH = 0x600000
WS_STAMP = 0xE00000
CNT_KV, CNT_O, CNT_H, CNT_HH = 0, 1, 2, 3

sX, sWQKV, sWPHI, sWO, sWG, sWU, sWD, sOUT, sDBG, sWS = 8, 12, 16, 20, 24, 28, 32, 36, 40, 44
sG, sJ, sW = 48, 49, 50
sT0, sT1, sT2, sT3, sT4, sT5 = 51, 52, 53, 54, 55, 56
sW3, sWH = 57, 58
sA, sB, sC, sD, sE = 59, 60, 61, 62, 63
sSTAMP = 86
sGATH, sWB, sCW, sCL, sLOG = 88, 89, 90, 91, 92
sGB, sJB, sJC, sLI, sXC, sLW, sSTO = 93, 94, 95, 96, 97, 98, 99
OOB = 0x7ff00000
sBG, sWOB, sKVS, sOS, sHS, sSS, sHHS = 68, 70, 71, 72, 73, 74, 75


def srd(r):
    return f"s[{r}:{r+3}]"


def vr(a, n=1):
    return f"v{a}" if n == 1 else f"v[{a}:{a+n-1}]"


def ar(a, n=1):
    return f"a{a}" if n == 1 else f"a[{a}:{a+n-1}]"


g = Gen()
I = g.I
nstamp = [0]
stamp_names = []

vLANE, vG, vM16 = 1, 2, 3
vL16 = 4
vT0, vT1, vT2, vT3, vT4, vT5 = 5, 6, 7, 8, 9, 10
vFLAG, vONE, vCNT, vINIT, vDMY = 11, 12, 13, 14, 15


def stamp(name="", rt=False):
    if not STAMPS:
        return
    k = nstamp[0]
    nstamp[0] += 1
    stamp_names.append(name)
    g.cond_begin()
    I(f"{'s_memrealtime' if rt else 's_memtime'} s[{sSTAMP}:{sSTAMP+1}]")
    I("s_waitcnt lgkmcnt(0)")
    I(f"v_mov_b32 v{vCNT}, s{sSTAMP}")
    I(f"buffer_store_dword v{vCNT}, off, {srd(sWS)}, s{sSTO} offset:{4*k}")
    g.cond_end()


UNIT = 14336
LDS_WK = 8 * UNIT
LDS_KVF = 11 * UNIT
LDS_CS = LDS_KVF + 4096
LDS_FLG = LDS_CS + 1024
LDS_WPL = 10 * UNIT + 8192
LDS_KV2 = 8 * UNIT + 24576 + 4096
LDS_BSCR = 6 * UNIT


def prologue():
    I("s_cmp_ge_u32 s2, 256")
    I("s_cbranch_scc1 L_end")
    I("s_setprio 3")
    if "span" in EXP:
        I("s_memrealtime s[86:87]")
        I("s_memtime s[100:101]")
    I(f"s_load_dwordx2 s[{sX}:{sX+1}], s[0:1], 0")
    I("s_getpc_b64 s[4:5]")
    I(f"v_lshlrev_b32 v{vINIT}, 7, v0")
    I(f"s_and_b32 s{sT5}, s2, 24")
    I(f"s_cmp_eq_u32 s{sT5}, 0")
    I(f"s_cselect_b32 s{sT5}, CODE_LAST, 0")
    I(f"v_min_u32 v{vINIT}, s{sT5}, v{vINIT}")
    if "cp0" in EXP:
        I(f"global_load_dword v{vDMY}, v{vINIT}, s[4:5]")
    I("s_load_dwordx16 s[64:79], s[0:1], 0")
    I("s_load_dwordx4 s[80:83], s[0:1], 64")
    I("s_load_dwordx2 s[84:85], s[0:1], 80")
    I(f"v_and_b32 v{vLANE}, 63, v0")
    I(f"v_lshrrev_b32 v{vT0}, 6, v0")
    I(f"v_readfirstlane_b32 s{sW}, v{vT0}")
    I(f"v_lshrrev_b32 v{vG}, 4, v{vLANE}")
    I(f"s_bfe_u32 s{sT0}, s2, 0x20001")
    I(f"s_lshl_b32 s{sT0}, s{sT0}, 2")
    I(f"s_bfe_u32 s{sT1}, s2, 0x20003")
    I(f"s_add_u32 s{sG}, s{sT0}, s{sT1}")
    I(f"s_mov_b32 s{sX+2}, 1835008")
    I(f"s_mov_b32 s{sX+3}, 0x20000")
    I(f"v_lshrrev_b32 v{vT0}, 3, v{vLANE}")
    I(f"v_mul_u32_u24 v{vT0}, 896, v{vT0}")
    I(f"v_and_b32 v{vT1}, 7, v{vLANE}")
    I(f"v_xor_b32 v{vT3}, v{vT1}, v{vG}")
    I(f"v_lshl_add_u32 v{vXA0}, v{vT3}, 4, v{vT0}")
    I(f"v_xor_b32 v{vT3}, 4, v{vT3}")
    I(f"v_lshl_add_u32 v{vXA1}, v{vT3}, 4, v{vT0}")
    I(f"s_lshl_b32 s{sA}, s{sG}, 3")
    I(f"s_add_u32 s{sA}, s{sA}, s{sW}")
    I(f"s_mul_i32 s{sB}, s{sA}, {16*896}")
    I(f"s_add_u32 s{sC}, s{sB}, {8*896}")
    I(f"s_mul_i32 s{sLW}, s{sW}, {UNIT}")
    I(f"s_and_b32 s{sT2}, s2, 1")
    I(f"s_lshl_b32 s{sT3}, s{sT2}, 3")
    I(f"s_lshr_b32 s{sT4}, s2, 5")
    I(f"s_add_u32 s{sJ}, s{sT3}, s{sT4}")
    I(f"s_lshl_b32 s{sCL}, s{sW}, 10")
    I(f"v_lshrrev_b32 v{vT0}, 2, v{vLANE}")
    I(f"v_mul_u32_u24 v{vT0}, 2688, v{vT0}")
    I(f"v_and_b32 v{vT1}, 3, v{vLANE}")
    I(f"v_and_b32 v{vT2}, 2, v{vG}")
    I(f"v_xor_b32 v{vT1}, v{vT1}, v{vT2}")
    I(f"v_lshl_add_u32 v{vWA}, v{vT1}, 4, v{vT0}")
    I(f"s_mul_i32 s{sWB}, s{sJ}, 56")
    I(f"s_and_b32 s{sT1}, s{sJ}, 1")
    I(f"s_lshl_b32 s{sT1}, s{sT1}, 3")
    I(f"s_sub_u32 s{sWB}, s{sWB}, s{sT1}")
    I(f"s_mul_i32 s{sD}, s{sW}, {16*2688}")
    I(f"s_add_u32 s{sD}, s{sD}, s{sWB}")
    I(f"s_mov_b32 s{sWQKV+2}, 1204224")
    I(f"s_mov_b32 s{sWQKV+3}, 0x20000")
    if "t0" in EXP:
        I(f"s_lshr_b32 s{sLI}, s2, 3")
        I(f"s_mul_i32 s{sT2}, s{sLI}, {14*2688}")
        I(f"s_and_b32 s{sT3}, s2, 1")
        I(f"s_mul_i32 s{sT3}, s{sT3}, 384")
        I(f"s_add_u32 s{sT2}, s{sT2}, s{sT3}")
        I(f"s_mul_i32 s{sT3}, s{sW}, 896")
        I(f"s_add_u32 s{sT2}, s{sT2}, s{sT3}")
        I(f"s_cmp_ge_u32 s{sW}, 3")
        I(f"s_cselect_b32 s{sT3}, {OOB}, 0")
        I(f"s_add_u32 s{sT2}, s{sT2}, s{sT3}")
        I(f"v_lshrrev_b32 v{vT0}, 2, v{vLANE}")
        I(f"v_min_u32 v{vT0}, 13, v{vT0}")
        I(f"v_mul_u32_u24 v{vT0}, 2688, v{vT0}")
        I(f"v_and_b32 v{vT1}, 3, v{vLANE}")
        I(f"v_lshl_add_u32 v{vT4}, v{vT1}, 7, v{vT0}")
        I(f"s_mul_i32 s{sT4}, s{sT0}, 114688")
        I(f"s_mul_i32 s{sT5}, s{sLI}, 14336")
        I(f"s_add_u32 s{sT4}, s{sT4}, s{sT5}")
        I(f"s_sub_u32 s{sT5}, s{sW}, 3")
        I(f"s_cmp_lt_u32 s{sT5}, 2")
        I(f"s_cselect_b32 s{sT3}, 0, {OOB}")
        I(f"s_mul_i32 s{sT5}, s{sT5}, 7168")
        I(f"s_and_b32 s{sT5}, s{sT5}, 0x3fff")
        I(f"s_add_u32 s{sT4}, s{sT4}, s{sT5}")
        I(f"s_add_u32 s{sT4}, s{sT4}, s{sT3}")
        I(f"v_min_u32 v{vT5}, 55, v{vLANE}")
        I(f"v_lshlrev_b32 v{vT5}, 7, v{vT5}")
        I(f"s_mov_b32 s{sWQKV+2}, 1204224")
        I(f"s_mov_b32 s{sWQKV+3}, 0x20000")
    I("s_waitcnt lgkmcnt(0)")
    I(f"s_mov_b64 s[{sWQKV}:{sWQKV+1}], s[66:67]")
    if "t0" in EXP:
        I(f"buffer_load_dword v{vDMY}, v{vT5}, {srd(sX)}, s{sT4} offen")
        I(f"buffer_load_dword v{vDMY}, v{vT4}, {srd(sWQKV)}, s{sT2} offen")


def prologue2():
    I(f"v_and_b32 v{vM16}, 15, v{vLANE}")
    I(f"v_lshlrev_b32 v{vL16}, 4, v{vLANE}")
    I(f"v_mov_b32 v{vONE}, 1")
    I(f"s_and_b32 s{sXC}, s2, 7")
    I(f"s_lshr_b32 s{sLI}, s2, 3")
    I(f"s_and_b32 s{sT2}, s{sXC}, 1")
    I(f"s_lshl_b32 s{sT3}, s{sT2}, 3")
    I(f"s_lshr_b32 s{sT4}, s{sLI}, 2")
    I(f"s_add_u32 s{sJ}, s{sT3}, s{sT4}")
    I(f"s_lshl_b32 s{sGB}, s{sXC}, 1")
    I(f"s_and_b32 s{sT5}, s{sLI}, 1")
    I(f"s_add_u32 s{sGB}, s{sGB}, s{sT5}")
    I(f"s_lshr_b32 s{sJB}, s{sLI}, 1")
    I(f"s_mul_i32 s{sJC}, s{sT2}, 7")
    I(f"s_add_u32 s{sJC}, s{sJC}, s{sT4}")
    I(f"s_cmp_eq_u32 s{sT4}, 7")
    I(f"s_cselect_b32 s{sJC}, 15, s{sJC}")
    I(f"s_and_b32 s{sW3}, s{sW}, 3")
    I(f"s_lshr_b32 s{sWH}, s{sW}, 2")
    I(f"s_lshl_b32 s{sCL}, s{sW}, 10")
    for r, p, n in ((sWQKV, 66, 1204224), (sWPHI, 68, 25088), (sWO, 70, 401408),
                    (sWG, 74, 1605632), (sWU, 76, 1605632), (sWD, 78, 1605632), (sOUT, 80, 1835008),
                    (sDBG, 82, 256), (sWS, 84, 0x10000000)):
        I(f"s_mov_b64 s[{r}:{r+1}], s[{p}:{p+1}]")
        I(f"s_mov_b32 s{r+2}, {n}")
        I(f"s_mov_b32 s{r+3}, 0x20000")
    if STAMPS:
        I(f"s_lshl_b32 s{sSTO}, s2, 3")
        I(f"s_add_u32 s{sSTO}, s{sSTO}, s{sW}")
        I(f"s_lshl_b32 s{sSTO}, s{sSTO}, 7")
        I(f"s_add_u32 s{sSTO}, s{sSTO}, {WS_STAMP}")


POLL_MAX = 200000


def poll(srdreg, voff, target):
    lp, ld = g.newlabel("L_poll"), g.newlabel("L_pdone")
    I(f"s_mov_b32 s{sT5}, 0")
    g.label(lp)
    I(f"buffer_load_dword v{vFLAG}, v{voff}, {srd(srdreg)}, 0 offen sc1")
    I("s_waitcnt vmcnt(0)")
    I(f"v_readfirstlane_b32 s{sT4}, v{vFLAG}")
    I(f"s_add_u32 s{sT5}, s{sT5}, 1")
    I(f"s_cmp_ge_u32 s{sT5}, {POLL_MAX}")
    I(f"s_cbranch_scc1 {ld}")
    I(f"s_cmp_lt_u32 s{sT4}, {target}")
    I(f"s_cbranch_scc1 {lp}")
    g.label(ld)


def signal(kind, sidx, toks, first=False):
    g.wait(*toks)
    I("s_barrier")
    lab = g.newlabel("L_sig")
    I(f"s_cmp_lg_u32 s{sW}, 0")
    I(f"s_cbranch_scc1 {lab}")
    g.cond_begin()
    I("s_mov_b64 exec, 1")
    if first:
        l2 = g.newlabel("L_ini")
        I(f"v_readfirstlane_b32 s{sT4}, v{vINIT}")
        I(f"s_cmp_lg_u32 s{sT4}, 0")
        I(f"s_cbranch_scc1 {l2}")
        I(f"v_mov_b32 v{vCNT}, 0")
        poll(sDBG, vCNT, 1)
        g.label(l2)
    I(f"s_lshl_b32 s{sT0}, s{sidx}, 8")
    I(f"s_add_u32 s{sT0}, s{sT0}, {WS_CNT + kind * 4096}")
    I(f"v_mov_b32 v{vCNT}, s{sT0}")
    I(f"buffer_atomic_add v{vONE}, v{vCNT}, {srd(sWS)}, 0 offen sc1")
    I("s_mov_b64 exec, -1")
    g.cond_end()
    g.label(lab)


def waitflag(kind, sidx, target=16):
    lab = g.newlabel("L_w")
    I(f"s_cmp_lg_u32 s{sW}, 0")
    I(f"s_cbranch_scc1 {lab}")
    g.cond_begin()
    I("s_mov_b64 exec, 1")
    I(f"s_lshl_b32 s{sT0}, s{sidx}, 8")
    I(f"s_add_u32 s{sT0}, s{sT0}, {WS_CNT + kind * 4096}")
    I(f"v_mov_b32 v{vCNT}, s{sT0}")
    poll(sWS, vCNT, target)
    I("s_mov_b64 exec, -1")
    g.cond_end()
    g.label(lab)
    I("s_barrier")


def dma2(vaddr, srdreg, sbase, src_imm, lds_sreg, lds_imm, stmp=None):
    stmp = sT1 if stmp is None else stmp
    I(f"s_add_u32 m0, s{lds_sreg}, {lds_imm}")
    I(f"s_add_u32 s{stmp}, s{sbase}, {src_imm}")
    return I(f"buffer_load_dwordx4 v{vaddr}, {srd(srdreg)}, s{stmp} offen lds")


def xreduce(op, a, t, levels=(16, 32)):
    for lv in levels:
        I(f"v_mov_b32 v{t}, v{a}")
        I(f"v_permlane{lv}_swap_b32 v{a}, v{t}")
        I(f"{op} v{a}, v{a}, v{t}")


LOG2E = 1.4426950408889634

XF = 16
WR = 72
WPHI = 100
WPH2 = 108
SEL = 116
ACC = 124
ACCV = 132
WF = 140
TMP = 172
PH = 196
vXA0, vXA1, vWA, vTR, vXR0, vXR1, vCA = 204, 205, 206, 207, 208, 209, 252
vTRb, vTRc, vWOA = 211, 212, 213


def chain16(acc, rd, swap=False, depth=3, hook=None):
    toks = {}
    nb = depth + 1
    n = 14
    for c in range(depth):
        toks[c] = rd(c, WF + 8 * (c % nb))
    for c in range(n):
        if c + depth < n:
            toks[c + depth] = rd(c + depth, WF + 8 * ((c + depth) % nb))
        g.wait(toks[c])
        X = vr(XF + 4 * c, 4)
        for t in range(2):
            W = vr(WF + 8 * (c % nb) + 4 * t, 4)
            a = vr(acc + 4 * t, 4)
            C = a if c > 0 else "0"
            if swap:
                I(f"v_mfma_f32_16x16x32_bf16 {a}, {X}, {W}, {C}")
            else:
                I(f"v_mfma_f32_16x16x32_bf16 {a}, {W}, {X}, {C}")
        if hook is not None:
            hook(c)


def featmap(acc, out):
    pk = TMP
    p = acc
    e = TMP + 4
    mx, mn, t0, t1 = TMP + 12, TMP + 13, TMP + 14, TMP + 15
    for i in range(4):
        I(f"v_cvt_pk_bf16_f32 v{pk+i}, v{acc+2*i}, v{acc+2*i+1}")
    I(f"v_mfma_f32_16x16x32_bf16 {vr(p,4)}, {vr(WPHI,4)}, {vr(pk,4)}, 0")
    I(f"v_mfma_f32_16x16x32_bf16 {vr(p+4,4)}, {vr(WPHI+4,4)}, {vr(pk,4)}, 0")
    I(f"v_max3_f32 v{mx}, v{p}, v{p+1}, v{p+2}")
    I(f"v_min3_f32 v{mn}, v{p}, v{p+1}, v{p+2}")
    for i in (3, 5):
        I(f"v_max3_f32 v{mx}, v{mx}, v{p+i}, v{p+i+1}")
        I(f"v_min3_f32 v{mn}, v{mn}, v{p+i}, v{p+i+1}")
    for lv in (16, 32):
        I(f"v_mov_b32 v{t0}, v{mx}")
        I(f"v_mov_b32 v{t1}, v{mn}")
        I(f"v_permlane{lv}_swap_b32 v{mx}, v{t0}")
        I(f"v_permlane{lv}_swap_b32 v{mn}, v{t1}")
        I(f"v_max_f32 v{mx}, v{mx}, v{t0}")
        I(f"v_min_f32 v{mn}, v{mn}, v{t1}")
    I(f"v_mul_f32 v{mx}, {f32(-LOG2E)}, v{mx}")
    I(f"v_mul_f32 v{mn}, {f32(LOG2E)}, v{mn}")
    e2 = TMP + 16
    for i in range(7):
        I(f"v_fma_f32 v{e+i}, v{p+i}, s{sLOG}, v{mx}")
        I(f"v_fma_f32 v{e2+i}, -v{p+i}, s{sLOG}, v{mn}")
    for i in range(7):
        I(f"v_exp_f32 v{e+i}, v{e+i}")
        I(f"v_exp_f32 v{e2+i}, v{e2+i}")
    I(f"v_add_f32 v{mx}, v{e}, v{e+1}")
    I(f"v_add_f32 v{mn}, v{e2}, v{e2+1}")
    for i in range(2, 7):
        I(f"v_add_f32 v{mx}, v{mx}, v{e+i}")
        I(f"v_add_f32 v{mn}, v{mn}, v{e2+i}")
    for lv in (16, 32):
        I(f"v_mov_b32 v{t0}, v{mx}")
        I(f"v_mov_b32 v{t1}, v{mn}")
        I(f"v_permlane{lv}_swap_b32 v{mx}, v{t0}")
        I(f"v_permlane{lv}_swap_b32 v{mn}, v{t1}")
        I(f"v_add_f32 v{mx}, v{mx}, v{t0}")
        I(f"v_add_f32 v{mn}, v{mn}, v{t1}")
    I(f"v_rcp_f32 v{mx}, v{mx}")
    I(f"v_rcp_f32 v{mn}, v{mn}")
    for i in range(7):
        I(f"v_mul_f32 v{e+i}, v{e+i}, v{mx}")
        I(f"v_mul_f32 v{e2+i}, v{e2+i}, v{mn}")
    for i in range(3):
        I(f"v_cvt_pk_bf16_f32 v{out+i}, v{e+2*i}, v{e+2*i+1}")
        I(f"v_cvt_pk_bf16_f32 v{out+4+i}, v{e2+2*i}, v{e2+2*i+1}")
    I(f"v_cvt_pk_bf16_f32 v{out+3}, v{e+6}, 0")
    I(f"v_cvt_pk_bf16_f32 v{out+7}, v{e2+6}, 0")


def c_batch(mat, dbl, n0, n1, lds_base):
    t = None
    assert n0 % 8 == 0 and n1 % 8 == 0
    for i in range(n0 // 8, n1 // 8):
        t = dma2(vCA, sWG if mat == 0 else sWU, sCW, i * 8 * 8 * 3584 + dbl * 128, sCL, lds_base + (i * 8 - n0) * 1024)
    return t


def c_bg(mat, dbl, n0, n1, lds_base, after, gap=150):
    t = None
    for i in range(n0 // 8, n1 // 8):
        g.begin()
        t = dma2(vCA, sWG if mat == 0 else sWU, sCW, i * 8 * 8 * 3584 + dbl * 128, sCL, lds_base + (i * 8 - n0) * 1024, stmp=sBG)
        g.bg_add(g.end(), after, gap)
        NBG[0] += 1
    return t


NBG = [0]
TWD = {}
NWDBG = [0]


def bg(fn, after=None, gap=150):
    g.begin()
    r = fn()
    g.bg_add(g.end(), after, gap)
    NBG[0] += 1
    return r


def flush():
    g.mark(f"flush:{NBG[0]}")


def check_loop(issue, regs, tmp, body=None):
    lp, ld = g.newlabel("L_dp"), g.newlabel("L_dpd")
    I(f"s_mov_b32 s{sT5}, 0")
    g.label(lp)
    toks = issue()
    if body is not None:
        body(toks)
    g.wait(toks[-1])
    rs = list(regs)
    if len(rs) == 1:
        I(f"v_cmp_eq_u32 vcc, -1, v{rs[0]}")
    else:
        first = True
        acc = None
        while rs:
            if acc is None:
                if len(rs) >= 3:
                    I(f"v_max3_u32 v{tmp}, v{rs[0]}, v{rs[1]}, v{rs[2]}")
                    rs = rs[3:]
                else:
                    I(f"v_max_u32 v{tmp}, v{rs[0]}, v{rs[1]}")
                    rs = rs[2:]
                acc = tmp
            elif len(rs) >= 2:
                I(f"v_max3_u32 v{tmp}, v{tmp}, v{rs[0]}, v{rs[1]}")
                rs = rs[2:]
            else:
                I(f"v_max_u32 v{tmp}, v{tmp}, v{rs[0]}")
                rs = rs[1:]
        I(f"v_cmp_eq_u32 vcc, -1, v{tmp}")
    I(f"s_add_u32 s{sT5}, s{sT5}, 1")
    I(f"s_cmp_ge_u32 s{sT5}, {POLL_MAX}")
    I(f"s_cbranch_scc1 {ld}")
    I(f"s_cmp_lg_u64 vcc, 0")
    I(f"s_cbranch_scc1 {lp}")
    g.label(ld)


def sent_check(regs, tmp):
    rs = list(regs)
    acc = None
    while rs:
        if acc is None:
            if len(rs) >= 3:
                I(f"v_max3_u32 v{tmp}, v{rs[0]}, v{rs[1]}, v{rs[2]}")
                rs = rs[3:]
            else:
                I(f"v_max_u32 v{tmp}, v{rs[0]}, v{rs[1]}")
                rs = rs[2:]
            acc = tmp
        elif len(rs) >= 2:
            I(f"v_max3_u32 v{tmp}, v{tmp}, v{rs[0]}, v{rs[1]}")
            rs = rs[2:]
        else:
            I(f"v_max_u32 v{tmp}, v{tmp}, v{rs[0]}")
            rs = rs[1:]
    I(f"v_cmp_eq_u32 vcc, -1, v{tmp}")


TAILS = []


def spec_load(issue, regs, tmp, body=None, filler=None):
    lr, lb = g.newlabel("L_sr"), g.newlabel("L_sb")
    toks = issue()
    if filler is not None:
        filler()
    if body is not None:
        body(toks)
    g.wait(toks[-1])
    sent_check(regs, tmp)
    I(f"s_cmp_lg_u64 vcc, 0")
    I(f"s_cbranch_scc1 {lr}")
    g.label(lb)
    g.begin()
    g.label(lr)
    check_loop(issue, regs, tmp, body)
    I(f"s_branch {lb}")
    TAILS.append(g.end())


def c_setup():
    I(f"v_lshrrev_b32 v{vT0}, 3, v{vLANE}")
    I(f"v_mul_u32_u24 v{vT1}, 3584, v{vT0}")
    I(f"v_and_b32 v{vT2}, 1, v{vG}")
    I(f"v_lshlrev_b32 v{vT2}, 2, v{vT2}")
    I(f"v_and_b32 v{vCA}, 7, v{vLANE}")
    I(f"v_xor_b32 v{vCA}, v{vCA}, v{vT2}")
    I(f"v_lshl_add_u32 v{vCA}, v{vCA}, 4, v{vT1}")
    I(f"s_cmp_ge_u32 s{sJC}, 14")
    I(f"s_cselect_b32 s{sT0}, {OOB}, 0")
    I(f"v_add_u32 v{vCA}, s{sT0}, v{vCA}")
    I(f"s_mul_i32 s{sCW}, s{sW}, {8*3584}")
    I(f"s_lshl_b32 s{sT0}, s{sJC}, 8")
    I(f"s_add_u32 s{sCW}, s{sCW}, s{sT0}")


def touch1():
    I(f"s_mul_i32 s{sT0}, s{sLI}, {98*128}")
    I(f"s_mul_i32 s{sT1}, s{sW}, {13*128}")
    I(f"s_add_u32 s{sT0}, s{sT0}, s{sT1}")
    I(f"v_lshlrev_b32 v{vT0}, 7, v{vLANE}")
    I(f"v_mov_b32 v{vT2}, {OOB}")
    I(f"v_cmp_gt_u32 vcc, 13, v{vLANE}")
    I(f"v_cndmask_b32 v{vT0}, v{vT2}, v{vT0}, vcc")
    I(f"buffer_load_dword v{vDMY}, v{vT0}, {srd(sWO)}, s{sT0} offen")
    I(f"s_lshr_b32 s{sT0}, s{sW}, 1")
    I(f"s_lshl_b32 s{sT2}, s{sT0}, 2")
    I(f"s_mul_i32 s{sT0}, s{sT0}, {4*3584}")
    I(f"s_mul_i32 s{sT1}, s{sLI}, {14*3584}")
    I(f"s_add_u32 s{sT0}, s{sT0}, s{sT1}")
    I(f"s_and_b32 s{sT1}, s{sXC}, 1")
    I(f"s_mul_i32 s{sT1}, s{sT1}, 1792")
    I(f"s_add_u32 s{sT0}, s{sT0}, s{sT1}")
    I(f"v_mul_u32_u24 v{vT0}, 3584, v{vG}")
    I(f"v_lshl_add_u32 v{vT0}, v{vM16}, 7, v{vT0}")
    I(f"v_cmp_gt_u32 vcc, 14, v{vM16}")
    I(f"v_cndmask_b32 v{vT0}, v{vT2}, v{vT0}, vcc")
    I(f"v_add_u32 v{vT1}, s{sT2}, v{vG}")
    I(f"v_cmp_gt_u32 vcc, 14, v{vT1}")
    I(f"v_cndmask_b32 v{vT0}, v{vT2}, v{vT0}, vcc")
    I(f"buffer_load_dword v{vDMY}, v{vT0}, s[4:7], s{sT0} offen")


def touch2():
    I(f"s_mul_i32 s{sT2}, s{sLI}, {392*128}")
    I(f"s_mul_i32 s{sT1}, s{sW}, {49*128}")
    I(f"s_add_u32 s{sT2}, s{sT2}, s{sT1}")
    I(f"v_lshlrev_b32 v{vT1}, 7, v{vLANE}")
    I(f"v_mov_b32 v{vT2}, {OOB}")
    I(f"v_cmp_gt_u32 vcc, 49, v{vLANE}")
    I(f"v_cndmask_b32 v{vT1}, v{vT2}, v{vT1}, vcc")
    I(f"buffer_load_dword v247, v{vT1}, {srd(sWD)}, s{sT2} offen")


sNQ, sMTB, sCSS, sMTC = 76, 77, 78, 79
vT8, vCSS, vHSA, vSSA = 210, 214, 215, 199 + 0


def addr_setup():
    I(f"s_lshl_b32 s{sGATH}, s{sJ}, 16")
    I(f"s_add_u32 s{sGATH}, s{sGATH}, {WS_KVP}")
    I(f"s_lshl_b32 s{sKVS}, s{sG}, 12")
    I(f"s_add_u32 s{sKVS}, s{sKVS}, s{sGATH}")
    I(f"s_lshl_b32 s{sOS}, s{sA}, 4")
    I(f"s_add_u32 s{sOS}, s{sOS}, s{sJ}")
    I(f"s_lshl_b32 s{sOS}, s{sOS}, 10")
    I(f"s_add_u32 s{sOS}, s{sOS}, {WS_O}")
    I(f"s_lshl_b32 s{sCSS}, s{sJC}, 4")
    I(f"s_add_u32 s{sCSS}, s{sCSS}, s{sG}")
    I(f"s_lshl_b32 s{sCSS}, s{sCSS}, 10")
    I(f"s_add_u32 s{sCSS}, s{sCSS}, {WS_CS}")
    I(f"s_and_b32 s{sNQ}, s{sJB}, 3")
    I(f"s_lshr_b32 s{sMTB}, s{sJB}, 2")
    I(f"s_lshl_b32 s{sT0}, s{sGB}, 2")
    I(f"s_add_u32 s{sMTB}, s{sMTB}, s{sT0}")
    I(f"s_mul_i32 s{sHS}, s{sMTB}, 28")
    I(f"s_lshl_b32 s{sT1}, s{sNQ}, 3")
    I(f"s_add_u32 s{sHS}, s{sHS}, s{sT1}")
    I(f"s_lshl_b32 s{sHS}, s{sHS}, 10")
    I(f"s_add_u32 s{sHS}, s{sHS}, {WS_H}")
    I(f"s_lshl_b32 s{sSS}, s{sMTB}, 2")
    I(f"s_add_u32 s{sSS}, s{sSS}, s{sNQ}")
    I(f"s_lshl_b32 s{sSS}, s{sSS}, 8")
    I(f"s_add_u32 s{sSS}, s{sSS}, {WS_ST}")
    I(f"s_lshl_b32 s{sMTC}, s{sG}, 2")
    I(f"s_add_u32 s{sMTC}, s{sMTC}, s{sW3}")
    I(f"s_mul_i32 s{sHHS}, s{sMTC}, {112*1024}")
    I(f"s_lshl_b32 s{sT0}, s{sJC}, 13")
    I(f"s_add_u32 s{sHHS}, s{sHHS}, s{sT0}")
    I(f"s_lshl_b32 s{sT0}, s{sWH}, 11")
    I(f"s_add_u32 s{sHHS}, s{sHHS}, s{sT0}")
    I(f"s_add_u32 s{sHHS}, s{sHHS}, {WS_HH}")
    I(f"s_cmp_ge_u32 s{sJC}, 14")
    I(f"s_cselect_b32 s{sT0}, {OOB}, 0")
    I(f"s_add_u32 s{sHHS}, s{sHHS}, s{sT0}")
    I(f"s_lshr_b32 s{sT0}, s{sW}, 1")
    I(f"s_lshl_b32 s{sT0}, s{sT0}, 10")
    I(f"s_and_b32 s{sT1}, s{sW}, 1")
    I(f"s_lshl_b32 s{sT1}, s{sT1}, 3")
    I(f"s_add_u32 s{sT0}, s{sT0}, s{sT1}")
    I(f"v_add_u32 v{vT8}, s{sT0}, v{vL16}")
    I(f"s_cmp_ge_u32 s{sW}, 4")
    I(f"s_cselect_b32 s{sT0}, {OOB}, 0")
    I(f"v_lshlrev_b32 v{vCSS}, 2, v0")
    I(f"v_add_u32 v{vCSS}, s{sT0}, v{vCSS}")
    I(f"s_lshl_b32 s{sT1}, s{sW}, 2")
    I(f"v_and_b32 v{vT0}, 3, v{vLANE}")
    I(f"v_add_u32 v{vT0}, s{sT1}, v{vT0}")
    I(f"v_lshrrev_b32 v{vT1}, 2, v{vLANE}")
    I(f"v_lshlrev_b32 v{vHSA}, 9, v{vT1}")
    I(f"v_lshl_add_u32 v{vHSA}, v{vT0}, 4, v{vHSA}")
    I(f"s_cmp_eq_u32 s{sNQ}, 3")
    I(f"s_cselect_b32 s{sT1}, 8, 16")
    I(f"v_cmp_gt_u32 vcc, s{sT1}, v{vT1}")
    I(f"v_mov_b32 v{vT1}, {OOB}")
    I(f"v_cndmask_b32 v{vHSA}, v{vT1}, v{vHSA}, vcc")


def stats_addr(dst, t0, t1):
    I(f"s_lshl_b32 s{sBG}, s{sW}, 5")
    I(f"v_lshlrev_b32 v{t0}, 3, v{vLANE}")
    I(f"v_add_u32 v{t0}, s{sBG}, v{t0}")
    I(f"v_mov_b32 v{t1}, {OOB}")
    I(f"v_cmp_gt_u32 vcc, 4, v{vLANE}")
    I(f"v_cndmask_b32 v{dst}, v{t1}, v{t0}, vcc")


def sentinels0():
    lab = g.newlabel("L_init")
    I(f"s_lshl_b32 s{sT0}, s2, 3")
    I(f"s_add_u32 s{sT0}, s{sT0}, s{sW}")
    I(f"s_cmp_lg_u32 s{sT0}, 7")
    I(f"s_cbranch_scc1 {lab}")
    g.cond_begin()
    I(f"v_lshlrev_b32 v{vT0}, 8, v{vLANE}")
    I(f"v_mov_b32 v{vT1}, 0")
    I(f"buffer_store_dword v{vT1}, v{vT0}, {srd(sWS)}, 0 offen sc1")
    g.cond_end()
    g.label(lab)
    SN = 216
    for i in range(4):
        I(f"v_mov_b32 v{SN+i}, -1")
    I(f"buffer_store_dwordx2 {vr(SN,2)}, v{vT8}, {srd(sWS)}, s{sKVS} offen sc1")
    I(f"buffer_store_dwordx4 {vr(SN,4)}, v{vL16}, {srd(sWS)}, s{sOS} offen sc1")


def sentinels():
    SN = 216
    I(f"buffer_store_dword v{SN}, v{vCSS}, {srd(sWS)}, s{sCSS} offen sc1")
    I(f"buffer_store_dwordx4 {vr(SN,4)}, v{vHSA}, {srd(sWS)}, s{sHS} offen sc1")
    stats_addr(SN + 4, SN + 4, SN + 5)
    return I(f"buffer_store_dwordx2 {vr(SN,2)}, v{SN+4}, {srd(sWS)}, s{sSS} offen sc1")


def sent_hh(k):
    SN = 216
    I(f"s_add_u32 s{sBG}, s{sHHS}, {(k>>1)*4096 + (k&1)*1024}")
    return I(f"buffer_store_dwordx4 {vr(SN,4)}, v{vL16}, {srd(sWS)}, s{sBG} offen sc1")


def init_signal():
    lab = g.newlabel("L_is")
    I(f"s_cmp_lg_u32 s{sW}, 5")
    I(f"s_cbranch_scc1 {lab}")
    g.cond_begin()
    I("s_mov_b64 exec, 1")
    I(f"s_and_b32 s{sT0}, s2, 15")
    I(f"s_lshl_b32 s{sT0}, s{sT0}, 4")
    I(f"v_mov_b32 v{vCNT}, s{sT0}")
    I(f"buffer_atomic_add v{vONE}, v{vCNT}, {srd(sDBG)}, 0 offen sc1")
    I("s_mov_b64 exec, -1")
    g.cond_end()
    g.label(lab)


def init_check():
    lp, ld = g.newlabel("L_ic"), g.newlabel("L_icd")
    I(f"v_lshlrev_b32 v{vCNT}, 4, v{vM16}")
    I(f"s_mov_b32 s{sT5}, 0")
    g.label(lp)
    I("s_sleep 16")
    t = I(f"buffer_load_dword v{vINIT}, v{vCNT}, {srd(sDBG)}, 0 offen sc1")
    g.wait(t)
    I(f"v_cmp_gt_u32 vcc, 16, v{vINIT}")
    I(f"s_add_u32 s{sT5}, s{sT5}, 1")
    I(f"s_cmp_ge_u32 s{sT5}, {POLL_MAX}")
    I(f"s_cbranch_scc1 {ld}")
    I(f"s_cmp_lg_u64 vcc, 0")
    I(f"s_cbranch_scc1 {lp}")
    g.label(ld)


def phaseA():
    g.comment("==== phase A ====")
    if STAMPS:
        I("s_memrealtime s[96:97]")
        I("s_memtime s[94:95]")
        I("s_waitcnt lgkmcnt(0)")
        I("v_mov_b32 v250, s96")
        I("v_mov_b32 v251, s94")
    tx = {}
    for seg in range(7):
        for o in range(2):
            I(f"s_add_u32 m0, s{sLW}, {(o*7+seg)*1024 - seg*128}")
            tx[seg] = I(f"buffer_load_dwordx4 v{vXA1 if o else vXA0}, {srd(sX)}, s{sC if o else sB} offen offset:{seg*128} lds")
    I("s_setprio 2")
    if "cp0" not in EXP and "nocp" not in EXP:
        I(f"global_load_dword v{vDMY}, v{vINIT}, s[4:5]")
    for i in range(3):
        dma2(vWA, sWQKV, sD, 896 + i * 8 * 16 * 2688, sCL, LDS_WK + i * 8192)
    prologue2()
    if STAMPS:
        for nm, r in (("rt0", 250), ("start", 251)):
            g.cond_begin()
            I(f"buffer_store_dword v{r}, off, {srd(sWS)}, s{sSTO} offset:{4*nstamp[0]}")
            g.cond_end()
            nstamp[0] += 1
            stamp_names.append(nm)
    I(f"s_mov_b32 s{sLOG}, {f32(LOG2E)}")
    bgl = []
    bt = {}

    def bg_add(name, fn):
        bgl.append((name, fn))

    def bgq(n=1):
        for _ in range(n):
            if bgl:
                name, fn = bgl.pop(0)
                bt[name] = fn()

    def wk3():
        I(f"s_cmp_ge_u32 s{sW}, 4")
        I(f"s_cselect_b32 s{sT0}, {OOB}, 0")
        I(f"s_add_u32 s{sT0}, s{sT0}, s{sD}")
        dma2(vWA, sWQKV, sT0, 896 + 3 * 8 * 16 * 2688, sCL, LDS_WK + 3 * 8192)
        I(f"v_lshlrev_b32 v{vT0}, 4, v0")
        I(f"v_mov_b32 v{vT1}, {OOB}")
        I(f"v_cmp_gt_u32 vcc, 98, v0")
        I(f"v_cndmask_b32 v{vT0}, v{vT1}, v{vT0}, vcc")
        I(f"s_min_u32 s{sT0}, s{sCL}, 2048")
        I(f"s_add_u32 m0, s{sT0}, {LDS_WPL}")
        I(f"s_mul_i32 s{sT0}, s{sJ}, 1568")
        return I(f"buffer_load_dwordx4 v{vT0}, {srd(sWPHI)}, s{sT0} offen lds")
    bg_add("wk3", wk3)
    addr_setup()
    I(f"s_cmp_ge_u32 s{sW}, 4")
    I(f"s_cselect_b32 s{sE}, {(24-4)*16*2688}, {1792 + 24*16*2688}" if False else f"s_mov_b32 s{sE}, {1792 + 24*16*2688}")
    I(f"s_cmov_b32 s{sE}, {20*16*2688}")

    I(f"s_cselect_b32 s{sKC}, 10240, 0")
    I(f"s_max_u32 s{sKC}, s{sKC}, 3072")
    I(f"s_add_u32 s{sKC}, s{sKC}, s{sLW}")
    I(f"s_add_u32 s{sE}, s{sE}, s{sD}")

    def rawW(i):
        if i == 3:
            I(f"s_mov_b32 m0, s{sKC}")
            I("s_nop 0")
            return I(f"buffer_load_dwordx4 v{vWA}, {srd(sWQKV)}, s{sE} offen lds")
        off = 1792 + i * 8 * 16 * 2688 if i < 3 else (i - 4) * 8 * 16 * 2688
        return dma2(vWA, sWQKV, sD, off, sLW, i * 1024 if i < 3 else 10240 + (i - 3) * 1024)
    for i in range(4):
        bg_add(f"w{i}", lambda i=i: rawW(i))
    I(f"v_lshrrev_b32 v{vT0}, 3, v{vM16}")
    I(f"v_mul_u32_u24 v{vT0}, 7168, v{vT0}")
    I(f"v_add_u32 v{vT0}, s{sLW}, v{vT0}")
    I(f"v_and_b32 v{vT1}, 7, v{vM16}")
    I(f"v_lshl_add_u32 v{vT0}, v{vT1}, 7, v{vT0}")
    I(f"v_lshrrev_b32 v{vT1}, 1, v{vM16}")
    I(f"v_xor_b32 v{vT1}, v{vT1}, v{vG}")
    I(f"v_lshl_add_u32 v{vXR0}, v{vT1}, 4, v{vT0}")
    I(f"v_xor_b32 v{vXR1}, 64, v{vXR0}")
    I(f"v_bfe_u32 v{vT0}, v{vLANE}, 2, 2")
    I(f"v_lshl_add_u32 v{vT0}, v{vG}, 3, v{vT0}")
    I(f"v_lshlrev_b32 v{vT0}, 6, v{vT0}")
    I(f"v_and_b32 v{vT1}, 3, v{vLANE}")
    I(f"s_and_b32 s{sT1}, s{sJ}, 1")
    I(f"v_add_u32 v{vT1}, s{sT1}, v{vT1}")
    I(f"v_and_b32 v{vT2}, 1, v{vG}")
    I(f"v_lshlrev_b32 v{vT2}, 2, v{vT2}")
    I(f"v_xor_b32 v{vT1}, v{vT1}, v{vT2}")
    I(f"v_lshl_add_u32 v{vTR}, v{vT1}, 3, v{vT0}")
    I(f"v_lshrrev_b32 v{vT0}, 2, v{vM16}")
    I(f"v_and_b32 v{vT1}, 3, v{vM16}")
    I(f"v_cmp_eq_u32 vcc, v{vT0}, v{vG}")
    I(f"v_cndmask_b32 v{vT1}, 7, v{vT1}, vcc")
    I(f"v_mov_b32 v{vT3}, 0x3f80")
    I(f"v_mov_b32 v{vT4}, 0x3f800000")
    for i in range(2):
        I(f"v_cmp_eq_u32 vcc, {2*i}, v{vT1}")
        I(f"v_cndmask_b32 v{vT2}, 0, v{vT3}, vcc")
        I(f"v_cmp_eq_u32 vcc, {2*i+1}, v{vT1}")
        I(f"v_cndmask_b32 v{SEL+i}, v{vT2}, v{vT4}, vcc")
        I(f"v_mov_b32 v{SEL+6+i}, v{SEL+i}")
    for i in (2, 3, 4, 5):
        I(f"v_mov_b32 v{SEL+i}, 0")
    S1, S2 = ACC, ACC + 4
    for i in range(8):
        I(f"v_mov_b32 v{ACC+i}, 0")
    I(f"v_mov_b32 v{vT5}, 0x3f803f80")
    I(f"v_lshlrev_b32 v{vT0}, 2, v{vLANE}")
    I(f"v_add_u32 v{vT0}, {LDS_FLG}, v{vT0}")
    I(f"ds_write_b32 v{vT0}, v{ACC}")
    tw = {}
    if "tlb" in EXP:
        STR_ = int(os.environ.get("TLBS", "16"))
        I(f"v_lshlrev_b32 v{vT0}, {STR_}, v{vLANE}")
        lend = g.newlabel("L_tl")
        tb = [(sWO, 0), (sWG, 0), (sWU, 0), (sWD, 0), (sOUT, 0), (sWS, 0), (sWS, 0x400000), (sWS, 0x800000)]
        for w_, (r, off) in enumerate(tb):
            l2 = g.newlabel("L_tl")
            if w_ < 7:
                I(f"s_cmp_lg_u32 s{sW}, {w_}")
                I(f"s_cbranch_scc1 {l2}")
                g.cond_begin()
            I(f"s_mov_b32 s{sT0}, {off}")
            I(f"buffer_load_dword v{vDMY}, v{vT0}, {srd(r)}, s{sT0} offen")
            if w_ < 7:
                g.cond_end()
                I(f"s_branch {lend}")
                g.label(l2)
        g.label(lend)
    sentinels0()
    bgq(1)
    for seg in range(7):
        g.wait(tx[seg])
        I(f"ds_read_b128 {vr(XF+8*seg,4)}, v{vXR0} offset:{seg*1024}")
        t = I(f"ds_read_b128 {vr(XF+8*seg+4,4)}, v{vXR1} offset:{seg*1024}")
        if seg in (1, 2, 3, 4):
            bgq()
        g.wait(t)
        for k in range(8):
            r = XF + 8 * seg + k
            I(f"v_dot2_f32_bf16 v{S1+k%4}, v{r}, v{vT5}, v{S1+k%4}")
            I(f"v_dot2_f32_bf16 v{S2+k%4}, v{r}, v{r}, v{S2+k%4}")
    I("s_setprio 1")
    stamp("x stats")
    I(f"v_add_f32 v{S1}, v{S1}, v{S1+1}")
    I(f"v_add_f32 v{S1+2}, v{S1+2}, v{S1+3}")
    I(f"v_add_f32 v{S2}, v{S2}, v{S2+1}")
    I(f"v_add_f32 v{S2+2}, v{S2+2}, v{S2+3}")
    I(f"v_add_f32 v{S1}, v{S1}, v{S1+2}")
    I(f"v_add_f32 v{S2}, v{S2}, v{S2+2}")
    for lv in (16, 32):
        I(f"v_mov_b32 v{S1+1}, v{S1}")
        I(f"v_mov_b32 v{S2+1}, v{S2}")
        I(f"v_permlane{lv}_swap_b32 v{S1}, v{S1+1}")
        I(f"v_permlane{lv}_swap_b32 v{S2}, v{S2+1}")
        I(f"v_add_f32 v{S1}, v{S1}, v{S1+1}")
        I(f"v_add_f32 v{S2}, v{S2}, v{S2+1}")
    I(f"v_mul_f32 v{S1}, {f32(1/448)}, v{S1}")
    I(f"v_mul_f32 v{S2}, {f32(1/448)}, v{S2}")
    I(f"v_fma_f32 v{S2}, -v{S1}, v{S1}, v{S2}")
    I(f"v_max_f32 v{S2}, 0, v{S2}")
    I(f"v_add_f32 v{S2}, {f32(1e-5)}, v{S2}")
    RS, NB = ACCV, ACCV + 2
    I(f"v_rsq_f32 v{RS}, v{S2}")
    I(f"v_mul_f32 v{NB}, v{S1}, v{RS}")
    I(f"v_sub_f32 v{NB}, 0, v{NB}")
    I(f"v_mov_b32 v{RS+1}, v{RS}")
    I(f"v_mov_b32 v{NB+1}, v{NB}")
    TP = WF
    CSR = 248
    tcs = tinit = None
    for k in range(0, 56, 8):
        for u in range(8):
            I(f"v_lshlrev_b32 v{TP+2*u}, 16, v{XF+k+u}")
            I(f"v_and_b32 v{TP+2*u+1}, 0xffff0000, v{XF+k+u}")
        for u in range(8):
            I(f"v_pk_fma_f32 {vr(TP+2*u,2)}, {vr(TP+2*u,2)}, {vr(RS,2)}, {vr(NB,2)}")
        for u in range(8):
            I(f"v_cvt_pk_bf16_f32 v{XF+k+u}, v{TP+2*u}, v{TP+2*u+1}")
    I("s_setprio 0")
    stamp("normalized")
    I(f"v_mul_u32_u24 v{vT0}, 224, v{vG}")
    I(f"v_add_u32 v{vT0}, {LDS_WPL}, v{vT0}")
    I(f"v_lshl_add_u32 v{TMP}, v{vM16}, 1, v{vT0}")
    I(f"v_lshrrev_b32 v{vT2}, 2, v{vM16}")
    I(f"v_sub_u32 v{vT2}, v{vM16}, v{vT2}")
    I(f"v_lshl_add_u32 v{vT2}, v{vT2}, 1, v{vT0}")
    I(f"v_add_u32 v{TMP+1}, 32, v{vT2}")
    I(f"v_mov_b32 v{vT1}, {LDS_WPL + 1600}")
    I(f"v_and_b32 v{vT2}, 3, v{vM16}")
    I(f"v_cmp_eq_u32 vcc, 3, v{vT2}")
    I(f"v_cndmask_b32 v{TMP+1}, v{TMP+1}, v{vT1}, vcc")
    I(f"v_cmp_eq_u32 vcc, 3, v{vG}")
    I(f"v_cndmask_b32 v{TMP+2}, v{TMP}, v{vT1}, vcc")
    I(f"v_cndmask_b32 v{TMP+3}, v{TMP+1}, v{vT1}, vcc")
    I(f"v_add_u32 v{vTRb}, {LDS_WK}, v{vTR}")
    I(f"v_xor_b32 v{vTRc}, 32, v{vTRb}")
    def cs_loads():
        I(f"s_and_b32 s{sT0}, s{sW}, 1")
        I(f"s_cmp_eq_u32 s{sT0}, 1")
        I(f"s_cselect_b32 s4, s{sWU}, s{sWG}")
        I(f"s_cselect_b32 s5, s{sWU+1}, s{sWG+1}")
        I(f"s_mov_b32 s6, 1605632")
        I(f"s_mov_b32 s7, 0x20000")
        I(f"s_lshl_b32 s{sT0}, s{sG}, 2")
        I(f"s_lshr_b32 s{sT1}, s{sW}, 1")
        I(f"s_add_u32 s{sT0}, s{sT0}, s{sT1}")
        I(f"s_mul_i32 s{sT0}, s{sT0}, {7*3584}")
        I(f"s_lshl_b32 s{sT1}, s{sJC}, 8")
        I(f"s_add_u32 s{sT0}, s{sT0}, s{sT1}")
        I(f"s_cmp_ge_u32 s{sJC}, 14")
        I(f"s_cselect_b32 s{sT1}, {OOB}, 0")
        I(f"v_lshlrev_b32 v{vXA0}, 2, v{vLANE}")
        I(f"v_add_u32 v{vXA0}, s{sT1}, v{vXA0}")
        for r in range(7):
            if r:
                I(f"s_add_u32 s{sT0}, s{sT0}, 3584")
            tcs_ = I(f"buffer_load_dword v{CSR+r}, v{vXA0}, s[4:7], s{sT0} offen")
        return tcs_

    def init_load():
        I(f"v_mov_b32 v{vCNT}, 0")
        return I(f"buffer_load_dword v{vINIT}, v{vCNT}, {srd(sDBG)}, 0 offen sc1")
    bg_add("sent", sentinels)
    bg_add("cs", cs_loads)
    for i in (4, 5, 6):
        bg_add(f"w{i}", lambda i=i: rawW(i))
    bgq(int(os.environ.get("PRE1", "2")))
    g.wait(bt["wk3"])
    g.wait_all(vm=False)
    I("s_barrier")
    init_signal()

    def rdk(c, dst):
        I(f"ds_read_b64_tr_b16 {vr(dst,2)}, v{vTRb} offset:{c*2048}")
        I(f"ds_read_b64_tr_b16 {vr(dst+2,2)}, v{vTRb} offset:{c*2048+256}")
        I(f"ds_read_b64_tr_b16 {vr(dst+4,2)}, v{vTRc} offset:{c*2048}")
        return I(f"ds_read_b64_tr_b16 {vr(dst+6,2)}, v{vTRc} offset:{c*2048+256}")

    tphi = None
    for u in range(2):
        for j in range(8):
            d0 = j if j < 4 else 16 + j - 4
            va = TMP + u + (2 if j >= 4 else 0)
            dst = (WPH2 if j & 1 else WPHI) + 4 * u + j // 2
            tphi = I(f"ds_read_u16 v{dst}, v{va} offset:{d0*56}")
    I(f"v_lshrrev_b32 v{vWOA}, 3, v{vLANE}")
    I(f"v_mul_u32_u24 v{vWOA}, 896, v{vWOA}")
    I(f"v_and_b32 v{vT1}, 7, v{vLANE}")
    I(f"v_lshlrev_b32 v{vT2}, 1, v{vG}")
    I(f"v_xor_b32 v{vT1}, v{vT1}, v{vT2}")
    I(f"v_lshl_add_u32 v{vWOA}, v{vT1}, 4, v{vWOA}")
    I(f"s_lshl_b32 s{sWOB}, s{sNQ}, 1")
    I(f"s_add_u32 s{sWOB}, s{sWOB}, s{sWH}")
    I(f"s_cmp_eq_u32 s{sWOB}, 7")
    I(f"s_cselect_b32 s{sT1}, {OOB}, 0")
    I(f"s_lshl_b32 s{sWOB}, s{sWOB}, 7")
    I(f"s_add_u32 s{sWOB}, s{sWOB}, s{sT1}")
    I(f"s_mul_i32 s{sT1}, s{sW3}, {112*896}")
    I(f"s_add_u32 s{sWOB}, s{sWOB}, s{sT1}")
    two = {}

    def wo_load(i):
        two[i] = dma2(vWOA, sWO, sWOB, i * 8 * 896, sLW, i * 1024, stmp=sBG)
    for i in range(4, 10):
        bg_add(f"wo{i}", lambda i=i: wo_load(i))
    KH = eval(os.environ.get('KH', '(2, 6, 10)'))
    chain16(ACC, rdk, hook=lambda c: bgq() if c in KH else None)
    for i in range(8):
        I(f"v_lshl_or_b32 v{WPHI+i}, v{WPH2+i}, 16, v{WPHI+i}")
    stamp("k chain")
    I(f"v_lshrrev_b32 v{vT0}, 1, v{vG}")
    I(f"v_mul_u32_u24 v{vT0}, {UNIT-1024}, v{vT0}")
    I(f"v_add_u32 v{vTRb}, v{vT0}, v{vTR}")
    I(f"v_xor_b32 v{vTRc}, 32, v{vTRb}")
    I(f"v_add_u32 v{vXR0}, 57344, v{vTRb}")
    I(f"v_add_u32 v{vXR1}, 57344, v{vTRc}")
    g.wait(bt['w3'])
    I("s_barrier")
    stamp("wv ready")

    def rdw(isq):
        def rd(c, dst):
            n0 = 2 * c
            if not isq:
                unit, off = n0 % 8, (n0 // 8) * 1024
            elif n0 < 24:
                unit, off = n0 % 8, 10240 + (1 + n0 // 8) * 1024
            else:
                unit, off = 4 + n0 - 24, 10240
            a0, a1 = (vTRb, vTRc) if unit < 4 else (vXR0, vXR1)
            off += (unit % 4) * UNIT
            I(f"ds_read_b64_tr_b16 {vr(dst,2)}, v{a0} offset:{off}")
            I(f"ds_read_b64_tr_b16 {vr(dst+2,2)}, v{a0} offset:{off+256}")
            I(f"ds_read_b64_tr_b16 {vr(dst+4,2)}, v{a1} offset:{off}")
            return I(f"ds_read_b64_tr_b16 {vr(dst+6,2)}, v{a1} offset:{off+256}")
        return rd

    g.begin()
    chain16(ACCV, rdw(False), swap=True, hook=lambda c: bgq() if c in eval(os.environ.get('VH', '(1,3,5,7,9,11,13)')) else None)
    main = g.end()
    g.begin()
    featmap(ACC, PH)
    for s_ in range(2):
        for u in range(2):
            I(f"v_mfma_f32_16x16x32_bf16 {vr(TMP+8*s_+4*u,4)}, {vr(PH+4*s_,4)}, {vr(SEL+4*u,4)}, 0")
    side = g.end()
    g.put(interleave(main, side, every=1, per=4))
    PT = PH
    for k in range(8):
        I(f"v_cvt_pk_bf16_f32 v{PT+k}, v{TMP+2*k}, v{TMP+2*k+1}")
    VF = ACC
    I(f"v_cmp_le_u32 vcc, 12, v{vM16}")
    for k in range(4):
        I(f"v_cvt_pk_bf16_f32 v{VF+k}, v{ACCV+2*k}, v{ACCV+2*k+1}")
    I(f"v_cndmask_b32 v{VF+2}, v{VF+2}, v{vT5}, vcc")
    I(f"v_cndmask_b32 v{VF+3}, v{VF+3}, v{vT5}, vcc")
    I(f"s_lshr_b32 s{sT0}, s{sW}, 1")
    I(f"s_lshl_b32 s{sT0}, s{sT0}, 10")
    I(f"s_and_b32 s{sT1}, s{sW}, 1")
    I(f"s_lshl_b32 s{sT1}, s{sT1}, 3")
    I(f"s_add_u32 s{sT0}, s{sT0}, s{sT1}")
    I(f"s_add_u32 s{sT0}, s{sT0}, {LDS_WK}")
    I(f"v_add_u32 v{vT0}, s{sT0}, v{vL16}")
    for k in range(4):
        I(f"ds_write_b64 v{vT0}, {vr(PT+2*k,2)} offset:{k*4096}")
    for k in range(2):
        I(f"ds_write_b64 v{vT0}, {vr(VF+2*k,2)} offset:{(4+k)*4096}")
    g.wait(bt['cs'])
    I(f"v_mov_b32 v{ACCV}, 0\nv_mov_b32 v{ACCV+1}, 0")
    for r in range(7):
        I(f"v_dot2_f32_bf16 v{ACCV}, v{CSR+r}, v{vT3}, v{ACCV}")
        I(f"v_dot2_f32_bf16 v{ACCV+1}, v{CSR+r}, v{vT4}, v{ACCV+1}")
    I(f"v_lshlrev_b32 v{vT1}, 3, v0")
    I(f"v_add_u32 v{vT1}, {LDS_KVF}, v{vT1}")
    I(f"ds_write_b64 v{vT1}, {vr(ACCV,2)}")
    I(f"s_lshl_b32 s{sT0}, s{sWH}, 1")
    I(f"s_and_b32 s{sT1}, s{sW}, 1")
    I(f"s_add_u32 s{sT0}, s{sT0}, s{sT1}")
    I(f"s_lshl_b32 s{sT0}, s{sT0}, 12")
    I(f"s_add_u32 s{sT0}, s{sT0}, {LDS_WK}")
    I(f"v_add_u32 v{vT0}, s{sT0}, v{vL16}")
    I(f"s_bfe_u32 s{sT0}, s{sW}, 0x10001")
    I(f"s_lshl_b32 s{sT0}, s{sT0}, 12")
    I(f"s_add_u32 s{sT0}, s{sT0}, {LDS_WK + 4*4096}")
    I(f"v_add_u32 v{vT1}, s{sT0}, v{vL16}")
    g.wait(bt['w6'])
    g.wait_all(vm=False)
    I("s_barrier")
    R = WF
    tk = {}
    for p in range(4):
        I(f"ds_read_b128 {vr(R+8*p,4)}, v{vT0} offset:{p*1024}")
        tk[p] = I(f"ds_read_b128 {vr(R+8*p+4,4)}, v{vT1} offset:{p*1024}")
    I(f"v_lshlrev_b32 v{vXA0}, 2, v0")
    I(f"v_and_b32 v{vXA0}, 1023, v{vXA0}")
    I(f"v_add_u32 v{vXA0}, {LDS_KVF}, v{vXA0}")
    I(f"ds_read2st64_b32 {vr(ACCV,2)}, v{vXA0} offset0:0 offset1:4")
    tq = I(f"ds_read2st64_b32 {vr(ACCV+2,2)}, v{vXA0} offset0:8 offset1:12")
    for p in range(4):
        g.wait(tk[p])
        I(f"v_mfma_f32_16x16x32_bf16 {vr(ACC,4)}, {vr(R+8*p,4)}, {vr(R+8*p+4,4)}, {'0' if p == 0 else vr(ACC,4)}")
    g.wait(tq)
    I(f"v_add_f32 v{ACCV}, v{ACCV}, v{ACCV+1}")
    I(f"v_add_f32 v{ACCV+2}, v{ACCV+2}, v{ACCV+3}")
    I(f"v_add_f32 v{ACCV}, v{ACCV}, v{ACCV+2}")
    I(f"v_cvt_pk_bf16_f32 v{ACC+4}, v{ACC}, v{ACC+1}")
    I(f"v_cvt_pk_bf16_f32 v{ACC+5}, v{ACC+2}, v{ACC+3}")
    I(f"buffer_store_dwordx2 {vr(ACC+4,2)}, v{vT8}, {srd(sWS)}, s{sKVS} offen sc1")
    I(f"buffer_store_dword v{ACCV}, v{vCSS}, {srd(sWS)}, s{sCSS} offen sc1")
    stamp("kv stored")
    I(f"v_lshlrev_b32 v{vCNT}, 4, v{vM16}")
    tini = I(f"buffer_load_dword v{vINIT}, v{vCNT}, {srd(sDBG)}, 0 offen sc1")
    for i in range(4):
        bg_add(f"wo{i}", lambda i=i: wo_load(i))
    chain16(ACC, rdw(True), hook=lambda c: bgq() if c % 2 == 1 else None)
    bgq(99)
    c_bg(0, 0, 0, 56, 0, "qdone")
    c_bg(1, 0, 0, 24, 57344, "qdone")
    I("s_barrier")
    for i in range(10, 14):
        wo_load(i)
    featmap(ACC, PH)
    GR, R, AO, OS = 40, 96, 176, 184
    WOF = 112
    vB1, vB2, vB3 = 188, 189, 190
    vK0, vK1, vK2 = 191, 192, 193
    lr, lb = g.newlabel("L_ir"), g.newlabel("L_ib")
    g.wait(tini)
    I(f"v_cmp_gt_u32 vcc, 16, v{vINIT}")
    I(f"s_cmp_lg_u64 vcc, 0")
    I(f"s_cbranch_scc1 {lr}")
    g.label(lb)
    g.begin()
    g.label(lr)
    init_check()
    I(f"s_branch {lb}")
    TAILS.append(g.end())
    stamp("q done")

    I(f"s_lshl_b32 s{sT0}, s{sWH}, 15")
    I(f"s_lshl_b32 s{sT1}, s{sW3}, 10")
    I(f"s_add_u32 s{sGATH}, s{sGATH}, s{sT0}")
    I(f"s_add_u32 s{sGATH}, s{sGATH}, s{sT1}")

    def gat_issue():
        tl = []
        I(f"s_mov_b32 s{sT0}, s{sGATH}")
        for rb in range(8):
            if rb:
                I(f"s_add_u32 s{sT0}, s{sT0}, 4096")
            tl.append(I(f"buffer_load_dwordx4 {vr(GR+4*rb,4)}, v{vL16}, {srd(sWS)}, s{sT0} offen sc1"))
        return tl

    def gat_body(tl):
        for i in range(8):
            I(f"v_mov_b32 v{R+i}, 0")
        for rb in range(8):
            g.wait(tl[rb])
            for i in range(4):
                I(f"v_dot2_f32_bf16 v{R+2*i}, v{GR+4*rb+i}, v{vT3}, v{R+2*i}")
                I(f"v_dot2_f32_bf16 v{R+2*i+1}, v{GR+4*rb+i}, v{vT4}, v{R+2*i+1}")

    def wo_bounce():
        c_setup()
        d_setup()
        I(f"v_lshrrev_b32 v{vK0}, 2, v{vM16}")
        I(f"v_sub_u32 v{vK0}, v{vM16}, v{vK0}")
        I(f"v_and_b32 v{vT1}, 3, v{vM16}")
        I(f"v_cmp_eq_u32 vcc, 3, v{vT1}")
        I(f"v_cndmask_b32 v{vK0}, v{vK0}, 12, vcc")
        I(f"v_lshl_add_u32 v{vK0}, v{vG}, 4, v{vK0}")
        I(f"v_lshlrev_b32 v{vK0}, 4, v{vK0}")
        I(f"v_add_u32 v{vK0}, {LDS_KV2}, v{vK0}")
        I(f"v_add_u32 v{vK1}, {LDS_KV2}, v{vL16}")
        I(f"v_add_u32 v{vK2}, s{sCL}, v{vK1}")
        I(f"v_bfe_u32 v{vT1}, v{vLANE}, 2, 2")
        I(f"v_lshl_add_u32 v{vB1}, v{vG}, 2, v{vT1}")
        I(f"v_min_u32 v{vT1}, 2, v{vT1}")
        I(f"v_mad_u32_u24 v{vB2}, v{vG}, 3, v{vT1}")
        I(f"v_add_u32 v{vB2}, 16, v{vB2}")
        I(f"v_and_b32 v{vT1}, 3, v{vLANE}")
        I(f"v_lshlrev_b32 v{vT1}, 3, v{vT1}")
        I(f"v_add_u32 v{vT1}, s{sLW}, v{vT1}")
        AD = 72
        for rd_, vb in enumerate((vB1, vB2)):
            I(f"v_bfe_u32 v{vT2}, v{vb}, 1, 2")
            I(f"v_lshlrev_b32 v{vT2}, 5, v{vT2}")
            I(f"v_lshl_add_u32 v{vT2}, v{vb}, 7, v{vT2}")
            I(f"v_add_u32 v{AD+4*rd_}, v{vT2}, v{vT1}")
            for x in range(1, 4):
                I(f"v_xor_b32 v{AD+4*rd_+x}, {32*x}, v{AD+4*rd_}")
        g.wait(two[13])
        for hh in range(4):
            for nt in range(4):
                d = WOF + (hh * 4 + nt) * 4
                x = nt ^ (2 * (hh & 1))
                I(f"ds_read_b64_tr_b16 {vr(d,2)}, v{AD+x} offset:{hh*3584}")
                I(f"ds_read_b64_tr_b16 {vr(d+2,2)}, v{AD+4+x} offset:{hh*3584}")
    spec_load(gat_issue, [GR + 2 * k for k in range(16)], R + 12, gat_body, wo_bounce)
    g.mark("gdone")
    for i in range(4):
        I(f"v_cvt_pk_bf16_f32 v{R+8+i}, v{R+2*i}, v{R+2*i+1}")
    I(f"ds_write_b128 v{vK2}, {vr(R+8,4)}")
    g.wait_all(vm=False)
    stamp("gathered")
    I("s_barrier")
    g.mark("qdone")
    g.mark("burst:" + os.environ.get("BB0", "2"))
    KF = 40
    tk = {}
    for hf_ in range(2):
        for s_ in range(2):
            I(f"ds_read_b128 {vr(KF+16*hf_+8*s_,4)}, v{vK1} offset:{hf_*4096+s_*2048}")
            tk[hf_, s_] = I(f"ds_read_b128 {vr(KF+16*hf_+8*s_+4,4)}, v{vK0} offset:{hf_*4096+s_*2048+1024}")
    for hf_ in range(2):
        for s_ in range(2):
            g.wait(tk[hf_, s_])
            for t in range(2):
                a = vr(AO + 4 * t, 4)
                I(f"v_mfma_f32_16x16x32_bf16 {a}, {vr(KF+16*hf_+8*s_+4*t,4)}, {vr(PH+4*s_,4)}, {'0' if (s_ == 0 and hf_ == 0) else a}")
    I(f"v_add_f32 v{vT1}, {f32(1e-6)}, v{AO+7}")
    I(f"v_rcp_f32 v{vT1}, v{vT1}")
    for i in range(7):
        I(f"v_mul_f32 v{AO+i}, v{AO+i}, v{vT1}")
    for i in range(3):
        I(f"v_cvt_pk_bf16_f32 v{OS+i}, v{AO+2*i}, v{AO+2*i+1}")
    I(f"v_cvt_pk_bf16_f32 v{OS+3}, v{AO+6}, 0")
    I(f"buffer_store_dwordx4 {vr(OS,4)}, v{vL16}, {srd(sWS)}, s{sOS} offen sc1")
    stamp("o stored")
    if "t2b" in EXP:
        touch2()
    g.mark("on")
    return two


def woraw(i):
    return vr(216 + 4 * i, 4) if i < 8 else vr(WR + 4 * (i - 8), 4)


def phaseB(two):
    g.comment("==== phase B ====")
    OF = 216
    XR, XU, CSG = 176, 180, 188
    WOF = 112
    BACC = 72
    vB1, vB2, vB3 = 196, 197, 198
    vD1, vD2, vD3 = 199, 200, 201
    I(f"s_mul_i32 s{sT0}, s{sMTB}, {32*896}")
    I(f"s_lshl_b32 s{sT1}, s{sNQ}, 8")
    I(f"s_add_u32 s{sT0}, s{sT0}, s{sT1}")
    I(f"s_lshl_b32 s{sT1}, s{sW}, 2")
    I(f"v_and_b32 v{vT4}, 3, v{vLANE}")
    I(f"v_add_u32 v{vT4}, s{sT1}, v{vT4}")
    I(f"v_lshrrev_b32 v{vT5}, 2, v{vLANE}")
    I(f"v_add_u32 v{vT0}, s{sT1}, v{vG}")
    I(f"v_mul_u32_u24 v{vT0}, 896, v{vT0}")
    I(f"v_lshl_add_u32 v{vT0}, v{vM16}, 4, v{vT0}")
    I(f"s_cmp_ge_u32 s{sW}, 4")
    I(f"s_mov_b32 s{sT2}, 81920")
    I(f"s_cmov_b32 s{sT2}, {LDS_KVF - 4096}")
    I(f"s_add_u32 s{sT2}, s{sT2}, s{sCL}")
    g.mark("off")
    I(f"s_mov_b32 m0, s{sT2}")
    I(f"v_and_b32 v{vB3}, 3, v{vLANE}")
    txd = I(f"buffer_load_dwordx4 v{vT0}, {srd(sX)}, s{sT0} offen lds")
    g.mark("on")
    I(f"v_lshlrev_b32 v{vB3}, 8, v{vB3}")
    I(f"v_lshl_add_u32 v{vB3}, v{vT5}, 4, v{vB3}")
    I(f"v_add_u32 v{vB3}, s{sT2}, v{vB3}")
    g.mark("burst:" + os.environ.get("BB1", "3"))
    I(f"s_lshl_b32 s{sD}, s{sMTB}, 5")
    I(f"s_lshl_b32 s{sT1}, s{sW3}, 2")
    I(f"s_add_u32 s{sD}, s{sD}, s{sT1}")
    I(f"s_lshl_b32 s{sD}, s{sD}, 10")
    I(f"s_add_u32 s{sD}, s{sD}, {WS_O}")
    I(f"s_add_u32 s{sE}, s{sD}, 16384")
    I(f"s_mul_i32 s{sT0}, s{sW3}, 17408")
    I(f"s_mul_i32 s{sT1}, s{sWH}, {8*1088}")
    I(f"s_add_u32 s{sT0}, s{sT0}, s{sT1}")
    I(f"s_add_u32 s{sT0}, s{sT0}, {LDS_BSCR}")
    I(f"v_lshrrev_b32 v{vT1}, 1, v{vG}")
    I(f"v_mul_u32_u24 v{vT1}, 1088, v{vT1}")
    I(f"v_and_b32 v{vT2}, 1, v{vG}")
    I(f"v_lshl_add_u32 v{vT1}, v{vT2}, 9, v{vT1}")
    I(f"v_lshl_add_u32 v{vT1}, v{vM16}, 4, v{vT1}")
    I(f"v_add_u32 v{vB1}, s{sT0}, v{vT1}")
    I(f"v_mul_u32_u24 v{vT1}, 1088, v{vT5}")
    I(f"v_lshl_add_u32 v{vT1}, v{vT4}, 4, v{vT1}")
    I(f"v_add_u32 v{vB2}, {LDS_BSCR}, v{vT1}")
    I(f"v_cmp_gt_u32 vcc, 0x10000, v{vHSA}")
    I(f"v_cndmask_b32 v{vT3}, 0, -1, vcc")
    stats_addr(vT2, vT0, vT1)
    I(f"v_mov_b32 v{vT5}, 0x3f803f80")
    g.wait(txd)
    txr = I(f"ds_read_b128 {vr(XR,4)}, v{vB3}")
    g.wait(txr)
    for i in range(4):
        I(f"v_lshlrev_b32 v{XU+2*i}, 16, v{XR+i}")
        I(f"v_and_b32 v{XU+2*i+1}, 0xffff0000, v{XR+i}")
    g.mark("off")
    I("s_barrier")
    stamp("wo ready")

    def o_issue():
        tl = []
        for hh in range(4):
            for mt in range(2):
                tl.append(I(f"buffer_load_dwordx4 {vr(OF+(hh*2+mt)*4,4)}, v{vL16}, {srd(sWS)}, s{sE if mt else sD} offen offset:{hh*1024} sc1"))
        return tl

    def o_body(tl):
        for hh in range(4):
            for mt in range(2):
                g.wait(tl[hh * 2 + mt])
                for nt in range(4):
                    a = BACC + (mt * 4 + nt) * 4
                    I(f"v_mfma_f32_16x16x32_bf16 {vr(a,4)}, {vr(WOF+(hh*4+nt)*4,4)}, {vr(OF+(hh*2+mt)*4,4)}, {'0' if hh == 0 else vr(a,4)}")
    spec_load(o_issue, [OF + 4 * k for k in range(8)], vT0, o_body)
    stamp("B mfma")
    I(f"s_lshl_b32 s{sT0}, s{sJC}, 14")
    I(f"s_lshl_b32 s{sT1}, s{sWH}, 13")
    I(f"s_add_u32 s{sT0}, s{sT0}, s{sT1}")
    I(f"s_add_u32 s{sD}, s{sT0}, {WS_CS}")
    I(f"s_add_u32 s{sE}, s{sD}, 4096")
    I(f"v_lshlrev_b32 v{vB3}, 2, v0")
    I(f"v_and_b32 v{vB3}, 1023, v{vB3}")

    def cs_issue():
        return [I(f"buffer_load_dword v{CSG+rb}, v{vB3}, {srd(sWS)}, s{sE if rb >= 4 else sD} offen offset:{(rb%4)*1024} sc1") for rb in range(8)]
    tcs8 = cs_issue()
    g.mark("burst:3")
    for mt in range(2):
        for nt in range(4):
            I(f"ds_write_b128 v{vB1}, {vr(BACC+(mt*4+nt)*4,4)} offset:{nt*2176+mt*256}")
    S1, S2 = 104, 105
    I(f"v_mov_b32 v{S1}, 0\nv_mov_b32 v{S2}, 0")
    g.wait_all(vm=False)
    I("s_barrier")
    b = 72
    for w in range(4):
        for q in range(2):
            I(f"ds_read_b128 {vr(b+w*8+q*4,4)}, v{vB2} offset:{w*17408+q*512}")
    g.wait_all(vm=False)
    HP = 108
    for i in range(8):
        I(f"v_add_f32 v{b+i}, v{b+i}, v{b+8+i}")
        I(f"v_add_f32 v{b+16+i}, v{b+16+i}, v{b+24+i}")
    for i in range(8):
        I(f"v_add_f32 v{b+i}, v{b+i}, v{XU+i}")
    for i in range(8):
        I(f"v_add_f32 v{b+i}, v{b+i}, v{b+16+i}")
    for i in range(4):
        I(f"v_cvt_pk_bf16_f32 v{HP+i}, v{b+2*i}, v{b+2*i+1}")
    I(f"buffer_store_dwordx4 {vr(HP,4)}, v{vHSA}, {srd(sWS)}, s{sHS} offen sc1")
    for i in range(4):
        I(f"v_dot2_f32_bf16 v{S1}, v{HP+i}, v{vT5}, v{S1}")
        I(f"v_dot2_f32_bf16 v{S2}, v{HP+i}, v{HP+i}, v{S2}")
    I(f"v_and_b32 v{S1}, v{vT3}, v{S1}")
    I(f"v_and_b32 v{S2}, v{vT3}, v{S2}")
    for ror in (4, 8):
        I(f"v_add_f32_dpp v{S1}, v{S1}, v{S1} row_ror:{ror} row_mask:0xf bank_mask:0xf")
        I(f"v_add_f32_dpp v{S2}, v{S2}, v{S2} row_ror:{ror} row_mask:0xf bank_mask:0xf")
    for lv in (16, 32):
        I(f"v_mov_b32 v106, v{S1}\nv_mov_b32 v107, v{S2}")
        I(f"v_permlane{lv}_swap_b32 v{S1}, v106")
        I(f"v_permlane{lv}_swap_b32 v{S2}, v107")
        I(f"v_add_f32 v{S1}, v{S1}, v106")
        I(f"v_add_f32 v{S2}, v{S2}, v107")
    I(f"buffer_store_dwordx2 v[{S1}:{S2}], v{vT2}, {srd(sWS)}, s{sSS} offen sc1")
    stamp("h stored")
    lr, lb = g.newlabel("L_sr"), g.newlabel("L_sb")
    g.wait(tcs8[-1])
    sent_check([CSG + rb for rb in range(8)], vT0)
    I(f"s_cmp_lg_u64 vcc, 0")
    I(f"s_cbranch_scc1 {lr}")
    g.label(lb)
    g.begin()
    g.label(lr)
    check_loop(cs_issue, [CSG + rb for rb in range(8)], vT0)
    I(f"s_branch {lb}")
    TAILS.append(g.end())
    for k in (4, 2, 1):
        for i in range(k):
            I(f"v_add_f32 v{CSG+i}, v{CSG+i}, v{CSG+k+i}")
    I(f"v_lshlrev_b32 v{vB3}, 2, v0")
    I(f"v_add_u32 v{vB3}, {LDS_KVF}, v{vB3}")
    I(f"ds_write_b32 v{vB3}, v{CSG}")
    g.wait_all(vm=False)
    I("s_barrier")
    I(f"s_cmp_ge_u32 s{sJC}, 14")
    I("s_cbranch_scc1 L_end")
    tb2 = c_batch(1, 0, 24, 56, 57344 + 24576)


GK1 = -2.0 * math.sqrt(2.0 / math.pi) * LOG2E
GK2 = GK1 * 0.044715
LDS_X = 114688
vHB, vM, vWD = 254, 255, 253
sWDB = 80
WDE = 16
NWDE = 7
NWDC = int(os.environ.get('NWDC', '2'))


def hh_signal(stage, toks):
    g.wait(*toks)
    I("s_barrier")
    lab = g.newlabel("L_hs")
    I(f"s_cmp_lg_u32 s{sW}, 0")
    I(f"s_cbranch_scc1 {lab}")
    g.cond_begin()
    I("s_mov_b64 exec, 1")
    I(f"s_lshl_b32 s{sT0}, s{sG}, 8")
    I(f"s_add_u32 s{sT0}, s{sT0}, {WS_CNT + CNT_HH * 4096 + 64 * stage}")
    I(f"v_mov_b32 v{vCNT}, s{sT0}")
    I(f"buffer_atomic_add v{vONE}, v{vCNT}, {srd(sWS)}, 0 offen sc1")
    I("s_mov_b64 exec, -1")
    g.cond_end()
    g.label(lab)


def hh_poll(stage_sreg_or_imm):
    I("s_mov_b64 exec, 1")
    I(f"s_lshl_b32 s{sT0}, s{sGB}, 8")
    I(f"s_add_u32 s{sT0}, s{sT0}, {WS_CNT + CNT_HH * 4096}")
    I(f"s_add_u32 s{sT0}, s{sT0}, {stage_sreg_or_imm}")
    I(f"v_mov_b32 v{vCNT}, s{sT0}")
    poll(sWS, vCNT, 14)
    I("s_mov_b64 exec, -1")


def d_setup():
    I(f"v_lshrrev_b32 v{vHB}, 5, v{vLANE}")
    I(f"v_and_b32 v{vM}, 31, v{vLANE}")
    I(f"v_lshrrev_b32 v{vT0}, 3, v{vLANE}")
    I(f"v_mul_u32_u24 v{vT0}, 896, v{vT0}")
    I(f"v_and_b32 v{vT1}, 1, v{vG}")
    I(f"v_lshlrev_b32 v{vT1}, 2, v{vT1}")
    I(f"v_and_b32 v{vWD}, 7, v{vLANE}")
    I(f"v_xor_b32 v{vWD}, v{vWD}, v{vT1}")
    I(f"v_lshl_add_u32 v{vWD}, v{vWD}, 4, v{vT0}")
    I(f"s_cmp_ge_u32 s{sJB}, 7")
    I(f"s_cselect_b32 s{sRH}, 1, 0")
    I(f"s_mul_i32 s{sT0}, s{sRH}, 7")
    I(f"s_sub_u32 s{sCB}, s{sJB}, s{sT0}")
    I(f"s_lshl_b32 s{sT0}, s{sWH}, 1")
    I(f"s_add_u32 s{sT0}, s{sT0}, s{sW}")
    I(f"s_and_b32 s{sAA}, s{sT0}, 3")
    I(f"s_mul_i32 s{sKC}, s{sWH}, 56")
    I(f"s_add_u32 s{sKC}, s{sKC}, s{sAA}")
    I(f"s_mul_i32 s{sWDB}, s{sKC}, {16*896}")
    I(f"s_lshl_b32 s{sT1}, s{sCB}, 7")
    I(f"s_add_u32 s{sWDB}, s{sWDB}, s{sT1}")
    I(f"s_cmp_ge_u32 s{sJB}, 14")
    I(f"s_cselect_b32 s{sT1}, {OOB}, 0")
    I(f"s_add_u32 s{sWDB}, s{sWDB}, s{sT1}")


sRH, sCB, sAA, sKC = 64, 65, 66, 67


def kc_off(n):
    return 8 * n if n < 7 else 4 + 8 * (n - 7)


def wd_load(dst, n):
    t = None
    for hf_ in range(2):
        I(f"s_add_u32 s{sT3}, s{sWDB}, {(16*kc_off(n) + 8*hf_)*896}")
        for e in range(4):
            t = I(f"buffer_load_dword v{dst+4*hf_+e}, v{vWD}, {srd(sWD)}, s{sT3} offen offset:{e*896}")
    return t


def wd_half(dst, n, hf_):
    I(f"s_add_u32 s{sBG}, s{sWDB}, {(16*kc_off(n) + 8*hf_)*896}")
    return I(f"buffer_load_dwordx4 {vr(dst+4*hf_,4)}, v{vWD}, {srd(sWD)}, s{sBG} offen")


def dt_pattern(dst, t0, t1):
    I(f"v_bfe_u32 v{t0}, v{vLANE}, 2, 2")
    I(f"v_lshl_add_u32 v{t1}, v{vHB}, 2, v{t0}")
    I(f"v_lshlrev_b32 v{t1}, 7, v{t1}")
    I(f"v_lshrrev_b32 v{t0}, 1, v{t0}")
    I(f"v_lshl_add_u32 v{t1}, v{t0}, 6, v{t1}")
    I(f"v_and_b32 v{t0}, 1, v{vG}")
    I(f"v_lshl_add_u32 v{t1}, v{t0}, 5, v{t1}")
    I(f"v_and_b32 v{t0}, 3, v{vLANE}")
    I(f"v_lshl_add_u32 v{dst}, v{t0}, 3, v{t1}")


def c_rows(mat, dbl, r0, r1, lds_base):
    return c_batch(mat, dbl, r0, r1, lds_base)


def g1_addr(n):
    if n < 8:
        return 114688 + n * 1024
    if 24 <= n < 40:
        return 114688 + 8192 + (n - 24) * 1024
    if n < 24:
        return (n - 8) * 1024
    return 16384 + (n - 40) * 1024


def u1_addr(n):
    if n < 8:
        return 32768 + n * 1024
    if 24 <= n < 40:
        return 32768 + 8192 + (n - 24) * 1024
    if n < 24:
        return 57344 + (n - 8) * 1024
    return 57344 + 16384 + (n - 40) * 1024


def phaseCD(twd_early):
    g.comment("==== phase C ====")
    sMD, sHB, sMT = sC, sHHS, sMTC
    sAB = 7
    sL5, sL2, sL3, sL4 = 4, 5, 6, 83
    I(f"s_mul_i32 s{sL5}, s{sW}, 5120")
    I(f"s_lshl_b32 s{sL2}, s{sW}, 11")
    I(f"s_mul_i32 s{sL3}, s{sW}, 3072")
    I(f"s_lshl_b32 s{sL4}, s{sW}, 12")
    slotE = [(sL2, 40960 + i * 1024) for i in range(2)] + [(sL3, 90112 + i * 1024) for i in range(3)]
    slotM = [(sL5, 114688 + i * 1024) for i in range(5)] + [(sL2, i * 1024) for i in range(2)]
    slotL = [(sL3, 16384 + i * 1024) for i in range(3)] + [(sL4, 57344 + i * 1024) for i in range(4)]
    wslot = slotE + slotM + slotL + (slotE + slotM)[:9]
    sRW = [12, 13, 14, 15, 16, 17, 18]
    sRA = [19, 20, 21, 22, 23, 81, 82]

    def wd_dma(m):
        n, hf_ = m // 2, m % 2
        return dma2(vWD, sWD, sRW[n % 7], (16 * (4 if n >= 7 else 0) + 8 * hf_) * 896, wslot[m][0], wslot[m][1])
    c_batch(0, 1, 0, 40, 114688)
    I(f"s_lshl_b32 s{sMD}, s{sGB}, 2")
    I(f"s_lshl_b32 s{sT0}, s{sRH}, 1")
    I(f"s_add_u32 s{sMD}, s{sMD}, s{sT0}")
    I(f"s_lshl_b32 s{sE}, s{sMT}, 10")
    I(f"s_add_u32 s{sE}, s{sE}, {WS_ST}")
    I(f"s_mul_i32 s{sWB}, s{sMT}, {28*1024}")
    I(f"s_add_u32 s{sWB}, s{sWB}, {WS_H}")
    I(f"s_mul_i32 s{sAB}, s{sMD}, {112*1024}")
    I(f"s_lshl_b32 s{sT1}, s{sKC}, 10")
    I(f"s_add_u32 s{sAB}, s{sAB}, s{sT1}")
    I(f"s_add_u32 s{sAB}, s{sAB}, {WS_HH}")
    for n in range(7):
        if "norot" in EXP:
            I(f"s_mov_b32 s{sT0}, {n}")
        else:
            I(f"s_add_u32 s{sT0}, s{sCB}, {n}")
            I(f"s_sub_u32 s{sT1}, s{sT0}, 7")
            I(f"s_cmp_ge_u32 s{sT0}, 7")
            I(f"s_cselect_b32 s{sT0}, s{sT1}, s{sT0}")
        I(f"s_mul_i32 s{sT1}, s{sT0}, {8*16*896}")
        I(f"s_add_u32 s{sRW[n]}, s{sWDB}, s{sT1}")
        I(f"s_lshl_b32 s{sT1}, s{sT0}, 13")
        I(f"s_add_u32 s{sRA[n]}, s{sAB}, s{sT1}")
    HF = 16
    A_, B_, C_ = 128, 144, 160
    TM, CS2 = 176, 192
    WFc = 208
    vA0, vA1, vCSA, vFA, vA2 = 240, 241, 242, 243, 15
    K1, K2, IR2, NMU = 248, 249, 250, 251
    STR = 244
    I(f"v_bfe_u32 v{vT0}, v{vLANE}, 2, 2")
    I(f"v_lshl_add_u32 v{vT1}, v{vHB}, 3, v{vT0}")
    I(f"v_lshlrev_b32 v{vT1}, 7, v{vT1}")
    I(f"v_lshrrev_b32 v{vT0}, 1, v{vT0}")
    I(f"v_xor_b32 v{vT0}, s{sWH}, v{vT0}")
    I(f"v_lshl_add_u32 v{vT1}, v{vT0}, 6, v{vT1}")
    I(f"v_and_b32 v{vT2}, 1, v{vG}")
    I(f"v_lshl_add_u32 v{vT1}, v{vT2}, 5, v{vT1}")
    I(f"v_and_b32 v{vT2}, 3, v{vLANE}")
    I(f"v_lshl_add_u32 v{vA0}, v{vT2}, 3, v{vT1}")
    I(f"v_add_u32 v{vA1}, 57344, v{vA0}")
    I(f"v_add_u32 v{vA2}, 114688, v{vA0}")
    I(f"s_lshl_b32 s{sT0}, s{sWH}, 7")
    I(f"s_add_u32 s{sT0}, s{sT0}, {LDS_CS}")
    I(f"v_lshlrev_b32 v{vCSA}, 4, v{vHB}")
    I(f"v_add_u32 v{vCSA}, s{sT0}, v{vCSA}")
    I(f"v_mov_b32 v{vFA}, {LDS_FLG}")
    I(f"v_lshlrev_b32 v{vT3}, 3, v{vLANE}")
    flush()
    I(f"v_lshlrev_b32 v{vT0}, 2, v0")
    I(f"v_and_b32 v{vT0}, 1023, v{vT0}")
    I(f"v_add_u32 v{vT0}, {LDS_KVF}, v{vT0}")
    t = I(f"ds_read2st64_b32 v[72:73], v{vT0} offset0:0 offset1:4")
    g.wait(t)
    I(f"v_add_f32 v72, v72, v73")
    I(f"ds_write_b32 v{vT0}, v72 offset:4096")
    stamp("C ready")

    def st_issue():
        I(f"buffer_load_dwordx2 {vr(STR,2)}, v{vT3}, {srd(sWS)}, s{sE} offen sc1")
        return [I(f"buffer_load_dwordx2 {vr(STR+2,2)}, v{vT3}, {srd(sWS)}, s{sE} offen offset:512 sc1")]
    check_loop(st_issue, [STR, STR + 2], vT1)
    stamp("h flag")

    def h_issue():
        tl = []
        for c in range(28):
            if c % 4 == 0:
                I(f"s_add_u32 s{sT0}, s{sWB}, {c*1024}")
            tl.append(I(f"buffer_load_dwordx4 {vr(HF+4*c,4)}, v{vL16}, {srd(sWS)}, s{sT0} offen offset:{(c%4)*1024} sc1"))
        return tl
    g.begin()
    th = h_issue()
    hl = g.end()
    g.put(hl[:10])
    g.wait_all(vm=False)
    I("s_barrier")
    I(f"v_add_f32 v{STR}, v{STR}, v{STR+2}")
    I(f"v_add_f32 v{STR+1}, v{STR+1}, v{STR+3}")
    I(f"v_mov_b32 v{STR+2}, v{STR}\nv_mov_b32 v{STR+3}, v{STR+1}")
    I(f"v_permlane32_swap_b32 v{STR}, v{STR+2}")
    I(f"v_permlane32_swap_b32 v{STR+1}, v{STR+3}")
    I(f"v_add_f32 v{STR}, v{STR}, v{STR+2}")
    I(f"v_add_f32 v{STR+1}, v{STR+1}, v{STR+3}")
    I(f"v_mul_f32 v{NMU}, {f32(-1/448)}, v{STR}")
    I(f"v_mul_f32 v{STR+1}, {f32(1/448)}, v{STR+1}")
    I(f"v_fma_f32 v{STR+1}, -v{NMU}, v{NMU}, v{STR+1}")
    I(f"v_max_f32 v{STR+1}, 0, v{STR+1}")
    I(f"v_add_f32 v{IR2}, {f32(1e-5)}, v{STR+1}")
    I(f"v_rsq_f32 v{STR}, v{IR2}")
    I(f"v_mul_f32 v{K1}, {f32(GK1)}, v{STR}")
    I(f"v_mul_f32 v{STR+1}, v{STR}, v{STR}")
    I(f"v_mul_f32 v{STR+1}, v{STR+1}, v{STR}")
    I(f"v_mul_f32 v{K2}, {f32(GK2)}, v{STR+1}")
    tails = TAILS

    def cnt_add(f):
        I("s_mov_b64 exec, 1")
        I(f"ds_add_u32 v{vFA}, v{vONE} offset:{4*f}")
        I("s_mov_b64 exec, -1")

    def cnt_issue(f):
        return I(f"ds_read_b32 v{vFLAG}, v{vFA} offset:{4*f}")

    def cnt_check(f, t):
        lr, lb = g.newlabel("L_cr"), g.newlabel("L_cb")
        g.wait(t)
        I(f"v_readfirstlane_b32 s{sT4}, v{vFLAG}")
        I(f"s_cmp_lt_u32 s{sT4}, 8")
        I(f"s_cbranch_scc1 {lr}")
        g.label(lb)
        g.begin()
        g.label(lr)
        I(f"s_mov_b32 s{sT5}, 0")
        l2 = g.newlabel("L_cl")
        g.label(l2)
        I("s_sleep 1")
        cnt_issue(f)
        I("s_waitcnt lgkmcnt(0)")
        I(f"v_readfirstlane_b32 s{sT4}, v{vFLAG}")
        I(f"s_add_u32 s{sT5}, s{sT5}, 1")
        I(f"s_cmp_ge_u32 s{sT5}, {POLL_MAX*8}")
        I(f"s_cbranch_scc1 {lb}")
        I(f"s_cmp_lt_u32 s{sT4}, 8")
        I(f"s_cbranch_scc1 {l2}")
        I(f"s_branch {lb}")
        tails.append(g.end())

    def hsig_issue(f, toks):
        g.wait(*toks)
        I("s_mov_b64 exec, 1")
        t = I(f"ds_add_rtn_u32 v{vINIT}, v{vFA}, v{vONE} offset:{4*f}")
        I("s_mov_b64 exec, -1")
        return t

    def hsig_check(stage, t):
        lab = g.newlabel("L_hs")
        g.wait(t)
        I(f"v_readfirstlane_b32 s{sT4}, v{vINIT}")
        I(f"s_cmp_lg_u32 s{sT4}, 7")
        I(f"s_cbranch_scc1 {lab}")
        g.cond_begin()
        I("s_mov_b64 exec, 1")
        I(f"s_lshl_b32 s{sT0}, s{sG}, 8")
        I(f"s_add_u32 s{sT0}, s{sT0}, {WS_CNT + CNT_HH * 4096 + 64 * stage}")
        I(f"v_mov_b32 v{vCNT}, s{sT0}")
        I(f"buffer_atomic_add v{vONE}, v{vCNT}, {srd(sWS)}, 0 offen sc1")
        I("s_mov_b64 exec, -1")
        g.cond_end()
        g.label(lab)

    def cs_read(dst, mat, dbl):
        t = None
        for q in range(4):
            t = I(f"ds_read_b128 {vr(dst+4*q,4)}, v{vCSA} offset:{mat*512 + (64*dbl+8*q)*4}")
        return t

    def gpart(ag, t):
        g.wait(t)
        for i in range(16):
            I(f"v_fmac_f32 v{ag+i}, v{NMU}, v{TM+i}")
        for i in range(16):
            I(f"v_mul_f32 v{TM+i}, v{ag+i}, v{ag+i}")
        for i in range(16):
            I(f"v_fma_f32 v{TM+i}, v{TM+i}, v{K2}, v{K1}")
        for i in range(16):
            I(f"v_mul_f32 v{TM+i}, v{TM+i}, v{ag+i}")
        for i in range(16):
            I(f"v_exp_f32 v{TM+i}, v{TM+i}")
        for i in range(16):
            I(f"v_fma_f32 v{TM+i}, v{TM+i}, v{IR2}, v{IR2}")
        for i in range(16):
            I(f"v_rcp_f32 v{TM+i}, v{TM+i}")
        for i in range(16):
            I(f"v_mul_f32 v{TM+i}, v{ag+i}, v{TM+i}")

    def upart(au, t, dbl):
        g.wait(t)
        for i in range(16):
            I(f"v_fmac_f32 v{au+i}, v{NMU}, v{CS2+i}")
        for i in range(16):
            I(f"v_mul_f32 v{au+i}, v{au+i}, v{TM+i}")
        for i in range(8):
            I(f"v_cvt_pk_bf16_f32 v{CS2+i}, v{au+2*i}, v{au+2*i+1}")
        I(f"s_add_u32 s{sE}, s{sHB}, {dbl*4096}")
        I(f"buffer_store_dwordx4 {vr(CS2,4)}, v{vL16}, {srd(sWS)}, s{sE} offen sc1")
        return I(f"buffer_store_dwordx4 {vr(CS2+4,4)}, v{vL16}, {srd(sWS)}, s{sE} offen offset:1024 sc1")

    slots = []
    for c in range(28):
        slots.append((A_, c * 2048, c))
        slots.append((B_, 57344 + c * 2048, c))
    for c in range(28):
        slots.append((C_, 114688 + c * 2048 if c < 20 else (c - 20) * 2048, c))
    for c in range(28):
        slots.append((A_, 16384 + c * 2048 if c < 12 else 57344 + (c - 12) * 2048, c))
    NS = 112
    PRC = int(os.environ.get('PRC', '14'))
    depth = int(os.environ.get('DEPTH', '4'))
    nb = depth + 1
    tok = {}

    def rd(i):
        off = slots[i][1]
        base = vA0
        if off >= 114688:
            base, off = vA2, off - 114688
        elif off >= 57344:
            base, off = vA1, off - 57344
        dst = WFc + 4 * (i % nb)
        I(f"ds_read_b64_tr_b16 {vr(dst,2)}, v{base} offset:{off}")
        tok[i] = I(f"ds_read_b64_tr_b16 {vr(dst+2,2)}, v{base} offset:{off+512}")

    sched = {i: [] for i in range(NS)}
    load = {i: 0.0 for i in range(NS)}
    BUDGET = float(os.environ.get("BUDGET", "6"))

    def cost(it):
        if it.kind != "i":
            return 0
        m = it.text.split()[0]
        if m in TRANS:
            return 2
        if m in ("v_fma_f32", "v_fmac_f32"):
            return 1.25
        if m.startswith("v_"):
            return 1
        if m.startswith(("ds_", "buffer")):
            return 0.4
        return 0.1

    def cap(fn):
        g.begin()
        r = fn()
        return g.end(), r

    def at(slot, fn):
        st, r = cap(fn)
        for it in st:
            sched[slot].append(it)
            load[slot] += cost(it)
        return r

    rest = []

    def flow(stream, slot):
        pend = []
        for it in stream:
            pend.append(it)
            if it.kind != "i":
                continue
            c = sum(cost(x) for x in pend)
            while slot < NS and load[slot] + c > BUDGET:
                slot += 1
            if slot >= NS:
                rest.extend(pend)
            else:
                sched[slot].extend(pend)
                load[slot] += c
            pend = []
        return slot

    k_ = 0
    for it in hl[10:]:
        sched[k_].append(it)
        if it.text.startswith("buffer"):
            k_ += 1

    def refill(f, free_slot, batches, need_slot):
        at(free_slot, lambda: cnt_add(f))
        t = at(free_slot + 2, lambda: cnt_issue(f))
        at(free_slot + 3, lambda: cnt_check(f, t))
        st, tb = cap(batches)
        for q in range(len(st) // 3):
            for it in st[3 * q:3 * q + 3]:
                sched[free_slot + 3 + 2 * q].append(it)
        if need_slot is not None:
            at(need_slot - depth - 3, lambda: (g.wait(tb), cnt_add(f + 1)))
            t2 = at(need_slot - depth - 2, lambda: cnt_issue(f + 1))
            at(need_slot - depth - 1, lambda: cnt_check(f + 1, t2))
        return tb
    F0 = int(os.environ.get("F0", "40"))
    at(F0, lambda: cnt_add(0))
    t = at(F0 + 2, lambda: cnt_issue(0))
    at(F0 + 3, lambda: cnt_check(0, t))
    st1, tb1 = cap(lambda: c_batch(0, 1, 40, 56, 0))
    st2, tb2 = cap(lambda: (c_batch(1, 1, 0, 24, 16384), c_batch(1, 1, 24, 56, 57344))[1])
    st = st1 + st2
    for q in range(9):
        sched[F0 + 3 + 2 * q].extend(st[3 * q:3 * q + 3])
    at(76 - depth - 3, lambda: (g.wait(tb2), cnt_add(1)))
    t2_ = at(76 - depth - 2, lambda: cnt_issue(1))
    at(76 - depth - 1, lambda: cnt_check(1, t2_))
    at(56, lambda: cnt_add(2))
    t = at(72, lambda: cnt_issue(2))
    at(73, lambda: cnt_check(2, t))
    for m in range(5):
        at(73 + 2 * m, lambda: wd_dma(m))
    tM = refill(4, 84, lambda: [wd_dma(m) for m in range(5, 12)][-1], None)
    if "not2" not in EXP and "t2b" not in EXP:
        at(int(os.environ.get("T2", "40")), touch2)

    def h_issue_from(c0):
        def f():
            tl = []
            for c in range(c0, 28):
                if c % 4 == 0:
                    I(f"s_add_u32 s{sT2}, s{sWB}, {c*1024}")
                tl.append(I(f"buffer_load_dwordx4 {vr(HF+4*c,4)}, v{vL16}, {srd(sWS)}, s{sT2} offen offset:{(c%4)*1024} sc1"))
            return tl
        return f

    def hcheck(q):
        lr, lb = g.newlabel("L_hr"), g.newlabel("L_hb")
        g.wait(th[4 * q + 3])
        sent_check([HF + 4 * c for c in range(4 * q, 4 * q + 4)], vT1)
        I(f"s_cmp_lg_u64 vcc, 0")
        I(f"s_cbranch_scc1 {lr}")
        g.label(lb)
        g.begin()
        g.label(lr)
        check_loop(h_issue_from(4 * q), [HF + 4 * c for c in range(4 * q, 28)], vT1)
        I(f"s_branch {lb}")
        tails.append(g.end())
    t1 = at(54, lambda: cs_read(TM, 0, 0))
    t2 = at(55, lambda: cs_read(CS2, 1, 0))
    def epiA():
        g.wait(t2)
        for i in range(16):
            I(f"v_fmac_f32 v{A_+i}, v{NMU}, v{TM+i}")
        for i in range(16):
            I(f"v_fmac_f32 v{B_+i}, v{NMU}, v{CS2+i}")
        for i in range(16):
            I(f"v_mul_f32 v{TM+i}, v{A_+i}, v{A_+i}")
        for i in range(16):
            I(f"v_fma_f32 v{TM+i}, v{TM+i}, v{K2}, v{K1}")
        for i in range(16):
            I(f"v_mul_f32 v{TM+i}, v{TM+i}, v{A_+i}")
        for i in range(16):
            I(f"v_mul_f32 v{B_+i}, v{B_+i}, v{A_+i}")

    def epiB():
        for i in range(16):
            I(f"v_exp_f32 v{TM+i}, v{TM+i}")
        for i in range(16):
            I(f"v_fma_f32 v{TM+i}, v{TM+i}, v{IR2}, v{IR2}")
        for i in range(16):
            I(f"v_rcp_f32 v{TM+i}, v{TM+i}")
        for i in range(16):
            I(f"v_mul_f32 v{B_+i}, v{B_+i}, v{TM+i}")
        for i in range(8):
            I(f"v_cvt_pk_bf16_f32 v{CS2+i}, v{B_+2*i}, v{B_+2*i+1}")
        I(f"buffer_store_dwordx4 {vr(CS2,4)}, v{vL16}, {srd(sWS)}, s{sHB} offen sc1")
        return I(f"buffer_store_dwordx4 {vr(CS2+4,4)}, v{vL16}, {srd(sWS)}, s{sHB} offen offset:1024 sc1")
    st, _ = cap(epiA)
    e = flow(st, 57)
    assert e < 83, e
    st, tst0 = cap(epiB)
    e = flow(st, e)
    t1 = at(max(e, 85), lambda: cs_read(TM, 0, 1))
    t2 = at(min(e + 9, 109), lambda: cs_read(CS2, 1, 1))
    st, _ = cap(lambda: gpart(C_, t1))
    flow(st, max(e, 85) + 2)
    def flag_issue():
        I(f"s_lshl_b32 s{sT0}, s{sGB}, 8")
        I(f"s_add_u32 s{sT0}, s{sT0}, {WS_CNT + CNT_HH * 4096}")
        return I(f"buffer_load_dword v{vT4}, off, {srd(sWS)}, s{sT0} sc1")
    print("slot loads:", " ".join("%.0f" % load[i] for i in range(NS)), "rest", len(rest))
    for i in range(depth):
        rd(i)
    for i in range(NS):
        acc, off, c = slots[i]
        if i + depth < NS:
            rd(i + depth)
        if PRC and i % PRC == 0:
            I(f"s_setprio {3 - (i // PRC) % 4}")
        if i < 56 and i % 8 == 0:
            hcheck(i // 8)
        g.wait(tok[i])
        I(f"v_mfma_f32_32x32x16_bf16 {vr(acc,16)}, {vr(WFc+4*(i%nb),4)}, {vr(HF+4*c,4)}, {'0' if c == 0 else vr(acc,16)}")
        g.put(sched[i])
        if i in (55, 83, 111):
            stamp(f"slot{i}")
    g.put(rest)
    tlast = upart(A_, t2, 1)
    stamp("hh stored")
    DACC = 184
    frag = {n: 16 + 8 * n for n in range(14)}
    abuf = {c: 128 + 4 * c for c in range(14)}
    ta = {}
    vP = {(sL5, 114688): (vT0, vT1), (sL2, 0): (vT2, vT3), (sL3, 16384): (vT4, vT5), (sL3, 90112): (vINIT, vCNT - 0), (sL4, 57344): (252, 15)}
    vP[(sL3, 90112)] = (vG, vM16)
    dt_pattern(vFLAG, vT0, vT1)
    for (sreg, base), (a0, a1) in vP.items():
        I(f"v_add_u32 v{a0}, s{sreg}, v{vFLAG}")
        if base:
            I(f"v_add_u32 v{a0}, {base}, v{a0}")
        I(f"v_xor_b32 v{a1}, 64, v{a0}")

    def wd_read(m):
        n, rd_ = m // 2, m % 2
        sreg, imm = wslot[m]
        key = max((k for k in vP if k[0] == sreg and k[1] <= imm), key=lambda k: k[1])
        a = vP[key]
        imm -= key[1]
        t = None
        for nt in range(2):
            t = I(f"ds_read_b64_tr_b16 {vr(frag[n]+4*nt+2*rd_,2)}, v{a[nt]} offset:{imm}")
        return t

    def lda(c):
        for mt in range(2):
            I(f"s_add_u32 s{sT1}, s{sRA[c % 7]}, {mt*112*1024 + (4096 if c >= 7 else 0)}")
            ta[c, mt] = I(f"buffer_load_dwordx4 {vr(abuf[c]+4*mt,4)}, v{vL16}, {srd(sWS)}, s{sT1} offen sc1")

    def mm(c, first):
        for mt in range(2):
            g.wait(ta[c, mt])
            for nt in range(2):
                a = DACC + (mt * 2 + nt) * 16
                I(f"v_mfma_f32_32x32x16_bf16 {vr(a,16)}, {vr(frag[c]+4*nt,4)}, {vr(abuf[c]+4*mt,4)}, {'0' if first else vr(a,16)}")
    I("s_setprio 3")
    g.wait(tM)
    t = None
    for m in range(12):
        t = wd_read(m)
    g.wait(t)
    twd = {}
    for m in range(19, 28):
        twd[m] = wd_dma(m)
        if m == 22:
            th_ = hsig_issue(6, [tlast])
            hsig_check(0, th_)
    I("s_barrier")
    for m in range(12, 19):
        twd[m] = wd_dma(m)
    stamp("wd issued")
    I("s_setprio 0")
    lab = g.newlabel("L_fp")
    I(f"s_cmp_lg_u32 s{sW}, 0")
    I(f"s_cbranch_scc1 {lab}")
    g.cond_begin()
    hh_poll(0)
    g.cond_end()
    g.label(lab)
    g.wait(twd[27])
    for m in range(19, 28):
        wd_read(m)
    g.wait(twd[18])
    for m in range(12, 19):
        wd_read(m)
    g.wait_all(vm=False)
    I("s_barrier")
    stamp("hh flag")

    def lda1(c, mt):
        I(f"s_add_u32 s{sT1}, s{sRA[c % 7]}, {mt*112*1024 + (4096 if c >= 7 else 0)}")
        ta[c, mt] = I(f"buffer_load_dwordx4 {vr(abuf[c],4)}, v{vL16}, {srd(sWS)}, s{sT1} offen sc1")
    for c in range(14):
        lda1(c, 0)
    HR = 248
    I(f"v_and_b32 v{vT0}, 7, v0")
    I(f"v_lshrrev_b32 v{vT1}, 3, v0")
    I(f"v_bfe_u32 v{vFLAG}, v0, 3, 5")
    I(f"v_lshlrev_b32 v{vFLAG}, 4, v{vFLAG}")
    I(f"v_lshl_add_u32 v{vFLAG}, v{vT0}, 9, v{vFLAG}")
    I(f"s_add_u32 s{sE}, s{sMD}, s{sWH}")
    I(f"s_mul_i32 s{sE}, s{sE}, {28*1024}")
    I(f"s_lshl_b32 s{sT1}, s{sCB}, 12")
    I(f"s_add_u32 s{sE}, s{sE}, s{sT1}")
    I(f"s_add_u32 s{sE}, s{sE}, {WS_H}")
    I(f"s_mul_i32 s{sT0}, s{sW}, {64*272}")
    I(f"v_mul_u32_u24 v{vT3}, 272, v{vM}")
    I(f"v_lshl_add_u32 v{vT3}, v{vHB}, 4, v{vT3}")
    I(f"v_add_u32 v{vT3}, s{sT0}, v{vT3}")
    I(f"v_mul_u32_u24 v{vT4}, 272, v{vT1}")
    I(f"v_lshl_add_u32 v{vT4}, v{vT0}, 5, v{vT4}")
    I(f"v_add_u32 v{vT5}, {4*64*272}, v{vT4}")
    I(f"v_mul_u32_u24 v{vT2}, 896, v{vT1}")
    I(f"v_lshl_add_u32 v{vT2}, v{vT0}, 4, v{vT2}")
    I(f"s_mul_i32 s{sT0}, s{sMD}, {32*896}")
    I(f"s_lshl_b32 s{sT2}, s{sCB}, 7")
    I(f"s_add_u32 s{sT0}, s{sT0}, s{sT2}")
    hold = {}

    def pw(mt, k):
        nt, q = k // 4, k % 4
        I(f"ds_write_b128 v{vT3}, {vr(DACC+(mt*2+nt)*16+4*q,4)} offset:{mt*32*272 + nt*128 + q*32}")
    for mt in range(2):
        for c in range(14):
            g.wait(ta[c, mt])
            for nt in range(2):
                a = DACC + (mt * 2 + nt) * 16
                I(f"v_mfma_f32_32x32x16_bf16 {vr(a,16)}, {vr(frag[c]+4*nt,4)}, {vr(abuf[c],4)}, {'0' if c == 0 else vr(a,16)}")
            if mt == 0:
                lda1(c, 1)
            elif 2 <= c < 10:
                pw(0, c - 2)
        if mt == 0:
            hold["thr"] = I(f"buffer_load_dwordx4 {vr(HR,4)}, v{vFLAG}, {srd(sWS)}, s{sE} offen sc1")
            stamp("D early")
    stamp("D mfma")
    for k in range(8):
        pw(1, k)
    g.wait(hold["thr"])
    U = 88
    for i in range(4):
        I(f"v_lshlrev_b32 v{U+2*i}, 16, v{HR+i}")
        I(f"v_and_b32 v{U+2*i+1}, 0xffff0000, v{HR+i}")
    g.wait_all(vm=False)
    I("s_barrier")
    R = 16
    for w in range(8):
        for q in range(2):
            I(f"ds_read_b128 {vr(R+w*8+q*4,4)}, v{vT4 if w < 4 else vT5} offset:{(w%4)*64*272 + q*16}")
    g.wait_all(vm=False)
    for k in (32, 16, 8):
        for i in range(k):
            I(f"v_add_f32 v{R+i}, v{R+i}, v{R+k+i}")
    for i in range(8):
        I(f"v_add_f32 v{R+i}, v{R+i}, v{U+i}")
    for i in range(4):
        I(f"v_cvt_pk_bf16_f32 v{R+8+i}, v{R+2*i}, v{R+2*i+1}")
    I(f"buffer_store_dwordx4 {vr(R+8,4)}, v{vT2}, {srd(sOUT)}, s{sT0} offen")
    stamp("end")
    stamp("rt1", rt=True)
    if "span" in EXP:
        I(f"s_cmp_lg_u32 s{sW}, 7")
        I("s_cbranch_scc1 L_end")
        I("s_and_b32 s90, s2, 7")
        I("s_cmp_lg_u32 s90, 3")
        I("s_cbranch_scc1 L_end")
        I("s_waitcnt vmcnt(0)")
        I("s_memrealtime s[90:91]")
        I("s_memtime s[92:93]")
        I("s_waitcnt lgkmcnt(0)")
        I("s_mov_b64 exec, 1")
        I("s_not_b32 s86, s86")
        I("s_sub_u32 s92, s92, s100")
        I("v_mov_b32 v20, s86")
        I("v_mov_b32 v21, s90")
        I("v_mov_b32 v22, s92")
        I(f"buffer_atomic_umax v20, off, {srd(sDBG)}, 0 offset:4 sc1")
        I(f"buffer_atomic_umax v21, off, {srd(sDBG)}, 0 offset:8 sc1")
        I(f"buffer_atomic_umax v22, off, {srd(sDBG)}, 0 offset:12 sc1")


prologue()
two = phaseA()
twd = phaseB(two)
phaseCD(twd)
g.label("L_end")
I("s_endpgm")
for tl_ in TAILS:
    g.put(tl_)
g.insert_bg()
g.resolve_waits()
g.fix_hazards_fast()

hdr = open("cdna_kernels/" + NAME + ".s.ref").read().split("; Override launch geometry")[0]
out = hdr + f"""; @launch grid=(256,1,1) block=(512,1,1) lds=163840
.amdgcn_target "amdgcn-amd-amdhsa--gfx950"
.text
.globl {NAME}_kernel
.p2align 8
.type {NAME}_kernel,@function
{NAME}_kernel:
L_code_start:
{g.text()}
L_code_end:
.fill 64, 4, 0xbf800000
.section .rodata,"a"
.p2align 6
.amdhsa_kernel {NAME}_kernel
  .amdhsa_next_free_vgpr 256
  .amdhsa_next_free_sgpr 102
  .amdhsa_accum_offset 256
  .amdhsa_group_segment_fixed_size 0
  .amdhsa_kernarg_size 88
  .amdhsa_user_sgpr_count 2
  .amdhsa_user_sgpr_kernarg_segment_ptr 1
  .amdhsa_system_sgpr_workgroup_id_x 1
.end_amdhsa_kernel
"""
import subprocess, re as _re
open("_sz.s", "w").write(out.replace("CODE_LAST", "0x1000"))
subprocess.run(["clang", "-x", "assembler", "-target", "amdgcn-amd-amdhsa", "-mcpu=gfx950", "-c", "_sz.s", "-o", "_sz.o"], check=True)
_h = subprocess.run(["llvm-objdump", "-h", "_sz.o"], capture_output=True, text=True).stdout
_sz = int(_re.search(r"\.text\s+([0-9a-f]+)", _h).group(1), 16)
out = out.replace("CODE_LAST", hex(_sz - 768))
print("code bytes", _sz)
open(sys.argv[1], "w").write(out)
if STAMPS:
    open(sys.argv[1] + ".names", "w").write("\n".join(stamp_names))
print("instrs:", sum(1 for it in g.items if it.kind == "i"), "stamps:", nstamp[0])
```

```python
import sys, math, struct, os
sys.path.insert(0, "dev")
from gen import *

NAME = "sequential_preLN__linear_kernel_hedgehog__glu_gated_geglu__prompt"
STAMPS = int(sys.argv[2]) if len(sys.argv) > 2 else 0
EXP = sys.argv[3].split(",") if len(sys.argv) > 3 else []


def f32(x):
    return "0x%08x" % struct.unpack("<I", struct.pack("<f", x))[0]


WS_CNT = 0x0
WS_CS = 0x10000
WS_ST = 0x50000
WS_KVP = 0x100000
WS_O = 0x200000
WS_H = 0x400000
WS_HH = 0x600000
WS_STAMP = 0xE00000
CNT_KV, CNT_O, CNT_H, CNT_HH = 0, 1, 2, 3

sX, sWQKV, sWPHI, sWO, sWG, sWU, sWD, sOUT, sDBG, sWS = 8, 12, 16, 20, 24, 28, 32, 36, 40, 44
sG, sJ, sW = 48, 49, 50
sT0, sT1, sT2, sT3, sT4, sT5 = 51, 52, 53, 54, 55, 56
sW3, sWH = 57, 58
sA, sB, sC, sD, sE = 59, 60, 61, 62, 63
sSTAMP = 86
sGATH, sWB, sCW, sCL, sLOG = 88, 89, 90, 91, 92
sGB, sJB, sJC, sLI, sXC, sLW, sSTO = 93, 94, 95, 96, 97, 98, 99
OOB = 0x7ff00000
sBG, sWOB, sKVS, sOS, sHS, sSS, sHHS = 68, 70, 71, 72, 73, 74, 75


def srd(r):
    return f"s[{r}:{r+3}]"


def vr(a, n=1):
    return f"v{a}" if n == 1 else f"v[{a}:{a+n-1}]"


def ar(a, n=1):
    return f"a{a}" if n == 1 else f"a[{a}:{a+n-1}]"


g = Gen()
I = g.I
nstamp = [0]
stamp_names = []

vLANE, vG, vM16 = 1, 2, 3
vL16 = 4
vT0, vT1, vT2, vT3, vT4, vT5 = 5, 6, 7, 8, 9, 10
vFLAG, vONE, vCNT, vINIT, vDMY = 11, 12, 13, 14, 15


def stamp(name="", rt=False):
    if not STAMPS:
        return
    k = nstamp[0]
    nstamp[0] += 1
    stamp_names.append(name)
    g.cond_begin()
    I(f"{'s_memrealtime' if rt else 's_memtime'} s[{sSTAMP}:{sSTAMP+1}]")
    I("s_waitcnt lgkmcnt(0)")
    I(f"v_mov_b32 v{vCNT}, s{sSTAMP}")
    I(f"buffer_store_dword v{vCNT}, off, {srd(sWS)}, s{sSTO} offset:{4*k}")
    g.cond_end()


UNIT = 14336
LDS_WK = 8 * UNIT
LDS_KVF = 11 * UNIT
LDS_CS = LDS_KVF + 4096
LDS_FLG = LDS_CS + 1024
LDS_WPL = 10 * UNIT + 8192
LDS_KV2 = 8 * UNIT + 24576 + 4096
LDS_BSCR = 6 * UNIT


def prologue():
    I("s_cmp_ge_u32 s2, 256")
    I("s_cbranch_scc1 L_end")
    I("s_setprio 3")
    if "span" in EXP:
        I("s_memrealtime s[86:87]")
        I("s_memtime s[100:101]")
    I(f"s_load_dwordx2 s[{sX}:{sX+1}], s[0:1], 0")
    I("s_getpc_b64 s[4:5]")
    I(f"v_lshlrev_b32 v{vINIT}, 7, v0")
    I(f"s_and_b32 s{sT5}, s2, 24")
    I(f"s_cmp_eq_u32 s{sT5}, 0")
    I(f"s_cselect_b32 s{sT5}, CODE_LAST, 0")
    I(f"v_min_u32 v{vINIT}, s{sT5}, v{vINIT}")
    if "cp0" in EXP:
        I(f"global_load_dword v{vDMY}, v{vINIT}, s[4:5]")
    I("s_load_dwordx16 s[64:79], s[0:1], 0")
    I("s_load_dwordx4 s[80:83], s[0:1], 64")
    I("s_load_dwordx2 s[84:85], s[0:1], 80")
    I(f"v_and_b32 v{vLANE}, 63, v0")
    I(f"v_lshrrev_b32 v{vT0}, 6, v0")
    I(f"v_readfirstlane_b32 s{sW}, v{vT0}")
    I(f"v_lshrrev_b32 v{vG}, 4, v{vLANE}")
    I(f"s_bfe_u32 s{sT0}, s2, 0x20001")
    I(f"s_lshl_b32 s{sT0}, s{sT0}, 2")
    I(f"s_bfe_u32 s{sT1}, s2, 0x20003")
    I(f"s_add_u32 s{sG}, s{sT0}, s{sT1}")
    I(f"s_mov_b32 s{sX+2}, 1835008")
    I(f"s_mov_b32 s{sX+3}, 0x20000")
    I(f"v_lshrrev_b32 v{vT0}, 3, v{vLANE}")
    I(f"v_mul_u32_u24 v{vT0}, 896, v{vT0}")
    I(f"v_and_b32 v{vT1}, 7, v{vLANE}")
    I(f"v_xor_b32 v{vT3}, v{vT1}, v{vG}")
    I(f"v_lshl_add_u32 v{vXA0}, v{vT3}, 4, v{vT0}")
    I(f"v_xor_b32 v{vT3}, 4, v{vT3}")
    I(f"v_lshl_add_u32 v{vXA1}, v{vT3}, 4, v{vT0}")
    I(f"s_lshl_b32 s{sA}, s{sG}, 3")
    I(f"s_add_u32 s{sA}, s{sA}, s{sW}")
    I(f"s_mul_i32 s{sB}, s{sA}, {16*896}")
    I(f"s_add_u32 s{sC}, s{sB}, {8*896}")
    I(f"s_mul_i32 s{sLW}, s{sW}, {UNIT}")
    I(f"s_and_b32 s{sT2}, s2, 1")
    I(f"s_lshl_b32 s{sT3}, s{sT2}, 3")
    I(f"s_lshr_b32 s{sT4}, s2, 5")
    I(f"s_add_u32 s{sJ}, s{sT3}, s{sT4}")
    I(f"s_lshl_b32 s{sCL}, s{sW}, 10")
    I(f"v_lshrrev_b32 v{vT0}, 2, v{vLANE}")
    I(f"v_mul_u32_u24 v{vT0}, 2688, v{vT0}")
    I(f"v_and_b32 v{vT1}, 3, v{vLANE}")
    I(f"v_and_b32 v{vT2}, 2, v{vG}")
    I(f"v_xor_b32 v{vT1}, v{vT1}, v{vT2}")
    I(f"v_lshl_add_u32 v{vWA}, v{vT1}, 4, v{vT0}")
    I(f"s_mul_i32 s{sWB}, s{sJ}, 56")
    I(f"s_and_b32 s{sT1}, s{sJ}, 1")
    I(f"s_lshl_b32 s{sT1}, s{sT1}, 3")
    I(f"s_sub_u32 s{sWB}, s{sWB}, s{sT1}")
    I(f"s_mul_i32 s{sD}, s{sW}, {16*2688}")
    I(f"s_add_u32 s{sD}, s{sD}, s{sWB}")
    I(f"s_mov_b32 s{sWQKV+2}, 1204224")
    I(f"s_mov_b32 s{sWQKV+3}, 0x20000")
    if "t0" in EXP:
        I(f"s_lshr_b32 s{sLI}, s2, 3")
        I(f"s_mul_i32 s{sT2}, s{sLI}, {14*2688}")
        I(f"s_and_b32 s{sT3}, s2, 1")
        I(f"s_mul_i32 s{sT3}, s{sT3}, 384")
        I(f"s_add_u32 s{sT2}, s{sT2}, s{sT3}")
        I(f"s_mul_i32 s{sT3}, s{sW}, 896")
        I(f"s_add_u32 s{sT2}, s{sT2}, s{sT3}")
        I(f"s_cmp_ge_u32 s{sW}, 3")
        I(f"s_cselect_b32 s{sT3}, {OOB}, 0")
        I(f"s_add_u32 s{sT2}, s{sT2}, s{sT3}")
        I(f"v_lshrrev_b32 v{vT0}, 2, v{vLANE}")
        I(f"v_min_u32 v{vT0}, 13, v{vT0}")
        I(f"v_mul_u32_u24 v{vT0}, 2688, v{vT0}")
        I(f"v_and_b32 v{vT1}, 3, v{vLANE}")
        I(f"v_lshl_add_u32 v{vT4}, v{vT1}, 7, v{vT0}")
        I(f"s_mul_i32 s{sT4}, s{sT0}, 114688")
        I(f"s_mul_i32 s{sT5}, s{sLI}, 14336")
        I(f"s_add_u32 s{sT4}, s{sT4}, s{sT5}")
        I(f"s_sub_u32 s{sT5}, s{sW}, 3")
        I(f"s_cmp_lt_u32 s{sT5}, 2")
        I(f"s_cselect_b32 s{sT3}, 0, {OOB}")
        I(f"s_mul_i32 s{sT5}, s{sT5}, 7168")
        I(f"s_and_b32 s{sT5}, s{sT5}, 0x3fff")
        I(f"s_add_u32 s{sT4}, s{sT4}, s{sT5}")
        I(f"s_add_u32 s{sT4}, s{sT4}, s{sT3}")
        I(f"v_min_u32 v{vT5}, 55, v{vLANE}")
        I(f"v_lshlrev_b32 v{vT5}, 7, v{vT5}")
        I(f"s_mov_b32 s{sWQKV+2}, 1204224")
        I(f"s_mov_b32 s{sWQKV+3}, 0x20000")
    I("s_waitcnt lgkmcnt(0)")
    I(f"s_mov_b64 s[{sWQKV}:{sWQKV+1}], s[66:67]")
    if "t0" in EXP:
        I(f"buffer_load_dword v{vDMY}, v{vT5}, {srd(sX)}, s{sT4} offen")
        I(f"buffer_load_dword v{vDMY}, v{vT4}, {srd(sWQKV)}, s{sT2} offen")


def prologue2():
    I(f"v_and_b32 v{vM16}, 15, v{vLANE}")
    I(f"v_lshlrev_b32 v{vL16}, 4, v{vLANE}")
    I(f"v_mov_b32 v{vONE}, 1")
    I(f"s_and_b32 s{sXC}, s2, 7")
    I(f"s_lshr_b32 s{sLI}, s2, 3")
    I(f"s_and_b32 s{sT2}, s{sXC}, 1")
    I(f"s_lshl_b32 s{sT3}, s{sT2}, 3")
    I(f"s_lshr_b32 s{sT4}, s{sLI}, 2")
    I(f"s_add_u32 s{sJ}, s{sT3}, s{sT4}")
    I(f"s_lshl_b32 s{sGB}, s{sXC}, 1")
    I(f"s_and_b32 s{sT5}, s{sLI}, 1")
    I(f"s_add_u32 s{sGB}, s{sGB}, s{sT5}")
    I(f"s_lshr_b32 s{sJB}, s{sLI}, 1")
    I(f"s_mul_i32 s{sJC}, s{sT2}, 7")
    I(f"s_add_u32 s{sJC}, s{sJC}, s{sT4}")
    I(f"s_cmp_eq_u32 s{sT4}, 7")
    I(f"s_cselect_b32 s{sJC}, 15, s{sJC}")
    I(f"s_and_b32 s{sW3}, s{sW}, 3")
    I(f"s_lshr_b32 s{sWH}, s{sW}, 2")
    I(f"s_lshl_b32 s{sCL}, s{sW}, 10")
    for r, p, n in ((sWQKV, 66, 1204224), (sWPHI, 68, 25088), (sWO, 70, 401408),
                    (sWG, 74, 1605632), (sWU, 76, 1605632), (sWD, 78, 1605632), (sOUT, 80, 1835008),
                    (sDBG, 82, 256), (sWS, 84, 0x10000000)):
        I(f"s_mov_b64 s[{r}:{r+1}], s[{p}:{p+1}]")
        I(f"s_mov_b32 s{r+2}, {n}")
        I(f"s_mov_b32 s{r+3}, 0x20000")
    if STAMPS:
        I(f"s_lshl_b32 s{sSTO}, s2, 3")
        I(f"s_add_u32 s{sSTO}, s{sSTO}, s{sW}")
        I(f"s_lshl_b32 s{sSTO}, s{sSTO}, 7")
        I(f"s_add_u32 s{sSTO}, s{sSTO}, {WS_STAMP}")


POLL_MAX = 200000


def poll(srdreg, voff, target):
    lp, ld = g.newlabel("L_poll"), g.newlabel("L_pdone")
    I(f"s_mov_b32 s{sT5}, 0")
    g.label(lp)
    I(f"buffer_load_dword v{vFLAG}, v{voff}, {srd(srdreg)}, 0 offen sc1")
    I("s_waitcnt vmcnt(0)")
    I(f"v_readfirstlane_b32 s{sT4}, v{vFLAG}")
    I(f"s_add_u32 s{sT5}, s{sT5}, 1")
    I(f"s_cmp_ge_u32 s{sT5}, {POLL_MAX}")
    I(f"s_cbranch_scc1 {ld}")
    I(f"s_cmp_lt_u32 s{sT4}, {target}")
    I(f"s_cbranch_scc1 {lp}")
    g.label(ld)


def signal(kind, sidx, toks, first=False):
    g.wait(*toks)
    I("s_barrier")
    lab = g.newlabel("L_sig")
    I(f"s_cmp_lg_u32 s{sW}, 0")
    I(f"s_cbranch_scc1 {lab}")
    g.cond_begin()
    I("s_mov_b64 exec, 1")
    if first:
        l2 = g.newlabel("L_ini")
        I(f"v_readfirstlane_b32 s{sT4}, v{vINIT}")
        I(f"s_cmp_lg_u32 s{sT4}, 0")
        I(f"s_cbranch_scc1 {l2}")
        I(f"v_mov_b32 v{vCNT}, 0")
        poll(sDBG, vCNT, 1)
        g.label(l2)
    I(f"s_lshl_b32 s{sT0}, s{sidx}, 8")
    I(f"s_add_u32 s{sT0}, s{sT0}, {WS_CNT + kind * 4096}")
    I(f"v_mov_b32 v{vCNT}, s{sT0}")
    I(f"buffer_atomic_add v{vONE}, v{vCNT}, {srd(sWS)}, 0 offen sc1")
    I("s_mov_b64 exec, -1")
    g.cond_end()
    g.label(lab)


def waitflag(kind, sidx, target=16):
    lab = g.newlabel("L_w")
    I(f"s_cmp_lg_u32 s{sW}, 0")
    I(f"s_cbranch_scc1 {lab}")
    g.cond_begin()
    I("s_mov_b64 exec, 1")
    I(f"s_lshl_b32 s{sT0}, s{sidx}, 8")
    I(f"s_add_u32 s{sT0}, s{sT0}, {WS_CNT + kind * 4096}")
    I(f"v_mov_b32 v{vCNT}, s{sT0}")
    poll(sWS, vCNT, target)
    I("s_mov_b64 exec, -1")
    g.cond_end()
    g.label(lab)
    I("s_barrier")


def dma2(vaddr, srdreg, sbase, src_imm, lds_sreg, lds_imm, stmp=None):
    stmp = sT1 if stmp is None else stmp
    I(f"s_add_u32 m0, s{lds_sreg}, {lds_imm}")
    I(f"s_add_u32 s{stmp}, s{sbase}, {src_imm}")
    return I(f"buffer_load_dwordx4 v{vaddr}, {srd(srdreg)}, s{stmp} offen lds")


def xreduce(op, a, t, levels=(16, 32)):
    for lv in levels:
        I(f"v_mov_b32 v{t}, v{a}")
        I(f"v_permlane{lv}_swap_b32 v{a}, v{t}")
        I(f"{op} v{a}, v{a}, v{t}")


LOG2E = 1.4426950408889634

XF = 16
WR = 72
WPHI = 100
WPH2 = 108
SEL = 116
ACC = 124
ACCV = 132
WF = 140
TMP = 172
PH = 196
vXA0, vXA1, vWA, vTR, vXR0, vXR1, vCA = 204, 205, 206, 207, 208, 209, 252
vTRb, vTRc, vWOA = 211, 212, 213


def chain16(acc, rd, swap=False, depth=3, hook=None):
    toks = {}
    nb = depth + 1
    n = 14
    for c in range(depth):
        toks[c] = rd(c, WF + 8 * (c % nb))
    for c in range(n):
        if c + depth < n:
            toks[c + depth] = rd(c + depth, WF + 8 * ((c + depth) % nb))
        g.wait(toks[c])
        X = vr(XF + 4 * c, 4)
        for t in range(2):
            W = vr(WF + 8 * (c % nb) + 4 * t, 4)
            a = vr(acc + 4 * t, 4)
            C = a if c > 0 else "0"
            if swap:
                I(f"v_mfma_f32_16x16x32_bf16 {a}, {X}, {W}, {C}")
            else:
                I(f"v_mfma_f32_16x16x32_bf16 {a}, {W}, {X}, {C}")
        if hook is not None:
            hook(c)


def featmap(acc, out):
    pk = TMP
    p = acc
    e = TMP + 4
    mx, mn, t0, t1 = TMP + 12, TMP + 13, TMP + 14, TMP + 15
    for i in range(4):
        I(f"v_cvt_pk_bf16_f32 v{pk+i}, v{acc+2*i}, v{acc+2*i+1}")
    I(f"v_mfma_f32_16x16x32_bf16 {vr(p,4)}, {vr(WPHI,4)}, {vr(pk,4)}, 0")
    I(f"v_mfma_f32_16x16x32_bf16 {vr(p+4,4)}, {vr(WPHI+4,4)}, {vr(pk,4)}, 0")
    I(f"v_max3_f32 v{mx}, v{p}, v{p+1}, v{p+2}")
    I(f"v_min3_f32 v{mn}, v{p}, v{p+1}, v{p+2}")
    for i in (3, 5):
        I(f"v_max3_f32 v{mx}, v{mx}, v{p+i}, v{p+i+1}")
        I(f"v_min3_f32 v{mn}, v{mn}, v{p+i}, v{p+i+1}")
    for lv in (16, 32):
        I(f"v_mov_b32 v{t0}, v{mx}")
        I(f"v_mov_b32 v{t1}, v{mn}")
        I(f"v_permlane{lv}_swap_b32 v{mx}, v{t0}")
        I(f"v_permlane{lv}_swap_b32 v{mn}, v{t1}")
        I(f"v_max_f32 v{mx}, v{mx}, v{t0}")
        I(f"v_min_f32 v{mn}, v{mn}, v{t1}")
    I(f"v_mul_f32 v{mx}, {f32(-LOG2E)}, v{mx}")
    I(f"v_mul_f32 v{mn}, {f32(LOG2E)}, v{mn}")
    e2 = TMP + 16
    for i in range(7):
        I(f"v_fma_f32 v{e+i}, v{p+i}, s{sLOG}, v{mx}")
        I(f"v_fma_f32 v{e2+i}, -v{p+i}, s{sLOG}, v{mn}")
    for i in range(7):
        I(f"v_exp_f32 v{e+i}, v{e+i}")
        I(f"v_exp_f32 v{e2+i}, v{e2+i}")
    I(f"v_add_f32 v{mx}, v{e}, v{e+1}")
    I(f"v_add_f32 v{mn}, v{e2}, v{e2+1}")
    for i in range(2, 7):
        I(f"v_add_f32 v{mx}, v{mx}, v{e+i}")
        I(f"v_add_f32 v{mn}, v{mn}, v{e2+i}")
    for lv in (16, 32):
        I(f"v_mov_b32 v{t0}, v{mx}")
        I(f"v_mov_b32 v{t1}, v{mn}")
        I(f"v_permlane{lv}_swap_b32 v{mx}, v{t0}")
        I(f"v_permlane{lv}_swap_b32 v{mn}, v{t1}")
        I(f"v_add_f32 v{mx}, v{mx}, v{t0}")
        I(f"v_add_f32 v{mn}, v{mn}, v{t1}")
    I(f"v_rcp_f32 v{mx}, v{mx}")
    I(f"v_rcp_f32 v{mn}, v{mn}")
    for i in range(7):
        I(f"v_mul_f32 v{e+i}, v{e+i}, v{mx}")
        I(f"v_mul_f32 v{e2+i}, v{e2+i}, v{mn}")
    for i in range(3):
        I(f"v_cvt_pk_bf16_f32 v{out+i}, v{e+2*i}, v{e+2*i+1}")
        I(f"v_cvt_pk_bf16_f32 v{out+4+i}, v{e2+2*i}, v{e2+2*i+1}")
    I(f"v_cvt_pk_bf16_f32 v{out+3}, v{e+6}, 0")
    I(f"v_cvt_pk_bf16_f32 v{out+7}, v{e2+6}, 0")


def c_batch(mat, dbl, n0, n1, lds_base):
    t = None
    assert n0 % 8 == 0 and n1 % 8 == 0
    for i in range(n0 // 8, n1 // 8):
        t = dma2(vCA, sWG if mat == 0 else sWU, sCW, i * 8 * 8 * 3584 + dbl * 128, sCL, lds_base + (i * 8 - n0) * 1024)
    return t


def c_bg(mat, dbl, n0, n1, lds_base, after, gap=150):
    t = None
    for i in range(n0 // 8, n1 // 8):
        g.begin()
        t = dma2(vCA, sWG if mat == 0 else sWU, sCW, i * 8 * 8 * 3584 + dbl * 128, sCL, lds_base + (i * 8 - n0) * 1024, stmp=sBG)
        g.bg_add(g.end(), after, gap)
        NBG[0] += 1
    return t


NBG = [0]
TWD = {}
NWDBG = [0]


def bg(fn, after=None, gap=150):
    g.begin()
    r = fn()
    g.bg_add(g.end(), after, gap)
    NBG[0] += 1
    return r


def flush():
    g.mark(f"flush:{NBG[0]}")


def check_loop(issue, regs, tmp, body=None):
    lp, ld = g.newlabel("L_dp"), g.newlabel("L_dpd")
    I(f"s_mov_b32 s{sT5}, 0")
    g.label(lp)
    toks = issue()
    if body is not None:
        body(toks)
    g.wait(toks[-1])
    rs = list(regs)
    if len(rs) == 1:
        I(f"v_cmp_eq_u32 vcc, -1, v{rs[0]}")
    else:
        first = True
        acc = None
        while rs:
            if acc is None:
                if len(rs) >= 3:
                    I(f"v_max3_u32 v{tmp}, v{rs[0]}, v{rs[1]}, v{rs[2]}")
                    rs = rs[3:]
                else:
                    I(f"v_max_u32 v{tmp}, v{rs[0]}, v{rs[1]}")
                    rs = rs[2:]
                acc = tmp
            elif len(rs) >= 2:
                I(f"v_max3_u32 v{tmp}, v{tmp}, v{rs[0]}, v{rs[1]}")
                rs = rs[2:]
            else:
                I(f"v_max_u32 v{tmp}, v{tmp}, v{rs[0]}")
                rs = rs[1:]
        I(f"v_cmp_eq_u32 vcc, -1, v{tmp}")
    I(f"s_add_u32 s{sT5}, s{sT5}, 1")
    I(f"s_cmp_ge_u32 s{sT5}, {POLL_MAX}")
    I(f"s_cbranch_scc1 {ld}")
    I(f"s_cmp_lg_u64 vcc, 0")
    I(f"s_cbranch_scc1 {lp}")
    g.label(ld)


def sent_check(regs, tmp):
    rs = list(regs)
    acc = None
    while rs:
        if acc is None:
            if len(rs) >= 3:
                I(f"v_max3_u32 v{tmp}, v{rs[0]}, v{rs[1]}, v{rs[2]}")
                rs = rs[3:]
            else:
                I(f"v_max_u32 v{tmp}, v{rs[0]}, v{rs[1]}")
                rs = rs[2:]
            acc = tmp
        elif len(rs) >= 2:
            I(f"v_max3_u32 v{tmp}, v{tmp}, v{rs[0]}, v{rs[1]}")
            rs = rs[2:]
        else:
            I(f"v_max_u32 v{tmp}, v{tmp}, v{rs[0]}")
            rs = rs[1:]
    I(f"v_cmp_eq_u32 vcc, -1, v{tmp}")


TAILS = []


def spec_load(issue, regs, tmp, body=None, filler=None):
    lr, lb = g.newlabel("L_sr"), g.newlabel("L_sb")
    toks = issue()
    if filler is not None:
        filler()
    if body is not None:
        body(toks)
    g.wait(toks[-1])
    sent_check(regs, tmp)
    I(f"s_cmp_lg_u64 vcc, 0")
    I(f"s_cbranch_scc1 {lr}")
    g.label(lb)
    g.begin()
    g.label(lr)
    check_loop(issue, regs, tmp, body)
    I(f"s_branch {lb}")
    TAILS.append(g.end())


def c_setup():
    I(f"v_lshrrev_b32 v{vT0}, 3, v{vLANE}")
    I(f"v_mul_u32_u24 v{vT1}, 3584, v{vT0}")
    I(f"v_and_b32 v{vT2}, 1, v{vG}")
    I(f"v_lshlrev_b32 v{vT2}, 2, v{vT2}")
    I(f"v_and_b32 v{vCA}, 7, v{vLANE}")
    I(f"v_xor_b32 v{vCA}, v{vCA}, v{vT2}")
    I(f"v_lshl_add_u32 v{vCA}, v{vCA}, 4, v{vT1}")
    I(f"s_cmp_ge_u32 s{sJC}, 14")
    I(f"s_cselect_b32 s{sT0}, {OOB}, 0")
    I(f"v_add_u32 v{vCA}, s{sT0}, v{vCA}")
    I(f"s_mul_i32 s{sCW}, s{sW}, {8*3584}")
    I(f"s_lshl_b32 s{sT0}, s{sJC}, 8")
    I(f"s_add_u32 s{sCW}, s{sCW}, s{sT0}")


def touch1():
    I(f"s_mul_i32 s{sT0}, s{sLI}, {98*128}")
    I(f"s_mul_i32 s{sT1}, s{sW}, {13*128}")
    I(f"s_add_u32 s{sT0}, s{sT0}, s{sT1}")
    I(f"v_lshlrev_b32 v{vT0}, 7, v{vLANE}")
    I(f"v_mov_b32 v{vT2}, {OOB}")
    I(f"v_cmp_gt_u32 vcc, 13, v{vLANE}")
    I(f"v_cndmask_b32 v{vT0}, v{vT2}, v{vT0}, vcc")
    I(f"buffer_load_dword v{vDMY}, v{vT0}, {srd(sWO)}, s{sT0} offen")
    I(f"s_lshr_b32 s{sT0}, s{sW}, 1")
    I(f"s_lshl_b32 s{sT2}, s{sT0}, 2")
    I(f"s_mul_i32 s{sT0}, s{sT0}, {4*3584}")
    I(f"s_mul_i32 s{sT1}, s{sLI}, {14*3584}")
    I(f"s_add_u32 s{sT0}, s{sT0}, s{sT1}")
    I(f"s_and_b32 s{sT1}, s{sXC}, 1")
    I(f"s_mul_i32 s{sT1}, s{sT1}, 1792")
    I(f"s_add_u32 s{sT0}, s{sT0}, s{sT1}")
    I(f"v_mul_u32_u24 v{vT0}, 3584, v{vG}")
    I(f"v_lshl_add_u32 v{vT0}, v{vM16}, 7, v{vT0}")
    I(f"v_cmp_gt_u32 vcc, 14, v{vM16}")
    I(f"v_cndmask_b32 v{vT0}, v{vT2}, v{vT0}, vcc")
    I(f"v_add_u32 v{vT1}, s{sT2}, v{vG}")
    I(f"v_cmp_gt_u32 vcc, 14, v{vT1}")
    I(f"v_cndmask_b32 v{vT0}, v{vT2}, v{vT0}, vcc")
    I(f"buffer_load_dword v{vDMY}, v{vT0}, s[4:7], s{sT0} offen")


def touch2():
    I(f"s_mul_i32 s{sT2}, s{sLI}, {392*128}")
    I(f"s_mul_i32 s{sT1}, s{sW}, {49*128}")
    I(f"s_add_u32 s{sT2}, s{sT2}, s{sT1}")
    I(f"v_lshlrev_b32 v{vT1}, 7, v{vLANE}")
    I(f"v_mov_b32 v{vT2}, {OOB}")
    I(f"v_cmp_gt_u32 vcc, 49, v{vLANE}")
    I(f"v_cndmask_b32 v{vT1}, v{vT2}, v{vT1}, vcc")
    I(f"buffer_load_dword v247, v{vT1}, {srd(sWD)}, s{sT2} offen")


sNQ, sMTB, sCSS, sMTC = 76, 77, 78, 79
vT8, vCSS, vHSA, vSSA = 210, 214, 215, 199 + 0


def addr_setup():
    I(f"s_lshl_b32 s{sGATH}, s{sJ}, 16")
    I(f"s_add_u32 s{sGATH}, s{sGATH}, {WS_KVP}")
    I(f"s_lshl_b32 s{sKVS}, s{sG}, 12")
    I(f"s_add_u32 s{sKVS}, s{sKVS}, s{sGATH}")
    I(f"s_lshl_b32 s{sOS}, s{sA}, 4")
    I(f"s_add_u32 s{sOS}, s{sOS}, s{sJ}")
    I(f"s_lshl_b32 s{sOS}, s{sOS}, 10")
    I(f"s_add_u32 s{sOS}, s{sOS}, {WS_O}")
    I(f"s_lshl_b32 s{sCSS}, s{sJC}, 4")
    I(f"s_add_u32 s{sCSS}, s{sCSS}, s{sG}")
    I(f"s_lshl_b32 s{sCSS}, s{sCSS}, 10")
    I(f"s_add_u32 s{sCSS}, s{sCSS}, {WS_CS}")
    I(f"s_and_b32 s{sNQ}, s{sJB}, 3")
    I(f"s_lshr_b32 s{sMTB}, s{sJB}, 2")
    I(f"s_lshl_b32 s{sT0}, s{sGB}, 2")
    I(f"s_add_u32 s{sMTB}, s{sMTB}, s{sT0}")
    I(f"s_mul_i32 s{sHS}, s{sMTB}, 28")
    I(f"s_lshl_b32 s{sT1}, s{sNQ}, 3")
    I(f"s_add_u32 s{sHS}, s{sHS}, s{sT1}")
    I(f"s_lshl_b32 s{sHS}, s{sHS}, 10")
    I(f"s_add_u32 s{sHS}, s{sHS}, {WS_H}")
    I(f"s_lshl_b32 s{sSS}, s{sMTB}, 2")
    I(f"s_add_u32 s{sSS}, s{sSS}, s{sNQ}")
    I(f"s_lshl_b32 s{sSS}, s{sSS}, 8")
    I(f"s_add_u32 s{sSS}, s{sSS}, {WS_ST}")
    I(f"s_lshl_b32 s{sMTC}, s{sG}, 2")
    I(f"s_add_u32 s{sMTC}, s{sMTC}, s{sW3}")
    I(f"s_mul_i32 s{sHHS}, s{sMTC}, {112*1024}")
    I(f"s_lshl_b32 s{sT0}, s{sJC}, 13")
    I(f"s_add_u32 s{sHHS}, s{sHHS}, s{sT0}")
    I(f"s_lshl_b32 s{sT0}, s{sWH}, 11")
    I(f"s_add_u32 s{sHHS}, s{sHHS}, s{sT0}")
    I(f"s_add_u32 s{sHHS}, s{sHHS}, {WS_HH}")
    I(f"s_cmp_ge_u32 s{sJC}, 14")
    I(f"s_cselect_b32 s{sT0}, {OOB}, 0")
    I(f"s_add_u32 s{sHHS}, s{sHHS}, s{sT0}")
    I(f"s_lshr_b32 s{sT0}, s{sW}, 1")
    I(f"s_lshl_b32 s{sT0}, s{sT0}, 10")
    I(f"s_and_b32 s{sT1}, s{sW}, 1")
    I(f"s_lshl_b32 s{sT1}, s{sT1}, 3")
    I(f"s_add_u32 s{sT0}, s{sT0}, s{sT1}")
    I(f"v_add_u32 v{vT8}, s{sT0}, v{vL16}")
    I(f"s_cmp_ge_u32 s{sW}, 4")
    I(f"s_cselect_b32 s{sT0}, {OOB}, 0")
    I(f"v_lshlrev_b32 v{vCSS}, 2, v0")
    I(f"v_add_u32 v{vCSS}, s{sT0}, v{vCSS}")
    I(f"s_lshl_b32 s{sT1}, s{sW}, 2")
    I(f"v_and_b32 v{vT0}, 3, v{vLANE}")
    I(f"v_add_u32 v{vT0}, s{sT1}, v{vT0}")
    I(f"v_lshrrev_b32 v{vT1}, 2, v{vLANE}")
    I(f"v_lshlrev_b32 v{vHSA}, 9, v{vT1}")
    I(f"v_lshl_add_u32 v{vHSA}, v{vT0}, 4, v{vHSA}")
    I(f"s_cmp_eq_u32 s{sNQ}, 3")
    I(f"s_cselect_b32 s{sT1}, 8, 16")
    I(f"v_cmp_gt_u32 vcc, s{sT1}, v{vT1}")
    I(f"v_mov_b32 v{vT1}, {OOB}")
    I(f"v_cndmask_b32 v{vHSA}, v{vT1}, v{vHSA}, vcc")


def stats_addr(dst, t0, t1):
    I(f"s_lshl_b32 s{sBG}, s{sW}, 5")
    I(f"v_lshlrev_b32 v{t0}, 3, v{vLANE}")
    I(f"v_add_u32 v{t0}, s{sBG}, v{t0}")
    I(f"v_mov_b32 v{t1}, {OOB}")
    I(f"v_cmp_gt_u32 vcc, 4, v{vLANE}")
    I(f"v_cndmask_b32 v{dst}, v{t1}, v{t0}, vcc")


def sentinels0():
    lab = g.newlabel("L_init")
    I(f"s_lshl_b32 s{sT0}, s2, 3")
    I(f"s_add_u32 s{sT0}, s{sT0}, s{sW}")
    I(f"s_cmp_lg_u32 s{sT0}, 7")
    I(f"s_cbranch_scc1 {lab}")
    g.cond_begin()
    I(f"v_lshlrev_b32 v{vT0}, 8, v{vLANE}")
    I(f"v_mov_b32 v{vT1}, 0")
    I(f"buffer_store_dword v{vT1}, v{vT0}, {srd(sWS)}, 0 offen sc1")
    g.cond_end()
    g.label(lab)
    SN = 216
    for i in range(4):
        I(f"v_mov_b32 v{SN+i}, -1")
    I(f"buffer_store_dwordx2 {vr(SN,2)}, v{vT8}, {srd(sWS)}, s{sKVS} offen sc1")
    I(f"buffer_store_dwordx4 {vr(SN,4)}, v{vL16}, {srd(sWS)}, s{sOS} offen sc1")


def sentinels():
    SN = 216
    I(f"buffer_store_dword v{SN}, v{vCSS}, {srd(sWS)}, s{sCSS} offen sc1")
    I(f"buffer_store_dwordx4 {vr(SN,4)}, v{vHSA}, {srd(sWS)}, s{sHS} offen sc1")
    stats_addr(SN + 4, SN + 4, SN + 5)
    return I(f"buffer_store_dwordx2 {vr(SN,2)}, v{SN+4}, {srd(sWS)}, s{sSS} offen sc1")


def sent_hh(k):
    SN = 216
    I(f"s_add_u32 s{sBG}, s{sHHS}, {(k>>1)*4096 + (k&1)*1024}")
    return I(f"buffer_store_dwordx4 {vr(SN,4)}, v{vL16}, {srd(sWS)}, s{sBG} offen sc1")


def init_signal():
    lab = g.newlabel("L_is")
    I(f"s_cmp_lg_u32 s{sW}, 5")
    I(f"s_cbranch_scc1 {lab}")
    g.cond_begin()
    I("s_mov_b64 exec, 1")
    I(f"s_and_b32 s{sT0}, s2, 15")
    I(f"s_lshl_b32 s{sT0}, s{sT0}, 4")
    I(f"v_mov_b32 v{vCNT}, s{sT0}")
    I(f"buffer_atomic_add v{vONE}, v{vCNT}, {srd(sDBG)}, 0 offen sc1")
    I("s_mov_b64 exec, -1")
    g.cond_end()
    g.label(lab)


def init_check():
    lp, ld = g.newlabel("L_ic"), g.newlabel("L_icd")
    I(f"v_lshlrev_b32 v{vCNT}, 4, v{vM16}")
    I(f"s_mov_b32 s{sT5}, 0")
    g.label(lp)
    I("s_sleep 16")
    t = I(f"buffer_load_dword v{vINIT}, v{vCNT}, {srd(sDBG)}, 0 offen sc1")
    g.wait(t)
    I(f"v_cmp_gt_u32 vcc, 16, v{vINIT}")
    I(f"s_add_u32 s{sT5}, s{sT5}, 1")
    I(f"s_cmp_ge_u32 s{sT5}, {POLL_MAX}")
    I(f"s_cbranch_scc1 {ld}")
    I(f"s_cmp_lg_u64 vcc, 0")
    I(f"s_cbranch_scc1 {lp}")
    g.label(ld)


def phaseA():
    g.comment("==== phase A ====")
    if STAMPS:
        I("s_memrealtime s[96:97]")
        I("s_memtime s[94:95]")
        I("s_waitcnt lgkmcnt(0)")
        I("v_mov_b32 v250, s96")
        I("v_mov_b32 v251, s94")
    tx = {}
    for seg in range(7):
        for o in range(2):
            I(f"s_add_u32 m0, s{sLW}, {(o*7+seg)*1024 - seg*128}")
            tx[seg] = I(f"buffer_load_dwordx4 v{vXA1 if o else vXA0}, {srd(sX)}, s{sC if o else sB} offen offset:{seg*128} lds")
    I("s_setprio 2")
    if "cp0" not in EXP and "nocp" not in EXP:
        I(f"global_load_dword v{vDMY}, v{vINIT}, s[4:5]")
    for i in range(3):
        dma2(vWA, sWQKV, sD, 896 + i * 8 * 16 * 2688, sCL, LDS_WK + i * 8192)
    prologue2()
    if STAMPS:
        for nm, r in (("rt0", 250), ("start", 251)):
            g.cond_begin()
            I(f"buffer_store_dword v{r}, off, {srd(sWS)}, s{sSTO} offset:{4*nstamp[0]}")
            g.cond_end()
            nstamp[0] += 1
            stamp_names.append(nm)
    I(f"s_mov_b32 s{sLOG}, {f32(LOG2E)}")
    bgl = []
    bt = {}

    def bg_add(name, fn):
        bgl.append((name, fn))

    def bgq(n=1):
        for _ in range(n):
            if bgl:
                name, fn = bgl.pop(0)
                bt[name] = fn()

    def wk3():
        I(f"s_cmp_ge_u32 s{sW}, 4")
        I(f"s_cselect_b32 s{sT0}, {OOB}, 0")
        I(f"s_add_u32 s{sT0}, s{sT0}, s{sD}")
        dma2(vWA, sWQKV, sT0, 896 + 3 * 8 * 16 * 2688, sCL, LDS_WK + 3 * 8192)
        I(f"v_lshlrev_b32 v{vT0}, 4, v0")
        I(f"v_mov_b32 v{vT1}, {OOB}")
        I(f"v_cmp_gt_u32 vcc, 98, v0")
        I(f"v_cndmask_b32 v{vT0}, v{vT1}, v{vT0}, vcc")
        I(f"s_min_u32 s{sT0}, s{sCL}, 2048")
        I(f"s_add_u32 m0, s{sT0}, {LDS_WPL}")
        I(f"s_mul_i32 s{sT0}, s{sJ}, 1568")
        return I(f"buffer_load_dwordx4 v{vT0}, {srd(sWPHI)}, s{sT0} offen lds")
    bg_add("wk3", wk3)
    addr_setup()
    I(f"s_cmp_ge_u32 s{sW}, 4")
    I(f"s_cselect_b32 s{sE}, {(24-4)*16*2688}, {1792 + 24*16*2688}" if False else f"s_mov_b32 s{sE}, {1792 + 24*16*2688}")
    I(f"s_cmov_b32 s{sE}, {20*16*2688}")

    I(f"s_cselect_b32 s{sKC}, 10240, 0")
    I(f"s_max_u32 s{sKC}, s{sKC}, 3072")
    I(f"s_add_u32 s{sKC}, s{sKC}, s{sLW}")
    I(f"s_add_u32 s{sE}, s{sE}, s{sD}")

    def rawW(i):
        if i == 3:
            I(f"s_mov_b32 m0, s{sKC}")
            I("s_nop 0")
            return I(f"buffer_load_dwordx4 v{vWA}, {srd(sWQKV)}, s{sE} offen lds")
        off = 1792 + i * 8 * 16 * 2688 if i < 3 else (i - 4) * 8 * 16 * 2688
        return dma2(vWA, sWQKV, sD, off, sLW, i * 1024 if i < 3 else 10240 + (i - 3) * 1024)
    for i in range(4):
        bg_add(f"w{i}", lambda i=i: rawW(i))
    I(f"v_lshrrev_b32 v{vT0}, 3, v{vM16}")
    I(f"v_mul_u32_u24 v{vT0}, 7168, v{vT0}")
    I(f"v_add_u32 v{vT0}, s{sLW}, v{vT0}")
    I(f"v_and_b32 v{vT1}, 7, v{vM16}")
    I(f"v_lshl_add_u32 v{vT0}, v{vT1}, 7, v{vT0}")
    I(f"v_lshrrev_b32 v{vT1}, 1, v{vM16}")
    I(f"v_xor_b32 v{vT1}, v{vT1}, v{vG}")
    I(f"v_lshl_add_u32 v{vXR0}, v{vT1}, 4, v{vT0}")
    I(f"v_xor_b32 v{vXR1}, 64, v{vXR0}")
    I(f"v_bfe_u32 v{vT0}, v{vLANE}, 2, 2")
    I(f"v_lshl_add_u32 v{vT0}, v{vG}, 3, v{vT0}")
    I(f"v_lshlrev_b32 v{vT0}, 6, v{vT0}")
    I(f"v_and_b32 v{vT1}, 3, v{vLANE}")
    I(f"s_and_b32 s{sT1}, s{sJ}, 1")
    I(f"v_add_u32 v{vT1}, s{sT1}, v{vT1}")
    I(f"v_and_b32 v{vT2}, 1, v{vG}")
    I(f"v_lshlrev_b32 v{vT2}, 2, v{vT2}")
    I(f"v_xor_b32 v{vT1}, v{vT1}, v{vT2}")
    I(f"v_lshl_add_u32 v{vTR}, v{vT1}, 3, v{vT0}")
    I(f"v_lshrrev_b32 v{vT0}, 2, v{vM16}")
    I(f"v_and_b32 v{vT1}, 3, v{vM16}")
    I(f"v_cmp_eq_u32 vcc, v{vT0}, v{vG}")
    I(f"v_cndmask_b32 v{vT1}, 7, v{vT1}, vcc")
    I(f"v_mov_b32 v{vT3}, 0x3f80")
    I(f"v_mov_b32 v{vT4}, 0x3f800000")
    for i in range(2):
        I(f"v_cmp_eq_u32 vcc, {2*i}, v{vT1}")
        I(f"v_cndmask_b32 v{vT2}, 0, v{vT3}, vcc")
        I(f"v_cmp_eq_u32 vcc, {2*i+1}, v{vT1}")
        I(f"v_cndmask_b32 v{SEL+i}, v{vT2}, v{vT4}, vcc")
        I(f"v_mov_b32 v{SEL+6+i}, v{SEL+i}")
    for i in (2, 3, 4, 5):
        I(f"v_mov_b32 v{SEL+i}, 0")
    S1, S2 = ACC, ACC + 4
    for i in range(8):
        I(f"v_mov_b32 v{ACC+i}, 0")
    I(f"v_mov_b32 v{vT5}, 0x3f803f80")
    I(f"v_lshlrev_b32 v{vT0}, 2, v{vLANE}")
    I(f"v_add_u32 v{vT0}, {LDS_FLG}, v{vT0}")
    I(f"ds_write_b32 v{vT0}, v{ACC}")
    tw = {}
    if "tlb" in EXP:
        STR_ = int(os.environ.get("TLBS", "16"))
        I(f"v_lshlrev_b32 v{vT0}, {STR_}, v{vLANE}")
        lend = g.newlabel("L_tl")
        tb = [(sWO, 0), (sWG, 0), (sWU, 0), (sWD, 0), (sOUT, 0), (sWS, 0), (sWS, 0x400000), (sWS, 0x800000)]
        for w_, (r, off) in enumerate(tb):
            l2 = g.newlabel("L_tl")
            if w_ < 7:
                I(f"s_cmp_lg_u32 s{sW}, {w_}")
                I(f"s_cbranch_scc1 {l2}")
                g.cond_begin()
            I(f"s_mov_b32 s{sT0}, {off}")
            I(f"buffer_load_dword v{vDMY}, v{vT0}, {srd(r)}, s{sT0} offen")
            if w_ < 7:
                g.cond_end()
                I(f"s_branch {lend}")
                g.label(l2)
        g.label(lend)
    sentinels0()
    bgq(1)
    for seg in range(7):
        g.wait(tx[seg])
        I(f"ds_read_b128 {vr(XF+8*seg,4)}, v{vXR0} offset:{seg*1024}")
        t = I(f"ds_read_b128 {vr(XF+8*seg+4,4)}, v{vXR1} offset:{seg*1024}")
        if seg in (1, 2, 3, 4):
            bgq()
        g.wait(t)
        for k in range(8):
            r = XF + 8 * seg + k
            I(f"v_dot2_f32_bf16 v{S1+k%4}, v{r}, v{vT5}, v{S1+k%4}")
            I(f"v_dot2_f32_bf16 v{S2+k%4}, v{r}, v{r}, v{S2+k%4}")
    I("s_setprio 1")
    stamp("x stats")
    I(f"v_add_f32 v{S1}, v{S1}, v{S1+1}")
    I(f"v_add_f32 v{S1+2}, v{S1+2}, v{S1+3}")
    I(f"v_add_f32 v{S2}, v{S2}, v{S2+1}")
    I(f"v_add_f32 v{S2+2}, v{S2+2}, v{S2+3}")
    I(f"v_add_f32 v{S1}, v{S1}, v{S1+2}")
    I(f"v_add_f32 v{S2}, v{S2}, v{S2+2}")
    for lv in (16, 32):
        I(f"v_mov_b32 v{S1+1}, v{S1}")
        I(f"v_mov_b32 v{S2+1}, v{S2}")
        I(f"v_permlane{lv}_swap_b32 v{S1}, v{S1+1}")
        I(f"v_permlane{lv}_swap_b32 v{S2}, v{S2+1}")
        I(f"v_add_f32 v{S1}, v{S1}, v{S1+1}")
        I(f"v_add_f32 v{S2}, v{S2}, v{S2+1}")
    I(f"v_mul_f32 v{S1}, {f32(1/448)}, v{S1}")
    I(f"v_mul_f32 v{S2}, {f32(1/448)}, v{S2}")
    I(f"v_fma_f32 v{S2}, -v{S1}, v{S1}, v{S2}")
    I(f"v_max_f32 v{S2}, 0, v{S2}")
    I(f"v_add_f32 v{S2}, {f32(1e-5)}, v{S2}")
    RS, NB = ACCV, ACCV + 2
    I(f"v_rsq_f32 v{RS}, v{S2}")
    I(f"v_mul_f32 v{NB}, v{S1}, v{RS}")
    I(f"v_sub_f32 v{NB}, 0, v{NB}")
    I(f"v_mov_b32 v{RS+1}, v{RS}")
    I(f"v_mov_b32 v{NB+1}, v{NB}")
    TP = WF
    CSR = 248
    tcs = tinit = None
    for k in range(0, 56, 8):
        for u in range(8):
            I(f"v_lshlrev_b32 v{TP+2*u}, 16, v{XF+k+u}")
            I(f"v_and_b32 v{TP+2*u+1}, 0xffff0000, v{XF+k+u}")
        for u in range(8):
            I(f"v_pk_fma_f32 {vr(TP+2*u,2)}, {vr(TP+2*u,2)}, {vr(RS,2)}, {vr(NB,2)}")
        for u in range(8):
            I(f"v_cvt_pk_bf16_f32 v{XF+k+u}, v{TP+2*u}, v{TP+2*u+1}")
    I("s_setprio 0")
    stamp("normalized")
    I(f"v_mul_u32_u24 v{vT0}, 224, v{vG}")
    I(f"v_add_u32 v{vT0}, {LDS_WPL}, v{vT0}")
    I(f"v_lshl_add_u32 v{TMP}, v{vM16}, 1, v{vT0}")
    I(f"v_lshrrev_b32 v{vT2}, 2, v{vM16}")
    I(f"v_sub_u32 v{vT2}, v{vM16}, v{vT2}")
    I(f"v_lshl_add_u32 v{vT2}, v{vT2}, 1, v{vT0}")
    I(f"v_add_u32 v{TMP+1}, 32, v{vT2}")
    I(f"v_mov_b32 v{vT1}, {LDS_WPL + 1600}")
    I(f"v_and_b32 v{vT2}, 3, v{vM16}")
    I(f"v_cmp_eq_u32 vcc, 3, v{vT2}")
    I(f"v_cndmask_b32 v{TMP+1}, v{TMP+1}, v{vT1}, vcc")
    I(f"v_cmp_eq_u32 vcc, 3, v{vG}")
    I(f"v_cndmask_b32 v{TMP+2}, v{TMP}, v{vT1}, vcc")
    I(f"v_cndmask_b32 v{TMP+3}, v{TMP+1}, v{vT1}, vcc")
    I(f"v_add_u32 v{vTRb}, {LDS_WK}, v{vTR}")
    I(f"v_xor_b32 v{vTRc}, 32, v{vTRb}")
    def cs_loads():
        I(f"s_and_b32 s{sT0}, s{sW}, 1")
        I(f"s_cmp_eq_u32 s{sT0}, 1")
        I(f"s_cselect_b32 s4, s{sWU}, s{sWG}")
        I(f"s_cselect_b32 s5, s{sWU+1}, s{sWG+1}")
        I(f"s_mov_b32 s6, 1605632")
        I(f"s_mov_b32 s7, 0x20000")
        I(f"s_lshl_b32 s{sT0}, s{sG}, 2")
        I(f"s_lshr_b32 s{sT1}, s{sW}, 1")
        I(f"s_add_u32 s{sT0}, s{sT0}, s{sT1}")
        I(f"s_mul_i32 s{sT0}, s{sT0}, {7*3584}")
        I(f"s_lshl_b32 s{sT1}, s{sJC}, 8")
        I(f"s_add_u32 s{sT0}, s{sT0}, s{sT1}")
        I(f"s_cmp_ge_u32 s{sJC}, 14")
        I(f"s_cselect_b32 s{sT1}, {OOB}, 0")
        I(f"v_lshlrev_b32 v{vXA0}, 2, v{vLANE}")
        I(f"v_add_u32 v{vXA0}, s{sT1}, v{vXA0}")
        for r in range(7):
            if r:
                I(f"s_add_u32 s{sT0}, s{sT0}, 3584")
            tcs_ = I(f"buffer_load_dword v{CSR+r}, v{vXA0}, s[4:7], s{sT0} offen")
        return tcs_

    def init_load():
        I(f"v_mov_b32 v{vCNT}, 0")
        return I(f"buffer_load_dword v{vINIT}, v{vCNT}, {srd(sDBG)}, 0 offen sc1")
    bg_add("sent", sentinels)
    bg_add("cs", cs_loads)
    for i in (4, 5, 6):
        bg_add(f"w{i}", lambda i=i: rawW(i))
    bgq(int(os.environ.get("PRE1", "2")))
    g.wait(bt["wk3"])
    g.wait_all(vm=False)
    I("s_barrier")
    init_signal()

    def rdk(c, dst):
        I(f"ds_read_b64_tr_b16 {vr(dst,2)}, v{vTRb} offset:{c*2048}")
        I(f"ds_read_b64_tr_b16 {vr(dst+2,2)}, v{vTRb} offset:{c*2048+256}")
        I(f"ds_read_b64_tr_b16 {vr(dst+4,2)}, v{vTRc} offset:{c*2048}")
        return I(f"ds_read_b64_tr_b16 {vr(dst+6,2)}, v{vTRc} offset:{c*2048+256}")

    tphi = None
    for u in range(2):
        for j in range(8):
            d0 = j if j < 4 else 16 + j - 4
            va = TMP + u + (2 if j >= 4 else 0)
            dst = (WPH2 if j & 1 else WPHI) + 4 * u + j // 2
            tphi = I(f"ds_read_u16 v{dst}, v{va} offset:{d0*56}")
    I(f"v_lshrrev_b32 v{vWOA}, 3, v{vLANE}")
    I(f"v_mul_u32_u24 v{vWOA}, 896, v{vWOA}")
    I(f"v_and_b32 v{vT1}, 7, v{vLANE}")
    I(f"v_lshlrev_b32 v{vT2}, 1, v{vG}")
    I(f"v_xor_b32 v{vT1}, v{vT1}, v{vT2}")
    I(f"v_lshl_add_u32 v{vWOA}, v{vT1}, 4, v{vWOA}")
    I(f"s_lshl_b32 s{sWOB}, s{sNQ}, 1")
    I(f"s_add_u32 s{sWOB}, s{sWOB}, s{sWH}")
    I(f"s_cmp_eq_u32 s{sWOB}, 7")
    I(f"s_cselect_b32 s{sT1}, {OOB}, 0")
    I(f"s_lshl_b32 s{sWOB}, s{sWOB}, 7")
    I(f"s_add_u32 s{sWOB}, s{sWOB}, s{sT1}")
    I(f"s_mul_i32 s{sT1}, s{sW3}, {112*896}")
    I(f"s_add_u32 s{sWOB}, s{sWOB}, s{sT1}")
    two = {}

    def wo_load(i):
        two[i] = dma2(vWOA, sWO, sWOB, i * 8 * 896, sLW, i * 1024, stmp=sBG)
    for i in range(4, 10):
        bg_add(f"wo{i}", lambda i=i: wo_load(i))
    KH = eval(os.environ.get('KH', '(2, 6, 10)'))
    chain16(ACC, rdk, hook=lambda c: bgq() if c in KH else None)
    for i in range(8):
        I(f"v_lshl_or_b32 v{WPHI+i}, v{WPH2+i}, 16, v{WPHI+i}")
    stamp("k chain")
    I(f"v_lshrrev_b32 v{vT0}, 1, v{vG}")
    I(f"v_mul_u32_u24 v{vT0}, {UNIT-1024}, v{vT0}")
    I(f"v_add_u32 v{vTRb}, v{vT0}, v{vTR}")
    I(f"v_xor_b32 v{vTRc}, 32, v{vTRb}")
    I(f"v_add_u32 v{vXR0}, 57344, v{vTRb}")
    I(f"v_add_u32 v{vXR1}, 57344, v{vTRc}")
    g.wait(bt['cs'])
    I(f"v_mov_b32 v72, 0\nv_mov_b32 v73, 0")
    for r in range(7):
        I(f"v_dot2_f32_bf16 v72, v{CSR+r}, v{vT3}, v72")
        I(f"v_dot2_f32_bf16 v73, v{CSR+r}, v{vT4}, v73")
    I(f"v_lshlrev_b32 v{vT1}, 3, v0")
    I(f"v_add_u32 v{vT1}, {LDS_KVF}, v{vT1}")
    I(f"ds_write_b64 v{vT1}, v[72:73]")
    I(f"s_lshr_b32 s{sT0}, s{sW}, 1")
    I(f"s_lshl_b32 s{sT0}, s{sT0}, 10")
    I(f"s_and_b32 s{sT1}, s{sW}, 1")
    I(f"s_lshl_b32 s{sT1}, s{sT1}, 3")
    I(f"s_add_u32 s{sT0}, s{sT0}, s{sT1}")
    I(f"s_add_u32 s{sT0}, s{sT0}, {LDS_WK}")
    I(f"v_add_u32 v74, s{sT0}, v{vL16}")
    I(f"s_lshl_b32 s{sT0}, s{sWH}, 1")
    I(f"s_and_b32 s{sT1}, s{sW}, 1")
    I(f"s_add_u32 s{sT0}, s{sT0}, s{sT1}")
    I(f"s_lshl_b32 s{sT0}, s{sT0}, 12")
    I(f"s_add_u32 s{sT0}, s{sT0}, {LDS_WK}")
    I(f"v_add_u32 v75, s{sT0}, v{vL16}")
    I(f"s_bfe_u32 s{sT0}, s{sW}, 0x10001")
    I(f"s_lshl_b32 s{sT0}, s{sT0}, 12")
    I(f"s_add_u32 s{sT0}, s{sT0}, {LDS_WK + 4*4096}")
    I(f"v_add_u32 v76, s{sT0}, v{vL16}")
    g.wait(bt['w3'])
    g.wait_all(vm=False)
    I("s_barrier")
    stamp("wv ready")

    def rdw(isq):
        def rd(c, dst):
            n0 = 2 * c
            if not isq:
                unit, off = n0 % 8, (n0 // 8) * 1024
            elif n0 < 24:
                unit, off = n0 % 8, 10240 + (1 + n0 // 8) * 1024
            else:
                unit, off = 4 + n0 - 24, 10240
            a0, a1 = (vTRb, vTRc) if unit < 4 else (vXR0, vXR1)
            off += (unit % 4) * UNIT
            I(f"ds_read_b64_tr_b16 {vr(dst,2)}, v{a0} offset:{off}")
            I(f"ds_read_b64_tr_b16 {vr(dst+2,2)}, v{a0} offset:{off+256}")
            I(f"ds_read_b64_tr_b16 {vr(dst+4,2)}, v{a1} offset:{off}")
            return I(f"ds_read_b64_tr_b16 {vr(dst+6,2)}, v{a1} offset:{off+256}")
        return rd

    g.begin()
    chain16(ACCV, rdw(False), swap=True, hook=lambda c: bgq() if c in eval(os.environ.get('VH', '(1,3,5,7,9,11,13)')) else None)
    main = g.end()
    g.begin()
    featmap(ACC, PH)
    for s_ in range(2):
        for u in range(2):
            I(f"v_mfma_f32_16x16x32_bf16 {vr(TMP+8*s_+4*u,4)}, {vr(PH+4*s_,4)}, {vr(SEL+4*u,4)}, 0")
    side = g.end()
    g.put(interleave(main, side, every=1, per=4))
    PT = PH
    for k in range(8):
        I(f"v_cvt_pk_bf16_f32 v{PT+k}, v{TMP+2*k}, v{TMP+2*k+1}")
    VF = ACC
    I(f"v_cmp_le_u32 vcc, 12, v{vM16}")
    for k in range(4):
        I(f"v_cvt_pk_bf16_f32 v{VF+k}, v{ACCV+2*k}, v{ACCV+2*k+1}")
    I(f"v_cndmask_b32 v{VF+2}, v{VF+2}, v{vT5}, vcc")
    I(f"v_cndmask_b32 v{VF+3}, v{VF+3}, v{vT5}, vcc")
    for k in range(4):
        I(f"ds_write_b64 v74, {vr(PT+2*k,2)} offset:{k*4096}")
    for k in range(2):
        I(f"ds_write_b64 v74, {vr(VF+2*k,2)} offset:{(4+k)*4096}")
    g.wait(bt['w6'])
    g.wait_all(vm=False)
    I("s_barrier")
    R = WF
    tk = {}
    for p in range(4):
        I(f"ds_read_b128 {vr(R+8*p,4)}, v75 offset:{p*1024}")
        tk[p] = I(f"ds_read_b128 {vr(R+8*p+4,4)}, v76 offset:{p*1024}")
    I(f"v_lshlrev_b32 v{vXA0}, 2, v0")
    I(f"v_and_b32 v{vXA0}, 1023, v{vXA0}")
    I(f"v_add_u32 v{vXA0}, {LDS_KVF}, v{vXA0}")
    I(f"ds_read2st64_b32 {vr(ACCV,2)}, v{vXA0} offset0:0 offset1:4")
    tq = I(f"ds_read2st64_b32 {vr(ACCV+2,2)}, v{vXA0} offset0:8 offset1:12")
    for p in range(4):
        g.wait(tk[p])
        I(f"v_mfma_f32_16x16x32_bf16 {vr(ACC,4)}, {vr(R+8*p,4)}, {vr(R+8*p+4,4)}, {'0' if p == 0 else vr(ACC,4)}")
    I(f"v_cvt_pk_bf16_f32 v{ACC+4}, v{ACC}, v{ACC+1}")
    I(f"v_cvt_pk_bf16_f32 v{ACC+5}, v{ACC+2}, v{ACC+3}")
    I(f"buffer_store_dwordx2 {vr(ACC+4,2)}, v{vT8}, {srd(sWS)}, s{sKVS} offen sc1")
    g.wait(tq)
    I(f"v_add_f32 v{ACCV}, v{ACCV}, v{ACCV+1}")
    I(f"v_add_f32 v{ACCV+2}, v{ACCV+2}, v{ACCV+3}")
    I(f"v_add_f32 v{ACCV}, v{ACCV}, v{ACCV+2}")
    I(f"buffer_store_dword v{ACCV}, v{vCSS}, {srd(sWS)}, s{sCSS} offen sc1")
    stamp("kv stored")
    I(f"v_lshlrev_b32 v{vCNT}, 4, v{vM16}")
    tini = I(f"buffer_load_dword v{vINIT}, v{vCNT}, {srd(sDBG)}, 0 offen sc1")
    for i in range(4):
        bg_add(f"wo{i}", lambda i=i: wo_load(i))
    chain16(ACC, rdw(True), hook=lambda c: bgq() if c % 2 == 1 else None)
    bgq(99)
    c_bg(0, 0, 0, 56, 0, "qdone")
    c_bg(1, 0, 0, 24, 57344, "qdone")
    I("s_barrier")
    for i in range(10, 14):
        wo_load(i)
    featmap(ACC, PH)
    GR, R, AO, OS = 40, 96, 176, 184
    WOF = 112
    vB1, vB2, vB3 = 188, 189, 190
    vK0, vK1, vK2 = 191, 192, 193
    lr, lb = g.newlabel("L_ir"), g.newlabel("L_ib")
    g.wait(tini)
    I(f"v_cmp_gt_u32 vcc, 16, v{vINIT}")
    I(f"s_cmp_lg_u64 vcc, 0")
    I(f"s_cbranch_scc1 {lr}")
    g.label(lb)
    g.begin()
    g.label(lr)
    init_check()
    I(f"s_branch {lb}")
    TAILS.append(g.end())
    stamp("q done")

    I(f"s_lshl_b32 s{sT0}, s{sWH}, 15")
    I(f"s_lshl_b32 s{sT1}, s{sW3}, 10")
    I(f"s_add_u32 s{sGATH}, s{sGATH}, s{sT0}")
    I(f"s_add_u32 s{sGATH}, s{sGATH}, s{sT1}")

    def gat_issue():
        tl = []
        I(f"s_mov_b32 s{sT0}, s{sGATH}")
        for rb in range(8):
            if rb:
                I(f"s_add_u32 s{sT0}, s{sT0}, 4096")
            tl.append(I(f"buffer_load_dwordx4 {vr(GR+4*rb,4)}, v{vL16}, {srd(sWS)}, s{sT0} offen sc1"))
        return tl

    def gat_body(tl):
        for i in range(8):
            I(f"v_mov_b32 v{R+i}, 0")
        for rb in range(8):
            g.wait(tl[rb])
            for i in range(4):
                I(f"v_dot2_f32_bf16 v{R+2*i}, v{GR+4*rb+i}, v{vT3}, v{R+2*i}")
                I(f"v_dot2_f32_bf16 v{R+2*i+1}, v{GR+4*rb+i}, v{vT4}, v{R+2*i+1}")

    def wo_bounce():
        c_setup()
        d_setup()
        I(f"v_lshrrev_b32 v{vK0}, 2, v{vM16}")
        I(f"v_sub_u32 v{vK0}, v{vM16}, v{vK0}")
        I(f"v_and_b32 v{vT1}, 3, v{vM16}")
        I(f"v_cmp_eq_u32 vcc, 3, v{vT1}")
        I(f"v_cndmask_b32 v{vK0}, v{vK0}, 12, vcc")
        I(f"v_lshl_add_u32 v{vK0}, v{vG}, 4, v{vK0}")
        I(f"v_lshlrev_b32 v{vK0}, 4, v{vK0}")
        I(f"v_add_u32 v{vK0}, {LDS_KV2}, v{vK0}")
        I(f"v_add_u32 v{vK1}, {LDS_KV2}, v{vL16}")
        I(f"v_add_u32 v{vK2}, s{sCL}, v{vK1}")
        I(f"v_bfe_u32 v{vT1}, v{vLANE}, 2, 2")
        I(f"v_lshl_add_u32 v{vB1}, v{vG}, 2, v{vT1}")
        I(f"v_min_u32 v{vT1}, 2, v{vT1}")
        I(f"v_mad_u32_u24 v{vB2}, v{vG}, 3, v{vT1}")
        I(f"v_add_u32 v{vB2}, 16, v{vB2}")
        I(f"v_and_b32 v{vT1}, 3, v{vLANE}")
        I(f"v_lshlrev_b32 v{vT1}, 3, v{vT1}")
        I(f"v_add_u32 v{vT1}, s{sLW}, v{vT1}")
        AD = 72
        for rd_, vb in enumerate((vB1, vB2)):
            I(f"v_bfe_u32 v{vT2}, v{vb}, 1, 2")
            I(f"v_lshlrev_b32 v{vT2}, 5, v{vT2}")
            I(f"v_lshl_add_u32 v{vT2}, v{vb}, 7, v{vT2}")
            I(f"v_add_u32 v{AD+4*rd_}, v{vT2}, v{vT1}")
            for x in range(1, 4):
                I(f"v_xor_b32 v{AD+4*rd_+x}, {32*x}, v{AD+4*rd_}")
        g.wait(two[13])
        for hh in range(4):
            for nt in range(4):
                d = WOF + (hh * 4 + nt) * 4
                x = nt ^ (2 * (hh & 1))
                I(f"ds_read_b64_tr_b16 {vr(d,2)}, v{AD+x} offset:{hh*3584}")
                I(f"ds_read_b64_tr_b16 {vr(d+2,2)}, v{AD+4+x} offset:{hh*3584}")
    spec_load(gat_issue, [GR + 2 * k for k in range(16)], R + 12, gat_body, wo_bounce)
    g.mark("gdone")
    for i in range(4):
        I(f"v_cvt_pk_bf16_f32 v{R+8+i}, v{R+2*i}, v{R+2*i+1}")
    I(f"ds_write_b128 v{vK2}, {vr(R+8,4)}")
    g.wait_all(vm=False)
    stamp("gathered")
    I("s_barrier")
    g.mark("qdone")
    g.mark("burst:" + os.environ.get("BB0", "2"))
    KF = 40
    tk = {}
    for hf_ in range(2):
        for s_ in range(2):
            I(f"ds_read_b128 {vr(KF+16*hf_+8*s_,4)}, v{vK1} offset:{hf_*4096+s_*2048}")
            tk[hf_, s_] = I(f"ds_read_b128 {vr(KF+16*hf_+8*s_+4,4)}, v{vK0} offset:{hf_*4096+s_*2048+1024}")
    for hf_ in range(2):
        for s_ in range(2):
            g.wait(tk[hf_, s_])
            for t in range(2):
                a = vr(AO + 4 * t, 4)
                I(f"v_mfma_f32_16x16x32_bf16 {a}, {vr(KF+16*hf_+8*s_+4*t,4)}, {vr(PH+4*s_,4)}, {'0' if (s_ == 0 and hf_ == 0) else a}")
    I(f"v_add_f32 v{vT1}, {f32(1e-6)}, v{AO+7}")
    I(f"v_rcp_f32 v{vT1}, v{vT1}")
    for i in range(7):
        I(f"v_mul_f32 v{AO+i}, v{AO+i}, v{vT1}")
    for i in range(3):
        I(f"v_cvt_pk_bf16_f32 v{OS+i}, v{AO+2*i}, v{AO+2*i+1}")
    I(f"v_cvt_pk_bf16_f32 v{OS+3}, v{AO+6}, 0")
    I(f"buffer_store_dwordx4 {vr(OS,4)}, v{vL16}, {srd(sWS)}, s{sOS} offen sc1")
    stamp("o stored")
    if "t2b" in EXP:
        touch2()
    g.mark("on")
    return two


def woraw(i):
    return vr(216 + 4 * i, 4) if i < 8 else vr(WR + 4 * (i - 8), 4)


def phaseB(two):
    g.comment("==== phase B ====")
    OF = 216
    XR, XU, CSG = 176, 180, 188
    WOF = 112
    BACC = 72
    vB1, vB2, vB3 = 196, 197, 198
    vD1, vD2, vD3 = 199, 200, 201
    I(f"s_mul_i32 s{sT0}, s{sMTB}, {32*896}")
    I(f"s_lshl_b32 s{sT1}, s{sNQ}, 8")
    I(f"s_add_u32 s{sT0}, s{sT0}, s{sT1}")
    I(f"s_lshl_b32 s{sT1}, s{sW}, 2")
    I(f"v_and_b32 v{vT4}, 3, v{vLANE}")
    I(f"v_add_u32 v{vT4}, s{sT1}, v{vT4}")
    I(f"v_lshrrev_b32 v{vT5}, 2, v{vLANE}")
    I(f"v_add_u32 v{vT0}, s{sT1}, v{vG}")
    I(f"v_mul_u32_u24 v{vT0}, 896, v{vT0}")
    I(f"v_lshl_add_u32 v{vT0}, v{vM16}, 4, v{vT0}")
    I(f"s_cmp_ge_u32 s{sW}, 4")
    I(f"s_mov_b32 s{sT2}, 81920")
    I(f"s_cmov_b32 s{sT2}, {LDS_KVF - 4096}")
    I(f"s_add_u32 s{sT2}, s{sT2}, s{sCL}")
    g.mark("off")
    I(f"s_mov_b32 m0, s{sT2}")
    I(f"v_and_b32 v{vB3}, 3, v{vLANE}")
    txd = I(f"buffer_load_dwordx4 v{vT0}, {srd(sX)}, s{sT0} offen lds")
    g.mark("on")
    I(f"v_lshlrev_b32 v{vB3}, 8, v{vB3}")
    I(f"v_lshl_add_u32 v{vB3}, v{vT5}, 4, v{vB3}")
    I(f"v_add_u32 v{vB3}, s{sT2}, v{vB3}")
    g.mark("burst:" + os.environ.get("BB1", "3"))
    I(f"s_lshl_b32 s{sD}, s{sMTB}, 5")
    I(f"s_lshl_b32 s{sT1}, s{sW3}, 2")
    I(f"s_add_u32 s{sD}, s{sD}, s{sT1}")
    I(f"s_lshl_b32 s{sD}, s{sD}, 10")
    I(f"s_add_u32 s{sD}, s{sD}, {WS_O}")
    I(f"s_add_u32 s{sE}, s{sD}, 16384")
    I(f"s_mul_i32 s{sT0}, s{sW3}, 17408")
    I(f"s_mul_i32 s{sT1}, s{sWH}, {8*1088}")
    I(f"s_add_u32 s{sT0}, s{sT0}, s{sT1}")
    I(f"s_add_u32 s{sT0}, s{sT0}, {LDS_BSCR}")
    I(f"v_lshrrev_b32 v{vT1}, 1, v{vG}")
    I(f"v_mul_u32_u24 v{vT1}, 1088, v{vT1}")
    I(f"v_and_b32 v{vT2}, 1, v{vG}")
    I(f"v_lshl_add_u32 v{vT1}, v{vT2}, 9, v{vT1}")
    I(f"v_lshl_add_u32 v{vT1}, v{vM16}, 4, v{vT1}")
    I(f"v_add_u32 v{vB1}, s{sT0}, v{vT1}")
    I(f"v_mul_u32_u24 v{vT1}, 1088, v{vT5}")
    I(f"v_lshl_add_u32 v{vT1}, v{vT4}, 4, v{vT1}")
    I(f"v_add_u32 v{vB2}, {LDS_BSCR}, v{vT1}")
    I(f"v_cmp_gt_u32 vcc, 0x10000, v{vHSA}")
    I(f"v_cndmask_b32 v{vT3}, 0, -1, vcc")
    stats_addr(vT2, vT0, vT1)
    I(f"v_mov_b32 v{vT5}, 0x3f803f80")
    g.wait(txd)
    txr = I(f"ds_read_b128 {vr(XR,4)}, v{vB3}")
    g.wait(txr)
    for i in range(4):
        I(f"v_lshlrev_b32 v{XU+2*i}, 16, v{XR+i}")
        I(f"v_and_b32 v{XU+2*i+1}, 0xffff0000, v{XR+i}")
    g.mark("off")
    I("s_barrier")
    stamp("wo ready")

    def o_issue():
        tl = []
        for hh in range(4):
            for mt in range(2):
                tl.append(I(f"buffer_load_dwordx4 {vr(OF+(hh*2+mt)*4,4)}, v{vL16}, {srd(sWS)}, s{sE if mt else sD} offen offset:{hh*1024} sc1"))
        return tl

    def o_body(tl):
        for hh in range(4):
            for mt in range(2):
                g.wait(tl[hh * 2 + mt])
                for nt in range(4):
                    a = BACC + (mt * 4 + nt) * 4
                    I(f"v_mfma_f32_16x16x32_bf16 {vr(a,4)}, {vr(WOF+(hh*4+nt)*4,4)}, {vr(OF+(hh*2+mt)*4,4)}, {'0' if hh == 0 else vr(a,4)}")
    spec_load(o_issue, [OF + 4 * k for k in range(8)], vT0, o_body)
    stamp("B mfma")
    for mt in range(2):
        for nt in range(4):
            I(f"ds_write_b128 v{vB1}, {vr(BACC+(mt*4+nt)*4,4)} offset:{nt*2176+mt*256}")
    I(f"s_lshl_b32 s{sT0}, s{sJC}, 14")
    I(f"s_lshl_b32 s{sT1}, s{sWH}, 13")
    I(f"s_add_u32 s{sT0}, s{sT0}, s{sT1}")
    I(f"s_add_u32 s{sD}, s{sT0}, {WS_CS}")
    I(f"s_add_u32 s{sE}, s{sD}, 4096")
    I(f"v_lshlrev_b32 v{vB3}, 2, v0")
    I(f"v_and_b32 v{vB3}, 1023, v{vB3}")

    def cs_issue():
        return [I(f"buffer_load_dword v{CSG+rb}, v{vB3}, {srd(sWS)}, s{sE if rb >= 4 else sD} offen offset:{(rb%4)*1024} sc1") for rb in range(8)]
    tcs8 = cs_issue()
    g.mark("burst:3")
    S1, S2 = 104, 105
    I(f"v_mov_b32 v{S1}, 0\nv_mov_b32 v{S2}, 0")
    g.wait_all(vm=False)
    I("s_barrier")
    b = 72
    for w in range(4):
        for q in range(2):
            I(f"ds_read_b128 {vr(b+w*8+q*4,4)}, v{vB2} offset:{w*17408+q*512}")
    g.wait_all(vm=False)
    HP = 108
    for i in range(8):
        I(f"v_add_f32 v{b+i}, v{b+i}, v{b+8+i}")
        I(f"v_add_f32 v{b+16+i}, v{b+16+i}, v{b+24+i}")
    for i in range(8):
        I(f"v_add_f32 v{b+i}, v{b+i}, v{XU+i}")
    for i in range(8):
        I(f"v_add_f32 v{b+i}, v{b+i}, v{b+16+i}")
    for i in range(4):
        I(f"v_cvt_pk_bf16_f32 v{HP+i}, v{b+2*i}, v{b+2*i+1}")
    I(f"buffer_store_dwordx4 {vr(HP,4)}, v{vHSA}, {srd(sWS)}, s{sHS} offen sc1")
    for i in range(4):
        I(f"v_dot2_f32_bf16 v{S1}, v{HP+i}, v{vT5}, v{S1}")
        I(f"v_dot2_f32_bf16 v{S2}, v{HP+i}, v{HP+i}, v{S2}")
    I(f"v_and_b32 v{S1}, v{vT3}, v{S1}")
    I(f"v_and_b32 v{S2}, v{vT3}, v{S2}")
    for ror in (4, 8):
        I(f"v_add_f32_dpp v{S1}, v{S1}, v{S1} row_ror:{ror} row_mask:0xf bank_mask:0xf")
        I(f"v_add_f32_dpp v{S2}, v{S2}, v{S2} row_ror:{ror} row_mask:0xf bank_mask:0xf")
    for lv in (16, 32):
        I(f"v_mov_b32 v106, v{S1}\nv_mov_b32 v107, v{S2}")
        I(f"v_permlane{lv}_swap_b32 v{S1}, v106")
        I(f"v_permlane{lv}_swap_b32 v{S2}, v107")
        I(f"v_add_f32 v{S1}, v{S1}, v106")
        I(f"v_add_f32 v{S2}, v{S2}, v107")
    I(f"buffer_store_dwordx2 v[{S1}:{S2}], v{vT2}, {srd(sWS)}, s{sSS} offen sc1")
    stamp("h stored")
    I("s_barrier")
    I(f"s_cmp_ge_u32 s{sJC}, 14")
    I("s_cbranch_scc1 L_end")
    tb2 = c_batch(1, 0, 24, 56, 57344 + 24576)
    lr, lb = g.newlabel("L_sr"), g.newlabel("L_sb")
    g.wait(tcs8[-1])
    sent_check([CSG + rb for rb in range(8)], vT0)
    I(f"s_cmp_lg_u64 vcc, 0")
    I(f"s_cbranch_scc1 {lr}")
    g.label(lb)
    g.begin()
    g.label(lr)
    check_loop(cs_issue, [CSG + rb for rb in range(8)], vT0)
    I(f"s_branch {lb}")
    TAILS.append(g.end())
    for k in (4, 2, 1):
        for i in range(k):
            I(f"v_add_f32 v{CSG+i}, v{CSG+i}, v{CSG+k+i}")
    I(f"v_lshlrev_b32 v{vB3}, 2, v0")
    I(f"v_add_u32 v{vB3}, {LDS_KVF}, v{vB3}")
    I(f"ds_write_b32 v{vB3}, v{CSG}")


GK1 = -2.0 * math.sqrt(2.0 / math.pi) * LOG2E
GK2 = GK1 * 0.044715
LDS_X = 114688
vHB, vM, vWD = 254, 255, 253
sWDB = 80
WDE = 16
NWDE = 7
NWDC = int(os.environ.get('NWDC', '2'))


def hh_signal(stage, toks):
    g.wait(*toks)
    I("s_barrier")
    lab = g.newlabel("L_hs")
    I(f"s_cmp_lg_u32 s{sW}, 0")
    I(f"s_cbranch_scc1 {lab}")
    g.cond_begin()
    I("s_mov_b64 exec, 1")
    I(f"s_lshl_b32 s{sT0}, s{sG}, 8")
    I(f"s_add_u32 s{sT0}, s{sT0}, {WS_CNT + CNT_HH * 4096 + 64 * stage}")
    I(f"v_mov_b32 v{vCNT}, s{sT0}")
    I(f"buffer_atomic_add v{vONE}, v{vCNT}, {srd(sWS)}, 0 offen sc1")
    I("s_mov_b64 exec, -1")
    g.cond_end()
    g.label(lab)


def hh_poll(stage_sreg_or_imm):
    I("s_mov_b64 exec, 1")
    I(f"s_lshl_b32 s{sT0}, s{sGB}, 8")
    I(f"s_add_u32 s{sT0}, s{sT0}, {WS_CNT + CNT_HH * 4096}")
    I(f"s_add_u32 s{sT0}, s{sT0}, {stage_sreg_or_imm}")
    I(f"v_mov_b32 v{vCNT}, s{sT0}")
    poll(sWS, vCNT, 14)
    I("s_mov_b64 exec, -1")


def d_setup():
    I(f"v_lshrrev_b32 v{vHB}, 5, v{vLANE}")
    I(f"v_and_b32 v{vM}, 31, v{vLANE}")
    I(f"v_lshrrev_b32 v{vT0}, 3, v{vLANE}")
    I(f"v_mul_u32_u24 v{vT0}, 896, v{vT0}")
    I(f"v_and_b32 v{vT1}, 1, v{vG}")
    I(f"v_lshlrev_b32 v{vT1}, 2, v{vT1}")
    I(f"v_and_b32 v{vWD}, 7, v{vLANE}")
    I(f"v_xor_b32 v{vWD}, v{vWD}, v{vT1}")
    I(f"v_lshl_add_u32 v{vWD}, v{vWD}, 4, v{vT0}")
    I(f"s_cmp_ge_u32 s{sJB}, 7")
    I(f"s_cselect_b32 s{sRH}, 1, 0")
    I(f"s_mul_i32 s{sT0}, s{sRH}, 7")
    I(f"s_sub_u32 s{sCB}, s{sJB}, s{sT0}")
    I(f"s_lshl_b32 s{sT0}, s{sWH}, 1")
    I(f"s_add_u32 s{sT0}, s{sT0}, s{sW}")
    I(f"s_and_b32 s{sAA}, s{sT0}, 3")
    I(f"s_mul_i32 s{sKC}, s{sWH}, 56")
    I(f"s_add_u32 s{sKC}, s{sKC}, s{sAA}")
    I(f"s_mul_i32 s{sWDB}, s{sKC}, {16*896}")
    I(f"s_lshl_b32 s{sT1}, s{sCB}, 7")
    I(f"s_add_u32 s{sWDB}, s{sWDB}, s{sT1}")
    I(f"s_cmp_ge_u32 s{sJB}, 14")
    I(f"s_cselect_b32 s{sT1}, {OOB}, 0")
    I(f"s_add_u32 s{sWDB}, s{sWDB}, s{sT1}")


sRH, sCB, sAA, sKC = 64, 65, 66, 67


def kc_off(n):
    return 8 * n if n < 7 else 4 + 8 * (n - 7)


def wd_load(dst, n):
    t = None
    for hf_ in range(2):
        I(f"s_add_u32 s{sT3}, s{sWDB}, {(16*kc_off(n) + 8*hf_)*896}")
        for e in range(4):
            t = I(f"buffer_load_dword v{dst+4*hf_+e}, v{vWD}, {srd(sWD)}, s{sT3} offen offset:{e*896}")
    return t


def wd_half(dst, n, hf_):
    I(f"s_add_u32 s{sBG}, s{sWDB}, {(16*kc_off(n) + 8*hf_)*896}")
    return I(f"buffer_load_dwordx4 {vr(dst+4*hf_,4)}, v{vWD}, {srd(sWD)}, s{sBG} offen")


def dt_pattern(dst, t0, t1):
    I(f"v_bfe_u32 v{t0}, v{vLANE}, 2, 2")
    I(f"v_lshl_add_u32 v{t1}, v{vHB}, 2, v{t0}")
    I(f"v_lshlrev_b32 v{t1}, 7, v{t1}")
    I(f"v_lshrrev_b32 v{t0}, 1, v{t0}")
    I(f"v_lshl_add_u32 v{t1}, v{t0}, 6, v{t1}")
    I(f"v_and_b32 v{t0}, 1, v{vG}")
    I(f"v_lshl_add_u32 v{t1}, v{t0}, 5, v{t1}")
    I(f"v_and_b32 v{t0}, 3, v{vLANE}")
    I(f"v_lshl_add_u32 v{dst}, v{t0}, 3, v{t1}")


def c_rows(mat, dbl, r0, r1, lds_base):
    return c_batch(mat, dbl, r0, r1, lds_base)


def g1_addr(n):
    if n < 8:
        return 114688 + n * 1024
    if 24 <= n < 40:
        return 114688 + 8192 + (n - 24) * 1024
    if n < 24:
        return (n - 8) * 1024
    return 16384 + (n - 40) * 1024


def u1_addr(n):
    if n < 8:
        return 32768 + n * 1024
    if 24 <= n < 40:
        return 32768 + 8192 + (n - 24) * 1024
    if n < 24:
        return 57344 + (n - 8) * 1024
    return 57344 + 16384 + (n - 40) * 1024


def phaseCD(twd_early):
    g.comment("==== phase C ====")
    sMD, sHB, sMT = sC, sHHS, sMTC
    sAB = 7
    sL5, sL2, sL3, sL4 = 4, 5, 6, 83
    I(f"s_mul_i32 s{sL5}, s{sW}, 5120")
    I(f"s_lshl_b32 s{sL2}, s{sW}, 11")
    I(f"s_mul_i32 s{sL3}, s{sW}, 3072")
    I(f"s_lshl_b32 s{sL4}, s{sW}, 12")
    slotE = [(sL2, 40960 + i * 1024) for i in range(2)] + [(sL3, 90112 + i * 1024) for i in range(3)]
    slotM = [(sL5, 114688 + i * 1024) for i in range(5)] + [(sL2, i * 1024) for i in range(2)]
    slotL = [(sL3, 16384 + i * 1024) for i in range(3)] + [(sL4, 57344 + i * 1024) for i in range(4)]
    wslot = slotE + slotM + slotL + (slotE + slotM)[:9]
    sRW = [12, 13, 14, 15, 16, 17, 18]
    sRA = [19, 20, 21, 22, 23, 81, 82]

    def wd_dma(m):
        n, hf_ = m // 2, m % 2
        return dma2(vWD, sWD, sRW[n % 7], (16 * (4 if n >= 7 else 0) + 8 * hf_) * 896, wslot[m][0], wslot[m][1])
    c_batch(0, 1, 0, 40, 114688)
    I(f"s_lshl_b32 s{sMD}, s{sGB}, 2")
    I(f"s_lshl_b32 s{sT0}, s{sRH}, 1")
    I(f"s_add_u32 s{sMD}, s{sMD}, s{sT0}")
    I(f"s_lshl_b32 s{sE}, s{sMT}, 10")
    I(f"s_add_u32 s{sE}, s{sE}, {WS_ST}")
    I(f"s_mul_i32 s{sWB}, s{sMT}, {28*1024}")
    I(f"s_add_u32 s{sWB}, s{sWB}, {WS_H}")
    I(f"s_mul_i32 s{sAB}, s{sMD}, {112*1024}")
    I(f"s_lshl_b32 s{sT1}, s{sKC}, 10")
    I(f"s_add_u32 s{sAB}, s{sAB}, s{sT1}")
    I(f"s_add_u32 s{sAB}, s{sAB}, {WS_HH}")
    for n in range(7):
        if "norot" in EXP:
            I(f"s_mov_b32 s{sT0}, {n}")
        else:
            I(f"s_add_u32 s{sT0}, s{sCB}, {n}")
            I(f"s_sub_u32 s{sT1}, s{sT0}, 7")
            I(f"s_cmp_ge_u32 s{sT0}, 7")
            I(f"s_cselect_b32 s{sT0}, s{sT1}, s{sT0}")
        I(f"s_mul_i32 s{sT1}, s{sT0}, {8*16*896}")
        I(f"s_add_u32 s{sRW[n]}, s{sWDB}, s{sT1}")
        I(f"s_lshl_b32 s{sT1}, s{sT0}, 13")
        I(f"s_add_u32 s{sRA[n]}, s{sAB}, s{sT1}")
    HF = 16
    A_, B_, C_ = 128, 144, 160
    TM, CS2 = 176, 192
    WFc = 208
    vA0, vA1, vCSA, vFA, vA2 = 240, 241, 242, 243, 15
    K1, K2, IR2, NMU = 248, 249, 250, 251
    STR = 244
    I(f"v_bfe_u32 v{vT0}, v{vLANE}, 2, 2")
    I(f"v_lshl_add_u32 v{vT1}, v{vHB}, 3, v{vT0}")
    I(f"v_lshlrev_b32 v{vT1}, 7, v{vT1}")
    I(f"v_lshrrev_b32 v{vT0}, 1, v{vT0}")
    I(f"v_xor_b32 v{vT0}, s{sWH}, v{vT0}")
    I(f"v_lshl_add_u32 v{vT1}, v{vT0}, 6, v{vT1}")
    I(f"v_and_b32 v{vT2}, 1, v{vG}")
    I(f"v_lshl_add_u32 v{vT1}, v{vT2}, 5, v{vT1}")
    I(f"v_and_b32 v{vT2}, 3, v{vLANE}")
    I(f"v_lshl_add_u32 v{vA0}, v{vT2}, 3, v{vT1}")
    I(f"v_add_u32 v{vA1}, 57344, v{vA0}")
    I(f"v_add_u32 v{vA2}, 114688, v{vA0}")
    I(f"s_lshl_b32 s{sT0}, s{sWH}, 7")
    I(f"s_add_u32 s{sT0}, s{sT0}, {LDS_CS}")
    I(f"v_lshlrev_b32 v{vCSA}, 4, v{vHB}")
    I(f"v_add_u32 v{vCSA}, s{sT0}, v{vCSA}")
    I(f"v_mov_b32 v{vFA}, {LDS_FLG}")
    I(f"v_lshlrev_b32 v{vT3}, 3, v{vLANE}")
    flush()
    g.wait_all(vm=False)
    I("s_barrier")
    I(f"v_lshlrev_b32 v{vT0}, 2, v0")
    I(f"v_and_b32 v{vT0}, 1023, v{vT0}")
    I(f"v_add_u32 v{vT0}, {LDS_KVF}, v{vT0}")
    t = I(f"ds_read2st64_b32 v[72:73], v{vT0} offset0:0 offset1:4")
    g.wait(t)
    I(f"v_add_f32 v72, v72, v73")
    I(f"ds_write_b32 v{vT0}, v72 offset:4096")
    stamp("C ready")

    def st_issue():
        I(f"buffer_load_dwordx2 {vr(STR,2)}, v{vT3}, {srd(sWS)}, s{sE} offen sc1")
        return [I(f"buffer_load_dwordx2 {vr(STR+2,2)}, v{vT3}, {srd(sWS)}, s{sE} offen offset:512 sc1")]
    check_loop(st_issue, [STR, STR + 2], vT1)
    stamp("h flag")

    def h_issue():
        tl = []
        for c in range(28):
            if c % 4 == 0:
                I(f"s_add_u32 s{sT0}, s{sWB}, {c*1024}")
            tl.append(I(f"buffer_load_dwordx4 {vr(HF+4*c,4)}, v{vL16}, {srd(sWS)}, s{sT0} offen offset:{(c%4)*1024} sc1"))
        return tl
    g.begin()
    th = h_issue()
    hl = g.end()
    g.put(hl[:10])
    g.wait_all(vm=False)
    I("s_barrier")
    I(f"v_add_f32 v{STR}, v{STR}, v{STR+2}")
    I(f"v_add_f32 v{STR+1}, v{STR+1}, v{STR+3}")
    I(f"v_mov_b32 v{STR+2}, v{STR}\nv_mov_b32 v{STR+3}, v{STR+1}")
    I(f"v_permlane32_swap_b32 v{STR}, v{STR+2}")
    I(f"v_permlane32_swap_b32 v{STR+1}, v{STR+3}")
    I(f"v_add_f32 v{STR}, v{STR}, v{STR+2}")
    I(f"v_add_f32 v{STR+1}, v{STR+1}, v{STR+3}")
    I(f"v_mul_f32 v{NMU}, {f32(-1/448)}, v{STR}")
    I(f"v_mul_f32 v{STR+1}, {f32(1/448)}, v{STR+1}")
    I(f"v_fma_f32 v{STR+1}, -v{NMU}, v{NMU}, v{STR+1}")
    I(f"v_max_f32 v{STR+1}, 0, v{STR+1}")
    I(f"v_add_f32 v{IR2}, {f32(1e-5)}, v{STR+1}")
    I(f"v_rsq_f32 v{STR}, v{IR2}")
    I(f"v_mul_f32 v{K1}, {f32(GK1)}, v{STR}")
    I(f"v_mul_f32 v{STR+1}, v{STR}, v{STR}")
    I(f"v_mul_f32 v{STR+1}, v{STR+1}, v{STR}")
    I(f"v_mul_f32 v{K2}, {f32(GK2)}, v{STR+1}")
    tails = TAILS

    def cnt_add(f):
        I("s_mov_b64 exec, 1")
        I(f"ds_add_u32 v{vFA}, v{vONE} offset:{4*f}")
        I("s_mov_b64 exec, -1")

    def cnt_issue(f):
        return I(f"ds_read_b32 v{vFLAG}, v{vFA} offset:{4*f}")

    def cnt_check(f, t):
        lr, lb = g.newlabel("L_cr"), g.newlabel("L_cb")
        g.wait(t)
        I(f"v_readfirstlane_b32 s{sT4}, v{vFLAG}")
        I(f"s_cmp_lt_u32 s{sT4}, 8")
        I(f"s_cbranch_scc1 {lr}")
        g.label(lb)
        g.begin()
        g.label(lr)
        I(f"s_mov_b32 s{sT5}, 0")
        l2 = g.newlabel("L_cl")
        g.label(l2)
        I("s_sleep 1")
        cnt_issue(f)
        I("s_waitcnt lgkmcnt(0)")
        I(f"v_readfirstlane_b32 s{sT4}, v{vFLAG}")
        I(f"s_add_u32 s{sT5}, s{sT5}, 1")
        I(f"s_cmp_ge_u32 s{sT5}, {POLL_MAX*8}")
        I(f"s_cbranch_scc1 {lb}")
        I(f"s_cmp_lt_u32 s{sT4}, 8")
        I(f"s_cbranch_scc1 {l2}")
        I(f"s_branch {lb}")
        tails.append(g.end())

    def hsig_issue(f, toks):
        g.wait(*toks)
        I("s_mov_b64 exec, 1")
        t = I(f"ds_add_rtn_u32 v{vINIT}, v{vFA}, v{vONE} offset:{4*f}")
        I("s_mov_b64 exec, -1")
        return t

    def hsig_check(stage, t):
        lab = g.newlabel("L_hs")
        g.wait(t)
        I(f"v_readfirstlane_b32 s{sT4}, v{vINIT}")
        I(f"s_cmp_lg_u32 s{sT4}, 7")
        I(f"s_cbranch_scc1 {lab}")
        g.cond_begin()
        I("s_mov_b64 exec, 1")
        I(f"s_lshl_b32 s{sT0}, s{sG}, 8")
        I(f"s_add_u32 s{sT0}, s{sT0}, {WS_CNT + CNT_HH * 4096 + 64 * stage}")
        I(f"v_mov_b32 v{vCNT}, s{sT0}")
        I(f"buffer_atomic_add v{vONE}, v{vCNT}, {srd(sWS)}, 0 offen sc1")
        I("s_mov_b64 exec, -1")
        g.cond_end()
        g.label(lab)

    def cs_read(dst, mat, dbl):
        t = None
        for q in range(4):
            t = I(f"ds_read_b128 {vr(dst+4*q,4)}, v{vCSA} offset:{mat*512 + (64*dbl+8*q)*4}")
        return t

    def gpart(ag, t):
        g.wait(t)
        for i in range(16):
            I(f"v_fmac_f32 v{ag+i}, v{NMU}, v{TM+i}")
        for i in range(16):
            I(f"v_mul_f32 v{TM+i}, v{ag+i}, v{ag+i}")
        for i in range(16):
            I(f"v_fma_f32 v{TM+i}, v{TM+i}, v{K2}, v{K1}")
        for i in range(16):
            I(f"v_mul_f32 v{TM+i}, v{TM+i}, v{ag+i}")
        for i in range(16):
            I(f"v_exp_f32 v{TM+i}, v{TM+i}")
        for i in range(16):
            I(f"v_fma_f32 v{TM+i}, v{TM+i}, v{IR2}, v{IR2}")
        for i in range(16):
            I(f"v_rcp_f32 v{TM+i}, v{TM+i}")
        for i in range(16):
            I(f"v_mul_f32 v{TM+i}, v{ag+i}, v{TM+i}")

    def upart(au, t, dbl):
        g.wait(t)
        for i in range(16):
            I(f"v_fmac_f32 v{au+i}, v{NMU}, v{CS2+i}")
        for i in range(16):
            I(f"v_mul_f32 v{au+i}, v{au+i}, v{TM+i}")
        for i in range(8):
            I(f"v_cvt_pk_bf16_f32 v{CS2+i}, v{au+2*i}, v{au+2*i+1}")
        I(f"s_add_u32 s{sE}, s{sHB}, {dbl*4096}")
        I(f"buffer_store_dwordx4 {vr(CS2,4)}, v{vL16}, {srd(sWS)}, s{sE} offen sc1")
        return I(f"buffer_store_dwordx4 {vr(CS2+4,4)}, v{vL16}, {srd(sWS)}, s{sE} offen offset:1024 sc1")

    slots = []
    for c in range(28):
        slots.append((A_, c * 2048, c))
        slots.append((B_, 57344 + c * 2048, c))
    for c in range(28):
        slots.append((C_, 114688 + c * 2048 if c < 20 else (c - 20) * 2048, c))
    for c in range(28):
        slots.append((A_, 16384 + c * 2048 if c < 12 else 57344 + (c - 12) * 2048, c))
    NS = 112
    PRC = int(os.environ.get('PRC', '14'))
    depth = int(os.environ.get('DEPTH', '4'))
    nb = depth + 1
    tok = {}

    def rd(i):
        off = slots[i][1]
        base = vA0
        if off >= 114688:
            base, off = vA2, off - 114688
        elif off >= 57344:
            base, off = vA1, off - 57344
        dst = WFc + 4 * (i % nb)
        I(f"ds_read_b64_tr_b16 {vr(dst,2)}, v{base} offset:{off}")
        tok[i] = I(f"ds_read_b64_tr_b16 {vr(dst+2,2)}, v{base} offset:{off+512}")

    sched = {i: [] for i in range(NS)}
    load = {i: 0.0 for i in range(NS)}
    BUDGET = float(os.environ.get("BUDGET", "6"))

    def cost(it):
        if it.kind != "i":
            return 0
        m = it.text.split()[0]
        if m in TRANS:
            return 2
        if m in ("v_fma_f32", "v_fmac_f32"):
            return 1.25
        if m.startswith("v_"):
            return 1
        if m.startswith(("ds_", "buffer")):
            return 0.4
        return 0.1

    def cap(fn):
        g.begin()
        r = fn()
        return g.end(), r

    def at(slot, fn):
        st, r = cap(fn)
        for it in st:
            sched[slot].append(it)
            load[slot] += cost(it)
        return r

    rest = []

    def flow(stream, slot):
        pend = []
        for it in stream:
            pend.append(it)
            if it.kind != "i":
                continue
            c = sum(cost(x) for x in pend)
            while slot < NS and load[slot] + c > BUDGET:
                slot += 1
            if slot >= NS:
                rest.extend(pend)
            else:
                sched[slot].extend(pend)
                load[slot] += c
            pend = []
        return slot

    k_ = 0
    for it in hl[10:]:
        sched[k_].append(it)
        if it.text.startswith("buffer"):
            k_ += 1

    def refill(f, free_slot, batches, need_slot):
        at(free_slot, lambda: cnt_add(f))
        t = at(free_slot + 2, lambda: cnt_issue(f))
        at(free_slot + 3, lambda: cnt_check(f, t))
        st, tb = cap(batches)
        for q in range(len(st) // 3):
            for it in st[3 * q:3 * q + 3]:
                sched[free_slot + 3 + 2 * q].append(it)
        if need_slot is not None:
            at(need_slot - depth - 3, lambda: (g.wait(tb), cnt_add(f + 1)))
            t2 = at(need_slot - depth - 2, lambda: cnt_issue(f + 1))
            at(need_slot - depth - 1, lambda: cnt_check(f + 1, t2))
        return tb
    F0 = int(os.environ.get("F0", "40"))
    at(F0, lambda: cnt_add(0))
    t = at(F0 + 2, lambda: cnt_issue(0))
    at(F0 + 3, lambda: cnt_check(0, t))
    st1, tb1 = cap(lambda: c_batch(0, 1, 40, 56, 0))
    st2, tb2 = cap(lambda: (c_batch(1, 1, 0, 24, 16384), c_batch(1, 1, 24, 56, 57344))[1])
    st = st1 + st2
    for q in range(9):
        sched[F0 + 3 + 2 * q].extend(st[3 * q:3 * q + 3])
    at(76 - depth - 3, lambda: (g.wait(tb2), cnt_add(1)))
    t2_ = at(76 - depth - 2, lambda: cnt_issue(1))
    at(76 - depth - 1, lambda: cnt_check(1, t2_))
    at(56, lambda: cnt_add(2))
    t = at(72, lambda: cnt_issue(2))
    at(73, lambda: cnt_check(2, t))
    for m in range(5):
        at(73 + 2 * m, lambda: wd_dma(m))
    tM = refill(4, 84, lambda: [wd_dma(m) for m in range(5, 12)][-1], None)
    if "not2" not in EXP and "t2b" not in EXP:
        at(int(os.environ.get("T2", "40")), touch2)

    def h_issue_from(c0):
        def f():
            tl = []
            for c in range(c0, 28):
                if c % 4 == 0:
                    I(f"s_add_u32 s{sT2}, s{sWB}, {c*1024}")
                tl.append(I(f"buffer_load_dwordx4 {vr(HF+4*c,4)}, v{vL16}, {srd(sWS)}, s{sT2} offen offset:{(c%4)*1024} sc1"))
            return tl
        return f

    def hcheck(q):
        lr, lb = g.newlabel("L_hr"), g.newlabel("L_hb")
        g.wait(th[4 * q + 3])
        sent_check([HF + 4 * c for c in range(4 * q, 4 * q + 4)], vT1)
        I(f"s_cmp_lg_u64 vcc, 0")
        I(f"s_cbranch_scc1 {lr}")
        g.label(lb)
        g.begin()
        g.label(lr)
        check_loop(h_issue_from(4 * q), [HF + 4 * c for c in range(4 * q, 28)], vT1)
        I(f"s_branch {lb}")
        tails.append(g.end())
    t1 = at(54, lambda: cs_read(TM, 0, 0))
    t2 = at(55, lambda: cs_read(CS2, 1, 0))
    def epiA():
        g.wait(t2)
        for i in range(16):
            I(f"v_fmac_f32 v{A_+i}, v{NMU}, v{TM+i}")
        for i in range(16):
            I(f"v_fmac_f32 v{B_+i}, v{NMU}, v{CS2+i}")
        for i in range(16):
            I(f"v_mul_f32 v{TM+i}, v{A_+i}, v{A_+i}")
        for i in range(16):
            I(f"v_fma_f32 v{TM+i}, v{TM+i}, v{K2}, v{K1}")
        for i in range(16):
            I(f"v_mul_f32 v{TM+i}, v{TM+i}, v{A_+i}")
        for i in range(16):
            I(f"v_mul_f32 v{B_+i}, v{B_+i}, v{A_+i}")

    def epiB():
        for i in range(16):
            I(f"v_exp_f32 v{TM+i}, v{TM+i}")
        for i in range(16):
            I(f"v_fma_f32 v{TM+i}, v{TM+i}, v{IR2}, v{IR2}")
        for i in range(16):
            I(f"v_rcp_f32 v{TM+i}, v{TM+i}")
        for i in range(16):
            I(f"v_mul_f32 v{B_+i}, v{B_+i}, v{TM+i}")
        for i in range(8):
            I(f"v_cvt_pk_bf16_f32 v{CS2+i}, v{B_+2*i}, v{B_+2*i+1}")
        I(f"buffer_store_dwordx4 {vr(CS2,4)}, v{vL16}, {srd(sWS)}, s{sHB} offen sc1")
        return I(f"buffer_store_dwordx4 {vr(CS2+4,4)}, v{vL16}, {srd(sWS)}, s{sHB} offen offset:1024 sc1")
    st, _ = cap(epiA)
    e = flow(st, 57)
    assert e < 83, e
    st, tst0 = cap(epiB)
    e = flow(st, e)
    t1 = at(max(e, 85), lambda: cs_read(TM, 0, 1))
    t2 = at(min(e + 9, 109), lambda: cs_read(CS2, 1, 1))
    st, _ = cap(lambda: gpart(C_, t1))
    flow(st, max(e, 85) + 2)
    def flag_issue():
        I(f"s_lshl_b32 s{sT0}, s{sGB}, 8")
        I(f"s_add_u32 s{sT0}, s{sT0}, {WS_CNT + CNT_HH * 4096}")
        return I(f"buffer_load_dword v{vT4}, off, {srd(sWS)}, s{sT0} sc1")
    print("slot loads:", " ".join("%.0f" % load[i] for i in range(NS)), "rest", len(rest))
    for i in range(depth):
        rd(i)
    for i in range(NS):
        acc, off, c = slots[i]
        if i + depth < NS:
            rd(i + depth)
        if PRC and i % PRC == 0:
            I(f"s_setprio {3 - (i // PRC) % 4}")
        if i < 56 and i % 8 == 0:
            hcheck(i // 8)
        g.wait(tok[i])
        I(f"v_mfma_f32_32x32x16_bf16 {vr(acc,16)}, {vr(WFc+4*(i%nb),4)}, {vr(HF+4*c,4)}, {'0' if c == 0 else vr(acc,16)}")
        g.put(sched[i])
        if i in (55, 83, 111):
            stamp(f"slot{i}")
    g.put(rest)
    tlast = upart(A_, t2, 1)
    stamp("hh stored")
    DACC = 184
    frag = {n: 16 + 8 * n for n in range(14)}
    abuf = {c: 128 + 4 * c for c in range(14)}
    ta = {}
    vP = {(sL5, 114688): (vT0, vT1), (sL2, 0): (vT2, vT3), (sL3, 16384): (vT4, vT5), (sL3, 90112): (vINIT, vCNT - 0), (sL4, 57344): (252, 15)}
    vP[(sL3, 90112)] = (vG, vM16)
    dt_pattern(vFLAG, vT0, vT1)
    for (sreg, base), (a0, a1) in vP.items():
        I(f"v_add_u32 v{a0}, s{sreg}, v{vFLAG}")
        if base:
            I(f"v_add_u32 v{a0}, {base}, v{a0}")
        I(f"v_xor_b32 v{a1}, 64, v{a0}")

    def wd_read(m):
        n, rd_ = m // 2, m % 2
        sreg, imm = wslot[m]
        key = max((k for k in vP if k[0] == sreg and k[1] <= imm), key=lambda k: k[1])
        a = vP[key]
        imm -= key[1]
        t = None
        for nt in range(2):
            t = I(f"ds_read_b64_tr_b16 {vr(frag[n]+4*nt+2*rd_,2)}, v{a[nt]} offset:{imm}")
        return t

    def lda(c):
        for mt in range(2):
            I(f"s_add_u32 s{sT1}, s{sRA[c % 7]}, {mt*112*1024 + (4096 if c >= 7 else 0)}")
            ta[c, mt] = I(f"buffer_load_dwordx4 {vr(abuf[c]+4*mt,4)}, v{vL16}, {srd(sWS)}, s{sT1} offen sc1")

    def mm(c, first):
        for mt in range(2):
            g.wait(ta[c, mt])
            for nt in range(2):
                a = DACC + (mt * 2 + nt) * 16
                I(f"v_mfma_f32_32x32x16_bf16 {vr(a,16)}, {vr(frag[c]+4*nt,4)}, {vr(abuf[c]+4*mt,4)}, {'0' if first else vr(a,16)}")
    I("s_setprio 3")
    g.wait(tM)
    t = None
    for m in range(12):
        t = wd_read(m)
    g.wait(t)
    twd = {}
    for m in range(19, 28):
        twd[m] = wd_dma(m)
        if m == 22:
            th_ = hsig_issue(6, [tlast])
            hsig_check(0, th_)
    I("s_barrier")
    for m in range(12, 19):
        twd[m] = wd_dma(m)
    stamp("wd issued")
    I("s_setprio 0")
    lab = g.newlabel("L_fp")
    I(f"s_cmp_lg_u32 s{sW}, 0")
    I(f"s_cbranch_scc1 {lab}")
    g.cond_begin()
    hh_poll(0)
    g.cond_end()
    g.label(lab)
    g.wait(twd[27])
    for m in range(19, 28):
        wd_read(m)
    g.wait(twd[18])
    for m in range(12, 19):
        wd_read(m)
    g.wait_all(vm=False)
    I("s_barrier")
    stamp("hh flag")

    def lda1(c, mt):
        I(f"s_add_u32 s{sT1}, s{sRA[c % 7]}, {mt*112*1024 + (4096 if c >= 7 else 0)}")
        ta[c, mt] = I(f"buffer_load_dwordx4 {vr(abuf[c],4)}, v{vL16}, {srd(sWS)}, s{sT1} offen sc1")
    for c in range(14):
        lda1(c, 0)
    HR = 248
    I(f"v_and_b32 v{vT0}, 15, v0")
    I(f"v_lshrrev_b32 v{vT1}, 4, v0")
    I(f"v_lshrrev_b32 v{vFLAG}, 1, v{vT0}")
    I(f"v_lshlrev_b32 v{vFLAG}, 9, v{vFLAG}")
    I(f"v_lshl_add_u32 v{vFLAG}, v{vT1}, 4, v{vFLAG}")
    I(f"v_and_b32 v{vT2}, 1, v{vT0}")
    I(f"v_lshl_add_u32 v{vFLAG}, v{vT2}, 3, v{vFLAG}")
    I(f"s_mul_i32 s{sE}, s{sMD}, {28*1024}")
    I(f"s_lshl_b32 s{sT1}, s{sCB}, 12")
    I(f"s_add_u32 s{sE}, s{sE}, s{sT1}")
    I(f"s_add_u32 s{sE}, s{sE}, {WS_H}")
    I(f"s_add_u32 s{sD}, s{sE}, {28*1024}")
    I(f"s_mul_i32 s{sT0}, s{sW}, {64*272}")
    I(f"v_mul_u32_u24 v{vT3}, 272, v{vM}")
    I(f"v_lshl_add_u32 v{vT3}, v{vHB}, 4, v{vT3}")
    I(f"v_add_u32 v{vT3}, s{sT0}, v{vT3}")
    I(f"v_mul_u32_u24 v{vT4}, 272, v{vT1}")
    I(f"v_lshl_add_u32 v{vT4}, v{vT0}, 4, v{vT4}")
    I(f"v_add_u32 v{vT5}, {4*64*272}, v{vT4}")
    I(f"v_mul_u32_u24 v{vT2}, 896, v{vT1}")
    I(f"v_lshl_add_u32 v{vT2}, v{vT0}, 3, v{vT2}")
    I(f"s_mul_i32 s{sT0}, s{sMD}, {32*896}")
    I(f"s_lshl_b32 s{sT2}, s{sCB}, 7")
    I(f"s_add_u32 s{sT0}, s{sT0}, s{sT2}")
    I(f"s_add_u32 s{sT2}, s{sT0}, {32*896}")
    hold = {}

    def pw(mt, k):
        nt, q = k // 4, k % 4
        I(f"ds_write_b128 v{vT3}, {vr(DACC+(mt*2+nt)*16+4*q,4)} offset:{mt*32*272 + nt*128 + q*32}")

    def red_issue(mt, R):
        t = None
        for w in range(8):
            t = I(f"ds_read_b128 {vr(R+4*w,4)}, v{vT4 if w < 4 else vT5} offset:{(w%4)*64*272 + mt*32*272}")
        return t

    def red_fin(mt, R, t):
        g.wait(hold["thr"])
        U = R + 32
        for i in range(2):
            I(f"v_lshlrev_b32 v{U+2*i}, 16, v{HR+2*mt+i}")
            I(f"v_and_b32 v{U+2*i+1}, 0xffff0000, v{HR+2*mt+i}")
        g.wait(t)
        for k in (16, 8, 4):
            for i in range(k):
                I(f"v_add_f32 v{R+i}, v{R+i}, v{R+k+i}")
        for i in range(4):
            I(f"v_add_f32 v{R+i}, v{R+i}, v{U+i}")
        for i in range(2):
            I(f"v_cvt_pk_bf16_f32 v{R+4+i}, v{R+2*i}, v{R+2*i+1}")
        I(f"buffer_store_dwordx2 {vr(R+4,2)}, v{vT2}, {srd(sOUT)}, s{sT2 if mt else sT0} offen")
    for mt in range(2):
        for c in range(14):
            g.wait(ta[c, mt])
            for nt in range(2):
                a = DACC + (mt * 2 + nt) * 16
                I(f"v_mfma_f32_32x32x16_bf16 {vr(a,16)}, {vr(frag[c]+4*nt,4)}, {vr(abuf[c],4)}, {'0' if c == 0 else vr(a,16)}")
            if mt == 0:
                lda1(c, 1)
            elif 2 <= c < 10:
                pw(0, c - 2)
        if mt == 0:
            I(f"buffer_load_dwordx2 {vr(HR,2)}, v{vFLAG}, {srd(sWS)}, s{sE} offen sc1")
            hold["thr"] = I(f"buffer_load_dwordx2 {vr(HR+2,2)}, v{vFLAG}, {srd(sWS)}, s{sD} offen sc1")
            stamp("D early")
    stamp("D mfma")
    for k in range(8):
        pw(1, k)
    g.wait_all(vm=False)
    I("s_barrier")
    t0_ = red_issue(0, 16)
    t1_ = red_issue(1, 56)
    red_fin(0, 16, t0_)
    red_fin(1, 56, t1_)
    stamp("end")
    stamp("rt1", rt=True)
    if "span" in EXP:
        I(f"s_cmp_lg_u32 s{sW}, 7")
        I("s_cbranch_scc1 L_end")
        I("s_and_b32 s90, s2, 7")
        I("s_cmp_lg_u32 s90, 3")
        I("s_cbranch_scc1 L_end")
        I("s_waitcnt vmcnt(0)")
        I("s_memrealtime s[90:91]")
        I("s_memtime s[92:93]")
        I("s_waitcnt lgkmcnt(0)")
        I("s_mov_b64 exec, 1")
        I("s_not_b32 s86, s86")
        I("s_sub_u32 s92, s92, s100")
        I("v_mov_b32 v20, s86")
        I("v_mov_b32 v21, s90")
        I("v_mov_b32 v22, s92")
        I(f"buffer_atomic_umax v20, off, {srd(sDBG)}, 0 offset:4 sc1")
        I(f"buffer_atomic_umax v21, off, {srd(sDBG)}, 0 offset:8 sc1")
        I(f"buffer_atomic_umax v22, off, {srd(sDBG)}, 0 offset:12 sc1")


prologue()
two = phaseA()
twd = phaseB(two)
phaseCD(twd)
g.label("L_end")
I("s_endpgm")
for tl_ in TAILS:
    g.put(tl_)
g.insert_bg()
g.resolve_waits()
g.fix_hazards_fast()

hdr = open("cdna_kernels/" + NAME + ".s.ref").read().split("; Override launch geometry")[0]
out = hdr + f"""; @launch grid=(256,1,1) block=(512,1,1) lds=163840
.amdgcn_target "amdgcn-amd-amdhsa--gfx950"
.text
.globl {NAME}_kernel
.p2align 8
.type {NAME}_kernel,@function
{NAME}_kernel:
L_code_start:
{g.text()}
L_code_end:
.fill 64, 4, 0xbf800000
.section .rodata,"a"
.p2align 6
.amdhsa_kernel {NAME}_kernel
  .amdhsa_next_free_vgpr 256
  .amdhsa_next_free_sgpr 102
  .amdhsa_accum_offset 256
  .amdhsa_group_segment_fixed_size 0
  .amdhsa_kernarg_size 88
  .amdhsa_user_sgpr_count 2
  .amdhsa_user_sgpr_kernarg_segment_ptr 1
  .amdhsa_system_sgpr_workgroup_id_x 1
.end_amdhsa_kernel
"""
import subprocess, re as _re
open("_sz.s", "w").write(out.replace("CODE_LAST", "0x1000"))
subprocess.run(["clang", "-x", "assembler", "-target", "amdgcn-amd-amdhsa", "-mcpu=gfx950", "-c", "_sz.s", "-o", "_sz.o"], check=True)
_h = subprocess.run(["llvm-objdump", "-h", "_sz.o"], capture_output=True, text=True).stdout
_sz = int(_re.search(r"\.text\s+([0-9a-f]+)", _h).group(1), 16)
out = out.replace("CODE_LAST", hex(_sz - 768))
print("code bytes", _sz)
open(sys.argv[1], "w").write(out)
if STAMPS:
    open(sys.argv[1] + ".names", "w").write("\n".join(stamp_names))
print("instrs:", sum(1 for it in g.items if it.kind == "i"), "stamps:", nstamp[0])
```

```python
import sys, math, struct, os
sys.path.insert(0, "dev")
from gen import *

NAME = "sequential_preLN__linear_kernel_hedgehog__glu_gated_geglu__prompt"
STAMPS = int(sys.argv[2]) if len(sys.argv) > 2 else 0
EXP = sys.argv[3].split(",") if len(sys.argv) > 3 else []


def f32(x):
    return "0x%08x" % struct.unpack("<I", struct.pack("<f", x))[0]


WS_CNT = 0x0
WS_CS = 0x10000
WS_ST = 0x50000
WS_KVP = 0x100000
WS_O = 0x200000
WS_H = 0x400000
WS_HH = 0x600000
WS_STAMP = 0xE00000
CNT_KV, CNT_O, CNT_H, CNT_HH = 0, 1, 2, 3

sX, sWQKV, sWPHI, sWO, sWG, sWU, sWD, sOUT, sDBG, sWS = 8, 12, 16, 20, 24, 28, 32, 36, 40, 44
sG, sJ, sW = 48, 49, 50
sT0, sT1, sT2, sT3, sT4, sT5 = 51, 52, 53, 54, 55, 56
sW3, sWH = 57, 58
sA, sB, sC, sD, sE = 59, 60, 61, 62, 63
sSTAMP = 86
sGATH, sWB, sCW, sCL, sLOG = 88, 89, 90, 91, 92
sGB, sJB, sJC, sLI, sXC, sLW, sSTO = 93, 94, 95, 96, 97, 98, 99
OOB = 0x7ff00000
sBG, sWOB, sKVS, sOS, sHS, sSS, sHHS = 68, 70, 71, 72, 73, 74, 75


def srd(r):
    return f"s[{r}:{r+3}]"


def vr(a, n=1):
    return f"v{a}" if n == 1 else f"v[{a}:{a+n-1}]"


def ar(a, n=1):
    return f"a{a}" if n == 1 else f"a[{a}:{a+n-1}]"


g = Gen()
I = g.I
nstamp = [0]
stamp_names = []

vLANE, vG, vM16 = 1, 2, 3
vL16 = 4
vT0, vT1, vT2, vT3, vT4, vT5 = 5, 6, 7, 8, 9, 10
vFLAG, vONE, vCNT, vINIT, vDMY = 11, 12, 13, 14, 15


def stamp(name="", rt=False):
    if not STAMPS:
        return
    k = nstamp[0]
    nstamp[0] += 1
    stamp_names.append(name)
    g.cond_begin()
    I(f"{'s_memrealtime' if rt else 's_memtime'} s[{sSTAMP}:{sSTAMP+1}]")
    I("s_waitcnt lgkmcnt(0)")
    I(f"v_mov_b32 v{vCNT}, s{sSTAMP}")
    I(f"buffer_store_dword v{vCNT}, off, {srd(sWS)}, s{sSTO} offset:{4*k}")
    g.cond_end()


UNIT = 14336
LDS_WK = 8 * UNIT
LDS_KVF = 11 * UNIT
LDS_CS = LDS_KVF + 4096
LDS_FLG = LDS_CS + 1024
LDS_WPL = 10 * UNIT + 8192
LDS_KV2 = 8 * UNIT + 24576 + 4096
LDS_BSCR = 6 * UNIT


def prologue():
    I("s_cmp_ge_u32 s2, 256")
    I("s_cbranch_scc1 L_end")
    I("s_setprio 3")
    if "span" in EXP:
        I("s_memrealtime s[86:87]")
        I("s_memtime s[100:101]")
    I(f"s_load_dwordx2 s[{sX}:{sX+1}], s[0:1], 0")
    I("s_getpc_b64 s[4:5]")
    I(f"v_lshlrev_b32 v{vINIT}, 7, v0")
    I(f"s_and_b32 s{sT5}, s2, 24")
    I(f"s_cmp_eq_u32 s{sT5}, 0")
    I(f"s_cselect_b32 s{sT5}, CODE_LAST, 0")
    I(f"v_min_u32 v{vINIT}, s{sT5}, v{vINIT}")
    if "cp0" in EXP:
        I(f"global_load_dword v{vDMY}, v{vINIT}, s[4:5]")
    I("s_load_dwordx16 s[64:79], s[0:1], 0")
    I("s_load_dwordx4 s[80:83], s[0:1], 64")
    I("s_load_dwordx2 s[84:85], s[0:1], 80")
    I(f"v_and_b32 v{vLANE}, 63, v0")
    I(f"v_lshrrev_b32 v{vT0}, 6, v0")
    I(f"v_readfirstlane_b32 s{sW}, v{vT0}")
    I(f"v_lshrrev_b32 v{vG}, 4, v{vLANE}")
    I(f"s_bfe_u32 s{sT0}, s2, 0x20001")
    I(f"s_lshl_b32 s{sT0}, s{sT0}, 2")
    I(f"s_bfe_u32 s{sT1}, s2, 0x20003")
    I(f"s_add_u32 s{sG}, s{sT0}, s{sT1}")
    I(f"s_mov_b32 s{sX+2}, 1835008")
    I(f"s_mov_b32 s{sX+3}, 0x20000")
    I(f"v_lshrrev_b32 v{vT0}, 3, v{vLANE}")
    I(f"v_mul_u32_u24 v{vT0}, 896, v{vT0}")
    I(f"v_and_b32 v{vT1}, 7, v{vLANE}")
    I(f"v_xor_b32 v{vT3}, v{vT1}, v{vG}")
    I(f"v_lshl_add_u32 v{vXA0}, v{vT3}, 4, v{vT0}")
    I(f"v_xor_b32 v{vT3}, 4, v{vT3}")
    I(f"v_lshl_add_u32 v{vXA1}, v{vT3}, 4, v{vT0}")
    I(f"s_lshl_b32 s{sA}, s{sG}, 3")
    I(f"s_add_u32 s{sA}, s{sA}, s{sW}")
    I(f"s_mul_i32 s{sB}, s{sA}, {16*896}")
    I(f"s_add_u32 s{sC}, s{sB}, {8*896}")
    I(f"s_mul_i32 s{sLW}, s{sW}, {UNIT}")
    I(f"s_and_b32 s{sT2}, s2, 1")
    I(f"s_lshl_b32 s{sT3}, s{sT2}, 3")
    I(f"s_lshr_b32 s{sT4}, s2, 5")
    I(f"s_add_u32 s{sJ}, s{sT3}, s{sT4}")
    I(f"s_lshl_b32 s{sCL}, s{sW}, 10")
    I(f"v_lshrrev_b32 v{vT0}, 2, v{vLANE}")
    I(f"v_mul_u32_u24 v{vT0}, 2688, v{vT0}")
    I(f"v_and_b32 v{vT1}, 3, v{vLANE}")
    I(f"v_and_b32 v{vT2}, 2, v{vG}")
    I(f"v_xor_b32 v{vT1}, v{vT1}, v{vT2}")
    I(f"v_lshl_add_u32 v{vWA}, v{vT1}, 4, v{vT0}")
    I(f"s_mul_i32 s{sWB}, s{sJ}, 56")
    I(f"s_and_b32 s{sT1}, s{sJ}, 1")
    I(f"s_lshl_b32 s{sT1}, s{sT1}, 3")
    I(f"s_sub_u32 s{sWB}, s{sWB}, s{sT1}")
    I(f"s_mul_i32 s{sD}, s{sW}, {16*2688}")
    I(f"s_add_u32 s{sD}, s{sD}, s{sWB}")
    I(f"s_mov_b32 s{sWQKV+2}, 1204224")
    I(f"s_mov_b32 s{sWQKV+3}, 0x20000")
    if "t0" in EXP:
        I(f"s_lshr_b32 s{sLI}, s2, 3")
        I(f"s_mul_i32 s{sT2}, s{sLI}, {14*2688}")
        I(f"s_and_b32 s{sT3}, s2, 1")
        I(f"s_mul_i32 s{sT3}, s{sT3}, 384")
        I(f"s_add_u32 s{sT2}, s{sT2}, s{sT3}")
        I(f"s_mul_i32 s{sT3}, s{sW}, 896")
        I(f"s_add_u32 s{sT2}, s{sT2}, s{sT3}")
        I(f"s_cmp_ge_u32 s{sW}, 3")
        I(f"s_cselect_b32 s{sT3}, {OOB}, 0")
        I(f"s_add_u32 s{sT2}, s{sT2}, s{sT3}")
        I(f"v_lshrrev_b32 v{vT0}, 2, v{vLANE}")
        I(f"v_min_u32 v{vT0}, 13, v{vT0}")
        I(f"v_mul_u32_u24 v{vT0}, 2688, v{vT0}")
        I(f"v_and_b32 v{vT1}, 3, v{vLANE}")
        I(f"v_lshl_add_u32 v{vT4}, v{vT1}, 7, v{vT0}")
        I(f"s_mul_i32 s{sT4}, s{sT0}, 114688")
        I(f"s_mul_i32 s{sT5}, s{sLI}, 14336")
        I(f"s_add_u32 s{sT4}, s{sT4}, s{sT5}")
        I(f"s_sub_u32 s{sT5}, s{sW}, 3")
        I(f"s_cmp_lt_u32 s{sT5}, 2")
        I(f"s_cselect_b32 s{sT3}, 0, {OOB}")
        I(f"s_mul_i32 s{sT5}, s{sT5}, 7168")
        I(f"s_and_b32 s{sT5}, s{sT5}, 0x3fff")
        I(f"s_add_u32 s{sT4}, s{sT4}, s{sT5}")
        I(f"s_add_u32 s{sT4}, s{sT4}, s{sT3}")
        I(f"v_min_u32 v{vT5}, 55, v{vLANE}")
        I(f"v_lshlrev_b32 v{vT5}, 7, v{vT5}")
        I(f"s_mov_b32 s{sWQKV+2}, 1204224")
        I(f"s_mov_b32 s{sWQKV+3}, 0x20000")
    I("s_waitcnt lgkmcnt(0)")
    I(f"s_mov_b64 s[{sWQKV}:{sWQKV+1}], s[66:67]")
    if "t0" in EXP:
        I(f"buffer_load_dword v{vDMY}, v{vT5}, {srd(sX)}, s{sT4} offen")
        I(f"buffer_load_dword v{vDMY}, v{vT4}, {srd(sWQKV)}, s{sT2} offen")


def prologue2():
    I(f"v_and_b32 v{vM16}, 15, v{vLANE}")
    I(f"v_lshlrev_b32 v{vL16}, 4, v{vLANE}")
    I(f"v_mov_b32 v{vONE}, 1")
    I(f"s_and_b32 s{sXC}, s2, 7")
    I(f"s_lshr_b32 s{sLI}, s2, 3")
    I(f"s_and_b32 s{sT2}, s{sXC}, 1")
    I(f"s_lshl_b32 s{sT3}, s{sT2}, 3")
    I(f"s_lshr_b32 s{sT4}, s{sLI}, 2")
    I(f"s_add_u32 s{sJ}, s{sT3}, s{sT4}")
    I(f"s_lshl_b32 s{sGB}, s{sXC}, 1")
    I(f"s_and_b32 s{sT5}, s{sLI}, 1")
    I(f"s_add_u32 s{sGB}, s{sGB}, s{sT5}")
    I(f"s_lshr_b32 s{sJB}, s{sLI}, 1")
    I(f"s_mul_i32 s{sJC}, s{sT2}, 7")
    I(f"s_add_u32 s{sJC}, s{sJC}, s{sT4}")
    I(f"s_cmp_eq_u32 s{sT4}, 7")
    I(f"s_cselect_b32 s{sJC}, 15, s{sJC}")
    I(f"s_and_b32 s{sW3}, s{sW}, 3")
    I(f"s_lshr_b32 s{sWH}, s{sW}, 2")
    I(f"s_lshl_b32 s{sCL}, s{sW}, 10")
    for r, p, n in ((sWQKV, 66, 1204224), (sWPHI, 68, 25088), (sWO, 70, 401408),
                    (sWG, 74, 1605632), (sWU, 76, 1605632), (sWD, 78, 1605632), (sOUT, 80, 1835008),
                    (sDBG, 82, 256), (sWS, 84, 0x10000000)):
        I(f"s_mov_b64 s[{r}:{r+1}], s[{p}:{p+1}]")
        I(f"s_mov_b32 s{r+2}, {n}")
        I(f"s_mov_b32 s{r+3}, 0x20000")
    if STAMPS:
        I(f"s_lshl_b32 s{sSTO}, s2, 3")
        I(f"s_add_u32 s{sSTO}, s{sSTO}, s{sW}")
        I(f"s_lshl_b32 s{sSTO}, s{sSTO}, 7")
        I(f"s_add_u32 s{sSTO}, s{sSTO}, {WS_STAMP}")


POLL_MAX = 200000


def poll(srdreg, voff, target):
    lp, ld = g.newlabel("L_poll"), g.newlabel("L_pdone")
    I(f"s_mov_b32 s{sT5}, 0")
    g.label(lp)
    I(f"buffer_load_dword v{vFLAG}, v{voff}, {srd(srdreg)}, 0 offen sc1")
    I("s_waitcnt vmcnt(0)")
    I(f"v_readfirstlane_b32 s{sT4}, v{vFLAG}")
    I(f"s_add_u32 s{sT5}, s{sT5}, 1")
    I(f"s_cmp_ge_u32 s{sT5}, {POLL_MAX}")
    I(f"s_cbranch_scc1 {ld}")
    I(f"s_cmp_lt_u32 s{sT4}, {target}")
    I(f"s_cbranch_scc1 {lp}")
    g.label(ld)


def signal(kind, sidx, toks, first=False):
    g.wait(*toks)
    I("s_barrier")
    lab = g.newlabel("L_sig")
    I(f"s_cmp_lg_u32 s{sW}, 0")
    I(f"s_cbranch_scc1 {lab}")
    g.cond_begin()
    I("s_mov_b64 exec, 1")
    if first:
        l2 = g.newlabel("L_ini")
        I(f"v_readfirstlane_b32 s{sT4}, v{vINIT}")
        I(f"s_cmp_lg_u32 s{sT4}, 0")
        I(f"s_cbranch_scc1 {l2}")
        I(f"v_mov_b32 v{vCNT}, 0")
        poll(sDBG, vCNT, 1)
        g.label(l2)
    I(f"s_lshl_b32 s{sT0}, s{sidx}, 8")
    I(f"s_add_u32 s{sT0}, s{sT0}, {WS_CNT + kind * 4096}")
    I(f"v_mov_b32 v{vCNT}, s{sT0}")
    I(f"buffer_atomic_add v{vONE}, v{vCNT}, {srd(sWS)}, 0 offen sc1")
    I("s_mov_b64 exec, -1")
    g.cond_end()
    g.label(lab)


def waitflag(kind, sidx, target=16):
    lab = g.newlabel("L_w")
    I(f"s_cmp_lg_u32 s{sW}, 0")
    I(f"s_cbranch_scc1 {lab}")
    g.cond_begin()
    I("s_mov_b64 exec, 1")
    I(f"s_lshl_b32 s{sT0}, s{sidx}, 8")
    I(f"s_add_u32 s{sT0}, s{sT0}, {WS_CNT + kind * 4096}")
    I(f"v_mov_b32 v{vCNT}, s{sT0}")
    poll(sWS, vCNT, target)
    I("s_mov_b64 exec, -1")
    g.cond_end()
    g.label(lab)
    I("s_barrier")


def dma2(vaddr, srdreg, sbase, src_imm, lds_sreg, lds_imm, stmp=None):
    stmp = sT1 if stmp is None else stmp
    I(f"s_add_u32 m0, s{lds_sreg}, {lds_imm}")
    I(f"s_add_u32 s{stmp}, s{sbase}, {src_imm}")
    return I(f"buffer_load_dwordx4 v{vaddr}, {srd(srdreg)}, s{stmp} offen lds")


def xreduce(op, a, t, levels=(16, 32)):
    for lv in levels:
        I(f"v_mov_b32 v{t}, v{a}")
        I(f"v_permlane{lv}_swap_b32 v{a}, v{t}")
        I(f"{op} v{a}, v{a}, v{t}")


LOG2E = 1.4426950408889634

XF = 16
WR = 72
WPHI = 100
WPH2 = 108
SEL = 116
ACC = 124
ACCV = 132
WF = 140
TMP = 172
PH = 196
vXA0, vXA1, vWA, vTR, vXR0, vXR1, vCA = 204, 205, 206, 207, 208, 209, 252
vTRb, vTRc, vWOA = 211, 212, 213


def chain16(acc, rd, swap=False, depth=3, hook=None):
    toks = {}
    nb = depth + 1
    n = 14
    for c in range(depth):
        toks[c] = rd(c, WF + 8 * (c % nb))
    for c in range(n):
        if c + depth < n:
            toks[c + depth] = rd(c + depth, WF + 8 * ((c + depth) % nb))
        g.wait(toks[c])
        X = vr(XF + 4 * c, 4)
        for t in range(2):
            W = vr(WF + 8 * (c % nb) + 4 * t, 4)
            a = vr(acc + 4 * t, 4)
            C = a if c > 0 else "0"
            if swap:
                I(f"v_mfma_f32_16x16x32_bf16 {a}, {X}, {W}, {C}")
            else:
                I(f"v_mfma_f32_16x16x32_bf16 {a}, {W}, {X}, {C}")
        if hook is not None:
            hook(c)


def featmap(acc, out):
    pk = TMP
    p = acc
    e = TMP + 4
    mx, mn, t0, t1 = TMP + 12, TMP + 13, TMP + 14, TMP + 15
    for i in range(4):
        I(f"v_cvt_pk_bf16_f32 v{pk+i}, v{acc+2*i}, v{acc+2*i+1}")
    I(f"v_mfma_f32_16x16x32_bf16 {vr(p,4)}, {vr(WPHI,4)}, {vr(pk,4)}, 0")
    I(f"v_mfma_f32_16x16x32_bf16 {vr(p+4,4)}, {vr(WPHI+4,4)}, {vr(pk,4)}, 0")
    I(f"v_max3_f32 v{mx}, v{p}, v{p+1}, v{p+2}")
    I(f"v_min3_f32 v{mn}, v{p}, v{p+1}, v{p+2}")
    for i in (3, 5):
        I(f"v_max3_f32 v{mx}, v{mx}, v{p+i}, v{p+i+1}")
        I(f"v_min3_f32 v{mn}, v{mn}, v{p+i}, v{p+i+1}")
    for lv in (16, 32):
        I(f"v_mov_b32 v{t0}, v{mx}")
        I(f"v_mov_b32 v{t1}, v{mn}")
        I(f"v_permlane{lv}_swap_b32 v{mx}, v{t0}")
        I(f"v_permlane{lv}_swap_b32 v{mn}, v{t1}")
        I(f"v_max_f32 v{mx}, v{mx}, v{t0}")
        I(f"v_min_f32 v{mn}, v{mn}, v{t1}")
    I(f"v_mul_f32 v{mx}, {f32(-LOG2E)}, v{mx}")
    I(f"v_mul_f32 v{mn}, {f32(LOG2E)}, v{mn}")
    e2 = TMP + 16
    for i in range(7):
        I(f"v_fma_f32 v{e+i}, v{p+i}, s{sLOG}, v{mx}")
        I(f"v_fma_f32 v{e2+i}, -v{p+i}, s{sLOG}, v{mn}")
    for i in range(7):
        I(f"v_exp_f32 v{e+i}, v{e+i}")
        I(f"v_exp_f32 v{e2+i}, v{e2+i}")
    I(f"v_add_f32 v{mx}, v{e}, v{e+1}")
    I(f"v_add_f32 v{mn}, v{e2}, v{e2+1}")
    for i in range(2, 7):
        I(f"v_add_f32 v{mx}, v{mx}, v{e+i}")
        I(f"v_add_f32 v{mn}, v{mn}, v{e2+i}")
    for lv in (16, 32):
        I(f"v_mov_b32 v{t0}, v{mx}")
        I(f"v_mov_b32 v{t1}, v{mn}")
        I(f"v_permlane{lv}_swap_b32 v{mx}, v{t0}")
        I(f"v_permlane{lv}_swap_b32 v{mn}, v{t1}")
        I(f"v_add_f32 v{mx}, v{mx}, v{t0}")
        I(f"v_add_f32 v{mn}, v{mn}, v{t1}")
    I(f"v_rcp_f32 v{mx}, v{mx}")
    I(f"v_rcp_f32 v{mn}, v{mn}")
    for i in range(7):
        I(f"v_mul_f32 v{e+i}, v{e+i}, v{mx}")
        I(f"v_mul_f32 v{e2+i}, v{e2+i}, v{mn}")
    for i in range(3):
        I(f"v_cvt_pk_bf16_f32 v{out+i}, v{e+2*i}, v{e+2*i+1}")
        I(f"v_cvt_pk_bf16_f32 v{out+4+i}, v{e2+2*i}, v{e2+2*i+1}")
    I(f"v_cvt_pk_bf16_f32 v{out+3}, v{e+6}, 0")
    I(f"v_cvt_pk_bf16_f32 v{out+7}, v{e2+6}, 0")


def c_batch(mat, dbl, n0, n1, lds_base):
    t = None
    assert n0 % 8 == 0 and n1 % 8 == 0
    for i in range(n0 // 8, n1 // 8):
        t = dma2(vCA, sWG if mat == 0 else sWU, sCW, i * 8 * 8 * 3584 + dbl * 128, sCL, lds_base + (i * 8 - n0) * 1024)
    return t


def c_bg(mat, dbl, n0, n1, lds_base, after, gap=150):
    t = None
    for i in range(n0 // 8, n1 // 8):
        g.begin()
        t = dma2(vCA, sWG if mat == 0 else sWU, sCW, i * 8 * 8 * 3584 + dbl * 128, sCL, lds_base + (i * 8 - n0) * 1024, stmp=sBG)
        g.bg_add(g.end(), after, gap)
        NBG[0] += 1
    return t


NBG = [0]
TWD = {}
NWDBG = [0]


def bg(fn, after=None, gap=150):
    g.begin()
    r = fn()
    g.bg_add(g.end(), after, gap)
    NBG[0] += 1
    return r


def flush():
    g.mark(f"flush:{NBG[0]}")


def check_loop(issue, regs, tmp, body=None):
    lp, ld = g.newlabel("L_dp"), g.newlabel("L_dpd")
    I(f"s_mov_b32 s{sT5}, 0")
    g.label(lp)
    toks = issue()
    if body is not None:
        body(toks)
    g.wait(toks[-1])
    rs = list(regs)
    if len(rs) == 1:
        I(f"v_cmp_eq_u32 vcc, -1, v{rs[0]}")
    else:
        first = True
        acc = None
        while rs:
            if acc is None:
                if len(rs) >= 3:
                    I(f"v_max3_u32 v{tmp}, v{rs[0]}, v{rs[1]}, v{rs[2]}")
                    rs = rs[3:]
                else:
                    I(f"v_max_u32 v{tmp}, v{rs[0]}, v{rs[1]}")
                    rs = rs[2:]
                acc = tmp
            elif len(rs) >= 2:
                I(f"v_max3_u32 v{tmp}, v{tmp}, v{rs[0]}, v{rs[1]}")
                rs = rs[2:]
            else:
                I(f"v_max_u32 v{tmp}, v{tmp}, v{rs[0]}")
                rs = rs[1:]
        I(f"v_cmp_eq_u32 vcc, -1, v{tmp}")
    I(f"s_add_u32 s{sT5}, s{sT5}, 1")
    I(f"s_cmp_ge_u32 s{sT5}, {POLL_MAX}")
    I(f"s_cbranch_scc1 {ld}")
    I(f"s_cmp_lg_u64 vcc, 0")
    I(f"s_cbranch_scc1 {lp}")
    g.label(ld)


def sent_check(regs, tmp):
    rs = list(regs)
    acc = None
    while rs:
        if acc is None:
            if len(rs) >= 3:
                I(f"v_max3_u32 v{tmp}, v{rs[0]}, v{rs[1]}, v{rs[2]}")
                rs = rs[3:]
            else:
                I(f"v_max_u32 v{tmp}, v{rs[0]}, v{rs[1]}")
                rs = rs[2:]
            acc = tmp
        elif len(rs) >= 2:
            I(f"v_max3_u32 v{tmp}, v{tmp}, v{rs[0]}, v{rs[1]}")
            rs = rs[2:]
        else:
            I(f"v_max_u32 v{tmp}, v{tmp}, v{rs[0]}")
            rs = rs[1:]
    I(f"v_cmp_eq_u32 vcc, -1, v{tmp}")


TAILS = []


def spec_load(issue, regs, tmp, body=None, filler=None):
    lr, lb = g.newlabel("L_sr"), g.newlabel("L_sb")
    toks = issue()
    if filler is not None:
        filler()
    if body is not None:
        body(toks)
    g.wait(toks[-1])
    sent_check(regs, tmp)
    I(f"s_cmp_lg_u64 vcc, 0")
    I(f"s_cbranch_scc1 {lr}")
    g.label(lb)
    g.begin()
    g.label(lr)
    check_loop(issue, regs, tmp, body)
    I(f"s_branch {lb}")
    TAILS.append(g.end())


def c_setup():
    I(f"v_lshrrev_b32 v{vT0}, 3, v{vLANE}")
    I(f"v_mul_u32_u24 v{vT1}, 3584, v{vT0}")
    I(f"v_and_b32 v{vT2}, 1, v{vG}")
    I(f"v_lshlrev_b32 v{vT2}, 2, v{vT2}")
    I(f"v_and_b32 v{vCA}, 7, v{vLANE}")
    I(f"v_xor_b32 v{vCA}, v{vCA}, v{vT2}")
    I(f"v_lshl_add_u32 v{vCA}, v{vCA}, 4, v{vT1}")
    I(f"s_cmp_ge_u32 s{sJC}, 14")
    I(f"s_cselect_b32 s{sT0}, {OOB}, 0")
    I(f"v_add_u32 v{vCA}, s{sT0}, v{vCA}")
    I(f"s_mul_i32 s{sCW}, s{sW}, {8*3584}")
    I(f"s_lshl_b32 s{sT0}, s{sJC}, 8")
    I(f"s_add_u32 s{sCW}, s{sCW}, s{sT0}")


def touch1():
    I(f"s_mul_i32 s{sT0}, s{sLI}, {98*128}")
    I(f"s_mul_i32 s{sT1}, s{sW}, {13*128}")
    I(f"s_add_u32 s{sT0}, s{sT0}, s{sT1}")
    I(f"v_lshlrev_b32 v{vT0}, 7, v{vLANE}")
    I(f"v_mov_b32 v{vT2}, {OOB}")
    I(f"v_cmp_gt_u32 vcc, 13, v{vLANE}")
    I(f"v_cndmask_b32 v{vT0}, v{vT2}, v{vT0}, vcc")
    I(f"buffer_load_dword v{vDMY}, v{vT0}, {srd(sWO)}, s{sT0} offen")
    I(f"s_lshr_b32 s{sT0}, s{sW}, 1")
    I(f"s_lshl_b32 s{sT2}, s{sT0}, 2")
    I(f"s_mul_i32 s{sT0}, s{sT0}, {4*3584}")
    I(f"s_mul_i32 s{sT1}, s{sLI}, {14*3584}")
    I(f"s_add_u32 s{sT0}, s{sT0}, s{sT1}")
    I(f"s_and_b32 s{sT1}, s{sXC}, 1")
    I(f"s_mul_i32 s{sT1}, s{sT1}, 1792")
    I(f"s_add_u32 s{sT0}, s{sT0}, s{sT1}")
    I(f"v_mul_u32_u24 v{vT0}, 3584, v{vG}")
    I(f"v_lshl_add_u32 v{vT0}, v{vM16}, 7, v{vT0}")
    I(f"v_cmp_gt_u32 vcc, 14, v{vM16}")
    I(f"v_cndmask_b32 v{vT0}, v{vT2}, v{vT0}, vcc")
    I(f"v_add_u32 v{vT1}, s{sT2}, v{vG}")
    I(f"v_cmp_gt_u32 vcc, 14, v{vT1}")
    I(f"v_cndmask_b32 v{vT0}, v{vT2}, v{vT0}, vcc")
    I(f"buffer_load_dword v{vDMY}, v{vT0}, s[4:7], s{sT0} offen")


def touch2():
    I(f"s_mul_i32 s{sT2}, s{sLI}, {392*128}")
    I(f"s_mul_i32 s{sT1}, s{sW}, {49*128}")
    I(f"s_add_u32 s{sT2}, s{sT2}, s{sT1}")
    I(f"v_lshlrev_b32 v{vT1}, 7, v{vLANE}")
    I(f"v_mov_b32 v{vT2}, {OOB}")
    I(f"v_cmp_gt_u32 vcc, 49, v{vLANE}")
    I(f"v_cndmask_b32 v{vT1}, v{vT2}, v{vT1}, vcc")
    I(f"buffer_load_dword v247, v{vT1}, {srd(sWD)}, s{sT2} offen")


sNQ, sMTB, sCSS, sMTC = 76, 77, 78, 79
vT8, vCSS, vHSA, vSSA = 210, 214, 215, 199 + 0


def addr_setup():
    I(f"s_lshl_b32 s{sGATH}, s{sJ}, 16")
    I(f"s_add_u32 s{sGATH}, s{sGATH}, {WS_KVP}")
    I(f"s_lshl_b32 s{sKVS}, s{sG}, 12")
    I(f"s_add_u32 s{sKVS}, s{sKVS}, s{sGATH}")
    I(f"s_lshl_b32 s{sOS}, s{sA}, 4")
    I(f"s_add_u32 s{sOS}, s{sOS}, s{sJ}")
    I(f"s_lshl_b32 s{sOS}, s{sOS}, 10")
    I(f"s_add_u32 s{sOS}, s{sOS}, {WS_O}")
    I(f"s_lshl_b32 s{sCSS}, s{sJC}, 4")
    I(f"s_add_u32 s{sCSS}, s{sCSS}, s{sG}")
    I(f"s_lshl_b32 s{sCSS}, s{sCSS}, 10")
    I(f"s_add_u32 s{sCSS}, s{sCSS}, {WS_CS}")
    I(f"s_and_b32 s{sNQ}, s{sJB}, 3")
    I(f"s_lshr_b32 s{sMTB}, s{sJB}, 2")
    I(f"s_lshl_b32 s{sT0}, s{sGB}, 2")
    I(f"s_add_u32 s{sMTB}, s{sMTB}, s{sT0}")
    I(f"s_mul_i32 s{sHS}, s{sMTB}, 28")
    I(f"s_lshl_b32 s{sT1}, s{sNQ}, 3")
    I(f"s_add_u32 s{sHS}, s{sHS}, s{sT1}")
    I(f"s_lshl_b32 s{sHS}, s{sHS}, 10")
    I(f"s_add_u32 s{sHS}, s{sHS}, {WS_H}")
    I(f"s_lshl_b32 s{sSS}, s{sMTB}, 2")
    I(f"s_add_u32 s{sSS}, s{sSS}, s{sNQ}")
    I(f"s_lshl_b32 s{sSS}, s{sSS}, 8")
    I(f"s_add_u32 s{sSS}, s{sSS}, {WS_ST}")
    I(f"s_lshl_b32 s{sMTC}, s{sG}, 2")
    I(f"s_add_u32 s{sMTC}, s{sMTC}, s{sW3}")
    I(f"s_mul_i32 s{sHHS}, s{sMTC}, {112*1024}")
    I(f"s_lshl_b32 s{sT0}, s{sJC}, 13")
    I(f"s_add_u32 s{sHHS}, s{sHHS}, s{sT0}")
    I(f"s_lshl_b32 s{sT0}, s{sWH}, 11")
    I(f"s_add_u32 s{sHHS}, s{sHHS}, s{sT0}")
    I(f"s_add_u32 s{sHHS}, s{sHHS}, {WS_HH}")
    I(f"s_cmp_ge_u32 s{sJC}, 14")
    I(f"s_cselect_b32 s{sT0}, {OOB}, 0")
    I(f"s_add_u32 s{sHHS}, s{sHHS}, s{sT0}")
    I(f"s_lshr_b32 s{sT0}, s{sW}, 1")
    I(f"s_lshl_b32 s{sT0}, s{sT0}, 10")
    I(f"s_and_b32 s{sT1}, s{sW}, 1")
    I(f"s_lshl_b32 s{sT1}, s{sT1}, 3")
    I(f"s_add_u32 s{sT0}, s{sT0}, s{sT1}")
    I(f"v_add_u32 v{vT8}, s{sT0}, v{vL16}")
    I(f"s_cmp_ge_u32 s{sW}, 4")
    I(f"s_cselect_b32 s{sT0}, {OOB}, 0")
    I(f"v_lshlrev_b32 v{vCSS}, 2, v0")
    I(f"v_add_u32 v{vCSS}, s{sT0}, v{vCSS}")
    I(f"s_lshl_b32 s{sT1}, s{sW}, 2")
    I(f"v_and_b32 v{vT0}, 3, v{vLANE}")
    I(f"v_add_u32 v{vT0}, s{sT1}, v{vT0}")
    I(f"v_lshrrev_b32 v{vT1}, 2, v{vLANE}")
    I(f"v_lshlrev_b32 v{vHSA}, 9, v{vT1}")
    I(f"v_lshl_add_u32 v{vHSA}, v{vT0}, 4, v{vHSA}")
    I(f"s_cmp_eq_u32 s{sNQ}, 3")
    I(f"s_cselect_b32 s{sT1}, 8, 16")
    I(f"v_cmp_gt_u32 vcc, s{sT1}, v{vT1}")
    I(f"v_mov_b32 v{vT1}, {OOB}")
    I(f"v_cndmask_b32 v{vHSA}, v{vT1}, v{vHSA}, vcc")


def stats_addr(dst, t0, t1):
    I(f"s_lshl_b32 s{sBG}, s{sW}, 5")
    I(f"v_lshlrev_b32 v{t0}, 3, v{vLANE}")
    I(f"v_add_u32 v{t0}, s{sBG}, v{t0}")
    I(f"v_mov_b32 v{t1}, {OOB}")
    I(f"v_cmp_gt_u32 vcc, 4, v{vLANE}")
    I(f"v_cndmask_b32 v{dst}, v{t1}, v{t0}, vcc")


def sentinels0():
    lab = g.newlabel("L_init")
    I(f"s_lshl_b32 s{sT0}, s2, 3")
    I(f"s_add_u32 s{sT0}, s{sT0}, s{sW}")
    I(f"s_cmp_lg_u32 s{sT0}, 7")
    I(f"s_cbranch_scc1 {lab}")
    g.cond_begin()
    I(f"v_lshlrev_b32 v{vT0}, 8, v{vLANE}")
    I(f"v_mov_b32 v{vT1}, 0")
    I(f"buffer_store_dword v{vT1}, v{vT0}, {srd(sWS)}, 0 offen sc1")
    g.cond_end()
    g.label(lab)
    SN = 216
    for i in range(4):
        I(f"v_mov_b32 v{SN+i}, -1")
    I(f"buffer_store_dwordx2 {vr(SN,2)}, v{vT8}, {srd(sWS)}, s{sKVS} offen sc1")
    I(f"buffer_store_dwordx4 {vr(SN,4)}, v{vL16}, {srd(sWS)}, s{sOS} offen sc1")


def sentinels():
    SN = 216
    I(f"buffer_store_dword v{SN}, v{vCSS}, {srd(sWS)}, s{sCSS} offen sc1")
    I(f"buffer_store_dwordx4 {vr(SN,4)}, v{vHSA}, {srd(sWS)}, s{sHS} offen sc1")
    stats_addr(SN + 4, SN + 4, SN + 5)
    return I(f"buffer_store_dwordx2 {vr(SN,2)}, v{SN+4}, {srd(sWS)}, s{sSS} offen sc1")


def sent_hh(k):
    SN = 216
    I(f"s_add_u32 s{sBG}, s{sHHS}, {(k>>1)*4096 + (k&1)*1024}")
    return I(f"buffer_store_dwordx4 {vr(SN,4)}, v{vL16}, {srd(sWS)}, s{sBG} offen sc1")


def init_signal():
    lab = g.newlabel("L_is")
    I(f"s_cmp_lg_u32 s{sW}, 5")
    I(f"s_cbranch_scc1 {lab}")
    g.cond_begin()
    I("s_mov_b64 exec, 1")
    I(f"s_and_b32 s{sT0}, s2, 15")
    I(f"s_lshl_b32 s{sT0}, s{sT0}, 4")
    I(f"v_mov_b32 v{vCNT}, s{sT0}")
    I(f"buffer_atomic_add v{vONE}, v{vCNT}, {srd(sDBG)}, 0 offen sc1")
    I("s_mov_b64 exec, -1")
    g.cond_end()
    g.label(lab)


def init_check():
    lp, ld = g.newlabel("L_ic"), g.newlabel("L_icd")
    I(f"v_lshlrev_b32 v{vCNT}, 4, v{vM16}")
    I(f"s_mov_b32 s{sT5}, 0")
    g.label(lp)
    I("s_sleep 16")
    t = I(f"buffer_load_dword v{vINIT}, v{vCNT}, {srd(sDBG)}, 0 offen sc1")
    g.wait(t)
    I(f"v_cmp_gt_u32 vcc, 16, v{vINIT}")
    I(f"s_add_u32 s{sT5}, s{sT5}, 1")
    I(f"s_cmp_ge_u32 s{sT5}, {POLL_MAX}")
    I(f"s_cbranch_scc1 {ld}")
    I(f"s_cmp_lg_u64 vcc, 0")
    I(f"s_cbranch_scc1 {lp}")
    g.label(ld)


def phaseA():
    g.comment("==== phase A ====")
    if STAMPS:
        I("s_memrealtime s[96:97]")
        I("s_memtime s[94:95]")
        I("s_waitcnt lgkmcnt(0)")
        I("v_mov_b32 v250, s96")
        I("v_mov_b32 v251, s94")
    tx = {}
    for seg in range(7):
        for o in range(2):
            I(f"s_add_u32 m0, s{sLW}, {(o*7+seg)*1024 - seg*128}")
            tx[seg] = I(f"buffer_load_dwordx4 v{vXA1 if o else vXA0}, {srd(sX)}, s{sC if o else sB} offen offset:{seg*128} lds")
    I("s_setprio 2")
    if "cp0" not in EXP and "nocp" not in EXP:
        I(f"global_load_dword v{vDMY}, v{vINIT}, s[4:5]")
    for i in range(3):
        dma2(vWA, sWQKV, sD, 896 + i * 8 * 16 * 2688, sCL, LDS_WK + i * 8192)
    prologue2()
    if STAMPS:
        for nm, r in (("rt0", 250), ("start", 251)):
            g.cond_begin()
            I(f"buffer_store_dword v{r}, off, {srd(sWS)}, s{sSTO} offset:{4*nstamp[0]}")
            g.cond_end()
            nstamp[0] += 1
            stamp_names.append(nm)
    I(f"s_mov_b32 s{sLOG}, {f32(LOG2E)}")
    bgl = []
    bt = {}

    def bg_add(name, fn):
        bgl.append((name, fn))

    def bgq(n=1):
        for _ in range(n):
            if bgl:
                name, fn = bgl.pop(0)
                bt[name] = fn()

    def wk3():
        I(f"s_cmp_ge_u32 s{sW}, 4")
        I(f"s_cselect_b32 s{sT0}, {OOB}, 0")
        I(f"s_add_u32 s{sT0}, s{sT0}, s{sD}")
        dma2(vWA, sWQKV, sT0, 896 + 3 * 8 * 16 * 2688, sCL, LDS_WK + 3 * 8192)
        I(f"v_lshlrev_b32 v{vT0}, 4, v0")
        I(f"v_mov_b32 v{vT1}, {OOB}")
        I(f"v_cmp_gt_u32 vcc, 98, v0")
        I(f"v_cndmask_b32 v{vT0}, v{vT1}, v{vT0}, vcc")
        I(f"s_min_u32 s{sT0}, s{sCL}, 2048")
        I(f"s_add_u32 m0, s{sT0}, {LDS_WPL}")
        I(f"s_mul_i32 s{sT0}, s{sJ}, 1568")
        return I(f"buffer_load_dwordx4 v{vT0}, {srd(sWPHI)}, s{sT0} offen lds")
    bg_add("wk3", wk3)
    addr_setup()
    I(f"s_cmp_ge_u32 s{sW}, 4")
    I(f"s_cselect_b32 s{sE}, {(24-4)*16*2688}, {1792 + 24*16*2688}" if False else f"s_mov_b32 s{sE}, {1792 + 24*16*2688}")
    I(f"s_cmov_b32 s{sE}, {20*16*2688}")

    I(f"s_cselect_b32 s{sKC}, 10240, 0")
    I(f"s_max_u32 s{sKC}, s{sKC}, 3072")
    I(f"s_add_u32 s{sKC}, s{sKC}, s{sLW}")
    I(f"s_add_u32 s{sE}, s{sE}, s{sD}")

    def rawW(i):
        if i == 3:
            I(f"s_mov_b32 m0, s{sKC}")
            I("s_nop 0")
            return I(f"buffer_load_dwordx4 v{vWA}, {srd(sWQKV)}, s{sE} offen lds")
        off = 1792 + i * 8 * 16 * 2688 if i < 3 else (i - 4) * 8 * 16 * 2688
        return dma2(vWA, sWQKV, sD, off, sLW, i * 1024 if i < 3 else 10240 + (i - 3) * 1024)
    for i in range(4):
        bg_add(f"w{i}", lambda i=i: rawW(i))
    I(f"v_lshrrev_b32 v{vT0}, 3, v{vM16}")
    I(f"v_mul_u32_u24 v{vT0}, 7168, v{vT0}")
    I(f"v_add_u32 v{vT0}, s{sLW}, v{vT0}")
    I(f"v_and_b32 v{vT1}, 7, v{vM16}")
    I(f"v_lshl_add_u32 v{vT0}, v{vT1}, 7, v{vT0}")
    I(f"v_lshrrev_b32 v{vT1}, 1, v{vM16}")
    I(f"v_xor_b32 v{vT1}, v{vT1}, v{vG}")
    I(f"v_lshl_add_u32 v{vXR0}, v{vT1}, 4, v{vT0}")
    I(f"v_xor_b32 v{vXR1}, 64, v{vXR0}")
    I(f"v_bfe_u32 v{vT0}, v{vLANE}, 2, 2")
    I(f"v_lshl_add_u32 v{vT0}, v{vG}, 3, v{vT0}")
    I(f"v_lshlrev_b32 v{vT0}, 6, v{vT0}")
    I(f"v_and_b32 v{vT1}, 3, v{vLANE}")
    I(f"s_and_b32 s{sT1}, s{sJ}, 1")
    I(f"v_add_u32 v{vT1}, s{sT1}, v{vT1}")
    I(f"v_and_b32 v{vT2}, 1, v{vG}")
    I(f"v_lshlrev_b32 v{vT2}, 2, v{vT2}")
    I(f"v_xor_b32 v{vT1}, v{vT1}, v{vT2}")
    I(f"v_lshl_add_u32 v{vTR}, v{vT1}, 3, v{vT0}")
    I(f"v_lshrrev_b32 v{vT0}, 2, v{vM16}")
    I(f"v_and_b32 v{vT1}, 3, v{vM16}")
    I(f"v_cmp_eq_u32 vcc, v{vT0}, v{vG}")
    I(f"v_cndmask_b32 v{vT1}, 7, v{vT1}, vcc")
    I(f"v_mov_b32 v{vT3}, 0x3f80")
    I(f"v_mov_b32 v{vT4}, 0x3f800000")
    for i in range(2):
        I(f"v_cmp_eq_u32 vcc, {2*i}, v{vT1}")
        I(f"v_cndmask_b32 v{vT2}, 0, v{vT3}, vcc")
        I(f"v_cmp_eq_u32 vcc, {2*i+1}, v{vT1}")
        I(f"v_cndmask_b32 v{SEL+i}, v{vT2}, v{vT4}, vcc")
        I(f"v_mov_b32 v{SEL+6+i}, v{SEL+i}")
    for i in (2, 3, 4, 5):
        I(f"v_mov_b32 v{SEL+i}, 0")
    S1, S2 = ACC, ACC + 4
    for i in range(8):
        I(f"v_mov_b32 v{ACC+i}, 0")
    I(f"v_mov_b32 v{vT5}, 0x3f803f80")
    I(f"v_lshlrev_b32 v{vT0}, 2, v{vLANE}")
    I(f"v_add_u32 v{vT0}, {LDS_FLG}, v{vT0}")
    I(f"ds_write_b32 v{vT0}, v{ACC}")
    tw = {}
    if "tlb" in EXP:
        STR_ = int(os.environ.get("TLBS", "16"))
        I(f"v_lshlrev_b32 v{vT0}, {STR_}, v{vLANE}")
        lend = g.newlabel("L_tl")
        tb = [(sWO, 0), (sWG, 0), (sWU, 0), (sWD, 0), (sOUT, 0), (sWS, 0), (sWS, 0x400000), (sWS, 0x800000)]
        for w_, (r, off) in enumerate(tb):
            l2 = g.newlabel("L_tl")
            if w_ < 7:
                I(f"s_cmp_lg_u32 s{sW}, {w_}")
                I(f"s_cbranch_scc1 {l2}")
                g.cond_begin()
            I(f"s_mov_b32 s{sT0}, {off}")
            I(f"buffer_load_dword v{vDMY}, v{vT0}, {srd(r)}, s{sT0} offen")
            if w_ < 7:
                g.cond_end()
                I(f"s_branch {lend}")
                g.label(l2)
        g.label(lend)
    sentinels0()
    bgq(1)
    for seg in range(7):
        g.wait(tx[seg])
        I(f"ds_read_b128 {vr(XF+8*seg,4)}, v{vXR0} offset:{seg*1024}")
        t = I(f"ds_read_b128 {vr(XF+8*seg+4,4)}, v{vXR1} offset:{seg*1024}")
        if seg in (1, 2, 3, 4):
            bgq()
        g.wait(t)
        for k in range(8):
            r = XF + 8 * seg + k
            I(f"v_dot2_f32_bf16 v{S1+k%4}, v{r}, v{vT5}, v{S1+k%4}")
            I(f"v_dot2_f32_bf16 v{S2+k%4}, v{r}, v{r}, v{S2+k%4}")
    I("s_setprio 1")
    stamp("x stats")
    I(f"v_add_f32 v{S1}, v{S1}, v{S1+1}")
    I(f"v_add_f32 v{S1+2}, v{S1+2}, v{S1+3}")
    I(f"v_add_f32 v{S2}, v{S2}, v{S2+1}")
    I(f"v_add_f32 v{S2+2}, v{S2+2}, v{S2+3}")
    I(f"v_add_f32 v{S1}, v{S1}, v{S1+2}")
    I(f"v_add_f32 v{S2}, v{S2}, v{S2+2}")
    for lv in (16, 32):
        I(f"v_mov_b32 v{S1+1}, v{S1}")
        I(f"v_mov_b32 v{S2+1}, v{S2}")
        I(f"v_permlane{lv}_swap_b32 v{S1}, v{S1+1}")
        I(f"v_permlane{lv}_swap_b32 v{S2}, v{S2+1}")
        I(f"v_add_f32 v{S1}, v{S1}, v{S1+1}")
        I(f"v_add_f32 v{S2}, v{S2}, v{S2+1}")
    I(f"v_mul_f32 v{S1}, {f32(1/448)}, v{S1}")
    I(f"v_mul_f32 v{S2}, {f32(1/448)}, v{S2}")
    I(f"v_fma_f32 v{S2}, -v{S1}, v{S1}, v{S2}")
    I(f"v_max_f32 v{S2}, 0, v{S2}")
    I(f"v_add_f32 v{S2}, {f32(1e-5)}, v{S2}")
    RS, NB = ACCV, ACCV + 2
    I(f"v_rsq_f32 v{RS}, v{S2}")
    I(f"v_mul_f32 v{NB}, v{S1}, v{RS}")
    I(f"v_sub_f32 v{NB}, 0, v{NB}")
    I(f"v_mov_b32 v{RS+1}, v{RS}")
    I(f"v_mov_b32 v{NB+1}, v{NB}")
    TP = WF
    CSR = 248
    tcs = tinit = None
    for k in range(0, 56, 8):
        for u in range(8):
            I(f"v_lshlrev_b32 v{TP+2*u}, 16, v{XF+k+u}")
            I(f"v_and_b32 v{TP+2*u+1}, 0xffff0000, v{XF+k+u}")
        for u in range(8):
            I(f"v_pk_fma_f32 {vr(TP+2*u,2)}, {vr(TP+2*u,2)}, {vr(RS,2)}, {vr(NB,2)}")
        for u in range(8):
            I(f"v_cvt_pk_bf16_f32 v{XF+k+u}, v{TP+2*u}, v{TP+2*u+1}")
    I("s_setprio 0")
    stamp("normalized")
    I(f"v_mul_u32_u24 v{vT0}, 224, v{vG}")
    I(f"v_add_u32 v{vT0}, {LDS_WPL}, v{vT0}")
    I(f"v_lshl_add_u32 v{TMP}, v{vM16}, 1, v{vT0}")
    I(f"v_lshrrev_b32 v{vT2}, 2, v{vM16}")
    I(f"v_sub_u32 v{vT2}, v{vM16}, v{vT2}")
    I(f"v_lshl_add_u32 v{vT2}, v{vT2}, 1, v{vT0}")
    I(f"v_add_u32 v{TMP+1}, 32, v{vT2}")
    I(f"v_mov_b32 v{vT1}, {LDS_WPL + 1600}")
    I(f"v_and_b32 v{vT2}, 3, v{vM16}")
    I(f"v_cmp_eq_u32 vcc, 3, v{vT2}")
    I(f"v_cndmask_b32 v{TMP+1}, v{TMP+1}, v{vT1}, vcc")
    I(f"v_cmp_eq_u32 vcc, 3, v{vG}")
    I(f"v_cndmask_b32 v{TMP+2}, v{TMP}, v{vT1}, vcc")
    I(f"v_cndmask_b32 v{TMP+3}, v{TMP+1}, v{vT1}, vcc")
    I(f"v_add_u32 v{vTRb}, {LDS_WK}, v{vTR}")
    I(f"v_xor_b32 v{vTRc}, 32, v{vTRb}")
    def cs_loads():
        I(f"s_and_b32 s{sT0}, s{sW}, 1")
        I(f"s_cmp_eq_u32 s{sT0}, 1")
        I(f"s_cselect_b32 s4, s{sWU}, s{sWG}")
        I(f"s_cselect_b32 s5, s{sWU+1}, s{sWG+1}")
        I(f"s_mov_b32 s6, 1605632")
        I(f"s_mov_b32 s7, 0x20000")
        I(f"s_lshl_b32 s{sT0}, s{sG}, 2")
        I(f"s_lshr_b32 s{sT1}, s{sW}, 1")
        I(f"s_add_u32 s{sT0}, s{sT0}, s{sT1}")
        I(f"s_mul_i32 s{sT0}, s{sT0}, {7*3584}")
        I(f"s_lshl_b32 s{sT1}, s{sJC}, 8")
        I(f"s_add_u32 s{sT0}, s{sT0}, s{sT1}")
        I(f"s_cmp_ge_u32 s{sJC}, 14")
        I(f"s_cselect_b32 s{sT1}, {OOB}, 0")
        I(f"v_lshlrev_b32 v{vXA0}, 2, v{vLANE}")
        I(f"v_add_u32 v{vXA0}, s{sT1}, v{vXA0}")
        for r in range(7):
            if r:
                I(f"s_add_u32 s{sT0}, s{sT0}, 3584")
            tcs_ = I(f"buffer_load_dword v{CSR+r}, v{vXA0}, s[4:7], s{sT0} offen")
        return tcs_

    def init_load():
        I(f"v_mov_b32 v{vCNT}, 0")
        return I(f"buffer_load_dword v{vINIT}, v{vCNT}, {srd(sDBG)}, 0 offen sc1")
    bg_add("sent", sentinels)
    bg_add("cs", cs_loads)
    for i in (4, 5, 6):
        bg_add(f"w{i}", lambda i=i: rawW(i))
    bgq(int(os.environ.get("PRE1", "2")))
    g.wait(bt["wk3"])
    g.wait_all(vm=False)
    I("s_barrier")
    init_signal()

    def rdk(c, dst):
        I(f"ds_read_b64_tr_b16 {vr(dst,2)}, v{vTRb} offset:{c*2048}")
        I(f"ds_read_b64_tr_b16 {vr(dst+2,2)}, v{vTRb} offset:{c*2048+256}")
        I(f"ds_read_b64_tr_b16 {vr(dst+4,2)}, v{vTRc} offset:{c*2048}")
        return I(f"ds_read_b64_tr_b16 {vr(dst+6,2)}, v{vTRc} offset:{c*2048+256}")

    tphi = None
    for u in range(2):
        for j in range(8):
            d0 = j if j < 4 else 16 + j - 4
            va = TMP + u + (2 if j >= 4 else 0)
            dst = (WPH2 if j & 1 else WPHI) + 4 * u + j // 2
            tphi = I(f"ds_read_u16 v{dst}, v{va} offset:{d0*56}")
    I(f"v_lshrrev_b32 v{vWOA}, 3, v{vLANE}")
    I(f"v_mul_u32_u24 v{vWOA}, 896, v{vWOA}")
    I(f"v_and_b32 v{vT1}, 7, v{vLANE}")
    I(f"v_lshlrev_b32 v{vT2}, 1, v{vG}")
    I(f"v_xor_b32 v{vT1}, v{vT1}, v{vT2}")
    I(f"v_lshl_add_u32 v{vWOA}, v{vT1}, 4, v{vWOA}")
    I(f"s_lshl_b32 s{sWOB}, s{sNQ}, 1")
    I(f"s_add_u32 s{sWOB}, s{sWOB}, s{sWH}")
    I(f"s_cmp_eq_u32 s{sWOB}, 7")
    I(f"s_cselect_b32 s{sT1}, {OOB}, 0")
    I(f"s_lshl_b32 s{sWOB}, s{sWOB}, 7")
    I(f"s_add_u32 s{sWOB}, s{sWOB}, s{sT1}")
    I(f"s_mul_i32 s{sT1}, s{sW3}, {112*896}")
    I(f"s_add_u32 s{sWOB}, s{sWOB}, s{sT1}")
    two = {}

    def wo_load(i):
        two[i] = dma2(vWOA, sWO, sWOB, i * 8 * 896, sLW, i * 1024, stmp=sBG)
    for i in range(4, 10):
        bg_add(f"wo{i}", lambda i=i: wo_load(i))
    KH = eval(os.environ.get('KH', '(2, 6, 10)'))
    chain16(ACC, rdk, hook=lambda c: bgq() if c in KH else None)
    for i in range(8):
        I(f"v_lshl_or_b32 v{WPHI+i}, v{WPH2+i}, 16, v{WPHI+i}")
    stamp("k chain")
    I(f"v_lshrrev_b32 v{vT0}, 1, v{vG}")
    I(f"v_mul_u32_u24 v{vT0}, {UNIT-1024}, v{vT0}")
    I(f"v_add_u32 v{vTRb}, v{vT0}, v{vTR}")
    I(f"v_xor_b32 v{vTRc}, 32, v{vTRb}")
    I(f"v_add_u32 v{vXR0}, 57344, v{vTRb}")
    I(f"v_add_u32 v{vXR1}, 57344, v{vTRc}")
    g.wait(bt['w3'])
    I("s_barrier")
    stamp("wv ready")

    def rdw(isq):
        def rd(c, dst):
            n0 = 2 * c
            if not isq:
                unit, off = n0 % 8, (n0 // 8) * 1024
            elif n0 < 24:
                unit, off = n0 % 8, 10240 + (1 + n0 // 8) * 1024
            else:
                unit, off = 4 + n0 - 24, 10240
            a0, a1 = (vTRb, vTRc) if unit < 4 else (vXR0, vXR1)
            off += (unit % 4) * UNIT
            I(f"ds_read_b64_tr_b16 {vr(dst,2)}, v{a0} offset:{off}")
            I(f"ds_read_b64_tr_b16 {vr(dst+2,2)}, v{a0} offset:{off+256}")
            I(f"ds_read_b64_tr_b16 {vr(dst+4,2)}, v{a1} offset:{off}")
            return I(f"ds_read_b64_tr_b16 {vr(dst+6,2)}, v{a1} offset:{off+256}")
        return rd

    g.begin()
    chain16(ACCV, rdw(False), swap=True, hook=lambda c: bgq() if c in eval(os.environ.get('VH', '(1,3,5,7,9,11,13)')) else None)
    main = g.end()
    g.begin()
    featmap(ACC, PH)
    for s_ in range(2):
        for u in range(2):
            I(f"v_mfma_f32_16x16x32_bf16 {vr(TMP+8*s_+4*u,4)}, {vr(PH+4*s_,4)}, {vr(SEL+4*u,4)}, 0")
    side = g.end()
    g.put(interleave(main, side, every=1, per=4))
    PT = PH
    for k in range(8):
        I(f"v_cvt_pk_bf16_f32 v{PT+k}, v{TMP+2*k}, v{TMP+2*k+1}")
    VF = ACC
    I(f"v_cmp_le_u32 vcc, 12, v{vM16}")
    for k in range(4):
        I(f"v_cvt_pk_bf16_f32 v{VF+k}, v{ACCV+2*k}, v{ACCV+2*k+1}")
    I(f"v_cndmask_b32 v{VF+2}, v{VF+2}, v{vT5}, vcc")
    I(f"v_cndmask_b32 v{VF+3}, v{VF+3}, v{vT5}, vcc")
    I(f"s_lshr_b32 s{sT0}, s{sW}, 1")
    I(f"s_lshl_b32 s{sT0}, s{sT0}, 10")
    I(f"s_and_b32 s{sT1}, s{sW}, 1")
    I(f"s_lshl_b32 s{sT1}, s{sT1}, 3")
    I(f"s_add_u32 s{sT0}, s{sT0}, s{sT1}")
    I(f"s_add_u32 s{sT0}, s{sT0}, {LDS_WK}")
    I(f"v_add_u32 v{vT0}, s{sT0}, v{vL16}")
    for k in range(4):
        I(f"ds_write_b64 v{vT0}, {vr(PT+2*k,2)} offset:{k*4096}")
    for k in range(2):
        I(f"ds_write_b64 v{vT0}, {vr(VF+2*k,2)} offset:{(4+k)*4096}")
    g.wait(bt['cs'])
    I(f"v_mov_b32 v{ACCV}, 0\nv_mov_b32 v{ACCV+1}, 0")
    for r in range(7):
        I(f"v_dot2_f32_bf16 v{ACCV}, v{CSR+r}, v{vT3}, v{ACCV}")
        I(f"v_dot2_f32_bf16 v{ACCV+1}, v{CSR+r}, v{vT4}, v{ACCV+1}")
    I(f"v_lshlrev_b32 v{vT1}, 3, v0")
    I(f"v_add_u32 v{vT1}, {LDS_KVF}, v{vT1}")
    I(f"ds_write_b64 v{vT1}, {vr(ACCV,2)}")
    I(f"s_lshl_b32 s{sT0}, s{sWH}, 1")
    I(f"s_and_b32 s{sT1}, s{sW}, 1")
    I(f"s_add_u32 s{sT0}, s{sT0}, s{sT1}")
    I(f"s_lshl_b32 s{sT0}, s{sT0}, 12")
    I(f"s_add_u32 s{sT0}, s{sT0}, {LDS_WK}")
    I(f"v_add_u32 v{vT0}, s{sT0}, v{vL16}")
    I(f"s_bfe_u32 s{sT0}, s{sW}, 0x10001")
    I(f"s_lshl_b32 s{sT0}, s{sT0}, 12")
    I(f"s_add_u32 s{sT0}, s{sT0}, {LDS_WK + 4*4096}")
    I(f"v_add_u32 v{vT1}, s{sT0}, v{vL16}")
    g.wait(bt['w6'])
    g.wait_all(vm=False)
    I("s_barrier")
    R = WF
    tk = {}
    for p in range(4):
        I(f"ds_read_b128 {vr(R+8*p,4)}, v{vT0} offset:{p*1024}")
        tk[p] = I(f"ds_read_b128 {vr(R+8*p+4,4)}, v{vT1} offset:{p*1024}")
    I(f"v_lshlrev_b32 v{vXA0}, 2, v0")
    I(f"v_and_b32 v{vXA0}, 1023, v{vXA0}")
    I(f"v_add_u32 v{vXA0}, {LDS_KVF}, v{vXA0}")
    I(f"ds_read2st64_b32 {vr(ACCV,2)}, v{vXA0} offset0:0 offset1:4")
    tq = I(f"ds_read2st64_b32 {vr(ACCV+2,2)}, v{vXA0} offset0:8 offset1:12")
    for p in range(4):
        g.wait(tk[p])
        I(f"v_mfma_f32_16x16x32_bf16 {vr(ACC,4)}, {vr(R+8*p,4)}, {vr(R+8*p+4,4)}, {'0' if p == 0 else vr(ACC,4)}")
    g.wait(tq)
    I(f"v_add_f32 v{ACCV}, v{ACCV}, v{ACCV+1}")
    I(f"v_add_f32 v{ACCV+2}, v{ACCV+2}, v{ACCV+3}")
    I(f"v_add_f32 v{ACCV}, v{ACCV}, v{ACCV+2}")
    I(f"v_cvt_pk_bf16_f32 v{ACC+4}, v{ACC}, v{ACC+1}")
    I(f"v_cvt_pk_bf16_f32 v{ACC+5}, v{ACC+2}, v{ACC+3}")
    I(f"buffer_store_dwordx2 {vr(ACC+4,2)}, v{vT8}, {srd(sWS)}, s{sKVS} offen sc1")
    I(f"buffer_store_dword v{ACCV}, v{vCSS}, {srd(sWS)}, s{sCSS} offen sc1")
    stamp("kv stored")
    I(f"v_lshlrev_b32 v{vCNT}, 4, v{vM16}")
    tini = I(f"buffer_load_dword v{vINIT}, v{vCNT}, {srd(sDBG)}, 0 offen sc1")
    for i in range(4):
        bg_add(f"wo{i}", lambda i=i: wo_load(i))
    chain16(ACC, rdw(True), hook=lambda c: bgq() if c % 2 == 1 else None)
    bgq(99)
    c_bg(0, 0, 0, 56, 0, "qdone")
    c_bg(1, 0, 0, 24, 57344, "qdone")
    I("s_barrier")
    for i in range(10, 14):
        wo_load(i)
    featmap(ACC, PH)
    GR, R, AO, OS = 40, 96, 176, 184
    WOF = 112
    vB1, vB2, vB3 = 188, 189, 190
    vK0, vK1, vK2 = 191, 192, 193
    lr, lb = g.newlabel("L_ir"), g.newlabel("L_ib")
    g.wait(tini)
    I(f"v_cmp_gt_u32 vcc, 16, v{vINIT}")
    I(f"s_cmp_lg_u64 vcc, 0")
    I(f"s_cbranch_scc1 {lr}")
    g.label(lb)
    g.begin()
    g.label(lr)
    init_check()
    I(f"s_branch {lb}")
    TAILS.append(g.end())
    stamp("q done")

    I(f"s_lshl_b32 s{sT0}, s{sWH}, 15")
    I(f"s_lshl_b32 s{sT1}, s{sW3}, 10")
    I(f"s_add_u32 s{sGATH}, s{sGATH}, s{sT0}")
    I(f"s_add_u32 s{sGATH}, s{sGATH}, s{sT1}")

    def gat_issue():
        tl = []
        I(f"s_mov_b32 s{sT0}, s{sGATH}")
        for rb in range(8):
            if rb:
                I(f"s_add_u32 s{sT0}, s{sT0}, 4096")
            tl.append(I(f"buffer_load_dwordx4 {vr(GR+4*rb,4)}, v{vL16}, {srd(sWS)}, s{sT0} offen sc1"))
        return tl

    def gat_body(tl):
        for i in range(8):
            I(f"v_mov_b32 v{R+i}, 0")
        for rb in range(8):
            g.wait(tl[rb])
            for i in range(4):
                I(f"v_dot2_f32_bf16 v{R+2*i}, v{GR+4*rb+i}, v{vT3}, v{R+2*i}")
                I(f"v_dot2_f32_bf16 v{R+2*i+1}, v{GR+4*rb+i}, v{vT4}, v{R+2*i+1}")

    def wo_bounce():
        c_setup()
        d_setup()
        I(f"v_lshrrev_b32 v{vK0}, 2, v{vM16}")
        I(f"v_sub_u32 v{vK0}, v{vM16}, v{vK0}")
        I(f"v_and_b32 v{vT1}, 3, v{vM16}")
        I(f"v_cmp_eq_u32 vcc, 3, v{vT1}")
        I(f"v_cndmask_b32 v{vK0}, v{vK0}, 12, vcc")
        I(f"v_lshl_add_u32 v{vK0}, v{vG}, 4, v{vK0}")
        I(f"v_lshlrev_b32 v{vK0}, 4, v{vK0}")
        I(f"v_add_u32 v{vK0}, {LDS_KV2}, v{vK0}")
        I(f"v_add_u32 v{vK1}, {LDS_KV2}, v{vL16}")
        I(f"v_add_u32 v{vK2}, s{sCL}, v{vK1}")
        I(f"v_bfe_u32 v{vT1}, v{vLANE}, 2, 2")
        I(f"v_lshl_add_u32 v{vB1}, v{vG}, 2, v{vT1}")
        I(f"v_min_u32 v{vT1}, 2, v{vT1}")
        I(f"v_mad_u32_u24 v{vB2}, v{vG}, 3, v{vT1}")
        I(f"v_add_u32 v{vB2}, 16, v{vB2}")
        I(f"v_and_b32 v{vT1}, 3, v{vLANE}")
        I(f"v_lshlrev_b32 v{vT1}, 3, v{vT1}")
        I(f"v_add_u32 v{vT1}, s{sLW}, v{vT1}")
        AD = 72
        for rd_, vb in enumerate((vB1, vB2)):
            I(f"v_bfe_u32 v{vT2}, v{vb}, 1, 2")
            I(f"v_lshlrev_b32 v{vT2}, 5, v{vT2}")
            I(f"v_lshl_add_u32 v{vT2}, v{vb}, 7, v{vT2}")
            I(f"v_add_u32 v{AD+4*rd_}, v{vT2}, v{vT1}")
            for x in range(1, 4):
                I(f"v_xor_b32 v{AD+4*rd_+x}, {32*x}, v{AD+4*rd_}")
        g.wait(two[13])
        for hh in range(4):
            for nt in range(4):
                d = WOF + (hh * 4 + nt) * 4
                x = nt ^ (2 * (hh & 1))
                I(f"ds_read_b64_tr_b16 {vr(d,2)}, v{AD+x} offset:{hh*3584}")
                I(f"ds_read_b64_tr_b16 {vr(d+2,2)}, v{AD+4+x} offset:{hh*3584}")
    spec_load(gat_issue, [GR + 2 * k for k in range(16)], R + 12, gat_body, wo_bounce)
    g.mark("gdone")
    for i in range(4):
        I(f"v_cvt_pk_bf16_f32 v{R+8+i}, v{R+2*i}, v{R+2*i+1}")
    I(f"ds_write_b128 v{vK2}, {vr(R+8,4)}")
    g.wait_all(vm=False)
    stamp("gathered")
    I("s_barrier")
    g.mark("qdone")
    g.mark("burst:" + os.environ.get("BB0", "2"))
    KF = 40
    tk = {}
    for hf_ in range(2):
        for s_ in range(2):
            I(f"ds_read_b128 {vr(KF+16*hf_+8*s_,4)}, v{vK1} offset:{hf_*4096+s_*2048}")
            tk[hf_, s_] = I(f"ds_read_b128 {vr(KF+16*hf_+8*s_+4,4)}, v{vK0} offset:{hf_*4096+s_*2048+1024}")
    for hf_ in range(2):
        for s_ in range(2):
            g.wait(tk[hf_, s_])
            for t in range(2):
                a = vr(AO + 4 * t, 4)
                I(f"v_mfma_f32_16x16x32_bf16 {a}, {vr(KF+16*hf_+8*s_+4*t,4)}, {vr(PH+4*s_,4)}, {'0' if (s_ == 0 and hf_ == 0) else a}")
    I(f"v_add_f32 v{vT1}, {f32(1e-6)}, v{AO+7}")
    I(f"v_rcp_f32 v{vT1}, v{vT1}")
    for i in range(7):
        I(f"v_mul_f32 v{AO+i}, v{AO+i}, v{vT1}")
    for i in range(3):
        I(f"v_cvt_pk_bf16_f32 v{OS+i}, v{AO+2*i}, v{AO+2*i+1}")
    I(f"v_cvt_pk_bf16_f32 v{OS+3}, v{AO+6}, 0")
    I(f"buffer_store_dwordx4 {vr(OS,4)}, v{vL16}, {srd(sWS)}, s{sOS} offen sc1")
    stamp("o stored")
    if "t2b" in EXP:
        touch2()
    g.mark("on")
    return two


def woraw(i):
    return vr(216 + 4 * i, 4) if i < 8 else vr(WR + 4 * (i - 8), 4)


def phaseB(two):
    g.comment("==== phase B ====")
    OF = 216
    XR, XU, CSG = 176, 180, 188
    WOF = 112
    BACC = 72
    vB1, vB2, vB3 = 196, 197, 198
    vD1, vD2, vD3 = 199, 200, 201
    I(f"s_mul_i32 s{sT0}, s{sMTB}, {32*896}")
    I(f"s_lshl_b32 s{sT1}, s{sNQ}, 8")
    I(f"s_add_u32 s{sT0}, s{sT0}, s{sT1}")
    I(f"s_lshl_b32 s{sT1}, s{sW}, 2")
    I(f"v_and_b32 v{vT4}, 3, v{vLANE}")
    I(f"v_add_u32 v{vT4}, s{sT1}, v{vT4}")
    I(f"v_lshrrev_b32 v{vT5}, 2, v{vLANE}")
    I(f"v_add_u32 v{vT0}, s{sT1}, v{vG}")
    I(f"v_mul_u32_u24 v{vT0}, 896, v{vT0}")
    I(f"v_lshl_add_u32 v{vT0}, v{vM16}, 4, v{vT0}")
    I(f"s_cmp_ge_u32 s{sW}, 4")
    I(f"s_mov_b32 s{sT2}, 81920")
    I(f"s_cmov_b32 s{sT2}, {LDS_KVF - 4096}")
    I(f"s_add_u32 s{sT2}, s{sT2}, s{sCL}")
    g.mark("off")
    I(f"s_mov_b32 m0, s{sT2}")
    I(f"v_and_b32 v{vB3}, 3, v{vLANE}")
    txd = I(f"buffer_load_dwordx4 v{vT0}, {srd(sX)}, s{sT0} offen lds")
    g.mark("on")
    I(f"v_lshlrev_b32 v{vB3}, 8, v{vB3}")
    I(f"v_lshl_add_u32 v{vB3}, v{vT5}, 4, v{vB3}")
    I(f"v_add_u32 v{vB3}, s{sT2}, v{vB3}")
    g.mark("burst:" + os.environ.get("BB1", "3"))
    I(f"s_lshl_b32 s{sD}, s{sMTB}, 5")
    I(f"s_lshl_b32 s{sT1}, s{sW3}, 2")
    I(f"s_add_u32 s{sD}, s{sD}, s{sT1}")
    I(f"s_lshl_b32 s{sD}, s{sD}, 10")
    I(f"s_add_u32 s{sD}, s{sD}, {WS_O}")
    I(f"s_add_u32 s{sE}, s{sD}, 16384")
    I(f"s_mul_i32 s{sT0}, s{sW3}, 17408")
    I(f"s_mul_i32 s{sT1}, s{sWH}, {8*1088}")
    I(f"s_add_u32 s{sT0}, s{sT0}, s{sT1}")
    I(f"s_add_u32 s{sT0}, s{sT0}, {LDS_BSCR}")
    I(f"v_lshrrev_b32 v{vT1}, 1, v{vG}")
    I(f"v_mul_u32_u24 v{vT1}, 1088, v{vT1}")
    I(f"v_and_b32 v{vT2}, 1, v{vG}")
    I(f"v_lshl_add_u32 v{vT1}, v{vT2}, 9, v{vT1}")
    I(f"v_lshl_add_u32 v{vT1}, v{vM16}, 4, v{vT1}")
    I(f"v_add_u32 v{vB1}, s{sT0}, v{vT1}")
    I(f"v_mul_u32_u24 v{vT1}, 1088, v{vT5}")
    I(f"v_lshl_add_u32 v{vT1}, v{vT4}, 4, v{vT1}")
    I(f"v_add_u32 v{vB2}, {LDS_BSCR}, v{vT1}")
    I(f"v_cmp_gt_u32 vcc, 0x10000, v{vHSA}")
    I(f"v_cndmask_b32 v{vT3}, 0, -1, vcc")
    stats_addr(vT2, vT0, vT1)
    I(f"v_mov_b32 v{vT5}, 0x3f803f80")
    g.wait(txd)
    txr = I(f"ds_read_b128 {vr(XR,4)}, v{vB3}")
    g.wait(txr)
    for i in range(4):
        I(f"v_lshlrev_b32 v{XU+2*i}, 16, v{XR+i}")
        I(f"v_and_b32 v{XU+2*i+1}, 0xffff0000, v{XR+i}")
    g.mark("off")
    I("s_barrier")
    stamp("wo ready")

    def o_issue():
        tl = []
        for hh in range(4):
            for mt in range(2):
                tl.append(I(f"buffer_load_dwordx4 {vr(OF+(hh*2+mt)*4,4)}, v{vL16}, {srd(sWS)}, s{sE if mt else sD} offen offset:{hh*1024} sc1"))
        return tl

    def o_body(tl):
        for hh in range(4):
            for mt in range(2):
                g.wait(tl[hh * 2 + mt])
                for nt in range(4):
                    a = BACC + (mt * 4 + nt) * 4
                    I(f"v_mfma_f32_16x16x32_bf16 {vr(a,4)}, {vr(WOF+(hh*4+nt)*4,4)}, {vr(OF+(hh*2+mt)*4,4)}, {'0' if hh == 0 else vr(a,4)}")
    spec_load(o_issue, [OF + 4 * k for k in range(8)], vT0, o_body)
    stamp("B mfma")
    for mt in range(2):
        for nt in range(4):
            I(f"ds_write_b128 v{vB1}, {vr(BACC+(mt*4+nt)*4,4)} offset:{nt*2176+mt*256}")
    I(f"s_lshl_b32 s{sT0}, s{sJC}, 14")
    I(f"s_lshl_b32 s{sT1}, s{sWH}, 13")
    I(f"s_add_u32 s{sT0}, s{sT0}, s{sT1}")
    I(f"s_add_u32 s{sD}, s{sT0}, {WS_CS}")
    I(f"s_add_u32 s{sE}, s{sD}, 4096")
    I(f"v_lshlrev_b32 v{vB3}, 2, v0")
    I(f"v_and_b32 v{vB3}, 1023, v{vB3}")

    def cs_issue():
        return [I(f"buffer_load_dword v{CSG+rb}, v{vB3}, {srd(sWS)}, s{sE if rb >= 4 else sD} offen offset:{(rb%4)*1024} sc1") for rb in range(8)]
    tcs8 = cs_issue()
    g.mark("burst:3")
    S1, S2 = 104, 105
    I(f"v_mov_b32 v{S1}, 0\nv_mov_b32 v{S2}, 0")
    g.wait_all(vm=False)
    I("s_barrier")
    b = 72
    for w in range(4):
        for q in range(2):
            I(f"ds_read_b128 {vr(b+w*8+q*4,4)}, v{vB2} offset:{w*17408+q*512}")
    g.wait_all(vm=False)
    HP = 108
    for i in range(8):
        I(f"v_add_f32 v{b+i}, v{b+i}, v{b+8+i}")
        I(f"v_add_f32 v{b+16+i}, v{b+16+i}, v{b+24+i}")
    for i in range(8):
        I(f"v_add_f32 v{b+i}, v{b+i}, v{XU+i}")
    for i in range(8):
        I(f"v_add_f32 v{b+i}, v{b+i}, v{b+16+i}")
    for i in range(4):
        I(f"v_cvt_pk_bf16_f32 v{HP+i}, v{b+2*i}, v{b+2*i+1}")
    I(f"buffer_store_dwordx4 {vr(HP,4)}, v{vHSA}, {srd(sWS)}, s{sHS} offen sc1")
    for i in range(4):
        I(f"v_dot2_f32_bf16 v{S1}, v{HP+i}, v{vT5}, v{S1}")
        I(f"v_dot2_f32_bf16 v{S2}, v{HP+i}, v{HP+i}, v{S2}")
    I(f"v_and_b32 v{S1}, v{vT3}, v{S1}")
    I(f"v_and_b32 v{S2}, v{vT3}, v{S2}")
    for ror in (4, 8):
        I(f"v_add_f32_dpp v{S1}, v{S1}, v{S1} row_ror:{ror} row_mask:0xf bank_mask:0xf")
        I(f"v_add_f32_dpp v{S2}, v{S2}, v{S2} row_ror:{ror} row_mask:0xf bank_mask:0xf")
    for lv in (16, 32):
        I(f"v_mov_b32 v106, v{S1}\nv_mov_b32 v107, v{S2}")
        I(f"v_permlane{lv}_swap_b32 v{S1}, v106")
        I(f"v_permlane{lv}_swap_b32 v{S2}, v107")
        I(f"v_add_f32 v{S1}, v{S1}, v106")
        I(f"v_add_f32 v{S2}, v{S2}, v107")
    I(f"buffer_store_dwordx2 v[{S1}:{S2}], v{vT2}, {srd(sWS)}, s{sSS} offen sc1")
    stamp("h stored")
    lr, lb = g.newlabel("L_sr"), g.newlabel("L_sb")
    g.wait(tcs8[-1])
    sent_check([CSG + rb for rb in range(8)], vT0)
    I(f"s_cmp_lg_u64 vcc, 0")
    I(f"s_cbranch_scc1 {lr}")
    g.label(lb)
    g.begin()
    g.label(lr)
    check_loop(cs_issue, [CSG + rb for rb in range(8)], vT0)
    I(f"s_branch {lb}")
    TAILS.append(g.end())
    for k in (4, 2, 1):
        for i in range(k):
            I(f"v_add_f32 v{CSG+i}, v{CSG+i}, v{CSG+k+i}")
    I(f"v_lshlrev_b32 v{vB3}, 2, v0")
    I(f"v_add_u32 v{vB3}, {LDS_KVF}, v{vB3}")
    I(f"ds_write_b32 v{vB3}, v{CSG}")
    g.wait_all(vm=False)
    I("s_barrier")
    I(f"s_cmp_ge_u32 s{sJC}, 14")
    I("s_cbranch_scc1 L_end")
    tb2 = c_batch(1, 0, 24, 56, 57344 + 24576)


GK1 = -2.0 * math.sqrt(2.0 / math.pi) * LOG2E
GK2 = GK1 * 0.044715
LDS_X = 114688
vHB, vM, vWD = 254, 255, 253
sWDB = 80
WDE = 16
NWDE = 7
NWDC = int(os.environ.get('NWDC', '2'))


def hh_signal(stage, toks):
    g.wait(*toks)
    I("s_barrier")
    lab = g.newlabel("L_hs")
    I(f"s_cmp_lg_u32 s{sW}, 0")
    I(f"s_cbranch_scc1 {lab}")
    g.cond_begin()
    I("s_mov_b64 exec, 1")
    I(f"s_lshl_b32 s{sT0}, s{sG}, 8")
    I(f"s_add_u32 s{sT0}, s{sT0}, {WS_CNT + CNT_HH * 4096 + 64 * stage}")
    I(f"v_mov_b32 v{vCNT}, s{sT0}")
    I(f"buffer_atomic_add v{vONE}, v{vCNT}, {srd(sWS)}, 0 offen sc1")
    I("s_mov_b64 exec, -1")
    g.cond_end()
    g.label(lab)


def hh_poll(stage_sreg_or_imm):
    I("s_mov_b64 exec, 1")
    I(f"s_lshl_b32 s{sT0}, s{sGB}, 8")
    I(f"s_add_u32 s{sT0}, s{sT0}, {WS_CNT + CNT_HH * 4096}")
    I(f"s_add_u32 s{sT0}, s{sT0}, {stage_sreg_or_imm}")
    I(f"v_mov_b32 v{vCNT}, s{sT0}")
    poll(sWS, vCNT, 14)
    I("s_mov_b64 exec, -1")


def d_setup():
    I(f"v_lshrrev_b32 v{vHB}, 5, v{vLANE}")
    I(f"v_and_b32 v{vM}, 31, v{vLANE}")
    I(f"v_lshrrev_b32 v{vT0}, 3, v{vLANE}")
    I(f"v_mul_u32_u24 v{vT0}, 896, v{vT0}")
    I(f"v_and_b32 v{vT1}, 1, v{vG}")
    I(f"v_lshlrev_b32 v{vT1}, 2, v{vT1}")
    I(f"v_and_b32 v{vWD}, 7, v{vLANE}")
    I(f"v_xor_b32 v{vWD}, v{vWD}, v{vT1}")
    I(f"v_lshl_add_u32 v{vWD}, v{vWD}, 4, v{vT0}")
    I(f"s_cmp_ge_u32 s{sJB}, 7")
    I(f"s_cselect_b32 s{sRH}, 1, 0")
    I(f"s_mul_i32 s{sT0}, s{sRH}, 7")
    I(f"s_sub_u32 s{sCB}, s{sJB}, s{sT0}")
    I(f"s_lshl_b32 s{sT0}, s{sWH}, 1")
    I(f"s_add_u32 s{sT0}, s{sT0}, s{sW}")
    I(f"s_and_b32 s{sAA}, s{sT0}, 3")
    I(f"s_mul_i32 s{sKC}, s{sWH}, 56")
    I(f"s_add_u32 s{sKC}, s{sKC}, s{sAA}")
    I(f"s_mul_i32 s{sWDB}, s{sKC}, {16*896}")
    I(f"s_lshl_b32 s{sT1}, s{sCB}, 7")
    I(f"s_add_u32 s{sWDB}, s{sWDB}, s{sT1}")
    I(f"s_cmp_ge_u32 s{sJB}, 14")
    I(f"s_cselect_b32 s{sT1}, {OOB}, 0")
    I(f"s_add_u32 s{sWDB}, s{sWDB}, s{sT1}")


sRH, sCB, sAA, sKC = 64, 65, 66, 67


def kc_off(n):
    return 8 * n if n < 7 else 4 + 8 * (n - 7)


def wd_load(dst, n):
    t = None
    for hf_ in range(2):
        I(f"s_add_u32 s{sT3}, s{sWDB}, {(16*kc_off(n) + 8*hf_)*896}")
        for e in range(4):
            t = I(f"buffer_load_dword v{dst+4*hf_+e}, v{vWD}, {srd(sWD)}, s{sT3} offen offset:{e*896}")
    return t


def wd_half(dst, n, hf_):
    I(f"s_add_u32 s{sBG}, s{sWDB}, {(16*kc_off(n) + 8*hf_)*896}")
    return I(f"buffer_load_dwordx4 {vr(dst+4*hf_,4)}, v{vWD}, {srd(sWD)}, s{sBG} offen")


def dt_pattern(dst, t0, t1):
    I(f"v_bfe_u32 v{t0}, v{vLANE}, 2, 2")
    I(f"v_lshl_add_u32 v{t1}, v{vHB}, 2, v{t0}")
    I(f"v_lshlrev_b32 v{t1}, 7, v{t1}")
    I(f"v_lshrrev_b32 v{t0}, 1, v{t0}")
    I(f"v_lshl_add_u32 v{t1}, v{t0}, 6, v{t1}")
    I(f"v_and_b32 v{t0}, 1, v{vG}")
    I(f"v_lshl_add_u32 v{t1}, v{t0}, 5, v{t1}")
    I(f"v_and_b32 v{t0}, 3, v{vLANE}")
    I(f"v_lshl_add_u32 v{dst}, v{t0}, 3, v{t1}")


def c_rows(mat, dbl, r0, r1, lds_base):
    return c_batch(mat, dbl, r0, r1, lds_base)


def g1_addr(n):
    if n < 8:
        return 114688 + n * 1024
    if 24 <= n < 40:
        return 114688 + 8192 + (n - 24) * 1024
    if n < 24:
        return (n - 8) * 1024
    return 16384 + (n - 40) * 1024


def u1_addr(n):
    if n < 8:
        return 32768 + n * 1024
    if 24 <= n < 40:
        return 32768 + 8192 + (n - 24) * 1024
    if n < 24:
        return 57344 + (n - 8) * 1024
    return 57344 + 16384 + (n - 40) * 1024


def phaseCD(twd_early):
    g.comment("==== phase C ====")
    sMD, sHB, sMT = sC, sHHS, sMTC
    sAB = 7
    sL5, sL2, sL3, sL4 = 4, 5, 6, 83
    I(f"s_mul_i32 s{sL5}, s{sW}, 5120")
    I(f"s_lshl_b32 s{sL2}, s{sW}, 11")
    I(f"s_mul_i32 s{sL3}, s{sW}, 3072")
    I(f"s_lshl_b32 s{sL4}, s{sW}, 12")
    slotE = [(sL2, 40960 + i * 1024) for i in range(2)] + [(sL3, 90112 + i * 1024) for i in range(3)]
    slotM = [(sL5, 114688 + i * 1024) for i in range(5)] + [(sL2, i * 1024) for i in range(2)]
    slotL = [(sL3, 16384 + i * 1024) for i in range(3)] + [(sL4, 57344 + i * 1024) for i in range(4)]
    wslot = slotE + slotM + slotL + (slotE + slotM)[:9]
    sRW = [12, 13, 14, 15, 16, 17, 18]
    sRA = [19, 20, 21, 22, 23, 81, 82]

    def wd_dma(m):
        n, hf_ = m // 2, m % 2
        return dma2(vWD, sWD, sRW[n % 7], (16 * (4 if n >= 7 else 0) + 8 * hf_) * 896, wslot[m][0], wslot[m][1])
    c_batch(0, 1, 0, 40, 114688)
    I(f"s_lshl_b32 s{sMD}, s{sGB}, 2")
    I(f"s_lshl_b32 s{sT0}, s{sRH}, 1")
    I(f"s_add_u32 s{sMD}, s{sMD}, s{sT0}")
    I(f"s_lshl_b32 s{sE}, s{sMT}, 10")
    I(f"s_add_u32 s{sE}, s{sE}, {WS_ST}")
    I(f"s_mul_i32 s{sWB}, s{sMT}, {28*1024}")
    I(f"s_add_u32 s{sWB}, s{sWB}, {WS_H}")
    I(f"s_mul_i32 s{sAB}, s{sMD}, {112*1024}")
    I(f"s_lshl_b32 s{sT1}, s{sKC}, 10")
    I(f"s_add_u32 s{sAB}, s{sAB}, s{sT1}")
    I(f"s_add_u32 s{sAB}, s{sAB}, {WS_HH}")
    for n in range(7):
        if "norot" in EXP:
            I(f"s_mov_b32 s{sT0}, {n}")
        else:
            I(f"s_add_u32 s{sT0}, s{sCB}, {n}")
            I(f"s_sub_u32 s{sT1}, s{sT0}, 7")
            I(f"s_cmp_ge_u32 s{sT0}, 7")
            I(f"s_cselect_b32 s{sT0}, s{sT1}, s{sT0}")
        I(f"s_mul_i32 s{sT1}, s{sT0}, {8*16*896}")
        I(f"s_add_u32 s{sRW[n]}, s{sWDB}, s{sT1}")
        I(f"s_lshl_b32 s{sT1}, s{sT0}, 13")
        I(f"s_add_u32 s{sRA[n]}, s{sAB}, s{sT1}")
    HF = 16
    A_, B_, C_ = 128, 144, 160
    TM, CS2 = 176, 192
    WFc = 208
    vA0, vA1, vCSA, vFA, vA2 = 240, 241, 242, 243, 15
    K1, K2, IR2, NMU = 248, 249, 250, 251
    STR = 244
    I(f"v_bfe_u32 v{vT0}, v{vLANE}, 2, 2")
    I(f"v_lshl_add_u32 v{vT1}, v{vHB}, 3, v{vT0}")
    I(f"v_lshlrev_b32 v{vT1}, 7, v{vT1}")
    I(f"v_lshrrev_b32 v{vT0}, 1, v{vT0}")
    I(f"v_xor_b32 v{vT0}, s{sWH}, v{vT0}")
    I(f"v_lshl_add_u32 v{vT1}, v{vT0}, 6, v{vT1}")
    I(f"v_and_b32 v{vT2}, 1, v{vG}")
    I(f"v_lshl_add_u32 v{vT1}, v{vT2}, 5, v{vT1}")
    I(f"v_and_b32 v{vT2}, 3, v{vLANE}")
    I(f"v_lshl_add_u32 v{vA0}, v{vT2}, 3, v{vT1}")
    I(f"v_add_u32 v{vA1}, 57344, v{vA0}")
    I(f"v_add_u32 v{vA2}, 114688, v{vA0}")
    I(f"s_lshl_b32 s{sT0}, s{sWH}, 7")
    I(f"s_add_u32 s{sT0}, s{sT0}, {LDS_CS}")
    I(f"v_lshlrev_b32 v{vCSA}, 4, v{vHB}")
    I(f"v_add_u32 v{vCSA}, s{sT0}, v{vCSA}")
    I(f"v_mov_b32 v{vFA}, {LDS_FLG}")
    I(f"v_lshlrev_b32 v{vT3}, 3, v{vLANE}")
    flush()
    I(f"v_lshlrev_b32 v{vT0}, 2, v0")
    I(f"v_and_b32 v{vT0}, 1023, v{vT0}")
    I(f"v_add_u32 v{vT0}, {LDS_KVF}, v{vT0}")
    t = I(f"ds_read2st64_b32 v[72:73], v{vT0} offset0:0 offset1:4")
    g.wait(t)
    I(f"v_add_f32 v72, v72, v73")
    I(f"ds_write_b32 v{vT0}, v72 offset:4096")
    stamp("C ready")

    def st_issue():
        I(f"buffer_load_dwordx2 {vr(STR,2)}, v{vT3}, {srd(sWS)}, s{sE} offen sc1")
        return [I(f"buffer_load_dwordx2 {vr(STR+2,2)}, v{vT3}, {srd(sWS)}, s{sE} offen offset:512 sc1")]
    check_loop(st_issue, [STR, STR + 2], vT1)
    stamp("h flag")

    def h_issue():
        tl = []
        for c in range(28):
            if c % 4 == 0:
                I(f"s_add_u32 s{sT0}, s{sWB}, {c*1024}")
            tl.append(I(f"buffer_load_dwordx4 {vr(HF+4*c,4)}, v{vL16}, {srd(sWS)}, s{sT0} offen offset:{(c%4)*1024} sc1"))
        return tl
    g.begin()
    th = h_issue()
    hl = g.end()
    g.put(hl[:10])
    g.wait_all(vm=False)
    I("s_barrier")
    I(f"v_add_f32 v{STR}, v{STR}, v{STR+2}")
    I(f"v_add_f32 v{STR+1}, v{STR+1}, v{STR+3}")
    I(f"v_mov_b32 v{STR+2}, v{STR}\nv_mov_b32 v{STR+3}, v{STR+1}")
    I(f"v_permlane32_swap_b32 v{STR}, v{STR+2}")
    I(f"v_permlane32_swap_b32 v{STR+1}, v{STR+3}")
    I(f"v_add_f32 v{STR}, v{STR}, v{STR+2}")
    I(f"v_add_f32 v{STR+1}, v{STR+1}, v{STR+3}")
    I(f"v_mul_f32 v{NMU}, {f32(-1/448)}, v{STR}")
    I(f"v_mul_f32 v{STR+1}, {f32(1/448)}, v{STR+1}")
    I(f"v_fma_f32 v{STR+1}, -v{NMU}, v{NMU}, v{STR+1}")
    I(f"v_max_f32 v{STR+1}, 0, v{STR+1}")
    I(f"v_add_f32 v{IR2}, {f32(1e-5)}, v{STR+1}")
    I(f"v_rsq_f32 v{STR}, v{IR2}")
    I(f"v_mul_f32 v{K1}, {f32(GK1)}, v{STR}")
    I(f"v_mul_f32 v{STR+1}, v{STR}, v{STR}")
    I(f"v_mul_f32 v{STR+1}, v{STR+1}, v{STR}")
    I(f"v_mul_f32 v{K2}, {f32(GK2)}, v{STR+1}")
    tails = TAILS

    def cnt_add(f):
        I("s_mov_b64 exec, 1")
        I(f"ds_add_u32 v{vFA}, v{vONE} offset:{4*f}")
        I("s_mov_b64 exec, -1")

    def cnt_issue(f):
        return I(f"ds_read_b32 v{vFLAG}, v{vFA} offset:{4*f}")

    def cnt_check(f, t):
        lr, lb = g.newlabel("L_cr"), g.newlabel("L_cb")
        g.wait(t)
        I(f"v_readfirstlane_b32 s{sT4}, v{vFLAG}")
        I(f"s_cmp_lt_u32 s{sT4}, 8")
        I(f"s_cbranch_scc1 {lr}")
        g.label(lb)
        g.begin()
        g.label(lr)
        I(f"s_mov_b32 s{sT5}, 0")
        l2 = g.newlabel("L_cl")
        g.label(l2)
        I("s_sleep 1")
        cnt_issue(f)
        I("s_waitcnt lgkmcnt(0)")
        I(f"v_readfirstlane_b32 s{sT4}, v{vFLAG}")
        I(f"s_add_u32 s{sT5}, s{sT5}, 1")
        I(f"s_cmp_ge_u32 s{sT5}, {POLL_MAX*8}")
        I(f"s_cbranch_scc1 {lb}")
        I(f"s_cmp_lt_u32 s{sT4}, 8")
        I(f"s_cbranch_scc1 {l2}")
        I(f"s_branch {lb}")
        tails.append(g.end())

    def hsig_issue(f, toks):
        g.wait(*toks)
        I("s_mov_b64 exec, 1")
        t = I(f"ds_add_rtn_u32 v{vINIT}, v{vFA}, v{vONE} offset:{4*f}")
        I("s_mov_b64 exec, -1")
        return t

    def hsig_check(stage, t):
        lab = g.newlabel("L_hs")
        g.wait(t)
        I(f"v_readfirstlane_b32 s{sT4}, v{vINIT}")
        I(f"s_cmp_lg_u32 s{sT4}, 7")
        I(f"s_cbranch_scc1 {lab}")
        g.cond_begin()
        I("s_mov_b64 exec, 1")
        I(f"s_lshl_b32 s{sT0}, s{sG}, 8")
        I(f"s_add_u32 s{sT0}, s{sT0}, {WS_CNT + CNT_HH * 4096 + 64 * stage}")
        I(f"v_mov_b32 v{vCNT}, s{sT0}")
        I(f"buffer_atomic_add v{vONE}, v{vCNT}, {srd(sWS)}, 0 offen sc1")
        I("s_mov_b64 exec, -1")
        g.cond_end()
        g.label(lab)

    def cs_read(dst, mat, dbl):
        t = None
        for q in range(4):
            t = I(f"ds_read_b128 {vr(dst+4*q,4)}, v{vCSA} offset:{mat*512 + (64*dbl+8*q)*4}")
        return t

    def gpart(ag, t):
        g.wait(t)
        for i in range(16):
            I(f"v_fmac_f32 v{ag+i}, v{NMU}, v{TM+i}")
        for i in range(16):
            I(f"v_mul_f32 v{TM+i}, v{ag+i}, v{ag+i}")
        for i in range(16):
            I(f"v_fma_f32 v{TM+i}, v{TM+i}, v{K2}, v{K1}")
        for i in range(16):
            I(f"v_mul_f32 v{TM+i}, v{TM+i}, v{ag+i}")
        for i in range(16):
            I(f"v_exp_f32 v{TM+i}, v{TM+i}")
        for i in range(16):
            I(f"v_fma_f32 v{TM+i}, v{TM+i}, v{IR2}, v{IR2}")
        for i in range(16):
            I(f"v_rcp_f32 v{TM+i}, v{TM+i}")
        for i in range(16):
            I(f"v_mul_f32 v{TM+i}, v{ag+i}, v{TM+i}")

    def upart(au, t, dbl):
        g.wait(t)
        for i in range(16):
            I(f"v_fmac_f32 v{au+i}, v{NMU}, v{CS2+i}")
        for i in range(16):
            I(f"v_mul_f32 v{au+i}, v{au+i}, v{TM+i}")
        for i in range(8):
            I(f"v_cvt_pk_bf16_f32 v{CS2+i}, v{au+2*i}, v{au+2*i+1}")
        I(f"s_add_u32 s{sE}, s{sHB}, {dbl*4096}")
        I(f"buffer_store_dwordx4 {vr(CS2,4)}, v{vL16}, {srd(sWS)}, s{sE} offen sc1")
        return I(f"buffer_store_dwordx4 {vr(CS2+4,4)}, v{vL16}, {srd(sWS)}, s{sE} offen offset:1024 sc1")

    slots = []
    for c in range(28):
        slots.append((A_, c * 2048, c))
        slots.append((B_, 57344 + c * 2048, c))
    for c in range(28):
        slots.append((C_, 114688 + c * 2048 if c < 20 else (c - 20) * 2048, c))
    for c in range(28):
        slots.append((A_, 16384 + c * 2048 if c < 12 else 57344 + (c - 12) * 2048, c))
    NS = 112
    PRC = int(os.environ.get('PRC', '14'))
    depth = int(os.environ.get('DEPTH', '4'))
    nb = depth + 1
    tok = {}

    def rd(i):
        off = slots[i][1]
        base = vA0
        if off >= 114688:
            base, off = vA2, off - 114688
        elif off >= 57344:
            base, off = vA1, off - 57344
        dst = WFc + 4 * (i % nb)
        I(f"ds_read_b64_tr_b16 {vr(dst,2)}, v{base} offset:{off}")
        tok[i] = I(f"ds_read_b64_tr_b16 {vr(dst+2,2)}, v{base} offset:{off+512}")

    sched = {i: [] for i in range(NS)}
    load = {i: 0.0 for i in range(NS)}
    BUDGET = float(os.environ.get("BUDGET", "6"))

    def cost(it):
        if it.kind != "i":
            return 0
        m = it.text.split()[0]
        if m in TRANS:
            return 2
        if m in ("v_fma_f32", "v_fmac_f32"):
            return 1.25
        if m.startswith("v_"):
            return 1
        if m.startswith(("ds_", "buffer")):
            return 0.4
        return 0.1

    def cap(fn):
        g.begin()
        r = fn()
        return g.end(), r

    def at(slot, fn):
        st, r = cap(fn)
        for it in st:
            sched[slot].append(it)
            load[slot] += cost(it)
        return r

    rest = []

    def flow(stream, slot):
        pend = []
        for it in stream:
            pend.append(it)
            if it.kind != "i":
                continue
            c = sum(cost(x) for x in pend)
            while slot < NS and load[slot] + c > BUDGET:
                slot += 1
            if slot >= NS:
                rest.extend(pend)
            else:
                sched[slot].extend(pend)
                load[slot] += c
            pend = []
        return slot

    k_ = 0
    for it in hl[10:]:
        sched[k_].append(it)
        if it.text.startswith("buffer"):
            k_ += 1

    def refill(f, free_slot, batches, need_slot):
        at(free_slot, lambda: cnt_add(f))
        t = at(free_slot + 2, lambda: cnt_issue(f))
        at(free_slot + 3, lambda: cnt_check(f, t))
        st, tb = cap(batches)
        for q in range(len(st) // 3):
            for it in st[3 * q:3 * q + 3]:
                sched[free_slot + 3 + 2 * q].append(it)
        if need_slot is not None:
            at(need_slot - depth - 3, lambda: (g.wait(tb), cnt_add(f + 1)))
            t2 = at(need_slot - depth - 2, lambda: cnt_issue(f + 1))
            at(need_slot - depth - 1, lambda: cnt_check(f + 1, t2))
        return tb
    F0 = int(os.environ.get("F0", "40"))
    at(F0, lambda: cnt_add(0))
    t = at(F0 + 2, lambda: cnt_issue(0))
    at(F0 + 3, lambda: cnt_check(0, t))
    st1, tb1 = cap(lambda: c_batch(0, 1, 40, 56, 0))
    st2, tb2 = cap(lambda: (c_batch(1, 1, 0, 24, 16384), c_batch(1, 1, 24, 56, 57344))[1])
    st = st1 + st2
    for q in range(9):
        sched[F0 + 3 + 2 * q].extend(st[3 * q:3 * q + 3])
    at(76 - depth - 3, lambda: (g.wait(tb2), cnt_add(1)))
    t2_ = at(76 - depth - 2, lambda: cnt_issue(1))
    at(76 - depth - 1, lambda: cnt_check(1, t2_))
    at(56, lambda: cnt_add(2))
    t = at(72, lambda: cnt_issue(2))
    at(73, lambda: cnt_check(2, t))
    for m in range(5):
        at(73 + 2 * m, lambda: wd_dma(m))
    tM = refill(4, 84, lambda: [wd_dma(m) for m in range(5, 12)][-1], None)
    if "not2" not in EXP and "t2b" not in EXP:
        at(int(os.environ.get("T2", "40")), touch2)

    def h_issue_from(c0):
        def f():
            tl = []
            for c in range(c0, 28):
                if c % 4 == 0:
                    I(f"s_add_u32 s{sT2}, s{sWB}, {c*1024}")
                tl.append(I(f"buffer_load_dwordx4 {vr(HF+4*c,4)}, v{vL16}, {srd(sWS)}, s{sT2} offen offset:{(c%4)*1024} sc1"))
            return tl
        return f

    def hcheck(q):
        lr, lb = g.newlabel("L_hr"), g.newlabel("L_hb")
        g.wait(th[4 * q + 3])
        sent_check([HF + 4 * c for c in range(4 * q, 4 * q + 4)], vT1)
        I(f"s_cmp_lg_u64 vcc, 0")
        I(f"s_cbranch_scc1 {lr}")
        g.label(lb)
        g.begin()
        g.label(lr)
        check_loop(h_issue_from(4 * q), [HF + 4 * c for c in range(4 * q, 28)], vT1)
        I(f"s_branch {lb}")
        tails.append(g.end())
    t1 = at(54, lambda: cs_read(TM, 0, 0))
    t2 = at(55, lambda: cs_read(CS2, 1, 0))
    def epiA():
        g.wait(t2)
        for i in range(16):
            I(f"v_fmac_f32 v{A_+i}, v{NMU}, v{TM+i}")
        for i in range(16):
            I(f"v_fmac_f32 v{B_+i}, v{NMU}, v{CS2+i}")
        for i in range(16):
            I(f"v_mul_f32 v{TM+i}, v{A_+i}, v{A_+i}")
        for i in range(16):
            I(f"v_fma_f32 v{TM+i}, v{TM+i}, v{K2}, v{K1}")
        for i in range(16):
            I(f"v_mul_f32 v{TM+i}, v{TM+i}, v{A_+i}")
        for i in range(16):
            I(f"v_mul_f32 v{B_+i}, v{B_+i}, v{A_+i}")

    def epiB():
        for i in range(16):
            I(f"v_exp_f32 v{TM+i}, v{TM+i}")
        for i in range(16):
            I(f"v_fma_f32 v{TM+i}, v{TM+i}, v{IR2}, v{IR2}")
        for i in range(16):
            I(f"v_rcp_f32 v{TM+i}, v{TM+i}")
        for i in range(16):
            I(f"v_mul_f32 v{B_+i}, v{B_+i}, v{TM+i}")
        for i in range(8):
            I(f"v_cvt_pk_bf16_f32 v{CS2+i}, v{B_+2*i}, v{B_+2*i+1}")
        I(f"buffer_store_dwordx4 {vr(CS2,4)}, v{vL16}, {srd(sWS)}, s{sHB} offen sc1")
        return I(f"buffer_store_dwordx4 {vr(CS2+4,4)}, v{vL16}, {srd(sWS)}, s{sHB} offen offset:1024 sc1")
    st, _ = cap(epiA)
    e = flow(st, 57)
    assert e < 83, e
    st, tst0 = cap(epiB)
    e = flow(st, e)
    t1 = at(max(e, 85), lambda: cs_read(TM, 0, 1))
    t2 = at(min(e + 9, 109), lambda: cs_read(CS2, 1, 1))
    st, _ = cap(lambda: gpart(C_, t1))
    flow(st, max(e, 85) + 2)
    def flag_issue():
        I(f"s_lshl_b32 s{sT0}, s{sGB}, 8")
        I(f"s_add_u32 s{sT0}, s{sT0}, {WS_CNT + CNT_HH * 4096}")
        return I(f"buffer_load_dword v{vT4}, off, {srd(sWS)}, s{sT0} sc1")
    print("slot loads:", " ".join("%.0f" % load[i] for i in range(NS)), "rest", len(rest))
    for i in range(depth):
        rd(i)
    for i in range(NS):
        acc, off, c = slots[i]
        if i + depth < NS:
            rd(i + depth)
        if PRC and i % PRC == 0:
            I(f"s_setprio {3 - (i // PRC) % 4}")
        if i < 56 and i % 8 == 0:
            hcheck(i // 8)
        g.wait(tok[i])
        I(f"v_mfma_f32_32x32x16_bf16 {vr(acc,16)}, {vr(WFc+4*(i%nb),4)}, {vr(HF+4*c,4)}, {'0' if c == 0 else vr(acc,16)}")
        g.put(sched[i])
        if i in (55, 83, 111):
            stamp(f"slot{i}")
    g.put(rest)
    tlast = upart(A_, t2, 1)
    stamp("hh stored")
    DACC = 184
    frag = {n: 16 + 8 * n for n in range(14)}
    abuf = {c: 128 + 4 * c for c in range(14)}
    ta = {}
    vP = {(sL5, 114688): (vT0, vT1), (sL2, 0): (vT2, vT3), (sL3, 16384): (vT4, vT5), (sL3, 90112): (vINIT, vCNT - 0), (sL4, 57344): (252, 15)}
    vP[(sL3, 90112)] = (vG, vM16)
    dt_pattern(vFLAG, vT0, vT1)
    for (sreg, base), (a0, a1) in vP.items():
        I(f"v_add_u32 v{a0}, s{sreg}, v{vFLAG}")
        if base:
            I(f"v_add_u32 v{a0}, {base}, v{a0}")
        I(f"v_xor_b32 v{a1}, 64, v{a0}")

    def wd_read(m):
        n, rd_ = m // 2, m % 2
        sreg, imm = wslot[m]
        key = max((k for k in vP if k[0] == sreg and k[1] <= imm), key=lambda k: k[1])
        a = vP[key]
        imm -= key[1]
        t = None
        for nt in range(2):
            t = I(f"ds_read_b64_tr_b16 {vr(frag[n]+4*nt+2*rd_,2)}, v{a[nt]} offset:{imm}")
        return t

    def lda(c):
        for mt in range(2):
            I(f"s_add_u32 s{sT1}, s{sRA[c % 7]}, {mt*112*1024 + (4096 if c >= 7 else 0)}")
            ta[c, mt] = I(f"buffer_load_dwordx4 {vr(abuf[c]+4*mt,4)}, v{vL16}, {srd(sWS)}, s{sT1} offen sc1")

    def mm(c, first):
        for mt in range(2):
            g.wait(ta[c, mt])
            for nt in range(2):
                a = DACC + (mt * 2 + nt) * 16
                I(f"v_mfma_f32_32x32x16_bf16 {vr(a,16)}, {vr(frag[c]+4*nt,4)}, {vr(abuf[c]+4*mt,4)}, {'0' if first else vr(a,16)}")
    I("s_setprio 3")
    g.wait(tM)
    t = None
    for m in range(12):
        t = wd_read(m)
    g.wait(t)
    twd = {}
    for m in range(19, 28):
        twd[m] = wd_dma(m)
        if m == 22:
            th_ = hsig_issue(6, [tlast])
            hsig_check(0, th_)
    I("s_barrier")
    for m in range(12, 19):
        twd[m] = wd_dma(m)
    stamp("wd issued")
    I("s_setprio 0")
    lab = g.newlabel("L_fp")
    I(f"s_cmp_lg_u32 s{sW}, 0")
    I(f"s_cbranch_scc1 {lab}")
    g.cond_begin()
    hh_poll(0)
    g.cond_end()
    g.label(lab)
    g.wait(twd[27])
    for m in range(19, 28):
        wd_read(m)
    g.wait(twd[18])
    for m in range(12, 19):
        wd_read(m)
    g.wait_all(vm=False)
    I("s_barrier")
    stamp("hh flag")

    def lda1(c, mt):
        I(f"s_add_u32 s{sT1}, s{sRA[c % 7]}, {mt*112*1024 + (4096 if c >= 7 else 0)}")
        ta[c, mt] = I(f"buffer_load_dwordx4 {vr(abuf[c],4)}, v{vL16}, {srd(sWS)}, s{sT1} offen sc1")
    for c in range(14):
        lda1(c, 0)
    HR = 248
    I(f"v_and_b32 v{vT0}, 15, v0")
    I(f"v_lshrrev_b32 v{vT1}, 4, v0")
    I(f"v_lshrrev_b32 v{vFLAG}, 1, v{vT0}")
    I(f"v_lshlrev_b32 v{vFLAG}, 9, v{vFLAG}")
    I(f"v_lshl_add_u32 v{vFLAG}, v{vT1}, 4, v{vFLAG}")
    I(f"v_and_b32 v{vT2}, 1, v{vT0}")
    I(f"v_lshl_add_u32 v{vFLAG}, v{vT2}, 3, v{vFLAG}")
    I(f"s_mul_i32 s{sE}, s{sMD}, {28*1024}")
    I(f"s_lshl_b32 s{sT1}, s{sCB}, 12")
    I(f"s_add_u32 s{sE}, s{sE}, s{sT1}")
    I(f"s_add_u32 s{sE}, s{sE}, {WS_H}")
    I(f"s_add_u32 s{sD}, s{sE}, {28*1024}")
    I(f"s_mul_i32 s{sT0}, s{sW}, {64*272}")
    I(f"v_mul_u32_u24 v{vT3}, 272, v{vM}")
    I(f"v_lshl_add_u32 v{vT3}, v{vHB}, 4, v{vT3}")
    I(f"v_add_u32 v{vT3}, s{sT0}, v{vT3}")
    I(f"v_mul_u32_u24 v{vT4}, 272, v{vT1}")
    I(f"v_lshl_add_u32 v{vT4}, v{vT0}, 4, v{vT4}")
    I(f"v_add_u32 v{vT5}, {4*64*272}, v{vT4}")
    I(f"v_mul_u32_u24 v{vT2}, 896, v{vT1}")
    I(f"v_lshl_add_u32 v{vT2}, v{vT0}, 3, v{vT2}")
    I(f"s_mul_i32 s{sT0}, s{sMD}, {32*896}")
    I(f"s_lshl_b32 s{sT2}, s{sCB}, 7")
    I(f"s_add_u32 s{sT0}, s{sT0}, s{sT2}")
    I(f"s_add_u32 s{sT2}, s{sT0}, {32*896}")
    hold = {}

    def pw(mt, k):
        nt, q = k // 4, k % 4
        I(f"ds_write_b128 v{vT3}, {vr(DACC+(mt*2+nt)*16+4*q,4)} offset:{mt*32*272 + nt*128 + q*32}")

    def red_issue(mt, R):
        t = None
        for w in range(8):
            t = I(f"ds_read_b128 {vr(R+4*w,4)}, v{vT4 if w < 4 else vT5} offset:{(w%4)*64*272 + mt*32*272}")
        return t

    def red_fin(mt, R, t):
        g.wait(hold["thr"])
        U = R + 32
        for i in range(2):
            I(f"v_lshlrev_b32 v{U+2*i}, 16, v{HR+2*mt+i}")
            I(f"v_and_b32 v{U+2*i+1}, 0xffff0000, v{HR+2*mt+i}")
        g.wait(t)
        for k in (16, 8, 4):
            for i in range(k):
                I(f"v_add_f32 v{R+i}, v{R+i}, v{R+k+i}")
        for i in range(4):
            I(f"v_add_f32 v{R+i}, v{R+i}, v{U+i}")
        for i in range(2):
            I(f"v_cvt_pk_bf16_f32 v{R+4+i}, v{R+2*i}, v{R+2*i+1}")
        I(f"buffer_store_dwordx2 {vr(R+4,2)}, v{vT2}, {srd(sOUT)}, s{sT2 if mt else sT0} offen")
    for mt in range(2):
        for c in range(14):
            g.wait(ta[c, mt])
            for nt in range(2):
                a = DACC + (mt * 2 + nt) * 16
                I(f"v_mfma_f32_32x32x16_bf16 {vr(a,16)}, {vr(frag[c]+4*nt,4)}, {vr(abuf[c],4)}, {'0' if c == 0 else vr(a,16)}")
            if mt == 0:
                lda1(c, 1)
            elif 2 <= c < 10:
                pw(0, c - 2)
        if mt == 0:
            I(f"buffer_load_dwordx2 {vr(HR,2)}, v{vFLAG}, {srd(sWS)}, s{sE} offen sc1")
            hold["thr"] = I(f"buffer_load_dwordx2 {vr(HR+2,2)}, v{vFLAG}, {srd(sWS)}, s{sD} offen sc1")
            stamp("D early")
    stamp("D mfma")
    for k in range(8):
        pw(1, k)
    g.wait_all(vm=False)
    I("s_barrier")
    t0_ = red_issue(0, 16)
    t1_ = red_issue(1, 56)
    red_fin(0, 16, t0_)
    red_fin(1, 56, t1_)
    stamp("end")
    stamp("rt1", rt=True)
    if "span" in EXP:
        I(f"s_cmp_lg_u32 s{sW}, 7")
        I("s_cbranch_scc1 L_end")
        I("s_and_b32 s90, s2, 7")
        I("s_cmp_lg_u32 s90, 3")
        I("s_cbranch_scc1 L_end")
        I("s_waitcnt vmcnt(0)")
        I("s_memrealtime s[90:91]")
        I("s_memtime s[92:93]")
        I("s_waitcnt lgkmcnt(0)")
        I("s_mov_b64 exec, 1")
        I("s_not_b32 s86, s86")
        I("s_sub_u32 s92, s92, s100")
        I("v_mov_b32 v20, s86")
        I("v_mov_b32 v21, s90")
        I("v_mov_b32 v22, s92")
        I(f"buffer_atomic_umax v20, off, {srd(sDBG)}, 0 offset:4 sc1")
        I(f"buffer_atomic_umax v21, off, {srd(sDBG)}, 0 offset:8 sc1")
        I(f"buffer_atomic_umax v22, off, {srd(sDBG)}, 0 offset:12 sc1")


prologue()
two = phaseA()
twd = phaseB(two)
phaseCD(twd)
g.label("L_end")
I("s_endpgm")
for tl_ in TAILS:
    g.put(tl_)
g.insert_bg()
g.resolve_waits()
g.fix_hazards_fast()

hdr = open("cdna_kernels/" + NAME + ".s.ref").read().split("; Override launch geometry")[0]
out = hdr + f"""; @launch grid=(256,1,1) block=(512,1,1) lds=163840
.amdgcn_target "amdgcn-amd-amdhsa--gfx950"
.text
.globl {NAME}_kernel
.p2align 8
.type {NAME}_kernel,@function
{NAME}_kernel:
L_code_start:
{g.text()}
L_code_end:
.fill 64, 4, 0xbf800000
.section .rodata,"a"
.p2align 6
.amdhsa_kernel {NAME}_kernel
  .amdhsa_next_free_vgpr 256
  .amdhsa_next_free_sgpr 102
  .amdhsa_accum_offset 256
  .amdhsa_group_segment_fixed_size 0
  .amdhsa_kernarg_size 88
  .amdhsa_user_sgpr_count 2
  .amdhsa_user_sgpr_kernarg_segment_ptr 1
  .amdhsa_system_sgpr_workgroup_id_x 1
.end_amdhsa_kernel
"""
import subprocess, re as _re
open("_sz.s", "w").write(out.replace("CODE_LAST", "0x1000"))
subprocess.run(["clang", "-x", "assembler", "-target", "amdgcn-amd-amdhsa", "-mcpu=gfx950", "-c", "_sz.s", "-o", "_sz.o"], check=True)
_h = subprocess.run(["llvm-objdump", "-h", "_sz.o"], capture_output=True, text=True).stdout
_sz = int(_re.search(r"\.text\s+([0-9a-f]+)", _h).group(1), 16)
out = out.replace("CODE_LAST", hex(_sz - 768))
print("code bytes", _sz)
open(sys.argv[1], "w").write(out)
if STAMPS:
    open(sys.argv[1] + ".names", "w").write("\n".join(stamp_names))
print("instrs:", sum(1 for it in g.items if it.kind == "i"), "stamps:", nstamp[0])
```

```python
import sys, math, struct, os
sys.path.insert(0, "dev")
from gen import *

NAME = "sequential_preLN__linear_kernel_hedgehog__glu_gated_geglu__prompt"
STAMPS = int(sys.argv[2]) if len(sys.argv) > 2 else 0
EXP = sys.argv[3].split(",") if len(sys.argv) > 3 else []


def f32(x):
    return "0x%08x" % struct.unpack("<I", struct.pack("<f", x))[0]


WS_CNT = 0x0
WS_CS = 0x10000
WS_ST = 0x50000
WS_KVP = 0x100000
WS_O = 0x200000
WS_H = 0x400000
WS_HH = 0x600000
WS_STAMP = 0xE00000
CNT_KV, CNT_O, CNT_H, CNT_HH = 0, 1, 2, 3

sX, sWQKV, sWPHI, sWO, sWG, sWU, sWD, sOUT, sDBG, sWS = 8, 12, 16, 20, 24, 28, 32, 36, 40, 44
sG, sJ, sW = 48, 49, 50
sT0, sT1, sT2, sT3, sT4, sT5 = 51, 52, 53, 54, 55, 56
sW3, sWH = 57, 58
sA, sB, sC, sD, sE = 59, 60, 61, 62, 63
sSTAMP = 86
sGATH, sWB, sCW, sCL, sLOG = 88, 89, 90, 91, 92
sGB, sJB, sJC, sLI, sXC, sLW, sSTO = 93, 94, 95, 96, 97, 98, 99
OOB = 0x7ff00000
sBG, sWOB, sKVS, sOS, sHS, sSS, sHHS = 68, 70, 71, 72, 73, 74, 75


def srd(r):
    return f"s[{r}:{r+3}]"


def vr(a, n=1):
    return f"v{a}" if n == 1 else f"v[{a}:{a+n-1}]"


def ar(a, n=1):
    return f"a{a}" if n == 1 else f"a[{a}:{a+n-1}]"


g = Gen()
I = g.I
nstamp = [0]
stamp_names = []

vLANE, vG, vM16 = 1, 2, 3
vL16 = 4
vT0, vT1, vT2, vT3, vT4, vT5 = 5, 6, 7, 8, 9, 10
vFLAG, vONE, vCNT, vINIT, vDMY = 11, 12, 13, 14, 15


def stamp(name="", rt=False):
    if not STAMPS:
        return
    k = nstamp[0]
    nstamp[0] += 1
    stamp_names.append(name)
    g.cond_begin()
    I(f"{'s_memrealtime' if rt else 's_memtime'} s[{sSTAMP}:{sSTAMP+1}]")
    I("s_waitcnt lgkmcnt(0)")
    I(f"v_mov_b32 v{vCNT}, s{sSTAMP}")
    I(f"buffer_store_dword v{vCNT}, off, {srd(sWS)}, s{sSTO} offset:{4*k}")
    g.cond_end()


UNIT = 14336
LDS_WK = 8 * UNIT
LDS_KVF = 11 * UNIT
LDS_CS = LDS_KVF + 4096
LDS_FLG = LDS_CS + 1024
LDS_WPL = 10 * UNIT + 8192
LDS_KV2 = 8 * UNIT + 24576 + 4096
LDS_BSCR = 6 * UNIT


def prologue():
    I("s_cmp_ge_u32 s2, 256")
    I("s_cbranch_scc1 L_end")
    I("s_setprio 3")
    if "span" in EXP:
        I("s_memrealtime s[86:87]")
        I("s_memtime s[100:101]")
    I(f"s_load_dwordx2 s[{sX}:{sX+1}], s[0:1], 0")
    I("s_getpc_b64 s[4:5]")
    I(f"v_lshlrev_b32 v{vINIT}, 7, v0")
    I(f"s_and_b32 s{sT5}, s2, 24")
    I(f"s_cmp_eq_u32 s{sT5}, 0")
    I(f"s_cselect_b32 s{sT5}, CODE_LAST, 0")
    I(f"v_min_u32 v{vINIT}, s{sT5}, v{vINIT}")
    if "cp0" in EXP:
        I(f"global_load_dword v{vDMY}, v{vINIT}, s[4:5]")
    I("s_load_dwordx16 s[64:79], s[0:1], 0")
    I("s_load_dwordx4 s[80:83], s[0:1], 64")
    I("s_load_dwordx2 s[84:85], s[0:1], 80")
    I(f"v_and_b32 v{vLANE}, 63, v0")
    I(f"v_lshrrev_b32 v{vT0}, 6, v0")
    I(f"v_readfirstlane_b32 s{sW}, v{vT0}")
    I(f"v_lshrrev_b32 v{vG}, 4, v{vLANE}")
    I(f"s_bfe_u32 s{sT0}, s2, 0x20001")
    I(f"s_lshl_b32 s{sT0}, s{sT0}, 2")
    I(f"s_bfe_u32 s{sT1}, s2, 0x20003")
    I(f"s_add_u32 s{sG}, s{sT0}, s{sT1}")
    I(f"s_mov_b32 s{sX+2}, 1835008")
    I(f"s_mov_b32 s{sX+3}, 0x20000")
    I(f"v_lshrrev_b32 v{vT0}, 3, v{vLANE}")
    I(f"v_mul_u32_u24 v{vT0}, 896, v{vT0}")
    I(f"v_and_b32 v{vT1}, 7, v{vLANE}")
    I(f"v_xor_b32 v{vT3}, v{vT1}, v{vG}")
    I(f"v_lshl_add_u32 v{vXA0}, v{vT3}, 4, v{vT0}")
    I(f"v_xor_b32 v{vT3}, 4, v{vT3}")
    I(f"v_lshl_add_u32 v{vXA1}, v{vT3}, 4, v{vT0}")
    I(f"s_lshl_b32 s{sA}, s{sG}, 3")
    I(f"s_add_u32 s{sA}, s{sA}, s{sW}")
    I(f"s_mul_i32 s{sB}, s{sA}, {16*896}")
    I(f"s_add_u32 s{sC}, s{sB}, {8*896}")
    I(f"s_mul_i32 s{sLW}, s{sW}, {UNIT}")
    I(f"s_and_b32 s{sT2}, s2, 1")
    I(f"s_lshl_b32 s{sT3}, s{sT2}, 3")
    I(f"s_lshr_b32 s{sT4}, s2, 5")
    I(f"s_add_u32 s{sJ}, s{sT3}, s{sT4}")
    I(f"s_lshl_b32 s{sCL}, s{sW}, 10")
    I(f"v_lshrrev_b32 v{vT0}, 2, v{vLANE}")
    I(f"v_mul_u32_u24 v{vT0}, 2688, v{vT0}")
    I(f"v_and_b32 v{vT1}, 3, v{vLANE}")
    I(f"v_and_b32 v{vT2}, 2, v{vG}")
    I(f"v_xor_b32 v{vT1}, v{vT1}, v{vT2}")
    I(f"v_lshl_add_u32 v{vWA}, v{vT1}, 4, v{vT0}")
    I(f"s_mul_i32 s{sWB}, s{sJ}, 56")
    I(f"s_and_b32 s{sT1}, s{sJ}, 1")
    I(f"s_lshl_b32 s{sT1}, s{sT1}, 3")
    I(f"s_sub_u32 s{sWB}, s{sWB}, s{sT1}")
    I(f"s_mul_i32 s{sD}, s{sW}, {16*2688}")
    I(f"s_add_u32 s{sD}, s{sD}, s{sWB}")
    I(f"s_mov_b32 s{sWQKV+2}, 1204224")
    I(f"s_mov_b32 s{sWQKV+3}, 0x20000")
    if "t0" in EXP:
        I(f"s_lshr_b32 s{sLI}, s2, 3")
        I(f"s_mul_i32 s{sT2}, s{sLI}, {14*2688}")
        I(f"s_and_b32 s{sT3}, s2, 1")
        I(f"s_mul_i32 s{sT3}, s{sT3}, 384")
        I(f"s_add_u32 s{sT2}, s{sT2}, s{sT3}")
        I(f"s_mul_i32 s{sT3}, s{sW}, 896")
        I(f"s_add_u32 s{sT2}, s{sT2}, s{sT3}")
        I(f"s_cmp_ge_u32 s{sW}, 3")
        I(f"s_cselect_b32 s{sT3}, {OOB}, 0")
        I(f"s_add_u32 s{sT2}, s{sT2}, s{sT3}")
        I(f"v_lshrrev_b32 v{vT0}, 2, v{vLANE}")
        I(f"v_min_u32 v{vT0}, 13, v{vT0}")
        I(f"v_mul_u32_u24 v{vT0}, 2688, v{vT0}")
        I(f"v_and_b32 v{vT1}, 3, v{vLANE}")
        I(f"v_lshl_add_u32 v{vT4}, v{vT1}, 7, v{vT0}")
        I(f"s_mul_i32 s{sT4}, s{sT0}, 114688")
        I(f"s_mul_i32 s{sT5}, s{sLI}, 14336")
        I(f"s_add_u32 s{sT4}, s{sT4}, s{sT5}")
        I(f"s_sub_u32 s{sT5}, s{sW}, 3")
        I(f"s_cmp_lt_u32 s{sT5}, 2")
        I(f"s_cselect_b32 s{sT3}, 0, {OOB}")
        I(f"s_mul_i32 s{sT5}, s{sT5}, 7168")
        I(f"s_and_b32 s{sT5}, s{sT5}, 0x3fff")
        I(f"s_add_u32 s{sT4}, s{sT4}, s{sT5}")
        I(f"s_add_u32 s{sT4}, s{sT4}, s{sT3}")
        I(f"v_min_u32 v{vT5}, 55, v{vLANE}")
        I(f"v_lshlrev_b32 v{vT5}, 7, v{vT5}")
        I(f"s_mov_b32 s{sWQKV+2}, 1204224")
        I(f"s_mov_b32 s{sWQKV+3}, 0x20000")
    I("s_waitcnt lgkmcnt(0)")
    I(f"s_mov_b64 s[{sWQKV}:{sWQKV+1}], s[66:67]")
    if "t0" in EXP:
        I(f"buffer_load_dword v{vDMY}, v{vT5}, {srd(sX)}, s{sT4} offen")
        I(f"buffer_load_dword v{vDMY}, v{vT4}, {srd(sWQKV)}, s{sT2} offen")


def prologue2():
    I(f"v_and_b32 v{vM16}, 15, v{vLANE}")
    I(f"v_lshlrev_b32 v{vL16}, 4, v{vLANE}")
    I(f"v_mov_b32 v{vONE}, 1")
    I(f"s_and_b32 s{sXC}, s2, 7")
    I(f"s_lshr_b32 s{sLI}, s2, 3")
    I(f"s_and_b32 s{sT2}, s{sXC}, 1")
    I(f"s_lshl_b32 s{sT3}, s{sT2}, 3")
    I(f"s_lshr_b32 s{sT4}, s{sLI}, 2")
    I(f"s_add_u32 s{sJ}, s{sT3}, s{sT4}")
    I(f"s_lshl_b32 s{sGB}, s{sXC}, 1")
    I(f"s_and_b32 s{sT5}, s{sLI}, 1")
    I(f"s_add_u32 s{sGB}, s{sGB}, s{sT5}")
    I(f"s_lshr_b32 s{sJB}, s{sLI}, 1")
    I(f"s_mul_i32 s{sJC}, s{sT2}, 7")
    I(f"s_add_u32 s{sJC}, s{sJC}, s{sT4}")
    I(f"s_cmp_eq_u32 s{sT4}, 7")
    I(f"s_cselect_b32 s{sJC}, 15, s{sJC}")
    I(f"s_and_b32 s{sW3}, s{sW}, 3")
    I(f"s_lshr_b32 s{sWH}, s{sW}, 2")
    I(f"s_lshl_b32 s{sCL}, s{sW}, 10")
    for r, p, n in ((sWQKV, 66, 1204224), (sWPHI, 68, 25088), (sWO, 70, 401408),
                    (sWG, 74, 1605632), (sWU, 76, 1605632), (sWD, 78, 1605632), (sOUT, 80, 1835008),
                    (sDBG, 82, 256), (sWS, 84, 0x10000000)):
        I(f"s_mov_b64 s[{r}:{r+1}], s[{p}:{p+1}]")
        I(f"s_mov_b32 s{r+2}, {n}")
        I(f"s_mov_b32 s{r+3}, 0x20000")
    if STAMPS:
        I(f"s_lshl_b32 s{sSTO}, s2, 3")
        I(f"s_add_u32 s{sSTO}, s{sSTO}, s{sW}")
        I(f"s_lshl_b32 s{sSTO}, s{sSTO}, 7")
        I(f"s_add_u32 s{sSTO}, s{sSTO}, {WS_STAMP}")


POLL_MAX = 200000


def poll(srdreg, voff, target):
    lp, ld = g.newlabel("L_poll"), g.newlabel("L_pdone")
    I(f"s_mov_b32 s{sT5}, 0")
    g.label(lp)
    I(f"buffer_load_dword v{vFLAG}, v{voff}, {srd(srdreg)}, 0 offen sc1")
    I("s_waitcnt vmcnt(0)")
    I(f"v_readfirstlane_b32 s{sT4}, v{vFLAG}")
    I(f"s_add_u32 s{sT5}, s{sT5}, 1")
    I(f"s_cmp_ge_u32 s{sT5}, {POLL_MAX}")
    I(f"s_cbranch_scc1 {ld}")
    I(f"s_cmp_lt_u32 s{sT4}, {target}")
    I(f"s_cbranch_scc1 {lp}")
    g.label(ld)


def signal(kind, sidx, toks, first=False):
    g.wait(*toks)
    I("s_barrier")
    lab = g.newlabel("L_sig")
    I(f"s_cmp_lg_u32 s{sW}, 0")
    I(f"s_cbranch_scc1 {lab}")
    g.cond_begin()
    I("s_mov_b64 exec, 1")
    if first:
        l2 = g.newlabel("L_ini")
        I(f"v_readfirstlane_b32 s{sT4}, v{vINIT}")
        I(f"s_cmp_lg_u32 s{sT4}, 0")
        I(f"s_cbranch_scc1 {l2}")
        I(f"v_mov_b32 v{vCNT}, 0")
        poll(sDBG, vCNT, 1)
        g.label(l2)
    I(f"s_lshl_b32 s{sT0}, s{sidx}, 8")
    I(f"s_add_u32 s{sT0}, s{sT0}, {WS_CNT + kind * 4096}")
    I(f"v_mov_b32 v{vCNT}, s{sT0}")
    I(f"buffer_atomic_add v{vONE}, v{vCNT}, {srd(sWS)}, 0 offen sc1")
    I("s_mov_b64 exec, -1")
    g.cond_end()
    g.label(lab)


def waitflag(kind, sidx, target=16):
    lab = g.newlabel("L_w")
    I(f"s_cmp_lg_u32 s{sW}, 0")
    I(f"s_cbranch_scc1 {lab}")
    g.cond_begin()
    I("s_mov_b64 exec, 1")
    I(f"s_lshl_b32 s{sT0}, s{sidx}, 8")
    I(f"s_add_u32 s{sT0}, s{sT0}, {WS_CNT + kind * 4096}")
    I(f"v_mov_b32 v{vCNT}, s{sT0}")
    poll(sWS, vCNT, target)
    I("s_mov_b64 exec, -1")
    g.cond_end()
    g.label(lab)
    I("s_barrier")


def dma2(vaddr, srdreg, sbase, src_imm, lds_sreg, lds_imm, stmp=None):
    stmp = sT1 if stmp is None else stmp
    I(f"s_add_u32 m0, s{lds_sreg}, {lds_imm}")
    I(f"s_add_u32 s{stmp}, s{sbase}, {src_imm}")
    return I(f"buffer_load_dwordx4 v{vaddr}, {srd(srdreg)}, s{stmp} offen lds")


def xreduce(op, a, t, levels=(16, 32)):
    for lv in levels:
        I(f"v_mov_b32 v{t}, v{a}")
        I(f"v_permlane{lv}_swap_b32 v{a}, v{t}")
        I(f"{op} v{a}, v{a}, v{t}")


LOG2E = 1.4426950408889634

XF = 16
WR = 72
WPHI = 100
WPH2 = 108
SEL = 116
ACC = 124
ACCV = 132
WF = 140
TMP = 172
PH = 196
vXA0, vXA1, vWA, vTR, vXR0, vXR1, vCA = 204, 205, 206, 207, 208, 209, 252
vTRb, vTRc, vWOA = 211, 212, 213


def chain16(acc, rd, swap=False, depth=3, hook=None):
    toks = {}
    nb = depth + 1
    n = 14
    for c in range(depth):
        toks[c] = rd(c, WF + 8 * (c % nb))
    for c in range(n):
        if c + depth < n:
            toks[c + depth] = rd(c + depth, WF + 8 * ((c + depth) % nb))
        g.wait(toks[c])
        X = vr(XF + 4 * c, 4)
        for t in range(2):
            W = vr(WF + 8 * (c % nb) + 4 * t, 4)
            a = vr(acc + 4 * t, 4)
            C = a if c > 0 else "0"
            if swap:
                I(f"v_mfma_f32_16x16x32_bf16 {a}, {X}, {W}, {C}")
            else:
                I(f"v_mfma_f32_16x16x32_bf16 {a}, {W}, {X}, {C}")
        if hook is not None:
            hook(c)


def featmap(acc, out):
    pk = TMP
    p = acc
    e = TMP + 4
    mx, mn, t0, t1 = TMP + 12, TMP + 13, TMP + 14, TMP + 15
    for i in range(4):
        I(f"v_cvt_pk_bf16_f32 v{pk+i}, v{acc+2*i}, v{acc+2*i+1}")
    I(f"v_mfma_f32_16x16x32_bf16 {vr(p,4)}, {vr(WPHI,4)}, {vr(pk,4)}, 0")
    I(f"v_mfma_f32_16x16x32_bf16 {vr(p+4,4)}, {vr(WPHI+4,4)}, {vr(pk,4)}, 0")
    I(f"v_max3_f32 v{mx}, v{p}, v{p+1}, v{p+2}")
    I(f"v_min3_f32 v{mn}, v{p}, v{p+1}, v{p+2}")
    for i in (3, 5):
        I(f"v_max3_f32 v{mx}, v{mx}, v{p+i}, v{p+i+1}")
        I(f"v_min3_f32 v{mn}, v{mn}, v{p+i}, v{p+i+1}")
    for lv in (16, 32):
        I(f"v_mov_b32 v{t0}, v{mx}")
        I(f"v_mov_b32 v{t1}, v{mn}")
        I(f"v_permlane{lv}_swap_b32 v{mx}, v{t0}")
        I(f"v_permlane{lv}_swap_b32 v{mn}, v{t1}")
        I(f"v_max_f32 v{mx}, v{mx}, v{t0}")
        I(f"v_min_f32 v{mn}, v{mn}, v{t1}")
    I(f"v_mul_f32 v{mx}, {f32(-LOG2E)}, v{mx}")
    I(f"v_mul_f32 v{mn}, {f32(LOG2E)}, v{mn}")
    e2 = TMP + 16
    for i in range(7):
        I(f"v_fma_f32 v{e+i}, v{p+i}, s{sLOG}, v{mx}")
        I(f"v_fma_f32 v{e2+i}, -v{p+i}, s{sLOG}, v{mn}")
    for i in range(7):
        I(f"v_exp_f32 v{e+i}, v{e+i}")
        I(f"v_exp_f32 v{e2+i}, v{e2+i}")
    I(f"v_add_f32 v{mx}, v{e}, v{e+1}")
    I(f"v_add_f32 v{mn}, v{e2}, v{e2+1}")
    for i in range(2, 7):
        I(f"v_add_f32 v{mx}, v{mx}, v{e+i}")
        I(f"v_add_f32 v{mn}, v{mn}, v{e2+i}")
    for lv in (16, 32):
        I(f"v_mov_b32 v{t0}, v{mx}")
        I(f"v_mov_b32 v{t1}, v{mn}")
        I(f"v_permlane{lv}_swap_b32 v{mx}, v{t0}")
        I(f"v_permlane{lv}_swap_b32 v{mn}, v{t1}")
        I(f"v_add_f32 v{mx}, v{mx}, v{t0}")
        I(f"v_add_f32 v{mn}, v{mn}, v{t1}")
    I(f"v_rcp_f32 v{mx}, v{mx}")
    I(f"v_rcp_f32 v{mn}, v{mn}")
    for i in range(7):
        I(f"v_mul_f32 v{e+i}, v{e+i}, v{mx}")
        I(f"v_mul_f32 v{e2+i}, v{e2+i}, v{mn}")
    for i in range(3):
        I(f"v_cvt_pk_bf16_f32 v{out+i}, v{e+2*i}, v{e+2*i+1}")
        I(f"v_cvt_pk_bf16_f32 v{out+4+i}, v{e2+2*i}, v{e2+2*i+1}")
    I(f"v_cvt_pk_bf16_f32 v{out+3}, v{e+6}, 0")
    I(f"v_cvt_pk_bf16_f32 v{out+7}, v{e2+6}, 0")


def c_batch(mat, dbl, n0, n1, lds_base):
    t = None
    assert n0 % 8 == 0 and n1 % 8 == 0
    for i in range(n0 // 8, n1 // 8):
        t = dma2(vCA, sWG if mat == 0 else sWU, sCW, i * 8 * 8 * 3584 + dbl * 128, sCL, lds_base + (i * 8 - n0) * 1024)
    return t


def c_bg(mat, dbl, n0, n1, lds_base, after, gap=150):
    t = None
    for i in range(n0 // 8, n1 // 8):
        g.begin()
        t = dma2(vCA, sWG if mat == 0 else sWU, sCW, i * 8 * 8 * 3584 + dbl * 128, sCL, lds_base + (i * 8 - n0) * 1024, stmp=sBG)
        g.bg_add(g.end(), after, gap)
        NBG[0] += 1
    return t


NBG = [0]
TWD = {}
NWDBG = [0]


def bg(fn, after=None, gap=150):
    g.begin()
    r = fn()
    g.bg_add(g.end(), after, gap)
    NBG[0] += 1
    return r


def flush():
    g.mark(f"flush:{NBG[0]}")


def check_loop(issue, regs, tmp, body=None):
    lp, ld = g.newlabel("L_dp"), g.newlabel("L_dpd")
    I(f"s_mov_b32 s{sT5}, 0")
    g.label(lp)
    toks = issue()
    if body is not None:
        body(toks)
    g.wait(toks[-1])
    rs = list(regs)
    if len(rs) == 1:
        I(f"v_cmp_eq_u32 vcc, -1, v{rs[0]}")
    else:
        first = True
        acc = None
        while rs:
            if acc is None:
                if len(rs) >= 3:
                    I(f"v_max3_u32 v{tmp}, v{rs[0]}, v{rs[1]}, v{rs[2]}")
                    rs = rs[3:]
                else:
                    I(f"v_max_u32 v{tmp}, v{rs[0]}, v{rs[1]}")
                    rs = rs[2:]
                acc = tmp
            elif len(rs) >= 2:
                I(f"v_max3_u32 v{tmp}, v{tmp}, v{rs[0]}, v{rs[1]}")
                rs = rs[2:]
            else:
                I(f"v_max_u32 v{tmp}, v{tmp}, v{rs[0]}")
                rs = rs[1:]
        I(f"v_cmp_eq_u32 vcc, -1, v{tmp}")
    I(f"s_add_u32 s{sT5}, s{sT5}, 1")
    I(f"s_cmp_ge_u32 s{sT5}, {POLL_MAX}")
    I(f"s_cbranch_scc1 {ld}")
    I(f"s_cmp_lg_u64 vcc, 0")
    I(f"s_cbranch_scc1 {lp}")
    g.label(ld)


def sent_check(regs, tmp):
    rs = list(regs)
    acc = None
    while rs:
        if acc is None:
            if len(rs) >= 3:
                I(f"v_max3_u32 v{tmp}, v{rs[0]}, v{rs[1]}, v{rs[2]}")
                rs = rs[3:]
            else:
                I(f"v_max_u32 v{tmp}, v{rs[0]}, v{rs[1]}")
                rs = rs[2:]
            acc = tmp
        elif len(rs) >= 2:
            I(f"v_max3_u32 v{tmp}, v{tmp}, v{rs[0]}, v{rs[1]}")
            rs = rs[2:]
        else:
            I(f"v_max_u32 v{tmp}, v{tmp}, v{rs[0]}")
            rs = rs[1:]
    I(f"v_cmp_eq_u32 vcc, -1, v{tmp}")


TAILS = []


def spec_load(issue, regs, tmp, body=None, filler=None):
    lr, lb = g.newlabel("L_sr"), g.newlabel("L_sb")
    toks = issue()
    if filler is not None:
        filler()
    if body is not None:
        body(toks)
    g.wait(toks[-1])
    sent_check(regs, tmp)
    I(f"s_cmp_lg_u64 vcc, 0")
    I(f"s_cbranch_scc1 {lr}")
    g.label(lb)
    g.begin()
    g.label(lr)
    check_loop(issue, regs, tmp, body)
    I(f"s_branch {lb}")
    TAILS.append(g.end())


def c_setup():
    I(f"v_lshrrev_b32 v{vT0}, 3, v{vLANE}")
    I(f"v_mul_u32_u24 v{vT1}, 3584, v{vT0}")
    I(f"v_and_b32 v{vT2}, 1, v{vG}")
    I(f"v_lshlrev_b32 v{vT2}, 2, v{vT2}")
    I(f"v_and_b32 v{vCA}, 7, v{vLANE}")
    I(f"v_xor_b32 v{vCA}, v{vCA}, v{vT2}")
    I(f"v_lshl_add_u32 v{vCA}, v{vCA}, 4, v{vT1}")
    I(f"s_cmp_ge_u32 s{sJC}, 14")
    I(f"s_cselect_b32 s{sT0}, {OOB}, 0")
    I(f"v_add_u32 v{vCA}, s{sT0}, v{vCA}")
    I(f"s_mul_i32 s{sCW}, s{sW}, {8*3584}")
    I(f"s_lshl_b32 s{sT0}, s{sJC}, 8")
    I(f"s_add_u32 s{sCW}, s{sCW}, s{sT0}")


def touch1():
    I(f"s_mul_i32 s{sT0}, s{sLI}, {98*128}")
    I(f"s_mul_i32 s{sT1}, s{sW}, {13*128}")
    I(f"s_add_u32 s{sT0}, s{sT0}, s{sT1}")
    I(f"v_lshlrev_b32 v{vT0}, 7, v{vLANE}")
    I(f"v_mov_b32 v{vT2}, {OOB}")
    I(f"v_cmp_gt_u32 vcc, 13, v{vLANE}")
    I(f"v_cndmask_b32 v{vT0}, v{vT2}, v{vT0}, vcc")
    I(f"buffer_load_dword v{vDMY}, v{vT0}, {srd(sWO)}, s{sT0} offen")
    I(f"s_lshr_b32 s{sT0}, s{sW}, 1")
    I(f"s_lshl_b32 s{sT2}, s{sT0}, 2")
    I(f"s_mul_i32 s{sT0}, s{sT0}, {4*3584}")
    I(f"s_mul_i32 s{sT1}, s{sLI}, {14*3584}")
    I(f"s_add_u32 s{sT0}, s{sT0}, s{sT1}")
    I(f"s_and_b32 s{sT1}, s{sXC}, 1")
    I(f"s_mul_i32 s{sT1}, s{sT1}, 1792")
    I(f"s_add_u32 s{sT0}, s{sT0}, s{sT1}")
    I(f"v_mul_u32_u24 v{vT0}, 3584, v{vG}")
    I(f"v_lshl_add_u32 v{vT0}, v{vM16}, 7, v{vT0}")
    I(f"v_cmp_gt_u32 vcc, 14, v{vM16}")
    I(f"v_cndmask_b32 v{vT0}, v{vT2}, v{vT0}, vcc")
    I(f"v_add_u32 v{vT1}, s{sT2}, v{vG}")
    I(f"v_cmp_gt_u32 vcc, 14, v{vT1}")
    I(f"v_cndmask_b32 v{vT0}, v{vT2}, v{vT0}, vcc")
    I(f"buffer_load_dword v{vDMY}, v{vT0}, s[4:7], s{sT0} offen")


def touch2():
    I(f"s_mul_i32 s{sT2}, s{sLI}, {392*128}")
    I(f"s_mul_i32 s{sT1}, s{sW}, {49*128}")
    I(f"s_add_u32 s{sT2}, s{sT2}, s{sT1}")
    I(f"v_lshlrev_b32 v{vT1}, 7, v{vLANE}")
    I(f"v_mov_b32 v{vT2}, {OOB}")
    I(f"v_cmp_gt_u32 vcc, 49, v{vLANE}")
    I(f"v_cndmask_b32 v{vT1}, v{vT2}, v{vT1}, vcc")
    I(f"buffer_load_dword v247, v{vT1}, {srd(sWD)}, s{sT2} offen")


sNQ, sMTB, sCSS, sMTC = 76, 77, 78, 79
sINV = 69
vT8, vCSS, vHSA, vSSA = 210, 214, 215, 199 + 0


def addr_setup():
    I(f"s_lshl_b32 s{sGATH}, s{sJ}, 16")
    I(f"s_add_u32 s{sGATH}, s{sGATH}, {WS_KVP}")
    I(f"s_lshl_b32 s{sKVS}, s{sG}, 12")
    I(f"s_add_u32 s{sKVS}, s{sKVS}, s{sGATH}")
    I(f"s_lshl_b32 s{sOS}, s{sA}, 4")
    I(f"s_add_u32 s{sOS}, s{sOS}, s{sJ}")
    I(f"s_lshl_b32 s{sOS}, s{sOS}, 10")
    I(f"s_add_u32 s{sOS}, s{sOS}, {WS_O}")
    I(f"s_lshl_b32 s{sCSS}, s{sJC}, 4")
    I(f"s_add_u32 s{sCSS}, s{sCSS}, s{sG}")
    I(f"s_lshl_b32 s{sCSS}, s{sCSS}, 10")
    I(f"s_add_u32 s{sCSS}, s{sCSS}, {WS_CS}")
    I(f"s_and_b32 s{sNQ}, s{sJB}, 3")
    I(f"s_lshr_b32 s{sMTB}, s{sJB}, 2")
    I(f"s_lshl_b32 s{sT0}, s{sGB}, 2")
    I(f"s_add_u32 s{sMTB}, s{sMTB}, s{sT0}")
    I(f"s_mul_i32 s{sHS}, s{sMTB}, 28")
    I(f"s_lshl_b32 s{sT1}, s{sNQ}, 3")
    I(f"s_add_u32 s{sHS}, s{sHS}, s{sT1}")
    I(f"s_lshl_b32 s{sHS}, s{sHS}, 10")
    I(f"s_add_u32 s{sHS}, s{sHS}, {WS_H}")
    I(f"s_lshl_b32 s{sSS}, s{sMTB}, 2")
    I(f"s_add_u32 s{sSS}, s{sSS}, s{sNQ}")
    I(f"s_lshl_b32 s{sSS}, s{sSS}, 9")
    I(f"s_add_u32 s{sSS}, s{sSS}, {WS_ST}")
    I(f"s_lshl_b32 s{sMTC}, s{sG}, 2")
    I(f"s_add_u32 s{sMTC}, s{sMTC}, s{sW3}")
    I(f"s_mul_i32 s{sHHS}, s{sMTC}, {112*1024}")
    I(f"s_lshl_b32 s{sT0}, s{sJC}, 13")
    I(f"s_add_u32 s{sHHS}, s{sHHS}, s{sT0}")
    I(f"s_lshl_b32 s{sT0}, s{sWH}, 11")
    I(f"s_add_u32 s{sHHS}, s{sHHS}, s{sT0}")
    I(f"s_add_u32 s{sHHS}, s{sHHS}, {WS_HH}")
    I(f"s_cmp_ge_u32 s{sJC}, 14")
    I(f"s_cselect_b32 s{sT0}, {OOB}, 0")
    I(f"s_add_u32 s{sHHS}, s{sHHS}, s{sT0}")
    I(f"v_lshlrev_b32 v{vT8}, 3, v0")
    I(f"s_cmp_ge_u32 s{sW}, 4")
    I(f"s_cselect_b32 s{sT0}, {OOB}, 0")
    I(f"v_lshlrev_b32 v{vCSS}, 2, v0")
    I(f"v_add_u32 v{vCSS}, s{sT0}, v{vCSS}")
    I(f"s_lshl_b32 s{sT0}, s{sWH}, 12")
    I(f"s_lshl_b32 s{sT1}, s{sW3}, 7")
    I(f"s_add_u32 s{sT0}, s{sT0}, s{sT1}")
    I(f"s_lshl_b32 s{sT1}, s{sNQ}, 1")
    I(f"s_add_u32 s{sT1}, s{sT1}, s{sWH}")
    I(f"s_cmp_eq_u32 s{sT1}, 7")
    I(f"s_cselect_b32 s{sINV}, {OOB}, 0")
    I(f"s_add_u32 s{sT0}, s{sT0}, s{sINV}")
    I(f"v_lshrrev_b32 v{vT1}, 3, v{vLANE}")
    I(f"v_lshlrev_b32 v{vHSA}, 9, v{vT1}")
    I(f"v_and_b32 v{vT0}, 7, v{vLANE}")
    I(f"v_lshl_add_u32 v{vHSA}, v{vT0}, 4, v{vHSA}")
    I(f"v_add_u32 v{vHSA}, s{sT0}, v{vHSA}")


def stats_addr(dst, t0, t1):
    I(f"s_lshl_b32 s{sBG}, s{sW}, 6")
    I(f"v_lshlrev_b32 v{t0}, 3, v{vLANE}")
    I(f"v_add_u32 v{t0}, s{sBG}, v{t0}")
    I(f"v_mov_b32 v{t1}, {OOB}")
    I(f"v_cmp_gt_u32 vcc, 8, v{vLANE}")
    I(f"v_cndmask_b32 v{dst}, v{t1}, v{t0}, vcc")


def sentinels0():
    lab = g.newlabel("L_init")
    I(f"s_lshl_b32 s{sT0}, s2, 3")
    I(f"s_add_u32 s{sT0}, s{sT0}, s{sW}")
    I(f"s_cmp_lg_u32 s{sT0}, 7")
    I(f"s_cbranch_scc1 {lab}")
    g.cond_begin()
    I(f"v_lshlrev_b32 v{vT0}, 8, v{vLANE}")
    I(f"v_mov_b32 v{vT1}, 0")
    I(f"buffer_store_dword v{vT1}, v{vT0}, {srd(sWS)}, 0 offen sc1")
    g.cond_end()
    g.label(lab)
    SN = 216
    for i in range(4):
        I(f"v_mov_b32 v{SN+i}, -1")
    I(f"buffer_store_dwordx2 {vr(SN,2)}, v{vT8}, {srd(sWS)}, s{sKVS} offen sc1")
    I(f"buffer_store_dwordx4 {vr(SN,4)}, v{vL16}, {srd(sWS)}, s{sOS} offen sc1")


def sentinels():
    SN = 216
    I(f"buffer_store_dword v{SN}, v{vCSS}, {srd(sWS)}, s{sCSS} offen sc1")
    I(f"s_add_u32 s{sBG}, s{sHS}, s{sCL}")
    I(f"s_add_u32 s{sBG}, s{sBG}, s{sINV}")
    I(f"buffer_store_dwordx4 {vr(SN,4)}, v{vL16}, {srd(sWS)}, s{sBG} offen sc1")
    stats_addr(SN + 4, SN + 4, SN + 5)
    return I(f"buffer_store_dwordx2 {vr(SN,2)}, v{SN+4}, {srd(sWS)}, s{sSS} offen sc1")


def sent_hh(k):
    SN = 216
    I(f"s_add_u32 s{sBG}, s{sHHS}, {(k>>1)*4096 + (k&1)*1024}")
    return I(f"buffer_store_dwordx4 {vr(SN,4)}, v{vL16}, {srd(sWS)}, s{sBG} offen sc1")


def init_signal():
    lab = g.newlabel("L_is")
    I(f"s_cmp_lg_u32 s{sW}, 5")
    I(f"s_cbranch_scc1 {lab}")
    g.cond_begin()
    I("s_mov_b64 exec, 1")
    I(f"s_and_b32 s{sT0}, s2, 15")
    I(f"s_lshl_b32 s{sT0}, s{sT0}, 4")
    I(f"v_mov_b32 v{vCNT}, s{sT0}")
    I(f"buffer_atomic_add v{vONE}, v{vCNT}, {srd(sDBG)}, 0 offen sc1")
    I("s_mov_b64 exec, -1")
    g.cond_end()
    g.label(lab)


def init_check():
    lp, ld = g.newlabel("L_ic"), g.newlabel("L_icd")
    I(f"v_lshlrev_b32 v{vCNT}, 4, v{vM16}")
    I(f"s_mov_b32 s{sT5}, 0")
    g.label(lp)
    I("s_sleep 8")
    t = I(f"buffer_load_dword v{vINIT}, v{vCNT}, {srd(sDBG)}, 0 offen sc1")
    g.wait(t)
    I(f"v_cmp_gt_u32 vcc, 16, v{vINIT}")
    I(f"s_add_u32 s{sT5}, s{sT5}, 1")
    I(f"s_cmp_ge_u32 s{sT5}, {POLL_MAX}")
    I(f"s_cbranch_scc1 {ld}")
    I(f"s_cmp_lg_u64 vcc, 0")
    I(f"s_cbranch_scc1 {lp}")
    g.label(ld)


def phaseA():
    g.comment("==== phase A ====")
    if STAMPS:
        I("s_memrealtime s[96:97]")
        I("s_memtime s[94:95]")
        I("s_waitcnt lgkmcnt(0)")
        I("v_mov_b32 v250, s96")
        I("v_mov_b32 v251, s94")
    tx = {}
    for seg in range(7):
        for o in range(2):
            I(f"s_add_u32 m0, s{sLW}, {(o*7+seg)*1024 - seg*128}")
            tx[seg] = I(f"buffer_load_dwordx4 v{vXA1 if o else vXA0}, {srd(sX)}, s{sC if o else sB} offen offset:{seg*128} lds")
    I("s_setprio 2")
    if "cp0" not in EXP and "nocp" not in EXP:
        I(f"global_load_dword v{vDMY}, v{vINIT}, s[4:5]")
    for i in range(3):
        dma2(vWA, sWQKV, sD, 896 + i * 8 * 16 * 2688, sCL, LDS_WK + i * 8192)
    prologue2()
    if STAMPS:
        for nm, r in (("rt0", 250), ("start", 251)):
            g.cond_begin()
            I(f"buffer_store_dword v{r}, off, {srd(sWS)}, s{sSTO} offset:{4*nstamp[0]}")
            g.cond_end()
            nstamp[0] += 1
            stamp_names.append(nm)
    I(f"s_mov_b32 s{sLOG}, {f32(LOG2E)}")
    bgl = []
    bt = {}

    def bg_add(name, fn):
        bgl.append((name, fn))

    def bgq(n=1):
        for _ in range(n):
            if bgl:
                name, fn = bgl.pop(0)
                bt[name] = fn()

    def wk3():
        I(f"s_cmp_ge_u32 s{sW}, 4")
        I(f"s_cselect_b32 s{sT0}, {OOB}, 0")
        I(f"s_add_u32 s{sT0}, s{sT0}, s{sD}")
        dma2(vWA, sWQKV, sT0, 896 + 3 * 8 * 16 * 2688, sCL, LDS_WK + 3 * 8192)
        I(f"v_lshlrev_b32 v{vT0}, 4, v0")
        I(f"v_mov_b32 v{vT1}, {OOB}")
        I(f"v_cmp_gt_u32 vcc, 98, v0")
        I(f"v_cndmask_b32 v{vT0}, v{vT1}, v{vT0}, vcc")
        I(f"s_min_u32 s{sT0}, s{sCL}, 2048")
        I(f"s_add_u32 m0, s{sT0}, {LDS_WPL}")
        I(f"s_mul_i32 s{sT0}, s{sJ}, 1568")
        return I(f"buffer_load_dwordx4 v{vT0}, {srd(sWPHI)}, s{sT0} offen lds")
    bg_add("wk3", wk3)
    addr_setup()
    I(f"s_cmp_ge_u32 s{sW}, 4")
    I(f"s_cselect_b32 s{sE}, {(24-4)*16*2688}, {1792 + 24*16*2688}" if False else f"s_mov_b32 s{sE}, {1792 + 24*16*2688}")
    I(f"s_cmov_b32 s{sE}, {20*16*2688}")

    I(f"s_cselect_b32 s{sKC}, 10240, 0")
    I(f"s_max_u32 s{sKC}, s{sKC}, 3072")
    I(f"s_add_u32 s{sKC}, s{sKC}, s{sLW}")
    I(f"s_add_u32 s{sE}, s{sE}, s{sD}")

    def rawW(i):
        if i == 3:
            I(f"s_mov_b32 m0, s{sKC}")
            I("s_nop 0")
            return I(f"buffer_load_dwordx4 v{vWA}, {srd(sWQKV)}, s{sE} offen lds")
        off = 1792 + i * 8 * 16 * 2688 if i < 3 else (i - 4) * 8 * 16 * 2688
        return dma2(vWA, sWQKV, sD, off, sLW, i * 1024 if i < 3 else 10240 + (i - 3) * 1024)
    for i in range(4):
        bg_add(f"w{i}", lambda i=i: rawW(i))
    I(f"v_lshrrev_b32 v{vT0}, 3, v{vM16}")
    I(f"v_mul_u32_u24 v{vT0}, 7168, v{vT0}")
    I(f"v_add_u32 v{vT0}, s{sLW}, v{vT0}")
    I(f"v_and_b32 v{vT1}, 7, v{vM16}")
    I(f"v_lshl_add_u32 v{vT0}, v{vT1}, 7, v{vT0}")
    I(f"v_lshrrev_b32 v{vT1}, 1, v{vM16}")
    I(f"v_xor_b32 v{vT1}, v{vT1}, v{vG}")
    I(f"v_lshl_add_u32 v{vXR0}, v{vT1}, 4, v{vT0}")
    I(f"v_xor_b32 v{vXR1}, 64, v{vXR0}")
    I(f"v_bfe_u32 v{vT0}, v{vLANE}, 2, 2")
    I(f"v_lshl_add_u32 v{vT0}, v{vG}, 3, v{vT0}")
    I(f"v_lshlrev_b32 v{vT0}, 6, v{vT0}")
    I(f"v_and_b32 v{vT1}, 3, v{vLANE}")
    I(f"s_and_b32 s{sT1}, s{sJ}, 1")
    I(f"v_add_u32 v{vT1}, s{sT1}, v{vT1}")
    I(f"v_and_b32 v{vT2}, 1, v{vG}")
    I(f"v_lshlrev_b32 v{vT2}, 2, v{vT2}")
    I(f"v_xor_b32 v{vT1}, v{vT1}, v{vT2}")
    I(f"v_lshl_add_u32 v{vTR}, v{vT1}, 3, v{vT0}")
    I(f"v_lshrrev_b32 v{vT0}, 2, v{vM16}")
    I(f"v_and_b32 v{vT1}, 3, v{vM16}")
    I(f"v_cmp_eq_u32 vcc, v{vT0}, v{vG}")
    I(f"v_cndmask_b32 v{vT1}, 7, v{vT1}, vcc")
    I(f"v_mov_b32 v{vT3}, 0x3f80")
    I(f"v_mov_b32 v{vT4}, 0x3f800000")
    for i in range(2):
        I(f"v_cmp_eq_u32 vcc, {2*i}, v{vT1}")
        I(f"v_cndmask_b32 v{vT2}, 0, v{vT3}, vcc")
        I(f"v_cmp_eq_u32 vcc, {2*i+1}, v{vT1}")
        I(f"v_cndmask_b32 v{SEL+i}, v{vT2}, v{vT4}, vcc")
        I(f"v_mov_b32 v{SEL+6+i}, v{SEL+i}")
    for i in (2, 3, 4, 5):
        I(f"v_mov_b32 v{SEL+i}, 0")
    S1, S2 = ACC, ACC + 4
    for i in range(8):
        I(f"v_mov_b32 v{ACC+i}, 0")
    I(f"v_mov_b32 v{vT5}, 0x3f803f80")
    I(f"v_lshlrev_b32 v{vT0}, 2, v{vLANE}")
    I(f"v_add_u32 v{vT0}, {LDS_FLG}, v{vT0}")
    I(f"ds_write_b32 v{vT0}, v{ACC}")
    tw = {}
    if "tlb" in EXP:
        STR_ = int(os.environ.get("TLBS", "16"))
        I(f"v_lshlrev_b32 v{vT0}, {STR_}, v{vLANE}")
        lend = g.newlabel("L_tl")
        tb = [(sWO, 0), (sWG, 0), (sWU, 0), (sWD, 0), (sOUT, 0), (sWS, 0), (sWS, 0x400000), (sWS, 0x800000)]
        for w_, (r, off) in enumerate(tb):
            l2 = g.newlabel("L_tl")
            if w_ < 7:
                I(f"s_cmp_lg_u32 s{sW}, {w_}")
                I(f"s_cbranch_scc1 {l2}")
                g.cond_begin()
            I(f"s_mov_b32 s{sT0}, {off}")
            I(f"buffer_load_dword v{vDMY}, v{vT0}, {srd(r)}, s{sT0} offen")
            if w_ < 7:
                g.cond_end()
                I(f"s_branch {lend}")
                g.label(l2)
        g.label(lend)
    sentinels0()
    bgq(1)
    for seg in range(7):
        g.wait(tx[seg])
        I(f"ds_read_b128 {vr(XF+8*seg,4)}, v{vXR0} offset:{seg*1024}")
        t = I(f"ds_read_b128 {vr(XF+8*seg+4,4)}, v{vXR1} offset:{seg*1024}")
        if seg in (1, 2, 3, 4):
            bgq()
        g.wait(t)
        for k in range(8):
            r = XF + 8 * seg + k
            I(f"v_dot2_f32_bf16 v{S1+k%4}, v{r}, v{vT5}, v{S1+k%4}")
            I(f"v_dot2_f32_bf16 v{S2+k%4}, v{r}, v{r}, v{S2+k%4}")
    I("s_setprio 1")
    stamp("x stats")
    I(f"v_add_f32 v{S1}, v{S1}, v{S1+1}")
    I(f"v_add_f32 v{S1+2}, v{S1+2}, v{S1+3}")
    I(f"v_add_f32 v{S2}, v{S2}, v{S2+1}")
    I(f"v_add_f32 v{S2+2}, v{S2+2}, v{S2+3}")
    I(f"v_add_f32 v{S1}, v{S1}, v{S1+2}")
    I(f"v_add_f32 v{S2}, v{S2}, v{S2+2}")
    for lv in (16, 32):
        I(f"v_mov_b32 v{S1+1}, v{S1}")
        I(f"v_mov_b32 v{S2+1}, v{S2}")
        I(f"v_permlane{lv}_swap_b32 v{S1}, v{S1+1}")
        I(f"v_permlane{lv}_swap_b32 v{S2}, v{S2+1}")
        I(f"v_add_f32 v{S1}, v{S1}, v{S1+1}")
        I(f"v_add_f32 v{S2}, v{S2}, v{S2+1}")
    I(f"v_mul_f32 v{S1}, {f32(1/448)}, v{S1}")
    I(f"v_mul_f32 v{S2}, {f32(1/448)}, v{S2}")
    I(f"v_fma_f32 v{S2}, -v{S1}, v{S1}, v{S2}")
    I(f"v_max_f32 v{S2}, 0, v{S2}")
    I(f"v_add_f32 v{S2}, {f32(1e-5)}, v{S2}")
    RS, NB = ACCV, ACCV + 2
    I(f"v_rsq_f32 v{RS}, v{S2}")
    I(f"v_mul_f32 v{NB}, v{S1}, v{RS}")
    I(f"v_sub_f32 v{NB}, 0, v{NB}")
    I(f"v_mov_b32 v{RS+1}, v{RS}")
    I(f"v_mov_b32 v{NB+1}, v{NB}")
    TP = WF
    CSR = 248
    tcs = tinit = None
    for k in range(0, 56, 8):
        for u in range(8):
            I(f"v_lshlrev_b32 v{TP+2*u}, 16, v{XF+k+u}")
            I(f"v_and_b32 v{TP+2*u+1}, 0xffff0000, v{XF+k+u}")
        for u in range(8):
            I(f"v_pk_fma_f32 {vr(TP+2*u,2)}, {vr(TP+2*u,2)}, {vr(RS,2)}, {vr(NB,2)}")
        for u in range(8):
            I(f"v_cvt_pk_bf16_f32 v{XF+k+u}, v{TP+2*u}, v{TP+2*u+1}")
    I("s_setprio 0")
    stamp("normalized")
    I(f"v_mul_u32_u24 v{vT0}, 224, v{vG}")
    I(f"v_add_u32 v{vT0}, {LDS_WPL}, v{vT0}")
    I(f"v_lshl_add_u32 v{TMP}, v{vM16}, 1, v{vT0}")
    I(f"v_lshrrev_b32 v{vT2}, 2, v{vM16}")
    I(f"v_sub_u32 v{vT2}, v{vM16}, v{vT2}")
    I(f"v_lshl_add_u32 v{vT2}, v{vT2}, 1, v{vT0}")
    I(f"v_add_u32 v{TMP+1}, 32, v{vT2}")
    I(f"v_mov_b32 v{vT1}, {LDS_WPL + 1600}")
    I(f"v_and_b32 v{vT2}, 3, v{vM16}")
    I(f"v_cmp_eq_u32 vcc, 3, v{vT2}")
    I(f"v_cndmask_b32 v{TMP+1}, v{TMP+1}, v{vT1}, vcc")
    I(f"v_cmp_eq_u32 vcc, 3, v{vG}")
    I(f"v_cndmask_b32 v{TMP+2}, v{TMP}, v{vT1}, vcc")
    I(f"v_cndmask_b32 v{TMP+3}, v{TMP+1}, v{vT1}, vcc")
    I(f"v_add_u32 v{vTRb}, {LDS_WK}, v{vTR}")
    I(f"v_xor_b32 v{vTRc}, 32, v{vTRb}")
    def cs_loads():
        I(f"s_and_b32 s{sT0}, s{sW}, 1")
        I(f"s_cmp_eq_u32 s{sT0}, 1")
        I(f"s_cselect_b32 s4, s{sWU}, s{sWG}")
        I(f"s_cselect_b32 s5, s{sWU+1}, s{sWG+1}")
        I(f"s_mov_b32 s6, 1605632")
        I(f"s_mov_b32 s7, 0x20000")
        I(f"s_lshl_b32 s{sT0}, s{sG}, 2")
        I(f"s_lshr_b32 s{sT1}, s{sW}, 1")
        I(f"s_add_u32 s{sT0}, s{sT0}, s{sT1}")
        I(f"s_mul_i32 s{sT0}, s{sT0}, {7*3584}")
        I(f"s_lshl_b32 s{sT1}, s{sJC}, 8")
        I(f"s_add_u32 s{sT0}, s{sT0}, s{sT1}")
        I(f"s_cmp_ge_u32 s{sJC}, 14")
        I(f"s_cselect_b32 s{sT1}, {OOB}, 0")
        I(f"v_lshlrev_b32 v{vXA0}, 2, v{vLANE}")
        I(f"v_add_u32 v{vXA0}, s{sT1}, v{vXA0}")
        for r in range(7):
            if r:
                I(f"s_add_u32 s{sT0}, s{sT0}, 3584")
            tcs_ = I(f"buffer_load_dword v{CSR+r}, v{vXA0}, s[4:7], s{sT0} offen")
        return tcs_

    def init_load():
        I(f"v_mov_b32 v{vCNT}, 0")
        return I(f"buffer_load_dword v{vINIT}, v{vCNT}, {srd(sDBG)}, 0 offen sc1")
    bg_add("sent", sentinels)
    bg_add("cs", cs_loads)
    for i in (4, 5, 6):
        bg_add(f"w{i}", lambda i=i: rawW(i))
    bgq(int(os.environ.get("PRE1", "2")))
    g.wait(bt["wk3"])
    g.wait_all(vm=False)
    I("s_barrier")
    init_signal()

    def rdk(c, dst):
        I(f"ds_read_b64_tr_b16 {vr(dst,2)}, v{vTRb} offset:{c*2048}")
        I(f"ds_read_b64_tr_b16 {vr(dst+2,2)}, v{vTRb} offset:{c*2048+256}")
        I(f"ds_read_b64_tr_b16 {vr(dst+4,2)}, v{vTRc} offset:{c*2048}")
        return I(f"ds_read_b64_tr_b16 {vr(dst+6,2)}, v{vTRc} offset:{c*2048+256}")

    tphi = None
    for u in range(2):
        for j in range(8):
            d0 = j if j < 4 else 16 + j - 4
            va = TMP + u + (2 if j >= 4 else 0)
            dst = (WPH2 if j & 1 else WPHI) + 4 * u + j // 2
            tphi = I(f"ds_read_u16 v{dst}, v{va} offset:{d0*56}")
    I(f"v_lshrrev_b32 v{vWOA}, 3, v{vLANE}")
    I(f"v_mul_u32_u24 v{vWOA}, 896, v{vWOA}")
    I(f"v_and_b32 v{vT1}, 7, v{vLANE}")
    I(f"v_lshlrev_b32 v{vT2}, 1, v{vG}")
    I(f"v_xor_b32 v{vT1}, v{vT1}, v{vT2}")
    I(f"v_lshl_add_u32 v{vWOA}, v{vT1}, 4, v{vWOA}")
    I(f"s_lshl_b32 s{sWOB}, s{sNQ}, 1")
    I(f"s_add_u32 s{sWOB}, s{sWOB}, s{sWH}")
    I(f"s_cmp_eq_u32 s{sWOB}, 7")
    I(f"s_cselect_b32 s{sT1}, {OOB}, 0")
    I(f"s_lshl_b32 s{sWOB}, s{sWOB}, 7")
    I(f"s_add_u32 s{sWOB}, s{sWOB}, s{sT1}")
    I(f"s_mul_i32 s{sT1}, s{sW3}, {112*896}")
    I(f"s_add_u32 s{sWOB}, s{sWOB}, s{sT1}")
    two = {}

    def wo_load(i):
        two[i] = dma2(vWOA, sWO, sWOB, i * 8 * 896, sLW, i * 1024, stmp=sBG)
    for i in range(4, 10):
        bg_add(f"wo{i}", lambda i=i: wo_load(i))
    KH = eval(os.environ.get('KH', '(2, 6, 10)'))
    chain16(ACC, rdk, hook=lambda c: bgq() if c in KH else None)
    for i in range(8):
        I(f"v_lshl_or_b32 v{WPHI+i}, v{WPH2+i}, 16, v{WPHI+i}")
    stamp("k chain")
    I(f"v_lshrrev_b32 v{vT0}, 1, v{vG}")
    I(f"v_mul_u32_u24 v{vT0}, {UNIT-1024}, v{vT0}")
    I(f"v_add_u32 v{vTRb}, v{vT0}, v{vTR}")
    I(f"v_xor_b32 v{vTRc}, 32, v{vTRb}")
    I(f"v_add_u32 v{vXR0}, 57344, v{vTRb}")
    I(f"v_add_u32 v{vXR1}, 57344, v{vTRc}")
    g.wait(bt['w3'])
    I("s_barrier")
    stamp("wv ready")

    def rdw(isq):
        def rd(c, dst):
            n0 = 2 * c
            if not isq:
                unit, off = n0 % 8, (n0 // 8) * 1024
            elif n0 < 24:
                unit, off = n0 % 8, 10240 + (1 + n0 // 8) * 1024
            else:
                unit, off = 4 + n0 - 24, 10240
            a0, a1 = (vTRb, vTRc) if unit < 4 else (vXR0, vXR1)
            off += (unit % 4) * UNIT
            I(f"ds_read_b64_tr_b16 {vr(dst,2)}, v{a0} offset:{off}")
            I(f"ds_read_b64_tr_b16 {vr(dst+2,2)}, v{a0} offset:{off+256}")
            I(f"ds_read_b64_tr_b16 {vr(dst+4,2)}, v{a1} offset:{off}")
            return I(f"ds_read_b64_tr_b16 {vr(dst+6,2)}, v{a1} offset:{off+256}")
        return rd

    g.begin()
    chain16(ACCV, rdw(False), swap=True, hook=lambda c: bgq() if c in eval(os.environ.get('VH', '(1,3,5,7,9,11,13)')) else None)
    main = g.end()
    g.begin()
    featmap(ACC, PH)
    for s_ in range(2):
        for u in range(2):
            I(f"v_mfma_f32_16x16x32_bf16 {vr(TMP+8*s_+4*u,4)}, {vr(PH+4*s_,4)}, {vr(SEL+4*u,4)}, 0")
    side = g.end()
    g.put(interleave(main, side, every=1, per=4))
    PT = PH
    for k in range(8):
        I(f"v_cvt_pk_bf16_f32 v{PT+k}, v{TMP+2*k}, v{TMP+2*k+1}")
    VF = ACC
    I(f"v_cmp_le_u32 vcc, 12, v{vM16}")
    for k in range(4):
        I(f"v_cvt_pk_bf16_f32 v{VF+k}, v{ACCV+2*k}, v{ACCV+2*k+1}")
    I(f"v_cndmask_b32 v{VF+2}, v{VF+2}, v{vT5}, vcc")
    I(f"v_cndmask_b32 v{VF+3}, v{VF+3}, v{vT5}, vcc")
    I(f"s_lshr_b32 s{sT0}, s{sW}, 1")
    I(f"s_lshl_b32 s{sT0}, s{sT0}, 10")
    I(f"s_and_b32 s{sT1}, s{sW}, 1")
    I(f"s_lshl_b32 s{sT1}, s{sT1}, 3")
    I(f"s_add_u32 s{sT0}, s{sT0}, s{sT1}")
    I(f"s_add_u32 s{sT0}, s{sT0}, {LDS_WK}")
    I(f"v_add_u32 v{vT0}, s{sT0}, v{vL16}")
    for k in range(4):
        I(f"ds_write_b64 v{vT0}, {vr(PT+2*k,2)} offset:{k*4096}")
    for k in range(2):
        I(f"ds_write_b64 v{vT0}, {vr(VF+2*k,2)} offset:{(4+k)*4096}")
    g.wait(bt['cs'])
    I(f"v_mov_b32 v{ACCV}, 0\nv_mov_b32 v{ACCV+1}, 0")
    for r in range(7):
        I(f"v_dot2_f32_bf16 v{ACCV}, v{CSR+r}, v{vT3}, v{ACCV}")
        I(f"v_dot2_f32_bf16 v{ACCV+1}, v{CSR+r}, v{vT4}, v{ACCV+1}")
    I(f"v_lshlrev_b32 v{vT1}, 3, v0")
    I(f"v_add_u32 v{vT1}, {LDS_KVF}, v{vT1}")
    I(f"ds_write_b64 v{vT1}, {vr(ACCV,2)}")
    I(f"s_lshl_b32 s{sT0}, s{sWH}, 1")
    I(f"s_and_b32 s{sT1}, s{sW}, 1")
    I(f"s_add_u32 s{sT0}, s{sT0}, s{sT1}")
    I(f"s_lshl_b32 s{sT0}, s{sT0}, 12")
    I(f"s_add_u32 s{sT0}, s{sT0}, {LDS_WK}")
    I(f"v_add_u32 v{vT0}, s{sT0}, v{vL16}")
    I(f"s_bfe_u32 s{sT0}, s{sW}, 0x10001")
    I(f"s_lshl_b32 s{sT0}, s{sT0}, 12")
    I(f"s_add_u32 s{sT0}, s{sT0}, {LDS_WK + 4*4096}")
    I(f"v_add_u32 v{vT1}, s{sT0}, v{vL16}")
    g.wait(bt['w6'])
    g.wait_all(vm=False)
    I("s_barrier")
    R = WF
    tk = {}
    for p in range(4):
        I(f"ds_read_b128 {vr(R+8*p,4)}, v{vT0} offset:{p*1024}")
        tk[p] = I(f"ds_read_b128 {vr(R+8*p+4,4)}, v{vT1} offset:{p*1024}")
    I(f"v_lshlrev_b32 v{vXA0}, 2, v0")
    I(f"v_and_b32 v{vXA0}, 1023, v{vXA0}")
    I(f"v_add_u32 v{vXA0}, {LDS_KVF}, v{vXA0}")
    I(f"ds_read2st64_b32 {vr(ACCV,2)}, v{vXA0} offset0:0 offset1:4")
    tq = I(f"ds_read2st64_b32 {vr(ACCV+2,2)}, v{vXA0} offset0:8 offset1:12")
    for p in range(4):
        g.wait(tk[p])
        I(f"v_mfma_f32_16x16x32_bf16 {vr(ACC,4)}, {vr(R+8*p,4)}, {vr(R+8*p+4,4)}, {'0' if p == 0 else vr(ACC,4)}")
    g.wait(tq)
    I(f"v_add_f32 v{ACCV}, v{ACCV}, v{ACCV+1}")
    I(f"v_add_f32 v{ACCV+2}, v{ACCV+2}, v{ACCV+3}")
    I(f"v_add_f32 v{ACCV}, v{ACCV}, v{ACCV+2}")
    I(f"v_cvt_pk_bf16_f32 v{ACC+4}, v{ACC}, v{ACC+1}")
    I(f"v_cvt_pk_bf16_f32 v{ACC+5}, v{ACC+2}, v{ACC+3}")
    I(f"buffer_store_dwordx2 {vr(ACC+4,2)}, v{vT8}, {srd(sWS)}, s{sKVS} offen sc1")
    I(f"buffer_store_dword v{ACCV}, v{vCSS}, {srd(sWS)}, s{sCSS} offen sc1")
    stamp("kv stored")
    I(f"v_lshlrev_b32 v{vCNT}, 4, v{vM16}")
    tini = I(f"buffer_load_dword v{vINIT}, v{vCNT}, {srd(sDBG)}, s{sCL} offen sc1")
    for i in range(4):
        bg_add(f"wo{i}", lambda i=i: wo_load(i))
    chain16(ACC, rdw(True), hook=lambda c: bgq() if c % 2 == 1 else None)
    bgq(99)
    c_bg(0, 0, 0, 56, 0, "qdone")
    c_bg(1, 0, 0, 24, 57344, "qdone")
    lr, lb = g.newlabel("L_ir"), g.newlabel("L_ib")
    I(f"s_cmp_lg_u32 s{sW}, 0")
    I(f"s_cbranch_scc1 {lb}")
    g.cond_begin()
    g.wait(tini)
    I(f"v_cmp_gt_u32 vcc, 16, v{vINIT}")
    I(f"s_cmp_lg_u64 vcc, 0")
    I(f"s_cbranch_scc1 {lr}")
    g.cond_end()
    g.label(lb)
    g.begin()
    g.label(lr)
    init_check()
    I(f"s_branch {lb}")
    TAILS.append(g.end())
    I("s_barrier")
    for i in range(10, 14):
        wo_load(i)
    featmap(ACC, PH)
    GR, R, AO, OS = 40, 96, 176, 184
    WOF = 112
    vB1, vB2, vB3 = 188, 189, 190
    vK0, vK1, vK2 = 191, 192, 193
    stamp("q done")

    I(f"s_lshl_b32 s{sT0}, s{sWH}, 15")
    I(f"s_lshl_b32 s{sT1}, s{sW3}, 10")
    I(f"s_add_u32 s{sGATH}, s{sGATH}, s{sT0}")
    I(f"s_add_u32 s{sGATH}, s{sGATH}, s{sT1}")

    def gat_issue():
        tl = []
        I(f"s_mov_b32 s{sT0}, s{sGATH}")
        for rb in range(8):
            if rb:
                I(f"s_add_u32 s{sT0}, s{sT0}, 4096")
            tl.append(I(f"buffer_load_dwordx4 {vr(GR+4*rb,4)}, v{vL16}, {srd(sWS)}, s{sT0} offen sc1"))
        return tl

    def gat_body(tl):
        for i in range(8):
            I(f"v_mov_b32 v{R+i}, 0")
        for rb in range(8):
            g.wait(tl[rb])
            for i in range(4):
                I(f"v_dot2_f32_bf16 v{R+2*i}, v{GR+4*rb+i}, v{vT3}, v{R+2*i}")
                I(f"v_dot2_f32_bf16 v{R+2*i+1}, v{GR+4*rb+i}, v{vT4}, v{R+2*i+1}")

    def wo_bounce():
        c_setup()
        d_setup()
        I(f"v_lshrrev_b32 v{vK0}, 2, v{vM16}")
        I(f"v_sub_u32 v{vK0}, v{vM16}, v{vK0}")
        I(f"v_and_b32 v{vT1}, 3, v{vM16}")
        I(f"v_cmp_eq_u32 vcc, 3, v{vT1}")
        I(f"v_cndmask_b32 v{vK0}, v{vK0}, 12, vcc")
        I(f"v_lshl_add_u32 v{vK0}, v{vG}, 4, v{vK0}")
        I(f"v_lshlrev_b32 v{vK0}, 4, v{vK0}")
        I(f"v_add_u32 v{vK0}, {LDS_KV2}, v{vK0}")
        I(f"v_add_u32 v{vK1}, {LDS_KV2}, v{vL16}")
        I(f"v_and_b32 v{vK2}, 31, v{vLANE}")
        I(f"v_lshlrev_b32 v{vK2}, 5, v{vK2}")
        I(f"v_lshrrev_b32 v{vT1}, 5, v{vLANE}")
        I(f"v_lshl_add_u32 v{vK2}, v{vT1}, 3, v{vK2}")
        I(f"v_add_u32 v{vK2}, s{sCL}, v{vK2}")
        I(f"v_add_u32 v{vK2}, {LDS_KV2}, v{vK2}")
        I(f"v_bfe_u32 v{vT1}, v{vLANE}, 2, 2")
        I(f"v_lshl_add_u32 v{vB1}, v{vG}, 2, v{vT1}")
        I(f"v_min_u32 v{vT1}, 2, v{vT1}")
        I(f"v_mad_u32_u24 v{vB2}, v{vG}, 3, v{vT1}")
        I(f"v_add_u32 v{vB2}, 16, v{vB2}")
        I(f"v_and_b32 v{vT1}, 3, v{vLANE}")
        I(f"v_lshlrev_b32 v{vT1}, 3, v{vT1}")
        I(f"v_add_u32 v{vT1}, s{sLW}, v{vT1}")
        AD = 72
        for rd_, vb in enumerate((vB1, vB2)):
            I(f"v_bfe_u32 v{vT2}, v{vb}, 1, 2")
            I(f"v_lshlrev_b32 v{vT2}, 5, v{vT2}")
            I(f"v_lshl_add_u32 v{vT2}, v{vb}, 7, v{vT2}")
            I(f"v_add_u32 v{AD+4*rd_}, v{vT2}, v{vT1}")
            for x in range(1, 4):
                I(f"v_xor_b32 v{AD+4*rd_+x}, {32*x}, v{AD+4*rd_}")
        g.wait(two[13])
        for hh in range(4):
            for nt in range(4):
                d = WOF + (hh * 4 + nt) * 4
                x = nt ^ (2 * (hh & 1))
                I(f"ds_read_b64_tr_b16 {vr(d,2)}, v{AD+x} offset:{hh*3584}")
                I(f"ds_read_b64_tr_b16 {vr(d+2,2)}, v{AD+4+x} offset:{hh*3584}")
    spec_load(gat_issue, [GR + 2 * k for k in range(16)], R + 12, gat_body, wo_bounce)
    g.mark("gdone")
    for i in range(4):
        I(f"v_cvt_pk_bf16_f32 v{R+8+i}, v{R+2*i}, v{R+2*i+1}")
    I(f"ds_write_b64 v{vK2}, {vr(R+8,2)}")
    I(f"ds_write_b64 v{vK2}, {vr(R+10,2)} offset:16")
    g.wait_all(vm=False)
    stamp("gathered")
    I("s_barrier")
    g.mark("qdone")
    g.mark("burst:" + os.environ.get("BB0", "2"))
    KF = 40
    tk = {}
    for hf_ in range(2):
        for s_ in range(2):
            I(f"ds_read_b128 {vr(KF+16*hf_+8*s_,4)}, v{vK1} offset:{hf_*4096+s_*2048}")
            tk[hf_, s_] = I(f"ds_read_b128 {vr(KF+16*hf_+8*s_+4,4)}, v{vK0} offset:{hf_*4096+s_*2048+1024}")
    for hf_ in range(2):
        for s_ in range(2):
            g.wait(tk[hf_, s_])
            for t in range(2):
                a = vr(AO + 4 * t, 4)
                I(f"v_mfma_f32_16x16x32_bf16 {a}, {vr(KF+16*hf_+8*s_+4*t,4)}, {vr(PH+4*s_,4)}, {'0' if (s_ == 0 and hf_ == 0) else a}")
    I(f"v_add_f32 v{vT1}, {f32(1e-6)}, v{AO+7}")
    I(f"v_rcp_f32 v{vT1}, v{vT1}")
    for i in range(7):
        I(f"v_mul_f32 v{AO+i}, v{AO+i}, v{vT1}")
    for i in range(3):
        I(f"v_cvt_pk_bf16_f32 v{OS+i}, v{AO+2*i}, v{AO+2*i+1}")
    I(f"v_cvt_pk_bf16_f32 v{OS+3}, v{AO+6}, 0")
    I(f"buffer_store_dwordx4 {vr(OS,4)}, v{vL16}, {srd(sWS)}, s{sOS} offen sc1")
    stamp("o stored")
    if "t2b" in EXP:
        touch2()
    g.mark("on")
    return two


def woraw(i):
    return vr(216 + 4 * i, 4) if i < 8 else vr(WR + 4 * (i - 8), 4)


def phaseB(two):
    g.comment("==== phase B ====")
    OF = 216
    XR, XU, CSG = 176, 180, 188
    WOF = 112
    BACC = 72
    vB1, vB2, vB3 = 196, 197, 198
    vD1, vD2, vD3 = 199, 200, 201
    I(f"s_lshl_b32 s{sT0}, s{sMTB}, 2")
    I(f"s_add_u32 s{sT0}, s{sT0}, s{sW3}")
    I(f"s_mul_i32 s{sT0}, s{sT0}, {8*896}")
    I(f"s_lshl_b32 s{sT1}, s{sNQ}, 8")
    I(f"s_add_u32 s{sT0}, s{sT0}, s{sT1}")
    I(f"s_lshl_b32 s{sT1}, s{sWH}, 7")
    I(f"s_add_u32 s{sT0}, s{sT0}, s{sT1}")
    I(f"s_add_u32 s{sT0}, s{sT0}, s{sINV}")
    I(f"v_and_b32 v{vT4}, 7, v{vLANE}")
    I(f"v_lshrrev_b32 v{vT5}, 3, v{vLANE}")
    I(f"v_mul_u32_u24 v{vT0}, 896, v{vT5}")
    I(f"v_lshl_add_u32 v{vT0}, v{vT4}, 4, v{vT0}")
    I(f"s_cmp_ge_u32 s{sW}, 4")
    I(f"s_mov_b32 s{sT2}, 81920")
    I(f"s_cmov_b32 s{sT2}, {LDS_KVF - 4096}")
    I(f"s_add_u32 s{sT2}, s{sT2}, s{sCL}")
    g.mark("off")
    I(f"s_mov_b32 m0, s{sT2}")
    I(f"v_lshlrev_b32 v{vB3}, 7, v{vT4}")
    txd = I(f"buffer_load_dwordx4 v{vT0}, {srd(sX)}, s{sT0} offen lds")
    g.mark("on")
    I(f"v_lshl_add_u32 v{vB3}, v{vT5}, 4, v{vB3}")
    I(f"v_add_u32 v{vB3}, s{sT2}, v{vB3}")
    g.mark("burst:" + os.environ.get("BB1", "3"))
    I(f"s_lshl_b32 s{sD}, s{sMTB}, 5")
    I(f"s_lshl_b32 s{sT1}, s{sW3}, 2")
    I(f"s_add_u32 s{sD}, s{sD}, s{sT1}")
    I(f"s_lshl_b32 s{sD}, s{sD}, 10")
    I(f"s_add_u32 s{sD}, s{sD}, {WS_O}")
    I(f"s_add_u32 s{sE}, s{sD}, 16384")
    BS2 = 83968
    I(f"s_mul_i32 s{sT0}, s{sW3}, 18432")
    I(f"s_mul_i32 s{sT1}, s{sWH}, {8*1152}")
    I(f"s_add_u32 s{sT0}, s{sT0}, s{sT1}")
    I(f"s_add_u32 s{sT0}, s{sT0}, {BS2}")
    I(f"v_lshrrev_b32 v{vT1}, 1, v{vG}")
    I(f"v_mul_u32_u24 v{vT1}, 1152, v{vT1}")
    I(f"v_and_b32 v{vT2}, 1, v{vG}")
    I(f"v_lshl_add_u32 v{vT1}, v{vT2}, 9, v{vT1}")
    I(f"v_lshl_add_u32 v{vT1}, v{vM16}, 4, v{vT1}")
    I(f"v_add_u32 v{vB1}, s{sT0}, v{vT1}")
    I(f"s_lshl_b32 s{sT0}, s{sW3}, 7")
    I(f"s_add_u32 s{sT0}, s{sT0}, s{sT1}")
    I(f"s_add_u32 s{sT0}, s{sT0}, {BS2}")
    I(f"v_mul_u32_u24 v{vT1}, 1152, v{vT5}")
    I(f"v_lshl_add_u32 v{vT1}, v{vT4}, 4, v{vT1}")
    I(f"v_add_u32 v{vB2}, s{sT0}, v{vT1}")
    I(f"v_cmp_gt_u32 vcc, 0x10000, v{vHSA}")
    I(f"v_cndmask_b32 v{vT3}, 0, -1, vcc")
    stats_addr(vT2, vT0, vT1)
    I(f"v_mov_b32 v{vT5}, 0x3f803f80")
    g.wait(txd)
    txr = I(f"ds_read_b128 {vr(XR,4)}, v{vB3}")
    g.wait(txr)
    for i in range(4):
        I(f"v_lshlrev_b32 v{XU+2*i}, 16, v{XR+i}")
        I(f"v_and_b32 v{XU+2*i+1}, 0xffff0000, v{XR+i}")
    g.mark("off")
    I("s_barrier")
    stamp("wo ready")

    def o_issue():
        tl = []
        for hh in range(4):
            for mt in range(2):
                tl.append(I(f"buffer_load_dwordx4 {vr(OF+(hh*2+mt)*4,4)}, v{vL16}, {srd(sWS)}, s{sE if mt else sD} offen offset:{hh*1024} sc1"))
        return tl

    def o_body(tl):
        for hh in range(4):
            for mt in range(2):
                g.wait(tl[hh * 2 + mt])
                for nt in range(4):
                    a = BACC + (mt * 4 + nt) * 4
                    I(f"v_mfma_f32_16x16x32_bf16 {vr(a,4)}, {vr(WOF+(hh*4+nt)*4,4)}, {vr(OF+(hh*2+mt)*4,4)}, {'0' if hh == 0 else vr(a,4)}")
    spec_load(o_issue, [OF + 4 * k for k in range(8)], vT0, o_body)
    stamp("B mfma")
    for mt in range(2):
        for nt in range(4):
            I(f"ds_write_b128 v{vB1}, {vr(BACC+(mt*4+nt)*4,4)} offset:{nt*2304+mt*256}")
    I(f"s_lshl_b32 s{sT0}, s{sJC}, 14")
    I(f"s_lshl_b32 s{sT1}, s{sWH}, 13")
    I(f"s_add_u32 s{sT0}, s{sT0}, s{sT1}")
    I(f"s_add_u32 s{sD}, s{sT0}, {WS_CS}")
    I(f"s_add_u32 s{sE}, s{sD}, 4096")
    I(f"v_lshlrev_b32 v{vB3}, 2, v0")
    I(f"v_and_b32 v{vB3}, 1023, v{vB3}")

    def cs_issue():
        return [I(f"buffer_load_dword v{CSG+rb}, v{vB3}, {srd(sWS)}, s{sE if rb >= 4 else sD} offen offset:{(rb%4)*1024} sc1") for rb in range(8)]
    tcs8 = cs_issue()
    g.mark("burst:3")
    S1, S2 = 104, 105
    I(f"v_mov_b32 v{S1}, 0\nv_mov_b32 v{S2}, 0")
    g.wait_all(vm=False)
    I("s_barrier")
    b = 72
    for w in range(4):
        for q in range(2):
            I(f"ds_read_b128 {vr(b+w*8+q*4,4)}, v{vB2} offset:{w*18432+q*512}")
    g.wait_all(vm=False)
    HP = 108
    for i in range(8):
        I(f"v_add_f32 v{b+i}, v{b+i}, v{b+8+i}")
        I(f"v_add_f32 v{b+16+i}, v{b+16+i}, v{b+24+i}")
    for i in range(8):
        I(f"v_add_f32 v{b+i}, v{b+i}, v{XU+i}")
    for i in range(8):
        I(f"v_add_f32 v{b+i}, v{b+i}, v{b+16+i}")
    for i in range(4):
        I(f"v_cvt_pk_bf16_f32 v{HP+i}, v{b+2*i}, v{b+2*i+1}")
    I(f"buffer_store_dwordx4 {vr(HP,4)}, v{vHSA}, {srd(sWS)}, s{sHS} offen sc1")
    for i in range(4):
        I(f"v_dot2_f32_bf16 v{S1}, v{HP+i}, v{vT5}, v{S1}")
        I(f"v_dot2_f32_bf16 v{S2}, v{HP+i}, v{HP+i}, v{S2}")
    I(f"v_and_b32 v{S1}, v{vT3}, v{S1}")
    I(f"v_and_b32 v{S2}, v{vT3}, v{S2}")
    for ror in (8,):
        I(f"v_add_f32_dpp v{S1}, v{S1}, v{S1} row_ror:{ror} row_mask:0xf bank_mask:0xf")
        I(f"v_add_f32_dpp v{S2}, v{S2}, v{S2} row_ror:{ror} row_mask:0xf bank_mask:0xf")
    for lv in (16, 32):
        I(f"v_mov_b32 v106, v{S1}\nv_mov_b32 v107, v{S2}")
        I(f"v_permlane{lv}_swap_b32 v{S1}, v106")
        I(f"v_permlane{lv}_swap_b32 v{S2}, v107")
        I(f"v_add_f32 v{S1}, v{S1}, v106")
        I(f"v_add_f32 v{S2}, v{S2}, v107")
    I(f"buffer_store_dwordx2 v[{S1}:{S2}], v{vT2}, {srd(sWS)}, s{sSS} offen sc1")
    stamp("h stored")
    lr, lb = g.newlabel("L_sr"), g.newlabel("L_sb")
    g.wait(tcs8[-1])
    sent_check([CSG + rb for rb in range(8)], vT0)
    I(f"s_cmp_lg_u64 vcc, 0")
    I(f"s_cbranch_scc1 {lr}")
    g.label(lb)
    g.begin()
    g.label(lr)
    check_loop(cs_issue, [CSG + rb for rb in range(8)], vT0)
    I(f"s_branch {lb}")
    TAILS.append(g.end())
    for k in (4, 2, 1):
        for i in range(k):
            I(f"v_add_f32 v{CSG+i}, v{CSG+i}, v{CSG+k+i}")
    I(f"v_lshlrev_b32 v{vB3}, 2, v0")
    I(f"v_add_u32 v{vB3}, {LDS_KVF}, v{vB3}")
    I(f"ds_write_b32 v{vB3}, v{CSG}")
    g.wait_all(vm=False)
    I("s_barrier")
    I(f"s_cmp_ge_u32 s{sJC}, 14")
    I("s_cbranch_scc1 L_end")
    tb2 = c_batch(1, 0, 24, 56, 57344 + 24576)


GK1 = -2.0 * math.sqrt(2.0 / math.pi) * LOG2E
GK2 = GK1 * 0.044715
LDS_X = 114688
vHB, vM, vWD = 254, 255, 253
sWDB = 80
WDE = 16
NWDE = 7
NWDC = int(os.environ.get('NWDC', '2'))


def hh_signal(stage, toks):
    g.wait(*toks)
    I("s_barrier")
    lab = g.newlabel("L_hs")
    I(f"s_cmp_lg_u32 s{sW}, 0")
    I(f"s_cbranch_scc1 {lab}")
    g.cond_begin()
    I("s_mov_b64 exec, 1")
    I(f"s_lshl_b32 s{sT0}, s{sG}, 8")
    I(f"s_add_u32 s{sT0}, s{sT0}, {WS_CNT + CNT_HH * 4096 + 64 * stage}")
    I(f"v_mov_b32 v{vCNT}, s{sT0}")
    I(f"buffer_atomic_add v{vONE}, v{vCNT}, {srd(sWS)}, 0 offen sc1")
    I("s_mov_b64 exec, -1")
    g.cond_end()
    g.label(lab)


def hh_poll(stage_sreg_or_imm):
    I("s_mov_b64 exec, 1")
    I(f"s_lshl_b32 s{sT0}, s{sGB}, 8")
    I(f"s_add_u32 s{sT0}, s{sT0}, {WS_CNT + CNT_HH * 4096}")
    I(f"s_add_u32 s{sT0}, s{sT0}, {stage_sreg_or_imm}")
    I(f"v_mov_b32 v{vCNT}, s{sT0}")
    poll(sWS, vCNT, 14)
    I("s_mov_b64 exec, -1")


def d_setup():
    I(f"v_lshrrev_b32 v{vHB}, 5, v{vLANE}")
    I(f"v_and_b32 v{vM}, 31, v{vLANE}")
    I(f"v_lshrrev_b32 v{vT0}, 3, v{vLANE}")
    I(f"v_mul_u32_u24 v{vT0}, 896, v{vT0}")
    I(f"v_and_b32 v{vT1}, 1, v{vG}")
    I(f"v_lshlrev_b32 v{vT1}, 2, v{vT1}")
    I(f"v_and_b32 v{vWD}, 7, v{vLANE}")
    I(f"v_xor_b32 v{vWD}, v{vWD}, v{vT1}")
    I(f"v_lshl_add_u32 v{vWD}, v{vWD}, 4, v{vT0}")
    I(f"s_cmp_ge_u32 s{sJB}, 7")
    I(f"s_cselect_b32 s{sRH}, 1, 0")
    I(f"s_mul_i32 s{sT0}, s{sRH}, 7")
    I(f"s_sub_u32 s{sCB}, s{sJB}, s{sT0}")
    I(f"s_lshl_b32 s{sT0}, s{sWH}, 1")
    I(f"s_add_u32 s{sT0}, s{sT0}, s{sW}")
    I(f"s_and_b32 s{sAA}, s{sT0}, 3")
    I(f"s_mul_i32 s{sKC}, s{sWH}, 56")
    I(f"s_add_u32 s{sKC}, s{sKC}, s{sAA}")
    I(f"s_mul_i32 s{sWDB}, s{sKC}, {16*896}")
    I(f"s_lshl_b32 s{sT1}, s{sCB}, 7")
    I(f"s_add_u32 s{sWDB}, s{sWDB}, s{sT1}")
    I(f"s_cmp_ge_u32 s{sJB}, 14")
    I(f"s_cselect_b32 s{sT1}, {OOB}, 0")
    I(f"s_add_u32 s{sWDB}, s{sWDB}, s{sT1}")


sRH, sCB, sAA, sKC = 64, 65, 66, 67


def kc_off(n):
    return 8 * n if n < 7 else 4 + 8 * (n - 7)


def wd_load(dst, n):
    t = None
    for hf_ in range(2):
        I(f"s_add_u32 s{sT3}, s{sWDB}, {(16*kc_off(n) + 8*hf_)*896}")
        for e in range(4):
            t = I(f"buffer_load_dword v{dst+4*hf_+e}, v{vWD}, {srd(sWD)}, s{sT3} offen offset:{e*896}")
    return t


def wd_half(dst, n, hf_):
    I(f"s_add_u32 s{sBG}, s{sWDB}, {(16*kc_off(n) + 8*hf_)*896}")
    return I(f"buffer_load_dwordx4 {vr(dst+4*hf_,4)}, v{vWD}, {srd(sWD)}, s{sBG} offen")


def dt_pattern(dst, t0, t1):
    I(f"v_bfe_u32 v{t0}, v{vLANE}, 2, 2")
    I(f"v_lshl_add_u32 v{t1}, v{vHB}, 2, v{t0}")
    I(f"v_lshlrev_b32 v{t1}, 7, v{t1}")
    I(f"v_lshrrev_b32 v{t0}, 1, v{t0}")
    I(f"v_lshl_add_u32 v{t1}, v{t0}, 6, v{t1}")
    I(f"v_and_b32 v{t0}, 1, v{vG}")
    I(f"v_lshl_add_u32 v{t1}, v{t0}, 5, v{t1}")
    I(f"v_and_b32 v{t0}, 3, v{vLANE}")
    I(f"v_lshl_add_u32 v{dst}, v{t0}, 3, v{t1}")


def c_rows(mat, dbl, r0, r1, lds_base):
    return c_batch(mat, dbl, r0, r1, lds_base)


def g1_addr(n):
    if n < 8:
        return 114688 + n * 1024
    if 24 <= n < 40:
        return 114688 + 8192 + (n - 24) * 1024
    if n < 24:
        return (n - 8) * 1024
    return 16384 + (n - 40) * 1024


def u1_addr(n):
    if n < 8:
        return 32768 + n * 1024
    if 24 <= n < 40:
        return 32768 + 8192 + (n - 24) * 1024
    if n < 24:
        return 57344 + (n - 8) * 1024
    return 57344 + 16384 + (n - 40) * 1024


def phaseCD(twd_early):
    g.comment("==== phase C ====")
    sMD, sHB, sMT = sC, sHHS, sMTC
    sAB = 7
    sL5, sL2, sL3, sL4 = 4, 5, 6, 83
    I(f"s_mul_i32 s{sL5}, s{sW}, 5120")
    I(f"s_lshl_b32 s{sL2}, s{sW}, 11")
    I(f"s_mul_i32 s{sL3}, s{sW}, 3072")
    I(f"s_lshl_b32 s{sL4}, s{sW}, 12")
    slotE = [(sL2, 40960 + i * 1024) for i in range(2)] + [(sL3, 90112 + i * 1024) for i in range(3)]
    slotM = [(sL5, 114688 + i * 1024) for i in range(5)] + [(sL2, i * 1024) for i in range(2)]
    slotL = [(sL3, 16384 + i * 1024) for i in range(3)] + [(sL4, 57344 + i * 1024) for i in range(4)]
    wslot = slotE + slotM + slotL + (slotE + slotM)[:9]
    sRW = [12, 13, 14, 15, 16, 17, 18]
    sRA = [19, 20, 21, 22, 23, 81, 82]

    def wd_dma(m):
        n, hf_ = m // 2, m % 2
        return dma2(vWD, sWD, sRW[n % 7], (16 * (4 if n >= 7 else 0) + 8 * hf_) * 896, wslot[m][0], wslot[m][1])
    c_batch(0, 1, 0, 40, 114688)
    I(f"s_lshl_b32 s{sMD}, s{sGB}, 2")
    I(f"s_lshl_b32 s{sT0}, s{sRH}, 1")
    I(f"s_add_u32 s{sMD}, s{sMD}, s{sT0}")
    I(f"s_lshl_b32 s{sE}, s{sMT}, 11")
    I(f"s_add_u32 s{sE}, s{sE}, {WS_ST}")
    I(f"s_mul_i32 s{sWB}, s{sMT}, {28*1024}")
    I(f"s_add_u32 s{sWB}, s{sWB}, {WS_H}")
    I(f"s_mul_i32 s{sAB}, s{sMD}, {112*1024}")
    I(f"s_lshl_b32 s{sT1}, s{sKC}, 10")
    I(f"s_add_u32 s{sAB}, s{sAB}, s{sT1}")
    I(f"s_add_u32 s{sAB}, s{sAB}, {WS_HH}")
    for n in range(7):
        if "norot" in EXP:
            I(f"s_mov_b32 s{sT0}, {n}")
        else:
            I(f"s_add_u32 s{sT0}, s{sCB}, {n}")
            I(f"s_sub_u32 s{sT1}, s{sT0}, 7")
            I(f"s_cmp_ge_u32 s{sT0}, 7")
            I(f"s_cselect_b32 s{sT0}, s{sT1}, s{sT0}")
        I(f"s_mul_i32 s{sT1}, s{sT0}, {8*16*896}")
        I(f"s_add_u32 s{sRW[n]}, s{sWDB}, s{sT1}")
        I(f"s_lshl_b32 s{sT1}, s{sT0}, 13")
        I(f"s_add_u32 s{sRA[n]}, s{sAB}, s{sT1}")
    HF = 16
    A_, B_, C_ = 128, 144, 160
    TM, CS2 = 176, 192
    WFc = 208
    vA0, vA1, vCSA, vFA, vA2 = 240, 241, 242, 243, 15
    K1, K2, IR2, NMU = 248, 249, 250, 251
    STR = 244
    I(f"v_bfe_u32 v{vT0}, v{vLANE}, 2, 2")
    I(f"v_lshl_add_u32 v{vT1}, v{vHB}, 3, v{vT0}")
    I(f"v_lshlrev_b32 v{vT1}, 7, v{vT1}")
    I(f"v_lshrrev_b32 v{vT0}, 1, v{vT0}")
    I(f"v_xor_b32 v{vT0}, s{sWH}, v{vT0}")
    I(f"v_lshl_add_u32 v{vT1}, v{vT0}, 6, v{vT1}")
    I(f"v_and_b32 v{vT2}, 1, v{vG}")
    I(f"v_lshl_add_u32 v{vT1}, v{vT2}, 5, v{vT1}")
    I(f"v_and_b32 v{vT2}, 3, v{vLANE}")
    I(f"v_lshl_add_u32 v{vA0}, v{vT2}, 3, v{vT1}")
    I(f"v_add_u32 v{vA1}, 57344, v{vA0}")
    I(f"v_add_u32 v{vA2}, 114688, v{vA0}")
    I(f"s_lshl_b32 s{sT0}, s{sWH}, 7")
    I(f"s_add_u32 s{sT0}, s{sT0}, {LDS_CS}")
    I(f"v_lshlrev_b32 v{vCSA}, 4, v{vHB}")
    I(f"v_add_u32 v{vCSA}, s{sT0}, v{vCSA}")
    I(f"v_mov_b32 v{vFA}, {LDS_FLG}")
    I(f"v_lshlrev_b32 v{vT3}, 3, v{vLANE}")
    flush()
    I(f"v_lshlrev_b32 v{vT0}, 2, v0")
    I(f"v_and_b32 v{vT0}, 1023, v{vT0}")
    I(f"v_add_u32 v{vT0}, {LDS_KVF}, v{vT0}")
    t = I(f"ds_read2st64_b32 v[72:73], v{vT0} offset0:0 offset1:4")
    g.wait(t)
    I(f"v_add_f32 v72, v72, v73")
    I(f"ds_write_b32 v{vT0}, v72 offset:4096")
    stamp("C ready")

    S8 = 128

    def st_issue():
        return [I(f"buffer_load_dwordx2 {vr(S8+2*i,2)}, v{vT3}, {srd(sWS)}, s{sE} offen offset:{512*i} sc1") for i in range(4)]
    check_loop(st_issue, [S8 + 2 * i for i in range(4)], vT1)
    stamp("h flag")

    def h_issue():
        tl = []
        for c in range(28):
            if c % 4 == 0:
                I(f"s_add_u32 s{sT0}, s{sWB}, {c*1024}")
            tl.append(I(f"buffer_load_dwordx4 {vr(HF+4*c,4)}, v{vL16}, {srd(sWS)}, s{sT0} offen offset:{(c%4)*1024} sc1"))
        return tl
    g.begin()
    th = h_issue()
    hl = g.end()
    g.put(hl[:10])
    g.wait_all(vm=False)
    I("s_barrier")
    for i in range(4):
        I(f"v_add_f32 v{STR+i}, v{S8+i}, v{S8+4+i}")
    I(f"v_add_f32 v{STR}, v{STR}, v{STR+2}")
    I(f"v_add_f32 v{STR+1}, v{STR+1}, v{STR+3}")
    I(f"v_mov_b32 v{STR+2}, v{STR}\nv_mov_b32 v{STR+3}, v{STR+1}")
    I(f"v_permlane32_swap_b32 v{STR}, v{STR+2}")
    I(f"v_permlane32_swap_b32 v{STR+1}, v{STR+3}")
    I(f"v_add_f32 v{STR}, v{STR}, v{STR+2}")
    I(f"v_add_f32 v{STR+1}, v{STR+1}, v{STR+3}")
    I(f"v_mul_f32 v{NMU}, {f32(-1/448)}, v{STR}")
    I(f"v_mul_f32 v{STR+1}, {f32(1/448)}, v{STR+1}")
    I(f"v_fma_f32 v{STR+1}, -v{NMU}, v{NMU}, v{STR+1}")
    I(f"v_max_f32 v{STR+1}, 0, v{STR+1}")
    I(f"v_add_f32 v{IR2}, {f32(1e-5)}, v{STR+1}")
    I(f"v_rsq_f32 v{STR}, v{IR2}")
    I(f"v_mul_f32 v{K1}, {f32(GK1)}, v{STR}")
    I(f"v_mul_f32 v{STR+1}, v{STR}, v{STR}")
    I(f"v_mul_f32 v{STR+1}, v{STR+1}, v{STR}")
    I(f"v_mul_f32 v{K2}, {f32(GK2)}, v{STR+1}")
    tails = TAILS

    def cnt_add(f):
        I("s_mov_b64 exec, 1")
        I(f"ds_add_u32 v{vFA}, v{vONE} offset:{4*f}")
        I("s_mov_b64 exec, -1")

    def cnt_issue(f):
        return I(f"ds_read_b32 v{vFLAG}, v{vFA} offset:{4*f}")

    def cnt_check(f, t):
        lr, lb = g.newlabel("L_cr"), g.newlabel("L_cb")
        g.wait(t)
        I(f"v_readfirstlane_b32 s{sT4}, v{vFLAG}")
        I(f"s_cmp_lt_u32 s{sT4}, 8")
        I(f"s_cbranch_scc1 {lr}")
        g.label(lb)
        g.begin()
        g.label(lr)
        I(f"s_mov_b32 s{sT5}, 0")
        l2 = g.newlabel("L_cl")
        g.label(l2)
        I("s_sleep 1")
        cnt_issue(f)
        I("s_waitcnt lgkmcnt(0)")
        I(f"v_readfirstlane_b32 s{sT4}, v{vFLAG}")
        I(f"s_add_u32 s{sT5}, s{sT5}, 1")
        I(f"s_cmp_ge_u32 s{sT5}, {POLL_MAX*8}")
        I(f"s_cbranch_scc1 {lb}")
        I(f"s_cmp_lt_u32 s{sT4}, 8")
        I(f"s_cbranch_scc1 {l2}")
        I(f"s_branch {lb}")
        tails.append(g.end())

    def hsig_issue(f, toks):
        g.wait(*toks)
        I("s_mov_b64 exec, 1")
        t = I(f"ds_add_rtn_u32 v{vINIT}, v{vFA}, v{vONE} offset:{4*f}")
        I("s_mov_b64 exec, -1")
        return t

    def hsig_check(stage, t):
        lab = g.newlabel("L_hs")
        g.wait(t)
        I(f"v_readfirstlane_b32 s{sT4}, v{vINIT}")
        I(f"s_cmp_lg_u32 s{sT4}, 7")
        I(f"s_cbranch_scc1 {lab}")
        g.cond_begin()
        I("s_mov_b64 exec, 1")
        I(f"s_lshl_b32 s{sT0}, s{sG}, 8")
        I(f"s_add_u32 s{sT0}, s{sT0}, {WS_CNT + CNT_HH * 4096 + 64 * stage}")
        I(f"v_mov_b32 v{vCNT}, s{sT0}")
        I(f"buffer_atomic_add v{vONE}, v{vCNT}, {srd(sWS)}, 0 offen sc1")
        I("s_mov_b64 exec, -1")
        g.cond_end()
        g.label(lab)

    def cs_read(dst, mat, dbl):
        t = None
        for q in range(4):
            t = I(f"ds_read_b128 {vr(dst+4*q,4)}, v{vCSA} offset:{mat*512 + (64*dbl+8*q)*4}")
        return t

    def gpart(ag, t):
        g.wait(t)
        for i in range(16):
            I(f"v_fmac_f32 v{ag+i}, v{NMU}, v{TM+i}")
        for i in range(16):
            I(f"v_mul_f32 v{TM+i}, v{ag+i}, v{ag+i}")
        for i in range(16):
            I(f"v_fma_f32 v{TM+i}, v{TM+i}, v{K2}, v{K1}")
        for i in range(16):
            I(f"v_mul_f32 v{TM+i}, v{TM+i}, v{ag+i}")
        for i in range(16):
            I(f"v_exp_f32 v{TM+i}, v{TM+i}")
        for i in range(16):
            I(f"v_fma_f32 v{TM+i}, v{TM+i}, v{IR2}, v{IR2}")
        for i in range(16):
            I(f"v_rcp_f32 v{TM+i}, v{TM+i}")
        for i in range(16):
            I(f"v_mul_f32 v{TM+i}, v{ag+i}, v{TM+i}")

    def upart(au, t, dbl):
        g.wait(t)
        for i in range(16):
            I(f"v_fmac_f32 v{au+i}, v{NMU}, v{CS2+i}")
        for i in range(16):
            I(f"v_mul_f32 v{au+i}, v{au+i}, v{TM+i}")
        for i in range(8):
            I(f"v_cvt_pk_bf16_f32 v{CS2+i}, v{au+2*i}, v{au+2*i+1}")
        I(f"s_add_u32 s{sE}, s{sHB}, {dbl*4096}")
        I(f"buffer_store_dwordx4 {vr(CS2,4)}, v{vL16}, {srd(sWS)}, s{sE} offen sc1")
        return I(f"buffer_store_dwordx4 {vr(CS2+4,4)}, v{vL16}, {srd(sWS)}, s{sE} offen offset:1024 sc1")

    slots = []
    for c in range(28):
        slots.append((A_, c * 2048, c))
        slots.append((B_, 57344 + c * 2048, c))
    for c in range(28):
        slots.append((C_, 114688 + c * 2048 if c < 20 else (c - 20) * 2048, c))
    for c in range(28):
        slots.append((A_, 16384 + c * 2048 if c < 12 else 57344 + (c - 12) * 2048, c))
    NS = 112
    PRC = int(os.environ.get('PRC', '28'))
    depth = int(os.environ.get('DEPTH', '4'))
    nb = depth + 1
    tok = {}

    def rd(i):
        off = slots[i][1]
        base = vA0
        if off >= 114688:
            base, off = vA2, off - 114688
        elif off >= 57344:
            base, off = vA1, off - 57344
        dst = WFc + 4 * (i % nb)
        I(f"ds_read_b64_tr_b16 {vr(dst,2)}, v{base} offset:{off}")
        tok[i] = I(f"ds_read_b64_tr_b16 {vr(dst+2,2)}, v{base} offset:{off+512}")

    sched = {i: [] for i in range(NS)}
    load = {i: 0.0 for i in range(NS)}
    BUDGET = float(os.environ.get("BUDGET", "6"))

    def cost(it):
        if it.kind != "i":
            return 0
        m = it.text.split()[0]
        if m in TRANS:
            return 2
        if m in ("v_fma_f32", "v_fmac_f32"):
            return 1.25
        if m.startswith("v_"):
            return 1
        if m.startswith(("ds_", "buffer")):
            return 0.4
        return 0.1

    def cap(fn):
        g.begin()
        r = fn()
        return g.end(), r

    def at(slot, fn):
        st, r = cap(fn)
        for it in st:
            sched[slot].append(it)
            load[slot] += cost(it)
        return r

    rest = []

    def flow(stream, slot):
        pend = []
        for it in stream:
            pend.append(it)
            if it.kind != "i":
                continue
            c = sum(cost(x) for x in pend)
            while slot < NS and load[slot] + c > BUDGET:
                slot += 1
            if slot >= NS:
                rest.extend(pend)
            else:
                sched[slot].extend(pend)
                load[slot] += c
            pend = []
        return slot

    k_ = 0
    for it in hl[10:]:
        sched[k_].append(it)
        if it.text.startswith("buffer"):
            k_ += 1

    def refill(f, free_slot, batches, need_slot):
        at(free_slot, lambda: cnt_add(f))
        t = at(free_slot + 2, lambda: cnt_issue(f))
        at(free_slot + 3, lambda: cnt_check(f, t))
        st, tb = cap(batches)
        for q in range(len(st) // 3):
            for it in st[3 * q:3 * q + 3]:
                sched[free_slot + 3 + 2 * q].append(it)
        if need_slot is not None:
            at(need_slot - depth - 3, lambda: (g.wait(tb), cnt_add(f + 1)))
            t2 = at(need_slot - depth - 2, lambda: cnt_issue(f + 1))
            at(need_slot - depth - 1, lambda: cnt_check(f + 1, t2))
        return tb
    F0 = int(os.environ.get("F0", "40"))
    at(F0, lambda: cnt_add(0))
    t = at(F0 + 2, lambda: cnt_issue(0))
    at(F0 + 3, lambda: cnt_check(0, t))
    st1, tb1 = cap(lambda: c_batch(0, 1, 40, 56, 0))
    st2, tb2 = cap(lambda: (c_batch(1, 1, 0, 24, 16384), c_batch(1, 1, 24, 56, 57344))[1])
    st = st1 + st2
    for q in range(9):
        sched[F0 + 3 + 2 * q].extend(st[3 * q:3 * q + 3])
    at(76 - depth - 3, lambda: (g.wait(tb2), cnt_add(1)))
    t2_ = at(76 - depth - 2, lambda: cnt_issue(1))
    at(76 - depth - 1, lambda: cnt_check(1, t2_))
    at(56, lambda: cnt_add(2))
    t = at(72, lambda: cnt_issue(2))
    at(73, lambda: cnt_check(2, t))
    for m in range(5):
        at(73 + 2 * m, lambda: wd_dma(m))
    tM = refill(4, 84, lambda: [wd_dma(m) for m in range(5, 12)][-1], None)
    if "not2" not in EXP and "t2b" not in EXP:
        at(int(os.environ.get("T2", "62")), touch2)

    def h_issue_from(c0):
        def f():
            tl = []
            for c in range(c0, 28):
                if c % 4 == 0:
                    I(f"s_add_u32 s{sT2}, s{sWB}, {c*1024}")
                tl.append(I(f"buffer_load_dwordx4 {vr(HF+4*c,4)}, v{vL16}, {srd(sWS)}, s{sT2} offen offset:{(c%4)*1024} sc1"))
            return tl
        return f

    def hcheck(q):
        lr, lb = g.newlabel("L_hr"), g.newlabel("L_hb")
        g.wait(th[4 * q + 3])
        sent_check([HF + 4 * c for c in range(4 * q, 4 * q + 4)], vT1)
        I(f"s_cmp_lg_u64 vcc, 0")
        I(f"s_cbranch_scc1 {lr}")
        g.label(lb)
        g.begin()
        g.label(lr)
        check_loop(h_issue_from(4 * q), [HF + 4 * c for c in range(4 * q, 28)], vT1)
        I(f"s_branch {lb}")
        tails.append(g.end())
    t1 = at(54, lambda: cs_read(TM, 0, 0))
    t2 = at(55, lambda: cs_read(CS2, 1, 0))
    def epiA():
        g.wait(t2)
        for i in range(16):
            I(f"v_fmac_f32 v{A_+i}, v{NMU}, v{TM+i}")
        for i in range(16):
            I(f"v_fmac_f32 v{B_+i}, v{NMU}, v{CS2+i}")
        for i in range(16):
            I(f"v_mul_f32 v{TM+i}, v{A_+i}, v{A_+i}")
        for i in range(16):
            I(f"v_fma_f32 v{TM+i}, v{TM+i}, v{K2}, v{K1}")
        for i in range(16):
            I(f"v_mul_f32 v{TM+i}, v{TM+i}, v{A_+i}")
        for i in range(16):
            I(f"v_mul_f32 v{B_+i}, v{B_+i}, v{A_+i}")

    def epiB():
        for i in range(16):
            I(f"v_exp_f32 v{TM+i}, v{TM+i}")
        for i in range(16):
            I(f"v_fma_f32 v{TM+i}, v{TM+i}, v{IR2}, v{IR2}")
        for i in range(16):
            I(f"v_rcp_f32 v{TM+i}, v{TM+i}")
        for i in range(16):
            I(f"v_mul_f32 v{B_+i}, v{B_+i}, v{TM+i}")
        for i in range(8):
            I(f"v_cvt_pk_bf16_f32 v{CS2+i}, v{B_+2*i}, v{B_+2*i+1}")
        I(f"buffer_store_dwordx4 {vr(CS2,4)}, v{vL16}, {srd(sWS)}, s{sHB} offen sc1")
        return I(f"buffer_store_dwordx4 {vr(CS2+4,4)}, v{vL16}, {srd(sWS)}, s{sHB} offen offset:1024 sc1")
    st, _ = cap(epiA)
    e = flow(st, 57)
    assert e < 83, e
    st, tst0 = cap(epiB)
    e = flow(st, e)
    t1 = at(max(e, 85), lambda: cs_read(TM, 0, 1))
    t2 = at(min(e + 9, 109), lambda: cs_read(CS2, 1, 1))
    st, _ = cap(lambda: gpart(C_, t1))
    flow(st, max(e, 85) + 2)
    def flag_issue():
        I(f"s_lshl_b32 s{sT0}, s{sGB}, 8")
        I(f"s_add_u32 s{sT0}, s{sT0}, {WS_CNT + CNT_HH * 4096}")
        return I(f"buffer_load_dword v{vT4}, off, {srd(sWS)}, s{sT0} sc1")
    print("slot loads:", " ".join("%.0f" % load[i] for i in range(NS)), "rest", len(rest))
    for i in range(depth):
        rd(i)
    for i in range(NS):
        acc, off, c = slots[i]
        if i + depth < NS:
            rd(i + depth)
        if PRC and i % PRC == 0:
            I(f"s_setprio {3 - (i // PRC) % 4}")
        if i < 56 and i % 8 == 0:
            hcheck(i // 8)
        g.wait(tok[i])
        I(f"v_mfma_f32_32x32x16_bf16 {vr(acc,16)}, {vr(WFc+4*(i%nb),4)}, {vr(HF+4*c,4)}, {'0' if c == 0 else vr(acc,16)}")
        g.put(sched[i])
        if i in (55, 83, 111):
            stamp(f"slot{i}")
    g.put(rest)
    tlast = upart(A_, t2, 1)
    stamp("hh stored")
    DACC = 184
    frag = {n: 16 + 8 * n for n in range(14)}
    abuf = {c: 128 + 4 * c for c in range(14)}
    ta = {}
    vP = {(sL5, 114688): (vT0, vT1), (sL2, 0): (vT2, vT3), (sL3, 16384): (vT4, vT5), (sL3, 90112): (vINIT, vCNT - 0), (sL4, 57344): (252, 15)}
    vP[(sL3, 90112)] = (vG, vM16)
    dt_pattern(vFLAG, vT0, vT1)
    for (sreg, base), (a0, a1) in vP.items():
        I(f"v_add_u32 v{a0}, s{sreg}, v{vFLAG}")
        if base:
            I(f"v_add_u32 v{a0}, {base}, v{a0}")
        I(f"v_xor_b32 v{a1}, 64, v{a0}")

    def wd_read(m):
        n, rd_ = m // 2, m % 2
        sreg, imm = wslot[m]
        key = max((k for k in vP if k[0] == sreg and k[1] <= imm), key=lambda k: k[1])
        a = vP[key]
        imm -= key[1]
        t = None
        for nt in range(2):
            t = I(f"ds_read_b64_tr_b16 {vr(frag[n]+4*nt+2*rd_,2)}, v{a[nt]} offset:{imm}")
        return t

    def lda(c):
        for mt in range(2):
            I(f"s_add_u32 s{sT1}, s{sRA[c % 7]}, {mt*112*1024 + (4096 if c >= 7 else 0)}")
            ta[c, mt] = I(f"buffer_load_dwordx4 {vr(abuf[c]+4*mt,4)}, v{vL16}, {srd(sWS)}, s{sT1} offen sc1")

    def mm(c, first):
        for mt in range(2):
            g.wait(ta[c, mt])
            for nt in range(2):
                a = DACC + (mt * 2 + nt) * 16
                I(f"v_mfma_f32_32x32x16_bf16 {vr(a,16)}, {vr(frag[c]+4*nt,4)}, {vr(abuf[c]+4*mt,4)}, {'0' if first else vr(a,16)}")
    I("s_setprio 3")
    g.wait(tM)
    t = None
    for m in range(12):
        t = wd_read(m)
    g.wait(t)
    twd = {}
    for m in range(19, 28):
        twd[m] = wd_dma(m)
        if m == 22:
            th_ = hsig_issue(6, [tlast])
            hsig_check(0, th_)
    I("s_barrier")
    for m in range(12, 19):
        twd[m] = wd_dma(m)
    stamp("wd issued")
    I("s_setprio 0")
    lab = g.newlabel("L_fp")
    I(f"s_cmp_lg_u32 s{sW}, 0")
    I(f"s_cbranch_scc1 {lab}")
    g.cond_begin()
    hh_poll(0)
    g.cond_end()
    g.label(lab)
    g.wait(twd[27])
    for m in range(19, 28):
        wd_read(m)
    g.wait(twd[18])
    for m in range(12, 19):
        wd_read(m)
    g.wait_all(vm=False)
    I("s_barrier")
    stamp("hh flag")

    def lda1(c, mt):
        I(f"s_add_u32 s{sT1}, s{sRA[c % 7]}, {mt*112*1024 + (4096 if c >= 7 else 0)}")
        ta[c, mt] = I(f"buffer_load_dwordx4 {vr(abuf[c],4)}, v{vL16}, {srd(sWS)}, s{sT1} offen sc1")
    for c in range(14):
        lda1(c, 0)
    HR = 248
    I(f"v_and_b32 v{vT0}, 15, v0")
    I(f"v_lshrrev_b32 v{vT1}, 4, v0")
    I(f"v_lshrrev_b32 v{vFLAG}, 1, v{vT0}")
    I(f"v_lshlrev_b32 v{vFLAG}, 9, v{vFLAG}")
    I(f"v_lshl_add_u32 v{vFLAG}, v{vT1}, 4, v{vFLAG}")
    I(f"v_and_b32 v{vT2}, 1, v{vT0}")
    I(f"v_lshl_add_u32 v{vFLAG}, v{vT2}, 3, v{vFLAG}")
    I(f"s_mul_i32 s{sE}, s{sMD}, {28*1024}")
    I(f"s_lshl_b32 s{sT1}, s{sCB}, 12")
    I(f"s_add_u32 s{sE}, s{sE}, s{sT1}")
    I(f"s_add_u32 s{sE}, s{sE}, {WS_H}")
    I(f"s_add_u32 s{sD}, s{sE}, {28*1024}")
    I(f"s_mul_i32 s{sT0}, s{sW}, {64*272}")
    I(f"v_mul_u32_u24 v{vT3}, 272, v{vM}")
    I(f"v_lshl_add_u32 v{vT3}, v{vHB}, 4, v{vT3}")
    I(f"v_add_u32 v{vT3}, s{sT0}, v{vT3}")
    I(f"v_mul_u32_u24 v{vT4}, 272, v{vT1}")
    I(f"v_lshl_add_u32 v{vT4}, v{vT0}, 4, v{vT4}")
    I(f"v_add_u32 v{vT5}, {4*64*272}, v{vT4}")
    I(f"v_mul_u32_u24 v{vT2}, 896, v{vT1}")
    I(f"v_lshl_add_u32 v{vT2}, v{vT0}, 3, v{vT2}")
    I(f"s_mul_i32 s{sT0}, s{sMD}, {32*896}")
    I(f"s_lshl_b32 s{sT2}, s{sCB}, 7")
    I(f"s_add_u32 s{sT0}, s{sT0}, s{sT2}")
    I(f"s_add_u32 s{sT2}, s{sT0}, {32*896}")
    hold = {}

    def pw(mt, k):
        nt, q = k // 4, k % 4
        I(f"ds_write_b128 v{vT3}, {vr(DACC+(mt*2+nt)*16+4*q,4)} offset:{mt*32*272 + nt*128 + q*32}")

    def red_issue(mt, R):
        t = None
        for w in range(8):
            t = I(f"ds_read_b128 {vr(R+4*w,4)}, v{vT4 if w < 4 else vT5} offset:{(w%4)*64*272 + mt*32*272}")
        return t

    def red_fin(mt, R, t):
        g.wait(hold["thr"])
        U = R + 32
        for i in range(2):
            I(f"v_lshlrev_b32 v{U+2*i}, 16, v{HR+2*mt+i}")
            I(f"v_and_b32 v{U+2*i+1}, 0xffff0000, v{HR+2*mt+i}")
        g.wait(t)
        for k in (16, 8, 4):
            for i in range(k):
                I(f"v_add_f32 v{R+i}, v{R+i}, v{R+k+i}")
        for i in range(4):
            I(f"v_add_f32 v{R+i}, v{R+i}, v{U+i}")
        for i in range(2):
            I(f"v_cvt_pk_bf16_f32 v{R+4+i}, v{R+2*i}, v{R+2*i+1}")
        I(f"buffer_store_dwordx2 {vr(R+4,2)}, v{vT2}, {srd(sOUT)}, s{sT2 if mt else sT0} offen")
    for mt in range(2):
        for c in range(14):
            g.wait(ta[c, mt])
            for nt in range(2):
                a = DACC + (mt * 2 + nt) * 16
                I(f"v_mfma_f32_32x32x16_bf16 {vr(a,16)}, {vr(frag[c]+4*nt,4)}, {vr(abuf[c],4)}, {'0' if c == 0 else vr(a,16)}")
            if mt == 0:
                lda1(c, 1)
            elif 2 <= c < 10:
                pw(0, c - 2)
        if mt == 0:
            I(f"buffer_load_dwordx2 {vr(HR,2)}, v{vFLAG}, {srd(sWS)}, s{sE} offen sc1")
            hold["thr"] = I(f"buffer_load_dwordx2 {vr(HR+2,2)}, v{vFLAG}, {srd(sWS)}, s{sD} offen sc1")
            stamp("D early")
    stamp("D mfma")
    for k in range(8):
        pw(1, k)
    g.wait_all(vm=False)
    I("s_barrier")
    t0_ = red_issue(0, 16)
    t1_ = red_issue(1, 56)
    red_fin(0, 16, t0_)
    red_fin(1, 56, t1_)
    stamp("end")
    stamp("rt1", rt=True)
    if "span" in EXP:
        I(f"s_cmp_lg_u32 s{sW}, 7")
        I("s_cbranch_scc1 L_end")
        I("s_and_b32 s90, s2, 7")
        I("s_cmp_lg_u32 s90, 3")
        I("s_cbranch_scc1 L_end")
        I("s_waitcnt vmcnt(0)")
        I("s_memrealtime s[90:91]")
        I("s_memtime s[92:93]")
        I("s_waitcnt lgkmcnt(0)")
        I("s_mov_b64 exec, 1")
        I("s_not_b32 s86, s86")
        I("s_sub_u32 s92, s92, s100")
        I("v_mov_b32 v20, s86")
        I("v_mov_b32 v21, s90")
        I("v_mov_b32 v22, s92")
        I(f"buffer_atomic_umax v20, off, {srd(sDBG)}, 0 offset:4 sc1")
        I(f"buffer_atomic_umax v21, off, {srd(sDBG)}, 0 offset:8 sc1")
        I(f"buffer_atomic_umax v22, off, {srd(sDBG)}, 0 offset:12 sc1")


prologue()
two = phaseA()
twd = phaseB(two)
phaseCD(twd)
g.label("L_end")
I("s_endpgm")
for tl_ in TAILS:
    g.put(tl_)
g.insert_bg()
g.resolve_waits()
g.fix_hazards_fast()

hdr = open("cdna_kernels/" + NAME + ".s.ref").read().split("; Override launch geometry")[0]
out = hdr + f"""; @launch grid=(256,1,1) block=(512,1,1) lds=163840
.amdgcn_target "amdgcn-amd-amdhsa--gfx950"
.text
.globl {NAME}_kernel
.p2align 8
.type {NAME}_kernel,@function
{NAME}_kernel:
L_code_start:
{g.text()}
L_code_end:
.fill 64, 4, 0xbf800000
.section .rodata,"a"
.p2align 6
.amdhsa_kernel {NAME}_kernel
  .amdhsa_next_free_vgpr 256
  .amdhsa_next_free_sgpr 102
  .amdhsa_accum_offset 256
  .amdhsa_group_segment_fixed_size 0
  .amdhsa_kernarg_size 88
  .amdhsa_user_sgpr_count 2
  .amdhsa_user_sgpr_kernarg_segment_ptr 1
  .amdhsa_system_sgpr_workgroup_id_x 1
.end_amdhsa_kernel
"""
import subprocess, re as _re
open("_sz.s", "w").write(out.replace("CODE_LAST", "0x1000"))
subprocess.run(["clang", "-x", "assembler", "-target", "amdgcn-amd-amdhsa", "-mcpu=gfx950", "-c", "_sz.s", "-o", "_sz.o"], check=True)
_h = subprocess.run(["llvm-objdump", "-h", "_sz.o"], capture_output=True, text=True).stdout
_sz = int(_re.search(r"\.text\s+([0-9a-f]+)", _h).group(1), 16)
out = out.replace("CODE_LAST", hex(_sz - 768))
print("code bytes", _sz)
open(sys.argv[1], "w").write(out)
if STAMPS:
    open(sys.argv[1] + ".names", "w").write("\n".join(stamp_names))
print("instrs:", sum(1 for it in g.items if it.kind == "i"), "stamps:", nstamp[0])
```

```python
import sys, math, struct, os
sys.path.insert(0, "dev")
from gen import *

NAME = "sequential_preLN__linear_kernel_hedgehog__glu_gated_geglu__prompt"
STAMPS = int(sys.argv[2]) if len(sys.argv) > 2 else 0
EXP = sys.argv[3].split(",") if len(sys.argv) > 3 else []


def f32(x):
    return "0x%08x" % struct.unpack("<I", struct.pack("<f", x))[0]


WS_CNT = 0x0
WS_CS = 0x10000
WS_ST = 0x50000
WS_KVP = 0x100000
WS_O = 0x200000
WS_H = 0x400000
WS_HH = 0x600000
WS_STAMP = 0xE00000
CNT_KV, CNT_O, CNT_H, CNT_HH = 0, 1, 2, 3

sX, sWQKV, sWPHI, sWO, sWG, sWU, sWD, sOUT, sDBG, sWS = 8, 12, 16, 20, 24, 28, 32, 36, 40, 44
sG, sJ, sW = 48, 49, 50
sT0, sT1, sT2, sT3, sT4, sT5 = 51, 52, 53, 54, 55, 56
sW3, sWH = 57, 58
sA, sB, sC, sD, sE = 59, 60, 61, 62, 63
sSTAMP = 86
sGATH, sWB, sCW, sCL, sLOG = 88, 89, 90, 91, 92
sGB, sJB, sJC, sLI, sXC, sLW, sSTO = 93, 94, 95, 96, 97, 98, 99
OOB = 0x7ff00000
sBG, sWOB, sKVS, sOS, sHS, sSS, sHHS = 68, 70, 71, 72, 73, 74, 75


def srd(r):
    return f"s[{r}:{r+3}]"


def vr(a, n=1):
    return f"v{a}" if n == 1 else f"v[{a}:{a+n-1}]"


def ar(a, n=1):
    return f"a{a}" if n == 1 else f"a[{a}:{a+n-1}]"


g = Gen()
I = g.I
nstamp = [0]
stamp_names = []

vLANE, vG, vM16 = 1, 2, 3
vL16 = 4
vT0, vT1, vT2, vT3, vT4, vT5 = 5, 6, 7, 8, 9, 10
vFLAG, vONE, vCNT, vINIT, vDMY = 11, 12, 13, 14, 15


def stamp(name="", rt=False):
    if not STAMPS:
        return
    k = nstamp[0]
    nstamp[0] += 1
    stamp_names.append(name)
    g.cond_begin()
    I(f"{'s_memrealtime' if rt else 's_memtime'} s[{sSTAMP}:{sSTAMP+1}]")
    I("s_waitcnt lgkmcnt(0)")
    I(f"v_mov_b32 v{vCNT}, s{sSTAMP}")
    I(f"buffer_store_dword v{vCNT}, off, {srd(sWS)}, s{sSTO} offset:{4*k}")
    g.cond_end()


UNIT = 14336
LDS_WK = 8 * UNIT
LDS_KVF = 11 * UNIT
LDS_CS = LDS_KVF + 4096
LDS_FLG = LDS_CS + 1024
LDS_WPL = 10 * UNIT + 8192
LDS_KV2 = 8 * UNIT + 24576 + 4096
LDS_BSCR = 6 * UNIT


def prologue():
    I("s_cmp_ge_u32 s2, 256")
    I("s_cbranch_scc1 L_end")
    I("s_setprio 3")
    if "span" in EXP:
        I("s_memrealtime s[86:87]")
        I("s_memtime s[100:101]")
    I(f"s_load_dwordx2 s[{sX}:{sX+1}], s[0:1], 0")
    I("s_getpc_b64 s[4:5]")
    I(f"v_lshlrev_b32 v{vINIT}, 7, v0")
    I(f"s_and_b32 s{sT5}, s2, 24")
    I(f"s_cmp_eq_u32 s{sT5}, 0")
    I(f"s_cselect_b32 s{sT5}, CODE_LAST, 0")
    I(f"v_min_u32 v{vINIT}, s{sT5}, v{vINIT}")
    if "cp0" in EXP:
        I(f"global_load_dword v{vDMY}, v{vINIT}, s[4:5]")
    I("s_load_dwordx16 s[64:79], s[0:1], 0")
    I("s_load_dwordx4 s[80:83], s[0:1], 64")
    I("s_load_dwordx2 s[84:85], s[0:1], 80")
    I(f"v_and_b32 v{vLANE}, 63, v0")
    I(f"v_lshrrev_b32 v{vT0}, 6, v0")
    I(f"v_readfirstlane_b32 s{sW}, v{vT0}")
    I(f"v_lshrrev_b32 v{vG}, 4, v{vLANE}")
    I(f"s_bfe_u32 s{sT0}, s2, 0x20001")
    I(f"s_lshl_b32 s{sT0}, s{sT0}, 2")
    I(f"s_bfe_u32 s{sT1}, s2, 0x20003")
    I(f"s_add_u32 s{sG}, s{sT0}, s{sT1}")
    I(f"s_mov_b32 s{sX+2}, 1835008")
    I(f"s_mov_b32 s{sX+3}, 0x20000")
    I(f"v_lshrrev_b32 v{vT0}, 3, v{vLANE}")
    I(f"v_mul_u32_u24 v{vT0}, 896, v{vT0}")
    I(f"v_and_b32 v{vT1}, 7, v{vLANE}")
    I(f"v_xor_b32 v{vT3}, v{vT1}, v{vG}")
    I(f"v_lshl_add_u32 v{vXA0}, v{vT3}, 4, v{vT0}")
    I(f"v_xor_b32 v{vT3}, 4, v{vT3}")
    I(f"v_lshl_add_u32 v{vXA1}, v{vT3}, 4, v{vT0}")
    I(f"s_lshl_b32 s{sA}, s{sG}, 3")
    I(f"s_add_u32 s{sA}, s{sA}, s{sW}")
    I(f"s_mul_i32 s{sB}, s{sA}, {16*896}")
    I(f"s_add_u32 s{sC}, s{sB}, {8*896}")
    I(f"s_mul_i32 s{sLW}, s{sW}, {UNIT}")
    I(f"s_and_b32 s{sT2}, s2, 1")
    I(f"s_lshl_b32 s{sT3}, s{sT2}, 3")
    I(f"s_lshr_b32 s{sT4}, s2, 5")
    I(f"s_add_u32 s{sJ}, s{sT3}, s{sT4}")
    I(f"s_lshl_b32 s{sCL}, s{sW}, 10")
    I(f"v_lshrrev_b32 v{vT0}, 2, v{vLANE}")
    I(f"v_mul_u32_u24 v{vT0}, 2688, v{vT0}")
    I(f"v_and_b32 v{vT1}, 3, v{vLANE}")
    I(f"v_and_b32 v{vT2}, 2, v{vG}")
    I(f"v_xor_b32 v{vT1}, v{vT1}, v{vT2}")
    I(f"v_lshl_add_u32 v{vWA}, v{vT1}, 4, v{vT0}")
    I(f"s_mul_i32 s{sWB}, s{sJ}, 56")
    I(f"s_and_b32 s{sT1}, s{sJ}, 1")
    I(f"s_lshl_b32 s{sT1}, s{sT1}, 3")
    I(f"s_sub_u32 s{sWB}, s{sWB}, s{sT1}")
    I(f"s_mul_i32 s{sD}, s{sW}, {16*2688}")
    I(f"s_add_u32 s{sD}, s{sD}, s{sWB}")
    I(f"s_mov_b32 s{sWQKV+2}, 1204224")
    I(f"s_mov_b32 s{sWQKV+3}, 0x20000")
    if "t0" in EXP:
        I(f"s_lshr_b32 s{sLI}, s2, 3")
        I(f"s_mul_i32 s{sT2}, s{sLI}, {14*2688}")
        I(f"s_and_b32 s{sT3}, s2, 1")
        I(f"s_mul_i32 s{sT3}, s{sT3}, 384")
        I(f"s_add_u32 s{sT2}, s{sT2}, s{sT3}")
        I(f"s_mul_i32 s{sT3}, s{sW}, 896")
        I(f"s_add_u32 s{sT2}, s{sT2}, s{sT3}")
        I(f"s_cmp_ge_u32 s{sW}, 3")
        I(f"s_cselect_b32 s{sT3}, {OOB}, 0")
        I(f"s_add_u32 s{sT2}, s{sT2}, s{sT3}")
        I(f"v_lshrrev_b32 v{vT0}, 2, v{vLANE}")
        I(f"v_min_u32 v{vT0}, 13, v{vT0}")
        I(f"v_mul_u32_u24 v{vT0}, 2688, v{vT0}")
        I(f"v_and_b32 v{vT1}, 3, v{vLANE}")
        I(f"v_lshl_add_u32 v{vT4}, v{vT1}, 7, v{vT0}")
        I(f"s_mul_i32 s{sT4}, s{sT0}, 114688")
        I(f"s_mul_i32 s{sT5}, s{sLI}, 14336")
        I(f"s_add_u32 s{sT4}, s{sT4}, s{sT5}")
        I(f"s_sub_u32 s{sT5}, s{sW}, 3")
        I(f"s_cmp_lt_u32 s{sT5}, 2")
        I(f"s_cselect_b32 s{sT3}, 0, {OOB}")
        I(f"s_mul_i32 s{sT5}, s{sT5}, 7168")
        I(f"s_and_b32 s{sT5}, s{sT5}, 0x3fff")
        I(f"s_add_u32 s{sT4}, s{sT4}, s{sT5}")
        I(f"s_add_u32 s{sT4}, s{sT4}, s{sT3}")
        I(f"v_min_u32 v{vT5}, 55, v{vLANE}")
        I(f"v_lshlrev_b32 v{vT5}, 7, v{vT5}")
        I(f"s_mov_b32 s{sWQKV+2}, 1204224")
        I(f"s_mov_b32 s{sWQKV+3}, 0x20000")
    I("s_waitcnt lgkmcnt(0)")
    I(f"s_mov_b64 s[{sWQKV}:{sWQKV+1}], s[66:67]")
    if "t0" in EXP:
        I(f"buffer_load_dword v{vDMY}, v{vT5}, {srd(sX)}, s{sT4} offen")
        I(f"buffer_load_dword v{vDMY}, v{vT4}, {srd(sWQKV)}, s{sT2} offen")


def prologue2():
    I(f"v_and_b32 v{vM16}, 15, v{vLANE}")
    I(f"v_lshlrev_b32 v{vL16}, 4, v{vLANE}")
    I(f"v_mov_b32 v{vONE}, 1")
    I(f"s_and_b32 s{sXC}, s2, 7")
    I(f"s_lshr_b32 s{sLI}, s2, 3")
    I(f"s_and_b32 s{sT2}, s{sXC}, 1")
    I(f"s_lshl_b32 s{sT3}, s{sT2}, 3")
    I(f"s_lshr_b32 s{sT4}, s{sLI}, 2")
    I(f"s_add_u32 s{sJ}, s{sT3}, s{sT4}")
    I(f"s_lshl_b32 s{sGB}, s{sXC}, 1")
    I(f"s_and_b32 s{sT5}, s{sLI}, 1")
    I(f"s_add_u32 s{sGB}, s{sGB}, s{sT5}")
    I(f"s_lshr_b32 s{sJB}, s{sLI}, 1")
    I(f"s_mul_i32 s{sJC}, s{sT2}, 7")
    I(f"s_add_u32 s{sJC}, s{sJC}, s{sT4}")
    I(f"s_cmp_eq_u32 s{sT4}, 7")
    I(f"s_cselect_b32 s{sJC}, 15, s{sJC}")
    I(f"s_and_b32 s{sW3}, s{sW}, 3")
    I(f"s_lshr_b32 s{sWH}, s{sW}, 2")
    I(f"s_lshl_b32 s{sCL}, s{sW}, 10")
    for r, p, n in ((sWQKV, 66, 1204224), (sWPHI, 68, 25088), (sWO, 70, 401408),
                    (sWG, 74, 1605632), (sWU, 76, 1605632), (sWD, 78, 1605632), (sOUT, 80, 1835008),
                    (sDBG, 82, 256), (sWS, 84, 0x10000000)):
        I(f"s_mov_b64 s[{r}:{r+1}], s[{p}:{p+1}]")
        I(f"s_mov_b32 s{r+2}, {n}")
        I(f"s_mov_b32 s{r+3}, 0x20000")
    if STAMPS:
        I(f"s_lshl_b32 s{sSTO}, s2, 3")
        I(f"s_add_u32 s{sSTO}, s{sSTO}, s{sW}")
        I(f"s_lshl_b32 s{sSTO}, s{sSTO}, 7")
        I(f"s_add_u32 s{sSTO}, s{sSTO}, {WS_STAMP}")


POLL_MAX = 200000


def poll(srdreg, voff, target):
    lp, ld = g.newlabel("L_poll"), g.newlabel("L_pdone")
    I(f"s_mov_b32 s{sT5}, 0")
    g.label(lp)
    I(f"buffer_load_dword v{vFLAG}, v{voff}, {srd(srdreg)}, 0 offen sc1")
    I("s_waitcnt vmcnt(0)")
    I(f"v_readfirstlane_b32 s{sT4}, v{vFLAG}")
    I(f"s_add_u32 s{sT5}, s{sT5}, 1")
    I(f"s_cmp_ge_u32 s{sT5}, {POLL_MAX}")
    I(f"s_cbranch_scc1 {ld}")
    I(f"s_cmp_lt_u32 s{sT4}, {target}")
    I(f"s_cbranch_scc1 {lp}")
    g.label(ld)


def signal(kind, sidx, toks, first=False):
    g.wait(*toks)
    I("s_barrier")
    lab = g.newlabel("L_sig")
    I(f"s_cmp_lg_u32 s{sW}, 0")
    I(f"s_cbranch_scc1 {lab}")
    g.cond_begin()
    I("s_mov_b64 exec, 1")
    if first:
        l2 = g.newlabel("L_ini")
        I(f"v_readfirstlane_b32 s{sT4}, v{vINIT}")
        I(f"s_cmp_lg_u32 s{sT4}, 0")
        I(f"s_cbranch_scc1 {l2}")
        I(f"v_mov_b32 v{vCNT}, 0")
        poll(sDBG, vCNT, 1)
        g.label(l2)
    I(f"s_lshl_b32 s{sT0}, s{sidx}, 8")
    I(f"s_add_u32 s{sT0}, s{sT0}, {WS_CNT + kind * 4096}")
    I(f"v_mov_b32 v{vCNT}, s{sT0}")
    I(f"buffer_atomic_add v{vONE}, v{vCNT}, {srd(sWS)}, 0 offen sc1")
    I("s_mov_b64 exec, -1")
    g.cond_end()
    g.label(lab)


def waitflag(kind, sidx, target=16):
    lab = g.newlabel("L_w")
    I(f"s_cmp_lg_u32 s{sW}, 0")
    I(f"s_cbranch_scc1 {lab}")
    g.cond_begin()
    I("s_mov_b64 exec, 1")
    I(f"s_lshl_b32 s{sT0}, s{sidx}, 8")
    I(f"s_add_u32 s{sT0}, s{sT0}, {WS_CNT + kind * 4096}")
    I(f"v_mov_b32 v{vCNT}, s{sT0}")
    poll(sWS, vCNT, target)
    I("s_mov_b64 exec, -1")
    g.cond_end()
    g.label(lab)
    I("s_barrier")


def dma2(vaddr, srdreg, sbase, src_imm, lds_sreg, lds_imm, stmp=None):
    stmp = sT1 if stmp is None else stmp
    I(f"s_add_u32 m0, s{lds_sreg}, {lds_imm}")
    I(f"s_add_u32 s{stmp}, s{sbase}, {src_imm}")
    return I(f"buffer_load_dwordx4 v{vaddr}, {srd(srdreg)}, s{stmp} offen lds")


def xreduce(op, a, t, levels=(16, 32)):
    for lv in levels:
        I(f"v_mov_b32 v{t}, v{a}")
        I(f"v_permlane{lv}_swap_b32 v{a}, v{t}")
        I(f"{op} v{a}, v{a}, v{t}")


LOG2E = 1.4426950408889634

XF = 16
WR = 72
WPHI = 100
WPH2 = 108
SEL = 116
ACC = 124
ACCV = 132
WF = 140
TMP = 172
PH = 196
vXA0, vXA1, vWA, vTR, vXR0, vXR1, vCA = 204, 205, 206, 207, 208, 209, 252
vTRb, vTRc, vWOA = 211, 212, 213


def chain16(acc, rd, swap=False, depth=3, hook=None):
    toks = {}
    nb = depth + 1
    n = 14
    for c in range(depth):
        toks[c] = rd(c, WF + 8 * (c % nb))
    for c in range(n):
        if c + depth < n:
            toks[c + depth] = rd(c + depth, WF + 8 * ((c + depth) % nb))
        g.wait(toks[c])
        X = vr(XF + 4 * c, 4)
        for t in range(2):
            W = vr(WF + 8 * (c % nb) + 4 * t, 4)
            a = vr(acc + 4 * t, 4)
            C = a if c > 0 else "0"
            if swap:
                I(f"v_mfma_f32_16x16x32_bf16 {a}, {X}, {W}, {C}")
            else:
                I(f"v_mfma_f32_16x16x32_bf16 {a}, {W}, {X}, {C}")
        if hook is not None:
            hook(c)


def featmap(acc, out):
    pk = TMP
    p = acc
    e = TMP + 4
    mx, mn, t0, t1 = TMP + 12, TMP + 13, TMP + 14, TMP + 15
    for i in range(4):
        I(f"v_cvt_pk_bf16_f32 v{pk+i}, v{acc+2*i}, v{acc+2*i+1}")
    I(f"v_mfma_f32_16x16x32_bf16 {vr(p,4)}, {vr(WPHI,4)}, {vr(pk,4)}, 0")
    I(f"v_mfma_f32_16x16x32_bf16 {vr(p+4,4)}, {vr(WPHI+4,4)}, {vr(pk,4)}, 0")
    I(f"v_max3_f32 v{mx}, v{p}, v{p+1}, v{p+2}")
    I(f"v_min3_f32 v{mn}, v{p}, v{p+1}, v{p+2}")
    for i in (3, 5):
        I(f"v_max3_f32 v{mx}, v{mx}, v{p+i}, v{p+i+1}")
        I(f"v_min3_f32 v{mn}, v{mn}, v{p+i}, v{p+i+1}")
    for lv in (16, 32):
        I(f"v_mov_b32 v{t0}, v{mx}")
        I(f"v_mov_b32 v{t1}, v{mn}")
        I(f"v_permlane{lv}_swap_b32 v{mx}, v{t0}")
        I(f"v_permlane{lv}_swap_b32 v{mn}, v{t1}")
        I(f"v_max_f32 v{mx}, v{mx}, v{t0}")
        I(f"v_min_f32 v{mn}, v{mn}, v{t1}")
    I(f"v_mul_f32 v{mx}, {f32(-LOG2E)}, v{mx}")
    I(f"v_mul_f32 v{mn}, {f32(LOG2E)}, v{mn}")
    e2 = TMP + 16
    for i in range(7):
        I(f"v_fma_f32 v{e+i}, v{p+i}, s{sLOG}, v{mx}")
        I(f"v_fma_f32 v{e2+i}, -v{p+i}, s{sLOG}, v{mn}")
    for i in range(7):
        I(f"v_exp_f32 v{e+i}, v{e+i}")
        I(f"v_exp_f32 v{e2+i}, v{e2+i}")
    I(f"v_add_f32 v{mx}, v{e}, v{e+1}")
    I(f"v_add_f32 v{mn}, v{e2}, v{e2+1}")
    for i in range(2, 7):
        I(f"v_add_f32 v{mx}, v{mx}, v{e+i}")
        I(f"v_add_f32 v{mn}, v{mn}, v{e2+i}")
    for lv in (16, 32):
        I(f"v_mov_b32 v{t0}, v{mx}")
        I(f"v_mov_b32 v{t1}, v{mn}")
        I(f"v_permlane{lv}_swap_b32 v{mx}, v{t0}")
        I(f"v_permlane{lv}_swap_b32 v{mn}, v{t1}")
        I(f"v_add_f32 v{mx}, v{mx}, v{t0}")
        I(f"v_add_f32 v{mn}, v{mn}, v{t1}")
    I(f"v_rcp_f32 v{mx}, v{mx}")
    I(f"v_rcp_f32 v{mn}, v{mn}")
    for i in range(7):
        I(f"v_mul_f32 v{e+i}, v{e+i}, v{mx}")
        I(f"v_mul_f32 v{e2+i}, v{e2+i}, v{mn}")
    for i in range(3):
        I(f"v_cvt_pk_bf16_f32 v{out+i}, v{e+2*i}, v{e+2*i+1}")
        I(f"v_cvt_pk_bf16_f32 v{out+4+i}, v{e2+2*i}, v{e2+2*i+1}")
    I(f"v_cvt_pk_bf16_f32 v{out+3}, v{e+6}, 0")
    I(f"v_cvt_pk_bf16_f32 v{out+7}, v{e2+6}, 0")


def c_batch(mat, dbl, n0, n1, lds_base):
    t = None
    assert n0 % 8 == 0 and n1 % 8 == 0
    for i in range(n0 // 8, n1 // 8):
        t = dma2(vCA, sWG if mat == 0 else sWU, sCW, i * 8 * 8 * 3584 + dbl * 128, sCL, lds_base + (i * 8 - n0) * 1024)
    return t


def c_bg(mat, dbl, n0, n1, lds_base, after, gap=150):
    t = None
    for i in range(n0 // 8, n1 // 8):
        g.begin()
        t = dma2(vCA, sWG if mat == 0 else sWU, sCW, i * 8 * 8 * 3584 + dbl * 128, sCL, lds_base + (i * 8 - n0) * 1024, stmp=sBG)
        g.bg_add(g.end(), after, gap)
        NBG[0] += 1
    return t


NBG = [0]
TWD = {}
NWDBG = [0]


def bg(fn, after=None, gap=150):
    g.begin()
    r = fn()
    g.bg_add(g.end(), after, gap)
    NBG[0] += 1
    return r


def flush():
    g.mark(f"flush:{NBG[0]}")


def check_loop(issue, regs, tmp, body=None):
    lp, ld = g.newlabel("L_dp"), g.newlabel("L_dpd")
    I(f"s_mov_b32 s{sT5}, 0")
    g.label(lp)
    toks = issue()
    if body is not None:
        body(toks)
    g.wait(toks[-1])
    rs = list(regs)
    if len(rs) == 1:
        I(f"v_cmp_eq_u32 vcc, -1, v{rs[0]}")
    else:
        first = True
        acc = None
        while rs:
            if acc is None:
                if len(rs) >= 3:
                    I(f"v_max3_u32 v{tmp}, v{rs[0]}, v{rs[1]}, v{rs[2]}")
                    rs = rs[3:]
                else:
                    I(f"v_max_u32 v{tmp}, v{rs[0]}, v{rs[1]}")
                    rs = rs[2:]
                acc = tmp
            elif len(rs) >= 2:
                I(f"v_max3_u32 v{tmp}, v{tmp}, v{rs[0]}, v{rs[1]}")
                rs = rs[2:]
            else:
                I(f"v_max_u32 v{tmp}, v{tmp}, v{rs[0]}")
                rs = rs[1:]
        I(f"v_cmp_eq_u32 vcc, -1, v{tmp}")
    I(f"s_add_u32 s{sT5}, s{sT5}, 1")
    I(f"s_cmp_ge_u32 s{sT5}, {POLL_MAX}")
    I(f"s_cbranch_scc1 {ld}")
    I(f"s_cmp_lg_u64 vcc, 0")
    I(f"s_cbranch_scc1 {lp}")
    g.label(ld)


def sent_check(regs, tmp):
    rs = list(regs)
    acc = None
    while rs:
        if acc is None:
            if len(rs) >= 3:
                I(f"v_max3_u32 v{tmp}, v{rs[0]}, v{rs[1]}, v{rs[2]}")
                rs = rs[3:]
            else:
                I(f"v_max_u32 v{tmp}, v{rs[0]}, v{rs[1]}")
                rs = rs[2:]
            acc = tmp
        elif len(rs) >= 2:
            I(f"v_max3_u32 v{tmp}, v{tmp}, v{rs[0]}, v{rs[1]}")
            rs = rs[2:]
        else:
            I(f"v_max_u32 v{tmp}, v{tmp}, v{rs[0]}")
            rs = rs[1:]
    I(f"v_cmp_eq_u32 vcc, -1, v{tmp}")


TAILS = []


def spec_load(issue, regs, tmp, body=None, filler=None):
    lr, lb = g.newlabel("L_sr"), g.newlabel("L_sb")
    toks = issue()
    if filler is not None:
        filler()
    if body is not None:
        body(toks)
    g.wait(toks[-1])
    sent_check(regs, tmp)
    I(f"s_cmp_lg_u64 vcc, 0")
    I(f"s_cbranch_scc1 {lr}")
    g.label(lb)
    g.begin()
    g.label(lr)
    check_loop(issue, regs, tmp, body)
    I(f"s_branch {lb}")
    TAILS.append(g.end())


def c_setup():
    I(f"v_lshrrev_b32 v{vT0}, 3, v{vLANE}")
    I(f"v_mul_u32_u24 v{vT1}, 3584, v{vT0}")
    I(f"v_and_b32 v{vT2}, 1, v{vG}")
    I(f"v_lshlrev_b32 v{vT2}, 2, v{vT2}")
    I(f"v_and_b32 v{vCA}, 7, v{vLANE}")
    I(f"v_xor_b32 v{vCA}, v{vCA}, v{vT2}")
    I(f"v_lshl_add_u32 v{vCA}, v{vCA}, 4, v{vT1}")
    I(f"s_cmp_ge_u32 s{sJC}, 14")
    I(f"s_cselect_b32 s{sT0}, {OOB}, 0")
    I(f"v_add_u32 v{vCA}, s{sT0}, v{vCA}")
    I(f"s_mul_i32 s{sCW}, s{sW}, {8*3584}")
    I(f"s_lshl_b32 s{sT0}, s{sJC}, 8")
    I(f"s_add_u32 s{sCW}, s{sCW}, s{sT0}")


def touch1():
    I(f"s_mul_i32 s{sT0}, s{sLI}, {98*128}")
    I(f"s_mul_i32 s{sT1}, s{sW}, {13*128}")
    I(f"s_add_u32 s{sT0}, s{sT0}, s{sT1}")
    I(f"v_lshlrev_b32 v{vT0}, 7, v{vLANE}")
    I(f"v_mov_b32 v{vT2}, {OOB}")
    I(f"v_cmp_gt_u32 vcc, 13, v{vLANE}")
    I(f"v_cndmask_b32 v{vT0}, v{vT2}, v{vT0}, vcc")
    I(f"buffer_load_dword v{vDMY}, v{vT0}, {srd(sWO)}, s{sT0} offen")
    I(f"s_lshr_b32 s{sT0}, s{sW}, 1")
    I(f"s_lshl_b32 s{sT2}, s{sT0}, 2")
    I(f"s_mul_i32 s{sT0}, s{sT0}, {4*3584}")
    I(f"s_mul_i32 s{sT1}, s{sLI}, {14*3584}")
    I(f"s_add_u32 s{sT0}, s{sT0}, s{sT1}")
    I(f"s_and_b32 s{sT1}, s{sXC}, 1")
    I(f"s_mul_i32 s{sT1}, s{sT1}, 1792")
    I(f"s_add_u32 s{sT0}, s{sT0}, s{sT1}")
    I(f"v_mul_u32_u24 v{vT0}, 3584, v{vG}")
    I(f"v_lshl_add_u32 v{vT0}, v{vM16}, 7, v{vT0}")
    I(f"v_cmp_gt_u32 vcc, 14, v{vM16}")
    I(f"v_cndmask_b32 v{vT0}, v{vT2}, v{vT0}, vcc")
    I(f"v_add_u32 v{vT1}, s{sT2}, v{vG}")
    I(f"v_cmp_gt_u32 vcc, 14, v{vT1}")
    I(f"v_cndmask_b32 v{vT0}, v{vT2}, v{vT0}, vcc")
    I(f"buffer_load_dword v{vDMY}, v{vT0}, s[4:7], s{sT0} offen")


def touch2(t1=None, dst=247):
    t1 = vT1 if t1 is None else t1
    I(f"s_mul_i32 s{sT2}, s{sLI}, {392*128}")
    I(f"s_mul_i32 s{sT1}, s{sW}, {49*128}")
    I(f"s_add_u32 s{sT2}, s{sT2}, s{sT1}")
    I(f"v_min_u32 v{t1}, 48, v{vLANE}")
    I(f"v_lshlrev_b32 v{t1}, 7, v{t1}")
    I(f"buffer_load_dword v{dst}, v{t1}, {srd(sWD)}, s{sT2} offen")


TP_N = [0]
sTCH = 3
vTCH, vTCD = 96 + 3, 96 + 2


def tpiece(addr=None, dst=None):
    if "tp" not in EXP or TP_N[0] >= 7:
        return
    k = TP_N[0]
    TP_N[0] += 1
    a = vTCH if addr is None else addr
    d = vTCD if dst is None else dst
    if k == 0:
        I(f"s_mul_i32 s{sTCH}, s{sLI}, {392*128}")
        I(f"s_mul_i32 s{sBG}, s{sW}, {49*128}")
        I(f"s_add_u32 s{sTCH}, s{sTCH}, s{sBG}")
    I(f"v_min_u32 v{a}, 6, v{vLANE}")
    I(f"v_lshlrev_b32 v{a}, 7, v{a}")
    I(f"buffer_load_dword v{d}, v{a}, {srd(sWD)}, s{sTCH} offen offset:{(k % 4) * 896}")
    if k == 3:
        I(f"s_add_u32 s{sTCH}, s{sTCH}, 3584")


sNQ, sMTB, sCSS, sMTC = 76, 77, 78, 79
sINV = 69
vT8, vCSS, vHSA, vSSA = 210, 214, 215, 199 + 0


def addr_setup():
    I(f"s_lshl_b32 s{sGATH}, s{sJ}, 16")
    I(f"s_add_u32 s{sGATH}, s{sGATH}, {WS_KVP}")
    I(f"s_lshl_b32 s{sKVS}, s{sG}, 12")
    I(f"s_add_u32 s{sKVS}, s{sKVS}, s{sGATH}")
    I(f"s_lshl_b32 s{sOS}, s{sA}, 4")
    I(f"s_add_u32 s{sOS}, s{sOS}, s{sJ}")
    I(f"s_lshl_b32 s{sOS}, s{sOS}, 10")
    I(f"s_add_u32 s{sOS}, s{sOS}, {WS_O}")
    I(f"s_lshl_b32 s{sCSS}, s{sJC}, 4")
    I(f"s_add_u32 s{sCSS}, s{sCSS}, s{sG}")
    I(f"s_lshl_b32 s{sCSS}, s{sCSS}, 10")
    I(f"s_add_u32 s{sCSS}, s{sCSS}, {WS_CS}")
    I(f"s_and_b32 s{sNQ}, s{sJB}, 3")
    I(f"s_lshr_b32 s{sMTB}, s{sJB}, 2")
    I(f"s_lshl_b32 s{sT0}, s{sGB}, 2")
    I(f"s_add_u32 s{sMTB}, s{sMTB}, s{sT0}")
    I(f"s_mul_i32 s{sHS}, s{sMTB}, 28")
    I(f"s_lshl_b32 s{sT1}, s{sNQ}, 3")
    I(f"s_add_u32 s{sHS}, s{sHS}, s{sT1}")
    I(f"s_lshl_b32 s{sHS}, s{sHS}, 10")
    I(f"s_add_u32 s{sHS}, s{sHS}, {WS_H}")
    I(f"s_lshl_b32 s{sSS}, s{sMTB}, 2")
    I(f"s_add_u32 s{sSS}, s{sSS}, s{sNQ}")
    I(f"s_lshl_b32 s{sSS}, s{sSS}, 9")
    I(f"s_add_u32 s{sSS}, s{sSS}, {WS_ST}")
    I(f"s_lshl_b32 s{sMTC}, s{sG}, 2")
    I(f"s_add_u32 s{sMTC}, s{sMTC}, s{sW3}")
    I(f"s_mul_i32 s{sHHS}, s{sMTC}, {112*1024}")
    I(f"s_lshl_b32 s{sT0}, s{sJC}, 13")
    I(f"s_add_u32 s{sHHS}, s{sHHS}, s{sT0}")
    I(f"s_lshl_b32 s{sT0}, s{sWH}, 11")
    I(f"s_add_u32 s{sHHS}, s{sHHS}, s{sT0}")
    I(f"s_add_u32 s{sHHS}, s{sHHS}, {WS_HH}")
    I(f"s_cmp_ge_u32 s{sJC}, 14")
    I(f"s_cselect_b32 s{sT0}, {OOB}, 0")
    I(f"s_add_u32 s{sHHS}, s{sHHS}, s{sT0}")
    I(f"v_lshlrev_b32 v{vT8}, 3, v0")
    I(f"s_cmp_ge_u32 s{sW}, 4")
    I(f"s_cselect_b32 s{sT0}, {OOB}, 0")
    I(f"v_lshlrev_b32 v{vCSS}, 2, v0")
    I(f"v_add_u32 v{vCSS}, s{sT0}, v{vCSS}")
    I(f"s_lshl_b32 s{sT0}, s{sWH}, 12")
    I(f"s_lshl_b32 s{sT1}, s{sW3}, 7")
    I(f"s_add_u32 s{sT0}, s{sT0}, s{sT1}")
    I(f"s_lshl_b32 s{sT1}, s{sNQ}, 1")
    I(f"s_add_u32 s{sT1}, s{sT1}, s{sWH}")
    I(f"s_cmp_eq_u32 s{sT1}, 7")
    I(f"s_cselect_b32 s{sINV}, {OOB}, 0")
    I(f"s_add_u32 s{sT0}, s{sT0}, s{sINV}")
    I(f"v_lshrrev_b32 v{vT1}, 3, v{vLANE}")
    I(f"v_lshlrev_b32 v{vHSA}, 9, v{vT1}")
    I(f"v_and_b32 v{vT0}, 7, v{vLANE}")
    I(f"v_lshl_add_u32 v{vHSA}, v{vT0}, 4, v{vHSA}")
    I(f"v_add_u32 v{vHSA}, s{sT0}, v{vHSA}")


def stats_addr(dst, t0, t1):
    I(f"s_lshl_b32 s{sBG}, s{sW}, 6")
    I(f"v_lshlrev_b32 v{t0}, 3, v{vLANE}")
    I(f"v_add_u32 v{t0}, s{sBG}, v{t0}")
    I(f"v_mov_b32 v{t1}, {OOB}")
    I(f"v_cmp_gt_u32 vcc, 8, v{vLANE}")
    I(f"v_cndmask_b32 v{dst}, v{t1}, v{t0}, vcc")


def sentinels0():
    lab = g.newlabel("L_init")
    I(f"s_lshl_b32 s{sT0}, s2, 3")
    I(f"s_add_u32 s{sT0}, s{sT0}, s{sW}")
    I(f"s_cmp_lg_u32 s{sT0}, 7")
    I(f"s_cbranch_scc1 {lab}")
    g.cond_begin()
    I(f"v_lshlrev_b32 v{vT0}, 8, v{vLANE}")
    I(f"v_mov_b32 v{vT1}, 0")
    I(f"buffer_store_dword v{vT1}, v{vT0}, {srd(sWS)}, 0 offen sc1")
    g.cond_end()
    g.label(lab)
    SN = 216
    for i in range(4):
        I(f"v_mov_b32 v{SN+i}, -1")
    I(f"buffer_store_dwordx2 {vr(SN,2)}, v{vT8}, {srd(sWS)}, s{sKVS} offen sc1")
    I(f"buffer_store_dwordx4 {vr(SN,4)}, v{vL16}, {srd(sWS)}, s{sOS} offen sc1")


def sentinels():
    SN = 216
    I(f"buffer_store_dword v{SN}, v{vCSS}, {srd(sWS)}, s{sCSS} offen sc1")
    I(f"s_add_u32 s{sBG}, s{sHS}, s{sCL}")
    I(f"s_add_u32 s{sBG}, s{sBG}, s{sINV}")
    I(f"buffer_store_dwordx4 {vr(SN,4)}, v{vL16}, {srd(sWS)}, s{sBG} offen sc1")
    stats_addr(SN + 4, SN + 4, SN + 5)
    return I(f"buffer_store_dwordx2 {vr(SN,2)}, v{SN+4}, {srd(sWS)}, s{sSS} offen sc1")


def sent_hh(k):
    SN = 216
    I(f"s_add_u32 s{sBG}, s{sHHS}, {(k>>1)*4096 + (k&1)*1024}")
    return I(f"buffer_store_dwordx4 {vr(SN,4)}, v{vL16}, {srd(sWS)}, s{sBG} offen sc1")


def init_signal():
    lab = g.newlabel("L_is")
    I(f"s_cmp_lg_u32 s{sW}, 5")
    I(f"s_cbranch_scc1 {lab}")
    g.cond_begin()
    I("s_mov_b64 exec, 1")
    I(f"s_and_b32 s{sT0}, s2, 15")
    I(f"s_lshl_b32 s{sT0}, s{sT0}, 4")
    I(f"v_mov_b32 v{vCNT}, s{sT0}")
    I(f"buffer_atomic_add v{vONE}, v{vCNT}, {srd(sDBG)}, 0 offen sc1")
    I("s_mov_b64 exec, -1")
    g.cond_end()
    g.label(lab)


def init_check():
    lp, ld = g.newlabel("L_ic"), g.newlabel("L_icd")
    I(f"v_lshlrev_b32 v{vCNT}, 4, v{vM16}")
    I(f"s_mov_b32 s{sT5}, 0")
    g.label(lp)
    I("s_sleep 8")
    t = I(f"buffer_load_dword v{vINIT}, v{vCNT}, {srd(sDBG)}, 0 offen sc1")
    g.wait(t)
    I(f"v_cmp_gt_u32 vcc, 16, v{vINIT}")
    I(f"s_add_u32 s{sT5}, s{sT5}, 1")
    I(f"s_cmp_ge_u32 s{sT5}, {POLL_MAX}")
    I(f"s_cbranch_scc1 {ld}")
    I(f"s_cmp_lg_u64 vcc, 0")
    I(f"s_cbranch_scc1 {lp}")
    g.label(ld)


def phaseA():
    g.comment("==== phase A ====")
    if STAMPS:
        I("s_memrealtime s[96:97]")
        I("s_memtime s[94:95]")
        I("s_waitcnt lgkmcnt(0)")
        I("v_mov_b32 v250, s96")
        I("v_mov_b32 v251, s94")
    tx = {}
    for seg in range(7):
        for o in range(2):
            I(f"s_add_u32 m0, s{sLW}, {(o*7+seg)*1024 - seg*128}")
            tx[seg] = I(f"buffer_load_dwordx4 v{vXA1 if o else vXA0}, {srd(sX)}, s{sC if o else sB} offen offset:{seg*128} lds")
    I("s_setprio 2")
    if "cp0" not in EXP and "nocp" not in EXP:
        I(f"global_load_dword v{vDMY}, v{vINIT}, s[4:5]")
    for i in range(3):
        dma2(vWA, sWQKV, sD, 896 + i * 8 * 16 * 2688, sCL, LDS_WK + i * 8192)
    prologue2()
    if STAMPS:
        for nm, r in (("rt0", 250), ("start", 251)):
            g.cond_begin()
            I(f"buffer_store_dword v{r}, off, {srd(sWS)}, s{sSTO} offset:{4*nstamp[0]}")
            g.cond_end()
            nstamp[0] += 1
            stamp_names.append(nm)
    I(f"s_mov_b32 s{sLOG}, {f32(LOG2E)}")
    bgl = []
    bt = {}

    def bg_add(name, fn):
        bgl.append((name, fn))

    def bgq(n=1):
        for _ in range(n):
            if bgl:
                name, fn = bgl.pop(0)
                bt[name] = fn()

    def wk3():
        I(f"s_cmp_ge_u32 s{sW}, 4")
        I(f"s_cselect_b32 s{sT0}, {OOB}, 0")
        I(f"s_add_u32 s{sT0}, s{sT0}, s{sD}")
        dma2(vWA, sWQKV, sT0, 896 + 3 * 8 * 16 * 2688, sCL, LDS_WK + 3 * 8192)
        I(f"v_lshlrev_b32 v{vT0}, 4, v0")
        I(f"v_mov_b32 v{vT1}, {OOB}")
        I(f"v_cmp_gt_u32 vcc, 98, v0")
        I(f"v_cndmask_b32 v{vT0}, v{vT1}, v{vT0}, vcc")
        I(f"s_min_u32 s{sT0}, s{sCL}, 2048")
        I(f"s_add_u32 m0, s{sT0}, {LDS_WPL}")
        I(f"s_mul_i32 s{sT0}, s{sJ}, 1568")
        return I(f"buffer_load_dwordx4 v{vT0}, {srd(sWPHI)}, s{sT0} offen lds")
    bg_add("wk3", wk3)
    addr_setup()
    I(f"s_cmp_ge_u32 s{sW}, 4")
    I(f"s_cselect_b32 s{sE}, {(24-4)*16*2688}, {1792 + 24*16*2688}" if False else f"s_mov_b32 s{sE}, {1792 + 24*16*2688}")
    I(f"s_cmov_b32 s{sE}, {20*16*2688}")

    I(f"s_cselect_b32 s{sKC}, 10240, 0")
    I(f"s_max_u32 s{sKC}, s{sKC}, 3072")
    I(f"s_add_u32 s{sKC}, s{sKC}, s{sLW}")
    I(f"s_add_u32 s{sE}, s{sE}, s{sD}")

    def rawW(i):
        if i == 3:
            I(f"s_mov_b32 m0, s{sKC}")
            I("s_nop 0")
            return I(f"buffer_load_dwordx4 v{vWA}, {srd(sWQKV)}, s{sE} offen lds")
        off = 1792 + i * 8 * 16 * 2688 if i < 3 else (i - 4) * 8 * 16 * 2688
        return dma2(vWA, sWQKV, sD, off, sLW, i * 1024 if i < 3 else 10240 + (i - 3) * 1024)
    for i in range(4):
        bg_add(f"w{i}", lambda i=i: rawW(i))
    I(f"v_lshrrev_b32 v{vT0}, 3, v{vM16}")
    I(f"v_mul_u32_u24 v{vT0}, 7168, v{vT0}")
    I(f"v_add_u32 v{vT0}, s{sLW}, v{vT0}")
    I(f"v_and_b32 v{vT1}, 7, v{vM16}")
    I(f"v_lshl_add_u32 v{vT0}, v{vT1}, 7, v{vT0}")
    I(f"v_lshrrev_b32 v{vT1}, 1, v{vM16}")
    I(f"v_xor_b32 v{vT1}, v{vT1}, v{vG}")
    I(f"v_lshl_add_u32 v{vXR0}, v{vT1}, 4, v{vT0}")
    I(f"v_xor_b32 v{vXR1}, 64, v{vXR0}")
    I(f"v_bfe_u32 v{vT0}, v{vLANE}, 2, 2")
    I(f"v_lshl_add_u32 v{vT0}, v{vG}, 3, v{vT0}")
    I(f"v_lshlrev_b32 v{vT0}, 6, v{vT0}")
    I(f"v_and_b32 v{vT1}, 3, v{vLANE}")
    I(f"s_and_b32 s{sT1}, s{sJ}, 1")
    I(f"v_add_u32 v{vT1}, s{sT1}, v{vT1}")
    I(f"v_and_b32 v{vT2}, 1, v{vG}")
    I(f"v_lshlrev_b32 v{vT2}, 2, v{vT2}")
    I(f"v_xor_b32 v{vT1}, v{vT1}, v{vT2}")
    I(f"v_lshl_add_u32 v{vTR}, v{vT1}, 3, v{vT0}")
    I(f"v_lshrrev_b32 v{vT0}, 2, v{vM16}")
    I(f"v_and_b32 v{vT1}, 3, v{vM16}")
    I(f"v_cmp_eq_u32 vcc, v{vT0}, v{vG}")
    I(f"v_cndmask_b32 v{vT1}, 7, v{vT1}, vcc")
    I(f"v_mov_b32 v{vT3}, 0x3f80")
    I(f"v_mov_b32 v{vT4}, 0x3f800000")
    for i in range(2):
        I(f"v_cmp_eq_u32 vcc, {2*i}, v{vT1}")
        I(f"v_cndmask_b32 v{vT2}, 0, v{vT3}, vcc")
        I(f"v_cmp_eq_u32 vcc, {2*i+1}, v{vT1}")
        I(f"v_cndmask_b32 v{SEL+i}, v{vT2}, v{vT4}, vcc")
        I(f"v_mov_b32 v{SEL+6+i}, v{SEL+i}")
    for i in (2, 3, 4, 5):
        I(f"v_mov_b32 v{SEL+i}, 0")
    S1, S2 = ACC, ACC + 4
    for i in range(8):
        I(f"v_mov_b32 v{ACC+i}, 0")
    I(f"v_mov_b32 v{vT5}, 0x3f803f80")
    I(f"v_lshlrev_b32 v{vT0}, 2, v{vLANE}")
    I(f"v_add_u32 v{vT0}, {LDS_FLG}, v{vT0}")
    I(f"ds_write_b32 v{vT0}, v{ACC}")
    tw = {}
    if "tlb" in EXP:
        STR_ = int(os.environ.get("TLBS", "16"))
        I(f"v_lshlrev_b32 v{vT0}, {STR_}, v{vLANE}")
        lend = g.newlabel("L_tl")
        tb = [(sWO, 0), (sWG, 0), (sWU, 0), (sWD, 0), (sOUT, 0), (sWS, 0), (sWS, 0x400000), (sWS, 0x800000)]
        for w_, (r, off) in enumerate(tb):
            l2 = g.newlabel("L_tl")
            if w_ < 7:
                I(f"s_cmp_lg_u32 s{sW}, {w_}")
                I(f"s_cbranch_scc1 {l2}")
                g.cond_begin()
            I(f"s_mov_b32 s{sT0}, {off}")
            I(f"buffer_load_dword v{vDMY}, v{vT0}, {srd(r)}, s{sT0} offen")
            if w_ < 7:
                g.cond_end()
                I(f"s_branch {lend}")
                g.label(l2)
        g.label(lend)
    sentinels0()
    bgq(1)
    for seg in range(7):
        g.wait(tx[seg])
        I(f"ds_read_b128 {vr(XF+8*seg,4)}, v{vXR0} offset:{seg*1024}")
        t = I(f"ds_read_b128 {vr(XF+8*seg+4,4)}, v{vXR1} offset:{seg*1024}")
        if seg in (1, 2, 3, 4):
            bgq()
        g.wait(t)
        for k in range(8):
            r = XF + 8 * seg + k
            I(f"v_dot2_f32_bf16 v{S1+k%4}, v{r}, v{vT5}, v{S1+k%4}")
            I(f"v_dot2_f32_bf16 v{S2+k%4}, v{r}, v{r}, v{S2+k%4}")
    I("s_setprio 1")
    stamp("x stats")
    I(f"v_add_f32 v{S1}, v{S1}, v{S1+1}")
    I(f"v_add_f32 v{S1+2}, v{S1+2}, v{S1+3}")
    I(f"v_add_f32 v{S2}, v{S2}, v{S2+1}")
    I(f"v_add_f32 v{S2+2}, v{S2+2}, v{S2+3}")
    I(f"v_add_f32 v{S1}, v{S1}, v{S1+2}")
    I(f"v_add_f32 v{S2}, v{S2}, v{S2+2}")
    for lv in (16, 32):
        I(f"v_mov_b32 v{S1+1}, v{S1}")
        I(f"v_mov_b32 v{S2+1}, v{S2}")
        I(f"v_permlane{lv}_swap_b32 v{S1}, v{S1+1}")
        I(f"v_permlane{lv}_swap_b32 v{S2}, v{S2+1}")
        I(f"v_add_f32 v{S1}, v{S1}, v{S1+1}")
        I(f"v_add_f32 v{S2}, v{S2}, v{S2+1}")
    I(f"v_mul_f32 v{S1}, {f32(1/448)}, v{S1}")
    I(f"v_mul_f32 v{S2}, {f32(1/448)}, v{S2}")
    I(f"v_fma_f32 v{S2}, -v{S1}, v{S1}, v{S2}")
    I(f"v_max_f32 v{S2}, 0, v{S2}")
    I(f"v_add_f32 v{S2}, {f32(1e-5)}, v{S2}")
    RS, NB = ACCV, ACCV + 2
    I(f"v_rsq_f32 v{RS}, v{S2}")
    I(f"v_mul_f32 v{NB}, v{S1}, v{RS}")
    I(f"v_sub_f32 v{NB}, 0, v{NB}")
    I(f"v_mov_b32 v{RS+1}, v{RS}")
    I(f"v_mov_b32 v{NB+1}, v{NB}")
    TP = WF
    CSR = 248
    tcs = tinit = None
    for k in range(0, 56, 8):
        for u in range(8):
            I(f"v_lshlrev_b32 v{TP+2*u}, 16, v{XF+k+u}")
            I(f"v_and_b32 v{TP+2*u+1}, 0xffff0000, v{XF+k+u}")
        for u in range(8):
            I(f"v_pk_fma_f32 {vr(TP+2*u,2)}, {vr(TP+2*u,2)}, {vr(RS,2)}, {vr(NB,2)}")
        for u in range(8):
            I(f"v_cvt_pk_bf16_f32 v{XF+k+u}, v{TP+2*u}, v{TP+2*u+1}")
    I("s_setprio 0")
    stamp("normalized")
    I(f"v_mul_u32_u24 v{vT0}, 224, v{vG}")
    I(f"v_add_u32 v{vT0}, {LDS_WPL}, v{vT0}")
    I(f"v_lshl_add_u32 v{TMP}, v{vM16}, 1, v{vT0}")
    I(f"v_lshrrev_b32 v{vT2}, 2, v{vM16}")
    I(f"v_sub_u32 v{vT2}, v{vM16}, v{vT2}")
    I(f"v_lshl_add_u32 v{vT2}, v{vT2}, 1, v{vT0}")
    I(f"v_add_u32 v{TMP+1}, 32, v{vT2}")
    I(f"v_mov_b32 v{vT1}, {LDS_WPL + 1600}")
    I(f"v_and_b32 v{vT2}, 3, v{vM16}")
    I(f"v_cmp_eq_u32 vcc, 3, v{vT2}")
    I(f"v_cndmask_b32 v{TMP+1}, v{TMP+1}, v{vT1}, vcc")
    I(f"v_cmp_eq_u32 vcc, 3, v{vG}")
    I(f"v_cndmask_b32 v{TMP+2}, v{TMP}, v{vT1}, vcc")
    I(f"v_cndmask_b32 v{TMP+3}, v{TMP+1}, v{vT1}, vcc")
    I(f"v_add_u32 v{vTRb}, {LDS_WK}, v{vTR}")
    I(f"v_xor_b32 v{vTRc}, 32, v{vTRb}")
    def cs_loads():
        I(f"s_and_b32 s{sT0}, s{sW}, 1")
        I(f"s_cmp_eq_u32 s{sT0}, 1")
        I(f"s_cselect_b32 s4, s{sWU}, s{sWG}")
        I(f"s_cselect_b32 s5, s{sWU+1}, s{sWG+1}")
        I(f"s_mov_b32 s6, 1605632")
        I(f"s_mov_b32 s7, 0x20000")
        I(f"s_lshl_b32 s{sT0}, s{sG}, 2")
        I(f"s_lshr_b32 s{sT1}, s{sW}, 1")
        I(f"s_add_u32 s{sT0}, s{sT0}, s{sT1}")
        I(f"s_mul_i32 s{sT0}, s{sT0}, {7*3584}")
        I(f"s_lshl_b32 s{sT1}, s{sJC}, 8")
        I(f"s_add_u32 s{sT0}, s{sT0}, s{sT1}")
        I(f"s_cmp_ge_u32 s{sJC}, 14")
        I(f"s_cselect_b32 s{sT1}, {OOB}, 0")
        I(f"v_lshlrev_b32 v{vXA0}, 2, v{vLANE}")
        I(f"v_add_u32 v{vXA0}, s{sT1}, v{vXA0}")
        for r in range(7):
            if r:
                I(f"s_add_u32 s{sT0}, s{sT0}, 3584")
            tcs_ = I(f"buffer_load_dword v{CSR+r}, v{vXA0}, s[4:7], s{sT0} offen")
        return tcs_

    def init_load():
        I(f"v_mov_b32 v{vCNT}, 0")
        return I(f"buffer_load_dword v{vINIT}, v{vCNT}, {srd(sDBG)}, 0 offen sc1")
    bg_add("sent", sentinels)
    bg_add("cs", cs_loads)
    for i in (4, 5, 6):
        bg_add(f"w{i}", lambda i=i: rawW(i))
    bgq(int(os.environ.get("PRE1", "2")))
    g.wait(bt["wk3"])
    g.wait_all(vm=False)
    I("s_barrier")
    init_signal()
    for _ in range(int(os.environ.get("TPA", "2"))):
        tpiece()

    def rdk(c, dst):
        I(f"ds_read_b64_tr_b16 {vr(dst,2)}, v{vTRb} offset:{c*2048}")
        I(f"ds_read_b64_tr_b16 {vr(dst+2,2)}, v{vTRb} offset:{c*2048+256}")
        I(f"ds_read_b64_tr_b16 {vr(dst+4,2)}, v{vTRc} offset:{c*2048}")
        return I(f"ds_read_b64_tr_b16 {vr(dst+6,2)}, v{vTRc} offset:{c*2048+256}")

    tphi = None
    for u in range(2):
        for j in range(8):
            d0 = j if j < 4 else 16 + j - 4
            va = TMP + u + (2 if j >= 4 else 0)
            dst = (WPH2 if j & 1 else WPHI) + 4 * u + j // 2
            tphi = I(f"ds_read_u16 v{dst}, v{va} offset:{d0*56}")
    I(f"v_lshrrev_b32 v{vWOA}, 3, v{vLANE}")
    I(f"v_mul_u32_u24 v{vWOA}, 896, v{vWOA}")
    I(f"v_and_b32 v{vT1}, 7, v{vLANE}")
    I(f"v_lshlrev_b32 v{vT2}, 1, v{vG}")
    I(f"v_xor_b32 v{vT1}, v{vT1}, v{vT2}")
    I(f"v_lshl_add_u32 v{vWOA}, v{vT1}, 4, v{vWOA}")
    I(f"s_lshl_b32 s{sWOB}, s{sNQ}, 1")
    I(f"s_add_u32 s{sWOB}, s{sWOB}, s{sWH}")
    I(f"s_cmp_eq_u32 s{sWOB}, 7")
    I(f"s_cselect_b32 s{sT1}, {OOB}, 0")
    I(f"s_lshl_b32 s{sWOB}, s{sWOB}, 7")
    I(f"s_add_u32 s{sWOB}, s{sWOB}, s{sT1}")
    I(f"s_mul_i32 s{sT1}, s{sW3}, {112*896}")
    I(f"s_add_u32 s{sWOB}, s{sWOB}, s{sT1}")
    two = {}

    def wo_load(i):
        two[i] = dma2(vWOA, sWO, sWOB, i * 8 * 896, sLW, i * 1024, stmp=sBG)
    for i in range(4, 10):
        bg_add(f"wo{i}", lambda i=i: wo_load(i))
    KH = eval(os.environ.get('KH', '(2, 6, 10)'))
    chain16(ACC, rdk, hook=lambda c: bgq() if c in KH else None)
    for i in range(8):
        I(f"v_lshl_or_b32 v{WPHI+i}, v{WPH2+i}, 16, v{WPHI+i}")
    stamp("k chain")
    I(f"v_lshrrev_b32 v{vT0}, 1, v{vG}")
    I(f"v_mul_u32_u24 v{vT0}, {UNIT-1024}, v{vT0}")
    I(f"v_add_u32 v{vTRb}, v{vT0}, v{vTR}")
    I(f"v_xor_b32 v{vTRc}, 32, v{vTRb}")
    I(f"v_add_u32 v{vXR0}, 57344, v{vTRb}")
    I(f"v_add_u32 v{vXR1}, 57344, v{vTRc}")
    g.wait(bt['w3'])
    I("s_barrier")
    stamp("wv ready")
    for _ in range(int(os.environ.get("TPB", "3"))):
        tpiece()

    def rdw(isq):
        def rd(c, dst):
            n0 = 2 * c
            if not isq:
                unit, off = n0 % 8, (n0 // 8) * 1024
            elif n0 < 24:
                unit, off = n0 % 8, 10240 + (1 + n0 // 8) * 1024
            else:
                unit, off = 4 + n0 - 24, 10240
            a0, a1 = (vTRb, vTRc) if unit < 4 else (vXR0, vXR1)
            off += (unit % 4) * UNIT
            I(f"ds_read_b64_tr_b16 {vr(dst,2)}, v{a0} offset:{off}")
            I(f"ds_read_b64_tr_b16 {vr(dst+2,2)}, v{a0} offset:{off+256}")
            I(f"ds_read_b64_tr_b16 {vr(dst+4,2)}, v{a1} offset:{off}")
            return I(f"ds_read_b64_tr_b16 {vr(dst+6,2)}, v{a1} offset:{off+256}")
        return rd

    g.begin()
    chain16(ACCV, rdw(False), swap=True, hook=lambda c: bgq() if c in eval(os.environ.get('VH', '(1,3,5,7,9,11,13)')) else None)
    main = g.end()
    g.begin()
    featmap(ACC, PH)
    for s_ in range(2):
        for u in range(2):
            I(f"v_mfma_f32_16x16x32_bf16 {vr(TMP+8*s_+4*u,4)}, {vr(PH+4*s_,4)}, {vr(SEL+4*u,4)}, 0")
    side = g.end()
    g.put(interleave(main, side, every=1, per=4))
    PT = PH
    for k in range(8):
        I(f"v_cvt_pk_bf16_f32 v{PT+k}, v{TMP+2*k}, v{TMP+2*k+1}")
    VF = ACC
    I(f"v_cmp_le_u32 vcc, 12, v{vM16}")
    for k in range(4):
        I(f"v_cvt_pk_bf16_f32 v{VF+k}, v{ACCV+2*k}, v{ACCV+2*k+1}")
    I(f"v_cndmask_b32 v{VF+2}, v{VF+2}, v{vT5}, vcc")
    I(f"v_cndmask_b32 v{VF+3}, v{VF+3}, v{vT5}, vcc")
    I(f"s_lshr_b32 s{sT0}, s{sW}, 1")
    I(f"s_lshl_b32 s{sT0}, s{sT0}, 10")
    I(f"s_and_b32 s{sT1}, s{sW}, 1")
    I(f"s_lshl_b32 s{sT1}, s{sT1}, 3")
    I(f"s_add_u32 s{sT0}, s{sT0}, s{sT1}")
    I(f"s_add_u32 s{sT0}, s{sT0}, {LDS_WK}")
    I(f"v_add_u32 v{vT0}, s{sT0}, v{vL16}")
    for k in range(4):
        I(f"ds_write_b64 v{vT0}, {vr(PT+2*k,2)} offset:{k*4096}")
    for k in range(2):
        I(f"ds_write_b64 v{vT0}, {vr(VF+2*k,2)} offset:{(4+k)*4096}")
    g.wait(bt['cs'])
    I(f"v_mov_b32 v{ACCV}, 0\nv_mov_b32 v{ACCV+1}, 0")
    for r in range(7):
        I(f"v_dot2_f32_bf16 v{ACCV}, v{CSR+r}, v{vT3}, v{ACCV}")
        I(f"v_dot2_f32_bf16 v{ACCV+1}, v{CSR+r}, v{vT4}, v{ACCV+1}")
    I(f"v_lshlrev_b32 v{vT1}, 3, v0")
    I(f"v_add_u32 v{vT1}, {LDS_KVF}, v{vT1}")
    I(f"ds_write_b64 v{vT1}, {vr(ACCV,2)}")
    I(f"s_lshl_b32 s{sT0}, s{sWH}, 1")
    I(f"s_and_b32 s{sT1}, s{sW}, 1")
    I(f"s_add_u32 s{sT0}, s{sT0}, s{sT1}")
    I(f"s_lshl_b32 s{sT0}, s{sT0}, 12")
    I(f"s_add_u32 s{sT0}, s{sT0}, {LDS_WK}")
    I(f"v_add_u32 v{vT0}, s{sT0}, v{vL16}")
    I(f"s_bfe_u32 s{sT0}, s{sW}, 0x10001")
    I(f"s_lshl_b32 s{sT0}, s{sT0}, 12")
    I(f"s_add_u32 s{sT0}, s{sT0}, {LDS_WK + 4*4096}")
    I(f"v_add_u32 v{vT1}, s{sT0}, v{vL16}")
    g.wait(bt['w6'])
    g.wait_all(vm=False)
    I("s_barrier")
    R = WF
    tk = {}
    for p in range(4):
        I(f"ds_read_b128 {vr(R+8*p,4)}, v{vT0} offset:{p*1024}")
        tk[p] = I(f"ds_read_b128 {vr(R+8*p+4,4)}, v{vT1} offset:{p*1024}")
    I(f"v_lshlrev_b32 v{vXA0}, 2, v0")
    I(f"v_and_b32 v{vXA0}, 1023, v{vXA0}")
    I(f"v_add_u32 v{vXA0}, {LDS_KVF}, v{vXA0}")
    I(f"ds_read2st64_b32 {vr(ACCV,2)}, v{vXA0} offset0:0 offset1:4")
    tq = I(f"ds_read2st64_b32 {vr(ACCV+2,2)}, v{vXA0} offset0:8 offset1:12")
    for p in range(4):
        g.wait(tk[p])
        I(f"v_mfma_f32_16x16x32_bf16 {vr(ACC,4)}, {vr(R+8*p,4)}, {vr(R+8*p+4,4)}, {'0' if p == 0 else vr(ACC,4)}")
    g.wait(tq)
    I(f"v_add_f32 v{ACCV}, v{ACCV}, v{ACCV+1}")
    I(f"v_add_f32 v{ACCV+2}, v{ACCV+2}, v{ACCV+3}")
    I(f"v_add_f32 v{ACCV}, v{ACCV}, v{ACCV+2}")
    I(f"v_cvt_pk_bf16_f32 v{ACC+4}, v{ACC}, v{ACC+1}")
    I(f"v_cvt_pk_bf16_f32 v{ACC+5}, v{ACC+2}, v{ACC+3}")
    I(f"buffer_store_dwordx2 {vr(ACC+4,2)}, v{vT8}, {srd(sWS)}, s{sKVS} offen sc1")
    I(f"buffer_store_dword v{ACCV}, v{vCSS}, {srd(sWS)}, s{sCSS} offen sc1")
    stamp("kv stored")
    for _ in range(7):
        tpiece()
    if "t2a" in EXP:
        touch2(98, 99)
    I(f"v_lshlrev_b32 v{vCNT}, 4, v{vM16}")
    tini = I(f"buffer_load_dword v{vINIT}, v{vCNT}, {srd(sDBG)}, s{sCL} offen sc1")
    for i in range(4):
        bg_add(f"wo{i}", lambda i=i: wo_load(i))
    chain16(ACC, rdw(True), hook=lambda c: bgq() if c % 2 == 1 else None)
    bgq(99)
    c_bg(0, 0, 0, 56, 0, "qdone")
    c_bg(1, 0, 0, 24, 57344, "qdone")
    lr, lb = g.newlabel("L_ir"), g.newlabel("L_ib")
    I(f"s_cmp_lg_u32 s{sW}, 0")
    I(f"s_cbranch_scc1 {lb}")
    g.cond_begin()
    g.wait(tini)
    I(f"v_cmp_gt_u32 vcc, 16, v{vINIT}")
    I(f"s_cmp_lg_u64 vcc, 0")
    I(f"s_cbranch_scc1 {lr}")
    g.cond_end()
    g.label(lb)
    g.begin()
    g.label(lr)
    init_check()
    I(f"s_branch {lb}")
    TAILS.append(g.end())
    I("s_barrier")
    for i in range(10, 14):
        wo_load(i)
    featmap(ACC, PH)
    GR, R, AO, OS = 40, 96, 176, 184
    WOF = 112
    vB1, vB2, vB3 = 188, 189, 190
    vK0, vK1, vK2 = 191, 192, 193
    stamp("q done")

    I(f"s_lshl_b32 s{sT0}, s{sWH}, 15")
    I(f"s_lshl_b32 s{sT1}, s{sW3}, 10")
    I(f"s_add_u32 s{sGATH}, s{sGATH}, s{sT0}")
    I(f"s_add_u32 s{sGATH}, s{sGATH}, s{sT1}")

    def gat_issue():
        tl = []
        I(f"s_mov_b32 s{sT0}, s{sGATH}")
        for rb in range(8):
            if rb:
                I(f"s_add_u32 s{sT0}, s{sT0}, 4096")
            tl.append(I(f"buffer_load_dwordx4 {vr(GR+4*rb,4)}, v{vL16}, {srd(sWS)}, s{sT0} offen sc1"))
        return tl

    def gat_body(tl):
        for i in range(8):
            I(f"v_mov_b32 v{R+i}, 0")
        for rb in range(8):
            g.wait(tl[rb])
            for i in range(4):
                I(f"v_dot2_f32_bf16 v{R+2*i}, v{GR+4*rb+i}, v{vT3}, v{R+2*i}")
                I(f"v_dot2_f32_bf16 v{R+2*i+1}, v{GR+4*rb+i}, v{vT4}, v{R+2*i+1}")

    def wo_bounce():
        c_setup()
        d_setup()
        I(f"v_lshrrev_b32 v{vK0}, 2, v{vM16}")
        I(f"v_sub_u32 v{vK0}, v{vM16}, v{vK0}")
        I(f"v_and_b32 v{vT1}, 3, v{vM16}")
        I(f"v_cmp_eq_u32 vcc, 3, v{vT1}")
        I(f"v_cndmask_b32 v{vK0}, v{vK0}, 12, vcc")
        I(f"v_lshl_add_u32 v{vK0}, v{vG}, 4, v{vK0}")
        I(f"v_lshlrev_b32 v{vK0}, 4, v{vK0}")
        I(f"v_add_u32 v{vK0}, {LDS_KV2}, v{vK0}")
        I(f"v_add_u32 v{vK1}, {LDS_KV2}, v{vL16}")
        I(f"v_and_b32 v{vK2}, 31, v{vLANE}")
        I(f"v_lshlrev_b32 v{vK2}, 5, v{vK2}")
        I(f"v_lshrrev_b32 v{vT1}, 5, v{vLANE}")
        I(f"v_lshl_add_u32 v{vK2}, v{vT1}, 3, v{vK2}")
        I(f"v_add_u32 v{vK2}, s{sCL}, v{vK2}")
        I(f"v_add_u32 v{vK2}, {LDS_KV2}, v{vK2}")
        I(f"v_bfe_u32 v{vT1}, v{vLANE}, 2, 2")
        I(f"v_lshl_add_u32 v{vB1}, v{vG}, 2, v{vT1}")
        I(f"v_min_u32 v{vT1}, 2, v{vT1}")
        I(f"v_mad_u32_u24 v{vB2}, v{vG}, 3, v{vT1}")
        I(f"v_add_u32 v{vB2}, 16, v{vB2}")
        I(f"v_and_b32 v{vT1}, 3, v{vLANE}")
        I(f"v_lshlrev_b32 v{vT1}, 3, v{vT1}")
        I(f"v_add_u32 v{vT1}, s{sLW}, v{vT1}")
        AD = 72
        for rd_, vb in enumerate((vB1, vB2)):
            I(f"v_bfe_u32 v{vT2}, v{vb}, 1, 2")
            I(f"v_lshlrev_b32 v{vT2}, 5, v{vT2}")
            I(f"v_lshl_add_u32 v{vT2}, v{vb}, 7, v{vT2}")
            I(f"v_add_u32 v{AD+4*rd_}, v{vT2}, v{vT1}")
            for x in range(1, 4):
                I(f"v_xor_b32 v{AD+4*rd_+x}, {32*x}, v{AD+4*rd_}")
        g.wait(two[13])
        for hh in range(4):
            for nt in range(4):
                d = WOF + (hh * 4 + nt) * 4
                x = nt ^ (2 * (hh & 1))
                I(f"ds_read_b64_tr_b16 {vr(d,2)}, v{AD+x} offset:{hh*3584}")
                I(f"ds_read_b64_tr_b16 {vr(d+2,2)}, v{AD+4+x} offset:{hh*3584}")
    spec_load(gat_issue, [GR + 2 * k for k in range(16)], R + 12, gat_body, wo_bounce)
    g.mark("gdone")
    if "t2d" in EXP:
        touch2(194, 195)
    for i in range(4):
        I(f"v_cvt_pk_bf16_f32 v{R+8+i}, v{R+2*i}, v{R+2*i+1}")
    I(f"ds_write_b64 v{vK2}, {vr(R+8,2)}")
    I(f"ds_write_b64 v{vK2}, {vr(R+10,2)} offset:16")
    g.wait_all(vm=False)
    stamp("gathered")
    I("s_barrier")
    g.mark("qdone")
    g.mark("burst:" + os.environ.get("BB0", "2"))
    KF = 40
    tk = {}
    for hf_ in range(2):
        for s_ in range(2):
            I(f"ds_read_b128 {vr(KF+16*hf_+8*s_,4)}, v{vK1} offset:{hf_*4096+s_*2048}")
            tk[hf_, s_] = I(f"ds_read_b128 {vr(KF+16*hf_+8*s_+4,4)}, v{vK0} offset:{hf_*4096+s_*2048+1024}")
    for hf_ in range(2):
        for s_ in range(2):
            g.wait(tk[hf_, s_])
            for t in range(2):
                a = vr(AO + 4 * t, 4)
                I(f"v_mfma_f32_16x16x32_bf16 {a}, {vr(KF+16*hf_+8*s_+4*t,4)}, {vr(PH+4*s_,4)}, {'0' if (s_ == 0 and hf_ == 0) else a}")
    I(f"v_add_f32 v{vT1}, {f32(1e-6)}, v{AO+7}")
    I(f"v_rcp_f32 v{vT1}, v{vT1}")
    for i in range(7):
        I(f"v_mul_f32 v{AO+i}, v{AO+i}, v{vT1}")
    for i in range(3):
        I(f"v_cvt_pk_bf16_f32 v{OS+i}, v{AO+2*i}, v{AO+2*i+1}")
    I(f"v_cvt_pk_bf16_f32 v{OS+3}, v{AO+6}, 0")
    I(f"buffer_store_dwordx4 {vr(OS,4)}, v{vL16}, {srd(sWS)}, s{sOS} offen sc1")
    stamp("o stored")
    if "t2b" in EXP:
        touch2(202, 203)
    g.mark("on")
    return two


def woraw(i):
    return vr(216 + 4 * i, 4) if i < 8 else vr(WR + 4 * (i - 8), 4)


def phaseB(two):
    g.comment("==== phase B ====")
    OF = 216
    XR, XU, CSG = 176, 180, 188
    WOF = 112
    BACC = 72
    vB1, vB2, vB3 = 196, 197, 198
    vD1, vD2, vD3 = 199, 200, 201
    I(f"s_lshl_b32 s{sT0}, s{sMTB}, 2")
    I(f"s_add_u32 s{sT0}, s{sT0}, s{sW3}")
    I(f"s_mul_i32 s{sT0}, s{sT0}, {8*896}")
    I(f"s_lshl_b32 s{sT1}, s{sNQ}, 8")
    I(f"s_add_u32 s{sT0}, s{sT0}, s{sT1}")
    I(f"s_lshl_b32 s{sT1}, s{sWH}, 7")
    I(f"s_add_u32 s{sT0}, s{sT0}, s{sT1}")
    I(f"s_add_u32 s{sT0}, s{sT0}, s{sINV}")
    I(f"v_and_b32 v{vT4}, 7, v{vLANE}")
    I(f"v_lshrrev_b32 v{vT5}, 3, v{vLANE}")
    I(f"v_mul_u32_u24 v{vT0}, 896, v{vT5}")
    I(f"v_lshl_add_u32 v{vT0}, v{vT4}, 4, v{vT0}")
    I(f"s_cmp_ge_u32 s{sW}, 4")
    I(f"s_mov_b32 s{sT2}, 81920")
    I(f"s_cmov_b32 s{sT2}, {LDS_KVF - 4096}")
    I(f"s_add_u32 s{sT2}, s{sT2}, s{sCL}")
    g.mark("off")
    I(f"s_mov_b32 m0, s{sT2}")
    I(f"v_lshlrev_b32 v{vB3}, 7, v{vT4}")
    txd = I(f"buffer_load_dwordx4 v{vT0}, {srd(sX)}, s{sT0} offen lds")
    g.mark("on")
    I(f"v_lshl_add_u32 v{vB3}, v{vT5}, 4, v{vB3}")
    I(f"v_add_u32 v{vB3}, s{sT2}, v{vB3}")
    g.mark("burst:" + os.environ.get("BB1", "3"))
    I(f"s_lshl_b32 s{sD}, s{sMTB}, 5")
    I(f"s_lshl_b32 s{sT1}, s{sW3}, 2")
    I(f"s_add_u32 s{sD}, s{sD}, s{sT1}")
    I(f"s_lshl_b32 s{sD}, s{sD}, 10")
    I(f"s_add_u32 s{sD}, s{sD}, {WS_O}")
    I(f"s_add_u32 s{sE}, s{sD}, 16384")
    BS2 = 83968
    I(f"s_mul_i32 s{sT0}, s{sW3}, 18432")
    I(f"s_mul_i32 s{sT1}, s{sWH}, {8*1152}")
    I(f"s_add_u32 s{sT0}, s{sT0}, s{sT1}")
    I(f"s_add_u32 s{sT0}, s{sT0}, {BS2}")
    I(f"v_lshrrev_b32 v{vT1}, 1, v{vG}")
    I(f"v_mul_u32_u24 v{vT1}, 1152, v{vT1}")
    I(f"v_and_b32 v{vT2}, 1, v{vG}")
    I(f"v_lshl_add_u32 v{vT1}, v{vT2}, 9, v{vT1}")
    I(f"v_lshl_add_u32 v{vT1}, v{vM16}, 4, v{vT1}")
    I(f"v_add_u32 v{vB1}, s{sT0}, v{vT1}")
    I(f"s_lshl_b32 s{sT0}, s{sW3}, 7")
    I(f"s_add_u32 s{sT0}, s{sT0}, s{sT1}")
    I(f"s_add_u32 s{sT0}, s{sT0}, {BS2}")
    I(f"v_mul_u32_u24 v{vT1}, 1152, v{vT5}")
    I(f"v_lshl_add_u32 v{vT1}, v{vT4}, 4, v{vT1}")
    I(f"v_add_u32 v{vB2}, s{sT0}, v{vT1}")
    I(f"v_cmp_gt_u32 vcc, 0x10000, v{vHSA}")
    I(f"v_cndmask_b32 v{vT3}, 0, -1, vcc")
    stats_addr(vT2, vT0, vT1)
    I(f"v_mov_b32 v{vT5}, 0x3f803f80")
    g.wait(txd)
    txr = I(f"ds_read_b128 {vr(XR,4)}, v{vB3}")
    g.wait(txr)
    for i in range(4):
        I(f"v_lshlrev_b32 v{XU+2*i}, 16, v{XR+i}")
        I(f"v_and_b32 v{XU+2*i+1}, 0xffff0000, v{XR+i}")
    g.mark("off")
    I("s_barrier")
    stamp("wo ready")

    def o_issue():
        tl = []
        for hh in range(4):
            for mt in range(2):
                tl.append(I(f"buffer_load_dwordx4 {vr(OF+(hh*2+mt)*4,4)}, v{vL16}, {srd(sWS)}, s{sE if mt else sD} offen offset:{hh*1024} sc1"))
        return tl

    def o_body(tl):
        for hh in range(4):
            for mt in range(2):
                g.wait(tl[hh * 2 + mt])
                for nt in range(4):
                    a = BACC + (mt * 4 + nt) * 4
                    I(f"v_mfma_f32_16x16x32_bf16 {vr(a,4)}, {vr(WOF+(hh*4+nt)*4,4)}, {vr(OF+(hh*2+mt)*4,4)}, {'0' if hh == 0 else vr(a,4)}")
    spec_load(o_issue, [OF + 4 * k for k in range(8)], vT0, o_body)
    stamp("B mfma")
    for mt in range(2):
        for nt in range(4):
            I(f"ds_write_b128 v{vB1}, {vr(BACC+(mt*4+nt)*4,4)} offset:{nt*2304+mt*256}")
    I(f"s_lshl_b32 s{sT0}, s{sJC}, 14")
    I(f"s_lshl_b32 s{sT1}, s{sWH}, 13")
    I(f"s_add_u32 s{sT0}, s{sT0}, s{sT1}")
    I(f"s_add_u32 s{sD}, s{sT0}, {WS_CS}")
    I(f"s_add_u32 s{sE}, s{sD}, 4096")
    I(f"v_lshlrev_b32 v{vB3}, 2, v0")
    I(f"v_and_b32 v{vB3}, 1023, v{vB3}")

    def cs_issue():
        return [I(f"buffer_load_dword v{CSG+rb}, v{vB3}, {srd(sWS)}, s{sE if rb >= 4 else sD} offen offset:{(rb%4)*1024} sc1") for rb in range(8)]
    tcs8 = cs_issue()
    g.mark("burst:3")
    S1, S2 = 104, 105
    I(f"v_mov_b32 v{S1}, 0\nv_mov_b32 v{S2}, 0")
    g.wait_all(vm=False)
    I("s_barrier")
    b = 72
    for w in range(4):
        for q in range(2):
            I(f"ds_read_b128 {vr(b+w*8+q*4,4)}, v{vB2} offset:{w*18432+q*512}")
    g.wait_all(vm=False)
    HP = 108
    for i in range(8):
        I(f"v_add_f32 v{b+i}, v{b+i}, v{b+8+i}")
        I(f"v_add_f32 v{b+16+i}, v{b+16+i}, v{b+24+i}")
    for i in range(8):
        I(f"v_add_f32 v{b+i}, v{b+i}, v{XU+i}")
    for i in range(8):
        I(f"v_add_f32 v{b+i}, v{b+i}, v{b+16+i}")
    for i in range(4):
        I(f"v_cvt_pk_bf16_f32 v{HP+i}, v{b+2*i}, v{b+2*i+1}")
    I(f"buffer_store_dwordx4 {vr(HP,4)}, v{vHSA}, {srd(sWS)}, s{sHS} offen sc1")
    for i in range(4):
        I(f"v_dot2_f32_bf16 v{S1}, v{HP+i}, v{vT5}, v{S1}")
        I(f"v_dot2_f32_bf16 v{S2}, v{HP+i}, v{HP+i}, v{S2}")
    I(f"v_and_b32 v{S1}, v{vT3}, v{S1}")
    I(f"v_and_b32 v{S2}, v{vT3}, v{S2}")
    for ror in (8,):
        I(f"v_add_f32_dpp v{S1}, v{S1}, v{S1} row_ror:{ror} row_mask:0xf bank_mask:0xf")
        I(f"v_add_f32_dpp v{S2}, v{S2}, v{S2} row_ror:{ror} row_mask:0xf bank_mask:0xf")
    for lv in (16, 32):
        I(f"v_mov_b32 v106, v{S1}\nv_mov_b32 v107, v{S2}")
        I(f"v_permlane{lv}_swap_b32 v{S1}, v106")
        I(f"v_permlane{lv}_swap_b32 v{S2}, v107")
        I(f"v_add_f32 v{S1}, v{S1}, v106")
        I(f"v_add_f32 v{S2}, v{S2}, v107")
    I(f"buffer_store_dwordx2 v[{S1}:{S2}], v{vT2}, {srd(sWS)}, s{sSS} offen sc1")
    stamp("h stored")
    if "t2c" in EXP:
        touch2(202, 203)
    lr, lb = g.newlabel("L_sr"), g.newlabel("L_sb")
    g.wait(tcs8[-1])
    sent_check([CSG + rb for rb in range(8)], vT0)
    I(f"s_cmp_lg_u64 vcc, 0")
    I(f"s_cbranch_scc1 {lr}")
    g.label(lb)
    g.begin()
    g.label(lr)
    check_loop(cs_issue, [CSG + rb for rb in range(8)], vT0)
    I(f"s_branch {lb}")
    TAILS.append(g.end())
    for k in (4, 2, 1):
        for i in range(k):
            I(f"v_add_f32 v{CSG+i}, v{CSG+i}, v{CSG+k+i}")
    I(f"v_lshlrev_b32 v{vB3}, 2, v0")
    I(f"v_add_u32 v{vB3}, {LDS_KVF}, v{vB3}")
    I(f"ds_write_b32 v{vB3}, v{CSG}")
    g.wait_all(vm=False)
    I("s_barrier")
    I(f"s_cmp_ge_u32 s{sJC}, 14")
    I("s_cbranch_scc1 L_end")
    tb2 = c_batch(1, 0, 24, 56, 57344 + 24576)


GK1 = -2.0 * math.sqrt(2.0 / math.pi) * LOG2E
GK2 = GK1 * 0.044715
LDS_X = 114688
vHB, vM, vWD = 254, 255, 253
sWDB = 80
WDE = 16
NWDE = 7
NWDC = int(os.environ.get('NWDC', '2'))


def hh_signal(stage, toks):
    g.wait(*toks)
    I("s_barrier")
    lab = g.newlabel("L_hs")
    I(f"s_cmp_lg_u32 s{sW}, 0")
    I(f"s_cbranch_scc1 {lab}")
    g.cond_begin()
    I("s_mov_b64 exec, 1")
    I(f"s_lshl_b32 s{sT0}, s{sG}, 8")
    I(f"s_add_u32 s{sT0}, s{sT0}, {WS_CNT + CNT_HH * 4096 + 64 * stage}")
    I(f"v_mov_b32 v{vCNT}, s{sT0}")
    I(f"buffer_atomic_add v{vONE}, v{vCNT}, {srd(sWS)}, 0 offen sc1")
    I("s_mov_b64 exec, -1")
    g.cond_end()
    g.label(lab)


def hh_poll(stage_sreg_or_imm):
    I("s_mov_b64 exec, 1")
    I(f"s_lshl_b32 s{sT0}, s{sGB}, 8")
    I(f"s_add_u32 s{sT0}, s{sT0}, {WS_CNT + CNT_HH * 4096}")
    I(f"s_add_u32 s{sT0}, s{sT0}, {stage_sreg_or_imm}")
    I(f"v_mov_b32 v{vCNT}, s{sT0}")
    poll(sWS, vCNT, 14)
    I("s_mov_b64 exec, -1")


def d_setup():
    I(f"v_lshrrev_b32 v{vHB}, 5, v{vLANE}")
    I(f"v_and_b32 v{vM}, 31, v{vLANE}")
    I(f"v_lshrrev_b32 v{vT0}, 3, v{vLANE}")
    I(f"v_mul_u32_u24 v{vT0}, 896, v{vT0}")
    I(f"v_and_b32 v{vT1}, 1, v{vG}")
    I(f"v_lshlrev_b32 v{vT1}, 2, v{vT1}")
    I(f"v_and_b32 v{vWD}, 7, v{vLANE}")
    I(f"v_xor_b32 v{vWD}, v{vWD}, v{vT1}")
    I(f"v_lshl_add_u32 v{vWD}, v{vWD}, 4, v{vT0}")
    I(f"s_cmp_ge_u32 s{sJB}, 7")
    I(f"s_cselect_b32 s{sRH}, 1, 0")
    I(f"s_mul_i32 s{sT0}, s{sRH}, 7")
    I(f"s_sub_u32 s{sCB}, s{sJB}, s{sT0}")
    I(f"s_lshl_b32 s{sT0}, s{sWH}, 1")
    I(f"s_add_u32 s{sT0}, s{sT0}, s{sW}")
    I(f"s_and_b32 s{sAA}, s{sT0}, 3")
    I(f"s_mul_i32 s{sKC}, s{sWH}, 56")
    I(f"s_add_u32 s{sKC}, s{sKC}, s{sAA}")
    I(f"s_mul_i32 s{sWDB}, s{sKC}, {16*896}")
    I(f"s_lshl_b32 s{sT1}, s{sCB}, 7")
    I(f"s_add_u32 s{sWDB}, s{sWDB}, s{sT1}")
    I(f"s_cmp_ge_u32 s{sJB}, 14")
    I(f"s_cselect_b32 s{sT1}, {OOB}, 0")
    I(f"s_add_u32 s{sWDB}, s{sWDB}, s{sT1}")


sRH, sCB, sAA, sKC = 64, 65, 66, 67


def kc_off(n):
    return 8 * n if n < 7 else 4 + 8 * (n - 7)


def wd_load(dst, n):
    t = None
    for hf_ in range(2):
        I(f"s_add_u32 s{sT3}, s{sWDB}, {(16*kc_off(n) + 8*hf_)*896}")
        for e in range(4):
            t = I(f"buffer_load_dword v{dst+4*hf_+e}, v{vWD}, {srd(sWD)}, s{sT3} offen offset:{e*896}")
    return t


def wd_half(dst, n, hf_):
    I(f"s_add_u32 s{sBG}, s{sWDB}, {(16*kc_off(n) + 8*hf_)*896}")
    return I(f"buffer_load_dwordx4 {vr(dst+4*hf_,4)}, v{vWD}, {srd(sWD)}, s{sBG} offen")


def dt_pattern(dst, t0, t1):
    I(f"v_bfe_u32 v{t0}, v{vLANE}, 2, 2")
    I(f"v_lshl_add_u32 v{t1}, v{vHB}, 2, v{t0}")
    I(f"v_lshlrev_b32 v{t1}, 7, v{t1}")
    I(f"v_lshrrev_b32 v{t0}, 1, v{t0}")
    I(f"v_lshl_add_u32 v{t1}, v{t0}, 6, v{t1}")
    I(f"v_and_b32 v{t0}, 1, v{vG}")
    I(f"v_lshl_add_u32 v{t1}, v{t0}, 5, v{t1}")
    I(f"v_and_b32 v{t0}, 3, v{vLANE}")
    I(f"v_lshl_add_u32 v{dst}, v{t0}, 3, v{t1}")


def c_rows(mat, dbl, r0, r1, lds_base):
    return c_batch(mat, dbl, r0, r1, lds_base)


def g1_addr(n):
    if n < 8:
        return 114688 + n * 1024
    if 24 <= n < 40:
        return 114688 + 8192 + (n - 24) * 1024
    if n < 24:
        return (n - 8) * 1024
    return 16384 + (n - 40) * 1024


def u1_addr(n):
    if n < 8:
        return 32768 + n * 1024
    if 24 <= n < 40:
        return 32768 + 8192 + (n - 24) * 1024
    if n < 24:
        return 57344 + (n - 8) * 1024
    return 57344 + 16384 + (n - 40) * 1024


def phaseCD(twd_early):
    g.comment("==== phase C ====")
    sMD, sHB, sMT = sC, sHHS, sMTC
    sAB = 7
    sL5, sL2, sL3, sL4 = 4, 5, 6, 83
    I(f"s_mul_i32 s{sL5}, s{sW}, 5120")
    I(f"s_lshl_b32 s{sL2}, s{sW}, 11")
    I(f"s_mul_i32 s{sL3}, s{sW}, 3072")
    I(f"s_lshl_b32 s{sL4}, s{sW}, 12")
    slotE = [(sL2, 40960 + i * 1024) for i in range(2)] + [(sL3, 90112 + i * 1024) for i in range(3)]
    slotM = [(sL5, 114688 + i * 1024) for i in range(5)] + [(sL2, i * 1024) for i in range(2)]
    slotL = [(sL3, 16384 + i * 1024) for i in range(3)] + [(sL4, 57344 + i * 1024) for i in range(4)]
    wslot = slotE + slotM + slotL + (slotE + slotM)[:9]
    sRW = [12, 13, 14, 15, 16, 17, 18]
    sRA = [19, 20, 21, 22, 23, 81, 82]

    def wd_dma(m):
        n, hf_ = m // 2, m % 2
        return dma2(vWD, sWD, sRW[n % 7], (16 * (4 if n >= 7 else 0) + 8 * hf_) * 896, wslot[m][0], wslot[m][1])
    c_batch(0, 1, 0, 40, 114688)
    I(f"s_lshl_b32 s{sMD}, s{sGB}, 2")
    I(f"s_lshl_b32 s{sT0}, s{sRH}, 1")
    I(f"s_add_u32 s{sMD}, s{sMD}, s{sT0}")
    I(f"s_lshl_b32 s{sE}, s{sMT}, 11")
    I(f"s_add_u32 s{sE}, s{sE}, {WS_ST}")
    I(f"s_mul_i32 s{sWB}, s{sMT}, {28*1024}")
    I(f"s_add_u32 s{sWB}, s{sWB}, {WS_H}")
    I(f"s_mul_i32 s{sAB}, s{sMD}, {112*1024}")
    I(f"s_lshl_b32 s{sT1}, s{sKC}, 10")
    I(f"s_add_u32 s{sAB}, s{sAB}, s{sT1}")
    I(f"s_add_u32 s{sAB}, s{sAB}, {WS_HH}")
    for n in range(7):
        if "norot" in EXP:
            I(f"s_mov_b32 s{sT0}, {n}")
        else:
            I(f"s_add_u32 s{sT0}, s{sCB}, {n}")
            I(f"s_sub_u32 s{sT1}, s{sT0}, 7")
            I(f"s_cmp_ge_u32 s{sT0}, 7")
            I(f"s_cselect_b32 s{sT0}, s{sT1}, s{sT0}")
        I(f"s_mul_i32 s{sT1}, s{sT0}, {8*16*896}")
        I(f"s_add_u32 s{sRW[n]}, s{sWDB}, s{sT1}")
        I(f"s_lshl_b32 s{sT1}, s{sT0}, 13")
        I(f"s_add_u32 s{sRA[n]}, s{sAB}, s{sT1}")
    HF = 16
    A_, B_, C_ = 128, 144, 160
    TM, CS2 = 176, 192
    WFc = 208
    vA0, vA1, vCSA, vFA, vA2 = 240, 241, 242, 243, 15
    K1, K2, IR2, NMU = 248, 249, 250, 251
    STR = 244
    I(f"v_bfe_u32 v{vT0}, v{vLANE}, 2, 2")
    I(f"v_lshl_add_u32 v{vT1}, v{vHB}, 3, v{vT0}")
    I(f"v_lshlrev_b32 v{vT1}, 7, v{vT1}")
    I(f"v_lshrrev_b32 v{vT0}, 1, v{vT0}")
    I(f"v_xor_b32 v{vT0}, s{sWH}, v{vT0}")
    I(f"v_lshl_add_u32 v{vT1}, v{vT0}, 6, v{vT1}")
    I(f"v_and_b32 v{vT2}, 1, v{vG}")
    I(f"v_lshl_add_u32 v{vT1}, v{vT2}, 5, v{vT1}")
    I(f"v_and_b32 v{vT2}, 3, v{vLANE}")
    I(f"v_lshl_add_u32 v{vA0}, v{vT2}, 3, v{vT1}")
    I(f"v_add_u32 v{vA1}, 57344, v{vA0}")
    I(f"v_add_u32 v{vA2}, 114688, v{vA0}")
    I(f"s_lshl_b32 s{sT0}, s{sWH}, 7")
    I(f"s_add_u32 s{sT0}, s{sT0}, {LDS_CS}")
    I(f"v_lshlrev_b32 v{vCSA}, 4, v{vHB}")
    I(f"v_add_u32 v{vCSA}, s{sT0}, v{vCSA}")
    I(f"v_mov_b32 v{vFA}, {LDS_FLG}")
    I(f"v_lshlrev_b32 v{vT3}, 3, v{vLANE}")
    flush()
    I(f"v_lshlrev_b32 v{vT0}, 2, v0")
    I(f"v_and_b32 v{vT0}, 1023, v{vT0}")
    I(f"v_add_u32 v{vT0}, {LDS_KVF}, v{vT0}")
    t = I(f"ds_read2st64_b32 v[72:73], v{vT0} offset0:0 offset1:4")
    g.wait(t)
    I(f"v_add_f32 v72, v72, v73")
    I(f"ds_write_b32 v{vT0}, v72 offset:4096")
    stamp("C ready")

    S8 = 128

    def st_issue():
        return [I(f"buffer_load_dwordx2 {vr(S8+2*i,2)}, v{vT3}, {srd(sWS)}, s{sE} offen offset:{512*i} sc1") for i in range(4)]
    check_loop(st_issue, [S8 + 2 * i for i in range(4)], vT1)
    stamp("h flag")

    def h_issue():
        tl = []
        for c in range(28):
            if c % 4 == 0:
                I(f"s_add_u32 s{sT0}, s{sWB}, {c*1024}")
            tl.append(I(f"buffer_load_dwordx4 {vr(HF+4*c,4)}, v{vL16}, {srd(sWS)}, s{sT0} offen offset:{(c%4)*1024} sc1"))
        return tl
    g.begin()
    th = h_issue()
    hl = g.end()
    g.put(hl[:10])
    g.wait_all(vm=False)
    I("s_barrier")
    for i in range(4):
        I(f"v_add_f32 v{STR+i}, v{S8+i}, v{S8+4+i}")
    I(f"v_add_f32 v{STR}, v{STR}, v{STR+2}")
    I(f"v_add_f32 v{STR+1}, v{STR+1}, v{STR+3}")
    I(f"v_mov_b32 v{STR+2}, v{STR}\nv_mov_b32 v{STR+3}, v{STR+1}")
    I(f"v_permlane32_swap_b32 v{STR}, v{STR+2}")
    I(f"v_permlane32_swap_b32 v{STR+1}, v{STR+3}")
    I(f"v_add_f32 v{STR}, v{STR}, v{STR+2}")
    I(f"v_add_f32 v{STR+1}, v{STR+1}, v{STR+3}")
    I(f"v_mul_f32 v{NMU}, {f32(-1/448)}, v{STR}")
    I(f"v_mul_f32 v{STR+1}, {f32(1/448)}, v{STR+1}")
    I(f"v_fma_f32 v{STR+1}, -v{NMU}, v{NMU}, v{STR+1}")
    I(f"v_max_f32 v{STR+1}, 0, v{STR+1}")
    I(f"v_add_f32 v{IR2}, {f32(1e-5)}, v{STR+1}")
    I(f"v_rsq_f32 v{STR}, v{IR2}")
    I(f"v_mul_f32 v{K1}, {f32(GK1)}, v{STR}")
    I(f"v_mul_f32 v{STR+1}, v{STR}, v{STR}")
    I(f"v_mul_f32 v{STR+1}, v{STR+1}, v{STR}")
    I(f"v_mul_f32 v{K2}, {f32(GK2)}, v{STR+1}")
    tails = TAILS

    def cnt_add(f):
        I("s_mov_b64 exec, 1")
        I(f"ds_add_u32 v{vFA}, v{vONE} offset:{4*f}")
        I("s_mov_b64 exec, -1")

    def cnt_issue(f):
        return I(f"ds_read_b32 v{vFLAG}, v{vFA} offset:{4*f}")

    def cnt_check(f, t):
        lr, lb = g.newlabel("L_cr"), g.newlabel("L_cb")
        g.wait(t)
        I(f"v_readfirstlane_b32 s{sT4}, v{vFLAG}")
        I(f"s_cmp_lt_u32 s{sT4}, 8")
        I(f"s_cbranch_scc1 {lr}")
        g.label(lb)
        g.begin()
        g.label(lr)
        I(f"s_mov_b32 s{sT5}, 0")
        l2 = g.newlabel("L_cl")
        g.label(l2)
        I("s_sleep 1")
        cnt_issue(f)
        I("s_waitcnt lgkmcnt(0)")
        I(f"v_readfirstlane_b32 s{sT4}, v{vFLAG}")
        I(f"s_add_u32 s{sT5}, s{sT5}, 1")
        I(f"s_cmp_ge_u32 s{sT5}, {POLL_MAX*8}")
        I(f"s_cbranch_scc1 {lb}")
        I(f"s_cmp_lt_u32 s{sT4}, 8")
        I(f"s_cbranch_scc1 {l2}")
        I(f"s_branch {lb}")
        tails.append(g.end())

    def hsig_issue(f, toks):
        g.wait(*toks)
        I("s_mov_b64 exec, 1")
        t = I(f"ds_add_rtn_u32 v{vINIT}, v{vFA}, v{vONE} offset:{4*f}")
        I("s_mov_b64 exec, -1")
        return t

    def hsig_check(stage, t):
        lab = g.newlabel("L_hs")
        g.wait(t)
        I(f"v_readfirstlane_b32 s{sT4}, v{vINIT}")
        I(f"s_cmp_lg_u32 s{sT4}, 7")
        I(f"s_cbranch_scc1 {lab}")
        g.cond_begin()
        I("s_mov_b64 exec, 1")
        I(f"s_lshl_b32 s{sT0}, s{sG}, 8")
        I(f"s_add_u32 s{sT0}, s{sT0}, {WS_CNT + CNT_HH * 4096 + 64 * stage}")
        I(f"v_mov_b32 v{vCNT}, s{sT0}")
        I(f"buffer_atomic_add v{vONE}, v{vCNT}, {srd(sWS)}, 0 offen sc1")
        I("s_mov_b64 exec, -1")
        g.cond_end()
        g.label(lab)

    def cs_read(dst, mat, dbl):
        t = None
        for q in range(4):
            t = I(f"ds_read_b128 {vr(dst+4*q,4)}, v{vCSA} offset:{mat*512 + (64*dbl+8*q)*4}")
        return t

    def gpart(ag, t):
        g.wait(t)
        for i in range(16):
            I(f"v_fmac_f32 v{ag+i}, v{NMU}, v{TM+i}")
        for i in range(16):
            I(f"v_mul_f32 v{TM+i}, v{ag+i}, v{ag+i}")
        for i in range(16):
            I(f"v_fma_f32 v{TM+i}, v{TM+i}, v{K2}, v{K1}")
        for i in range(16):
            I(f"v_mul_f32 v{TM+i}, v{TM+i}, v{ag+i}")
        for i in range(16):
            I(f"v_exp_f32 v{TM+i}, v{TM+i}")
        for i in range(16):
            I(f"v_fma_f32 v{TM+i}, v{TM+i}, v{IR2}, v{IR2}")
        for i in range(16):
            I(f"v_rcp_f32 v{TM+i}, v{TM+i}")
        for i in range(16):
            I(f"v_mul_f32 v{TM+i}, v{ag+i}, v{TM+i}")

    def upart(au, t, dbl):
        g.wait(t)
        for i in range(16):
            I(f"v_fmac_f32 v{au+i}, v{NMU}, v{CS2+i}")
        for i in range(16):
            I(f"v_mul_f32 v{au+i}, v{au+i}, v{TM+i}")
        for i in range(8):
            I(f"v_cvt_pk_bf16_f32 v{CS2+i}, v{au+2*i}, v{au+2*i+1}")
        I(f"s_add_u32 s{sE}, s{sHB}, {dbl*4096}")
        I(f"buffer_store_dwordx4 {vr(CS2,4)}, v{vL16}, {srd(sWS)}, s{sE} offen sc1")
        return I(f"buffer_store_dwordx4 {vr(CS2+4,4)}, v{vL16}, {srd(sWS)}, s{sE} offen offset:1024 sc1")

    slots = []
    for c in range(28):
        slots.append((A_, c * 2048, c))
        slots.append((B_, 57344 + c * 2048, c))
    for c in range(28):
        slots.append((C_, 114688 + c * 2048 if c < 20 else (c - 20) * 2048, c))
    for c in range(28):
        slots.append((A_, 16384 + c * 2048 if c < 12 else 57344 + (c - 12) * 2048, c))
    NS = 112
    PRC = int(os.environ.get('PRC', '28'))
    depth = int(os.environ.get('DEPTH', '4'))
    nb = depth + 1
    tok = {}

    def rd(i):
        off = slots[i][1]
        base = vA0
        if off >= 114688:
            base, off = vA2, off - 114688
        elif off >= 57344:
            base, off = vA1, off - 57344
        dst = WFc + 4 * (i % nb)
        I(f"ds_read_b64_tr_b16 {vr(dst,2)}, v{base} offset:{off}")
        tok[i] = I(f"ds_read_b64_tr_b16 {vr(dst+2,2)}, v{base} offset:{off+512}")

    sched = {i: [] for i in range(NS)}
    load = {i: 0.0 for i in range(NS)}
    BUDGET = float(os.environ.get("BUDGET", "6"))

    def cost(it):
        if it.kind != "i":
            return 0
        m = it.text.split()[0]
        if m in TRANS:
            return 2
        if m in ("v_fma_f32", "v_fmac_f32"):
            return 1.25
        if m.startswith("v_"):
            return 1
        if m.startswith(("ds_", "buffer")):
            return 0.4
        return 0.1

    def cap(fn):
        g.begin()
        r = fn()
        return g.end(), r

    def at(slot, fn):
        st, r = cap(fn)
        for it in st:
            sched[slot].append(it)
            load[slot] += cost(it)
        return r

    rest = []

    def flow(stream, slot):
        pend = []
        for it in stream:
            pend.append(it)
            if it.kind != "i":
                continue
            c = sum(cost(x) for x in pend)
            while slot < NS and load[slot] + c > BUDGET:
                slot += 1
            if slot >= NS:
                rest.extend(pend)
            else:
                sched[slot].extend(pend)
                load[slot] += c
            pend = []
        return slot

    k_ = 0
    for it in hl[10:]:
        sched[k_].append(it)
        if it.text.startswith("buffer"):
            k_ += 1

    def refill(f, free_slot, batches, need_slot):
        at(free_slot, lambda: cnt_add(f))
        t = at(free_slot + 2, lambda: cnt_issue(f))
        at(free_slot + 3, lambda: cnt_check(f, t))
        st, tb = cap(batches)
        for q in range(len(st) // 3):
            for it in st[3 * q:3 * q + 3]:
                sched[free_slot + 3 + 2 * q].append(it)
        if need_slot is not None:
            at(need_slot - depth - 3, lambda: (g.wait(tb), cnt_add(f + 1)))
            t2 = at(need_slot - depth - 2, lambda: cnt_issue(f + 1))
            at(need_slot - depth - 1, lambda: cnt_check(f + 1, t2))
        return tb
    F0 = int(os.environ.get("F0", "40"))
    at(F0, lambda: cnt_add(0))
    t = at(F0 + 2, lambda: cnt_issue(0))
    at(F0 + 3, lambda: cnt_check(0, t))
    st1, tb1 = cap(lambda: c_batch(0, 1, 40, 56, 0))
    st2, tb2 = cap(lambda: (c_batch(1, 1, 0, 24, 16384), c_batch(1, 1, 24, 56, 57344))[1])
    st = st1 + st2
    for q in range(9):
        sched[F0 + 3 + 2 * q].extend(st[3 * q:3 * q + 3])
    at(76 - depth - 3, lambda: (g.wait(tb2), cnt_add(1)))
    t2_ = at(76 - depth - 2, lambda: cnt_issue(1))
    at(76 - depth - 1, lambda: cnt_check(1, t2_))
    at(56, lambda: cnt_add(2))
    t = at(72, lambda: cnt_issue(2))
    at(73, lambda: cnt_check(2, t))
    for m in range(5):
        at(73 + 2 * m, lambda: wd_dma(m))
    tM = refill(4, 84, lambda: [wd_dma(m) for m in range(5, 12)][-1], None)
    if not any(e in EXP for e in ("not2", "t2a", "t2b", "t2c", "t2d", "tp")):
        at(int(os.environ.get("T2", "62")), touch2)

    def h_issue_from(c0):
        def f():
            tl = []
            for c in range(c0, 28):
                if c % 4 == 0:
                    I(f"s_add_u32 s{sT2}, s{sWB}, {c*1024}")
                tl.append(I(f"buffer_load_dwordx4 {vr(HF+4*c,4)}, v{vL16}, {srd(sWS)}, s{sT2} offen offset:{(c%4)*1024} sc1"))
            return tl
        return f

    def hcheck(q):
        lr, lb = g.newlabel("L_hr"), g.newlabel("L_hb")
        g.wait(th[4 * q + 3])
        sent_check([HF + 4 * c for c in range(4 * q, 4 * q + 4)], vT1)
        I(f"s_cmp_lg_u64 vcc, 0")
        I(f"s_cbranch_scc1 {lr}")
        g.label(lb)
        g.begin()
        g.label(lr)
        check_loop(h_issue_from(4 * q), [HF + 4 * c for c in range(4 * q, 28)], vT1)
        I(f"s_branch {lb}")
        tails.append(g.end())
    t1 = at(54, lambda: cs_read(TM, 0, 0))
    t2 = at(55, lambda: cs_read(CS2, 1, 0))
    def epiA():
        g.wait(t2)
        for i in range(16):
            I(f"v_fmac_f32 v{A_+i}, v{NMU}, v{TM+i}")
        for i in range(16):
            I(f"v_fmac_f32 v{B_+i}, v{NMU}, v{CS2+i}")
        for i in range(16):
            I(f"v_mul_f32 v{TM+i}, v{A_+i}, v{A_+i}")
        for i in range(16):
            I(f"v_fma_f32 v{TM+i}, v{TM+i}, v{K2}, v{K1}")
        for i in range(16):
            I(f"v_mul_f32 v{TM+i}, v{TM+i}, v{A_+i}")
        for i in range(16):
            I(f"v_mul_f32 v{B_+i}, v{B_+i}, v{A_+i}")

    def epiB():
        for i in range(16):
            I(f"v_exp_f32 v{TM+i}, v{TM+i}")
        for i in range(16):
            I(f"v_fma_f32 v{TM+i}, v{TM+i}, v{IR2}, v{IR2}")
        for i in range(16):
            I(f"v_rcp_f32 v{TM+i}, v{TM+i}")
        for i in range(16):
            I(f"v_mul_f32 v{B_+i}, v{B_+i}, v{TM+i}")
        for i in range(8):
            I(f"v_cvt_pk_bf16_f32 v{CS2+i}, v{B_+2*i}, v{B_+2*i+1}")
        I(f"buffer_store_dwordx4 {vr(CS2,4)}, v{vL16}, {srd(sWS)}, s{sHB} offen sc1")
        return I(f"buffer_store_dwordx4 {vr(CS2+4,4)}, v{vL16}, {srd(sWS)}, s{sHB} offen offset:1024 sc1")
    st, _ = cap(epiA)
    e = flow(st, 57)
    assert e < 83, e
    st, tst0 = cap(epiB)
    e = flow(st, e)
    t1 = at(max(e, 85), lambda: cs_read(TM, 0, 1))
    t2 = at(min(e + 9, 109), lambda: cs_read(CS2, 1, 1))
    st, _ = cap(lambda: gpart(C_, t1))
    flow(st, max(e, 85) + 2)
    def flag_issue():
        I(f"s_lshl_b32 s{sT0}, s{sGB}, 8")
        I(f"s_add_u32 s{sT0}, s{sT0}, {WS_CNT + CNT_HH * 4096}")
        return I(f"buffer_load_dword v{vT4}, off, {srd(sWS)}, s{sT0} sc1")
    print("slot loads:", " ".join("%.0f" % load[i] for i in range(NS)), "rest", len(rest))
    for i in range(depth):
        rd(i)
    for i in range(NS):
        acc, off, c = slots[i]
        if i + depth < NS:
            rd(i + depth)
        if PRC and i % PRC == 0:
            I(f"s_setprio {3 - (i // PRC) % 4}")
        if i < 56 and i % 8 == 0:
            hcheck(i // 8)
        g.wait(tok[i])
        I(f"v_mfma_f32_32x32x16_bf16 {vr(acc,16)}, {vr(WFc+4*(i%nb),4)}, {vr(HF+4*c,4)}, {'0' if c == 0 else vr(acc,16)}")
        g.put(sched[i])
        if i in (55, 83, 111):
            stamp(f"slot{i}")
    g.put(rest)
    tlast = upart(A_, t2, 1)
    stamp("hh stored")
    DACC = 184
    frag = {n: 16 + 8 * n for n in range(14)}
    abuf = {c: 128 + 4 * c for c in range(14)}
    ta = {}
    vP = {(sL5, 114688): (vT0, vT1), (sL2, 0): (vT2, vT3), (sL3, 16384): (vT4, vT5), (sL3, 90112): (vINIT, vCNT - 0), (sL4, 57344): (252, 15)}
    vP[(sL3, 90112)] = (vG, vM16)
    dt_pattern(vFLAG, vT0, vT1)
    for (sreg, base), (a0, a1) in vP.items():
        I(f"v_add_u32 v{a0}, s{sreg}, v{vFLAG}")
        if base:
            I(f"v_add_u32 v{a0}, {base}, v{a0}")
        I(f"v_xor_b32 v{a1}, 64, v{a0}")

    def wd_read(m):
        n, rd_ = m // 2, m % 2
        sreg, imm = wslot[m]
        key = max((k for k in vP if k[0] == sreg and k[1] <= imm), key=lambda k: k[1])
        a = vP[key]
        imm -= key[1]
        t = None
        for nt in range(2):
            t = I(f"ds_read_b64_tr_b16 {vr(frag[n]+4*nt+2*rd_,2)}, v{a[nt]} offset:{imm}")
        return t

    def lda(c):
        for mt in range(2):
            I(f"s_add_u32 s{sT1}, s{sRA[c % 7]}, {mt*112*1024 + (4096 if c >= 7 else 0)}")
            ta[c, mt] = I(f"buffer_load_dwordx4 {vr(abuf[c]+4*mt,4)}, v{vL16}, {srd(sWS)}, s{sT1} offen sc1")

    def mm(c, first):
        for mt in range(2):
            g.wait(ta[c, mt])
            for nt in range(2):
                a = DACC + (mt * 2 + nt) * 16
                I(f"v_mfma_f32_32x32x16_bf16 {vr(a,16)}, {vr(frag[c]+4*nt,4)}, {vr(abuf[c]+4*mt,4)}, {'0' if first else vr(a,16)}")
    I("s_setprio 3")
    g.wait(tM)
    t = None
    for m in range(12):
        t = wd_read(m)
    g.wait(t)
    twd = {}
    for m in range(19, 28):
        twd[m] = wd_dma(m)
        if m == 22:
            th_ = hsig_issue(6, [tlast])
            hsig_check(0, th_)
    I("s_barrier")
    for m in range(12, 19):
        twd[m] = wd_dma(m)
    stamp("wd issued")
    I("s_setprio 0")
    lab = g.newlabel("L_fp")
    I(f"s_cmp_lg_u32 s{sW}, 0")
    I(f"s_cbranch_scc1 {lab}")
    g.cond_begin()
    hh_poll(0)
    g.cond_end()
    g.label(lab)
    g.wait(twd[27])
    for m in range(19, 28):
        wd_read(m)
    g.wait(twd[18])
    for m in range(12, 19):
        wd_read(m)
    g.wait_all(vm=False)
    I("s_barrier")
    stamp("hh flag")

    def lda1(c, mt):
        I(f"s_add_u32 s{sT1}, s{sRA[c % 7]}, {mt*112*1024 + (4096 if c >= 7 else 0)}")
        ta[c, mt] = I(f"buffer_load_dwordx4 {vr(abuf[c],4)}, v{vL16}, {srd(sWS)}, s{sT1} offen sc1")
    for c in range(14):
        lda1(c, 0)
    HR = 248
    I(f"v_and_b32 v{vT0}, 15, v0")
    I(f"v_lshrrev_b32 v{vT1}, 4, v0")
    I(f"v_lshrrev_b32 v{vFLAG}, 1, v{vT0}")
    I(f"v_lshlrev_b32 v{vFLAG}, 9, v{vFLAG}")
    I(f"v_lshl_add_u32 v{vFLAG}, v{vT1}, 4, v{vFLAG}")
    I(f"v_and_b32 v{vT2}, 1, v{vT0}")
    I(f"v_lshl_add_u32 v{vFLAG}, v{vT2}, 3, v{vFLAG}")
    I(f"s_mul_i32 s{sE}, s{sMD}, {28*1024}")
    I(f"s_lshl_b32 s{sT1}, s{sCB}, 12")
    I(f"s_add_u32 s{sE}, s{sE}, s{sT1}")
    I(f"s_add_u32 s{sE}, s{sE}, {WS_H}")
    I(f"s_add_u32 s{sD}, s{sE}, {28*1024}")
    I(f"s_mul_i32 s{sT0}, s{sW}, {64*272}")
    I(f"v_mul_u32_u24 v{vT3}, 272, v{vM}")
    I(f"v_lshl_add_u32 v{vT3}, v{vHB}, 4, v{vT3}")
    I(f"v_add_u32 v{vT3}, s{sT0}, v{vT3}")
    I(f"v_mul_u32_u24 v{vT4}, 272, v{vT1}")
    I(f"v_lshl_add_u32 v{vT4}, v{vT0}, 4, v{vT4}")
    I(f"v_add_u32 v{vT5}, {4*64*272}, v{vT4}")
    I(f"v_mul_u32_u24 v{vT2}, 896, v{vT1}")
    I(f"v_lshl_add_u32 v{vT2}, v{vT0}, 3, v{vT2}")
    I(f"s_mul_i32 s{sT0}, s{sMD}, {32*896}")
    I(f"s_lshl_b32 s{sT2}, s{sCB}, 7")
    I(f"s_add_u32 s{sT0}, s{sT0}, s{sT2}")
    I(f"s_add_u32 s{sT2}, s{sT0}, {32*896}")
    hold = {}

    def pw(mt, k):
        nt, q = k // 4, k % 4
        I(f"ds_write_b128 v{vT3}, {vr(DACC+(mt*2+nt)*16+4*q,4)} offset:{mt*32*272 + nt*128 + q*32}")

    def red_issue(mt, R):
        t = None
        for w in range(8):
            t = I(f"ds_read_b128 {vr(R+4*w,4)}, v{vT4 if w < 4 else vT5} offset:{(w%4)*64*272 + mt*32*272}")
        return t

    def red_fin(mt, R, t):
        g.wait(hold["thr"])
        U = R + 32
        for i in range(2):
            I(f"v_lshlrev_b32 v{U+2*i}, 16, v{HR+2*mt+i}")
            I(f"v_and_b32 v{U+2*i+1}, 0xffff0000, v{HR+2*mt+i}")
        g.wait(t)
        for k in (16, 8, 4):
            for i in range(k):
                I(f"v_add_f32 v{R+i}, v{R+i}, v{R+k+i}")
        for i in range(4):
            I(f"v_add_f32 v{R+i}, v{R+i}, v{U+i}")
        for i in range(2):
            I(f"v_cvt_pk_bf16_f32 v{R+4+i}, v{R+2*i}, v{R+2*i+1}")
        I(f"buffer_store_dwordx2 {vr(R+4,2)}, v{vT2}, {srd(sOUT)}, s{sT2 if mt else sT0} offen")
    for mt in range(2):
        for c in range(14):
            g.wait(ta[c, mt])
            for nt in range(2):
                a = DACC + (mt * 2 + nt) * 16
                I(f"v_mfma_f32_32x32x16_bf16 {vr(a,16)}, {vr(frag[c]+4*nt,4)}, {vr(abuf[c],4)}, {'0' if c == 0 else vr(a,16)}")
            if mt == 0:
                lda1(c, 1)
            elif 2 <= c < 10:
                pw(0, c - 2)
        if mt == 0:
            I(f"buffer_load_dwordx2 {vr(HR,2)}, v{vFLAG}, {srd(sWS)}, s{sE} offen sc1")
            hold["thr"] = I(f"buffer_load_dwordx2 {vr(HR+2,2)}, v{vFLAG}, {srd(sWS)}, s{sD} offen sc1")
            stamp("D early")
    stamp("D mfma")
    for k in range(8):
        pw(1, k)
    g.wait_all(vm=False)
    I("s_barrier")
    t0_ = red_issue(0, 16)
    t1_ = red_issue(1, 56)
    red_fin(0, 16, t0_)
    red_fin(1, 56, t1_)
    stamp("end")
    stamp("rt1", rt=True)
    if "span" in EXP:
        I(f"s_cmp_lg_u32 s{sW}, 7")
        I("s_cbranch_scc1 L_end")
        I("s_and_b32 s90, s2, 7")
        I("s_cmp_lg_u32 s90, 3")
        I("s_cbranch_scc1 L_end")
        I("s_waitcnt vmcnt(0)")
        I("s_memrealtime s[90:91]")
        I("s_memtime s[92:93]")
        I("s_waitcnt lgkmcnt(0)")
        I("s_mov_b64 exec, 1")
        I("s_not_b32 s86, s86")
        I("s_sub_u32 s92, s92, s100")
        I("v_mov_b32 v20, s86")
        I("v_mov_b32 v21, s90")
        I("v_mov_b32 v22, s92")
        I(f"buffer_atomic_umax v20, off, {srd(sDBG)}, 0 offset:4 sc1")
        I(f"buffer_atomic_umax v21, off, {srd(sDBG)}, 0 offset:8 sc1")
        I(f"buffer_atomic_umax v22, off, {srd(sDBG)}, 0 offset:12 sc1")


prologue()
two = phaseA()
twd = phaseB(two)
phaseCD(twd)
g.label("L_end")
I("s_endpgm")
for tl_ in TAILS:
    g.put(tl_)
g.insert_bg()
g.resolve_waits()
g.fix_hazards_fast()

hdr = open("cdna_kernels/" + NAME + ".s.ref").read().split("; Override launch geometry")[0]
out = hdr + f"""; @launch grid=(256,1,1) block=(512,1,1) lds=163840
.amdgcn_target "amdgcn-amd-amdhsa--gfx950"
.text
.globl {NAME}_kernel
.p2align 8
.type {NAME}_kernel,@function
{NAME}_kernel:
L_code_start:
{g.text()}
L_code_end:
.fill 64, 4, 0xbf800000
.section .rodata,"a"
.p2align 6
.amdhsa_kernel {NAME}_kernel
  .amdhsa_next_free_vgpr 256
  .amdhsa_next_free_sgpr 102
  .amdhsa_accum_offset 256
  .amdhsa_group_segment_fixed_size 0
  .amdhsa_kernarg_size 88
  .amdhsa_user_sgpr_count 2
  .amdhsa_user_sgpr_kernarg_segment_ptr 1
  .amdhsa_system_sgpr_workgroup_id_x 1
.end_amdhsa_kernel
"""
import subprocess, re as _re
open("_sz.s", "w").write(out.replace("CODE_LAST", "0x1000"))
subprocess.run(["clang", "-x", "assembler", "-target", "amdgcn-amd-amdhsa", "-mcpu=gfx950", "-c", "_sz.s", "-o", "_sz.o"], check=True)
_h = subprocess.run(["llvm-objdump", "-h", "_sz.o"], capture_output=True, text=True).stdout
_sz = int(_re.search(r"\.text\s+([0-9a-f]+)", _h).group(1), 16)
out = out.replace("CODE_LAST", hex(_sz - 768))
print("code bytes", _sz)
open(sys.argv[1], "w").write(out)
if STAMPS:
    open(sys.argv[1] + ".names", "w").write("\n".join(stamp_names))
print("instrs:", sum(1 for it in g.items if it.kind == "i"), "stamps:", nstamp[0])
```

```python
import sys, math, struct, os
sys.path.insert(0, "dev")
from gen import *

NAME = "sequential_preLN__linear_kernel_hedgehog__glu_gated_geglu__prompt"
STAMPS = int(sys.argv[2]) if len(sys.argv) > 2 else 0
EXP = sys.argv[3].split(",") if len(sys.argv) > 3 else []


def f32(x):
    return "0x%08x" % struct.unpack("<I", struct.pack("<f", x))[0]


WS_CNT = 0x0
WS_CS = 0x10000
WS_ST = 0x50000
WS_KVP = 0x100000
WS_O = 0x200000
WS_H = 0x400000
WS_HH = 0x600000
WS_STAMP = 0xE00000
CNT_KV, CNT_O, CNT_H, CNT_HH = 0, 1, 2, 3

sX, sWQKV, sWPHI, sWO, sWG, sWU, sWD, sOUT, sDBG, sWS = 8, 12, 16, 20, 24, 28, 32, 36, 40, 44
sG, sJ, sW = 48, 49, 50
sT0, sT1, sT2, sT3, sT4, sT5 = 51, 52, 53, 54, 55, 56
sW3, sWH = 57, 58
sA, sB, sC, sD, sE = 59, 60, 61, 62, 63
sSTAMP = 86
sGATH, sWB, sCW, sCL, sLOG = 88, 89, 90, 91, 92
sGB, sJB, sJC, sLI, sXC, sLW, sSTO = 93, 94, 95, 96, 97, 98, 99
OOB = 0x7ff00000
sBG, sWOB, sKVS, sOS, sHS, sSS, sHHS = 68, 70, 71, 72, 73, 74, 75


def srd(r):
    return f"s[{r}:{r+3}]"


def vr(a, n=1):
    return f"v{a}" if n == 1 else f"v[{a}:{a+n-1}]"


def ar(a, n=1):
    return f"a{a}" if n == 1 else f"a[{a}:{a+n-1}]"


g = Gen()
I = g.I
nstamp = [0]
stamp_names = []

vLANE, vG, vM16 = 1, 2, 3
vL16 = 4
vT0, vT1, vT2, vT3, vT4, vT5 = 5, 6, 7, 8, 9, 10
vFLAG, vONE, vCNT, vINIT, vDMY = 11, 12, 13, 14, 15


def stamp(name="", rt=False):
    if not STAMPS:
        return
    k = nstamp[0]
    nstamp[0] += 1
    stamp_names.append(name)
    g.cond_begin()
    I(f"{'s_memrealtime' if rt else 's_memtime'} s[{sSTAMP}:{sSTAMP+1}]")
    I("s_waitcnt lgkmcnt(0)")
    I(f"v_mov_b32 v{vCNT}, s{sSTAMP}")
    I(f"buffer_store_dword v{vCNT}, off, {srd(sWS)}, s{sSTO} offset:{4*k}")
    g.cond_end()


UNIT = 14336
LDS_WK = 8 * UNIT
LDS_KVF = 11 * UNIT
LDS_CS = LDS_KVF + 4096
LDS_FLG = LDS_CS + 1024
LDS_WPL = 10 * UNIT + 8192
LDS_KV2 = 8 * UNIT + 24576 + 4096
LDS_BSCR = 6 * UNIT


def prologue():
    I("s_cmp_ge_u32 s2, 256")
    I("s_cbranch_scc1 L_end")
    I("s_setprio 3")
    if "span" in EXP:
        I("s_memrealtime s[86:87]")
        I("s_memtime s[100:101]")
    I(f"s_load_dwordx2 s[{sX}:{sX+1}], s[0:1], 0")
    I("s_getpc_b64 s[4:5]")
    I(f"v_lshlrev_b32 v{vINIT}, 7, v0")
    I(f"s_and_b32 s{sT5}, s2, 24")
    I(f"s_cmp_eq_u32 s{sT5}, 0")
    I(f"s_cselect_b32 s{sT5}, CODE_LAST, 0")
    I(f"v_min_u32 v{vINIT}, s{sT5}, v{vINIT}")
    if "cp0" in EXP:
        I(f"global_load_dword v{vDMY}, v{vINIT}, s[4:5]")
    I("s_load_dwordx16 s[64:79], s[0:1], 0")
    I("s_load_dwordx4 s[80:83], s[0:1], 64")
    I("s_load_dwordx2 s[84:85], s[0:1], 80")
    I(f"v_and_b32 v{vLANE}, 63, v0")
    I(f"v_lshrrev_b32 v{vT0}, 6, v0")
    I(f"v_readfirstlane_b32 s{sW}, v{vT0}")
    I(f"v_lshrrev_b32 v{vG}, 4, v{vLANE}")
    I(f"s_bfe_u32 s{sT0}, s2, 0x20001")
    I(f"s_lshl_b32 s{sT0}, s{sT0}, 2")
    I(f"s_bfe_u32 s{sT1}, s2, 0x20003")
    I(f"s_add_u32 s{sG}, s{sT0}, s{sT1}")
    I(f"s_mov_b32 s{sX+2}, 1835008")
    I(f"s_mov_b32 s{sX+3}, 0x20000")
    I(f"v_lshrrev_b32 v{vT0}, 3, v{vLANE}")
    I(f"v_mul_u32_u24 v{vT0}, 896, v{vT0}")
    I(f"v_and_b32 v{vT1}, 7, v{vLANE}")
    I(f"v_xor_b32 v{vT3}, v{vT1}, v{vG}")
    I(f"v_lshl_add_u32 v{vXA0}, v{vT3}, 4, v{vT0}")
    I(f"v_xor_b32 v{vT3}, 4, v{vT3}")
    I(f"v_lshl_add_u32 v{vXA1}, v{vT3}, 4, v{vT0}")
    I(f"s_lshl_b32 s{sA}, s{sG}, 3")
    I(f"s_add_u32 s{sA}, s{sA}, s{sW}")
    I(f"s_mul_i32 s{sB}, s{sA}, {16*896}")
    I(f"s_add_u32 s{sC}, s{sB}, {8*896}")
    I(f"s_mul_i32 s{sLW}, s{sW}, {UNIT}")
    I(f"s_and_b32 s{sT2}, s2, 1")
    I(f"s_lshl_b32 s{sT3}, s{sT2}, 3")
    I(f"s_lshr_b32 s{sT4}, s2, 5")
    I(f"s_add_u32 s{sJ}, s{sT3}, s{sT4}")
    I(f"s_lshl_b32 s{sCL}, s{sW}, 10")
    I(f"v_lshrrev_b32 v{vT0}, 2, v{vLANE}")
    I(f"v_mul_u32_u24 v{vT0}, 2688, v{vT0}")
    I(f"v_and_b32 v{vT1}, 3, v{vLANE}")
    I(f"v_and_b32 v{vT2}, 2, v{vG}")
    I(f"v_xor_b32 v{vT1}, v{vT1}, v{vT2}")
    I(f"v_lshl_add_u32 v{vWA}, v{vT1}, 4, v{vT0}")
    I(f"s_mul_i32 s{sWB}, s{sJ}, 56")
    I(f"s_and_b32 s{sT1}, s{sJ}, 1")
    I(f"s_lshl_b32 s{sT1}, s{sT1}, 3")
    I(f"s_sub_u32 s{sWB}, s{sWB}, s{sT1}")
    I(f"s_mul_i32 s{sD}, s{sW}, {16*2688}")
    I(f"s_add_u32 s{sD}, s{sD}, s{sWB}")
    I(f"s_mov_b32 s{sWQKV+2}, 1204224")
    I(f"s_mov_b32 s{sWQKV+3}, 0x20000")
    if "t0" in EXP:
        I(f"s_lshr_b32 s{sLI}, s2, 3")
        I(f"s_mul_i32 s{sT2}, s{sLI}, {14*2688}")
        I(f"s_and_b32 s{sT3}, s2, 1")
        I(f"s_mul_i32 s{sT3}, s{sT3}, 384")
        I(f"s_add_u32 s{sT2}, s{sT2}, s{sT3}")
        I(f"s_mul_i32 s{sT3}, s{sW}, 896")
        I(f"s_add_u32 s{sT2}, s{sT2}, s{sT3}")
        I(f"s_cmp_ge_u32 s{sW}, 3")
        I(f"s_cselect_b32 s{sT3}, {OOB}, 0")
        I(f"s_add_u32 s{sT2}, s{sT2}, s{sT3}")
        I(f"v_lshrrev_b32 v{vT0}, 2, v{vLANE}")
        I(f"v_min_u32 v{vT0}, 13, v{vT0}")
        I(f"v_mul_u32_u24 v{vT0}, 2688, v{vT0}")
        I(f"v_and_b32 v{vT1}, 3, v{vLANE}")
        I(f"v_lshl_add_u32 v{vT4}, v{vT1}, 7, v{vT0}")
        I(f"s_mul_i32 s{sT4}, s{sT0}, 114688")
        I(f"s_mul_i32 s{sT5}, s{sLI}, 14336")
        I(f"s_add_u32 s{sT4}, s{sT4}, s{sT5}")
        I(f"s_sub_u32 s{sT5}, s{sW}, 3")
        I(f"s_cmp_lt_u32 s{sT5}, 2")
        I(f"s_cselect_b32 s{sT3}, 0, {OOB}")
        I(f"s_mul_i32 s{sT5}, s{sT5}, 7168")
        I(f"s_and_b32 s{sT5}, s{sT5}, 0x3fff")
        I(f"s_add_u32 s{sT4}, s{sT4}, s{sT5}")
        I(f"s_add_u32 s{sT4}, s{sT4}, s{sT3}")
        I(f"v_min_u32 v{vT5}, 55, v{vLANE}")
        I(f"v_lshlrev_b32 v{vT5}, 7, v{vT5}")
        I(f"s_mov_b32 s{sWQKV+2}, 1204224")
        I(f"s_mov_b32 s{sWQKV+3}, 0x20000")
    I("s_waitcnt lgkmcnt(0)")
    I(f"s_mov_b64 s[{sWQKV}:{sWQKV+1}], s[66:67]")
    if "t0" in EXP:
        I(f"buffer_load_dword v{vDMY}, v{vT5}, {srd(sX)}, s{sT4} offen")
        I(f"buffer_load_dword v{vDMY}, v{vT4}, {srd(sWQKV)}, s{sT2} offen")


def prologue2():
    I(f"v_and_b32 v{vM16}, 15, v{vLANE}")
    I(f"v_lshlrev_b32 v{vL16}, 4, v{vLANE}")
    I(f"v_mov_b32 v{vONE}, 1")
    I(f"s_and_b32 s{sXC}, s2, 7")
    I(f"s_lshr_b32 s{sLI}, s2, 3")
    I(f"s_and_b32 s{sT2}, s{sXC}, 1")
    I(f"s_lshl_b32 s{sT3}, s{sT2}, 3")
    I(f"s_lshr_b32 s{sT4}, s{sLI}, 2")
    I(f"s_add_u32 s{sJ}, s{sT3}, s{sT4}")
    I(f"s_lshl_b32 s{sGB}, s{sXC}, 1")
    I(f"s_and_b32 s{sT5}, s{sLI}, 1")
    I(f"s_add_u32 s{sGB}, s{sGB}, s{sT5}")
    I(f"s_lshr_b32 s{sJB}, s{sLI}, 1")
    I(f"s_mul_i32 s{sJC}, s{sT2}, 7")
    I(f"s_add_u32 s{sJC}, s{sJC}, s{sT4}")
    I(f"s_cmp_eq_u32 s{sT4}, 7")
    I(f"s_cselect_b32 s{sJC}, 15, s{sJC}")
    I(f"s_and_b32 s{sW3}, s{sW}, 3")
    I(f"s_lshr_b32 s{sWH}, s{sW}, 2")
    I(f"s_lshl_b32 s{sCL}, s{sW}, 10")
    for r, p, n in ((sWQKV, 66, 1204224), (sWPHI, 68, 25088), (sWO, 70, 401408),
                    (sWG, 74, 1605632), (sWU, 76, 1605632), (sWD, 78, 1605632), (sOUT, 80, 1835008),
                    (sDBG, 82, 256), (sWS, 84, 0x10000000)):
        I(f"s_mov_b64 s[{r}:{r+1}], s[{p}:{p+1}]")
        I(f"s_mov_b32 s{r+2}, {n}")
        I(f"s_mov_b32 s{r+3}, 0x20000")
    if STAMPS:
        I(f"s_lshl_b32 s{sSTO}, s2, 3")
        I(f"s_add_u32 s{sSTO}, s{sSTO}, s{sW}")
        I(f"s_lshl_b32 s{sSTO}, s{sSTO}, 7")
        I(f"s_add_u32 s{sSTO}, s{sSTO}, {WS_STAMP}")


POLL_MAX = 200000


def poll(srdreg, voff, target):
    lp, ld = g.newlabel("L_poll"), g.newlabel("L_pdone")
    I(f"s_mov_b32 s{sT5}, 0")
    g.label(lp)
    I(f"buffer_load_dword v{vFLAG}, v{voff}, {srd(srdreg)}, 0 offen sc1")
    I("s_waitcnt vmcnt(0)")
    I(f"v_readfirstlane_b32 s{sT4}, v{vFLAG}")
    I(f"s_add_u32 s{sT5}, s{sT5}, 1")
    I(f"s_cmp_ge_u32 s{sT5}, {POLL_MAX}")
    I(f"s_cbranch_scc1 {ld}")
    I(f"s_cmp_lt_u32 s{sT4}, {target}")
    I(f"s_cbranch_scc1 {lp}")
    g.label(ld)


def signal(kind, sidx, toks, first=False):
    g.wait(*toks)
    I("s_barrier")
    lab = g.newlabel("L_sig")
    I(f"s_cmp_lg_u32 s{sW}, 0")
    I(f"s_cbranch_scc1 {lab}")
    g.cond_begin()
    I("s_mov_b64 exec, 1")
    if first:
        l2 = g.newlabel("L_ini")
        I(f"v_readfirstlane_b32 s{sT4}, v{vINIT}")
        I(f"s_cmp_lg_u32 s{sT4}, 0")
        I(f"s_cbranch_scc1 {l2}")
        I(f"v_mov_b32 v{vCNT}, 0")
        poll(sDBG, vCNT, 1)
        g.label(l2)
    I(f"s_lshl_b32 s{sT0}, s{sidx}, 8")
    I(f"s_add_u32 s{sT0}, s{sT0}, {WS_CNT + kind * 4096}")
    I(f"v_mov_b32 v{vCNT}, s{sT0}")
    I(f"buffer_atomic_add v{vONE}, v{vCNT}, {srd(sWS)}, 0 offen sc1")
    I("s_mov_b64 exec, -1")
    g.cond_end()
    g.label(lab)


def waitflag(kind, sidx, target=16):
    lab = g.newlabel("L_w")
    I(f"s_cmp_lg_u32 s{sW}, 0")
    I(f"s_cbranch_scc1 {lab}")
    g.cond_begin()
    I("s_mov_b64 exec, 1")
    I(f"s_lshl_b32 s{sT0}, s{sidx}, 8")
    I(f"s_add_u32 s{sT0}, s{sT0}, {WS_CNT + kind * 4096}")
    I(f"v_mov_b32 v{vCNT}, s{sT0}")
    poll(sWS, vCNT, target)
    I("s_mov_b64 exec, -1")
    g.cond_end()
    g.label(lab)
    I("s_barrier")


def dma2(vaddr, srdreg, sbase, src_imm, lds_sreg, lds_imm, stmp=None):
    stmp = sT1 if stmp is None else stmp
    I(f"s_add_u32 m0, s{lds_sreg}, {lds_imm}")
    I(f"s_add_u32 s{stmp}, s{sbase}, {src_imm}")
    return I(f"buffer_load_dwordx4 v{vaddr}, {srd(srdreg)}, s{stmp} offen lds")


def xreduce(op, a, t, levels=(16, 32)):
    for lv in levels:
        I(f"v_mov_b32 v{t}, v{a}")
        I(f"v_permlane{lv}_swap_b32 v{a}, v{t}")
        I(f"{op} v{a}, v{a}, v{t}")


LOG2E = 1.4426950408889634

XF = 16
WR = 72
WPHI = 100
WPH2 = 108
SEL = 116
ACC = 124
ACCV = 132
WF = 140
TMP = 172
PH = 196
vXA0, vXA1, vWA, vTR, vXR0, vXR1, vCA = 204, 205, 206, 207, 208, 209, 252
vTRb, vTRc, vWOA = 211, 212, 213


def chain16(acc, rd, swap=False, depth=3, hook=None):
    toks = {}
    nb = depth + 1
    n = 14
    for c in range(depth):
        toks[c] = rd(c, WF + 8 * (c % nb))
    for c in range(n):
        if c + depth < n:
            toks[c + depth] = rd(c + depth, WF + 8 * ((c + depth) % nb))
        g.wait(toks[c])
        X = vr(XF + 4 * c, 4)
        for t in range(2):
            W = vr(WF + 8 * (c % nb) + 4 * t, 4)
            a = vr(acc + 4 * t, 4)
            C = a if c > 0 else "0"
            if swap:
                I(f"v_mfma_f32_16x16x32_bf16 {a}, {X}, {W}, {C}")
            else:
                I(f"v_mfma_f32_16x16x32_bf16 {a}, {W}, {X}, {C}")
        if hook is not None:
            hook(c)


def featmap(acc, out):
    pk = TMP
    p = acc
    e = TMP + 4
    mx, mn, t0, t1 = TMP + 12, TMP + 13, TMP + 14, TMP + 15
    for i in range(4):
        I(f"v_cvt_pk_bf16_f32 v{pk+i}, v{acc+2*i}, v{acc+2*i+1}")
    I(f"v_mfma_f32_16x16x32_bf16 {vr(p,4)}, {vr(WPHI,4)}, {vr(pk,4)}, 0")
    I(f"v_mfma_f32_16x16x32_bf16 {vr(p+4,4)}, {vr(WPHI+4,4)}, {vr(pk,4)}, 0")
    I(f"v_max3_f32 v{mx}, v{p}, v{p+1}, v{p+2}")
    I(f"v_min3_f32 v{mn}, v{p}, v{p+1}, v{p+2}")
    for i in (3, 5):
        I(f"v_max3_f32 v{mx}, v{mx}, v{p+i}, v{p+i+1}")
        I(f"v_min3_f32 v{mn}, v{mn}, v{p+i}, v{p+i+1}")
    for lv in (16, 32):
        I(f"v_mov_b32 v{t0}, v{mx}")
        I(f"v_mov_b32 v{t1}, v{mn}")
        I(f"v_permlane{lv}_swap_b32 v{mx}, v{t0}")
        I(f"v_permlane{lv}_swap_b32 v{mn}, v{t1}")
        I(f"v_max_f32 v{mx}, v{mx}, v{t0}")
        I(f"v_min_f32 v{mn}, v{mn}, v{t1}")
    I(f"v_mul_f32 v{mx}, {f32(-LOG2E)}, v{mx}")
    I(f"v_mul_f32 v{mn}, {f32(LOG2E)}, v{mn}")
    e2 = TMP + 16
    for i in range(7):
        I(f"v_fma_f32 v{e+i}, v{p+i}, s{sLOG}, v{mx}")
        I(f"v_fma_f32 v{e2+i}, -v{p+i}, s{sLOG}, v{mn}")
    for i in range(7):
        I(f"v_exp_f32 v{e+i}, v{e+i}")
        I(f"v_exp_f32 v{e2+i}, v{e2+i}")
    I(f"v_add_f32 v{mx}, v{e}, v{e+1}")
    I(f"v_add_f32 v{mn}, v{e2}, v{e2+1}")
    for i in range(2, 7):
        I(f"v_add_f32 v{mx}, v{mx}, v{e+i}")
        I(f"v_add_f32 v{mn}, v{mn}, v{e2+i}")
    for lv in (16, 32):
        I(f"v_mov_b32 v{t0}, v{mx}")
        I(f"v_mov_b32 v{t1}, v{mn}")
        I(f"v_permlane{lv}_swap_b32 v{mx}, v{t0}")
        I(f"v_permlane{lv}_swap_b32 v{mn}, v{t1}")
        I(f"v_add_f32 v{mx}, v{mx}, v{t0}")
        I(f"v_add_f32 v{mn}, v{mn}, v{t1}")
    I(f"v_rcp_f32 v{mx}, v{mx}")
    I(f"v_rcp_f32 v{mn}, v{mn}")
    for i in range(7):
        I(f"v_mul_f32 v{e+i}, v{e+i}, v{mx}")
        I(f"v_mul_f32 v{e2+i}, v{e2+i}, v{mn}")
    for i in range(3):
        I(f"v_cvt_pk_bf16_f32 v{out+i}, v{e+2*i}, v{e+2*i+1}")
        I(f"v_cvt_pk_bf16_f32 v{out+4+i}, v{e2+2*i}, v{e2+2*i+1}")
    I(f"v_cvt_pk_bf16_f32 v{out+3}, v{e+6}, 0")
    I(f"v_cvt_pk_bf16_f32 v{out+7}, v{e2+6}, 0")


def c_batch(mat, dbl, n0, n1, lds_base):
    t = None
    assert n0 % 8 == 0 and n1 % 8 == 0
    for i in range(n0 // 8, n1 // 8):
        t = dma2(vCA, sWG if mat == 0 else sWU, sCW, i * 8 * 8 * 3584 + dbl * 128, sCL, lds_base + (i * 8 - n0) * 1024)
    return t


def c_bg(mat, dbl, n0, n1, lds_base, after, gap=150):
    t = None
    for i in range(n0 // 8, n1 // 8):
        g.begin()
        t = dma2(vCA, sWG if mat == 0 else sWU, sCW, i * 8 * 8 * 3584 + dbl * 128, sCL, lds_base + (i * 8 - n0) * 1024, stmp=sBG)
        g.bg_add(g.end(), after, gap)
        NBG[0] += 1
    return t


NBG = [0]
TWD = {}
NWDBG = [0]


def bg(fn, after=None, gap=150):
    g.begin()
    r = fn()
    g.bg_add(g.end(), after, gap)
    NBG[0] += 1
    return r


def flush():
    g.mark(f"flush:{NBG[0]}")


def check_loop(issue, regs, tmp, body=None):
    lp, ld = g.newlabel("L_dp"), g.newlabel("L_dpd")
    I(f"s_mov_b32 s{sT5}, 0")
    g.label(lp)
    toks = issue()
    if body is not None:
        body(toks)
    g.wait(toks[-1])
    rs = list(regs)
    if len(rs) == 1:
        I(f"v_cmp_eq_u32 vcc, -1, v{rs[0]}")
    else:
        first = True
        acc = None
        while rs:
            if acc is None:
                if len(rs) >= 3:
                    I(f"v_max3_u32 v{tmp}, v{rs[0]}, v{rs[1]}, v{rs[2]}")
                    rs = rs[3:]
                else:
                    I(f"v_max_u32 v{tmp}, v{rs[0]}, v{rs[1]}")
                    rs = rs[2:]
                acc = tmp
            elif len(rs) >= 2:
                I(f"v_max3_u32 v{tmp}, v{tmp}, v{rs[0]}, v{rs[1]}")
                rs = rs[2:]
            else:
                I(f"v_max_u32 v{tmp}, v{tmp}, v{rs[0]}")
                rs = rs[1:]
        I(f"v_cmp_eq_u32 vcc, -1, v{tmp}")
    I(f"s_add_u32 s{sT5}, s{sT5}, 1")
    I(f"s_cmp_ge_u32 s{sT5}, {POLL_MAX}")
    I(f"s_cbranch_scc1 {ld}")
    I(f"s_cmp_lg_u64 vcc, 0")
    I(f"s_cbranch_scc1 {lp}")
    g.label(ld)


def sent_check(regs, tmp):
    rs = list(regs)
    acc = None
    while rs:
        if acc is None:
            if len(rs) >= 3:
                I(f"v_max3_u32 v{tmp}, v{rs[0]}, v{rs[1]}, v{rs[2]}")
                rs = rs[3:]
            else:
                I(f"v_max_u32 v{tmp}, v{rs[0]}, v{rs[1]}")
                rs = rs[2:]
            acc = tmp
        elif len(rs) >= 2:
            I(f"v_max3_u32 v{tmp}, v{tmp}, v{rs[0]}, v{rs[1]}")
            rs = rs[2:]
        else:
            I(f"v_max_u32 v{tmp}, v{tmp}, v{rs[0]}")
            rs = rs[1:]
    I(f"v_cmp_eq_u32 vcc, -1, v{tmp}")


TAILS = []


def spec_load(issue, regs, tmp, body=None, filler=None):
    lr, lb = g.newlabel("L_sr"), g.newlabel("L_sb")
    toks = issue()
    if filler is not None:
        filler()
    if body is not None:
        body(toks)
    g.wait(toks[-1])
    sent_check(regs, tmp)
    I(f"s_cmp_lg_u64 vcc, 0")
    I(f"s_cbranch_scc1 {lr}")
    g.label(lb)
    g.begin()
    g.label(lr)
    check_loop(issue, regs, tmp, body)
    I(f"s_branch {lb}")
    TAILS.append(g.end())


def c_setup():
    I(f"v_lshrrev_b32 v{vT0}, 3, v{vLANE}")
    I(f"v_mul_u32_u24 v{vT1}, 3584, v{vT0}")
    I(f"v_and_b32 v{vT2}, 1, v{vG}")
    I(f"v_lshlrev_b32 v{vT2}, 2, v{vT2}")
    I(f"v_and_b32 v{vCA}, 7, v{vLANE}")
    I(f"v_xor_b32 v{vCA}, v{vCA}, v{vT2}")
    I(f"v_lshl_add_u32 v{vCA}, v{vCA}, 4, v{vT1}")
    I(f"s_cmp_ge_u32 s{sJC}, 14")
    I(f"s_cselect_b32 s{sT0}, {OOB}, 0")
    I(f"v_add_u32 v{vCA}, s{sT0}, v{vCA}")
    I(f"s_mul_i32 s{sCW}, s{sW}, {8*3584}")
    I(f"s_lshl_b32 s{sT0}, s{sJC}, 8")
    I(f"s_add_u32 s{sCW}, s{sCW}, s{sT0}")


def touch1():
    I(f"s_mul_i32 s{sT0}, s{sLI}, {98*128}")
    I(f"s_mul_i32 s{sT1}, s{sW}, {13*128}")
    I(f"s_add_u32 s{sT0}, s{sT0}, s{sT1}")
    I(f"v_lshlrev_b32 v{vT0}, 7, v{vLANE}")
    I(f"v_mov_b32 v{vT2}, {OOB}")
    I(f"v_cmp_gt_u32 vcc, 13, v{vLANE}")
    I(f"v_cndmask_b32 v{vT0}, v{vT2}, v{vT0}, vcc")
    I(f"buffer_load_dword v{vDMY}, v{vT0}, {srd(sWO)}, s{sT0} offen")
    I(f"s_lshr_b32 s{sT0}, s{sW}, 1")
    I(f"s_lshl_b32 s{sT2}, s{sT0}, 2")
    I(f"s_mul_i32 s{sT0}, s{sT0}, {4*3584}")
    I(f"s_mul_i32 s{sT1}, s{sLI}, {14*3584}")
    I(f"s_add_u32 s{sT0}, s{sT0}, s{sT1}")
    I(f"s_and_b32 s{sT1}, s{sXC}, 1")
    I(f"s_mul_i32 s{sT1}, s{sT1}, 1792")
    I(f"s_add_u32 s{sT0}, s{sT0}, s{sT1}")
    I(f"v_mul_u32_u24 v{vT0}, 3584, v{vG}")
    I(f"v_lshl_add_u32 v{vT0}, v{vM16}, 7, v{vT0}")
    I(f"v_cmp_gt_u32 vcc, 14, v{vM16}")
    I(f"v_cndmask_b32 v{vT0}, v{vT2}, v{vT0}, vcc")
    I(f"v_add_u32 v{vT1}, s{sT2}, v{vG}")
    I(f"v_cmp_gt_u32 vcc, 14, v{vT1}")
    I(f"v_cndmask_b32 v{vT0}, v{vT2}, v{vT0}, vcc")
    I(f"buffer_load_dword v{vDMY}, v{vT0}, s[4:7], s{sT0} offen")


def touch2(t1=None, dst=247):
    t1 = vT1 if t1 is None else t1
    I(f"s_mul_i32 s{sT2}, s{sLI}, {392*128}")
    I(f"s_mul_i32 s{sT1}, s{sW}, {49*128}")
    I(f"s_add_u32 s{sT2}, s{sT2}, s{sT1}")
    I(f"v_min_u32 v{t1}, 48, v{vLANE}")
    I(f"v_lshlrev_b32 v{t1}, 7, v{t1}")
    I(f"buffer_load_dword v{dst}, v{t1}, {srd(sWD)}, s{sT2} offen")


TP_N = [0]
sTCH = 3
vTCH, vTCD = 96 + 3, 96 + 2


def tpiece(addr=None, dst=None):
    if "tp" not in EXP or TP_N[0] >= 7:
        return
    k = TP_N[0]
    TP_N[0] += 1
    a = vTCH if addr is None else addr
    d = vTCD if dst is None else dst
    if k == 0:
        I(f"s_mul_i32 s{sTCH}, s{sLI}, {392*128}")
        I(f"s_mul_i32 s{sBG}, s{sW}, {49*128}")
        I(f"s_add_u32 s{sTCH}, s{sTCH}, s{sBG}")
    I(f"v_min_u32 v{a}, 6, v{vLANE}")
    I(f"v_lshlrev_b32 v{a}, 7, v{a}")
    I(f"buffer_load_dword v{d}, v{a}, {srd(sWD)}, s{sTCH} offen offset:{(k % 4) * 896}")
    if k == 3:
        I(f"s_add_u32 s{sTCH}, s{sTCH}, 3584")


def mall_touch():
    I(f"s_mov_b64 s[4:5], s[{sWG}:{sWG+1}]")
    for w_, r in ((1, sWU), (2, sWD), (3, sWO)):
        I(f"s_cmp_eq_u32 s{sW}, {w_}")
        I(f"s_cselect_b32 s4, s{r}, s4")
        I(f"s_cselect_b32 s5, s{r+1}, s5")
    I(f"s_mov_b32 s6, 1605632")
    I(f"s_cmov_b32 s6, 401408")
    I(f"s_mov_b32 s7, 0x20000")
    I(f"s_mov_b32 s{sT0}, 49")
    I(f"s_cmov_b32 s{sT0}, 13")
    I(f"s_mul_i32 s{sT1}, s2, s{sT0}")
    I(f"s_lshl_b32 s{sT1}, s{sT1}, 7")
    I(f"s_sub_u32 s{sT0}, s{sT0}, 1")
    I(f"s_cmp_ge_u32 s{sW}, 4")
    I(f"s_cselect_b32 s{sT2}, {OOB}, 0")
    I(f"s_add_u32 s{sT1}, s{sT1}, s{sT2}")
    I(f"v_min_u32 v{vTCH}, s{sT0}, v{vLANE}")
    I(f"v_lshlrev_b32 v{vTCH}, 7, v{vTCH}")
    I(f"buffer_load_dword v{vTCD}, v{vTCH}, s[4:7], s{sT1} offen")


sNQ, sMTB, sCSS, sMTC = 76, 77, 78, 79
sINV = 69
vT8, vCSS, vHSA, vSSA = 210, 214, 215, 199 + 0


def addr_setup():
    I(f"s_lshl_b32 s{sGATH}, s{sJ}, 16")
    I(f"s_add_u32 s{sGATH}, s{sGATH}, {WS_KVP}")
    I(f"s_lshl_b32 s{sKVS}, s{sG}, 12")
    I(f"s_add_u32 s{sKVS}, s{sKVS}, s{sGATH}")
    I(f"s_lshl_b32 s{sOS}, s{sA}, 4")
    I(f"s_add_u32 s{sOS}, s{sOS}, s{sJ}")
    I(f"s_lshl_b32 s{sOS}, s{sOS}, 10")
    I(f"s_add_u32 s{sOS}, s{sOS}, {WS_O}")
    I(f"s_lshl_b32 s{sCSS}, s{sJC}, 4")
    I(f"s_add_u32 s{sCSS}, s{sCSS}, s{sG}")
    I(f"s_lshl_b32 s{sCSS}, s{sCSS}, 10")
    I(f"s_add_u32 s{sCSS}, s{sCSS}, {WS_CS}")
    I(f"s_and_b32 s{sNQ}, s{sJB}, 3")
    I(f"s_lshr_b32 s{sMTB}, s{sJB}, 2")
    I(f"s_lshl_b32 s{sT0}, s{sGB}, 2")
    I(f"s_add_u32 s{sMTB}, s{sMTB}, s{sT0}")
    I(f"s_mul_i32 s{sHS}, s{sMTB}, 28")
    I(f"s_lshl_b32 s{sT1}, s{sNQ}, 3")
    I(f"s_add_u32 s{sHS}, s{sHS}, s{sT1}")
    I(f"s_lshl_b32 s{sHS}, s{sHS}, 10")
    I(f"s_add_u32 s{sHS}, s{sHS}, {WS_H}")
    I(f"s_lshl_b32 s{sSS}, s{sMTB}, 2")
    I(f"s_add_u32 s{sSS}, s{sSS}, s{sNQ}")
    I(f"s_lshl_b32 s{sSS}, s{sSS}, 9")
    I(f"s_add_u32 s{sSS}, s{sSS}, {WS_ST}")
    I(f"s_lshl_b32 s{sMTC}, s{sG}, 2")
    I(f"s_add_u32 s{sMTC}, s{sMTC}, s{sW3}")
    I(f"s_mul_i32 s{sHHS}, s{sMTC}, {112*1024}")
    I(f"s_lshl_b32 s{sT0}, s{sJC}, 13")
    I(f"s_add_u32 s{sHHS}, s{sHHS}, s{sT0}")
    I(f"s_lshl_b32 s{sT0}, s{sWH}, 11")
    I(f"s_add_u32 s{sHHS}, s{sHHS}, s{sT0}")
    I(f"s_add_u32 s{sHHS}, s{sHHS}, {WS_HH}")
    I(f"s_cmp_ge_u32 s{sJC}, 14")
    I(f"s_cselect_b32 s{sT0}, {OOB}, 0")
    I(f"s_add_u32 s{sHHS}, s{sHHS}, s{sT0}")
    I(f"v_lshlrev_b32 v{vT8}, 3, v0")
    I(f"s_cmp_ge_u32 s{sW}, 4")
    I(f"s_cselect_b32 s{sT0}, {OOB}, 0")
    I(f"v_lshlrev_b32 v{vCSS}, 2, v0")
    I(f"v_add_u32 v{vCSS}, s{sT0}, v{vCSS}")
    I(f"s_lshl_b32 s{sT0}, s{sWH}, 12")
    I(f"s_lshl_b32 s{sT1}, s{sW3}, 7")
    I(f"s_add_u32 s{sT0}, s{sT0}, s{sT1}")
    I(f"s_lshl_b32 s{sT1}, s{sNQ}, 1")
    I(f"s_add_u32 s{sT1}, s{sT1}, s{sWH}")
    I(f"s_cmp_eq_u32 s{sT1}, 7")
    I(f"s_cselect_b32 s{sINV}, {OOB}, 0")
    I(f"s_add_u32 s{sT0}, s{sT0}, s{sINV}")
    I(f"v_lshrrev_b32 v{vT1}, 3, v{vLANE}")
    I(f"v_lshlrev_b32 v{vHSA}, 9, v{vT1}")
    I(f"v_and_b32 v{vT0}, 7, v{vLANE}")
    I(f"v_lshl_add_u32 v{vHSA}, v{vT0}, 4, v{vHSA}")
    I(f"v_add_u32 v{vHSA}, s{sT0}, v{vHSA}")


def stats_addr(dst, t0, t1):
    I(f"s_lshl_b32 s{sBG}, s{sW}, 6")
    I(f"v_lshlrev_b32 v{t0}, 3, v{vLANE}")
    I(f"v_add_u32 v{t0}, s{sBG}, v{t0}")
    I(f"v_mov_b32 v{t1}, {OOB}")
    I(f"v_cmp_gt_u32 vcc, 8, v{vLANE}")
    I(f"v_cndmask_b32 v{dst}, v{t1}, v{t0}, vcc")


def sentinels0():
    lab = g.newlabel("L_init")
    I(f"s_lshl_b32 s{sT0}, s2, 3")
    I(f"s_add_u32 s{sT0}, s{sT0}, s{sW}")
    I(f"s_cmp_lg_u32 s{sT0}, 7")
    I(f"s_cbranch_scc1 {lab}")
    g.cond_begin()
    I(f"v_lshlrev_b32 v{vT0}, 8, v{vLANE}")
    I(f"v_mov_b32 v{vT1}, 0")
    I(f"buffer_store_dword v{vT1}, v{vT0}, {srd(sWS)}, 0 offen sc1")
    g.cond_end()
    g.label(lab)
    SN = 216
    for i in range(4):
        I(f"v_mov_b32 v{SN+i}, -1")
    I(f"buffer_store_dwordx2 {vr(SN,2)}, v{vT8}, {srd(sWS)}, s{sKVS} offen sc1")
    I(f"buffer_store_dwordx4 {vr(SN,4)}, v{vL16}, {srd(sWS)}, s{sOS} offen sc1")


def sentinels():
    SN = 216
    I(f"buffer_store_dword v{SN}, v{vCSS}, {srd(sWS)}, s{sCSS} offen sc1")
    I(f"s_add_u32 s{sBG}, s{sHS}, s{sCL}")
    I(f"s_add_u32 s{sBG}, s{sBG}, s{sINV}")
    I(f"buffer_store_dwordx4 {vr(SN,4)}, v{vL16}, {srd(sWS)}, s{sBG} offen sc1")
    stats_addr(SN + 4, SN + 4, SN + 5)
    return I(f"buffer_store_dwordx2 {vr(SN,2)}, v{SN+4}, {srd(sWS)}, s{sSS} offen sc1")


def sent_hh(k):
    SN = 216
    I(f"s_add_u32 s{sBG}, s{sHHS}, {(k>>1)*4096 + (k&1)*1024}")
    return I(f"buffer_store_dwordx4 {vr(SN,4)}, v{vL16}, {srd(sWS)}, s{sBG} offen sc1")


def init_signal():
    lab = g.newlabel("L_is")
    I(f"s_cmp_lg_u32 s{sW}, 5")
    I(f"s_cbranch_scc1 {lab}")
    g.cond_begin()
    I("s_mov_b64 exec, 1")
    I(f"s_and_b32 s{sT0}, s2, 15")
    I(f"s_lshl_b32 s{sT0}, s{sT0}, 4")
    I(f"v_mov_b32 v{vCNT}, s{sT0}")
    I(f"buffer_atomic_add v{vONE}, v{vCNT}, {srd(sDBG)}, 0 offen sc1")
    I("s_mov_b64 exec, -1")
    g.cond_end()
    g.label(lab)


def init_check():
    lp, ld = g.newlabel("L_ic"), g.newlabel("L_icd")
    I(f"v_lshlrev_b32 v{vCNT}, 4, v{vM16}")
    I(f"s_mov_b32 s{sT5}, 0")
    g.label(lp)
    I("s_sleep 8")
    t = I(f"buffer_load_dword v{vINIT}, v{vCNT}, {srd(sDBG)}, 0 offen sc1")
    g.wait(t)
    I(f"v_cmp_gt_u32 vcc, 16, v{vINIT}")
    I(f"s_add_u32 s{sT5}, s{sT5}, 1")
    I(f"s_cmp_ge_u32 s{sT5}, {POLL_MAX}")
    I(f"s_cbranch_scc1 {ld}")
    I(f"s_cmp_lg_u64 vcc, 0")
    I(f"s_cbranch_scc1 {lp}")
    g.label(ld)


def phaseA():
    g.comment("==== phase A ====")
    if STAMPS:
        I("s_memrealtime s[96:97]")
        I("s_memtime s[94:95]")
        I("s_waitcnt lgkmcnt(0)")
        I("v_mov_b32 v250, s96")
        I("v_mov_b32 v251, s94")
    tx = {}
    for seg in range(7):
        for o in range(2):
            I(f"s_add_u32 m0, s{sLW}, {(o*7+seg)*1024 - seg*128}")
            tx[seg] = I(f"buffer_load_dwordx4 v{vXA1 if o else vXA0}, {srd(sX)}, s{sC if o else sB} offen offset:{seg*128} lds")
    I("s_setprio 2")
    if "cp0" not in EXP and "nocp" not in EXP:
        I(f"global_load_dword v{vDMY}, v{vINIT}, s[4:5]")
    for i in range(3):
        dma2(vWA, sWQKV, sD, 896 + i * 8 * 16 * 2688, sCL, LDS_WK + i * 8192)
    prologue2()
    if STAMPS:
        for nm, r in (("rt0", 250), ("start", 251)):
            g.cond_begin()
            I(f"buffer_store_dword v{r}, off, {srd(sWS)}, s{sSTO} offset:{4*nstamp[0]}")
            g.cond_end()
            nstamp[0] += 1
            stamp_names.append(nm)
    I(f"s_mov_b32 s{sLOG}, {f32(LOG2E)}")
    bgl = []
    bt = {}

    def bg_add(name, fn):
        bgl.append((name, fn))

    def bgq(n=1):
        for _ in range(n):
            if bgl:
                name, fn = bgl.pop(0)
                bt[name] = fn()

    def wk3():
        I(f"s_cmp_ge_u32 s{sW}, 4")
        I(f"s_cselect_b32 s{sT0}, {OOB}, 0")
        I(f"s_add_u32 s{sT0}, s{sT0}, s{sD}")
        dma2(vWA, sWQKV, sT0, 896 + 3 * 8 * 16 * 2688, sCL, LDS_WK + 3 * 8192)
        I(f"v_lshlrev_b32 v{vT0}, 4, v0")
        I(f"v_mov_b32 v{vT1}, {OOB}")
        I(f"v_cmp_gt_u32 vcc, 98, v0")
        I(f"v_cndmask_b32 v{vT0}, v{vT1}, v{vT0}, vcc")
        I(f"s_min_u32 s{sT0}, s{sCL}, 2048")
        I(f"s_add_u32 m0, s{sT0}, {LDS_WPL}")
        I(f"s_mul_i32 s{sT0}, s{sJ}, 1568")
        return I(f"buffer_load_dwordx4 v{vT0}, {srd(sWPHI)}, s{sT0} offen lds")
    bg_add("wk3", wk3)
    addr_setup()
    I(f"s_cmp_ge_u32 s{sW}, 4")
    I(f"s_cselect_b32 s{sE}, {(24-4)*16*2688}, {1792 + 24*16*2688}" if False else f"s_mov_b32 s{sE}, {1792 + 24*16*2688}")
    I(f"s_cmov_b32 s{sE}, {20*16*2688}")

    I(f"s_cselect_b32 s{sKC}, 10240, 0")
    I(f"s_max_u32 s{sKC}, s{sKC}, 3072")
    I(f"s_add_u32 s{sKC}, s{sKC}, s{sLW}")
    I(f"s_add_u32 s{sE}, s{sE}, s{sD}")

    def rawW(i):
        if i == 3:
            I(f"s_mov_b32 m0, s{sKC}")
            I("s_nop 0")
            return I(f"buffer_load_dwordx4 v{vWA}, {srd(sWQKV)}, s{sE} offen lds")
        off = 1792 + i * 8 * 16 * 2688 if i < 3 else (i - 4) * 8 * 16 * 2688
        return dma2(vWA, sWQKV, sD, off, sLW, i * 1024 if i < 3 else 10240 + (i - 3) * 1024)
    for i in range(4):
        bg_add(f"w{i}", lambda i=i: rawW(i))
    I(f"v_lshrrev_b32 v{vT0}, 3, v{vM16}")
    I(f"v_mul_u32_u24 v{vT0}, 7168, v{vT0}")
    I(f"v_add_u32 v{vT0}, s{sLW}, v{vT0}")
    I(f"v_and_b32 v{vT1}, 7, v{vM16}")
    I(f"v_lshl_add_u32 v{vT0}, v{vT1}, 7, v{vT0}")
    I(f"v_lshrrev_b32 v{vT1}, 1, v{vM16}")
    I(f"v_xor_b32 v{vT1}, v{vT1}, v{vG}")
    I(f"v_lshl_add_u32 v{vXR0}, v{vT1}, 4, v{vT0}")
    I(f"v_xor_b32 v{vXR1}, 64, v{vXR0}")
    I(f"v_bfe_u32 v{vT0}, v{vLANE}, 2, 2")
    I(f"v_lshl_add_u32 v{vT0}, v{vG}, 3, v{vT0}")
    I(f"v_lshlrev_b32 v{vT0}, 6, v{vT0}")
    I(f"v_and_b32 v{vT1}, 3, v{vLANE}")
    I(f"s_and_b32 s{sT1}, s{sJ}, 1")
    I(f"v_add_u32 v{vT1}, s{sT1}, v{vT1}")
    I(f"v_and_b32 v{vT2}, 1, v{vG}")
    I(f"v_lshlrev_b32 v{vT2}, 2, v{vT2}")
    I(f"v_xor_b32 v{vT1}, v{vT1}, v{vT2}")
    I(f"v_lshl_add_u32 v{vTR}, v{vT1}, 3, v{vT0}")
    I(f"v_lshrrev_b32 v{vT0}, 2, v{vM16}")
    I(f"v_and_b32 v{vT1}, 3, v{vM16}")
    I(f"v_cmp_eq_u32 vcc, v{vT0}, v{vG}")
    I(f"v_cndmask_b32 v{vT1}, 7, v{vT1}, vcc")
    I(f"v_mov_b32 v{vT3}, 0x3f80")
    I(f"v_mov_b32 v{vT4}, 0x3f800000")
    for i in range(2):
        I(f"v_cmp_eq_u32 vcc, {2*i}, v{vT1}")
        I(f"v_cndmask_b32 v{vT2}, 0, v{vT3}, vcc")
        I(f"v_cmp_eq_u32 vcc, {2*i+1}, v{vT1}")
        I(f"v_cndmask_b32 v{SEL+i}, v{vT2}, v{vT4}, vcc")
        I(f"v_mov_b32 v{SEL+6+i}, v{SEL+i}")
    for i in (2, 3, 4, 5):
        I(f"v_mov_b32 v{SEL+i}, 0")
    S1, S2 = ACC, ACC + 4
    for i in range(8):
        I(f"v_mov_b32 v{ACC+i}, 0")
    I(f"v_mov_b32 v{vT5}, 0x3f803f80")
    I(f"v_lshlrev_b32 v{vT0}, 2, v{vLANE}")
    I(f"v_add_u32 v{vT0}, {LDS_FLG}, v{vT0}")
    I(f"ds_write_b32 v{vT0}, v{ACC}")
    tw = {}
    if "tlb" in EXP:
        STR_ = int(os.environ.get("TLBS", "16"))
        I(f"v_lshlrev_b32 v{vT0}, {STR_}, v{vLANE}")
        lend = g.newlabel("L_tl")
        tb = [(sWO, 0), (sWG, 0), (sWU, 0), (sWD, 0), (sOUT, 0), (sWS, 0), (sWS, 0x400000), (sWS, 0x800000)]
        for w_, (r, off) in enumerate(tb):
            l2 = g.newlabel("L_tl")
            if w_ < 7:
                I(f"s_cmp_lg_u32 s{sW}, {w_}")
                I(f"s_cbranch_scc1 {l2}")
                g.cond_begin()
            I(f"s_mov_b32 s{sT0}, {off}")
            I(f"buffer_load_dword v{vDMY}, v{vT0}, {srd(r)}, s{sT0} offen")
            if w_ < 7:
                g.cond_end()
                I(f"s_branch {lend}")
                g.label(l2)
        g.label(lend)
    if "mt0" in EXP:
        mall_touch()
    sentinels0()
    bgq(1)
    for seg in range(7):
        g.wait(tx[seg])
        I(f"ds_read_b128 {vr(XF+8*seg,4)}, v{vXR0} offset:{seg*1024}")
        t = I(f"ds_read_b128 {vr(XF+8*seg+4,4)}, v{vXR1} offset:{seg*1024}")
        if seg in (1, 2, 3, 4):
            bgq()
        g.wait(t)
        for k in range(8):
            r = XF + 8 * seg + k
            I(f"v_dot2_f32_bf16 v{S1+k%4}, v{r}, v{vT5}, v{S1+k%4}")
            I(f"v_dot2_f32_bf16 v{S2+k%4}, v{r}, v{r}, v{S2+k%4}")
    I("s_setprio 1")
    stamp("x stats")
    I(f"v_add_f32 v{S1}, v{S1}, v{S1+1}")
    I(f"v_add_f32 v{S1+2}, v{S1+2}, v{S1+3}")
    I(f"v_add_f32 v{S2}, v{S2}, v{S2+1}")
    I(f"v_add_f32 v{S2+2}, v{S2+2}, v{S2+3}")
    I(f"v_add_f32 v{S1}, v{S1}, v{S1+2}")
    I(f"v_add_f32 v{S2}, v{S2}, v{S2+2}")
    for lv in (16, 32):
        I(f"v_mov_b32 v{S1+1}, v{S1}")
        I(f"v_mov_b32 v{S2+1}, v{S2}")
        I(f"v_permlane{lv}_swap_b32 v{S1}, v{S1+1}")
        I(f"v_permlane{lv}_swap_b32 v{S2}, v{S2+1}")
        I(f"v_add_f32 v{S1}, v{S1}, v{S1+1}")
        I(f"v_add_f32 v{S2}, v{S2}, v{S2+1}")
    I(f"v_mul_f32 v{S1}, {f32(1/448)}, v{S1}")
    I(f"v_mul_f32 v{S2}, {f32(1/448)}, v{S2}")
    I(f"v_fma_f32 v{S2}, -v{S1}, v{S1}, v{S2}")
    I(f"v_max_f32 v{S2}, 0, v{S2}")
    I(f"v_add_f32 v{S2}, {f32(1e-5)}, v{S2}")
    RS, NB = ACCV, ACCV + 2
    I(f"v_rsq_f32 v{RS}, v{S2}")
    I(f"v_mul_f32 v{NB}, v{S1}, v{RS}")
    I(f"v_sub_f32 v{NB}, 0, v{NB}")
    I(f"v_mov_b32 v{RS+1}, v{RS}")
    I(f"v_mov_b32 v{NB+1}, v{NB}")
    TP = WF
    CSR = 248
    tcs = tinit = None
    for k in range(0, 56, 8):
        for u in range(8):
            I(f"v_lshlrev_b32 v{TP+2*u}, 16, v{XF+k+u}")
            I(f"v_and_b32 v{TP+2*u+1}, 0xffff0000, v{XF+k+u}")
        for u in range(8):
            I(f"v_pk_fma_f32 {vr(TP+2*u,2)}, {vr(TP+2*u,2)}, {vr(RS,2)}, {vr(NB,2)}")
        for u in range(8):
            I(f"v_cvt_pk_bf16_f32 v{XF+k+u}, v{TP+2*u}, v{TP+2*u+1}")
    I("s_setprio 0")
    stamp("normalized")
    I(f"v_mul_u32_u24 v{vT0}, 224, v{vG}")
    I(f"v_add_u32 v{vT0}, {LDS_WPL}, v{vT0}")
    I(f"v_lshl_add_u32 v{TMP}, v{vM16}, 1, v{vT0}")
    I(f"v_lshrrev_b32 v{vT2}, 2, v{vM16}")
    I(f"v_sub_u32 v{vT2}, v{vM16}, v{vT2}")
    I(f"v_lshl_add_u32 v{vT2}, v{vT2}, 1, v{vT0}")
    I(f"v_add_u32 v{TMP+1}, 32, v{vT2}")
    I(f"v_mov_b32 v{vT1}, {LDS_WPL + 1600}")
    I(f"v_and_b32 v{vT2}, 3, v{vM16}")
    I(f"v_cmp_eq_u32 vcc, 3, v{vT2}")
    I(f"v_cndmask_b32 v{TMP+1}, v{TMP+1}, v{vT1}, vcc")
    I(f"v_cmp_eq_u32 vcc, 3, v{vG}")
    I(f"v_cndmask_b32 v{TMP+2}, v{TMP}, v{vT1}, vcc")
    I(f"v_cndmask_b32 v{TMP+3}, v{TMP+1}, v{vT1}, vcc")
    I(f"v_add_u32 v{vTRb}, {LDS_WK}, v{vTR}")
    I(f"v_xor_b32 v{vTRc}, 32, v{vTRb}")
    def cs_loads():
        I(f"s_and_b32 s{sT0}, s{sW}, 1")
        I(f"s_cmp_eq_u32 s{sT0}, 1")
        I(f"s_cselect_b32 s4, s{sWU}, s{sWG}")
        I(f"s_cselect_b32 s5, s{sWU+1}, s{sWG+1}")
        I(f"s_mov_b32 s6, 1605632")
        I(f"s_mov_b32 s7, 0x20000")
        I(f"s_lshl_b32 s{sT0}, s{sG}, 2")
        I(f"s_lshr_b32 s{sT1}, s{sW}, 1")
        I(f"s_add_u32 s{sT0}, s{sT0}, s{sT1}")
        I(f"s_mul_i32 s{sT0}, s{sT0}, {7*3584}")
        I(f"s_lshl_b32 s{sT1}, s{sJC}, 8")
        I(f"s_add_u32 s{sT0}, s{sT0}, s{sT1}")
        I(f"s_cmp_ge_u32 s{sJC}, 14")
        I(f"s_cselect_b32 s{sT1}, {OOB}, 0")
        I(f"v_lshlrev_b32 v{vXA0}, 2, v{vLANE}")
        I(f"v_add_u32 v{vXA0}, s{sT1}, v{vXA0}")
        for r in range(7):
            if r:
                I(f"s_add_u32 s{sT0}, s{sT0}, 3584")
            tcs_ = I(f"buffer_load_dword v{CSR+r}, v{vXA0}, s[4:7], s{sT0} offen")
        return tcs_

    def init_load():
        I(f"v_mov_b32 v{vCNT}, 0")
        return I(f"buffer_load_dword v{vINIT}, v{vCNT}, {srd(sDBG)}, 0 offen sc1")
    bg_add("sent", sentinels)
    bg_add("cs", cs_loads)
    for i in (4, 5, 6):
        bg_add(f"w{i}", lambda i=i: rawW(i))
    bgq(int(os.environ.get("PRE1", "2")))
    g.wait(bt["wk3"])
    g.wait_all(vm=False)
    I("s_barrier")
    init_signal()
    if "mt1" in EXP:
        mall_touch()
    for _ in range(int(os.environ.get("TPA", "2"))):
        tpiece()

    def rdk(c, dst):
        I(f"ds_read_b64_tr_b16 {vr(dst,2)}, v{vTRb} offset:{c*2048}")
        I(f"ds_read_b64_tr_b16 {vr(dst+2,2)}, v{vTRb} offset:{c*2048+256}")
        I(f"ds_read_b64_tr_b16 {vr(dst+4,2)}, v{vTRc} offset:{c*2048}")
        return I(f"ds_read_b64_tr_b16 {vr(dst+6,2)}, v{vTRc} offset:{c*2048+256}")

    tphi = None
    for u in range(2):
        for j in range(8):
            d0 = j if j < 4 else 16 + j - 4
            va = TMP + u + (2 if j >= 4 else 0)
            dst = (WPH2 if j & 1 else WPHI) + 4 * u + j // 2
            tphi = I(f"ds_read_u16 v{dst}, v{va} offset:{d0*56}")
    I(f"v_lshrrev_b32 v{vWOA}, 3, v{vLANE}")
    I(f"v_mul_u32_u24 v{vWOA}, 896, v{vWOA}")
    I(f"v_and_b32 v{vT1}, 7, v{vLANE}")
    I(f"v_lshlrev_b32 v{vT2}, 1, v{vG}")
    I(f"v_xor_b32 v{vT1}, v{vT1}, v{vT2}")
    I(f"v_lshl_add_u32 v{vWOA}, v{vT1}, 4, v{vWOA}")
    I(f"s_lshl_b32 s{sWOB}, s{sNQ}, 1")
    I(f"s_add_u32 s{sWOB}, s{sWOB}, s{sWH}")
    I(f"s_cmp_eq_u32 s{sWOB}, 7")
    I(f"s_cselect_b32 s{sT1}, {OOB}, 0")
    I(f"s_lshl_b32 s{sWOB}, s{sWOB}, 7")
    I(f"s_add_u32 s{sWOB}, s{sWOB}, s{sT1}")
    I(f"s_mul_i32 s{sT1}, s{sW3}, {112*896}")
    I(f"s_add_u32 s{sWOB}, s{sWOB}, s{sT1}")
    two = {}

    def wo_load(i):
        two[i] = dma2(vWOA, sWO, sWOB, i * 8 * 896, sLW, i * 1024, stmp=sBG)
    for i in range(4, 10):
        bg_add(f"wo{i}", lambda i=i: wo_load(i))
    KH = eval(os.environ.get('KH', '(2, 6, 10)'))
    chain16(ACC, rdk, hook=lambda c: bgq() if c in KH else None)
    for i in range(8):
        I(f"v_lshl_or_b32 v{WPHI+i}, v{WPH2+i}, 16, v{WPHI+i}")
    stamp("k chain")
    I(f"v_lshrrev_b32 v{vT0}, 1, v{vG}")
    I(f"v_mul_u32_u24 v{vT0}, {UNIT-1024}, v{vT0}")
    I(f"v_add_u32 v{vTRb}, v{vT0}, v{vTR}")
    I(f"v_xor_b32 v{vTRc}, 32, v{vTRb}")
    I(f"v_add_u32 v{vXR0}, 57344, v{vTRb}")
    I(f"v_add_u32 v{vXR1}, 57344, v{vTRc}")
    g.wait(bt['w3'])
    I("s_barrier")
    stamp("wv ready")
    for _ in range(int(os.environ.get("TPB", "3"))):
        tpiece()

    def rdw(isq):
        def rd(c, dst):
            n0 = 2 * c
            if not isq:
                unit, off = n0 % 8, (n0 // 8) * 1024
            elif n0 < 24:
                unit, off = n0 % 8, 10240 + (1 + n0 // 8) * 1024
            else:
                unit, off = 4 + n0 - 24, 10240
            a0, a1 = (vTRb, vTRc) if unit < 4 else (vXR0, vXR1)
            off += (unit % 4) * UNIT
            I(f"ds_read_b64_tr_b16 {vr(dst,2)}, v{a0} offset:{off}")
            I(f"ds_read_b64_tr_b16 {vr(dst+2,2)}, v{a0} offset:{off+256}")
            I(f"ds_read_b64_tr_b16 {vr(dst+4,2)}, v{a1} offset:{off}")
            return I(f"ds_read_b64_tr_b16 {vr(dst+6,2)}, v{a1} offset:{off+256}")
        return rd

    g.begin()
    chain16(ACCV, rdw(False), swap=True, hook=lambda c: bgq() if c in eval(os.environ.get('VH', '(1,3,5,7,9,11,13)')) else None)
    main = g.end()
    g.begin()
    featmap(ACC, PH)
    for s_ in range(2):
        for u in range(2):
            I(f"v_mfma_f32_16x16x32_bf16 {vr(TMP+8*s_+4*u,4)}, {vr(PH+4*s_,4)}, {vr(SEL+4*u,4)}, 0")
    side = g.end()
    g.put(interleave(main, side, every=1, per=4))
    PT = PH
    for k in range(8):
        I(f"v_cvt_pk_bf16_f32 v{PT+k}, v{TMP+2*k}, v{TMP+2*k+1}")
    VF = ACC
    I(f"v_cmp_le_u32 vcc, 12, v{vM16}")
    for k in range(4):
        I(f"v_cvt_pk_bf16_f32 v{VF+k}, v{ACCV+2*k}, v{ACCV+2*k+1}")
    I(f"v_cndmask_b32 v{VF+2}, v{VF+2}, v{vT5}, vcc")
    I(f"v_cndmask_b32 v{VF+3}, v{VF+3}, v{vT5}, vcc")
    I(f"s_lshr_b32 s{sT0}, s{sW}, 1")
    I(f"s_lshl_b32 s{sT0}, s{sT0}, 10")
    I(f"s_and_b32 s{sT1}, s{sW}, 1")
    I(f"s_lshl_b32 s{sT1}, s{sT1}, 3")
    I(f"s_add_u32 s{sT0}, s{sT0}, s{sT1}")
    I(f"s_add_u32 s{sT0}, s{sT0}, {LDS_WK}")
    I(f"v_add_u32 v{vT0}, s{sT0}, v{vL16}")
    for k in range(4):
        I(f"ds_write_b64 v{vT0}, {vr(PT+2*k,2)} offset:{k*4096}")
    for k in range(2):
        I(f"ds_write_b64 v{vT0}, {vr(VF+2*k,2)} offset:{(4+k)*4096}")
    g.wait(bt['cs'])
    I(f"v_mov_b32 v{ACCV}, 0\nv_mov_b32 v{ACCV+1}, 0")
    for r in range(7):
        I(f"v_dot2_f32_bf16 v{ACCV}, v{CSR+r}, v{vT3}, v{ACCV}")
        I(f"v_dot2_f32_bf16 v{ACCV+1}, v{CSR+r}, v{vT4}, v{ACCV+1}")
    I(f"v_lshlrev_b32 v{vT1}, 3, v0")
    I(f"v_add_u32 v{vT1}, {LDS_KVF}, v{vT1}")
    I(f"ds_write_b64 v{vT1}, {vr(ACCV,2)}")
    I(f"s_lshl_b32 s{sT0}, s{sWH}, 1")
    I(f"s_and_b32 s{sT1}, s{sW}, 1")
    I(f"s_add_u32 s{sT0}, s{sT0}, s{sT1}")
    I(f"s_lshl_b32 s{sT0}, s{sT0}, 12")
    I(f"s_add_u32 s{sT0}, s{sT0}, {LDS_WK}")
    I(f"v_add_u32 v{vT0}, s{sT0}, v{vL16}")
    I(f"s_bfe_u32 s{sT0}, s{sW}, 0x10001")
    I(f"s_lshl_b32 s{sT0}, s{sT0}, 12")
    I(f"s_add_u32 s{sT0}, s{sT0}, {LDS_WK + 4*4096}")
    I(f"v_add_u32 v{vT1}, s{sT0}, v{vL16}")
    g.wait(bt['w6'])
    g.wait_all(vm=False)
    I("s_barrier")
    R = WF
    tk = {}
    for p in range(4):
        I(f"ds_read_b128 {vr(R+8*p,4)}, v{vT0} offset:{p*1024}")
        tk[p] = I(f"ds_read_b128 {vr(R+8*p+4,4)}, v{vT1} offset:{p*1024}")
    I(f"v_lshlrev_b32 v{vXA0}, 2, v0")
    I(f"v_and_b32 v{vXA0}, 1023, v{vXA0}")
    I(f"v_add_u32 v{vXA0}, {LDS_KVF}, v{vXA0}")
    I(f"ds_read2st64_b32 {vr(ACCV,2)}, v{vXA0} offset0:0 offset1:4")
    tq = I(f"ds_read2st64_b32 {vr(ACCV+2,2)}, v{vXA0} offset0:8 offset1:12")
    for p in range(4):
        g.wait(tk[p])
        I(f"v_mfma_f32_16x16x32_bf16 {vr(ACC,4)}, {vr(R+8*p,4)}, {vr(R+8*p+4,4)}, {'0' if p == 0 else vr(ACC,4)}")
    g.wait(tq)
    I(f"v_add_f32 v{ACCV}, v{ACCV}, v{ACCV+1}")
    I(f"v_add_f32 v{ACCV+2}, v{ACCV+2}, v{ACCV+3}")
    I(f"v_add_f32 v{ACCV}, v{ACCV}, v{ACCV+2}")
    I(f"v_cvt_pk_bf16_f32 v{ACC+4}, v{ACC}, v{ACC+1}")
    I(f"v_cvt_pk_bf16_f32 v{ACC+5}, v{ACC+2}, v{ACC+3}")
    I(f"buffer_store_dwordx2 {vr(ACC+4,2)}, v{vT8}, {srd(sWS)}, s{sKVS} offen sc1")
    I(f"buffer_store_dword v{ACCV}, v{vCSS}, {srd(sWS)}, s{sCSS} offen sc1")
    stamp("kv stored")
    for _ in range(7):
        tpiece()
    if "t2a" in EXP:
        touch2(98, 99)
    I(f"v_lshlrev_b32 v{vCNT}, 4, v{vM16}")
    tini = I(f"buffer_load_dword v{vINIT}, v{vCNT}, {srd(sDBG)}, s{sCL} offen sc1")
    for i in range(4):
        bg_add(f"wo{i}", lambda i=i: wo_load(i))
    chain16(ACC, rdw(True), hook=lambda c: bgq() if c % 2 == 1 else None)
    bgq(99)
    c_bg(0, 0, 0, 56, 0, "qdone")
    c_bg(1, 0, 0, 24, 57344, "qdone")
    lr, lb = g.newlabel("L_ir"), g.newlabel("L_ib")
    I(f"s_cmp_lg_u32 s{sW}, 0")
    I(f"s_cbranch_scc1 {lb}")
    g.cond_begin()
    g.wait(tini)
    I(f"v_cmp_gt_u32 vcc, 16, v{vINIT}")
    I(f"s_cmp_lg_u64 vcc, 0")
    I(f"s_cbranch_scc1 {lr}")
    g.cond_end()
    g.label(lb)
    g.begin()
    g.label(lr)
    init_check()
    I(f"s_branch {lb}")
    TAILS.append(g.end())
    I("s_barrier")
    for i in range(10, 14):
        wo_load(i)
    featmap(ACC, PH)
    GR, R, AO, OS = 40, 96, 176, 184
    WOF = 112
    vB1, vB2, vB3 = 188, 189, 190
    vK0, vK1, vK2 = 191, 192, 193
    stamp("q done")

    I(f"s_lshl_b32 s{sT0}, s{sWH}, 15")
    I(f"s_lshl_b32 s{sT1}, s{sW3}, 10")
    I(f"s_add_u32 s{sGATH}, s{sGATH}, s{sT0}")
    I(f"s_add_u32 s{sGATH}, s{sGATH}, s{sT1}")

    def gat_issue():
        tl = []
        I(f"s_mov_b32 s{sT0}, s{sGATH}")
        for rb in range(8):
            if rb:
                I(f"s_add_u32 s{sT0}, s{sT0}, 4096")
            tl.append(I(f"buffer_load_dwordx4 {vr(GR+4*rb,4)}, v{vL16}, {srd(sWS)}, s{sT0} offen sc1"))
        return tl

    def gat_body(tl):
        for i in range(8):
            I(f"v_mov_b32 v{R+i}, 0")
        for rb in range(8):
            g.wait(tl[rb])
            for i in range(4):
                I(f"v_dot2_f32_bf16 v{R+2*i}, v{GR+4*rb+i}, v{vT3}, v{R+2*i}")
                I(f"v_dot2_f32_bf16 v{R+2*i+1}, v{GR+4*rb+i}, v{vT4}, v{R+2*i+1}")

    def wo_bounce():
        c_setup()
        d_setup()
        I(f"v_lshrrev_b32 v{vK0}, 2, v{vM16}")
        I(f"v_sub_u32 v{vK0}, v{vM16}, v{vK0}")
        I(f"v_and_b32 v{vT1}, 3, v{vM16}")
        I(f"v_cmp_eq_u32 vcc, 3, v{vT1}")
        I(f"v_cndmask_b32 v{vK0}, v{vK0}, 12, vcc")
        I(f"v_lshl_add_u32 v{vK0}, v{vG}, 4, v{vK0}")
        I(f"v_lshlrev_b32 v{vK0}, 4, v{vK0}")
        I(f"v_add_u32 v{vK0}, {LDS_KV2}, v{vK0}")
        I(f"v_add_u32 v{vK1}, {LDS_KV2}, v{vL16}")
        I(f"v_and_b32 v{vK2}, 31, v{vLANE}")
        I(f"v_lshlrev_b32 v{vK2}, 5, v{vK2}")
        I(f"v_lshrrev_b32 v{vT1}, 5, v{vLANE}")
        I(f"v_lshl_add_u32 v{vK2}, v{vT1}, 3, v{vK2}")
        I(f"v_add_u32 v{vK2}, s{sCL}, v{vK2}")
        I(f"v_add_u32 v{vK2}, {LDS_KV2}, v{vK2}")
        I(f"v_bfe_u32 v{vT1}, v{vLANE}, 2, 2")
        I(f"v_lshl_add_u32 v{vB1}, v{vG}, 2, v{vT1}")
        I(f"v_min_u32 v{vT1}, 2, v{vT1}")
        I(f"v_mad_u32_u24 v{vB2}, v{vG}, 3, v{vT1}")
        I(f"v_add_u32 v{vB2}, 16, v{vB2}")
        I(f"v_and_b32 v{vT1}, 3, v{vLANE}")
        I(f"v_lshlrev_b32 v{vT1}, 3, v{vT1}")
        I(f"v_add_u32 v{vT1}, s{sLW}, v{vT1}")
        AD = 72
        for rd_, vb in enumerate((vB1, vB2)):
            I(f"v_bfe_u32 v{vT2}, v{vb}, 1, 2")
            I(f"v_lshlrev_b32 v{vT2}, 5, v{vT2}")
            I(f"v_lshl_add_u32 v{vT2}, v{vb}, 7, v{vT2}")
            I(f"v_add_u32 v{AD+4*rd_}, v{vT2}, v{vT1}")
            for x in range(1, 4):
                I(f"v_xor_b32 v{AD+4*rd_+x}, {32*x}, v{AD+4*rd_}")
        g.wait(two[13])
        for hh in range(4):
            for nt in range(4):
                d = WOF + (hh * 4 + nt) * 4
                x = nt ^ (2 * (hh & 1))
                I(f"ds_read_b64_tr_b16 {vr(d,2)}, v{AD+x} offset:{hh*3584}")
                I(f"ds_read_b64_tr_b16 {vr(d+2,2)}, v{AD+4+x} offset:{hh*3584}")
    spec_load(gat_issue, [GR + 2 * k for k in range(16)], R + 12, gat_body, wo_bounce)
    g.mark("gdone")
    if "t2d" in EXP:
        touch2(194, 195)
    for i in range(4):
        I(f"v_cvt_pk_bf16_f32 v{R+8+i}, v{R+2*i}, v{R+2*i+1}")
    I(f"ds_write_b64 v{vK2}, {vr(R+8,2)}")
    I(f"ds_write_b64 v{vK2}, {vr(R+10,2)} offset:16")
    g.wait_all(vm=False)
    stamp("gathered")
    I("s_barrier")
    g.mark("qdone")
    g.mark("burst:" + os.environ.get("BB0", "2"))
    KF = 40
    tk = {}
    for hf_ in range(2):
        for s_ in range(2):
            I(f"ds_read_b128 {vr(KF+16*hf_+8*s_,4)}, v{vK1} offset:{hf_*4096+s_*2048}")
            tk[hf_, s_] = I(f"ds_read_b128 {vr(KF+16*hf_+8*s_+4,4)}, v{vK0} offset:{hf_*4096+s_*2048+1024}")
    for hf_ in range(2):
        for s_ in range(2):
            g.wait(tk[hf_, s_])
            for t in range(2):
                a = vr(AO + 4 * t, 4)
                I(f"v_mfma_f32_16x16x32_bf16 {a}, {vr(KF+16*hf_+8*s_+4*t,4)}, {vr(PH+4*s_,4)}, {'0' if (s_ == 0 and hf_ == 0) else a}")
    I(f"v_add_f32 v{vT1}, {f32(1e-6)}, v{AO+7}")
    I(f"v_rcp_f32 v{vT1}, v{vT1}")
    for i in range(7):
        I(f"v_mul_f32 v{AO+i}, v{AO+i}, v{vT1}")
    for i in range(3):
        I(f"v_cvt_pk_bf16_f32 v{OS+i}, v{AO+2*i}, v{AO+2*i+1}")
    I(f"v_cvt_pk_bf16_f32 v{OS+3}, v{AO+6}, 0")
    I(f"buffer_store_dwordx4 {vr(OS,4)}, v{vL16}, {srd(sWS)}, s{sOS} offen sc1")
    stamp("o stored")
    if "t2b" in EXP:
        touch2(202, 203)
    g.mark("on")
    return two


def woraw(i):
    return vr(216 + 4 * i, 4) if i < 8 else vr(WR + 4 * (i - 8), 4)


def phaseB(two):
    g.comment("==== phase B ====")
    OF = 216
    XR, XU, CSG = 176, 180, 188
    WOF = 112
    BACC = 72
    vB1, vB2, vB3 = 196, 197, 198
    vD1, vD2, vD3 = 199, 200, 201
    I(f"s_lshl_b32 s{sT0}, s{sMTB}, 2")
    I(f"s_add_u32 s{sT0}, s{sT0}, s{sW3}")
    I(f"s_mul_i32 s{sT0}, s{sT0}, {8*896}")
    I(f"s_lshl_b32 s{sT1}, s{sNQ}, 8")
    I(f"s_add_u32 s{sT0}, s{sT0}, s{sT1}")
    I(f"s_lshl_b32 s{sT1}, s{sWH}, 7")
    I(f"s_add_u32 s{sT0}, s{sT0}, s{sT1}")
    I(f"s_add_u32 s{sT0}, s{sT0}, s{sINV}")
    I(f"v_and_b32 v{vT4}, 7, v{vLANE}")
    I(f"v_lshrrev_b32 v{vT5}, 3, v{vLANE}")
    I(f"v_mul_u32_u24 v{vT0}, 896, v{vT5}")
    I(f"v_lshl_add_u32 v{vT0}, v{vT4}, 4, v{vT0}")
    I(f"s_cmp_ge_u32 s{sW}, 4")
    I(f"s_mov_b32 s{sT2}, 81920")
    I(f"s_cmov_b32 s{sT2}, {LDS_KVF - 4096}")
    I(f"s_add_u32 s{sT2}, s{sT2}, s{sCL}")
    g.mark("off")
    I(f"s_mov_b32 m0, s{sT2}")
    I(f"v_lshlrev_b32 v{vB3}, 7, v{vT4}")
    txd = I(f"buffer_load_dwordx4 v{vT0}, {srd(sX)}, s{sT0} offen lds")
    g.mark("on")
    I(f"v_lshl_add_u32 v{vB3}, v{vT5}, 4, v{vB3}")
    I(f"v_add_u32 v{vB3}, s{sT2}, v{vB3}")
    g.mark("burst:" + os.environ.get("BB1", "3"))
    I(f"s_lshl_b32 s{sD}, s{sMTB}, 5")
    I(f"s_lshl_b32 s{sT1}, s{sW3}, 2")
    I(f"s_add_u32 s{sD}, s{sD}, s{sT1}")
    I(f"s_lshl_b32 s{sD}, s{sD}, 10")
    I(f"s_add_u32 s{sD}, s{sD}, {WS_O}")
    I(f"s_add_u32 s{sE}, s{sD}, 16384")
    BS2 = 83968
    I(f"s_mul_i32 s{sT0}, s{sW3}, 18432")
    I(f"s_mul_i32 s{sT1}, s{sWH}, {8*1152}")
    I(f"s_add_u32 s{sT0}, s{sT0}, s{sT1}")
    I(f"s_add_u32 s{sT0}, s{sT0}, {BS2}")
    I(f"v_lshrrev_b32 v{vT1}, 1, v{vG}")
    I(f"v_mul_u32_u24 v{vT1}, 1152, v{vT1}")
    I(f"v_and_b32 v{vT2}, 1, v{vG}")
    I(f"v_lshl_add_u32 v{vT1}, v{vT2}, 9, v{vT1}")
    I(f"v_lshl_add_u32 v{vT1}, v{vM16}, 4, v{vT1}")
    I(f"v_add_u32 v{vB1}, s{sT0}, v{vT1}")
    I(f"s_lshl_b32 s{sT0}, s{sW3}, 7")
    I(f"s_add_u32 s{sT0}, s{sT0}, s{sT1}")
    I(f"s_add_u32 s{sT0}, s{sT0}, {BS2}")
    I(f"v_mul_u32_u24 v{vT1}, 1152, v{vT5}")
    I(f"v_lshl_add_u32 v{vT1}, v{vT4}, 4, v{vT1}")
    I(f"v_add_u32 v{vB2}, s{sT0}, v{vT1}")
    I(f"v_cmp_gt_u32 vcc, 0x10000, v{vHSA}")
    I(f"v_cndmask_b32 v{vT3}, 0, -1, vcc")
    stats_addr(vT2, vT0, vT1)
    I(f"v_mov_b32 v{vT5}, 0x3f803f80")
    g.wait(txd)
    txr = I(f"ds_read_b128 {vr(XR,4)}, v{vB3}")
    g.wait(txr)
    for i in range(4):
        I(f"v_lshlrev_b32 v{XU+2*i}, 16, v{XR+i}")
        I(f"v_and_b32 v{XU+2*i+1}, 0xffff0000, v{XR+i}")
    g.mark("off")
    I("s_barrier")
    stamp("wo ready")

    def o_issue():
        tl = []
        for hh in range(4):
            for mt in range(2):
                tl.append(I(f"buffer_load_dwordx4 {vr(OF+(hh*2+mt)*4,4)}, v{vL16}, {srd(sWS)}, s{sE if mt else sD} offen offset:{hh*1024} sc1"))
        return tl

    def o_body(tl):
        for hh in range(4):
            for mt in range(2):
                g.wait(tl[hh * 2 + mt])
                for nt in range(4):
                    a = BACC + (mt * 4 + nt) * 4
                    I(f"v_mfma_f32_16x16x32_bf16 {vr(a,4)}, {vr(WOF+(hh*4+nt)*4,4)}, {vr(OF+(hh*2+mt)*4,4)}, {'0' if hh == 0 else vr(a,4)}")
    spec_load(o_issue, [OF + 4 * k for k in range(8)], vT0, o_body)
    stamp("B mfma")
    for mt in range(2):
        for nt in range(4):
            I(f"ds_write_b128 v{vB1}, {vr(BACC+(mt*4+nt)*4,4)} offset:{nt*2304+mt*256}")
    I(f"s_lshl_b32 s{sT0}, s{sJC}, 14")
    I(f"s_lshl_b32 s{sT1}, s{sWH}, 13")
    I(f"s_add_u32 s{sT0}, s{sT0}, s{sT1}")
    I(f"s_add_u32 s{sD}, s{sT0}, {WS_CS}")
    I(f"s_add_u32 s{sE}, s{sD}, 4096")
    I(f"v_lshlrev_b32 v{vB3}, 2, v0")
    I(f"v_and_b32 v{vB3}, 1023, v{vB3}")

    def cs_issue():
        return [I(f"buffer_load_dword v{CSG+rb}, v{vB3}, {srd(sWS)}, s{sE if rb >= 4 else sD} offen offset:{(rb%4)*1024} sc1") for rb in range(8)]
    tcs8 = cs_issue()
    g.mark("burst:3")
    S1, S2 = 104, 105
    I(f"v_mov_b32 v{S1}, 0\nv_mov_b32 v{S2}, 0")
    g.wait_all(vm=False)
    I("s_barrier")
    b = 72
    for w in range(4):
        for q in range(2):
            I(f"ds_read_b128 {vr(b+w*8+q*4,4)}, v{vB2} offset:{w*18432+q*512}")
    g.wait_all(vm=False)
    HP = 108
    for i in range(8):
        I(f"v_add_f32 v{b+i}, v{b+i}, v{b+8+i}")
        I(f"v_add_f32 v{b+16+i}, v{b+16+i}, v{b+24+i}")
    for i in range(8):
        I(f"v_add_f32 v{b+i}, v{b+i}, v{XU+i}")
    for i in range(8):
        I(f"v_add_f32 v{b+i}, v{b+i}, v{b+16+i}")
    for i in range(4):
        I(f"v_cvt_pk_bf16_f32 v{HP+i}, v{b+2*i}, v{b+2*i+1}")
    I(f"buffer_store_dwordx4 {vr(HP,4)}, v{vHSA}, {srd(sWS)}, s{sHS} offen sc1")
    for i in range(4):
        I(f"v_dot2_f32_bf16 v{S1}, v{HP+i}, v{vT5}, v{S1}")
        I(f"v_dot2_f32_bf16 v{S2}, v{HP+i}, v{HP+i}, v{S2}")
    I(f"v_and_b32 v{S1}, v{vT3}, v{S1}")
    I(f"v_and_b32 v{S2}, v{vT3}, v{S2}")
    for ror in (8,):
        I(f"v_add_f32_dpp v{S1}, v{S1}, v{S1} row_ror:{ror} row_mask:0xf bank_mask:0xf")
        I(f"v_add_f32_dpp v{S2}, v{S2}, v{S2} row_ror:{ror} row_mask:0xf bank_mask:0xf")
    for lv in (16, 32):
        I(f"v_mov_b32 v106, v{S1}\nv_mov_b32 v107, v{S2}")
        I(f"v_permlane{lv}_swap_b32 v{S1}, v106")
        I(f"v_permlane{lv}_swap_b32 v{S2}, v107")
        I(f"v_add_f32 v{S1}, v{S1}, v106")
        I(f"v_add_f32 v{S2}, v{S2}, v107")
    I(f"buffer_store_dwordx2 v[{S1}:{S2}], v{vT2}, {srd(sWS)}, s{sSS} offen sc1")
    stamp("h stored")
    if "t2c" in EXP:
        touch2(202, 203)
    lr, lb = g.newlabel("L_sr"), g.newlabel("L_sb")
    g.wait(tcs8[-1])
    sent_check([CSG + rb for rb in range(8)], vT0)
    I(f"s_cmp_lg_u64 vcc, 0")
    I(f"s_cbranch_scc1 {lr}")
    g.label(lb)
    g.begin()
    g.label(lr)
    check_loop(cs_issue, [CSG + rb for rb in range(8)], vT0)
    I(f"s_branch {lb}")
    TAILS.append(g.end())
    for k in (4, 2, 1):
        for i in range(k):
            I(f"v_add_f32 v{CSG+i}, v{CSG+i}, v{CSG+k+i}")
    I(f"v_lshlrev_b32 v{vB3}, 2, v0")
    I(f"v_add_u32 v{vB3}, {LDS_KVF}, v{vB3}")
    I(f"ds_write_b32 v{vB3}, v{CSG}")
    g.wait_all(vm=False)
    I("s_barrier")
    I(f"s_cmp_ge_u32 s{sJC}, 14")
    I("s_cbranch_scc1 L_end")
    tb2 = c_batch(1, 0, 24, 56, 57344 + 24576)


GK1 = -2.0 * math.sqrt(2.0 / math.pi) * LOG2E
GK2 = GK1 * 0.044715
LDS_X = 114688
vHB, vM, vWD = 254, 255, 253
sWDB = 80
WDE = 16
NWDE = 7
NWDC = int(os.environ.get('NWDC', '2'))


def hh_signal(stage, toks):
    g.wait(*toks)
    I("s_barrier")
    lab = g.newlabel("L_hs")
    I(f"s_cmp_lg_u32 s{sW}, 0")
    I(f"s_cbranch_scc1 {lab}")
    g.cond_begin()
    I("s_mov_b64 exec, 1")
    I(f"s_lshl_b32 s{sT0}, s{sG}, 8")
    I(f"s_add_u32 s{sT0}, s{sT0}, {WS_CNT + CNT_HH * 4096 + 64 * stage}")
    I(f"v_mov_b32 v{vCNT}, s{sT0}")
    I(f"buffer_atomic_add v{vONE}, v{vCNT}, {srd(sWS)}, 0 offen sc1")
    I("s_mov_b64 exec, -1")
    g.cond_end()
    g.label(lab)


def hh_poll(stage_sreg_or_imm):
    I("s_mov_b64 exec, 1")
    I(f"s_lshl_b32 s{sT0}, s{sGB}, 8")
    I(f"s_add_u32 s{sT0}, s{sT0}, {WS_CNT + CNT_HH * 4096}")
    I(f"s_add_u32 s{sT0}, s{sT0}, {stage_sreg_or_imm}")
    I(f"v_mov_b32 v{vCNT}, s{sT0}")
    poll(sWS, vCNT, 14)
    I("s_mov_b64 exec, -1")


def d_setup():
    I(f"v_lshrrev_b32 v{vHB}, 5, v{vLANE}")
    I(f"v_and_b32 v{vM}, 31, v{vLANE}")
    I(f"v_lshrrev_b32 v{vT0}, 3, v{vLANE}")
    I(f"v_mul_u32_u24 v{vT0}, 896, v{vT0}")
    I(f"v_and_b32 v{vT1}, 1, v{vG}")
    I(f"v_lshlrev_b32 v{vT1}, 2, v{vT1}")
    I(f"v_and_b32 v{vWD}, 7, v{vLANE}")
    I(f"v_xor_b32 v{vWD}, v{vWD}, v{vT1}")
    I(f"v_lshl_add_u32 v{vWD}, v{vWD}, 4, v{vT0}")
    I(f"s_cmp_ge_u32 s{sJB}, 7")
    I(f"s_cselect_b32 s{sRH}, 1, 0")
    I(f"s_mul_i32 s{sT0}, s{sRH}, 7")
    I(f"s_sub_u32 s{sCB}, s{sJB}, s{sT0}")
    I(f"s_lshl_b32 s{sT0}, s{sWH}, 1")
    I(f"s_add_u32 s{sT0}, s{sT0}, s{sW}")
    I(f"s_and_b32 s{sAA}, s{sT0}, 3")
    I(f"s_mul_i32 s{sKC}, s{sWH}, 56")
    I(f"s_add_u32 s{sKC}, s{sKC}, s{sAA}")
    I(f"s_mul_i32 s{sWDB}, s{sKC}, {16*896}")
    I(f"s_lshl_b32 s{sT1}, s{sCB}, 7")
    I(f"s_add_u32 s{sWDB}, s{sWDB}, s{sT1}")
    I(f"s_cmp_ge_u32 s{sJB}, 14")
    I(f"s_cselect_b32 s{sT1}, {OOB}, 0")
    I(f"s_add_u32 s{sWDB}, s{sWDB}, s{sT1}")


sRH, sCB, sAA, sKC = 64, 65, 66, 67


def kc_off(n):
    return 8 * n if n < 7 else 4 + 8 * (n - 7)


def wd_load(dst, n):
    t = None
    for hf_ in range(2):
        I(f"s_add_u32 s{sT3}, s{sWDB}, {(16*kc_off(n) + 8*hf_)*896}")
        for e in range(4):
            t = I(f"buffer_load_dword v{dst+4*hf_+e}, v{vWD}, {srd(sWD)}, s{sT3} offen offset:{e*896}")
    return t


def wd_half(dst, n, hf_):
    I(f"s_add_u32 s{sBG}, s{sWDB}, {(16*kc_off(n) + 8*hf_)*896}")
    return I(f"buffer_load_dwordx4 {vr(dst+4*hf_,4)}, v{vWD}, {srd(sWD)}, s{sBG} offen")


def dt_pattern(dst, t0, t1):
    I(f"v_bfe_u32 v{t0}, v{vLANE}, 2, 2")
    I(f"v_lshl_add_u32 v{t1}, v{vHB}, 2, v{t0}")
    I(f"v_lshlrev_b32 v{t1}, 7, v{t1}")
    I(f"v_lshrrev_b32 v{t0}, 1, v{t0}")
    I(f"v_lshl_add_u32 v{t1}, v{t0}, 6, v{t1}")
    I(f"v_and_b32 v{t0}, 1, v{vG}")
    I(f"v_lshl_add_u32 v{t1}, v{t0}, 5, v{t1}")
    I(f"v_and_b32 v{t0}, 3, v{vLANE}")
    I(f"v_lshl_add_u32 v{dst}, v{t0}, 3, v{t1}")


def c_rows(mat, dbl, r0, r1, lds_base):
    return c_batch(mat, dbl, r0, r1, lds_base)


def g1_addr(n):
    if n < 8:
        return 114688 + n * 1024
    if 24 <= n < 40:
        return 114688 + 8192 + (n - 24) * 1024
    if n < 24:
        return (n - 8) * 1024
    return 16384 + (n - 40) * 1024


def u1_addr(n):
    if n < 8:
        return 32768 + n * 1024
    if 24 <= n < 40:
        return 32768 + 8192 + (n - 24) * 1024
    if n < 24:
        return 57344 + (n - 8) * 1024
    return 57344 + 16384 + (n - 40) * 1024


def phaseCD(twd_early):
    g.comment("==== phase C ====")
    sMD, sHB, sMT = sC, sHHS, sMTC
    sAB = 7
    sL5, sL2, sL3, sL4 = 4, 5, 6, 83
    I(f"s_mul_i32 s{sL5}, s{sW}, 5120")
    I(f"s_lshl_b32 s{sL2}, s{sW}, 11")
    I(f"s_mul_i32 s{sL3}, s{sW}, 3072")
    I(f"s_lshl_b32 s{sL4}, s{sW}, 12")
    slotE = [(sL2, 40960 + i * 1024) for i in range(2)] + [(sL3, 90112 + i * 1024) for i in range(3)]
    slotM = [(sL5, 114688 + i * 1024) for i in range(5)] + [(sL2, i * 1024) for i in range(2)]
    slotL = [(sL3, 16384 + i * 1024) for i in range(3)] + [(sL4, 57344 + i * 1024) for i in range(4)]
    wslot = slotE + slotM + slotL + (slotE + slotM)[:9]
    sRW = [12, 13, 14, 15, 16, 17, 18]
    sRA = [19, 20, 21, 22, 23, 81, 82]

    def wd_dma(m):
        n, hf_ = m // 2, m % 2
        return dma2(vWD, sWD, sRW[n % 7], (16 * (4 if n >= 7 else 0) + 8 * hf_) * 896, wslot[m][0], wslot[m][1])
    c_batch(0, 1, 0, 40, 114688)
    I(f"s_lshl_b32 s{sMD}, s{sGB}, 2")
    I(f"s_lshl_b32 s{sT0}, s{sRH}, 1")
    I(f"s_add_u32 s{sMD}, s{sMD}, s{sT0}")
    I(f"s_lshl_b32 s{sE}, s{sMT}, 11")
    I(f"s_add_u32 s{sE}, s{sE}, {WS_ST}")
    I(f"s_mul_i32 s{sWB}, s{sMT}, {28*1024}")
    I(f"s_add_u32 s{sWB}, s{sWB}, {WS_H}")
    I(f"s_mul_i32 s{sAB}, s{sMD}, {112*1024}")
    I(f"s_lshl_b32 s{sT1}, s{sKC}, 10")
    I(f"s_add_u32 s{sAB}, s{sAB}, s{sT1}")
    I(f"s_add_u32 s{sAB}, s{sAB}, {WS_HH}")
    for n in range(7):
        if "norot" in EXP:
            I(f"s_mov_b32 s{sT0}, {n}")
        else:
            I(f"s_add_u32 s{sT0}, s{sCB}, {n}")
            I(f"s_sub_u32 s{sT1}, s{sT0}, 7")
            I(f"s_cmp_ge_u32 s{sT0}, 7")
            I(f"s_cselect_b32 s{sT0}, s{sT1}, s{sT0}")
        I(f"s_mul_i32 s{sT1}, s{sT0}, {8*16*896}")
        I(f"s_add_u32 s{sRW[n]}, s{sWDB}, s{sT1}")
        I(f"s_lshl_b32 s{sT1}, s{sT0}, 13")
        I(f"s_add_u32 s{sRA[n]}, s{sAB}, s{sT1}")
    HF = 16
    A_, B_, C_ = 128, 144, 160
    TM, CS2 = 176, 192
    WFc = 208
    vA0, vA1, vCSA, vFA, vA2 = 240, 241, 242, 243, 15
    K1, K2, IR2, NMU = 248, 249, 250, 251
    STR = 244
    I(f"v_bfe_u32 v{vT0}, v{vLANE}, 2, 2")
    I(f"v_lshl_add_u32 v{vT1}, v{vHB}, 3, v{vT0}")
    I(f"v_lshlrev_b32 v{vT1}, 7, v{vT1}")
    I(f"v_lshrrev_b32 v{vT0}, 1, v{vT0}")
    I(f"v_xor_b32 v{vT0}, s{sWH}, v{vT0}")
    I(f"v_lshl_add_u32 v{vT1}, v{vT0}, 6, v{vT1}")
    I(f"v_and_b32 v{vT2}, 1, v{vG}")
    I(f"v_lshl_add_u32 v{vT1}, v{vT2}, 5, v{vT1}")
    I(f"v_and_b32 v{vT2}, 3, v{vLANE}")
    I(f"v_lshl_add_u32 v{vA0}, v{vT2}, 3, v{vT1}")
    I(f"v_add_u32 v{vA1}, 57344, v{vA0}")
    I(f"v_add_u32 v{vA2}, 114688, v{vA0}")
    I(f"s_lshl_b32 s{sT0}, s{sWH}, 7")
    I(f"s_add_u32 s{sT0}, s{sT0}, {LDS_CS}")
    I(f"v_lshlrev_b32 v{vCSA}, 4, v{vHB}")
    I(f"v_add_u32 v{vCSA}, s{sT0}, v{vCSA}")
    I(f"v_mov_b32 v{vFA}, {LDS_FLG}")
    I(f"v_lshlrev_b32 v{vT3}, 3, v{vLANE}")
    flush()
    I(f"v_lshlrev_b32 v{vT0}, 2, v0")
    I(f"v_and_b32 v{vT0}, 1023, v{vT0}")
    I(f"v_add_u32 v{vT0}, {LDS_KVF}, v{vT0}")
    t = I(f"ds_read2st64_b32 v[72:73], v{vT0} offset0:0 offset1:4")
    g.wait(t)
    I(f"v_add_f32 v72, v72, v73")
    I(f"ds_write_b32 v{vT0}, v72 offset:4096")
    stamp("C ready")

    S8 = 128

    def st_issue():
        return [I(f"buffer_load_dwordx2 {vr(S8+2*i,2)}, v{vT3}, {srd(sWS)}, s{sE} offen offset:{512*i} sc1") for i in range(4)]
    check_loop(st_issue, [S8 + 2 * i for i in range(4)], vT1)
    stamp("h flag")

    def h_issue():
        tl = []
        for c in range(28):
            if c % 4 == 0:
                I(f"s_add_u32 s{sT0}, s{sWB}, {c*1024}")
            tl.append(I(f"buffer_load_dwordx4 {vr(HF+4*c,4)}, v{vL16}, {srd(sWS)}, s{sT0} offen offset:{(c%4)*1024} sc1"))
        return tl
    g.begin()
    th = h_issue()
    hl = g.end()
    g.put(hl[:10])
    g.wait_all(vm=False)
    I("s_barrier")
    for i in range(4):
        I(f"v_add_f32 v{STR+i}, v{S8+i}, v{S8+4+i}")
    I(f"v_add_f32 v{STR}, v{STR}, v{STR+2}")
    I(f"v_add_f32 v{STR+1}, v{STR+1}, v{STR+3}")
    I(f"v_mov_b32 v{STR+2}, v{STR}\nv_mov_b32 v{STR+3}, v{STR+1}")
    I(f"v_permlane32_swap_b32 v{STR}, v{STR+2}")
    I(f"v_permlane32_swap_b32 v{STR+1}, v{STR+3}")
    I(f"v_add_f32 v{STR}, v{STR}, v{STR+2}")
    I(f"v_add_f32 v{STR+1}, v{STR+1}, v{STR+3}")
    I(f"v_mul_f32 v{NMU}, {f32(-1/448)}, v{STR}")
    I(f"v_mul_f32 v{STR+1}, {f32(1/448)}, v{STR+1}")
    I(f"v_fma_f32 v{STR+1}, -v{NMU}, v{NMU}, v{STR+1}")
    I(f"v_max_f32 v{STR+1}, 0, v{STR+1}")
    I(f"v_add_f32 v{IR2}, {f32(1e-5)}, v{STR+1}")
    I(f"v_rsq_f32 v{STR}, v{IR2}")
    I(f"v_mul_f32 v{K1}, {f32(GK1)}, v{STR}")
    I(f"v_mul_f32 v{STR+1}, v{STR}, v{STR}")
    I(f"v_mul_f32 v{STR+1}, v{STR+1}, v{STR}")
    I(f"v_mul_f32 v{K2}, {f32(GK2)}, v{STR+1}")
    tails = TAILS

    def cnt_add(f):
        I("s_mov_b64 exec, 1")
        I(f"ds_add_u32 v{vFA}, v{vONE} offset:{4*f}")
        I("s_mov_b64 exec, -1")

    def cnt_issue(f):
        return I(f"ds_read_b32 v{vFLAG}, v{vFA} offset:{4*f}")

    def cnt_check(f, t):
        lr, lb = g.newlabel("L_cr"), g.newlabel("L_cb")
        g.wait(t)
        I(f"v_readfirstlane_b32 s{sT4}, v{vFLAG}")
        I(f"s_cmp_lt_u32 s{sT4}, 8")
        I(f"s_cbranch_scc1 {lr}")
        g.label(lb)
        g.begin()
        g.label(lr)
        I(f"s_mov_b32 s{sT5}, 0")
        l2 = g.newlabel("L_cl")
        g.label(l2)
        I("s_sleep 1")
        cnt_issue(f)
        I("s_waitcnt lgkmcnt(0)")
        I(f"v_readfirstlane_b32 s{sT4}, v{vFLAG}")
        I(f"s_add_u32 s{sT5}, s{sT5}, 1")
        I(f"s_cmp_ge_u32 s{sT5}, {POLL_MAX*8}")
        I(f"s_cbranch_scc1 {lb}")
        I(f"s_cmp_lt_u32 s{sT4}, 8")
        I(f"s_cbranch_scc1 {l2}")
        I(f"s_branch {lb}")
        tails.append(g.end())

    def hsig_issue(f, toks):
        g.wait(*toks)
        I("s_mov_b64 exec, 1")
        t = I(f"ds_add_rtn_u32 v{vINIT}, v{vFA}, v{vONE} offset:{4*f}")
        I("s_mov_b64 exec, -1")
        return t

    def hsig_check(stage, t):
        lab = g.newlabel("L_hs")
        g.wait(t)
        I(f"v_readfirstlane_b32 s{sT4}, v{vINIT}")
        I(f"s_cmp_lg_u32 s{sT4}, 7")
        I(f"s_cbranch_scc1 {lab}")
        g.cond_begin()
        I("s_mov_b64 exec, 1")
        I(f"s_lshl_b32 s{sT0}, s{sG}, 8")
        I(f"s_add_u32 s{sT0}, s{sT0}, {WS_CNT + CNT_HH * 4096 + 64 * stage}")
        I(f"v_mov_b32 v{vCNT}, s{sT0}")
        I(f"buffer_atomic_add v{vONE}, v{vCNT}, {srd(sWS)}, 0 offen sc1")
        I("s_mov_b64 exec, -1")
        g.cond_end()
        g.label(lab)

    def cs_read(dst, mat, dbl):
        t = None
        for q in range(4):
            t = I(f"ds_read_b128 {vr(dst+4*q,4)}, v{vCSA} offset:{mat*512 + (64*dbl+8*q)*4}")
        return t

    def gpart(ag, t):
        g.wait(t)
        for i in range(16):
            I(f"v_fmac_f32 v{ag+i}, v{NMU}, v{TM+i}")
        for i in range(16):
            I(f"v_mul_f32 v{TM+i}, v{ag+i}, v{ag+i}")
        for i in range(16):
            I(f"v_fma_f32 v{TM+i}, v{TM+i}, v{K2}, v{K1}")
        for i in range(16):
            I(f"v_mul_f32 v{TM+i}, v{TM+i}, v{ag+i}")
        for i in range(16):
            I(f"v_exp_f32 v{TM+i}, v{TM+i}")
        for i in range(16):
            I(f"v_fma_f32 v{TM+i}, v{TM+i}, v{IR2}, v{IR2}")
        for i in range(16):
            I(f"v_rcp_f32 v{TM+i}, v{TM+i}")
        for i in range(16):
            I(f"v_mul_f32 v{TM+i}, v{ag+i}, v{TM+i}")

    def upart(au, t, dbl):
        g.wait(t)
        for i in range(16):
            I(f"v_fmac_f32 v{au+i}, v{NMU}, v{CS2+i}")
        for i in range(16):
            I(f"v_mul_f32 v{au+i}, v{au+i}, v{TM+i}")
        for i in range(8):
            I(f"v_cvt_pk_bf16_f32 v{CS2+i}, v{au+2*i}, v{au+2*i+1}")
        I(f"s_add_u32 s{sE}, s{sHB}, {dbl*4096}")
        I(f"buffer_store_dwordx4 {vr(CS2,4)}, v{vL16}, {srd(sWS)}, s{sE} offen sc1")
        return I(f"buffer_store_dwordx4 {vr(CS2+4,4)}, v{vL16}, {srd(sWS)}, s{sE} offen offset:1024 sc1")

    slots = []
    for c in range(28):
        slots.append((A_, c * 2048, c))
        slots.append((B_, 57344 + c * 2048, c))
    for c in range(28):
        slots.append((C_, 114688 + c * 2048 if c < 20 else (c - 20) * 2048, c))
    for c in range(28):
        slots.append((A_, 16384 + c * 2048 if c < 12 else 57344 + (c - 12) * 2048, c))
    NS = 112
    PRC = int(os.environ.get('PRC', '28'))
    depth = int(os.environ.get('DEPTH', '4'))
    nb = depth + 1
    tok = {}

    def rd(i):
        off = slots[i][1]
        base = vA0
        if off >= 114688:
            base, off = vA2, off - 114688
        elif off >= 57344:
            base, off = vA1, off - 57344
        dst = WFc + 4 * (i % nb)
        I(f"ds_read_b64_tr_b16 {vr(dst,2)}, v{base} offset:{off}")
        tok[i] = I(f"ds_read_b64_tr_b16 {vr(dst+2,2)}, v{base} offset:{off+512}")

    sched = {i: [] for i in range(NS)}
    load = {i: 0.0 for i in range(NS)}
    BUDGET = float(os.environ.get("BUDGET", "6"))

    def cost(it):
        if it.kind != "i":
            return 0
        m = it.text.split()[0]
        if m in TRANS:
            return 2
        if m in ("v_fma_f32", "v_fmac_f32"):
            return 1.25
        if m.startswith("v_"):
            return 1
        if m.startswith(("ds_", "buffer")):
            return 0.4
        return 0.1

    def cap(fn):
        g.begin()
        r = fn()
        return g.end(), r

    def at(slot, fn):
        st, r = cap(fn)
        for it in st:
            sched[slot].append(it)
            load[slot] += cost(it)
        return r

    rest = []

    def flow(stream, slot):
        pend = []
        for it in stream:
            pend.append(it)
            if it.kind != "i":
                continue
            c = sum(cost(x) for x in pend)
            while slot < NS and load[slot] + c > BUDGET:
                slot += 1
            if slot >= NS:
                rest.extend(pend)
            else:
                sched[slot].extend(pend)
                load[slot] += c
            pend = []
        return slot

    k_ = 0
    for it in hl[10:]:
        sched[k_].append(it)
        if it.text.startswith("buffer"):
            k_ += 1

    def refill(f, free_slot, batches, need_slot):
        at(free_slot, lambda: cnt_add(f))
        t = at(free_slot + 2, lambda: cnt_issue(f))
        at(free_slot + 3, lambda: cnt_check(f, t))
        st, tb = cap(batches)
        for q in range(len(st) // 3):
            for it in st[3 * q:3 * q + 3]:
                sched[free_slot + 3 + 2 * q].append(it)
        if need_slot is not None:
            at(need_slot - depth - 3, lambda: (g.wait(tb), cnt_add(f + 1)))
            t2 = at(need_slot - depth - 2, lambda: cnt_issue(f + 1))
            at(need_slot - depth - 1, lambda: cnt_check(f + 1, t2))
        return tb
    F0 = int(os.environ.get("F0", "40"))
    at(F0, lambda: cnt_add(0))
    t = at(F0 + 2, lambda: cnt_issue(0))
    at(F0 + 3, lambda: cnt_check(0, t))
    st1, tb1 = cap(lambda: c_batch(0, 1, 40, 56, 0))
    st2, tb2 = cap(lambda: (c_batch(1, 1, 0, 24, 16384), c_batch(1, 1, 24, 56, 57344))[1])
    st = st1 + st2
    for q in range(9):
        sched[F0 + 3 + 2 * q].extend(st[3 * q:3 * q + 3])
    at(76 - depth - 3, lambda: (g.wait(tb2), cnt_add(1)))
    t2_ = at(76 - depth - 2, lambda: cnt_issue(1))
    at(76 - depth - 1, lambda: cnt_check(1, t2_))
    at(56, lambda: cnt_add(2))
    t = at(72, lambda: cnt_issue(2))
    at(73, lambda: cnt_check(2, t))
    for m in range(5):
        at(73 + 2 * m, lambda: wd_dma(m))
    tM = refill(4, 84, lambda: [wd_dma(m) for m in range(5, 12)][-1], None)
    if not any(e in EXP for e in ("not2", "t2a", "t2b", "t2c", "t2d", "tp", "mt1", "mt0")):
        at(int(os.environ.get("T2", "62")), touch2)

    def h_issue_from(c0):
        def f():
            tl = []
            for c in range(c0, 28):
                if c % 4 == 0:
                    I(f"s_add_u32 s{sT2}, s{sWB}, {c*1024}")
                tl.append(I(f"buffer_load_dwordx4 {vr(HF+4*c,4)}, v{vL16}, {srd(sWS)}, s{sT2} offen offset:{(c%4)*1024} sc1"))
            return tl
        return f

    def hcheck(q):
        lr, lb = g.newlabel("L_hr"), g.newlabel("L_hb")
        g.wait(th[4 * q + 3])
        sent_check([HF + 4 * c for c in range(4 * q, 4 * q + 4)], vT1)
        I(f"s_cmp_lg_u64 vcc, 0")
        I(f"s_cbranch_scc1 {lr}")
        g.label(lb)
        g.begin()
        g.label(lr)
        check_loop(h_issue_from(4 * q), [HF + 4 * c for c in range(4 * q, 28)], vT1)
        I(f"s_branch {lb}")
        tails.append(g.end())
    t1 = at(54, lambda: cs_read(TM, 0, 0))
    t2 = at(55, lambda: cs_read(CS2, 1, 0))
    def epiA():
        g.wait(t2)
        for i in range(16):
            I(f"v_fmac_f32 v{A_+i}, v{NMU}, v{TM+i}")
        for i in range(16):
            I(f"v_fmac_f32 v{B_+i}, v{NMU}, v{CS2+i}")
        for i in range(16):
            I(f"v_mul_f32 v{TM+i}, v{A_+i}, v{A_+i}")
        for i in range(16):
            I(f"v_fma_f32 v{TM+i}, v{TM+i}, v{K2}, v{K1}")
        for i in range(16):
            I(f"v_mul_f32 v{TM+i}, v{TM+i}, v{A_+i}")
        for i in range(16):
            I(f"v_mul_f32 v{B_+i}, v{B_+i}, v{A_+i}")

    def epiB():
        for i in range(16):
            I(f"v_exp_f32 v{TM+i}, v{TM+i}")
        for i in range(16):
            I(f"v_fma_f32 v{TM+i}, v{TM+i}, v{IR2}, v{IR2}")
        for i in range(16):
            I(f"v_rcp_f32 v{TM+i}, v{TM+i}")
        for i in range(16):
            I(f"v_mul_f32 v{B_+i}, v{B_+i}, v{TM+i}")
        for i in range(8):
            I(f"v_cvt_pk_bf16_f32 v{CS2+i}, v{B_+2*i}, v{B_+2*i+1}")
        I(f"buffer_store_dwordx4 {vr(CS2,4)}, v{vL16}, {srd(sWS)}, s{sHB} offen sc1")
        return I(f"buffer_store_dwordx4 {vr(CS2+4,4)}, v{vL16}, {srd(sWS)}, s{sHB} offen offset:1024 sc1")
    st, _ = cap(epiA)
    e = flow(st, 57)
    assert e < 83, e
    st, tst0 = cap(epiB)
    e = flow(st, e)
    t1 = at(max(e, 85), lambda: cs_read(TM, 0, 1))
    t2 = at(min(e + 9, 109), lambda: cs_read(CS2, 1, 1))
    st, _ = cap(lambda: gpart(C_, t1))
    flow(st, max(e, 85) + 2)
    def flag_issue():
        I(f"s_lshl_b32 s{sT0}, s{sGB}, 8")
        I(f"s_add_u32 s{sT0}, s{sT0}, {WS_CNT + CNT_HH * 4096}")
        return I(f"buffer_load_dword v{vT4}, off, {srd(sWS)}, s{sT0} sc1")
    print("slot loads:", " ".join("%.0f" % load[i] for i in range(NS)), "rest", len(rest))
    for i in range(depth):
        rd(i)
    for i in range(NS):
        acc, off, c = slots[i]
        if i + depth < NS:
            rd(i + depth)
        if PRC and i % PRC == 0:
            I(f"s_setprio {3 - (i // PRC) % 4}")
        if i < 56 and i % 8 == 0:
            hcheck(i // 8)
        g.wait(tok[i])
        I(f"v_mfma_f32_32x32x16_bf16 {vr(acc,16)}, {vr(WFc+4*(i%nb),4)}, {vr(HF+4*c,4)}, {'0' if c == 0 else vr(acc,16)}")
        g.put(sched[i])
        if i in (55, 83, 111):
            stamp(f"slot{i}")
    g.put(rest)
    tlast = upart(A_, t2, 1)
    stamp("hh stored")
    DACC = 184
    frag = {n: 16 + 8 * n for n in range(14)}
    abuf = {c: 128 + 4 * c for c in range(14)}
    ta = {}
    vP = {(sL5, 114688): (vT0, vT1), (sL2, 0): (vT2, vT3), (sL3, 16384): (vT4, vT5), (sL3, 90112): (vINIT, vCNT - 0), (sL4, 57344): (252, 15)}
    vP[(sL3, 90112)] = (vG, vM16)
    dt_pattern(vFLAG, vT0, vT1)
    for (sreg, base), (a0, a1) in vP.items():
        I(f"v_add_u32 v{a0}, s{sreg}, v{vFLAG}")
        if base:
            I(f"v_add_u32 v{a0}, {base}, v{a0}")
        I(f"v_xor_b32 v{a1}, 64, v{a0}")

    def wd_read(m):
        n, rd_ = m // 2, m % 2
        sreg, imm = wslot[m]
        key = max((k for k in vP if k[0] == sreg and k[1] <= imm), key=lambda k: k[1])
        a = vP[key]
        imm -= key[1]
        t = None
        for nt in range(2):
            t = I(f"ds_read_b64_tr_b16 {vr(frag[n]+4*nt+2*rd_,2)}, v{a[nt]} offset:{imm}")
        return t

    def lda(c):
        for mt in range(2):
            I(f"s_add_u32 s{sT1}, s{sRA[c % 7]}, {mt*112*1024 + (4096 if c >= 7 else 0)}")
            ta[c, mt] = I(f"buffer_load_dwordx4 {vr(abuf[c]+4*mt,4)}, v{vL16}, {srd(sWS)}, s{sT1} offen sc1")

    def mm(c, first):
        for mt in range(2):
            g.wait(ta[c, mt])
            for nt in range(2):
                a = DACC + (mt * 2 + nt) * 16
                I(f"v_mfma_f32_32x32x16_bf16 {vr(a,16)}, {vr(frag[c]+4*nt,4)}, {vr(abuf[c]+4*mt,4)}, {'0' if first else vr(a,16)}")
    I("s_setprio 3")
    g.wait(tM)
    t = None
    for m in range(12):
        t = wd_read(m)
    g.wait(t)
    twd = {}
    for m in range(19, 28):
        twd[m] = wd_dma(m)
        if m == 22:
            th_ = hsig_issue(6, [tlast])
            hsig_check(0, th_)
    I("s_barrier")
    for m in range(12, 19):
        twd[m] = wd_dma(m)
    stamp("wd issued")
    I("s_setprio 0")
    lab = g.newlabel("L_fp")
    I(f"s_cmp_lg_u32 s{sW}, 0")
    I(f"s_cbranch_scc1 {lab}")
    g.cond_begin()
    hh_poll(0)
    g.cond_end()
    g.label(lab)
    g.wait(twd[27])
    for m in range(19, 28):
        wd_read(m)
    g.wait(twd[18])
    for m in range(12, 19):
        wd_read(m)
    g.wait_all(vm=False)
    I("s_barrier")
    stamp("hh flag")

    def lda1(c, mt):
        I(f"s_add_u32 s{sT1}, s{sRA[c % 7]}, {mt*112*1024 + (4096 if c >= 7 else 0)}")
        ta[c, mt] = I(f"buffer_load_dwordx4 {vr(abuf[c],4)}, v{vL16}, {srd(sWS)}, s{sT1} offen sc1")
    for c in range(14):
        lda1(c, 0)
    HR = 248
    I(f"v_and_b32 v{vT0}, 15, v0")
    I(f"v_lshrrev_b32 v{vT1}, 4, v0")
    I(f"v_lshrrev_b32 v{vFLAG}, 1, v{vT0}")
    I(f"v_lshlrev_b32 v{vFLAG}, 9, v{vFLAG}")
    I(f"v_lshl_add_u32 v{vFLAG}, v{vT1}, 4, v{vFLAG}")
    I(f"v_and_b32 v{vT2}, 1, v{vT0}")
    I(f"v_lshl_add_u32 v{vFLAG}, v{vT2}, 3, v{vFLAG}")
    I(f"s_mul_i32 s{sE}, s{sMD}, {28*1024}")
    I(f"s_lshl_b32 s{sT1}, s{sCB}, 12")
    I(f"s_add_u32 s{sE}, s{sE}, s{sT1}")
    I(f"s_add_u32 s{sE}, s{sE}, {WS_H}")
    I(f"s_add_u32 s{sD}, s{sE}, {28*1024}")
    I(f"s_mul_i32 s{sT0}, s{sW}, {64*272}")
    I(f"v_mul_u32_u24 v{vT3}, 272, v{vM}")
    I(f"v_lshl_add_u32 v{vT3}, v{vHB}, 4, v{vT3}")
    I(f"v_add_u32 v{vT3}, s{sT0}, v{vT3}")
    I(f"v_mul_u32_u24 v{vT4}, 272, v{vT1}")
    I(f"v_lshl_add_u32 v{vT4}, v{vT0}, 4, v{vT4}")
    I(f"v_add_u32 v{vT5}, {4*64*272}, v{vT4}")
    I(f"v_mul_u32_u24 v{vT2}, 896, v{vT1}")
    I(f"v_lshl_add_u32 v{vT2}, v{vT0}, 3, v{vT2}")
    I(f"s_mul_i32 s{sT0}, s{sMD}, {32*896}")
    I(f"s_lshl_b32 s{sT2}, s{sCB}, 7")
    I(f"s_add_u32 s{sT0}, s{sT0}, s{sT2}")
    I(f"s_add_u32 s{sT2}, s{sT0}, {32*896}")
    hold = {}

    def pw(mt, k):
        nt, q = k // 4, k % 4
        I(f"ds_write_b128 v{vT3}, {vr(DACC+(mt*2+nt)*16+4*q,4)} offset:{mt*32*272 + nt*128 + q*32}")

    def red_issue(mt, R):
        t = None
        for w in range(8):
            t = I(f"ds_read_b128 {vr(R+4*w,4)}, v{vT4 if w < 4 else vT5} offset:{(w%4)*64*272 + mt*32*272}")
        return t

    def red_fin(mt, R, t):
        g.wait(hold["thr"])
        U = R + 32
        for i in range(2):
            I(f"v_lshlrev_b32 v{U+2*i}, 16, v{HR+2*mt+i}")
            I(f"v_and_b32 v{U+2*i+1}, 0xffff0000, v{HR+2*mt+i}")
        g.wait(t)
        for k in (16, 8, 4):
            for i in range(k):
                I(f"v_add_f32 v{R+i}, v{R+i}, v{R+k+i}")
        for i in range(4):
            I(f"v_add_f32 v{R+i}, v{R+i}, v{U+i}")
        for i in range(2):
            I(f"v_cvt_pk_bf16_f32 v{R+4+i}, v{R+2*i}, v{R+2*i+1}")
        I(f"buffer_store_dwordx2 {vr(R+4,2)}, v{vT2}, {srd(sOUT)}, s{sT2 if mt else sT0} offen")
    for mt in range(2):
        for c in range(14):
            g.wait(ta[c, mt])
            for nt in range(2):
                a = DACC + (mt * 2 + nt) * 16
                I(f"v_mfma_f32_32x32x16_bf16 {vr(a,16)}, {vr(frag[c]+4*nt,4)}, {vr(abuf[c],4)}, {'0' if c == 0 else vr(a,16)}")
            if mt == 0:
                lda1(c, 1)
            elif 2 <= c < 10:
                pw(0, c - 2)
        if mt == 0:
            I(f"buffer_load_dwordx2 {vr(HR,2)}, v{vFLAG}, {srd(sWS)}, s{sE} offen sc1")
            hold["thr"] = I(f"buffer_load_dwordx2 {vr(HR+2,2)}, v{vFLAG}, {srd(sWS)}, s{sD} offen sc1")
            stamp("D early")
    stamp("D mfma")
    for k in range(8):
        pw(1, k)
    g.wait_all(vm=False)
    I("s_barrier")
    t0_ = red_issue(0, 16)
    t1_ = red_issue(1, 56)
    red_fin(0, 16, t0_)
    red_fin(1, 56, t1_)
    stamp("end")
    stamp("rt1", rt=True)
    if "span" in EXP:
        I(f"s_cmp_lg_u32 s{sW}, 7")
        I("s_cbranch_scc1 L_end")
        I("s_and_b32 s90, s2, 7")
        I("s_cmp_lg_u32 s90, 3")
        I("s_cbranch_scc1 L_end")
        I("s_waitcnt vmcnt(0)")
        I("s_memrealtime s[90:91]")
        I("s_memtime s[92:93]")
        I("s_waitcnt lgkmcnt(0)")
        I("s_mov_b64 exec, 1")
        I("s_not_b32 s86, s86")
        I("s_sub_u32 s92, s92, s100")
        I("v_mov_b32 v20, s86")
        I("v_mov_b32 v21, s90")
        I("v_mov_b32 v22, s92")
        I(f"buffer_atomic_umax v20, off, {srd(sDBG)}, 0 offset:4 sc1")
        I(f"buffer_atomic_umax v21, off, {srd(sDBG)}, 0 offset:8 sc1")
        I(f"buffer_atomic_umax v22, off, {srd(sDBG)}, 0 offset:12 sc1")


prologue()
two = phaseA()
twd = phaseB(two)
phaseCD(twd)
g.label("L_end")
I("s_endpgm")
for tl_ in TAILS:
    g.put(tl_)
g.insert_bg()
g.resolve_waits()
g.fix_hazards_fast()

hdr = open("cdna_kernels/" + NAME + ".s.ref").read().split("; Override launch geometry")[0]
out = hdr + f"""; @launch grid=(256,1,1) block=(512,1,1) lds=163840
.amdgcn_target "amdgcn-amd-amdhsa--gfx950"
.text
.globl {NAME}_kernel
.p2align 8
.type {NAME}_kernel,@function
{NAME}_kernel:
L_code_start:
{g.text()}
L_code_end:
.fill 64, 4, 0xbf800000
.section .rodata,"a"
.p2align 6
.amdhsa_kernel {NAME}_kernel
  .amdhsa_next_free_vgpr 256
  .amdhsa_next_free_sgpr 102
  .amdhsa_accum_offset 256
  .amdhsa_group_segment_fixed_size 0
  .amdhsa_kernarg_size 88
  .amdhsa_user_sgpr_count 2
  .amdhsa_user_sgpr_kernarg_segment_ptr 1
  .amdhsa_system_sgpr_workgroup_id_x 1
.end_amdhsa_kernel
"""
import subprocess, re as _re
open("_sz.s", "w").write(out.replace("CODE_LAST", "0x1000"))
subprocess.run(["clang", "-x", "assembler", "-target", "amdgcn-amd-amdhsa", "-mcpu=gfx950", "-c", "_sz.s", "-o", "_sz.o"], check=True)
_h = subprocess.run(["llvm-objdump", "-h", "_sz.o"], capture_output=True, text=True).stdout
_sz = int(_re.search(r"\.text\s+([0-9a-f]+)", _h).group(1), 16)
out = out.replace("CODE_LAST", hex(_sz - 768))
print("code bytes", _sz)
open(sys.argv[1], "w").write(out)
if STAMPS:
    open(sys.argv[1] + ".names", "w").write("\n".join(stamp_names))
print("instrs:", sum(1 for it in g.items if it.kind == "i"), "stamps:", nstamp[0])
```

```python
import sys, math, struct, os
sys.path.insert(0, "dev")
from gen import *

NAME = "sequential_preLN__linear_kernel_hedgehog__glu_gated_geglu__prompt"
STAMPS = int(sys.argv[2]) if len(sys.argv) > 2 else 0
EXP = sys.argv[3].split(",") if len(sys.argv) > 3 else []


def f32(x):
    return "0x%08x" % struct.unpack("<I", struct.pack("<f", x))[0]


WS_CNT = 0x0
WS_CS = 0x10000
WS_ST = 0x50000
WS_KVP = 0x100000
WS_O = 0x200000
WS_H = 0x400000
WS_HH = 0x600000
WS_STAMP = 0xE00000
CNT_KV, CNT_O, CNT_H, CNT_HH = 0, 1, 2, 3

sX, sWQKV, sWPHI, sWO, sWG, sWU, sWD, sOUT, sDBG, sWS = 8, 12, 16, 20, 24, 28, 32, 36, 40, 44
sG, sJ, sW = 48, 49, 50
sT0, sT1, sT2, sT3, sT4, sT5 = 51, 52, 53, 54, 55, 56
sW3, sWH = 57, 58
sA, sB, sC, sD, sE = 59, 60, 61, 62, 63
sSTAMP = 86
sGATH, sWB, sCW, sCL, sLOG = 88, 89, 90, 91, 92
sGB, sJB, sJC, sLI, sXC, sLW, sSTO = 93, 94, 95, 96, 97, 98, 99
OOB = 0x7ff00000
sBG, sWOB, sKVS, sOS, sHS, sSS, sHHS = 68, 70, 71, 72, 73, 74, 75


def srd(r):
    return f"s[{r}:{r+3}]"


def vr(a, n=1):
    return f"v{a}" if n == 1 else f"v[{a}:{a+n-1}]"


def ar(a, n=1):
    return f"a{a}" if n == 1 else f"a[{a}:{a+n-1}]"


g = Gen()
I = g.I
nstamp = [0]
stamp_names = []

vLANE, vG, vM16 = 1, 2, 3
vL16 = 4
vT0, vT1, vT2, vT3, vT4, vT5 = 5, 6, 7, 8, 9, 10
vFLAG, vONE, vCNT, vINIT, vDMY = 11, 12, 13, 14, 15


DBGS = ["x stats", "wv ready", "kv stored", "o stored", "h stored", "h flag", "slot55", "hh stored", "hh flag", "end"]
DBGW = [1, 2, 3, 5, 6, 7, 9, 10, 11, 13]


def stamp(name="", rt=False):
    if "dbg" in EXP and name in DBGS:
        lab = g.newlabel("L_st")
        I(f"s_cmp_lg_u32 s2, 69")
        I(f"s_cbranch_scc1 {lab}")
        I(f"s_cmp_lg_u32 s{sW}, 7")
        I(f"s_cbranch_scc1 {lab}")
        g.cond_begin()
        I(f"s_memtime s[86:87]")
        I("s_waitcnt lgkmcnt(0)")
        I(f"s_sub_u32 s86, s86, s100")
        I(f"v_mov_b32 v{vCNT}, s86")
        I(f"buffer_store_dword v{vCNT}, off, {srd(sDBG)}, 0 offset:{4*DBGW[DBGS.index(name)]}")
        g.cond_end()
        g.label(lab)
    return


UNIT = 14336
LDS_WK = 8 * UNIT
LDS_KVF = 11 * UNIT
LDS_CS = LDS_KVF + 4096
LDS_FLG = LDS_CS + 1024
LDS_WPL = 10 * UNIT + 8192
LDS_KV2 = 8 * UNIT + 24576 + 4096
LDS_BSCR = 6 * UNIT


def prologue():
    I("s_cmp_ge_u32 s2, 256")
    I("s_cbranch_scc1 L_end")
    I("s_setprio 3")
    I("s_memtime s[100:101]")
    if "span" in EXP:
        I("s_memrealtime s[86:87]")
        I("s_memtime s[100:101]")
    I(f"s_load_dwordx2 s[{sX}:{sX+1}], s[0:1], 0")
    I("s_getpc_b64 s[4:5]")
    I(f"v_lshlrev_b32 v{vINIT}, 7, v0")
    I(f"s_and_b32 s{sT5}, s2, 24")
    I(f"s_cmp_eq_u32 s{sT5}, 0")
    I(f"s_cselect_b32 s{sT5}, CODE_LAST, 0")
    I(f"v_min_u32 v{vINIT}, s{sT5}, v{vINIT}")
    if "cp0" in EXP:
        I(f"global_load_dword v{vDMY}, v{vINIT}, s[4:5]")
    I("s_load_dwordx16 s[64:79], s[0:1], 0")
    I("s_load_dwordx4 s[80:83], s[0:1], 64")
    I("s_load_dwordx2 s[84:85], s[0:1], 80")
    I(f"v_and_b32 v{vLANE}, 63, v0")
    I(f"v_lshrrev_b32 v{vT0}, 6, v0")
    I(f"v_readfirstlane_b32 s{sW}, v{vT0}")
    I(f"v_lshrrev_b32 v{vG}, 4, v{vLANE}")
    I(f"s_bfe_u32 s{sT0}, s2, 0x20001")
    I(f"s_lshl_b32 s{sT0}, s{sT0}, 2")
    I(f"s_bfe_u32 s{sT1}, s2, 0x20003")
    I(f"s_add_u32 s{sG}, s{sT0}, s{sT1}")
    I(f"s_mov_b32 s{sX+2}, 1835008")
    I(f"s_mov_b32 s{sX+3}, 0x20000")
    I(f"v_lshrrev_b32 v{vT0}, 3, v{vLANE}")
    I(f"v_mul_u32_u24 v{vT0}, 896, v{vT0}")
    I(f"v_and_b32 v{vT1}, 7, v{vLANE}")
    I(f"v_xor_b32 v{vT3}, v{vT1}, v{vG}")
    I(f"v_lshl_add_u32 v{vXA0}, v{vT3}, 4, v{vT0}")
    I(f"v_xor_b32 v{vT3}, 4, v{vT3}")
    I(f"v_lshl_add_u32 v{vXA1}, v{vT3}, 4, v{vT0}")
    I(f"s_lshl_b32 s{sA}, s{sG}, 3")
    I(f"s_add_u32 s{sA}, s{sA}, s{sW}")
    I(f"s_mul_i32 s{sB}, s{sA}, {16*896}")
    I(f"s_add_u32 s{sC}, s{sB}, {8*896}")
    I(f"s_mul_i32 s{sLW}, s{sW}, {UNIT}")
    I(f"s_and_b32 s{sT2}, s2, 1")
    I(f"s_lshl_b32 s{sT3}, s{sT2}, 3")
    I(f"s_lshr_b32 s{sT4}, s2, 5")
    I(f"s_add_u32 s{sJ}, s{sT3}, s{sT4}")
    I(f"s_lshl_b32 s{sCL}, s{sW}, 10")
    I(f"v_lshrrev_b32 v{vT0}, 2, v{vLANE}")
    I(f"v_mul_u32_u24 v{vT0}, 2688, v{vT0}")
    I(f"v_and_b32 v{vT1}, 3, v{vLANE}")
    I(f"v_and_b32 v{vT2}, 2, v{vG}")
    I(f"v_xor_b32 v{vT1}, v{vT1}, v{vT2}")
    I(f"v_lshl_add_u32 v{vWA}, v{vT1}, 4, v{vT0}")
    I(f"s_mul_i32 s{sWB}, s{sJ}, 56")
    I(f"s_and_b32 s{sT1}, s{sJ}, 1")
    I(f"s_lshl_b32 s{sT1}, s{sT1}, 3")
    I(f"s_sub_u32 s{sWB}, s{sWB}, s{sT1}")
    I(f"s_mul_i32 s{sD}, s{sW}, {16*2688}")
    I(f"s_add_u32 s{sD}, s{sD}, s{sWB}")
    I(f"s_mov_b32 s{sWQKV+2}, 1204224")
    I(f"s_mov_b32 s{sWQKV+3}, 0x20000")
    if "t0" in EXP:
        I(f"s_lshr_b32 s{sLI}, s2, 3")
        I(f"s_mul_i32 s{sT2}, s{sLI}, {14*2688}")
        I(f"s_and_b32 s{sT3}, s2, 1")
        I(f"s_mul_i32 s{sT3}, s{sT3}, 384")
        I(f"s_add_u32 s{sT2}, s{sT2}, s{sT3}")
        I(f"s_mul_i32 s{sT3}, s{sW}, 896")
        I(f"s_add_u32 s{sT2}, s{sT2}, s{sT3}")
        I(f"s_cmp_ge_u32 s{sW}, 3")
        I(f"s_cselect_b32 s{sT3}, {OOB}, 0")
        I(f"s_add_u32 s{sT2}, s{sT2}, s{sT3}")
        I(f"v_lshrrev_b32 v{vT0}, 2, v{vLANE}")
        I(f"v_min_u32 v{vT0}, 13, v{vT0}")
        I(f"v_mul_u32_u24 v{vT0}, 2688, v{vT0}")
        I(f"v_and_b32 v{vT1}, 3, v{vLANE}")
        I(f"v_lshl_add_u32 v{vT4}, v{vT1}, 7, v{vT0}")
        I(f"s_mul_i32 s{sT4}, s{sT0}, 114688")
        I(f"s_mul_i32 s{sT5}, s{sLI}, 14336")
        I(f"s_add_u32 s{sT4}, s{sT4}, s{sT5}")
        I(f"s_sub_u32 s{sT5}, s{sW}, 3")
        I(f"s_cmp_lt_u32 s{sT5}, 2")
        I(f"s_cselect_b32 s{sT3}, 0, {OOB}")
        I(f"s_mul_i32 s{sT5}, s{sT5}, 7168")
        I(f"s_and_b32 s{sT5}, s{sT5}, 0x3fff")
        I(f"s_add_u32 s{sT4}, s{sT4}, s{sT5}")
        I(f"s_add_u32 s{sT4}, s{sT4}, s{sT3}")
        I(f"v_min_u32 v{vT5}, 55, v{vLANE}")
        I(f"v_lshlrev_b32 v{vT5}, 7, v{vT5}")
        I(f"s_mov_b32 s{sWQKV+2}, 1204224")
        I(f"s_mov_b32 s{sWQKV+3}, 0x20000")
    if "m0" in EXP:
        I(f"s_mul_i32 s{sT2}, s2, {56*128}")
        I(f"s_cmp_eq_u32 s{sW}, 0")
        I(f"s_cselect_b32 s{sT3}, 0, {OOB}")
        I(f"s_add_u32 s{sT2}, s{sT2}, s{sT3}")
        I(f"s_mul_i32 s{sT4}, s2, {37*128}")
        I(f"s_cmp_eq_u32 s{sW}, 1")
        I(f"s_cselect_b32 s{sT3}, 0, {OOB}")
        I(f"s_add_u32 s{sT4}, s{sT4}, s{sT3}")
        I(f"v_min_u32 v{vT4}, 55, v{vLANE}")
        I(f"v_lshlrev_b32 v{vT4}, 7, v{vT4}")
        I(f"v_min_u32 v{vT5}, 36, v{vLANE}")
        I(f"v_lshlrev_b32 v{vT5}, 7, v{vT5}")
    I("s_waitcnt lgkmcnt(0)")
    I(f"s_mov_b64 s[{sWQKV}:{sWQKV+1}], s[66:67]")
    if "m0" in EXP:
        I(f"buffer_load_dword v{vDMY}, v{vT4}, {srd(sX)}, s{sT2} offen")
        I(f"buffer_load_dword v{vDMY}, v{vT5}, {srd(sWQKV)}, s{sT4} offen")
    if "t0" in EXP:
        I(f"buffer_load_dword v{vDMY}, v{vT5}, {srd(sX)}, s{sT4} offen")
        I(f"buffer_load_dword v{vDMY}, v{vT4}, {srd(sWQKV)}, s{sT2} offen")


def prologue2():
    I(f"v_and_b32 v{vM16}, 15, v{vLANE}")
    I(f"v_lshlrev_b32 v{vL16}, 4, v{vLANE}")
    I(f"v_mov_b32 v{vONE}, 1")
    I(f"s_and_b32 s{sXC}, s2, 7")
    I(f"s_lshr_b32 s{sLI}, s2, 3")
    I(f"s_and_b32 s{sT2}, s{sXC}, 1")
    I(f"s_lshl_b32 s{sT3}, s{sT2}, 3")
    I(f"s_lshr_b32 s{sT4}, s{sLI}, 2")
    I(f"s_add_u32 s{sJ}, s{sT3}, s{sT4}")
    I(f"s_lshl_b32 s{sGB}, s{sXC}, 1")
    I(f"s_and_b32 s{sT5}, s{sLI}, 1")
    I(f"s_add_u32 s{sGB}, s{sGB}, s{sT5}")
    I(f"s_lshr_b32 s{sJB}, s{sLI}, 1")
    I(f"s_mul_i32 s{sJC}, s{sT2}, 7")
    I(f"s_add_u32 s{sJC}, s{sJC}, s{sT4}")
    I(f"s_cmp_eq_u32 s{sT4}, 7")
    I(f"s_cselect_b32 s{sJC}, 15, s{sJC}")
    I(f"s_and_b32 s{sW3}, s{sW}, 3")
    I(f"s_lshr_b32 s{sWH}, s{sW}, 2")
    I(f"s_lshl_b32 s{sCL}, s{sW}, 10")
    for r, p, n in ((sWQKV, 66, 1204224), (sWPHI, 68, 25088), (sWO, 70, 401408),
                    (sWG, 74, 1605632), (sWU, 76, 1605632), (sWD, 78, 1605632), (sOUT, 80, 1835008),
                    (sDBG, 82, 256), (sWS, 84, 0x10000000)):
        I(f"s_mov_b64 s[{r}:{r+1}], s[{p}:{p+1}]")
        I(f"s_mov_b32 s{r+2}, {n}")
        I(f"s_mov_b32 s{r+3}, 0x20000")
    if STAMPS:
        I(f"s_lshl_b32 s{sSTO}, s2, 3")
        I(f"s_add_u32 s{sSTO}, s{sSTO}, s{sW}")
        I(f"s_lshl_b32 s{sSTO}, s{sSTO}, 7")
        I(f"s_add_u32 s{sSTO}, s{sSTO}, {WS_STAMP}")


POLL_MAX = 200000


def poll(srdreg, voff, target):
    lp, ld = g.newlabel("L_poll"), g.newlabel("L_pdone")
    I(f"s_mov_b32 s{sT5}, 0")
    g.label(lp)
    I(f"buffer_load_dword v{vFLAG}, v{voff}, {srd(srdreg)}, 0 offen sc1")
    I("s_waitcnt vmcnt(0)")
    I(f"v_readfirstlane_b32 s{sT4}, v{vFLAG}")
    I(f"s_add_u32 s{sT5}, s{sT5}, 1")
    I(f"s_cmp_ge_u32 s{sT5}, {POLL_MAX}")
    I(f"s_cbranch_scc1 {ld}")
    I(f"s_cmp_lt_u32 s{sT4}, {target}")
    I(f"s_cbranch_scc1 {lp}")
    g.label(ld)


def signal(kind, sidx, toks, first=False):
    g.wait(*toks)
    I("s_barrier")
    lab = g.newlabel("L_sig")
    I(f"s_cmp_lg_u32 s{sW}, 0")
    I(f"s_cbranch_scc1 {lab}")
    g.cond_begin()
    I("s_mov_b64 exec, 1")
    if first:
        l2 = g.newlabel("L_ini")
        I(f"v_readfirstlane_b32 s{sT4}, v{vINIT}")
        I(f"s_cmp_lg_u32 s{sT4}, 0")
        I(f"s_cbranch_scc1 {l2}")
        I(f"v_mov_b32 v{vCNT}, 0")
        poll(sDBG, vCNT, 1)
        g.label(l2)
    I(f"s_lshl_b32 s{sT0}, s{sidx}, 8")
    I(f"s_add_u32 s{sT0}, s{sT0}, {WS_CNT + kind * 4096}")
    I(f"v_mov_b32 v{vCNT}, s{sT0}")
    I(f"buffer_atomic_add v{vONE}, v{vCNT}, {srd(sWS)}, 0 offen sc1")
    I("s_mov_b64 exec, -1")
    g.cond_end()
    g.label(lab)


def waitflag(kind, sidx, target=16):
    lab = g.newlabel("L_w")
    I(f"s_cmp_lg_u32 s{sW}, 0")
    I(f"s_cbranch_scc1 {lab}")
    g.cond_begin()
    I("s_mov_b64 exec, 1")
    I(f"s_lshl_b32 s{sT0}, s{sidx}, 8")
    I(f"s_add_u32 s{sT0}, s{sT0}, {WS_CNT + kind * 4096}")
    I(f"v_mov_b32 v{vCNT}, s{sT0}")
    poll(sWS, vCNT, target)
    I("s_mov_b64 exec, -1")
    g.cond_end()
    g.label(lab)
    I("s_barrier")


def dma2(vaddr, srdreg, sbase, src_imm, lds_sreg, lds_imm, stmp=None):
    stmp = sT1 if stmp is None else stmp
    I(f"s_add_u32 m0, s{lds_sreg}, {lds_imm}")
    I(f"s_add_u32 s{stmp}, s{sbase}, {src_imm}")
    return I(f"buffer_load_dwordx4 v{vaddr}, {srd(srdreg)}, s{stmp} offen lds")


def xreduce(op, a, t, levels=(16, 32)):
    for lv in levels:
        I(f"v_mov_b32 v{t}, v{a}")
        I(f"v_permlane{lv}_swap_b32 v{a}, v{t}")
        I(f"{op} v{a}, v{a}, v{t}")


LOG2E = 1.4426950408889634

XF = 16
WR = 72
WPHI = 100
WPH2 = 108
SEL = 116
ACC = 124
ACCV = 132
WF = 140
TMP = 172
PH = 196
vXA0, vXA1, vWA, vTR, vXR0, vXR1, vCA = 204, 205, 206, 207, 208, 209, 252
vTRb, vTRc, vWOA = 211, 212, 213


def chain16(acc, rd, swap=False, depth=3, hook=None):
    toks = {}
    nb = depth + 1
    n = 14
    for c in range(depth):
        toks[c] = rd(c, WF + 8 * (c % nb))
    for c in range(n):
        if c + depth < n:
            toks[c + depth] = rd(c + depth, WF + 8 * ((c + depth) % nb))
        g.wait(toks[c])
        X = vr(XF + 4 * c, 4)
        for t in range(2):
            W = vr(WF + 8 * (c % nb) + 4 * t, 4)
            a = vr(acc + 4 * t, 4)
            C = a if c > 0 else "0"
            if swap:
                I(f"v_mfma_f32_16x16x32_bf16 {a}, {X}, {W}, {C}")
            else:
                I(f"v_mfma_f32_16x16x32_bf16 {a}, {W}, {X}, {C}")
        if hook is not None:
            hook(c)


def featmap(acc, out):
    pk = TMP
    p = acc
    e = TMP + 4
    mx, mn, t0, t1 = TMP + 12, TMP + 13, TMP + 14, TMP + 15
    for i in range(4):
        I(f"v_cvt_pk_bf16_f32 v{pk+i}, v{acc+2*i}, v{acc+2*i+1}")
    I(f"v_mfma_f32_16x16x32_bf16 {vr(p,4)}, {vr(WPHI,4)}, {vr(pk,4)}, 0")
    I(f"v_mfma_f32_16x16x32_bf16 {vr(p+4,4)}, {vr(WPHI+4,4)}, {vr(pk,4)}, 0")
    I(f"v_max3_f32 v{mx}, v{p}, v{p+1}, v{p+2}")
    I(f"v_min3_f32 v{mn}, v{p}, v{p+1}, v{p+2}")
    for i in (3, 5):
        I(f"v_max3_f32 v{mx}, v{mx}, v{p+i}, v{p+i+1}")
        I(f"v_min3_f32 v{mn}, v{mn}, v{p+i}, v{p+i+1}")
    for lv in (16, 32):
        I(f"v_mov_b32 v{t0}, v{mx}")
        I(f"v_mov_b32 v{t1}, v{mn}")
        I(f"v_permlane{lv}_swap_b32 v{mx}, v{t0}")
        I(f"v_permlane{lv}_swap_b32 v{mn}, v{t1}")
        I(f"v_max_f32 v{mx}, v{mx}, v{t0}")
        I(f"v_min_f32 v{mn}, v{mn}, v{t1}")
    I(f"v_mul_f32 v{mx}, {f32(-LOG2E)}, v{mx}")
    I(f"v_mul_f32 v{mn}, {f32(LOG2E)}, v{mn}")
    e2 = TMP + 16
    for i in range(7):
        I(f"v_fma_f32 v{e+i}, v{p+i}, s{sLOG}, v{mx}")
        I(f"v_fma_f32 v{e2+i}, -v{p+i}, s{sLOG}, v{mn}")
    for i in range(7):
        I(f"v_exp_f32 v{e+i}, v{e+i}")
        I(f"v_exp_f32 v{e2+i}, v{e2+i}")
    I(f"v_add_f32 v{mx}, v{e}, v{e+1}")
    I(f"v_add_f32 v{mn}, v{e2}, v{e2+1}")
    for i in range(2, 7):
        I(f"v_add_f32 v{mx}, v{mx}, v{e+i}")
        I(f"v_add_f32 v{mn}, v{mn}, v{e2+i}")
    for lv in (16, 32):
        I(f"v_mov_b32 v{t0}, v{mx}")
        I(f"v_mov_b32 v{t1}, v{mn}")
        I(f"v_permlane{lv}_swap_b32 v{mx}, v{t0}")
        I(f"v_permlane{lv}_swap_b32 v{mn}, v{t1}")
        I(f"v_add_f32 v{mx}, v{mx}, v{t0}")
        I(f"v_add_f32 v{mn}, v{mn}, v{t1}")
    I(f"v_rcp_f32 v{mx}, v{mx}")
    I(f"v_rcp_f32 v{mn}, v{mn}")
    for i in range(7):
        I(f"v_mul_f32 v{e+i}, v{e+i}, v{mx}")
        I(f"v_mul_f32 v{e2+i}, v{e2+i}, v{mn}")
    for i in range(3):
        I(f"v_cvt_pk_bf16_f32 v{out+i}, v{e+2*i}, v{e+2*i+1}")
        I(f"v_cvt_pk_bf16_f32 v{out+4+i}, v{e2+2*i}, v{e2+2*i+1}")
    I(f"v_cvt_pk_bf16_f32 v{out+3}, v{e+6}, 0")
    I(f"v_cvt_pk_bf16_f32 v{out+7}, v{e2+6}, 0")


def c_batch(mat, dbl, n0, n1, lds_base):
    t = None
    assert n0 % 8 == 0 and n1 % 8 == 0
    for i in range(n0 // 8, n1 // 8):
        t = dma2(vCA, sWG if mat == 0 else sWU, sCW, i * 8 * 8 * 3584 + dbl * 128, sCL, lds_base + (i * 8 - n0) * 1024)
    return t


def c_bg(mat, dbl, n0, n1, lds_base, after, gap=150):
    t = None
    for i in range(n0 // 8, n1 // 8):
        g.begin()
        t = dma2(vCA, sWG if mat == 0 else sWU, sCW, i * 8 * 8 * 3584 + dbl * 128, sCL, lds_base + (i * 8 - n0) * 1024, stmp=sBG)
        g.bg_add(g.end(), after, gap)
        NBG[0] += 1
    return t


NBG = [0]
TWD = {}
NWDBG = [0]


def bg(fn, after=None, gap=150):
    g.begin()
    r = fn()
    g.bg_add(g.end(), after, gap)
    NBG[0] += 1
    return r


def flush():
    g.mark(f"flush:{NBG[0]}")


def check_loop(issue, regs, tmp, body=None):
    lp, ld = g.newlabel("L_dp"), g.newlabel("L_dpd")
    I(f"s_mov_b32 s{sT5}, 0")
    g.label(lp)
    toks = issue()
    if body is not None:
        body(toks)
    g.wait(toks[-1])
    rs = list(regs)
    if len(rs) == 1:
        I(f"v_cmp_eq_u32 vcc, -1, v{rs[0]}")
    else:
        first = True
        acc = None
        while rs:
            if acc is None:
                if len(rs) >= 3:
                    I(f"v_max3_u32 v{tmp}, v{rs[0]}, v{rs[1]}, v{rs[2]}")
                    rs = rs[3:]
                else:
                    I(f"v_max_u32 v{tmp}, v{rs[0]}, v{rs[1]}")
                    rs = rs[2:]
                acc = tmp
            elif len(rs) >= 2:
                I(f"v_max3_u32 v{tmp}, v{tmp}, v{rs[0]}, v{rs[1]}")
                rs = rs[2:]
            else:
                I(f"v_max_u32 v{tmp}, v{tmp}, v{rs[0]}")
                rs = rs[1:]
        I(f"v_cmp_eq_u32 vcc, -1, v{tmp}")
    I(f"s_add_u32 s{sT5}, s{sT5}, 1")
    I(f"s_cmp_ge_u32 s{sT5}, {POLL_MAX}")
    I(f"s_cbranch_scc1 {ld}")
    I(f"s_cmp_lg_u64 vcc, 0")
    I(f"s_cbranch_scc1 {lp}")
    g.label(ld)


def sent_check(regs, tmp):
    rs = list(regs)
    acc = None
    while rs:
        if acc is None:
            if len(rs) >= 3:
                I(f"v_max3_u32 v{tmp}, v{rs[0]}, v{rs[1]}, v{rs[2]}")
                rs = rs[3:]
            else:
                I(f"v_max_u32 v{tmp}, v{rs[0]}, v{rs[1]}")
                rs = rs[2:]
            acc = tmp
        elif len(rs) >= 2:
            I(f"v_max3_u32 v{tmp}, v{tmp}, v{rs[0]}, v{rs[1]}")
            rs = rs[2:]
        else:
            I(f"v_max_u32 v{tmp}, v{tmp}, v{rs[0]}")
            rs = rs[1:]
    I(f"v_cmp_eq_u32 vcc, -1, v{tmp}")


TAILS = []


def spec_load(issue, regs, tmp, body=None, filler=None):
    lr, lb = g.newlabel("L_sr"), g.newlabel("L_sb")
    toks = issue()
    if filler is not None:
        filler()
    if body is not None:
        body(toks)
    g.wait(toks[-1])
    sent_check(regs, tmp)
    I(f"s_cmp_lg_u64 vcc, 0")
    I(f"s_cbranch_scc1 {lr}")
    g.label(lb)
    g.begin()
    g.label(lr)
    check_loop(issue, regs, tmp, body)
    I(f"s_branch {lb}")
    TAILS.append(g.end())


def c_setup():
    I(f"v_lshrrev_b32 v{vT0}, 3, v{vLANE}")
    I(f"v_mul_u32_u24 v{vT1}, 3584, v{vT0}")
    I(f"v_and_b32 v{vT2}, 1, v{vG}")
    I(f"v_lshlrev_b32 v{vT2}, 2, v{vT2}")
    I(f"v_and_b32 v{vCA}, 7, v{vLANE}")
    I(f"v_xor_b32 v{vCA}, v{vCA}, v{vT2}")
    I(f"v_lshl_add_u32 v{vCA}, v{vCA}, 4, v{vT1}")
    I(f"s_cmp_ge_u32 s{sJC}, 14")
    I(f"s_cselect_b32 s{sT0}, {OOB}, 0")
    I(f"v_add_u32 v{vCA}, s{sT0}, v{vCA}")
    I(f"s_mul_i32 s{sCW}, s{sW}, {8*3584}")
    I(f"s_lshl_b32 s{sT0}, s{sJC}, 8")
    I(f"s_add_u32 s{sCW}, s{sCW}, s{sT0}")


def touch1():
    I(f"s_mul_i32 s{sT0}, s{sLI}, {98*128}")
    I(f"s_mul_i32 s{sT1}, s{sW}, {13*128}")
    I(f"s_add_u32 s{sT0}, s{sT0}, s{sT1}")
    I(f"v_lshlrev_b32 v{vT0}, 7, v{vLANE}")
    I(f"v_mov_b32 v{vT2}, {OOB}")
    I(f"v_cmp_gt_u32 vcc, 13, v{vLANE}")
    I(f"v_cndmask_b32 v{vT0}, v{vT2}, v{vT0}, vcc")
    I(f"buffer_load_dword v{vDMY}, v{vT0}, {srd(sWO)}, s{sT0} offen")
    I(f"s_lshr_b32 s{sT0}, s{sW}, 1")
    I(f"s_lshl_b32 s{sT2}, s{sT0}, 2")
    I(f"s_mul_i32 s{sT0}, s{sT0}, {4*3584}")
    I(f"s_mul_i32 s{sT1}, s{sLI}, {14*3584}")
    I(f"s_add_u32 s{sT0}, s{sT0}, s{sT1}")
    I(f"s_and_b32 s{sT1}, s{sXC}, 1")
    I(f"s_mul_i32 s{sT1}, s{sT1}, 1792")
    I(f"s_add_u32 s{sT0}, s{sT0}, s{sT1}")
    I(f"v_mul_u32_u24 v{vT0}, 3584, v{vG}")
    I(f"v_lshl_add_u32 v{vT0}, v{vM16}, 7, v{vT0}")
    I(f"v_cmp_gt_u32 vcc, 14, v{vM16}")
    I(f"v_cndmask_b32 v{vT0}, v{vT2}, v{vT0}, vcc")
    I(f"v_add_u32 v{vT1}, s{sT2}, v{vG}")
    I(f"v_cmp_gt_u32 vcc, 14, v{vT1}")
    I(f"v_cndmask_b32 v{vT0}, v{vT2}, v{vT0}, vcc")
    I(f"buffer_load_dword v{vDMY}, v{vT0}, s[4:7], s{sT0} offen")


def touch2(t1=None, dst=247):
    t1 = vT1 if t1 is None else t1
    I(f"s_mul_i32 s{sT2}, s{sLI}, {392*128}")
    I(f"s_mul_i32 s{sT1}, s{sW}, {49*128}")
    I(f"s_add_u32 s{sT2}, s{sT2}, s{sT1}")
    I(f"v_min_u32 v{t1}, 48, v{vLANE}")
    I(f"v_lshlrev_b32 v{t1}, 7, v{t1}")
    I(f"buffer_load_dword v{dst}, v{t1}, {srd(sWD)}, s{sT2} offen")


TP_N = [0]
sTCH = 3
vTCH, vTCD = 96 + 3, 96 + 2


def tpiece(addr=None, dst=None):
    if "tp" not in EXP or TP_N[0] >= 7:
        return
    k = TP_N[0]
    TP_N[0] += 1
    a = vTCH if addr is None else addr
    d = vTCD if dst is None else dst
    if k == 0:
        I(f"s_mul_i32 s{sTCH}, s{sLI}, {392*128}")
        I(f"s_mul_i32 s{sBG}, s{sW}, {49*128}")
        I(f"s_add_u32 s{sTCH}, s{sTCH}, s{sBG}")
    I(f"v_min_u32 v{a}, 6, v{vLANE}")
    I(f"v_lshlrev_b32 v{a}, 7, v{a}")
    I(f"buffer_load_dword v{d}, v{a}, {srd(sWD)}, s{sTCH} offen offset:{(k % 4) * 896}")
    if k == 3:
        I(f"s_add_u32 s{sTCH}, s{sTCH}, 3584")


def mall_touch():
    I(f"s_mov_b64 s[4:5], s[{sWG}:{sWG+1}]")
    for w_, r in ((1, sWU), (2, sWD), (3, sWO)):
        I(f"s_cmp_eq_u32 s{sW}, {w_}")
        I(f"s_cselect_b32 s4, s{r}, s4")
        I(f"s_cselect_b32 s5, s{r+1}, s5")
    I(f"s_mov_b32 s6, 1605632")
    I(f"s_cmov_b32 s6, 401408")
    I(f"s_mov_b32 s7, 0x20000")
    I(f"s_mov_b32 s{sT0}, 49")
    I(f"s_cmov_b32 s{sT0}, 13")
    I(f"s_mul_i32 s{sT1}, s2, s{sT0}")
    I(f"s_lshl_b32 s{sT1}, s{sT1}, 7")
    I(f"s_sub_u32 s{sT0}, s{sT0}, 1")
    I(f"s_cmp_ge_u32 s{sW}, 4")
    I(f"s_cselect_b32 s{sT2}, {OOB}, 0")
    I(f"s_add_u32 s{sT1}, s{sT1}, s{sT2}")
    I(f"v_min_u32 v{vTCH}, s{sT0}, v{vLANE}")
    I(f"v_lshlrev_b32 v{vTCH}, 7, v{vTCH}")
    I(f"buffer_load_dword v{vTCD}, v{vTCH}, s[4:7], s{sT1} offen")


sNQ, sMTB, sCSS, sMTC = 76, 77, 78, 79
sINV = 69
vT8, vCSS, vHSA, vSSA = 210, 214, 215, 199 + 0


def addr_setup():
    I(f"s_lshl_b32 s{sGATH}, s{sJ}, 16")
    I(f"s_add_u32 s{sGATH}, s{sGATH}, {WS_KVP}")
    I(f"s_lshl_b32 s{sKVS}, s{sG}, 12")
    I(f"s_add_u32 s{sKVS}, s{sKVS}, s{sGATH}")
    I(f"s_lshl_b32 s{sOS}, s{sA}, 4")
    I(f"s_add_u32 s{sOS}, s{sOS}, s{sJ}")
    I(f"s_lshl_b32 s{sOS}, s{sOS}, 10")
    I(f"s_add_u32 s{sOS}, s{sOS}, {WS_O}")
    I(f"s_lshl_b32 s{sCSS}, s{sJC}, 4")
    I(f"s_add_u32 s{sCSS}, s{sCSS}, s{sG}")
    I(f"s_lshl_b32 s{sCSS}, s{sCSS}, 10")
    I(f"s_add_u32 s{sCSS}, s{sCSS}, {WS_CS}")
    I(f"s_and_b32 s{sNQ}, s{sJB}, 3")
    I(f"s_lshr_b32 s{sMTB}, s{sJB}, 2")
    I(f"s_lshl_b32 s{sT0}, s{sGB}, 2")
    I(f"s_add_u32 s{sMTB}, s{sMTB}, s{sT0}")
    I(f"s_mul_i32 s{sHS}, s{sMTB}, 28")
    I(f"s_lshl_b32 s{sT1}, s{sNQ}, 3")
    I(f"s_add_u32 s{sHS}, s{sHS}, s{sT1}")
    I(f"s_lshl_b32 s{sHS}, s{sHS}, 10")
    I(f"s_add_u32 s{sHS}, s{sHS}, {WS_H}")
    I(f"s_lshl_b32 s{sSS}, s{sMTB}, 2")
    I(f"s_add_u32 s{sSS}, s{sSS}, s{sNQ}")
    I(f"s_lshl_b32 s{sSS}, s{sSS}, 9")
    I(f"s_add_u32 s{sSS}, s{sSS}, {WS_ST}")
    I(f"s_lshl_b32 s{sMTC}, s{sG}, 2")
    I(f"s_add_u32 s{sMTC}, s{sMTC}, s{sW3}")
    I(f"s_mul_i32 s{sHHS}, s{sMTC}, {112*1024}")
    I(f"s_lshl_b32 s{sT0}, s{sJC}, 13")
    I(f"s_add_u32 s{sHHS}, s{sHHS}, s{sT0}")
    I(f"s_lshl_b32 s{sT0}, s{sWH}, 11")
    I(f"s_add_u32 s{sHHS}, s{sHHS}, s{sT0}")
    I(f"s_add_u32 s{sHHS}, s{sHHS}, {WS_HH}")
    I(f"s_cmp_ge_u32 s{sJC}, 14")
    I(f"s_cselect_b32 s{sT0}, {OOB}, 0")
    I(f"s_add_u32 s{sHHS}, s{sHHS}, s{sT0}")
    I(f"v_lshlrev_b32 v{vT8}, 3, v0")
    I(f"s_cmp_ge_u32 s{sW}, 4")
    I(f"s_cselect_b32 s{sT0}, {OOB}, 0")
    I(f"v_lshlrev_b32 v{vCSS}, 2, v0")
    I(f"v_add_u32 v{vCSS}, s{sT0}, v{vCSS}")
    I(f"s_lshl_b32 s{sT0}, s{sWH}, 12")
    I(f"s_lshl_b32 s{sT1}, s{sW3}, 7")
    I(f"s_add_u32 s{sT0}, s{sT0}, s{sT1}")
    I(f"s_lshl_b32 s{sT1}, s{sNQ}, 1")
    I(f"s_add_u32 s{sT1}, s{sT1}, s{sWH}")
    I(f"s_cmp_eq_u32 s{sT1}, 7")
    I(f"s_cselect_b32 s{sINV}, {OOB}, 0")
    I(f"s_add_u32 s{sT0}, s{sT0}, s{sINV}")
    I(f"v_lshrrev_b32 v{vT1}, 3, v{vLANE}")
    I(f"v_lshlrev_b32 v{vHSA}, 9, v{vT1}")
    I(f"v_and_b32 v{vT0}, 7, v{vLANE}")
    I(f"v_lshl_add_u32 v{vHSA}, v{vT0}, 4, v{vHSA}")
    I(f"v_add_u32 v{vHSA}, s{sT0}, v{vHSA}")


def stats_addr(dst, t0, t1):
    I(f"s_lshl_b32 s{sBG}, s{sW}, 6")
    I(f"v_lshlrev_b32 v{t0}, 3, v{vLANE}")
    I(f"v_add_u32 v{t0}, s{sBG}, v{t0}")
    I(f"v_mov_b32 v{t1}, {OOB}")
    I(f"v_cmp_gt_u32 vcc, 8, v{vLANE}")
    I(f"v_cndmask_b32 v{dst}, v{t1}, v{t0}, vcc")


def sentinels0():
    lab = g.newlabel("L_init")
    I(f"s_lshl_b32 s{sT0}, s2, 3")
    I(f"s_add_u32 s{sT0}, s{sT0}, s{sW}")
    I(f"s_cmp_lg_u32 s{sT0}, 7")
    I(f"s_cbranch_scc1 {lab}")
    g.cond_begin()
    I(f"v_lshlrev_b32 v{vT0}, 8, v{vLANE}")
    I(f"v_mov_b32 v{vT1}, 0")
    I(f"buffer_store_dword v{vT1}, v{vT0}, {srd(sWS)}, 0 offen sc1")
    g.cond_end()
    g.label(lab)
    SN = 216
    for i in range(4):
        I(f"v_mov_b32 v{SN+i}, -1")
    I(f"buffer_store_dwordx2 {vr(SN,2)}, v{vT8}, {srd(sWS)}, s{sKVS} offen sc1")
    I(f"buffer_store_dwordx4 {vr(SN,4)}, v{vL16}, {srd(sWS)}, s{sOS} offen sc1")


def sentinels():
    SN = 216
    I(f"buffer_store_dword v{SN}, v{vCSS}, {srd(sWS)}, s{sCSS} offen sc1")
    I(f"s_add_u32 s{sBG}, s{sHS}, s{sCL}")
    I(f"s_add_u32 s{sBG}, s{sBG}, s{sINV}")
    I(f"buffer_store_dwordx4 {vr(SN,4)}, v{vL16}, {srd(sWS)}, s{sBG} offen sc1")
    stats_addr(SN + 4, SN + 4, SN + 5)
    return I(f"buffer_store_dwordx2 {vr(SN,2)}, v{SN+4}, {srd(sWS)}, s{sSS} offen sc1")


def sent_hh(k):
    SN = 216
    I(f"s_add_u32 s{sBG}, s{sHHS}, {(k>>1)*4096 + (k&1)*1024}")
    return I(f"buffer_store_dwordx4 {vr(SN,4)}, v{vL16}, {srd(sWS)}, s{sBG} offen sc1")


def init_signal():
    lab = g.newlabel("L_is")
    I(f"s_cmp_lg_u32 s{sW}, 5")
    I(f"s_cbranch_scc1 {lab}")
    g.cond_begin()
    I("s_mov_b64 exec, 1")
    I(f"s_and_b32 s{sT0}, s2, 15")
    I(f"s_lshl_b32 s{sT0}, s{sT0}, 4")
    I(f"v_mov_b32 v{vCNT}, s{sT0}")
    I(f"buffer_atomic_add v{vONE}, v{vCNT}, {srd(sDBG)}, 0 offen sc1")
    I("s_mov_b64 exec, -1")
    g.cond_end()
    g.label(lab)


def init_check():
    lp, ld = g.newlabel("L_ic"), g.newlabel("L_icd")
    I(f"v_lshlrev_b32 v{vCNT}, 4, v{vM16}")
    I(f"s_mov_b32 s{sT5}, 0")
    g.label(lp)
    I("s_sleep 8")
    t = I(f"buffer_load_dword v{vINIT}, v{vCNT}, {srd(sDBG)}, 0 offen sc1")
    g.wait(t)
    I(f"v_cmp_gt_u32 vcc, 16, v{vINIT}")
    I(f"s_add_u32 s{sT5}, s{sT5}, 1")
    I(f"s_cmp_ge_u32 s{sT5}, {POLL_MAX}")
    I(f"s_cbranch_scc1 {ld}")
    I(f"s_cmp_lg_u64 vcc, 0")
    I(f"s_cbranch_scc1 {lp}")
    g.label(ld)


def phaseA():
    g.comment("==== phase A ====")
    if STAMPS:
        I("s_memrealtime s[96:97]")
        I("s_memtime s[94:95]")
        I("s_waitcnt lgkmcnt(0)")
        I("v_mov_b32 v250, s96")
        I("v_mov_b32 v251, s94")
    tx = {}
    for seg in range(7):
        for o in range(2):
            I(f"s_add_u32 m0, s{sLW}, {(o*7+seg)*1024 - seg*128}")
            tx[seg] = I(f"buffer_load_dwordx4 v{vXA1 if o else vXA0}, {srd(sX)}, s{sC if o else sB} offen offset:{seg*128} lds")
    I("s_setprio 2")
    if "cp0" not in EXP and "nocp" not in EXP:
        I(f"global_load_dword v{vDMY}, v{vINIT}, s[4:5]")
    for i in range(3):
        dma2(vWA, sWQKV, sD, 896 + i * 8 * 16 * 2688, sCL, LDS_WK + i * 8192)
    prologue2()
    if STAMPS:
        for nm, r in (("rt0", 250), ("start", 251)):
            g.cond_begin()
            I(f"buffer_store_dword v{r}, off, {srd(sWS)}, s{sSTO} offset:{4*nstamp[0]}")
            g.cond_end()
            nstamp[0] += 1
            stamp_names.append(nm)
    I(f"s_mov_b32 s{sLOG}, {f32(LOG2E)}")
    bgl = []
    bt = {}

    def bg_add(name, fn):
        bgl.append((name, fn))

    def bgq(n=1):
        for _ in range(n):
            if bgl:
                name, fn = bgl.pop(0)
                bt[name] = fn()

    def wk3():
        I(f"s_cmp_ge_u32 s{sW}, 4")
        I(f"s_cselect_b32 s{sT0}, {OOB}, 0")
        I(f"s_add_u32 s{sT0}, s{sT0}, s{sD}")
        dma2(vWA, sWQKV, sT0, 896 + 3 * 8 * 16 * 2688, sCL, LDS_WK + 3 * 8192)
        I(f"v_lshlrev_b32 v{vT0}, 4, v0")
        I(f"v_mov_b32 v{vT1}, {OOB}")
        I(f"v_cmp_gt_u32 vcc, 98, v0")
        I(f"v_cndmask_b32 v{vT0}, v{vT1}, v{vT0}, vcc")
        I(f"s_min_u32 s{sT0}, s{sCL}, 2048")
        I(f"s_add_u32 m0, s{sT0}, {LDS_WPL}")
        I(f"s_mul_i32 s{sT0}, s{sJ}, 1568")
        return I(f"buffer_load_dwordx4 v{vT0}, {srd(sWPHI)}, s{sT0} offen lds")
    bg_add("wk3", wk3)
    addr_setup()
    I(f"s_cmp_ge_u32 s{sW}, 4")
    I(f"s_cselect_b32 s{sE}, {(24-4)*16*2688}, {1792 + 24*16*2688}" if False else f"s_mov_b32 s{sE}, {1792 + 24*16*2688}")
    I(f"s_cmov_b32 s{sE}, {20*16*2688}")

    I(f"s_cselect_b32 s{sKC}, 10240, 0")
    I(f"s_max_u32 s{sKC}, s{sKC}, 3072")
    I(f"s_add_u32 s{sKC}, s{sKC}, s{sLW}")
    I(f"s_add_u32 s{sE}, s{sE}, s{sD}")

    def rawW(i):
        if i == 3:
            I(f"s_mov_b32 m0, s{sKC}")
            I("s_nop 0")
            return I(f"buffer_load_dwordx4 v{vWA}, {srd(sWQKV)}, s{sE} offen lds")
        off = 1792 + i * 8 * 16 * 2688 if i < 3 else (i - 4) * 8 * 16 * 2688
        return dma2(vWA, sWQKV, sD, off, sLW, i * 1024 if i < 3 else 10240 + (i - 3) * 1024)
    for i in range(4):
        bg_add(f"w{i}", lambda i=i: rawW(i))
    I(f"v_lshrrev_b32 v{vT0}, 3, v{vM16}")
    I(f"v_mul_u32_u24 v{vT0}, 7168, v{vT0}")
    I(f"v_add_u32 v{vT0}, s{sLW}, v{vT0}")
    I(f"v_and_b32 v{vT1}, 7, v{vM16}")
    I(f"v_lshl_add_u32 v{vT0}, v{vT1}, 7, v{vT0}")
    I(f"v_lshrrev_b32 v{vT1}, 1, v{vM16}")
    I(f"v_xor_b32 v{vT1}, v{vT1}, v{vG}")
    I(f"v_lshl_add_u32 v{vXR0}, v{vT1}, 4, v{vT0}")
    I(f"v_xor_b32 v{vXR1}, 64, v{vXR0}")
    I(f"v_bfe_u32 v{vT0}, v{vLANE}, 2, 2")
    I(f"v_lshl_add_u32 v{vT0}, v{vG}, 3, v{vT0}")
    I(f"v_lshlrev_b32 v{vT0}, 6, v{vT0}")
    I(f"v_and_b32 v{vT1}, 3, v{vLANE}")
    I(f"s_and_b32 s{sT1}, s{sJ}, 1")
    I(f"v_add_u32 v{vT1}, s{sT1}, v{vT1}")
    I(f"v_and_b32 v{vT2}, 1, v{vG}")
    I(f"v_lshlrev_b32 v{vT2}, 2, v{vT2}")
    I(f"v_xor_b32 v{vT1}, v{vT1}, v{vT2}")
    I(f"v_lshl_add_u32 v{vTR}, v{vT1}, 3, v{vT0}")
    I(f"v_lshrrev_b32 v{vT0}, 2, v{vM16}")
    I(f"v_and_b32 v{vT1}, 3, v{vM16}")
    I(f"v_cmp_eq_u32 vcc, v{vT0}, v{vG}")
    I(f"v_cndmask_b32 v{vT1}, 7, v{vT1}, vcc")
    I(f"v_mov_b32 v{vT3}, 0x3f80")
    I(f"v_mov_b32 v{vT4}, 0x3f800000")
    for i in range(2):
        I(f"v_cmp_eq_u32 vcc, {2*i}, v{vT1}")
        I(f"v_cndmask_b32 v{vT2}, 0, v{vT3}, vcc")
        I(f"v_cmp_eq_u32 vcc, {2*i+1}, v{vT1}")
        I(f"v_cndmask_b32 v{SEL+i}, v{vT2}, v{vT4}, vcc")
        I(f"v_mov_b32 v{SEL+6+i}, v{SEL+i}")
    for i in (2, 3, 4, 5):
        I(f"v_mov_b32 v{SEL+i}, 0")
    S1, S2 = ACC, ACC + 4
    for i in range(8):
        I(f"v_mov_b32 v{ACC+i}, 0")
    I(f"v_mov_b32 v{vT5}, 0x3f803f80")
    I(f"v_lshlrev_b32 v{vT0}, 2, v{vLANE}")
    I(f"v_add_u32 v{vT0}, {LDS_FLG}, v{vT0}")
    I(f"ds_write_b32 v{vT0}, v{ACC}")
    tw = {}
    if "tlb" in EXP:
        STR_ = int(os.environ.get("TLBS", "16"))
        I(f"v_lshlrev_b32 v{vT0}, {STR_}, v{vLANE}")
        lend = g.newlabel("L_tl")
        tb = [(sWO, 0), (sWG, 0), (sWU, 0), (sWD, 0), (sOUT, 0), (sWS, 0), (sWS, 0x400000), (sWS, 0x800000)]
        for w_, (r, off) in enumerate(tb):
            l2 = g.newlabel("L_tl")
            if w_ < 7:
                I(f"s_cmp_lg_u32 s{sW}, {w_}")
                I(f"s_cbranch_scc1 {l2}")
                g.cond_begin()
            I(f"s_mov_b32 s{sT0}, {off}")
            I(f"buffer_load_dword v{vDMY}, v{vT0}, {srd(r)}, s{sT0} offen")
            if w_ < 7:
                g.cond_end()
                I(f"s_branch {lend}")
                g.label(l2)
        g.label(lend)
    if "mt0" in EXP:
        mall_touch()
    sentinels0()
    bgq(1)
    for seg in range(7):
        g.wait(tx[seg])
        I(f"ds_read_b128 {vr(XF+8*seg,4)}, v{vXR0} offset:{seg*1024}")
        t = I(f"ds_read_b128 {vr(XF+8*seg+4,4)}, v{vXR1} offset:{seg*1024}")
        if seg in (1, 2, 3, 4):
            bgq()
        g.wait(t)
        for k in range(8):
            r = XF + 8 * seg + k
            I(f"v_dot2_f32_bf16 v{S1+k%4}, v{r}, v{vT5}, v{S1+k%4}")
            I(f"v_dot2_f32_bf16 v{S2+k%4}, v{r}, v{r}, v{S2+k%4}")
    I("s_setprio 1")
    stamp("x stats")
    I(f"v_add_f32 v{S1}, v{S1}, v{S1+1}")
    I(f"v_add_f32 v{S1+2}, v{S1+2}, v{S1+3}")
    I(f"v_add_f32 v{S2}, v{S2}, v{S2+1}")
    I(f"v_add_f32 v{S2+2}, v{S2+2}, v{S2+3}")
    I(f"v_add_f32 v{S1}, v{S1}, v{S1+2}")
    I(f"v_add_f32 v{S2}, v{S2}, v{S2+2}")
    for lv in (16, 32):
        I(f"v_mov_b32 v{S1+1}, v{S1}")
        I(f"v_mov_b32 v{S2+1}, v{S2}")
        I(f"v_permlane{lv}_swap_b32 v{S1}, v{S1+1}")
        I(f"v_permlane{lv}_swap_b32 v{S2}, v{S2+1}")
        I(f"v_add_f32 v{S1}, v{S1}, v{S1+1}")
        I(f"v_add_f32 v{S2}, v{S2}, v{S2+1}")
    I(f"v_mul_f32 v{S1}, {f32(1/448)}, v{S1}")
    I(f"v_mul_f32 v{S2}, {f32(1/448)}, v{S2}")
    I(f"v_fma_f32 v{S2}, -v{S1}, v{S1}, v{S2}")
    I(f"v_max_f32 v{S2}, 0, v{S2}")
    I(f"v_add_f32 v{S2}, {f32(1e-5)}, v{S2}")
    RS, NB = ACCV, ACCV + 2
    I(f"v_rsq_f32 v{RS}, v{S2}")
    I(f"v_mul_f32 v{NB}, v{S1}, v{RS}")
    I(f"v_sub_f32 v{NB}, 0, v{NB}")
    I(f"v_mov_b32 v{RS+1}, v{RS}")
    I(f"v_mov_b32 v{NB+1}, v{NB}")
    TP = WF
    CSR = 248
    tcs = tinit = None
    for k in range(0, 56, 8):
        for u in range(8):
            I(f"v_lshlrev_b32 v{TP+2*u}, 16, v{XF+k+u}")
            I(f"v_and_b32 v{TP+2*u+1}, 0xffff0000, v{XF+k+u}")
        for u in range(8):
            I(f"v_pk_fma_f32 {vr(TP+2*u,2)}, {vr(TP+2*u,2)}, {vr(RS,2)}, {vr(NB,2)}")
        for u in range(8):
            I(f"v_cvt_pk_bf16_f32 v{XF+k+u}, v{TP+2*u}, v{TP+2*u+1}")
    I("s_setprio 0")
    stamp("normalized")
    I(f"v_mul_u32_u24 v{vT0}, 224, v{vG}")
    I(f"v_add_u32 v{vT0}, {LDS_WPL}, v{vT0}")
    I(f"v_lshl_add_u32 v{TMP}, v{vM16}, 1, v{vT0}")
    I(f"v_lshrrev_b32 v{vT2}, 2, v{vM16}")
    I(f"v_sub_u32 v{vT2}, v{vM16}, v{vT2}")
    I(f"v_lshl_add_u32 v{vT2}, v{vT2}, 1, v{vT0}")
    I(f"v_add_u32 v{TMP+1}, 32, v{vT2}")
    I(f"v_mov_b32 v{vT1}, {LDS_WPL + 1600}")
    I(f"v_and_b32 v{vT2}, 3, v{vM16}")
    I(f"v_cmp_eq_u32 vcc, 3, v{vT2}")
    I(f"v_cndmask_b32 v{TMP+1}, v{TMP+1}, v{vT1}, vcc")
    I(f"v_cmp_eq_u32 vcc, 3, v{vG}")
    I(f"v_cndmask_b32 v{TMP+2}, v{TMP}, v{vT1}, vcc")
    I(f"v_cndmask_b32 v{TMP+3}, v{TMP+1}, v{vT1}, vcc")
    I(f"v_add_u32 v{vTRb}, {LDS_WK}, v{vTR}")
    I(f"v_xor_b32 v{vTRc}, 32, v{vTRb}")
    def cs_loads():
        I(f"s_and_b32 s{sT0}, s{sW}, 1")
        I(f"s_cmp_eq_u32 s{sT0}, 1")
        I(f"s_cselect_b32 s4, s{sWU}, s{sWG}")
        I(f"s_cselect_b32 s5, s{sWU+1}, s{sWG+1}")
        I(f"s_mov_b32 s6, 1605632")
        I(f"s_mov_b32 s7, 0x20000")
        I(f"s_lshl_b32 s{sT0}, s{sG}, 2")
        I(f"s_lshr_b32 s{sT1}, s{sW}, 1")
        I(f"s_add_u32 s{sT0}, s{sT0}, s{sT1}")
        I(f"s_mul_i32 s{sT0}, s{sT0}, {7*3584}")
        I(f"s_lshl_b32 s{sT1}, s{sJC}, 8")
        I(f"s_add_u32 s{sT0}, s{sT0}, s{sT1}")
        I(f"s_cmp_ge_u32 s{sJC}, 14")
        I(f"s_cselect_b32 s{sT1}, {OOB}, 0")
        I(f"v_lshlrev_b32 v{vXA0}, 2, v{vLANE}")
        I(f"v_add_u32 v{vXA0}, s{sT1}, v{vXA0}")
        for r in range(7):
            if r:
                I(f"s_add_u32 s{sT0}, s{sT0}, 3584")
            tcs_ = I(f"buffer_load_dword v{CSR+r}, v{vXA0}, s[4:7], s{sT0} offen")
        return tcs_

    def init_load():
        I(f"v_mov_b32 v{vCNT}, 0")
        return I(f"buffer_load_dword v{vINIT}, v{vCNT}, {srd(sDBG)}, 0 offen sc1")
    bg_add("sent", sentinels)
    bg_add("cs", cs_loads)
    for i in (4, 5, 6):
        bg_add(f"w{i}", lambda i=i: rawW(i))
    bgq(int(os.environ.get("PRE1", "2")))
    g.wait(bt["wk3"])
    g.wait_all(vm=False)
    I("s_barrier")
    init_signal()
    if "mt1" in EXP:
        mall_touch()
    for _ in range(int(os.environ.get("TPA", "2"))):
        tpiece()

    def rdk(c, dst):
        I(f"ds_read_b64_tr_b16 {vr(dst,2)}, v{vTRb} offset:{c*2048}")
        I(f"ds_read_b64_tr_b16 {vr(dst+2,2)}, v{vTRb} offset:{c*2048+256}")
        I(f"ds_read_b64_tr_b16 {vr(dst+4,2)}, v{vTRc} offset:{c*2048}")
        return I(f"ds_read_b64_tr_b16 {vr(dst+6,2)}, v{vTRc} offset:{c*2048+256}")

    tphi = None
    for u in range(2):
        for j in range(8):
            d0 = j if j < 4 else 16 + j - 4
            va = TMP + u + (2 if j >= 4 else 0)
            dst = (WPH2 if j & 1 else WPHI) + 4 * u + j // 2
            tphi = I(f"ds_read_u16 v{dst}, v{va} offset:{d0*56}")
    I(f"v_lshrrev_b32 v{vWOA}, 3, v{vLANE}")
    I(f"v_mul_u32_u24 v{vWOA}, 896, v{vWOA}")
    I(f"v_and_b32 v{vT1}, 7, v{vLANE}")
    I(f"v_lshlrev_b32 v{vT2}, 1, v{vG}")
    I(f"v_xor_b32 v{vT1}, v{vT1}, v{vT2}")
    I(f"v_lshl_add_u32 v{vWOA}, v{vT1}, 4, v{vWOA}")
    I(f"s_lshl_b32 s{sWOB}, s{sNQ}, 1")
    I(f"s_add_u32 s{sWOB}, s{sWOB}, s{sWH}")
    I(f"s_cmp_eq_u32 s{sWOB}, 7")
    I(f"s_cselect_b32 s{sT1}, {OOB}, 0")
    I(f"s_lshl_b32 s{sWOB}, s{sWOB}, 7")
    I(f"s_add_u32 s{sWOB}, s{sWOB}, s{sT1}")
    I(f"s_mul_i32 s{sT1}, s{sW3}, {112*896}")
    I(f"s_add_u32 s{sWOB}, s{sWOB}, s{sT1}")
    two = {}

    def wo_load(i):
        two[i] = dma2(vWOA, sWO, sWOB, i * 8 * 896, sLW, i * 1024, stmp=sBG)
    for i in range(4, 10):
        bg_add(f"wo{i}", lambda i=i: wo_load(i))
    KH = eval(os.environ.get('KH', '(2, 6, 10)'))
    chain16(ACC, rdk, hook=lambda c: bgq() if c in KH else None)
    for i in range(8):
        I(f"v_lshl_or_b32 v{WPHI+i}, v{WPH2+i}, 16, v{WPHI+i}")
    stamp("k chain")
    I(f"v_lshrrev_b32 v{vT0}, 1, v{vG}")
    I(f"v_mul_u32_u24 v{vT0}, {UNIT-1024}, v{vT0}")
    I(f"v_add_u32 v{vTRb}, v{vT0}, v{vTR}")
    I(f"v_xor_b32 v{vTRc}, 32, v{vTRb}")
    I(f"v_add_u32 v{vXR0}, 57344, v{vTRb}")
    I(f"v_add_u32 v{vXR1}, 57344, v{vTRc}")
    g.wait(bt['w3'])
    I("s_barrier")
    stamp("wv ready")
    if "mt2" in EXP:
        mall_touch()
    for _ in range(int(os.environ.get("TPB", "3"))):
        tpiece()

    def rdw(isq):
        def rd(c, dst):
            n0 = 2 * c
            if not isq:
                unit, off = n0 % 8, (n0 // 8) * 1024
            elif n0 < 24:
                unit, off = n0 % 8, 10240 + (1 + n0 // 8) * 1024
            else:
                unit, off = 4 + n0 - 24, 10240
            a0, a1 = (vTRb, vTRc) if unit < 4 else (vXR0, vXR1)
            off += (unit % 4) * UNIT
            I(f"ds_read_b64_tr_b16 {vr(dst,2)}, v{a0} offset:{off}")
            I(f"ds_read_b64_tr_b16 {vr(dst+2,2)}, v{a0} offset:{off+256}")
            I(f"ds_read_b64_tr_b16 {vr(dst+4,2)}, v{a1} offset:{off}")
            return I(f"ds_read_b64_tr_b16 {vr(dst+6,2)}, v{a1} offset:{off+256}")
        return rd

    g.begin()
    chain16(ACCV, rdw(False), swap=True, hook=lambda c: bgq() if c in eval(os.environ.get('VH', '(1,3,5,7,9,11,13)')) else None)
    main = g.end()
    g.begin()
    featmap(ACC, PH)
    for s_ in range(2):
        for u in range(2):
            I(f"v_mfma_f32_16x16x32_bf16 {vr(TMP+8*s_+4*u,4)}, {vr(PH+4*s_,4)}, {vr(SEL+4*u,4)}, 0")
    side = g.end()
    g.put(interleave(main, side, every=1, per=4))
    PT = PH
    for k in range(8):
        I(f"v_cvt_pk_bf16_f32 v{PT+k}, v{TMP+2*k}, v{TMP+2*k+1}")
    VF = ACC
    I(f"v_cmp_le_u32 vcc, 12, v{vM16}")
    for k in range(4):
        I(f"v_cvt_pk_bf16_f32 v{VF+k}, v{ACCV+2*k}, v{ACCV+2*k+1}")
    I(f"v_cndmask_b32 v{VF+2}, v{VF+2}, v{vT5}, vcc")
    I(f"v_cndmask_b32 v{VF+3}, v{VF+3}, v{vT5}, vcc")
    I(f"s_lshr_b32 s{sT0}, s{sW}, 1")
    I(f"s_lshl_b32 s{sT0}, s{sT0}, 10")
    I(f"s_and_b32 s{sT1}, s{sW}, 1")
    I(f"s_lshl_b32 s{sT1}, s{sT1}, 3")
    I(f"s_add_u32 s{sT0}, s{sT0}, s{sT1}")
    I(f"s_add_u32 s{sT0}, s{sT0}, {LDS_WK}")
    I(f"v_add_u32 v{vT0}, s{sT0}, v{vL16}")
    for k in range(4):
        I(f"ds_write_b64 v{vT0}, {vr(PT+2*k,2)} offset:{k*4096}")
    for k in range(2):
        I(f"ds_write_b64 v{vT0}, {vr(VF+2*k,2)} offset:{(4+k)*4096}")
    g.wait(bt['cs'])
    I(f"v_mov_b32 v{ACCV}, 0\nv_mov_b32 v{ACCV+1}, 0")
    for r in range(7):
        I(f"v_dot2_f32_bf16 v{ACCV}, v{CSR+r}, v{vT3}, v{ACCV}")
        I(f"v_dot2_f32_bf16 v{ACCV+1}, v{CSR+r}, v{vT4}, v{ACCV+1}")
    I(f"v_lshlrev_b32 v{vT1}, 3, v0")
    I(f"v_add_u32 v{vT1}, {LDS_KVF}, v{vT1}")
    I(f"ds_write_b64 v{vT1}, {vr(ACCV,2)}")
    I(f"s_lshl_b32 s{sT0}, s{sWH}, 1")
    I(f"s_and_b32 s{sT1}, s{sW}, 1")
    I(f"s_add_u32 s{sT0}, s{sT0}, s{sT1}")
    I(f"s_lshl_b32 s{sT0}, s{sT0}, 12")
    I(f"s_add_u32 s{sT0}, s{sT0}, {LDS_WK}")
    I(f"v_add_u32 v{vT0}, s{sT0}, v{vL16}")
    I(f"s_bfe_u32 s{sT0}, s{sW}, 0x10001")
    I(f"s_lshl_b32 s{sT0}, s{sT0}, 12")
    I(f"s_add_u32 s{sT0}, s{sT0}, {LDS_WK + 4*4096}")
    I(f"v_add_u32 v{vT1}, s{sT0}, v{vL16}")
    g.wait(bt['w6'])
    g.wait_all(vm=False)
    I("s_barrier")
    R = WF
    tk = {}
    for p in range(4):
        I(f"ds_read_b128 {vr(R+8*p,4)}, v{vT0} offset:{p*1024}")
        tk[p] = I(f"ds_read_b128 {vr(R+8*p+4,4)}, v{vT1} offset:{p*1024}")
    I(f"v_lshlrev_b32 v{vXA0}, 2, v0")
    I(f"v_and_b32 v{vXA0}, 1023, v{vXA0}")
    I(f"v_add_u32 v{vXA0}, {LDS_KVF}, v{vXA0}")
    I(f"ds_read2st64_b32 {vr(ACCV,2)}, v{vXA0} offset0:0 offset1:4")
    tq = I(f"ds_read2st64_b32 {vr(ACCV+2,2)}, v{vXA0} offset0:8 offset1:12")
    for p in range(4):
        g.wait(tk[p])
        I(f"v_mfma_f32_16x16x32_bf16 {vr(ACC,4)}, {vr(R+8*p,4)}, {vr(R+8*p+4,4)}, {'0' if p == 0 else vr(ACC,4)}")
    g.wait(tq)
    I(f"v_add_f32 v{ACCV}, v{ACCV}, v{ACCV+1}")
    I(f"v_add_f32 v{ACCV+2}, v{ACCV+2}, v{ACCV+3}")
    I(f"v_add_f32 v{ACCV}, v{ACCV}, v{ACCV+2}")
    I(f"v_cvt_pk_bf16_f32 v{ACC+4}, v{ACC}, v{ACC+1}")
    I(f"v_cvt_pk_bf16_f32 v{ACC+5}, v{ACC+2}, v{ACC+3}")
    I(f"buffer_store_dwordx2 {vr(ACC+4,2)}, v{vT8}, {srd(sWS)}, s{sKVS} offen sc1")
    I(f"buffer_store_dword v{ACCV}, v{vCSS}, {srd(sWS)}, s{sCSS} offen sc1")
    stamp("kv stored")
    if "mt3" in EXP:
        mall_touch()
    for _ in range(7):
        tpiece()
    if "t2a" in EXP:
        touch2(98, 99)
    I(f"v_lshlrev_b32 v{vCNT}, 4, v{vM16}")
    tini = I(f"buffer_load_dword v{vINIT}, v{vCNT}, {srd(sDBG)}, s{sCL} offen sc1")
    for i in range(4):
        bg_add(f"wo{i}", lambda i=i: wo_load(i))
    chain16(ACC, rdw(True), hook=lambda c: bgq() if c % 2 == 1 else None)
    bgq(99)
    c_bg(0, 0, 0, 56, 0, "qdone")
    c_bg(1, 0, 0, 24, 57344, "qdone")
    lr, lb = g.newlabel("L_ir"), g.newlabel("L_ib")
    I(f"s_cmp_lg_u32 s{sW}, 0")
    I(f"s_cbranch_scc1 {lb}")
    g.cond_begin()
    g.wait(tini)
    I(f"v_cmp_gt_u32 vcc, 16, v{vINIT}")
    I(f"s_cmp_lg_u64 vcc, 0")
    I(f"s_cbranch_scc1 {lr}")
    g.cond_end()
    g.label(lb)
    g.begin()
    g.label(lr)
    init_check()
    I(f"s_branch {lb}")
    TAILS.append(g.end())
    I("s_barrier")
    for i in range(10, 14):
        wo_load(i)
    featmap(ACC, PH)
    GR, R, AO, OS = 40, 96, 176, 184
    WOF = 112
    vB1, vB2, vB3 = 188, 189, 190
    vK0, vK1, vK2 = 191, 192, 193
    stamp("q done")

    I(f"s_lshl_b32 s{sT0}, s{sWH}, 15")
    I(f"s_lshl_b32 s{sT1}, s{sW3}, 10")
    I(f"s_add_u32 s{sGATH}, s{sGATH}, s{sT0}")
    I(f"s_add_u32 s{sGATH}, s{sGATH}, s{sT1}")

    def gat_issue():
        tl = []
        I(f"s_mov_b32 s{sT0}, s{sGATH}")
        for rb in range(8):
            if rb:
                I(f"s_add_u32 s{sT0}, s{sT0}, 4096")
            tl.append(I(f"buffer_load_dwordx4 {vr(GR+4*rb,4)}, v{vL16}, {srd(sWS)}, s{sT0} offen sc1"))
        return tl

    def gat_body(tl):
        for i in range(8):
            I(f"v_mov_b32 v{R+i}, 0")
        for rb in range(8):
            g.wait(tl[rb])
            for i in range(4):
                I(f"v_dot2_f32_bf16 v{R+2*i}, v{GR+4*rb+i}, v{vT3}, v{R+2*i}")
                I(f"v_dot2_f32_bf16 v{R+2*i+1}, v{GR+4*rb+i}, v{vT4}, v{R+2*i+1}")

    def wo_bounce():
        c_setup()
        d_setup()
        I(f"v_lshrrev_b32 v{vK0}, 2, v{vM16}")
        I(f"v_sub_u32 v{vK0}, v{vM16}, v{vK0}")
        I(f"v_and_b32 v{vT1}, 3, v{vM16}")
        I(f"v_cmp_eq_u32 vcc, 3, v{vT1}")
        I(f"v_cndmask_b32 v{vK0}, v{vK0}, 12, vcc")
        I(f"v_lshl_add_u32 v{vK0}, v{vG}, 4, v{vK0}")
        I(f"v_lshlrev_b32 v{vK0}, 4, v{vK0}")
        I(f"v_add_u32 v{vK0}, {LDS_KV2}, v{vK0}")
        I(f"v_add_u32 v{vK1}, {LDS_KV2}, v{vL16}")
        I(f"v_and_b32 v{vK2}, 31, v{vLANE}")
        I(f"v_lshlrev_b32 v{vK2}, 5, v{vK2}")
        I(f"v_lshrrev_b32 v{vT1}, 5, v{vLANE}")
        I(f"v_lshl_add_u32 v{vK2}, v{vT1}, 3, v{vK2}")
        I(f"v_add_u32 v{vK2}, s{sCL}, v{vK2}")
        I(f"v_add_u32 v{vK2}, {LDS_KV2}, v{vK2}")
        I(f"v_bfe_u32 v{vT1}, v{vLANE}, 2, 2")
        I(f"v_lshl_add_u32 v{vB1}, v{vG}, 2, v{vT1}")
        I(f"v_min_u32 v{vT1}, 2, v{vT1}")
        I(f"v_mad_u32_u24 v{vB2}, v{vG}, 3, v{vT1}")
        I(f"v_add_u32 v{vB2}, 16, v{vB2}")
        I(f"v_and_b32 v{vT1}, 3, v{vLANE}")
        I(f"v_lshlrev_b32 v{vT1}, 3, v{vT1}")
        I(f"v_add_u32 v{vT1}, s{sLW}, v{vT1}")
        AD = 72
        for rd_, vb in enumerate((vB1, vB2)):
            I(f"v_bfe_u32 v{vT2}, v{vb}, 1, 2")
            I(f"v_lshlrev_b32 v{vT2}, 5, v{vT2}")
            I(f"v_lshl_add_u32 v{vT2}, v{vb}, 7, v{vT2}")
            I(f"v_add_u32 v{AD+4*rd_}, v{vT2}, v{vT1}")
            for x in range(1, 4):
                I(f"v_xor_b32 v{AD+4*rd_+x}, {32*x}, v{AD+4*rd_}")
        g.wait(two[13])
        for hh in range(4):
            for nt in range(4):
                d = WOF + (hh * 4 + nt) * 4
                x = nt ^ (2 * (hh & 1))
                I(f"ds_read_b64_tr_b16 {vr(d,2)}, v{AD+x} offset:{hh*3584}")
                I(f"ds_read_b64_tr_b16 {vr(d+2,2)}, v{AD+4+x} offset:{hh*3584}")
    spec_load(gat_issue, [GR + 2 * k for k in range(16)], R + 12, gat_body, wo_bounce)
    g.mark("gdone")
    if "t2d" in EXP:
        touch2(194, 195)
    for i in range(4):
        I(f"v_cvt_pk_bf16_f32 v{R+8+i}, v{R+2*i}, v{R+2*i+1}")
    I(f"ds_write_b64 v{vK2}, {vr(R+8,2)}")
    I(f"ds_write_b64 v{vK2}, {vr(R+10,2)} offset:16")
    g.wait_all(vm=False)
    stamp("gathered")
    I("s_barrier")
    g.mark("qdone")
    g.mark("burst:" + os.environ.get("BB0", "2"))
    KF = 40
    tk = {}
    for hf_ in range(2):
        for s_ in range(2):
            I(f"ds_read_b128 {vr(KF+16*hf_+8*s_,4)}, v{vK1} offset:{hf_*4096+s_*2048}")
            tk[hf_, s_] = I(f"ds_read_b128 {vr(KF+16*hf_+8*s_+4,4)}, v{vK0} offset:{hf_*4096+s_*2048+1024}")
    for hf_ in range(2):
        for s_ in range(2):
            g.wait(tk[hf_, s_])
            for t in range(2):
                a = vr(AO + 4 * t, 4)
                I(f"v_mfma_f32_16x16x32_bf16 {a}, {vr(KF+16*hf_+8*s_+4*t,4)}, {vr(PH+4*s_,4)}, {'0' if (s_ == 0 and hf_ == 0) else a}")
    I(f"v_add_f32 v{vT1}, {f32(1e-6)}, v{AO+7}")
    I(f"v_rcp_f32 v{vT1}, v{vT1}")
    for i in range(7):
        I(f"v_mul_f32 v{AO+i}, v{AO+i}, v{vT1}")
    for i in range(3):
        I(f"v_cvt_pk_bf16_f32 v{OS+i}, v{AO+2*i}, v{AO+2*i+1}")
    I(f"v_cvt_pk_bf16_f32 v{OS+3}, v{AO+6}, 0")
    I(f"buffer_store_dwordx4 {vr(OS,4)}, v{vL16}, {srd(sWS)}, s{sOS} offen sc1")
    stamp("o stored")
    if "t2b" in EXP:
        touch2(202, 203)
    g.mark("on")
    return two


def woraw(i):
    return vr(216 + 4 * i, 4) if i < 8 else vr(WR + 4 * (i - 8), 4)


def phaseB(two):
    g.comment("==== phase B ====")
    OF = 216
    XR, XU, CSG = 176, 180, 188
    WOF = 112
    BACC = 72
    vB1, vB2, vB3 = 196, 197, 198
    vD1, vD2, vD3 = 199, 200, 201
    I(f"s_lshl_b32 s{sT0}, s{sMTB}, 2")
    I(f"s_add_u32 s{sT0}, s{sT0}, s{sW3}")
    I(f"s_mul_i32 s{sT0}, s{sT0}, {8*896}")
    I(f"s_lshl_b32 s{sT1}, s{sNQ}, 8")
    I(f"s_add_u32 s{sT0}, s{sT0}, s{sT1}")
    I(f"s_lshl_b32 s{sT1}, s{sWH}, 7")
    I(f"s_add_u32 s{sT0}, s{sT0}, s{sT1}")
    I(f"s_add_u32 s{sT0}, s{sT0}, s{sINV}")
    I(f"v_and_b32 v{vT4}, 7, v{vLANE}")
    I(f"v_lshrrev_b32 v{vT5}, 3, v{vLANE}")
    I(f"v_mul_u32_u24 v{vT0}, 896, v{vT5}")
    I(f"v_lshl_add_u32 v{vT0}, v{vT4}, 4, v{vT0}")
    I(f"s_cmp_ge_u32 s{sW}, 4")
    I(f"s_mov_b32 s{sT2}, 81920")
    I(f"s_cmov_b32 s{sT2}, {LDS_KVF - 4096}")
    I(f"s_add_u32 s{sT2}, s{sT2}, s{sCL}")
    g.mark("off")
    I(f"s_mov_b32 m0, s{sT2}")
    I(f"v_lshlrev_b32 v{vB3}, 7, v{vT4}")
    txd = I(f"buffer_load_dwordx4 v{vT0}, {srd(sX)}, s{sT0} offen lds")
    g.mark("on")
    I(f"v_lshl_add_u32 v{vB3}, v{vT5}, 4, v{vB3}")
    I(f"v_add_u32 v{vB3}, s{sT2}, v{vB3}")
    g.mark("burst:" + os.environ.get("BB1", "3"))
    I(f"s_lshl_b32 s{sD}, s{sMTB}, 5")
    I(f"s_lshl_b32 s{sT1}, s{sW3}, 2")
    I(f"s_add_u32 s{sD}, s{sD}, s{sT1}")
    I(f"s_lshl_b32 s{sD}, s{sD}, 10")
    I(f"s_add_u32 s{sD}, s{sD}, {WS_O}")
    I(f"s_add_u32 s{sE}, s{sD}, 16384")
    BS2 = 83968
    I(f"s_mul_i32 s{sT0}, s{sW3}, 18432")
    I(f"s_mul_i32 s{sT1}, s{sWH}, {8*1152}")
    I(f"s_add_u32 s{sT0}, s{sT0}, s{sT1}")
    I(f"s_add_u32 s{sT0}, s{sT0}, {BS2}")
    I(f"v_lshrrev_b32 v{vT1}, 1, v{vG}")
    I(f"v_mul_u32_u24 v{vT1}, 1152, v{vT1}")
    I(f"v_and_b32 v{vT2}, 1, v{vG}")
    I(f"v_lshl_add_u32 v{vT1}, v{vT2}, 9, v{vT1}")
    I(f"v_lshl_add_u32 v{vT1}, v{vM16}, 4, v{vT1}")
    I(f"v_add_u32 v{vB1}, s{sT0}, v{vT1}")
    I(f"s_lshl_b32 s{sT0}, s{sW3}, 7")
    I(f"s_add_u32 s{sT0}, s{sT0}, s{sT1}")
    I(f"s_add_u32 s{sT0}, s{sT0}, {BS2}")
    I(f"v_mul_u32_u24 v{vT1}, 1152, v{vT5}")
    I(f"v_lshl_add_u32 v{vT1}, v{vT4}, 4, v{vT1}")
    I(f"v_add_u32 v{vB2}, s{sT0}, v{vT1}")
    I(f"v_cmp_gt_u32 vcc, 0x10000, v{vHSA}")
    I(f"v_cndmask_b32 v{vT3}, 0, -1, vcc")
    stats_addr(vT2, vT0, vT1)
    I(f"v_mov_b32 v{vT5}, 0x3f803f80")
    g.wait(txd)
    txr = I(f"ds_read_b128 {vr(XR,4)}, v{vB3}")
    g.wait(txr)
    for i in range(4):
        I(f"v_lshlrev_b32 v{XU+2*i}, 16, v{XR+i}")
        I(f"v_and_b32 v{XU+2*i+1}, 0xffff0000, v{XR+i}")
    g.mark("off")
    I("s_barrier")
    stamp("wo ready")

    def o_issue():
        tl = []
        for hh in range(4):
            for mt in range(2):
                tl.append(I(f"buffer_load_dwordx4 {vr(OF+(hh*2+mt)*4,4)}, v{vL16}, {srd(sWS)}, s{sE if mt else sD} offen offset:{hh*1024} sc1"))
        return tl

    def o_body(tl):
        for hh in range(4):
            for mt in range(2):
                g.wait(tl[hh * 2 + mt])
                for nt in range(4):
                    a = BACC + (mt * 4 + nt) * 4
                    I(f"v_mfma_f32_16x16x32_bf16 {vr(a,4)}, {vr(WOF+(hh*4+nt)*4,4)}, {vr(OF+(hh*2+mt)*4,4)}, {'0' if hh == 0 else vr(a,4)}")
    spec_load(o_issue, [OF + 4 * k for k in range(8)], vT0, o_body)
    stamp("B mfma")
    for mt in range(2):
        for nt in range(4):
            I(f"ds_write_b128 v{vB1}, {vr(BACC+(mt*4+nt)*4,4)} offset:{nt*2304+mt*256}")
    I(f"s_lshl_b32 s{sT0}, s{sJC}, 14")
    I(f"s_lshl_b32 s{sT1}, s{sWH}, 13")
    I(f"s_add_u32 s{sT0}, s{sT0}, s{sT1}")
    I(f"s_add_u32 s{sD}, s{sT0}, {WS_CS}")
    I(f"s_add_u32 s{sE}, s{sD}, 4096")
    I(f"v_lshlrev_b32 v{vB3}, 2, v0")
    I(f"v_and_b32 v{vB3}, 1023, v{vB3}")

    def cs_issue():
        return [I(f"buffer_load_dword v{CSG+rb}, v{vB3}, {srd(sWS)}, s{sE if rb >= 4 else sD} offen offset:{(rb%4)*1024} sc1") for rb in range(8)]
    tcs8 = cs_issue()
    g.mark("burst:3")
    S1, S2 = 104, 105
    I(f"v_mov_b32 v{S1}, 0\nv_mov_b32 v{S2}, 0")
    g.wait_all(vm=False)
    I("s_barrier")
    b = 72
    for w in range(4):
        for q in range(2):
            I(f"ds_read_b128 {vr(b+w*8+q*4,4)}, v{vB2} offset:{w*18432+q*512}")
    g.wait_all(vm=False)
    HP = 108
    for i in range(8):
        I(f"v_add_f32 v{b+i}, v{b+i}, v{b+8+i}")
        I(f"v_add_f32 v{b+16+i}, v{b+16+i}, v{b+24+i}")
    for i in range(8):
        I(f"v_add_f32 v{b+i}, v{b+i}, v{XU+i}")
    for i in range(8):
        I(f"v_add_f32 v{b+i}, v{b+i}, v{b+16+i}")
    for i in range(4):
        I(f"v_cvt_pk_bf16_f32 v{HP+i}, v{b+2*i}, v{b+2*i+1}")
    I(f"buffer_store_dwordx4 {vr(HP,4)}, v{vHSA}, {srd(sWS)}, s{sHS} offen sc1")
    for i in range(4):
        I(f"v_dot2_f32_bf16 v{S1}, v{HP+i}, v{vT5}, v{S1}")
        I(f"v_dot2_f32_bf16 v{S2}, v{HP+i}, v{HP+i}, v{S2}")
    I(f"v_and_b32 v{S1}, v{vT3}, v{S1}")
    I(f"v_and_b32 v{S2}, v{vT3}, v{S2}")
    for ror in (8,):
        I(f"v_add_f32_dpp v{S1}, v{S1}, v{S1} row_ror:{ror} row_mask:0xf bank_mask:0xf")
        I(f"v_add_f32_dpp v{S2}, v{S2}, v{S2} row_ror:{ror} row_mask:0xf bank_mask:0xf")
    for lv in (16, 32):
        I(f"v_mov_b32 v106, v{S1}\nv_mov_b32 v107, v{S2}")
        I(f"v_permlane{lv}_swap_b32 v{S1}, v106")
        I(f"v_permlane{lv}_swap_b32 v{S2}, v107")
        I(f"v_add_f32 v{S1}, v{S1}, v106")
        I(f"v_add_f32 v{S2}, v{S2}, v107")
    I(f"buffer_store_dwordx2 v[{S1}:{S2}], v{vT2}, {srd(sWS)}, s{sSS} offen sc1")
    stamp("h stored")
    if "t2c" in EXP:
        touch2(202, 203)
    lr, lb = g.newlabel("L_sr"), g.newlabel("L_sb")
    g.wait(tcs8[-1])
    sent_check([CSG + rb for rb in range(8)], vT0)
    I(f"s_cmp_lg_u64 vcc, 0")
    I(f"s_cbranch_scc1 {lr}")
    g.label(lb)
    g.begin()
    g.label(lr)
    check_loop(cs_issue, [CSG + rb for rb in range(8)], vT0)
    I(f"s_branch {lb}")
    TAILS.append(g.end())
    for k in (4, 2, 1):
        for i in range(k):
            I(f"v_add_f32 v{CSG+i}, v{CSG+i}, v{CSG+k+i}")
    I(f"v_lshlrev_b32 v{vB3}, 2, v0")
    I(f"v_add_u32 v{vB3}, {LDS_KVF}, v{vB3}")
    I(f"ds_write_b32 v{vB3}, v{CSG}")
    g.wait_all(vm=False)
    I("s_barrier")
    I(f"s_cmp_ge_u32 s{sJC}, 14")
    I("s_cbranch_scc1 L_end")
    tb2 = c_batch(1, 0, 24, 56, 57344 + 24576)


GK1 = -2.0 * math.sqrt(2.0 / math.pi) * LOG2E
GK2 = GK1 * 0.044715
LDS_X = 114688
vHB, vM, vWD = 254, 255, 253
sWDB = 80
WDE = 16
NWDE = 7
NWDC = int(os.environ.get('NWDC', '2'))


def hh_signal(stage, toks):
    g.wait(*toks)
    I("s_barrier")
    lab = g.newlabel("L_hs")
    I(f"s_cmp_lg_u32 s{sW}, 0")
    I(f"s_cbranch_scc1 {lab}")
    g.cond_begin()
    I("s_mov_b64 exec, 1")
    I(f"s_lshl_b32 s{sT0}, s{sG}, 8")
    I(f"s_add_u32 s{sT0}, s{sT0}, {WS_CNT + CNT_HH * 4096 + 64 * stage}")
    I(f"v_mov_b32 v{vCNT}, s{sT0}")
    I(f"buffer_atomic_add v{vONE}, v{vCNT}, {srd(sWS)}, 0 offen sc1")
    I("s_mov_b64 exec, -1")
    g.cond_end()
    g.label(lab)


def hh_poll(stage_sreg_or_imm):
    I("s_mov_b64 exec, 1")
    I(f"s_lshl_b32 s{sT0}, s{sGB}, 8")
    I(f"s_add_u32 s{sT0}, s{sT0}, {WS_CNT + CNT_HH * 4096}")
    I(f"s_add_u32 s{sT0}, s{sT0}, {stage_sreg_or_imm}")
    I(f"v_mov_b32 v{vCNT}, s{sT0}")
    poll(sWS, vCNT, 14)
    I("s_mov_b64 exec, -1")


def d_setup():
    I(f"v_lshrrev_b32 v{vHB}, 5, v{vLANE}")
    I(f"v_and_b32 v{vM}, 31, v{vLANE}")
    I(f"v_lshrrev_b32 v{vT0}, 3, v{vLANE}")
    I(f"v_mul_u32_u24 v{vT0}, 896, v{vT0}")
    I(f"v_and_b32 v{vT1}, 1, v{vG}")
    I(f"v_lshlrev_b32 v{vT1}, 2, v{vT1}")
    I(f"v_and_b32 v{vWD}, 7, v{vLANE}")
    I(f"v_xor_b32 v{vWD}, v{vWD}, v{vT1}")
    I(f"v_lshl_add_u32 v{vWD}, v{vWD}, 4, v{vT0}")
    I(f"s_cmp_ge_u32 s{sJB}, 7")
    I(f"s_cselect_b32 s{sRH}, 1, 0")
    I(f"s_mul_i32 s{sT0}, s{sRH}, 7")
    I(f"s_sub_u32 s{sCB}, s{sJB}, s{sT0}")
    I(f"s_lshl_b32 s{sT0}, s{sWH}, 1")
    I(f"s_add_u32 s{sT0}, s{sT0}, s{sW}")
    I(f"s_and_b32 s{sAA}, s{sT0}, 3")
    I(f"s_mul_i32 s{sKC}, s{sWH}, 56")
    I(f"s_add_u32 s{sKC}, s{sKC}, s{sAA}")
    I(f"s_mul_i32 s{sWDB}, s{sKC}, {16*896}")
    I(f"s_lshl_b32 s{sT1}, s{sCB}, 7")
    I(f"s_add_u32 s{sWDB}, s{sWDB}, s{sT1}")
    I(f"s_cmp_ge_u32 s{sJB}, 14")
    I(f"s_cselect_b32 s{sT1}, {OOB}, 0")
    I(f"s_add_u32 s{sWDB}, s{sWDB}, s{sT1}")


sRH, sCB, sAA, sKC = 64, 65, 66, 67


def kc_off(n):
    return 8 * n if n < 7 else 4 + 8 * (n - 7)


def wd_load(dst, n):
    t = None
    for hf_ in range(2):
        I(f"s_add_u32 s{sT3}, s{sWDB}, {(16*kc_off(n) + 8*hf_)*896}")
        for e in range(4):
            t = I(f"buffer_load_dword v{dst+4*hf_+e}, v{vWD}, {srd(sWD)}, s{sT3} offen offset:{e*896}")
    return t


def wd_half(dst, n, hf_):
    I(f"s_add_u32 s{sBG}, s{sWDB}, {(16*kc_off(n) + 8*hf_)*896}")
    return I(f"buffer_load_dwordx4 {vr(dst+4*hf_,4)}, v{vWD}, {srd(sWD)}, s{sBG} offen")


def dt_pattern(dst, t0, t1):
    I(f"v_bfe_u32 v{t0}, v{vLANE}, 2, 2")
    I(f"v_lshl_add_u32 v{t1}, v{vHB}, 2, v{t0}")
    I(f"v_lshlrev_b32 v{t1}, 7, v{t1}")
    I(f"v_lshrrev_b32 v{t0}, 1, v{t0}")
    I(f"v_lshl_add_u32 v{t1}, v{t0}, 6, v{t1}")
    I(f"v_and_b32 v{t0}, 1, v{vG}")
    I(f"v_lshl_add_u32 v{t1}, v{t0}, 5, v{t1}")
    I(f"v_and_b32 v{t0}, 3, v{vLANE}")
    I(f"v_lshl_add_u32 v{dst}, v{t0}, 3, v{t1}")


def c_rows(mat, dbl, r0, r1, lds_base):
    return c_batch(mat, dbl, r0, r1, lds_base)


def g1_addr(n):
    if n < 8:
        return 114688 + n * 1024
    if 24 <= n < 40:
        return 114688 + 8192 + (n - 24) * 1024
    if n < 24:
        return (n - 8) * 1024
    return 16384 + (n - 40) * 1024


def u1_addr(n):
    if n < 8:
        return 32768 + n * 1024
    if 24 <= n < 40:
        return 32768 + 8192 + (n - 24) * 1024
    if n < 24:
        return 57344 + (n - 8) * 1024
    return 57344 + 16384 + (n - 40) * 1024


def phaseCD(twd_early):
    g.comment("==== phase C ====")
    sMD, sHB, sMT = sC, sHHS, sMTC
    sAB = 7
    sL5, sL2, sL3, sL4 = 4, 5, 6, 83
    I(f"s_mul_i32 s{sL5}, s{sW}, 5120")
    I(f"s_lshl_b32 s{sL2}, s{sW}, 11")
    I(f"s_mul_i32 s{sL3}, s{sW}, 3072")
    I(f"s_lshl_b32 s{sL4}, s{sW}, 12")
    slotE = [(sL2, 40960 + i * 1024) for i in range(2)] + [(sL3, 90112 + i * 1024) for i in range(3)]
    slotM = [(sL5, 114688 + i * 1024) for i in range(5)] + [(sL2, i * 1024) for i in range(2)]
    slotL = [(sL3, 16384 + i * 1024) for i in range(3)] + [(sL4, 57344 + i * 1024) for i in range(4)]
    wslot = slotE + slotM + slotL + (slotE + slotM)[:9]
    sRW = [12, 13, 14, 15, 16, 17, 18]
    sRA = [19, 20, 21, 22, 23, 81, 82]

    def wd_dma(m):
        n, hf_ = m // 2, m % 2
        return dma2(vWD, sWD, sRW[n % 7], (16 * (4 if n >= 7 else 0) + 8 * hf_) * 896, wslot[m][0], wslot[m][1])
    c_batch(0, 1, 0, 40, 114688)
    I(f"s_lshl_b32 s{sMD}, s{sGB}, 2")
    I(f"s_lshl_b32 s{sT0}, s{sRH}, 1")
    I(f"s_add_u32 s{sMD}, s{sMD}, s{sT0}")
    I(f"s_lshl_b32 s{sE}, s{sMT}, 11")
    I(f"s_add_u32 s{sE}, s{sE}, {WS_ST}")
    I(f"s_mul_i32 s{sWB}, s{sMT}, {28*1024}")
    I(f"s_add_u32 s{sWB}, s{sWB}, {WS_H}")
    I(f"s_mul_i32 s{sAB}, s{sMD}, {112*1024}")
    I(f"s_lshl_b32 s{sT1}, s{sKC}, 10")
    I(f"s_add_u32 s{sAB}, s{sAB}, s{sT1}")
    I(f"s_add_u32 s{sAB}, s{sAB}, {WS_HH}")
    for n in range(7):
        if "norot" in EXP:
            I(f"s_mov_b32 s{sT0}, {n}")
        else:
            I(f"s_add_u32 s{sT0}, s{sCB}, {n}")
            I(f"s_sub_u32 s{sT1}, s{sT0}, 7")
            I(f"s_cmp_ge_u32 s{sT0}, 7")
            I(f"s_cselect_b32 s{sT0}, s{sT1}, s{sT0}")
        I(f"s_mul_i32 s{sT1}, s{sT0}, {8*16*896}")
        I(f"s_add_u32 s{sRW[n]}, s{sWDB}, s{sT1}")
        I(f"s_lshl_b32 s{sT1}, s{sT0}, 13")
        I(f"s_add_u32 s{sRA[n]}, s{sAB}, s{sT1}")
    HF = 16
    A_, B_, C_ = 128, 144, 160
    TM, CS2 = 176, 192
    WFc = 208
    vA0, vA1, vCSA, vFA, vA2 = 240, 241, 242, 243, 15
    K1, K2, IR2, NMU = 248, 249, 250, 251
    STR = 244
    I(f"v_bfe_u32 v{vT0}, v{vLANE}, 2, 2")
    I(f"v_lshl_add_u32 v{vT1}, v{vHB}, 3, v{vT0}")
    I(f"v_lshlrev_b32 v{vT1}, 7, v{vT1}")
    I(f"v_lshrrev_b32 v{vT0}, 1, v{vT0}")
    I(f"v_xor_b32 v{vT0}, s{sWH}, v{vT0}")
    I(f"v_lshl_add_u32 v{vT1}, v{vT0}, 6, v{vT1}")
    I(f"v_and_b32 v{vT2}, 1, v{vG}")
    I(f"v_lshl_add_u32 v{vT1}, v{vT2}, 5, v{vT1}")
    I(f"v_and_b32 v{vT2}, 3, v{vLANE}")
    I(f"v_lshl_add_u32 v{vA0}, v{vT2}, 3, v{vT1}")
    I(f"v_add_u32 v{vA1}, 57344, v{vA0}")
    I(f"v_add_u32 v{vA2}, 114688, v{vA0}")
    I(f"s_lshl_b32 s{sT0}, s{sWH}, 7")
    I(f"s_add_u32 s{sT0}, s{sT0}, {LDS_CS}")
    I(f"v_lshlrev_b32 v{vCSA}, 4, v{vHB}")
    I(f"v_add_u32 v{vCSA}, s{sT0}, v{vCSA}")
    I(f"v_mov_b32 v{vFA}, {LDS_FLG}")
    I(f"v_lshlrev_b32 v{vT3}, 3, v{vLANE}")
    flush()
    I(f"v_lshlrev_b32 v{vT0}, 2, v0")
    I(f"v_and_b32 v{vT0}, 1023, v{vT0}")
    I(f"v_add_u32 v{vT0}, {LDS_KVF}, v{vT0}")
    t = I(f"ds_read2st64_b32 v[72:73], v{vT0} offset0:0 offset1:4")
    g.wait(t)
    I(f"v_add_f32 v72, v72, v73")
    I(f"ds_write_b32 v{vT0}, v72 offset:4096")
    stamp("C ready")

    S8 = 128

    def st_issue():
        return [I(f"buffer_load_dwordx2 {vr(S8+2*i,2)}, v{vT3}, {srd(sWS)}, s{sE} offen offset:{512*i} sc1") for i in range(4)]
    check_loop(st_issue, [S8 + 2 * i for i in range(4)], vT1)
    stamp("h flag")

    def h_issue():
        tl = []
        for c in range(28):
            if c % 4 == 0:
                I(f"s_add_u32 s{sT0}, s{sWB}, {c*1024}")
            tl.append(I(f"buffer_load_dwordx4 {vr(HF+4*c,4)}, v{vL16}, {srd(sWS)}, s{sT0} offen offset:{(c%4)*1024} sc1"))
        return tl
    g.begin()
    th = h_issue()
    hl = g.end()
    g.put(hl[:10])
    g.wait_all(vm=False)
    I("s_barrier")
    for i in range(4):
        I(f"v_add_f32 v{STR+i}, v{S8+i}, v{S8+4+i}")
    I(f"v_add_f32 v{STR}, v{STR}, v{STR+2}")
    I(f"v_add_f32 v{STR+1}, v{STR+1}, v{STR+3}")
    I(f"v_mov_b32 v{STR+2}, v{STR}\nv_mov_b32 v{STR+3}, v{STR+1}")
    I(f"v_permlane32_swap_b32 v{STR}, v{STR+2}")
    I(f"v_permlane32_swap_b32 v{STR+1}, v{STR+3}")
    I(f"v_add_f32 v{STR}, v{STR}, v{STR+2}")
    I(f"v_add_f32 v{STR+1}, v{STR+1}, v{STR+3}")
    I(f"v_mul_f32 v{NMU}, {f32(-1/448)}, v{STR}")
    I(f"v_mul_f32 v{STR+1}, {f32(1/448)}, v{STR+1}")
    I(f"v_fma_f32 v{STR+1}, -v{NMU}, v{NMU}, v{STR+1}")
    I(f"v_max_f32 v{STR+1}, 0, v{STR+1}")
    I(f"v_add_f32 v{IR2}, {f32(1e-5)}, v{STR+1}")
    I(f"v_rsq_f32 v{STR}, v{IR2}")
    I(f"v_mul_f32 v{K1}, {f32(GK1)}, v{STR}")
    I(f"v_mul_f32 v{STR+1}, v{STR}, v{STR}")
    I(f"v_mul_f32 v{STR+1}, v{STR+1}, v{STR}")
    I(f"v_mul_f32 v{K2}, {f32(GK2)}, v{STR+1}")
    tails = TAILS

    def cnt_add(f):
        I("s_mov_b64 exec, 1")
        I(f"ds_add_u32 v{vFA}, v{vONE} offset:{4*f}")
        I("s_mov_b64 exec, -1")

    def cnt_issue(f):
        return I(f"ds_read_b32 v{vFLAG}, v{vFA} offset:{4*f}")

    def cnt_check(f, t):
        lr, lb = g.newlabel("L_cr"), g.newlabel("L_cb")
        g.wait(t)
        I(f"v_readfirstlane_b32 s{sT4}, v{vFLAG}")
        I(f"s_cmp_lt_u32 s{sT4}, 8")
        I(f"s_cbranch_scc1 {lr}")
        g.label(lb)
        g.begin()
        g.label(lr)
        I(f"s_mov_b32 s{sT5}, 0")
        l2 = g.newlabel("L_cl")
        g.label(l2)
        I("s_sleep 1")
        cnt_issue(f)
        I("s_waitcnt lgkmcnt(0)")
        I(f"v_readfirstlane_b32 s{sT4}, v{vFLAG}")
        I(f"s_add_u32 s{sT5}, s{sT5}, 1")
        I(f"s_cmp_ge_u32 s{sT5}, {POLL_MAX*8}")
        I(f"s_cbranch_scc1 {lb}")
        I(f"s_cmp_lt_u32 s{sT4}, 8")
        I(f"s_cbranch_scc1 {l2}")
        I(f"s_branch {lb}")
        tails.append(g.end())

    def hsig_issue(f, toks):
        g.wait(*toks)
        I("s_mov_b64 exec, 1")
        t = I(f"ds_add_rtn_u32 v{vINIT}, v{vFA}, v{vONE} offset:{4*f}")
        I("s_mov_b64 exec, -1")
        return t

    def hsig_check(stage, t):
        lab = g.newlabel("L_hs")
        g.wait(t)
        I(f"v_readfirstlane_b32 s{sT4}, v{vINIT}")
        I(f"s_cmp_lg_u32 s{sT4}, 7")
        I(f"s_cbranch_scc1 {lab}")
        g.cond_begin()
        I("s_mov_b64 exec, 1")
        I(f"s_lshl_b32 s{sT0}, s{sG}, 8")
        I(f"s_add_u32 s{sT0}, s{sT0}, {WS_CNT + CNT_HH * 4096 + 64 * stage}")
        I(f"v_mov_b32 v{vCNT}, s{sT0}")
        I(f"buffer_atomic_add v{vONE}, v{vCNT}, {srd(sWS)}, 0 offen sc1")
        I("s_mov_b64 exec, -1")
        g.cond_end()
        g.label(lab)

    def cs_read(dst, mat, dbl):
        t = None
        for q in range(4):
            t = I(f"ds_read_b128 {vr(dst+4*q,4)}, v{vCSA} offset:{mat*512 + (64*dbl+8*q)*4}")
        return t

    def gpart(ag, t):
        g.wait(t)
        for i in range(16):
            I(f"v_fmac_f32 v{ag+i}, v{NMU}, v{TM+i}")
        for i in range(16):
            I(f"v_mul_f32 v{TM+i}, v{ag+i}, v{ag+i}")
        for i in range(16):
            I(f"v_fma_f32 v{TM+i}, v{TM+i}, v{K2}, v{K1}")
        for i in range(16):
            I(f"v_mul_f32 v{TM+i}, v{TM+i}, v{ag+i}")
        for i in range(16):
            I(f"v_exp_f32 v{TM+i}, v{TM+i}")
        for i in range(16):
            I(f"v_fma_f32 v{TM+i}, v{TM+i}, v{IR2}, v{IR2}")
        for i in range(16):
            I(f"v_rcp_f32 v{TM+i}, v{TM+i}")
        for i in range(16):
            I(f"v_mul_f32 v{TM+i}, v{ag+i}, v{TM+i}")

    def upart(au, t, dbl):
        g.wait(t)
        for i in range(16):
            I(f"v_fmac_f32 v{au+i}, v{NMU}, v{CS2+i}")
        for i in range(16):
            I(f"v_mul_f32 v{au+i}, v{au+i}, v{TM+i}")
        for i in range(8):
            I(f"v_cvt_pk_bf16_f32 v{CS2+i}, v{au+2*i}, v{au+2*i+1}")
        I(f"s_add_u32 s{sE}, s{sHB}, {dbl*4096}")
        I(f"buffer_store_dwordx4 {vr(CS2,4)}, v{vL16}, {srd(sWS)}, s{sE} offen sc1")
        return I(f"buffer_store_dwordx4 {vr(CS2+4,4)}, v{vL16}, {srd(sWS)}, s{sE} offen offset:1024 sc1")

    slots = []
    for c in range(28):
        slots.append((A_, c * 2048, c))
        slots.append((B_, 57344 + c * 2048, c))
    for c in range(28):
        slots.append((C_, 114688 + c * 2048 if c < 20 else (c - 20) * 2048, c))
    for c in range(28):
        slots.append((A_, 16384 + c * 2048 if c < 12 else 57344 + (c - 12) * 2048, c))
    NS = 112
    PRC = int(os.environ.get('PRC', '28'))
    depth = int(os.environ.get('DEPTH', '4'))
    nb = depth + 1
    tok = {}

    def rd(i):
        off = slots[i][1]
        base = vA0
        if off >= 114688:
            base, off = vA2, off - 114688
        elif off >= 57344:
            base, off = vA1, off - 57344
        dst = WFc + 4 * (i % nb)
        I(f"ds_read_b64_tr_b16 {vr(dst,2)}, v{base} offset:{off}")
        tok[i] = I(f"ds_read_b64_tr_b16 {vr(dst+2,2)}, v{base} offset:{off+512}")

    sched = {i: [] for i in range(NS)}
    load = {i: 0.0 for i in range(NS)}
    BUDGET = float(os.environ.get("BUDGET", "6"))

    def cost(it):
        if it.kind != "i":
            return 0
        m = it.text.split()[0]
        if m in TRANS:
            return 2
        if m in ("v_fma_f32", "v_fmac_f32"):
            return 1.25
        if m.startswith("v_"):
            return 1
        if m.startswith(("ds_", "buffer")):
            return 0.4
        return 0.1

    def cap(fn):
        g.begin()
        r = fn()
        return g.end(), r

    def at(slot, fn):
        st, r = cap(fn)
        for it in st:
            sched[slot].append(it)
            load[slot] += cost(it)
        return r

    rest = []

    def flow(stream, slot):
        pend = []
        for it in stream:
            pend.append(it)
            if it.kind != "i":
                continue
            c = sum(cost(x) for x in pend)
            while slot < NS and load[slot] + c > BUDGET:
                slot += 1
            if slot >= NS:
                rest.extend(pend)
            else:
                sched[slot].extend(pend)
                load[slot] += c
            pend = []
        return slot

    k_ = 0
    for it in hl[10:]:
        sched[k_].append(it)
        if it.text.startswith("buffer"):
            k_ += 1

    def refill(f, free_slot, batches, need_slot):
        at(free_slot, lambda: cnt_add(f))
        t = at(free_slot + 2, lambda: cnt_issue(f))
        at(free_slot + 3, lambda: cnt_check(f, t))
        st, tb = cap(batches)
        for q in range(len(st) // 3):
            for it in st[3 * q:3 * q + 3]:
                sched[free_slot + 3 + 2 * q].append(it)
        if need_slot is not None:
            at(need_slot - depth - 3, lambda: (g.wait(tb), cnt_add(f + 1)))
            t2 = at(need_slot - depth - 2, lambda: cnt_issue(f + 1))
            at(need_slot - depth - 1, lambda: cnt_check(f + 1, t2))
        return tb
    F0 = int(os.environ.get("F0", "40"))
    at(F0, lambda: cnt_add(0))
    t = at(F0 + 2, lambda: cnt_issue(0))
    at(F0 + 3, lambda: cnt_check(0, t))
    st1, tb1 = cap(lambda: c_batch(0, 1, 40, 56, 0))
    st2, tb2 = cap(lambda: (c_batch(1, 1, 0, 24, 16384), c_batch(1, 1, 24, 56, 57344))[1])
    st = st1 + st2
    for q in range(9):
        sched[F0 + 3 + 2 * q].extend(st[3 * q:3 * q + 3])
    at(76 - depth - 3, lambda: (g.wait(tb2), cnt_add(1)))
    t2_ = at(76 - depth - 2, lambda: cnt_issue(1))
    at(76 - depth - 1, lambda: cnt_check(1, t2_))
    at(56, lambda: cnt_add(2))
    t = at(72, lambda: cnt_issue(2))
    at(73, lambda: cnt_check(2, t))
    for m in range(5):
        at(73 + 2 * m, lambda: wd_dma(m))
    tM = refill(4, 84, lambda: [wd_dma(m) for m in range(5, 12)][-1], None)
    if not any(e in EXP for e in ("not2", "t2a", "t2b", "t2c", "t2d", "tp", "mt1", "mt0", "mt2", "mt3")):
        at(int(os.environ.get("T2", "62")), touch2)

    def h_issue_from(c0):
        def f():
            tl = []
            for c in range(c0, 28):
                if c % 4 == 0:
                    I(f"s_add_u32 s{sT2}, s{sWB}, {c*1024}")
                tl.append(I(f"buffer_load_dwordx4 {vr(HF+4*c,4)}, v{vL16}, {srd(sWS)}, s{sT2} offen offset:{(c%4)*1024} sc1"))
            return tl
        return f

    def hcheck(q):
        lr, lb = g.newlabel("L_hr"), g.newlabel("L_hb")
        g.wait(th[4 * q + 3])
        sent_check([HF + 4 * c for c in range(4 * q, 4 * q + 4)], vT1)
        I(f"s_cmp_lg_u64 vcc, 0")
        I(f"s_cbranch_scc1 {lr}")
        g.label(lb)
        g.begin()
        g.label(lr)
        check_loop(h_issue_from(4 * q), [HF + 4 * c for c in range(4 * q, 28)], vT1)
        I(f"s_branch {lb}")
        tails.append(g.end())
    t1 = at(54, lambda: cs_read(TM, 0, 0))
    t2 = at(55, lambda: cs_read(CS2, 1, 0))
    def epiA():
        g.wait(t2)
        for i in range(16):
            I(f"v_fmac_f32 v{A_+i}, v{NMU}, v{TM+i}")
        for i in range(16):
            I(f"v_fmac_f32 v{B_+i}, v{NMU}, v{CS2+i}")
        for i in range(16):
            I(f"v_mul_f32 v{TM+i}, v{A_+i}, v{A_+i}")
        for i in range(16):
            I(f"v_fma_f32 v{TM+i}, v{TM+i}, v{K2}, v{K1}")
        for i in range(16):
            I(f"v_mul_f32 v{TM+i}, v{TM+i}, v{A_+i}")
        for i in range(16):
            I(f"v_mul_f32 v{B_+i}, v{B_+i}, v{A_+i}")

    def epiB():
        for i in range(16):
            I(f"v_exp_f32 v{TM+i}, v{TM+i}")
        for i in range(16):
            I(f"v_fma_f32 v{TM+i}, v{TM+i}, v{IR2}, v{IR2}")
        for i in range(16):
            I(f"v_rcp_f32 v{TM+i}, v{TM+i}")
        for i in range(16):
            I(f"v_mul_f32 v{B_+i}, v{B_+i}, v{TM+i}")
        for i in range(8):
            I(f"v_cvt_pk_bf16_f32 v{CS2+i}, v{B_+2*i}, v{B_+2*i+1}")
        I(f"buffer_store_dwordx4 {vr(CS2,4)}, v{vL16}, {srd(sWS)}, s{sHB} offen sc1")
        return I(f"buffer_store_dwordx4 {vr(CS2+4,4)}, v{vL16}, {srd(sWS)}, s{sHB} offen offset:1024 sc1")
    st, _ = cap(epiA)
    e = flow(st, 57)
    assert e < 83, e
    st, tst0 = cap(epiB)
    e = flow(st, e)
    t1 = at(max(e, 85), lambda: cs_read(TM, 0, 1))
    t2 = at(min(e + 9, 109), lambda: cs_read(CS2, 1, 1))
    st, _ = cap(lambda: gpart(C_, t1))
    flow(st, max(e, 85) + 2)
    def flag_issue():
        I(f"s_lshl_b32 s{sT0}, s{sGB}, 8")
        I(f"s_add_u32 s{sT0}, s{sT0}, {WS_CNT + CNT_HH * 4096}")
        return I(f"buffer_load_dword v{vT4}, off, {srd(sWS)}, s{sT0} sc1")
    print("slot loads:", " ".join("%.0f" % load[i] for i in range(NS)), "rest", len(rest))
    for i in range(depth):
        rd(i)
    for i in range(NS):
        acc, off, c = slots[i]
        if i + depth < NS:
            rd(i + depth)
        if PRC and i % PRC == 0:
            I(f"s_setprio {3 - (i // PRC) % 4}")
        if i < 56 and i % 8 == 0:
            hcheck(i // 8)
        g.wait(tok[i])
        I(f"v_mfma_f32_32x32x16_bf16 {vr(acc,16)}, {vr(WFc+4*(i%nb),4)}, {vr(HF+4*c,4)}, {'0' if c == 0 else vr(acc,16)}")
        g.put(sched[i])
        if i in (55, 83, 111):
            stamp(f"slot{i}")
    g.put(rest)
    tlast = upart(A_, t2, 1)
    stamp("hh stored")
    DACC = 184
    frag = {n: 16 + 8 * n for n in range(14)}
    abuf = {c: 128 + 4 * c for c in range(14)}
    ta = {}
    vP = {(sL5, 114688): (vT0, vT1), (sL2, 0): (vT2, vT3), (sL3, 16384): (vT4, vT5), (sL3, 90112): (vINIT, vCNT - 0), (sL4, 57344): (252, 15)}
    vP[(sL3, 90112)] = (vG, vM16)
    dt_pattern(vFLAG, vT0, vT1)
    for (sreg, base), (a0, a1) in vP.items():
        I(f"v_add_u32 v{a0}, s{sreg}, v{vFLAG}")
        if base:
            I(f"v_add_u32 v{a0}, {base}, v{a0}")
        I(f"v_xor_b32 v{a1}, 64, v{a0}")

    def wd_read(m):
        n, rd_ = m // 2, m % 2
        sreg, imm = wslot[m]
        key = max((k for k in vP if k[0] == sreg and k[1] <= imm), key=lambda k: k[1])
        a = vP[key]
        imm -= key[1]
        t = None
        for nt in range(2):
            t = I(f"ds_read_b64_tr_b16 {vr(frag[n]+4*nt+2*rd_,2)}, v{a[nt]} offset:{imm}")
        return t

    def lda(c):
        for mt in range(2):
            I(f"s_add_u32 s{sT1}, s{sRA[c % 7]}, {mt*112*1024 + (4096 if c >= 7 else 0)}")
            ta[c, mt] = I(f"buffer_load_dwordx4 {vr(abuf[c]+4*mt,4)}, v{vL16}, {srd(sWS)}, s{sT1} offen sc1")

    def mm(c, first):
        for mt in range(2):
            g.wait(ta[c, mt])
            for nt in range(2):
                a = DACC + (mt * 2 + nt) * 16
                I(f"v_mfma_f32_32x32x16_bf16 {vr(a,16)}, {vr(frag[c]+4*nt,4)}, {vr(abuf[c]+4*mt,4)}, {'0' if first else vr(a,16)}")
    I("s_setprio 3")
    g.wait(tM)
    t = None
    for m in range(12):
        t = wd_read(m)
    g.wait(t)
    twd = {}
    for m in range(19, 28):
        twd[m] = wd_dma(m)
        if m == 22:
            th_ = hsig_issue(6, [tlast])
            hsig_check(0, th_)
    I("s_barrier")
    for m in range(12, 19):
        twd[m] = wd_dma(m)
    stamp("wd issued")
    I("s_setprio 0")
    lab = g.newlabel("L_fp")
    I(f"s_cmp_lg_u32 s{sW}, 0")
    I(f"s_cbranch_scc1 {lab}")
    g.cond_begin()
    hh_poll(0)
    g.cond_end()
    g.label(lab)
    g.wait(twd[27])
    for m in range(19, 28):
        wd_read(m)
    g.wait(twd[18])
    for m in range(12, 19):
        wd_read(m)
    g.wait_all(vm=False)
    I("s_barrier")
    stamp("hh flag")

    def lda1(c, mt):
        I(f"s_add_u32 s{sT1}, s{sRA[c % 7]}, {mt*112*1024 + (4096 if c >= 7 else 0)}")
        ta[c, mt] = I(f"buffer_load_dwordx4 {vr(abuf[c],4)}, v{vL16}, {srd(sWS)}, s{sT1} offen sc1")
    for c in range(14):
        lda1(c, 0)
    HR = 248
    I(f"v_and_b32 v{vT0}, 15, v0")
    I(f"v_lshrrev_b32 v{vT1}, 4, v0")
    I(f"v_lshrrev_b32 v{vFLAG}, 1, v{vT0}")
    I(f"v_lshlrev_b32 v{vFLAG}, 9, v{vFLAG}")
    I(f"v_lshl_add_u32 v{vFLAG}, v{vT1}, 4, v{vFLAG}")
    I(f"v_and_b32 v{vT2}, 1, v{vT0}")
    I(f"v_lshl_add_u32 v{vFLAG}, v{vT2}, 3, v{vFLAG}")
    I(f"s_mul_i32 s{sE}, s{sMD}, {28*1024}")
    I(f"s_lshl_b32 s{sT1}, s{sCB}, 12")
    I(f"s_add_u32 s{sE}, s{sE}, s{sT1}")
    I(f"s_add_u32 s{sE}, s{sE}, {WS_H}")
    I(f"s_add_u32 s{sD}, s{sE}, {28*1024}")
    I(f"s_mul_i32 s{sT0}, s{sW}, {64*272}")
    I(f"v_mul_u32_u24 v{vT3}, 272, v{vM}")
    I(f"v_lshl_add_u32 v{vT3}, v{vHB}, 4, v{vT3}")
    I(f"v_add_u32 v{vT3}, s{sT0}, v{vT3}")
    I(f"v_mul_u32_u24 v{vT4}, 272, v{vT1}")
    I(f"v_lshl_add_u32 v{vT4}, v{vT0}, 4, v{vT4}")
    I(f"v_add_u32 v{vT5}, {4*64*272}, v{vT4}")
    I(f"v_mul_u32_u24 v{vT2}, 896, v{vT1}")
    I(f"v_lshl_add_u32 v{vT2}, v{vT0}, 3, v{vT2}")
    I(f"s_mul_i32 s{sT0}, s{sMD}, {32*896}")
    I(f"s_lshl_b32 s{sT2}, s{sCB}, 7")
    I(f"s_add_u32 s{sT0}, s{sT0}, s{sT2}")
    I(f"s_add_u32 s{sT2}, s{sT0}, {32*896}")
    hold = {}

    def pw(mt, k):
        nt, q = k // 4, k % 4
        I(f"ds_write_b128 v{vT3}, {vr(DACC+(mt*2+nt)*16+4*q,4)} offset:{mt*32*272 + nt*128 + q*32}")

    def red_issue(mt, R):
        t = None
        for w in range(8):
            t = I(f"ds_read_b128 {vr(R+4*w,4)}, v{vT4 if w < 4 else vT5} offset:{(w%4)*64*272 + mt*32*272}")
        return t

    def red_fin(mt, R, t):
        g.wait(hold["thr"])
        U = R + 32
        for i in range(2):
            I(f"v_lshlrev_b32 v{U+2*i}, 16, v{HR+2*mt+i}")
            I(f"v_and_b32 v{U+2*i+1}, 0xffff0000, v{HR+2*mt+i}")
        g.wait(t)
        for k in (16, 8, 4):
            for i in range(k):
                I(f"v_add_f32 v{R+i}, v{R+i}, v{R+k+i}")
        for i in range(4):
            I(f"v_add_f32 v{R+i}, v{R+i}, v{U+i}")
        for i in range(2):
            I(f"v_cvt_pk_bf16_f32 v{R+4+i}, v{R+2*i}, v{R+2*i+1}")
        I(f"buffer_store_dwordx2 {vr(R+4,2)}, v{vT2}, {srd(sOUT)}, s{sT2 if mt else sT0} offen")
    for mt in range(2):
        for c in range(14):
            g.wait(ta[c, mt])
            for nt in range(2):
                a = DACC + (mt * 2 + nt) * 16
                I(f"v_mfma_f32_32x32x16_bf16 {vr(a,16)}, {vr(frag[c]+4*nt,4)}, {vr(abuf[c],4)}, {'0' if c == 0 else vr(a,16)}")
            if mt == 0:
                lda1(c, 1)
            elif 2 <= c < 10:
                pw(0, c - 2)
        if mt == 0:
            I(f"buffer_load_dwordx2 {vr(HR,2)}, v{vFLAG}, {srd(sWS)}, s{sE} offen sc1")
            hold["thr"] = I(f"buffer_load_dwordx2 {vr(HR+2,2)}, v{vFLAG}, {srd(sWS)}, s{sD} offen sc1")
            stamp("D early")
    stamp("D mfma")
    for k in range(8):
        pw(1, k)
    g.wait_all(vm=False)
    I("s_barrier")
    t0_ = red_issue(0, 16)
    t1_ = red_issue(1, 56)
    red_fin(0, 16, t0_)
    red_fin(1, 56, t1_)
    stamp("end")
    stamp("rt1", rt=True)
    if "span" in EXP:
        I(f"s_cmp_lg_u32 s{sW}, 7")
        I("s_cbranch_scc1 L_end")
        I("s_and_b32 s90, s2, 7")
        I("s_cmp_lg_u32 s90, 3")
        I("s_cbranch_scc1 L_end")
        I("s_waitcnt vmcnt(0)")
        I("s_memrealtime s[90:91]")
        I("s_memtime s[92:93]")
        I("s_waitcnt lgkmcnt(0)")
        I("s_mov_b64 exec, 1")
        I("s_not_b32 s86, s86")
        I("s_sub_u32 s92, s92, s100")
        I("v_mov_b32 v20, s86")
        I("v_mov_b32 v21, s90")
        I("v_mov_b32 v22, s92")
        I(f"buffer_atomic_umax v20, off, {srd(sDBG)}, 0 offset:4 sc1")
        I(f"buffer_atomic_umax v21, off, {srd(sDBG)}, 0 offset:8 sc1")
        I(f"buffer_atomic_umax v22, off, {srd(sDBG)}, 0 offset:12 sc1")


prologue()
two = phaseA()
twd = phaseB(two)
phaseCD(twd)
g.label("L_end")
I("s_endpgm")
for tl_ in TAILS:
    g.put(tl_)
g.insert_bg()
g.resolve_waits()
g.fix_hazards_fast()

hdr = open("cdna_kernels/" + NAME + ".s.ref").read().split("; Override launch geometry")[0]
out = hdr + f"""; @launch grid=(256,1,1) block=(512,1,1) lds=163840
.amdgcn_target "amdgcn-amd-amdhsa--gfx950"
.text
.globl {NAME}_kernel
.p2align 8
.type {NAME}_kernel,@function
{NAME}_kernel:
L_code_start:
{g.text()}
L_code_end:
.fill 64, 4, 0xbf800000
.section .rodata,"a"
.p2align 6
.amdhsa_kernel {NAME}_kernel
  .amdhsa_next_free_vgpr 256
  .amdhsa_next_free_sgpr 102
  .amdhsa_accum_offset 256
  .amdhsa_group_segment_fixed_size 0
  .amdhsa_kernarg_size 88
  .amdhsa_user_sgpr_count 2
  .amdhsa_user_sgpr_kernarg_segment_ptr 1
  .amdhsa_system_sgpr_workgroup_id_x 1
.end_amdhsa_kernel
"""
import subprocess, re as _re
open("_sz.s", "w").write(out.replace("CODE_LAST", "0x1000"))
subprocess.run(["clang", "-x", "assembler", "-target", "amdgcn-amd-amdhsa", "-mcpu=gfx950", "-c", "_sz.s", "-o", "_sz.o"], check=True)
_h = subprocess.run(["llvm-objdump", "-h", "_sz.o"], capture_output=True, text=True).stdout
_sz = int(_re.search(r"\.text\s+([0-9a-f]+)", _h).group(1), 16)
out = out.replace("CODE_LAST", hex(_sz - 768))
print("code bytes", _sz)
open(sys.argv[1], "w").write(out)
if STAMPS:
    open(sys.argv[1] + ".names", "w").write("\n".join(stamp_names))
print("instrs:", sum(1 for it in g.items if it.kind == "i"), "stamps:", nstamp[0])
```

```python
import sys, math, struct, os
sys.path.insert(0, "dev")
from gen import *

NAME = "sequential_preLN__linear_kernel_hedgehog__glu_gated_geglu__prompt"
STAMPS = int(sys.argv[2]) if len(sys.argv) > 2 else 0
EXP = sys.argv[3].split(",") if len(sys.argv) > 3 else []


def f32(x):
    return "0x%08x" % struct.unpack("<I", struct.pack("<f", x))[0]


WS_CNT = 0x0
WS_CS = 0x10000
WS_ST = 0x50000
WS_KVP = 0x100000
WS_O = 0x200000
WS_H = 0x400000
WS_HH = 0x600000
WS_STAMP = 0xE00000
CNT_KV, CNT_O, CNT_H, CNT_HH = 0, 1, 2, 3

sX, sWQKV, sWPHI, sWO, sWG, sWU, sWD, sOUT, sDBG, sWS = 8, 12, 16, 20, 24, 28, 32, 36, 40, 44
sG, sJ, sW = 48, 49, 50
sT0, sT1, sT2, sT3, sT4, sT5 = 51, 52, 53, 54, 55, 56
sW3, sWH = 57, 58
sA, sB, sC, sD, sE = 59, 60, 61, 62, 63
sSTAMP = 86
sGATH, sWB, sCW, sCL, sLOG = 88, 89, 90, 91, 92
sGB, sJB, sJC, sLI, sXC, sLW, sSTO = 93, 94, 95, 96, 97, 98, 99
OOB = 0x7ff00000
sBG, sWOB, sKVS, sOS, sHS, sSS, sHHS = 68, 70, 71, 72, 73, 74, 75


def srd(r):
    return f"s[{r}:{r+3}]"


def vr(a, n=1):
    return f"v{a}" if n == 1 else f"v[{a}:{a+n-1}]"


def ar(a, n=1):
    return f"a{a}" if n == 1 else f"a[{a}:{a+n-1}]"


g = Gen()
I = g.I
nstamp = [0]
stamp_names = []

vLANE, vG, vM16 = 1, 2, 3
vL16 = 4
vT0, vT1, vT2, vT3, vT4, vT5 = 5, 6, 7, 8, 9, 10
vFLAG, vONE, vCNT, vINIT, vDMY = 11, 12, 13, 14, 15


def stamp(name="", rt=False):
    if not STAMPS:
        return
    k = nstamp[0]
    nstamp[0] += 1
    stamp_names.append(name)
    g.cond_begin()
    I(f"{'s_memrealtime' if rt else 's_memtime'} s[{sSTAMP}:{sSTAMP+1}]")
    I("s_waitcnt lgkmcnt(0)")
    I(f"v_mov_b32 v{vCNT}, s{sSTAMP}")
    I(f"buffer_store_dword v{vCNT}, off, {srd(sWS)}, s{sSTO} offset:{4*k}")
    g.cond_end()


UNIT = 14336
LDS_WK = 8 * UNIT
LDS_KVF = 11 * UNIT
LDS_CS = LDS_KVF + 4096
LDS_FLG = LDS_CS + 1024
LDS_WPL = 10 * UNIT + 8192
LDS_KV2 = 8 * UNIT + 24576 + 4096
LDS_BSCR = 6 * UNIT


def prologue():
    I("s_cmp_ge_u32 s2, 256")
    I("s_cbranch_scc1 L_end")
    I("s_setprio 3")
    if "span" in EXP:
        I("s_memrealtime s[86:87]")
        I("s_memtime s[100:101]")
    I(f"s_load_dwordx2 s[{sX}:{sX+1}], s[0:1], 0")
    I("s_getpc_b64 s[4:5]")
    I(f"v_lshlrev_b32 v{vINIT}, 7, v0")
    I(f"s_and_b32 s{sT5}, s2, 24")
    I(f"s_cmp_eq_u32 s{sT5}, 0")
    I(f"s_cselect_b32 s{sT5}, CODE_LAST, 0")
    I(f"v_min_u32 v{vINIT}, s{sT5}, v{vINIT}")
    if "cp0" in EXP:
        I(f"global_load_dword v{vDMY}, v{vINIT}, s[4:5]")
    I("s_load_dwordx16 s[64:79], s[0:1], 0")
    I("s_load_dwordx4 s[80:83], s[0:1], 64")
    I("s_load_dwordx2 s[84:85], s[0:1], 80")
    I(f"v_and_b32 v{vLANE}, 63, v0")
    I(f"v_lshrrev_b32 v{vT0}, 6, v0")
    I(f"v_readfirstlane_b32 s{sW}, v{vT0}")
    I(f"v_lshrrev_b32 v{vG}, 4, v{vLANE}")
    I(f"s_bfe_u32 s{sT0}, s2, 0x20001")
    I(f"s_lshl_b32 s{sT0}, s{sT0}, 2")
    I(f"s_bfe_u32 s{sT1}, s2, 0x20003")
    I(f"s_add_u32 s{sG}, s{sT0}, s{sT1}")
    I(f"s_mov_b32 s{sX+2}, 1835008")
    I(f"s_mov_b32 s{sX+3}, 0x20000")
    I(f"v_lshrrev_b32 v{vT0}, 3, v{vLANE}")
    I(f"v_mul_u32_u24 v{vT0}, 896, v{vT0}")
    I(f"v_and_b32 v{vT1}, 7, v{vLANE}")
    I(f"v_xor_b32 v{vT3}, v{vT1}, v{vG}")
    I(f"v_lshl_add_u32 v{vXA0}, v{vT3}, 4, v{vT0}")
    I(f"v_xor_b32 v{vT3}, 4, v{vT3}")
    I(f"v_lshl_add_u32 v{vXA1}, v{vT3}, 4, v{vT0}")
    I(f"s_lshl_b32 s{sA}, s{sG}, 3")
    I(f"s_add_u32 s{sA}, s{sA}, s{sW}")
    I(f"s_mul_i32 s{sB}, s{sA}, {16*896}")
    I(f"s_add_u32 s{sC}, s{sB}, {8*896}")
    I(f"s_mul_i32 s{sLW}, s{sW}, {UNIT}")
    I(f"s_and_b32 s{sT2}, s2, 1")
    I(f"s_lshl_b32 s{sT3}, s{sT2}, 3")
    I(f"s_lshr_b32 s{sT4}, s2, 5")
    I(f"s_add_u32 s{sJ}, s{sT3}, s{sT4}")
    I(f"s_lshl_b32 s{sCL}, s{sW}, 10")
    I(f"v_lshrrev_b32 v{vT0}, 2, v{vLANE}")
    I(f"v_mul_u32_u24 v{vT0}, 2688, v{vT0}")
    I(f"v_and_b32 v{vT1}, 3, v{vLANE}")
    I(f"v_and_b32 v{vT2}, 2, v{vG}")
    I(f"v_xor_b32 v{vT1}, v{vT1}, v{vT2}")
    I(f"v_lshl_add_u32 v{vWA}, v{vT1}, 4, v{vT0}")
    I(f"s_mul_i32 s{sWB}, s{sJ}, 56")
    I(f"s_and_b32 s{sT1}, s{sJ}, 1")
    I(f"s_lshl_b32 s{sT1}, s{sT1}, 3")
    I(f"s_sub_u32 s{sWB}, s{sWB}, s{sT1}")
    I(f"s_mul_i32 s{sD}, s{sW}, {16*2688}")
    I(f"s_add_u32 s{sD}, s{sD}, s{sWB}")
    I(f"s_mov_b32 s{sWQKV+2}, 1204224")
    I(f"s_mov_b32 s{sWQKV+3}, 0x20000")
    if "t0" in EXP:
        I(f"s_lshr_b32 s{sLI}, s2, 3")
        I(f"s_mul_i32 s{sT2}, s{sLI}, {14*2688}")
        I(f"s_and_b32 s{sT3}, s2, 1")
        I(f"s_mul_i32 s{sT3}, s{sT3}, 384")
        I(f"s_add_u32 s{sT2}, s{sT2}, s{sT3}")
        I(f"s_mul_i32 s{sT3}, s{sW}, 896")
        I(f"s_add_u32 s{sT2}, s{sT2}, s{sT3}")
        I(f"s_cmp_ge_u32 s{sW}, 3")
        I(f"s_cselect_b32 s{sT3}, {OOB}, 0")
        I(f"s_add_u32 s{sT2}, s{sT2}, s{sT3}")
        I(f"v_lshrrev_b32 v{vT0}, 2, v{vLANE}")
        I(f"v_min_u32 v{vT0}, 13, v{vT0}")
        I(f"v_mul_u32_u24 v{vT0}, 2688, v{vT0}")
        I(f"v_and_b32 v{vT1}, 3, v{vLANE}")
        I(f"v_lshl_add_u32 v{vT4}, v{vT1}, 7, v{vT0}")
        I(f"s_mul_i32 s{sT4}, s{sT0}, 114688")
        I(f"s_mul_i32 s{sT5}, s{sLI}, 14336")
        I(f"s_add_u32 s{sT4}, s{sT4}, s{sT5}")
        I(f"s_sub_u32 s{sT5}, s{sW}, 3")
        I(f"s_cmp_lt_u32 s{sT5}, 2")
        I(f"s_cselect_b32 s{sT3}, 0, {OOB}")
        I(f"s_mul_i32 s{sT5}, s{sT5}, 7168")
        I(f"s_and_b32 s{sT5}, s{sT5}, 0x3fff")
        I(f"s_add_u32 s{sT4}, s{sT4}, s{sT5}")
        I(f"s_add_u32 s{sT4}, s{sT4}, s{sT3}")
        I(f"v_min_u32 v{vT5}, 55, v{vLANE}")
        I(f"v_lshlrev_b32 v{vT5}, 7, v{vT5}")
        I(f"s_mov_b32 s{sWQKV+2}, 1204224")
        I(f"s_mov_b32 s{sWQKV+3}, 0x20000")
    if "m0" in EXP:
        I(f"s_mul_i32 s{sT2}, s2, {56*128}")
        I(f"s_cmp_eq_u32 s{sW}, 0")
        I(f"s_cselect_b32 s{sT3}, 0, {OOB}")
        I(f"s_add_u32 s{sT2}, s{sT2}, s{sT3}")
        I(f"s_mul_i32 s{sT4}, s2, {37*128}")
        I(f"s_cmp_eq_u32 s{sW}, 1")
        I(f"s_cselect_b32 s{sT3}, 0, {OOB}")
        I(f"s_add_u32 s{sT4}, s{sT4}, s{sT3}")
        I(f"v_min_u32 v{vT4}, 55, v{vLANE}")
        I(f"v_lshlrev_b32 v{vT4}, 7, v{vT4}")
        I(f"v_min_u32 v{vT5}, 36, v{vLANE}")
        I(f"v_lshlrev_b32 v{vT5}, 7, v{vT5}")
    I("s_waitcnt lgkmcnt(0)")
    I(f"s_mov_b64 s[{sWQKV}:{sWQKV+1}], s[66:67]")
    if "m0" in EXP:
        I(f"buffer_load_dword v{vDMY}, v{vT4}, {srd(sX)}, s{sT2} offen")
        I(f"buffer_load_dword v{vDMY}, v{vT5}, {srd(sWQKV)}, s{sT4} offen")
    if "t0" in EXP:
        I(f"buffer_load_dword v{vDMY}, v{vT5}, {srd(sX)}, s{sT4} offen")
        I(f"buffer_load_dword v{vDMY}, v{vT4}, {srd(sWQKV)}, s{sT2} offen")


def prologue2():
    I(f"v_and_b32 v{vM16}, 15, v{vLANE}")
    I(f"v_lshlrev_b32 v{vL16}, 4, v{vLANE}")
    I(f"v_mov_b32 v{vONE}, 1")
    I(f"s_and_b32 s{sXC}, s2, 7")
    I(f"s_lshr_b32 s{sLI}, s2, 3")
    I(f"s_and_b32 s{sT2}, s{sXC}, 1")
    I(f"s_lshl_b32 s{sT3}, s{sT2}, 3")
    I(f"s_lshr_b32 s{sT4}, s{sLI}, 2")
    I(f"s_add_u32 s{sJ}, s{sT3}, s{sT4}")
    I(f"s_lshl_b32 s{sGB}, s{sXC}, 1")
    I(f"s_and_b32 s{sT5}, s{sLI}, 1")
    I(f"s_add_u32 s{sGB}, s{sGB}, s{sT5}")
    I(f"s_lshr_b32 s{sJB}, s{sLI}, 1")
    I(f"s_mul_i32 s{sJC}, s{sT2}, 7")
    I(f"s_add_u32 s{sJC}, s{sJC}, s{sT4}")
    I(f"s_cmp_eq_u32 s{sT4}, 7")
    I(f"s_cselect_b32 s{sJC}, 15, s{sJC}")
    I(f"s_and_b32 s{sW3}, s{sW}, 3")
    I(f"s_lshr_b32 s{sWH}, s{sW}, 2")
    I(f"s_lshl_b32 s{sCL}, s{sW}, 10")
    for r, p, n in ((sWQKV, 66, 1204224), (sWPHI, 68, 25088), (sWO, 70, 401408),
                    (sWG, 74, 1605632), (sWU, 76, 1605632), (sWD, 78, 1605632), (sOUT, 80, 1835008),
                    (sDBG, 82, 256), (sWS, 84, 0x10000000)):
        I(f"s_mov_b64 s[{r}:{r+1}], s[{p}:{p+1}]")
        I(f"s_mov_b32 s{r+2}, {n}")
        I(f"s_mov_b32 s{r+3}, 0x20000")
    if STAMPS:
        I(f"s_lshl_b32 s{sSTO}, s2, 3")
        I(f"s_add_u32 s{sSTO}, s{sSTO}, s{sW}")
        I(f"s_lshl_b32 s{sSTO}, s{sSTO}, 7")
        I(f"s_add_u32 s{sSTO}, s{sSTO}, {WS_STAMP}")


POLL_MAX = 200000


def poll(srdreg, voff, target):
    lp, ld = g.newlabel("L_poll"), g.newlabel("L_pdone")
    I(f"s_mov_b32 s{sT5}, 0")
    g.label(lp)
    I(f"buffer_load_dword v{vFLAG}, v{voff}, {srd(srdreg)}, 0 offen sc1")
    I("s_waitcnt vmcnt(0)")
    I(f"v_readfirstlane_b32 s{sT4}, v{vFLAG}")
    I(f"s_add_u32 s{sT5}, s{sT5}, 1")
    I(f"s_cmp_ge_u32 s{sT5}, {POLL_MAX}")
    I(f"s_cbranch_scc1 {ld}")
    I(f"s_cmp_lt_u32 s{sT4}, {target}")
    I(f"s_cbranch_scc1 {lp}")
    g.label(ld)


def signal(kind, sidx, toks, first=False):
    g.wait(*toks)
    I("s_barrier")
    lab = g.newlabel("L_sig")
    I(f"s_cmp_lg_u32 s{sW}, 0")
    I(f"s_cbranch_scc1 {lab}")
    g.cond_begin()
    I("s_mov_b64 exec, 1")
    if first:
        l2 = g.newlabel("L_ini")
        I(f"v_readfirstlane_b32 s{sT4}, v{vINIT}")
        I(f"s_cmp_lg_u32 s{sT4}, 0")
        I(f"s_cbranch_scc1 {l2}")
        I(f"v_mov_b32 v{vCNT}, 0")
        poll(sDBG, vCNT, 1)
        g.label(l2)
    I(f"s_lshl_b32 s{sT0}, s{sidx}, 8")
    I(f"s_add_u32 s{sT0}, s{sT0}, {WS_CNT + kind * 4096}")
    I(f"v_mov_b32 v{vCNT}, s{sT0}")
    I(f"buffer_atomic_add v{vONE}, v{vCNT}, {srd(sWS)}, 0 offen sc1")
    I("s_mov_b64 exec, -1")
    g.cond_end()
    g.label(lab)


def waitflag(kind, sidx, target=16):
    lab = g.newlabel("L_w")
    I(f"s_cmp_lg_u32 s{sW}, 0")
    I(f"s_cbranch_scc1 {lab}")
    g.cond_begin()
    I("s_mov_b64 exec, 1")
    I(f"s_lshl_b32 s{sT0}, s{sidx}, 8")
    I(f"s_add_u32 s{sT0}, s{sT0}, {WS_CNT + kind * 4096}")
    I(f"v_mov_b32 v{vCNT}, s{sT0}")
    poll(sWS, vCNT, target)
    I("s_mov_b64 exec, -1")
    g.cond_end()
    g.label(lab)
    I("s_barrier")


def dma2(vaddr, srdreg, sbase, src_imm, lds_sreg, lds_imm, stmp=None):
    stmp = sT1 if stmp is None else stmp
    I(f"s_add_u32 m0, s{lds_sreg}, {lds_imm}")
    I(f"s_add_u32 s{stmp}, s{sbase}, {src_imm}")
    return I(f"buffer_load_dwordx4 v{vaddr}, {srd(srdreg)}, s{stmp} offen lds")


def xreduce(op, a, t, levels=(16, 32)):
    for lv in levels:
        I(f"v_mov_b32 v{t}, v{a}")
        I(f"v_permlane{lv}_swap_b32 v{a}, v{t}")
        I(f"{op} v{a}, v{a}, v{t}")


LOG2E = 1.4426950408889634

XF = 16
WR = 72
WPHI = 100
WPH2 = 108
SEL = 116
ACC = 124
ACCV = 132
WF = 140
TMP = 172
PH = 196
vXA0, vXA1, vWA, vTR, vXR0, vXR1, vCA = 204, 205, 206, 207, 208, 209, 252
vTRb, vTRc, vWOA = 211, 212, 213


def chain16(acc, rd, swap=False, depth=3, hook=None):
    toks = {}
    nb = depth + 1
    n = 14
    for c in range(depth):
        toks[c] = rd(c, WF + 8 * (c % nb))
    for c in range(n):
        if c + depth < n:
            toks[c + depth] = rd(c + depth, WF + 8 * ((c + depth) % nb))
        g.wait(toks[c])
        X = vr(XF + 4 * c, 4)
        for t in range(2):
            W = vr(WF + 8 * (c % nb) + 4 * t, 4)
            a = vr(acc + 4 * t, 4)
            C = a if c > 0 else "0"
            if swap:
                I(f"v_mfma_f32_16x16x32_bf16 {a}, {X}, {W}, {C}")
            else:
                I(f"v_mfma_f32_16x16x32_bf16 {a}, {W}, {X}, {C}")
        if hook is not None:
            hook(c)


def featmap(acc, out):
    pk = TMP
    p = acc
    e = TMP + 4
    mx, mn, t0, t1 = TMP + 12, TMP + 13, TMP + 14, TMP + 15
    for i in range(4):
        I(f"v_cvt_pk_bf16_f32 v{pk+i}, v{acc+2*i}, v{acc+2*i+1}")
    I(f"v_mfma_f32_16x16x32_bf16 {vr(p,4)}, {vr(WPHI,4)}, {vr(pk,4)}, 0")
    I(f"v_mfma_f32_16x16x32_bf16 {vr(p+4,4)}, {vr(WPHI+4,4)}, {vr(pk,4)}, 0")
    I(f"v_max3_f32 v{mx}, v{p}, v{p+1}, v{p+2}")
    I(f"v_min3_f32 v{mn}, v{p}, v{p+1}, v{p+2}")
    for i in (3, 5):
        I(f"v_max3_f32 v{mx}, v{mx}, v{p+i}, v{p+i+1}")
        I(f"v_min3_f32 v{mn}, v{mn}, v{p+i}, v{p+i+1}")
    for lv in (16, 32):
        I(f"v_mov_b32 v{t0}, v{mx}")
        I(f"v_mov_b32 v{t1}, v{mn}")
        I(f"v_permlane{lv}_swap_b32 v{mx}, v{t0}")
        I(f"v_permlane{lv}_swap_b32 v{mn}, v{t1}")
        I(f"v_max_f32 v{mx}, v{mx}, v{t0}")
        I(f"v_min_f32 v{mn}, v{mn}, v{t1}")
    I(f"v_mul_f32 v{mx}, {f32(-LOG2E)}, v{mx}")
    I(f"v_mul_f32 v{mn}, {f32(LOG2E)}, v{mn}")
    e2 = TMP + 16
    for i in range(7):
        I(f"v_fma_f32 v{e+i}, v{p+i}, s{sLOG}, v{mx}")
        I(f"v_fma_f32 v{e2+i}, -v{p+i}, s{sLOG}, v{mn}")
    for i in range(7):
        I(f"v_exp_f32 v{e+i}, v{e+i}")
        I(f"v_exp_f32 v{e2+i}, v{e2+i}")
    I(f"v_add_f32 v{mx}, v{e}, v{e+1}")
    I(f"v_add_f32 v{mn}, v{e2}, v{e2+1}")
    for i in range(2, 7):
        I(f"v_add_f32 v{mx}, v{mx}, v{e+i}")
        I(f"v_add_f32 v{mn}, v{mn}, v{e2+i}")
    for lv in (16, 32):
        I(f"v_mov_b32 v{t0}, v{mx}")
        I(f"v_mov_b32 v{t1}, v{mn}")
        I(f"v_permlane{lv}_swap_b32 v{mx}, v{t0}")
        I(f"v_permlane{lv}_swap_b32 v{mn}, v{t1}")
        I(f"v_add_f32 v{mx}, v{mx}, v{t0}")
        I(f"v_add_f32 v{mn}, v{mn}, v{t1}")
    I(f"v_rcp_f32 v{mx}, v{mx}")
    I(f"v_rcp_f32 v{mn}, v{mn}")
    for i in range(7):
        I(f"v_mul_f32 v{e+i}, v{e+i}, v{mx}")
        I(f"v_mul_f32 v{e2+i}, v{e2+i}, v{mn}")
    for i in range(3):
        I(f"v_cvt_pk_bf16_f32 v{out+i}, v{e+2*i}, v{e+2*i+1}")
        I(f"v_cvt_pk_bf16_f32 v{out+4+i}, v{e2+2*i}, v{e2+2*i+1}")
    I(f"v_cvt_pk_bf16_f32 v{out+3}, v{e+6}, 0")
    I(f"v_cvt_pk_bf16_f32 v{out+7}, v{e2+6}, 0")


def c_batch(mat, dbl, n0, n1, lds_base):
    t = None
    assert n0 % 8 == 0 and n1 % 8 == 0
    for i in range(n0 // 8, n1 // 8):
        t = dma2(vCA, sWG if mat == 0 else sWU, sCW, i * 8 * 8 * 3584 + dbl * 128, sCL, lds_base + (i * 8 - n0) * 1024)
    return t


def c_bg(mat, dbl, n0, n1, lds_base, after, gap=150):
    t = None
    for i in range(n0 // 8, n1 // 8):
        g.begin()
        t = dma2(vCA, sWG if mat == 0 else sWU, sCW, i * 8 * 8 * 3584 + dbl * 128, sCL, lds_base + (i * 8 - n0) * 1024, stmp=sBG)
        g.bg_add(g.end(), after, gap)
        NBG[0] += 1
    return t


NBG = [0]
TWD = {}
NWDBG = [0]


def bg(fn, after=None, gap=150):
    g.begin()
    r = fn()
    g.bg_add(g.end(), after, gap)
    NBG[0] += 1
    return r


def flush():
    g.mark(f"flush:{NBG[0]}")


def check_loop(issue, regs, tmp, body=None):
    lp, ld = g.newlabel("L_dp"), g.newlabel("L_dpd")
    I(f"s_mov_b32 s{sT5}, 0")
    g.label(lp)
    toks = issue()
    if body is not None:
        body(toks)
    g.wait(toks[-1])
    rs = list(regs)
    if len(rs) == 1:
        I(f"v_cmp_eq_u32 vcc, -1, v{rs[0]}")
    else:
        first = True
        acc = None
        while rs:
            if acc is None:
                if len(rs) >= 3:
                    I(f"v_max3_u32 v{tmp}, v{rs[0]}, v{rs[1]}, v{rs[2]}")
                    rs = rs[3:]
                else:
                    I(f"v_max_u32 v{tmp}, v{rs[0]}, v{rs[1]}")
                    rs = rs[2:]
                acc = tmp
            elif len(rs) >= 2:
                I(f"v_max3_u32 v{tmp}, v{tmp}, v{rs[0]}, v{rs[1]}")
                rs = rs[2:]
            else:
                I(f"v_max_u32 v{tmp}, v{tmp}, v{rs[0]}")
                rs = rs[1:]
        I(f"v_cmp_eq_u32 vcc, -1, v{tmp}")
    I(f"s_add_u32 s{sT5}, s{sT5}, 1")
    I(f"s_cmp_ge_u32 s{sT5}, {POLL_MAX}")
    I(f"s_cbranch_scc1 {ld}")
    I(f"s_cmp_lg_u64 vcc, 0")
    I(f"s_cbranch_scc1 {lp}")
    g.label(ld)


def sent_check(regs, tmp):
    rs = list(regs)
    acc = None
    while rs:
        if acc is None:
            if len(rs) >= 3:
                I(f"v_max3_u32 v{tmp}, v{rs[0]}, v{rs[1]}, v{rs[2]}")
                rs = rs[3:]
            else:
                I(f"v_max_u32 v{tmp}, v{rs[0]}, v{rs[1]}")
                rs = rs[2:]
            acc = tmp
        elif len(rs) >= 2:
            I(f"v_max3_u32 v{tmp}, v{tmp}, v{rs[0]}, v{rs[1]}")
            rs = rs[2:]
        else:
            I(f"v_max_u32 v{tmp}, v{tmp}, v{rs[0]}")
            rs = rs[1:]
    I(f"v_cmp_eq_u32 vcc, -1, v{tmp}")


TAILS = []


def spec_load(issue, regs, tmp, body=None, filler=None):
    lr, lb = g.newlabel("L_sr"), g.newlabel("L_sb")
    toks = issue()
    if filler is not None:
        filler()
    if body is not None:
        body(toks)
    g.wait(toks[-1])
    sent_check(regs, tmp)
    I(f"s_cmp_lg_u64 vcc, 0")
    I(f"s_cbranch_scc1 {lr}")
    g.label(lb)
    g.begin()
    g.label(lr)
    check_loop(issue, regs, tmp, body)
    I(f"s_branch {lb}")
    TAILS.append(g.end())


def c_setup():
    I(f"v_lshrrev_b32 v{vT0}, 3, v{vLANE}")
    I(f"v_mul_u32_u24 v{vT1}, 3584, v{vT0}")
    I(f"v_and_b32 v{vT2}, 1, v{vG}")
    I(f"v_lshlrev_b32 v{vT2}, 2, v{vT2}")
    I(f"v_and_b32 v{vCA}, 7, v{vLANE}")
    I(f"v_xor_b32 v{vCA}, v{vCA}, v{vT2}")
    I(f"v_lshl_add_u32 v{vCA}, v{vCA}, 4, v{vT1}")
    I(f"s_cmp_ge_u32 s{sJC}, 14")
    I(f"s_cselect_b32 s{sT0}, {OOB}, 0")
    I(f"v_add_u32 v{vCA}, s{sT0}, v{vCA}")
    I(f"s_mul_i32 s{sCW}, s{sW}, {8*3584}")
    I(f"s_lshl_b32 s{sT0}, s{sJC}, 8")
    I(f"s_add_u32 s{sCW}, s{sCW}, s{sT0}")


def touch1():
    I(f"s_mul_i32 s{sT0}, s{sLI}, {98*128}")
    I(f"s_mul_i32 s{sT1}, s{sW}, {13*128}")
    I(f"s_add_u32 s{sT0}, s{sT0}, s{sT1}")
    I(f"v_lshlrev_b32 v{vT0}, 7, v{vLANE}")
    I(f"v_mov_b32 v{vT2}, {OOB}")
    I(f"v_cmp_gt_u32 vcc, 13, v{vLANE}")
    I(f"v_cndmask_b32 v{vT0}, v{vT2}, v{vT0}, vcc")
    I(f"buffer_load_dword v{vDMY}, v{vT0}, {srd(sWO)}, s{sT0} offen")
    I(f"s_lshr_b32 s{sT0}, s{sW}, 1")
    I(f"s_lshl_b32 s{sT2}, s{sT0}, 2")
    I(f"s_mul_i32 s{sT0}, s{sT0}, {4*3584}")
    I(f"s_mul_i32 s{sT1}, s{sLI}, {14*3584}")
    I(f"s_add_u32 s{sT0}, s{sT0}, s{sT1}")
    I(f"s_and_b32 s{sT1}, s{sXC}, 1")
    I(f"s_mul_i32 s{sT1}, s{sT1}, 1792")
    I(f"s_add_u32 s{sT0}, s{sT0}, s{sT1}")
    I(f"v_mul_u32_u24 v{vT0}, 3584, v{vG}")
    I(f"v_lshl_add_u32 v{vT0}, v{vM16}, 7, v{vT0}")
    I(f"v_cmp_gt_u32 vcc, 14, v{vM16}")
    I(f"v_cndmask_b32 v{vT0}, v{vT2}, v{vT0}, vcc")
    I(f"v_add_u32 v{vT1}, s{sT2}, v{vG}")
    I(f"v_cmp_gt_u32 vcc, 14, v{vT1}")
    I(f"v_cndmask_b32 v{vT0}, v{vT2}, v{vT0}, vcc")
    I(f"buffer_load_dword v{vDMY}, v{vT0}, s[4:7], s{sT0} offen")


def touch2(t1=None, dst=247):
    t1 = vT1 if t1 is None else t1
    I(f"s_mul_i32 s{sT2}, s{sLI}, {392*128}")
    I(f"s_mul_i32 s{sT1}, s{sW}, {49*128}")
    I(f"s_add_u32 s{sT2}, s{sT2}, s{sT1}")
    I(f"v_min_u32 v{t1}, 48, v{vLANE}")
    I(f"v_lshlrev_b32 v{t1}, 7, v{t1}")
    I(f"buffer_load_dword v{dst}, v{t1}, {srd(sWD)}, s{sT2} offen")


TP_N = [0]
sTCH = 3
vTCH, vTCD = 96 + 3, 96 + 2


def tpiece(addr=None, dst=None):
    if "tp" not in EXP or TP_N[0] >= 7:
        return
    k = TP_N[0]
    TP_N[0] += 1
    a = vTCH if addr is None else addr
    d = vTCD if dst is None else dst
    if k == 0:
        I(f"s_mul_i32 s{sTCH}, s{sLI}, {392*128}")
        I(f"s_mul_i32 s{sBG}, s{sW}, {49*128}")
        I(f"s_add_u32 s{sTCH}, s{sTCH}, s{sBG}")
    I(f"v_min_u32 v{a}, 6, v{vLANE}")
    I(f"v_lshlrev_b32 v{a}, 7, v{a}")
    I(f"buffer_load_dword v{d}, v{a}, {srd(sWD)}, s{sTCH} offen offset:{(k % 4) * 896}")
    if k == 3:
        I(f"s_add_u32 s{sTCH}, s{sTCH}, 3584")


def mall_touch():
    I(f"s_mov_b64 s[4:5], s[{sWG}:{sWG+1}]")
    for w_, r in ((1, sWU), (2, sWD), (3, sWO)):
        I(f"s_cmp_eq_u32 s{sW}, {w_}")
        I(f"s_cselect_b32 s4, s{r}, s4")
        I(f"s_cselect_b32 s5, s{r+1}, s5")
    I(f"s_mov_b32 s6, 1605632")
    I(f"s_cmov_b32 s6, 401408")
    I(f"s_mov_b32 s7, 0x20000")
    I(f"s_mov_b32 s{sT0}, 49")
    I(f"s_cmov_b32 s{sT0}, 13")
    I(f"s_mul_i32 s{sT1}, s2, s{sT0}")
    I(f"s_lshl_b32 s{sT1}, s{sT1}, 7")
    I(f"s_sub_u32 s{sT0}, s{sT0}, 1")
    I(f"s_cmp_ge_u32 s{sW}, 4")
    I(f"s_cselect_b32 s{sT2}, {OOB}, 0")
    I(f"s_add_u32 s{sT1}, s{sT1}, s{sT2}")
    I(f"v_min_u32 v{vTCH}, s{sT0}, v{vLANE}")
    I(f"v_lshlrev_b32 v{vTCH}, 7, v{vTCH}")
    I(f"buffer_load_dword v{vTCD}, v{vTCH}, s[4:7], s{sT1} offen")


sNQ, sMTB, sCSS, sMTC = 76, 77, 78, 79
sINV = 69
vT8, vCSS, vHSA, vSSA = 210, 214, 215, 199 + 0


def addr_setup():
    I(f"s_lshl_b32 s{sGATH}, s{sJ}, 16")
    I(f"s_add_u32 s{sGATH}, s{sGATH}, {WS_KVP}")
    I(f"s_lshl_b32 s{sKVS}, s{sG}, 12")
    I(f"s_add_u32 s{sKVS}, s{sKVS}, s{sGATH}")
    I(f"s_lshl_b32 s{sOS}, s{sA}, 4")
    I(f"s_add_u32 s{sOS}, s{sOS}, s{sJ}")
    I(f"s_lshl_b32 s{sOS}, s{sOS}, 10")
    I(f"s_add_u32 s{sOS}, s{sOS}, {WS_O}")
    I(f"s_lshl_b32 s{sCSS}, s{sJC}, 4")
    I(f"s_add_u32 s{sCSS}, s{sCSS}, s{sG}")
    I(f"s_lshl_b32 s{sCSS}, s{sCSS}, 10")
    I(f"s_add_u32 s{sCSS}, s{sCSS}, {WS_CS}")
    I(f"s_and_b32 s{sNQ}, s{sJB}, 3")
    I(f"s_lshr_b32 s{sMTB}, s{sJB}, 2")
    I(f"s_lshl_b32 s{sT0}, s{sGB}, 2")
    I(f"s_add_u32 s{sMTB}, s{sMTB}, s{sT0}")
    I(f"s_mul_i32 s{sHS}, s{sMTB}, 28")
    I(f"s_lshl_b32 s{sT1}, s{sNQ}, 3")
    I(f"s_add_u32 s{sHS}, s{sHS}, s{sT1}")
    I(f"s_lshl_b32 s{sHS}, s{sHS}, 10")
    I(f"s_add_u32 s{sHS}, s{sHS}, {WS_H}")
    I(f"s_lshl_b32 s{sSS}, s{sMTB}, 2")
    I(f"s_add_u32 s{sSS}, s{sSS}, s{sNQ}")
    I(f"s_lshl_b32 s{sSS}, s{sSS}, 9")
    I(f"s_add_u32 s{sSS}, s{sSS}, {WS_ST}")
    I(f"s_lshl_b32 s{sMTC}, s{sG}, 2")
    I(f"s_add_u32 s{sMTC}, s{sMTC}, s{sW3}")
    I(f"s_mul_i32 s{sHHS}, s{sMTC}, {112*1024}")
    I(f"s_lshl_b32 s{sT0}, s{sJC}, 13")
    I(f"s_add_u32 s{sHHS}, s{sHHS}, s{sT0}")
    I(f"s_lshl_b32 s{sT0}, s{sWH}, 11")
    I(f"s_add_u32 s{sHHS}, s{sHHS}, s{sT0}")
    I(f"s_add_u32 s{sHHS}, s{sHHS}, {WS_HH}")
    I(f"s_cmp_ge_u32 s{sJC}, 14")
    I(f"s_cselect_b32 s{sT0}, {OOB}, 0")
    I(f"s_add_u32 s{sHHS}, s{sHHS}, s{sT0}")
    I(f"v_lshlrev_b32 v{vT8}, 3, v0")
    I(f"s_cmp_ge_u32 s{sW}, 4")
    I(f"s_cselect_b32 s{sT0}, {OOB}, 0")
    I(f"v_lshlrev_b32 v{vCSS}, 2, v0")
    I(f"v_add_u32 v{vCSS}, s{sT0}, v{vCSS}")
    I(f"s_lshl_b32 s{sT0}, s{sWH}, 12")
    I(f"s_lshl_b32 s{sT1}, s{sW3}, 7")
    I(f"s_add_u32 s{sT0}, s{sT0}, s{sT1}")
    I(f"s_lshl_b32 s{sT1}, s{sNQ}, 1")
    I(f"s_add_u32 s{sT1}, s{sT1}, s{sWH}")
    I(f"s_cmp_eq_u32 s{sT1}, 7")
    I(f"s_cselect_b32 s{sINV}, {OOB}, 0")
    I(f"s_add_u32 s{sT0}, s{sT0}, s{sINV}")
    I(f"v_lshrrev_b32 v{vT1}, 3, v{vLANE}")
    I(f"v_lshlrev_b32 v{vHSA}, 9, v{vT1}")
    I(f"v_and_b32 v{vT0}, 7, v{vLANE}")
    I(f"v_lshl_add_u32 v{vHSA}, v{vT0}, 4, v{vHSA}")
    I(f"v_add_u32 v{vHSA}, s{sT0}, v{vHSA}")


def stats_addr(dst, t0, t1):
    I(f"s_lshl_b32 s{sBG}, s{sW}, 6")
    I(f"v_lshlrev_b32 v{t0}, 3, v{vLANE}")
    I(f"v_add_u32 v{t0}, s{sBG}, v{t0}")
    I(f"v_mov_b32 v{t1}, {OOB}")
    I(f"v_cmp_gt_u32 vcc, 8, v{vLANE}")
    I(f"v_cndmask_b32 v{dst}, v{t1}, v{t0}, vcc")


def sentinels0():
    lab = g.newlabel("L_init")
    I(f"s_lshl_b32 s{sT0}, s2, 3")
    I(f"s_add_u32 s{sT0}, s{sT0}, s{sW}")
    I(f"s_cmp_lg_u32 s{sT0}, 7")
    I(f"s_cbranch_scc1 {lab}")
    g.cond_begin()
    I(f"v_lshlrev_b32 v{vT0}, 8, v{vLANE}")
    I(f"v_mov_b32 v{vT1}, 0")
    I(f"buffer_store_dword v{vT1}, v{vT0}, {srd(sWS)}, 0 offen sc1")
    g.cond_end()
    g.label(lab)
    SN = 216
    for i in range(4):
        I(f"v_mov_b32 v{SN+i}, -1")
    I(f"buffer_store_dwordx2 {vr(SN,2)}, v{vT8}, {srd(sWS)}, s{sKVS} offen sc1")
    I(f"buffer_store_dwordx4 {vr(SN,4)}, v{vL16}, {srd(sWS)}, s{sOS} offen sc1")


def sentinels():
    SN = 216
    I(f"buffer_store_dword v{SN}, v{vCSS}, {srd(sWS)}, s{sCSS} offen sc1")
    I(f"s_add_u32 s{sBG}, s{sHS}, s{sCL}")
    I(f"s_add_u32 s{sBG}, s{sBG}, s{sINV}")
    I(f"buffer_store_dwordx4 {vr(SN,4)}, v{vL16}, {srd(sWS)}, s{sBG} offen sc1")
    stats_addr(SN + 4, SN + 4, SN + 5)
    return I(f"buffer_store_dwordx2 {vr(SN,2)}, v{SN+4}, {srd(sWS)}, s{sSS} offen sc1")


def sent_hh(k):
    SN = 216
    I(f"s_add_u32 s{sBG}, s{sHHS}, {(k>>1)*4096 + (k&1)*1024}")
    return I(f"buffer_store_dwordx4 {vr(SN,4)}, v{vL16}, {srd(sWS)}, s{sBG} offen sc1")


def init_signal():
    lab = g.newlabel("L_is")
    I(f"s_cmp_lg_u32 s{sW}, 5")
    I(f"s_cbranch_scc1 {lab}")
    g.cond_begin()
    I("s_mov_b64 exec, 1")
    I(f"s_and_b32 s{sT0}, s2, 15")
    I(f"s_lshl_b32 s{sT0}, s{sT0}, 4")
    I(f"v_mov_b32 v{vCNT}, s{sT0}")
    I(f"buffer_atomic_add v{vONE}, v{vCNT}, {srd(sDBG)}, 0 offen sc1")
    I("s_mov_b64 exec, -1")
    g.cond_end()
    g.label(lab)


def init_check():
    lp, ld = g.newlabel("L_ic"), g.newlabel("L_icd")
    I(f"v_lshlrev_b32 v{vCNT}, 4, v{vM16}")
    I(f"s_mov_b32 s{sT5}, 0")
    g.label(lp)
    I("s_sleep 8")
    t = I(f"buffer_load_dword v{vINIT}, v{vCNT}, {srd(sDBG)}, 0 offen sc1")
    g.wait(t)
    I(f"v_cmp_gt_u32 vcc, 16, v{vINIT}")
    I(f"s_add_u32 s{sT5}, s{sT5}, 1")
    I(f"s_cmp_ge_u32 s{sT5}, {POLL_MAX}")
    I(f"s_cbranch_scc1 {ld}")
    I(f"s_cmp_lg_u64 vcc, 0")
    I(f"s_cbranch_scc1 {lp}")
    g.label(ld)


def phaseA():
    g.comment("==== phase A ====")
    if STAMPS:
        I("s_memrealtime s[96:97]")
        I("s_memtime s[94:95]")
        I("s_waitcnt lgkmcnt(0)")
        I("v_mov_b32 v250, s96")
        I("v_mov_b32 v251, s94")
    tx = {}
    for seg in range(7):
        for o in range(2):
            I(f"s_add_u32 m0, s{sLW}, {(o*7+seg)*1024 - seg*128}")
            tx[seg] = I(f"buffer_load_dwordx4 v{vXA1 if o else vXA0}, {srd(sX)}, s{sC if o else sB} offen offset:{seg*128} lds")
    I("s_setprio 2")
    if "cp0" not in EXP and "nocp" not in EXP:
        I(f"global_load_dword v{vDMY}, v{vINIT}, s[4:5]")
    PW = int(os.environ.get("PW", "1"))
    for i in range(PW):
        dma2(vWA, sWQKV, sD, 896 + i * 8 * 16 * 2688, sCL, LDS_WK + i * 8192)
    prologue2()
    if STAMPS:
        for nm, r in (("rt0", 250), ("start", 251)):
            g.cond_begin()
            I(f"buffer_store_dword v{r}, off, {srd(sWS)}, s{sSTO} offset:{4*nstamp[0]}")
            g.cond_end()
            nstamp[0] += 1
            stamp_names.append(nm)
    I(f"s_mov_b32 s{sLOG}, {f32(LOG2E)}")
    bgl = []
    bt = {}

    def bg_add(name, fn):
        bgl.append((name, fn))

    def bgq(n=1):
        for _ in range(n):
            if bgl:
                name, fn = bgl.pop(0)
                bt[name] = fn()

    def wk3():
        I(f"s_cmp_ge_u32 s{sW}, 4")
        I(f"s_cselect_b32 s{sT0}, {OOB}, 0")
        I(f"s_add_u32 s{sT0}, s{sT0}, s{sD}")
        dma2(vWA, sWQKV, sT0, 896 + 3 * 8 * 16 * 2688, sCL, LDS_WK + 3 * 8192)
        I(f"v_lshlrev_b32 v{vT0}, 4, v0")
        I(f"v_mov_b32 v{vT1}, {OOB}")
        I(f"v_cmp_gt_u32 vcc, 98, v0")
        I(f"v_cndmask_b32 v{vT0}, v{vT1}, v{vT0}, vcc")
        I(f"s_min_u32 s{sT0}, s{sCL}, 2048")
        I(f"s_add_u32 m0, s{sT0}, {LDS_WPL}")
        I(f"s_mul_i32 s{sT0}, s{sJ}, 1568")
        return I(f"buffer_load_dwordx4 v{vT0}, {srd(sWPHI)}, s{sT0} offen lds")
    for i in range(PW, 3):
        bg_add(f"wk{i}", lambda i=i: dma2(vWA, sWQKV, sD, 896 + i * 8 * 16 * 2688, sCL, LDS_WK + i * 8192))
    bg_add("s0", sentinels0)
    bg_add("wk3", wk3)
    addr_setup()
    I(f"s_cmp_ge_u32 s{sW}, 4")
    I(f"s_cselect_b32 s{sE}, {(24-4)*16*2688}, {1792 + 24*16*2688}" if False else f"s_mov_b32 s{sE}, {1792 + 24*16*2688}")
    I(f"s_cmov_b32 s{sE}, {20*16*2688}")

    I(f"s_cselect_b32 s{sKC}, 10240, 0")
    I(f"s_max_u32 s{sKC}, s{sKC}, 3072")
    I(f"s_add_u32 s{sKC}, s{sKC}, s{sLW}")
    I(f"s_add_u32 s{sE}, s{sE}, s{sD}")

    def rawW(i):
        if i == 3:
            I(f"s_mov_b32 m0, s{sKC}")
            I("s_nop 0")
            return I(f"buffer_load_dwordx4 v{vWA}, {srd(sWQKV)}, s{sE} offen lds")
        off = 1792 + i * 8 * 16 * 2688 if i < 3 else (i - 4) * 8 * 16 * 2688
        return dma2(vWA, sWQKV, sD, off, sLW, i * 1024 if i < 3 else 10240 + (i - 3) * 1024)
    for i in range(4):
        bg_add(f"w{i}", lambda i=i: rawW(i))
    I(f"v_lshrrev_b32 v{vT0}, 3, v{vM16}")
    I(f"v_mul_u32_u24 v{vT0}, 7168, v{vT0}")
    I(f"v_add_u32 v{vT0}, s{sLW}, v{vT0}")
    I(f"v_and_b32 v{vT1}, 7, v{vM16}")
    I(f"v_lshl_add_u32 v{vT0}, v{vT1}, 7, v{vT0}")
    I(f"v_lshrrev_b32 v{vT1}, 1, v{vM16}")
    I(f"v_xor_b32 v{vT1}, v{vT1}, v{vG}")
    I(f"v_lshl_add_u32 v{vXR0}, v{vT1}, 4, v{vT0}")
    I(f"v_xor_b32 v{vXR1}, 64, v{vXR0}")
    I(f"v_bfe_u32 v{vT0}, v{vLANE}, 2, 2")
    I(f"v_lshl_add_u32 v{vT0}, v{vG}, 3, v{vT0}")
    I(f"v_lshlrev_b32 v{vT0}, 6, v{vT0}")
    I(f"v_and_b32 v{vT1}, 3, v{vLANE}")
    I(f"s_and_b32 s{sT1}, s{sJ}, 1")
    I(f"v_add_u32 v{vT1}, s{sT1}, v{vT1}")
    I(f"v_and_b32 v{vT2}, 1, v{vG}")
    I(f"v_lshlrev_b32 v{vT2}, 2, v{vT2}")
    I(f"v_xor_b32 v{vT1}, v{vT1}, v{vT2}")
    I(f"v_lshl_add_u32 v{vTR}, v{vT1}, 3, v{vT0}")
    I(f"v_lshrrev_b32 v{vT0}, 2, v{vM16}")
    I(f"v_and_b32 v{vT1}, 3, v{vM16}")
    I(f"v_cmp_eq_u32 vcc, v{vT0}, v{vG}")
    I(f"v_cndmask_b32 v{vT1}, 7, v{vT1}, vcc")
    I(f"v_mov_b32 v{vT3}, 0x3f80")
    I(f"v_mov_b32 v{vT4}, 0x3f800000")
    for i in range(2):
        I(f"v_cmp_eq_u32 vcc, {2*i}, v{vT1}")
        I(f"v_cndmask_b32 v{vT2}, 0, v{vT3}, vcc")
        I(f"v_cmp_eq_u32 vcc, {2*i+1}, v{vT1}")
        I(f"v_cndmask_b32 v{SEL+i}, v{vT2}, v{vT4}, vcc")
        I(f"v_mov_b32 v{SEL+6+i}, v{SEL+i}")
    for i in (2, 3, 4, 5):
        I(f"v_mov_b32 v{SEL+i}, 0")
    S1, S2 = ACC, ACC + 4
    for i in range(8):
        I(f"v_mov_b32 v{ACC+i}, 0")
    I(f"v_mov_b32 v{vT5}, 0x3f803f80")
    I(f"v_lshlrev_b32 v{vT0}, 2, v{vLANE}")
    I(f"v_add_u32 v{vT0}, {LDS_FLG}, v{vT0}")
    I(f"ds_write_b32 v{vT0}, v{ACC}")
    tw = {}
    if "tlb" in EXP:
        STR_ = int(os.environ.get("TLBS", "16"))
        I(f"v_lshlrev_b32 v{vT0}, {STR_}, v{vLANE}")
        lend = g.newlabel("L_tl")
        tb = [(sWO, 0), (sWG, 0), (sWU, 0), (sWD, 0), (sOUT, 0), (sWS, 0), (sWS, 0x400000), (sWS, 0x800000)]
        for w_, (r, off) in enumerate(tb):
            l2 = g.newlabel("L_tl")
            if w_ < 7:
                I(f"s_cmp_lg_u32 s{sW}, {w_}")
                I(f"s_cbranch_scc1 {l2}")
                g.cond_begin()
            I(f"s_mov_b32 s{sT0}, {off}")
            I(f"buffer_load_dword v{vDMY}, v{vT0}, {srd(r)}, s{sT0} offen")
            if w_ < 7:
                g.cond_end()
                I(f"s_branch {lend}")
                g.label(l2)
        g.label(lend)
    if "mt0" in EXP:
        mall_touch()
    bgq(int(os.environ.get("P0", "2")))
    SH = eval(os.environ.get("SH", "(1,3,5)"))
    NH = eval(os.environ.get("NH", "(0,8,16)"))
    for seg in range(7):
        g.wait(tx[seg])
        I(f"ds_read_b128 {vr(XF+8*seg,4)}, v{vXR0} offset:{seg*1024}")
        t = I(f"ds_read_b128 {vr(XF+8*seg+4,4)}, v{vXR1} offset:{seg*1024}")
        if seg in SH:
            bgq()
        g.wait(t)
        for k in range(8):
            r = XF + 8 * seg + k
            I(f"v_dot2_f32_bf16 v{S1+k%4}, v{r}, v{vT5}, v{S1+k%4}")
            I(f"v_dot2_f32_bf16 v{S2+k%4}, v{r}, v{r}, v{S2+k%4}")
    I("s_setprio 1")
    stamp("x stats")
    I(f"v_add_f32 v{S1}, v{S1}, v{S1+1}")
    I(f"v_add_f32 v{S1+2}, v{S1+2}, v{S1+3}")
    I(f"v_add_f32 v{S2}, v{S2}, v{S2+1}")
    I(f"v_add_f32 v{S2+2}, v{S2+2}, v{S2+3}")
    I(f"v_add_f32 v{S1}, v{S1}, v{S1+2}")
    I(f"v_add_f32 v{S2}, v{S2}, v{S2+2}")
    for lv in (16, 32):
        I(f"v_mov_b32 v{S1+1}, v{S1}")
        I(f"v_mov_b32 v{S2+1}, v{S2}")
        I(f"v_permlane{lv}_swap_b32 v{S1}, v{S1+1}")
        I(f"v_permlane{lv}_swap_b32 v{S2}, v{S2+1}")
        I(f"v_add_f32 v{S1}, v{S1}, v{S1+1}")
        I(f"v_add_f32 v{S2}, v{S2}, v{S2+1}")
    I(f"v_mul_f32 v{S1}, {f32(1/448)}, v{S1}")
    I(f"v_mul_f32 v{S2}, {f32(1/448)}, v{S2}")
    I(f"v_fma_f32 v{S2}, -v{S1}, v{S1}, v{S2}")
    I(f"v_max_f32 v{S2}, 0, v{S2}")
    I(f"v_add_f32 v{S2}, {f32(1e-5)}, v{S2}")
    RS, NB = ACCV, ACCV + 2
    I(f"v_rsq_f32 v{RS}, v{S2}")
    I(f"v_mul_f32 v{NB}, v{S1}, v{RS}")
    I(f"v_sub_f32 v{NB}, 0, v{NB}")
    I(f"v_mov_b32 v{RS+1}, v{RS}")
    I(f"v_mov_b32 v{NB+1}, v{NB}")
    TP = WF
    CSR = 248
    tcs = tinit = None
    for k in range(0, 56, 8):
        for u in range(8):
            I(f"v_lshlrev_b32 v{TP+2*u}, 16, v{XF+k+u}")
            I(f"v_and_b32 v{TP+2*u+1}, 0xffff0000, v{XF+k+u}")
        for u in range(8):
            I(f"v_pk_fma_f32 {vr(TP+2*u,2)}, {vr(TP+2*u,2)}, {vr(RS,2)}, {vr(NB,2)}")
        for u in range(8):
            I(f"v_cvt_pk_bf16_f32 v{XF+k+u}, v{TP+2*u}, v{TP+2*u+1}")
        if k in NH:
            bgq()
    I("s_setprio 0")
    stamp("normalized")
    I(f"v_mul_u32_u24 v{vT0}, 224, v{vG}")
    I(f"v_add_u32 v{vT0}, {LDS_WPL}, v{vT0}")
    I(f"v_lshl_add_u32 v{TMP}, v{vM16}, 1, v{vT0}")
    I(f"v_lshrrev_b32 v{vT2}, 2, v{vM16}")
    I(f"v_sub_u32 v{vT2}, v{vM16}, v{vT2}")
    I(f"v_lshl_add_u32 v{vT2}, v{vT2}, 1, v{vT0}")
    I(f"v_add_u32 v{TMP+1}, 32, v{vT2}")
    I(f"v_mov_b32 v{vT1}, {LDS_WPL + 1600}")
    I(f"v_and_b32 v{vT2}, 3, v{vM16}")
    I(f"v_cmp_eq_u32 vcc, 3, v{vT2}")
    I(f"v_cndmask_b32 v{TMP+1}, v{TMP+1}, v{vT1}, vcc")
    I(f"v_cmp_eq_u32 vcc, 3, v{vG}")
    I(f"v_cndmask_b32 v{TMP+2}, v{TMP}, v{vT1}, vcc")
    I(f"v_cndmask_b32 v{TMP+3}, v{TMP+1}, v{vT1}, vcc")
    I(f"v_add_u32 v{vTRb}, {LDS_WK}, v{vTR}")
    I(f"v_xor_b32 v{vTRc}, 32, v{vTRb}")
    def cs_loads():
        I(f"s_and_b32 s{sT0}, s{sW}, 1")
        I(f"s_cmp_eq_u32 s{sT0}, 1")
        I(f"s_cselect_b32 s4, s{sWU}, s{sWG}")
        I(f"s_cselect_b32 s5, s{sWU+1}, s{sWG+1}")
        I(f"s_mov_b32 s6, 1605632")
        I(f"s_mov_b32 s7, 0x20000")
        I(f"s_lshl_b32 s{sT0}, s{sG}, 2")
        I(f"s_lshr_b32 s{sT1}, s{sW}, 1")
        I(f"s_add_u32 s{sT0}, s{sT0}, s{sT1}")
        I(f"s_mul_i32 s{sT0}, s{sT0}, {7*3584}")
        I(f"s_lshl_b32 s{sT1}, s{sJC}, 8")
        I(f"s_add_u32 s{sT0}, s{sT0}, s{sT1}")
        I(f"s_cmp_ge_u32 s{sJC}, 14")
        I(f"s_cselect_b32 s{sT1}, {OOB}, 0")
        I(f"v_lshlrev_b32 v{vXA0}, 2, v{vLANE}")
        I(f"v_add_u32 v{vXA0}, s{sT1}, v{vXA0}")
        for r in range(7):
            if r:
                I(f"s_add_u32 s{sT0}, s{sT0}, 3584")
            tcs_ = I(f"buffer_load_dword v{CSR+r}, v{vXA0}, s[4:7], s{sT0} offen")
        return tcs_

    def init_load():
        I(f"v_mov_b32 v{vCNT}, 0")
        return I(f"buffer_load_dword v{vINIT}, v{vCNT}, {srd(sDBG)}, 0 offen sc1")
    bg_add("sent", sentinels)
    bg_add("cs", cs_loads)
    for i in (4, 5, 6):
        bg_add(f"w{i}", lambda i=i: rawW(i))
    bgq(int(os.environ.get("PRE1", "2")))
    g.wait(bt["wk3"])
    g.wait_all(vm=False)
    I("s_barrier")
    init_signal()
    if "mt1" in EXP:
        mall_touch()
    for _ in range(int(os.environ.get("TPA", "2"))):
        tpiece()

    def rdk(c, dst):
        I(f"ds_read_b64_tr_b16 {vr(dst,2)}, v{vTRb} offset:{c*2048}")
        I(f"ds_read_b64_tr_b16 {vr(dst+2,2)}, v{vTRb} offset:{c*2048+256}")
        I(f"ds_read_b64_tr_b16 {vr(dst+4,2)}, v{vTRc} offset:{c*2048}")
        return I(f"ds_read_b64_tr_b16 {vr(dst+6,2)}, v{vTRc} offset:{c*2048+256}")

    tphi = None
    for u in range(2):
        for j in range(8):
            d0 = j if j < 4 else 16 + j - 4
            va = TMP + u + (2 if j >= 4 else 0)
            dst = (WPH2 if j & 1 else WPHI) + 4 * u + j // 2
            tphi = I(f"ds_read_u16 v{dst}, v{va} offset:{d0*56}")
    I(f"v_lshrrev_b32 v{vWOA}, 3, v{vLANE}")
    I(f"v_mul_u32_u24 v{vWOA}, 896, v{vWOA}")
    I(f"v_and_b32 v{vT1}, 7, v{vLANE}")
    I(f"v_lshlrev_b32 v{vT2}, 1, v{vG}")
    I(f"v_xor_b32 v{vT1}, v{vT1}, v{vT2}")
    I(f"v_lshl_add_u32 v{vWOA}, v{vT1}, 4, v{vWOA}")
    I(f"s_lshl_b32 s{sWOB}, s{sNQ}, 1")
    I(f"s_add_u32 s{sWOB}, s{sWOB}, s{sWH}")
    I(f"s_cmp_eq_u32 s{sWOB}, 7")
    I(f"s_cselect_b32 s{sT1}, {OOB}, 0")
    I(f"s_lshl_b32 s{sWOB}, s{sWOB}, 7")
    I(f"s_add_u32 s{sWOB}, s{sWOB}, s{sT1}")
    I(f"s_mul_i32 s{sT1}, s{sW3}, {112*896}")
    I(f"s_add_u32 s{sWOB}, s{sWOB}, s{sT1}")
    two = {}

    def wo_load(i):
        two[i] = dma2(vWOA, sWO, sWOB, i * 8 * 896, sLW, i * 1024, stmp=sBG)
    for i in range(4, 10):
        bg_add(f"wo{i}", lambda i=i: wo_load(i))
    KH = eval(os.environ.get('KH', '(2, 6, 10)'))
    chain16(ACC, rdk, hook=lambda c: bgq() if c in KH else None)
    for i in range(8):
        I(f"v_lshl_or_b32 v{WPHI+i}, v{WPH2+i}, 16, v{WPHI+i}")
    stamp("k chain")
    I(f"v_lshrrev_b32 v{vT0}, 1, v{vG}")
    I(f"v_mul_u32_u24 v{vT0}, {UNIT-1024}, v{vT0}")
    I(f"v_add_u32 v{vTRb}, v{vT0}, v{vTR}")
    I(f"v_xor_b32 v{vTRc}, 32, v{vTRb}")
    I(f"v_add_u32 v{vXR0}, 57344, v{vTRb}")
    I(f"v_add_u32 v{vXR1}, 57344, v{vTRc}")
    g.wait(bt['w3'])
    I("s_barrier")
    stamp("wv ready")
    if "mt2" in EXP:
        mall_touch()
    for _ in range(int(os.environ.get("TPB", "3"))):
        tpiece()

    def rdw(isq):
        def rd(c, dst):
            n0 = 2 * c
            if not isq:
                unit, off = n0 % 8, (n0 // 8) * 1024
            elif n0 < 24:
                unit, off = n0 % 8, 10240 + (1 + n0 // 8) * 1024
            else:
                unit, off = 4 + n0 - 24, 10240
            a0, a1 = (vTRb, vTRc) if unit < 4 else (vXR0, vXR1)
            off += (unit % 4) * UNIT
            I(f"ds_read_b64_tr_b16 {vr(dst,2)}, v{a0} offset:{off}")
            I(f"ds_read_b64_tr_b16 {vr(dst+2,2)}, v{a0} offset:{off+256}")
            I(f"ds_read_b64_tr_b16 {vr(dst+4,2)}, v{a1} offset:{off}")
            return I(f"ds_read_b64_tr_b16 {vr(dst+6,2)}, v{a1} offset:{off+256}")
        return rd

    g.begin()
    chain16(ACCV, rdw(False), swap=True, hook=lambda c: bgq() if c in eval(os.environ.get('VH', '(1,3,5,7,9,11,13)')) else None)
    main = g.end()
    g.begin()
    featmap(ACC, PH)
    for s_ in range(2):
        for u in range(2):
            I(f"v_mfma_f32_16x16x32_bf16 {vr(TMP+8*s_+4*u,4)}, {vr(PH+4*s_,4)}, {vr(SEL+4*u,4)}, 0")
    side = g.end()
    g.put(interleave(main, side, every=1, per=4))
    PT = PH
    for k in range(8):
        I(f"v_cvt_pk_bf16_f32 v{PT+k}, v{TMP+2*k}, v{TMP+2*k+1}")
    VF = ACC
    I(f"v_cmp_le_u32 vcc, 12, v{vM16}")
    for k in range(4):
        I(f"v_cvt_pk_bf16_f32 v{VF+k}, v{ACCV+2*k}, v{ACCV+2*k+1}")
    I(f"v_cndmask_b32 v{VF+2}, v{VF+2}, v{vT5}, vcc")
    I(f"v_cndmask_b32 v{VF+3}, v{VF+3}, v{vT5}, vcc")
    I(f"s_lshr_b32 s{sT0}, s{sW}, 1")
    I(f"s_lshl_b32 s{sT0}, s{sT0}, 10")
    I(f"s_and_b32 s{sT1}, s{sW}, 1")
    I(f"s_lshl_b32 s{sT1}, s{sT1}, 3")
    I(f"s_add_u32 s{sT0}, s{sT0}, s{sT1}")
    I(f"s_add_u32 s{sT0}, s{sT0}, {LDS_WK}")
    I(f"v_add_u32 v{vT0}, s{sT0}, v{vL16}")
    for k in range(4):
        I(f"ds_write_b64 v{vT0}, {vr(PT+2*k,2)} offset:{k*4096}")
    for k in range(2):
        I(f"ds_write_b64 v{vT0}, {vr(VF+2*k,2)} offset:{(4+k)*4096}")
    g.wait(bt['cs'])
    I(f"v_mov_b32 v{ACCV}, 0\nv_mov_b32 v{ACCV+1}, 0")
    for r in range(7):
        I(f"v_dot2_f32_bf16 v{ACCV}, v{CSR+r}, v{vT3}, v{ACCV}")
        I(f"v_dot2_f32_bf16 v{ACCV+1}, v{CSR+r}, v{vT4}, v{ACCV+1}")
    I(f"v_lshlrev_b32 v{vT1}, 3, v0")
    I(f"v_add_u32 v{vT1}, {LDS_KVF}, v{vT1}")
    I(f"ds_write_b64 v{vT1}, {vr(ACCV,2)}")
    I(f"s_lshl_b32 s{sT0}, s{sWH}, 1")
    I(f"s_and_b32 s{sT1}, s{sW}, 1")
    I(f"s_add_u32 s{sT0}, s{sT0}, s{sT1}")
    I(f"s_lshl_b32 s{sT0}, s{sT0}, 12")
    I(f"s_add_u32 s{sT0}, s{sT0}, {LDS_WK}")
    I(f"v_add_u32 v{vT0}, s{sT0}, v{vL16}")
    I(f"s_bfe_u32 s{sT0}, s{sW}, 0x10001")
    I(f"s_lshl_b32 s{sT0}, s{sT0}, 12")
    I(f"s_add_u32 s{sT0}, s{sT0}, {LDS_WK + 4*4096}")
    I(f"v_add_u32 v{vT1}, s{sT0}, v{vL16}")
    g.wait(bt['w6'])
    g.wait_all(vm=False)
    I("s_barrier")
    R = WF
    tk = {}
    for p in range(4):
        I(f"ds_read_b128 {vr(R+8*p,4)}, v{vT0} offset:{p*1024}")
        tk[p] = I(f"ds_read_b128 {vr(R+8*p+4,4)}, v{vT1} offset:{p*1024}")
    I(f"v_lshlrev_b32 v{vXA0}, 2, v0")
    I(f"v_and_b32 v{vXA0}, 1023, v{vXA0}")
    I(f"v_add_u32 v{vXA0}, {LDS_KVF}, v{vXA0}")
    I(f"ds_read2st64_b32 {vr(ACCV,2)}, v{vXA0} offset0:0 offset1:4")
    tq = I(f"ds_read2st64_b32 {vr(ACCV+2,2)}, v{vXA0} offset0:8 offset1:12")
    for p in range(4):
        g.wait(tk[p])
        I(f"v_mfma_f32_16x16x32_bf16 {vr(ACC,4)}, {vr(R+8*p,4)}, {vr(R+8*p+4,4)}, {'0' if p == 0 else vr(ACC,4)}")
    g.wait(tq)
    I(f"v_add_f32 v{ACCV}, v{ACCV}, v{ACCV+1}")
    I(f"v_add_f32 v{ACCV+2}, v{ACCV+2}, v{ACCV+3}")
    I(f"v_add_f32 v{ACCV}, v{ACCV}, v{ACCV+2}")
    I(f"v_cvt_pk_bf16_f32 v{ACC+4}, v{ACC}, v{ACC+1}")
    I(f"v_cvt_pk_bf16_f32 v{ACC+5}, v{ACC+2}, v{ACC+3}")
    I(f"buffer_store_dwordx2 {vr(ACC+4,2)}, v{vT8}, {srd(sWS)}, s{sKVS} offen sc1")
    I(f"buffer_store_dword v{ACCV}, v{vCSS}, {srd(sWS)}, s{sCSS} offen sc1")
    stamp("kv stored")
    if "mt3" in EXP:
        mall_touch()
    for _ in range(7):
        tpiece()
    if "t2a" in EXP:
        touch2(98, 99)
    I(f"v_lshlrev_b32 v{vCNT}, 4, v{vM16}")
    tini = I(f"buffer_load_dword v{vINIT}, v{vCNT}, {srd(sDBG)}, s{sCL} offen sc1")
    for i in range(4):
        bg_add(f"wo{i}", lambda i=i: wo_load(i))
    chain16(ACC, rdw(True), hook=lambda c: bgq() if c % 2 == 1 else None)
    bgq(99)
    c_bg(0, 0, 0, 56, 0, "qdone")
    c_bg(1, 0, 0, 24, 57344, "qdone")
    lr, lb = g.newlabel("L_ir"), g.newlabel("L_ib")
    I(f"s_cmp_lg_u32 s{sW}, 0")
    I(f"s_cbranch_scc1 {lb}")
    g.cond_begin()
    g.wait(tini)
    I(f"v_cmp_gt_u32 vcc, 16, v{vINIT}")
    I(f"s_cmp_lg_u64 vcc, 0")
    I(f"s_cbranch_scc1 {lr}")
    g.cond_end()
    g.label(lb)
    g.begin()
    g.label(lr)
    init_check()
    I(f"s_branch {lb}")
    TAILS.append(g.end())
    I("s_barrier")
    for i in range(10, 14):
        wo_load(i)
    featmap(ACC, PH)
    GR, R, AO, OS = 40, 96, 176, 184
    WOF = 112
    vB1, vB2, vB3 = 188, 189, 190
    vK0, vK1, vK2 = 191, 192, 193
    stamp("q done")

    I(f"s_lshl_b32 s{sT0}, s{sWH}, 15")
    I(f"s_lshl_b32 s{sT1}, s{sW3}, 10")
    I(f"s_add_u32 s{sGATH}, s{sGATH}, s{sT0}")
    I(f"s_add_u32 s{sGATH}, s{sGATH}, s{sT1}")

    def gat_issue():
        tl = []
        I(f"s_mov_b32 s{sT0}, s{sGATH}")
        for rb in range(8):
            if rb:
                I(f"s_add_u32 s{sT0}, s{sT0}, 4096")
            tl.append(I(f"buffer_load_dwordx4 {vr(GR+4*rb,4)}, v{vL16}, {srd(sWS)}, s{sT0} offen sc1"))
        return tl

    def gat_body(tl):
        for i in range(8):
            I(f"v_mov_b32 v{R+i}, 0")
        for rb in range(8):
            g.wait(tl[rb])
            for i in range(4):
                I(f"v_dot2_f32_bf16 v{R+2*i}, v{GR+4*rb+i}, v{vT3}, v{R+2*i}")
                I(f"v_dot2_f32_bf16 v{R+2*i+1}, v{GR+4*rb+i}, v{vT4}, v{R+2*i+1}")

    def wo_bounce():
        c_setup()
        d_setup()
        I(f"v_lshrrev_b32 v{vK0}, 2, v{vM16}")
        I(f"v_sub_u32 v{vK0}, v{vM16}, v{vK0}")
        I(f"v_and_b32 v{vT1}, 3, v{vM16}")
        I(f"v_cmp_eq_u32 vcc, 3, v{vT1}")
        I(f"v_cndmask_b32 v{vK0}, v{vK0}, 12, vcc")
        I(f"v_lshl_add_u32 v{vK0}, v{vG}, 4, v{vK0}")
        I(f"v_lshlrev_b32 v{vK0}, 4, v{vK0}")
        I(f"v_add_u32 v{vK0}, {LDS_KV2}, v{vK0}")
        I(f"v_add_u32 v{vK1}, {LDS_KV2}, v{vL16}")
        I(f"v_and_b32 v{vK2}, 31, v{vLANE}")
        I(f"v_lshlrev_b32 v{vK2}, 5, v{vK2}")
        I(f"v_lshrrev_b32 v{vT1}, 5, v{vLANE}")
        I(f"v_lshl_add_u32 v{vK2}, v{vT1}, 3, v{vK2}")
        I(f"v_add_u32 v{vK2}, s{sCL}, v{vK2}")
        I(f"v_add_u32 v{vK2}, {LDS_KV2}, v{vK2}")
        I(f"v_bfe_u32 v{vT1}, v{vLANE}, 2, 2")
        I(f"v_lshl_add_u32 v{vB1}, v{vG}, 2, v{vT1}")
        I(f"v_min_u32 v{vT1}, 2, v{vT1}")
        I(f"v_mad_u32_u24 v{vB2}, v{vG}, 3, v{vT1}")
        I(f"v_add_u32 v{vB2}, 16, v{vB2}")
        I(f"v_and_b32 v{vT1}, 3, v{vLANE}")
        I(f"v_lshlrev_b32 v{vT1}, 3, v{vT1}")
        I(f"v_add_u32 v{vT1}, s{sLW}, v{vT1}")
        AD = 72
        for rd_, vb in enumerate((vB1, vB2)):
            I(f"v_bfe_u32 v{vT2}, v{vb}, 1, 2")
            I(f"v_lshlrev_b32 v{vT2}, 5, v{vT2}")
            I(f"v_lshl_add_u32 v{vT2}, v{vb}, 7, v{vT2}")
            I(f"v_add_u32 v{AD+4*rd_}, v{vT2}, v{vT1}")
            for x in range(1, 4):
                I(f"v_xor_b32 v{AD+4*rd_+x}, {32*x}, v{AD+4*rd_}")
        g.wait(two[13])
        for hh in range(4):
            for nt in range(4):
                d = WOF + (hh * 4 + nt) * 4
                x = nt ^ (2 * (hh & 1))
                I(f"ds_read_b64_tr_b16 {vr(d,2)}, v{AD+x} offset:{hh*3584}")
                I(f"ds_read_b64_tr_b16 {vr(d+2,2)}, v{AD+4+x} offset:{hh*3584}")
    spec_load(gat_issue, [GR + 2 * k for k in range(16)], R + 12, gat_body, wo_bounce)
    g.mark("gdone")
    if "t2d" in EXP:
        touch2(194, 195)
    for i in range(4):
        I(f"v_cvt_pk_bf16_f32 v{R+8+i}, v{R+2*i}, v{R+2*i+1}")
    I(f"ds_write_b64 v{vK2}, {vr(R+8,2)}")
    I(f"ds_write_b64 v{vK2}, {vr(R+10,2)} offset:16")
    g.wait_all(vm=False)
    stamp("gathered")
    I("s_barrier")
    g.mark("qdone")
    g.mark("burst:" + os.environ.get("BB0", "2"))
    KF = 40
    tk = {}
    for hf_ in range(2):
        for s_ in range(2):
            I(f"ds_read_b128 {vr(KF+16*hf_+8*s_,4)}, v{vK1} offset:{hf_*4096+s_*2048}")
            tk[hf_, s_] = I(f"ds_read_b128 {vr(KF+16*hf_+8*s_+4,4)}, v{vK0} offset:{hf_*4096+s_*2048+1024}")
    for hf_ in range(2):
        for s_ in range(2):
            g.wait(tk[hf_, s_])
            for t in range(2):
                a = vr(AO + 4 * t, 4)
                I(f"v_mfma_f32_16x16x32_bf16 {a}, {vr(KF+16*hf_+8*s_+4*t,4)}, {vr(PH+4*s_,4)}, {'0' if (s_ == 0 and hf_ == 0) else a}")
    I(f"v_add_f32 v{vT1}, {f32(1e-6)}, v{AO+7}")
    I(f"v_rcp_f32 v{vT1}, v{vT1}")
    for i in range(7):
        I(f"v_mul_f32 v{AO+i}, v{AO+i}, v{vT1}")
    for i in range(3):
        I(f"v_cvt_pk_bf16_f32 v{OS+i}, v{AO+2*i}, v{AO+2*i+1}")
    I(f"v_cvt_pk_bf16_f32 v{OS+3}, v{AO+6}, 0")
    I(f"buffer_store_dwordx4 {vr(OS,4)}, v{vL16}, {srd(sWS)}, s{sOS} offen sc1")
    stamp("o stored")
    if "t2b" in EXP:
        touch2(202, 203)
    g.mark("on")
    return two


def woraw(i):
    return vr(216 + 4 * i, 4) if i < 8 else vr(WR + 4 * (i - 8), 4)


def phaseB(two):
    g.comment("==== phase B ====")
    OF = 216
    XR, XU, CSG = 176, 180, 188
    WOF = 112
    BACC = 72
    vB1, vB2, vB3 = 196, 197, 198
    vD1, vD2, vD3 = 199, 200, 201
    I(f"s_lshl_b32 s{sT0}, s{sMTB}, 2")
    I(f"s_add_u32 s{sT0}, s{sT0}, s{sW3}")
    I(f"s_mul_i32 s{sT0}, s{sT0}, {8*896}")
    I(f"s_lshl_b32 s{sT1}, s{sNQ}, 8")
    I(f"s_add_u32 s{sT0}, s{sT0}, s{sT1}")
    I(f"s_lshl_b32 s{sT1}, s{sWH}, 7")
    I(f"s_add_u32 s{sT0}, s{sT0}, s{sT1}")
    I(f"s_add_u32 s{sT0}, s{sT0}, s{sINV}")
    I(f"v_and_b32 v{vT4}, 7, v{vLANE}")
    I(f"v_lshrrev_b32 v{vT5}, 3, v{vLANE}")
    I(f"v_mul_u32_u24 v{vT0}, 896, v{vT5}")
    I(f"v_lshl_add_u32 v{vT0}, v{vT4}, 4, v{vT0}")
    I(f"s_cmp_ge_u32 s{sW}, 4")
    I(f"s_mov_b32 s{sT2}, 81920")
    I(f"s_cmov_b32 s{sT2}, {LDS_KVF - 4096}")
    I(f"s_add_u32 s{sT2}, s{sT2}, s{sCL}")
    g.mark("off")
    I(f"s_mov_b32 m0, s{sT2}")
    I(f"v_lshlrev_b32 v{vB3}, 7, v{vT4}")
    txd = I(f"buffer_load_dwordx4 v{vT0}, {srd(sX)}, s{sT0} offen lds")
    g.mark("on")
    I(f"v_lshl_add_u32 v{vB3}, v{vT5}, 4, v{vB3}")
    I(f"v_add_u32 v{vB3}, s{sT2}, v{vB3}")
    g.mark("burst:" + os.environ.get("BB1", "3"))
    I(f"s_lshl_b32 s{sD}, s{sMTB}, 5")
    I(f"s_lshl_b32 s{sT1}, s{sW3}, 2")
    I(f"s_add_u32 s{sD}, s{sD}, s{sT1}")
    I(f"s_lshl_b32 s{sD}, s{sD}, 10")
    I(f"s_add_u32 s{sD}, s{sD}, {WS_O}")
    I(f"s_add_u32 s{sE}, s{sD}, 16384")
    BS2 = 83968
    I(f"s_mul_i32 s{sT0}, s{sW3}, 18432")
    I(f"s_mul_i32 s{sT1}, s{sWH}, {8*1152}")
    I(f"s_add_u32 s{sT0}, s{sT0}, s{sT1}")
    I(f"s_add_u32 s{sT0}, s{sT0}, {BS2}")
    I(f"v_lshrrev_b32 v{vT1}, 1, v{vG}")
    I(f"v_mul_u32_u24 v{vT1}, 1152, v{vT1}")
    I(f"v_and_b32 v{vT2}, 1, v{vG}")
    I(f"v_lshl_add_u32 v{vT1}, v{vT2}, 9, v{vT1}")
    I(f"v_lshl_add_u32 v{vT1}, v{vM16}, 4, v{vT1}")
    I(f"v_add_u32 v{vB1}, s{sT0}, v{vT1}")
    I(f"s_lshl_b32 s{sT0}, s{sW3}, 7")
    I(f"s_add_u32 s{sT0}, s{sT0}, s{sT1}")
    I(f"s_add_u32 s{sT0}, s{sT0}, {BS2}")
    I(f"v_mul_u32_u24 v{vT1}, 1152, v{vT5}")
    I(f"v_lshl_add_u32 v{vT1}, v{vT4}, 4, v{vT1}")
    I(f"v_add_u32 v{vB2}, s{sT0}, v{vT1}")
    I(f"v_cmp_gt_u32 vcc, 0x10000, v{vHSA}")
    I(f"v_cndmask_b32 v{vT3}, 0, -1, vcc")
    stats_addr(vT2, vT0, vT1)
    I(f"v_mov_b32 v{vT5}, 0x3f803f80")
    g.wait(txd)
    txr = I(f"ds_read_b128 {vr(XR,4)}, v{vB3}")
    g.wait(txr)
    for i in range(4):
        I(f"v_lshlrev_b32 v{XU+2*i}, 16, v{XR+i}")
        I(f"v_and_b32 v{XU+2*i+1}, 0xffff0000, v{XR+i}")
    g.mark("off")
    I("s_barrier")
    stamp("wo ready")

    def o_issue():
        tl = []
        for hh in range(4):
            for mt in range(2):
                tl.append(I(f"buffer_load_dwordx4 {vr(OF+(hh*2+mt)*4,4)}, v{vL16}, {srd(sWS)}, s{sE if mt else sD} offen offset:{hh*1024} sc1"))
        return tl

    def o_body(tl):
        for hh in range(4):
            for mt in range(2):
                g.wait(tl[hh * 2 + mt])
                for nt in range(4):
                    a = BACC + (mt * 4 + nt) * 4
                    I(f"v_mfma_f32_16x16x32_bf16 {vr(a,4)}, {vr(WOF+(hh*4+nt)*4,4)}, {vr(OF+(hh*2+mt)*4,4)}, {'0' if hh == 0 else vr(a,4)}")
    spec_load(o_issue, [OF + 4 * k for k in range(8)], vT0, o_body)
    stamp("B mfma")
    for mt in range(2):
        for nt in range(4):
            I(f"ds_write_b128 v{vB1}, {vr(BACC+(mt*4+nt)*4,4)} offset:{nt*2304+mt*256}")
    I(f"s_lshl_b32 s{sT0}, s{sJC}, 14")
    I(f"s_lshl_b32 s{sT1}, s{sWH}, 13")
    I(f"s_add_u32 s{sT0}, s{sT0}, s{sT1}")
    I(f"s_add_u32 s{sD}, s{sT0}, {WS_CS}")
    I(f"s_add_u32 s{sE}, s{sD}, 4096")
    I(f"v_lshlrev_b32 v{vB3}, 2, v0")
    I(f"v_and_b32 v{vB3}, 1023, v{vB3}")

    def cs_issue():
        return [I(f"buffer_load_dword v{CSG+rb}, v{vB3}, {srd(sWS)}, s{sE if rb >= 4 else sD} offen offset:{(rb%4)*1024} sc1") for rb in range(8)]
    tcs8 = cs_issue()
    g.mark("burst:3")
    S1, S2 = 104, 105
    I(f"v_mov_b32 v{S1}, 0\nv_mov_b32 v{S2}, 0")
    g.wait_all(vm=False)
    I("s_barrier")
    b = 72
    for w in range(4):
        for q in range(2):
            I(f"ds_read_b128 {vr(b+w*8+q*4,4)}, v{vB2} offset:{w*18432+q*512}")
    g.wait_all(vm=False)
    HP = 108
    for i in range(8):
        I(f"v_add_f32 v{b+i}, v{b+i}, v{b+8+i}")
        I(f"v_add_f32 v{b+16+i}, v{b+16+i}, v{b+24+i}")
    for i in range(8):
        I(f"v_add_f32 v{b+i}, v{b+i}, v{XU+i}")
    for i in range(8):
        I(f"v_add_f32 v{b+i}, v{b+i}, v{b+16+i}")
    for i in range(4):
        I(f"v_cvt_pk_bf16_f32 v{HP+i}, v{b+2*i}, v{b+2*i+1}")
    I(f"buffer_store_dwordx4 {vr(HP,4)}, v{vHSA}, {srd(sWS)}, s{sHS} offen sc1")
    for i in range(4):
        I(f"v_dot2_f32_bf16 v{S1}, v{HP+i}, v{vT5}, v{S1}")
        I(f"v_dot2_f32_bf16 v{S2}, v{HP+i}, v{HP+i}, v{S2}")
    I(f"v_and_b32 v{S1}, v{vT3}, v{S1}")
    I(f"v_and_b32 v{S2}, v{vT3}, v{S2}")
    for ror in (8,):
        I(f"v_add_f32_dpp v{S1}, v{S1}, v{S1} row_ror:{ror} row_mask:0xf bank_mask:0xf")
        I(f"v_add_f32_dpp v{S2}, v{S2}, v{S2} row_ror:{ror} row_mask:0xf bank_mask:0xf")
    for lv in (16, 32):
        I(f"v_mov_b32 v106, v{S1}\nv_mov_b32 v107, v{S2}")
        I(f"v_permlane{lv}_swap_b32 v{S1}, v106")
        I(f"v_permlane{lv}_swap_b32 v{S2}, v107")
        I(f"v_add_f32 v{S1}, v{S1}, v106")
        I(f"v_add_f32 v{S2}, v{S2}, v107")
    I(f"buffer_store_dwordx2 v[{S1}:{S2}], v{vT2}, {srd(sWS)}, s{sSS} offen sc1")
    stamp("h stored")
    if "t2c" in EXP:
        touch2(202, 203)
    lr, lb = g.newlabel("L_sr"), g.newlabel("L_sb")
    g.wait(tcs8[-1])
    sent_check([CSG + rb for rb in range(8)], vT0)
    I(f"s_cmp_lg_u64 vcc, 0")
    I(f"s_cbranch_scc1 {lr}")
    g.label(lb)
    g.begin()
    g.label(lr)
    check_loop(cs_issue, [CSG + rb for rb in range(8)], vT0)
    I(f"s_branch {lb}")
    TAILS.append(g.end())
    for k in (4, 2, 1):
        for i in range(k):
            I(f"v_add_f32 v{CSG+i}, v{CSG+i}, v{CSG+k+i}")
    I(f"v_lshlrev_b32 v{vB3}, 2, v0")
    I(f"v_add_u32 v{vB3}, {LDS_KVF}, v{vB3}")
    I(f"ds_write_b32 v{vB3}, v{CSG}")
    g.wait_all(vm=False)
    I("s_barrier")
    I(f"s_cmp_ge_u32 s{sJC}, 14")
    I("s_cbranch_scc1 L_end")
    tb2 = c_batch(1, 0, 24, 56, 57344 + 24576)


GK1 = -2.0 * math.sqrt(2.0 / math.pi) * LOG2E
GK2 = GK1 * 0.044715
LDS_X = 114688
vHB, vM, vWD = 254, 255, 253
sWDB = 80
WDE = 16
NWDE = 7
NWDC = int(os.environ.get('NWDC', '2'))


def hh_signal(stage, toks):
    g.wait(*toks)
    I("s_barrier")
    lab = g.newlabel("L_hs")
    I(f"s_cmp_lg_u32 s{sW}, 0")
    I(f"s_cbranch_scc1 {lab}")
    g.cond_begin()
    I("s_mov_b64 exec, 1")
    I(f"s_lshl_b32 s{sT0}, s{sG}, 8")
    I(f"s_add_u32 s{sT0}, s{sT0}, {WS_CNT + CNT_HH * 4096 + 64 * stage}")
    I(f"v_mov_b32 v{vCNT}, s{sT0}")
    I(f"buffer_atomic_add v{vONE}, v{vCNT}, {srd(sWS)}, 0 offen sc1")
    I("s_mov_b64 exec, -1")
    g.cond_end()
    g.label(lab)


def hh_poll(stage_sreg_or_imm):
    I("s_mov_b64 exec, 1")
    I(f"s_lshl_b32 s{sT0}, s{sGB}, 8")
    I(f"s_add_u32 s{sT0}, s{sT0}, {WS_CNT + CNT_HH * 4096}")
    I(f"s_add_u32 s{sT0}, s{sT0}, {stage_sreg_or_imm}")
    I(f"v_mov_b32 v{vCNT}, s{sT0}")
    poll(sWS, vCNT, 14)
    I("s_mov_b64 exec, -1")


def d_setup():
    I(f"v_lshrrev_b32 v{vHB}, 5, v{vLANE}")
    I(f"v_and_b32 v{vM}, 31, v{vLANE}")
    I(f"v_lshrrev_b32 v{vT0}, 3, v{vLANE}")
    I(f"v_mul_u32_u24 v{vT0}, 896, v{vT0}")
    I(f"v_and_b32 v{vT1}, 1, v{vG}")
    I(f"v_lshlrev_b32 v{vT1}, 2, v{vT1}")
    I(f"v_and_b32 v{vWD}, 7, v{vLANE}")
    I(f"v_xor_b32 v{vWD}, v{vWD}, v{vT1}")
    I(f"v_lshl_add_u32 v{vWD}, v{vWD}, 4, v{vT0}")
    I(f"s_cmp_ge_u32 s{sJB}, 7")
    I(f"s_cselect_b32 s{sRH}, 1, 0")
    I(f"s_mul_i32 s{sT0}, s{sRH}, 7")
    I(f"s_sub_u32 s{sCB}, s{sJB}, s{sT0}")
    I(f"s_lshl_b32 s{sT0}, s{sWH}, 1")
    I(f"s_add_u32 s{sT0}, s{sT0}, s{sW}")
    I(f"s_and_b32 s{sAA}, s{sT0}, 3")
    I(f"s_mul_i32 s{sKC}, s{sWH}, 56")
    I(f"s_add_u32 s{sKC}, s{sKC}, s{sAA}")
    I(f"s_mul_i32 s{sWDB}, s{sKC}, {16*896}")
    I(f"s_lshl_b32 s{sT1}, s{sCB}, 7")
    I(f"s_add_u32 s{sWDB}, s{sWDB}, s{sT1}")
    I(f"s_cmp_ge_u32 s{sJB}, 14")
    I(f"s_cselect_b32 s{sT1}, {OOB}, 0")
    I(f"s_add_u32 s{sWDB}, s{sWDB}, s{sT1}")


sRH, sCB, sAA, sKC = 64, 65, 66, 67


def kc_off(n):
    return 8 * n if n < 7 else 4 + 8 * (n - 7)


def wd_load(dst, n):
    t = None
    for hf_ in range(2):
        I(f"s_add_u32 s{sT3}, s{sWDB}, {(16*kc_off(n) + 8*hf_)*896}")
        for e in range(4):
            t = I(f"buffer_load_dword v{dst+4*hf_+e}, v{vWD}, {srd(sWD)}, s{sT3} offen offset:{e*896}")
    return t


def wd_half(dst, n, hf_):
    I(f"s_add_u32 s{sBG}, s{sWDB}, {(16*kc_off(n) + 8*hf_)*896}")
    return I(f"buffer_load_dwordx4 {vr(dst+4*hf_,4)}, v{vWD}, {srd(sWD)}, s{sBG} offen")


def dt_pattern(dst, t0, t1):
    I(f"v_bfe_u32 v{t0}, v{vLANE}, 2, 2")
    I(f"v_lshl_add_u32 v{t1}, v{vHB}, 2, v{t0}")
    I(f"v_lshlrev_b32 v{t1}, 7, v{t1}")
    I(f"v_lshrrev_b32 v{t0}, 1, v{t0}")
    I(f"v_lshl_add_u32 v{t1}, v{t0}, 6, v{t1}")
    I(f"v_and_b32 v{t0}, 1, v{vG}")
    I(f"v_lshl_add_u32 v{t1}, v{t0}, 5, v{t1}")
    I(f"v_and_b32 v{t0}, 3, v{vLANE}")
    I(f"v_lshl_add_u32 v{dst}, v{t0}, 3, v{t1}")


def c_rows(mat, dbl, r0, r1, lds_base):
    return c_batch(mat, dbl, r0, r1, lds_base)


def g1_addr(n):
    if n < 8:
        return 114688 + n * 1024
    if 24 <= n < 40:
        return 114688 + 8192 + (n - 24) * 1024
    if n < 24:
        return (n - 8) * 1024
    return 16384 + (n - 40) * 1024


def u1_addr(n):
    if n < 8:
        return 32768 + n * 1024
    if 24 <= n < 40:
        return 32768 + 8192 + (n - 24) * 1024
    if n < 24:
        return 57344 + (n - 8) * 1024
    return 57344 + 16384 + (n - 40) * 1024


def phaseCD(twd_early):
    g.comment("==== phase C ====")
    sMD, sHB, sMT = sC, sHHS, sMTC
    sAB = 7
    sL5, sL2, sL3, sL4 = 4, 5, 6, 83
    I(f"s_mul_i32 s{sL5}, s{sW}, 5120")
    I(f"s_lshl_b32 s{sL2}, s{sW}, 11")
    I(f"s_mul_i32 s{sL3}, s{sW}, 3072")
    I(f"s_lshl_b32 s{sL4}, s{sW}, 12")
    slotE = [(sL2, 40960 + i * 1024) for i in range(2)] + [(sL3, 90112 + i * 1024) for i in range(3)]
    slotM = [(sL5, 114688 + i * 1024) for i in range(5)] + [(sL2, i * 1024) for i in range(2)]
    slotL = [(sL3, 16384 + i * 1024) for i in range(3)] + [(sL4, 57344 + i * 1024) for i in range(4)]
    wslot = slotE + slotM + slotL + (slotE + slotM)[:9]
    sRW = [12, 13, 14, 15, 16, 17, 18]
    sRA = [19, 20, 21, 22, 23, 81, 82]

    def wd_dma(m):
        n, hf_ = m // 2, m % 2
        return dma2(vWD, sWD, sRW[n % 7], (16 * (4 if n >= 7 else 0) + 8 * hf_) * 896, wslot[m][0], wslot[m][1])
    c_batch(0, 1, 0, 40, 114688)
    I(f"s_lshl_b32 s{sMD}, s{sGB}, 2")
    I(f"s_lshl_b32 s{sT0}, s{sRH}, 1")
    I(f"s_add_u32 s{sMD}, s{sMD}, s{sT0}")
    I(f"s_lshl_b32 s{sE}, s{sMT}, 11")
    I(f"s_add_u32 s{sE}, s{sE}, {WS_ST}")
    I(f"s_mul_i32 s{sWB}, s{sMT}, {28*1024}")
    I(f"s_add_u32 s{sWB}, s{sWB}, {WS_H}")
    I(f"s_mul_i32 s{sAB}, s{sMD}, {112*1024}")
    I(f"s_lshl_b32 s{sT1}, s{sKC}, 10")
    I(f"s_add_u32 s{sAB}, s{sAB}, s{sT1}")
    I(f"s_add_u32 s{sAB}, s{sAB}, {WS_HH}")
    for n in range(7):
        if "norot" in EXP:
            I(f"s_mov_b32 s{sT0}, {n}")
        else:
            I(f"s_add_u32 s{sT0}, s{sCB}, {n}")
            I(f"s_sub_u32 s{sT1}, s{sT0}, 7")
            I(f"s_cmp_ge_u32 s{sT0}, 7")
            I(f"s_cselect_b32 s{sT0}, s{sT1}, s{sT0}")
        I(f"s_mul_i32 s{sT1}, s{sT0}, {8*16*896}")
        I(f"s_add_u32 s{sRW[n]}, s{sWDB}, s{sT1}")
        I(f"s_lshl_b32 s{sT1}, s{sT0}, 13")
        I(f"s_add_u32 s{sRA[n]}, s{sAB}, s{sT1}")
    HF = 16
    A_, B_, C_ = 128, 144, 160
    TM, CS2 = 176, 192
    WFc = 208
    vA0, vA1, vCSA, vFA, vA2 = 240, 241, 242, 243, 15
    K1, K2, IR2, NMU = 248, 249, 250, 251
    STR = 244
    I(f"v_bfe_u32 v{vT0}, v{vLANE}, 2, 2")
    I(f"v_lshl_add_u32 v{vT1}, v{vHB}, 3, v{vT0}")
    I(f"v_lshlrev_b32 v{vT1}, 7, v{vT1}")
    I(f"v_lshrrev_b32 v{vT0}, 1, v{vT0}")
    I(f"v_xor_b32 v{vT0}, s{sWH}, v{vT0}")
    I(f"v_lshl_add_u32 v{vT1}, v{vT0}, 6, v{vT1}")
    I(f"v_and_b32 v{vT2}, 1, v{vG}")
    I(f"v_lshl_add_u32 v{vT1}, v{vT2}, 5, v{vT1}")
    I(f"v_and_b32 v{vT2}, 3, v{vLANE}")
    I(f"v_lshl_add_u32 v{vA0}, v{vT2}, 3, v{vT1}")
    I(f"v_add_u32 v{vA1}, 57344, v{vA0}")
    I(f"v_add_u32 v{vA2}, 114688, v{vA0}")
    I(f"s_lshl_b32 s{sT0}, s{sWH}, 7")
    I(f"s_add_u32 s{sT0}, s{sT0}, {LDS_CS}")
    I(f"v_lshlrev_b32 v{vCSA}, 4, v{vHB}")
    I(f"v_add_u32 v{vCSA}, s{sT0}, v{vCSA}")
    I(f"v_mov_b32 v{vFA}, {LDS_FLG}")
    I(f"v_lshlrev_b32 v{vT3}, 3, v{vLANE}")
    flush()
    I(f"v_lshlrev_b32 v{vT0}, 2, v0")
    I(f"v_and_b32 v{vT0}, 1023, v{vT0}")
    I(f"v_add_u32 v{vT0}, {LDS_KVF}, v{vT0}")
    t = I(f"ds_read2st64_b32 v[72:73], v{vT0} offset0:0 offset1:4")
    g.wait(t)
    I(f"v_add_f32 v72, v72, v73")
    I(f"ds_write_b32 v{vT0}, v72 offset:4096")
    stamp("C ready")

    S8 = 128

    def st_issue():
        return [I(f"buffer_load_dwordx2 {vr(S8+2*i,2)}, v{vT3}, {srd(sWS)}, s{sE} offen offset:{512*i} sc1") for i in range(4)]
    check_loop(st_issue, [S8 + 2 * i for i in range(4)], vT1)
    stamp("h flag")

    def h_issue():
        tl = []
        for c in range(28):
            if c % 4 == 0:
                I(f"s_add_u32 s{sT0}, s{sWB}, {c*1024}")
            tl.append(I(f"buffer_load_dwordx4 {vr(HF+4*c,4)}, v{vL16}, {srd(sWS)}, s{sT0} offen offset:{(c%4)*1024} sc1"))
        return tl
    g.begin()
    th = h_issue()
    hl = g.end()
    g.put(hl[:10])
    g.wait_all(vm=False)
    I("s_barrier")
    for i in range(4):
        I(f"v_add_f32 v{STR+i}, v{S8+i}, v{S8+4+i}")
    I(f"v_add_f32 v{STR}, v{STR}, v{STR+2}")
    I(f"v_add_f32 v{STR+1}, v{STR+1}, v{STR+3}")
    I(f"v_mov_b32 v{STR+2}, v{STR}\nv_mov_b32 v{STR+3}, v{STR+1}")
    I(f"v_permlane32_swap_b32 v{STR}, v{STR+2}")
    I(f"v_permlane32_swap_b32 v{STR+1}, v{STR+3}")
    I(f"v_add_f32 v{STR}, v{STR}, v{STR+2}")
    I(f"v_add_f32 v{STR+1}, v{STR+1}, v{STR+3}")
    I(f"v_mul_f32 v{NMU}, {f32(-1/448)}, v{STR}")
    I(f"v_mul_f32 v{STR+1}, {f32(1/448)}, v{STR+1}")
    I(f"v_fma_f32 v{STR+1}, -v{NMU}, v{NMU}, v{STR+1}")
    I(f"v_max_f32 v{STR+1}, 0, v{STR+1}")
    I(f"v_add_f32 v{IR2}, {f32(1e-5)}, v{STR+1}")
    I(f"v_rsq_f32 v{STR}, v{IR2}")
    I(f"v_mul_f32 v{K1}, {f32(GK1)}, v{STR}")
    I(f"v_mul_f32 v{STR+1}, v{STR}, v{STR}")
    I(f"v_mul_f32 v{STR+1}, v{STR+1}, v{STR}")
    I(f"v_mul_f32 v{K2}, {f32(GK2)}, v{STR+1}")
    tails = TAILS

    def cnt_add(f):
        I("s_mov_b64 exec, 1")
        I(f"ds_add_u32 v{vFA}, v{vONE} offset:{4*f}")
        I("s_mov_b64 exec, -1")

    def cnt_issue(f):
        return I(f"ds_read_b32 v{vFLAG}, v{vFA} offset:{4*f}")

    def cnt_check(f, t):
        lr, lb = g.newlabel("L_cr"), g.newlabel("L_cb")
        g.wait(t)
        I(f"v_readfirstlane_b32 s{sT4}, v{vFLAG}")
        I(f"s_cmp_lt_u32 s{sT4}, 8")
        I(f"s_cbranch_scc1 {lr}")
        g.label(lb)
        g.begin()
        g.label(lr)
        I(f"s_mov_b32 s{sT5}, 0")
        l2 = g.newlabel("L_cl")
        g.label(l2)
        I("s_sleep 1")
        cnt_issue(f)
        I("s_waitcnt lgkmcnt(0)")
        I(f"v_readfirstlane_b32 s{sT4}, v{vFLAG}")
        I(f"s_add_u32 s{sT5}, s{sT5}, 1")
        I(f"s_cmp_ge_u32 s{sT5}, {POLL_MAX*8}")
        I(f"s_cbranch_scc1 {lb}")
        I(f"s_cmp_lt_u32 s{sT4}, 8")
        I(f"s_cbranch_scc1 {l2}")
        I(f"s_branch {lb}")
        tails.append(g.end())

    def hsig_issue(f, toks):
        g.wait(*toks)
        I("s_mov_b64 exec, 1")
        t = I(f"ds_add_rtn_u32 v{vINIT}, v{vFA}, v{vONE} offset:{4*f}")
        I("s_mov_b64 exec, -1")
        return t

    def hsig_check(stage, t):
        lab = g.newlabel("L_hs")
        g.wait(t)
        I(f"v_readfirstlane_b32 s{sT4}, v{vINIT}")
        I(f"s_cmp_lg_u32 s{sT4}, 7")
        I(f"s_cbranch_scc1 {lab}")
        g.cond_begin()
        I("s_mov_b64 exec, 1")
        I(f"s_lshl_b32 s{sT0}, s{sG}, 8")
        I(f"s_add_u32 s{sT0}, s{sT0}, {WS_CNT + CNT_HH * 4096 + 64 * stage}")
        I(f"v_mov_b32 v{vCNT}, s{sT0}")
        I(f"buffer_atomic_add v{vONE}, v{vCNT}, {srd(sWS)}, 0 offen sc1")
        I("s_mov_b64 exec, -1")
        g.cond_end()
        g.label(lab)

    def cs_read(dst, mat, dbl):
        t = None
        for q in range(4):
            t = I(f"ds_read_b128 {vr(dst+4*q,4)}, v{vCSA} offset:{mat*512 + (64*dbl+8*q)*4}")
        return t

    def gpart(ag, t):
        g.wait(t)
        for i in range(16):
            I(f"v_fmac_f32 v{ag+i}, v{NMU}, v{TM+i}")
        for i in range(16):
            I(f"v_mul_f32 v{TM+i}, v{ag+i}, v{ag+i}")
        for i in range(16):
            I(f"v_fma_f32 v{TM+i}, v{TM+i}, v{K2}, v{K1}")
        for i in range(16):
            I(f"v_mul_f32 v{TM+i}, v{TM+i}, v{ag+i}")
        for i in range(16):
            I(f"v_exp_f32 v{TM+i}, v{TM+i}")
        for i in range(16):
            I(f"v_fma_f32 v{TM+i}, v{TM+i}, v{IR2}, v{IR2}")
        for i in range(16):
            I(f"v_rcp_f32 v{TM+i}, v{TM+i}")
        for i in range(16):
            I(f"v_mul_f32 v{TM+i}, v{ag+i}, v{TM+i}")

    def upart(au, t, dbl):
        g.wait(t)
        for i in range(16):
            I(f"v_fmac_f32 v{au+i}, v{NMU}, v{CS2+i}")
        for i in range(16):
            I(f"v_mul_f32 v{au+i}, v{au+i}, v{TM+i}")
        for i in range(8):
            I(f"v_cvt_pk_bf16_f32 v{CS2+i}, v{au+2*i}, v{au+2*i+1}")
        I(f"s_add_u32 s{sE}, s{sHB}, {dbl*4096}")
        I(f"buffer_store_dwordx4 {vr(CS2,4)}, v{vL16}, {srd(sWS)}, s{sE} offen sc1")
        return I(f"buffer_store_dwordx4 {vr(CS2+4,4)}, v{vL16}, {srd(sWS)}, s{sE} offen offset:1024 sc1")

    slots = []
    for c in range(28):
        slots.append((A_, c * 2048, c))
        slots.append((B_, 57344 + c * 2048, c))
    for c in range(28):
        slots.append((C_, 114688 + c * 2048 if c < 20 else (c - 20) * 2048, c))
    for c in range(28):
        slots.append((A_, 16384 + c * 2048 if c < 12 else 57344 + (c - 12) * 2048, c))
    NS = 112
    PRC = int(os.environ.get('PRC', '28'))
    depth = int(os.environ.get('DEPTH', '4'))
    nb = depth + 1
    tok = {}

    def rd(i):
        off = slots[i][1]
        base = vA0
        if off >= 114688:
            base, off = vA2, off - 114688
        elif off >= 57344:
            base, off = vA1, off - 57344
        dst = WFc + 4 * (i % nb)
        I(f"ds_read_b64_tr_b16 {vr(dst,2)}, v{base} offset:{off}")
        tok[i] = I(f"ds_read_b64_tr_b16 {vr(dst+2,2)}, v{base} offset:{off+512}")

    sched = {i: [] for i in range(NS)}
    load = {i: 0.0 for i in range(NS)}
    BUDGET = float(os.environ.get("BUDGET", "6"))

    def cost(it):
        if it.kind != "i":
            return 0
        m = it.text.split()[0]
        if m in TRANS:
            return 2
        if m in ("v_fma_f32", "v_fmac_f32"):
            return 1.25
        if m.startswith("v_"):
            return 1
        if m.startswith(("ds_", "buffer")):
            return 0.4
        return 0.1

    def cap(fn):
        g.begin()
        r = fn()
        return g.end(), r

    def at(slot, fn):
        st, r = cap(fn)
        for it in st:
            sched[slot].append(it)
            load[slot] += cost(it)
        return r

    rest = []

    def flow(stream, slot):
        pend = []
        for it in stream:
            pend.append(it)
            if it.kind != "i":
                continue
            c = sum(cost(x) for x in pend)
            while slot < NS and load[slot] + c > BUDGET:
                slot += 1
            if slot >= NS:
                rest.extend(pend)
            else:
                sched[slot].extend(pend)
                load[slot] += c
            pend = []
        return slot

    k_ = 0
    for it in hl[10:]:
        sched[k_].append(it)
        if it.text.startswith("buffer"):
            k_ += 1

    def refill(f, free_slot, batches, need_slot):
        at(free_slot, lambda: cnt_add(f))
        t = at(free_slot + 2, lambda: cnt_issue(f))
        at(free_slot + 3, lambda: cnt_check(f, t))
        st, tb = cap(batches)
        for q in range(len(st) // 3):
            for it in st[3 * q:3 * q + 3]:
                sched[free_slot + 3 + 2 * q].append(it)
        if need_slot is not None:
            at(need_slot - depth - 3, lambda: (g.wait(tb), cnt_add(f + 1)))
            t2 = at(need_slot - depth - 2, lambda: cnt_issue(f + 1))
            at(need_slot - depth - 1, lambda: cnt_check(f + 1, t2))
        return tb
    F0 = int(os.environ.get("F0", "40"))
    at(F0, lambda: cnt_add(0))
    t = at(F0 + 2, lambda: cnt_issue(0))
    at(F0 + 3, lambda: cnt_check(0, t))
    st1, tb1 = cap(lambda: c_batch(0, 1, 40, 56, 0))
    st2, tb2 = cap(lambda: (c_batch(1, 1, 0, 24, 16384), c_batch(1, 1, 24, 56, 57344))[1])
    st = st1 + st2
    for q in range(9):
        sched[F0 + 3 + 2 * q].extend(st[3 * q:3 * q + 3])
    at(76 - depth - 3, lambda: (g.wait(tb2), cnt_add(1)))
    t2_ = at(76 - depth - 2, lambda: cnt_issue(1))
    at(76 - depth - 1, lambda: cnt_check(1, t2_))
    at(56, lambda: cnt_add(2))
    t = at(72, lambda: cnt_issue(2))
    at(73, lambda: cnt_check(2, t))
    for m in range(5):
        at(73 + 2 * m, lambda: wd_dma(m))
    tM = refill(4, 84, lambda: [wd_dma(m) for m in range(5, 12)][-1], None)
    if not any(e in EXP for e in ("not2", "t2a", "t2b", "t2c", "t2d", "tp", "mt1", "mt0", "mt2", "mt3")):
        at(int(os.environ.get("T2", "62")), touch2)

    def h_issue_from(c0):
        def f():
            tl = []
            for c in range(c0, 28):
                if c % 4 == 0:
                    I(f"s_add_u32 s{sT2}, s{sWB}, {c*1024}")
                tl.append(I(f"buffer_load_dwordx4 {vr(HF+4*c,4)}, v{vL16}, {srd(sWS)}, s{sT2} offen offset:{(c%4)*1024} sc1"))
            return tl
        return f

    def hcheck(q):
        lr, lb = g.newlabel("L_hr"), g.newlabel("L_hb")
        g.wait(th[4 * q + 3])
        sent_check([HF + 4 * c for c in range(4 * q, 4 * q + 4)], vT1)
        I(f"s_cmp_lg_u64 vcc, 0")
        I(f"s_cbranch_scc1 {lr}")
        g.label(lb)
        g.begin()
        g.label(lr)
        check_loop(h_issue_from(4 * q), [HF + 4 * c for c in range(4 * q, 28)], vT1)
        I(f"s_branch {lb}")
        tails.append(g.end())
    t1 = at(54, lambda: cs_read(TM, 0, 0))
    t2 = at(55, lambda: cs_read(CS2, 1, 0))
    def epiA():
        g.wait(t2)
        for i in range(16):
            I(f"v_fmac_f32 v{A_+i}, v{NMU}, v{TM+i}")
        for i in range(16):
            I(f"v_fmac_f32 v{B_+i}, v{NMU}, v{CS2+i}")
        for i in range(16):
            I(f"v_mul_f32 v{TM+i}, v{A_+i}, v{A_+i}")
        for i in range(16):
            I(f"v_fma_f32 v{TM+i}, v{TM+i}, v{K2}, v{K1}")
        for i in range(16):
            I(f"v_mul_f32 v{TM+i}, v{TM+i}, v{A_+i}")
        for i in range(16):
            I(f"v_mul_f32 v{B_+i}, v{B_+i}, v{A_+i}")

    def epiB():
        for i in range(16):
            I(f"v_exp_f32 v{TM+i}, v{TM+i}")
        for i in range(16):
            I(f"v_fma_f32 v{TM+i}, v{TM+i}, v{IR2}, v{IR2}")
        for i in range(16):
            I(f"v_rcp_f32 v{TM+i}, v{TM+i}")
        for i in range(16):
            I(f"v_mul_f32 v{B_+i}, v{B_+i}, v{TM+i}")
        for i in range(8):
            I(f"v_cvt_pk_bf16_f32 v{CS2+i}, v{B_+2*i}, v{B_+2*i+1}")
        I(f"buffer_store_dwordx4 {vr(CS2,4)}, v{vL16}, {srd(sWS)}, s{sHB} offen sc1")
        return I(f"buffer_store_dwordx4 {vr(CS2+4,4)}, v{vL16}, {srd(sWS)}, s{sHB} offen offset:1024 sc1")
    st, _ = cap(epiA)
    e = flow(st, 57)
    assert e < 83, e
    st, tst0 = cap(epiB)
    e = flow(st, e)
    t1 = at(max(e, 85), lambda: cs_read(TM, 0, 1))
    t2 = at(min(e + 9, 109), lambda: cs_read(CS2, 1, 1))
    st, _ = cap(lambda: gpart(C_, t1))
    flow(st, max(e, 85) + 2)
    def flag_issue():
        I(f"s_lshl_b32 s{sT0}, s{sGB}, 8")
        I(f"s_add_u32 s{sT0}, s{sT0}, {WS_CNT + CNT_HH * 4096}")
        return I(f"buffer_load_dword v{vT4}, off, {srd(sWS)}, s{sT0} sc1")
    print("slot loads:", " ".join("%.0f" % load[i] for i in range(NS)), "rest", len(rest))
    for i in range(depth):
        rd(i)
    for i in range(NS):
        acc, off, c = slots[i]
        if i + depth < NS:
            rd(i + depth)
        if PRC and i % PRC == 0:
            I(f"s_setprio {3 - (i // PRC) % 4}")
        if i < 56 and i % 8 == 0:
            hcheck(i // 8)
        g.wait(tok[i])
        I(f"v_mfma_f32_32x32x16_bf16 {vr(acc,16)}, {vr(WFc+4*(i%nb),4)}, {vr(HF+4*c,4)}, {'0' if c == 0 else vr(acc,16)}")
        g.put(sched[i])
        if i in (55, 83, 111):
            stamp(f"slot{i}")
    g.put(rest)
    tlast = upart(A_, t2, 1)
    stamp("hh stored")
    DACC = 184
    frag = {n: 16 + 8 * n for n in range(14)}
    abuf = {c: 128 + 4 * c for c in range(14)}
    ta = {}
    vP = {(sL5, 114688): (vT0, vT1), (sL2, 0): (vT2, vT3), (sL3, 16384): (vT4, vT5), (sL3, 90112): (vINIT, vCNT - 0), (sL4, 57344): (252, 15)}
    vP[(sL3, 90112)] = (vG, vM16)
    dt_pattern(vFLAG, vT0, vT1)
    for (sreg, base), (a0, a1) in vP.items():
        I(f"v_add_u32 v{a0}, s{sreg}, v{vFLAG}")
        if base:
            I(f"v_add_u32 v{a0}, {base}, v{a0}")
        I(f"v_xor_b32 v{a1}, 64, v{a0}")

    def wd_read(m):
        n, rd_ = m // 2, m % 2
        sreg, imm = wslot[m]
        key = max((k for k in vP if k[0] == sreg and k[1] <= imm), key=lambda k: k[1])
        a = vP[key]
        imm -= key[1]
        t = None
        for nt in range(2):
            t = I(f"ds_read_b64_tr_b16 {vr(frag[n]+4*nt+2*rd_,2)}, v{a[nt]} offset:{imm}")
        return t

    def lda(c):
        for mt in range(2):
            I(f"s_add_u32 s{sT1}, s{sRA[c % 7]}, {mt*112*1024 + (4096 if c >= 7 else 0)}")
            ta[c, mt] = I(f"buffer_load_dwordx4 {vr(abuf[c]+4*mt,4)}, v{vL16}, {srd(sWS)}, s{sT1} offen sc1")

    def mm(c, first):
        for mt in range(2):
            g.wait(ta[c, mt])
            for nt in range(2):
                a = DACC + (mt * 2 + nt) * 16
                I(f"v_mfma_f32_32x32x16_bf16 {vr(a,16)}, {vr(frag[c]+4*nt,4)}, {vr(abuf[c]+4*mt,4)}, {'0' if first else vr(a,16)}")
    I("s_setprio 3")
    g.wait(tM)
    t = None
    for m in range(12):
        t = wd_read(m)
    g.wait(t)
    twd = {}
    for m in range(19, 28):
        twd[m] = wd_dma(m)
        if m == 22:
            th_ = hsig_issue(6, [tlast])
            hsig_check(0, th_)
    I("s_barrier")
    for m in range(12, 19):
        twd[m] = wd_dma(m)
    stamp("wd issued")
    I("s_setprio 0")
    lab = g.newlabel("L_fp")
    I(f"s_cmp_lg_u32 s{sW}, 0")
    I(f"s_cbranch_scc1 {lab}")
    g.cond_begin()
    hh_poll(0)
    g.cond_end()
    g.label(lab)
    g.wait(twd[27])
    for m in range(19, 28):
        wd_read(m)
    g.wait(twd[18])
    for m in range(12, 19):
        wd_read(m)
    g.wait_all(vm=False)
    I("s_barrier")
    stamp("hh flag")

    def lda1(c, mt):
        I(f"s_add_u32 s{sT1}, s{sRA[c % 7]}, {mt*112*1024 + (4096 if c >= 7 else 0)}")
        ta[c, mt] = I(f"buffer_load_dwordx4 {vr(abuf[c],4)}, v{vL16}, {srd(sWS)}, s{sT1} offen sc1")
    for c in range(14):
        lda1(c, 0)
    HR = 248
    I(f"v_and_b32 v{vT0}, 15, v0")
    I(f"v_lshrrev_b32 v{vT1}, 4, v0")
    I(f"v_lshrrev_b32 v{vFLAG}, 1, v{vT0}")
    I(f"v_lshlrev_b32 v{vFLAG}, 9, v{vFLAG}")
    I(f"v_lshl_add_u32 v{vFLAG}, v{vT1}, 4, v{vFLAG}")
    I(f"v_and_b32 v{vT2}, 1, v{vT0}")
    I(f"v_lshl_add_u32 v{vFLAG}, v{vT2}, 3, v{vFLAG}")
    I(f"s_mul_i32 s{sE}, s{sMD}, {28*1024}")
    I(f"s_lshl_b32 s{sT1}, s{sCB}, 12")
    I(f"s_add_u32 s{sE}, s{sE}, s{sT1}")
    I(f"s_add_u32 s{sE}, s{sE}, {WS_H}")
    I(f"s_add_u32 s{sD}, s{sE}, {28*1024}")
    I(f"s_mul_i32 s{sT0}, s{sW}, {64*272}")
    I(f"v_mul_u32_u24 v{vT3}, 272, v{vM}")
    I(f"v_lshl_add_u32 v{vT3}, v{vHB}, 4, v{vT3}")
    I(f"v_add_u32 v{vT3}, s{sT0}, v{vT3}")
    I(f"v_mul_u32_u24 v{vT4}, 272, v{vT1}")
    I(f"v_lshl_add_u32 v{vT4}, v{vT0}, 4, v{vT4}")
    I(f"v_add_u32 v{vT5}, {4*64*272}, v{vT4}")
    I(f"v_mul_u32_u24 v{vT2}, 896, v{vT1}")
    I(f"v_lshl_add_u32 v{vT2}, v{vT0}, 3, v{vT2}")
    I(f"s_mul_i32 s{sT0}, s{sMD}, {32*896}")
    I(f"s_lshl_b32 s{sT2}, s{sCB}, 7")
    I(f"s_add_u32 s{sT0}, s{sT0}, s{sT2}")
    I(f"s_add_u32 s{sT2}, s{sT0}, {32*896}")
    hold = {}

    def pw(mt, k):
        nt, q = k // 4, k % 4
        I(f"ds_write_b128 v{vT3}, {vr(DACC+(mt*2+nt)*16+4*q,4)} offset:{mt*32*272 + nt*128 + q*32}")

    def red_issue(mt, R):
        t = None
        for w in range(8):
            t = I(f"ds_read_b128 {vr(R+4*w,4)}, v{vT4 if w < 4 else vT5} offset:{(w%4)*64*272 + mt*32*272}")
        return t

    def red_fin(mt, R, t):
        g.wait(hold["thr"])
        U = R + 32
        for i in range(2):
            I(f"v_lshlrev_b32 v{U+2*i}, 16, v{HR+2*mt+i}")
            I(f"v_and_b32 v{U+2*i+1}, 0xffff0000, v{HR+2*mt+i}")
        g.wait(t)
        for k in (16, 8, 4):
            for i in range(k):
                I(f"v_add_f32 v{R+i}, v{R+i}, v{R+k+i}")
        for i in range(4):
            I(f"v_add_f32 v{R+i}, v{R+i}, v{U+i}")
        for i in range(2):
            I(f"v_cvt_pk_bf16_f32 v{R+4+i}, v{R+2*i}, v{R+2*i+1}")
        I(f"buffer_store_dwordx2 {vr(R+4,2)}, v{vT2}, {srd(sOUT)}, s{sT2 if mt else sT0} offen")
    for mt in range(2):
        for c in range(14):
            g.wait(ta[c, mt])
            for nt in range(2):
                a = DACC + (mt * 2 + nt) * 16
                I(f"v_mfma_f32_32x32x16_bf16 {vr(a,16)}, {vr(frag[c]+4*nt,4)}, {vr(abuf[c],4)}, {'0' if c == 0 else vr(a,16)}")
            if mt == 0:
                lda1(c, 1)
            elif 2 <= c < 10:
                pw(0, c - 2)
        if mt == 0:
            I(f"buffer_load_dwordx2 {vr(HR,2)}, v{vFLAG}, {srd(sWS)}, s{sE} offen sc1")
            hold["thr"] = I(f"buffer_load_dwordx2 {vr(HR+2,2)}, v{vFLAG}, {srd(sWS)}, s{sD} offen sc1")
            stamp("D early")
    stamp("D mfma")
    for k in range(8):
        pw(1, k)
    g.wait_all(vm=False)
    I("s_barrier")
    t0_ = red_issue(0, 16)
    t1_ = red_issue(1, 56)
    red_fin(0, 16, t0_)
    red_fin(1, 56, t1_)
    stamp("end")
    stamp("rt1", rt=True)
    if "span" in EXP:
        I(f"s_cmp_lg_u32 s{sW}, 7")
        I("s_cbranch_scc1 L_end")
        I("s_and_b32 s90, s2, 7")
        I("s_cmp_lg_u32 s90, 3")
        I("s_cbranch_scc1 L_end")
        I("s_waitcnt vmcnt(0)")
        I("s_memrealtime s[90:91]")
        I("s_memtime s[92:93]")
        I("s_waitcnt lgkmcnt(0)")
        I("s_mov_b64 exec, 1")
        I("s_not_b32 s86, s86")
        I("s_sub_u32 s92, s92, s100")
        I("v_mov_b32 v20, s86")
        I("v_mov_b32 v21, s90")
        I("v_mov_b32 v22, s92")
        I(f"buffer_atomic_umax v20, off, {srd(sDBG)}, 0 offset:4 sc1")
        I(f"buffer_atomic_umax v21, off, {srd(sDBG)}, 0 offset:8 sc1")
        I(f"buffer_atomic_umax v22, off, {srd(sDBG)}, 0 offset:12 sc1")


prologue()
two = phaseA()
twd = phaseB(two)
phaseCD(twd)
g.label("L_end")
I("s_endpgm")
for tl_ in TAILS:
    g.put(tl_)
g.insert_bg()
g.resolve_waits()
g.fix_hazards_fast()

hdr = open("cdna_kernels/" + NAME + ".s.ref").read().split("; Override launch geometry")[0]
out = hdr + f"""; @launch grid=(256,1,1) block=(512,1,1) lds=163840
.amdgcn_target "amdgcn-amd-amdhsa--gfx950"
.text
.globl {NAME}_kernel
.p2align 8
.type {NAME}_kernel,@function
{NAME}_kernel:
L_code_start:
{g.text()}
L_code_end:
.fill 64, 4, 0xbf800000
.section .rodata,"a"
.p2align 6
.amdhsa_kernel {NAME}_kernel
  .amdhsa_next_free_vgpr 256
  .amdhsa_next_free_sgpr 102
  .amdhsa_accum_offset 256
  .amdhsa_group_segment_fixed_size 0
  .amdhsa_kernarg_size 88
  .amdhsa_user_sgpr_count 2
  .amdhsa_user_sgpr_kernarg_segment_ptr 1
  .amdhsa_system_sgpr_workgroup_id_x 1
.end_amdhsa_kernel
"""
import subprocess, re as _re
open("_sz.s", "w").write(out.replace("CODE_LAST", "0x1000"))
subprocess.run(["clang", "-x", "assembler", "-target", "amdgcn-amd-amdhsa", "-mcpu=gfx950", "-c", "_sz.s", "-o", "_sz.o"], check=True)
_h = subprocess.run(["llvm-objdump", "-h", "_sz.o"], capture_output=True, text=True).stdout
_sz = int(_re.search(r"\.text\s+([0-9a-f]+)", _h).group(1), 16)
out = out.replace("CODE_LAST", hex(_sz - 768))
print("code bytes", _sz)
open(sys.argv[1], "w").write(out)
if STAMPS:
    open(sys.argv[1] + ".names", "w").write("\n".join(stamp_names))
print("instrs:", sum(1 for it in g.items if it.kind == "i"), "stamps:", nstamp[0])
```
